```python
import torch

def _softmax(x, axis=-1):
    return torch.softmax(x, dim=axis)
def _gelu(x):
    return torch.nn.functional.gelu(x, approximate="tanh")
def _silu(x):
    return torch.nn.functional.silu(x)
def _sigmoid(x):
    return torch.sigmoid(x)
def _layernorm(x, axis=-1, eps=1e-5):
    m = x.mean(dim=axis, keepdim=True)
    v = x.var(dim=axis, keepdim=True, unbiased=False)
    return (x - m) / torch.sqrt(v + eps)
def _scatter_add(tgt, idx, src, axis=0):
    return tgt.clone().index_add_(axis, idx, src)
def _segment_sum(src, seg, n):
    out = torch.zeros((n,) + src.shape[1:], dtype=src.dtype)
    return out.index_add_(0, seg, src)
def _pad(x, pw):
    flat = tuple(v for pair in reversed(pw) for v in pair)
    return torch.nn.functional.pad(x, flat)

kernel_name = 'concat_heads__sliding_block__sliding_block__prompt'

def setup_inputs():

    _w = (lambda a: (lambda t: t.to(torch.bfloat16) if t.is_floating_point() else t)(torch.as_tensor(a)))
    def _A_setup():
        B, S, D = 1, 2048, 576
        return {
            "x": _w((lambda *s: torch.randn(*s, dtype=torch.bfloat16) * 0.2)(B, S, D)),
            "wqkv": _w((lambda *s: torch.randn(*s, dtype=torch.bfloat16) * 0.2)(D, 3 * D)),
            "wo": _w((lambda *s: torch.randn(*s, dtype=torch.bfloat16) * 0.05)(D, D)),
        }
    _A_in = _A_setup()

    def _B_setup():
        B, S, D = 1, 2048, 576
        return {
            "x": _w((lambda *s: torch.randn(*s, dtype=torch.bfloat16) * 0.2)(B, S, D)),
            "wqkv": _w((lambda *s: torch.randn(*s, dtype=torch.bfloat16) * 0.2)(D, 3 * D)),
            "wo": _w((lambda *s: torch.randn(*s, dtype=torch.bfloat16) * 0.05)(D, D)),
        }
    _B_in = _B_setup()

    return {
        "A_x": _A_in["x"],
        "A_wqkv": _A_in["wqkv"],
        "A_wo": _A_in["wo"],
        "B_x": _B_in["x"],
        "B_wqkv": _B_in["wqkv"],
        "B_wo": _B_in["wo"],
    }

def reference(A_x, A_wqkv, A_wo, B_x, B_wqkv, B_wo):
    def _A_ref(x, wqkv, wo):
        B, S, D = x.shape
        H = 32; Dh = D // H; W = 256
        qkv = (lambda x, *d: x.permute(*d))((x @ wqkv).reshape(B, S, 3, H, Dh), 2, 0, 3, 1, 4)
        q, k, v = qkv[0], qkv[1], qkv[2]
        scores = torch.einsum("bhqd,bhkd->bhqk", q, k) * (Dh ** -0.5)
        idx = torch.arange(S)
        mask = (idx[:, None] - idx[None, :] >= 0) & (idx[:, None] - idx[None, :] < W)
        scores = torch.where(mask[None, None], scores, -1e9)
        p = _softmax(scores, axis=-1)
        o = torch.einsum("bhqk,bhkd->bhqd", p, v)
        return (lambda x, *d: x.permute(*d))(o, 0, 2, 1, 3).reshape(B, S, D) @ wo

    def _B_ref(x, wqkv, wo):
        B, S, D = x.shape
        H = 32; Dh = D // H; W = 256
        qkv = (lambda x, *d: x.permute(*d))((x @ wqkv).reshape(B, S, 3, H, Dh), 2, 0, 3, 1, 4)
        q, k, v = qkv[0], qkv[1], qkv[2]
        scores = torch.einsum("bhqd,bhkd->bhqk", q, k) * (Dh ** -0.5)
        idx = torch.arange(S)
        mask = (idx[:, None] - idx[None, :] >= 0) & (idx[:, None] - idx[None, :] < W)
        scores = torch.where(mask[None, None], scores, -1e9)
        p = _softmax(scores, axis=-1)
        o = torch.einsum("bhqk,bhkd->bhqd", p, v)
        return (lambda x, *d: x.permute(*d))(o, 0, 2, 1, 3).reshape(B, S, D) @ wo

    a = _A_ref(A_x, A_wqkv, A_wo)
    b = _B_ref(B_x, B_wqkv, B_wo)
    return torch.concatenate([a, b], axis=-1)
```

```python
import sys, math, struct

NAME = "concat_heads__sliding_block__sliding_block__prompt"

STAGE   = 49152
WO_BASE = 0
KV_OWN  = 82944
KV_HALO = 119808
Q_BASE  = 119808
MISC    = 156672
LDS_TOTAL = 163840
TILE    = 4608
QTILE   = 2304
WS_KV   = 0
WS_O    = 256*36864
WS_FLAG = WS_O + 16*294912
WS_OF   = WS_FLAG + 65536
TIMING_OFF = 24<<20
TAG_INC = 0x9E3779B1
NEG     = 0xFF61B1E6
QSCALE  = (18.0 ** -0.5) * math.log2(math.e)
def f32bits(x): return struct.unpack("<I", struct.pack("<f", x))[0]

class Asm:
    def __init__(self): self.l = []
    def __call__(self, s=""):
        for line in s.split("\n"):
            self.l.append("  " + line.strip() if line.strip() and not line.strip().endswith(":") else line.strip())
    def lab(self, n): self.l.append(n + ":")
    def c(self, s): self.l.append("  ; " + s)
    def text(self): return "\n".join(self.l) + "\n"

def vr(b, n=1): return f"v{b}" if n == 1 else f"v[{b}:{b+n-1}]"
def sr(b, n=1): return f"s{b}" if n == 1 else f"s[{b}:{b+n-1}]"

S_X, S_W, S_WO, S_WS, S_OUT = 8, 12, 16, 20, 24
S_B, S_S, S_HP, S_WID = 28, 29, 30, 31
S_T0, S_T1, S_T2, S_T3, S_T4, S_T5 = 32, 33, 34, 35, 36, 37
S_TAGIN, S_TAGOUT, S_TAGO = 40, 41, 42
S_K, S_C, S_SB, S_XB, S_WB = 43, 44, 45, 46, 47
S_LX, S_LW = 48, 49
S_N = 50
S_RET = 52
S_IDX = 54
S_GRP = 55
S_HEAD, S_M = 56, 57
S_SAVE = 58
S_CNT = 60
S_BAD = 62
S_RET2 = 64

V_TID, V_LANE = 0, 1
V_T = 2
V_AX = 10
V_AW = 12
V_G  = 19
V_MASK = 20
V_SET0 = 36
V_SET1 = 80
V_ACC = 124
V_X = 236

QA_M, QA_R, QB_M, QB_R = 36, 40, 44, 48
OA, OB = 52, 68
VS, VE, VP = 84, 100, 108
VKF, VKR, VVA, VVB = 116, 120, 124, 128
A_K, A_KR, A_V, B_K, B_KR, B_V, ST_V, ST_K, MK_V = 10, 11, 12, 13, 14, 15, 16, 17, 18
VPUB = 132

def spin_poll(a, name, check_lines, load_line, limit=2000000):
    a(f"s_mov_b32 s{S_CNT}, 0")
    a.lab(name)
    a(load_line)
    a(f"s_add_u32 s{S_CNT}, s{S_CNT}, 1")
    a("s_waitcnt vmcnt(0)")
    for l in check_lines: a(l)
    a(f"s_cbranch_scc1 {name}_OK")
    a(f"s_cmp_lt_u32 s{S_CNT}, {limit}")
    a(f"s_cbranch_scc1 {name}")
    a.lab(name + "_OK")

def run_code(a, name, QM, QR, O):
    def qk(creg):
        c = "0" if creg is None else f"v[{creg}:{creg+15}]"
        a(f"v_mfma_f32_32x32x16_bf16 v[{VS}:{VS+15}], v[{VKF}:{VKF+3}], v[{QM}:{QM+3}], {c}")
        a(f"v_mfma_f32_32x32x16_bf16 v[{VS}:{VS+15}], v[{VKR}:{VKR+3}], v[{QR}:{QR+3}], v[{VS}:{VS+15}]")
    def kread():
        a(f"ds_read_b128 v[{VKF}:{VKF+3}], v{A_K}")
        a(f"ds_read_b64 v[{VKR}:{VKR+1}], v{A_KR}")
    def kstep():
        a(f"v_add_u32 v{A_K}, v{ST_K}, v{A_K}")
        a(f"v_add_u32 v{A_KR}, v{ST_K}, v{A_KR}")
    def varead():
        a(f"ds_read_b64_tr_b16 v[{VVA}:{VVA+1}], v{A_V}")
        a(f"ds_read_b64_tr_b16 v[{VVA+2}:{VVA+3}], v{A_V} offset:576")
    def vbread():
        a(f"ds_read_b64_tr_b16 v[{VVB}:{VVB+1}], v{A_V} offset:1152")
        a(f"ds_read_b64_tr_b16 v[{VVB+2}:{VVB+3}], v{A_V} offset:1728")
    def unit(D):
        for r in range(8): a(f"v_exp_f32 v{VS+r}, v{VS+r}")
        for j in range(4): a(f"v_cvt_pk_bf16_f32 v{VP+j}, v{VS+2*j}, v{VS+2*j+1}")
        a(f"v_exp_f32 v{VE}, v{VS+8}")
        a(f"v_exp_f32 v{VE+1}, v{VS+9}")
        a("s_waitcnt lgkmcnt(4)")
        a(f"v_mfma_f32_32x32x16_bf16 v[{O}:{O+15}], v[{VVA}:{VVA+3}], v[{VP}:{VP+3}], v[{O}:{O+15}]")
        if D: varead()
        for r in range(2, 8): a(f"v_exp_f32 v{VE+r}, v{VS+8+r}")
        if D:
            a("s_waitcnt lgkmcnt(4)")
            qk(V_MASK if D == "mask" else None)
            kread()
        else:
            a("s_nop 0")
        for j in range(4): a(f"v_cvt_pk_bf16_f32 v{VP+4+j}, v{VE+2*j}, v{VE+2*j+1}")
        if D:
            kstep()
            a("s_waitcnt lgkmcnt(4)")
        else:
            a("s_nop 0")
            a("s_waitcnt lgkmcnt(0)")
        a(f"v_mfma_f32_32x32x16_bf16 v[{O}:{O+15}], v[{VVB}:{VVB+3}], v[{VP+4}:{VP+7}], v[{O}:{O+15}]")
        if D:
            vbread()
            a(f"v_add_u32 v{A_V}, v{ST_V}, v{A_V}")
    a.lab(name)
    kread()
    kstep()
    a(f"s_cmp_eq_u32 s{S_N}, 1")
    a(f"s_cbranch_scc1 {name}_M1")
    a("s_waitcnt lgkmcnt(0)")
    qk(None)
    varead(); kread(); vbread()
    kstep()
    a(f"v_add_u32 v{A_V}, v{ST_V}, v{A_V}")
    a(f"s_sub_u32 s{S_N}, s{S_N}, 2")
    a(f"s_cmp_eq_u32 s{S_N}, 0")
    a("s_nop 1")
    a(f"s_cbranch_scc1 {name}_MK")
    a.lab(name + "_LP")
    unit("plain")
    a(f"s_sub_u32 s{S_N}, s{S_N}, 1")
    a(f"s_cmp_lg_u32 s{S_N}, 0")
    a("s_nop 2")
    a(f"s_cbranch_scc1 {name}_LP")
    a.lab(name + "_MK")
    unit("mask")
    a("s_nop 5")
    a.lab(name + "_FN")
    unit(None)
    a(f"s_setpc_b64 s[{S_RET}:{S_RET+1}]")
    a.lab(name + "_M1")
    a("s_waitcnt lgkmcnt(0)")
    qk(V_MASK)
    varead(); kread(); vbread()
    a("s_nop 5")
    a(f"s_branch {name}_FN")

def set_run(a, region, tile_sreg, n_expr_lines, step):
    a(f"s_mul_i32 s{S_T0}, s{tile_sreg}, {TILE}")
    a(f"s_add_u32 s{S_T0}, s{S_T0}, {region}")
    a(f"v_add_u32 v{A_K}, s{S_T0}, v{B_K}")
    a(f"v_add_u32 v{A_KR}, s{S_T0}, v{B_KR}")
    a(f"v_and_b32 v{A_V}, s{S_T0}, v{MK_V}")
    a(f"v_add_u32 v{A_V}, v{B_V}, v{A_V}")
    a(f"v_mov_b32 v{ST_K}, {step & 0xffffffff:#x}")
    a(f"v_and_b32 v{ST_V}, v{ST_K}, v{MK_V}")
    for l in n_expr_lines: a(l)

def finalize(a, O, qb_sreg, tag):
    t = V_T
    R = VS
    a(f"v_mov_b32 v{t}, 0x21800000")
    a(f"v_mov_b32 v{t+1}, 0x5d800000")
    a(f"v_cmp_nge_f32 vcc, v{O+12}, v{t}")
    a(f"s_or_b64 s[{S_BAD}:{S_BAD+1}], s[{S_BAD}:{S_BAD+1}], vcc")
    a(f"v_cmp_nle_f32 vcc, v{O+12}, v{t+1}")
    a(f"s_or_b64 s[{S_BAD}:{S_BAD+1}], s[{S_BAD}:{S_BAD+1}], vcc")
    a(f"v_rcp_f32 v{t+2}, v{O+12}")
    a("s_nop 0")
    for r in range(12): a(f"v_mul_f32 v{O+r}, v{O+r}, v{t+2}")
    a(f"v_cvt_pk_bf16_f32 v{R}, v{O}, v{O+1}")
    a(f"v_cvt_pk_bf16_f32 v{R+1}, v{O+2}, v{O+3}")
    a(f"v_cvt_pk_bf16_f32 v{R+2}, v{O+4}, v{O+5}")
    a(f"v_cvt_pk_bf16_f32 v{R+3}, v{O+6}, v{O+7}")
    a(f"v_cvt_pk_bf16_f32 v{R+4}, v{O+8}, v{O+9}")
    a(f"v_cvt_pk_bf16_f32 v{R+5}, v{O+10}, v{O+11}")
    a(f"v_permlane32_swap_b32 v{R}, v{R+2}")
    a(f"v_permlane32_swap_b32 v{R+1}, v{R+3}")
    a(f"v_bfe_u32 v{t}, v{V_LANE}, 4, 1")
    a(f"v_mul_u32_u24 v{t}, {18*1024}, v{t}")
    a(f"v_and_b32 v{t+1}, 15, v{V_LANE}")
    a(f"v_lshl_add_u32 v{t}, v{t+1}, 4, v{t}")
    a(f"v_lshrrev_b32 v{t+1}, 5, v{V_LANE}")
    a(f"v_lshlrev_b32 v{t+1}, 8, v{t+1}")
    a(f"v_add_u32 v{t+1}, v{t}, v{t+1}")
    a(f"s_mul_i32 s{S_T0}, s{S_GRP}, 294912")
    a(f"s_add_u32 s{S_T0}, s{S_T0}, {WS_O}")
    a(f"s_mul_i32 s{S_T1}, s{qb_sreg}, {2*18*1024}")
    a(f"s_add_u32 s{S_T0}, s{S_T0}, s{S_T1}")
    a(f"s_lshl_b32 s{S_T1}, s{S_HP}, 10")
    a(f"s_lshl_b32 s{S_T2}, s{S_HEAD}, 9")
    a(f"s_add_u32 s{S_T1}, s{S_T1}, s{S_T2}")
    a(f"s_add_u32 s{S_T1}, s{S_T1}, s{S_T0}")
    a(f"buffer_store_dwordx4 v[{R}:{R+3}], v{t+1}, s[{S_WS}:{S_WS+3}], s{S_T1} offen sc1")
    a(f"s_lshr_b32 s{S_T1}, s{S_HP}, 3")
    a(f"s_add_u32 s{S_T1}, s{S_T1}, 16")
    a(f"s_lshl_b32 s{S_T1}, s{S_T1}, 10")
    a(f"s_bfe_u32 s{S_T2}, s{S_HP}, 0x20001")
    a(f"s_lshl_b32 s{S_T2}, s{S_T2}, 8")
    a(f"s_add_u32 s{S_T1}, s{S_T1}, s{S_T2}")
    a(f"s_and_b32 s{S_T2}, s{S_HP}, 1")
    a(f"s_lshl_b32 s{S_T2}, s{S_T2}, 3")
    a(f"s_add_u32 s{S_T1}, s{S_T1}, s{S_T2}")
    a(f"s_lshl_b32 s{S_T2}, s{S_HEAD}, 2")
    a(f"s_add_u32 s{S_T1}, s{S_T1}, s{S_T2}")
    a(f"s_add_u32 s{S_T1}, s{S_T1}, s{S_T0}")
    a(f"s_cmp_eq_u32 s{S_HEAD}, 0")
    a(f"s_cselect_b64 vcc, -1, 0")
    a(f"v_cndmask_b32_e64 v{R+4}, v{R+5}, v{R+4}, vcc")
    a(f"s_mov_b64 s[{S_SAVE}:{S_SAVE+1}], exec")
    a(f"s_mov_b32 exec_hi, 0")
    a(f"buffer_store_dword v{R+4}, v{t}, s[{S_WS}:{S_WS+3}], s{S_T1} offen sc1")
    a(f"s_mov_b64 exec, s[{S_SAVE}:{S_SAVE+1}]")

def phase2(a, debug_stage, ts):
    t = V_T; L = V_LANE
    a.c("======== phase 2 ========")
    a(f"v_readfirstlane_b32 s{S_TAGOUT}, v{V_X}")
    a(f"v_readfirstlane_b32 s{S_TAGIN}, v{V_X+1}")
    a(f"v_readfirstlane_b32 s{S_TAGO}, v{V_X+2}")
    a(f"s_add_u32 s{S_TAGOUT}, s{S_TAGOUT}, {TAG_INC}")
    a(f"s_add_u32 s{S_TAGIN}, s{S_TAGIN}, {TAG_INC}")
    a(f"s_add_u32 s{S_TAGO}, s{S_TAGO}, {TAG_INC}")
    a(f"s_mov_b64 s[{S_BAD}:{S_BAD+1}], 0")
    a(f"v_and_b32 v{t}, 31, v{L}")
    a(f"v_lshrrev_b32 v{t+1}, 5, v{L}")
    a(f"v_lshrrev_b32 v{t+2}, 2, v{t}")
    a(f"v_lshrrev_b32 v{t+3}, 3, v{t}")
    a(f"v_xor_b32 v{t+2}, v{t+2}, v{t+3}")
    a(f"v_xor_b32 v{t+2}, v{t+2}, v{t+1}")
    a(f"v_and_b32 v{t+2}, 1, v{t+2}")
    a(f"v_lshlrev_b32 v{t+2}, 4, v{t+2}")
    a(f"v_lshl_add_u32 v{t+2}, v{t}, 5, v{t+2}")
    a(f"s_lshl_b32 s{S_T0}, s{S_HEAD}, 10")
    a(f"v_add_u32 v{B_K}, s{S_T0}, v{t+2}")
    a(f"v_lshlrev_b32 v{B_KR}, 3, v{t}")
    a(f"v_add_u32 v{B_KR}, 2048, v{B_KR}")
    a(f"v_bfe_u32 v{t+2}, v{L}, 2, 2")
    a(f"v_lshl_add_u32 v{t+2}, v{t+1}, 2, v{t+2}")
    a(f"v_mul_u32_u24 v{t+2}, 72, v{t+2}")
    a(f"v_add_u32 v{t+2}, 2304, v{t+2}")
    a(f"v_and_b32 v{t+3}, 3, v{L}")
    a(f"v_lshlrev_b32 v{t+4}, 3, v{t+3}")
    a(f"s_mul_i32 s{S_T0}, s{S_HEAD}, 40")
    a(f"v_add3_u32 v{t+4}, v{t+4}, v{t+2}, s{S_T0}")
    a(f"v_add_u32 v{t+5}, 32, v{t+2}")
    a(f"v_bfe_u32 v{t+6}, v{L}, 4, 1")
    a(f"v_cmp_eq_u32 vcc, 1, v{t+6}")
    a(f"v_lshrrev_b32 v{t+7}, 1, v{t+3}")
    a(f"v_and_b32 v{t+7}, v{t+7}, v{t+6}")
    a(f"v_cndmask_b32 v{B_V}, v{t+4}, v{t+5}, vcc")
    a(f"v_cmp_eq_u32 vcc, 1, v{t+7}")
    a(f"v_mov_b32 v{t+5}, {MISC}")
    a(f"v_mov_b32 v{t+6}, -1")
    a(f"v_cndmask_b32 v{B_V}, v{B_V}, v{t+5}, vcc")
    a(f"v_cndmask_b32_e64 v{MK_V}, v{t+6}, 0, vcc")
    a(f"s_sub_u32 s{S_T5}, 7, s{S_M}")
    for (QM, QR, sreg) in ((QA_M, QA_R, S_M), (QB_M, QB_R, S_T5)):
        a(f"s_mul_i32 s{S_T0}, s{sreg}, {QTILE}")
        a(f"s_add_u32 s{S_T0}, s{S_T0}, {Q_BASE}")
        a(f"v_add_u32 v{t}, s{S_T0}, v{B_K}")
        a(f"v_add_u32 v{t+1}, s{S_T0}, v{B_KR}")
        a(f"ds_read_b128 v[{QM}:{QM+3}], v{t}")
        a(f"ds_read_b64 v[{QR}:{QR+1}], v{t+1}")
    a(f"s_cmp_eq_u32 s{S_S}, 7")
    a("s_cbranch_scc1 L_NOPUB")
    a(f"v_lshlrev_b32 v{t+2}, 4, v{L}")
    a(f"s_lshl_b32 s{S_T0}, s{S_WID}, 10")
    a(f"v_add_u32 v{t+2}, s{S_T0}, v{t+2}")
    a(f"v_add_u32 v{t+3}, {KV_OWN}, v{t+2}")
    for i in range(4):
        a(f"ds_read_b128 v[{VPUB+4*i}:{VPUB+4*i+3}], v{t+3} offset:{i*8192}")
    a(f"ds_read_b128 v[{VPUB+16}:{VPUB+19}], v{t+3} offset:32768")
    a(f"s_mul_i32 s{S_T1}, s{S_IDX}, 36864")
    a("s_waitcnt lgkmcnt(0)")
    for i in range(4):
        a(f"buffer_store_dwordx4 v[{VPUB+4*i}:{VPUB+4*i+3}], v{t+2}, s[{S_WS}:{S_WS+3}], s{S_T1} offen sc1")
        a(f"s_add_u32 s{S_T1}, s{S_T1}, 8192")
    a(f"s_cmp_ge_u32 s{S_WID}, 4")
    a("s_cbranch_scc1 L_NOPUB")
    a(f"buffer_store_dwordx4 v[{VPUB+16}:{VPUB+19}], v{t+2}, s[{S_WS}:{S_WS+3}], s{S_T1} offen sc1")
    a.lab("L_NOPUB")
    a("s_waitcnt lgkmcnt(0)")
    a("s_barrier")
    a(f"s_cmp_eq_u32 s{S_HEAD}, 0")
    a(f"s_cselect_b32 s{S_T0}, -1, 0")
    a(f"s_cselect_b32 s{S_T1}, 0, -1")
    a(f"v_cmp_gt_u32 vcc, 32, v{L}")
    a(f"v_mov_b32 v{t}, s{S_T0}")
    a(f"v_mov_b32 v{t+1}, s{S_T1}")
    a(f"v_cndmask_b32_e64 v{t}, 0, v{t}, vcc")
    a(f"v_cndmask_b32_e64 v{t+1}, 0, v{t+1}, vcc")
    for QR in (QA_R, QB_R):
        a(f"v_and_b32 v{QR}, v{QR}, v{t}")
        a(f"v_and_b32 v{QR+1}, v{QR+1}, v{t+1}")
        a(f"v_mov_b32 v{QR+2}, 0")
        a(f"v_mov_b32 v{QR+3}, 0")
    a(f"v_mov_b32 v{VKR+2}, 0")
    a(f"v_mov_b32 v{VKR+3}, 0")
    for r in range(16):
        a(f"v_mov_b32 v{OA+r}, 0")
        a(f"v_mov_b32 v{OB+r}, 0")
    ts(4)
    a(f"s_mov_b32 s{S_T4}, 0")
    set_run(a, KV_OWN, S_T4, [f"s_add_u32 s{S_N}, s{S_M}, 1"], TILE)
    a(f"s_call_b64 s[{S_RET}:{S_RET+1}], L_RUNA")
    a(f"s_cmp_eq_u32 s{S_S}, 7")
    a("s_cbranch_scc1 L_NOFLAG")
    a("s_waitcnt vmcnt(0)")
    a(f"s_lshl_b32 s{S_T0}, s{S_IDX}, 8")
    a(f"s_lshl_b32 s{S_T1}, s{S_WID}, 2")
    a(f"s_add_u32 s{S_T0}, s{S_T0}, s{S_T1}")
    a(f"s_add_u32 s{S_T0}, s{S_T0}, {WS_FLAG+128}")
    a(f"v_mov_b32 v{t}, 0")
    a(f"v_mov_b32 v{t+1}, s{S_TAGOUT}")
    a(f"s_mov_b64 s[{S_SAVE}:{S_SAVE+1}], exec")
    a(f"s_mov_b64 exec, 1")
    a(f"buffer_store_dword v{t+1}, v{t}, s[{S_WS}:{S_WS+3}], s{S_T0} offen sc1")
    a(f"s_mov_b64 exec, s[{S_SAVE}:{S_SAVE+1}]")
    a.lab("L_NOFLAG")
    a(f"s_mov_b32 s{S_T4}, 0")
    set_run(a, KV_OWN, S_T4, [f"s_sub_u32 s{S_N}, 8, s{S_M}"], TILE)
    a(f"s_call_b64 s[{S_RET}:{S_RET+1}], L_RUNB")
    ts(5)
    a(f"s_cmp_eq_u32 s{S_S}, 0")
    a("s_cbranch_scc1 L_FINAL")
    a(f"s_sub_u32 s{S_T5}, s{S_IDX}, 1")
    a(f"s_lshl_b32 s{S_T4}, s{S_T5}, 8")
    a(f"s_lshl_b32 s{S_T1}, s{S_WID}, 2")
    a(f"s_add_u32 s{S_T4}, s{S_T4}, s{S_T1}")
    a(f"s_add_u32 s{S_T4}, s{S_T4}, {WS_FLAG+128}")
    a(f"v_mov_b32 v{t}, 0")
    spin_poll(a, "L_POLL1",
              [f"v_readfirstlane_b32 s{S_T0}, v{t+1}", f"s_cmp_eq_u32 s{S_T0}, s{S_TAGIN}"],
              f"buffer_load_dword v{t+1}, v{t}, s[{S_WS}:{S_WS+3}], s{S_T4} offen sc1")
    ts(6)
    a(f"v_lshlrev_b32 v{t+2}, 4, v{L}")
    a(f"s_lshl_b32 s{S_T0}, s{S_WID}, 10")
    a(f"v_add_u32 v{t+2}, s{S_T0}, v{t+2}")
    a(f"s_mul_i32 s{S_T1}, s{S_T5}, 36864")
    for i in range(4):
        a(f"buffer_load_dwordx4 v[{VPUB+4*i}:{VPUB+4*i+3}], v{t+2}, s[{S_WS}:{S_WS+3}], s{S_T1} offen sc1")
        a(f"s_add_u32 s{S_T1}, s{S_T1}, 8192")
    a(f"v_add_u32 v{t+3}, {KV_HALO}, v{t+2}")
    a(f"s_cmp_ge_u32 s{S_WID}, 4")
    a("s_cbranch_scc1 L_H4")
    a(f"buffer_load_dwordx4 v[{VPUB+16}:{VPUB+19}], v{t+2}, s[{S_WS}:{S_WS+3}], s{S_T1} offen sc1")
    a("s_waitcnt vmcnt(0)")
    a(f"ds_write_b128 v{t+3}, v[{VPUB+16}:{VPUB+19}] offset:32768")
    a.lab("L_H4")
    a("s_waitcnt vmcnt(0)")
    for i in range(4):
        a(f"ds_write_b128 v{t+3}, v[{VPUB+4*i}:{VPUB+4*i+3}] offset:{i*8192}")
    a(f"s_cmp_lg_u32 s{S_WID}, 0")
    a("s_cbranch_scc1 L_NOG")
    a(f"s_lshl_b32 s{S_T0}, s{S_T5}, 8")
    a(f"s_add_u32 s{S_T0}, s{S_T0}, {WS_FLAG}")
    a(f"v_mov_b32 v{t+1}, s{S_TAGIN}")
    a(f"s_mov_b64 s[{S_SAVE}:{S_SAVE+1}], exec")
    a(f"s_mov_b64 exec, 1")
    a(f"buffer_store_dword v{t+1}, v{t}, s[{S_WS}:{S_WS+3}], s{S_T0} offen sc1")
    a(f"s_mov_b64 exec, s[{S_SAVE}:{S_SAVE+1}]")
    a.lab("L_NOG")
    a(f"v_mov_b32 v{t+1}, {NEG:#x}")
    for r in range(16): a(f"v_sub_f32 v{V_MASK+r}, v{t+1}, v{V_MASK+r}")
    a("s_waitcnt lgkmcnt(0)")
    a("s_barrier")
    ts(7)
    a(f"s_mov_b32 s{S_T4}, 7")
    set_run(a, KV_HALO, S_T4, [f"s_add_u32 s{S_N}, s{S_M}, 1"], -TILE)
    a(f"s_call_b64 s[{S_RET}:{S_RET+1}], L_RUNB")
    a(f"s_mov_b32 s{S_T4}, 7")
    set_run(a, KV_HALO, S_T4, [f"s_sub_u32 s{S_N}, 8, s{S_M}"], -TILE)
    a(f"s_call_b64 s[{S_RET}:{S_RET+1}], L_RUNA")
    a.lab("L_FINAL")
    ts(8)
    a("s_nop 7")
    a("s_nop 7")
    finalize(a, OA, S_M, "A")
    a(f"s_sub_u32 s{S_T5}, 7, s{S_M}")
    finalize(a, OB, S_T5, "B")
    a("s_branch L_P3")
    run_code(a, "L_RUNA", QA_M, QA_R, OA)
    run_code(a, "L_RUNB", QB_M, QB_R, OB)

def phase3(a, debug_stage, ts):
    t = V_T; L = V_LANE
    a.lab("L_P3")
    a.c("======== phase 3 ========")
    a("s_waitcnt vmcnt(0)")
    a("s_barrier")
    ts(9)
    a(f"s_lshl_b32 s{S_T4}, s{S_GRP}, 8")
    a(f"s_add_u32 s{S_T4}, s{S_T4}, {WS_OF}")
    a(f"s_cmp_lg_u32 s{S_WID}, 0")
    a("s_cbranch_scc1 L_P3W")
    a(f"s_lshl_b32 s{S_T0}, s{S_HP}, 2")
    a(f"s_add_u32 s{S_T0}, s{S_T0}, s{S_T4}")
    a(f"v_mov_b32 v{t}, 0")
    a(f"v_mov_b32 v{t+1}, s{S_TAGO}")
    a(f"s_mov_b64 s[{S_SAVE}:{S_SAVE+1}], exec")
    a(f"s_mov_b64 exec, 1")
    a(f"buffer_store_dword v{t+1}, v{t}, s[{S_WS}:{S_WS+3}], s{S_T0} offen offset:128 sc1")
    a(f"s_mov_b64 exec, 0xffff")
    a(f"v_lshlrev_b32 v{t}, 2, v{L}")
    spin_poll(a, "L_POLL2",
              [f"v_cmp_ne_u32 vcc, s{S_TAGO}, v{t+1}", "s_nop 1", f"s_cmp_eq_u64 vcc, 0"],
              f"buffer_load_dword v{t+1}, v{t}, s[{S_WS}:{S_WS+3}], s{S_T4} offen offset:128 sc1")
    a(f"s_cmp_lg_u32 s{S_HP}, 0")
    a("s_cbranch_scc1 L_NOG2")
    a(f"s_mov_b64 exec, 1")
    a(f"v_mov_b32 v{t}, 0")
    a(f"v_mov_b32 v{t+1}, s{S_TAGO}")
    a(f"buffer_store_dword v{t+1}, v{t}, s[{S_WS}:{S_WS+3}], s{S_T4} offen sc1")
    a.lab("L_NOG2")
    a(f"s_mov_b64 exec, s[{S_SAVE}:{S_SAVE+1}]")
    a.lab("L_P3W")
    a("s_barrier")
    ts(10)
    if debug_stage == 2:
        a("s_branch L_FIN")
        return
    OF = 36
    AC = 108
    WF0, WF1 = 148, 168
    AW, AW2 = 10, 11
    a(f"s_mul_i32 s{S_T0}, s{S_GRP}, 294912")
    a(f"s_add_u32 s{S_T0}, s{S_T0}, {WS_O}")
    a(f"s_lshr_b32 s{S_T1}, s{S_HP}, 3")
    a(f"s_lshl_b32 s{S_T1}, s{S_T1}, 3")
    a(f"s_lshl_b32 s{S_T2}, s{S_M}, 1")
    a(f"s_add_u32 s{S_T1}, s{S_T1}, s{S_T2}")
    a(f"s_mul_i32 s{S_T1}, s{S_T1}, 18")
    a(f"s_mul_i32 s{S_T2}, s{S_HEAD}, 9")
    a(f"s_add_u32 s{S_T1}, s{S_T1}, s{S_T2}")
    a(f"s_lshl_b32 s{S_T1}, s{S_T1}, 10")
    a(f"s_add_u32 s{S_T0}, s{S_T0}, s{S_T1}")
    a(f"v_lshlrev_b32 v{t}, 4, v{L}")
    a(f"s_add_u32 s{S_T1}, s{S_T0}, {18*1024}")
    for ks in range(9):
        for mt in range(2):
            r = OF + (mt*9+ks)*4
            sreg = S_T0 if mt == 0 else S_T1
            a(f"buffer_load_dwordx4 v[{r}:{r+3}], v{t}, s[{S_WS}:{S_WS+3}], s{sreg} offen sc1")
        a(f"s_add_u32 s{S_T0}, s{S_T0}, 1024")
        a(f"s_add_u32 s{S_T1}, s{S_T1}, 1024")
    a(f"v_lshrrev_b32 v{t+1}, 4, v{L}")
    a(f"v_bfe_u32 v{t+2}, v{L}, 2, 2")
    a(f"v_and_b32 v{t+3}, 3, v{L}")
    a(f"v_lshrrev_b32 v{t+4}, 1, v{t+1}")
    a(f"v_lshlrev_b32 v{t+4}, 2, v{t+4}")
    a(f"v_lshl_add_u32 v{t+4}, v{t+1}, 3, v{t+4}")
    a(f"v_add_u32 v{t+4}, v{t+4}, v{t+2}")
    a(f"v_mul_u32_u24 v{t+4}, 144, v{t+4}")
    a(f"v_lshl_add_u32 v{t+4}, v{t+3}, 3, v{t+4}")
    a(f"s_mul_i32 s{S_T0}, s{S_HEAD}, {9*5184}")
    a(f"v_add_u32 v{AW}, s{S_T0}, v{t+4}")
    a(f"v_mul_u32_u24 v{t+4}, 72, v{t+1}")
    a(f"v_add3_u32 v{t+4}, v{t+4}, v{t+2}, 16")
    a(f"v_mul_u32_u24 v{t+4}, 144, v{t+4}")
    a(f"v_lshl_add_u32 v{AW2}, v{t+3}, 3, v{t+4}")
    for i in range(40): a(f"v_mov_b32 v{AC+i}, 0")
    def wreads(ks, kh, WF):
        l = []
        kap = 9*kh + ks
        for T in range(5):
            b = WF + 4*T
            if kap < 16:
                o0 = ks*5184 + T*32
                l.append(f"ds_read_b64_tr_b16 v[{b}:{b+1}], v{AW} offset:{o0}")
                l.append(f"ds_read_b64_tr_b16 v[{b+2}:{b+3}], v{AW} offset:{o0+576}")
            else:
                o0 = (kap-16)*8*36*144 + T*32
                l.append(f"ds_read_b64_tr_b16 v[{b}:{b+1}], v{AW2} offset:{o0}")
                l.append(f"ds_read_b64_tr_b16 v[{b+2}:{b+3}], v{AW2} offset:{o0+36*144}")
        return l
    def body(kh):
        for rd in wreads(0, kh, WF0): a(rd)
        for ks in range(9):
            cur = WF0 if ks % 2 == 0 else WF1
            nxt = WF1 if ks % 2 == 0 else WF0
            a(f"s_waitcnt vmcnt({2*(8-ks)}) lgkmcnt(0)")
            rs = wreads(ks+1, kh, nxt) if ks < 8 else []
            ri = 0
            for T in range(5):
                for mt in range(2):
                    d = AC + (mt*5+T)*4
                    o = OF + (mt*9+ks)*4
                    a(f"v_mfma_f32_16x16x32_bf16 v[{d}:{d+3}], v[{cur+4*T}:{cur+4*T+3}], v[{o}:{o+3}], v[{d}:{d+3}]")
                    if ri < len(rs): a(rs[ri]); ri += 1
    a(f"s_cmp_eq_u32 s{S_HEAD}, 0")
    a("s_cbranch_scc0 L_P3K1")
    body(0)
    a("s_branch L_P3R")
    a.lab("L_P3K1")
    body(1)
    a.lab("L_P3R")
    ts(11)
    a("s_nop 7")
    a("s_barrier")
    a(f"v_lshlrev_b32 v{t}, 4, v{L}")
    a(f"s_mul_i32 s{S_T0}, s{S_WID}, 5120")
    a(f"s_add_u32 s{S_T0}, s{S_T0}, {KV_OWN}")
    a(f"v_add_u32 v{t+1}, s{S_T0}, v{t}")
    a(f"s_xor_b32 s{S_T1}, s{S_WID}, 4")
    a(f"s_mul_i32 s{S_T1}, s{S_T1}, 5120")
    a(f"s_add_u32 s{S_T1}, s{S_T1}, {KV_OWN}")
    a(f"v_add_u32 v{t+2}, s{S_T1}, v{t}")
    a(f"s_cmp_eq_u32 s{S_HEAD}, 0")
    a("s_cbranch_scc0 L_P3X1")
    for T in range(5): a(f"ds_write_b128 v{t+1}, v[{AC+(5+T)*4}:{AC+(5+T)*4+3}] offset:{T*1024}")
    a("s_branch L_P3X2")
    a.lab("L_P3X1")
    for T in range(5): a(f"ds_write_b128 v{t+1}, v[{AC+T*4}:{AC+T*4+3}] offset:{T*1024}")
    a("s_nop 1")
    for i in range(20): a(f"v_mov_b32 v{AC+i}, v{AC+20+i}")
    a.lab("L_P3X2")
    a("s_waitcnt lgkmcnt(0)")
    a("s_barrier")
    PX = WF0
    for T in range(5): a(f"ds_read_b128 v[{PX+4*T}:{PX+4*T+3}], v{t+2} offset:{T*1024}")
    a("s_waitcnt lgkmcnt(0)")
    for i in range(20): a(f"v_add_f32 v{AC+i}, v{AC+i}, v{PX+i}")
    for T in range(5):
        a(f"v_cvt_pk_bf16_f32 v{PX+2*T}, v{AC+4*T}, v{AC+4*T+1}")
        a(f"v_cvt_pk_bf16_f32 v{PX+2*T+1}, v{AC+4*T+2}, v{AC+4*T+3}")
    a(f"v_and_b32 v{t}, 15, v{L}")
    a(f"v_mul_u32_u24 v{t}, 144, v{t}")
    a(f"v_lshrrev_b32 v{t+1}, 4, v{L}")
    a(f"v_lshl_add_u32 v{t}, v{t+1}, 3, v{t}")
    a(f"s_mul_i32 s{S_T0}, s{S_WID}, 2304")
    a(f"s_add_u32 s{S_T0}, s{S_T0}, {KV_HALO+8192}")
    a(f"v_add_u32 v{t}, s{S_T0}, v{t}")
    for T in range(4): a(f"ds_write_b64 v{t}, v[{PX+2*T}:{PX+2*T+1}] offset:{T*32}")
    a(f"s_mov_b64 s[{S_SAVE}:{S_SAVE+1}], exec")
    a(f"s_mov_b32 exec_hi, 0")
    a(f"ds_write_b64 v{t}, v[{PX+8}:{PX+9}] offset:128")
    a(f"s_mov_b64 exec, s[{S_SAVE}:{S_SAVE+1}]")
    a(f"s_lshr_b32 s{S_T1}, s{S_HP}, 3")
    a(f"s_lshl_b32 s{S_T1}, s{S_T1}, 7")
    a(f"s_lshl_b32 s{S_T2}, s{S_S}, 8")
    a(f"s_add_u32 s{S_T1}, s{S_T1}, s{S_T2}")
    a(f"s_lshl_b32 s{S_T2}, s{S_M}, 5")
    a(f"s_add_u32 s{S_T1}, s{S_T1}, s{S_T2}")
    a(f"s_lshl_b32 s{S_T2}, s{S_HEAD}, 4")
    a(f"s_add_u32 s{S_T1}, s{S_T1}, s{S_T2}")
    a(f"s_mul_i32 s{S_T1}, s{S_T1}, 2304")
    a(f"s_mul_i32 s{S_T2}, s{S_B}, 1152")
    a(f"s_add_u32 s{S_T1}, s{S_T1}, s{S_T2}")
    a(f"s_and_b32 s{S_T2}, s{S_HP}, 7")
    a(f"s_mul_i32 s{S_T2}, s{S_T2}, 144")
    a(f"s_add_u32 s{S_T1}, s{S_T1}, s{S_T2}")
    a("s_waitcnt lgkmcnt(0)")
    for i in range(3):
        a(f"v_add_u32 v{t+1}, {i*64}, v{L}")
        a(f"v_lshlrev_b32 v{t+2}, 4, v{t+1}")
        a(f"v_add_u32 v{t+2}, s{S_T0}, v{t+2}")
        a(f"ds_read_b128 v[{AC+4*i}:{AC+4*i+3}], v{t+2}")
        a(f"v_mul_u32_u24 v{t+3}, 7282, v{t+1}")
        a(f"v_lshrrev_b32 v{t+3}, 16, v{t+3}")
        a(f"v_mul_u32_u24 v{t+4}, 9, v{t+3}")
        a(f"v_sub_u32 v{t+4}, v{t+1}, v{t+4}")
        a(f"v_mul_u32_u24 v{t+3}, 2304, v{t+3}")
        a(f"v_lshl_add_u32 v{AC+12+i}, v{t+4}, 4, v{t+3}")
    a("s_waitcnt lgkmcnt(0)")
    for i in range(3):
        if i == 2:
            a(f"s_mov_b64 exec, 0xffff")
        a(f"buffer_store_dwordx4 v[{AC+4*i}:{AC+4*i+3}], v{AC+12+i}, s[{S_OUT}:{S_OUT+3}], s{S_T1} offen")
    a(f"s_mov_b64 exec, -1")

def gen(debug_stage=0, timing=False, exp=''):
    a = Asm()
    a(f"""; Kernarg layout (72 bytes): A_x, A_wqkv, A_wo, B_x, B_wqkv, B_wo, out, debug, ws
; @launch grid=(256,1,1) block=(512,1,1) lds={LDS_TOTAL}""")
    a.l = [x.strip() for x in a.l]
    a(f""".amdgcn_target "amdgcn-amd-amdhsa--gfx950"
.text
.globl {NAME}_kernel
.p2align 8
.type {NAME}_kernel,@function""")
    a.lab(f"{NAME}_kernel")
    a("s_cmp_ge_u32 s2, 256")
    a("s_cbranch_scc1 L_END")
    a(f"s_and_b32 s3, s2, 7")
    a(f"s_lshr_b32 s{S_B}, s3, 2")
    a(f"s_mul_i32 s{S_T0}, s{S_B}, 24")
    a(f"s_add_u32 s4, s0, s{S_T0}")
    a(f"s_addc_u32 s5, s1, 0")
    a(f"s_load_dwordx2 s[{S_X}:{S_X+1}], s[4:5], 0")
    a(f"s_load_dwordx2 s[{S_W}:{S_W+1}], s[4:5], 8")
    a(f"s_load_dwordx2 s[{S_WO}:{S_WO+1}], s[4:5], 16")
    a(f"s_load_dwordx2 s[{S_OUT}:{S_OUT+1}], s[0:1], 48")
    a(f"s_load_dwordx2 s[{S_WS}:{S_WS+1}], s[0:1], 64")
    def ts(i):
        if timing: a(f"s_memtime s[{70+2*i}:{71+2*i}]")
    a.ts = ts
    if timing:
        for i in range(12): a(f"s_mov_b32 s{70+2*i}, 0")
    ts(0)
    a(f"s_lshr_b32 s{S_T1}, s2, 3")
    a(f"s_lshr_b32 s{S_T2}, s3, 1")
    a(f"s_and_b32 s{S_T2}, s{S_T2}, 1")
    a(f"s_lshl_b32 s{S_T2}, s{S_T2}, 2")
    a(f"s_and_b32 s{S_T3}, s{S_T1}, 3")
    a(f"s_add_u32 s{S_S}, s{S_T2}, s{S_T3}")
    a(f"s_and_b32 s{S_T2}, s3, 1")
    a(f"s_lshl_b32 s{S_T2}, s{S_T2}, 3")
    a(f"s_lshr_b32 s{S_T4}, s{S_T1}, 2")
    a(f"s_add_u32 s{S_HP}, s{S_T2}, s{S_T4}")
    a(f"s_lshl_b32 s{S_T3}, s{S_T3}, 1")
    a(f"s_add_u32 s{S_C}, s{S_T4}, s{S_T3}")
    a(f"s_cmp_ge_u32 s{S_C}, 9")
    a(f"s_cselect_b32 s{S_T3}, 9, 0")
    a(f"s_sub_u32 s{S_C}, s{S_C}, s{S_T3}")
    a(f"s_lshl_b32 s{S_T0}, s{S_B}, 4")
    a(f"s_add_u32 s{S_T0}, s{S_T0}, s{S_HP}")
    a(f"s_lshl_b32 s{S_T0}, s{S_T0}, 3")
    a(f"s_add_u32 s{S_IDX}, s{S_T0}, s{S_S}")
    a(f"s_lshl_b32 s{S_T0}, s{S_B}, 3")
    a(f"s_add_u32 s{S_GRP}, s{S_T0}, s{S_S}")
    a(f"v_lshrrev_b32 v{V_T}, 6, v0")
    a(f"v_and_b32 v{V_LANE}, 63, v0")
    a(f"v_readfirstlane_b32 s{S_WID}, v{V_T}")
    for (r, n) in ((S_X, 2359296), (S_W, 1990656), (S_WO, 663552), (S_WS, 268435456), (S_OUT, 4718592)):
        a(f"s_mov_b32 s{r+2}, {n}")
        a(f"s_mov_b32 s{r+3}, 0x00020000")
    a(f"s_and_b32 s{S_M}, s{S_WID}, 3")
    a(f"s_lshr_b32 s{S_HEAD}, s{S_WID}, 2")
    a(f"s_cmp_ge_u32 s{S_WID}, 4")
    a("s_cbranch_scc1 L_LOADER")

    L = V_LANE
    t = V_T
    a.c("compute-wave address setup")
    a(f"v_and_b32 v{t}, 15, v{L}")
    a(f"v_lshrrev_b32 v{t+1}, 4, v{L}")
    a(f"v_lshrrev_b32 v{t+2}, 1, v{t}")
    a(f"s_lshl_b32 s{S_T0}, s{S_WID}, 6")
    a(f"v_add_u32 v{t+3}, s{S_T0}, v{t}")
    a(f"v_lshlrev_b32 v{t+3}, 7, v{t+3}")
    a(f"v_xor_b32 v{t+4}, v{t+1}, v{t+2}")
    a(f"v_lshlrev_b32 v{t+5}, 4, v{t+4}")
    a(f"v_add_u32 v{V_AX}, v{t+3}, v{t+5}")
    a(f"v_xor_b32 v{t+4}, 4, v{t+4}")
    a(f"v_lshlrev_b32 v{t+5}, 4, v{t+4}")
    a(f"v_add_u32 v{V_AX+1}, v{t+3}, v{t+5}")
    a(f"v_bfe_u32 v{t}, v{L}, 2, 2")
    a(f"v_and_b32 v{t+2}, 3, v{L}")
    a(f"v_and_b32 v{t+3}, 1, v{t+1}")
    a(f"v_lshl_add_u32 v{t+3}, v{t+3}, 2, v{t}")
    a(f"v_lshlrev_b32 v{t+3}, 5, v{t+3}")
    a(f"v_lshl_add_u32 v{t+4}, v{t+1}, 3, v{t}")
    a(f"v_lshlrev_b32 v{t+4}, 8, v{t+4}")
    a(f"v_add_u32 v{t+4}, 32768, v{t+4}")
    a(f"v_lshlrev_b32 v{t+5}, 3, v{t+2}")
    a(f"s_and_b32 s{S_T1}, s{S_HP}, 1")
    a(f"s_lshl_b32 s{S_T1}, s{S_T1}, 3")
    a(f"v_add3_u32 v{t+5}, v{t+5}, v{t+3}, s{S_T1}")
    for T in range(6):
        sig, h = T >> 1, T & 1
        off = 80*sig + (40 if h else 0)
        a(f"v_add_u32 v{t+6}, {off}, v{t+5}")
        a(f"v_and_b32 v{t+6}, 255, v{t+6}")
        a(f"v_add_u32 v{V_AW+T}, v{t+4}, v{t+6}")
    a(f"v_min_u32 v{t+6}, 2, v{t+2}")
    a(f"v_mul_u32_u24 v{t+6}, 80, v{t+6}")
    a(f"v_add3_u32 v{t+6}, v{t+6}, v{t+3}, s{S_T1}")
    a(f"v_add_u32 v{t+6}, 32, v{t+6}")
    a(f"v_and_b32 v{t+6}, 255, v{t+6}")
    a(f"v_add_u32 v{V_AW+6}, v{t+4}, v{t+6}")
    for i in range(112):
        a(f"v_mov_b32 v{V_ACC+i}, 0")
    a("s_branch L_COMMON")

    a.lab("L_LOADER")
    a(f"s_sub_u32 s{S_T5}, s{S_WID}, 4")
    a(f"v_lshrrev_b32 v{t}, 3, v{L}")
    a(f"v_mul_u32_u24 v{t}, 1152, v{t}")
    a(f"v_lshrrev_b32 v{t+1}, 4, v{L}")
    a(f"v_and_b32 v{t+2}, 7, v{L}")
    a(f"v_xor_b32 v{t+3}, v{t+2}, v{t+1}")
    a(f"v_lshl_add_u32 v{V_AX}, v{t+3}, 4, v{t}")
    a(f"v_xor_b32 v{t+3}, 4, v{t+3}")
    a(f"v_lshl_add_u32 v{V_AX+1}, v{t+3}, 4, v{t}")
    a(f"s_mul_i32 s{S_T0}, s{S_HP}, 72")
    a(f"s_and_b32 s{S_T0}, s{S_T0}, 0xfffffff0")
    a(f"v_and_b32 v{t+2}, 15, v{L}")
    a(f"v_mul_u32_u24 v{t+4}, 3456, v{t+1}")
    a(f"v_add_u32 v{t+4}, s{S_T0}, v{t+4}")
    for var in range(2):
        a(f"v_lshlrev_b32 v{t+3}, 1, v{t+1}")
        a(f"v_sub_u32 v{t+3}, v{t+2}, v{t+3}")
        if var: a(f"v_subrev_u32 v{t+3}, 8, v{t+3}")
        a(f"v_and_b32 v{t+3}, 15, v{t+3}")
        a(f"v_min_u32 v{t+3}, 14, v{t+3}")
        a(f"v_mul_u32_u24 v{t+5}, 13, v{t+3}")
        a(f"v_lshrrev_b32 v{t+5}, 6, v{t+5}")
        a(f"v_mul_u32_u24 v{t+6}, 5, v{t+5}")
        a(f"v_sub_u32 v{t+6}, v{t+3}, v{t+6}")
        a(f"v_mul_u32_u24 v{t+5}, 1152, v{t+5}")
        a(f"v_lshl_add_u32 v{t+6}, v{t+6}, 4, v{t+5}")
        a(f"v_add_u32 v{V_AX+2+var}, v{t+4}, v{t+6}")
    a(f"s_lshl_b32 s{S_T0}, s{S_S}, 8")
    a(f"s_lshl_b32 s{S_T1}, s{S_T5}, 6")
    a(f"s_add_u32 s{S_T0}, s{S_T0}, s{S_T1}")
    a(f"s_mul_i32 s{S_XB}, s{S_T0}, 1152")
    a(f"s_mul_i32 s{S_WB}, s{S_T5}, {16*3456}")
    a(f"s_lshl_b32 s{S_LX}, s{S_T5}, 13")
    a(f"s_lshl_b32 s{S_LW}, s{S_T5}, 12")
    a(f"s_add_u32 s{S_LW}, s{S_LW}, 32768")
    a(f"s_mov_b32 s{S_SB}, 0")

    a.lab("L_COMMON")
    a("s_waitcnt lgkmcnt(0)")
    a(f"s_lshl_b32 s{S_T0}, s{S_IDX}, 8")
    a(f"s_add_u32 s{S_T0}, s{S_T0}, {WS_FLAG}")
    a(f"s_lshl_b32 s{S_T1}, s{S_GRP}, 8")
    a(f"s_add_u32 s{S_T1}, s{S_T1}, {WS_OF}")
    a(f"v_mov_b32 v{t}, 0")
    a(f"buffer_load_dword v{V_X}, v{t}, s[{S_WS}:{S_WS+3}], s{S_T0} offen sc1")
    a(f"s_sub_u32 s{S_T0}, s{S_T0}, 256")
    a(f"buffer_load_dword v{V_X+1}, v{t}, s[{S_WS}:{S_WS+3}], s{S_T0} offen sc1")
    a(f"buffer_load_dword v{V_X+2}, v{t}, s[{S_WS}:{S_WS+3}], s{S_T1} offen sc1")
    a(f"s_cmp_ge_u32 s{S_WID}, 4")
    a("s_cbranch_scc1 L_LOADER2")

    def emit_masks():
        a(f"v_and_b32 v{t}, 31, v{L}")
        a(f"v_lshrrev_b32 v{t+1}, 5, v{L}")
        a(f"v_lshlrev_b32 v{t+1}, 2, v{t+1}")
        a(f"v_sub_u32 v{t}, v{t}, v{t+1}")
        a(f"v_mov_b32 v{t+1}, {NEG:#x}")
        for r in range(16):
            jj = (r & 3) + 8*(r >> 2)
            a(f"v_cmp_le_i32 vcc, {jj}, v{t}")
            a("s_nop 1")
            a(f"v_cndmask_b32_e64 v{V_MASK+r}, v{t+1}, 0, vcc")
    emit_masks()
    a(f"v_mov_b32 v{t+2}, 0x3f803f80")
    a(f"v_mov_b32 v{t+3}, 0x3f803f80")
    a(f"v_mul_u32_u24 v{t+4}, 576, v{L}")
    a(f"v_add_u32 v{t+4}, {MISC}, v{t+4}")
    a(f"v_cmp_gt_u32 vcc, 4, v{L}")
    a(f"s_and_saveexec_b64 s[{S_SAVE}:{S_SAVE+1}], vcc")
    a(f"ds_write_b64 v{t+4}, v[{t+2}:{t+3}]")
    a(f"s_mov_b64 exec, s[{S_SAVE}:{S_SAVE+1}]")
    a("s_waitcnt vmcnt(0) lgkmcnt(0)")
    a("s_barrier")
    ts(1)
    def reads(setb, ks):
        r = []
        xs = [(f"ds_read_b128 v[{setb+4*mt}:{setb+4*mt+3}], v{V_AX+ks} offset:{mt*2048}") for mt in range(4)]
        ws = []
        for T in range(7):
            b = setb + 16 + 4*T
            ws.append(f"ds_read_b64_tr_b16 v[{b}:{b+1}], v{V_AW+T} offset:{ks*8192}")
            ws.append(f"ds_read_b64_tr_b16 v[{b+2}:{b+3}], v{V_AW+T} offset:{ks*8192+1024}")
        r += [xs[0], ws[0], ws[1], xs[1], ws[2], ws[3], xs[2], ws[4], ws[5], xs[3]] + ws[6:]
        return r
    def mfmas(setb):
        m = []
        for T in range(7):
            for mt in range(4):
                d = V_ACC + (mt*7+T)*4
                m.append(f"v_mfma_f32_16x16x32_bf16 v[{d}:{d+3}], v[{setb+16+4*T}:{setb+16+4*T+3}], v[{setb+4*mt}:{setb+4*mt+3}], v[{d}:{d+3}]")
        return m
    def interleave(ms, rs):
        if 'nomfma' in exp: ms = []
        if 'noread' in exp: rs = []
        ri = 0
        for i, m in enumerate(ms):
            a(m)
            if ri < len(rs) and i < 24:
                if i % 4 != 3:
                    a(rs[ri]); ri += 1
        while ri < len(rs):
            a(rs[ri]); ri += 1
    for rd in reads(V_SET0, 0): a(rd)
    a(f"s_mov_b32 s{S_K}, 0")
    a(f"s_mov_b32 s{S_SB}, 0")
    a.lab("L_GEMM")
    a("s_waitcnt lgkmcnt(0)")
    interleave(mfmas(V_SET0), reads(V_SET1, 1))
    a(f"s_add_u32 s{S_SB}, s{S_SB}, 1")
    a(f"s_cmp_eq_u32 s{S_SB}, 3")
    a(f"s_mov_b32 s{S_T0}, {STAGE}")
    a(f"s_cselect_b32 s{S_T0}, {(-2*STAGE) & 0xffffffff}, s{S_T0}")
    a(f"s_cselect_b32 s{S_SB}, 0, s{S_SB}")
    a("s_waitcnt lgkmcnt(0)")
    a("s_barrier")
    for i in range(9):
        a(f"v_add_u32 v{V_AX+i}, s{S_T0}, v{V_AX+i}")
    interleave(mfmas(V_SET1), reads(V_SET0, 0))
    a(f"s_add_u32 s{S_K}, s{S_K}, 1")
    a(f"s_cmp_lt_u32 s{S_K}, 9")
    a("s_cbranch_scc1 L_GEMM")
    ts(2)
    a.c("phase-1 epilogue")
    a("s_waitcnt lgkmcnt(0)")
    acc = lambda mt, T: V_ACC + (mt*7+T)*4
    E = V_SET0
    a(f"v_and_b32 v{t}, 15, v{L}")
    a(f"v_lshrrev_b32 v{t+1}, 4, v{L}")
    a(f"v_and_b32 v{t+2}, 1, v{t+1}")
    a(f"v_lshl_add_u32 v{t+2}, v{t+2}, 4, v{t}")
    a(f"v_lshrrev_b32 v{t+3}, 2, v{t}")
    a(f"v_lshrrev_b32 v{t+4}, 3, v{t}")
    a(f"v_xor_b32 v{t+3}, v{t+3}, v{t+4}")
    a(f"v_lshrrev_b32 v{t+4}, 1, v{t+1}")
    a(f"v_xor_b32 v{t+3}, v{t+3}, v{t+4}")
    a(f"v_and_b32 v{t+3}, 1, v{t+3}")
    a(f"v_lshlrev_b32 v{t+3}, 4, v{t+3}")
    a(f"v_lshl_add_u32 v{t+3}, v{t+2}, 5, v{t+3}")
    a(f"s_mul_i32 s{S_T0}, s{S_WID}, {2*TILE}")
    a(f"s_add_u32 s{S_T0}, s{S_T0}, {KV_OWN}")
    a(f"s_mul_i32 s{S_T1}, s{S_WID}, {2*QTILE}")
    a(f"s_add_u32 s{S_T1}, s{S_T1}, {Q_BASE}")
    vEK, vEQ, vEV, vE6, vDr, vDt, vF = V_AX, V_AX+1, V_AX+2, V_AX+3, V_AX+4, V_AX+5, V_AX+6
    a(f"v_add_u32 v{vEK}, s{S_T0}, v{t+3}")
    a(f"v_add_u32 v{vEQ}, s{S_T1}, v{t+3}")
    a(f"v_mul_u32_u24 v{t+4}, 72, v{t}")
    a(f"v_lshl_add_u32 v{t+5}, v{t+1}, 3, v{t+4}")
    a(f"v_add_u32 v{t+5}, 2304, v{t+5}")
    a(f"v_add_u32 v{vEV}, s{S_T0}, v{t+5}")
    a(f"v_lshlrev_b32 v{t+5}, 3, v{t}")
    a(f"v_add_u32 v{t+5}, 2048, v{t+5}")
    a(f"v_add_u32 v{t+6}, s{S_T1}, v{t+5}")
    a(f"v_add_u32 v{t+7}, s{S_T0}, v{t+5}")
    a(f"v_add_u32 v{t+4}, {2304+32}, v{t+4}")
    a(f"v_add_u32 v{t+4}, s{S_T0}, v{t+4}")
    a(f"v_mov_b32 v{vDr}, 128")
    a(f"v_mov_b32 v{vDt}, {TILE}")
    a(f"v_mov_b32 v{vF}, 1.0")
    a(f"v_mov_b32 v{vE6}, v{t+7}")
    a(f"v_cmp_eq_u32 vcc, 0, v{t+1}")
    a(f"v_mov_b32 v{t+5}, {QTILE}")
    a(f"v_mov_b32 v{t+7}, {f32bits(QSCALE):#x}")
    a(f"v_cndmask_b32 v{vE6}, v{vE6}, v{t+6}, vcc")
    a(f"v_cndmask_b32 v{vDt}, v{vDt}, v{t+5}, vcc")
    a(f"v_cndmask_b32 v{vF}, v{vF}, v{t+7}, vcc")
    a(f"v_cmp_eq_u32 vcc, 2, v{t+1}")
    a(f"v_mov_b32 v{t+5}, 1152")
    a(f"v_mov_b32 v{t+6}, v{t+7}")
    a(f"v_cndmask_b32 v{vE6}, v{vE6}, v{t+4}, vcc")
    a(f"v_cndmask_b32 v{vDr}, v{vDr}, v{t+5}, vcc")
    a(f"v_mov_b32 v{vF+1}, v{vF}")
    assert (t+6) % 2 == 0 and vF % 2 == 0
    for mt in range(4):
        for T in (0, 1):
            d = acc(mt, T)
            a(f"v_pk_mul_f32 v[{d}:{d+1}], v[{d}:{d+1}], v[{t+6}:{t+7}]")
            a(f"v_pk_mul_f32 v[{d+2}:{d+3}], v[{d+2}:{d+3}], v[{t+6}:{t+7}]")
        d = acc(mt, 6)
        a(f"v_pk_mul_f32 v[{d}:{d+1}], v[{d}:{d+1}], v[{vF}:{vF+1}]")
        a(f"v_pk_mul_f32 v[{d+2}:{d+3}], v[{d+2}:{d+3}], v[{vF}:{vF+1}]")
    e = E
    def qk_tile(T, base_reg, pstride, hoff):
        nonlocal e
        for p in range(2):
            R = e; e += 4
            da, db = acc(2*p, T), acc(2*p+1, T)
            a(f"v_cvt_pk_bf16_f32 v{R}, v{da}, v{da+1}")
            a(f"v_cvt_pk_bf16_f32 v{R+1}, v{da+2}, v{da+3}")
            a(f"v_cvt_pk_bf16_f32 v{R+2}, v{db}, v{db+1}")
            a(f"v_cvt_pk_bf16_f32 v{R+3}, v{db+2}, v{db+3}")
            a("s_nop 1")
            a(f"v_permlane16_swap_b32 v{R}, v{R+2}")
            a(f"v_permlane16_swap_b32 v{R+1}, v{R+3}")
            a(f"ds_write_b128 v{base_reg}, v[{R}:{R+3}] offset:{p*pstride+hoff}")
    qk_tile(2, vEK, TILE, 0)
    qk_tile(3, vEK, TILE, 1024)
    for T in (4, 5):
        for mt in range(4):
            R = e; e += 2
            d = acc(mt, T)
            a(f"v_cvt_pk_bf16_f32 v{R}, v{d}, v{d+1}")
            a(f"v_cvt_pk_bf16_f32 v{R+1}, v{d+2}, v{d+3}")
            a(f"ds_write_b64 v{vEV}, v[{R}:{R+1}] offset:{(mt>>1)*TILE + (mt&1)*1152 + (40 if T==5 else 0)}")
    R6 = e; e += 8
    for mt in range(4):
        d = acc(mt, 6)
        a(f"v_cvt_pk_bf16_f32 v{R6+2*mt}, v{d}, v{d+1}")
        a(f"v_cvt_pk_bf16_f32 v{R6+2*mt+1}, v{d+2}, v{d+3}")
    a(f"v_add_u32 v{t}, v{vE6}, v{vDr}")
    a(f"v_add_u32 v{t+1}, v{vE6}, v{vDt}")
    a(f"v_add_u32 v{t+2}, v{t+1}, v{vDr}")
    a(f"s_mov_b64 s[{S_SAVE}:{S_SAVE+1}], exec")
    a(f"s_mov_b32 exec_hi, 0x0000ffff")
    a(f"ds_write_b64 v{vE6}, v[{R6}:{R6+1}]")
    a(f"ds_write_b64 v{t}, v[{R6+2}:{R6+3}]")
    a(f"ds_write_b64 v{t+1}, v[{R6+4}:{R6+5}]")
    a(f"ds_write_b64 v{t+2}, v[{R6+6}:{R6+7}]")
    a(f"s_mov_b64 exec, s[{S_SAVE}:{S_SAVE+1}]")
    qk_tile(0, vEQ, QTILE, 0)
    qk_tile(1, vEQ, QTILE, 1024)
    assert e <= V_ACC
    a("s_branch L_P2")

    a.lab("L_LOADER2")
    def issue_chunk():
        a(f"s_lshl_b32 s{S_T0}, s{S_C}, 7")
        a(f"s_add_u32 s{S_T0}, s{S_T0}, s{S_XB}")
        a(f"s_mul_i32 s{S_T1}, s{S_C}, {64*3456}")
        a(f"s_add_u32 s{S_T1}, s{S_T1}, s{S_WB}")
        a(f"s_add_u32 s{S_T2}, s{S_SB}, s{S_LW}")
        a(f"s_add_u32 s{S_T3}, s{S_SB}, s{S_LX}")
        for i in range(0 if 'now' in exp else 4):
            a(f"s_add_u32 m0, s{S_T2}, {i*1024}" if i else f"s_mov_b32 m0, s{S_T2}")
            if i: a(f"s_add_u32 s{S_T1}, s{S_T1}, {4*3456}")
            else: a("s_nop 0")
            a(f"buffer_load_dwordx4 v{V_AX+2+(i>>1)}, s[{S_W}:{S_W+3}], s{S_T1} offen lds")
        for i in range(0 if 'nox' in exp else 8):
            a(f"s_add_u32 m0, s{S_T3}, {i*1024}" if i else f"s_mov_b32 m0, s{S_T3}")
            if i: a(f"s_add_u32 s{S_T0}, s{S_T0}, {8*1152}")
            else: a("s_nop 0")
            a(f"buffer_load_dwordx4 v{V_AX+(i&1)}, s[{S_X}:{S_X+3}], s{S_T0} offen lds")
        a(f"s_add_u32 s{S_C}, s{S_C}, 1")
        a(f"s_cmp_eq_u32 s{S_C}, 9")
        a(f"s_cselect_b32 s{S_C}, 0, s{S_C}")
        a(f"s_add_u32 s{S_SB}, s{S_SB}, {STAGE}")
        a(f"s_cmp_eq_u32 s{S_SB}, {3*STAGE}")
        a(f"s_cselect_b32 s{S_SB}, 0, s{S_SB}")
    def lts():
        if timing:
            a("s_memtime s[92:93]")
            a("s_waitcnt lgkmcnt(0)")
            a(f"s_sub_u32 s92, s92, s70")
            a(f"s_mov_b32 m0, s{S_K}")
            a("s_nop 4")
            a(f"v_writelane_b32 v{V_X+8}, s92, m0")
    a(f"s_mov_b32 s{S_K}, 0")
    if timing: a(f"v_mov_b32 v{V_X+8}, 0")
    a.lab("L_LD")
    issue_chunk()
    a(f"s_cmp_eq_u32 s{S_K}, 0")
    a("s_cbranch_scc1 L_LD_NEXT")
    a("s_waitcnt vmcnt(12)")
    a("s_barrier")
    lts()
    a.lab("L_LD_NEXT")
    a(f"s_add_u32 s{S_K}, s{S_K}, 1")
    a(f"s_cmp_lt_u32 s{S_K}, 9")
    a("s_cbranch_scc1 L_LD")
    def wo_issue(nstart, cnt, guard_last=False):
        for i in range(cnt):
            n0 = nstart + 4*i
            if guard_last and i == cnt-1:
                a(f"s_cmp_lg_u32 s{S_T5}, 0")
                a("s_cbranch_scc1 L_WO_DONE")
            a(f"s_add_u32 s{S_T0}, s{S_T5}, {n0}")
            a(f"s_lshl_b32 s{S_T1}, s{S_T0}, 6")
            a(f"v_add_u32 v{t}, s{S_T1}, v{L}")
            a(f"v_mul_u32_u24 v{t+1}, 7282, v{t}")
            a(f"v_lshrrev_b32 v{t+1}, 16, v{t+1}")
            a(f"v_mul_u32_u24 v{t+2}, 9, v{t+1}")
            a(f"v_sub_u32 v{t+2}, v{t}, v{t+2}")
            a(f"v_mul_u32_u24 v{t+1}, 1152, v{t+1}")
            a(f"v_lshl_add_u32 v{t+1}, v{t+2}, 4, v{t+1}")
            a(f"s_lshl_b32 m0, s{S_T0}, 10")
            a("s_nop 0")
            a(f"buffer_load_dwordx4 v{t+1}, s[{S_WO}:{S_WO+3}], s{S_T4} offen lds")
    a(f"s_sub_u32 s{S_T5}, s{S_WID}, 4")
    a(f"s_and_b32 s{S_T4}, s{S_HP}, 7")
    a(f"s_mul_i32 s{S_T4}, s{S_T4}, 144")
    wo_issue(0, 12)
    a("s_waitcnt vmcnt(12)")
    a("s_barrier")
    lts()
    emit_masks()
    wo_issue(48, 9, guard_last=True)
    a.lab("L_WO_DONE")
    a("s_barrier")

    a.lab("L_P2")
    a("s_waitcnt lgkmcnt(0)")
    a("s_barrier")
    ts(3)

    if debug_stage == 1:
        a(f"s_lshl_b32 s{S_T0}, s{S_IDX}, 16")
        a(f"v_lshlrev_b32 v{t}, 4, v0")
        for i in range(7):
            a(f"v_add_u32 v{t+1}, {KV_OWN + i*8192}, v{t}")
            a(f"ds_read_b128 v[40:43], v{t+1}")
            a("s_waitcnt lgkmcnt(0)")
            a(f"v_add_u32 v{t+2}, {i*8192}, v{t}")
            a(f"buffer_store_dwordx4 v[40:43], v{t+2}, s[{S_WS}:{S_WS+3}], s{S_T0} offen")
            a("s_waitcnt vmcnt(0)")
        a("s_branch L_FIN")

    if debug_stage == 9:
        a("s_branch L_FIN")
    if debug_stage not in (1, 9):
        phase2(a, debug_stage, ts)
        phase3(a, debug_stage, ts)
    a.lab("L_FIN")
    if timing:
        a("s_waitcnt vmcnt(0) lgkmcnt(0)")
        a("s_memtime s[94:95]")
        a("s_waitcnt lgkmcnt(0)")
        a(f"s_lshl_b32 s{S_T0}, s2, 3")
        a(f"s_add_u32 s{S_T0}, s{S_T0}, s{S_WID}")
        a(f"s_lshl_b32 s{S_T0}, s{S_T0}, 6")
        a(f"s_add_u32 s{S_T0}, s{S_T0}, {TIMING_OFF}")
        for i in range(13):
            a(f"s_sub_u32 s{S_T1}, s{70+2*i}, s70" if i else f"s_mov_b32 s{S_T1}, s70")
            a(f"s_cmp_eq_u32 s{70+2*i}, 0")
            a(f"s_cselect_b32 s{S_T1}, 0, s{S_T1}")
            a(f"v_mov_b32 v{40+i}, s{S_T1}")
        a(f"v_lshlrev_b32 v2, 2, v{V_LANE}")
        a(f"s_add_u32 s{S_T1}, s{S_T0}, {1<<20}")
        a(f"s_mov_b64 exec, 0xffff")
        a(f"buffer_store_dword v{V_X+8}, v2, s[{S_WS}:{S_WS+3}], s{S_T1} offen")
        a(f"v_mov_b32 v2, 0")
        a(f"s_mov_b64 exec, 1")
        for i in range(3):
            a(f"buffer_store_dwordx4 v[{40+4*i}:{43+4*i}], v2, s[{S_WS}:{S_WS+3}], s{S_T0} offen offset:{16*i}")
        a(f"buffer_store_dword v52, v2, s[{S_WS}:{S_WS+3}], s{S_T0} offen offset:48")
        a("s_waitcnt vmcnt(0)")
    a.lab("L_END")
    a("s_endpgm")
    a(f""".section .rodata,"a"
.p2align 6
.amdhsa_kernel {NAME}_kernel
  .amdhsa_next_free_vgpr 256
  .amdhsa_next_free_sgpr 100
  .amdhsa_accum_offset 256
  .amdhsa_group_segment_fixed_size 0
  .amdhsa_kernarg_size 72
  .amdhsa_user_sgpr_count 2
  .amdhsa_user_sgpr_kernarg_segment_ptr 1
  .amdhsa_system_sgpr_workgroup_id_x 1
.end_amdhsa_kernel""")
    return a.text()

if __name__ == "__main__":
    import argparse
    p = argparse.ArgumentParser(); p.add_argument("--debug", type=int, default=0); p.add_argument("--timing", action="store_true"); p.add_argument("--exp", default=""); p.add_argument("-o", default="/dev/stdout")
    args = p.parse_args()
    open(args.o, "w").write(gen(args.debug, args.timing, args.exp))
```

```python
import sys, math, struct

NAME = "concat_heads__sliding_block__sliding_block__prompt"

STAGE   = 49152
WO_BASE = 0
KV_OWN  = 82944
KV_HALO = 119808
Q_BASE  = 119808
MISC    = 156672
TAGS_LDS = MISC + 2048
CNT2, CNT1, CNTQ, CNTO = TAGS_LDS+12, TAGS_LDS+16, TAGS_LDS+20, TAGS_LDS+24
LDS_TOTAL = 163840
TILE    = 4608
QTILE   = 2304
WS_KV   = 0
WS_O    = 256*36864
WS_FLAG = WS_O + 16*294912
WS_OF   = WS_FLAG + 65536
TIMING_OFF = 24<<20
TAG_INC = 0x9E3779B1
NEG     = 0xFF61B1E6
QSCALE  = (18.0 ** -0.5) * math.log2(math.e)
def f32bits(x): return struct.unpack("<I", struct.pack("<f", x))[0]

class Asm:
    def __init__(self): self.l = []
    def __call__(self, s=""):
        for line in s.split("\n"):
            self.l.append("  " + line.strip())
    def lab(self, n): self.l.append(n + ":")
    def c(self, s): self.l.append("  ; " + s)
    def text(self): return "\n".join(self.l) + "\n"

S_X, S_W, S_WO, S_WS, S_OUT = 8, 12, 16, 20, 24
S_B, S_S, S_HP, S_WID = 28, 29, 30, 31
S_T0, S_T1, S_T2, S_T3, S_T4, S_T5 = 32, 33, 34, 35, 36, 37
S_I = 38
S_L = 39
S_TAGIN, S_TAGOUT, S_TAGO = 40, 41, 42
S_K, S_C, S_SB, S_XB, S_WB = 43, 44, 45, 46, 47
S_LX, S_LW = 48, 49
S_N = 50
S_U = 51
S_RET = 52
S_IDX, S_GRP, S_HEAD, S_M = 54, 55, 56, 57
S_SAVE = 58
S_CNT = 60
S_HOOK = 61
S_BAD = 62
S_RET2 = 64
S_MB = 66
S_HST = 67
S_H0, S_H1 = 68, 69
S_E = 98

V_LANE = 1
T = 2
V_AX = 10
V_AW = 12
V_MASK = 20
V_SET0, V_SET1, V_ACC = 36, 80, 124
V_LDX, V_LDW = 36, 44
V_TG = 236
B_K, B_KR, B_V, MK_V = 240, 241, 242, 243
vEK, vEQ, vEV, vE6, vDr, vDt, vF, vC = 244, 245, 246, 247, 248, 249, 250, 252
V_TL = 254
QA_M, QA_R, QB_M, QB_R = 36, 40, 44, 48
OA, OB = 52, 68
VS, VE, VP = 84, 100, 116
VKF, VKR, VVA, VVB = 124, 128, 132, 136
A_K, A_KR, A_V, ST_V, ST_K = 10, 11, 12, 13, 14
VH = 140
V_WOV = 180
V_PA = 184

def emit_masks_(a):
    t = T; L = V_LANE
    a(f"v_and_b32 v{t}, 31, v{L}")
    a(f"v_lshrrev_b32 v{t+1}, 5, v{L}")
    a(f"v_lshlrev_b32 v{t+1}, 2, v{t+1}")
    a(f"v_sub_u32 v{t}, v{t}, v{t+1}")
    a(f"v_mov_b32 v{t+1}, {NEG:#x}")
    for r in range(16):
        jj = (r & 3) + 8*(r >> 2)
        a(f"v_cmp_le_i32 vcc, {jj}, v{t}")
        a("s_nop 1")
        a(f"v_cndmask_b32_e64 v{V_MASK+r}, v{t+1}, 0, vcc")
def emit_p2_patterns_(a):
    t = T; L = V_LANE
    a(f"v_and_b32 v{t}, 31, v{L}")
    a(f"v_lshrrev_b32 v{t+1}, 5, v{L}")
    a(f"v_lshrrev_b32 v{t+2}, 2, v{t}")
    a(f"v_lshrrev_b32 v{t+3}, 3, v{t}")
    a(f"v_xor_b32 v{t+2}, v{t+2}, v{t+3}")
    a(f"v_xor_b32 v{t+2}, v{t+2}, v{t+1}")
    a(f"v_and_b32 v{t+2}, 1, v{t+2}")
    a(f"v_lshlrev_b32 v{t+2}, 4, v{t+2}")
    a(f"v_lshl_add_u32 v{t+2}, v{t}, 5, v{t+2}")
    a(f"s_lshl_b32 s{S_T0}, s{S_HEAD}, 10")
    a(f"v_add_u32 v{B_K}, s{S_T0}, v{t+2}")
    a(f"v_lshlrev_b32 v{B_KR}, 3, v{t}")
    a(f"v_add_u32 v{B_KR}, 2048, v{B_KR}")
    a(f"v_bfe_u32 v{t+2}, v{L}, 2, 2")
    a(f"v_lshl_add_u32 v{t+2}, v{t+1}, 2, v{t+2}")
    a(f"v_mul_u32_u24 v{t+2}, 72, v{t+2}")
    a(f"v_add_u32 v{t+2}, 2304, v{t+2}")
    a(f"v_and_b32 v{t+3}, 3, v{L}")
    a(f"v_lshlrev_b32 v{t+4}, 3, v{t+3}")
    a(f"s_mul_i32 s{S_T0}, s{S_HEAD}, 40")
    a(f"v_add3_u32 v{t+4}, v{t+4}, v{t+2}, s{S_T0}")
    a(f"v_add_u32 v{t+5}, 32, v{t+2}")
    a(f"v_bfe_u32 v{t+6}, v{L}, 4, 1")
    a(f"v_cmp_eq_u32 vcc, 1, v{t+6}")
    a(f"v_lshrrev_b32 v{t+7}, 1, v{t+3}")
    a(f"v_and_b32 v{t+7}, v{t+7}, v{t+6}")
    a(f"v_cndmask_b32 v{B_V}, v{t+4}, v{t+5}, vcc")
    a(f"v_cmp_eq_u32 vcc, 1, v{t+7}")
    a(f"v_mov_b32 v{t+5}, {MISC}")
    a(f"v_mov_b32 v{t+6}, -1")
    a(f"v_cndmask_b32 v{B_V}, v{B_V}, v{t+5}, vcc")
    a(f"v_cndmask_b32_e64 v{MK_V}, v{t+6}, 0, vcc")


def gen(debug_stage=0, timing=False, exp=''):
    a = Asm()
    t = T; L = V_LANE
    def ts(i, force=False):
        if timing: a(f"s_memtime s[{70+2*i}:{71+2*i}]")
    WS = f"s[{S_WS}:{S_WS+3}]"
    def save_exec(val):
        a(f"s_mov_b64 s[{S_SAVE}:{S_SAVE+1}], exec")
        a(f"s_mov_b64 exec, {val}")
    def rest_exec():
        a(f"s_mov_b64 exec, s[{S_SAVE}:{S_SAVE+1}]")

    a.l += [f"; Kernarg layout (72 bytes): A_x, A_wqkv, A_wo, B_x, B_wqkv, B_wo, out, debug, ws",
            f"; @launch grid=(256,1,1) block=(512,1,1) lds={LDS_TOTAL}"]
    a(f""".amdgcn_target "amdgcn-amd-amdhsa--gfx950"
.text
.globl {NAME}_kernel
.p2align 8
.type {NAME}_kernel,@function""")
    a.lab(f"{NAME}_kernel")
    a("s_cmp_ge_u32 s2, 256")
    a("s_cbranch_scc1 L_END")
    a(f"s_and_b32 s3, s2, 7")
    a(f"s_lshr_b32 s{S_B}, s3, 2")
    a(f"s_mul_i32 s{S_T0}, s{S_B}, 24")
    a(f"s_add_u32 s4, s0, s{S_T0}")
    a(f"s_addc_u32 s5, s1, 0")
    a(f"s_load_dwordx2 s[{S_X}:{S_X+1}], s[4:5], 0")
    a(f"s_load_dwordx2 s[{S_W}:{S_W+1}], s[4:5], 8")
    a(f"s_load_dwordx2 s[{S_WO}:{S_WO+1}], s[4:5], 16")
    a(f"s_load_dwordx2 s[{S_OUT}:{S_OUT+1}], s[0:1], 48")
    a(f"s_load_dwordx2 s[{S_WS}:{S_WS+1}], s[0:1], 64")
    if timing:
        for i in range(13): a(f"s_mov_b32 s{70+2*i}, 0")
    ts(0)
    a(f"s_lshr_b32 s{S_I}, s2, 3")
    a(f"s_lshr_b32 s{S_T2}, s3, 1")
    a(f"s_and_b32 s{S_T2}, s{S_T2}, 1")
    a(f"s_lshl_b32 s{S_T2}, s{S_T2}, 2")
    a(f"s_and_b32 s{S_T3}, s{S_I}, 3")
    a(f"s_add_u32 s{S_S}, s{S_T2}, s{S_T3}")
    a(f"s_and_b32 s{S_T2}, s3, 1")
    a(f"s_lshl_b32 s{S_T2}, s{S_T2}, 3")
    a(f"s_lshr_b32 s{S_T4}, s{S_I}, 2")
    a(f"s_add_u32 s{S_HP}, s{S_T2}, s{S_T4}")
    a(f"s_lshl_b32 s{S_T3}, s{S_T3}, 1")
    a(f"s_add_u32 s{S_C}, s{S_T4}, s{S_T3}")
    a(f"s_cmp_ge_u32 s{S_C}, 9")
    a(f"s_cselect_b32 s{S_T3}, 9, 0")
    a(f"s_sub_u32 s{S_C}, s{S_C}, s{S_T3}")
    if 'norot' in exp: a(f"s_mov_b32 s{S_C}, 0")
    a(f"s_lshl_b32 s{S_T0}, s{S_B}, 4")
    a(f"s_add_u32 s{S_T0}, s{S_T0}, s{S_HP}")
    a(f"s_lshl_b32 s{S_T0}, s{S_T0}, 3")
    a(f"s_add_u32 s{S_IDX}, s{S_T0}, s{S_S}")
    a(f"s_lshl_b32 s{S_T0}, s{S_B}, 3")
    a(f"s_add_u32 s{S_GRP}, s{S_T0}, s{S_S}")
    a(f"v_lshrrev_b32 v{t}, 6, v0")
    a(f"v_and_b32 v{L}, 63, v0")
    a(f"v_readfirstlane_b32 s{S_WID}, v{t}")
    for (r, n) in ((S_X, 2359296), (S_W, 1990656), (S_WO, 663552), (S_WS, 268435456), (S_OUT, 4718592)):
        a(f"s_mov_b32 s{r+2}, {n}")
        a(f"s_mov_b32 s{r+3}, 0x00020000")
    a(f"s_and_b32 s{S_M}, s{S_WID}, 3")
    a(f"s_lshr_b32 s{S_HEAD}, s{S_WID}, 2")
    a(f"s_sub_u32 s{S_MB}, 7, s{S_M}")
    a(f"s_cmp_lt_u32 s{S_WID}, 4")
    a("s_cbranch_scc1 L_COMPUTE")

    emit_masks = lambda: emit_masks_(a)
    emit_p2_patterns = lambda: emit_p2_patterns_(a)

    a(f"s_sub_u32 s{S_L}, s{S_WID}, 4")
    a(f"v_lshrrev_b32 v{t}, 3, v{L}")
    a(f"v_mul_u32_u24 v{t}, 1152, v{t}")
    a(f"v_lshrrev_b32 v{t+1}, 4, v{L}")
    a(f"v_and_b32 v{t+2}, 7, v{L}")
    a(f"v_xor_b32 v{t+3}, v{t+2}, v{t+1}")
    a(f"v_lshl_add_u32 v{V_AX}, v{t+3}, 4, v{t}")
    a(f"v_xor_b32 v{t+3}, 4, v{t+3}")
    a(f"v_lshl_add_u32 v{V_AX+1}, v{t+3}, 4, v{t}")
    a(f"s_mul_i32 s{S_T0}, s{S_HP}, 72")
    a(f"s_and_b32 s{S_T0}, s{S_T0}, 0xfffffff0")
    a(f"v_and_b32 v{t+2}, 15, v{L}")
    a(f"v_mul_u32_u24 v{t+4}, 3456, v{t+1}")
    a(f"v_add_u32 v{t+4}, s{S_T0}, v{t+4}")
    for var in range(2):
        a(f"v_lshlrev_b32 v{t+3}, 1, v{t+1}")
        a(f"v_sub_u32 v{t+3}, v{t+2}, v{t+3}")
        if var: a(f"v_subrev_u32 v{t+3}, 8, v{t+3}")
        a(f"v_and_b32 v{t+3}, 15, v{t+3}")
        a(f"v_min_u32 v{t+3}, 14, v{t+3}")
        a(f"v_mul_u32_u24 v{t+5}, 13, v{t+3}")
        a(f"v_lshrrev_b32 v{t+5}, 6, v{t+5}")
        a(f"v_mul_u32_u24 v{t+6}, 5, v{t+5}")
        a(f"v_sub_u32 v{t+6}, v{t+3}, v{t+6}")
        a(f"v_mul_u32_u24 v{t+5}, 1152, v{t+5}")
        a(f"v_lshl_add_u32 v{t+6}, v{t+6}, 4, v{t+5}")
        a(f"v_add_u32 v{V_AX+2+var}, v{t+4}, v{t+6}")
    for i in range(8):
        a(f"v_add_u32 v{V_LDX+i}, {i*9216-(i&3)*1024}, v{V_AX+(i&1)}")
    for i in range(4):
        a(f"v_add_u32 v{V_LDW+i}, {i*4*3456-i*1024}, v{V_AX+2+(i>>1)}")
    a(f"s_lshl_b32 s{S_T0}, s{S_S}, 8")
    a(f"s_lshl_b32 s{S_T1}, s{S_L}, 6")
    a(f"s_add_u32 s{S_T0}, s{S_T0}, s{S_T1}")
    a(f"s_mul_i32 s{S_XB}, s{S_T0}, 1152")
    a(f"s_mul_i32 s{S_WB}, s{S_L}, {16*3456}")
    a(f"s_lshl_b32 s{S_LX}, s{S_L}, 13")
    a(f"s_lshl_b32 s{S_LW}, s{S_L}, 12")
    a(f"s_add_u32 s{S_LW}, s{S_LW}, 32768")
    a(f"s_mov_b32 s{S_SB}, 0")
    def chunk_pre():
        a(f"s_lshl_b32 s{S_T0}, s{S_C}, 7")
        a(f"s_add_u32 s{S_T0}, s{S_T0}, s{S_XB}")
        a(f"s_mul_i32 s{S_T1}, s{S_C}, {64*3456}")
        a(f"s_add_u32 s{S_T1}, s{S_T1}, s{S_WB}")
        a(f"s_add_u32 s{S_T2}, s{S_SB}, s{S_LW}")
        a(f"s_add_u32 s{S_T3}, s{S_SB}, s{S_LX}")
        a(f"s_add_u32 s{S_C}, s{S_C}, 1")
        a(f"s_cmp_eq_u32 s{S_C}, 9")
        a(f"s_cselect_b32 s{S_C}, 0, s{S_C}")
        a(f"s_add_u32 s{S_SB}, s{S_SB}, {STAGE}")
        a(f"s_cmp_eq_u32 s{S_SB}, {3*STAGE}")
        a(f"s_cselect_b32 s{S_SB}, 0, s{S_SB}")
    def chunk_w():
        a(f"s_mov_b32 m0, s{S_T2}")
        a("s_nop 0")
        for i in range(4):
            a(f"buffer_load_dwordx4 v{V_LDW+i}, s[{S_W}:{S_W+3}], s{S_T1} offen offset:{i*1024} lds")
    def chunk_x(lo, hi):
        for i in range(lo, hi):
            if i == lo or i == 4:
                a(f"s_add_u32 m0, s{S_T3}, {(i&~3)*1024}")
                a("s_nop 0")
            a(f"buffer_load_dwordx4 v{V_LDX+i}, s[{S_X}:{S_X+3}], s{S_T0} offen offset:{(i&3)*1024} lds")
    chunk_pre()
    a("s_waitcnt lgkmcnt(0)")
    chunk_w(); chunk_x(0, 8)
    chunk_pre(); chunk_w(); chunk_x(0, 2)
    a("s_waitcnt vmcnt(6)")
    a("s_barrier")
    chunk_x(2, 8)
    chunk_pre()
    a(f"s_mov_b32 s{S_K}, 2")
    a.lab("L_LD")
    chunk_w(); chunk_x(0, 8)
    chunk_pre()
    a(f"s_add_u32 s{S_K}, s{S_K}, 1")
    a(f"s_cmp_lt_u32 s{S_K}, 9")
    a("s_waitcnt vmcnt(12)")
    a("s_barrier")
    a("s_cbranch_scc1 L_LD")
    a(f"s_lshl_b32 s{S_T0}, s{S_L}, 6")
    a(f"v_add_u32 v{t}, s{S_T0}, v{L}")
    a(f"v_mul_u32_u24 v{t+1}, 7282, v{t}")
    a(f"v_lshrrev_b32 v{t+1}, 16, v{t+1}")
    a(f"v_mul_u32_u24 v{t+2}, 9, v{t+1}")
    a(f"v_sub_u32 v{t+2}, v{t}, v{t+2}")
    a(f"v_mul_u32_u24 v{t+1}, 1152, v{t+1}")
    a(f"v_lshl_add_u32 v{t+1}, v{t+2}, 7, v{t+1}")
    a(f"s_mul_i32 s{S_T0}, s{S_I}, {18*1152}")
    a(f"v_cmp_gt_u32 vcc, 162, v{t}")
    a(f"v_cndmask_b32_e64 v{t+1}, 0, v{t+1}, vcc")
    a(f"buffer_load_dword v255, v{t+1}, s[{S_WO}:{S_WO+3}], s{S_T0} offen")
    emit_masks()
    emit_p2_patterns()
    a(f"v_mul_u32_u24 v{t+1}, 7282, v{L}")
    a(f"v_lshrrev_b32 v{t+1}, 16, v{t+1}")
    a(f"v_mul_u32_u24 v{t+2}, 9, v{t+1}")
    a(f"v_sub_u32 v{t+2}, v{L}, v{t+2}")
    a(f"v_mul_u32_u24 v{t+1}, 1152, v{t+1}")
    a(f"v_lshl_add_u32 v{t+1}, v{t+2}, 4, v{t+1}")
    a(f"s_and_b32 s{S_T0}, s{S_HP}, 7")
    a(f"s_mul_i32 s{S_T0}, s{S_T0}, 144")
    a(f"v_add_u32 v{V_WOV}, s{S_T0}, v{t+1}")
    for j in range(1, 4): a(f"v_add_u32 v{V_WOV+j}, {j*(8064-1008)}, v{V_WOV}")
    a(f"s_mul_i32 s{S_T0}, s{S_L}, {21*1008}")
    a(f"s_mul_i32 s{S_T1}, s{S_L}, {21*8064}")
    a("s_waitcnt vmcnt(1)")
    a("s_barrier")
    a(f"s_mov_b64 s[{S_SAVE}:{S_SAVE+1}], exec")
    a(f"s_bitset0_b64 exec, 63")
    WO = f"s[{S_WO}:{S_WO+3}]"
    for j in range(21):
        if j == 19:
            a(f"s_cmp_eq_u32 s{S_L}, 3")
            a("s_cbranch_scc0 L_WO_N")
            a(f"s_mov_b64 exec, 0x3ffff")
            a(f"buffer_load_dwordx4 v{V_WOV+(j&3)}, {WO}, s{S_T2} offen offset:{(j&3)*1008} lds")
            a("s_branch L_WO_DONE")
            a.lab("L_WO_N")
        if j % 4 == 0:
            a(f"s_add_u32 m0, s{S_T0}, {j*1008}")
            a(f"s_add_u32 s{S_T2}, s{S_T1}, {j*8064}")
        a(f"buffer_load_dwordx4 v{V_WOV+(j&3)}, {WO}, s{S_T2} offen offset:{(j&3)*1008} lds")
    a.lab("L_WO_DONE")
    rest_exec()
    a("s_barrier")
    for r in range(16):
        a(f"v_mov_b32 v{OA+r}, 0")
        a(f"v_mov_b32 v{OB+r}, 0")
    a(f"v_lshlrev_b32 v{V_PA}, 4, v{L}")
    a(f"s_lshl_b32 s{S_T0}, s{S_L}, 10")
    a(f"v_add_u32 v{V_PA}, s{S_T0}, v{V_PA}")
    a(f"v_add_u32 v{V_PA+1}, {KV_OWN}, v{V_PA}")
    a(f"s_cmp_lt_u32 s{S_L}, 2")
    a(f"s_cselect_b32 s{S_H0}, 16384, 0")
    a(f"v_add_u32 v{t}, s{S_H0}, v{V_PA+1}")
    a(f"v_add_u32 v{V_PA+2}, s{S_H0}, v{V_PA}")
    a(f"s_mul_i32 s{S_T1}, s{S_IDX}, 36864")
    a("s_barrier")
    if 'tsx' in exp: ts(1)
    a(f"s_cmp_eq_u32 s{S_S}, 7")
    a("s_cbranch_scc1 L_NOPUB")
    for st in (1, 0):
        base = VH + (0 if st else 20)
        for i in range(4):
            a(f"ds_read_b128 v[{base+4*i}:{base+4*i+3}], v{V_PA+1} offset:{st*18432+i*4096}")
        a(f"ds_read_b128 v[{base+16}:{base+19}], v{t} offset:{st*18432}")
    a("s_waitcnt lgkmcnt(5)")
    pub_stores(a, 18432, VH)
    if 'tsx' in exp: ts(2)
    a.lab("L_NOPUB")
    a("s_branch L_P2")

    a.lab("L_COMPUTE")
    a(f"v_and_b32 v{t}, 15, v{L}")
    a(f"v_lshrrev_b32 v{t+1}, 4, v{L}")
    a(f"v_lshrrev_b32 v{t+2}, 1, v{t}")
    a(f"s_lshl_b32 s{S_T0}, s{S_WID}, 6")
    a(f"v_add_u32 v{t+3}, s{S_T0}, v{t}")
    a(f"v_lshlrev_b32 v{t+3}, 7, v{t+3}")
    a(f"v_xor_b32 v{t+4}, v{t+1}, v{t+2}")
    a(f"v_lshlrev_b32 v{t+5}, 4, v{t+4}")
    a(f"v_add_u32 v{V_AX}, v{t+3}, v{t+5}")
    a(f"v_xor_b32 v{t+4}, 4, v{t+4}")
    a(f"v_lshlrev_b32 v{t+5}, 4, v{t+4}")
    a(f"v_add_u32 v{V_AX+1}, v{t+3}, v{t+5}")
    a(f"v_bfe_u32 v{t}, v{L}, 2, 2")
    a(f"v_and_b32 v{t+2}, 3, v{L}")
    a(f"v_and_b32 v{t+3}, 1, v{t+1}")
    a(f"v_lshl_add_u32 v{t+3}, v{t+3}, 2, v{t}")
    a(f"v_lshlrev_b32 v{t+3}, 5, v{t+3}")
    a(f"v_lshl_add_u32 v{t+4}, v{t+1}, 3, v{t}")
    a(f"v_lshlrev_b32 v{t+4}, 8, v{t+4}")
    a(f"v_add_u32 v{t+4}, 32768, v{t+4}")
    a(f"v_lshlrev_b32 v{t+5}, 3, v{t+2}")
    a(f"s_and_b32 s{S_T1}, s{S_HP}, 1")
    a(f"s_lshl_b32 s{S_T1}, s{S_T1}, 3")
    a(f"v_add3_u32 v{t+5}, v{t+5}, v{t+3}, s{S_T1}")
    for Tn in range(6):
        off = 80*(Tn >> 1) + (40 if Tn & 1 else 0)
        a(f"v_add_u32 v{t+6}, {off}, v{t+5}")
        a(f"v_and_b32 v{t+6}, 255, v{t+6}")
        a(f"v_add_u32 v{V_AW+Tn}, v{t+4}, v{t+6}")
    a(f"v_min_u32 v{t+6}, 2, v{t+2}")
    a(f"v_mul_u32_u24 v{t+6}, 80, v{t+6}")
    a(f"v_add3_u32 v{t+6}, v{t+6}, v{t+3}, s{S_T1}")
    a(f"v_add_u32 v{t+6}, 32, v{t+6}")
    a(f"v_and_b32 v{t+6}, 255, v{t+6}")
    a(f"v_add_u32 v{V_AW+6}, v{t+4}, v{t+6}")
    a(f"v_and_b32 v{t}, 15, v{L}")
    a(f"v_lshrrev_b32 v{t+1}, 4, v{L}")
    a(f"v_and_b32 v{t+2}, 1, v{t+1}")
    a(f"v_lshl_add_u32 v{t+2}, v{t+2}, 4, v{t}")
    a(f"v_lshrrev_b32 v{t+3}, 2, v{t}")
    a(f"v_lshrrev_b32 v{t+4}, 3, v{t}")
    a(f"v_xor_b32 v{t+3}, v{t+3}, v{t+4}")
    a(f"v_lshrrev_b32 v{t+4}, 1, v{t+1}")
    a(f"v_xor_b32 v{t+3}, v{t+3}, v{t+4}")
    a(f"v_and_b32 v{t+3}, 1, v{t+3}")
    a(f"v_lshlrev_b32 v{t+3}, 4, v{t+3}")
    a(f"v_lshl_add_u32 v{t+3}, v{t+2}, 5, v{t+3}")
    a(f"s_mul_i32 s{S_T0}, s{S_WID}, {2*TILE}")
    a(f"s_add_u32 s{S_T0}, s{S_T0}, {KV_OWN}")
    a(f"s_mul_i32 s{S_T1}, s{S_WID}, {2*QTILE}")
    a(f"s_add_u32 s{S_T1}, s{S_T1}, {Q_BASE}")
    a(f"v_add_u32 v{vEK}, s{S_T0}, v{t+3}")
    a(f"v_add_u32 v{vEQ}, s{S_T1}, v{t+3}")
    a(f"v_mul_u32_u24 v{t+4}, 72, v{t}")
    a(f"v_lshl_add_u32 v{t+5}, v{t+1}, 3, v{t+4}")
    a(f"v_add_u32 v{t+5}, 2304, v{t+5}")
    a(f"v_add_u32 v{vEV}, s{S_T0}, v{t+5}")
    a(f"v_lshlrev_b32 v{t+5}, 3, v{t}")
    a(f"v_add_u32 v{t+5}, 2048, v{t+5}")
    a(f"v_add_u32 v{t+6}, s{S_T1}, v{t+5}")
    a(f"v_add_u32 v{t+7}, s{S_T0}, v{t+5}")
    a(f"v_add_u32 v{t+4}, {2304+32}, v{t+4}")
    a(f"v_add_u32 v{t+4}, s{S_T0}, v{t+4}")
    a(f"v_mov_b32 v{vDr}, 128")
    a(f"v_mov_b32 v{vDt}, {TILE}")
    a(f"v_mov_b32 v{vF}, 1.0")
    a(f"v_mov_b32 v{vE6}, v{t+7}")
    a(f"v_cmp_eq_u32 vcc, 0, v{t+1}")
    a(f"v_mov_b32 v{t+5}, {QTILE}")
    a(f"v_mov_b32 v{vC}, {f32bits(QSCALE):#x}")
    a(f"v_cndmask_b32 v{vE6}, v{vE6}, v{t+6}, vcc")
    a(f"v_cndmask_b32 v{vDt}, v{vDt}, v{t+5}, vcc")
    a(f"v_cndmask_b32 v{vF}, v{vF}, v{vC}, vcc")
    a(f"v_cmp_eq_u32 vcc, 2, v{t+1}")
    a(f"v_mov_b32 v{t+5}, 1152")
    a(f"v_mov_b32 v{vC+1}, v{vC}")
    a(f"v_cndmask_b32 v{vE6}, v{vE6}, v{t+4}, vcc")
    a(f"v_cndmask_b32 v{vDr}, v{vDr}, v{t+5}, vcc")
    a(f"v_mov_b32 v{vF+1}, v{vF}")
    a("s_waitcnt lgkmcnt(0)")
    a(f"s_cmp_lg_u32 s{S_WID}, 0")
    a("s_cbranch_scc1 L_NOG0")
    a(f"s_lshl_b32 s{S_T0}, s{S_IDX}, 8")
    a(f"s_add_u32 s{S_T0}, s{S_T0}, {WS_FLAG}")
    a(f"s_lshl_b32 s{S_T1}, s{S_GRP}, 8")
    a(f"s_add_u32 s{S_T1}, s{S_T1}, {WS_OF}")
    a(f"v_mov_b32 v{t}, 0")
    a(f"buffer_load_dword v{V_TG}, v{t}, {WS}, s{S_T0} offen sc1")
    a(f"s_sub_u32 s{S_T0}, s{S_T0}, 256")
    a(f"s_max_u32 s{S_T0}, s{S_T0}, {WS_FLAG}")
    a(f"buffer_load_dword v{V_TG+1}, v{t}, {WS}, s{S_T0} offen sc1")
    a(f"buffer_load_dword v{V_TG+2}, v{t}, {WS}, s{S_T1} offen sc1")
    a.lab("L_NOG0")
    for i in range(112):
        a(f"v_mov_b32 v{V_ACC+i}, 0")
    emit_masks()
    emit_p2_patterns()
    a(f"v_mov_b32 v{t+2}, 0x3f803f80")
    a(f"v_mov_b32 v{t+3}, 0x3f803f80")
    a(f"v_mul_u32_u24 v{t+4}, 576, v{L}")
    a(f"v_add_u32 v{t+4}, {MISC}, v{t+4}")
    save_exec(15)
    a(f"ds_write_b64 v{t+4}, v[{t+2}:{t+3}]")
    rest_exec()
    a(f"s_cmp_lg_u32 s{S_WID}, 0")
    a("s_cbranch_scc1 L_NOG1")
    a("s_waitcnt vmcnt(0)")
    for i in range(3): a(f"v_add_u32 v{V_TG+i}, {TAG_INC:#x}, v{V_TG+i}")
    a(f"v_mov_b32 v{V_TG+3}, 0")
    a(f"v_mov_b32 v{t+4}, {TAGS_LDS}")
    save_exec(1)
    a(f"ds_write_b128 v{t+4}, v[{V_TG}:{V_TG+3}]")
    for i in range(4): a(f"v_mov_b32 v{V_TG+i}, 0")
    a(f"ds_write_b128 v{t+4}, v[{V_TG}:{V_TG+3}] offset:16")
    rest_exec()
    a.lab("L_NOG1")
    a("s_waitcnt lgkmcnt(0)")
    a("s_barrier")
    if "tsh" not in exp and "tsj" not in exp: ts(1)
    def reads(setb, ks):
        xs = [f"ds_read_b128 v[{setb+4*mt}:{setb+4*mt+3}], v{V_AX+ks} offset:{mt*2048}" for mt in range(4)]
        ws = []
        for Tn in range(7):
            b = setb + 16 + 4*Tn
            ws.append(f"ds_read_b64_tr_b16 v[{b}:{b+1}], v{V_AW+Tn} offset:{ks*8192}")
            ws.append(f"ds_read_b64_tr_b16 v[{b+2}:{b+3}], v{V_AW+Tn} offset:{ks*8192+1024}")
        return [xs[0], ws[0], ws[1], xs[1], ws[2], ws[3], xs[2], ws[4], ws[5], xs[3]] + ws[6:]
    def mfmas(setb):
        m = []
        for Tn in range(7):
            for mt in range(4):
                d = V_ACC + (mt*7+Tn)*4
                m.append(f"v_mfma_f32_16x16x32_bf16 v[{d}:{d+3}], v[{setb+16+4*Tn}:{setb+16+4*Tn+3}], v[{setb+4*mt}:{setb+4*mt+3}], v[{d}:{d+3}]")
        return m
    def interleave(ms, extra, per=1):
        ri = 0
        for i, m in enumerate(ms):
            a(m)
            for _ in range(per):
                if ri < len(extra): a(extra[ri]); ri += 1
        while ri < len(extra):
            a(extra[ri]); ri += 1
    for rd in reads(V_SET0, 0): a(rd)
    a(f"s_mov_b32 s{S_K}, 0")
    a(f"s_mov_b32 s{S_SB}, 0")
    a.lab("L_GEMM")
    a("s_waitcnt lgkmcnt(0)")
    sal = [f"s_add_u32 s{S_SB}, s{S_SB}, 1", f"s_cmp_eq_u32 s{S_SB}, 3", f"s_mov_b32 s{S_T0}, {STAGE}",
           f"s_cselect_b32 s{S_T0}, {(-2*STAGE) & 0xffffffff}, s{S_T0}", f"s_cselect_b32 s{S_SB}, 0, s{S_SB}"]
    interleave(mfmas(V_SET0), reads(V_SET1, 1) + sal)
    a("s_waitcnt lgkmcnt(0)")
    a("s_barrier")
    rd = reads(V_SET0, 0)
    adds = [f"v_add_u32 v{V_AX+i}, s{S_T0}, v{V_AX+i}" for i in range(9)]
    ex = [adds[0], adds[2], rd[0], rd[1], rd[2], adds[3], rd[3], rd[4], rd[5], adds[4], rd[6], rd[7], rd[8], rd[9],
          adds[5], rd[10], rd[11], adds[6], rd[12], rd[13], adds[7], rd[14], rd[15], adds[8], rd[16], rd[17], adds[1],
          f"s_add_u32 s{S_K}, s{S_K}, 1", f"s_cmp_lt_u32 s{S_K}, 9"]
    ms = mfmas(V_SET1)
    ri = 0
    for i, m in enumerate(ms):
        a(m)
        n = 2 if i < 6 else 1
        for _ in range(n):
            if ri < len(ex): a(ex[ri]); ri += 1
    assert ri == len(ex)
    a("s_cbranch_scc1 L_GEMM")
    if "tsh" not in exp and "tsj" not in exp: ts(2)
    a.c("phase-1 epilogue")
    a("s_waitcnt lgkmcnt(0)")
    acc = lambda mt, Tn: V_ACC + (mt*7+Tn)*4
    e = [V_SET0]
    def qk_tile(Tn, base_reg, pstride, hoff):
        for p in range(2):
            R = e[0]; e[0] += 4
            da, db = acc(2*p, Tn), acc(2*p+1, Tn)
            a(f"v_cvt_pk_bf16_f32 v{R}, v{da}, v{da+1}")
            a(f"v_cvt_pk_bf16_f32 v{R+2}, v{db}, v{db+1}")
            a(f"v_cvt_pk_bf16_f32 v{R+1}, v{da+2}, v{da+3}")
            a(f"v_cvt_pk_bf16_f32 v{R+3}, v{db+2}, v{db+3}")
            a("s_nop 0")
            a(f"v_permlane16_swap_b32 v{R}, v{R+2}")
            a(f"v_permlane16_swap_b32 v{R+1}, v{R+3}")
            a(f"ds_write_b128 v{base_reg}, v[{R}:{R+3}] offset:{p*pstride+hoff}")
    a("s_nop 3")
    qk_tile(2, vEK, TILE, 0)
    qk_tile(3, vEK, TILE, 1024)
    for Tn in (4, 5):
        for mt in range(4):
            R = e[0]; e[0] += 2
            d = acc(mt, Tn)
            a(f"v_cvt_pk_bf16_f32 v{R}, v{d}, v{d+1}")
            a(f"v_cvt_pk_bf16_f32 v{R+1}, v{d+2}, v{d+3}")
            a(f"ds_write_b64 v{vEV}, v[{R}:{R+1}] offset:{(mt>>1)*TILE + (mt&1)*1152 + (40 if Tn==5 else 0)}")
    R6 = e[0]; e[0] += 8
    for mt in range(4):
        d = acc(mt, 6)
        a(f"v_pk_mul_f32 v[{d}:{d+1}], v[{d}:{d+1}], v[{vF}:{vF+1}]")
        a(f"v_pk_mul_f32 v[{d+2}:{d+3}], v[{d+2}:{d+3}], v[{vF}:{vF+1}]")
    for mt in range(4):
        d = acc(mt, 6)
        a(f"v_cvt_pk_bf16_f32 v{R6+2*mt}, v{d}, v{d+1}")
        a(f"v_cvt_pk_bf16_f32 v{R6+2*mt+1}, v{d+2}, v{d+3}")
    a(f"v_add_u32 v{t}, v{vE6}, v{vDr}")
    a(f"v_add_u32 v{t+1}, v{vE6}, v{vDt}")
    a(f"v_add_u32 v{t+2}, v{t+1}, v{vDr}")
    a(f"s_mov_b64 s[{S_SAVE}:{S_SAVE+1}], exec")
    a(f"s_mov_b32 exec_hi, 0x0000ffff")
    a(f"ds_write_b64 v{vE6}, v[{R6}:{R6+1}]")
    a(f"ds_write_b64 v{t}, v[{R6+2}:{R6+3}]")
    a(f"ds_write_b64 v{t+1}, v[{R6+4}:{R6+5}]")
    a(f"ds_write_b64 v{t+2}, v[{R6+6}:{R6+7}]")
    rest_exec()
    a("s_waitcnt lgkmcnt(0)")
    if 'tsx' in exp: ts(6)
    a("s_barrier")
    for mt in range(4):
        for Tn in (0, 1):
            d = acc(mt, Tn)
            a(f"v_pk_mul_f32 v[{d}:{d+1}], v[{d}:{d+1}], v[{vC}:{vC+1}]")
            a(f"v_pk_mul_f32 v[{d+2}:{d+3}], v[{d+2}:{d+3}], v[{vC}:{vC+1}]")
    e[0] = 84
    qk_tile(0, vEQ, QTILE, 0)
    qk_tile(1, vEQ, QTILE, 1024)
    for r in range(16):
        a(f"v_mov_b32 v{OA+r}, 0")
        a(f"v_mov_b32 v{OB+r}, 0")

    a.lab("L_P2")
    a(f"v_mov_b32 v{t}, {TAGS_LDS}")
    a(f"ds_read_b128 v[{V_TG}:{V_TG+3}], v{t}")
    a("s_waitcnt lgkmcnt(0)")
    a("s_barrier")
    ts(3)
    if debug_stage == 1:
        a(f"s_lshl_b32 s{S_T0}, s{S_IDX}, 16")
        a(f"v_lshlrev_b32 v{t}, 4, v0")
        for i in range(7):
            a(f"v_add_u32 v{t+1}, {KV_OWN + i*8192}, v{t}")
            a(f"ds_read_b128 v[40:43], v{t+1}")
            a("s_waitcnt lgkmcnt(0)")
            a(f"v_add_u32 v{t+2}, {i*8192}, v{t}")
            a(f"buffer_store_dwordx4 v[40:43], v{t+2}, {WS}, s{S_T0} offen")
            a("s_waitcnt vmcnt(0)")
        a("s_branch L_FIN")
    if debug_stage == 9:
        a("s_branch L_FIN")
    if debug_stage not in (1, 9):
        phase2(a, debug_stage, ts, exp, save_exec, rest_exec)
        phase3(a, debug_stage, ts, exp, save_exec, rest_exec)
    a.lab("L_FIN")
    if timing:
        a("s_waitcnt vmcnt(0) lgkmcnt(0)")
        a("s_memtime s[94:95]")
        a("s_waitcnt lgkmcnt(0)")
        a(f"s_lshl_b32 s{S_T0}, s2, 3")
        a(f"s_add_u32 s{S_T0}, s{S_T0}, s{S_WID}")
        a(f"s_lshl_b32 s{S_T0}, s{S_T0}, 6")
        a(f"s_add_u32 s{S_T0}, s{S_T0}, {TIMING_OFF}")
        for i in range(13):
            a(f"s_sub_u32 s{S_T1}, s{70+2*i}, s70" if i else f"s_mov_b32 s{S_T1}, s70")
            a(f"s_cmp_eq_u32 s{70+2*i}, 0")
            a(f"s_cselect_b32 s{S_T1}, 0, s{S_T1}")
            a(f"v_mov_b32 v{40+i}, s{S_T1}")
        a(f"v_mov_b32 v2, 0")
        a(f"s_mov_b64 exec, 1")
        for i in range(3):
            a(f"buffer_store_dwordx4 v[{40+4*i}:{43+4*i}], v2, {WS}, s{S_T0} offen offset:{16*i}")
        a(f"buffer_store_dword v52, v2, {WS}, s{S_T0} offen offset:48")
        a("s_waitcnt vmcnt(0)")
    a.lab("L_END")
    a("s_endpgm")
    a(f""".section .rodata,"a"
.p2align 6
.amdhsa_kernel {NAME}_kernel
  .amdhsa_next_free_vgpr 256
  .amdhsa_next_free_sgpr 102
  .amdhsa_accum_offset 256
  .amdhsa_group_segment_fixed_size 0
  .amdhsa_kernarg_size 72
  .amdhsa_user_sgpr_count 2
  .amdhsa_user_sgpr_kernarg_segment_ptr 1
  .amdhsa_system_sgpr_workgroup_id_x 1
.end_amdhsa_kernel""")
    return a.text()

WS = f"s[{S_WS}:{S_WS+3}]"

def spin_poll(a, name, check_lines, load_line, limit=2000000, first_done=False):
    a(f"s_mov_b32 s{S_CNT}, 0")
    if first_done: a(f"s_branch {name}_W")
    a.lab(name)
    a(load_line)
    a.lab(name + "_W")
    a(f"s_add_u32 s{S_CNT}, s{S_CNT}, 1")
    a("s_waitcnt vmcnt(0)")
    for l in check_lines: a(l)
    a(f"s_cbranch_scc1 {name}_OK")
    a(f"s_cmp_lt_u32 s{S_CNT}, {limit}")
    a(f"s_cbranch_scc1 {name}")
    a.lab(name + "_OK")

def lds_inc(a, addr, save_exec, rest_exec, rtn=None):
    t = T
    a(f"v_mov_b32 v{t}, {addr}")
    a(f"v_mov_b32 v{t+1}, 1")
    save_exec(1)
    if rtn is None: a(f"ds_add_u32 v{t}, v{t+1}")
    else: a(f"ds_add_rtn_u32 v{rtn}, v{t}, v{t+1}")
    rest_exec()

def lds_wait(a, name, addr, val):
    t = T
    a(f"v_mov_b32 v{t}, {addr}")
    a(f"s_mov_b32 s{S_CNT}, 0")
    a.lab(name)
    a(f"ds_read_b32 v{t+1}, v{t}")
    a(f"s_add_u32 s{S_CNT}, s{S_CNT}, 1")
    a("s_waitcnt lgkmcnt(0)")
    a(f"v_readfirstlane_b32 s{S_T0}, v{t+1}")
    a(f"s_cmp_ge_u32 s{S_T0}, {val}")
    a(f"s_cbranch_scc1 {name}_OK")
    a(f"s_cmp_lt_u32 s{S_CNT}, 20000000")
    a(f"s_cbranch_scc1 {name}")
    a.lab(name + "_OK")

def hook_point(a, tag):
    a(f"s_add_u32 s{S_U}, s{S_U}, 1")
    a(f"s_cmp_lg_u32 s{S_U}, s{S_HOOK}")
    a(f"s_cbranch_scc1 {tag}")
    a(f"s_call_b64 s[{S_RET2}:{S_RET2+1}], L_HOOK")
    a.lab(tag)

def run_code(a, name, QM, QR, O, exp):
    cnt = [0]
    def qk1(creg):
        c = "0" if creg is None else f"v[{creg}:{creg+15}]"
        a(f"v_mfma_f32_32x32x16_bf16 v[{VS}:{VS+15}], v[{VKF}:{VKF+3}], v[{QM}:{QM+3}], {c}")
    def qk2():
        a(f"v_mfma_f32_32x32x16_bf16 v[{VS}:{VS+15}], v[{VKR}:{VKR+3}], v[{QR}:{QR+3}], v[{VS}:{VS+15}]")
    def pv(V, P):
        a(f"v_mfma_f32_32x32x16_bf16 v[{O}:{O+15}], v[{V}:{V+3}], v[{P}:{P+3}], v[{O}:{O+15}]")
    def kread():
        a(f"ds_read_b128 v[{VKF}:{VKF+3}], v{A_K}")
        a(f"ds_read_b64 v[{VKR}:{VKR+1}], v{A_KR}")
    def kstep():
        a(f"v_add_u32 v{A_K}, v{ST_K}, v{A_K}")
        a(f"v_add_u32 v{A_KR}, v{ST_K}, v{A_KR}")
    def vread(V, off):
        a(f"ds_read_b64_tr_b16 v[{V}:{V+1}], v{A_V} offset:{off}")
        a(f"ds_read_b64_tr_b16 v[{V+2}:{V+3}], v{A_V} offset:{off+576}")
    def cvt(j): a(f"v_cvt_pk_bf16_f32 v{VP+j}, v{VE+2*j}, v{VE+2*j+1}")
    def ex(r): a(f"v_exp_f32 v{VE+r}, v{VS+r}")
    def unit(D):
        for r in range(8): ex(r)
        for j in range(4): cvt(j)
        ex(8); ex(9)
        a("s_waitcnt lgkmcnt(0)")
        pv(VVA, VP)
        for r in range(10, 16): ex(r)
        if D:
            qk1(V_MASK if D == "mask" else None)
            for j in range(4, 8): cvt(j)
            vread(VVA, 0)
            qk2()
            kstep()
            kread()
            pv(VVB, VP+4)
            vread(VVB, 1152)
            a(f"v_add_u32 v{A_V}, v{ST_V}, v{A_V}")
        else:
            a("s_nop 0")
            for j in range(4, 8): cvt(j)
            a("s_nop 1")
            pv(VVB, VP+4)
    a.lab(name)
    kread()
    a(f"s_cmp_eq_u32 s{S_N}, 1")
    a(f"s_cbranch_scc1 {name}_M1")
    kstep()
    a("s_waitcnt lgkmcnt(0)")
    qk1(None); qk2()
    vread(VVA, 0); kread(); vread(VVB, 1152)
    a(f"v_add_u32 v{A_V}, v{ST_V}, v{A_V}")
    a(f"s_sub_u32 s{S_N}, s{S_N}, 2")
    a.lab(name + "_BT")
    a(f"s_cmp_eq_u32 s{S_N}, 0")
    a(f"s_cbranch_scc1 {name}_MK0")
    a(f"s_sub_u32 s{S_E}, s{S_HOOK}, s{S_U}")
    a(f"s_min_u32 s{S_E}, s{S_E}, s{S_N}")
    a(f"s_sub_u32 s{S_N}, s{S_N}, s{S_E}")
    a(f"s_add_u32 s{S_U}, s{S_U}, s{S_E}")
    a(f"s_sub_u32 s{S_E}, s{S_E}, 1")
    a.lab(name + "_LP")
    unit("plain")
    a(f"s_sub_u32 s{S_E}, s{S_E}, 1")
    a("s_nop 1")
    a(f"s_cbranch_scc0 {name}_LP")
    a(f"s_cmp_lg_u32 s{S_U}, s{S_HOOK}")
    a(f"s_cbranch_scc1 {name}_BT")
    a(f"s_call_b64 s[{S_RET2}:{S_RET2+1}], L_HOOK")
    a(f"s_branch {name}_BT")
    a.lab(name + "_MK0")
    a("s_nop 3")
    a.lab(name + "_MK")
    unit("mask")
    hook_point(a, f"{name}_H1")
    a("s_nop 1")
    a.lab(name + "_FN")
    unit(None)
    hook_point(a, f"{name}_H2")
    a(f"s_setpc_b64 s[{S_RET}:{S_RET+1}]")
    a.lab(name + "_M1")
    a("s_waitcnt lgkmcnt(0)")
    qk1(V_MASK); qk2()
    vread(VVA, 0); vread(VVB, 1152)
    a("s_nop 7")
    a(f"s_branch {name}_FN")

def set_run(a, region, tile_sreg, n_lines, step):
    a(f"s_mul_i32 s{S_T0}, s{tile_sreg}, {TILE}" if tile_sreg is not None else f"s_mov_b32 s{S_T0}, 0")
    a(f"s_add_u32 s{S_T0}, s{S_T0}, {region}")
    a(f"v_add_u32 v{A_K}, s{S_T0}, v{B_K}")
    a(f"v_add_u32 v{A_KR}, s{S_T0}, v{B_KR}")
    a(f"v_and_b32 v{A_V}, s{S_T0}, v{MK_V}")
    a(f"v_add_u32 v{A_V}, v{B_V}, v{A_V}")
    a(f"v_mov_b32 v{ST_K}, {step & 0xffffffff:#x}")
    a(f"v_and_b32 v{ST_V}, v{ST_K}, v{MK_V}")
    for l in n_lines: a(l)

def finalize(a, O, qb_sreg, save_exec, rest_exec):
    t = T; R = VS
    a(f"v_mov_b32 v{t}, 0x21800000")
    a(f"v_mov_b32 v{t+1}, 0x5d800000")
    a(f"v_cmp_nge_f32 vcc, v{O+12}, v{t}")
    a(f"s_or_b64 s[{S_BAD}:{S_BAD+1}], s[{S_BAD}:{S_BAD+1}], vcc")
    a(f"v_cmp_nle_f32 vcc, v{O+12}, v{t+1}")
    a(f"s_or_b64 s[{S_BAD}:{S_BAD+1}], s[{S_BAD}:{S_BAD+1}], vcc")
    a(f"v_rcp_f32 v{t+2}, v{O+12}")
    a(f"v_bfe_u32 v{t}, v{V_LANE}, 4, 1")
    a(f"v_mul_u32_u24 v{t}, {18*1024}, v{t}")
    for r in range(12): a(f"v_mul_f32 v{O+r}, v{O+r}, v{t+2}")
    a(f"v_cvt_pk_bf16_f32 v{R}, v{O}, v{O+1}")
    a(f"v_cvt_pk_bf16_f32 v{R+1}, v{O+2}, v{O+3}")
    a(f"v_cvt_pk_bf16_f32 v{R+2}, v{O+4}, v{O+5}")
    a(f"v_cvt_pk_bf16_f32 v{R+3}, v{O+6}, v{O+7}")
    a(f"v_cvt_pk_bf16_f32 v{R+4}, v{O+8}, v{O+9}")
    a(f"v_cvt_pk_bf16_f32 v{R+5}, v{O+10}, v{O+11}")
    a(f"v_permlane32_swap_b32 v{R}, v{R+2}")
    a(f"v_permlane32_swap_b32 v{R+1}, v{R+3}")
    a(f"v_and_b32 v{t+1}, 15, v{V_LANE}")
    a(f"v_lshl_add_u32 v{t}, v{t+1}, 4, v{t}")
    a(f"v_lshrrev_b32 v{t+1}, 5, v{V_LANE}")
    a(f"v_lshlrev_b32 v{t+1}, 8, v{t+1}")
    a(f"v_add_u32 v{t+1}, v{t}, v{t+1}")
    a(f"s_mul_i32 s{S_T0}, s{S_GRP}, 294912")
    a(f"s_add_u32 s{S_T0}, s{S_T0}, {WS_O}")
    a(f"s_mul_i32 s{S_T1}, s{qb_sreg}, {2*18*1024}")
    a(f"s_add_u32 s{S_T0}, s{S_T0}, s{S_T1}")
    a(f"s_lshl_b32 s{S_T1}, s{S_HP}, 10")
    a(f"s_lshl_b32 s{S_T2}, s{S_HEAD}, 9")
    a(f"s_add_u32 s{S_T1}, s{S_T1}, s{S_T2}")
    a(f"s_add_u32 s{S_T1}, s{S_T1}, s{S_T0}")
    a(f"buffer_store_dwordx4 v[{R}:{R+3}], v{t+1}, {WS}, s{S_T1} offen sc1")
    a(f"s_lshr_b32 s{S_T1}, s{S_HP}, 3")
    a(f"s_add_u32 s{S_T1}, s{S_T1}, 16")
    a(f"s_lshl_b32 s{S_T1}, s{S_T1}, 10")
    a(f"s_bfe_u32 s{S_T2}, s{S_HP}, 0x20001")
    a(f"s_lshl_b32 s{S_T2}, s{S_T2}, 8")
    a(f"s_add_u32 s{S_T1}, s{S_T1}, s{S_T2}")
    a(f"s_and_b32 s{S_T2}, s{S_HP}, 1")
    a(f"s_lshl_b32 s{S_T2}, s{S_T2}, 3")
    a(f"s_add_u32 s{S_T1}, s{S_T1}, s{S_T2}")
    a(f"s_lshl_b32 s{S_T2}, s{S_HEAD}, 2")
    a(f"s_add_u32 s{S_T1}, s{S_T1}, s{S_T2}")
    a(f"s_add_u32 s{S_T1}, s{S_T1}, s{S_T0}")
    a(f"s_cmp_eq_u32 s{S_HEAD}, 0")
    a(f"s_cselect_b64 vcc, -1, 0")
    a(f"v_cndmask_b32_e64 v{R+4}, v{R+5}, v{R+4}, vcc")
    a(f"s_mov_b64 s[{S_SAVE}:{S_SAVE+1}], exec")
    a(f"s_mov_b32 exec_hi, 0")
    a(f"buffer_store_dword v{R+4}, v{t}, {WS}, s{S_T1} offen sc1")
    rest_exec()

def phase2(a, debug_stage, ts, exp, save_exec, rest_exec):
    t = T; L = V_LANE
    a.c("======== phase 2 ========")
    a(f"v_readfirstlane_b32 s{S_TAGOUT}, v{V_TG}")
    a(f"v_readfirstlane_b32 s{S_TAGIN}, v{V_TG+1}")
    a(f"v_readfirstlane_b32 s{S_TAGO}, v{V_TG+2}")
    a(f"s_mov_b64 s[{S_BAD}:{S_BAD+1}], 0")
    for (QM, QR, sreg) in ((QA_M, QA_R, S_M), (QB_M, QB_R, S_MB)):
        a(f"s_mul_i32 s{S_T0}, s{sreg}, {QTILE}")
        a(f"s_add_u32 s{S_T0}, s{S_T0}, {Q_BASE}")
        a(f"v_add_u32 v{t+2}, s{S_T0}, v{B_K}")
        a(f"v_add_u32 v{t+3}, s{S_T0}, v{B_KR}")
        a(f"ds_read_b128 v[{QM}:{QM+3}], v{t+2}")
        a(f"ds_read_b64 v[{QR}:{QR+1}], v{t+3}")
    a(f"s_cmp_eq_u32 s{S_HEAD}, 0")
    a(f"s_cselect_b32 s{S_T0}, -1, 0")
    a(f"s_cselect_b32 s{S_T1}, 0, -1")
    a(f"v_cmp_gt_u32 vcc, 32, v{L}")
    a(f"v_mov_b32 v{t}, s{S_T0}")
    a(f"v_mov_b32 v{t+1}, s{S_T1}")
    a(f"v_cndmask_b32_e64 v{t}, 0, v{t}, vcc")
    a(f"v_cndmask_b32_e64 v{t+1}, 0, v{t+1}, vcc")
    a(f"v_mov_b32 v{VKR+2}, 0")
    a(f"v_mov_b32 v{VKR+3}, 0")
    for QR in (QA_R, QB_R):
        a(f"v_mov_b32 v{QR+2}, 0")
        a(f"v_mov_b32 v{QR+3}, 0")
    a("s_waitcnt lgkmcnt(0)")
    for QR in (QA_R, QB_R):
        a(f"v_and_b32 v{QR}, v{QR}, v{t}")
        a(f"v_and_b32 v{QR+1}, v{QR+1}, v{t+1}")
    lds_inc(a, CNTQ, save_exec, rest_exec)
    a(f"s_mov_b32 s{S_U}, 0")
    a(f"s_mov_b32 s{S_HST}, 0")
    a(f"s_mov_b32 s{S_HOOK}, {2 if 'hkB' in exp else 3}")
    a(f"s_cmp_ge_u32 s{S_WID}, 4")
    a(f"s_cbranch_scc1 L_HS")
    a(f"s_mov_b32 s{S_HST}, 7")
    a(f"s_add_u32 s{S_HOOK}, s{S_M}, 12")
    a.lab("L_HS")
    if 'noprio' not in exp:
        a(f"s_cmp_lt_u32 s{S_WID}, 4")
        a(f"s_cbranch_scc1 L_HS2")
        a("s_setprio 1")
        a.lab("L_HS2")
    ts(4)
    set_run(a, KV_OWN, None, [f"s_add_u32 s{S_N}, s{S_M}, 1"], TILE)
    a(f"s_call_b64 s[{S_RET}:{S_RET+1}], L_RUNA")
    set_run(a, KV_OWN, None, [f"s_sub_u32 s{S_N}, 8, s{S_M}"], TILE)
    a(f"s_call_b64 s[{S_RET}:{S_RET+1}], L_RUNB")
    ts(5)
    a(f"s_cmp_eq_u32 s{S_S}, 0")
    a("s_cbranch_scc1 L_FINAL0")
    a(f"v_mov_b32 v{t+2}, {NEG:#x}")
    for r in range(16): a(f"v_sub_f32 v{V_MASK+r}, v{t+2}, v{V_MASK+r}")
    lds_wait(a, "L_W1", CNT1, 4)
    if "tsh" not in exp: ts(7)
    a(f"s_mov_b32 s{S_T4}, 7")
    set_run(a, KV_HALO, S_T4, [f"s_add_u32 s{S_N}, s{S_M}, 1"], -TILE)
    a(f"s_call_b64 s[{S_RET}:{S_RET+1}], L_RUNB")
    a("s_nop 7")
    a("s_nop 3")
    finalize(a, OB, S_MB, save_exec, rest_exec)
    a(f"s_mov_b32 s{S_T4}, 7")
    set_run(a, KV_HALO, S_T4, [f"s_sub_u32 s{S_N}, 8, s{S_M}"], -TILE)
    a(f"s_call_b64 s[{S_RET}:{S_RET+1}], L_RUNA")
    a("s_branch L_FINALA")
    a.lab("L_FINAL0")
    a("s_nop 7")
    a("s_nop 3")
    finalize(a, OB, S_MB, save_exec, rest_exec)
    a.lab("L_FINALA")
    if "tsh" not in exp: ts(8)
    a("s_nop 7")
    a("s_nop 3")
    finalize(a, OA, S_M, save_exec, rest_exec)
    a("s_branch L_P3")

    a.lab("L_HOOK")
    for st in (0, 1, 4, 8, 5, 6):
        a(f"s_cmp_eq_u32 s{S_HST}, {st}")
        a(f"s_cbranch_scc1 L_HK{st}")
    a.lab("L_HKW2")
    if 'tsj' in exp: ts(10)
    a(f"s_mov_b32 s{S_HOOK}, 1000")
    lds_wait(a, "L_W2", CNT2, 4)
    if 'tsj' in exp: ts(11)
    a("s_branch L_HRET")
    def flag_store(add):
        a(f"s_lshl_b32 s{S_T0}, s{S_IDX}, 8")
        a(f"s_lshl_b32 s{S_T1}, s{S_L}, 2")
        a(f"s_add_u32 s{S_T0}, s{S_T0}, s{S_T1}")
        a(f"s_add_u32 s{S_T0}, s{S_T0}, {WS_FLAG+128}")
        a(f"s_add_u32 s{S_T1}, s{S_TAGOUT}, {add}")
        a(f"v_mov_b32 v{t}, 0")
        a(f"v_mov_b32 v{t+1}, s{S_T1}")
        save_exec(1)
        a(f"buffer_store_dword v{t+1}, v{t}, {WS}, s{S_T0} offen sc1")
        rest_exec()
    UF1, UP1, UC1, UW1, UC2, UW2 = 3, 5, 7, 9, 10, 12
    if 'hkA' in exp: UF1, UP1, UC1, UW1 = 3, 4, 6, 8
    if 'hkB' in exp: UF1, UP1, UC1, UW1 = 2, 4, 6, 9
    if 'hkC' in exp: UF1, UP1, UC1, UW1 = 3, 4, 6, 9
    def setnext(st, u):
        a(f"s_mov_b32 s{S_HST}, {st}")
        a(f"s_mov_b32 s{S_HOOK}, {u}")
    a.lab("L_HK0")
    if 'tsh' in exp: ts(2)
    setnext(1, UP1)
    a(f"s_cmp_eq_u32 s{S_S}, 7")
    a("s_cbranch_scc1 L_HRET")
    a("s_waitcnt vmcnt(0)")
    if 'tsh' in exp: ts(6)
    flag_store(0)
    a(f"s_mul_i32 s{S_T1}, s{S_IDX}, 36864")
    pub_stores(a, 0, VH+20)
    a("s_branch L_HRET")
    a.lab("L_HK1")
    setnext(4, UC1)
    a(f"s_cmp_eq_u32 s{S_S}, 0")
    a("s_cbranch_scc1 L_HRET")
    a(f"s_sub_u32 s{S_H1}, s{S_IDX}, 1")
    a(f"s_lshl_b32 s{S_H1}, s{S_H1}, 8")
    a(f"s_lshl_b32 s{S_T0}, s{S_L}, 2")
    a(f"s_add_u32 s{S_H1}, s{S_H1}, s{S_T0}")
    a(f"s_add_u32 s{S_H1}, s{S_H1}, {WS_FLAG+128}")
    a(f"v_mov_b32 v{t}, 0")
    a(f"buffer_load_dword v{V_TG}, v{t}, {WS}, s{S_H1} offen sc1")
    a("s_branch L_HRET")
    a.lab("L_HK4")
    if 'tsh' in exp: ts(11)
    setnext(8, UW1)
    a("s_waitcnt vmcnt(0)")
    if 'tsh' in exp: ts(9)
    a(f"s_cmp_eq_u32 s{S_S}, 7")
    a("s_cbranch_scc1 L_HK4B")
    flag_store(1)
    a(f"s_cmp_eq_u32 s{S_S}, 0")
    a("s_cbranch_scc0 L_HK4B")
    a(f"s_mov_b32 s{S_HOOK}, 1000")
    a("s_setprio 0")
    a("s_branch L_HRET")
    a.lab("L_HK4B")
    a(f"v_readfirstlane_b32 s{S_T0}, v{V_TG}")
    a(f"s_sub_u32 s{S_T0}, s{S_T0}, s{S_TAGIN}")
    a(f"s_cmp_lt_u32 s{S_T0}, 2")
    a("s_cbranch_scc1 L_POLL1A_OK")
    a(f"v_mov_b32 v{t}, 0")
    spin_poll(a, "L_POLL1A",
              [f"v_readfirstlane_b32 s{S_T0}, v{V_TG}", f"s_sub_u32 s{S_T0}, s{S_T0}, s{S_TAGIN}", f"s_cmp_lt_u32 s{S_T0}, 2"],
              f"buffer_load_dword v{V_TG}, v{t}, {WS}, s{S_H1} offen sc1")
    if 'tsh' in exp: ts(1)
    a(f"v_add_u32 v{V_PA+1}, {KV_HALO}, v{V_PA}")
    halo_loads(a, 18432, VH)
    a(f"v_mov_b32 v{t}, 0")
    a(f"buffer_load_dword v{V_TG}, v{t}, {WS}, s{S_H1} offen sc1")
    a("s_branch L_HRET")
    a.lab("L_HK8")
    if 'tsh' in exp: ts(7)
    setnext(5, UC2)
    a("s_waitcnt vmcnt(1)")
    if 'tsh' in exp: ts(8)
    for i in range(4):
        a(f"ds_write_b128 v{V_PA+1}, v[{VH+4*i}:{VH+4*i+3}] offset:{18432+i*4096}")
    a(f"v_add_u32 v{t}, s{S_H0}, v{V_PA+1}")
    a(f"ds_write_b128 v{t}, v[{VH+16}:{VH+19}] offset:18432")
    a("s_waitcnt lgkmcnt(0)")
    lds_inc(a, CNT1, save_exec, rest_exec)
    if 'p9' in exp: a("s_setprio 0")
    a("s_branch L_HRET")
    a.lab("L_HK5")
    if 'tsj' in exp: ts(1)
    setnext(6, UW2)
    a("s_waitcnt vmcnt(0)")
    a(f"s_add_u32 s{S_T3}, s{S_TAGIN}, 1")
    a(f"v_readfirstlane_b32 s{S_T0}, v{V_TG}")
    a(f"s_cmp_eq_u32 s{S_T0}, s{S_T3}")
    a("s_cbranch_scc1 L_POLL1B_OK")
    a(f"v_mov_b32 v{t}, 0")
    spin_poll(a, "L_POLL1B",
              [f"v_readfirstlane_b32 s{S_T0}, v{V_TG}", f"s_cmp_eq_u32 s{S_T0}, s{S_T3}"],
              f"buffer_load_dword v{V_TG}, v{t}, {WS}, s{S_H1} offen sc1")
    if 'tsj' in exp: ts(2)
    halo_loads(a, 0, VH+20)
    a("s_branch L_HRET")
    a.lab("L_HK6")
    if 'tsj' in exp: ts(6)
    a(f"s_mov_b32 s{S_HST}, 7")
    a(f"s_add_u32 s{S_HOOK}, s{S_M}, 12")
    a(f"s_cmp_le_u32 s{S_M}, 1")
    a("s_cbranch_scc1 L_HK6A")
    a("s_waitcnt vmcnt(0)")
    a("s_branch L_HK6B")
    a.lab("L_HK6A")
    a("s_waitcnt vmcnt(2)")
    a.lab("L_HK6B")
    if 'tsj' in exp: ts(9)
    lds_wait(a, "L_WQ", CNTQ, 8)
    for i in range(4):
        a(f"ds_write_b128 v{V_PA+1}, v[{VH+20+4*i}:{VH+20+4*i+3}] offset:{i*4096}")
    a(f"v_add_u32 v{t}, s{S_H0}, v{V_PA+1}")
    a(f"ds_write_b128 v{t}, v[{VH+36}:{VH+39}]")
    a("s_waitcnt lgkmcnt(0)")
    lds_inc(a, CNT2, save_exec, rest_exec)
    a("s_setprio 0")
    a(f"s_cmp_lg_u32 s{S_WID}, 4")
    a("s_cbranch_scc1 L_HK6C")
    a(f"s_sub_u32 s{S_T0}, s{S_IDX}, 1")
    a(f"s_lshl_b32 s{S_T0}, s{S_T0}, 8")
    a(f"s_add_u32 s{S_T0}, s{S_T0}, {WS_FLAG}")
    a(f"v_mov_b32 v{t}, 0")
    a(f"v_mov_b32 v{t+1}, s{S_TAGIN}")
    save_exec(1)
    a(f"buffer_store_dword v{t+1}, v{t}, {WS}, s{S_T0} offen sc1")
    rest_exec()
    a.lab("L_HK6C")
    a(f"s_cmp_eq_u32 s{S_M}, 0")
    a("s_cbranch_scc1 L_HKW2")
    a.lab("L_HRET")
    a(f"s_setpc_b64 s[{S_RET2}:{S_RET2+1}]")
    run_code(a, "L_RUNA", QA_M, QA_R, OA, exp)
    run_code(a, "L_RUNB", QB_M, QB_R, OB, exp)

def pub_stores(a, stage_off, base):
    a(f"s_add_u32 s{S_T2}, s{S_T1}, {stage_off}")
    a(f"buffer_store_dwordx4 v[{base}:{base+3}], v{V_PA}, {WS}, s{S_T2} offen sc1")
    for i in range(1, 4):
        a(f"s_add_u32 s{S_T3}, s{S_T2}, {i*4096}")
        a(f"buffer_store_dwordx4 v[{base+4*i}:{base+4*i+3}], v{V_PA}, {WS}, s{S_T3} offen sc1")
    a(f"buffer_store_dwordx4 v[{base+16}:{base+19}], v{V_PA+2}, {WS}, s{S_T2} offen sc1")

def halo_loads(a, stage_off, base):
    t = T
    a(f"s_sub_u32 s{S_T0}, s{S_IDX}, 1")
    a(f"s_mul_i32 s{S_T0}, s{S_T0}, 36864")
    a(f"s_add_u32 s{S_T0}, s{S_T0}, {stage_off}")
    for i in range(4):
        a(f"s_add_u32 s{S_T1}, s{S_T0}, {i*4096}")
        a(f"buffer_load_dwordx4 v[{base+4*i}:{base+4*i+3}], v{V_PA}, {WS}, s{S_T1} offen sc1")
    a(f"s_add_u32 s{S_T1}, s{S_T0}, s{S_H0}")
    a(f"buffer_load_dwordx4 v[{base+16}:{base+19}], v{V_PA}, {WS}, s{S_T1} offen sc1")

def phase3(a, debug_stage, ts, exp, save_exec, rest_exec):
    t = T; L = V_LANE
    a.lab("L_P3")
    a.c("======== phase 3 ========")
    a("s_waitcnt vmcnt(0)")
    if "tsh" not in exp and "tsj" not in exp: ts(9)
    a(f"s_lshl_b32 s{S_T4}, s{S_GRP}, 8")
    a(f"s_add_u32 s{S_T4}, s{S_T4}, {WS_OF}")
    lds_inc(a, CNTO, save_exec, rest_exec, rtn=t+2)
    a("s_waitcnt lgkmcnt(0)")
    a(f"v_readfirstlane_b32 s{S_T0}, v{t+2}")
    a(f"s_cmp_lg_u32 s{S_T0}, 7")
    a("s_cbranch_scc1 L_P3W")
    a(f"s_lshl_b32 s{S_T0}, s{S_HP}, 2")
    a(f"s_add_u32 s{S_T0}, s{S_T0}, s{S_T4}")
    a(f"v_mov_b32 v{t}, 0")
    a(f"v_mov_b32 v{t+1}, s{S_TAGO}")
    save_exec(1)
    a(f"buffer_store_dword v{t+1}, v{t}, {WS}, s{S_T0} offen offset:128 sc1")
    rest_exec()
    a.lab("L_P3W")
    OF = 36; AC = 108; WF0, WF1 = 148, 168; AW, AW2 = 10, 11
    a(f"s_mul_i32 s{S_T0}, s{S_GRP}, 294912")
    a(f"s_add_u32 s{S_T0}, s{S_T0}, {WS_O}")
    a(f"s_lshr_b32 s{S_T1}, s{S_HP}, 3")
    a(f"s_lshl_b32 s{S_T1}, s{S_T1}, 3")
    a(f"s_lshl_b32 s{S_T2}, s{S_M}, 1")
    a(f"s_add_u32 s{S_T1}, s{S_T1}, s{S_T2}")
    a(f"s_mul_i32 s{S_T1}, s{S_T1}, 18")
    a(f"s_mul_i32 s{S_T2}, s{S_HEAD}, 9")
    a(f"s_add_u32 s{S_T1}, s{S_T1}, s{S_T2}")
    a(f"s_lshl_b32 s{S_T1}, s{S_T1}, 10")
    a(f"s_add_u32 s{S_T0}, s{S_T0}, s{S_T1}")
    a(f"s_add_u32 s{S_T1}, s{S_T0}, {18*1024}")
    a(f"v_lshrrev_b32 v{t+1}, 4, v{L}")
    a(f"v_bfe_u32 v{t+2}, v{L}, 2, 2")
    a(f"v_and_b32 v{t+3}, 3, v{L}")
    a(f"v_lshrrev_b32 v{t+4}, 1, v{t+1}")
    a(f"v_lshlrev_b32 v{t+4}, 2, v{t+4}")
    a(f"v_lshl_add_u32 v{t+4}, v{t+1}, 3, v{t+4}")
    a(f"v_add_u32 v{t+4}, v{t+4}, v{t+2}")
    a(f"v_mul_u32_u24 v{t+4}, 144, v{t+4}")
    a(f"v_lshl_add_u32 v{t+4}, v{t+3}, 3, v{t+4}")
    a(f"s_mul_i32 s{S_T2}, s{S_HEAD}, {9*5184}")
    a(f"v_add_u32 v{AW}, s{S_T2}, v{t+4}")
    a(f"v_mul_u32_u24 v{t+4}, 72, v{t+1}")
    a(f"v_add3_u32 v{t+4}, v{t+4}, v{t+2}, 16")
    a(f"v_mul_u32_u24 v{t+4}, 144, v{t+4}")
    a(f"v_lshl_add_u32 v{AW2}, v{t+3}, 3, v{t+4}")
    for i in range(40): a(f"v_mov_b32 v{AC+i}, 0")
    a(f"v_lshlrev_b32 v{t}, 4, v{L}")
    def wreads(ks, kh, WF):
        l = []
        kap = 9*kh + ks
        for Tn in range(5):
            b = WF + 4*Tn
            if kap < 16:
                o0 = ks*5184 + Tn*32
                l.append(f"ds_read_b64_tr_b16 v[{b}:{b+1}], v{AW} offset:{o0}")
                l.append(f"ds_read_b64_tr_b16 v[{b+2}:{b+3}], v{AW} offset:{o0+576}")
            else:
                o0 = (kap-16)*8*36*144 + Tn*32
                l.append(f"ds_read_b64_tr_b16 v[{b}:{b+1}], v{AW2} offset:{o0}")
                l.append(f"ds_read_b64_tr_b16 v[{b+2}:{b+3}], v{AW2} offset:{o0+36*144}")
        return l
    save_exec("0xffff")
    a(f"v_lshlrev_b32 v{t+2}, 2, v{L}")
    spin_poll(a, "L_POLL2",
              [f"v_cmp_ne_u32 vcc, s{S_TAGO}, v{t+1}", "s_nop 1", f"s_cmp_eq_u64 vcc, 0"],
              f"buffer_load_dword v{t+1}, v{t+2}, {WS}, s{S_T4} offen offset:128 sc1")
    a(f"s_cmp_lg_u32 s{S_HP}, 0")
    a("s_cbranch_scc1 L_NOG2")
    a(f"s_cmp_lg_u32 s{S_WID}, 0")
    a("s_cbranch_scc1 L_NOG2")
    a(f"s_mov_b64 exec, 1")
    a(f"v_mov_b32 v{t+2}, 0")
    a(f"v_mov_b32 v{t+1}, s{S_TAGO}")
    a(f"buffer_store_dword v{t+1}, v{t+2}, {WS}, s{S_T4} offen sc1")
    a.lab("L_NOG2")
    rest_exec()
    if 'tsx' not in exp and 'tsh' not in exp and 'tsj' not in exp: ts(10)
    if debug_stage == 2:
        a("s_branch L_FIN")
        return
    for ks in range(9):
        for mt in range(2):
            r = OF + (mt*9+ks)*4
            a(f"buffer_load_dwordx4 v[{r}:{r+3}], v{t}, {WS}, s{S_T0 if mt == 0 else S_T1} offen sc1")
        a(f"s_add_u32 s{S_T0}, s{S_T0}, 1024")
        a(f"s_add_u32 s{S_T1}, s{S_T1}, 1024")
    def body(kh):
        for rd in wreads(0, kh, WF0): a(rd)
        for ks in range(9):
            cur = WF0 if ks % 2 == 0 else WF1
            nxt = WF1 if ks % 2 == 0 else WF0
            a(f"s_waitcnt vmcnt({2*(8-ks)}) lgkmcnt(0)")
            rs = wreads(ks+1, kh, nxt) if ks < 8 else []
            ri = 0
            for Tn in range(5):
                for mt in range(2):
                    d = AC + (mt*5+Tn)*4
                    o = OF + (mt*9+ks)*4
                    a(f"v_mfma_f32_16x16x32_bf16 v[{d}:{d+3}], v[{cur+4*Tn}:{cur+4*Tn+3}], v[{o}:{o+3}], v[{d}:{d+3}]")
                    if ri < len(rs): a(rs[ri]); ri += 1
    a(f"s_cmp_eq_u32 s{S_HEAD}, 0")
    a("s_cbranch_scc0 L_P3K1")
    body(0)
    a("s_branch L_P3R")
    a.lab("L_P3K1")
    body(1)
    a.lab("L_P3R")
    if "tsh" not in exp and "tsj" not in exp: ts(11)
    a(f"v_lshlrev_b32 v{t}, 4, v{L}")
    a(f"s_mul_i32 s{S_T0}, s{S_WID}, 5120")
    a(f"s_add_u32 s{S_T0}, s{S_T0}, {KV_OWN}")
    a(f"v_add_u32 v{t+1}, s{S_T0}, v{t}")
    a(f"s_xor_b32 s{S_T1}, s{S_WID}, 4")
    a(f"s_mul_i32 s{S_T1}, s{S_T1}, 5120")
    a(f"s_add_u32 s{S_T1}, s{S_T1}, {KV_OWN}")
    a(f"v_add_u32 v{t+2}, s{S_T1}, v{t}")
    a(f"s_cmp_eq_u32 s{S_HEAD}, 0")
    a("s_cbranch_scc0 L_P3X1")
    for Tn in range(5): a(f"ds_write_b128 v{t+1}, v[{AC+(5+Tn)*4}:{AC+(5+Tn)*4+3}] offset:{Tn*1024}")
    a("s_branch L_P3X2")
    a.lab("L_P3X1")
    for Tn in range(5): a(f"ds_write_b128 v{t+1}, v[{AC+Tn*4}:{AC+Tn*4+3}] offset:{Tn*1024}")
    a("s_nop 1")
    for i in range(20): a(f"v_mov_b32 v{AC+i}, v{AC+20+i}")
    a.lab("L_P3X2")
    a(f"s_lshr_b32 s{S_T1}, s{S_HP}, 3")
    a(f"s_lshl_b32 s{S_T1}, s{S_T1}, 7")
    a(f"s_lshl_b32 s{S_T2}, s{S_S}, 8")
    a(f"s_add_u32 s{S_T1}, s{S_T1}, s{S_T2}")
    a(f"s_lshl_b32 s{S_T2}, s{S_M}, 5")
    a(f"s_add_u32 s{S_T1}, s{S_T1}, s{S_T2}")
    a(f"s_lshl_b32 s{S_T2}, s{S_HEAD}, 4")
    a(f"s_add_u32 s{S_T1}, s{S_T1}, s{S_T2}")
    a(f"s_mul_i32 s{S_T1}, s{S_T1}, 2304")
    a(f"s_mul_i32 s{S_T2}, s{S_B}, 1152")
    a(f"s_add_u32 s{S_T1}, s{S_T1}, s{S_T2}")
    a(f"s_and_b32 s{S_T2}, s{S_HP}, 7")
    a(f"s_mul_i32 s{S_T2}, s{S_T2}, 144")
    a(f"s_add_u32 s{S_T1}, s{S_T1}, s{S_T2}")
    PX = WF0
    for i in range(3):
        a(f"v_add_u32 v{t+3}, {i*64}, v{L}")
        a(f"v_mul_u32_u24 v{t+4}, 7282, v{t+3}")
        a(f"v_lshrrev_b32 v{t+4}, 16, v{t+4}")
        a(f"v_mul_u32_u24 v{t+5}, 9, v{t+4}")
        a(f"v_sub_u32 v{t+5}, v{t+3}, v{t+5}")
        a(f"v_mul_u32_u24 v{t+4}, 2304, v{t+4}")
        a(f"v_lshl_add_u32 v{PX+20+i}, v{t+5}, 4, v{t+4}")
    a(f"v_and_b32 v{t+3}, 15, v{L}")
    a(f"v_mul_u32_u24 v{t+3}, 144, v{t+3}")
    a(f"v_lshrrev_b32 v{t+4}, 4, v{L}")
    a(f"v_lshl_add_u32 v{t+3}, v{t+4}, 3, v{t+3}")
    a(f"s_mul_i32 s{S_T0}, s{S_WID}, 2304")
    a(f"s_add_u32 s{S_T0}, s{S_T0}, {KV_HALO+8192}")
    a(f"v_add_u32 v{t+3}, s{S_T0}, v{t+3}")
    a(f"v_lshlrev_b32 v{t+4}, 4, v{L}")
    a(f"v_add_u32 v{t+4}, s{S_T0}, v{t+4}")
    a("s_waitcnt lgkmcnt(0)")
    a("s_barrier")
    for Tn in range(5): a(f"ds_read_b128 v[{PX+4*Tn}:{PX+4*Tn+3}], v{t+2} offset:{Tn*1024}")
    a("s_waitcnt lgkmcnt(0)")
    for i in range(20): a(f"v_add_f32 v{AC+i}, v{AC+i}, v{PX+i}")
    for Tn in range(5):
        a(f"v_cvt_pk_bf16_f32 v{PX+2*Tn}, v{AC+4*Tn}, v{AC+4*Tn+1}")
        a(f"v_cvt_pk_bf16_f32 v{PX+2*Tn+1}, v{AC+4*Tn+2}, v{AC+4*Tn+3}")
    for Tn in range(4): a(f"ds_write_b64 v{t+3}, v[{PX+2*Tn}:{PX+2*Tn+1}] offset:{Tn*32}")
    a(f"s_mov_b64 s[{S_SAVE}:{S_SAVE+1}], exec")
    a(f"s_mov_b32 exec_hi, 0")
    a(f"ds_write_b64 v{t+3}, v[{PX+8}:{PX+9}] offset:128")
    rest_exec()
    a("s_waitcnt lgkmcnt(0)")
    for i in range(3):
        a(f"ds_read_b128 v[{AC+4*i}:{AC+4*i+3}], v{t+4} offset:{i*1024}")
    a("s_waitcnt lgkmcnt(0)")
    for i in range(3):
        if i == 2: a(f"s_mov_b64 exec, 0xffff")
        a(f"buffer_store_dwordx4 v[{AC+4*i}:{AC+4*i+3}], v{PX+20+i}, s[{S_OUT}:{S_OUT+3}], s{S_T1} offen")
    a(f"s_mov_b64 exec, -1")

def run_code_x(a, name, QM, QR, O, exp):
    VE2, VP2, KF, KR, VA, VB = 100, 116, 124, 128, 132, 136
    def qk1(c="0"):
        if 'nomfma' not in exp: a(f"v_mfma_f32_32x32x16_bf16 v[{VS}:{VS+15}], v[{KF}:{KF+3}], v[{QM}:{QM+3}], {c}")
    def qk2():
        if 'nomfma' not in exp: a(f"v_mfma_f32_32x32x16_bf16 v[{VS}:{VS+15}], v[{KR}:{KR+3}], v[{QR}:{QR+3}], v[{VS}:{VS+15}]")
    def pv(V, P):
        if 'nomfma' not in exp: a(f"v_mfma_f32_32x32x16_bf16 v[{O}:{O+15}], v[{V}:{V+3}], v[{(220 if 'nopdep' in exp else P)}:{(220 if 'nopdep' in exp else P)+3}], v[{O}:{O+15}]")
    def kread():
        if 'nolds' in exp or 'nok' in exp: return
        a(f"ds_read_b128 v[{KF}:{KF+3}], v{A_K}")
        a(f"ds_read_b64 v[{KR}:{KR+1}], v{A_KR}")
    def vread(V, off):
        if 'nolds' in exp: return
        a(f"ds_read_b64_tr_b16 v[{V}:{V+1}], v{A_V} offset:{off}")
        a(f"ds_read_b64_tr_b16 v[{V+2}:{V+3}], v{A_V} offset:{off+576}")
    def cvt(j): a(f"v_cvt_pk_bf16_f32 v{VP2+j}, v{VE2+2*j}, v{VE2+2*j+1}")
    def ex(r): a(f"v_exp_f32 v{VE2+r}, v{(200 if 'nodep' in exp else VS)+r}")
    adds = [f"v_add_u32 v{A_K}, v{ST_K}, v{A_K}", f"v_add_u32 v{A_KR}, v{ST_K}, v{A_KR}", f"v_add_u32 v{A_V}, v{ST_V}, v{A_V}"]
    if 'noadd' in exp: adds = ["s_nop 0"]*3
    a.lab(name)
    kread(); a("s_waitcnt lgkmcnt(0)"); qk1(); qk2(); vread(VA, 0); vread(VB, 1152); kread(); a("s_nop 7")
    a.lab(name + "_LP")
    if 'v3' in exp:
        for r in range(16): ex(r)
        a("s_waitcnt lgkmcnt(0)")
        qk1()
        for j in range(6): cvt(j)
        pv(VA, VP2)
        cvt(6); cvt(7); a(adds[0]); a(adds[1])
        qk2()
        a(adds[2])
        pv(VB, VP2+4)
        vread(VA, 0); vread(VB, 1152); kread()
    elif 'v4' in exp:
        for r in range(8): ex(r)
        for j in range(4): cvt(j)
        ex(8); ex(9)
        a("s_waitcnt lgkmcnt(0)")
        pv(VA, VP2)
        for r in range(10, 16): ex(r)
        qk1()
        for j in range(4, 8): cvt(j)
        a(adds[0]); a(adds[1])
        qk2()
        vread(VA, 0); a(adds[2]); kread()
        pv(VB, VP2+4)
        vread(VB, 1152)
    elif 'v5' in exp:
        for r in range(8): ex(r)
        for j in range(4): cvt(j)
        ex(8); ex(9)
        a("s_waitcnt lgkmcnt(0)")
        pv(VA, VP2)
        for r in range(10, 16): ex(r)
        qk1()
        for j in range(4, 8): cvt(j)
        qk2()
        a(adds[0]); a(adds[1]); kread(); vread(VA, 0)
        pv(VB, VP2+4)
        a(adds[2]); vread(VB, 1152)
    a(f"s_sub_u32 s{S_N}, s{S_N}, 1")
    if 'v3' in exp: a("s_nop 1")
    a(f"s_cbranch_scc0 {name}_LP")
    a(f"s_setpc_b64 s[{S_RET}:{S_RET+1}]")

if __name__ == "__main__":
    import argparse
    p = argparse.ArgumentParser(); p.add_argument("--debug", type=int, default=0)
    p.add_argument("--timing", action="store_true"); p.add_argument("--exp", default=""); p.add_argument("-o", default="/dev/stdout")
    args = p.parse_args()
    open(args.o, "w").write(gen(args.debug, args.timing, args.exp))
```

```python
import sys, math, struct

NAME = "concat_heads__sliding_block__sliding_block__prompt"

STAGE   = 49152
WO_BASE = 0
KV_OWN  = 82944
KV_HALO = 119808
Q_BASE  = 119808
MISC    = 156672
TAGS_LDS = MISC + 2048
CNT2, CNT1, CNTQ, CNTO = TAGS_LDS+12, TAGS_LDS+16, TAGS_LDS+20, TAGS_LDS+24
LDS_TOTAL = 163840
TILE    = 4608
QTILE   = 2304
WS_KV   = 0
WS_O    = 256*36864
WS_FLAG = WS_O + 16*294912
WS_OF   = WS_FLAG + 65536
TIMING_OFF = 24<<20
TAG_INC = 0x9E3779B1
NEG     = 0xFF61B1E6
QSCALE  = (18.0 ** -0.5) * math.log2(math.e)
def f32bits(x): return struct.unpack("<I", struct.pack("<f", x))[0]

class Asm:
    def __init__(self): self.l = []
    def __call__(self, s=""):
        for line in s.split("\n"):
            self.l.append("  " + line.strip())
    def lab(self, n): self.l.append(n + ":")
    def c(self, s): self.l.append("  ; " + s)
    def text(self): return "\n".join(self.l) + "\n"

S_X, S_W, S_WO, S_WS, S_OUT = 8, 12, 16, 20, 24
S_B, S_S, S_HP, S_WID = 28, 29, 30, 31
S_T0, S_T1, S_T2, S_T3, S_T4, S_T5 = 32, 33, 34, 35, 36, 37
S_I = 38
S_L = 39
S_TAGIN, S_TAGOUT, S_TAGO = 40, 41, 42
S_K, S_C, S_SB, S_XB, S_WB = 43, 44, 45, 46, 47
S_LX, S_LW = 48, 49
S_N = 50
S_U = 51
S_RET = 52
S_IDX, S_GRP, S_HEAD, S_M = 54, 55, 56, 57
S_SAVE = 58
S_CNT = 60
S_HOOK = 61
S_BAD = 62
S_RET2 = 64
S_MB = 66
S_HST = 67
S_H0, S_H1 = 68, 69
S_E = 98

V_LANE = 1
T = 2
V_AX = 10
V_AW = 12
V_MASK = 20
V_SET0, V_SET1, V_ACC = 36, 80, 124
V_LDX, V_LDW = 36, 44
V_TG = 236
B_K, B_KR, B_V, MK_V = 240, 241, 242, 243
vEK, vEQ, vEV, vE6, vDr, vDt, vF, vC = 244, 245, 246, 247, 248, 249, 250, 252
V_TL = 254
QA_M, QA_R, QB_M, QB_R = 36, 40, 44, 48
OA, OB = 52, 68
VS, VE, VP = 84, 100, 116
VKF, VKR, VVA, VVB = 124, 128, 132, 136
A_K, A_KR, A_V, ST_V, ST_K = 10, 11, 12, 13, 14
VH = 140
V_WOV = 180
V_PA = 184

def emit_masks_(a):
    t = T; L = V_LANE
    a(f"v_and_b32 v{t}, 31, v{L}")
    a(f"v_lshrrev_b32 v{t+1}, 5, v{L}")
    a(f"v_lshlrev_b32 v{t+1}, 2, v{t+1}")
    a(f"v_sub_u32 v{t}, v{t}, v{t+1}")
    a(f"v_mov_b32 v{t+1}, {NEG:#x}")
    for r in range(16):
        jj = (r & 3) + 8*(r >> 2)
        a(f"v_cmp_le_i32 vcc, {jj}, v{t}")
        a("s_nop 1")
        a(f"v_cndmask_b32_e64 v{V_MASK+r}, v{t+1}, 0, vcc")
def emit_p2_patterns_(a):
    t = T; L = V_LANE
    a(f"v_and_b32 v{t}, 31, v{L}")
    a(f"v_lshrrev_b32 v{t+1}, 5, v{L}")
    a(f"v_lshrrev_b32 v{t+2}, 2, v{t}")
    a(f"v_lshrrev_b32 v{t+3}, 3, v{t}")
    a(f"v_xor_b32 v{t+2}, v{t+2}, v{t+3}")
    a(f"v_xor_b32 v{t+2}, v{t+2}, v{t+1}")
    a(f"v_and_b32 v{t+2}, 1, v{t+2}")
    a(f"v_lshlrev_b32 v{t+2}, 4, v{t+2}")
    a(f"v_lshl_add_u32 v{t+2}, v{t}, 5, v{t+2}")
    a(f"s_lshl_b32 s{S_T0}, s{S_HEAD}, 10")
    a(f"v_add_u32 v{B_K}, s{S_T0}, v{t+2}")
    a(f"v_lshlrev_b32 v{B_KR}, 3, v{t}")
    a(f"v_add_u32 v{B_KR}, 2048, v{B_KR}")
    a(f"v_bfe_u32 v{t+2}, v{L}, 2, 2")
    a(f"v_lshl_add_u32 v{t+2}, v{t+1}, 2, v{t+2}")
    a(f"v_mul_u32_u24 v{t+2}, 72, v{t+2}")
    a(f"v_add_u32 v{t+2}, 2304, v{t+2}")
    a(f"v_and_b32 v{t+3}, 3, v{L}")
    a(f"v_lshlrev_b32 v{t+4}, 3, v{t+3}")
    a(f"s_mul_i32 s{S_T0}, s{S_HEAD}, 40")
    a(f"v_add3_u32 v{t+4}, v{t+4}, v{t+2}, s{S_T0}")
    a(f"v_add_u32 v{t+5}, 32, v{t+2}")
    a(f"v_bfe_u32 v{t+6}, v{L}, 4, 1")
    a(f"v_cmp_eq_u32 vcc, 1, v{t+6}")
    a(f"v_lshrrev_b32 v{t+7}, 1, v{t+3}")
    a(f"v_and_b32 v{t+7}, v{t+7}, v{t+6}")
    a(f"v_cndmask_b32 v{B_V}, v{t+4}, v{t+5}, vcc")
    a(f"v_cmp_eq_u32 vcc, 1, v{t+7}")
    a(f"v_mov_b32 v{t+5}, {MISC}")
    a(f"v_mov_b32 v{t+6}, -1")
    a(f"v_cndmask_b32 v{B_V}, v{B_V}, v{t+5}, vcc")
    a(f"v_cndmask_b32_e64 v{MK_V}, v{t+6}, 0, vcc")


def gen(debug_stage=0, timing=False, exp=''):
    a = Asm()
    t = T; L = V_LANE
    def ts(i, force=False):
        if timing: a(f"s_memtime s[{70+2*i}:{71+2*i}]")
    WS = f"s[{S_WS}:{S_WS+3}]"
    def save_exec(val):
        a(f"s_mov_b64 s[{S_SAVE}:{S_SAVE+1}], exec")
        a(f"s_mov_b64 exec, {val}")
    def rest_exec():
        a(f"s_mov_b64 exec, s[{S_SAVE}:{S_SAVE+1}]")

    a.l += [f"; Kernarg layout (72 bytes): A_x, A_wqkv, A_wo, B_x, B_wqkv, B_wo, out, debug, ws",
            f"; @launch grid=(256,1,1) block=(512,1,1) lds={LDS_TOTAL}"]
    a(f""".amdgcn_target "amdgcn-amd-amdhsa--gfx950"
.text
.globl {NAME}_kernel
.p2align 8
.type {NAME}_kernel,@function""")
    a.lab(f"{NAME}_kernel")
    a("s_cmp_ge_u32 s2, 256")
    a("s_cbranch_scc1 L_END")
    a(f"s_and_b32 s3, s2, 7")
    a(f"s_lshr_b32 s{S_B}, s3, 2")
    a(f"s_mul_i32 s{S_T0}, s{S_B}, 24")
    a(f"s_add_u32 s4, s0, s{S_T0}")
    a(f"s_addc_u32 s5, s1, 0")
    a(f"s_load_dwordx2 s[{S_X}:{S_X+1}], s[4:5], 0")
    a(f"s_load_dwordx2 s[{S_W}:{S_W+1}], s[4:5], 8")
    a(f"s_load_dwordx2 s[{S_WO}:{S_WO+1}], s[4:5], 16")
    a(f"s_load_dwordx2 s[{S_OUT}:{S_OUT+1}], s[0:1], 48")
    a(f"s_load_dwordx2 s[{S_WS}:{S_WS+1}], s[0:1], 64")
    if timing:
        for i in range(13): a(f"s_mov_b32 s{70+2*i}, 0")
    if 'dbg' in exp:
        a("s_load_dwordx2 s[6:7], s[0:1], 56")
        a("s_memrealtime s[96:97]")
    ts(0)
    a(f"s_lshr_b32 s{S_I}, s2, 3")
    a(f"s_lshr_b32 s{S_T2}, s3, 1")
    a(f"s_and_b32 s{S_T2}, s{S_T2}, 1")
    a(f"s_lshl_b32 s{S_T2}, s{S_T2}, 2")
    a(f"s_and_b32 s{S_T3}, s{S_I}, 3")
    a(f"s_add_u32 s{S_S}, s{S_T2}, s{S_T3}")
    a(f"s_and_b32 s{S_T2}, s3, 1")
    a(f"s_lshl_b32 s{S_T2}, s{S_T2}, 3")
    a(f"s_lshr_b32 s{S_T4}, s{S_I}, 2")
    a(f"s_add_u32 s{S_HP}, s{S_T2}, s{S_T4}")
    a(f"s_lshl_b32 s{S_T3}, s{S_T3}, 1")
    a(f"s_add_u32 s{S_C}, s{S_T4}, s{S_T3}")
    a(f"s_cmp_ge_u32 s{S_C}, 9")
    a(f"s_cselect_b32 s{S_T3}, 9, 0")
    a(f"s_sub_u32 s{S_C}, s{S_C}, s{S_T3}")
    if 'norot' in exp: a(f"s_mov_b32 s{S_C}, 0")
    a(f"s_lshl_b32 s{S_T0}, s{S_B}, 4")
    a(f"s_add_u32 s{S_T0}, s{S_T0}, s{S_HP}")
    a(f"s_lshl_b32 s{S_T0}, s{S_T0}, 3")
    a(f"s_add_u32 s{S_IDX}, s{S_T0}, s{S_S}")
    a(f"s_lshl_b32 s{S_T0}, s{S_B}, 3")
    a(f"s_add_u32 s{S_GRP}, s{S_T0}, s{S_S}")
    a(f"v_lshrrev_b32 v{t}, 6, v0")
    a(f"v_and_b32 v{L}, 63, v0")
    a(f"v_readfirstlane_b32 s{S_WID}, v{t}")
    for (r, n) in ((S_X, 2359296), (S_W, 1990656), (S_WO, 663552), (S_WS, 268435456), (S_OUT, 4718592)):
        a(f"s_mov_b32 s{r+2}, {n}")
        a(f"s_mov_b32 s{r+3}, 0x00020000")
    a(f"s_and_b32 s{S_M}, s{S_WID}, 3")
    a(f"s_lshr_b32 s{S_HEAD}, s{S_WID}, 2")
    a(f"s_sub_u32 s{S_MB}, 7, s{S_M}")
    a(f"s_cmp_lt_u32 s{S_WID}, 4")
    a("s_cbranch_scc1 L_COMPUTE")

    emit_masks = lambda: emit_masks_(a)
    emit_p2_patterns = lambda: emit_p2_patterns_(a)

    a(f"s_sub_u32 s{S_L}, s{S_WID}, 4")
    a(f"v_lshrrev_b32 v{t}, 3, v{L}")
    a(f"v_mul_u32_u24 v{t}, 1152, v{t}")
    a(f"v_lshrrev_b32 v{t+1}, 4, v{L}")
    a(f"v_and_b32 v{t+2}, 7, v{L}")
    a(f"v_xor_b32 v{t+3}, v{t+2}, v{t+1}")
    a(f"v_lshl_add_u32 v{V_AX}, v{t+3}, 4, v{t}")
    a(f"v_xor_b32 v{t+3}, 4, v{t+3}")
    a(f"v_lshl_add_u32 v{V_AX+1}, v{t+3}, 4, v{t}")
    a(f"s_mul_i32 s{S_T0}, s{S_HP}, 72")
    a(f"s_and_b32 s{S_T0}, s{S_T0}, 0xfffffff0")
    a(f"v_and_b32 v{t+2}, 15, v{L}")
    a(f"v_mul_u32_u24 v{t+4}, 3456, v{t+1}")
    a(f"v_add_u32 v{t+4}, s{S_T0}, v{t+4}")
    for var in range(2):
        a(f"v_lshlrev_b32 v{t+3}, 1, v{t+1}")
        a(f"v_sub_u32 v{t+3}, v{t+2}, v{t+3}")
        if var: a(f"v_subrev_u32 v{t+3}, 8, v{t+3}")
        a(f"v_and_b32 v{t+3}, 15, v{t+3}")
        a(f"v_min_u32 v{t+3}, 14, v{t+3}")
        a(f"v_mul_u32_u24 v{t+5}, 13, v{t+3}")
        a(f"v_lshrrev_b32 v{t+5}, 6, v{t+5}")
        a(f"v_mul_u32_u24 v{t+6}, 5, v{t+5}")
        a(f"v_sub_u32 v{t+6}, v{t+3}, v{t+6}")
        a(f"v_mul_u32_u24 v{t+5}, 1152, v{t+5}")
        a(f"v_lshl_add_u32 v{t+6}, v{t+6}, 4, v{t+5}")
        a(f"v_add_u32 v{V_AX+2+var}, v{t+4}, v{t+6}")
    for i in range(8):
        a(f"v_add_u32 v{V_LDX+i}, {i*9216-(i&3)*1024}, v{V_AX+(i&1)}")
    for i in range(4):
        a(f"v_add_u32 v{V_LDW+i}, {i*4*3456-i*1024}, v{V_AX+2+(i>>1)}")
    a(f"s_lshl_b32 s{S_T0}, s{S_S}, 8")
    a(f"s_lshl_b32 s{S_T1}, s{S_L}, 6")
    a(f"s_add_u32 s{S_T0}, s{S_T0}, s{S_T1}")
    a(f"s_mul_i32 s{S_XB}, s{S_T0}, 1152")
    a(f"s_mul_i32 s{S_WB}, s{S_L}, {16*3456}")
    a(f"s_lshl_b32 s{S_LX}, s{S_L}, 13")
    a(f"s_lshl_b32 s{S_LW}, s{S_L}, 12")
    a(f"s_add_u32 s{S_LW}, s{S_LW}, 32768")
    a(f"s_mov_b32 s{S_SB}, 0")
    def chunk_pre():
        a(f"s_lshl_b32 s{S_T0}, s{S_C}, 7")
        a(f"s_add_u32 s{S_T0}, s{S_T0}, s{S_XB}")
        a(f"s_mul_i32 s{S_T1}, s{S_C}, {64*3456}")
        a(f"s_add_u32 s{S_T1}, s{S_T1}, s{S_WB}")
        a(f"s_add_u32 s{S_T2}, s{S_SB}, s{S_LW}")
        a(f"s_add_u32 s{S_T3}, s{S_SB}, s{S_LX}")
        a(f"s_add_u32 s{S_C}, s{S_C}, 1")
        a(f"s_cmp_eq_u32 s{S_C}, 9")
        a(f"s_cselect_b32 s{S_C}, 0, s{S_C}")
        a(f"s_add_u32 s{S_SB}, s{S_SB}, {STAGE}")
        a(f"s_cmp_eq_u32 s{S_SB}, {3*STAGE}")
        a(f"s_cselect_b32 s{S_SB}, 0, s{S_SB}")
    def chunk_w():
        a(f"s_mov_b32 m0, s{S_T2}")
        a("s_nop 0")
        for i in range(4):
            a(f"buffer_load_dwordx4 v{V_LDW+i}, s[{S_W}:{S_W+3}], s{S_T1} offen offset:{i*1024} lds")
    def chunk_x(lo, hi):
        for i in range(lo, hi):
            if i == lo or i == 4:
                a(f"s_add_u32 m0, s{S_T3}, {(i&~3)*1024}")
                a("s_nop 0")
            a(f"buffer_load_dwordx4 v{V_LDX+i}, s[{S_X}:{S_X+3}], s{S_T0} offen offset:{(i&3)*1024} lds")
    chunk_pre()
    a("s_waitcnt lgkmcnt(0)")
    chunk_w(); chunk_x(0, 8)
    chunk_pre(); chunk_w(); chunk_x(0, 2)
    a("s_waitcnt vmcnt(6)")
    a("s_barrier")
    chunk_x(2, 8)
    chunk_pre()
    a(f"s_mov_b32 s{S_K}, 2")
    a.lab("L_LD")
    chunk_w(); chunk_x(0, 8)
    chunk_pre()
    a(f"s_add_u32 s{S_K}, s{S_K}, 1")
    a(f"s_cmp_lt_u32 s{S_K}, 9")
    a("s_waitcnt vmcnt(12)")
    a("s_barrier")
    a("s_cbranch_scc1 L_LD")
    a(f"s_lshl_b32 s{S_T0}, s{S_L}, 6")
    a(f"v_add_u32 v{t}, s{S_T0}, v{L}")
    a(f"v_mul_u32_u24 v{t+1}, 7282, v{t}")
    a(f"v_lshrrev_b32 v{t+1}, 16, v{t+1}")
    a(f"v_mul_u32_u24 v{t+2}, 9, v{t+1}")
    a(f"v_sub_u32 v{t+2}, v{t}, v{t+2}")
    a(f"v_mul_u32_u24 v{t+1}, 1152, v{t+1}")
    a(f"v_lshl_add_u32 v{t+1}, v{t+2}, 7, v{t+1}")
    a(f"s_mul_i32 s{S_T0}, s{S_I}, {18*1152}")
    a(f"v_cmp_gt_u32 vcc, 162, v{t}")
    a(f"v_cndmask_b32_e64 v{t+1}, 0, v{t+1}, vcc")
    a(f"buffer_load_dword v255, v{t+1}, s[{S_WO}:{S_WO+3}], s{S_T0} offen")
    emit_masks()
    emit_p2_patterns()
    a(f"v_mul_u32_u24 v{t+1}, 7282, v{L}")
    a(f"v_lshrrev_b32 v{t+1}, 16, v{t+1}")
    a(f"v_mul_u32_u24 v{t+2}, 9, v{t+1}")
    a(f"v_sub_u32 v{t+2}, v{L}, v{t+2}")
    a(f"v_mul_u32_u24 v{t+1}, 1152, v{t+1}")
    a(f"v_lshl_add_u32 v{t+1}, v{t+2}, 4, v{t+1}")
    a(f"s_and_b32 s{S_T0}, s{S_HP}, 7")
    a(f"s_mul_i32 s{S_T0}, s{S_T0}, 144")
    a(f"v_add_u32 v{V_WOV}, s{S_T0}, v{t+1}")
    for j in range(1, 4): a(f"v_add_u32 v{V_WOV+j}, {j*(8064-1008)}, v{V_WOV}")
    a(f"s_mul_i32 s{S_T0}, s{S_L}, {21*1008}")
    a(f"s_mul_i32 s{S_T1}, s{S_L}, {21*8064}")
    a("s_waitcnt vmcnt(1)")
    a("s_barrier")
    a(f"s_mov_b64 s[{S_SAVE}:{S_SAVE+1}], exec")
    a(f"s_bitset0_b64 exec, 63")
    WO = f"s[{S_WO}:{S_WO+3}]"
    for j in range(21):
        if j == 19:
            a(f"s_cmp_eq_u32 s{S_L}, 3")
            a("s_cbranch_scc0 L_WO_N")
            a(f"s_mov_b64 exec, 0x3ffff")
            a(f"buffer_load_dwordx4 v{V_WOV+(j&3)}, {WO}, s{S_T2} offen offset:{(j&3)*1008} lds")
            a("s_branch L_WO_DONE")
            a.lab("L_WO_N")
        if j % 4 == 0:
            a(f"s_add_u32 m0, s{S_T0}, {j*1008}")
            a(f"s_add_u32 s{S_T2}, s{S_T1}, {j*8064}")
        a(f"buffer_load_dwordx4 v{V_WOV+(j&3)}, {WO}, s{S_T2} offen offset:{(j&3)*1008} lds")
    a.lab("L_WO_DONE")
    rest_exec()
    a("s_barrier")
    for r in range(16):
        a(f"v_mov_b32 v{OA+r}, 0")
        a(f"v_mov_b32 v{OB+r}, 0")
    a(f"v_lshlrev_b32 v{V_PA}, 4, v{L}")
    a(f"s_lshl_b32 s{S_T0}, s{S_L}, 10")
    a(f"v_add_u32 v{V_PA}, s{S_T0}, v{V_PA}")
    a(f"v_add_u32 v{V_PA+1}, {KV_OWN}, v{V_PA}")
    a(f"s_cmp_lt_u32 s{S_L}, 2")
    a(f"s_cselect_b32 s{S_H0}, 16384, 0")
    a(f"v_add_u32 v{t}, s{S_H0}, v{V_PA+1}")
    a(f"v_add_u32 v{V_PA+2}, s{S_H0}, v{V_PA}")
    a(f"s_mul_i32 s{S_T1}, s{S_IDX}, 36864")
    a("s_barrier")
    if 'tsx' in exp: ts(1)
    a(f"s_cmp_eq_u32 s{S_S}, 7")
    a("s_cbranch_scc1 L_NOPUB")
    for st in (1, 0):
        base = VH + (0 if st else 20)
        for i in range(4):
            a(f"ds_read_b128 v[{base+4*i}:{base+4*i+3}], v{V_PA+1} offset:{st*18432+i*4096}")
        a(f"ds_read_b128 v[{base+16}:{base+19}], v{t} offset:{st*18432}")
    a("s_waitcnt lgkmcnt(5)")
    pub_stores(a, 18432, VH)
    if 'tsx' in exp: ts(2)
    a.lab("L_NOPUB")
    a("s_branch L_P2")

    a.lab("L_COMPUTE")
    a(f"v_and_b32 v{t}, 15, v{L}")
    a(f"v_lshrrev_b32 v{t+1}, 4, v{L}")
    a(f"v_lshrrev_b32 v{t+2}, 1, v{t}")
    a(f"s_lshl_b32 s{S_T0}, s{S_WID}, 6")
    a(f"v_add_u32 v{t+3}, s{S_T0}, v{t}")
    a(f"v_lshlrev_b32 v{t+3}, 7, v{t+3}")
    a(f"v_xor_b32 v{t+4}, v{t+1}, v{t+2}")
    a(f"v_lshlrev_b32 v{t+5}, 4, v{t+4}")
    a(f"v_add_u32 v{V_AX}, v{t+3}, v{t+5}")
    a(f"v_xor_b32 v{t+4}, 4, v{t+4}")
    a(f"v_lshlrev_b32 v{t+5}, 4, v{t+4}")
    a(f"v_add_u32 v{V_AX+1}, v{t+3}, v{t+5}")
    a(f"v_bfe_u32 v{t}, v{L}, 2, 2")
    a(f"v_and_b32 v{t+2}, 3, v{L}")
    a(f"v_and_b32 v{t+3}, 1, v{t+1}")
    a(f"v_lshl_add_u32 v{t+3}, v{t+3}, 2, v{t}")
    a(f"v_lshlrev_b32 v{t+3}, 5, v{t+3}")
    a(f"v_lshl_add_u32 v{t+4}, v{t+1}, 3, v{t}")
    a(f"v_lshlrev_b32 v{t+4}, 8, v{t+4}")
    a(f"v_add_u32 v{t+4}, 32768, v{t+4}")
    a(f"v_lshlrev_b32 v{t+5}, 3, v{t+2}")
    a(f"s_and_b32 s{S_T1}, s{S_HP}, 1")
    a(f"s_lshl_b32 s{S_T1}, s{S_T1}, 3")
    a(f"v_add3_u32 v{t+5}, v{t+5}, v{t+3}, s{S_T1}")
    for Tn in range(6):
        off = 80*(Tn >> 1) + (40 if Tn & 1 else 0)
        a(f"v_add_u32 v{t+6}, {off}, v{t+5}")
        a(f"v_and_b32 v{t+6}, 255, v{t+6}")
        a(f"v_add_u32 v{V_AW+Tn}, v{t+4}, v{t+6}")
    a(f"v_min_u32 v{t+6}, 2, v{t+2}")
    a(f"v_mul_u32_u24 v{t+6}, 80, v{t+6}")
    a(f"v_add3_u32 v{t+6}, v{t+6}, v{t+3}, s{S_T1}")
    a(f"v_add_u32 v{t+6}, 32, v{t+6}")
    a(f"v_and_b32 v{t+6}, 255, v{t+6}")
    a(f"v_add_u32 v{V_AW+6}, v{t+4}, v{t+6}")
    a(f"v_and_b32 v{t}, 15, v{L}")
    a(f"v_lshrrev_b32 v{t+1}, 4, v{L}")
    a(f"v_and_b32 v{t+2}, 1, v{t+1}")
    a(f"v_lshl_add_u32 v{t+2}, v{t+2}, 4, v{t}")
    a(f"v_lshrrev_b32 v{t+3}, 2, v{t}")
    a(f"v_lshrrev_b32 v{t+4}, 3, v{t}")
    a(f"v_xor_b32 v{t+3}, v{t+3}, v{t+4}")
    a(f"v_lshrrev_b32 v{t+4}, 1, v{t+1}")
    a(f"v_xor_b32 v{t+3}, v{t+3}, v{t+4}")
    a(f"v_and_b32 v{t+3}, 1, v{t+3}")
    a(f"v_lshlrev_b32 v{t+3}, 4, v{t+3}")
    a(f"v_lshl_add_u32 v{t+3}, v{t+2}, 5, v{t+3}")
    a(f"s_mul_i32 s{S_T0}, s{S_WID}, {2*TILE}")
    a(f"s_add_u32 s{S_T0}, s{S_T0}, {KV_OWN}")
    a(f"s_mul_i32 s{S_T1}, s{S_WID}, {2*QTILE}")
    a(f"s_add_u32 s{S_T1}, s{S_T1}, {Q_BASE}")
    a(f"v_add_u32 v{vEK}, s{S_T0}, v{t+3}")
    a(f"v_add_u32 v{vEQ}, s{S_T1}, v{t+3}")
    a(f"v_mul_u32_u24 v{t+4}, 72, v{t}")
    a(f"v_lshl_add_u32 v{t+5}, v{t+1}, 3, v{t+4}")
    a(f"v_add_u32 v{t+5}, 2304, v{t+5}")
    a(f"v_add_u32 v{vEV}, s{S_T0}, v{t+5}")
    a(f"v_lshlrev_b32 v{t+5}, 3, v{t}")
    a(f"v_add_u32 v{t+5}, 2048, v{t+5}")
    a(f"v_add_u32 v{t+6}, s{S_T1}, v{t+5}")
    a(f"v_add_u32 v{t+7}, s{S_T0}, v{t+5}")
    a(f"v_add_u32 v{t+4}, {2304+32}, v{t+4}")
    a(f"v_add_u32 v{t+4}, s{S_T0}, v{t+4}")
    a(f"v_mov_b32 v{vDr}, 128")
    a(f"v_mov_b32 v{vDt}, {TILE}")
    a(f"v_mov_b32 v{vF}, 1.0")
    a(f"v_mov_b32 v{vE6}, v{t+7}")
    a(f"v_cmp_eq_u32 vcc, 0, v{t+1}")
    a(f"v_mov_b32 v{t+5}, {QTILE}")
    a(f"v_mov_b32 v{vC}, {f32bits(QSCALE):#x}")
    a(f"v_cndmask_b32 v{vE6}, v{vE6}, v{t+6}, vcc")
    a(f"v_cndmask_b32 v{vDt}, v{vDt}, v{t+5}, vcc")
    a(f"v_cndmask_b32 v{vF}, v{vF}, v{vC}, vcc")
    a(f"v_cmp_eq_u32 vcc, 2, v{t+1}")
    a(f"v_mov_b32 v{t+5}, 1152")
    a(f"v_mov_b32 v{vC+1}, v{vC}")
    a(f"v_cndmask_b32 v{vE6}, v{vE6}, v{t+4}, vcc")
    a(f"v_cndmask_b32 v{vDr}, v{vDr}, v{t+5}, vcc")
    a(f"v_mov_b32 v{vF+1}, v{vF}")
    a("s_waitcnt lgkmcnt(0)")
    a(f"s_cmp_lg_u32 s{S_WID}, 0")
    a("s_cbranch_scc1 L_NOG0")
    a(f"s_lshl_b32 s{S_T0}, s{S_IDX}, 8")
    a(f"s_add_u32 s{S_T0}, s{S_T0}, {WS_FLAG}")
    a(f"s_lshl_b32 s{S_T1}, s{S_GRP}, 8")
    a(f"s_add_u32 s{S_T1}, s{S_T1}, {WS_OF}")
    a(f"v_mov_b32 v{t}, 0")
    a(f"buffer_load_dword v{V_TG}, v{t}, {WS}, s{S_T0} offen sc1")
    a(f"s_sub_u32 s{S_T0}, s{S_T0}, 256")
    a(f"s_max_u32 s{S_T0}, s{S_T0}, {WS_FLAG}")
    a(f"buffer_load_dword v{V_TG+1}, v{t}, {WS}, s{S_T0} offen sc1")
    a(f"buffer_load_dword v{V_TG+2}, v{t}, {WS}, s{S_T1} offen sc1")
    a.lab("L_NOG0")
    for i in range(112):
        a(f"v_mov_b32 v{V_ACC+i}, 0")
    emit_masks()
    emit_p2_patterns()
    a(f"v_mov_b32 v{t+2}, 0x3f803f80")
    a(f"v_mov_b32 v{t+3}, 0x3f803f80")
    a(f"v_mul_u32_u24 v{t+4}, 576, v{L}")
    a(f"v_add_u32 v{t+4}, {MISC}, v{t+4}")
    save_exec(15)
    a(f"ds_write_b64 v{t+4}, v[{t+2}:{t+3}]")
    rest_exec()
    a(f"s_cmp_lg_u32 s{S_WID}, 0")
    a("s_cbranch_scc1 L_NOG1")
    a("s_waitcnt vmcnt(0)")
    for i in range(3): a(f"v_add_u32 v{V_TG+i}, {TAG_INC:#x}, v{V_TG+i}")
    a(f"v_mov_b32 v{V_TG+3}, 0")
    a(f"v_mov_b32 v{t+4}, {TAGS_LDS}")
    save_exec(1)
    a(f"ds_write_b128 v{t+4}, v[{V_TG}:{V_TG+3}]")
    for i in range(4): a(f"v_mov_b32 v{V_TG+i}, 0")
    a(f"ds_write_b128 v{t+4}, v[{V_TG}:{V_TG+3}] offset:16")
    rest_exec()
    a.lab("L_NOG1")
    a("s_waitcnt lgkmcnt(0)")
    a("s_barrier")
    if "tsh" not in exp and "tsj" not in exp: ts(1)
    def reads(setb, ks):
        xs = [f"ds_read_b128 v[{setb+4*mt}:{setb+4*mt+3}], v{V_AX+ks} offset:{mt*2048}" for mt in range(4)]
        ws = []
        for Tn in range(7):
            b = setb + 16 + 4*Tn
            ws.append(f"ds_read_b64_tr_b16 v[{b}:{b+1}], v{V_AW+Tn} offset:{ks*8192}")
            ws.append(f"ds_read_b64_tr_b16 v[{b+2}:{b+3}], v{V_AW+Tn} offset:{ks*8192+1024}")
        return [xs[0], ws[0], ws[1], xs[1], ws[2], ws[3], xs[2], ws[4], ws[5], xs[3]] + ws[6:]
    def mfmas(setb):
        m = []
        for Tn in range(7):
            for mt in range(4):
                d = V_ACC + (mt*7+Tn)*4
                m.append(f"v_mfma_f32_16x16x32_bf16 v[{d}:{d+3}], v[{setb+16+4*Tn}:{setb+16+4*Tn+3}], v[{setb+4*mt}:{setb+4*mt+3}], v[{d}:{d+3}]")
        return m
    def interleave(ms, extra, per=1):
        ri = 0
        for i, m in enumerate(ms):
            a(m)
            for _ in range(per):
                if ri < len(extra): a(extra[ri]); ri += 1
        while ri < len(extra):
            a(extra[ri]); ri += 1
    for rd in reads(V_SET0, 0): a(rd)
    a(f"s_mov_b32 s{S_K}, 0")
    a(f"s_mov_b32 s{S_SB}, 0")
    a.lab("L_GEMM")
    a("s_waitcnt lgkmcnt(0)")
    sal = [f"s_add_u32 s{S_SB}, s{S_SB}, 1", f"s_cmp_eq_u32 s{S_SB}, 3", f"s_mov_b32 s{S_T0}, {STAGE}",
           f"s_cselect_b32 s{S_T0}, {(-2*STAGE) & 0xffffffff}, s{S_T0}", f"s_cselect_b32 s{S_SB}, 0, s{S_SB}"]
    interleave(mfmas(V_SET0), reads(V_SET1, 1) + sal)
    a("s_waitcnt lgkmcnt(0)")
    a("s_barrier")
    rd = reads(V_SET0, 0)
    adds = [f"v_add_u32 v{V_AX+i}, s{S_T0}, v{V_AX+i}" for i in range(9)]
    ex = [adds[0], adds[2], rd[0], rd[1], rd[2], adds[3], rd[3], rd[4], rd[5], adds[4], rd[6], rd[7], rd[8], rd[9],
          adds[5], rd[10], rd[11], adds[6], rd[12], rd[13], adds[7], rd[14], rd[15], adds[8], rd[16], rd[17], adds[1],
          f"s_add_u32 s{S_K}, s{S_K}, 1", f"s_cmp_lt_u32 s{S_K}, 9"]
    ms = mfmas(V_SET1)
    ri = 0
    for i, m in enumerate(ms):
        a(m)
        n = 2 if i < 6 else 1
        for _ in range(n):
            if ri < len(ex): a(ex[ri]); ri += 1
    assert ri == len(ex)
    a("s_cbranch_scc1 L_GEMM")
    if "tsh" not in exp and "tsj" not in exp: ts(2)
    a.c("phase-1 epilogue")
    a("s_waitcnt lgkmcnt(0)")
    acc = lambda mt, Tn: V_ACC + (mt*7+Tn)*4
    e = [V_SET0]
    def qk_tile(Tn, base_reg, pstride, hoff):
        for p in range(2):
            R = e[0]; e[0] += 4
            da, db = acc(2*p, Tn), acc(2*p+1, Tn)
            a(f"v_cvt_pk_bf16_f32 v{R}, v{da}, v{da+1}")
            a(f"v_cvt_pk_bf16_f32 v{R+2}, v{db}, v{db+1}")
            a(f"v_cvt_pk_bf16_f32 v{R+1}, v{da+2}, v{da+3}")
            a(f"v_cvt_pk_bf16_f32 v{R+3}, v{db+2}, v{db+3}")
            a("s_nop 0")
            a(f"v_permlane16_swap_b32 v{R}, v{R+2}")
            a(f"v_permlane16_swap_b32 v{R+1}, v{R+3}")
            a(f"ds_write_b128 v{base_reg}, v[{R}:{R+3}] offset:{p*pstride+hoff}")
    a("s_nop 3")
    qk_tile(2, vEK, TILE, 0)
    qk_tile(3, vEK, TILE, 1024)
    for Tn in (4, 5):
        for mt in range(4):
            R = e[0]; e[0] += 2
            d = acc(mt, Tn)
            a(f"v_cvt_pk_bf16_f32 v{R}, v{d}, v{d+1}")
            a(f"v_cvt_pk_bf16_f32 v{R+1}, v{d+2}, v{d+3}")
            a(f"ds_write_b64 v{vEV}, v[{R}:{R+1}] offset:{(mt>>1)*TILE + (mt&1)*1152 + (40 if Tn==5 else 0)}")
    R6 = e[0]; e[0] += 8
    for mt in range(4):
        d = acc(mt, 6)
        a(f"v_pk_mul_f32 v[{d}:{d+1}], v[{d}:{d+1}], v[{vF}:{vF+1}]")
        a(f"v_pk_mul_f32 v[{d+2}:{d+3}], v[{d+2}:{d+3}], v[{vF}:{vF+1}]")
    for mt in range(4):
        d = acc(mt, 6)
        a(f"v_cvt_pk_bf16_f32 v{R6+2*mt}, v{d}, v{d+1}")
        a(f"v_cvt_pk_bf16_f32 v{R6+2*mt+1}, v{d+2}, v{d+3}")
    a(f"v_add_u32 v{t}, v{vE6}, v{vDr}")
    a(f"v_add_u32 v{t+1}, v{vE6}, v{vDt}")
    a(f"v_add_u32 v{t+2}, v{t+1}, v{vDr}")
    a(f"s_mov_b64 s[{S_SAVE}:{S_SAVE+1}], exec")
    a(f"s_mov_b32 exec_hi, 0x0000ffff")
    a(f"ds_write_b64 v{vE6}, v[{R6}:{R6+1}]")
    a(f"ds_write_b64 v{t}, v[{R6+2}:{R6+3}]")
    a(f"ds_write_b64 v{t+1}, v[{R6+4}:{R6+5}]")
    a(f"ds_write_b64 v{t+2}, v[{R6+6}:{R6+7}]")
    rest_exec()
    a("s_waitcnt lgkmcnt(0)")
    if 'tsx' in exp: ts(6)
    a("s_barrier")
    for mt in range(4):
        for Tn in (0, 1):
            d = acc(mt, Tn)
            a(f"v_pk_mul_f32 v[{d}:{d+1}], v[{d}:{d+1}], v[{vC}:{vC+1}]")
            a(f"v_pk_mul_f32 v[{d+2}:{d+3}], v[{d+2}:{d+3}], v[{vC}:{vC+1}]")
    e[0] = 84
    qk_tile(0, vEQ, QTILE, 0)
    qk_tile(1, vEQ, QTILE, 1024)
    for r in range(16):
        a(f"v_mov_b32 v{OA+r}, 0")
        a(f"v_mov_b32 v{OB+r}, 0")

    a.lab("L_P2")
    a(f"v_mov_b32 v{t}, {TAGS_LDS}")
    a(f"ds_read_b128 v[{V_TG}:{V_TG+3}], v{t}")
    a("s_waitcnt lgkmcnt(0)")
    a("s_barrier")
    ts(3)
    if debug_stage == 1:
        a(f"s_lshl_b32 s{S_T0}, s{S_IDX}, 16")
        a(f"v_lshlrev_b32 v{t}, 4, v0")
        for i in range(7):
            a(f"v_add_u32 v{t+1}, {KV_OWN + i*8192}, v{t}")
            a(f"ds_read_b128 v[40:43], v{t+1}")
            a("s_waitcnt lgkmcnt(0)")
            a(f"v_add_u32 v{t+2}, {i*8192}, v{t}")
            a(f"buffer_store_dwordx4 v[40:43], v{t+2}, {WS}, s{S_T0} offen")
            a("s_waitcnt vmcnt(0)")
        a("s_branch L_FIN")
    if debug_stage == 9:
        a("s_branch L_FIN")
    if debug_stage not in (1, 9):
        phase2(a, debug_stage, ts, exp, save_exec, rest_exec)
        phase3(a, debug_stage, ts, exp, save_exec, rest_exec)
    a.lab("L_FIN")
    if 'dbg' in exp:
        a("s_waitcnt vmcnt(0) lgkmcnt(0)")
        a("s_memtime s[94:95]")
        a("s_memrealtime s[100:101]")
        a("s_waitcnt lgkmcnt(0)")
        a(f"s_mov_b32 s{S_X}, s6")
        a(f"s_mov_b32 s{S_X+1}, s7")
        a(f"s_mov_b32 s{S_X+2}, 256")
        a(f"s_mov_b32 s{S_X+3}, 0x00020000")
        a("s_mov_b64 exec, 1")
        a("v_mov_b32 v2, 0")
        a("s_not_b32 s96, s96")
        a("v_mov_b32 v3, s96")
        a(f"buffer_atomic_umax v3, v2, s[{S_X}:{S_X+3}], 0 offen offset:0")
        a("v_mov_b32 v4, s100")
        a(f"buffer_atomic_umax v4, v2, s[{S_X}:{S_X+3}], 0 offen offset:4")
        for k, i in enumerate((1, 2, 4, 5, 8, 9, 10, 11, 12)):
            a(f"s_sub_u32 s{S_T1}, s{70+2*i}, s70")
            a(f"s_cmp_eq_u32 s{70+2*i}, 0")
            a(f"s_cselect_b32 s{S_T1}, 0, s{S_T1}")
            a(f"v_mov_b32 v{5+k}, s{S_T1}")
            a(f"buffer_atomic_umax v{5+k}, v2, s[{S_X}:{S_X+3}], 0 offen offset:{8+4*k}")
        a("s_waitcnt vmcnt(0)")
        a("s_branch L_END")
    if timing:
        a("s_waitcnt vmcnt(0) lgkmcnt(0)")
        a("s_memtime s[94:95]")
        a("s_waitcnt lgkmcnt(0)")
        a(f"s_lshl_b32 s{S_T0}, s2, 3")
        a(f"s_add_u32 s{S_T0}, s{S_T0}, s{S_WID}")
        a(f"s_lshl_b32 s{S_T0}, s{S_T0}, 6")
        a(f"s_add_u32 s{S_T0}, s{S_T0}, {TIMING_OFF}")
        for i in range(13):
            a(f"s_sub_u32 s{S_T1}, s{70+2*i}, s70" if i else f"s_mov_b32 s{S_T1}, s70")
            a(f"s_cmp_eq_u32 s{70+2*i}, 0")
            a(f"s_cselect_b32 s{S_T1}, 0, s{S_T1}")
            a(f"v_mov_b32 v{40+i}, s{S_T1}")
        a(f"v_mov_b32 v2, 0")
        a(f"s_mov_b64 exec, 1")
        for i in range(3):
            a(f"buffer_store_dwordx4 v[{40+4*i}:{43+4*i}], v2, {WS}, s{S_T0} offen offset:{16*i}")
        a(f"buffer_store_dword v52, v2, {WS}, s{S_T0} offen offset:48")
        a("s_waitcnt vmcnt(0)")
    a.lab("L_END")
    a("s_endpgm")
    a(f""".section .rodata,"a"
.p2align 6
.amdhsa_kernel {NAME}_kernel
  .amdhsa_next_free_vgpr 256
  .amdhsa_next_free_sgpr 102
  .amdhsa_accum_offset 256
  .amdhsa_group_segment_fixed_size 0
  .amdhsa_kernarg_size 72
  .amdhsa_user_sgpr_count 2
  .amdhsa_user_sgpr_kernarg_segment_ptr 1
  .amdhsa_system_sgpr_workgroup_id_x 1
.end_amdhsa_kernel""")
    return a.text()

WS = f"s[{S_WS}:{S_WS+3}]"

def spin_poll(a, name, check_lines, load_line, limit=2000000, first_done=False):
    a(f"s_mov_b32 s{S_CNT}, 0")
    if first_done: a(f"s_branch {name}_W")
    a.lab(name)
    a(load_line)
    a.lab(name + "_W")
    a(f"s_add_u32 s{S_CNT}, s{S_CNT}, 1")
    a("s_waitcnt vmcnt(0)")
    for l in check_lines: a(l)
    a(f"s_cbranch_scc1 {name}_OK")
    a(f"s_cmp_lt_u32 s{S_CNT}, {limit}")
    a(f"s_cbranch_scc1 {name}")
    a.lab(name + "_OK")

def lds_inc(a, addr, save_exec, rest_exec, rtn=None):
    t = T
    a(f"v_mov_b32 v{t}, {addr}")
    a(f"v_mov_b32 v{t+1}, 1")
    save_exec(1)
    if rtn is None: a(f"ds_add_u32 v{t}, v{t+1}")
    else: a(f"ds_add_rtn_u32 v{rtn}, v{t}, v{t+1}")
    rest_exec()

def lds_wait(a, name, addr, val):
    t = T
    a(f"v_mov_b32 v{t}, {addr}")
    a(f"s_mov_b32 s{S_CNT}, 0")
    a.lab(name)
    a(f"ds_read_b32 v{t+1}, v{t}")
    a(f"s_add_u32 s{S_CNT}, s{S_CNT}, 1")
    a("s_waitcnt lgkmcnt(0)")
    a(f"v_readfirstlane_b32 s{S_T0}, v{t+1}")
    a(f"s_cmp_ge_u32 s{S_T0}, {val}")
    a(f"s_cbranch_scc1 {name}_OK")
    a(f"s_cmp_lt_u32 s{S_CNT}, 20000000")
    a(f"s_cbranch_scc1 {name}")
    a.lab(name + "_OK")

def hook_point(a, tag):
    a(f"s_add_u32 s{S_U}, s{S_U}, 1")
    a(f"s_cmp_lg_u32 s{S_U}, s{S_HOOK}")
    a(f"s_cbranch_scc1 {tag}")
    a(f"s_call_b64 s[{S_RET2}:{S_RET2+1}], L_HOOK")
    a.lab(tag)

def run_code(a, name, QM, QR, O, exp):
    cnt = [0]
    def qk1(creg):
        c = "0" if creg is None else f"v[{creg}:{creg+15}]"
        a(f"v_mfma_f32_32x32x16_bf16 v[{VS}:{VS+15}], v[{VKF}:{VKF+3}], v[{QM}:{QM+3}], {c}")
    def qk2():
        a(f"v_mfma_f32_32x32x16_bf16 v[{VS}:{VS+15}], v[{VKR}:{VKR+3}], v[{QR}:{QR+3}], v[{VS}:{VS+15}]")
    def pv(V, P):
        a(f"v_mfma_f32_32x32x16_bf16 v[{O}:{O+15}], v[{V}:{V+3}], v[{P}:{P+3}], v[{O}:{O+15}]")
    def kread():
        a(f"ds_read_b128 v[{VKF}:{VKF+3}], v{A_K}")
        a(f"ds_read_b64 v[{VKR}:{VKR+1}], v{A_KR}")
    def kstep():
        a(f"v_add_u32 v{A_K}, v{ST_K}, v{A_K}")
        a(f"v_add_u32 v{A_KR}, v{ST_K}, v{A_KR}")
    def vread(V, off):
        a(f"ds_read_b64_tr_b16 v[{V}:{V+1}], v{A_V} offset:{off}")
        a(f"ds_read_b64_tr_b16 v[{V+2}:{V+3}], v{A_V} offset:{off+576}")
    def cvt(j): a(f"v_cvt_pk_bf16_f32 v{VP+j}, v{VE+2*j}, v{VE+2*j+1}")
    def ex(r): a(f"v_exp_f32 v{VE+r}, v{VS+r}")
    def unit(D):
        for r in range(8): ex(r)
        for j in range(4): cvt(j)
        ex(8); ex(9)
        a("s_waitcnt lgkmcnt(0)")
        pv(VVA, VP)
        for r in range(10, 16): ex(r)
        if D:
            qk1(V_MASK if D == "mask" else None)
            for j in range(4, 8): cvt(j)
            vread(VVA, 0)
            qk2()
            kstep()
            kread()
            pv(VVB, VP+4)
            vread(VVB, 1152)
            a(f"v_add_u32 v{A_V}, v{ST_V}, v{A_V}")
        else:
            a("s_nop 0")
            for j in range(4, 8): cvt(j)
            a("s_nop 1")
            pv(VVB, VP+4)
    a.lab(name)
    kread()
    a(f"s_cmp_eq_u32 s{S_N}, 1")
    a(f"s_cbranch_scc1 {name}_M1")
    kstep()
    a("s_waitcnt lgkmcnt(0)")
    qk1(None); qk2()
    vread(VVA, 0); kread(); vread(VVB, 1152)
    a(f"v_add_u32 v{A_V}, v{ST_V}, v{A_V}")
    a(f"s_sub_u32 s{S_N}, s{S_N}, 2")
    a.lab(name + "_BT")
    a(f"s_cmp_eq_u32 s{S_N}, 0")
    a(f"s_cbranch_scc1 {name}_MK0")
    a(f"s_sub_u32 s{S_E}, s{S_HOOK}, s{S_U}")
    a(f"s_min_u32 s{S_E}, s{S_E}, s{S_N}")
    a(f"s_sub_u32 s{S_N}, s{S_N}, s{S_E}")
    a(f"s_add_u32 s{S_U}, s{S_U}, s{S_E}")
    a(f"s_sub_u32 s{S_E}, s{S_E}, 1")
    a.lab(name + "_LP")
    unit("plain")
    a(f"s_sub_u32 s{S_E}, s{S_E}, 1")
    a("s_nop 1")
    a(f"s_cbranch_scc0 {name}_LP")
    a(f"s_cmp_lg_u32 s{S_U}, s{S_HOOK}")
    a(f"s_cbranch_scc1 {name}_BT")
    a(f"s_call_b64 s[{S_RET2}:{S_RET2+1}], L_HOOK")
    a(f"s_branch {name}_BT")
    a.lab(name + "_MK0")
    a("s_nop 3")
    a.lab(name + "_MK")
    unit("mask")
    hook_point(a, f"{name}_H1")
    a("s_nop 1")
    a.lab(name + "_FN")
    unit(None)
    hook_point(a, f"{name}_H2")
    a(f"s_setpc_b64 s[{S_RET}:{S_RET+1}]")
    a.lab(name + "_M1")
    a("s_waitcnt lgkmcnt(0)")
    qk1(V_MASK); qk2()
    vread(VVA, 0); vread(VVB, 1152)
    a("s_nop 7")
    a(f"s_branch {name}_FN")

def set_run(a, region, tile_sreg, n_lines, step):
    a(f"s_mul_i32 s{S_T0}, s{tile_sreg}, {TILE}" if tile_sreg is not None else f"s_mov_b32 s{S_T0}, 0")
    a(f"s_add_u32 s{S_T0}, s{S_T0}, {region}")
    a(f"v_add_u32 v{A_K}, s{S_T0}, v{B_K}")
    a(f"v_add_u32 v{A_KR}, s{S_T0}, v{B_KR}")
    a(f"v_and_b32 v{A_V}, s{S_T0}, v{MK_V}")
    a(f"v_add_u32 v{A_V}, v{B_V}, v{A_V}")
    a(f"v_mov_b32 v{ST_K}, {step & 0xffffffff:#x}")
    a(f"v_and_b32 v{ST_V}, v{ST_K}, v{MK_V}")
    for l in n_lines: a(l)

def finalize(a, O, qb_sreg, save_exec, rest_exec):
    t = T; R = VS
    a(f"v_mov_b32 v{t}, 0x21800000")
    a(f"v_mov_b32 v{t+1}, 0x5d800000")
    a(f"v_cmp_nge_f32 vcc, v{O+12}, v{t}")
    a(f"s_or_b64 s[{S_BAD}:{S_BAD+1}], s[{S_BAD}:{S_BAD+1}], vcc")
    a(f"v_cmp_nle_f32 vcc, v{O+12}, v{t+1}")
    a(f"s_or_b64 s[{S_BAD}:{S_BAD+1}], s[{S_BAD}:{S_BAD+1}], vcc")
    a(f"v_rcp_f32 v{t+2}, v{O+12}")
    a(f"v_bfe_u32 v{t}, v{V_LANE}, 4, 1")
    a(f"v_mul_u32_u24 v{t}, {18*1024}, v{t}")
    for r in range(12): a(f"v_mul_f32 v{O+r}, v{O+r}, v{t+2}")
    a(f"v_cvt_pk_bf16_f32 v{R}, v{O}, v{O+1}")
    a(f"v_cvt_pk_bf16_f32 v{R+1}, v{O+2}, v{O+3}")
    a(f"v_cvt_pk_bf16_f32 v{R+2}, v{O+4}, v{O+5}")
    a(f"v_cvt_pk_bf16_f32 v{R+3}, v{O+6}, v{O+7}")
    a(f"v_cvt_pk_bf16_f32 v{R+4}, v{O+8}, v{O+9}")
    a(f"v_cvt_pk_bf16_f32 v{R+5}, v{O+10}, v{O+11}")
    a(f"v_permlane32_swap_b32 v{R}, v{R+2}")
    a(f"v_permlane32_swap_b32 v{R+1}, v{R+3}")
    a(f"v_and_b32 v{t+1}, 15, v{V_LANE}")
    a(f"v_lshl_add_u32 v{t}, v{t+1}, 4, v{t}")
    a(f"v_lshrrev_b32 v{t+1}, 5, v{V_LANE}")
    a(f"v_lshlrev_b32 v{t+1}, 8, v{t+1}")
    a(f"v_add_u32 v{t+1}, v{t}, v{t+1}")
    a(f"s_mul_i32 s{S_T0}, s{S_GRP}, 294912")
    a(f"s_add_u32 s{S_T0}, s{S_T0}, {WS_O}")
    a(f"s_mul_i32 s{S_T1}, s{qb_sreg}, {2*18*1024}")
    a(f"s_add_u32 s{S_T0}, s{S_T0}, s{S_T1}")
    a(f"s_lshl_b32 s{S_T1}, s{S_HP}, 10")
    a(f"s_lshl_b32 s{S_T2}, s{S_HEAD}, 9")
    a(f"s_add_u32 s{S_T1}, s{S_T1}, s{S_T2}")
    a(f"s_add_u32 s{S_T1}, s{S_T1}, s{S_T0}")
    a(f"buffer_store_dwordx4 v[{R}:{R+3}], v{t+1}, {WS}, s{S_T1} offen sc1")
    a(f"s_lshr_b32 s{S_T1}, s{S_HP}, 3")
    a(f"s_add_u32 s{S_T1}, s{S_T1}, 16")
    a(f"s_lshl_b32 s{S_T1}, s{S_T1}, 10")
    a(f"s_bfe_u32 s{S_T2}, s{S_HP}, 0x20001")
    a(f"s_lshl_b32 s{S_T2}, s{S_T2}, 8")
    a(f"s_add_u32 s{S_T1}, s{S_T1}, s{S_T2}")
    a(f"s_and_b32 s{S_T2}, s{S_HP}, 1")
    a(f"s_lshl_b32 s{S_T2}, s{S_T2}, 3")
    a(f"s_add_u32 s{S_T1}, s{S_T1}, s{S_T2}")
    a(f"s_lshl_b32 s{S_T2}, s{S_HEAD}, 2")
    a(f"s_add_u32 s{S_T1}, s{S_T1}, s{S_T2}")
    a(f"s_add_u32 s{S_T1}, s{S_T1}, s{S_T0}")
    a(f"s_cmp_eq_u32 s{S_HEAD}, 0")
    a(f"s_cselect_b64 vcc, -1, 0")
    a(f"v_cndmask_b32_e64 v{R+4}, v{R+5}, v{R+4}, vcc")
    a(f"s_mov_b64 s[{S_SAVE}:{S_SAVE+1}], exec")
    a(f"s_mov_b32 exec_hi, 0")
    a(f"buffer_store_dword v{R+4}, v{t}, {WS}, s{S_T1} offen sc1")
    rest_exec()

def phase2(a, debug_stage, ts, exp, save_exec, rest_exec):
    t = T; L = V_LANE
    a.c("======== phase 2 ========")
    a(f"v_readfirstlane_b32 s{S_TAGOUT}, v{V_TG}")
    a(f"v_readfirstlane_b32 s{S_TAGIN}, v{V_TG+1}")
    a(f"v_readfirstlane_b32 s{S_TAGO}, v{V_TG+2}")
    a(f"s_mov_b64 s[{S_BAD}:{S_BAD+1}], 0")
    for (QM, QR, sreg) in ((QA_M, QA_R, S_M), (QB_M, QB_R, S_MB)):
        a(f"s_mul_i32 s{S_T0}, s{sreg}, {QTILE}")
        a(f"s_add_u32 s{S_T0}, s{S_T0}, {Q_BASE}")
        a(f"v_add_u32 v{t+2}, s{S_T0}, v{B_K}")
        a(f"v_add_u32 v{t+3}, s{S_T0}, v{B_KR}")
        a(f"ds_read_b128 v[{QM}:{QM+3}], v{t+2}")
        a(f"ds_read_b64 v[{QR}:{QR+1}], v{t+3}")
    a(f"s_cmp_eq_u32 s{S_HEAD}, 0")
    a(f"s_cselect_b32 s{S_T0}, -1, 0")
    a(f"s_cselect_b32 s{S_T1}, 0, -1")
    a(f"v_cmp_gt_u32 vcc, 32, v{L}")
    a(f"v_mov_b32 v{t}, s{S_T0}")
    a(f"v_mov_b32 v{t+1}, s{S_T1}")
    a(f"v_cndmask_b32_e64 v{t}, 0, v{t}, vcc")
    a(f"v_cndmask_b32_e64 v{t+1}, 0, v{t+1}, vcc")
    a(f"v_mov_b32 v{VKR+2}, 0")
    a(f"v_mov_b32 v{VKR+3}, 0")
    for QR in (QA_R, QB_R):
        a(f"v_mov_b32 v{QR+2}, 0")
        a(f"v_mov_b32 v{QR+3}, 0")
    a("s_waitcnt lgkmcnt(0)")
    for QR in (QA_R, QB_R):
        a(f"v_and_b32 v{QR}, v{QR}, v{t}")
        a(f"v_and_b32 v{QR+1}, v{QR+1}, v{t+1}")
    lds_inc(a, CNTQ, save_exec, rest_exec)
    a(f"s_mov_b32 s{S_U}, 0")
    a(f"s_mov_b32 s{S_HST}, 0")
    a(f"s_mov_b32 s{S_HOOK}, {2 if 'hkB' in exp else 3}")
    a(f"s_cmp_ge_u32 s{S_WID}, 4")
    a(f"s_cbranch_scc1 L_HS")
    a(f"s_mov_b32 s{S_HST}, 7")
    a(f"s_add_u32 s{S_HOOK}, s{S_M}, 12")
    a.lab("L_HS")
    if 'noprio' not in exp:
        a(f"s_cmp_lt_u32 s{S_WID}, 4")
        a(f"s_cbranch_scc1 L_HS2")
        a("s_setprio 1")
        a.lab("L_HS2")
    ts(4)
    set_run(a, KV_OWN, None, [f"s_add_u32 s{S_N}, s{S_M}, 1"], TILE)
    a(f"s_call_b64 s[{S_RET}:{S_RET+1}], L_RUNA")
    set_run(a, KV_OWN, None, [f"s_sub_u32 s{S_N}, 8, s{S_M}"], TILE)
    a(f"s_call_b64 s[{S_RET}:{S_RET+1}], L_RUNB")
    ts(5)
    a(f"s_cmp_eq_u32 s{S_S}, 0")
    a("s_cbranch_scc1 L_FINAL0")
    a(f"v_mov_b32 v{t+2}, {NEG:#x}")
    for r in range(16): a(f"v_sub_f32 v{V_MASK+r}, v{t+2}, v{V_MASK+r}")
    lds_wait(a, "L_W1", CNT1, 4)
    if "tsh" not in exp: ts(7)
    a(f"s_mov_b32 s{S_T4}, 7")
    set_run(a, KV_HALO, S_T4, [f"s_add_u32 s{S_N}, s{S_M}, 1"], -TILE)
    a(f"s_call_b64 s[{S_RET}:{S_RET+1}], L_RUNB")
    a("s_nop 7")
    a("s_nop 3")
    finalize(a, OB, S_MB, save_exec, rest_exec)
    a(f"s_mov_b32 s{S_T4}, 7")
    set_run(a, KV_HALO, S_T4, [f"s_sub_u32 s{S_N}, 8, s{S_M}"], -TILE)
    a(f"s_call_b64 s[{S_RET}:{S_RET+1}], L_RUNA")
    a("s_branch L_FINALA")
    a.lab("L_FINAL0")
    a("s_nop 7")
    a("s_nop 3")
    finalize(a, OB, S_MB, save_exec, rest_exec)
    a.lab("L_FINALA")
    if "tsh" not in exp: ts(8)
    a("s_nop 7")
    a("s_nop 3")
    finalize(a, OA, S_M, save_exec, rest_exec)
    a("s_branch L_P3")

    a.lab("L_HOOK")
    for st in (0, 1, 4, 8, 5, 6):
        a(f"s_cmp_eq_u32 s{S_HST}, {st}")
        a(f"s_cbranch_scc1 L_HK{st}")
    a.lab("L_HKW2")
    if 'tsj' in exp: ts(10)
    a(f"s_mov_b32 s{S_HOOK}, 1000")
    lds_wait(a, "L_W2", CNT2, 4)
    if 'tsj' in exp: ts(11)
    a("s_branch L_HRET")
    def flag_store(add):
        a(f"s_lshl_b32 s{S_T0}, s{S_IDX}, 8")
        a(f"s_lshl_b32 s{S_T1}, s{S_L}, 2")
        a(f"s_add_u32 s{S_T0}, s{S_T0}, s{S_T1}")
        a(f"s_add_u32 s{S_T0}, s{S_T0}, {WS_FLAG+128}")
        a(f"s_add_u32 s{S_T1}, s{S_TAGOUT}, {add}")
        a(f"v_mov_b32 v{t}, 0")
        a(f"v_mov_b32 v{t+1}, s{S_T1}")
        save_exec(1)
        a(f"buffer_store_dword v{t+1}, v{t}, {WS}, s{S_T0} offen sc1")
        rest_exec()
    UF1, UP1, UC1, UW1, UC2, UW2 = 3, 5, 7, 9, 10, 12
    if 'hkA' in exp: UF1, UP1, UC1, UW1 = 3, 4, 6, 8
    if 'hkB' in exp: UF1, UP1, UC1, UW1 = 2, 4, 6, 9
    if 'hkC' in exp: UF1, UP1, UC1, UW1 = 3, 4, 6, 9
    def setnext(st, u):
        a(f"s_mov_b32 s{S_HST}, {st}")
        a(f"s_mov_b32 s{S_HOOK}, {u}")
    a.lab("L_HK0")
    if 'tsh' in exp: ts(2)
    setnext(1, UP1)
    a(f"s_cmp_eq_u32 s{S_S}, 7")
    a("s_cbranch_scc1 L_HRET")
    a("s_waitcnt vmcnt(0)")
    if 'tsh' in exp: ts(6)
    flag_store(0)
    a(f"s_mul_i32 s{S_T1}, s{S_IDX}, 36864")
    pub_stores(a, 0, VH+20)
    a("s_branch L_HRET")
    a.lab("L_HK1")
    setnext(4, UC1)
    a(f"s_cmp_eq_u32 s{S_S}, 0")
    a("s_cbranch_scc1 L_HRET")
    a(f"s_sub_u32 s{S_H1}, s{S_IDX}, 1")
    a(f"s_lshl_b32 s{S_H1}, s{S_H1}, 8")
    a(f"s_lshl_b32 s{S_T0}, s{S_L}, 2")
    a(f"s_add_u32 s{S_H1}, s{S_H1}, s{S_T0}")
    a(f"s_add_u32 s{S_H1}, s{S_H1}, {WS_FLAG+128}")
    a(f"v_mov_b32 v{t}, 0")
    a(f"buffer_load_dword v{V_TG}, v{t}, {WS}, s{S_H1} offen sc1")
    a("s_branch L_HRET")
    a.lab("L_HK4")
    if 'tsh' in exp: ts(11)
    setnext(8, UW1)
    a("s_waitcnt vmcnt(0)")
    if 'tsh' in exp: ts(9)
    a(f"s_cmp_eq_u32 s{S_S}, 7")
    a("s_cbranch_scc1 L_HK4B")
    flag_store(1)
    a(f"s_cmp_eq_u32 s{S_S}, 0")
    a("s_cbranch_scc0 L_HK4B")
    a(f"s_mov_b32 s{S_HOOK}, 1000")
    a("s_setprio 0")
    a("s_branch L_HRET")
    a.lab("L_HK4B")
    a(f"v_readfirstlane_b32 s{S_T0}, v{V_TG}")
    a(f"s_sub_u32 s{S_T0}, s{S_T0}, s{S_TAGIN}")
    a(f"s_cmp_lt_u32 s{S_T0}, 2")
    a("s_cbranch_scc1 L_POLL1A_OK")
    a(f"v_mov_b32 v{t}, 0")
    spin_poll(a, "L_POLL1A",
              [f"v_readfirstlane_b32 s{S_T0}, v{V_TG}", f"s_sub_u32 s{S_T0}, s{S_T0}, s{S_TAGIN}", f"s_cmp_lt_u32 s{S_T0}, 2"],
              f"buffer_load_dword v{V_TG}, v{t}, {WS}, s{S_H1} offen sc1")
    if 'tsh' in exp: ts(1)
    a(f"v_add_u32 v{V_PA+1}, {KV_HALO}, v{V_PA}")
    halo_loads(a, 18432, VH)
    a(f"v_mov_b32 v{t}, 0")
    a(f"buffer_load_dword v{V_TG}, v{t}, {WS}, s{S_H1} offen sc1")
    a("s_branch L_HRET")
    a.lab("L_HK8")
    if 'tsh' in exp: ts(7)
    setnext(5, UC2)
    a("s_waitcnt vmcnt(1)")
    if 'tsh' in exp: ts(8)
    for i in range(4):
        a(f"ds_write_b128 v{V_PA+1}, v[{VH+4*i}:{VH+4*i+3}] offset:{18432+i*4096}")
    a(f"v_add_u32 v{t}, s{S_H0}, v{V_PA+1}")
    a(f"ds_write_b128 v{t}, v[{VH+16}:{VH+19}] offset:18432")
    a("s_waitcnt lgkmcnt(0)")
    lds_inc(a, CNT1, save_exec, rest_exec)
    if 'p9' in exp: a("s_setprio 0")
    a("s_branch L_HRET")
    a.lab("L_HK5")
    if 'tsj' in exp: ts(1)
    setnext(6, UW2)
    a("s_waitcnt vmcnt(0)")
    a(f"s_add_u32 s{S_T3}, s{S_TAGIN}, 1")
    a(f"v_readfirstlane_b32 s{S_T0}, v{V_TG}")
    a(f"s_cmp_eq_u32 s{S_T0}, s{S_T3}")
    a("s_cbranch_scc1 L_POLL1B_OK")
    a(f"v_mov_b32 v{t}, 0")
    spin_poll(a, "L_POLL1B",
              [f"v_readfirstlane_b32 s{S_T0}, v{V_TG}", f"s_cmp_eq_u32 s{S_T0}, s{S_T3}"],
              f"buffer_load_dword v{V_TG}, v{t}, {WS}, s{S_H1} offen sc1")
    if 'tsj' in exp: ts(2)
    halo_loads(a, 0, VH+20)
    a("s_branch L_HRET")
    a.lab("L_HK6")
    if 'tsj' in exp: ts(6)
    a(f"s_mov_b32 s{S_HST}, 7")
    a(f"s_add_u32 s{S_HOOK}, s{S_M}, 12")
    a(f"s_cmp_le_u32 s{S_M}, 1")
    a("s_cbranch_scc1 L_HK6A")
    a("s_waitcnt vmcnt(0)")
    a("s_branch L_HK6B")
    a.lab("L_HK6A")
    a("s_waitcnt vmcnt(2)")
    a.lab("L_HK6B")
    if 'tsj' in exp: ts(9)
    lds_wait(a, "L_WQ", CNTQ, 8)
    for i in range(4):
        a(f"ds_write_b128 v{V_PA+1}, v[{VH+20+4*i}:{VH+20+4*i+3}] offset:{i*4096}")
    a(f"v_add_u32 v{t}, s{S_H0}, v{V_PA+1}")
    a(f"ds_write_b128 v{t}, v[{VH+36}:{VH+39}]")
    a("s_waitcnt lgkmcnt(0)")
    lds_inc(a, CNT2, save_exec, rest_exec)
    a("s_setprio 0")
    a(f"s_cmp_lg_u32 s{S_WID}, 4")
    a("s_cbranch_scc1 L_HK6C")
    a(f"s_sub_u32 s{S_T0}, s{S_IDX}, 1")
    a(f"s_lshl_b32 s{S_T0}, s{S_T0}, 8")
    a(f"s_add_u32 s{S_T0}, s{S_T0}, {WS_FLAG}")
    a(f"v_mov_b32 v{t}, 0")
    a(f"v_mov_b32 v{t+1}, s{S_TAGIN}")
    save_exec(1)
    a(f"buffer_store_dword v{t+1}, v{t}, {WS}, s{S_T0} offen sc1")
    rest_exec()
    a.lab("L_HK6C")
    a(f"s_cmp_eq_u32 s{S_M}, 0")
    a("s_cbranch_scc1 L_HKW2")
    a.lab("L_HRET")
    a(f"s_setpc_b64 s[{S_RET2}:{S_RET2+1}]")
    run_code(a, "L_RUNA", QA_M, QA_R, OA, exp)
    run_code(a, "L_RUNB", QB_M, QB_R, OB, exp)

def pub_stores(a, stage_off, base):
    a(f"s_add_u32 s{S_T2}, s{S_T1}, {stage_off}")
    a(f"buffer_store_dwordx4 v[{base}:{base+3}], v{V_PA}, {WS}, s{S_T2} offen sc1")
    for i in range(1, 4):
        a(f"s_add_u32 s{S_T3}, s{S_T2}, {i*4096}")
        a(f"buffer_store_dwordx4 v[{base+4*i}:{base+4*i+3}], v{V_PA}, {WS}, s{S_T3} offen sc1")
    a(f"buffer_store_dwordx4 v[{base+16}:{base+19}], v{V_PA+2}, {WS}, s{S_T2} offen sc1")

def halo_loads(a, stage_off, base):
    t = T
    a(f"s_sub_u32 s{S_T0}, s{S_IDX}, 1")
    a(f"s_mul_i32 s{S_T0}, s{S_T0}, 36864")
    a(f"s_add_u32 s{S_T0}, s{S_T0}, {stage_off}")
    for i in range(4):
        a(f"s_add_u32 s{S_T1}, s{S_T0}, {i*4096}")
        a(f"buffer_load_dwordx4 v[{base+4*i}:{base+4*i+3}], v{V_PA}, {WS}, s{S_T1} offen sc1")
    a(f"s_add_u32 s{S_T1}, s{S_T0}, s{S_H0}")
    a(f"buffer_load_dwordx4 v[{base+16}:{base+19}], v{V_PA}, {WS}, s{S_T1} offen sc1")

def phase3(a, debug_stage, ts, exp, save_exec, rest_exec):
    t = T; L = V_LANE
    a.lab("L_P3")
    a.c("======== phase 3 ========")
    a("s_waitcnt vmcnt(0)")
    if "tsh" not in exp and "tsj" not in exp: ts(9)
    a(f"s_lshl_b32 s{S_T4}, s{S_GRP}, 8")
    a(f"s_add_u32 s{S_T4}, s{S_T4}, {WS_OF}")
    lds_inc(a, CNTO, save_exec, rest_exec, rtn=t+2)
    a("s_waitcnt lgkmcnt(0)")
    a(f"v_readfirstlane_b32 s{S_T0}, v{t+2}")
    a(f"s_cmp_lg_u32 s{S_T0}, 7")
    a("s_cbranch_scc1 L_P3W")
    a(f"s_lshl_b32 s{S_T0}, s{S_HP}, 2")
    a(f"s_add_u32 s{S_T0}, s{S_T0}, s{S_T4}")
    a(f"v_mov_b32 v{t}, 0")
    a(f"v_mov_b32 v{t+1}, s{S_TAGO}")
    save_exec(1)
    a(f"buffer_store_dword v{t+1}, v{t}, {WS}, s{S_T0} offen offset:128 sc1")
    rest_exec()
    a.lab("L_P3W")
    OF = 36; AC = 108; WF0, WF1 = 148, 168; AW, AW2 = 10, 11
    a(f"s_mul_i32 s{S_T0}, s{S_GRP}, 294912")
    a(f"s_add_u32 s{S_T0}, s{S_T0}, {WS_O}")
    a(f"s_lshr_b32 s{S_T1}, s{S_HP}, 3")
    a(f"s_lshl_b32 s{S_T1}, s{S_T1}, 3")
    a(f"s_lshl_b32 s{S_T2}, s{S_M}, 1")
    a(f"s_add_u32 s{S_T1}, s{S_T1}, s{S_T2}")
    a(f"s_mul_i32 s{S_T1}, s{S_T1}, 18")
    a(f"s_mul_i32 s{S_T2}, s{S_HEAD}, 9")
    a(f"s_add_u32 s{S_T1}, s{S_T1}, s{S_T2}")
    a(f"s_lshl_b32 s{S_T1}, s{S_T1}, 10")
    a(f"s_add_u32 s{S_T0}, s{S_T0}, s{S_T1}")
    a(f"s_add_u32 s{S_T1}, s{S_T0}, {18*1024}")
    a(f"v_lshrrev_b32 v{t+1}, 4, v{L}")
    a(f"v_bfe_u32 v{t+2}, v{L}, 2, 2")
    a(f"v_and_b32 v{t+3}, 3, v{L}")
    a(f"v_lshrrev_b32 v{t+4}, 1, v{t+1}")
    a(f"v_lshlrev_b32 v{t+4}, 2, v{t+4}")
    a(f"v_lshl_add_u32 v{t+4}, v{t+1}, 3, v{t+4}")
    a(f"v_add_u32 v{t+4}, v{t+4}, v{t+2}")
    a(f"v_mul_u32_u24 v{t+4}, 144, v{t+4}")
    a(f"v_lshl_add_u32 v{t+4}, v{t+3}, 3, v{t+4}")
    a(f"s_mul_i32 s{S_T2}, s{S_HEAD}, {9*5184}")
    a(f"v_add_u32 v{AW}, s{S_T2}, v{t+4}")
    a(f"v_mul_u32_u24 v{t+4}, 72, v{t+1}")
    a(f"v_add3_u32 v{t+4}, v{t+4}, v{t+2}, 16")
    a(f"v_mul_u32_u24 v{t+4}, 144, v{t+4}")
    a(f"v_lshl_add_u32 v{AW2}, v{t+3}, 3, v{t+4}")
    for i in range(40): a(f"v_mov_b32 v{AC+i}, 0")
    a(f"v_lshlrev_b32 v{t}, 4, v{L}")
    def wreads(ks, kh, WF):
        l = []
        kap = 9*kh + ks
        for Tn in range(5):
            b = WF + 4*Tn
            if kap < 16:
                o0 = ks*5184 + Tn*32
                l.append(f"ds_read_b64_tr_b16 v[{b}:{b+1}], v{AW} offset:{o0}")
                l.append(f"ds_read_b64_tr_b16 v[{b+2}:{b+3}], v{AW} offset:{o0+576}")
            else:
                o0 = (kap-16)*8*36*144 + Tn*32
                l.append(f"ds_read_b64_tr_b16 v[{b}:{b+1}], v{AW2} offset:{o0}")
                l.append(f"ds_read_b64_tr_b16 v[{b+2}:{b+3}], v{AW2} offset:{o0+36*144}")
        return l
    save_exec("0xffff")
    a(f"v_lshlrev_b32 v{t+2}, 2, v{L}")
    spin_poll(a, "L_POLL2",
              [f"v_cmp_ne_u32 vcc, s{S_TAGO}, v{t+1}", "s_nop 1", f"s_cmp_eq_u64 vcc, 0"],
              f"buffer_load_dword v{t+1}, v{t+2}, {WS}, s{S_T4} offen offset:128 sc1")
    a(f"s_cmp_lg_u32 s{S_HP}, 0")
    a("s_cbranch_scc1 L_NOG2")
    a(f"s_cmp_lg_u32 s{S_WID}, 0")
    a("s_cbranch_scc1 L_NOG2")
    a(f"s_mov_b64 exec, 1")
    a(f"v_mov_b32 v{t+2}, 0")
    a(f"v_mov_b32 v{t+1}, s{S_TAGO}")
    a(f"buffer_store_dword v{t+1}, v{t+2}, {WS}, s{S_T4} offen sc1")
    a.lab("L_NOG2")
    rest_exec()
    if 'tsx' not in exp and 'tsh' not in exp and 'tsj' not in exp: ts(10)
    if debug_stage == 2:
        a("s_branch L_FIN")
        return
    for ks in range(9):
        for mt in range(2):
            r = OF + (mt*9+ks)*4
            a(f"buffer_load_dwordx4 v[{r}:{r+3}], v{t}, {WS}, s{S_T0 if mt == 0 else S_T1} offen sc1")
        a(f"s_add_u32 s{S_T0}, s{S_T0}, 1024")
        a(f"s_add_u32 s{S_T1}, s{S_T1}, 1024")
    def body(kh):
        for rd in wreads(0, kh, WF0): a(rd)
        for ks in range(9):
            cur = WF0 if ks % 2 == 0 else WF1
            nxt = WF1 if ks % 2 == 0 else WF0
            a(f"s_waitcnt vmcnt({2*(8-ks)}) lgkmcnt(0)")
            rs = wreads(ks+1, kh, nxt) if ks < 8 else []
            ri = 0
            for Tn in range(5):
                for mt in range(2):
                    d = AC + (mt*5+Tn)*4
                    o = OF + (mt*9+ks)*4
                    a(f"v_mfma_f32_16x16x32_bf16 v[{d}:{d+3}], v[{cur+4*Tn}:{cur+4*Tn+3}], v[{o}:{o+3}], v[{d}:{d+3}]")
                    if ri < len(rs): a(rs[ri]); ri += 1
    a(f"s_cmp_eq_u32 s{S_HEAD}, 0")
    a("s_cbranch_scc0 L_P3K1")
    body(0)
    a("s_branch L_P3R")
    a.lab("L_P3K1")
    body(1)
    a.lab("L_P3R")
    if "tsh" not in exp and "tsj" not in exp: ts(11)
    a(f"v_lshlrev_b32 v{t}, 4, v{L}")
    a(f"s_mul_i32 s{S_T0}, s{S_WID}, 5120")
    a(f"s_add_u32 s{S_T0}, s{S_T0}, {KV_OWN}")
    a(f"v_add_u32 v{t+1}, s{S_T0}, v{t}")
    a(f"s_xor_b32 s{S_T1}, s{S_WID}, 4")
    a(f"s_mul_i32 s{S_T1}, s{S_T1}, 5120")
    a(f"s_add_u32 s{S_T1}, s{S_T1}, {KV_OWN}")
    a(f"v_add_u32 v{t+2}, s{S_T1}, v{t}")
    a(f"s_cmp_eq_u32 s{S_HEAD}, 0")
    a("s_cbranch_scc0 L_P3X1")
    for Tn in range(5): a(f"ds_write_b128 v{t+1}, v[{AC+(5+Tn)*4}:{AC+(5+Tn)*4+3}] offset:{Tn*1024}")
    a("s_branch L_P3X2")
    a.lab("L_P3X1")
    for Tn in range(5): a(f"ds_write_b128 v{t+1}, v[{AC+Tn*4}:{AC+Tn*4+3}] offset:{Tn*1024}")
    a("s_nop 1")
    for i in range(20): a(f"v_mov_b32 v{AC+i}, v{AC+20+i}")
    a.lab("L_P3X2")
    a(f"s_lshr_b32 s{S_T1}, s{S_HP}, 3")
    a(f"s_lshl_b32 s{S_T1}, s{S_T1}, 7")
    a(f"s_lshl_b32 s{S_T2}, s{S_S}, 8")
    a(f"s_add_u32 s{S_T1}, s{S_T1}, s{S_T2}")
    a(f"s_lshl_b32 s{S_T2}, s{S_M}, 5")
    a(f"s_add_u32 s{S_T1}, s{S_T1}, s{S_T2}")
    a(f"s_lshl_b32 s{S_T2}, s{S_HEAD}, 4")
    a(f"s_add_u32 s{S_T1}, s{S_T1}, s{S_T2}")
    a(f"s_mul_i32 s{S_T1}, s{S_T1}, 2304")
    a(f"s_mul_i32 s{S_T2}, s{S_B}, 1152")
    a(f"s_add_u32 s{S_T1}, s{S_T1}, s{S_T2}")
    a(f"s_and_b32 s{S_T2}, s{S_HP}, 7")
    a(f"s_mul_i32 s{S_T2}, s{S_T2}, 144")
    a(f"s_add_u32 s{S_T1}, s{S_T1}, s{S_T2}")
    PX = WF0
    for i in range(3):
        a(f"v_add_u32 v{t+3}, {i*64}, v{L}")
        a(f"v_mul_u32_u24 v{t+4}, 7282, v{t+3}")
        a(f"v_lshrrev_b32 v{t+4}, 16, v{t+4}")
        a(f"v_mul_u32_u24 v{t+5}, 9, v{t+4}")
        a(f"v_sub_u32 v{t+5}, v{t+3}, v{t+5}")
        a(f"v_mul_u32_u24 v{t+4}, 2304, v{t+4}")
        a(f"v_lshl_add_u32 v{PX+20+i}, v{t+5}, 4, v{t+4}")
    a(f"v_and_b32 v{t+3}, 15, v{L}")
    a(f"v_mul_u32_u24 v{t+3}, 144, v{t+3}")
    a(f"v_lshrrev_b32 v{t+4}, 4, v{L}")
    a(f"v_lshl_add_u32 v{t+3}, v{t+4}, 3, v{t+3}")
    a(f"s_mul_i32 s{S_T0}, s{S_WID}, 2304")
    a(f"s_add_u32 s{S_T0}, s{S_T0}, {KV_HALO+8192}")
    a(f"v_add_u32 v{t+3}, s{S_T0}, v{t+3}")
    a(f"v_lshlrev_b32 v{t+4}, 4, v{L}")
    a(f"v_add_u32 v{t+4}, s{S_T0}, v{t+4}")
    a("s_waitcnt lgkmcnt(0)")
    a("s_barrier")
    for Tn in range(5): a(f"ds_read_b128 v[{PX+4*Tn}:{PX+4*Tn+3}], v{t+2} offset:{Tn*1024}")
    a("s_waitcnt lgkmcnt(0)")
    for i in range(20): a(f"v_add_f32 v{AC+i}, v{AC+i}, v{PX+i}")
    for Tn in range(5):
        a(f"v_cvt_pk_bf16_f32 v{PX+2*Tn}, v{AC+4*Tn}, v{AC+4*Tn+1}")
        a(f"v_cvt_pk_bf16_f32 v{PX+2*Tn+1}, v{AC+4*Tn+2}, v{AC+4*Tn+3}")
    for Tn in range(4): a(f"ds_write_b64 v{t+3}, v[{PX+2*Tn}:{PX+2*Tn+1}] offset:{Tn*32}")
    a(f"s_mov_b64 s[{S_SAVE}:{S_SAVE+1}], exec")
    a(f"s_mov_b32 exec_hi, 0")
    a(f"ds_write_b64 v{t+3}, v[{PX+8}:{PX+9}] offset:128")
    rest_exec()
    a("s_waitcnt lgkmcnt(0)")
    for i in range(3):
        a(f"ds_read_b128 v[{AC+4*i}:{AC+4*i+3}], v{t+4} offset:{i*1024}")
    a("s_waitcnt lgkmcnt(0)")
    for i in range(3):
        if i == 2: a(f"s_mov_b64 exec, 0xffff")
        a(f"buffer_store_dwordx4 v[{AC+4*i}:{AC+4*i+3}], v{PX+20+i}, s[{S_OUT}:{S_OUT+3}], s{S_T1} offen")
    a(f"s_mov_b64 exec, -1")

def run_code_x(a, name, QM, QR, O, exp):
    VE2, VP2, KF, KR, VA, VB = 100, 116, 124, 128, 132, 136
    def qk1(c="0"):
        if 'nomfma' not in exp: a(f"v_mfma_f32_32x32x16_bf16 v[{VS}:{VS+15}], v[{KF}:{KF+3}], v[{QM}:{QM+3}], {c}")
    def qk2():
        if 'nomfma' not in exp: a(f"v_mfma_f32_32x32x16_bf16 v[{VS}:{VS+15}], v[{KR}:{KR+3}], v[{QR}:{QR+3}], v[{VS}:{VS+15}]")
    def pv(V, P):
        if 'nomfma' not in exp: a(f"v_mfma_f32_32x32x16_bf16 v[{O}:{O+15}], v[{V}:{V+3}], v[{(220 if 'nopdep' in exp else P)}:{(220 if 'nopdep' in exp else P)+3}], v[{O}:{O+15}]")
    def kread():
        if 'nolds' in exp or 'nok' in exp: return
        a(f"ds_read_b128 v[{KF}:{KF+3}], v{A_K}")
        a(f"ds_read_b64 v[{KR}:{KR+1}], v{A_KR}")
    def vread(V, off):
        if 'nolds' in exp: return
        a(f"ds_read_b64_tr_b16 v[{V}:{V+1}], v{A_V} offset:{off}")
        a(f"ds_read_b64_tr_b16 v[{V+2}:{V+3}], v{A_V} offset:{off+576}")
    def cvt(j): a(f"v_cvt_pk_bf16_f32 v{VP2+j}, v{VE2+2*j}, v{VE2+2*j+1}")
    def ex(r): a(f"v_exp_f32 v{VE2+r}, v{(200 if 'nodep' in exp else VS)+r}")
    adds = [f"v_add_u32 v{A_K}, v{ST_K}, v{A_K}", f"v_add_u32 v{A_KR}, v{ST_K}, v{A_KR}", f"v_add_u32 v{A_V}, v{ST_V}, v{A_V}"]
    if 'noadd' in exp: adds = ["s_nop 0"]*3
    a.lab(name)
    kread(); a("s_waitcnt lgkmcnt(0)"); qk1(); qk2(); vread(VA, 0); vread(VB, 1152); kread(); a("s_nop 7")
    a.lab(name + "_LP")
    if 'v3' in exp:
        for r in range(16): ex(r)
        a("s_waitcnt lgkmcnt(0)")
        qk1()
        for j in range(6): cvt(j)
        pv(VA, VP2)
        cvt(6); cvt(7); a(adds[0]); a(adds[1])
        qk2()
        a(adds[2])
        pv(VB, VP2+4)
        vread(VA, 0); vread(VB, 1152); kread()
    elif 'v4' in exp:
        for r in range(8): ex(r)
        for j in range(4): cvt(j)
        ex(8); ex(9)
        a("s_waitcnt lgkmcnt(0)")
        pv(VA, VP2)
        for r in range(10, 16): ex(r)
        qk1()
        for j in range(4, 8): cvt(j)
        a(adds[0]); a(adds[1])
        qk2()
        vread(VA, 0); a(adds[2]); kread()
        pv(VB, VP2+4)
        vread(VB, 1152)
    elif 'v5' in exp:
        for r in range(8): ex(r)
        for j in range(4): cvt(j)
        ex(8); ex(9)
        a("s_waitcnt lgkmcnt(0)")
        pv(VA, VP2)
        for r in range(10, 16): ex(r)
        qk1()
        for j in range(4, 8): cvt(j)
        qk2()
        a(adds[0]); a(adds[1]); kread(); vread(VA, 0)
        pv(VB, VP2+4)
        a(adds[2]); vread(VB, 1152)
    a(f"s_sub_u32 s{S_N}, s{S_N}, 1")
    if 'v3' in exp: a("s_nop 1")
    a(f"s_cbranch_scc0 {name}_LP")
    a(f"s_setpc_b64 s[{S_RET}:{S_RET+1}]")

if __name__ == "__main__":
    import argparse
    p = argparse.ArgumentParser(); p.add_argument("--debug", type=int, default=0)
    p.add_argument("--timing", action="store_true"); p.add_argument("--exp", default=""); p.add_argument("-o", default="/dev/stdout")
    args = p.parse_args()
    open(args.o, "w").write(gen(args.debug, args.timing, args.exp))
```

```python
import sys, math, struct

NAME = "concat_heads__sliding_block__sliding_block__prompt"

STAGE   = 49152
WO_BASE = 0
KV_OWN  = 82944
KV_HALO = 119808
Q_BASE  = 119808
MISC    = 156672
TAGS_LDS = MISC + 2048
CNT2, CNT1, CNTQ, CNTO = TAGS_LDS+12, TAGS_LDS+16, TAGS_LDS+20, TAGS_LDS+24
LDS_TOTAL = 163840
TILE    = 4608
QTILE   = 2304
WS_KV   = 0
WS_O    = 256*36864
WS_FLAG = WS_O + 16*294912
WS_OF   = WS_FLAG + 65536
TIMING_OFF = 24<<20
TAG_INC = 0x9E3779B1
NEG     = 0xFF61B1E6
QSCALE  = (18.0 ** -0.5) * math.log2(math.e)
def f32bits(x): return struct.unpack("<I", struct.pack("<f", x))[0]

class Asm:
    def __init__(self): self.l = []
    def __call__(self, s=""):
        for line in s.split("\n"):
            self.l.append("  " + line.strip())
    def lab(self, n): self.l.append(n + ":")
    def c(self, s): self.l.append("  ; " + s)
    def text(self): return "\n".join(self.l) + "\n"

S_X, S_W, S_WO, S_WS, S_OUT = 8, 12, 16, 20, 24
S_B, S_S, S_HP, S_WID = 28, 29, 30, 31
S_T0, S_T1, S_T2, S_T3, S_T4, S_T5 = 32, 33, 34, 35, 36, 37
S_I = 38
S_L = 39
S_TAGIN, S_TAGOUT, S_TAGO = 40, 41, 42
S_K, S_C, S_SB, S_XB, S_WB = 43, 44, 45, 46, 47
S_LX, S_LW = 48, 49
S_N = 50
S_U = 51
S_RET = 52
S_IDX, S_GRP, S_HEAD, S_M = 54, 55, 56, 57
S_SAVE = 58
S_CNT = 60
S_HOOK = 61
S_BAD = 62
S_RET2 = 64
S_MB = 66
S_HST = 67
S_H0, S_H1 = 68, 69
S_E = 98

V_LANE = 1
T = 2
V_AX = 10
V_AW = 12
V_MASK = 20
V_SET0, V_SET1, V_ACC = 36, 80, 124
V_LDX, V_LDW = 36, 44
V_TG = 236
B_K, B_KR, B_V, MK_V = 240, 241, 242, 243
vEK, vEQ, vEV, vE6, vDr, vDt, vF, vC = 244, 245, 246, 247, 248, 249, 250, 252
V_TL = 254
QA_M, QA_R, QB_M, QB_R = 36, 40, 44, 48
OA, OB = 52, 68
VS, VE, VP = 84, 100, 116
VKF, VKR, VVA, VVB = 124, 128, 132, 136
A_K, A_KR, A_V, ST_V, ST_K = 10, 11, 12, 13, 14
VH = 140
V_WOV = 180
V_PA = 184

def emit_masks_(a):
    t = T; L = V_LANE
    a(f"v_and_b32 v{t}, 31, v{L}")
    a(f"v_lshrrev_b32 v{t+1}, 5, v{L}")
    a(f"v_lshlrev_b32 v{t+1}, 2, v{t+1}")
    a(f"v_sub_u32 v{t}, v{t}, v{t+1}")
    a(f"v_mov_b32 v{t+1}, {NEG:#x}")
    for r in range(16):
        jj = (r & 3) + 8*(r >> 2)
        a(f"v_cmp_le_i32 vcc, {jj}, v{t}")
        a("s_nop 1")
        a(f"v_cndmask_b32_e64 v{V_MASK+r}, v{t+1}, 0, vcc")
def emit_p2_patterns_(a):
    t = T; L = V_LANE
    a(f"v_and_b32 v{t}, 31, v{L}")
    a(f"v_lshrrev_b32 v{t+1}, 5, v{L}")
    a(f"v_lshrrev_b32 v{t+2}, 2, v{t}")
    a(f"v_lshrrev_b32 v{t+3}, 3, v{t}")
    a(f"v_xor_b32 v{t+2}, v{t+2}, v{t+3}")
    a(f"v_xor_b32 v{t+2}, v{t+2}, v{t+1}")
    a(f"v_and_b32 v{t+2}, 1, v{t+2}")
    a(f"v_lshlrev_b32 v{t+2}, 4, v{t+2}")
    a(f"v_lshl_add_u32 v{t+2}, v{t}, 5, v{t+2}")
    a(f"s_lshl_b32 s{S_T0}, s{S_HEAD}, 10")
    a(f"v_add_u32 v{B_K}, s{S_T0}, v{t+2}")
    a(f"v_lshlrev_b32 v{B_KR}, 3, v{t}")
    a(f"v_add_u32 v{B_KR}, 2048, v{B_KR}")
    a(f"v_bfe_u32 v{t+2}, v{L}, 2, 2")
    a(f"v_lshl_add_u32 v{t+2}, v{t+1}, 2, v{t+2}")
    a(f"v_mul_u32_u24 v{t+2}, 72, v{t+2}")
    a(f"v_add_u32 v{t+2}, 2304, v{t+2}")
    a(f"v_and_b32 v{t+3}, 3, v{L}")
    a(f"v_lshlrev_b32 v{t+4}, 3, v{t+3}")
    a(f"s_mul_i32 s{S_T0}, s{S_HEAD}, 40")
    a(f"v_add3_u32 v{t+4}, v{t+4}, v{t+2}, s{S_T0}")
    a(f"v_add_u32 v{t+5}, 32, v{t+2}")
    a(f"v_bfe_u32 v{t+6}, v{L}, 4, 1")
    a(f"v_cmp_eq_u32 vcc, 1, v{t+6}")
    a(f"v_lshrrev_b32 v{t+7}, 1, v{t+3}")
    a(f"v_and_b32 v{t+7}, v{t+7}, v{t+6}")
    a(f"v_cndmask_b32 v{B_V}, v{t+4}, v{t+5}, vcc")
    a(f"v_cmp_eq_u32 vcc, 1, v{t+7}")
    a(f"v_mov_b32 v{t+5}, {MISC}")
    a(f"v_mov_b32 v{t+6}, -1")
    a(f"v_cndmask_b32 v{B_V}, v{B_V}, v{t+5}, vcc")
    a(f"v_cndmask_b32_e64 v{MK_V}, v{t+6}, 0, vcc")


def gen(debug_stage=0, timing=False, exp=''):
    a = Asm()
    t = T; L = V_LANE
    def ts(i, force=False):
        if timing: a(f"s_memtime s[{70+2*i}:{71+2*i}]")
    WS = f"s[{S_WS}:{S_WS+3}]"
    def save_exec(val):
        a(f"s_mov_b64 s[{S_SAVE}:{S_SAVE+1}], exec")
        a(f"s_mov_b64 exec, {val}")
    def rest_exec():
        a(f"s_mov_b64 exec, s[{S_SAVE}:{S_SAVE+1}]")

    a.l += [f"; Kernarg layout (72 bytes): A_x, A_wqkv, A_wo, B_x, B_wqkv, B_wo, out, debug, ws",
            f"; @launch grid=(256,1,1) block=(512,1,1) lds={LDS_TOTAL}"]
    a(f""".amdgcn_target "amdgcn-amd-amdhsa--gfx950"
.text
.globl {NAME}_kernel
.p2align 8
.type {NAME}_kernel,@function""")
    a.lab(f"{NAME}_kernel")
    a("s_cmp_ge_u32 s2, 256")
    a("s_cbranch_scc1 L_END")
    a(f"s_and_b32 s3, s2, 7")
    a(f"s_lshr_b32 s{S_B}, s3, 2")
    a(f"s_mul_i32 s{S_T0}, s{S_B}, 24")
    a(f"s_add_u32 s4, s0, s{S_T0}")
    a(f"s_addc_u32 s5, s1, 0")
    a(f"s_load_dwordx2 s[{S_X}:{S_X+1}], s[4:5], 0")
    a(f"s_load_dwordx2 s[{S_W}:{S_W+1}], s[4:5], 8")
    a(f"s_load_dwordx2 s[{S_WO}:{S_WO+1}], s[4:5], 16")
    a(f"s_load_dwordx2 s[{S_OUT}:{S_OUT+1}], s[0:1], 48")
    a(f"s_load_dwordx2 s[{S_WS}:{S_WS+1}], s[0:1], 64")
    if timing:
        for i in range(13): a(f"s_mov_b32 s{70+2*i}, 0")
    if 'dbg' in exp:
        a("s_load_dwordx2 s[6:7], s[0:1], 56")
        a("s_memrealtime s[96:97]")
    ts(0)
    a(f"s_lshr_b32 s{S_I}, s2, 3")
    a(f"s_lshr_b32 s{S_T2}, s3, 1")
    a(f"s_and_b32 s{S_T2}, s{S_T2}, 1")
    a(f"s_lshl_b32 s{S_T2}, s{S_T2}, 2")
    a(f"s_and_b32 s{S_T3}, s{S_I}, 3")
    a(f"s_add_u32 s{S_S}, s{S_T2}, s{S_T3}")
    a(f"s_and_b32 s{S_T2}, s3, 1")
    a(f"s_lshl_b32 s{S_T2}, s{S_T2}, 3")
    a(f"s_lshr_b32 s{S_T4}, s{S_I}, 2")
    a(f"s_add_u32 s{S_HP}, s{S_T2}, s{S_T4}")
    a(f"s_lshl_b32 s{S_T3}, s{S_T3}, 1")
    a(f"s_add_u32 s{S_C}, s{S_T4}, s{S_T3}")
    a(f"s_cmp_ge_u32 s{S_C}, 9")
    a(f"s_cselect_b32 s{S_T3}, 9, 0")
    a(f"s_sub_u32 s{S_C}, s{S_C}, s{S_T3}")
    if 'norot' in exp: a(f"s_mov_b32 s{S_C}, 0")
    a(f"s_lshl_b32 s{S_T0}, s{S_B}, 4")
    a(f"s_add_u32 s{S_T0}, s{S_T0}, s{S_HP}")
    a(f"s_lshl_b32 s{S_T0}, s{S_T0}, 3")
    a(f"s_add_u32 s{S_IDX}, s{S_T0}, s{S_S}")
    a(f"s_lshl_b32 s{S_T0}, s{S_B}, 3")
    a(f"s_add_u32 s{S_GRP}, s{S_T0}, s{S_S}")
    a(f"v_lshrrev_b32 v{t}, 6, v0")
    a(f"v_and_b32 v{L}, 63, v0")
    a(f"v_readfirstlane_b32 s{S_WID}, v{t}")
    for (r, n) in ((S_X, 2359296), (S_W, 1990656), (S_WO, 663552), (S_WS, 268435456), (S_OUT, 4718592)):
        a(f"s_mov_b32 s{r+2}, {n}")
        a(f"s_mov_b32 s{r+3}, 0x00020000")
    a(f"s_and_b32 s{S_M}, s{S_WID}, 3")
    a(f"s_lshr_b32 s{S_HEAD}, s{S_WID}, 2")
    a(f"s_sub_u32 s{S_MB}, 7, s{S_M}")
    a(f"s_cmp_lt_u32 s{S_WID}, 4")
    a("s_cbranch_scc1 L_COMPUTE")

    emit_masks = lambda: emit_masks_(a)
    emit_p2_patterns = lambda: emit_p2_patterns_(a)

    a(f"s_sub_u32 s{S_L}, s{S_WID}, 4")
    a(f"v_lshrrev_b32 v{t}, 3, v{L}")
    a(f"v_mul_u32_u24 v{t}, 1152, v{t}")
    a(f"v_lshrrev_b32 v{t+1}, 4, v{L}")
    a(f"v_and_b32 v{t+2}, 7, v{L}")
    a(f"v_xor_b32 v{t+3}, v{t+2}, v{t+1}")
    a(f"v_lshl_add_u32 v{V_AX}, v{t+3}, 4, v{t}")
    a(f"v_xor_b32 v{t+3}, 4, v{t+3}")
    a(f"v_lshl_add_u32 v{V_AX+1}, v{t+3}, 4, v{t}")
    a(f"s_mul_i32 s{S_T0}, s{S_HP}, 72")
    a(f"s_and_b32 s{S_T0}, s{S_T0}, 0xfffffff0")
    a(f"v_and_b32 v{t+2}, 15, v{L}")
    a(f"v_mul_u32_u24 v{t+4}, 3456, v{t+1}")
    a(f"v_add_u32 v{t+4}, s{S_T0}, v{t+4}")
    for var in range(2):
        a(f"v_lshlrev_b32 v{t+3}, 1, v{t+1}")
        a(f"v_sub_u32 v{t+3}, v{t+2}, v{t+3}")
        if var: a(f"v_subrev_u32 v{t+3}, 8, v{t+3}")
        a(f"v_and_b32 v{t+3}, 15, v{t+3}")
        a(f"v_min_u32 v{t+3}, 14, v{t+3}")
        a(f"v_mul_u32_u24 v{t+5}, 13, v{t+3}")
        a(f"v_lshrrev_b32 v{t+5}, 6, v{t+5}")
        a(f"v_mul_u32_u24 v{t+6}, 5, v{t+5}")
        a(f"v_sub_u32 v{t+6}, v{t+3}, v{t+6}")
        a(f"v_mul_u32_u24 v{t+5}, 1152, v{t+5}")
        a(f"v_lshl_add_u32 v{t+6}, v{t+6}, 4, v{t+5}")
        a(f"v_add_u32 v{V_AX+2+var}, v{t+4}, v{t+6}")
    for i in range(8):
        a(f"v_add_u32 v{V_LDX+i}, {i*9216-(i&3)*1024}, v{V_AX+(i&1)}")
    for i in range(4):
        a(f"v_add_u32 v{V_LDW+i}, {i*4*3456-i*1024}, v{V_AX+2+(i>>1)}")
    a(f"s_lshl_b32 s{S_T0}, s{S_S}, 8")
    a(f"s_lshl_b32 s{S_T1}, s{S_L}, 6")
    a(f"s_add_u32 s{S_T0}, s{S_T0}, s{S_T1}")
    a(f"s_mul_i32 s{S_XB}, s{S_T0}, 1152")
    a(f"s_mul_i32 s{S_WB}, s{S_L}, {16*3456}")
    a(f"s_lshl_b32 s{S_LX}, s{S_L}, 13")
    a(f"s_lshl_b32 s{S_LW}, s{S_L}, 12")
    a(f"s_add_u32 s{S_LW}, s{S_LW}, 32768")
    a(f"s_mov_b32 s{S_SB}, 0")
    def chunk_pre():
        a(f"s_lshl_b32 s{S_T0}, s{S_C}, 7")
        a(f"s_add_u32 s{S_T0}, s{S_T0}, s{S_XB}")
        a(f"s_mul_i32 s{S_T1}, s{S_C}, {64*3456}")
        a(f"s_add_u32 s{S_T1}, s{S_T1}, s{S_WB}")
        a(f"s_add_u32 s{S_T2}, s{S_SB}, s{S_LW}")
        a(f"s_add_u32 s{S_T3}, s{S_SB}, s{S_LX}")
        a(f"s_add_u32 s{S_C}, s{S_C}, 1")
        a(f"s_cmp_eq_u32 s{S_C}, 9")
        a(f"s_cselect_b32 s{S_C}, 0, s{S_C}")
        a(f"s_add_u32 s{S_SB}, s{S_SB}, {STAGE}")
        a(f"s_cmp_eq_u32 s{S_SB}, {3*STAGE}")
        a(f"s_cselect_b32 s{S_SB}, 0, s{S_SB}")
    def chunk_w():
        a(f"s_mov_b32 m0, s{S_T2}")
        a("s_nop 0")
        for i in range(4):
            a(f"buffer_load_dwordx4 v{V_LDW+i}, s[{S_W}:{S_W+3}], s{S_T1} offen offset:{i*1024} lds")
    def chunk_x(lo, hi):
        for i in range(lo, hi):
            if i == lo or i == 4:
                a(f"s_add_u32 m0, s{S_T3}, {(i&~3)*1024}")
                a("s_nop 0")
            a(f"buffer_load_dwordx4 v{V_LDX+i}, s[{S_X}:{S_X+3}], s{S_T0} offen offset:{(i&3)*1024} lds")
    chunk_pre()
    a("s_waitcnt lgkmcnt(0)")
    chunk_w(); chunk_x(0, 8)
    chunk_pre(); chunk_w(); chunk_x(0, 2)
    a("s_waitcnt vmcnt(6)")
    a("s_barrier")
    chunk_x(2, 8)
    chunk_pre()
    a(f"s_mov_b32 s{S_K}, 2")
    a.lab("L_LD")
    chunk_w(); chunk_x(0, 8)
    chunk_pre()
    a(f"s_add_u32 s{S_K}, s{S_K}, 1")
    a(f"s_cmp_lt_u32 s{S_K}, 9")
    a("s_waitcnt vmcnt(12)")
    a("s_barrier")
    a("s_cbranch_scc1 L_LD")
    a(f"s_lshl_b32 s{S_T0}, s{S_L}, 6")
    a(f"v_add_u32 v{t}, s{S_T0}, v{L}")
    a(f"v_mul_u32_u24 v{t+1}, 7282, v{t}")
    a(f"v_lshrrev_b32 v{t+1}, 16, v{t+1}")
    a(f"v_mul_u32_u24 v{t+2}, 9, v{t+1}")
    a(f"v_sub_u32 v{t+2}, v{t}, v{t+2}")
    a(f"v_mul_u32_u24 v{t+1}, 1152, v{t+1}")
    a(f"v_lshl_add_u32 v{t+1}, v{t+2}, 7, v{t+1}")
    a(f"s_mul_i32 s{S_T0}, s{S_I}, {18*1152}")
    a(f"v_cmp_gt_u32 vcc, 162, v{t}")
    a(f"v_cndmask_b32_e64 v{t+1}, 0, v{t+1}, vcc")
    a(f"buffer_load_dword v255, v{t+1}, s[{S_WO}:{S_WO+3}], s{S_T0} offen")
    emit_masks()
    emit_p2_patterns()
    a(f"v_mul_u32_u24 v{t+1}, 7282, v{L}")
    a(f"v_lshrrev_b32 v{t+1}, 16, v{t+1}")
    a(f"v_mul_u32_u24 v{t+2}, 9, v{t+1}")
    a(f"v_sub_u32 v{t+2}, v{L}, v{t+2}")
    a(f"v_mul_u32_u24 v{t+1}, 1152, v{t+1}")
    a(f"v_lshl_add_u32 v{t+1}, v{t+2}, 4, v{t+1}")
    a(f"s_and_b32 s{S_T0}, s{S_HP}, 7")
    a(f"s_mul_i32 s{S_T0}, s{S_T0}, 144")
    a(f"v_add_u32 v{V_WOV}, s{S_T0}, v{t+1}")
    for j in range(1, 4): a(f"v_add_u32 v{V_WOV+j}, {j*(8064-1008)}, v{V_WOV}")
    a(f"s_mul_i32 s{S_T0}, s{S_L}, {21*1008}")
    a(f"s_mul_i32 s{S_T1}, s{S_L}, {21*8064}")
    a("s_waitcnt vmcnt(1)")
    a("s_barrier")
    a(f"s_mov_b64 s[{S_SAVE}:{S_SAVE+1}], exec")
    a(f"s_bitset0_b64 exec, 63")
    WO = f"s[{S_WO}:{S_WO+3}]"
    for j in range(21):
        if j == 19:
            a(f"s_cmp_eq_u32 s{S_L}, 3")
            a("s_cbranch_scc0 L_WO_N")
            a(f"s_mov_b64 exec, 0x3ffff")
            a(f"buffer_load_dwordx4 v{V_WOV+(j&3)}, {WO}, s{S_T2} offen offset:{(j&3)*1008} lds")
            a("s_branch L_WO_DONE")
            a.lab("L_WO_N")
        if j % 4 == 0:
            a(f"s_add_u32 m0, s{S_T0}, {j*1008}")
            a(f"s_add_u32 s{S_T2}, s{S_T1}, {j*8064}")
        a(f"buffer_load_dwordx4 v{V_WOV+(j&3)}, {WO}, s{S_T2} offen offset:{(j&3)*1008} lds")
    a.lab("L_WO_DONE")
    rest_exec()
    a("s_barrier")
    for r in range(16):
        a(f"v_mov_b32 v{OA+r}, 0")
        a(f"v_mov_b32 v{OB+r}, 0")
    a(f"v_lshlrev_b32 v{V_PA}, 4, v{L}")
    a(f"s_lshl_b32 s{S_T0}, s{S_L}, 10")
    a(f"v_add_u32 v{V_PA}, s{S_T0}, v{V_PA}")
    a(f"v_add_u32 v{V_PA+1}, {KV_OWN}, v{V_PA}")
    a(f"s_cmp_lt_u32 s{S_L}, 2")
    a(f"s_cselect_b32 s{S_H0}, 16384, 0")
    a(f"v_add_u32 v{t}, s{S_H0}, v{V_PA+1}")
    a(f"v_add_u32 v{V_PA+2}, s{S_H0}, v{V_PA}")
    a(f"s_mul_i32 s{S_T1}, s{S_IDX}, 36864")
    a("s_barrier")
    if 'tsx' in exp: ts(1)
    a(f"s_cmp_eq_u32 s{S_S}, 7")
    a("s_cbranch_scc1 L_NOPUB")
    for st in (1, 0):
        base = VH + (0 if st else 20)
        for i in range(4):
            a(f"ds_read_b128 v[{base+4*i}:{base+4*i+3}], v{V_PA+1} offset:{st*18432+i*4096}")
        a(f"ds_read_b128 v[{base+16}:{base+19}], v{t} offset:{st*18432}")
    a("s_waitcnt lgkmcnt(5)")
    pub_stores(a, 18432, VH)
    if 'tsx' in exp: ts(2)
    a.lab("L_NOPUB")
    a("s_branch L_P2")

    a.lab("L_COMPUTE")
    a(f"v_and_b32 v{t}, 15, v{L}")
    a(f"v_lshrrev_b32 v{t+1}, 4, v{L}")
    a(f"v_lshrrev_b32 v{t+2}, 1, v{t}")
    a(f"s_lshl_b32 s{S_T0}, s{S_WID}, 6")
    a(f"v_add_u32 v{t+3}, s{S_T0}, v{t}")
    a(f"v_lshlrev_b32 v{t+3}, 7, v{t+3}")
    a(f"v_xor_b32 v{t+4}, v{t+1}, v{t+2}")
    a(f"v_lshlrev_b32 v{t+5}, 4, v{t+4}")
    a(f"v_add_u32 v{V_AX}, v{t+3}, v{t+5}")
    a(f"v_xor_b32 v{t+4}, 4, v{t+4}")
    a(f"v_lshlrev_b32 v{t+5}, 4, v{t+4}")
    a(f"v_add_u32 v{V_AX+1}, v{t+3}, v{t+5}")
    a(f"v_bfe_u32 v{t}, v{L}, 2, 2")
    a(f"v_and_b32 v{t+2}, 3, v{L}")
    a(f"v_and_b32 v{t+3}, 1, v{t+1}")
    a(f"v_lshl_add_u32 v{t+3}, v{t+3}, 2, v{t}")
    a(f"v_lshlrev_b32 v{t+3}, 5, v{t+3}")
    a(f"v_lshl_add_u32 v{t+4}, v{t+1}, 3, v{t}")
    a(f"v_lshlrev_b32 v{t+4}, 8, v{t+4}")
    a(f"v_add_u32 v{t+4}, 32768, v{t+4}")
    a(f"v_lshlrev_b32 v{t+5}, 3, v{t+2}")
    a(f"s_and_b32 s{S_T1}, s{S_HP}, 1")
    a(f"s_lshl_b32 s{S_T1}, s{S_T1}, 3")
    a(f"v_add3_u32 v{t+5}, v{t+5}, v{t+3}, s{S_T1}")
    for Tn in range(6):
        off = 80*(Tn >> 1) + (40 if Tn & 1 else 0)
        a(f"v_add_u32 v{t+6}, {off}, v{t+5}")
        a(f"v_and_b32 v{t+6}, 255, v{t+6}")
        a(f"v_add_u32 v{V_AW+Tn}, v{t+4}, v{t+6}")
    a(f"v_min_u32 v{t+6}, 2, v{t+2}")
    a(f"v_mul_u32_u24 v{t+6}, 80, v{t+6}")
    a(f"v_add3_u32 v{t+6}, v{t+6}, v{t+3}, s{S_T1}")
    a(f"v_add_u32 v{t+6}, 32, v{t+6}")
    a(f"v_and_b32 v{t+6}, 255, v{t+6}")
    a(f"v_add_u32 v{V_AW+6}, v{t+4}, v{t+6}")
    a(f"v_and_b32 v{t}, 15, v{L}")
    a(f"v_lshrrev_b32 v{t+1}, 4, v{L}")
    a(f"v_and_b32 v{t+2}, 1, v{t+1}")
    a(f"v_lshl_add_u32 v{t+2}, v{t+2}, 4, v{t}")
    a(f"v_lshrrev_b32 v{t+3}, 2, v{t}")
    a(f"v_lshrrev_b32 v{t+4}, 3, v{t}")
    a(f"v_xor_b32 v{t+3}, v{t+3}, v{t+4}")
    a(f"v_lshrrev_b32 v{t+4}, 1, v{t+1}")
    a(f"v_xor_b32 v{t+3}, v{t+3}, v{t+4}")
    a(f"v_and_b32 v{t+3}, 1, v{t+3}")
    a(f"v_lshlrev_b32 v{t+3}, 4, v{t+3}")
    a(f"v_lshl_add_u32 v{t+3}, v{t+2}, 5, v{t+3}")
    a(f"s_mul_i32 s{S_T0}, s{S_WID}, {2*TILE}")
    a(f"s_add_u32 s{S_T0}, s{S_T0}, {KV_OWN}")
    a(f"s_mul_i32 s{S_T1}, s{S_WID}, {2*QTILE}")
    a(f"s_add_u32 s{S_T1}, s{S_T1}, {Q_BASE}")
    a(f"v_add_u32 v{vEK}, s{S_T0}, v{t+3}")
    a(f"v_add_u32 v{vEQ}, s{S_T1}, v{t+3}")
    a(f"v_mul_u32_u24 v{t+4}, 72, v{t}")
    a(f"v_lshl_add_u32 v{t+5}, v{t+1}, 3, v{t+4}")
    a(f"v_add_u32 v{t+5}, 2304, v{t+5}")
    a(f"v_add_u32 v{vEV}, s{S_T0}, v{t+5}")
    a(f"v_lshlrev_b32 v{t+5}, 3, v{t}")
    a(f"v_add_u32 v{t+5}, 2048, v{t+5}")
    a(f"v_add_u32 v{t+6}, s{S_T1}, v{t+5}")
    a(f"v_add_u32 v{t+7}, s{S_T0}, v{t+5}")
    a(f"v_add_u32 v{t+4}, {2304+32}, v{t+4}")
    a(f"v_add_u32 v{t+4}, s{S_T0}, v{t+4}")
    a(f"v_mov_b32 v{vDr}, 128")
    a(f"v_mov_b32 v{vDt}, {TILE}")
    a(f"v_mov_b32 v{vF}, 1.0")
    a(f"v_mov_b32 v{vE6}, v{t+7}")
    a(f"v_cmp_eq_u32 vcc, 0, v{t+1}")
    a(f"v_mov_b32 v{t+5}, {QTILE}")
    a(f"v_mov_b32 v{vC}, {f32bits(QSCALE):#x}")
    a(f"v_cndmask_b32 v{vE6}, v{vE6}, v{t+6}, vcc")
    a(f"v_cndmask_b32 v{vDt}, v{vDt}, v{t+5}, vcc")
    a(f"v_cndmask_b32 v{vF}, v{vF}, v{vC}, vcc")
    a(f"v_cmp_eq_u32 vcc, 2, v{t+1}")
    a(f"v_mov_b32 v{t+5}, 1152")
    a(f"v_mov_b32 v{vC+1}, v{vC}")
    a(f"v_cndmask_b32 v{vE6}, v{vE6}, v{t+4}, vcc")
    a(f"v_cndmask_b32 v{vDr}, v{vDr}, v{t+5}, vcc")
    a(f"v_mov_b32 v{vF+1}, v{vF}")
    a("s_waitcnt lgkmcnt(0)")
    a(f"s_cmp_lg_u32 s{S_WID}, 0")
    a("s_cbranch_scc1 L_NOG0")
    a(f"s_lshl_b32 s{S_T0}, s{S_IDX}, 8")
    a(f"s_add_u32 s{S_T0}, s{S_T0}, {WS_FLAG}")
    a(f"s_lshl_b32 s{S_T1}, s{S_GRP}, 8")
    a(f"s_add_u32 s{S_T1}, s{S_T1}, {WS_OF}")
    a(f"v_mov_b32 v{t}, 0")
    a(f"buffer_load_dword v{V_TG}, v{t}, {WS}, s{S_T0} offen sc1")
    a(f"s_sub_u32 s{S_T0}, s{S_T0}, 256")
    a(f"s_max_u32 s{S_T0}, s{S_T0}, {WS_FLAG}")
    a(f"buffer_load_dword v{V_TG+1}, v{t}, {WS}, s{S_T0} offen sc1")
    a(f"buffer_load_dword v{V_TG+2}, v{t}, {WS}, s{S_T1} offen sc1")
    a.lab("L_NOG0")
    for i in range(112):
        a(f"v_mov_b32 v{V_ACC+i}, 0")
    emit_masks()
    emit_p2_patterns()
    a(f"v_mov_b32 v{t+2}, 0x3f803f80")
    a(f"v_mov_b32 v{t+3}, 0x3f803f80")
    a(f"v_mul_u32_u24 v{t+4}, 576, v{L}")
    a(f"v_add_u32 v{t+4}, {MISC}, v{t+4}")
    save_exec(15)
    a(f"ds_write_b64 v{t+4}, v[{t+2}:{t+3}]")
    rest_exec()
    a(f"s_cmp_lg_u32 s{S_WID}, 0")
    a("s_cbranch_scc1 L_NOG1")
    a("s_waitcnt vmcnt(0)")
    for i in range(3): a(f"v_add_u32 v{V_TG+i}, {TAG_INC:#x}, v{V_TG+i}")
    a(f"v_mov_b32 v{V_TG+3}, 0")
    a(f"v_mov_b32 v{t+4}, {TAGS_LDS}")
    save_exec(1)
    a(f"ds_write_b128 v{t+4}, v[{V_TG}:{V_TG+3}]")
    for i in range(4): a(f"v_mov_b32 v{V_TG+i}, 0")
    a(f"ds_write_b128 v{t+4}, v[{V_TG}:{V_TG+3}] offset:16")
    rest_exec()
    a.lab("L_NOG1")
    a("s_waitcnt lgkmcnt(0)")
    a("s_barrier")
    if "tsh" not in exp and "tsj" not in exp: ts(1)
    def reads(setb, ks):
        xs = [f"ds_read_b128 v[{setb+4*mt}:{setb+4*mt+3}], v{V_AX+ks} offset:{mt*2048}" for mt in range(4)]
        ws = []
        for Tn in range(7):
            b = setb + 16 + 4*Tn
            ws.append(f"ds_read_b64_tr_b16 v[{b}:{b+1}], v{V_AW+Tn} offset:{ks*8192}")
            ws.append(f"ds_read_b64_tr_b16 v[{b+2}:{b+3}], v{V_AW+Tn} offset:{ks*8192+1024}")
        return [xs[0], ws[0], ws[1], xs[1], ws[2], ws[3], xs[2], ws[4], ws[5], xs[3]] + ws[6:]
    def mfmas(setb):
        m = []
        for Tn in range(7):
            for mt in range(4):
                d = V_ACC + (mt*7+Tn)*4
                m.append(f"v_mfma_f32_16x16x32_bf16 v[{d}:{d+3}], v[{setb+16+4*Tn}:{setb+16+4*Tn+3}], v[{setb+4*mt}:{setb+4*mt+3}], v[{d}:{d+3}]")
        return m
    def interleave(ms, extra, per=1):
        ri = 0
        for i, m in enumerate(ms):
            a(m)
            for _ in range(per):
                if ri < len(extra): a(extra[ri]); ri += 1
        while ri < len(extra):
            a(extra[ri]); ri += 1
    for rd in reads(V_SET0, 0): a(rd)
    a(f"s_mov_b32 s{S_K}, 0")
    a(f"s_mov_b32 s{S_SB}, 0")
    a.lab("L_GEMM")
    a("s_waitcnt lgkmcnt(0)")
    sal = [f"s_add_u32 s{S_SB}, s{S_SB}, 1", f"s_cmp_eq_u32 s{S_SB}, 3", f"s_mov_b32 s{S_T0}, {STAGE}",
           f"s_cselect_b32 s{S_T0}, {(-2*STAGE) & 0xffffffff}, s{S_T0}", f"s_cselect_b32 s{S_SB}, 0, s{S_SB}"]
    interleave(mfmas(V_SET0), reads(V_SET1, 1) + sal)
    a("s_waitcnt lgkmcnt(0)")
    a("s_barrier")
    rd = reads(V_SET0, 0)
    adds = [f"v_add_u32 v{V_AX+i}, s{S_T0}, v{V_AX+i}" for i in range(9)]
    ex = [adds[0], adds[2], rd[0], rd[1], rd[2], adds[3], rd[3], rd[4], rd[5], adds[4], rd[6], rd[7], rd[8], rd[9],
          adds[5], rd[10], rd[11], adds[6], rd[12], rd[13], adds[7], rd[14], rd[15], adds[8], rd[16], rd[17], adds[1],
          f"s_add_u32 s{S_K}, s{S_K}, 1", f"s_cmp_lt_u32 s{S_K}, 9"]
    ms = mfmas(V_SET1)
    ri = 0
    for i, m in enumerate(ms):
        a(m)
        n = 2 if i < 6 else 1
        for _ in range(n):
            if ri < len(ex): a(ex[ri]); ri += 1
    assert ri == len(ex)
    a("s_cbranch_scc1 L_GEMM")
    if "tsh" not in exp and "tsj" not in exp: ts(2)
    a.c("phase-1 epilogue")
    a("s_waitcnt lgkmcnt(0)")
    acc = lambda mt, Tn: V_ACC + (mt*7+Tn)*4
    e = [V_SET0]
    def qk_tile(Tn, base_reg, pstride, hoff):
        for p in range(2):
            R = e[0]; e[0] += 4
            da, db = acc(2*p, Tn), acc(2*p+1, Tn)
            a(f"v_cvt_pk_bf16_f32 v{R}, v{da}, v{da+1}")
            a(f"v_cvt_pk_bf16_f32 v{R+2}, v{db}, v{db+1}")
            a(f"v_cvt_pk_bf16_f32 v{R+1}, v{da+2}, v{da+3}")
            a(f"v_cvt_pk_bf16_f32 v{R+3}, v{db+2}, v{db+3}")
            a("s_nop 0")
            a(f"v_permlane16_swap_b32 v{R}, v{R+2}")
            a(f"v_permlane16_swap_b32 v{R+1}, v{R+3}")
            a(f"ds_write_b128 v{base_reg}, v[{R}:{R+3}] offset:{p*pstride+hoff}")
    a("s_nop 3")
    qk_tile(2, vEK, TILE, 0)
    qk_tile(3, vEK, TILE, 1024)
    for Tn in (4, 5):
        for mt in range(4):
            R = e[0]; e[0] += 2
            d = acc(mt, Tn)
            a(f"v_cvt_pk_bf16_f32 v{R}, v{d}, v{d+1}")
            a(f"v_cvt_pk_bf16_f32 v{R+1}, v{d+2}, v{d+3}")
            a(f"ds_write_b64 v{vEV}, v[{R}:{R+1}] offset:{(mt>>1)*TILE + (mt&1)*1152 + (40 if Tn==5 else 0)}")
    R6 = e[0]; e[0] += 8
    for mt in range(4):
        d = acc(mt, 6)
        a(f"v_pk_mul_f32 v[{d}:{d+1}], v[{d}:{d+1}], v[{vF}:{vF+1}]")
        a(f"v_pk_mul_f32 v[{d+2}:{d+3}], v[{d+2}:{d+3}], v[{vF}:{vF+1}]")
    for mt in range(4):
        d = acc(mt, 6)
        a(f"v_cvt_pk_bf16_f32 v{R6+2*mt}, v{d}, v{d+1}")
        a(f"v_cvt_pk_bf16_f32 v{R6+2*mt+1}, v{d+2}, v{d+3}")
    a(f"v_add_u32 v{t}, v{vE6}, v{vDr}")
    a(f"v_add_u32 v{t+1}, v{vE6}, v{vDt}")
    a(f"v_add_u32 v{t+2}, v{t+1}, v{vDr}")
    a(f"s_mov_b64 s[{S_SAVE}:{S_SAVE+1}], exec")
    a(f"s_mov_b32 exec_hi, 0x0000ffff")
    a(f"ds_write_b64 v{vE6}, v[{R6}:{R6+1}]")
    a(f"ds_write_b64 v{t}, v[{R6+2}:{R6+3}]")
    a(f"ds_write_b64 v{t+1}, v[{R6+4}:{R6+5}]")
    a(f"ds_write_b64 v{t+2}, v[{R6+6}:{R6+7}]")
    rest_exec()
    a("s_waitcnt lgkmcnt(0)")
    if 'tsx' in exp: ts(6)
    a("s_barrier")
    for mt in range(4):
        for Tn in (0, 1):
            d = acc(mt, Tn)
            a(f"v_pk_mul_f32 v[{d}:{d+1}], v[{d}:{d+1}], v[{vC}:{vC+1}]")
            a(f"v_pk_mul_f32 v[{d+2}:{d+3}], v[{d+2}:{d+3}], v[{vC}:{vC+1}]")
    e[0] = 84
    qk_tile(0, vEQ, QTILE, 0)
    qk_tile(1, vEQ, QTILE, 1024)
    for r in range(16):
        a(f"v_mov_b32 v{OA+r}, 0")
        a(f"v_mov_b32 v{OB+r}, 0")

    a.lab("L_P2")
    a(f"v_mov_b32 v{t}, {TAGS_LDS}")
    a(f"ds_read_b128 v[{V_TG}:{V_TG+3}], v{t}")
    a("s_waitcnt lgkmcnt(0)")
    a("s_barrier")
    ts(3)
    if debug_stage == 1:
        a(f"s_lshl_b32 s{S_T0}, s{S_IDX}, 16")
        a(f"v_lshlrev_b32 v{t}, 4, v0")
        for i in range(7):
            a(f"v_add_u32 v{t+1}, {KV_OWN + i*8192}, v{t}")
            a(f"ds_read_b128 v[40:43], v{t+1}")
            a("s_waitcnt lgkmcnt(0)")
            a(f"v_add_u32 v{t+2}, {i*8192}, v{t}")
            a(f"buffer_store_dwordx4 v[40:43], v{t+2}, {WS}, s{S_T0} offen")
            a("s_waitcnt vmcnt(0)")
        a("s_branch L_FIN")
    if debug_stage == 9:
        a("s_branch L_FIN")
    if debug_stage not in (1, 9):
        phase2(a, debug_stage, ts, exp, save_exec, rest_exec)
        phase3(a, debug_stage, ts, exp, save_exec, rest_exec)
    a.lab("L_FIN")
    if 'dbg' in exp:
        a("s_waitcnt vmcnt(0) lgkmcnt(0)")
        a("s_memrealtime s[100:101]")
        a("s_waitcnt lgkmcnt(0)")
        a("s_cmp_ge_u32 s2, 8")
        a("s_cbranch_scc1 L_END")
        a(f"s_cmp_lg_u32 s{S_WID}, 7")
        a("s_cbranch_scc1 L_END")
        a(f"s_mov_b32 s{S_X}, s6")
        a(f"s_mov_b32 s{S_X+1}, s7")
        a(f"s_mov_b32 s{S_X+2}, 256")
        a(f"s_mov_b32 s{S_X+3}, 0x00020000")
        a("s_mov_b64 exec, 1")
        a("s_lshl_b32 s3, s2, 3")
        a("v_mov_b32 v2, s3")
        a("v_mov_b32 v4, s96")
        a("v_mov_b32 v5, s100")
        a(f"buffer_store_dwordx2 v[4:5], v2, s[{S_X}:{S_X+3}], 0 offen")
        a("s_waitcnt vmcnt(0)")
        a("s_branch L_END")
    if timing:
        a("s_waitcnt vmcnt(0) lgkmcnt(0)")
        a("s_memtime s[94:95]")
        a("s_waitcnt lgkmcnt(0)")
        a(f"s_lshl_b32 s{S_T0}, s2, 3")
        a(f"s_add_u32 s{S_T0}, s{S_T0}, s{S_WID}")
        a(f"s_lshl_b32 s{S_T0}, s{S_T0}, 6")
        a(f"s_add_u32 s{S_T0}, s{S_T0}, {TIMING_OFF}")
        for i in range(13):
            a(f"s_sub_u32 s{S_T1}, s{70+2*i}, s70" if i else f"s_mov_b32 s{S_T1}, s70")
            a(f"s_cmp_eq_u32 s{70+2*i}, 0")
            a(f"s_cselect_b32 s{S_T1}, 0, s{S_T1}")
            a(f"v_mov_b32 v{40+i}, s{S_T1}")
        a(f"v_mov_b32 v2, 0")
        a(f"s_mov_b64 exec, 1")
        for i in range(3):
            a(f"buffer_store_dwordx4 v[{40+4*i}:{43+4*i}], v2, {WS}, s{S_T0} offen offset:{16*i}")
        a(f"buffer_store_dword v52, v2, {WS}, s{S_T0} offen offset:48")
        a("s_waitcnt vmcnt(0)")
    a.lab("L_END")
    a("s_endpgm")
    a(f""".section .rodata,"a"
.p2align 6
.amdhsa_kernel {NAME}_kernel
  .amdhsa_next_free_vgpr 256
  .amdhsa_next_free_sgpr 102
  .amdhsa_accum_offset 256
  .amdhsa_group_segment_fixed_size 0
  .amdhsa_kernarg_size 72
  .amdhsa_user_sgpr_count 2
  .amdhsa_user_sgpr_kernarg_segment_ptr 1
  .amdhsa_system_sgpr_workgroup_id_x 1
.end_amdhsa_kernel""")
    return a.text()

WS = f"s[{S_WS}:{S_WS+3}]"

def spin_poll(a, name, check_lines, load_line, limit=2000000, first_done=False):
    a(f"s_mov_b32 s{S_CNT}, 0")
    if first_done: a(f"s_branch {name}_W")
    a.lab(name)
    a(load_line)
    a.lab(name + "_W")
    a(f"s_add_u32 s{S_CNT}, s{S_CNT}, 1")
    a("s_waitcnt vmcnt(0)")
    for l in check_lines: a(l)
    a(f"s_cbranch_scc1 {name}_OK")
    a(f"s_cmp_lt_u32 s{S_CNT}, {limit}")
    a(f"s_cbranch_scc1 {name}")
    a.lab(name + "_OK")

def lds_inc(a, addr, save_exec, rest_exec, rtn=None):
    t = T
    a(f"v_mov_b32 v{t}, {addr}")
    a(f"v_mov_b32 v{t+1}, 1")
    save_exec(1)
    if rtn is None: a(f"ds_add_u32 v{t}, v{t+1}")
    else: a(f"ds_add_rtn_u32 v{rtn}, v{t}, v{t+1}")
    rest_exec()

def lds_wait(a, name, addr, val):
    t = T
    a(f"v_mov_b32 v{t}, {addr}")
    a(f"s_mov_b32 s{S_CNT}, 0")
    a.lab(name)
    a(f"ds_read_b32 v{t+1}, v{t}")
    a(f"s_add_u32 s{S_CNT}, s{S_CNT}, 1")
    a("s_waitcnt lgkmcnt(0)")
    a(f"v_readfirstlane_b32 s{S_T0}, v{t+1}")
    a(f"s_cmp_ge_u32 s{S_T0}, {val}")
    a(f"s_cbranch_scc1 {name}_OK")
    a(f"s_cmp_lt_u32 s{S_CNT}, 20000000")
    a(f"s_cbranch_scc1 {name}")
    a.lab(name + "_OK")

def hook_point(a, tag):
    a(f"s_add_u32 s{S_U}, s{S_U}, 1")
    a(f"s_cmp_lg_u32 s{S_U}, s{S_HOOK}")
    a(f"s_cbranch_scc1 {tag}")
    a(f"s_call_b64 s[{S_RET2}:{S_RET2+1}], L_HOOK")
    a.lab(tag)

def run_code(a, name, QM, QR, O, exp):
    cnt = [0]
    def qk1(creg):
        c = "0" if creg is None else f"v[{creg}:{creg+15}]"
        a(f"v_mfma_f32_32x32x16_bf16 v[{VS}:{VS+15}], v[{VKF}:{VKF+3}], v[{QM}:{QM+3}], {c}")
    def qk2():
        a(f"v_mfma_f32_32x32x16_bf16 v[{VS}:{VS+15}], v[{VKR}:{VKR+3}], v[{QR}:{QR+3}], v[{VS}:{VS+15}]")
    def pv(V, P):
        a(f"v_mfma_f32_32x32x16_bf16 v[{O}:{O+15}], v[{V}:{V+3}], v[{P}:{P+3}], v[{O}:{O+15}]")
    def kread():
        a(f"ds_read_b128 v[{VKF}:{VKF+3}], v{A_K}")
        a(f"ds_read_b64 v[{VKR}:{VKR+1}], v{A_KR}")
    def kstep():
        a(f"v_add_u32 v{A_K}, v{ST_K}, v{A_K}")
        a(f"v_add_u32 v{A_KR}, v{ST_K}, v{A_KR}")
    def vread(V, off):
        a(f"ds_read_b64_tr_b16 v[{V}:{V+1}], v{A_V} offset:{off}")
        a(f"ds_read_b64_tr_b16 v[{V+2}:{V+3}], v{A_V} offset:{off+576}")
    def cvt(j): a(f"v_cvt_pk_bf16_f32 v{VP+j}, v{VE+2*j}, v{VE+2*j+1}")
    def ex(r): a(f"v_exp_f32 v{VE+r}, v{VS+r}")
    def unit(D):
        for r in range(8): ex(r)
        for j in range(4): cvt(j)
        ex(8); ex(9)
        a("s_waitcnt lgkmcnt(0)")
        pv(VVA, VP)
        for r in range(10, 16): ex(r)
        if D:
            qk1(V_MASK if D == "mask" else None)
            for j in range(4, 8): cvt(j)
            vread(VVA, 0)
            qk2()
            kstep()
            kread()
            pv(VVB, VP+4)
            vread(VVB, 1152)
            a(f"v_add_u32 v{A_V}, v{ST_V}, v{A_V}")
        else:
            a("s_nop 0")
            for j in range(4, 8): cvt(j)
            a("s_nop 1")
            pv(VVB, VP+4)
    a.lab(name)
    kread()
    a(f"s_cmp_eq_u32 s{S_N}, 1")
    a(f"s_cbranch_scc1 {name}_M1")
    kstep()
    a("s_waitcnt lgkmcnt(0)")
    qk1(None); qk2()
    vread(VVA, 0); kread(); vread(VVB, 1152)
    a(f"v_add_u32 v{A_V}, v{ST_V}, v{A_V}")
    a(f"s_sub_u32 s{S_N}, s{S_N}, 2")
    a.lab(name + "_BT")
    a(f"s_cmp_eq_u32 s{S_N}, 0")
    a(f"s_cbranch_scc1 {name}_MK0")
    a(f"s_sub_u32 s{S_E}, s{S_HOOK}, s{S_U}")
    a(f"s_min_u32 s{S_E}, s{S_E}, s{S_N}")
    a(f"s_sub_u32 s{S_N}, s{S_N}, s{S_E}")
    a(f"s_add_u32 s{S_U}, s{S_U}, s{S_E}")
    a(f"s_sub_u32 s{S_E}, s{S_E}, 1")
    a.lab(name + "_LP")
    unit("plain")
    a(f"s_sub_u32 s{S_E}, s{S_E}, 1")
    a("s_nop 1")
    a(f"s_cbranch_scc0 {name}_LP")
    a(f"s_cmp_lg_u32 s{S_U}, s{S_HOOK}")
    a(f"s_cbranch_scc1 {name}_BT")
    a(f"s_call_b64 s[{S_RET2}:{S_RET2+1}], L_HOOK")
    a(f"s_branch {name}_BT")
    a.lab(name + "_MK0")
    a("s_nop 3")
    a.lab(name + "_MK")
    unit("mask")
    hook_point(a, f"{name}_H1")
    a("s_nop 1")
    a.lab(name + "_FN")
    unit(None)
    hook_point(a, f"{name}_H2")
    a(f"s_setpc_b64 s[{S_RET}:{S_RET+1}]")
    a.lab(name + "_M1")
    a("s_waitcnt lgkmcnt(0)")
    qk1(V_MASK); qk2()
    vread(VVA, 0); vread(VVB, 1152)
    a("s_nop 7")
    a(f"s_branch {name}_FN")

def set_run(a, region, tile_sreg, n_lines, step):
    a(f"s_mul_i32 s{S_T0}, s{tile_sreg}, {TILE}" if tile_sreg is not None else f"s_mov_b32 s{S_T0}, 0")
    a(f"s_add_u32 s{S_T0}, s{S_T0}, {region}")
    a(f"v_add_u32 v{A_K}, s{S_T0}, v{B_K}")
    a(f"v_add_u32 v{A_KR}, s{S_T0}, v{B_KR}")
    a(f"v_and_b32 v{A_V}, s{S_T0}, v{MK_V}")
    a(f"v_add_u32 v{A_V}, v{B_V}, v{A_V}")
    a(f"v_mov_b32 v{ST_K}, {step & 0xffffffff:#x}")
    a(f"v_and_b32 v{ST_V}, v{ST_K}, v{MK_V}")
    for l in n_lines: a(l)

def finalize(a, O, qb_sreg, save_exec, rest_exec):
    t = T; R = VS
    a(f"v_mov_b32 v{t}, 0x21800000")
    a(f"v_mov_b32 v{t+1}, 0x5d800000")
    a(f"v_cmp_nge_f32 vcc, v{O+12}, v{t}")
    a(f"s_or_b64 s[{S_BAD}:{S_BAD+1}], s[{S_BAD}:{S_BAD+1}], vcc")
    a(f"v_cmp_nle_f32 vcc, v{O+12}, v{t+1}")
    a(f"s_or_b64 s[{S_BAD}:{S_BAD+1}], s[{S_BAD}:{S_BAD+1}], vcc")
    a(f"v_rcp_f32 v{t+2}, v{O+12}")
    a(f"v_bfe_u32 v{t}, v{V_LANE}, 4, 1")
    a(f"v_mul_u32_u24 v{t}, {18*1024}, v{t}")
    for r in range(12): a(f"v_mul_f32 v{O+r}, v{O+r}, v{t+2}")
    a(f"v_cvt_pk_bf16_f32 v{R}, v{O}, v{O+1}")
    a(f"v_cvt_pk_bf16_f32 v{R+1}, v{O+2}, v{O+3}")
    a(f"v_cvt_pk_bf16_f32 v{R+2}, v{O+4}, v{O+5}")
    a(f"v_cvt_pk_bf16_f32 v{R+3}, v{O+6}, v{O+7}")
    a(f"v_cvt_pk_bf16_f32 v{R+4}, v{O+8}, v{O+9}")
    a(f"v_cvt_pk_bf16_f32 v{R+5}, v{O+10}, v{O+11}")
    a(f"v_permlane32_swap_b32 v{R}, v{R+2}")
    a(f"v_permlane32_swap_b32 v{R+1}, v{R+3}")
    a(f"v_and_b32 v{t+1}, 15, v{V_LANE}")
    a(f"v_lshl_add_u32 v{t}, v{t+1}, 4, v{t}")
    a(f"v_lshrrev_b32 v{t+1}, 5, v{V_LANE}")
    a(f"v_lshlrev_b32 v{t+1}, 8, v{t+1}")
    a(f"v_add_u32 v{t+1}, v{t}, v{t+1}")
    a(f"s_mul_i32 s{S_T0}, s{S_GRP}, 294912")
    a(f"s_add_u32 s{S_T0}, s{S_T0}, {WS_O}")
    a(f"s_mul_i32 s{S_T1}, s{qb_sreg}, {2*18*1024}")
    a(f"s_add_u32 s{S_T0}, s{S_T0}, s{S_T1}")
    a(f"s_lshl_b32 s{S_T1}, s{S_HP}, 10")
    a(f"s_lshl_b32 s{S_T2}, s{S_HEAD}, 9")
    a(f"s_add_u32 s{S_T1}, s{S_T1}, s{S_T2}")
    a(f"s_add_u32 s{S_T1}, s{S_T1}, s{S_T0}")
    a(f"buffer_store_dwordx4 v[{R}:{R+3}], v{t+1}, {WS}, s{S_T1} offen sc1")
    a(f"s_lshr_b32 s{S_T1}, s{S_HP}, 3")
    a(f"s_add_u32 s{S_T1}, s{S_T1}, 16")
    a(f"s_lshl_b32 s{S_T1}, s{S_T1}, 10")
    a(f"s_bfe_u32 s{S_T2}, s{S_HP}, 0x20001")
    a(f"s_lshl_b32 s{S_T2}, s{S_T2}, 8")
    a(f"s_add_u32 s{S_T1}, s{S_T1}, s{S_T2}")
    a(f"s_and_b32 s{S_T2}, s{S_HP}, 1")
    a(f"s_lshl_b32 s{S_T2}, s{S_T2}, 3")
    a(f"s_add_u32 s{S_T1}, s{S_T1}, s{S_T2}")
    a(f"s_lshl_b32 s{S_T2}, s{S_HEAD}, 2")
    a(f"s_add_u32 s{S_T1}, s{S_T1}, s{S_T2}")
    a(f"s_add_u32 s{S_T1}, s{S_T1}, s{S_T0}")
    a(f"s_cmp_eq_u32 s{S_HEAD}, 0")
    a(f"s_cselect_b64 vcc, -1, 0")
    a(f"v_cndmask_b32_e64 v{R+4}, v{R+5}, v{R+4}, vcc")
    a(f"s_mov_b64 s[{S_SAVE}:{S_SAVE+1}], exec")
    a(f"s_mov_b32 exec_hi, 0")
    a(f"buffer_store_dword v{R+4}, v{t}, {WS}, s{S_T1} offen sc1")
    rest_exec()

def phase2(a, debug_stage, ts, exp, save_exec, rest_exec):
    t = T; L = V_LANE
    a.c("======== phase 2 ========")
    a(f"v_readfirstlane_b32 s{S_TAGOUT}, v{V_TG}")
    a(f"v_readfirstlane_b32 s{S_TAGIN}, v{V_TG+1}")
    a(f"v_readfirstlane_b32 s{S_TAGO}, v{V_TG+2}")
    a(f"s_mov_b64 s[{S_BAD}:{S_BAD+1}], 0")
    for (QM, QR, sreg) in ((QA_M, QA_R, S_M), (QB_M, QB_R, S_MB)):
        a(f"s_mul_i32 s{S_T0}, s{sreg}, {QTILE}")
        a(f"s_add_u32 s{S_T0}, s{S_T0}, {Q_BASE}")
        a(f"v_add_u32 v{t+2}, s{S_T0}, v{B_K}")
        a(f"v_add_u32 v{t+3}, s{S_T0}, v{B_KR}")
        a(f"ds_read_b128 v[{QM}:{QM+3}], v{t+2}")
        a(f"ds_read_b64 v[{QR}:{QR+1}], v{t+3}")
    a(f"s_cmp_eq_u32 s{S_HEAD}, 0")
    a(f"s_cselect_b32 s{S_T0}, -1, 0")
    a(f"s_cselect_b32 s{S_T1}, 0, -1")
    a(f"v_cmp_gt_u32 vcc, 32, v{L}")
    a(f"v_mov_b32 v{t}, s{S_T0}")
    a(f"v_mov_b32 v{t+1}, s{S_T1}")
    a(f"v_cndmask_b32_e64 v{t}, 0, v{t}, vcc")
    a(f"v_cndmask_b32_e64 v{t+1}, 0, v{t+1}, vcc")
    a(f"v_mov_b32 v{VKR+2}, 0")
    a(f"v_mov_b32 v{VKR+3}, 0")
    for QR in (QA_R, QB_R):
        a(f"v_mov_b32 v{QR+2}, 0")
        a(f"v_mov_b32 v{QR+3}, 0")
    a("s_waitcnt lgkmcnt(0)")
    for QR in (QA_R, QB_R):
        a(f"v_and_b32 v{QR}, v{QR}, v{t}")
        a(f"v_and_b32 v{QR+1}, v{QR+1}, v{t+1}")
    lds_inc(a, CNTQ, save_exec, rest_exec)
    a(f"s_mov_b32 s{S_U}, 0")
    a(f"s_mov_b32 s{S_HST}, 0")
    a(f"s_mov_b32 s{S_HOOK}, {2 if 'hkB' in exp else 3}")
    a(f"s_cmp_ge_u32 s{S_WID}, 4")
    a(f"s_cbranch_scc1 L_HS")
    a(f"s_mov_b32 s{S_HST}, 7")
    a(f"s_add_u32 s{S_HOOK}, s{S_M}, 12")
    a.lab("L_HS")
    if 'noprio' not in exp:
        a(f"s_cmp_lt_u32 s{S_WID}, 4")
        a(f"s_cbranch_scc1 L_HS2")
        a("s_setprio 1")
        a.lab("L_HS2")
    ts(4)
    set_run(a, KV_OWN, None, [f"s_add_u32 s{S_N}, s{S_M}, 1"], TILE)
    a(f"s_call_b64 s[{S_RET}:{S_RET+1}], L_RUNA")
    set_run(a, KV_OWN, None, [f"s_sub_u32 s{S_N}, 8, s{S_M}"], TILE)
    a(f"s_call_b64 s[{S_RET}:{S_RET+1}], L_RUNB")
    ts(5)
    a(f"s_cmp_eq_u32 s{S_S}, 0")
    a("s_cbranch_scc1 L_FINAL0")
    a(f"v_mov_b32 v{t+2}, {NEG:#x}")
    for r in range(16): a(f"v_sub_f32 v{V_MASK+r}, v{t+2}, v{V_MASK+r}")
    lds_wait(a, "L_W1", CNT1, 4)
    if "tsh" not in exp: ts(7)
    a(f"s_mov_b32 s{S_T4}, 7")
    set_run(a, KV_HALO, S_T4, [f"s_add_u32 s{S_N}, s{S_M}, 1"], -TILE)
    a(f"s_call_b64 s[{S_RET}:{S_RET+1}], L_RUNB")
    a("s_nop 7")
    a("s_nop 3")
    finalize(a, OB, S_MB, save_exec, rest_exec)
    a(f"s_mov_b32 s{S_T4}, 7")
    set_run(a, KV_HALO, S_T4, [f"s_sub_u32 s{S_N}, 8, s{S_M}"], -TILE)
    a(f"s_call_b64 s[{S_RET}:{S_RET+1}], L_RUNA")
    a("s_branch L_FINALA")
    a.lab("L_FINAL0")
    a("s_nop 7")
    a("s_nop 3")
    finalize(a, OB, S_MB, save_exec, rest_exec)
    a.lab("L_FINALA")
    if "tsh" not in exp: ts(8)
    a("s_nop 7")
    a("s_nop 3")
    finalize(a, OA, S_M, save_exec, rest_exec)
    a("s_branch L_P3")

    a.lab("L_HOOK")
    for st in (0, 1, 4, 8, 5, 6):
        a(f"s_cmp_eq_u32 s{S_HST}, {st}")
        a(f"s_cbranch_scc1 L_HK{st}")
    a.lab("L_HKW2")
    if 'tsj' in exp: ts(10)
    a(f"s_mov_b32 s{S_HOOK}, 1000")
    lds_wait(a, "L_W2", CNT2, 4)
    if 'tsj' in exp: ts(11)
    a("s_branch L_HRET")
    def flag_store(add):
        a(f"s_lshl_b32 s{S_T0}, s{S_IDX}, 8")
        a(f"s_lshl_b32 s{S_T1}, s{S_L}, 2")
        a(f"s_add_u32 s{S_T0}, s{S_T0}, s{S_T1}")
        a(f"s_add_u32 s{S_T0}, s{S_T0}, {WS_FLAG+128}")
        a(f"s_add_u32 s{S_T1}, s{S_TAGOUT}, {add}")
        a(f"v_mov_b32 v{t}, 0")
        a(f"v_mov_b32 v{t+1}, s{S_T1}")
        save_exec(1)
        a(f"buffer_store_dword v{t+1}, v{t}, {WS}, s{S_T0} offen sc1")
        rest_exec()
    UF1, UP1, UC1, UW1, UC2, UW2 = 3, 5, 7, 9, 10, 12
    if 'hkA' in exp: UF1, UP1, UC1, UW1 = 3, 4, 6, 8
    if 'hkB' in exp: UF1, UP1, UC1, UW1 = 2, 4, 6, 9
    if 'hkC' in exp: UF1, UP1, UC1, UW1 = 3, 4, 6, 9
    def setnext(st, u):
        a(f"s_mov_b32 s{S_HST}, {st}")
        a(f"s_mov_b32 s{S_HOOK}, {u}")
    a.lab("L_HK0")
    if 'tsh' in exp: ts(2)
    setnext(1, UP1)
    a(f"s_cmp_eq_u32 s{S_S}, 7")
    a("s_cbranch_scc1 L_HRET")
    a("s_waitcnt vmcnt(0)")
    if 'tsh' in exp: ts(6)
    flag_store(0)
    a(f"s_mul_i32 s{S_T1}, s{S_IDX}, 36864")
    pub_stores(a, 0, VH+20)
    a("s_branch L_HRET")
    a.lab("L_HK1")
    setnext(4, UC1)
    a(f"s_cmp_eq_u32 s{S_S}, 0")
    a("s_cbranch_scc1 L_HRET")
    a(f"s_sub_u32 s{S_H1}, s{S_IDX}, 1")
    a(f"s_lshl_b32 s{S_H1}, s{S_H1}, 8")
    a(f"s_lshl_b32 s{S_T0}, s{S_L}, 2")
    a(f"s_add_u32 s{S_H1}, s{S_H1}, s{S_T0}")
    a(f"s_add_u32 s{S_H1}, s{S_H1}, {WS_FLAG+128}")
    a(f"v_mov_b32 v{t}, 0")
    a(f"buffer_load_dword v{V_TG}, v{t}, {WS}, s{S_H1} offen sc1")
    a("s_branch L_HRET")
    a.lab("L_HK4")
    if 'tsh' in exp: ts(11)
    setnext(8, UW1)
    a("s_waitcnt vmcnt(0)")
    if 'tsh' in exp: ts(9)
    a(f"s_cmp_eq_u32 s{S_S}, 7")
    a("s_cbranch_scc1 L_HK4B")
    flag_store(1)
    a(f"s_cmp_eq_u32 s{S_S}, 0")
    a("s_cbranch_scc0 L_HK4B")
    a(f"s_mov_b32 s{S_HOOK}, 1000")
    a("s_setprio 0")
    a("s_branch L_HRET")
    a.lab("L_HK4B")
    a(f"v_readfirstlane_b32 s{S_T0}, v{V_TG}")
    a(f"s_sub_u32 s{S_T0}, s{S_T0}, s{S_TAGIN}")
    a(f"s_cmp_lt_u32 s{S_T0}, 2")
    a("s_cbranch_scc1 L_POLL1A_OK")
    a(f"v_mov_b32 v{t}, 0")
    spin_poll(a, "L_POLL1A",
              [f"v_readfirstlane_b32 s{S_T0}, v{V_TG}", f"s_sub_u32 s{S_T0}, s{S_T0}, s{S_TAGIN}", f"s_cmp_lt_u32 s{S_T0}, 2"],
              f"buffer_load_dword v{V_TG}, v{t}, {WS}, s{S_H1} offen sc1")
    if 'tsh' in exp: ts(1)
    a(f"v_add_u32 v{V_PA+1}, {KV_HALO}, v{V_PA}")
    halo_loads(a, 18432, VH)
    a(f"v_mov_b32 v{t}, 0")
    a(f"buffer_load_dword v{V_TG}, v{t}, {WS}, s{S_H1} offen sc1")
    a("s_branch L_HRET")
    a.lab("L_HK8")
    if 'tsh' in exp: ts(7)
    setnext(5, UC2)
    a("s_waitcnt vmcnt(1)")
    if 'tsh' in exp: ts(8)
    for i in range(4):
        a(f"ds_write_b128 v{V_PA+1}, v[{VH+4*i}:{VH+4*i+3}] offset:{18432+i*4096}")
    a(f"v_add_u32 v{t}, s{S_H0}, v{V_PA+1}")
    a(f"ds_write_b128 v{t}, v[{VH+16}:{VH+19}] offset:18432")
    a("s_waitcnt lgkmcnt(0)")
    lds_inc(a, CNT1, save_exec, rest_exec)
    if 'p9' in exp: a("s_setprio 0")
    a("s_branch L_HRET")
    a.lab("L_HK5")
    if 'tsj' in exp: ts(1)
    setnext(6, UW2)
    a("s_waitcnt vmcnt(0)")
    a(f"s_add_u32 s{S_T3}, s{S_TAGIN}, 1")
    a(f"v_readfirstlane_b32 s{S_T0}, v{V_TG}")
    a(f"s_cmp_eq_u32 s{S_T0}, s{S_T3}")
    a("s_cbranch_scc1 L_POLL1B_OK")
    a(f"v_mov_b32 v{t}, 0")
    spin_poll(a, "L_POLL1B",
              [f"v_readfirstlane_b32 s{S_T0}, v{V_TG}", f"s_cmp_eq_u32 s{S_T0}, s{S_T3}"],
              f"buffer_load_dword v{V_TG}, v{t}, {WS}, s{S_H1} offen sc1")
    if 'tsj' in exp: ts(2)
    halo_loads(a, 0, VH+20)
    a("s_branch L_HRET")
    a.lab("L_HK6")
    if 'tsj' in exp: ts(6)
    a(f"s_mov_b32 s{S_HST}, 7")
    a(f"s_add_u32 s{S_HOOK}, s{S_M}, 12")
    a(f"s_cmp_le_u32 s{S_M}, 1")
    a("s_cbranch_scc1 L_HK6A")
    a("s_waitcnt vmcnt(0)")
    a("s_branch L_HK6B")
    a.lab("L_HK6A")
    a("s_waitcnt vmcnt(2)")
    a.lab("L_HK6B")
    if 'tsj' in exp: ts(9)
    lds_wait(a, "L_WQ", CNTQ, 8)
    for i in range(4):
        a(f"ds_write_b128 v{V_PA+1}, v[{VH+20+4*i}:{VH+20+4*i+3}] offset:{i*4096}")
    a(f"v_add_u32 v{t}, s{S_H0}, v{V_PA+1}")
    a(f"ds_write_b128 v{t}, v[{VH+36}:{VH+39}]")
    a("s_waitcnt lgkmcnt(0)")
    lds_inc(a, CNT2, save_exec, rest_exec)
    a("s_setprio 0")
    a(f"s_cmp_lg_u32 s{S_WID}, 4")
    a("s_cbranch_scc1 L_HK6C")
    a(f"s_sub_u32 s{S_T0}, s{S_IDX}, 1")
    a(f"s_lshl_b32 s{S_T0}, s{S_T0}, 8")
    a(f"s_add_u32 s{S_T0}, s{S_T0}, {WS_FLAG}")
    a(f"v_mov_b32 v{t}, 0")
    a(f"v_mov_b32 v{t+1}, s{S_TAGIN}")
    save_exec(1)
    a(f"buffer_store_dword v{t+1}, v{t}, {WS}, s{S_T0} offen sc1")
    rest_exec()
    a.lab("L_HK6C")
    a(f"s_cmp_eq_u32 s{S_M}, 0")
    a("s_cbranch_scc1 L_HKW2")
    a.lab("L_HRET")
    a(f"s_setpc_b64 s[{S_RET2}:{S_RET2+1}]")
    run_code(a, "L_RUNA", QA_M, QA_R, OA, exp)
    run_code(a, "L_RUNB", QB_M, QB_R, OB, exp)

def pub_stores(a, stage_off, base):
    a(f"s_add_u32 s{S_T2}, s{S_T1}, {stage_off}")
    a(f"buffer_store_dwordx4 v[{base}:{base+3}], v{V_PA}, {WS}, s{S_T2} offen sc1")
    for i in range(1, 4):
        a(f"s_add_u32 s{S_T3}, s{S_T2}, {i*4096}")
        a(f"buffer_store_dwordx4 v[{base+4*i}:{base+4*i+3}], v{V_PA}, {WS}, s{S_T3} offen sc1")
    a(f"buffer_store_dwordx4 v[{base+16}:{base+19}], v{V_PA+2}, {WS}, s{S_T2} offen sc1")

def halo_loads(a, stage_off, base):
    t = T
    a(f"s_sub_u32 s{S_T0}, s{S_IDX}, 1")
    a(f"s_mul_i32 s{S_T0}, s{S_T0}, 36864")
    a(f"s_add_u32 s{S_T0}, s{S_T0}, {stage_off}")
    for i in range(4):
        a(f"s_add_u32 s{S_T1}, s{S_T0}, {i*4096}")
        a(f"buffer_load_dwordx4 v[{base+4*i}:{base+4*i+3}], v{V_PA}, {WS}, s{S_T1} offen sc1")
    a(f"s_add_u32 s{S_T1}, s{S_T0}, s{S_H0}")
    a(f"buffer_load_dwordx4 v[{base+16}:{base+19}], v{V_PA}, {WS}, s{S_T1} offen sc1")

def phase3(a, debug_stage, ts, exp, save_exec, rest_exec):
    t = T; L = V_LANE
    a.lab("L_P3")
    a.c("======== phase 3 ========")
    a("s_waitcnt vmcnt(0)")
    if "tsh" not in exp and "tsj" not in exp: ts(9)
    a(f"s_lshl_b32 s{S_T4}, s{S_GRP}, 8")
    a(f"s_add_u32 s{S_T4}, s{S_T4}, {WS_OF}")
    lds_inc(a, CNTO, save_exec, rest_exec, rtn=t+2)
    a("s_waitcnt lgkmcnt(0)")
    a(f"v_readfirstlane_b32 s{S_T0}, v{t+2}")
    a(f"s_cmp_lg_u32 s{S_T0}, 7")
    a("s_cbranch_scc1 L_P3W")
    a(f"s_lshl_b32 s{S_T0}, s{S_HP}, 2")
    a(f"s_add_u32 s{S_T0}, s{S_T0}, s{S_T4}")
    a(f"v_mov_b32 v{t}, 0")
    a(f"v_mov_b32 v{t+1}, s{S_TAGO}")
    save_exec(1)
    a(f"buffer_store_dword v{t+1}, v{t}, {WS}, s{S_T0} offen offset:128 sc1")
    rest_exec()
    a.lab("L_P3W")
    OF = 36; AC = 108; WF0, WF1 = 148, 168; AW, AW2 = 10, 11
    a(f"s_mul_i32 s{S_T0}, s{S_GRP}, 294912")
    a(f"s_add_u32 s{S_T0}, s{S_T0}, {WS_O}")
    a(f"s_lshr_b32 s{S_T1}, s{S_HP}, 3")
    a(f"s_lshl_b32 s{S_T1}, s{S_T1}, 3")
    a(f"s_lshl_b32 s{S_T2}, s{S_M}, 1")
    a(f"s_add_u32 s{S_T1}, s{S_T1}, s{S_T2}")
    a(f"s_mul_i32 s{S_T1}, s{S_T1}, 18")
    a(f"s_mul_i32 s{S_T2}, s{S_HEAD}, 9")
    a(f"s_add_u32 s{S_T1}, s{S_T1}, s{S_T2}")
    a(f"s_lshl_b32 s{S_T1}, s{S_T1}, 10")
    a(f"s_add_u32 s{S_T0}, s{S_T0}, s{S_T1}")
    a(f"s_add_u32 s{S_T1}, s{S_T0}, {18*1024}")
    a(f"v_lshrrev_b32 v{t+1}, 4, v{L}")
    a(f"v_bfe_u32 v{t+2}, v{L}, 2, 2")
    a(f"v_and_b32 v{t+3}, 3, v{L}")
    a(f"v_lshrrev_b32 v{t+4}, 1, v{t+1}")
    a(f"v_lshlrev_b32 v{t+4}, 2, v{t+4}")
    a(f"v_lshl_add_u32 v{t+4}, v{t+1}, 3, v{t+4}")
    a(f"v_add_u32 v{t+4}, v{t+4}, v{t+2}")
    a(f"v_mul_u32_u24 v{t+4}, 144, v{t+4}")
    a(f"v_lshl_add_u32 v{t+4}, v{t+3}, 3, v{t+4}")
    a(f"s_mul_i32 s{S_T2}, s{S_HEAD}, {9*5184}")
    a(f"v_add_u32 v{AW}, s{S_T2}, v{t+4}")
    a(f"v_mul_u32_u24 v{t+4}, 72, v{t+1}")
    a(f"v_add3_u32 v{t+4}, v{t+4}, v{t+2}, 16")
    a(f"v_mul_u32_u24 v{t+4}, 144, v{t+4}")
    a(f"v_lshl_add_u32 v{AW2}, v{t+3}, 3, v{t+4}")
    for i in range(40): a(f"v_mov_b32 v{AC+i}, 0")
    a(f"v_lshlrev_b32 v{t}, 4, v{L}")
    def wreads(ks, kh, WF):
        l = []
        kap = 9*kh + ks
        for Tn in range(5):
            b = WF + 4*Tn
            if kap < 16:
                o0 = ks*5184 + Tn*32
                l.append(f"ds_read_b64_tr_b16 v[{b}:{b+1}], v{AW} offset:{o0}")
                l.append(f"ds_read_b64_tr_b16 v[{b+2}:{b+3}], v{AW} offset:{o0+576}")
            else:
                o0 = (kap-16)*8*36*144 + Tn*32
                l.append(f"ds_read_b64_tr_b16 v[{b}:{b+1}], v{AW2} offset:{o0}")
                l.append(f"ds_read_b64_tr_b16 v[{b+2}:{b+3}], v{AW2} offset:{o0+36*144}")
        return l
    save_exec("0xffff")
    a(f"v_lshlrev_b32 v{t+2}, 2, v{L}")
    spin_poll(a, "L_POLL2",
              [f"v_cmp_ne_u32 vcc, s{S_TAGO}, v{t+1}", "s_nop 1", f"s_cmp_eq_u64 vcc, 0"],
              f"buffer_load_dword v{t+1}, v{t+2}, {WS}, s{S_T4} offen offset:128 sc1")
    a(f"s_cmp_lg_u32 s{S_HP}, 0")
    a("s_cbranch_scc1 L_NOG2")
    a(f"s_cmp_lg_u32 s{S_WID}, 0")
    a("s_cbranch_scc1 L_NOG2")
    a(f"s_mov_b64 exec, 1")
    a(f"v_mov_b32 v{t+2}, 0")
    a(f"v_mov_b32 v{t+1}, s{S_TAGO}")
    a(f"buffer_store_dword v{t+1}, v{t+2}, {WS}, s{S_T4} offen sc1")
    a.lab("L_NOG2")
    rest_exec()
    if 'tsx' not in exp and 'tsh' not in exp and 'tsj' not in exp: ts(10)
    if debug_stage == 2:
        a("s_branch L_FIN")
        return
    for ks in range(9):
        for mt in range(2):
            r = OF + (mt*9+ks)*4
            a(f"buffer_load_dwordx4 v[{r}:{r+3}], v{t}, {WS}, s{S_T0 if mt == 0 else S_T1} offen sc1")
        a(f"s_add_u32 s{S_T0}, s{S_T0}, 1024")
        a(f"s_add_u32 s{S_T1}, s{S_T1}, 1024")
    def body(kh):
        for rd in wreads(0, kh, WF0): a(rd)
        for ks in range(9):
            cur = WF0 if ks % 2 == 0 else WF1
            nxt = WF1 if ks % 2 == 0 else WF0
            a(f"s_waitcnt vmcnt({2*(8-ks)}) lgkmcnt(0)")
            rs = wreads(ks+1, kh, nxt) if ks < 8 else []
            ri = 0
            for Tn in range(5):
                for mt in range(2):
                    d = AC + (mt*5+Tn)*4
                    o = OF + (mt*9+ks)*4
                    a(f"v_mfma_f32_16x16x32_bf16 v[{d}:{d+3}], v[{cur+4*Tn}:{cur+4*Tn+3}], v[{o}:{o+3}], v[{d}:{d+3}]")
                    if ri < len(rs): a(rs[ri]); ri += 1
    a(f"s_cmp_eq_u32 s{S_HEAD}, 0")
    a("s_cbranch_scc0 L_P3K1")
    body(0)
    a("s_branch L_P3R")
    a.lab("L_P3K1")
    body(1)
    a.lab("L_P3R")
    if "tsh" not in exp and "tsj" not in exp: ts(11)
    a(f"v_lshlrev_b32 v{t}, 4, v{L}")
    a(f"s_mul_i32 s{S_T0}, s{S_WID}, 5120")
    a(f"s_add_u32 s{S_T0}, s{S_T0}, {KV_OWN}")
    a(f"v_add_u32 v{t+1}, s{S_T0}, v{t}")
    a(f"s_xor_b32 s{S_T1}, s{S_WID}, 4")
    a(f"s_mul_i32 s{S_T1}, s{S_T1}, 5120")
    a(f"s_add_u32 s{S_T1}, s{S_T1}, {KV_OWN}")
    a(f"v_add_u32 v{t+2}, s{S_T1}, v{t}")
    a(f"s_cmp_eq_u32 s{S_HEAD}, 0")
    a("s_cbranch_scc0 L_P3X1")
    for Tn in range(5): a(f"ds_write_b128 v{t+1}, v[{AC+(5+Tn)*4}:{AC+(5+Tn)*4+3}] offset:{Tn*1024}")
    a("s_branch L_P3X2")
    a.lab("L_P3X1")
    for Tn in range(5): a(f"ds_write_b128 v{t+1}, v[{AC+Tn*4}:{AC+Tn*4+3}] offset:{Tn*1024}")
    a("s_nop 1")
    for i in range(20): a(f"v_mov_b32 v{AC+i}, v{AC+20+i}")
    a.lab("L_P3X2")
    a(f"s_lshr_b32 s{S_T1}, s{S_HP}, 3")
    a(f"s_lshl_b32 s{S_T1}, s{S_T1}, 7")
    a(f"s_lshl_b32 s{S_T2}, s{S_S}, 8")
    a(f"s_add_u32 s{S_T1}, s{S_T1}, s{S_T2}")
    a(f"s_lshl_b32 s{S_T2}, s{S_M}, 5")
    a(f"s_add_u32 s{S_T1}, s{S_T1}, s{S_T2}")
    a(f"s_lshl_b32 s{S_T2}, s{S_HEAD}, 4")
    a(f"s_add_u32 s{S_T1}, s{S_T1}, s{S_T2}")
    a(f"s_mul_i32 s{S_T1}, s{S_T1}, 2304")
    a(f"s_mul_i32 s{S_T2}, s{S_B}, 1152")
    a(f"s_add_u32 s{S_T1}, s{S_T1}, s{S_T2}")
    a(f"s_and_b32 s{S_T2}, s{S_HP}, 7")
    a(f"s_mul_i32 s{S_T2}, s{S_T2}, 144")
    a(f"s_add_u32 s{S_T1}, s{S_T1}, s{S_T2}")
    PX = WF0
    for i in range(3):
        a(f"v_add_u32 v{t+3}, {i*64}, v{L}")
        a(f"v_mul_u32_u24 v{t+4}, 7282, v{t+3}")
        a(f"v_lshrrev_b32 v{t+4}, 16, v{t+4}")
        a(f"v_mul_u32_u24 v{t+5}, 9, v{t+4}")
        a(f"v_sub_u32 v{t+5}, v{t+3}, v{t+5}")
        a(f"v_mul_u32_u24 v{t+4}, 2304, v{t+4}")
        a(f"v_lshl_add_u32 v{PX+20+i}, v{t+5}, 4, v{t+4}")
    a(f"v_and_b32 v{t+3}, 15, v{L}")
    a(f"v_mul_u32_u24 v{t+3}, 144, v{t+3}")
    a(f"v_lshrrev_b32 v{t+4}, 4, v{L}")
    a(f"v_lshl_add_u32 v{t+3}, v{t+4}, 3, v{t+3}")
    a(f"s_mul_i32 s{S_T0}, s{S_WID}, 2304")
    a(f"s_add_u32 s{S_T0}, s{S_T0}, {KV_HALO+8192}")
    a(f"v_add_u32 v{t+3}, s{S_T0}, v{t+3}")
    a(f"v_lshlrev_b32 v{t+4}, 4, v{L}")
    a(f"v_add_u32 v{t+4}, s{S_T0}, v{t+4}")
    a("s_waitcnt lgkmcnt(0)")
    a("s_barrier")
    for Tn in range(5): a(f"ds_read_b128 v[{PX+4*Tn}:{PX+4*Tn+3}], v{t+2} offset:{Tn*1024}")
    a("s_waitcnt lgkmcnt(0)")
    for i in range(20): a(f"v_add_f32 v{AC+i}, v{AC+i}, v{PX+i}")
    for Tn in range(5):
        a(f"v_cvt_pk_bf16_f32 v{PX+2*Tn}, v{AC+4*Tn}, v{AC+4*Tn+1}")
        a(f"v_cvt_pk_bf16_f32 v{PX+2*Tn+1}, v{AC+4*Tn+2}, v{AC+4*Tn+3}")
    for Tn in range(4): a(f"ds_write_b64 v{t+3}, v[{PX+2*Tn}:{PX+2*Tn+1}] offset:{Tn*32}")
    a(f"s_mov_b64 s[{S_SAVE}:{S_SAVE+1}], exec")
    a(f"s_mov_b32 exec_hi, 0")
    a(f"ds_write_b64 v{t+3}, v[{PX+8}:{PX+9}] offset:128")
    rest_exec()
    a("s_waitcnt lgkmcnt(0)")
    for i in range(3):
        a(f"ds_read_b128 v[{AC+4*i}:{AC+4*i+3}], v{t+4} offset:{i*1024}")
    a("s_waitcnt lgkmcnt(0)")
    for i in range(3):
        if i == 2: a(f"s_mov_b64 exec, 0xffff")
        a(f"buffer_store_dwordx4 v[{AC+4*i}:{AC+4*i+3}], v{PX+20+i}, s[{S_OUT}:{S_OUT+3}], s{S_T1} offen")
    a(f"s_mov_b64 exec, -1")

def run_code_x(a, name, QM, QR, O, exp):
    VE2, VP2, KF, KR, VA, VB = 100, 116, 124, 128, 132, 136
    def qk1(c="0"):
        if 'nomfma' not in exp: a(f"v_mfma_f32_32x32x16_bf16 v[{VS}:{VS+15}], v[{KF}:{KF+3}], v[{QM}:{QM+3}], {c}")
    def qk2():
        if 'nomfma' not in exp: a(f"v_mfma_f32_32x32x16_bf16 v[{VS}:{VS+15}], v[{KR}:{KR+3}], v[{QR}:{QR+3}], v[{VS}:{VS+15}]")
    def pv(V, P):
        if 'nomfma' not in exp: a(f"v_mfma_f32_32x32x16_bf16 v[{O}:{O+15}], v[{V}:{V+3}], v[{(220 if 'nopdep' in exp else P)}:{(220 if 'nopdep' in exp else P)+3}], v[{O}:{O+15}]")
    def kread():
        if 'nolds' in exp or 'nok' in exp: return
        a(f"ds_read_b128 v[{KF}:{KF+3}], v{A_K}")
        a(f"ds_read_b64 v[{KR}:{KR+1}], v{A_KR}")
    def vread(V, off):
        if 'nolds' in exp: return
        a(f"ds_read_b64_tr_b16 v[{V}:{V+1}], v{A_V} offset:{off}")
        a(f"ds_read_b64_tr_b16 v[{V+2}:{V+3}], v{A_V} offset:{off+576}")
    def cvt(j): a(f"v_cvt_pk_bf16_f32 v{VP2+j}, v{VE2+2*j}, v{VE2+2*j+1}")
    def ex(r): a(f"v_exp_f32 v{VE2+r}, v{(200 if 'nodep' in exp else VS)+r}")
    adds = [f"v_add_u32 v{A_K}, v{ST_K}, v{A_K}", f"v_add_u32 v{A_KR}, v{ST_K}, v{A_KR}", f"v_add_u32 v{A_V}, v{ST_V}, v{A_V}"]
    if 'noadd' in exp: adds = ["s_nop 0"]*3
    a.lab(name)
    kread(); a("s_waitcnt lgkmcnt(0)"); qk1(); qk2(); vread(VA, 0); vread(VB, 1152); kread(); a("s_nop 7")
    a.lab(name + "_LP")
    if 'v3' in exp:
        for r in range(16): ex(r)
        a("s_waitcnt lgkmcnt(0)")
        qk1()
        for j in range(6): cvt(j)
        pv(VA, VP2)
        cvt(6); cvt(7); a(adds[0]); a(adds[1])
        qk2()
        a(adds[2])
        pv(VB, VP2+4)
        vread(VA, 0); vread(VB, 1152); kread()
    elif 'v4' in exp:
        for r in range(8): ex(r)
        for j in range(4): cvt(j)
        ex(8); ex(9)
        a("s_waitcnt lgkmcnt(0)")
        pv(VA, VP2)
        for r in range(10, 16): ex(r)
        qk1()
        for j in range(4, 8): cvt(j)
        a(adds[0]); a(adds[1])
        qk2()
        vread(VA, 0); a(adds[2]); kread()
        pv(VB, VP2+4)
        vread(VB, 1152)
    elif 'v5' in exp:
        for r in range(8): ex(r)
        for j in range(4): cvt(j)
        ex(8); ex(9)
        a("s_waitcnt lgkmcnt(0)")
        pv(VA, VP2)
        for r in range(10, 16): ex(r)
        qk1()
        for j in range(4, 8): cvt(j)
        qk2()
        a(adds[0]); a(adds[1]); kread(); vread(VA, 0)
        pv(VB, VP2+4)
        a(adds[2]); vread(VB, 1152)
    a(f"s_sub_u32 s{S_N}, s{S_N}, 1")
    if 'v3' in exp: a("s_nop 1")
    a(f"s_cbranch_scc0 {name}_LP")
    a(f"s_setpc_b64 s[{S_RET}:{S_RET+1}]")

if __name__ == "__main__":
    import argparse
    p = argparse.ArgumentParser(); p.add_argument("--debug", type=int, default=0)
    p.add_argument("--timing", action="store_true"); p.add_argument("--exp", default=""); p.add_argument("-o", default="/dev/stdout")
    args = p.parse_args()
    open(args.o, "w").write(gen(args.debug, args.timing, args.exp))
```

```python
import sys, math, struct

NAME = "concat_heads__sliding_block__sliding_block__prompt"

STAGE   = 49152
WO_BASE = 0
KV_OWN  = 82944
KV_HALO = 119808
Q_BASE  = 119808
MISC    = 156672
TAGS_LDS = MISC + 2048
CNT2, CNT1, CNTQ, CNTO = TAGS_LDS+12, TAGS_LDS+16, TAGS_LDS+20, TAGS_LDS+24
LDS_TOTAL = 163840
TILE    = 4608
QTILE   = 2304
WS_KV   = 0
WS_O    = 256*36864
WS_FLAG = WS_O + 16*294912
WS_OF   = WS_FLAG + 65536
TIMING_OFF = 24<<20
TAG_INC = 0x9E3779B1
NEG     = 0xFF61B1E6
QSCALE  = (18.0 ** -0.5) * math.log2(math.e)
def f32bits(x): return struct.unpack("<I", struct.pack("<f", x))[0]

class Asm:
    def __init__(self): self.l = []
    def __call__(self, s=""):
        for line in s.split("\n"):
            self.l.append("  " + line.strip())
    def lab(self, n): self.l.append(n + ":")
    def c(self, s): self.l.append("  ; " + s)
    def text(self): return "\n".join(self.l) + "\n"

S_X, S_W, S_WO, S_WS, S_OUT = 8, 12, 16, 20, 24
S_B, S_S, S_HP, S_WID = 28, 29, 30, 31
S_T0, S_T1, S_T2, S_T3, S_T4, S_T5 = 32, 33, 34, 35, 36, 37
S_I = 38
S_L = 39
S_TAGIN, S_TAGOUT, S_TAGO = 40, 41, 42
S_K, S_C, S_SB, S_XB, S_WB = 43, 44, 45, 46, 47
S_LX, S_LW = 48, 49
S_N = 50
S_U = 51
S_RET = 52
S_IDX, S_GRP, S_HEAD, S_M = 54, 55, 56, 57
S_SAVE = 58
S_CNT = 60
S_HOOK = 61
S_BAD = 62
S_RET2 = 64
S_MB = 66
S_HST = 67
S_H0, S_H1 = 68, 69
S_E = 98

V_LANE = 1
T = 2
V_AX = 10
V_AW = 12
V_MASK = 20
V_SET0, V_SET1, V_ACC = 36, 80, 124
V_LDX, V_LDW = 36, 44
V_TG = 236
B_K, B_KR, B_V, MK_V = 240, 241, 242, 243
vEK, vEQ, vEV, vE6, vDr, vDt, vF, vC = 244, 245, 246, 247, 248, 249, 250, 252
V_TL = 254
QA_M, QA_R, QB_M, QB_R = 36, 40, 44, 48
OA, OB = 52, 68
VS, VE, VP = 84, 100, 116
VKF, VKR, VVA, VVB = 124, 128, 132, 136
A_K, A_KR, A_V, ST_V, ST_K = 10, 11, 12, 13, 14
VH = 140
V_WOV = 180
V_PA = 184

def emit_masks_(a):
    t = T; L = V_LANE
    a(f"v_and_b32 v{t}, 31, v{L}")
    a(f"v_lshrrev_b32 v{t+1}, 5, v{L}")
    a(f"v_lshlrev_b32 v{t+1}, 2, v{t+1}")
    a(f"v_sub_u32 v{t}, v{t}, v{t+1}")
    a(f"v_mov_b32 v{t+1}, {NEG:#x}")
    for r in range(16):
        jj = (r & 3) + 8*(r >> 2)
        a(f"v_cmp_le_i32 vcc, {jj}, v{t}")
        a("s_nop 1")
        a(f"v_cndmask_b32_e64 v{V_MASK+r}, v{t+1}, 0, vcc")
def emit_p2_patterns_(a):
    t = T; L = V_LANE
    a(f"v_and_b32 v{t}, 31, v{L}")
    a(f"v_lshrrev_b32 v{t+1}, 5, v{L}")
    a(f"v_lshrrev_b32 v{t+2}, 2, v{t}")
    a(f"v_lshrrev_b32 v{t+3}, 3, v{t}")
    a(f"v_xor_b32 v{t+2}, v{t+2}, v{t+3}")
    a(f"v_xor_b32 v{t+2}, v{t+2}, v{t+1}")
    a(f"v_and_b32 v{t+2}, 1, v{t+2}")
    a(f"v_lshlrev_b32 v{t+2}, 4, v{t+2}")
    a(f"v_lshl_add_u32 v{t+2}, v{t}, 5, v{t+2}")
    a(f"s_lshl_b32 s{S_T0}, s{S_HEAD}, 10")
    a(f"v_add_u32 v{B_K}, s{S_T0}, v{t+2}")
    a(f"v_lshlrev_b32 v{B_KR}, 3, v{t}")
    a(f"v_add_u32 v{B_KR}, 2048, v{B_KR}")
    a(f"v_bfe_u32 v{t+2}, v{L}, 2, 2")
    a(f"v_lshl_add_u32 v{t+2}, v{t+1}, 2, v{t+2}")
    a(f"v_mul_u32_u24 v{t+2}, 72, v{t+2}")
    a(f"v_add_u32 v{t+2}, 2304, v{t+2}")
    a(f"v_and_b32 v{t+3}, 3, v{L}")
    a(f"v_lshlrev_b32 v{t+4}, 3, v{t+3}")
    a(f"s_mul_i32 s{S_T0}, s{S_HEAD}, 40")
    a(f"v_add3_u32 v{t+4}, v{t+4}, v{t+2}, s{S_T0}")
    a(f"v_add_u32 v{t+5}, 32, v{t+2}")
    a(f"v_bfe_u32 v{t+6}, v{L}, 4, 1")
    a(f"v_cmp_eq_u32 vcc, 1, v{t+6}")
    a(f"v_lshrrev_b32 v{t+7}, 1, v{t+3}")
    a(f"v_and_b32 v{t+7}, v{t+7}, v{t+6}")
    a(f"v_cndmask_b32 v{B_V}, v{t+4}, v{t+5}, vcc")
    a(f"v_cmp_eq_u32 vcc, 1, v{t+7}")
    a(f"v_mov_b32 v{t+5}, {MISC}")
    a(f"v_mov_b32 v{t+6}, -1")
    a(f"v_cndmask_b32 v{B_V}, v{B_V}, v{t+5}, vcc")
    a(f"v_cndmask_b32_e64 v{MK_V}, v{t+6}, 0, vcc")


def gen(debug_stage=0, timing=False, exp=''):
    a = Asm()
    t = T; L = V_LANE
    def ts(i, force=False):
        if timing: a(f"s_memtime s[{70+2*i}:{71+2*i}]")
    WS = f"s[{S_WS}:{S_WS+3}]"
    def save_exec(val):
        a(f"s_mov_b64 s[{S_SAVE}:{S_SAVE+1}], exec")
        a(f"s_mov_b64 exec, {val}")
    def rest_exec():
        a(f"s_mov_b64 exec, s[{S_SAVE}:{S_SAVE+1}]")

    a.l += [f"; Kernarg layout (72 bytes): A_x, A_wqkv, A_wo, B_x, B_wqkv, B_wo, out, debug, ws",
            f"; @launch grid=(256,1,1) block=(512,1,1) lds={LDS_TOTAL}"]
    a(f""".amdgcn_target "amdgcn-amd-amdhsa--gfx950"
.text
.globl {NAME}_kernel
.p2align 8
.type {NAME}_kernel,@function""")
    a.lab(f"{NAME}_kernel")
    a("s_cmp_ge_u32 s2, 256")
    a("s_cbranch_scc1 L_END")
    a(f"s_and_b32 s3, s2, 7")
    a(f"s_lshr_b32 s{S_B}, s3, 2")
    a(f"s_mul_i32 s{S_T0}, s{S_B}, 24")
    a(f"s_add_u32 s4, s0, s{S_T0}")
    a(f"s_addc_u32 s5, s1, 0")
    a(f"s_load_dwordx2 s[{S_X}:{S_X+1}], s[4:5], 0")
    a(f"s_load_dwordx2 s[{S_W}:{S_W+1}], s[4:5], 8")
    a(f"s_load_dwordx2 s[{S_WO}:{S_WO+1}], s[4:5], 16")
    a(f"s_load_dwordx2 s[{S_OUT}:{S_OUT+1}], s[0:1], 48")
    a(f"s_load_dwordx2 s[{S_WS}:{S_WS+1}], s[0:1], 64")
    if timing:
        for i in range(13): a(f"s_mov_b32 s{70+2*i}, 0")
    if 'dbg' in exp:
        a("s_load_dwordx2 s[6:7], s[0:1], 56")
        a("s_memrealtime s[96:97]")
    ts(0)
    a(f"s_lshr_b32 s{S_I}, s2, 3")
    a(f"s_lshr_b32 s{S_T2}, s3, 1")
    a(f"s_and_b32 s{S_T2}, s{S_T2}, 1")
    a(f"s_lshl_b32 s{S_T2}, s{S_T2}, 2")
    a(f"s_and_b32 s{S_T3}, s{S_I}, 3")
    a(f"s_add_u32 s{S_S}, s{S_T2}, s{S_T3}")
    a(f"s_and_b32 s{S_T2}, s3, 1")
    a(f"s_lshl_b32 s{S_T2}, s{S_T2}, 3")
    a(f"s_lshr_b32 s{S_T4}, s{S_I}, 2")
    a(f"s_add_u32 s{S_HP}, s{S_T2}, s{S_T4}")
    a(f"s_lshl_b32 s{S_T3}, s{S_T3}, 1")
    a(f"s_add_u32 s{S_C}, s{S_T4}, s{S_T3}")
    a(f"s_cmp_ge_u32 s{S_C}, 9")
    a(f"s_cselect_b32 s{S_T3}, 9, 0")
    a(f"s_sub_u32 s{S_C}, s{S_C}, s{S_T3}")
    if 'norot' in exp: a(f"s_mov_b32 s{S_C}, 0")
    for key, mul in (('rot2', 2), ('rot3', 3)):
        if key in exp:
            a(f"s_lshr_b32 s{S_C}, s{S_T4}, 1")
            a(f"s_and_b32 s{S_T3}, s{S_I}, 3")
            a(f"s_add_u32 s{S_C}, s{S_C}, s{S_T3}")
            a(f"s_mul_i32 s{S_C}, s{S_C}, {mul}")
            for _ in range(2):
                a(f"s_cmp_ge_u32 s{S_C}, 9")
                a(f"s_cselect_b32 s{S_T3}, 9, 0")
                a(f"s_sub_u32 s{S_C}, s{S_C}, s{S_T3}")
    if 'rot4' in exp:
        a(f"s_lshr_b32 s{S_C}, s{S_T4}, 2")
        a(f"s_and_b32 s{S_T3}, s{S_I}, 3")
        a(f"s_lshr_b32 s{S_T3}, s{S_T3}, 1")
        a(f"s_add_u32 s{S_C}, s{S_C}, s{S_T3}")
        a(f"s_mul_i32 s{S_C}, s{S_C}, 3")
    a(f"s_lshl_b32 s{S_T0}, s{S_B}, 4")
    a(f"s_add_u32 s{S_T0}, s{S_T0}, s{S_HP}")
    a(f"s_lshl_b32 s{S_T0}, s{S_T0}, 3")
    a(f"s_add_u32 s{S_IDX}, s{S_T0}, s{S_S}")
    a(f"s_lshl_b32 s{S_T0}, s{S_B}, 3")
    a(f"s_add_u32 s{S_GRP}, s{S_T0}, s{S_S}")
    a(f"v_lshrrev_b32 v{t}, 6, v0")
    a(f"v_and_b32 v{L}, 63, v0")
    a(f"v_readfirstlane_b32 s{S_WID}, v{t}")
    for (r, n) in ((S_X, 2359296), (S_W, 1990656), (S_WO, 663552), (S_WS, 268435456), (S_OUT, 4718592)):
        a(f"s_mov_b32 s{r+2}, {n}")
        a(f"s_mov_b32 s{r+3}, 0x00020000")
    a(f"s_and_b32 s{S_M}, s{S_WID}, 3")
    a(f"s_lshr_b32 s{S_HEAD}, s{S_WID}, 2")
    a(f"s_sub_u32 s{S_MB}, 7, s{S_M}")
    a(f"s_cmp_lt_u32 s{S_WID}, 4")
    a("s_cbranch_scc1 L_COMPUTE")

    emit_masks = lambda: emit_masks_(a)
    emit_p2_patterns = lambda: emit_p2_patterns_(a)

    a(f"s_sub_u32 s{S_L}, s{S_WID}, 4")
    a(f"v_lshrrev_b32 v{t}, 3, v{L}")
    a(f"v_mul_u32_u24 v{t}, 1152, v{t}")
    a(f"v_lshrrev_b32 v{t+1}, 4, v{L}")
    a(f"v_and_b32 v{t+2}, 7, v{L}")
    a(f"v_xor_b32 v{t+3}, v{t+2}, v{t+1}")
    a(f"v_lshl_add_u32 v{V_AX}, v{t+3}, 4, v{t}")
    a(f"v_xor_b32 v{t+3}, 4, v{t+3}")
    a(f"v_lshl_add_u32 v{V_AX+1}, v{t+3}, 4, v{t}")
    a(f"s_mul_i32 s{S_T0}, s{S_HP}, 72")
    a(f"s_and_b32 s{S_T0}, s{S_T0}, 0xfffffff0")
    a(f"v_and_b32 v{t+2}, 15, v{L}")
    a(f"v_mul_u32_u24 v{t+4}, 3456, v{t+1}")
    a(f"v_add_u32 v{t+4}, s{S_T0}, v{t+4}")
    for var in range(2):
        a(f"v_lshlrev_b32 v{t+3}, 1, v{t+1}")
        a(f"v_sub_u32 v{t+3}, v{t+2}, v{t+3}")
        if var: a(f"v_subrev_u32 v{t+3}, 8, v{t+3}")
        a(f"v_and_b32 v{t+3}, 15, v{t+3}")
        a(f"v_min_u32 v{t+3}, 14, v{t+3}")
        a(f"v_mul_u32_u24 v{t+5}, 13, v{t+3}")
        a(f"v_lshrrev_b32 v{t+5}, 6, v{t+5}")
        a(f"v_mul_u32_u24 v{t+6}, 5, v{t+5}")
        a(f"v_sub_u32 v{t+6}, v{t+3}, v{t+6}")
        a(f"v_mul_u32_u24 v{t+5}, 1152, v{t+5}")
        a(f"v_lshl_add_u32 v{t+6}, v{t+6}, 4, v{t+5}")
        a(f"v_add_u32 v{V_AX+2+var}, v{t+4}, v{t+6}")
    for i in range(8):
        a(f"v_add_u32 v{V_LDX+i}, {i*9216-(i&3)*1024}, v{V_AX+(i&1)}")
    for i in range(4):
        a(f"v_add_u32 v{V_LDW+i}, {i*4*3456-i*1024}, v{V_AX+2+(i>>1)}")
    a(f"s_lshl_b32 s{S_T0}, s{S_S}, 8")
    a(f"s_lshl_b32 s{S_T1}, s{S_L}, 6")
    a(f"s_add_u32 s{S_T0}, s{S_T0}, s{S_T1}")
    a(f"s_mul_i32 s{S_XB}, s{S_T0}, 1152")
    a(f"s_mul_i32 s{S_WB}, s{S_L}, {16*3456}")
    a(f"s_lshl_b32 s{S_LX}, s{S_L}, 13")
    a(f"s_lshl_b32 s{S_LW}, s{S_L}, 12")
    a(f"s_add_u32 s{S_LW}, s{S_LW}, 32768")
    a(f"s_mov_b32 s{S_SB}, 0")
    def chunk_pre():
        a(f"s_lshl_b32 s{S_T0}, s{S_C}, 7")
        a(f"s_add_u32 s{S_T0}, s{S_T0}, s{S_XB}")
        a(f"s_mul_i32 s{S_T1}, s{S_C}, {64*3456}")
        a(f"s_add_u32 s{S_T1}, s{S_T1}, s{S_WB}")
        a(f"s_add_u32 s{S_T2}, s{S_SB}, s{S_LW}")
        a(f"s_add_u32 s{S_T3}, s{S_SB}, s{S_LX}")
        a(f"s_add_u32 s{S_C}, s{S_C}, 1")
        a(f"s_cmp_eq_u32 s{S_C}, 9")
        a(f"s_cselect_b32 s{S_C}, 0, s{S_C}")
        a(f"s_add_u32 s{S_SB}, s{S_SB}, {STAGE}")
        a(f"s_cmp_eq_u32 s{S_SB}, {3*STAGE}")
        a(f"s_cselect_b32 s{S_SB}, 0, s{S_SB}")
    def chunk_w():
        a(f"s_mov_b32 m0, s{S_T2}")
        a("s_nop 0")
        for i in range(4):
            a(f"buffer_load_dwordx4 v{V_LDW+i}, s[{S_W}:{S_W+3}], s{S_T1} offen offset:{i*1024} lds")
    def chunk_x(lo, hi):
        for i in range(lo, hi):
            if i == lo or i == 4:
                a(f"s_add_u32 m0, s{S_T3}, {(i&~3)*1024}")
                a("s_nop 0")
            a(f"buffer_load_dwordx4 v{V_LDX+i}, s[{S_X}:{S_X+3}], s{S_T0} offen offset:{(i&3)*1024} lds")
    chunk_pre()
    a("s_waitcnt lgkmcnt(0)")
    chunk_w(); chunk_x(0, 8)
    chunk_pre(); chunk_w(); chunk_x(0, 2)
    a("s_waitcnt vmcnt(6)")
    a("s_barrier")
    chunk_x(2, 8)
    chunk_pre()
    a(f"s_mov_b32 s{S_K}, 2")
    a.lab("L_LD")
    chunk_w(); chunk_x(0, 8)
    chunk_pre()
    a(f"s_add_u32 s{S_K}, s{S_K}, 1")
    a(f"s_cmp_lt_u32 s{S_K}, 9")
    a("s_waitcnt vmcnt(12)")
    a("s_barrier")
    a("s_cbranch_scc1 L_LD")
    a(f"s_lshl_b32 s{S_T0}, s{S_L}, 6")
    a(f"v_add_u32 v{t}, s{S_T0}, v{L}")
    a(f"v_mul_u32_u24 v{t+1}, 7282, v{t}")
    a(f"v_lshrrev_b32 v{t+1}, 16, v{t+1}")
    a(f"v_mul_u32_u24 v{t+2}, 9, v{t+1}")
    a(f"v_sub_u32 v{t+2}, v{t}, v{t+2}")
    a(f"v_mul_u32_u24 v{t+1}, 1152, v{t+1}")
    a(f"v_lshl_add_u32 v{t+1}, v{t+2}, 7, v{t+1}")
    a(f"s_mul_i32 s{S_T0}, s{S_I}, {18*1152}")
    a(f"v_cmp_gt_u32 vcc, 162, v{t}")
    a(f"v_cndmask_b32_e64 v{t+1}, 0, v{t+1}, vcc")
    a(f"buffer_load_dword v255, v{t+1}, s[{S_WO}:{S_WO+3}], s{S_T0} offen")
    emit_masks()
    emit_p2_patterns()
    a(f"v_mul_u32_u24 v{t+1}, 7282, v{L}")
    a(f"v_lshrrev_b32 v{t+1}, 16, v{t+1}")
    a(f"v_mul_u32_u24 v{t+2}, 9, v{t+1}")
    a(f"v_sub_u32 v{t+2}, v{L}, v{t+2}")
    a(f"v_mul_u32_u24 v{t+1}, 1152, v{t+1}")
    a(f"v_lshl_add_u32 v{t+1}, v{t+2}, 4, v{t+1}")
    a(f"s_and_b32 s{S_T0}, s{S_HP}, 7")
    a(f"s_mul_i32 s{S_T0}, s{S_T0}, 144")
    a(f"v_add_u32 v{V_WOV}, s{S_T0}, v{t+1}")
    for j in range(1, 4): a(f"v_add_u32 v{V_WOV+j}, {j*(8064-1008)}, v{V_WOV}")
    a(f"s_mul_i32 s{S_T0}, s{S_L}, {21*1008}")
    a(f"s_mul_i32 s{S_T1}, s{S_L}, {21*8064}")
    a("s_waitcnt vmcnt(1)")
    a("s_barrier")
    a(f"s_mov_b64 s[{S_SAVE}:{S_SAVE+1}], exec")
    a(f"s_bitset0_b64 exec, 63")
    WO = f"s[{S_WO}:{S_WO+3}]"
    for j in range(21):
        if j == 19:
            a(f"s_cmp_eq_u32 s{S_L}, 3")
            a("s_cbranch_scc0 L_WO_N")
            a(f"s_mov_b64 exec, 0x3ffff")
            a(f"buffer_load_dwordx4 v{V_WOV+(j&3)}, {WO}, s{S_T2} offen offset:{(j&3)*1008} lds")
            a("s_branch L_WO_DONE")
            a.lab("L_WO_N")
        if j % 4 == 0:
            a(f"s_add_u32 m0, s{S_T0}, {j*1008}")
            a(f"s_add_u32 s{S_T2}, s{S_T1}, {j*8064}")
        a(f"buffer_load_dwordx4 v{V_WOV+(j&3)}, {WO}, s{S_T2} offen offset:{(j&3)*1008} lds")
    a.lab("L_WO_DONE")
    rest_exec()
    a("s_barrier")
    for r in range(16):
        a(f"v_mov_b32 v{OA+r}, 0")
        a(f"v_mov_b32 v{OB+r}, 0")
    a(f"v_lshlrev_b32 v{V_PA}, 4, v{L}")
    a(f"s_lshl_b32 s{S_T0}, s{S_L}, 10")
    a(f"v_add_u32 v{V_PA}, s{S_T0}, v{V_PA}")
    a(f"v_add_u32 v{V_PA+1}, {KV_OWN}, v{V_PA}")
    a(f"s_cmp_lt_u32 s{S_L}, 2")
    a(f"s_cselect_b32 s{S_H0}, 16384, 0")
    a(f"v_add_u32 v{t}, s{S_H0}, v{V_PA+1}")
    a(f"v_add_u32 v{V_PA+2}, s{S_H0}, v{V_PA}")
    a(f"s_mul_i32 s{S_T1}, s{S_IDX}, 36864")
    a("s_barrier")
    if 'tsx' in exp: ts(1)
    a(f"s_cmp_eq_u32 s{S_S}, 7")
    a("s_cbranch_scc1 L_NOPUB")
    for st in (1, 0):
        base = VH + (0 if st else 20)
        for i in range(4):
            a(f"ds_read_b128 v[{base+4*i}:{base+4*i+3}], v{V_PA+1} offset:{st*18432+i*4096}")
        a(f"ds_read_b128 v[{base+16}:{base+19}], v{t} offset:{st*18432}")
    a("s_waitcnt lgkmcnt(5)")
    pub_stores(a, 18432, VH)
    if 'tsx' in exp: ts(2)
    a.lab("L_NOPUB")
    a("s_branch L_P2")

    a.lab("L_COMPUTE")
    a(f"v_and_b32 v{t}, 15, v{L}")
    a(f"v_lshrrev_b32 v{t+1}, 4, v{L}")
    a(f"v_lshrrev_b32 v{t+2}, 1, v{t}")
    a(f"s_lshl_b32 s{S_T0}, s{S_WID}, 6")
    a(f"v_add_u32 v{t+3}, s{S_T0}, v{t}")
    a(f"v_lshlrev_b32 v{t+3}, 7, v{t+3}")
    a(f"v_xor_b32 v{t+4}, v{t+1}, v{t+2}")
    a(f"v_lshlrev_b32 v{t+5}, 4, v{t+4}")
    a(f"v_add_u32 v{V_AX}, v{t+3}, v{t+5}")
    a(f"v_xor_b32 v{t+4}, 4, v{t+4}")
    a(f"v_lshlrev_b32 v{t+5}, 4, v{t+4}")
    a(f"v_add_u32 v{V_AX+1}, v{t+3}, v{t+5}")
    a(f"v_bfe_u32 v{t}, v{L}, 2, 2")
    a(f"v_and_b32 v{t+2}, 3, v{L}")
    a(f"v_and_b32 v{t+3}, 1, v{t+1}")
    a(f"v_lshl_add_u32 v{t+3}, v{t+3}, 2, v{t}")
    a(f"v_lshlrev_b32 v{t+3}, 5, v{t+3}")
    a(f"v_lshl_add_u32 v{t+4}, v{t+1}, 3, v{t}")
    a(f"v_lshlrev_b32 v{t+4}, 8, v{t+4}")
    a(f"v_add_u32 v{t+4}, 32768, v{t+4}")
    a(f"v_lshlrev_b32 v{t+5}, 3, v{t+2}")
    a(f"s_and_b32 s{S_T1}, s{S_HP}, 1")
    a(f"s_lshl_b32 s{S_T1}, s{S_T1}, 3")
    a(f"v_add3_u32 v{t+5}, v{t+5}, v{t+3}, s{S_T1}")
    for Tn in range(6):
        off = 80*(Tn >> 1) + (40 if Tn & 1 else 0)
        a(f"v_add_u32 v{t+6}, {off}, v{t+5}")
        a(f"v_and_b32 v{t+6}, 255, v{t+6}")
        a(f"v_add_u32 v{V_AW+Tn}, v{t+4}, v{t+6}")
    a(f"v_min_u32 v{t+6}, 2, v{t+2}")
    a(f"v_mul_u32_u24 v{t+6}, 80, v{t+6}")
    a(f"v_add3_u32 v{t+6}, v{t+6}, v{t+3}, s{S_T1}")
    a(f"v_add_u32 v{t+6}, 32, v{t+6}")
    a(f"v_and_b32 v{t+6}, 255, v{t+6}")
    a(f"v_add_u32 v{V_AW+6}, v{t+4}, v{t+6}")
    a(f"v_and_b32 v{t}, 15, v{L}")
    a(f"v_lshrrev_b32 v{t+1}, 4, v{L}")
    a(f"v_and_b32 v{t+2}, 1, v{t+1}")
    a(f"v_lshl_add_u32 v{t+2}, v{t+2}, 4, v{t}")
    a(f"v_lshrrev_b32 v{t+3}, 2, v{t}")
    a(f"v_lshrrev_b32 v{t+4}, 3, v{t}")
    a(f"v_xor_b32 v{t+3}, v{t+3}, v{t+4}")
    a(f"v_lshrrev_b32 v{t+4}, 1, v{t+1}")
    a(f"v_xor_b32 v{t+3}, v{t+3}, v{t+4}")
    a(f"v_and_b32 v{t+3}, 1, v{t+3}")
    a(f"v_lshlrev_b32 v{t+3}, 4, v{t+3}")
    a(f"v_lshl_add_u32 v{t+3}, v{t+2}, 5, v{t+3}")
    a(f"s_mul_i32 s{S_T0}, s{S_WID}, {2*TILE}")
    a(f"s_add_u32 s{S_T0}, s{S_T0}, {KV_OWN}")
    a(f"s_mul_i32 s{S_T1}, s{S_WID}, {2*QTILE}")
    a(f"s_add_u32 s{S_T1}, s{S_T1}, {Q_BASE}")
    a(f"v_add_u32 v{vEK}, s{S_T0}, v{t+3}")
    a(f"v_add_u32 v{vEQ}, s{S_T1}, v{t+3}")
    a(f"v_mul_u32_u24 v{t+4}, 72, v{t}")
    a(f"v_lshl_add_u32 v{t+5}, v{t+1}, 3, v{t+4}")
    a(f"v_add_u32 v{t+5}, 2304, v{t+5}")
    a(f"v_add_u32 v{vEV}, s{S_T0}, v{t+5}")
    a(f"v_lshlrev_b32 v{t+5}, 3, v{t}")
    a(f"v_add_u32 v{t+5}, 2048, v{t+5}")
    a(f"v_add_u32 v{t+6}, s{S_T1}, v{t+5}")
    a(f"v_add_u32 v{t+7}, s{S_T0}, v{t+5}")
    a(f"v_add_u32 v{t+4}, {2304+32}, v{t+4}")
    a(f"v_add_u32 v{t+4}, s{S_T0}, v{t+4}")
    a(f"v_mov_b32 v{vDr}, 128")
    a(f"v_mov_b32 v{vDt}, {TILE}")
    a(f"v_mov_b32 v{vF}, 1.0")
    a(f"v_mov_b32 v{vE6}, v{t+7}")
    a(f"v_cmp_eq_u32 vcc, 0, v{t+1}")
    a(f"v_mov_b32 v{t+5}, {QTILE}")
    a(f"v_mov_b32 v{vC}, {f32bits(QSCALE):#x}")
    a(f"v_cndmask_b32 v{vE6}, v{vE6}, v{t+6}, vcc")
    a(f"v_cndmask_b32 v{vDt}, v{vDt}, v{t+5}, vcc")
    a(f"v_cndmask_b32 v{vF}, v{vF}, v{vC}, vcc")
    a(f"v_cmp_eq_u32 vcc, 2, v{t+1}")
    a(f"v_mov_b32 v{t+5}, 1152")
    a(f"v_mov_b32 v{vC+1}, v{vC}")
    a(f"v_cndmask_b32 v{vE6}, v{vE6}, v{t+4}, vcc")
    a(f"v_cndmask_b32 v{vDr}, v{vDr}, v{t+5}, vcc")
    a(f"v_mov_b32 v{vF+1}, v{vF}")
    a("s_waitcnt lgkmcnt(0)")
    a(f"s_cmp_lg_u32 s{S_WID}, 0")
    a("s_cbranch_scc1 L_NOG0")
    a(f"s_lshl_b32 s{S_T0}, s{S_IDX}, 8")
    a(f"s_add_u32 s{S_T0}, s{S_T0}, {WS_FLAG}")
    a(f"s_lshl_b32 s{S_T1}, s{S_GRP}, 8")
    a(f"s_add_u32 s{S_T1}, s{S_T1}, {WS_OF}")
    a(f"v_mov_b32 v{t}, 0")
    a(f"buffer_load_dword v{V_TG}, v{t}, {WS}, s{S_T0} offen sc1")
    a(f"s_sub_u32 s{S_T0}, s{S_T0}, 256")
    a(f"s_max_u32 s{S_T0}, s{S_T0}, {WS_FLAG}")
    a(f"buffer_load_dword v{V_TG+1}, v{t}, {WS}, s{S_T0} offen sc1")
    a(f"buffer_load_dword v{V_TG+2}, v{t}, {WS}, s{S_T1} offen sc1")
    a.lab("L_NOG0")
    for i in range(112):
        a(f"v_mov_b32 v{V_ACC+i}, 0")
    emit_masks()
    emit_p2_patterns()
    a(f"v_mov_b32 v{t+2}, 0x3f803f80")
    a(f"v_mov_b32 v{t+3}, 0x3f803f80")
    a(f"v_mul_u32_u24 v{t+4}, 576, v{L}")
    a(f"v_add_u32 v{t+4}, {MISC}, v{t+4}")
    save_exec(15)
    a(f"ds_write_b64 v{t+4}, v[{t+2}:{t+3}]")
    rest_exec()
    a(f"s_cmp_lg_u32 s{S_WID}, 0")
    a("s_cbranch_scc1 L_NOG1")
    a("s_waitcnt vmcnt(0)")
    for i in range(3): a(f"v_add_u32 v{V_TG+i}, {TAG_INC:#x}, v{V_TG+i}")
    a(f"v_mov_b32 v{V_TG+3}, 0")
    a(f"v_mov_b32 v{t+4}, {TAGS_LDS}")
    save_exec(1)
    a(f"ds_write_b128 v{t+4}, v[{V_TG}:{V_TG+3}]")
    for i in range(4): a(f"v_mov_b32 v{V_TG+i}, 0")
    a(f"ds_write_b128 v{t+4}, v[{V_TG}:{V_TG+3}] offset:16")
    rest_exec()
    a.lab("L_NOG1")
    a("s_waitcnt lgkmcnt(0)")
    a("s_barrier")
    if "tsh" not in exp and "tsj" not in exp: ts(1)
    def reads(setb, ks):
        xs = [f"ds_read_b128 v[{setb+4*mt}:{setb+4*mt+3}], v{V_AX+ks} offset:{mt*2048}" for mt in range(4)]
        ws = []
        for Tn in range(7):
            b = setb + 16 + 4*Tn
            ws.append(f"ds_read_b64_tr_b16 v[{b}:{b+1}], v{V_AW+Tn} offset:{ks*8192}")
            ws.append(f"ds_read_b64_tr_b16 v[{b+2}:{b+3}], v{V_AW+Tn} offset:{ks*8192+1024}")
        return [xs[0], ws[0], ws[1], xs[1], ws[2], ws[3], xs[2], ws[4], ws[5], xs[3]] + ws[6:]
    def mfmas(setb):
        m = []
        for Tn in range(7):
            for mt in range(4):
                d = V_ACC + (mt*7+Tn)*4
                m.append(f"v_mfma_f32_16x16x32_bf16 v[{d}:{d+3}], v[{setb+16+4*Tn}:{setb+16+4*Tn+3}], v[{setb+4*mt}:{setb+4*mt+3}], v[{d}:{d+3}]")
        return m
    def interleave(ms, extra, per=1):
        ri = 0
        for i, m in enumerate(ms):
            a(m)
            for _ in range(per):
                if ri < len(extra): a(extra[ri]); ri += 1
        while ri < len(extra):
            a(extra[ri]); ri += 1
    for rd in reads(V_SET0, 0): a(rd)
    a(f"s_mov_b32 s{S_K}, 0")
    a(f"s_mov_b32 s{S_SB}, 0")
    a.lab("L_GEMM")
    a("s_waitcnt lgkmcnt(0)")
    sal = [f"s_add_u32 s{S_SB}, s{S_SB}, 1", f"s_cmp_eq_u32 s{S_SB}, 3", f"s_mov_b32 s{S_T0}, {STAGE}",
           f"s_cselect_b32 s{S_T0}, {(-2*STAGE) & 0xffffffff}, s{S_T0}", f"s_cselect_b32 s{S_SB}, 0, s{S_SB}"]
    interleave(mfmas(V_SET0), reads(V_SET1, 1) + sal)
    a("s_waitcnt lgkmcnt(0)")
    a("s_barrier")
    rd = reads(V_SET0, 0)
    adds = [f"v_add_u32 v{V_AX+i}, s{S_T0}, v{V_AX+i}" for i in range(9)]
    ex = [adds[0], adds[2], rd[0], rd[1], rd[2], adds[3], rd[3], rd[4], rd[5], adds[4], rd[6], rd[7], rd[8], rd[9],
          adds[5], rd[10], rd[11], adds[6], rd[12], rd[13], adds[7], rd[14], rd[15], adds[8], rd[16], rd[17], adds[1],
          f"s_add_u32 s{S_K}, s{S_K}, 1", f"s_cmp_lt_u32 s{S_K}, 9"]
    ms = mfmas(V_SET1)
    ri = 0
    for i, m in enumerate(ms):
        a(m)
        n = 2 if i < 6 else 1
        for _ in range(n):
            if ri < len(ex): a(ex[ri]); ri += 1
    assert ri == len(ex)
    a("s_cbranch_scc1 L_GEMM")
    if "tsh" not in exp and "tsj" not in exp: ts(2)
    a.c("phase-1 epilogue")
    a("s_waitcnt lgkmcnt(0)")
    acc = lambda mt, Tn: V_ACC + (mt*7+Tn)*4
    e = [V_SET0]
    def qk_tile(Tn, base_reg, pstride, hoff):
        for p in range(2):
            R = e[0]; e[0] += 4
            da, db = acc(2*p, Tn), acc(2*p+1, Tn)
            a(f"v_cvt_pk_bf16_f32 v{R}, v{da}, v{da+1}")
            a(f"v_cvt_pk_bf16_f32 v{R+2}, v{db}, v{db+1}")
            a(f"v_cvt_pk_bf16_f32 v{R+1}, v{da+2}, v{da+3}")
            a(f"v_cvt_pk_bf16_f32 v{R+3}, v{db+2}, v{db+3}")
            a("s_nop 0")
            a(f"v_permlane16_swap_b32 v{R}, v{R+2}")
            a(f"v_permlane16_swap_b32 v{R+1}, v{R+3}")
            a(f"ds_write_b128 v{base_reg}, v[{R}:{R+3}] offset:{p*pstride+hoff}")
    a("s_nop 3")
    qk_tile(2, vEK, TILE, 0)
    qk_tile(3, vEK, TILE, 1024)
    for Tn in (4, 5):
        for mt in range(4):
            R = e[0]; e[0] += 2
            d = acc(mt, Tn)
            a(f"v_cvt_pk_bf16_f32 v{R}, v{d}, v{d+1}")
            a(f"v_cvt_pk_bf16_f32 v{R+1}, v{d+2}, v{d+3}")
            a(f"ds_write_b64 v{vEV}, v[{R}:{R+1}] offset:{(mt>>1)*TILE + (mt&1)*1152 + (40 if Tn==5 else 0)}")
    R6 = e[0]; e[0] += 8
    for mt in range(4):
        d = acc(mt, 6)
        a(f"v_pk_mul_f32 v[{d}:{d+1}], v[{d}:{d+1}], v[{vF}:{vF+1}]")
        a(f"v_pk_mul_f32 v[{d+2}:{d+3}], v[{d+2}:{d+3}], v[{vF}:{vF+1}]")
    for mt in range(4):
        d = acc(mt, 6)
        a(f"v_cvt_pk_bf16_f32 v{R6+2*mt}, v{d}, v{d+1}")
        a(f"v_cvt_pk_bf16_f32 v{R6+2*mt+1}, v{d+2}, v{d+3}")
    a(f"v_add_u32 v{t}, v{vE6}, v{vDr}")
    a(f"v_add_u32 v{t+1}, v{vE6}, v{vDt}")
    a(f"v_add_u32 v{t+2}, v{t+1}, v{vDr}")
    a(f"s_mov_b64 s[{S_SAVE}:{S_SAVE+1}], exec")
    a(f"s_mov_b32 exec_hi, 0x0000ffff")
    a(f"ds_write_b64 v{vE6}, v[{R6}:{R6+1}]")
    a(f"ds_write_b64 v{t}, v[{R6+2}:{R6+3}]")
    a(f"ds_write_b64 v{t+1}, v[{R6+4}:{R6+5}]")
    a(f"ds_write_b64 v{t+2}, v[{R6+6}:{R6+7}]")
    rest_exec()
    a("s_waitcnt lgkmcnt(0)")
    if 'tsx' in exp: ts(6)
    a("s_barrier")
    for mt in range(4):
        for Tn in (0, 1):
            d = acc(mt, Tn)
            a(f"v_pk_mul_f32 v[{d}:{d+1}], v[{d}:{d+1}], v[{vC}:{vC+1}]")
            a(f"v_pk_mul_f32 v[{d+2}:{d+3}], v[{d+2}:{d+3}], v[{vC}:{vC+1}]")
    e[0] = 84
    qk_tile(0, vEQ, QTILE, 0)
    qk_tile(1, vEQ, QTILE, 1024)
    for r in range(16):
        a(f"v_mov_b32 v{OA+r}, 0")
        a(f"v_mov_b32 v{OB+r}, 0")

    a.lab("L_P2")
    a(f"v_mov_b32 v{t}, {TAGS_LDS}")
    a(f"ds_read_b128 v[{V_TG}:{V_TG+3}], v{t}")
    a("s_waitcnt lgkmcnt(0)")
    a("s_barrier")
    ts(3)
    if debug_stage == 1:
        a(f"s_lshl_b32 s{S_T0}, s{S_IDX}, 16")
        a(f"v_lshlrev_b32 v{t}, 4, v0")
        for i in range(7):
            a(f"v_add_u32 v{t+1}, {KV_OWN + i*8192}, v{t}")
            a(f"ds_read_b128 v[40:43], v{t+1}")
            a("s_waitcnt lgkmcnt(0)")
            a(f"v_add_u32 v{t+2}, {i*8192}, v{t}")
            a(f"buffer_store_dwordx4 v[40:43], v{t+2}, {WS}, s{S_T0} offen")
            a("s_waitcnt vmcnt(0)")
        a("s_branch L_FIN")
    if debug_stage == 9:
        a("s_branch L_FIN")
    if debug_stage not in (1, 9):
        phase2(a, debug_stage, ts, exp, save_exec, rest_exec)
        phase3(a, debug_stage, ts, exp, save_exec, rest_exec)
    a.lab("L_FIN")
    if 'dbg' in exp:
        a("s_waitcnt vmcnt(0) lgkmcnt(0)")
        a("s_memrealtime s[100:101]")
        a("s_waitcnt lgkmcnt(0)")
        a("s_cmp_ge_u32 s2, 8")
        a("s_cbranch_scc1 L_END")
        a(f"s_cmp_lg_u32 s{S_WID}, 7")
        a("s_cbranch_scc1 L_END")
        a(f"s_mov_b32 s{S_X}, s6")
        a(f"s_mov_b32 s{S_X+1}, s7")
        a(f"s_mov_b32 s{S_X+2}, 256")
        a(f"s_mov_b32 s{S_X+3}, 0x00020000")
        a("s_mov_b64 exec, 1")
        a("s_lshl_b32 s3, s2, 3")
        a("v_mov_b32 v2, s3")
        a("v_mov_b32 v4, s96")
        a("v_mov_b32 v5, s100")
        a(f"buffer_store_dwordx2 v[4:5], v2, s[{S_X}:{S_X+3}], 0 offen")
        a("s_waitcnt vmcnt(0)")
        a("s_branch L_END")
    if timing:
        a("s_waitcnt vmcnt(0) lgkmcnt(0)")
        a("s_memtime s[94:95]")
        a("s_waitcnt lgkmcnt(0)")
        a(f"s_lshl_b32 s{S_T0}, s2, 3")
        a(f"s_add_u32 s{S_T0}, s{S_T0}, s{S_WID}")
        a(f"s_lshl_b32 s{S_T0}, s{S_T0}, 6")
        a(f"s_add_u32 s{S_T0}, s{S_T0}, {TIMING_OFF}")
        for i in range(13):
            a(f"s_sub_u32 s{S_T1}, s{70+2*i}, s70" if i else f"s_mov_b32 s{S_T1}, s70")
            a(f"s_cmp_eq_u32 s{70+2*i}, 0")
            a(f"s_cselect_b32 s{S_T1}, 0, s{S_T1}")
            a(f"v_mov_b32 v{40+i}, s{S_T1}")
        a(f"v_mov_b32 v2, 0")
        a(f"s_mov_b64 exec, 1")
        for i in range(3):
            a(f"buffer_store_dwordx4 v[{40+4*i}:{43+4*i}], v2, {WS}, s{S_T0} offen offset:{16*i}")
        a(f"buffer_store_dword v52, v2, {WS}, s{S_T0} offen offset:48")
        a("s_waitcnt vmcnt(0)")
    a.lab("L_END")
    a("s_endpgm")
    a(f""".section .rodata,"a"
.p2align 6
.amdhsa_kernel {NAME}_kernel
  .amdhsa_next_free_vgpr 256
  .amdhsa_next_free_sgpr 102
  .amdhsa_accum_offset 256
  .amdhsa_group_segment_fixed_size 0
  .amdhsa_kernarg_size 72
  .amdhsa_user_sgpr_count 2
  .amdhsa_user_sgpr_kernarg_segment_ptr 1
  .amdhsa_system_sgpr_workgroup_id_x 1
.end_amdhsa_kernel""")
    return a.text()

WS = f"s[{S_WS}:{S_WS+3}]"

def spin_poll(a, name, check_lines, load_line, limit=2000000, first_done=False):
    a(f"s_mov_b32 s{S_CNT}, 0")
    if first_done: a(f"s_branch {name}_W")
    a.lab(name)
    a(load_line)
    a.lab(name + "_W")
    a(f"s_add_u32 s{S_CNT}, s{S_CNT}, 1")
    a("s_waitcnt vmcnt(0)")
    for l in check_lines: a(l)
    a(f"s_cbranch_scc1 {name}_OK")
    a(f"s_cmp_lt_u32 s{S_CNT}, {limit}")
    a(f"s_cbranch_scc1 {name}")
    a.lab(name + "_OK")

def lds_inc(a, addr, save_exec, rest_exec, rtn=None):
    t = T
    a(f"v_mov_b32 v{t}, {addr}")
    a(f"v_mov_b32 v{t+1}, 1")
    save_exec(1)
    if rtn is None: a(f"ds_add_u32 v{t}, v{t+1}")
    else: a(f"ds_add_rtn_u32 v{rtn}, v{t}, v{t+1}")
    rest_exec()

def lds_wait(a, name, addr, val):
    t = T
    a(f"v_mov_b32 v{t}, {addr}")
    a(f"s_mov_b32 s{S_CNT}, 0")
    a.lab(name)
    a(f"ds_read_b32 v{t+1}, v{t}")
    a(f"s_add_u32 s{S_CNT}, s{S_CNT}, 1")
    a("s_waitcnt lgkmcnt(0)")
    a(f"v_readfirstlane_b32 s{S_T0}, v{t+1}")
    a(f"s_cmp_ge_u32 s{S_T0}, {val}")
    a(f"s_cbranch_scc1 {name}_OK")
    a(f"s_cmp_lt_u32 s{S_CNT}, 20000000")
    a(f"s_cbranch_scc1 {name}")
    a.lab(name + "_OK")

def hook_point(a, tag):
    a(f"s_add_u32 s{S_U}, s{S_U}, 1")
    a(f"s_cmp_lg_u32 s{S_U}, s{S_HOOK}")
    a(f"s_cbranch_scc1 {tag}")
    a(f"s_call_b64 s[{S_RET2}:{S_RET2+1}], L_HOOK")
    a.lab(tag)

def run_code(a, name, QM, QR, O, exp):
    cnt = [0]
    def qk1(creg):
        c = "0" if creg is None else f"v[{creg}:{creg+15}]"
        a(f"v_mfma_f32_32x32x16_bf16 v[{VS}:{VS+15}], v[{VKF}:{VKF+3}], v[{QM}:{QM+3}], {c}")
    def qk2():
        a(f"v_mfma_f32_32x32x16_bf16 v[{VS}:{VS+15}], v[{VKR}:{VKR+3}], v[{QR}:{QR+3}], v[{VS}:{VS+15}]")
    def pv(V, P):
        a(f"v_mfma_f32_32x32x16_bf16 v[{O}:{O+15}], v[{V}:{V+3}], v[{P}:{P+3}], v[{O}:{O+15}]")
    def kread():
        a(f"ds_read_b128 v[{VKF}:{VKF+3}], v{A_K}")
        a(f"ds_read_b64 v[{VKR}:{VKR+1}], v{A_KR}")
    def kstep():
        a(f"v_add_u32 v{A_K}, v{ST_K}, v{A_K}")
        a(f"v_add_u32 v{A_KR}, v{ST_K}, v{A_KR}")
    def vread(V, off):
        a(f"ds_read_b64_tr_b16 v[{V}:{V+1}], v{A_V} offset:{off}")
        a(f"ds_read_b64_tr_b16 v[{V+2}:{V+3}], v{A_V} offset:{off+576}")
    def cvt(j): a(f"v_cvt_pk_bf16_f32 v{VP+j}, v{VE+2*j}, v{VE+2*j+1}")
    def ex(r): a(f"v_exp_f32 v{VE+r}, v{VS+r}")
    def unit(D):
        for r in range(8): ex(r)
        for j in range(4): cvt(j)
        ex(8); ex(9)
        a("s_waitcnt lgkmcnt(0)")
        pv(VVA, VP)
        for r in range(10, 16): ex(r)
        if D:
            qk1(V_MASK if D == "mask" else None)
            for j in range(4, 8): cvt(j)
            vread(VVA, 0)
            qk2()
            kstep()
            kread()
            pv(VVB, VP+4)
            vread(VVB, 1152)
            a(f"v_add_u32 v{A_V}, v{ST_V}, v{A_V}")
        else:
            a("s_nop 0")
            for j in range(4, 8): cvt(j)
            a("s_nop 1")
            pv(VVB, VP+4)
    a.lab(name)
    kread()
    a(f"s_cmp_eq_u32 s{S_N}, 1")
    a(f"s_cbranch_scc1 {name}_M1")
    kstep()
    a("s_waitcnt lgkmcnt(0)")
    qk1(None); qk2()
    vread(VVA, 0); kread(); vread(VVB, 1152)
    a(f"v_add_u32 v{A_V}, v{ST_V}, v{A_V}")
    a(f"s_sub_u32 s{S_N}, s{S_N}, 2")
    a.lab(name + "_BT")
    a(f"s_cmp_eq_u32 s{S_N}, 0")
    a(f"s_cbranch_scc1 {name}_MK0")
    a(f"s_sub_u32 s{S_E}, s{S_HOOK}, s{S_U}")
    a(f"s_min_u32 s{S_E}, s{S_E}, s{S_N}")
    a(f"s_sub_u32 s{S_N}, s{S_N}, s{S_E}")
    a(f"s_add_u32 s{S_U}, s{S_U}, s{S_E}")
    a(f"s_sub_u32 s{S_E}, s{S_E}, 1")
    a.lab(name + "_LP")
    unit("plain")
    a(f"s_sub_u32 s{S_E}, s{S_E}, 1")
    a("s_nop 1")
    a(f"s_cbranch_scc0 {name}_LP")
    a(f"s_cmp_lg_u32 s{S_U}, s{S_HOOK}")
    a(f"s_cbranch_scc1 {name}_BT")
    a(f"s_call_b64 s[{S_RET2}:{S_RET2+1}], L_HOOK")
    a(f"s_branch {name}_BT")
    a.lab(name + "_MK0")
    a("s_nop 3")
    a.lab(name + "_MK")
    unit("mask")
    hook_point(a, f"{name}_H1")
    a("s_nop 1")
    a.lab(name + "_FN")
    unit(None)
    hook_point(a, f"{name}_H2")
    a(f"s_setpc_b64 s[{S_RET}:{S_RET+1}]")
    a.lab(name + "_M1")
    a("s_waitcnt lgkmcnt(0)")
    qk1(V_MASK); qk2()
    vread(VVA, 0); vread(VVB, 1152)
    a("s_nop 7")
    a(f"s_branch {name}_FN")

def set_run(a, region, tile_sreg, n_lines, step):
    a(f"s_mul_i32 s{S_T0}, s{tile_sreg}, {TILE}" if tile_sreg is not None else f"s_mov_b32 s{S_T0}, 0")
    a(f"s_add_u32 s{S_T0}, s{S_T0}, {region}")
    a(f"v_add_u32 v{A_K}, s{S_T0}, v{B_K}")
    a(f"v_add_u32 v{A_KR}, s{S_T0}, v{B_KR}")
    a(f"v_and_b32 v{A_V}, s{S_T0}, v{MK_V}")
    a(f"v_add_u32 v{A_V}, v{B_V}, v{A_V}")
    a(f"v_mov_b32 v{ST_K}, {step & 0xffffffff:#x}")
    a(f"v_and_b32 v{ST_V}, v{ST_K}, v{MK_V}")
    for l in n_lines: a(l)

def finalize(a, O, qb_sreg, save_exec, rest_exec):
    t = T; R = VS
    a(f"v_mov_b32 v{t}, 0x21800000")
    a(f"v_mov_b32 v{t+1}, 0x5d800000")
    a(f"v_cmp_nge_f32 vcc, v{O+12}, v{t}")
    a(f"s_or_b64 s[{S_BAD}:{S_BAD+1}], s[{S_BAD}:{S_BAD+1}], vcc")
    a(f"v_cmp_nle_f32 vcc, v{O+12}, v{t+1}")
    a(f"s_or_b64 s[{S_BAD}:{S_BAD+1}], s[{S_BAD}:{S_BAD+1}], vcc")
    a(f"v_rcp_f32 v{t+2}, v{O+12}")
    a(f"v_bfe_u32 v{t}, v{V_LANE}, 4, 1")
    a(f"v_mul_u32_u24 v{t}, {18*1024}, v{t}")
    for r in range(12): a(f"v_mul_f32 v{O+r}, v{O+r}, v{t+2}")
    a(f"v_cvt_pk_bf16_f32 v{R}, v{O}, v{O+1}")
    a(f"v_cvt_pk_bf16_f32 v{R+1}, v{O+2}, v{O+3}")
    a(f"v_cvt_pk_bf16_f32 v{R+2}, v{O+4}, v{O+5}")
    a(f"v_cvt_pk_bf16_f32 v{R+3}, v{O+6}, v{O+7}")
    a(f"v_cvt_pk_bf16_f32 v{R+4}, v{O+8}, v{O+9}")
    a(f"v_cvt_pk_bf16_f32 v{R+5}, v{O+10}, v{O+11}")
    a(f"v_permlane32_swap_b32 v{R}, v{R+2}")
    a(f"v_permlane32_swap_b32 v{R+1}, v{R+3}")
    a(f"v_and_b32 v{t+1}, 15, v{V_LANE}")
    a(f"v_lshl_add_u32 v{t}, v{t+1}, 4, v{t}")
    a(f"v_lshrrev_b32 v{t+1}, 5, v{V_LANE}")
    a(f"v_lshlrev_b32 v{t+1}, 8, v{t+1}")
    a(f"v_add_u32 v{t+1}, v{t}, v{t+1}")
    a(f"s_mul_i32 s{S_T0}, s{S_GRP}, 294912")
    a(f"s_add_u32 s{S_T0}, s{S_T0}, {WS_O}")
    a(f"s_mul_i32 s{S_T1}, s{qb_sreg}, {2*18*1024}")
    a(f"s_add_u32 s{S_T0}, s{S_T0}, s{S_T1}")
    a(f"s_lshl_b32 s{S_T1}, s{S_HP}, 10")
    a(f"s_lshl_b32 s{S_T2}, s{S_HEAD}, 9")
    a(f"s_add_u32 s{S_T1}, s{S_T1}, s{S_T2}")
    a(f"s_add_u32 s{S_T1}, s{S_T1}, s{S_T0}")
    a(f"buffer_store_dwordx4 v[{R}:{R+3}], v{t+1}, {WS}, s{S_T1} offen sc1")
    a(f"s_lshr_b32 s{S_T1}, s{S_HP}, 3")
    a(f"s_add_u32 s{S_T1}, s{S_T1}, 16")
    a(f"s_lshl_b32 s{S_T1}, s{S_T1}, 10")
    a(f"s_bfe_u32 s{S_T2}, s{S_HP}, 0x20001")
    a(f"s_lshl_b32 s{S_T2}, s{S_T2}, 8")
    a(f"s_add_u32 s{S_T1}, s{S_T1}, s{S_T2}")
    a(f"s_and_b32 s{S_T2}, s{S_HP}, 1")
    a(f"s_lshl_b32 s{S_T2}, s{S_T2}, 3")
    a(f"s_add_u32 s{S_T1}, s{S_T1}, s{S_T2}")
    a(f"s_lshl_b32 s{S_T2}, s{S_HEAD}, 2")
    a(f"s_add_u32 s{S_T1}, s{S_T1}, s{S_T2}")
    a(f"s_add_u32 s{S_T1}, s{S_T1}, s{S_T0}")
    a(f"s_cmp_eq_u32 s{S_HEAD}, 0")
    a(f"s_cselect_b64 vcc, -1, 0")
    a(f"v_cndmask_b32_e64 v{R+4}, v{R+5}, v{R+4}, vcc")
    a(f"s_mov_b64 s[{S_SAVE}:{S_SAVE+1}], exec")
    a(f"s_mov_b32 exec_hi, 0")
    a(f"buffer_store_dword v{R+4}, v{t}, {WS}, s{S_T1} offen sc1")
    rest_exec()

def phase2(a, debug_stage, ts, exp, save_exec, rest_exec):
    t = T; L = V_LANE
    a.c("======== phase 2 ========")
    a(f"v_readfirstlane_b32 s{S_TAGOUT}, v{V_TG}")
    a(f"v_readfirstlane_b32 s{S_TAGIN}, v{V_TG+1}")
    a(f"v_readfirstlane_b32 s{S_TAGO}, v{V_TG+2}")
    a(f"s_mov_b64 s[{S_BAD}:{S_BAD+1}], 0")
    for (QM, QR, sreg) in ((QA_M, QA_R, S_M), (QB_M, QB_R, S_MB)):
        a(f"s_mul_i32 s{S_T0}, s{sreg}, {QTILE}")
        a(f"s_add_u32 s{S_T0}, s{S_T0}, {Q_BASE}")
        a(f"v_add_u32 v{t+2}, s{S_T0}, v{B_K}")
        a(f"v_add_u32 v{t+3}, s{S_T0}, v{B_KR}")
        a(f"ds_read_b128 v[{QM}:{QM+3}], v{t+2}")
        a(f"ds_read_b64 v[{QR}:{QR+1}], v{t+3}")
    a(f"s_cmp_eq_u32 s{S_HEAD}, 0")
    a(f"s_cselect_b32 s{S_T0}, -1, 0")
    a(f"s_cselect_b32 s{S_T1}, 0, -1")
    a(f"v_cmp_gt_u32 vcc, 32, v{L}")
    a(f"v_mov_b32 v{t}, s{S_T0}")
    a(f"v_mov_b32 v{t+1}, s{S_T1}")
    a(f"v_cndmask_b32_e64 v{t}, 0, v{t}, vcc")
    a(f"v_cndmask_b32_e64 v{t+1}, 0, v{t+1}, vcc")
    a(f"v_mov_b32 v{VKR+2}, 0")
    a(f"v_mov_b32 v{VKR+3}, 0")
    for QR in (QA_R, QB_R):
        a(f"v_mov_b32 v{QR+2}, 0")
        a(f"v_mov_b32 v{QR+3}, 0")
    a("s_waitcnt lgkmcnt(0)")
    for QR in (QA_R, QB_R):
        a(f"v_and_b32 v{QR}, v{QR}, v{t}")
        a(f"v_and_b32 v{QR+1}, v{QR+1}, v{t+1}")
    lds_inc(a, CNTQ, save_exec, rest_exec)
    a(f"s_mov_b32 s{S_U}, 0")
    a(f"s_mov_b32 s{S_HST}, 0")
    a(f"s_mov_b32 s{S_HOOK}, {2 if 'hkB' in exp else 3}")
    a(f"s_cmp_ge_u32 s{S_WID}, 4")
    a(f"s_cbranch_scc1 L_HS")
    a(f"s_mov_b32 s{S_HST}, 7")
    a(f"s_add_u32 s{S_HOOK}, s{S_M}, 12")
    a.lab("L_HS")
    if 'noprio' not in exp:
        a(f"s_cmp_lt_u32 s{S_WID}, 4")
        a(f"s_cbranch_scc1 L_HS2")
        a("s_setprio 1")
        a.lab("L_HS2")
    ts(4)
    set_run(a, KV_OWN, None, [f"s_add_u32 s{S_N}, s{S_M}, 1"], TILE)
    a(f"s_call_b64 s[{S_RET}:{S_RET+1}], L_RUNA")
    set_run(a, KV_OWN, None, [f"s_sub_u32 s{S_N}, 8, s{S_M}"], TILE)
    a(f"s_call_b64 s[{S_RET}:{S_RET+1}], L_RUNB")
    ts(5)
    a(f"s_cmp_eq_u32 s{S_S}, 0")
    a("s_cbranch_scc1 L_FINAL0")
    a(f"v_mov_b32 v{t+2}, {NEG:#x}")
    for r in range(16): a(f"v_sub_f32 v{V_MASK+r}, v{t+2}, v{V_MASK+r}")
    lds_wait(a, "L_W1", CNT1, 4)
    if "tsh" not in exp: ts(7)
    a(f"s_mov_b32 s{S_T4}, 7")
    set_run(a, KV_HALO, S_T4, [f"s_add_u32 s{S_N}, s{S_M}, 1"], -TILE)
    a(f"s_call_b64 s[{S_RET}:{S_RET+1}], L_RUNB")
    a("s_nop 7")
    a("s_nop 3")
    finalize(a, OB, S_MB, save_exec, rest_exec)
    a(f"s_mov_b32 s{S_T4}, 7")
    set_run(a, KV_HALO, S_T4, [f"s_sub_u32 s{S_N}, 8, s{S_M}"], -TILE)
    a(f"s_call_b64 s[{S_RET}:{S_RET+1}], L_RUNA")
    a("s_branch L_FINALA")
    a.lab("L_FINAL0")
    a("s_nop 7")
    a("s_nop 3")
    finalize(a, OB, S_MB, save_exec, rest_exec)
    a.lab("L_FINALA")
    if "tsh" not in exp: ts(8)
    a("s_nop 7")
    a("s_nop 3")
    finalize(a, OA, S_M, save_exec, rest_exec)
    a("s_branch L_P3")

    a.lab("L_HOOK")
    for st in (0, 1, 4, 8, 5, 6):
        a(f"s_cmp_eq_u32 s{S_HST}, {st}")
        a(f"s_cbranch_scc1 L_HK{st}")
    a.lab("L_HKW2")
    if 'tsj' in exp: ts(10)
    a(f"s_mov_b32 s{S_HOOK}, 1000")
    lds_wait(a, "L_W2", CNT2, 4)
    if 'tsj' in exp: ts(11)
    a("s_branch L_HRET")
    def flag_store(add):
        a(f"s_lshl_b32 s{S_T0}, s{S_IDX}, 8")
        a(f"s_lshl_b32 s{S_T1}, s{S_L}, 2")
        a(f"s_add_u32 s{S_T0}, s{S_T0}, s{S_T1}")
        a(f"s_add_u32 s{S_T0}, s{S_T0}, {WS_FLAG+128}")
        a(f"s_add_u32 s{S_T1}, s{S_TAGOUT}, {add}")
        a(f"v_mov_b32 v{t}, 0")
        a(f"v_mov_b32 v{t+1}, s{S_T1}")
        save_exec(1)
        a(f"buffer_store_dword v{t+1}, v{t}, {WS}, s{S_T0} offen sc1")
        rest_exec()
    UF1, UP1, UC1, UW1, UC2, UW2 = 3, 5, 7, 9, 10, 12
    if 'hkA' in exp: UF1, UP1, UC1, UW1 = 3, 4, 6, 8
    if 'hkB' in exp: UF1, UP1, UC1, UW1 = 2, 4, 6, 9
    if 'hkC' in exp: UF1, UP1, UC1, UW1 = 3, 4, 6, 9
    def setnext(st, u):
        a(f"s_mov_b32 s{S_HST}, {st}")
        a(f"s_mov_b32 s{S_HOOK}, {u}")
    a.lab("L_HK0")
    if 'tsh' in exp: ts(2)
    setnext(1, UP1)
    a(f"s_cmp_eq_u32 s{S_S}, 7")
    a("s_cbranch_scc1 L_HRET")
    a("s_waitcnt vmcnt(0)")
    if 'tsh' in exp: ts(6)
    flag_store(0)
    a(f"s_mul_i32 s{S_T1}, s{S_IDX}, 36864")
    pub_stores(a, 0, VH+20)
    a("s_branch L_HRET")
    a.lab("L_HK1")
    setnext(4, UC1)
    a(f"s_cmp_eq_u32 s{S_S}, 0")
    a("s_cbranch_scc1 L_HRET")
    a(f"s_sub_u32 s{S_H1}, s{S_IDX}, 1")
    a(f"s_lshl_b32 s{S_H1}, s{S_H1}, 8")
    a(f"s_lshl_b32 s{S_T0}, s{S_L}, 2")
    a(f"s_add_u32 s{S_H1}, s{S_H1}, s{S_T0}")
    a(f"s_add_u32 s{S_H1}, s{S_H1}, {WS_FLAG+128}")
    a(f"v_mov_b32 v{t}, 0")
    a(f"buffer_load_dword v{V_TG}, v{t}, {WS}, s{S_H1} offen sc1")
    a("s_branch L_HRET")
    a.lab("L_HK4")
    if 'tsh' in exp: ts(11)
    setnext(8, UW1)
    a("s_waitcnt vmcnt(0)")
    if 'tsh' in exp: ts(9)
    a(f"s_cmp_eq_u32 s{S_S}, 7")
    a("s_cbranch_scc1 L_HK4B")
    flag_store(1)
    a(f"s_cmp_eq_u32 s{S_S}, 0")
    a("s_cbranch_scc0 L_HK4B")
    a(f"s_mov_b32 s{S_HOOK}, 1000")
    a("s_setprio 0")
    a("s_branch L_HRET")
    a.lab("L_HK4B")
    a(f"v_readfirstlane_b32 s{S_T0}, v{V_TG}")
    a(f"s_sub_u32 s{S_T0}, s{S_T0}, s{S_TAGIN}")
    a(f"s_cmp_lt_u32 s{S_T0}, 2")
    a("s_cbranch_scc1 L_POLL1A_OK")
    a(f"v_mov_b32 v{t}, 0")
    spin_poll(a, "L_POLL1A",
              [f"v_readfirstlane_b32 s{S_T0}, v{V_TG}", f"s_sub_u32 s{S_T0}, s{S_T0}, s{S_TAGIN}", f"s_cmp_lt_u32 s{S_T0}, 2"],
              f"buffer_load_dword v{V_TG}, v{t}, {WS}, s{S_H1} offen sc1")
    if 'tsh' in exp: ts(1)
    a(f"v_add_u32 v{V_PA+1}, {KV_HALO}, v{V_PA}")
    halo_loads(a, 18432, VH)
    a(f"v_mov_b32 v{t}, 0")
    a(f"buffer_load_dword v{V_TG}, v{t}, {WS}, s{S_H1} offen sc1")
    a("s_branch L_HRET")
    a.lab("L_HK8")
    if 'tsh' in exp: ts(7)
    setnext(5, UC2)
    a("s_waitcnt vmcnt(1)")
    if 'tsh' in exp: ts(8)
    for i in range(4):
        a(f"ds_write_b128 v{V_PA+1}, v[{VH+4*i}:{VH+4*i+3}] offset:{18432+i*4096}")
    a(f"v_add_u32 v{t}, s{S_H0}, v{V_PA+1}")
    a(f"ds_write_b128 v{t}, v[{VH+16}:{VH+19}] offset:18432")
    a("s_waitcnt lgkmcnt(0)")
    lds_inc(a, CNT1, save_exec, rest_exec)
    if 'p9' in exp: a("s_setprio 0")
    a("s_branch L_HRET")
    a.lab("L_HK5")
    if 'tsj' in exp: ts(1)
    setnext(6, UW2)
    a("s_waitcnt vmcnt(0)")
    a(f"s_add_u32 s{S_T3}, s{S_TAGIN}, 1")
    a(f"v_readfirstlane_b32 s{S_T0}, v{V_TG}")
    a(f"s_cmp_eq_u32 s{S_T0}, s{S_T3}")
    a("s_cbranch_scc1 L_POLL1B_OK")
    a(f"v_mov_b32 v{t}, 0")
    spin_poll(a, "L_POLL1B",
              [f"v_readfirstlane_b32 s{S_T0}, v{V_TG}", f"s_cmp_eq_u32 s{S_T0}, s{S_T3}"],
              f"buffer_load_dword v{V_TG}, v{t}, {WS}, s{S_H1} offen sc1")
    if 'tsj' in exp: ts(2)
    halo_loads(a, 0, VH+20)
    a("s_branch L_HRET")
    a.lab("L_HK6")
    if 'tsj' in exp: ts(6)
    a(f"s_mov_b32 s{S_HST}, 7")
    a(f"s_add_u32 s{S_HOOK}, s{S_M}, 12")
    a(f"s_cmp_le_u32 s{S_M}, 1")
    a("s_cbranch_scc1 L_HK6A")
    a("s_waitcnt vmcnt(0)")
    a("s_branch L_HK6B")
    a.lab("L_HK6A")
    a("s_waitcnt vmcnt(2)")
    a.lab("L_HK6B")
    if 'tsj' in exp: ts(9)
    lds_wait(a, "L_WQ", CNTQ, 8)
    for i in range(4):
        a(f"ds_write_b128 v{V_PA+1}, v[{VH+20+4*i}:{VH+20+4*i+3}] offset:{i*4096}")
    a(f"v_add_u32 v{t}, s{S_H0}, v{V_PA+1}")
    a(f"ds_write_b128 v{t}, v[{VH+36}:{VH+39}]")
    a("s_waitcnt lgkmcnt(0)")
    lds_inc(a, CNT2, save_exec, rest_exec)
    a("s_setprio 0")
    a(f"s_cmp_lg_u32 s{S_WID}, 4")
    a("s_cbranch_scc1 L_HK6C")
    a(f"s_sub_u32 s{S_T0}, s{S_IDX}, 1")
    a(f"s_lshl_b32 s{S_T0}, s{S_T0}, 8")
    a(f"s_add_u32 s{S_T0}, s{S_T0}, {WS_FLAG}")
    a(f"v_mov_b32 v{t}, 0")
    a(f"v_mov_b32 v{t+1}, s{S_TAGIN}")
    save_exec(1)
    a(f"buffer_store_dword v{t+1}, v{t}, {WS}, s{S_T0} offen sc1")
    rest_exec()
    a.lab("L_HK6C")
    a(f"s_cmp_eq_u32 s{S_M}, 0")
    a("s_cbranch_scc1 L_HKW2")
    a.lab("L_HRET")
    a(f"s_setpc_b64 s[{S_RET2}:{S_RET2+1}]")
    run_code(a, "L_RUNA", QA_M, QA_R, OA, exp)
    run_code(a, "L_RUNB", QB_M, QB_R, OB, exp)

def pub_stores(a, stage_off, base):
    a(f"s_add_u32 s{S_T2}, s{S_T1}, {stage_off}")
    a(f"buffer_store_dwordx4 v[{base}:{base+3}], v{V_PA}, {WS}, s{S_T2} offen sc1")
    for i in range(1, 4):
        a(f"s_add_u32 s{S_T3}, s{S_T2}, {i*4096}")
        a(f"buffer_store_dwordx4 v[{base+4*i}:{base+4*i+3}], v{V_PA}, {WS}, s{S_T3} offen sc1")
    a(f"buffer_store_dwordx4 v[{base+16}:{base+19}], v{V_PA+2}, {WS}, s{S_T2} offen sc1")

def halo_loads(a, stage_off, base):
    t = T
    a(f"s_sub_u32 s{S_T0}, s{S_IDX}, 1")
    a(f"s_mul_i32 s{S_T0}, s{S_T0}, 36864")
    a(f"s_add_u32 s{S_T0}, s{S_T0}, {stage_off}")
    for i in range(4):
        a(f"s_add_u32 s{S_T1}, s{S_T0}, {i*4096}")
        a(f"buffer_load_dwordx4 v[{base+4*i}:{base+4*i+3}], v{V_PA}, {WS}, s{S_T1} offen sc1")
    a(f"s_add_u32 s{S_T1}, s{S_T0}, s{S_H0}")
    a(f"buffer_load_dwordx4 v[{base+16}:{base+19}], v{V_PA}, {WS}, s{S_T1} offen sc1")

def phase3(a, debug_stage, ts, exp, save_exec, rest_exec):
    t = T; L = V_LANE
    a.lab("L_P3")
    a.c("======== phase 3 ========")
    a("s_waitcnt vmcnt(0)")
    if "tsh" not in exp and "tsj" not in exp: ts(9)
    a(f"s_lshl_b32 s{S_T4}, s{S_GRP}, 8")
    a(f"s_add_u32 s{S_T4}, s{S_T4}, {WS_OF}")
    lds_inc(a, CNTO, save_exec, rest_exec, rtn=t+2)
    a("s_waitcnt lgkmcnt(0)")
    a(f"v_readfirstlane_b32 s{S_T0}, v{t+2}")
    a(f"s_cmp_lg_u32 s{S_T0}, 7")
    a("s_cbranch_scc1 L_P3W")
    a(f"s_lshl_b32 s{S_T0}, s{S_HP}, 2")
    a(f"s_add_u32 s{S_T0}, s{S_T0}, s{S_T4}")
    a(f"v_mov_b32 v{t}, 0")
    a(f"v_mov_b32 v{t+1}, s{S_TAGO}")
    save_exec(1)
    a(f"buffer_store_dword v{t+1}, v{t}, {WS}, s{S_T0} offen offset:128 sc1")
    rest_exec()
    a.lab("L_P3W")
    OF = 36; AC = 108; WF0, WF1 = 148, 168; AW, AW2 = 10, 11
    a(f"s_mul_i32 s{S_T0}, s{S_GRP}, 294912")
    a(f"s_add_u32 s{S_T0}, s{S_T0}, {WS_O}")
    a(f"s_lshr_b32 s{S_T1}, s{S_HP}, 3")
    a(f"s_lshl_b32 s{S_T1}, s{S_T1}, 3")
    a(f"s_lshl_b32 s{S_T2}, s{S_M}, 1")
    a(f"s_add_u32 s{S_T1}, s{S_T1}, s{S_T2}")
    a(f"s_mul_i32 s{S_T1}, s{S_T1}, 18")
    a(f"s_mul_i32 s{S_T2}, s{S_HEAD}, 9")
    a(f"s_add_u32 s{S_T1}, s{S_T1}, s{S_T2}")
    a(f"s_lshl_b32 s{S_T1}, s{S_T1}, 10")
    a(f"s_add_u32 s{S_T0}, s{S_T0}, s{S_T1}")
    a(f"s_add_u32 s{S_T1}, s{S_T0}, {18*1024}")
    a(f"v_lshrrev_b32 v{t+1}, 4, v{L}")
    a(f"v_bfe_u32 v{t+2}, v{L}, 2, 2")
    a(f"v_and_b32 v{t+3}, 3, v{L}")
    a(f"v_lshrrev_b32 v{t+4}, 1, v{t+1}")
    a(f"v_lshlrev_b32 v{t+4}, 2, v{t+4}")
    a(f"v_lshl_add_u32 v{t+4}, v{t+1}, 3, v{t+4}")
    a(f"v_add_u32 v{t+4}, v{t+4}, v{t+2}")
    a(f"v_mul_u32_u24 v{t+4}, 144, v{t+4}")
    a(f"v_lshl_add_u32 v{t+4}, v{t+3}, 3, v{t+4}")
    a(f"s_mul_i32 s{S_T2}, s{S_HEAD}, {9*5184}")
    a(f"v_add_u32 v{AW}, s{S_T2}, v{t+4}")
    a(f"v_mul_u32_u24 v{t+4}, 72, v{t+1}")
    a(f"v_add3_u32 v{t+4}, v{t+4}, v{t+2}, 16")
    a(f"v_mul_u32_u24 v{t+4}, 144, v{t+4}")
    a(f"v_lshl_add_u32 v{AW2}, v{t+3}, 3, v{t+4}")
    for i in range(40): a(f"v_mov_b32 v{AC+i}, 0")
    a(f"v_lshlrev_b32 v{t}, 4, v{L}")
    def wreads(ks, kh, WF):
        l = []
        kap = 9*kh + ks
        for Tn in range(5):
            b = WF + 4*Tn
            if kap < 16:
                o0 = ks*5184 + Tn*32
                l.append(f"ds_read_b64_tr_b16 v[{b}:{b+1}], v{AW} offset:{o0}")
                l.append(f"ds_read_b64_tr_b16 v[{b+2}:{b+3}], v{AW} offset:{o0+576}")
            else:
                o0 = (kap-16)*8*36*144 + Tn*32
                l.append(f"ds_read_b64_tr_b16 v[{b}:{b+1}], v{AW2} offset:{o0}")
                l.append(f"ds_read_b64_tr_b16 v[{b+2}:{b+3}], v{AW2} offset:{o0+36*144}")
        return l
    save_exec("0xffff")
    a(f"v_lshlrev_b32 v{t+2}, 2, v{L}")
    spin_poll(a, "L_POLL2",
              [f"v_cmp_ne_u32 vcc, s{S_TAGO}, v{t+1}", "s_nop 1", f"s_cmp_eq_u64 vcc, 0"],
              f"buffer_load_dword v{t+1}, v{t+2}, {WS}, s{S_T4} offen offset:128 sc1")
    a(f"s_cmp_lg_u32 s{S_HP}, 0")
    a("s_cbranch_scc1 L_NOG2")
    a(f"s_cmp_lg_u32 s{S_WID}, 0")
    a("s_cbranch_scc1 L_NOG2")
    a(f"s_mov_b64 exec, 1")
    a(f"v_mov_b32 v{t+2}, 0")
    a(f"v_mov_b32 v{t+1}, s{S_TAGO}")
    a(f"buffer_store_dword v{t+1}, v{t+2}, {WS}, s{S_T4} offen sc1")
    a.lab("L_NOG2")
    rest_exec()
    if 'tsx' not in exp and 'tsh' not in exp and 'tsj' not in exp: ts(10)
    if debug_stage == 2:
        a("s_branch L_FIN")
        return
    for ks in range(9):
        for mt in range(2):
            r = OF + (mt*9+ks)*4
            a(f"buffer_load_dwordx4 v[{r}:{r+3}], v{t}, {WS}, s{S_T0 if mt == 0 else S_T1} offen sc1")
        a(f"s_add_u32 s{S_T0}, s{S_T0}, 1024")
        a(f"s_add_u32 s{S_T1}, s{S_T1}, 1024")
    def body(kh):
        for rd in wreads(0, kh, WF0): a(rd)
        for ks in range(9):
            cur = WF0 if ks % 2 == 0 else WF1
            nxt = WF1 if ks % 2 == 0 else WF0
            a(f"s_waitcnt vmcnt({2*(8-ks)}) lgkmcnt(0)")
            rs = wreads(ks+1, kh, nxt) if ks < 8 else []
            ri = 0
            for Tn in range(5):
                for mt in range(2):
                    d = AC + (mt*5+Tn)*4
                    o = OF + (mt*9+ks)*4
                    a(f"v_mfma_f32_16x16x32_bf16 v[{d}:{d+3}], v[{cur+4*Tn}:{cur+4*Tn+3}], v[{o}:{o+3}], v[{d}:{d+3}]")
                    if ri < len(rs): a(rs[ri]); ri += 1
    a(f"s_cmp_eq_u32 s{S_HEAD}, 0")
    a("s_cbranch_scc0 L_P3K1")
    body(0)
    a("s_branch L_P3R")
    a.lab("L_P3K1")
    body(1)
    a.lab("L_P3R")
    if "tsh" not in exp and "tsj" not in exp: ts(11)
    a(f"v_lshlrev_b32 v{t}, 4, v{L}")
    a(f"s_mul_i32 s{S_T0}, s{S_WID}, 5120")
    a(f"s_add_u32 s{S_T0}, s{S_T0}, {KV_OWN}")
    a(f"v_add_u32 v{t+1}, s{S_T0}, v{t}")
    a(f"s_xor_b32 s{S_T1}, s{S_WID}, 4")
    a(f"s_mul_i32 s{S_T1}, s{S_T1}, 5120")
    a(f"s_add_u32 s{S_T1}, s{S_T1}, {KV_OWN}")
    a(f"v_add_u32 v{t+2}, s{S_T1}, v{t}")
    a(f"s_cmp_eq_u32 s{S_HEAD}, 0")
    a("s_cbranch_scc0 L_P3X1")
    for Tn in range(5): a(f"ds_write_b128 v{t+1}, v[{AC+(5+Tn)*4}:{AC+(5+Tn)*4+3}] offset:{Tn*1024}")
    a("s_branch L_P3X2")
    a.lab("L_P3X1")
    for Tn in range(5): a(f"ds_write_b128 v{t+1}, v[{AC+Tn*4}:{AC+Tn*4+3}] offset:{Tn*1024}")
    a("s_nop 1")
    for i in range(20): a(f"v_mov_b32 v{AC+i}, v{AC+20+i}")
    a.lab("L_P3X2")
    a(f"s_lshr_b32 s{S_T1}, s{S_HP}, 3")
    a(f"s_lshl_b32 s{S_T1}, s{S_T1}, 7")
    a(f"s_lshl_b32 s{S_T2}, s{S_S}, 8")
    a(f"s_add_u32 s{S_T1}, s{S_T1}, s{S_T2}")
    a(f"s_lshl_b32 s{S_T2}, s{S_M}, 5")
    a(f"s_add_u32 s{S_T1}, s{S_T1}, s{S_T2}")
    a(f"s_lshl_b32 s{S_T2}, s{S_HEAD}, 4")
    a(f"s_add_u32 s{S_T1}, s{S_T1}, s{S_T2}")
    a(f"s_mul_i32 s{S_T1}, s{S_T1}, 2304")
    a(f"s_mul_i32 s{S_T2}, s{S_B}, 1152")
    a(f"s_add_u32 s{S_T1}, s{S_T1}, s{S_T2}")
    a(f"s_and_b32 s{S_T2}, s{S_HP}, 7")
    a(f"s_mul_i32 s{S_T2}, s{S_T2}, 144")
    a(f"s_add_u32 s{S_T1}, s{S_T1}, s{S_T2}")
    PX = WF0
    for i in range(3):
        a(f"v_add_u32 v{t+3}, {i*64}, v{L}")
        a(f"v_mul_u32_u24 v{t+4}, 7282, v{t+3}")
        a(f"v_lshrrev_b32 v{t+4}, 16, v{t+4}")
        a(f"v_mul_u32_u24 v{t+5}, 9, v{t+4}")
        a(f"v_sub_u32 v{t+5}, v{t+3}, v{t+5}")
        a(f"v_mul_u32_u24 v{t+4}, 2304, v{t+4}")
        a(f"v_lshl_add_u32 v{PX+20+i}, v{t+5}, 4, v{t+4}")
    a(f"v_and_b32 v{t+3}, 15, v{L}")
    a(f"v_mul_u32_u24 v{t+3}, 144, v{t+3}")
    a(f"v_lshrrev_b32 v{t+4}, 4, v{L}")
    a(f"v_lshl_add_u32 v{t+3}, v{t+4}, 3, v{t+3}")
    a(f"s_mul_i32 s{S_T0}, s{S_WID}, 2304")
    a(f"s_add_u32 s{S_T0}, s{S_T0}, {KV_HALO+8192}")
    a(f"v_add_u32 v{t+3}, s{S_T0}, v{t+3}")
    a(f"v_lshlrev_b32 v{t+4}, 4, v{L}")
    a(f"v_add_u32 v{t+4}, s{S_T0}, v{t+4}")
    a("s_waitcnt lgkmcnt(0)")
    a("s_barrier")
    for Tn in range(5): a(f"ds_read_b128 v[{PX+4*Tn}:{PX+4*Tn+3}], v{t+2} offset:{Tn*1024}")
    a("s_waitcnt lgkmcnt(0)")
    for i in range(20): a(f"v_add_f32 v{AC+i}, v{AC+i}, v{PX+i}")
    for Tn in range(5):
        a(f"v_cvt_pk_bf16_f32 v{PX+2*Tn}, v{AC+4*Tn}, v{AC+4*Tn+1}")
        a(f"v_cvt_pk_bf16_f32 v{PX+2*Tn+1}, v{AC+4*Tn+2}, v{AC+4*Tn+3}")
    for Tn in range(4): a(f"ds_write_b64 v{t+3}, v[{PX+2*Tn}:{PX+2*Tn+1}] offset:{Tn*32}")
    a(f"s_mov_b64 s[{S_SAVE}:{S_SAVE+1}], exec")
    a(f"s_mov_b32 exec_hi, 0")
    a(f"ds_write_b64 v{t+3}, v[{PX+8}:{PX+9}] offset:128")
    rest_exec()
    a("s_waitcnt lgkmcnt(0)")
    for i in range(3):
        a(f"ds_read_b128 v[{AC+4*i}:{AC+4*i+3}], v{t+4} offset:{i*1024}")
    a("s_waitcnt lgkmcnt(0)")
    for i in range(3):
        if i == 2: a(f"s_mov_b64 exec, 0xffff")
        a(f"buffer_store_dwordx4 v[{AC+4*i}:{AC+4*i+3}], v{PX+20+i}, s[{S_OUT}:{S_OUT+3}], s{S_T1} offen")
    a(f"s_mov_b64 exec, -1")

def run_code_x(a, name, QM, QR, O, exp):
    VE2, VP2, KF, KR, VA, VB = 100, 116, 124, 128, 132, 136
    def qk1(c="0"):
        if 'nomfma' not in exp: a(f"v_mfma_f32_32x32x16_bf16 v[{VS}:{VS+15}], v[{KF}:{KF+3}], v[{QM}:{QM+3}], {c}")
    def qk2():
        if 'nomfma' not in exp: a(f"v_mfma_f32_32x32x16_bf16 v[{VS}:{VS+15}], v[{KR}:{KR+3}], v[{QR}:{QR+3}], v[{VS}:{VS+15}]")
    def pv(V, P):
        if 'nomfma' not in exp: a(f"v_mfma_f32_32x32x16_bf16 v[{O}:{O+15}], v[{V}:{V+3}], v[{(220 if 'nopdep' in exp else P)}:{(220 if 'nopdep' in exp else P)+3}], v[{O}:{O+15}]")
    def kread():
        if 'nolds' in exp or 'nok' in exp: return
        a(f"ds_read_b128 v[{KF}:{KF+3}], v{A_K}")
        a(f"ds_read_b64 v[{KR}:{KR+1}], v{A_KR}")
    def vread(V, off):
        if 'nolds' in exp: return
        a(f"ds_read_b64_tr_b16 v[{V}:{V+1}], v{A_V} offset:{off}")
        a(f"ds_read_b64_tr_b16 v[{V+2}:{V+3}], v{A_V} offset:{off+576}")
    def cvt(j): a(f"v_cvt_pk_bf16_f32 v{VP2+j}, v{VE2+2*j}, v{VE2+2*j+1}")
    def ex(r): a(f"v_exp_f32 v{VE2+r}, v{(200 if 'nodep' in exp else VS)+r}")
    adds = [f"v_add_u32 v{A_K}, v{ST_K}, v{A_K}", f"v_add_u32 v{A_KR}, v{ST_K}, v{A_KR}", f"v_add_u32 v{A_V}, v{ST_V}, v{A_V}"]
    if 'noadd' in exp: adds = ["s_nop 0"]*3
    a.lab(name)
    kread(); a("s_waitcnt lgkmcnt(0)"); qk1(); qk2(); vread(VA, 0); vread(VB, 1152); kread(); a("s_nop 7")
    a.lab(name + "_LP")
    if 'v3' in exp:
        for r in range(16): ex(r)
        a("s_waitcnt lgkmcnt(0)")
        qk1()
        for j in range(6): cvt(j)
        pv(VA, VP2)
        cvt(6); cvt(7); a(adds[0]); a(adds[1])
        qk2()
        a(adds[2])
        pv(VB, VP2+4)
        vread(VA, 0); vread(VB, 1152); kread()
    elif 'v4' in exp:
        for r in range(8): ex(r)
        for j in range(4): cvt(j)
        ex(8); ex(9)
        a("s_waitcnt lgkmcnt(0)")
        pv(VA, VP2)
        for r in range(10, 16): ex(r)
        qk1()
        for j in range(4, 8): cvt(j)
        a(adds[0]); a(adds[1])
        qk2()
        vread(VA, 0); a(adds[2]); kread()
        pv(VB, VP2+4)
        vread(VB, 1152)
    elif 'v5' in exp:
        for r in range(8): ex(r)
        for j in range(4): cvt(j)
        ex(8); ex(9)
        a("s_waitcnt lgkmcnt(0)")
        pv(VA, VP2)
        for r in range(10, 16): ex(r)
        qk1()
        for j in range(4, 8): cvt(j)
        qk2()
        a(adds[0]); a(adds[1]); kread(); vread(VA, 0)
        pv(VB, VP2+4)
        a(adds[2]); vread(VB, 1152)
    a(f"s_sub_u32 s{S_N}, s{S_N}, 1")
    if 'v3' in exp: a("s_nop 1")
    a(f"s_cbranch_scc0 {name}_LP")
    a(f"s_setpc_b64 s[{S_RET}:{S_RET+1}]")

if __name__ == "__main__":
    import argparse
    p = argparse.ArgumentParser(); p.add_argument("--debug", type=int, default=0)
    p.add_argument("--timing", action="store_true"); p.add_argument("--exp", default=""); p.add_argument("-o", default="/dev/stdout")
    args = p.parse_args()
    open(args.o, "w").write(gen(args.debug, args.timing, args.exp))
```

```python
import sys, math, struct

NAME = "concat_heads__sliding_block__sliding_block__prompt"

STAGE   = 49152
WO_BASE = 0
KV_OWN  = 82944
KV_HALO = 119808
Q_BASE  = 119808
MISC    = 156672
TAGS_LDS = MISC + 2048
LDS_TOTAL = 163840
TILE    = 4608
QTILE   = 2304
WS_KV   = 0
WS_O    = 256*36864
WS_FLAG = WS_O + 16*294912
WS_OF   = WS_FLAG + 65536
TIMING_OFF = 24<<20
TAG_INC = 0x9E3779B1
NEG     = 0xFF61B1E6
QSCALE  = (18.0 ** -0.5) * math.log2(math.e)
def f32bits(x): return struct.unpack("<I", struct.pack("<f", x))[0]

class Asm:
    def __init__(self): self.l = []
    def __call__(self, s=""):
        for line in s.split("\n"):
            self.l.append("  " + line.strip() if line.strip() and not line.strip().endswith(":") else line.strip())
    def lab(self, n): self.l.append(n + ":")
    def c(self, s): self.l.append("  ; " + s)
    def text(self): return "\n".join(self.l) + "\n"

def vr(b, n=1): return f"v{b}" if n == 1 else f"v[{b}:{b+n-1}]"
def sr(b, n=1): return f"s{b}" if n == 1 else f"s[{b}:{b+n-1}]"

S_X, S_W, S_WO, S_WS, S_OUT = 8, 12, 16, 20, 24
S_B, S_S, S_HP, S_WID = 28, 29, 30, 31
S_T0, S_T1, S_T2, S_T3, S_T4, S_T5 = 32, 33, 34, 35, 36, 37
S_TAGIN, S_TAGOUT, S_TAGO = 40, 41, 42
S_K, S_C, S_SB, S_XB, S_WB = 43, 44, 45, 46, 47
S_LX, S_LW = 48, 49
S_N = 50
S_RET = 52
S_IDX = 54
S_GRP = 55
S_HEAD, S_M = 56, 57
S_SAVE = 58
S_CNT = 60
S_BAD = 62
S_RET2 = 64

V_TID, V_LANE = 0, 1
V_T = 2
V_AX = 10
V_AW = 12
V_G  = 19
V_MASK = 20
V_SET0 = 36
V_SET1 = 80
V_ACC = 124
V_LDX, V_LDW = 36, 44
V_X = 236

QA_M, QA_R, QB_M, QB_R = 36, 40, 44, 48
OA, OB = 52, 68
VS, VE, VP = 84, 100, 108
VKF, VKR, VVA, VVB = 116, 120, 124, 128
A_K, A_KR, A_V, B_K, B_KR, B_V, ST_V, ST_K, MK_V = 10, 11, 12, 13, 14, 15, 16, 17, 18
VPUB = 132

def spin_poll(a, name, check_lines, load_line, limit=2000000):
    a(f"s_mov_b32 s{S_CNT}, 0")
    a.lab(name)
    a(load_line)
    a(f"s_add_u32 s{S_CNT}, s{S_CNT}, 1")
    a("s_waitcnt vmcnt(0)")
    for l in check_lines: a(l)
    a(f"s_cbranch_scc1 {name}_OK")
    a(f"s_cmp_lt_u32 s{S_CNT}, {limit}")
    a(f"s_cbranch_scc1 {name}")
    a.lab(name + "_OK")

def run_code(a, name, QM, QR, O):
    def qk(creg):
        c = "0" if creg is None else f"v[{creg}:{creg+15}]"
        a(f"v_mfma_f32_32x32x16_bf16 v[{VS}:{VS+15}], v[{VKF}:{VKF+3}], v[{QM}:{QM+3}], {c}")
        a(f"v_mfma_f32_32x32x16_bf16 v[{VS}:{VS+15}], v[{VKR}:{VKR+3}], v[{QR}:{QR+3}], v[{VS}:{VS+15}]")
    def kread():
        a(f"ds_read_b128 v[{VKF}:{VKF+3}], v{A_K}")
        a(f"ds_read_b64 v[{VKR}:{VKR+1}], v{A_KR}")
    def kstep():
        a(f"v_add_u32 v{A_K}, v{ST_K}, v{A_K}")
        a(f"v_add_u32 v{A_KR}, v{ST_K}, v{A_KR}")
    def varead():
        a(f"ds_read_b64_tr_b16 v[{VVA}:{VVA+1}], v{A_V}")
        a(f"ds_read_b64_tr_b16 v[{VVA+2}:{VVA+3}], v{A_V} offset:576")
    def vbread():
        a(f"ds_read_b64_tr_b16 v[{VVB}:{VVB+1}], v{A_V} offset:1152")
        a(f"ds_read_b64_tr_b16 v[{VVB+2}:{VVB+3}], v{A_V} offset:1728")
    def unit(D):
        for r in range(8): a(f"v_exp_f32 v{VS+r}, v{VS+r}")
        for j in range(4): a(f"v_cvt_pk_bf16_f32 v{VP+j}, v{VS+2*j}, v{VS+2*j+1}")
        a(f"v_exp_f32 v{VE}, v{VS+8}")
        a(f"v_exp_f32 v{VE+1}, v{VS+9}")
        a("s_waitcnt lgkmcnt(4)")
        a(f"v_mfma_f32_32x32x16_bf16 v[{O}:{O+15}], v[{VVA}:{VVA+3}], v[{VP}:{VP+3}], v[{O}:{O+15}]")
        if D: varead()
        for r in range(2, 8): a(f"v_exp_f32 v{VE+r}, v{VS+8+r}")
        if D:
            a("s_waitcnt lgkmcnt(4)")
            qk(V_MASK if D == "mask" else None)
            kread()
        else:
            a("s_nop 0")
        for j in range(4): a(f"v_cvt_pk_bf16_f32 v{VP+4+j}, v{VE+2*j}, v{VE+2*j+1}")
        if D:
            kstep()
            a("s_waitcnt lgkmcnt(4)")
        else:
            a("s_nop 0")
            a("s_waitcnt lgkmcnt(0)")
        a(f"v_mfma_f32_32x32x16_bf16 v[{O}:{O+15}], v[{VVB}:{VVB+3}], v[{VP+4}:{VP+7}], v[{O}:{O+15}]")
        if D:
            vbread()
            a(f"v_add_u32 v{A_V}, v{ST_V}, v{A_V}")
    a.lab(name)
    kread()
    kstep()
    a(f"s_cmp_eq_u32 s{S_N}, 1")
    a(f"s_cbranch_scc1 {name}_M1")
    a("s_waitcnt lgkmcnt(0)")
    qk(None)
    varead(); kread(); vbread()
    kstep()
    a(f"v_add_u32 v{A_V}, v{ST_V}, v{A_V}")
    a(f"s_sub_u32 s{S_N}, s{S_N}, 2")
    a(f"s_cmp_eq_u32 s{S_N}, 0")
    a("s_nop 1")
    a(f"s_cbranch_scc1 {name}_MK")
    a.lab(name + "_LP")
    unit("plain")
    a(f"s_sub_u32 s{S_N}, s{S_N}, 1")
    a(f"s_cmp_lg_u32 s{S_N}, 0")
    a("s_nop 2")
    a(f"s_cbranch_scc1 {name}_LP")
    a.lab(name + "_MK")
    unit("mask")
    a("s_nop 5")
    a.lab(name + "_FN")
    unit(None)
    a(f"s_setpc_b64 s[{S_RET}:{S_RET+1}]")
    a.lab(name + "_M1")
    a("s_waitcnt lgkmcnt(0)")
    qk(V_MASK)
    varead(); kread(); vbread()
    a("s_nop 5")
    a(f"s_branch {name}_FN")

def set_run(a, region, tile_sreg, n_expr_lines, step):
    a(f"s_mul_i32 s{S_T0}, s{tile_sreg}, {TILE}")
    a(f"s_add_u32 s{S_T0}, s{S_T0}, {region}")
    a(f"v_add_u32 v{A_K}, s{S_T0}, v{B_K}")
    a(f"v_add_u32 v{A_KR}, s{S_T0}, v{B_KR}")
    a(f"v_and_b32 v{A_V}, s{S_T0}, v{MK_V}")
    a(f"v_add_u32 v{A_V}, v{B_V}, v{A_V}")
    a(f"v_mov_b32 v{ST_K}, {step & 0xffffffff:#x}")
    a(f"v_and_b32 v{ST_V}, v{ST_K}, v{MK_V}")
    for l in n_expr_lines: a(l)

def finalize(a, O, qb_sreg, tag):
    t = V_T
    R = VS
    a(f"v_mov_b32 v{t}, 0x21800000")
    a(f"v_mov_b32 v{t+1}, 0x5d800000")
    a(f"v_cmp_nge_f32 vcc, v{O+12}, v{t}")
    a(f"s_or_b64 s[{S_BAD}:{S_BAD+1}], s[{S_BAD}:{S_BAD+1}], vcc")
    a(f"v_cmp_nle_f32 vcc, v{O+12}, v{t+1}")
    a(f"s_or_b64 s[{S_BAD}:{S_BAD+1}], s[{S_BAD}:{S_BAD+1}], vcc")
    a(f"v_rcp_f32 v{t+2}, v{O+12}")
    a("s_nop 0")
    for r in range(12): a(f"v_mul_f32 v{O+r}, v{O+r}, v{t+2}")
    a(f"v_cvt_pk_bf16_f32 v{R}, v{O}, v{O+1}")
    a(f"v_cvt_pk_bf16_f32 v{R+1}, v{O+2}, v{O+3}")
    a(f"v_cvt_pk_bf16_f32 v{R+2}, v{O+4}, v{O+5}")
    a(f"v_cvt_pk_bf16_f32 v{R+3}, v{O+6}, v{O+7}")
    a(f"v_cvt_pk_bf16_f32 v{R+4}, v{O+8}, v{O+9}")
    a(f"v_cvt_pk_bf16_f32 v{R+5}, v{O+10}, v{O+11}")
    a(f"v_permlane32_swap_b32 v{R}, v{R+2}")
    a(f"v_permlane32_swap_b32 v{R+1}, v{R+3}")
    a(f"v_bfe_u32 v{t}, v{V_LANE}, 4, 1")
    a(f"v_mul_u32_u24 v{t}, {18*1024}, v{t}")
    a(f"v_and_b32 v{t+1}, 15, v{V_LANE}")
    a(f"v_lshl_add_u32 v{t}, v{t+1}, 4, v{t}")
    a(f"v_lshrrev_b32 v{t+1}, 5, v{V_LANE}")
    a(f"v_lshlrev_b32 v{t+1}, 8, v{t+1}")
    a(f"v_add_u32 v{t+1}, v{t}, v{t+1}")
    a(f"s_mul_i32 s{S_T0}, s{S_GRP}, 294912")
    a(f"s_add_u32 s{S_T0}, s{S_T0}, {WS_O}")
    a(f"s_mul_i32 s{S_T1}, s{qb_sreg}, {2*18*1024}")
    a(f"s_add_u32 s{S_T0}, s{S_T0}, s{S_T1}")
    a(f"s_lshl_b32 s{S_T1}, s{S_HP}, 10")
    a(f"s_lshl_b32 s{S_T2}, s{S_HEAD}, 9")
    a(f"s_add_u32 s{S_T1}, s{S_T1}, s{S_T2}")
    a(f"s_add_u32 s{S_T1}, s{S_T1}, s{S_T0}")
    a(f"buffer_store_dwordx4 v[{R}:{R+3}], v{t+1}, s[{S_WS}:{S_WS+3}], s{S_T1} offen sc1")
    a(f"s_lshr_b32 s{S_T1}, s{S_HP}, 3")
    a(f"s_add_u32 s{S_T1}, s{S_T1}, 16")
    a(f"s_lshl_b32 s{S_T1}, s{S_T1}, 10")
    a(f"s_bfe_u32 s{S_T2}, s{S_HP}, 0x20001")
    a(f"s_lshl_b32 s{S_T2}, s{S_T2}, 8")
    a(f"s_add_u32 s{S_T1}, s{S_T1}, s{S_T2}")
    a(f"s_and_b32 s{S_T2}, s{S_HP}, 1")
    a(f"s_lshl_b32 s{S_T2}, s{S_T2}, 3")
    a(f"s_add_u32 s{S_T1}, s{S_T1}, s{S_T2}")
    a(f"s_lshl_b32 s{S_T2}, s{S_HEAD}, 2")
    a(f"s_add_u32 s{S_T1}, s{S_T1}, s{S_T2}")
    a(f"s_add_u32 s{S_T1}, s{S_T1}, s{S_T0}")
    a(f"s_cmp_eq_u32 s{S_HEAD}, 0")
    a(f"s_cselect_b64 vcc, -1, 0")
    a(f"v_cndmask_b32_e64 v{R+4}, v{R+5}, v{R+4}, vcc")
    a(f"s_mov_b64 s[{S_SAVE}:{S_SAVE+1}], exec")
    a(f"s_mov_b32 exec_hi, 0")
    a(f"buffer_store_dword v{R+4}, v{t}, s[{S_WS}:{S_WS+3}], s{S_T1} offen sc1")
    a(f"s_mov_b64 exec, s[{S_SAVE}:{S_SAVE+1}]")

def phase2(a, debug_stage, ts):
    t = V_T; L = V_LANE
    a.c("======== phase 2 ========")
    a(f"v_mov_b32 v{t}, {TAGS_LDS}")
    a(f"ds_read_b128 v[{V_X}:{V_X+3}], v{t}")
    a("s_waitcnt lgkmcnt(0)")
    a(f"v_readfirstlane_b32 s{S_TAGOUT}, v{V_X}")
    a(f"v_readfirstlane_b32 s{S_TAGIN}, v{V_X+1}")
    a(f"v_readfirstlane_b32 s{S_TAGO}, v{V_X+2}")
    a(f"s_mov_b64 s[{S_BAD}:{S_BAD+1}], 0")
    a(f"v_and_b32 v{t}, 31, v{L}")
    a(f"v_lshrrev_b32 v{t+1}, 5, v{L}")
    a(f"v_lshrrev_b32 v{t+2}, 2, v{t}")
    a(f"v_lshrrev_b32 v{t+3}, 3, v{t}")
    a(f"v_xor_b32 v{t+2}, v{t+2}, v{t+3}")
    a(f"v_xor_b32 v{t+2}, v{t+2}, v{t+1}")
    a(f"v_and_b32 v{t+2}, 1, v{t+2}")
    a(f"v_lshlrev_b32 v{t+2}, 4, v{t+2}")
    a(f"v_lshl_add_u32 v{t+2}, v{t}, 5, v{t+2}")
    a(f"s_lshl_b32 s{S_T0}, s{S_HEAD}, 10")
    a(f"v_add_u32 v{B_K}, s{S_T0}, v{t+2}")
    a(f"v_lshlrev_b32 v{B_KR}, 3, v{t}")
    a(f"v_add_u32 v{B_KR}, 2048, v{B_KR}")
    a(f"v_bfe_u32 v{t+2}, v{L}, 2, 2")
    a(f"v_lshl_add_u32 v{t+2}, v{t+1}, 2, v{t+2}")
    a(f"v_mul_u32_u24 v{t+2}, 72, v{t+2}")
    a(f"v_add_u32 v{t+2}, 2304, v{t+2}")
    a(f"v_and_b32 v{t+3}, 3, v{L}")
    a(f"v_lshlrev_b32 v{t+4}, 3, v{t+3}")
    a(f"s_mul_i32 s{S_T0}, s{S_HEAD}, 40")
    a(f"v_add3_u32 v{t+4}, v{t+4}, v{t+2}, s{S_T0}")
    a(f"v_add_u32 v{t+5}, 32, v{t+2}")
    a(f"v_bfe_u32 v{t+6}, v{L}, 4, 1")
    a(f"v_cmp_eq_u32 vcc, 1, v{t+6}")
    a(f"v_lshrrev_b32 v{t+7}, 1, v{t+3}")
    a(f"v_and_b32 v{t+7}, v{t+7}, v{t+6}")
    a(f"v_cndmask_b32 v{B_V}, v{t+4}, v{t+5}, vcc")
    a(f"v_cmp_eq_u32 vcc, 1, v{t+7}")
    a(f"v_mov_b32 v{t+5}, {MISC}")
    a(f"v_mov_b32 v{t+6}, -1")
    a(f"v_cndmask_b32 v{B_V}, v{B_V}, v{t+5}, vcc")
    a(f"v_cndmask_b32_e64 v{MK_V}, v{t+6}, 0, vcc")
    a(f"s_sub_u32 s{S_T5}, 7, s{S_M}")
    for (QM, QR, sreg) in ((QA_M, QA_R, S_M), (QB_M, QB_R, S_T5)):
        a(f"s_mul_i32 s{S_T0}, s{sreg}, {QTILE}")
        a(f"s_add_u32 s{S_T0}, s{S_T0}, {Q_BASE}")
        a(f"v_add_u32 v{t}, s{S_T0}, v{B_K}")
        a(f"v_add_u32 v{t+1}, s{S_T0}, v{B_KR}")
        a(f"ds_read_b128 v[{QM}:{QM+3}], v{t}")
        a(f"ds_read_b64 v[{QR}:{QR+1}], v{t+1}")
    a(f"s_cmp_eq_u32 s{S_S}, 7")
    a("s_cbranch_scc1 L_NOPUB")
    a(f"v_lshlrev_b32 v{t+2}, 4, v{L}")
    a(f"s_lshl_b32 s{S_T0}, s{S_WID}, 10")
    a(f"v_add_u32 v{t+2}, s{S_T0}, v{t+2}")
    a(f"v_add_u32 v{t+3}, {KV_OWN}, v{t+2}")
    for i in range(4):
        a(f"ds_read_b128 v[{VPUB+4*i}:{VPUB+4*i+3}], v{t+3} offset:{i*8192}")
    a(f"ds_read_b128 v[{VPUB+16}:{VPUB+19}], v{t+3} offset:32768")
    a(f"s_mul_i32 s{S_T1}, s{S_IDX}, 36864")
    a("s_waitcnt lgkmcnt(0)")
    for i in range(4):
        a(f"buffer_store_dwordx4 v[{VPUB+4*i}:{VPUB+4*i+3}], v{t+2}, s[{S_WS}:{S_WS+3}], s{S_T1} offen sc1")
        a(f"s_add_u32 s{S_T1}, s{S_T1}, 8192")
    a(f"s_cmp_ge_u32 s{S_WID}, 4")
    a("s_cbranch_scc1 L_NOPUB")
    a(f"buffer_store_dwordx4 v[{VPUB+16}:{VPUB+19}], v{t+2}, s[{S_WS}:{S_WS+3}], s{S_T1} offen sc1")
    a.lab("L_NOPUB")
    a("s_waitcnt lgkmcnt(0)")
    a("s_barrier")
    a(f"s_cmp_eq_u32 s{S_HEAD}, 0")
    a(f"s_cselect_b32 s{S_T0}, -1, 0")
    a(f"s_cselect_b32 s{S_T1}, 0, -1")
    a(f"v_cmp_gt_u32 vcc, 32, v{L}")
    a(f"v_mov_b32 v{t}, s{S_T0}")
    a(f"v_mov_b32 v{t+1}, s{S_T1}")
    a(f"v_cndmask_b32_e64 v{t}, 0, v{t}, vcc")
    a(f"v_cndmask_b32_e64 v{t+1}, 0, v{t+1}, vcc")
    for QR in (QA_R, QB_R):
        a(f"v_and_b32 v{QR}, v{QR}, v{t}")
        a(f"v_and_b32 v{QR+1}, v{QR+1}, v{t+1}")
        a(f"v_mov_b32 v{QR+2}, 0")
        a(f"v_mov_b32 v{QR+3}, 0")
    a(f"v_mov_b32 v{VKR+2}, 0")
    a(f"v_mov_b32 v{VKR+3}, 0")
    for r in range(16):
        a(f"v_mov_b32 v{OA+r}, 0")
        a(f"v_mov_b32 v{OB+r}, 0")
    ts(4)
    a(f"s_mov_b32 s{S_T4}, 0")
    set_run(a, KV_OWN, S_T4, [f"s_add_u32 s{S_N}, s{S_M}, 1"], TILE)
    a(f"s_call_b64 s[{S_RET}:{S_RET+1}], L_RUNA")
    a(f"s_cmp_eq_u32 s{S_S}, 7")
    a("s_cbranch_scc1 L_NOFLAG")
    a("s_waitcnt vmcnt(0)")
    a(f"s_lshl_b32 s{S_T0}, s{S_IDX}, 8")
    a(f"s_lshl_b32 s{S_T1}, s{S_WID}, 2")
    a(f"s_add_u32 s{S_T0}, s{S_T0}, s{S_T1}")
    a(f"s_add_u32 s{S_T0}, s{S_T0}, {WS_FLAG+128}")
    a(f"v_mov_b32 v{t}, 0")
    a(f"v_mov_b32 v{t+1}, s{S_TAGOUT}")
    a(f"s_mov_b64 s[{S_SAVE}:{S_SAVE+1}], exec")
    a(f"s_mov_b64 exec, 1")
    a(f"buffer_store_dword v{t+1}, v{t}, s[{S_WS}:{S_WS+3}], s{S_T0} offen sc1")
    a(f"s_mov_b64 exec, s[{S_SAVE}:{S_SAVE+1}]")
    a.lab("L_NOFLAG")
    a(f"s_mov_b32 s{S_T4}, 0")
    set_run(a, KV_OWN, S_T4, [f"s_sub_u32 s{S_N}, 8, s{S_M}"], TILE)
    a(f"s_call_b64 s[{S_RET}:{S_RET+1}], L_RUNB")
    ts(5)
    a(f"s_cmp_eq_u32 s{S_S}, 0")
    a("s_cbranch_scc1 L_FINAL")
    a(f"s_sub_u32 s{S_T5}, s{S_IDX}, 1")
    a(f"s_lshl_b32 s{S_T4}, s{S_T5}, 8")
    a(f"s_lshl_b32 s{S_T1}, s{S_WID}, 2")
    a(f"s_add_u32 s{S_T4}, s{S_T4}, s{S_T1}")
    a(f"s_add_u32 s{S_T4}, s{S_T4}, {WS_FLAG+128}")
    a(f"v_mov_b32 v{t}, 0")
    spin_poll(a, "L_POLL1",
              [f"v_readfirstlane_b32 s{S_T0}, v{t+1}", f"s_cmp_eq_u32 s{S_T0}, s{S_TAGIN}"],
              f"buffer_load_dword v{t+1}, v{t}, s[{S_WS}:{S_WS+3}], s{S_T4} offen sc1")
    ts(6)
    a(f"v_lshlrev_b32 v{t+2}, 4, v{L}")
    a(f"s_lshl_b32 s{S_T0}, s{S_WID}, 10")
    a(f"v_add_u32 v{t+2}, s{S_T0}, v{t+2}")
    a(f"s_mul_i32 s{S_T1}, s{S_T5}, 36864")
    for i in range(4):
        a(f"buffer_load_dwordx4 v[{VPUB+4*i}:{VPUB+4*i+3}], v{t+2}, s[{S_WS}:{S_WS+3}], s{S_T1} offen sc1")
        a(f"s_add_u32 s{S_T1}, s{S_T1}, 8192")
    a(f"v_add_u32 v{t+3}, {KV_HALO}, v{t+2}")
    a(f"s_cmp_ge_u32 s{S_WID}, 4")
    a("s_cbranch_scc1 L_H4")
    a(f"buffer_load_dwordx4 v[{VPUB+16}:{VPUB+19}], v{t+2}, s[{S_WS}:{S_WS+3}], s{S_T1} offen sc1")
    a("s_waitcnt vmcnt(0)")
    a(f"ds_write_b128 v{t+3}, v[{VPUB+16}:{VPUB+19}] offset:32768")
    a.lab("L_H4")
    a("s_waitcnt vmcnt(0)")
    for i in range(4):
        a(f"ds_write_b128 v{t+3}, v[{VPUB+4*i}:{VPUB+4*i+3}] offset:{i*8192}")
    a(f"s_cmp_lg_u32 s{S_WID}, 0")
    a("s_cbranch_scc1 L_NOG")
    a(f"s_lshl_b32 s{S_T0}, s{S_T5}, 8")
    a(f"s_add_u32 s{S_T0}, s{S_T0}, {WS_FLAG}")
    a(f"v_mov_b32 v{t+1}, s{S_TAGIN}")
    a(f"s_mov_b64 s[{S_SAVE}:{S_SAVE+1}], exec")
    a(f"s_mov_b64 exec, 1")
    a(f"buffer_store_dword v{t+1}, v{t}, s[{S_WS}:{S_WS+3}], s{S_T0} offen sc1")
    a(f"s_mov_b64 exec, s[{S_SAVE}:{S_SAVE+1}]")
    a.lab("L_NOG")
    a(f"v_mov_b32 v{t+1}, {NEG:#x}")
    for r in range(16): a(f"v_sub_f32 v{V_MASK+r}, v{t+1}, v{V_MASK+r}")
    a("s_waitcnt lgkmcnt(0)")
    a("s_barrier")
    ts(7)
    a(f"s_mov_b32 s{S_T4}, 7")
    set_run(a, KV_HALO, S_T4, [f"s_add_u32 s{S_N}, s{S_M}, 1"], -TILE)
    a(f"s_call_b64 s[{S_RET}:{S_RET+1}], L_RUNB")
    a(f"s_mov_b32 s{S_T4}, 7")
    set_run(a, KV_HALO, S_T4, [f"s_sub_u32 s{S_N}, 8, s{S_M}"], -TILE)
    a(f"s_call_b64 s[{S_RET}:{S_RET+1}], L_RUNA")
    a.lab("L_FINAL")
    ts(8)
    a("s_nop 7")
    a("s_nop 7")
    finalize(a, OA, S_M, "A")
    a(f"s_sub_u32 s{S_T5}, 7, s{S_M}")
    finalize(a, OB, S_T5, "B")
    a("s_branch L_P3")
    run_code(a, "L_RUNA", QA_M, QA_R, OA)
    run_code(a, "L_RUNB", QB_M, QB_R, OB)

def phase3(a, debug_stage, ts):
    t = V_T; L = V_LANE
    a.lab("L_P3")
    a.c("======== phase 3 ========")
    a("s_waitcnt vmcnt(0)")
    a("s_barrier")
    ts(9)
    a(f"s_lshl_b32 s{S_T4}, s{S_GRP}, 8")
    a(f"s_add_u32 s{S_T4}, s{S_T4}, {WS_OF}")
    a(f"s_cmp_lg_u32 s{S_WID}, 0")
    a("s_cbranch_scc1 L_P3W")
    a(f"s_lshl_b32 s{S_T0}, s{S_HP}, 2")
    a(f"s_add_u32 s{S_T0}, s{S_T0}, s{S_T4}")
    a(f"v_mov_b32 v{t}, 0")
    a(f"v_mov_b32 v{t+1}, s{S_TAGO}")
    a(f"s_mov_b64 s[{S_SAVE}:{S_SAVE+1}], exec")
    a(f"s_mov_b64 exec, 1")
    a(f"buffer_store_dword v{t+1}, v{t}, s[{S_WS}:{S_WS+3}], s{S_T0} offen offset:128 sc1")
    a(f"s_mov_b64 exec, 0xffff")
    a(f"v_lshlrev_b32 v{t}, 2, v{L}")
    spin_poll(a, "L_POLL2",
              [f"v_cmp_ne_u32 vcc, s{S_TAGO}, v{t+1}", "s_nop 1", f"s_cmp_eq_u64 vcc, 0"],
              f"buffer_load_dword v{t+1}, v{t}, s[{S_WS}:{S_WS+3}], s{S_T4} offen offset:128 sc1")
    a(f"s_cmp_lg_u32 s{S_HP}, 0")
    a("s_cbranch_scc1 L_NOG2")
    a(f"s_mov_b64 exec, 1")
    a(f"v_mov_b32 v{t}, 0")
    a(f"v_mov_b32 v{t+1}, s{S_TAGO}")
    a(f"buffer_store_dword v{t+1}, v{t}, s[{S_WS}:{S_WS+3}], s{S_T4} offen sc1")
    a.lab("L_NOG2")
    a(f"s_mov_b64 exec, s[{S_SAVE}:{S_SAVE+1}]")
    a.lab("L_P3W")
    a("s_barrier")
    ts(10)
    if debug_stage == 2:
        a("s_branch L_FIN")
        return
    OF = 36
    AC = 108
    WF0, WF1 = 148, 168
    AW, AW2 = 10, 11
    a(f"s_mul_i32 s{S_T0}, s{S_GRP}, 294912")
    a(f"s_add_u32 s{S_T0}, s{S_T0}, {WS_O}")
    a(f"s_lshr_b32 s{S_T1}, s{S_HP}, 3")
    a(f"s_lshl_b32 s{S_T1}, s{S_T1}, 3")
    a(f"s_lshl_b32 s{S_T2}, s{S_M}, 1")
    a(f"s_add_u32 s{S_T1}, s{S_T1}, s{S_T2}")
    a(f"s_mul_i32 s{S_T1}, s{S_T1}, 18")
    a(f"s_mul_i32 s{S_T2}, s{S_HEAD}, 9")
    a(f"s_add_u32 s{S_T1}, s{S_T1}, s{S_T2}")
    a(f"s_lshl_b32 s{S_T1}, s{S_T1}, 10")
    a(f"s_add_u32 s{S_T0}, s{S_T0}, s{S_T1}")
    a(f"v_lshlrev_b32 v{t}, 4, v{L}")
    a(f"s_add_u32 s{S_T1}, s{S_T0}, {18*1024}")
    for ks in range(9):
        for mt in range(2):
            r = OF + (mt*9+ks)*4
            sreg = S_T0 if mt == 0 else S_T1
            a(f"buffer_load_dwordx4 v[{r}:{r+3}], v{t}, s[{S_WS}:{S_WS+3}], s{sreg} offen sc1")
        a(f"s_add_u32 s{S_T0}, s{S_T0}, 1024")
        a(f"s_add_u32 s{S_T1}, s{S_T1}, 1024")
    a(f"v_lshrrev_b32 v{t+1}, 4, v{L}")
    a(f"v_bfe_u32 v{t+2}, v{L}, 2, 2")
    a(f"v_and_b32 v{t+3}, 3, v{L}")
    a(f"v_lshrrev_b32 v{t+4}, 1, v{t+1}")
    a(f"v_lshlrev_b32 v{t+4}, 2, v{t+4}")
    a(f"v_lshl_add_u32 v{t+4}, v{t+1}, 3, v{t+4}")
    a(f"v_add_u32 v{t+4}, v{t+4}, v{t+2}")
    a(f"v_mul_u32_u24 v{t+4}, 144, v{t+4}")
    a(f"v_lshl_add_u32 v{t+4}, v{t+3}, 3, v{t+4}")
    a(f"s_mul_i32 s{S_T0}, s{S_HEAD}, {9*5184}")
    a(f"v_add_u32 v{AW}, s{S_T0}, v{t+4}")
    a(f"v_mul_u32_u24 v{t+4}, 72, v{t+1}")
    a(f"v_add3_u32 v{t+4}, v{t+4}, v{t+2}, 16")
    a(f"v_mul_u32_u24 v{t+4}, 144, v{t+4}")
    a(f"v_lshl_add_u32 v{AW2}, v{t+3}, 3, v{t+4}")
    for i in range(40): a(f"v_mov_b32 v{AC+i}, 0")
    def wreads(ks, kh, WF):
        l = []
        kap = 9*kh + ks
        for T in range(5):
            b = WF + 4*T
            if kap < 16:
                o0 = ks*5184 + T*32
                l.append(f"ds_read_b64_tr_b16 v[{b}:{b+1}], v{AW} offset:{o0}")
                l.append(f"ds_read_b64_tr_b16 v[{b+2}:{b+3}], v{AW} offset:{o0+576}")
            else:
                o0 = (kap-16)*8*36*144 + T*32
                l.append(f"ds_read_b64_tr_b16 v[{b}:{b+1}], v{AW2} offset:{o0}")
                l.append(f"ds_read_b64_tr_b16 v[{b+2}:{b+3}], v{AW2} offset:{o0+36*144}")
        return l
    def body(kh):
        for rd in wreads(0, kh, WF0): a(rd)
        for ks in range(9):
            cur = WF0 if ks % 2 == 0 else WF1
            nxt = WF1 if ks % 2 == 0 else WF0
            a(f"s_waitcnt vmcnt({2*(8-ks)}) lgkmcnt(0)")
            rs = wreads(ks+1, kh, nxt) if ks < 8 else []
            ri = 0
            for T in range(5):
                for mt in range(2):
                    d = AC + (mt*5+T)*4
                    o = OF + (mt*9+ks)*4
                    a(f"v_mfma_f32_16x16x32_bf16 v[{d}:{d+3}], v[{cur+4*T}:{cur+4*T+3}], v[{o}:{o+3}], v[{d}:{d+3}]")
                    if ri < len(rs): a(rs[ri]); ri += 1
    a(f"s_cmp_eq_u32 s{S_HEAD}, 0")
    a("s_cbranch_scc0 L_P3K1")
    body(0)
    a("s_branch L_P3R")
    a.lab("L_P3K1")
    body(1)
    a.lab("L_P3R")
    ts(11)
    a("s_nop 7")
    a("s_barrier")
    a(f"v_lshlrev_b32 v{t}, 4, v{L}")
    a(f"s_mul_i32 s{S_T0}, s{S_WID}, 5120")
    a(f"s_add_u32 s{S_T0}, s{S_T0}, {KV_OWN}")
    a(f"v_add_u32 v{t+1}, s{S_T0}, v{t}")
    a(f"s_xor_b32 s{S_T1}, s{S_WID}, 4")
    a(f"s_mul_i32 s{S_T1}, s{S_T1}, 5120")
    a(f"s_add_u32 s{S_T1}, s{S_T1}, {KV_OWN}")
    a(f"v_add_u32 v{t+2}, s{S_T1}, v{t}")
    a(f"s_cmp_eq_u32 s{S_HEAD}, 0")
    a("s_cbranch_scc0 L_P3X1")
    for T in range(5): a(f"ds_write_b128 v{t+1}, v[{AC+(5+T)*4}:{AC+(5+T)*4+3}] offset:{T*1024}")
    a("s_branch L_P3X2")
    a.lab("L_P3X1")
    for T in range(5): a(f"ds_write_b128 v{t+1}, v[{AC+T*4}:{AC+T*4+3}] offset:{T*1024}")
    a("s_nop 1")
    for i in range(20): a(f"v_mov_b32 v{AC+i}, v{AC+20+i}")
    a.lab("L_P3X2")
    a("s_waitcnt lgkmcnt(0)")
    a("s_barrier")
    PX = WF0
    for T in range(5): a(f"ds_read_b128 v[{PX+4*T}:{PX+4*T+3}], v{t+2} offset:{T*1024}")
    a("s_waitcnt lgkmcnt(0)")
    for i in range(20): a(f"v_add_f32 v{AC+i}, v{AC+i}, v{PX+i}")
    for T in range(5):
        a(f"v_cvt_pk_bf16_f32 v{PX+2*T}, v{AC+4*T}, v{AC+4*T+1}")
        a(f"v_cvt_pk_bf16_f32 v{PX+2*T+1}, v{AC+4*T+2}, v{AC+4*T+3}")
    a(f"v_and_b32 v{t}, 15, v{L}")
    a(f"v_mul_u32_u24 v{t}, 144, v{t}")
    a(f"v_lshrrev_b32 v{t+1}, 4, v{L}")
    a(f"v_lshl_add_u32 v{t}, v{t+1}, 3, v{t}")
    a(f"s_mul_i32 s{S_T0}, s{S_WID}, 2304")
    a(f"s_add_u32 s{S_T0}, s{S_T0}, {KV_HALO+8192}")
    a(f"v_add_u32 v{t}, s{S_T0}, v{t}")
    for T in range(4): a(f"ds_write_b64 v{t}, v[{PX+2*T}:{PX+2*T+1}] offset:{T*32}")
    a(f"s_mov_b64 s[{S_SAVE}:{S_SAVE+1}], exec")
    a(f"s_mov_b32 exec_hi, 0")
    a(f"ds_write_b64 v{t}, v[{PX+8}:{PX+9}] offset:128")
    a(f"s_mov_b64 exec, s[{S_SAVE}:{S_SAVE+1}]")
    a(f"s_lshr_b32 s{S_T1}, s{S_HP}, 3")
    a(f"s_lshl_b32 s{S_T1}, s{S_T1}, 7")
    a(f"s_lshl_b32 s{S_T2}, s{S_S}, 8")
    a(f"s_add_u32 s{S_T1}, s{S_T1}, s{S_T2}")
    a(f"s_lshl_b32 s{S_T2}, s{S_M}, 5")
    a(f"s_add_u32 s{S_T1}, s{S_T1}, s{S_T2}")
    a(f"s_lshl_b32 s{S_T2}, s{S_HEAD}, 4")
    a(f"s_add_u32 s{S_T1}, s{S_T1}, s{S_T2}")
    a(f"s_mul_i32 s{S_T1}, s{S_T1}, 2304")
    a(f"s_mul_i32 s{S_T2}, s{S_B}, 1152")
    a(f"s_add_u32 s{S_T1}, s{S_T1}, s{S_T2}")
    a(f"s_and_b32 s{S_T2}, s{S_HP}, 7")
    a(f"s_mul_i32 s{S_T2}, s{S_T2}, 144")
    a(f"s_add_u32 s{S_T1}, s{S_T1}, s{S_T2}")
    a("s_waitcnt lgkmcnt(0)")
    for i in range(3):
        a(f"v_add_u32 v{t+1}, {i*64}, v{L}")
        a(f"v_lshlrev_b32 v{t+2}, 4, v{t+1}")
        a(f"v_add_u32 v{t+2}, s{S_T0}, v{t+2}")
        a(f"ds_read_b128 v[{AC+4*i}:{AC+4*i+3}], v{t+2}")
        a(f"v_mul_u32_u24 v{t+3}, 7282, v{t+1}")
        a(f"v_lshrrev_b32 v{t+3}, 16, v{t+3}")
        a(f"v_mul_u32_u24 v{t+4}, 9, v{t+3}")
        a(f"v_sub_u32 v{t+4}, v{t+1}, v{t+4}")
        a(f"v_mul_u32_u24 v{t+3}, 2304, v{t+3}")
        a(f"v_lshl_add_u32 v{AC+12+i}, v{t+4}, 4, v{t+3}")
    a("s_waitcnt lgkmcnt(0)")
    for i in range(3):
        if i == 2:
            a(f"s_mov_b64 exec, 0xffff")
        a(f"buffer_store_dwordx4 v[{AC+4*i}:{AC+4*i+3}], v{AC+12+i}, s[{S_OUT}:{S_OUT+3}], s{S_T1} offen")
    a(f"s_mov_b64 exec, -1")

def gen(debug_stage=0, timing=False, exp=''):
    a = Asm()
    a(f"""; Kernarg layout (72 bytes): A_x, A_wqkv, A_wo, B_x, B_wqkv, B_wo, out, debug, ws
; @launch grid=(256,1,1) block=(512,1,1) lds={LDS_TOTAL}""")
    a.l = [x.strip() for x in a.l]
    a(f""".amdgcn_target "amdgcn-amd-amdhsa--gfx950"
.text
.globl {NAME}_kernel
.p2align 8
.type {NAME}_kernel,@function""")
    a.lab(f"{NAME}_kernel")
    a("s_cmp_ge_u32 s2, 256")
    a("s_cbranch_scc1 L_END")
    a(f"s_and_b32 s3, s2, 7")
    a(f"s_lshr_b32 s{S_B}, s3, 2")
    a(f"s_mul_i32 s{S_T0}, s{S_B}, 24")
    a(f"s_add_u32 s4, s0, s{S_T0}")
    a(f"s_addc_u32 s5, s1, 0")
    a(f"s_load_dwordx2 s[{S_X}:{S_X+1}], s[4:5], 0")
    a(f"s_load_dwordx2 s[{S_W}:{S_W+1}], s[4:5], 8")
    a(f"s_load_dwordx2 s[{S_WO}:{S_WO+1}], s[4:5], 16")
    a(f"s_load_dwordx2 s[{S_OUT}:{S_OUT+1}], s[0:1], 48")
    a(f"s_load_dwordx2 s[{S_WS}:{S_WS+1}], s[0:1], 64")
    def ts(i):
        if timing: a(f"s_memtime s[{70+2*i}:{71+2*i}]")
    a.ts = ts
    if timing:
        for i in range(12): a(f"s_mov_b32 s{70+2*i}, 0")
    ts(0)
    a(f"s_lshr_b32 s{S_T1}, s2, 3")
    a(f"s_lshr_b32 s{S_T2}, s3, 1")
    a(f"s_and_b32 s{S_T2}, s{S_T2}, 1")
    a(f"s_lshl_b32 s{S_T2}, s{S_T2}, 2")
    a(f"s_and_b32 s{S_T3}, s{S_T1}, 3")
    a(f"s_add_u32 s{S_S}, s{S_T2}, s{S_T3}")
    a(f"s_and_b32 s{S_T2}, s3, 1")
    a(f"s_lshl_b32 s{S_T2}, s{S_T2}, 3")
    a(f"s_lshr_b32 s{S_T4}, s{S_T1}, 2")
    a(f"s_add_u32 s{S_HP}, s{S_T2}, s{S_T4}")
    a(f"s_lshl_b32 s{S_T3}, s{S_T3}, 1")
    a(f"s_add_u32 s{S_C}, s{S_T4}, s{S_T3}")
    a(f"s_cmp_ge_u32 s{S_C}, 9")
    a(f"s_cselect_b32 s{S_T3}, 9, 0")
    a(f"s_sub_u32 s{S_C}, s{S_C}, s{S_T3}")
    if 'norot' in exp: a(f"s_mov_b32 s{S_C}, 0")
    if 'rothl' in exp: a(f"s_mov_b32 s{S_C}, s{S_T4}")
    if 'rotsl' in exp:
        a(f"s_and_b32 s{S_C}, s{S_T1}, 3")
        a(f"s_lshl_b32 s{S_C}, s{S_C}, 1")
    a(f"s_lshl_b32 s{S_T0}, s{S_B}, 4")
    a(f"s_add_u32 s{S_T0}, s{S_T0}, s{S_HP}")
    a(f"s_lshl_b32 s{S_T0}, s{S_T0}, 3")
    a(f"s_add_u32 s{S_IDX}, s{S_T0}, s{S_S}")
    a(f"s_lshl_b32 s{S_T0}, s{S_B}, 3")
    a(f"s_add_u32 s{S_GRP}, s{S_T0}, s{S_S}")
    a(f"v_lshrrev_b32 v{V_T}, 6, v0")
    a(f"v_and_b32 v{V_LANE}, 63, v0")
    a(f"v_readfirstlane_b32 s{S_WID}, v{V_T}")
    for (r, n) in ((S_X, 2359296), (S_W, 1990656), (S_WO, 663552), (S_WS, 268435456), (S_OUT, 4718592)):
        a(f"s_mov_b32 s{r+2}, {n}")
        a(f"s_mov_b32 s{r+3}, 0x00020000")
    a(f"s_and_b32 s{S_M}, s{S_WID}, 3")
    a(f"s_lshr_b32 s{S_HEAD}, s{S_WID}, 2")
    a(f"s_cmp_ge_u32 s{S_WID}, 4")
    a("s_cbranch_scc1 L_LOADER")

    L = V_LANE
    t = V_T
    a.c("compute-wave address setup")
    a(f"v_and_b32 v{t}, 15, v{L}")
    a(f"v_lshrrev_b32 v{t+1}, 4, v{L}")
    a(f"v_lshrrev_b32 v{t+2}, 1, v{t}")
    a(f"s_lshl_b32 s{S_T0}, s{S_WID}, 6")
    a(f"v_add_u32 v{t+3}, s{S_T0}, v{t}")
    a(f"v_lshlrev_b32 v{t+3}, 7, v{t+3}")
    a(f"v_xor_b32 v{t+4}, v{t+1}, v{t+2}")
    a(f"v_lshlrev_b32 v{t+5}, 4, v{t+4}")
    a(f"v_add_u32 v{V_AX}, v{t+3}, v{t+5}")
    a(f"v_xor_b32 v{t+4}, 4, v{t+4}")
    a(f"v_lshlrev_b32 v{t+5}, 4, v{t+4}")
    a(f"v_add_u32 v{V_AX+1}, v{t+3}, v{t+5}")
    a(f"v_bfe_u32 v{t}, v{L}, 2, 2")
    a(f"v_and_b32 v{t+2}, 3, v{L}")
    a(f"v_and_b32 v{t+3}, 1, v{t+1}")
    a(f"v_lshl_add_u32 v{t+3}, v{t+3}, 2, v{t}")
    a(f"v_lshlrev_b32 v{t+3}, 5, v{t+3}")
    a(f"v_lshl_add_u32 v{t+4}, v{t+1}, 3, v{t}")
    a(f"v_lshlrev_b32 v{t+4}, 8, v{t+4}")
    a(f"v_add_u32 v{t+4}, 32768, v{t+4}")
    a(f"v_lshlrev_b32 v{t+5}, 3, v{t+2}")
    a(f"s_and_b32 s{S_T1}, s{S_HP}, 1")
    a(f"s_lshl_b32 s{S_T1}, s{S_T1}, 3")
    a(f"v_add3_u32 v{t+5}, v{t+5}, v{t+3}, s{S_T1}")
    for T in range(6):
        sig, h = T >> 1, T & 1
        off = 80*sig + (40 if h else 0)
        a(f"v_add_u32 v{t+6}, {off}, v{t+5}")
        a(f"v_and_b32 v{t+6}, 255, v{t+6}")
        a(f"v_add_u32 v{V_AW+T}, v{t+4}, v{t+6}")
    a(f"v_min_u32 v{t+6}, 2, v{t+2}")
    a(f"v_mul_u32_u24 v{t+6}, 80, v{t+6}")
    a(f"v_add3_u32 v{t+6}, v{t+6}, v{t+3}, s{S_T1}")
    a(f"v_add_u32 v{t+6}, 32, v{t+6}")
    a(f"v_and_b32 v{t+6}, 255, v{t+6}")
    a(f"v_add_u32 v{V_AW+6}, v{t+4}, v{t+6}")
    for i in range(112):
        a(f"v_mov_b32 v{V_ACC+i}, 0")
    a("s_waitcnt lgkmcnt(0)")
    a("s_branch L_COMPUTE2")

    a.lab("L_LOADER")
    a(f"s_sub_u32 s{S_T5}, s{S_WID}, 4")
    a(f"v_lshrrev_b32 v{t}, 3, v{L}")
    a(f"v_mul_u32_u24 v{t}, 1152, v{t}")
    a(f"v_lshrrev_b32 v{t+1}, 4, v{L}")
    a(f"v_and_b32 v{t+2}, 7, v{L}")
    a(f"v_xor_b32 v{t+3}, v{t+2}, v{t+1}")
    a(f"v_lshl_add_u32 v{V_AX}, v{t+3}, 4, v{t}")
    a(f"v_xor_b32 v{t+3}, 4, v{t+3}")
    a(f"v_lshl_add_u32 v{V_AX+1}, v{t+3}, 4, v{t}")
    a(f"s_mul_i32 s{S_T0}, s{S_HP}, 72")
    a(f"s_and_b32 s{S_T0}, s{S_T0}, 0xfffffff0")
    a(f"v_and_b32 v{t+2}, 15, v{L}")
    a(f"v_mul_u32_u24 v{t+4}, 3456, v{t+1}")
    a(f"v_add_u32 v{t+4}, s{S_T0}, v{t+4}")
    for var in range(2):
        a(f"v_lshlrev_b32 v{t+3}, 1, v{t+1}")
        a(f"v_sub_u32 v{t+3}, v{t+2}, v{t+3}")
        if var: a(f"v_subrev_u32 v{t+3}, 8, v{t+3}")
        a(f"v_and_b32 v{t+3}, 15, v{t+3}")
        a(f"v_min_u32 v{t+3}, 14, v{t+3}")
        a(f"v_mul_u32_u24 v{t+5}, 13, v{t+3}")
        a(f"v_lshrrev_b32 v{t+5}, 6, v{t+5}")
        a(f"v_mul_u32_u24 v{t+6}, 5, v{t+5}")
        a(f"v_sub_u32 v{t+6}, v{t+3}, v{t+6}")
        a(f"v_mul_u32_u24 v{t+5}, 1152, v{t+5}")
        a(f"v_lshl_add_u32 v{t+6}, v{t+6}, 4, v{t+5}")
        a(f"v_add_u32 v{V_AX+2+var}, v{t+4}, v{t+6}")
    for i in range(8):
        a(f"v_add_u32 v{V_LDX+i}, {i*9216-(i&3)*1024}, v{V_AX+(i&1)}")
    for i in range(4):
        a(f"v_add_u32 v{V_LDW+i}, {i*4*3456-i*1024}, v{V_AX+2+(i>>1)}")
    a(f"s_lshl_b32 s{S_T0}, s{S_S}, 8")
    a(f"s_lshl_b32 s{S_T1}, s{S_T5}, 6")
    a(f"s_add_u32 s{S_T0}, s{S_T0}, s{S_T1}")
    a(f"s_mul_i32 s{S_XB}, s{S_T0}, 1152")
    a(f"s_mul_i32 s{S_WB}, s{S_T5}, {16*3456}")
    a(f"s_lshl_b32 s{S_LX}, s{S_T5}, 13")
    a(f"s_lshl_b32 s{S_LW}, s{S_T5}, 12")
    a(f"s_add_u32 s{S_LW}, s{S_LW}, 32768")
    a(f"s_mov_b32 s{S_SB}, 0")

    a("s_waitcnt lgkmcnt(0)")
    a("s_branch L_LOADER2")
    a.lab("L_COMPUTE2")
    a(f"s_cmp_lg_u32 s{S_WID}, 0")
    a("s_cbranch_scc1 L_NOG0")
    a(f"s_lshl_b32 s{S_T0}, s{S_IDX}, 8")
    a(f"s_add_u32 s{S_T0}, s{S_T0}, {WS_FLAG}")
    a(f"s_lshl_b32 s{S_T1}, s{S_GRP}, 8")
    a(f"s_add_u32 s{S_T1}, s{S_T1}, {WS_OF}")
    a(f"v_mov_b32 v{t}, 0")
    a(f"buffer_load_dword v{V_X}, v{t}, s[{S_WS}:{S_WS+3}], s{S_T0} offen sc1")
    a(f"s_sub_u32 s{S_T0}, s{S_T0}, 256")
    a(f"buffer_load_dword v{V_X+1}, v{t}, s[{S_WS}:{S_WS+3}], s{S_T0} offen sc1")
    a(f"buffer_load_dword v{V_X+2}, v{t}, s[{S_WS}:{S_WS+3}], s{S_T1} offen sc1")
    a.lab("L_NOG0")

    def emit_masks():
        a(f"v_and_b32 v{t}, 31, v{L}")
        a(f"v_lshrrev_b32 v{t+1}, 5, v{L}")
        a(f"v_lshlrev_b32 v{t+1}, 2, v{t+1}")
        a(f"v_sub_u32 v{t}, v{t}, v{t+1}")
        a(f"v_mov_b32 v{t+1}, {NEG:#x}")
        for r in range(16):
            jj = (r & 3) + 8*(r >> 2)
            a(f"v_cmp_le_i32 vcc, {jj}, v{t}")
            a("s_nop 1")
            a(f"v_cndmask_b32_e64 v{V_MASK+r}, v{t+1}, 0, vcc")
    emit_masks()
    a(f"v_mov_b32 v{t+2}, 0x3f803f80")
    a(f"v_mov_b32 v{t+3}, 0x3f803f80")
    a(f"v_mul_u32_u24 v{t+4}, 576, v{L}")
    a(f"v_add_u32 v{t+4}, {MISC}, v{t+4}")
    a(f"v_cmp_gt_u32 vcc, 4, v{L}")
    a(f"s_and_saveexec_b64 s[{S_SAVE}:{S_SAVE+1}], vcc")
    a(f"ds_write_b64 v{t+4}, v[{t+2}:{t+3}]")
    a(f"s_mov_b64 exec, s[{S_SAVE}:{S_SAVE+1}]")
    a(f"s_cmp_lg_u32 s{S_WID}, 0")
    a("s_cbranch_scc1 L_NOG1")
    a("s_waitcnt vmcnt(0)")
    for i in range(3): a(f"v_add_u32 v{V_X+i}, {TAG_INC:#x}, v{V_X+i}")
    a(f"v_mov_b32 v{V_X+3}, 0")
    a(f"v_mov_b32 v{t+4}, {TAGS_LDS}")
    a(f"s_mov_b64 s[{S_SAVE}:{S_SAVE+1}], exec")
    a(f"s_mov_b64 exec, 1")
    a(f"ds_write_b128 v{t+4}, v[{V_X}:{V_X+3}]")
    a(f"s_mov_b64 exec, s[{S_SAVE}:{S_SAVE+1}]")
    a.lab("L_NOG1")
    a("s_waitcnt lgkmcnt(0)")
    a("s_barrier")
    ts(1)
    def reads(setb, ks):
        r = []
        xs = [(f"ds_read_b128 v[{setb+4*mt}:{setb+4*mt+3}], v{V_AX+ks} offset:{mt*2048}") for mt in range(4)]
        ws = []
        for T in range(7):
            b = setb + 16 + 4*T
            ws.append(f"ds_read_b64_tr_b16 v[{b}:{b+1}], v{V_AW+T} offset:{ks*8192}")
            ws.append(f"ds_read_b64_tr_b16 v[{b+2}:{b+3}], v{V_AW+T} offset:{ks*8192+1024}")
        r += [xs[0], ws[0], ws[1], xs[1], ws[2], ws[3], xs[2], ws[4], ws[5], xs[3]] + ws[6:]
        return r
    def mfmas(setb):
        m = []
        for T in range(7):
            for mt in range(4):
                d = V_ACC + (mt*7+T)*4
                m.append(f"v_mfma_f32_16x16x32_bf16 v[{d}:{d+3}], v[{setb+16+4*T}:{setb+16+4*T+3}], v[{setb+4*mt}:{setb+4*mt+3}], v[{d}:{d+3}]")
        return m
    def interleave(ms, rs):
        if 'nomfma' in exp: ms = []
        if 'noread' in exp: rs = []
        ri = 0
        for i, m in enumerate(ms):
            a(m)
            if ri < len(rs) and i < 24:
                if i % 4 != 3:
                    a(rs[ri]); ri += 1
        while ri < len(rs):
            a(rs[ri]); ri += 1
    for rd in reads(V_SET0, 0): a(rd)
    a(f"s_mov_b32 s{S_K}, 0")
    a(f"s_mov_b32 s{S_SB}, 0")
    if timing: a(f"v_mov_b32 v{V_X+8}, 0")
    a.lab("L_GEMM")
    a("s_waitcnt lgkmcnt(0)")
    if timing:
        a(f"s_sub_u32 s92, s92, s70")
        a(f"s_mov_b32 m0, s{S_K}")
        a("s_nop 4")
        a(f"v_writelane_b32 v{V_X+8}, s92, m0")
    interleave(mfmas(V_SET0), reads(V_SET1, 1))
    a(f"s_add_u32 s{S_SB}, s{S_SB}, 1")
    a(f"s_cmp_eq_u32 s{S_SB}, 3")
    a(f"s_mov_b32 s{S_T0}, {STAGE}")
    a(f"s_cselect_b32 s{S_T0}, {(-2*STAGE) & 0xffffffff}, s{S_T0}")
    a(f"s_cselect_b32 s{S_SB}, 0, s{S_SB}")
    a("s_waitcnt lgkmcnt(0)")
    a("s_barrier")
    if timing: a("s_memtime s[92:93]")
    for i in range(9):
        a(f"v_add_u32 v{V_AX+i}, s{S_T0}, v{V_AX+i}")
    interleave(mfmas(V_SET1), reads(V_SET0, 0))
    a(f"s_add_u32 s{S_K}, s{S_K}, 1")
    a(f"s_cmp_lt_u32 s{S_K}, 9")
    a("s_cbranch_scc1 L_GEMM")
    ts(2)
    a.c("phase-1 epilogue")
    a("s_waitcnt lgkmcnt(0)")
    acc = lambda mt, T: V_ACC + (mt*7+T)*4
    E = V_SET0
    a(f"v_and_b32 v{t}, 15, v{L}")
    a(f"v_lshrrev_b32 v{t+1}, 4, v{L}")
    a(f"v_and_b32 v{t+2}, 1, v{t+1}")
    a(f"v_lshl_add_u32 v{t+2}, v{t+2}, 4, v{t}")
    a(f"v_lshrrev_b32 v{t+3}, 2, v{t}")
    a(f"v_lshrrev_b32 v{t+4}, 3, v{t}")
    a(f"v_xor_b32 v{t+3}, v{t+3}, v{t+4}")
    a(f"v_lshrrev_b32 v{t+4}, 1, v{t+1}")
    a(f"v_xor_b32 v{t+3}, v{t+3}, v{t+4}")
    a(f"v_and_b32 v{t+3}, 1, v{t+3}")
    a(f"v_lshlrev_b32 v{t+3}, 4, v{t+3}")
    a(f"v_lshl_add_u32 v{t+3}, v{t+2}, 5, v{t+3}")
    a(f"s_mul_i32 s{S_T0}, s{S_WID}, {2*TILE}")
    a(f"s_add_u32 s{S_T0}, s{S_T0}, {KV_OWN}")
    a(f"s_mul_i32 s{S_T1}, s{S_WID}, {2*QTILE}")
    a(f"s_add_u32 s{S_T1}, s{S_T1}, {Q_BASE}")
    vEK, vEQ, vEV, vE6, vDr, vDt, vF = V_AX, V_AX+1, V_AX+2, V_AX+3, V_AX+4, V_AX+5, V_AX+6
    a(f"v_add_u32 v{vEK}, s{S_T0}, v{t+3}")
    a(f"v_add_u32 v{vEQ}, s{S_T1}, v{t+3}")
    a(f"v_mul_u32_u24 v{t+4}, 72, v{t}")
    a(f"v_lshl_add_u32 v{t+5}, v{t+1}, 3, v{t+4}")
    a(f"v_add_u32 v{t+5}, 2304, v{t+5}")
    a(f"v_add_u32 v{vEV}, s{S_T0}, v{t+5}")
    a(f"v_lshlrev_b32 v{t+5}, 3, v{t}")
    a(f"v_add_u32 v{t+5}, 2048, v{t+5}")
    a(f"v_add_u32 v{t+6}, s{S_T1}, v{t+5}")
    a(f"v_add_u32 v{t+7}, s{S_T0}, v{t+5}")
    a(f"v_add_u32 v{t+4}, {2304+32}, v{t+4}")
    a(f"v_add_u32 v{t+4}, s{S_T0}, v{t+4}")
    a(f"v_mov_b32 v{vDr}, 128")
    a(f"v_mov_b32 v{vDt}, {TILE}")
    a(f"v_mov_b32 v{vF}, 1.0")
    a(f"v_mov_b32 v{vE6}, v{t+7}")
    a(f"v_cmp_eq_u32 vcc, 0, v{t+1}")
    a(f"v_mov_b32 v{t+5}, {QTILE}")
    a(f"v_mov_b32 v{t+7}, {f32bits(QSCALE):#x}")
    a(f"v_cndmask_b32 v{vE6}, v{vE6}, v{t+6}, vcc")
    a(f"v_cndmask_b32 v{vDt}, v{vDt}, v{t+5}, vcc")
    a(f"v_cndmask_b32 v{vF}, v{vF}, v{t+7}, vcc")
    a(f"v_cmp_eq_u32 vcc, 2, v{t+1}")
    a(f"v_mov_b32 v{t+5}, 1152")
    a(f"v_mov_b32 v{t+6}, v{t+7}")
    a(f"v_cndmask_b32 v{vE6}, v{vE6}, v{t+4}, vcc")
    a(f"v_cndmask_b32 v{vDr}, v{vDr}, v{t+5}, vcc")
    a(f"v_mov_b32 v{vF+1}, v{vF}")
    assert (t+6) % 2 == 0 and vF % 2 == 0
    for mt in range(4):
        for T in (0, 1):
            d = acc(mt, T)
            a(f"v_pk_mul_f32 v[{d}:{d+1}], v[{d}:{d+1}], v[{t+6}:{t+7}]")
            a(f"v_pk_mul_f32 v[{d+2}:{d+3}], v[{d+2}:{d+3}], v[{t+6}:{t+7}]")
        d = acc(mt, 6)
        a(f"v_pk_mul_f32 v[{d}:{d+1}], v[{d}:{d+1}], v[{vF}:{vF+1}]")
        a(f"v_pk_mul_f32 v[{d+2}:{d+3}], v[{d+2}:{d+3}], v[{vF}:{vF+1}]")
    e = E
    def qk_tile(T, base_reg, pstride, hoff):
        nonlocal e
        for p in range(2):
            R = e; e += 4
            da, db = acc(2*p, T), acc(2*p+1, T)
            a(f"v_cvt_pk_bf16_f32 v{R}, v{da}, v{da+1}")
            a(f"v_cvt_pk_bf16_f32 v{R+1}, v{da+2}, v{da+3}")
            a(f"v_cvt_pk_bf16_f32 v{R+2}, v{db}, v{db+1}")
            a(f"v_cvt_pk_bf16_f32 v{R+3}, v{db+2}, v{db+3}")
            a("s_nop 1")
            a(f"v_permlane16_swap_b32 v{R}, v{R+2}")
            a(f"v_permlane16_swap_b32 v{R+1}, v{R+3}")
            a(f"ds_write_b128 v{base_reg}, v[{R}:{R+3}] offset:{p*pstride+hoff}")
    qk_tile(2, vEK, TILE, 0)
    qk_tile(3, vEK, TILE, 1024)
    for T in (4, 5):
        for mt in range(4):
            R = e; e += 2
            d = acc(mt, T)
            a(f"v_cvt_pk_bf16_f32 v{R}, v{d}, v{d+1}")
            a(f"v_cvt_pk_bf16_f32 v{R+1}, v{d+2}, v{d+3}")
            a(f"ds_write_b64 v{vEV}, v[{R}:{R+1}] offset:{(mt>>1)*TILE + (mt&1)*1152 + (40 if T==5 else 0)}")
    R6 = e; e += 8
    for mt in range(4):
        d = acc(mt, 6)
        a(f"v_cvt_pk_bf16_f32 v{R6+2*mt}, v{d}, v{d+1}")
        a(f"v_cvt_pk_bf16_f32 v{R6+2*mt+1}, v{d+2}, v{d+3}")
    a(f"v_add_u32 v{t}, v{vE6}, v{vDr}")
    a(f"v_add_u32 v{t+1}, v{vE6}, v{vDt}")
    a(f"v_add_u32 v{t+2}, v{t+1}, v{vDr}")
    a(f"s_mov_b64 s[{S_SAVE}:{S_SAVE+1}], exec")
    a(f"s_mov_b32 exec_hi, 0x0000ffff")
    a(f"ds_write_b64 v{vE6}, v[{R6}:{R6+1}]")
    a(f"ds_write_b64 v{t}, v[{R6+2}:{R6+3}]")
    a(f"ds_write_b64 v{t+1}, v[{R6+4}:{R6+5}]")
    a(f"ds_write_b64 v{t+2}, v[{R6+6}:{R6+7}]")
    a(f"s_mov_b64 exec, s[{S_SAVE}:{S_SAVE+1}]")
    qk_tile(0, vEQ, QTILE, 0)
    qk_tile(1, vEQ, QTILE, 1024)
    assert e <= V_ACC
    a("s_branch L_P2")

    a.lab("L_LOADER2")
    def chunk_pre():
        a(f"s_lshl_b32 s{S_T0}, s{S_C}, 7")
        a(f"s_add_u32 s{S_T0}, s{S_T0}, s{S_XB}")
        a(f"s_mul_i32 s{S_T1}, s{S_C}, {64*3456}")
        a(f"s_add_u32 s{S_T1}, s{S_T1}, s{S_WB}")
        a(f"s_add_u32 s{S_T2}, s{S_SB}, s{S_LW}")
        a(f"s_add_u32 s{S_T3}, s{S_SB}, s{S_LX}")
        a(f"s_add_u32 s{S_C}, s{S_C}, 1")
        a(f"s_cmp_eq_u32 s{S_C}, 9")
        a(f"s_cselect_b32 s{S_C}, 0, s{S_C}")
        a(f"s_add_u32 s{S_SB}, s{S_SB}, {STAGE}")
        a(f"s_cmp_eq_u32 s{S_SB}, {3*STAGE}")
        a(f"s_cselect_b32 s{S_SB}, 0, s{S_SB}")
    def chunk_w():
        if 'now' in exp: return
        a(f"s_mov_b32 m0, s{S_T2}")
        a("s_nop 0")
        for i in range(4):
            wmod = " nt" if 'wnt' in exp else " sc0" if 'wsc0' in exp else " sc1" if 'wsc1' in exp else " sc0 sc1" if 'wsc01' in exp else ""
            if 'wsc01' in exp: wmod = " sc0 sc1"
            a(f"buffer_load_dwordx4 v{V_LDW+i}, s[{S_W}:{S_W+3}], s{S_T1} offen offset:{i*1024}{wmod} lds")
    def chunk_x(lo, hi):
        if 'nox' in exp: return
        for i in range(lo, hi):
            if i == 0 or i == lo or i == 4:
                a(f"s_add_u32 m0, s{S_T3}, {(i&~3)*1024}")
                a("s_nop 0")
            xmod = " nt" if 'xnt' in exp else " sc1" if 'xsc1' in exp else ""
            a(f"buffer_load_dwordx4 v{V_LDX+i}, s[{S_X}:{S_X+3}], s{S_T0} offen offset:{(i&3)*1024}{xmod} lds")
    def lts():
        if timing:
            a("s_memtime s[92:93]")
            a("s_waitcnt lgkmcnt(0)")
            a(f"s_sub_u32 s92, s92, s70")
            a(f"s_mov_b32 m0, s{S_K}")
            a("s_nop 4")
            a(f"v_writelane_b32 v{V_X+8}, s92, m0")
    ts(4)
    chunk_pre(); chunk_w(); chunk_x(0, 8)
    ts(5)
    chunk_pre(); chunk_w(); chunk_x(0, 2)
    a("s_waitcnt vmcnt(6)")
    ts(6)
    a("s_barrier")
    chunk_x(2, 8)
    chunk_pre()
    a(f"s_mov_b32 s{S_K}, 2")
    a.lab("L_LD")
    chunk_w(); chunk_x(0, 8)
    chunk_pre()
    a(f"s_add_u32 s{S_K}, s{S_K}, 1")
    a(f"s_cmp_lt_u32 s{S_K}, 9")
    a("s_waitcnt vmcnt(12)")
    a("s_barrier")
    if 'lts' in exp: lts()
    a("s_cbranch_scc1 L_LD")
    def wo_issue(nstart, cnt, guard_last=False):
        for i in range(cnt):
            n0 = nstart + 4*i
            if guard_last and i == cnt-1:
                a(f"s_cmp_lg_u32 s{S_T5}, 0")
                a("s_cbranch_scc1 L_WO_DONE")
            a(f"s_add_u32 s{S_T0}, s{S_T5}, {n0}")
            a(f"s_lshl_b32 s{S_T1}, s{S_T0}, 6")
            a(f"v_add_u32 v{t}, s{S_T1}, v{L}")
            a(f"v_mul_u32_u24 v{t+1}, 7282, v{t}")
            a(f"v_lshrrev_b32 v{t+1}, 16, v{t+1}")
            a(f"v_mul_u32_u24 v{t+2}, 9, v{t+1}")
            a(f"v_sub_u32 v{t+2}, v{t}, v{t+2}")
            a(f"v_mul_u32_u24 v{t+1}, 1152, v{t+1}")
            a(f"v_lshl_add_u32 v{t+1}, v{t+2}, 4, v{t+1}")
            a(f"s_lshl_b32 m0, s{S_T0}, 10")
            a("s_nop 0")
            a(f"buffer_load_dwordx4 v{t+1}, s[{S_WO}:{S_WO+3}], s{S_T4} offen lds")
    a(f"s_sub_u32 s{S_T5}, s{S_WID}, 4")
    a(f"s_and_b32 s{S_T4}, s{S_HP}, 7")
    a(f"s_mul_i32 s{S_T4}, s{S_T4}, 144")
    wo_issue(0, 12)
    a("s_waitcnt vmcnt(12)")
    a("s_barrier")
    lts()
    emit_masks()
    wo_issue(48, 9, guard_last=True)
    a.lab("L_WO_DONE")
    a("s_barrier")

    a.lab("L_P2")
    a("s_waitcnt lgkmcnt(0)")
    a("s_barrier")
    ts(3)

    if debug_stage == 1:
        a(f"s_lshl_b32 s{S_T0}, s{S_IDX}, 16")
        a(f"v_lshlrev_b32 v{t}, 4, v0")
        for i in range(7):
            a(f"v_add_u32 v{t+1}, {KV_OWN + i*8192}, v{t}")
            a(f"ds_read_b128 v[40:43], v{t+1}")
            a("s_waitcnt lgkmcnt(0)")
            a(f"v_add_u32 v{t+2}, {i*8192}, v{t}")
            a(f"buffer_store_dwordx4 v[40:43], v{t+2}, s[{S_WS}:{S_WS+3}], s{S_T0} offen")
            a("s_waitcnt vmcnt(0)")
        a("s_branch L_FIN")

    if debug_stage == 9:
        a("s_branch L_FIN")
    if debug_stage not in (1, 9):
        phase2(a, debug_stage, ts)
        phase3(a, debug_stage, ts)
    a.lab("L_FIN")
    if timing:
        a("s_waitcnt vmcnt(0) lgkmcnt(0)")
        a("s_memtime s[94:95]")
        a("s_waitcnt lgkmcnt(0)")
        a(f"s_lshl_b32 s{S_T0}, s2, 3")
        a(f"s_add_u32 s{S_T0}, s{S_T0}, s{S_WID}")
        a(f"s_lshl_b32 s{S_T0}, s{S_T0}, 6")
        a(f"s_add_u32 s{S_T0}, s{S_T0}, {TIMING_OFF}")
        for i in range(13):
            a(f"s_sub_u32 s{S_T1}, s{70+2*i}, s70" if i else f"s_mov_b32 s{S_T1}, s70")
            a(f"s_cmp_eq_u32 s{70+2*i}, 0")
            a(f"s_cselect_b32 s{S_T1}, 0, s{S_T1}")
            a(f"v_mov_b32 v{40+i}, s{S_T1}")
        a(f"v_lshlrev_b32 v2, 2, v{V_LANE}")
        a(f"s_add_u32 s{S_T1}, s{S_T0}, {1<<20}")
        a(f"s_mov_b64 exec, 0xffff")
        a(f"buffer_store_dword v{V_X+8}, v2, s[{S_WS}:{S_WS+3}], s{S_T1} offen")
        a(f"v_mov_b32 v2, 0")
        a(f"s_mov_b64 exec, 1")
        for i in range(3):
            a(f"buffer_store_dwordx4 v[{40+4*i}:{43+4*i}], v2, s[{S_WS}:{S_WS+3}], s{S_T0} offen offset:{16*i}")
        a(f"buffer_store_dword v52, v2, s[{S_WS}:{S_WS+3}], s{S_T0} offen offset:48")
        a("s_waitcnt vmcnt(0)")
    a.lab("L_END")
    a("s_endpgm")
    a(f""".section .rodata,"a"
.p2align 6
.amdhsa_kernel {NAME}_kernel
  .amdhsa_next_free_vgpr 256
  .amdhsa_next_free_sgpr 100
  .amdhsa_accum_offset 256
  .amdhsa_group_segment_fixed_size 0
  .amdhsa_kernarg_size 72
  .amdhsa_user_sgpr_count 2
  .amdhsa_user_sgpr_kernarg_segment_ptr 1
  .amdhsa_system_sgpr_workgroup_id_x 1
.end_amdhsa_kernel""")
    return a.text()

if __name__ == "__main__":
    import argparse
    p = argparse.ArgumentParser(); p.add_argument("--debug", type=int, default=0); p.add_argument("--timing", action="store_true"); p.add_argument("--exp", default=""); p.add_argument("-o", default="/dev/stdout")
    args = p.parse_args()
    open(args.o, "w").write(gen(args.debug, args.timing, args.exp))
```

```python
import sys, math, struct

NAME = "concat_heads__sliding_block__sliding_block__prompt"

STAGE   = 49152
WO_BASE = 0
KV_OWN  = 82944
KV_HALO = 119808
Q_BASE  = 119808
MISC    = 156672
TAGS_LDS = MISC + 2048
CNT2, CNT1, CNTQ, CNTOB, CNTOA = TAGS_LDS+12, TAGS_LDS+16, TAGS_LDS+20, TAGS_LDS+24, TAGS_LDS+28
LDS_TOTAL = 163840
TILE    = 4608
QTILE   = 2304
WS_KV   = 0
WS_O    = 256*36864
WS_OR   = WS_O + 16*262144
WS_FLAG = WS_OR + 16*32768
WS_OF   = WS_FLAG + 65536
TIMING_OFF = 24<<20
TAG_INC = 0x9E3779B1
NEG     = 0xFF61B1E6
QSCALE  = (18.0 ** -0.5) * math.log2(math.e)
def f32bits(x): return struct.unpack("<I", struct.pack("<f", x))[0]

class Asm:
    def __init__(self): self.l = []
    def __call__(self, s=""):
        for line in s.split("\n"):
            self.l.append("  " + line.strip())
    def lab(self, n): self.l.append(n + ":")
    def c(self, s): self.l.append("  ; " + s)
    def text(self): return "\n".join(self.l) + "\n"

S_X, S_W, S_WO, S_WS, S_OUT = 8, 12, 16, 20, 24
S_B, S_S, S_HP, S_WID = 28, 29, 30, 31
S_T0, S_T1, S_T2, S_T3, S_T4, S_T5 = 32, 33, 34, 35, 36, 37
S_I = 38
S_L = 39
S_TAGIN, S_TAGOUT, S_TAGO = 40, 41, 42
S_K, S_C, S_SB, S_XB, S_WB = 43, 44, 45, 46, 47
S_LX, S_LW = 48, 49
S_N = 50
S_U = 51
S_RET = 52
S_IDX, S_GRP, S_HEAD, S_M = 54, 55, 56, 57
S_SAVE = 58
S_CNT = 60
S_HOOK = 61
S_BAD = 62
S_RET2 = 64
S_MB = 66
S_HST = 67
S_H0, S_H1 = 68, 69
S_E = 98
S_SO, S_FI = 99, 100
S_OM, S_OR, S_OFS = 6, 7, 5

V_LANE = 1
T = 2
V_AX = 10
V_AW = 12
V_MASK = 20
V_SET0, V_SET1, V_ACC = 36, 80, 124
V_LDX, V_LDW = 36, 44
V_TG = 236
B_K, B_KR, B_V, MK_V = 240, 241, 242, 243
vEK, vEQ, vEV, vE6, vDr, vDt, vF, vC = 244, 245, 246, 247, 248, 249, 250, 252
V_TL = 254
QA_M, QA_R, QB_M, QB_R = 36, 40, 44, 48
OA, OB = 52, 68
VS, VE, VP = 84, 100, 116
VKF, VKR, VVA, VVB = 124, 128, 132, 136
A_K, A_KR, A_V, ST_V, ST_K = 10, 11, 12, 13, 14
VH = 140
V_WOV = 180
V_OA1, V_OA2 = 188, 189
V_PA = 184

def emit_masks_(a):
    t = T; L = V_LANE
    a(f"v_and_b32 v{t}, 31, v{L}")
    a(f"v_lshrrev_b32 v{t+1}, 5, v{L}")
    a(f"v_lshlrev_b32 v{t+1}, 2, v{t+1}")
    a(f"v_sub_u32 v{t}, v{t}, v{t+1}")
    a(f"v_mov_b32 v{t+1}, {NEG:#x}")
    for r in range(16):
        jj = (r & 3) + 8*(r >> 2)
        a(f"v_cmp_le_i32 vcc, {jj}, v{t}")
        a("s_nop 1")
        a(f"v_cndmask_b32_e64 v{V_MASK+r}, v{t+1}, 0, vcc")
def emit_p2_patterns_(a):
    t = T; L = V_LANE
    a(f"v_and_b32 v{t}, 31, v{L}")
    a(f"v_lshrrev_b32 v{t+1}, 5, v{L}")
    a(f"v_lshrrev_b32 v{t+2}, 2, v{t}")
    a(f"v_lshrrev_b32 v{t+3}, 3, v{t}")
    a(f"v_xor_b32 v{t+2}, v{t+2}, v{t+3}")
    a(f"v_xor_b32 v{t+2}, v{t+2}, v{t+1}")
    a(f"v_and_b32 v{t+2}, 1, v{t+2}")
    a(f"v_lshlrev_b32 v{t+2}, 4, v{t+2}")
    a(f"v_lshl_add_u32 v{t+2}, v{t}, 5, v{t+2}")
    a(f"s_lshl_b32 s{S_T0}, s{S_HEAD}, 10")
    a(f"v_add_u32 v{B_K}, s{S_T0}, v{t+2}")
    a(f"v_lshlrev_b32 v{B_KR}, 3, v{t}")
    a(f"v_add_u32 v{B_KR}, 2048, v{B_KR}")
    a(f"v_bfe_u32 v{t+2}, v{L}, 2, 2")
    a(f"v_lshl_add_u32 v{t+2}, v{t+1}, 2, v{t+2}")
    a(f"v_mul_u32_u24 v{t+2}, 72, v{t+2}")
    a(f"v_add_u32 v{t+2}, 2304, v{t+2}")
    a(f"v_and_b32 v{t+3}, 3, v{L}")
    a(f"v_lshlrev_b32 v{t+4}, 3, v{t+3}")
    a(f"s_mul_i32 s{S_T0}, s{S_HEAD}, 40")
    a(f"v_add3_u32 v{t+4}, v{t+4}, v{t+2}, s{S_T0}")
    a(f"v_add_u32 v{t+5}, 32, v{t+2}")
    a(f"v_bfe_u32 v{t+6}, v{L}, 4, 1")
    a(f"v_cmp_eq_u32 vcc, 1, v{t+6}")
    a(f"v_lshrrev_b32 v{t+7}, 1, v{t+3}")
    a(f"v_and_b32 v{t+7}, v{t+7}, v{t+6}")
    a(f"v_cndmask_b32 v{B_V}, v{t+4}, v{t+5}, vcc")
    a(f"v_cmp_eq_u32 vcc, 1, v{t+7}")
    a(f"v_mov_b32 v{t+5}, {MISC}")
    a(f"v_mov_b32 v{t+6}, -1")
    a(f"v_cndmask_b32 v{B_V}, v{B_V}, v{t+5}, vcc")
    a(f"v_cndmask_b32_e64 v{MK_V}, v{t+6}, 0, vcc")


def gen(debug_stage=0, timing=False, exp=''):
    a = Asm()
    t = T; L = V_LANE
    def ts(i, force=False):
        if timing and ('tsk' not in exp or force or i in (0, 8, 9, 10, 11)): a(f"{'s_memrealtime' if 'abs' in exp else 's_memtime'} s[{70+2*i}:{71+2*i}]")
    WS = f"s[{S_WS}:{S_WS+3}]"
    def save_exec(val):
        a(f"s_mov_b64 s[{S_SAVE}:{S_SAVE+1}], exec")
        a(f"s_mov_b64 exec, {val}")
    def rest_exec():
        a(f"s_mov_b64 exec, s[{S_SAVE}:{S_SAVE+1}]")

    a.l += [f"; Kernarg layout (72 bytes): A_x, A_wqkv, A_wo, B_x, B_wqkv, B_wo, out, debug, ws",
            f"; @launch grid=(256,1,1) block=(512,1,1) lds={LDS_TOTAL}"]
    a(f""".amdgcn_target "amdgcn-amd-amdhsa--gfx950"
.text
.globl {NAME}_kernel
.p2align 8
.type {NAME}_kernel,@function""")
    a.lab(f"{NAME}_kernel")
    a("s_cmp_ge_u32 s2, 256")
    a("s_cbranch_scc1 L_END")
    a(f"s_and_b32 s3, s2, 7")
    a(f"s_lshr_b32 s{S_B}, s3, 2")
    a(f"s_mul_i32 s{S_T0}, s{S_B}, 24")
    a(f"s_add_u32 s4, s0, s{S_T0}")
    a(f"s_addc_u32 s5, s1, 0")
    a(f"s_load_dwordx2 s[{S_X}:{S_X+1}], s[4:5], 0")
    a(f"s_load_dwordx2 s[{S_W}:{S_W+1}], s[4:5], 8")
    a(f"s_load_dwordx2 s[{S_WO}:{S_WO+1}], s[4:5], 16")
    a(f"s_load_dwordx2 s[{S_OUT}:{S_OUT+1}], s[0:1], 48")
    a(f"s_load_dwordx2 s[{S_WS}:{S_WS+1}], s[0:1], 64")
    if timing:
        for i in range(13): a(f"s_mov_b32 s{70+2*i}, 0")
    ts(0)
    a(f"s_lshr_b32 s{S_I}, s2, 3")
    a(f"s_lshr_b32 s{S_T2}, s3, 1")
    a(f"s_and_b32 s{S_T2}, s{S_T2}, 1")
    a(f"s_lshl_b32 s{S_T2}, s{S_T2}, 2")
    a(f"s_and_b32 s{S_T3}, s{S_I}, 3")
    a(f"s_add_u32 s{S_S}, s{S_T2}, s{S_T3}")
    a(f"s_and_b32 s{S_T2}, s3, 1")
    a(f"s_lshl_b32 s{S_T2}, s{S_T2}, 3")
    a(f"s_lshr_b32 s{S_T4}, s{S_I}, 2")
    a(f"s_add_u32 s{S_HP}, s{S_T2}, s{S_T4}")
    a(f"s_lshl_b32 s{S_T3}, s{S_T3}, 1")
    a(f"s_add_u32 s{S_C}, s{S_T4}, s{S_T3}")
    a(f"s_cmp_ge_u32 s{S_C}, 9")
    a(f"s_cselect_b32 s{S_T3}, 9, 0")
    a(f"s_sub_u32 s{S_C}, s{S_C}, s{S_T3}")
    if 'norot' in exp: a(f"s_mov_b32 s{S_C}, 0")
    for key, mul in (('rot2', 2), ('rot3', 3)):
        if key in exp or (key == 'rot2' and 'rot' not in exp):
            a(f"s_lshr_b32 s{S_C}, s{S_T4}, 1")
            a(f"s_and_b32 s{S_T3}, s{S_I}, 3")
            a(f"s_add_u32 s{S_C}, s{S_C}, s{S_T3}")
            a(f"s_mul_i32 s{S_C}, s{S_C}, {mul}")
            for _ in range(2):
                a(f"s_cmp_ge_u32 s{S_C}, 9")
                a(f"s_cselect_b32 s{S_T3}, 9, 0")
                a(f"s_sub_u32 s{S_C}, s{S_C}, s{S_T3}")
    if 'rot4' in exp:
        a(f"s_lshr_b32 s{S_C}, s{S_T4}, 2")
        a(f"s_and_b32 s{S_T3}, s{S_I}, 3")
        a(f"s_lshr_b32 s{S_T3}, s{S_T3}, 1")
        a(f"s_add_u32 s{S_C}, s{S_C}, s{S_T3}")
        a(f"s_mul_i32 s{S_C}, s{S_C}, 3")
    a(f"s_lshl_b32 s{S_T0}, s{S_B}, 4")
    a(f"s_add_u32 s{S_T0}, s{S_T0}, s{S_HP}")
    a(f"s_lshl_b32 s{S_T0}, s{S_T0}, 3")
    a(f"s_add_u32 s{S_IDX}, s{S_T0}, s{S_S}")
    a(f"s_lshl_b32 s{S_T0}, s{S_B}, 3")
    a(f"s_add_u32 s{S_GRP}, s{S_T0}, s{S_S}")
    a(f"v_lshrrev_b32 v{t}, 6, v0")
    a(f"v_and_b32 v{L}, 63, v0")
    a(f"v_readfirstlane_b32 s{S_WID}, v{t}")
    for (r, n) in ((S_X, 2359296), (S_W, 1990656), (S_WO, 663552), (S_WS, 268435456), (S_OUT, 4718592)):
        a(f"s_mov_b32 s{r+2}, {n}")
        a(f"s_mov_b32 s{r+3}, 0x00020000")
    a(f"s_and_b32 s{S_M}, s{S_WID}, 3")
    a(f"s_lshr_b32 s{S_HEAD}, s{S_WID}, 2")
    a(f"s_sub_u32 s{S_MB}, 7, s{S_M}")
    a(f"s_cmp_lt_u32 s{S_WID}, 4")
    a("s_cbranch_scc1 L_COMPUTE")

    emit_masks = lambda: emit_masks_(a)
    emit_p2_patterns = lambda: emit_p2_patterns_(a)

    a(f"s_sub_u32 s{S_L}, s{S_WID}, 4")
    a(f"v_lshrrev_b32 v{t}, 3, v{L}")
    a(f"v_mul_u32_u24 v{t}, 1152, v{t}")
    a(f"v_lshrrev_b32 v{t+1}, 4, v{L}")
    a(f"v_and_b32 v{t+2}, 7, v{L}")
    a(f"v_xor_b32 v{t+3}, v{t+2}, v{t+1}")
    a(f"v_lshl_add_u32 v{V_AX}, v{t+3}, 4, v{t}")
    a(f"v_xor_b32 v{t+3}, 4, v{t+3}")
    a(f"v_lshl_add_u32 v{V_AX+1}, v{t+3}, 4, v{t}")
    a(f"s_mul_i32 s{S_T0}, s{S_HP}, 72")
    a(f"s_and_b32 s{S_T0}, s{S_T0}, 0xfffffff0")
    a(f"v_and_b32 v{t+2}, 15, v{L}")
    a(f"v_mul_u32_u24 v{t+4}, 3456, v{t+1}")
    a(f"v_add_u32 v{t+4}, s{S_T0}, v{t+4}")
    for var in range(2):
        a(f"v_lshlrev_b32 v{t+3}, 1, v{t+1}")
        a(f"v_sub_u32 v{t+3}, v{t+2}, v{t+3}")
        if var: a(f"v_subrev_u32 v{t+3}, 8, v{t+3}")
        a(f"v_and_b32 v{t+3}, 15, v{t+3}")
        a(f"v_min_u32 v{t+3}, 14, v{t+3}")
        a(f"v_mul_u32_u24 v{t+5}, 13, v{t+3}")
        a(f"v_lshrrev_b32 v{t+5}, 6, v{t+5}")
        a(f"v_mul_u32_u24 v{t+6}, 5, v{t+5}")
        a(f"v_sub_u32 v{t+6}, v{t+3}, v{t+6}")
        a(f"v_mul_u32_u24 v{t+5}, 1152, v{t+5}")
        a(f"v_lshl_add_u32 v{t+6}, v{t+6}, 4, v{t+5}")
        a(f"v_add_u32 v{V_AX+2+var}, v{t+4}, v{t+6}")
    for i in range(8):
        a(f"v_add_u32 v{V_LDX+i}, {i*9216-(i&3)*1024}, v{V_AX+(i&1)}")
    for i in range(4):
        a(f"v_add_u32 v{V_LDW+i}, {i*4*3456-i*1024}, v{V_AX+2+(i>>1)}")
    a(f"s_lshl_b32 s{S_T0}, s{S_S}, 8")
    a(f"s_lshl_b32 s{S_T1}, s{S_L}, 6")
    a(f"s_add_u32 s{S_T0}, s{S_T0}, s{S_T1}")
    a(f"s_mul_i32 s{S_XB}, s{S_T0}, 1152")
    a(f"s_mul_i32 s{S_WB}, s{S_L}, {16*3456}")
    a(f"s_lshl_b32 s{S_LX}, s{S_L}, 13")
    a(f"s_lshl_b32 s{S_LW}, s{S_L}, 12")
    a(f"s_add_u32 s{S_LW}, s{S_LW}, 32768")
    a(f"s_mov_b32 s{S_SB}, 0")
    def chunk_pre():
        a(f"s_lshl_b32 s{S_T0}, s{S_C}, 7")
        a(f"s_add_u32 s{S_T0}, s{S_T0}, s{S_XB}")
        a(f"s_mul_i32 s{S_T1}, s{S_C}, {64*3456}")
        a(f"s_add_u32 s{S_T1}, s{S_T1}, s{S_WB}")
        a(f"s_add_u32 s{S_T2}, s{S_SB}, s{S_LW}")
        a(f"s_add_u32 s{S_T3}, s{S_SB}, s{S_LX}")
        a(f"s_add_u32 s{S_C}, s{S_C}, 1")
        a(f"s_cmp_eq_u32 s{S_C}, 9")
        a(f"s_cselect_b32 s{S_C}, 0, s{S_C}")
        a(f"s_add_u32 s{S_SB}, s{S_SB}, {STAGE}")
        a(f"s_cmp_eq_u32 s{S_SB}, {3*STAGE}")
        a(f"s_cselect_b32 s{S_SB}, 0, s{S_SB}")
    def chunk_w():
        a(f"s_mov_b32 m0, s{S_T2}")
        a("s_nop 0")
        for i in range(4):
            a(f"buffer_load_dwordx4 v{V_LDW+i}, s[{S_W}:{S_W+3}], s{S_T1} offen offset:{i*1024} lds")
    def chunk_x(lo, hi):
        for i in range(lo, hi):
            if i == lo or i == 4:
                a(f"s_add_u32 m0, s{S_T3}, {(i&~3)*1024}")
                a("s_nop 0")
            a(f"buffer_load_dwordx4 v{V_LDX+i}, s[{S_X}:{S_X+3}], s{S_T0} offen offset:{(i&3)*1024} lds")
    chunk_pre()
    a("s_waitcnt lgkmcnt(0)")
    chunk_w(); chunk_x(0, 8)
    chunk_pre(); chunk_w(); chunk_x(0, 2)
    a("s_waitcnt vmcnt(6)")
    a("s_barrier")
    chunk_x(2, 8)
    chunk_pre()
    a(f"s_mov_b32 s{S_K}, 2")
    a.lab("L_LD")
    chunk_w(); chunk_x(0, 8)
    chunk_pre()
    a(f"s_add_u32 s{S_K}, s{S_K}, 1")
    a(f"s_cmp_lt_u32 s{S_K}, 9")
    a("s_waitcnt vmcnt(12)")
    a("s_barrier")
    a("s_cbranch_scc1 L_LD")
    a(f"s_lshl_b32 s{S_T0}, s{S_L}, 6")
    a(f"v_add_u32 v{t}, s{S_T0}, v{L}")
    a(f"v_mul_u32_u24 v{t+1}, 7282, v{t}")
    a(f"v_lshrrev_b32 v{t+1}, 16, v{t+1}")
    a(f"v_mul_u32_u24 v{t+2}, 9, v{t+1}")
    a(f"v_sub_u32 v{t+2}, v{t}, v{t+2}")
    a(f"v_mul_u32_u24 v{t+1}, 1152, v{t+1}")
    a(f"v_lshl_add_u32 v{t+1}, v{t+2}, 7, v{t+1}")
    a(f"s_mul_i32 s{S_T0}, s{S_I}, {18*1152}")
    a(f"v_cmp_gt_u32 vcc, 162, v{t}")
    a(f"v_cndmask_b32_e64 v{t+1}, 0, v{t+1}, vcc")
    a(f"buffer_load_dword v255, v{t+1}, s[{S_WO}:{S_WO+3}], s{S_T0} offen")
    emit_masks()
    emit_p2_patterns()
    a(f"v_mul_u32_u24 v{t+1}, 7282, v{L}")
    a(f"v_lshrrev_b32 v{t+1}, 16, v{t+1}")
    a(f"v_mul_u32_u24 v{t+2}, 9, v{t+1}")
    a(f"v_sub_u32 v{t+2}, v{L}, v{t+2}")
    a(f"v_mul_u32_u24 v{t+1}, 1152, v{t+1}")
    a(f"v_lshl_add_u32 v{t+1}, v{t+2}, 4, v{t+1}")
    a(f"s_and_b32 s{S_T0}, s{S_HP}, 7")
    a(f"s_mul_i32 s{S_T0}, s{S_T0}, 144")
    a(f"v_add_u32 v{V_WOV}, s{S_T0}, v{t+1}")
    for j in range(1, 4): a(f"v_add_u32 v{V_WOV+j}, {j*(8064-1008)}, v{V_WOV}")
    a(f"s_mul_i32 s{S_T0}, s{S_L}, {21*1008}")
    a(f"s_mul_i32 s{S_T1}, s{S_L}, {21*8064}")
    a("s_waitcnt vmcnt(1)")
    a("s_barrier")
    WO = f"s[{S_WO}:{S_WO+3}]"
    NW1 = 8 if 'wo8' not in exp else 4
    a(f"s_bitset0_b64 exec, 63")
    for j in range(21):
        if j == NW1:
            a(f"s_mov_b64 exec, -1")
            a("s_barrier")
            a(f"s_bitset0_b64 exec, 63")
        if j == 19:
            a(f"s_cmp_eq_u32 s{S_L}, 3")
            a("s_cbranch_scc0 L_WO_N")
            a(f"s_mov_b64 exec, 0x3ffff")
            a(f"buffer_load_dwordx4 v{V_WOV+(j&3)}, {WO}, s{S_T2} offen offset:{(j&3)*1008} lds")
            a("s_branch L_WO_DONE")
            a.lab("L_WO_N")
        if j % 4 == 0:
            a(f"s_add_u32 m0, s{S_T0}, {j*1008}")
            a(f"s_add_u32 s{S_T2}, s{S_T1}, {j*8064}")
        a(f"buffer_load_dwordx4 v{V_WOV+(j&3)}, {WO}, s{S_T2} offen offset:{(j&3)*1008} lds")
    a.lab("L_WO_DONE")
    a(f"s_mov_b64 exec, -1")
    for r in range(16):
        a(f"v_mov_b32 v{OA+r}, 0")
        a(f"v_mov_b32 v{OB+r}, 0")
    a(f"v_lshlrev_b32 v{V_PA}, 4, v{L}")
    a(f"s_lshl_b32 s{S_T0}, s{S_L}, 10")
    a(f"v_add_u32 v{V_PA}, s{S_T0}, v{V_PA}")
    a(f"v_add_u32 v{V_PA+1}, {KV_OWN}, v{V_PA}")
    a(f"s_mul_i32 s{S_T1}, s{S_IDX}, 36864")
    a("s_barrier")
    a(f"s_cmp_eq_u32 s{S_S}, 7")
    a("s_cbranch_scc1 L_NOPUB")
    order = [8, 7, 6, 5, 4, 3, 2, 1, 0]
    for c, i in enumerate(order):
        a(f"ds_read_b128 v[{VH+4*c}:{VH+4*c+3}], v{V_PA+1} offset:{i*4096}")
    for c, i in enumerate(order[:5]):
        a(f"s_waitcnt lgkmcnt({8-c})")
        a(f"s_add_u32 s{S_T2}, s{S_T1}, {i*4096}")
        a(f"buffer_store_dwordx4 v[{VH+4*c}:{VH+4*c+3}], v{V_PA}, {WS}, s{S_T2} offen sc1")
    a.lab("L_NOPUB")
    a("s_branch L_P2")

    a.lab("L_COMPUTE")
    a(f"v_and_b32 v{t}, 15, v{L}")
    a(f"v_lshrrev_b32 v{t+1}, 4, v{L}")
    a(f"v_lshrrev_b32 v{t+2}, 1, v{t}")
    a(f"s_lshl_b32 s{S_T0}, s{S_WID}, 6")
    a(f"v_add_u32 v{t+3}, s{S_T0}, v{t}")
    a(f"v_lshlrev_b32 v{t+3}, 7, v{t+3}")
    a(f"v_xor_b32 v{t+4}, v{t+1}, v{t+2}")
    a(f"v_lshlrev_b32 v{t+5}, 4, v{t+4}")
    a(f"v_add_u32 v{V_AX}, v{t+3}, v{t+5}")
    a(f"v_xor_b32 v{t+4}, 4, v{t+4}")
    a(f"v_lshlrev_b32 v{t+5}, 4, v{t+4}")
    a(f"v_add_u32 v{V_AX+1}, v{t+3}, v{t+5}")
    a(f"v_bfe_u32 v{t}, v{L}, 2, 2")
    a(f"v_and_b32 v{t+2}, 3, v{L}")
    a(f"v_and_b32 v{t+3}, 1, v{t+1}")
    a(f"v_lshl_add_u32 v{t+3}, v{t+3}, 2, v{t}")
    a(f"v_lshlrev_b32 v{t+3}, 5, v{t+3}")
    a(f"v_lshl_add_u32 v{t+4}, v{t+1}, 3, v{t}")
    a(f"v_lshlrev_b32 v{t+4}, 8, v{t+4}")
    a(f"v_add_u32 v{t+4}, 32768, v{t+4}")
    a(f"v_lshlrev_b32 v{t+5}, 3, v{t+2}")
    a(f"s_and_b32 s{S_T1}, s{S_HP}, 1")
    a(f"s_lshl_b32 s{S_T1}, s{S_T1}, 3")
    a(f"v_add3_u32 v{t+5}, v{t+5}, v{t+3}, s{S_T1}")
    for Tn in range(6):
        off = 80*(Tn >> 1) + (40 if Tn & 1 else 0)
        a(f"v_add_u32 v{t+6}, {off}, v{t+5}")
        a(f"v_and_b32 v{t+6}, 255, v{t+6}")
        a(f"v_add_u32 v{V_AW+Tn}, v{t+4}, v{t+6}")
    a(f"v_min_u32 v{t+6}, 2, v{t+2}")
    a(f"v_mul_u32_u24 v{t+6}, 80, v{t+6}")
    a(f"v_add3_u32 v{t+6}, v{t+6}, v{t+3}, s{S_T1}")
    a(f"v_add_u32 v{t+6}, 32, v{t+6}")
    a(f"v_and_b32 v{t+6}, 255, v{t+6}")
    a(f"v_add_u32 v{V_AW+6}, v{t+4}, v{t+6}")
    a(f"v_and_b32 v{t}, 15, v{L}")
    a(f"v_lshrrev_b32 v{t+1}, 4, v{L}")
    a(f"v_and_b32 v{t+2}, 1, v{t+1}")
    a(f"v_lshl_add_u32 v{t+2}, v{t+2}, 4, v{t}")
    a(f"v_lshrrev_b32 v{t+3}, 2, v{t}")
    a(f"v_lshrrev_b32 v{t+4}, 3, v{t}")
    a(f"v_xor_b32 v{t+3}, v{t+3}, v{t+4}")
    a(f"v_lshrrev_b32 v{t+4}, 1, v{t+1}")
    a(f"v_xor_b32 v{t+3}, v{t+3}, v{t+4}")
    a(f"v_and_b32 v{t+3}, 1, v{t+3}")
    a(f"v_lshlrev_b32 v{t+3}, 4, v{t+3}")
    a(f"v_lshl_add_u32 v{t+3}, v{t+2}, 5, v{t+3}")
    a(f"s_mul_i32 s{S_T0}, s{S_WID}, {2*TILE}")
    a(f"s_add_u32 s{S_T0}, s{S_T0}, {KV_OWN}")
    a(f"s_mul_i32 s{S_T1}, s{S_WID}, {2*QTILE}")
    a(f"s_add_u32 s{S_T1}, s{S_T1}, {Q_BASE}")
    a(f"v_add_u32 v{vEK}, s{S_T0}, v{t+3}")
    a(f"v_add_u32 v{vEQ}, s{S_T1}, v{t+3}")
    a(f"v_mul_u32_u24 v{t+4}, 72, v{t}")
    a(f"v_lshl_add_u32 v{t+5}, v{t+1}, 3, v{t+4}")
    a(f"v_add_u32 v{t+5}, 2304, v{t+5}")
    a(f"v_add_u32 v{vEV}, s{S_T0}, v{t+5}")
    a(f"v_lshlrev_b32 v{t+5}, 3, v{t}")
    a(f"v_add_u32 v{t+5}, 2048, v{t+5}")
    a(f"v_add_u32 v{t+6}, s{S_T1}, v{t+5}")
    a(f"v_add_u32 v{t+7}, s{S_T0}, v{t+5}")
    a(f"v_add_u32 v{t+4}, {2304+32}, v{t+4}")
    a(f"v_add_u32 v{t+4}, s{S_T0}, v{t+4}")
    a(f"v_mov_b32 v{vDr}, 128")
    a(f"v_mov_b32 v{vDt}, {TILE}")
    a(f"v_mov_b32 v{vF}, 1.0")
    a(f"v_mov_b32 v{vE6}, v{t+7}")
    a(f"v_cmp_eq_u32 vcc, 0, v{t+1}")
    a(f"v_mov_b32 v{t+5}, {QTILE}")
    a(f"v_mov_b32 v{vC}, {f32bits(QSCALE):#x}")
    a(f"v_cndmask_b32 v{vE6}, v{vE6}, v{t+6}, vcc")
    a(f"v_cndmask_b32 v{vDt}, v{vDt}, v{t+5}, vcc")
    a(f"v_cndmask_b32 v{vF}, v{vF}, v{vC}, vcc")
    a(f"v_cmp_eq_u32 vcc, 2, v{t+1}")
    a(f"v_mov_b32 v{t+5}, 1152")
    a(f"v_mov_b32 v{vC+1}, v{vC}")
    a(f"v_cndmask_b32 v{vE6}, v{vE6}, v{t+4}, vcc")
    a(f"v_cndmask_b32 v{vDr}, v{vDr}, v{t+5}, vcc")
    a(f"v_mov_b32 v{vF+1}, v{vF}")
    a("s_waitcnt lgkmcnt(0)")
    if 'nocp' not in exp:
        a(f"s_cmp_lg_u32 s{S_WID}, 3")
        a("s_cbranch_scc1 L_NOCP")
        a(f"s_getpc_b64 s[{S_RET}:{S_RET+1}]")
        a.lab("L_PCREF")
        a(f"s_sub_u32 s{S_RET}, s{S_RET}, L_PCREF-{NAME}_kernel")
        a(f"s_subb_u32 s{S_RET+1}, s{S_RET+1}, 0")
        a(f"s_mul_i32 s{S_T0}, s{S_I}, {5*128}")
        a(f"v_lshlrev_b32 v{t}, 7, v{L}")
        a(f"v_add_u32 v{t}, s{S_T0}, v{t}")
        a(f"s_mov_b32 s{S_T1}, L_END-{NAME}_kernel")
        a(f"v_cmp_gt_u32 vcc, s{S_T1}, v{t}")
        a(f"s_and_b64 vcc, vcc, 31")
        a(f"s_and_saveexec_b64 s[{S_SAVE}:{S_SAVE+1}], vcc")
        a("s_cbranch_execz L_NOCP2")
        a(f"global_load_dword v{V_TL}, v{t}, s[{S_RET}:{S_RET+1}]")
        a.lab("L_NOCP2")
        rest_exec()
        a.lab("L_NOCP")
    a(f"s_cmp_lg_u32 s{S_WID}, 0")
    a("s_cbranch_scc1 L_NOG0")
    a(f"s_lshl_b32 s{S_T0}, s{S_IDX}, 8")
    a(f"s_add_u32 s{S_T0}, s{S_T0}, {WS_FLAG}")
    a(f"s_lshl_b32 s{S_T1}, s{S_GRP}, 12")
    a(f"s_add_u32 s{S_T1}, s{S_T1}, {WS_OF}")
    a(f"v_mov_b32 v{t}, 0")
    a(f"buffer_load_dword v{V_TG}, v{t}, {WS}, s{S_T0} offen sc1")
    a(f"s_sub_u32 s{S_T0}, s{S_T0}, 256")
    a(f"s_max_u32 s{S_T0}, s{S_T0}, {WS_FLAG}")
    a(f"buffer_load_dword v{V_TG+1}, v{t}, {WS}, s{S_T0} offen sc1")
    a(f"buffer_load_dword v{V_TG+2}, v{t}, {WS}, s{S_T1} offen sc1")
    a.lab("L_NOG0")
    for i in range(112):
        a(f"v_mov_b32 v{V_ACC+i}, 0")
    emit_masks()
    emit_p2_patterns()
    a(f"v_mov_b32 v{t+2}, 0x3f803f80")
    a(f"v_mov_b32 v{t+3}, 0x3f803f80")
    a(f"v_mul_u32_u24 v{t+4}, 576, v{L}")
    a(f"v_add_u32 v{t+4}, {MISC}, v{t+4}")
    save_exec(15)
    a(f"ds_write_b64 v{t+4}, v[{t+2}:{t+3}]")
    rest_exec()
    a(f"s_cmp_lg_u32 s{S_WID}, 0")
    a("s_cbranch_scc1 L_NOG1")
    a("s_waitcnt vmcnt(0)")
    for i in range(3): a(f"v_add_u32 v{V_TG+i}, {TAG_INC:#x}, v{V_TG+i}")
    a(f"v_mov_b32 v{V_TG+3}, 0")
    a(f"v_mov_b32 v{t+4}, {TAGS_LDS}")
    save_exec(1)
    a(f"ds_write_b128 v{t+4}, v[{V_TG}:{V_TG+3}]")
    for i in range(4): a(f"v_mov_b32 v{V_TG+i}, 0")
    a(f"ds_write_b128 v{t+4}, v[{V_TG}:{V_TG+3}] offset:16")
    rest_exec()
    a.lab("L_NOG1")
    a("s_waitcnt lgkmcnt(0)")
    a("s_barrier")
    if "tsh" not in exp and "tsj" not in exp: ts(1)
    def reads(setb, ks):
        xs = [f"ds_read_b128 v[{setb+4*mt}:{setb+4*mt+3}], v{V_AX+ks} offset:{mt*2048}" for mt in range(4)]
        ws = []
        for Tn in range(7):
            b = setb + 16 + 4*Tn
            ws.append(f"ds_read_b64_tr_b16 v[{b}:{b+1}], v{V_AW+Tn} offset:{ks*8192}")
            ws.append(f"ds_read_b64_tr_b16 v[{b+2}:{b+3}], v{V_AW+Tn} offset:{ks*8192+1024}")
        return [xs[0], ws[0], ws[1], xs[1], ws[2], ws[3], xs[2], ws[4], ws[5], xs[3]] + ws[6:]
    def mfmas(setb):
        m = []
        for Tn in range(7):
            for mt in range(4):
                d = V_ACC + (mt*7+Tn)*4
                m.append(f"v_mfma_f32_16x16x32_bf16 v[{d}:{d+3}], v[{setb+16+4*Tn}:{setb+16+4*Tn+3}], v[{setb+4*mt}:{setb+4*mt+3}], v[{d}:{d+3}]")
        return m
    def interleave(ms, extra, per=1):
        ri = 0
        for i, m in enumerate(ms):
            a(m)
            for _ in range(per):
                if ri < len(extra): a(extra[ri]); ri += 1
        while ri < len(extra):
            a(extra[ri]); ri += 1
    for i in range(4): a(f"v_mov_b32 v{V_TG+i}, -1")
    a(f"v_lshlrev_b32 v{V_TL+1}, 4, v{L}")
    a(f"s_lshl_b32 s{S_XB}, s{S_GRP}, 18")
    a(f"s_add_u32 s{S_XB}, s{S_XB}, {WS_O}")
    a(f"s_lshl_b32 s{S_T0}, s{S_WID}, 16")
    a(f"s_add_u32 s{S_XB}, s{S_XB}, s{S_T0}")
    a(f"s_lshl_b32 s{S_T0}, s{S_HP}, 10")
    a(f"s_add_u32 s{S_XB}, s{S_XB}, s{S_T0}")
    a(f"s_lshl_b32 s{S_WB}, s{S_GRP}, 15")
    a(f"s_add_u32 s{S_WB}, s{S_WB}, {WS_OR}")
    a(f"s_lshl_b32 s{S_T0}, s{S_HP}, 1")
    a(f"s_and_b32 s{S_T1}, s{S_WID}, 1")
    a(f"s_add_u32 s{S_T0}, s{S_T0}, s{S_T1}")
    a(f"s_lshl_b32 s{S_T0}, s{S_T0}, 10")
    a(f"s_add_u32 s{S_WB}, s{S_WB}, s{S_T0}")
    for rd in reads(V_SET0, 0): a(rd)
    a(f"s_mov_b32 s{S_K}, 0")
    a(f"s_mov_b32 s{S_SB}, 0")
    if 'tb' in exp: a(f"v_mov_b32 v{V_TL}, 0")
    a.lab("L_GEMM")
    a(f"s_cmp_ge_u32 s{S_K}, 5")
    a("s_cbranch_scc1 L_GEMM_NS")
    a(f"s_cmp_eq_u32 s{S_K}, 4")
    a(f"s_cselect_b32 s{S_XB}, s{S_WB}, s{S_XB}")
    a(f"buffer_store_dwordx4 v[{V_TG}:{V_TG+3}], v{V_TL+1}, {WS}, s{S_XB} offen sc1")
    a(f"s_add_u32 s{S_XB}, s{S_XB}, 16384")
    a.lab("L_GEMM_NS")
    a("s_waitcnt lgkmcnt(0)")
    if 'tb' in exp:
        a(f"s_sub_u32 s92, s92, s70")
        a(f"s_mov_b32 m0, s{S_K}")
        a("s_nop 4")
        a(f"v_writelane_b32 v{V_TL}, s92, m0")
    sal = [f"s_add_u32 s{S_SB}, s{S_SB}, 1", f"s_cmp_eq_u32 s{S_SB}, 3", f"s_mov_b32 s{S_T0}, {STAGE}",
           f"s_cselect_b32 s{S_T0}, {(-2*STAGE) & 0xffffffff}, s{S_T0}", f"s_cselect_b32 s{S_SB}, 0, s{S_SB}"]
    interleave(mfmas(V_SET0), reads(V_SET1, 1) + sal)
    a("s_waitcnt lgkmcnt(0)")
    a("s_barrier")
    if 'tb' in exp: a("s_memtime s[92:93]")
    rd = reads(V_SET0, 0)
    adds = [f"v_add_u32 v{V_AX+i}, s{S_T0}, v{V_AX+i}" for i in range(9)]
    ex = [adds[0], adds[2], rd[0], rd[1], rd[2], adds[3], rd[3], rd[4], rd[5], adds[4], rd[6], rd[7], rd[8], rd[9],
          adds[5], rd[10], rd[11], adds[6], rd[12], rd[13], adds[7], rd[14], rd[15], adds[8], rd[16], rd[17], adds[1],
          f"s_add_u32 s{S_K}, s{S_K}, 1", f"s_cmp_lt_u32 s{S_K}, 9"]
    ms = mfmas(V_SET1)
    ri = 0
    for i, m in enumerate(ms):
        a(m)
        n = 2 if i < 6 else 1
        for _ in range(n):
            if ri < len(ex): a(ex[ri]); ri += 1
    assert ri == len(ex)
    a("s_cbranch_scc1 L_GEMM")
    if "tsh" not in exp and "tsj" not in exp: ts(2)
    a.c("phase-1 epilogue")
    a("s_waitcnt lgkmcnt(0)")
    acc = lambda mt, Tn: V_ACC + (mt*7+Tn)*4
    e = [V_SET0]
    def qk_tile(Tn, base_reg, pstride, hoff):
        for p in range(2):
            R = e[0]; e[0] += 4
            da, db = acc(2*p, Tn), acc(2*p+1, Tn)
            a(f"v_cvt_pk_bf16_f32 v{R}, v{da}, v{da+1}")
            a(f"v_cvt_pk_bf16_f32 v{R+2}, v{db}, v{db+1}")
            a(f"v_cvt_pk_bf16_f32 v{R+1}, v{da+2}, v{da+3}")
            a(f"v_cvt_pk_bf16_f32 v{R+3}, v{db+2}, v{db+3}")
            a("s_nop 0")
            a(f"v_permlane16_swap_b32 v{R}, v{R+2}")
            a(f"v_permlane16_swap_b32 v{R+1}, v{R+3}")
            a(f"ds_write_b128 v{base_reg}, v[{R}:{R+3}] offset:{p*pstride+hoff}")
    a("s_nop 3")
    qk_tile(2, vEK, TILE, 0)
    qk_tile(3, vEK, TILE, 1024)
    for Tn in (4, 5):
        for mt in range(4):
            R = e[0]; e[0] += 2
            d = acc(mt, Tn)
            a(f"v_cvt_pk_bf16_f32 v{R}, v{d}, v{d+1}")
            a(f"v_cvt_pk_bf16_f32 v{R+1}, v{d+2}, v{d+3}")
            a(f"ds_write_b64 v{vEV}, v[{R}:{R+1}] offset:{(mt>>1)*TILE + (mt&1)*1152 + (40 if Tn==5 else 0)}")
    R6 = e[0]; e[0] += 8
    for mt in range(4):
        d = acc(mt, 6)
        a(f"v_pk_mul_f32 v[{d}:{d+1}], v[{d}:{d+1}], v[{vF}:{vF+1}]")
        a(f"v_pk_mul_f32 v[{d+2}:{d+3}], v[{d+2}:{d+3}], v[{vF}:{vF+1}]")
    for mt in range(4):
        d = acc(mt, 6)
        a(f"v_cvt_pk_bf16_f32 v{R6+2*mt}, v{d}, v{d+1}")
        a(f"v_cvt_pk_bf16_f32 v{R6+2*mt+1}, v{d+2}, v{d+3}")
    a(f"v_add_u32 v{t}, v{vE6}, v{vDr}")
    a(f"v_add_u32 v{t+1}, v{vE6}, v{vDt}")
    a(f"v_add_u32 v{t+2}, v{t+1}, v{vDr}")
    a(f"s_mov_b64 s[{S_SAVE}:{S_SAVE+1}], exec")
    a(f"s_mov_b32 exec_hi, 0x0000ffff")
    a(f"ds_write_b64 v{vE6}, v[{R6}:{R6+1}]")
    a(f"ds_write_b64 v{t}, v[{R6+2}:{R6+3}]")
    a(f"ds_write_b64 v{t+1}, v[{R6+4}:{R6+5}]")
    a(f"ds_write_b64 v{t+2}, v[{R6+6}:{R6+7}]")
    rest_exec()
    a("s_waitcnt lgkmcnt(0)")
    a("s_barrier")
    a(f"v_mov_b32 v{t}, {TAGS_LDS+8}")
    a(f"ds_read_b32 v{t+3}, v{t}")
    a(f"s_lshl_b32 s{S_OFS}, s{S_GRP}, 12")
    a(f"s_add_u32 s{S_OFS}, s{S_OFS}, {WS_OF}")
    a("s_waitcnt vmcnt(0) lgkmcnt(0)")
    a(f"v_readfirstlane_b32 s{S_TAGO}, v{t+3}")
    oflag(a, "L_CLR", CNTOB, 128, save_exec, rest_exec, last=3)
    for mt in range(4):
        for Tn in (0, 1):
            d = acc(mt, Tn)
            a(f"v_pk_mul_f32 v[{d}:{d+1}], v[{d}:{d+1}], v[{vC}:{vC+1}]")
            a(f"v_pk_mul_f32 v[{d+2}:{d+3}], v[{d+2}:{d+3}], v[{vC}:{vC+1}]")
    e[0] = 84
    qk_tile(0, vEQ, QTILE, 0)
    qk_tile(1, vEQ, QTILE, 1024)
    for r in range(16):
        a(f"v_mov_b32 v{OA+r}, 0")
        a(f"v_mov_b32 v{OB+r}, 0")

    a.lab("L_P2")
    a(f"v_mov_b32 v{t}, {TAGS_LDS}")
    a(f"ds_read_b128 v[{V_TG}:{V_TG+3}], v{t}")
    a("s_waitcnt lgkmcnt(0)")
    a("s_barrier")
    ts(3)
    if debug_stage == 1:
        a(f"s_lshl_b32 s{S_T0}, s{S_IDX}, 16")
        a(f"v_lshlrev_b32 v{t}, 4, v0")
        for i in range(7):
            a(f"v_add_u32 v{t+1}, {KV_OWN + i*8192}, v{t}")
            a(f"ds_read_b128 v[40:43], v{t+1}")
            a("s_waitcnt lgkmcnt(0)")
            a(f"v_add_u32 v{t+2}, {i*8192}, v{t}")
            a(f"buffer_store_dwordx4 v[40:43], v{t+2}, {WS}, s{S_T0} offen")
            a("s_waitcnt vmcnt(0)")
        a("s_branch L_FIN")
    if debug_stage == 9:
        a("s_branch L_FIN")
    if debug_stage not in (1, 9):
        phase2(a, debug_stage, ts, exp, save_exec, rest_exec)
        phase3(a, debug_stage, ts, exp, save_exec, rest_exec)
    a.lab("L_FIN")
    if timing:
        a("s_waitcnt vmcnt(0) lgkmcnt(0)")
        a(f"{'s_memrealtime' if 'abs' in exp else 's_memtime'} s[94:95]")
        a("s_waitcnt lgkmcnt(0)")
        a(f"s_lshl_b32 s{S_T0}, s2, 3")
        a(f"s_add_u32 s{S_T0}, s{S_T0}, s{S_WID}")
        a(f"s_lshl_b32 s{S_T0}, s{S_T0}, 6")
        a(f"s_add_u32 s{S_T0}, s{S_T0}, {TIMING_OFF}")
        for i in range(13):
            a(f"s_sub_u32 s{S_T1}, s{70+2*i}, s70" if (i and 'abs' not in exp) else f"s_mov_b32 s{S_T1}, s{70+2*i}")
            a(f"s_cmp_eq_u32 s{70+2*i}, 0")
            a(f"s_cselect_b32 s{S_T1}, 0, s{S_T1}")
            a(f"v_mov_b32 v{40+i}, s{S_T1}")
        if 'tb' in exp:
            a(f"v_lshlrev_b32 v2, 2, v{V_LANE}")
            a(f"s_add_u32 s{S_T1}, s{S_T0}, {1<<20}")
            a(f"s_mov_b64 exec, 0xffff")
            a(f"buffer_store_dword v{V_TL}, v2, {WS}, s{S_T1} offen")
        a(f"v_mov_b32 v2, 0")
        a(f"s_mov_b64 exec, 1")
        for i in range(3):
            a(f"buffer_store_dwordx4 v[{40+4*i}:{43+4*i}], v2, {WS}, s{S_T0} offen offset:{16*i}")
        a(f"buffer_store_dword v52, v2, {WS}, s{S_T0} offen offset:48")
        a("s_waitcnt vmcnt(0)")
    a.lab("L_END")
    a("s_endpgm")
    a(f""".section .rodata,"a"
.p2align 6
.amdhsa_kernel {NAME}_kernel
  .amdhsa_next_free_vgpr 256
  .amdhsa_next_free_sgpr 102
  .amdhsa_accum_offset 256
  .amdhsa_group_segment_fixed_size 0
  .amdhsa_kernarg_size 72
  .amdhsa_user_sgpr_count 2
  .amdhsa_user_sgpr_kernarg_segment_ptr 1
  .amdhsa_system_sgpr_workgroup_id_x 1
.end_amdhsa_kernel""")
    return a.text()

WS = f"s[{S_WS}:{S_WS+3}]"

def spin_poll(a, name, check_lines, load_line, limit=2000000, first_done=False):
    a(f"s_mov_b32 s{S_CNT}, 0")
    if first_done: a(f"s_branch {name}_W")
    a.lab(name)
    a(load_line)
    a.lab(name + "_W")
    a(f"s_add_u32 s{S_CNT}, s{S_CNT}, 1")
    a("s_waitcnt vmcnt(0)")
    for l in check_lines: a(l)
    a(f"s_cbranch_scc1 {name}_OK")
    a(f"s_cmp_lt_u32 s{S_CNT}, {limit}")
    a(f"s_cbranch_scc1 {name}")
    a.lab(name + "_OK")

def lds_inc(a, addr, save_exec, rest_exec, rtn=None):
    t = T
    a(f"v_mov_b32 v{t}, {addr}")
    a(f"v_mov_b32 v{t+1}, 1")
    save_exec(1)
    if rtn is None: a(f"ds_add_u32 v{t}, v{t+1}")
    else: a(f"ds_add_rtn_u32 v{rtn}, v{t}, v{t+1}")
    rest_exec()

def lds_wait(a, name, addr, val):
    t = T
    a(f"v_mov_b32 v{t}, {addr}")
    a(f"s_mov_b32 s{S_CNT}, 0")
    a.lab(name)
    a(f"ds_read_b32 v{t+1}, v{t}")
    a(f"s_add_u32 s{S_CNT}, s{S_CNT}, 1")
    a("s_waitcnt lgkmcnt(0)")
    a(f"v_readfirstlane_b32 s{S_T0}, v{t+1}")
    a(f"s_cmp_ge_u32 s{S_T0}, {val}")
    a(f"s_cbranch_scc1 {name}_OK")
    a(f"s_cmp_lt_u32 s{S_CNT}, 20000000")
    a(f"s_cbranch_scc1 {name}")
    a.lab(name + "_OK")

def hook_point(a, tag):
    a(f"s_add_u32 s{S_U}, s{S_U}, 1")
    a(f"s_cmp_lg_u32 s{S_U}, s{S_HOOK}")
    a(f"s_cbranch_scc1 {tag}")
    a(f"s_call_b64 s[{S_RET2}:{S_RET2+1}], L_HOOK")
    a.lab(tag)

def run_code(a, name, QM, QR, O, exp):
    cnt = [0]
    def qk1(creg):
        c = "0" if creg is None else f"v[{creg}:{creg+15}]"
        a(f"v_mfma_f32_32x32x16_bf16 v[{VS}:{VS+15}], v[{VKF}:{VKF+3}], v[{QM}:{QM+3}], {c}")
    def qk2():
        a(f"v_mfma_f32_32x32x16_bf16 v[{VS}:{VS+15}], v[{VKR}:{VKR+3}], v[{QR}:{QR+3}], v[{VS}:{VS+15}]")
    def pv(V, P):
        a(f"v_mfma_f32_32x32x16_bf16 v[{O}:{O+15}], v[{V}:{V+3}], v[{P}:{P+3}], v[{O}:{O+15}]")
    def kread():
        a(f"ds_read_b128 v[{VKF}:{VKF+3}], v{A_K}")
        a(f"ds_read_b64 v[{VKR}:{VKR+1}], v{A_KR}")
    def kstep():
        a(f"v_add_u32 v{A_K}, v{ST_K}, v{A_K}")
        a(f"v_add_u32 v{A_KR}, v{ST_K}, v{A_KR}")
    def vread(V, off):
        a(f"ds_read_b64_tr_b16 v[{V}:{V+1}], v{A_V} offset:{off}")
        a(f"ds_read_b64_tr_b16 v[{V+2}:{V+3}], v{A_V} offset:{off+576}")
    def cvt(j): a(f"v_cvt_pk_bf16_f32 v{VP+j}, v{VE+2*j}, v{VE+2*j+1}")
    def ex(r): a(f"v_exp_f32 v{VE+r}, v{VS+r}")
    def unit(D):
        for r in range(8): ex(r)
        for j in range(4): cvt(j)
        ex(8); ex(9)
        a("s_waitcnt lgkmcnt(0)")
        pv(VVA, VP)
        for r in range(10, 16): ex(r)
        if D:
            qk1(V_MASK if D == "mask" else None)
            for j in range(4, 8): cvt(j)
            vread(VVA, 0)
            qk2()
            kstep()
            kread()
            pv(VVB, VP+4)
            vread(VVB, 1152)
            a(f"v_add_u32 v{A_V}, v{ST_V}, v{A_V}")
        else:
            a("s_nop 0")
            for j in range(4, 8): cvt(j)
            a("s_nop 1")
            pv(VVB, VP+4)
    a.lab(name)
    kread()
    a(f"s_cmp_eq_u32 s{S_N}, 1")
    a(f"s_cbranch_scc1 {name}_M1")
    kstep()
    a("s_waitcnt lgkmcnt(0)")
    qk1(None); qk2()
    vread(VVA, 0); kread(); vread(VVB, 1152)
    a(f"v_add_u32 v{A_V}, v{ST_V}, v{A_V}")
    a(f"s_sub_u32 s{S_N}, s{S_N}, 2")
    a.lab(name + "_BT")
    a(f"s_cmp_eq_u32 s{S_N}, 0")
    a(f"s_cbranch_scc1 {name}_MK0")
    a(f"s_sub_u32 s{S_E}, s{S_HOOK}, s{S_U}")
    a(f"s_min_u32 s{S_E}, s{S_E}, s{S_N}")
    a(f"s_sub_u32 s{S_N}, s{S_N}, s{S_E}")
    a(f"s_add_u32 s{S_U}, s{S_U}, s{S_E}")
    a(f"s_sub_u32 s{S_E}, s{S_E}, 1")
    a.lab(name + "_LP")
    unit("plain")
    a(f"s_sub_u32 s{S_E}, s{S_E}, 1")
    a("s_nop 1")
    a(f"s_cbranch_scc0 {name}_LP")
    a(f"s_cmp_lg_u32 s{S_U}, s{S_HOOK}")
    a(f"s_cbranch_scc1 {name}_BT")
    a(f"s_call_b64 s[{S_RET2}:{S_RET2+1}], L_HOOK")
    a(f"s_branch {name}_BT")
    a.lab(name + "_MK0")
    a("s_nop 3")
    a.lab(name + "_MK")
    unit("mask")
    hook_point(a, f"{name}_H1")
    a("s_nop 1")
    a.lab(name + "_FN")
    unit(None)
    hook_point(a, f"{name}_H2")
    a(f"s_setpc_b64 s[{S_RET}:{S_RET+1}]")
    a.lab(name + "_M1")
    a("s_waitcnt lgkmcnt(0)")
    qk1(V_MASK); qk2()
    vread(VVA, 0); vread(VVB, 1152)
    a("s_nop 7")
    a(f"s_branch {name}_FN")

def set_run(a, region, tile_sreg, n_lines, step):
    a(f"s_mul_i32 s{S_T0}, s{tile_sreg}, {TILE}" if tile_sreg is not None else f"s_mov_b32 s{S_T0}, 0")
    a(f"s_add_u32 s{S_T0}, s{S_T0}, {region}")
    a(f"v_add_u32 v{A_K}, s{S_T0}, v{B_K}")
    a(f"v_add_u32 v{A_KR}, s{S_T0}, v{B_KR}")
    a(f"v_and_b32 v{A_V}, s{S_T0}, v{MK_V}")
    a(f"v_add_u32 v{A_V}, v{B_V}, v{A_V}")
    a(f"v_mov_b32 v{ST_K}, {step & 0xffffffff:#x}")
    a(f"v_and_b32 v{ST_V}, v{ST_K}, v{MK_V}")
    for l in n_lines: a(l)

def finalize(a, O, qb_sreg, save_exec, rest_exec):
    t = T; R = VS
    a(f"v_rcp_f32 v{t+2}, v{O+12}")
    a(f"s_lshl_b32 s{S_T0}, s{qb_sreg}, 15")
    a(f"s_add_u32 s{S_T1}, s{S_T0}, s{S_OM}")
    a(f"s_lshl_b32 s{S_T0}, s{qb_sreg}, 7")
    a(f"s_add_u32 s{S_T2}, s{S_T0}, s{S_OR}")
    for r in range(12): a(f"v_mul_f32 v{O+r}, v{O+r}, v{t+2}")
    a(f"v_cvt_pk_bf16_f32 v{R}, v{O}, v{O+1}")
    a(f"v_cvt_pk_bf16_f32 v{R+1}, v{O+2}, v{O+3}")
    a(f"v_cvt_pk_bf16_f32 v{R+2}, v{O+4}, v{O+5}")
    a(f"v_cvt_pk_bf16_f32 v{R+3}, v{O+6}, v{O+7}")
    a(f"v_cvt_pk_bf16_f32 v{R+4}, v{O+8}, v{O+9}")
    a(f"v_cvt_pk_bf16_f32 v{R+5}, v{O+10}, v{O+11}")
    a(f"s_cmp_eq_u32 s{S_HEAD}, 0")
    a(f"s_cselect_b64 s[{S_SAVE}:{S_SAVE+1}], -1, 0")
    a(f"v_permlane32_swap_b32 v{R}, v{R+2}")
    a(f"v_permlane32_swap_b32 v{R+1}, v{R+3}")
    a(f"v_cndmask_b32_e64 v{R+4}, v{R+5}, v{R+4}, s[{S_SAVE}:{S_SAVE+1}]")
    a(f"buffer_store_dwordx4 v[{R}:{R+3}], v{V_OA1}, {WS}, s{S_T1} offen sc1")
    a(f"s_mov_b64 s[{S_SAVE}:{S_SAVE+1}], exec")
    a(f"s_mov_b32 exec_hi, 0")
    a(f"buffer_store_dword v{R+4}, v{V_OA2}, {WS}, s{S_T2} offen sc1")
    rest_exec()

def oflag(a, name, cnt_addr, flag_off, save_exec, rest_exec, after_store=None, last=7):
    t = T
    lds_inc(a, cnt_addr, save_exec, rest_exec, rtn=t+2)
    a("s_waitcnt lgkmcnt(0)")
    a(f"v_readfirstlane_b32 s{S_T0}, v{t+2}")
    a(f"s_cmp_lg_u32 s{S_T0}, {last}")
    a(f"s_cbranch_scc1 {name}")
    a(f"s_lshl_b32 s{S_T0}, s{S_HP}, 2")
    a(f"s_add_u32 s{S_T0}, s{S_T0}, s{S_OFS}")
    a(f"v_lshlrev_b32 v{t}, 7, v{V_LANE}")
    a(f"v_mov_b32 v{t+1}, s{S_TAGO}")
    save_exec("0xffff")
    a(f"buffer_store_dword v{t+1}, v{t}, {WS}, s{S_T0} offen offset:{flag_off} sc1")
    rest_exec()
    if after_store: after_store()
    a.lab(name)

def phase2(a, debug_stage, ts, exp, save_exec, rest_exec):
    t = T; L = V_LANE
    UH = (4, 6, 8)
    if 'hkA' in exp: UH = (3, 5, 7)
    if 'hkB' in exp: UH = (4, 6, 7)
    if 'hkC' in exp: UH = (5, 7, 8)
    UP = 15
    a.c("======== phase 2 ========")
    a(f"v_readfirstlane_b32 s{S_TAGOUT}, v{V_TG}")
    a(f"v_readfirstlane_b32 s{S_TAGIN}, v{V_TG+1}")
    a(f"v_readfirstlane_b32 s{S_TAGO}, v{V_TG+2}")
    a(f"s_lshl_b32 s{S_T0}, s{S_GRP}, 18")
    a(f"s_add_u32 s{S_T0}, s{S_T0}, {WS_O}")
    a(f"s_lshl_b32 s{S_T1}, s{S_HP}, 10")
    a(f"s_lshl_b32 s{S_T2}, s{S_HEAD}, 9")
    a(f"s_add_u32 s{S_T1}, s{S_T1}, s{S_T2}")
    a(f"s_add_u32 s{S_OM}, s{S_T1}, s{S_T0}")
    a(f"s_lshl_b32 s{S_T0}, s{S_GRP}, 15")
    a(f"s_add_u32 s{S_T0}, s{S_T0}, {WS_OR}")
    a(f"s_lshl_b32 s{S_T1}, s{S_HP}, 1")
    a(f"s_add_u32 s{S_T1}, s{S_T1}, s{S_HEAD}")
    a(f"s_lshl_b32 s{S_T1}, s{S_T1}, 10")
    a(f"s_add_u32 s{S_OR}, s{S_T1}, s{S_T0}")
    a(f"s_lshl_b32 s{S_OFS}, s{S_GRP}, 12")
    a(f"s_add_u32 s{S_OFS}, s{S_OFS}, {WS_OF}")
    a(f"v_bfe_u32 v{V_OA1}, v{L}, 4, 1")
    a(f"v_lshlrev_b32 v{V_OA1}, 14, v{V_OA1}")
    a(f"v_and_b32 v{t+4}, 15, v{L}")
    a(f"v_lshl_add_u32 v{V_OA1}, v{t+4}, 4, v{V_OA1}")
    a(f"v_lshrrev_b32 v{t+4}, 5, v{L}")
    a(f"v_lshl_add_u32 v{V_OA1}, v{t+4}, 8, v{V_OA1}")
    a(f"v_lshlrev_b32 v{V_OA2}, 2, v{L}")
    for (QM, QR, sreg) in ((QA_M, QA_R, S_M), (QB_M, QB_R, S_MB)):
        a(f"s_mul_i32 s{S_T0}, s{sreg}, {QTILE}")
        a(f"s_add_u32 s{S_T0}, s{S_T0}, {Q_BASE}")
        a(f"v_add_u32 v{t+2}, s{S_T0}, v{B_K}")
        a(f"v_add_u32 v{t+3}, s{S_T0}, v{B_KR}")
        a(f"ds_read_b128 v[{QM}:{QM+3}], v{t+2}")
        a(f"ds_read_b64 v[{QR}:{QR+1}], v{t+3}")
    a(f"s_cmp_eq_u32 s{S_HEAD}, 0")
    a(f"s_cselect_b32 s{S_T0}, -1, 0")
    a(f"s_cselect_b32 s{S_T1}, 0, -1")
    a(f"v_cmp_gt_u32 vcc, 32, v{L}")
    a(f"v_mov_b32 v{t}, s{S_T0}")
    a(f"v_mov_b32 v{t+1}, s{S_T1}")
    a(f"v_cndmask_b32_e64 v{t}, 0, v{t}, vcc")
    a(f"v_cndmask_b32_e64 v{t+1}, 0, v{t+1}, vcc")
    a(f"v_mov_b32 v{VKR+2}, 0")
    a(f"v_mov_b32 v{VKR+3}, 0")
    for QR in (QA_R, QB_R):
        a(f"v_mov_b32 v{QR+2}, 0")
        a(f"v_mov_b32 v{QR+3}, 0")
    a("s_waitcnt lgkmcnt(0)")
    for QR in (QA_R, QB_R):
        a(f"v_and_b32 v{QR}, v{QR}, v{t}")
        a(f"v_and_b32 v{QR+1}, v{QR+1}, v{t+1}")
    lds_inc(a, CNTQ, save_exec, rest_exec)
    a(f"s_mov_b32 s{S_U}, 0")
    a(f"s_mov_b32 s{S_HST}, 0")
    a(f"s_mov_b32 s{S_HOOK}, {UP}")
    a(f"s_mov_b32 s{S_HST}, 3")
    a(f"s_cmp_lt_u32 s{S_WID}, 4")
    a(f"s_cbranch_scc1 L_HS2")
    a(f"s_mov_b32 s{S_HST}, 0")
    a(f"s_mov_b32 s{S_HOOK}, {UH[0]}")
    a(f"s_cmp_eq_u32 s{S_S}, 7")
    a(f"s_cbranch_scc1 L_HS1")
    a(f"s_mul_i32 s{S_T1}, s{S_IDX}, 36864")
    for c, i in enumerate([3, 2, 1, 0]):
        a(f"s_add_u32 s{S_T2}, s{S_T1}, {i*4096}")
        a(f"buffer_store_dwordx4 v[{VH+20+4*c}:{VH+20+4*c+3}], v{V_PA}, {WS}, s{S_T2} offen sc1")
    a.lab("L_HS1")
    if 'noprio' not in exp: a("s_setprio 1")
    a.lab("L_HS2")
    ts(4)
    set_run(a, KV_OWN, None, [f"s_add_u32 s{S_N}, s{S_M}, 1"], TILE)
    a(f"s_call_b64 s[{S_RET}:{S_RET+1}], L_RUNA")
    set_run(a, KV_OWN, None, [f"s_sub_u32 s{S_N}, 8, s{S_M}"], TILE)
    a(f"s_call_b64 s[{S_RET}:{S_RET+1}], L_RUNB")
    ts(5)
    a(f"s_cmp_eq_u32 s{S_S}, 0")
    a("s_cbranch_scc1 L_FINAL0")
    a(f"v_mov_b32 v{t+2}, {NEG:#x}")
    for r in range(16): a(f"v_sub_f32 v{V_MASK+r}, v{t+2}, v{V_MASK+r}")
    a(f"s_cmp_lt_u32 s{S_WID}, 4")
    a("s_cbranch_scc1 L_H5DONE")
    lds_wait(a, "L_WQ", CNTQ, 8)
    a(f"v_add_u32 v{V_PA+1}, {KV_HALO}, v{V_PA}")
    for c, i in enumerate([8, 7, 6, 5, 4, 3, 2, 1, 0]):
        a(f"s_waitcnt vmcnt({8-c})")
        a(f"ds_write_b128 v{V_PA+1}, v[{VH+4*c}:{VH+4*c+3}] offset:{i*4096}")
    a(f"s_cmp_lg_u32 s{S_WID}, 4")
    a("s_cbranch_scc1 L_H5DONE")
    a(f"s_sub_u32 s{S_T0}, s{S_IDX}, 1")
    a(f"s_lshl_b32 s{S_T0}, s{S_T0}, 8")
    a(f"s_add_u32 s{S_T0}, s{S_T0}, {WS_FLAG}")
    a(f"v_mov_b32 v{t}, 0")
    a(f"v_mov_b32 v{t+1}, s{S_TAGIN}")
    save_exec(1)
    a(f"buffer_store_dword v{t+1}, v{t}, {WS}, s{S_T0} offen sc1")
    rest_exec()
    a.lab("L_H5DONE")
    a("s_waitcnt lgkmcnt(0)")
    a("s_setprio 0")
    a("s_barrier")
    if "tsh" not in exp: ts(7)
    a(f"s_mov_b32 s{S_T4}, 7")
    set_run(a, KV_HALO, S_T4, [f"s_add_u32 s{S_N}, s{S_M}, 1"], -TILE)
    a(f"s_call_b64 s[{S_RET}:{S_RET+1}], L_RUNB")
    a("s_nop 7")
    a("s_nop 3")
    finalize(a, OB, S_MB, save_exec, rest_exec)
    a(f"s_mov_b32 s{S_T4}, 7")
    set_run(a, KV_HALO, S_T4, [f"s_sub_u32 s{S_N}, 8, s{S_M}"], -TILE)
    a(f"s_call_b64 s[{S_RET}:{S_RET+1}], L_RUNA")
    a("s_branch L_FINALA")
    a.lab("L_FINAL0")
    a("s_waitcnt vmcnt(0)")
    a("s_setprio 0")
    a("s_barrier")
    a("s_nop 7")
    a("s_nop 3")
    finalize(a, OB, S_MB, save_exec, rest_exec)
    a.lab("L_FINALA")
    if "tsh" not in exp: ts(8)
    a("s_nop 7")
    a("s_nop 3")
    finalize(a, OA, S_M, save_exec, rest_exec)
    a("s_branch L_P3")

    a.lab("L_HOOK")
    a(f"s_cmp_eq_u32 s{S_HST}, 1")
    a("s_cbranch_scc1 L_HK1")
    a(f"s_cmp_eq_u32 s{S_HST}, 2")
    a("s_cbranch_scc1 L_HK2")
    a(f"s_cmp_eq_u32 s{S_HST}, 3")
    a("s_cbranch_scc1 L_HK3")
    a(f"s_mov_b32 s{S_HST}, 1")
    a(f"s_mov_b32 s{S_HOOK}, {UH[1]}")
    a(f"s_cmp_eq_u32 s{S_S}, 7")
    a("s_cbranch_scc1 L_HRET")
    a("s_waitcnt vmcnt(0)")
    a(f"s_lshl_b32 s{S_T0}, s{S_IDX}, 8")
    a(f"s_lshl_b32 s{S_T1}, s{S_L}, 2")
    a(f"s_add_u32 s{S_T0}, s{S_T0}, s{S_T1}")
    a(f"s_add_u32 s{S_T0}, s{S_T0}, {WS_FLAG+128}")
    a(f"v_mov_b32 v{t}, 0")
    a(f"v_mov_b32 v{t+1}, s{S_TAGOUT}")
    save_exec(1)
    a(f"buffer_store_dword v{t+1}, v{t}, {WS}, s{S_T0} offen sc1")
    rest_exec()
    a("s_branch L_HRET")
    a.lab("L_HK3")
    a(f"s_mov_b32 s{S_HST}, 4")
    a(f"s_mov_b32 s{S_HOOK}, 1000")
    a(f"s_lshl_b32 s{S_T0}, s{S_HP}, 7")
    a(f"s_add_u32 s{S_T0}, s{S_T0}, s{S_OFS}")
    save_exec("0xffff")
    a(f"v_lshlrev_b32 v{t}, 2, v{L}")
    a(f"buffer_load_dword v{V_TG+1}, v{t}, {WS}, s{S_T0} offen offset:128 sc1")
    rest_exec()
    a("s_branch L_HRET")
    a.lab("L_HK1")
    a(f"s_mov_b32 s{S_HST}, 2")
    a(f"s_mov_b32 s{S_HOOK}, {UH[2]}")
    a(f"s_cmp_eq_u32 s{S_S}, 0")
    a("s_cbranch_scc0 L_HK1A")
    a(f"s_mov_b32 s{S_HOOK}, 1000")
    a("s_branch L_HRET")
    a.lab("L_HK1A")
    a(f"s_sub_u32 s{S_H1}, s{S_IDX}, 1")
    a(f"s_lshl_b32 s{S_H1}, s{S_H1}, 8")
    a(f"s_lshl_b32 s{S_T0}, s{S_L}, 2")
    a(f"s_add_u32 s{S_H1}, s{S_H1}, s{S_T0}")
    a(f"s_add_u32 s{S_H1}, s{S_H1}, {WS_FLAG+128}")
    a(f"v_mov_b32 v{t}, 0")
    a(f"buffer_load_dword v{V_TG}, v{t}, {WS}, s{S_H1} offen sc1")
    a("s_branch L_HRET")
    a.lab("L_HK2")
    a(f"s_mov_b32 s{S_HST}, 3")
    a(f"s_mov_b32 s{S_HOOK}, {UP}")
    a("s_waitcnt vmcnt(0)")
    a(f"v_readfirstlane_b32 s{S_T0}, v{V_TG}")
    a(f"s_cmp_eq_u32 s{S_T0}, s{S_TAGIN}")
    a("s_cbranch_scc1 L_POLL1_OK")
    a(f"v_mov_b32 v{t}, 0")
    spin_poll(a, "L_POLL1",
              [f"v_readfirstlane_b32 s{S_T0}, v{V_TG}", f"s_cmp_eq_u32 s{S_T0}, s{S_TAGIN}"],
              f"buffer_load_dword v{V_TG}, v{t}, {WS}, s{S_H1} offen sc1")
    a(f"s_sub_u32 s{S_T0}, s{S_IDX}, 1")
    a(f"s_mul_i32 s{S_T0}, s{S_T0}, 36864")
    for c, i in enumerate([8, 7, 6, 5, 4, 3, 2, 1, 0]):
        a(f"s_add_u32 s{S_T1}, s{S_T0}, {i*4096}")
        a(f"buffer_load_dwordx4 v[{VH+4*c}:{VH+4*c+3}], v{V_PA}, {WS}, s{S_T1} offen sc1")
    a.lab("L_HRET")
    a(f"s_setpc_b64 s[{S_RET2}:{S_RET2+1}]")
    run_code(a, "L_RUNA", QA_M, QA_R, OA, exp)
    run_code(a, "L_RUNB", QB_M, QB_R, OB, exp)

def pub_stores(a, stage_off, base):
    a(f"s_add_u32 s{S_T2}, s{S_T1}, {stage_off}")
    a(f"buffer_store_dwordx4 v[{base}:{base+3}], v{V_PA}, {WS}, s{S_T2} offen sc1")
    for i in range(1, 4):
        a(f"s_add_u32 s{S_T3}, s{S_T2}, {i*4096}")
        a(f"buffer_store_dwordx4 v[{base+4*i}:{base+4*i+3}], v{V_PA}, {WS}, s{S_T3} offen sc1")
    a(f"buffer_store_dwordx4 v[{base+16}:{base+19}], v{V_PA+2}, {WS}, s{S_T2} offen sc1")

def halo_loads(a, stage_off, base):
    a(f"s_sub_u32 s{S_T0}, s{S_IDX}, 1")
    a(f"s_mul_i32 s{S_T0}, s{S_T0}, 36864")
    a(f"s_add_u32 s{S_T0}, s{S_T0}, s{S_SO}")
    for i in range(4):
        a(f"s_add_u32 s{S_T1}, s{S_T0}, {i*4096}")
        a(f"buffer_load_dwordx4 v[{base+4*i}:{base+4*i+3}], v{V_PA}, {WS}, s{S_T1} offen sc1")
    a(f"buffer_load_dwordx4 v[{base+16}:{base+19}], v{V_PA+2}, {WS}, s{S_T0} offen sc1")

def phase3(a, debug_stage, ts, exp, save_exec, rest_exec):
    t = T; L = V_LANE
    OF, AC, WF0, WF1 = 20, 92, 132, 152
    AW, AW2, PF, VO, VOUT, VR = 10, 11, 13, 14, 15, 16
    PA, PB = 12, 9
    S_PL, S_PR, S_PM = 4, 68, 40
    SCR = KV_OWN
    ORD = {0: [0, 2, 4, 6, 1, 3, 5, 7, 8], 1: [9, 11, 13, 15, 10, 12, 14, 16, 17]}
    GM = {0: 0x0055, 1: 0xAA00}; RM = {0: 0x01AA, 1: 0xFFFF}
    a.lab("L_P3")
    a.c("======== phase 3 ========")
    a(f"s_lshl_b32 s{S_PL}, s{S_HP}, 7")
    a(f"s_add_u32 s{S_PL}, s{S_PL}, s{S_OFS}")
    def poll_issue():
        save_exec("0xffff")
        a(f"v_lshlrev_b32 v{t+2}, 2, v{L}")
        a(f"buffer_load_dword v{PF}, v{t+2}, {WS}, s{S_PL} offen offset:128 sc1")
        rest_exec()
    def poll_check(name, mask):
        save_exec(f"{mask:#x}")
        a(f"v_cmp_ne_u32 vcc, s{S_TAGO}, v{PF}")
        a("s_nop 1")
        a("s_cmp_eq_u64 vcc, 0")
        a(f"s_cbranch_scc1 {name}_OK")
        a(f"v_lshlrev_b32 v{t+2}, 2, v{L}")
        spin_poll(a, name,
                  [f"v_cmp_ne_u32 vcc, s{S_TAGO}, v{PF}", "s_nop 1", "s_cmp_eq_u64 vcc, 0"],
                  f"buffer_load_dword v{PF}, v{t+2}, {WS}, s{S_PL} offen offset:128 sc1")
        rest_exec()
    a(f"s_lshr_b32 s{S_T1}, s{S_HP}, 3")
    a(f"s_lshl_b32 s{S_T1}, s{S_T1}, 3")
    a(f"s_lshl_b32 s{S_T2}, s{S_M}, 1")
    a(f"s_add_u32 s{S_T1}, s{S_T1}, s{S_T2}")
    a(f"s_lshl_b32 s{S_T0}, s{S_GRP}, 18")
    a(f"s_add_u32 s{S_T0}, s{S_T0}, {WS_O}")
    a(f"s_lshl_b32 s{S_T2}, s{S_T1}, 14")
    a(f"s_add_u32 s{S_PM}, s{S_T0}, s{S_T2}")
    a(f"s_lshl_b32 s{S_T0}, s{S_GRP}, 15")
    a(f"s_add_u32 s{S_T0}, s{S_T0}, {WS_OR}")
    a(f"s_lshl_b32 s{S_T2}, s{S_T1}, 6")
    a(f"s_add_u32 s{S_PR}, s{S_T0}, s{S_T2}")
    a(f"v_lshrrev_b32 v{VR}, 4, v{L}")
    a(f"v_lshlrev_b32 v{VR}, 12, v{VR}")
    a(f"v_and_b32 v{t+4}, 15, v{L}")
    a(f"v_lshl_add_u32 v{VR}, v{t+4}, 2, v{VR}")
    a(f"v_add_u32 v{VR+1}, 64, v{VR}")
    a(f"v_lshrrev_b32 v{t+1}, 4, v{L}")
    a(f"v_bfe_u32 v{t+2}, v{L}, 2, 2")
    a(f"v_and_b32 v{t+3}, 3, v{L}")
    a(f"v_lshrrev_b32 v{t+4}, 1, v{t+1}")
    a(f"v_lshlrev_b32 v{t+4}, 2, v{t+4}")
    a(f"v_lshl_add_u32 v{t+4}, v{t+1}, 3, v{t+4}")
    a(f"v_add_u32 v{t+4}, v{t+4}, v{t+2}")
    a(f"v_mul_u32_u24 v{t+4}, 144, v{t+4}")
    a(f"v_lshl_add_u32 v{AW}, v{t+3}, 3, v{t+4}")
    a(f"s_mul_i32 s{S_T0}, s{S_HEAD}, {9*5184}")
    a(f"v_add_u32 v{AW}, s{S_T0}, v{AW}")
    a(f"v_mul_u32_u24 v{t+4}, 72, v{t+1}")
    a(f"v_add3_u32 v{t+4}, v{t+4}, v{t+2}, 16")
    a(f"v_mul_u32_u24 v{t+4}, 144, v{t+4}")
    a(f"v_lshl_add_u32 v{AW2}, v{t+3}, 3, v{t+4}")
    a(f"v_lshlrev_b32 v{VO}, 4, v{L}")
    a(f"s_lshl_b32 s{S_T1}, s{S_T1}, 4")
    a(f"s_lshl_b32 s{S_T2}, s{S_S}, 8")
    a(f"s_add_u32 s{S_T1}, s{S_T1}, s{S_T2}")
    a(f"s_lshl_b32 s{S_T2}, s{S_HEAD}, 4")
    a(f"s_add_u32 s{S_T1}, s{S_T1}, s{S_T2}")
    a(f"s_mul_i32 s{S_T1}, s{S_T1}, 2304")
    a(f"s_mul_i32 s{S_T2}, s{S_B}, 1152")
    a(f"s_add_u32 s{S_T1}, s{S_T1}, s{S_T2}")
    a(f"s_and_b32 s{S_T2}, s{S_HP}, 7")
    a(f"s_mul_i32 s{S_T2}, s{S_T2}, 144")
    a(f"s_add_u32 s{S_T5}, s{S_T1}, s{S_T2}")
    a(f"v_and_b32 v{VOUT}, 15, v{L}")
    a(f"v_mul_u32_u24 v{VOUT}, 2304, v{VOUT}")
    a(f"v_lshrrev_b32 v{t+4}, 4, v{L}")
    a(f"v_lshl_add_u32 v{VOUT}, v{t+4}, 3, v{VOUT}")
    a(f"s_mul_i32 s{S_T0}, s{S_WID}, 5120")
    a(f"s_add_u32 s{S_T0}, s{S_T0}, {SCR}")
    a(f"v_add_u32 v18, s{S_T0}, v{VO}")
    a(f"s_xor_b32 s{S_T1}, s{S_WID}, 4")
    a(f"s_mul_i32 s{S_T1}, s{S_T1}, 5120")
    a(f"s_add_u32 s{S_T1}, s{S_T1}, {SCR}")
    a(f"v_add_u32 v19, s{S_T1}, v{VO}")
    OUT = f"s[{S_OUT}:{S_OUT+3}]"
    def wreads(kap, kh, WF):
        l = []
        for Tn in range(5):
            b = WF + 4*Tn
            if kap >= 16:
                o0 = (kap-16)*8*36*144 + Tn*32
                l.append(f"ds_read_b64_tr_b16 v[{b}:{b+1}], v{AW2} offset:{o0}")
                l.append(f"ds_read_b64_tr_b16 v[{b+2}:{b+3}], v{AW2} offset:{o0+36*144}")
            else:
                o0 = (kap - 9*kh)*5184 + Tn*32
                l.append(f"ds_read_b64_tr_b16 v[{b}:{b+1}], v{AW} offset:{o0}")
                l.append(f"ds_read_b64_tr_b16 v[{b+2}:{b+3}], v{AW} offset:{o0+576}")
        return l
    def loads(kh, slots):
        nl = []
        for jx in slots:
            kap = ORD[kh][jx]
            if kap >= 16:
                a(f"s_add_u32 s{S_T0}, s{S_PR}, {(kap-16)*16*1024}")
                for mt in range(2):
                    for i in range(4):
                        a(f"buffer_load_dword v{OF+36*mt+4*jx+i}, v{VR+mt}, {WS}, s{S_T0} offen offset:{i*1024} sc1")
                nl.append(8)
            else:
                a(f"s_add_u32 s{S_T0}, s{S_PM}, {kap*1024}")
                a(f"s_add_u32 s{S_T1}, s{S_PM}, {kap*1024+16384}")
                a(f"buffer_load_dwordx4 v[{OF+4*jx}:{OF+4*jx+3}], v{VO}, {WS}, s{S_T0} offen sc1")
                a(f"buffer_load_dwordx4 v[{OF+36+4*jx}:{OF+36+4*jx+3}], v{VO}, {WS}, s{S_T1} offen sc1")
                nl.append(2)
        return nl
    def mfm(kh, slots, nl, extra, last_next, novm=False):
        for c, jx in enumerate(slots):
            cur = WF0 if jx % 2 == 0 else WF1
            nxt = WF1 if jx % 2 == 0 else WF0
            a("s_waitcnt lgkmcnt(0)" if novm else f"s_waitcnt vmcnt({sum(nl[c+1:])+extra}) lgkmcnt(0)")
            rs = wreads(ORD[kh][jx+1], kh, nxt) if jx < 8 else []
            ri = 0
            for Tn in range(5):
                for mt in range(2):
                    d = AC + (mt*5+Tn)*4; o = OF + 36*mt + 4*jx
                    cc = "0" if jx == 0 else f"v[{d}:{d+3}]"
                    a(f"v_mfma_f32_16x16x32_bf16 v[{d}:{d+3}], v[{cur+4*Tn}:{cur+4*Tn+3}], v[{o}:{o+3}], {cc}")
                    if ri < len(rs): a(rs[ri]); ri += 1
    def add_out(q, base, Tn, pk):
        for r in range(4): a(f"v_add_f32 v{q+r}, v{q+r}, v{base+4*Tn+r}")
        a(f"v_cvt_pk_bf16_f32 v{pk}, v{q}, v{q+1}")
        a(f"v_cvt_pk_bf16_f32 v{pk+1}, v{q+2}, v{q+3}")
        if Tn == 4:
            a(f"s_mov_b64 s[{S_SAVE}:{S_SAVE+1}], exec")
            a(f"s_mov_b32 exec_hi, 0")
        a(f"buffer_store_dwordx2 v[{pk}:{pk+1}], v{VOUT}, {OUT}, s{S_T5} offen offset:{Tn*32}")
        if Tn == 4: rest_exec()
    def nloads(kh, slots):
        return [8 if ORD[kh][jx] >= 16 else 2 for jx in slots]
    def validate(kh, slots, younger):
        nl = nloads(kh, slots); first = True
        for c, jx in enumerate(slots):
            a(f"s_waitcnt vmcnt({sum(nl[c+1:])+younger})")
            rr = [OF+4*jx+i for i in range(4)] + [OF+36+4*jx+i for i in range(4)]
            if first:
                a(f"v_max3_u32 v{t+3}, v{rr[0]}, v{rr[1]}, v{rr[2]}"); rr = rr[3:]; first = False
                a(f"v_max_u32 v{t+3}, v{t+3}, v{rr[0]}"); rr = rr[1:]
            for k in range(0, len(rr), 2):
                a(f"v_max3_u32 v{t+3}, v{t+3}, v{rr[k]}, v{rr[k+1]}")
        a(f"v_cmp_eq_u32 vcc, -1, v{t+3}")
        a("s_nop 1")
        a("s_cmp_eq_u64 vcc, 0")
    def probe_addr(kh, slots):
        mains = [jx for jx in slots if ORD[kh][jx] < 16]
        a(f"v_mov_b32 v{t+3}, {ORD[kh][mains[0]]*1024 + 16384 + 1020}")
        a(f"v_lshlrev_b32 v{PA}, 11, v{L}")
        a(f"v_add_u32 v{PA}, v{t+3}, v{PA}")
        return (1 << min(len(mains), 4)) - 1
    def probe_issue(mask):
        save_exec(f"{mask:#x}")
        a(f"buffer_load_dword v{PB}, v{PA}, {WS}, s{S_PM} offen sc1")
        rest_exec()
    def probe_loop(mask, name, first_issued):
        save_exec(f"{mask:#x}")
        a(f"s_mov_b32 s{S_CNT}, 0")
        if first_issued: a(f"s_branch {name}_PW")
        a.lab(name + "_P")
        a(f"buffer_load_dword v{PB}, v{PA}, {WS}, s{S_PM} offen sc1")
        a.lab(name + "_PW")
        a(f"s_add_u32 s{S_CNT}, s{S_CNT}, 1")
        a("s_waitcnt vmcnt(0)")
        a(f"v_cmp_eq_u32 vcc, -1, v{PB}")
        a("s_nop 1")
        a("s_cmp_eq_u64 vcc, 0")
        a(f"s_cbranch_scc1 {name}_PO")
        a(f"s_cmp_lt_u32 s{S_CNT}, 2000000")
        a(f"s_cbranch_scc1 {name}_P")
        a.lab(name + "_PO")
        rest_exec()
    def load_validate_loop(kh, slots, name):
        a(f"s_mov_b32 s{S_N}, 0")
        a.lab(name + "_L")
        loads(kh, slots)
        validate(kh, slots, 0)
        a(f"s_cbranch_scc1 {name}_OK")
        a(f"s_add_u32 s{S_N}, s{S_N}, 1")
        a(f"s_cmp_lt_u32 s{S_N}, 100000")
        a(f"s_cbranch_scc1 {name}_L")
        a.lab(name + "_OK")
    def path(kh):
        K = f"K{kh}"
        G, R = list(range(4)), list(range(4, 9))
        for rd in wreads(ORD[kh][0], kh, WF0): a(rd)
        ts(10)
        a(f"s_lshr_b32 s{S_T0}, 0x55AA, s{S_HP}")
        a(f"s_bitcmp1_b32 s{S_T0}, 0")
        a(f"s_cbranch_scc1 L_SG{K}_GO")
        mk = probe_addr(kh, G)
        probe_loop(mk, f"L_SG{K}", False)
        a.lab(f"L_SG{K}_GO")
        load_validate_loop(kh, G, f"L_SGV{K}")
        mk = probe_addr(kh, R)
        probe_issue(mk)
        mfm(kh, G, [0]*4, 0, None, novm=True)
        ts(9)
        probe_loop(mk, f"L_SR{K}", True)
        load_validate_loop(kh, R, f"L_SRV{K}")
        mfm(kh, R, [0]*5, 0, None, novm=True)
        ts(11)
        send = AC + 20 if kh == 0 else AC
        keep = AC if kh == 0 else AC + 20
        lds_wait(a, f"L_WOA{K}", CNTOA, 8)
        for Tn in range(5): a(f"ds_write_b128 v18, v[{send+4*Tn}:{send+4*Tn+3}] offset:{Tn*1024}")
        a("s_waitcnt lgkmcnt(0)")
        a("s_barrier")
        for Tn in range(5): a(f"ds_read_b128 v[{OF+4*Tn}:{OF+4*Tn+3}], v19 offset:{Tn*1024}")
        for Tn in range(5):
            a(f"s_waitcnt lgkmcnt({4-Tn})")
            add_out(OF+4*Tn, keep, Tn, OF+20+2*Tn)
    lds_inc(a, CNTOA, save_exec, rest_exec)
    a(f"s_cmp_eq_u32 s{S_HST}, 4")
    a("s_cbranch_scc0 L_P3C0")
    a("s_waitcnt vmcnt(2)")
    a(f"v_mov_b32 v{PF}, v{V_TG+1}")
    a("s_branch L_P3C1")
    a.lab("L_P3C0")
    poll_issue()
    a("s_waitcnt vmcnt(0)")
    a.lab("L_P3C1")
    poll_check("L_POLLC", 0xFFFF)
    if debug_stage == 2:
        a("s_waitcnt vmcnt(0)")
        a("s_branch L_FIN")
        return
    a(f"s_cmp_eq_u32 s{S_HEAD}, 0")
    a("s_cbranch_scc0 L_P3K1")
    path(0)
    a("s_branch L_FIN")
    a.lab("L_P3K1")
    path(1)
    a(f"s_cmp_lg_u32 s{S_HP}, 0")
    a("s_cbranch_scc1 L_FIN")
    a(f"s_cmp_lg_u32 s{S_WID}, 4")
    a("s_cbranch_scc1 L_FIN")
    a(f"v_mov_b32 v{t}, 0")
    a(f"v_mov_b32 v{t+1}, s{S_TAGO}")
    a(f"s_mov_b64 exec, 1")
    a(f"buffer_store_dword v{t+1}, v{t}, {WS}, s{S_OFS} offen sc1")

if __name__ == "__main__":
    import argparse
    p = argparse.ArgumentParser(); p.add_argument("--debug", type=int, default=0)
    p.add_argument("--timing", action="store_true"); p.add_argument("--exp", default=""); p.add_argument("-o", default="/dev/stdout")
    args = p.parse_args()
    open(args.o, "w").write(gen(args.debug, args.timing, args.exp))
```

```python
import sys, math, struct

NAME = "concat_heads__sliding_block__sliding_block__prompt"

STAGE   = 49152
WO_BASE = 0
KV_OWN  = 82944
KV_HALO = 119808
Q_BASE  = 119808
MISC    = 156672
TAGS_LDS = MISC + 2048
CNT2, CNT1, CNTQ, CNTOB, CNTOA = TAGS_LDS+12, TAGS_LDS+16, TAGS_LDS+20, TAGS_LDS+24, TAGS_LDS+28
LDS_TOTAL = 163840
TILE    = 4608
QTILE   = 2304
WS_KV   = 0
WS_O    = 256*36864
WS_OR   = WS_O + 16*262144
WS_FLAG = WS_OR + 16*32768
WS_OF   = WS_FLAG + 65536
TIMING_OFF = 24<<20
TAG_INC = 0x9E3779B1
NEG     = 0xFF61B1E6
QSCALE  = (18.0 ** -0.5) * math.log2(math.e)
def f32bits(x): return struct.unpack("<I", struct.pack("<f", x))[0]

class Asm:
    def __init__(self): self.l = []
    def __call__(self, s=""):
        for line in s.split("\n"):
            self.l.append("  " + line.strip())
    def lab(self, n): self.l.append(n + ":")
    def c(self, s): self.l.append("  ; " + s)
    def text(self): return "\n".join(self.l) + "\n"

S_X, S_W, S_WO, S_WS, S_OUT = 8, 12, 16, 20, 24
S_B, S_S, S_HP, S_WID = 28, 29, 30, 31
S_T0, S_T1, S_T2, S_T3, S_T4, S_T5 = 32, 33, 34, 35, 36, 37
S_I = 38
S_L = 39
S_TAGIN, S_TAGOUT, S_TAGO = 40, 41, 42
S_K, S_C, S_SB, S_XB, S_WB = 43, 44, 45, 46, 47
S_LX, S_LW = 48, 49
S_N = 50
S_U = 51
S_RET = 52
S_IDX, S_GRP, S_HEAD, S_M = 54, 55, 56, 57
S_SAVE = 58
S_CNT = 60
S_HOOK = 61
S_BAD = 62
S_RET2 = 64
S_MB = 66
S_HST = 67
S_H0, S_H1 = 68, 69
S_E = 98
S_SO, S_FI = 99, 100
S_OM, S_OR, S_OFS = 6, 7, 5

V_LANE = 1
T = 2
V_AX = 10
V_AW = 12
V_MASK = 20
V_SET0, V_SET1, V_ACC = 36, 80, 124
V_LDX, V_LDW = 36, 44
V_TG = 236
B_K, B_KR, B_V, MK_V = 240, 241, 242, 243
vEK, vEQ, vEV, vE6, vDr, vDt, vF, vC = 244, 245, 246, 247, 248, 249, 250, 252
V_TL = 254
QA_M, QA_R, QB_M, QB_R = 36, 40, 44, 48
OA, OB = 52, 68
VS, VE, VP = 84, 100, 116
VKF, VKR, VVA, VVB = 124, 128, 132, 136
A_K, A_KR, A_V, ST_V, ST_K = 10, 11, 12, 13, 14
VH = 140
V_WOV = 180
V_OA1, V_OA2 = 188, 189
V_PA = 184

def emit_masks_(a):
    t = T; L = V_LANE
    a(f"v_and_b32 v{t}, 31, v{L}")
    a(f"v_lshrrev_b32 v{t+1}, 5, v{L}")
    a(f"v_lshlrev_b32 v{t+1}, 2, v{t+1}")
    a(f"v_sub_u32 v{t}, v{t}, v{t+1}")
    a(f"v_mov_b32 v{t+1}, {NEG:#x}")
    for r in range(16):
        jj = (r & 3) + 8*(r >> 2)
        a(f"v_cmp_le_i32 vcc, {jj}, v{t}")
        a("s_nop 1")
        a(f"v_cndmask_b32_e64 v{V_MASK+r}, v{t+1}, 0, vcc")
def emit_p2_patterns_(a):
    t = T; L = V_LANE
    a(f"v_and_b32 v{t}, 31, v{L}")
    a(f"v_lshrrev_b32 v{t+1}, 5, v{L}")
    a(f"v_lshrrev_b32 v{t+2}, 2, v{t}")
    a(f"v_lshrrev_b32 v{t+3}, 3, v{t}")
    a(f"v_xor_b32 v{t+2}, v{t+2}, v{t+3}")
    a(f"v_xor_b32 v{t+2}, v{t+2}, v{t+1}")
    a(f"v_and_b32 v{t+2}, 1, v{t+2}")
    a(f"v_lshlrev_b32 v{t+2}, 4, v{t+2}")
    a(f"v_lshl_add_u32 v{t+2}, v{t}, 5, v{t+2}")
    a(f"s_lshl_b32 s{S_T0}, s{S_HEAD}, 10")
    a(f"v_add_u32 v{B_K}, s{S_T0}, v{t+2}")
    a(f"v_lshlrev_b32 v{B_KR}, 3, v{t}")
    a(f"v_add_u32 v{B_KR}, 2048, v{B_KR}")
    a(f"v_bfe_u32 v{t+2}, v{L}, 2, 2")
    a(f"v_lshl_add_u32 v{t+2}, v{t+1}, 2, v{t+2}")
    a(f"v_mul_u32_u24 v{t+2}, 72, v{t+2}")
    a(f"v_add_u32 v{t+2}, 2304, v{t+2}")
    a(f"v_and_b32 v{t+3}, 3, v{L}")
    a(f"v_lshlrev_b32 v{t+4}, 3, v{t+3}")
    a(f"s_mul_i32 s{S_T0}, s{S_HEAD}, 40")
    a(f"v_add3_u32 v{t+4}, v{t+4}, v{t+2}, s{S_T0}")
    a(f"v_add_u32 v{t+5}, 32, v{t+2}")
    a(f"v_bfe_u32 v{t+6}, v{L}, 4, 1")
    a(f"v_cmp_eq_u32 vcc, 1, v{t+6}")
    a(f"v_lshrrev_b32 v{t+7}, 1, v{t+3}")
    a(f"v_and_b32 v{t+7}, v{t+7}, v{t+6}")
    a(f"v_cndmask_b32 v{B_V}, v{t+4}, v{t+5}, vcc")
    a(f"v_cmp_eq_u32 vcc, 1, v{t+7}")
    a(f"v_mov_b32 v{t+5}, {MISC}")
    a(f"v_mov_b32 v{t+6}, -1")
    a(f"v_cndmask_b32 v{B_V}, v{B_V}, v{t+5}, vcc")
    a(f"v_cndmask_b32_e64 v{MK_V}, v{t+6}, 0, vcc")


def gen(debug_stage=0, timing=False, exp=''):
    a = Asm()
    t = T; L = V_LANE
    def ts(i, force=False):
        if timing and ('tsk' not in exp or force or i in (0, 8, 9, 10, 11)): a(f"{'s_memrealtime' if 'abs' in exp else 's_memtime'} s[{70+2*i}:{71+2*i}]")
    WS = f"s[{S_WS}:{S_WS+3}]"
    def save_exec(val):
        a(f"s_mov_b64 s[{S_SAVE}:{S_SAVE+1}], exec")
        a(f"s_mov_b64 exec, {val}")
    def rest_exec():
        a(f"s_mov_b64 exec, s[{S_SAVE}:{S_SAVE+1}]")

    a.l += [f"; Kernarg layout (72 bytes): A_x, A_wqkv, A_wo, B_x, B_wqkv, B_wo, out, debug, ws",
            f"; @launch grid=(256,1,1) block=(512,1,1) lds={LDS_TOTAL}"]
    a(f""".amdgcn_target "amdgcn-amd-amdhsa--gfx950"
.text
.globl {NAME}_kernel
.p2align 8
.type {NAME}_kernel,@function""")
    a.lab(f"{NAME}_kernel")
    a("s_cmp_ge_u32 s2, 256")
    a("s_cbranch_scc1 L_END")
    a(f"s_and_b32 s3, s2, 7")
    a(f"s_lshr_b32 s{S_B}, s3, 2")
    a(f"s_mul_i32 s{S_T0}, s{S_B}, 24")
    a(f"s_add_u32 s4, s0, s{S_T0}")
    a(f"s_addc_u32 s5, s1, 0")
    a(f"s_load_dwordx2 s[{S_X}:{S_X+1}], s[4:5], 0")
    a(f"s_load_dwordx2 s[{S_W}:{S_W+1}], s[4:5], 8")
    a(f"s_load_dwordx2 s[{S_WO}:{S_WO+1}], s[4:5], 16")
    a(f"s_load_dwordx2 s[{S_OUT}:{S_OUT+1}], s[0:1], 48")
    a(f"s_load_dwordx2 s[{S_WS}:{S_WS+1}], s[0:1], 64")
    if timing:
        for i in range(13): a(f"s_mov_b32 s{70+2*i}, 0")
    ts(0)
    a(f"s_lshr_b32 s{S_I}, s2, 3")
    a(f"s_lshr_b32 s{S_T2}, s3, 1")
    a(f"s_and_b32 s{S_T2}, s{S_T2}, 1")
    a(f"s_lshl_b32 s{S_T2}, s{S_T2}, 2")
    a(f"s_and_b32 s{S_T3}, s{S_I}, 3")
    a(f"s_add_u32 s{S_S}, s{S_T2}, s{S_T3}")
    a(f"s_and_b32 s{S_T2}, s3, 1")
    a(f"s_lshl_b32 s{S_T2}, s{S_T2}, 3")
    a(f"s_lshr_b32 s{S_T4}, s{S_I}, 2")
    a(f"s_add_u32 s{S_HP}, s{S_T2}, s{S_T4}")
    a(f"s_lshl_b32 s{S_T3}, s{S_T3}, 1")
    a(f"s_add_u32 s{S_C}, s{S_T4}, s{S_T3}")
    a(f"s_cmp_ge_u32 s{S_C}, 9")
    a(f"s_cselect_b32 s{S_T3}, 9, 0")
    a(f"s_sub_u32 s{S_C}, s{S_C}, s{S_T3}")
    if 'norot' in exp: a(f"s_mov_b32 s{S_C}, 0")
    for key, mul in (('rot2', 2), ('rot3', 3)):
        if key in exp or (key == 'rot2' and 'rot' not in exp):
            a(f"s_lshr_b32 s{S_C}, s{S_T4}, 1")
            a(f"s_and_b32 s{S_T3}, s{S_I}, 3")
            a(f"s_add_u32 s{S_C}, s{S_C}, s{S_T3}")
            a(f"s_mul_i32 s{S_C}, s{S_C}, {mul}")
            for _ in range(2):
                a(f"s_cmp_ge_u32 s{S_C}, 9")
                a(f"s_cselect_b32 s{S_T3}, 9, 0")
                a(f"s_sub_u32 s{S_C}, s{S_C}, s{S_T3}")
    if 'rot4' in exp:
        a(f"s_lshr_b32 s{S_C}, s{S_T4}, 2")
        a(f"s_and_b32 s{S_T3}, s{S_I}, 3")
        a(f"s_lshr_b32 s{S_T3}, s{S_T3}, 1")
        a(f"s_add_u32 s{S_C}, s{S_C}, s{S_T3}")
        a(f"s_mul_i32 s{S_C}, s{S_C}, 3")
    a(f"s_lshl_b32 s{S_T0}, s{S_B}, 4")
    a(f"s_add_u32 s{S_T0}, s{S_T0}, s{S_HP}")
    a(f"s_lshl_b32 s{S_T0}, s{S_T0}, 3")
    a(f"s_add_u32 s{S_IDX}, s{S_T0}, s{S_S}")
    a(f"s_lshl_b32 s{S_T0}, s{S_B}, 3")
    a(f"s_add_u32 s{S_GRP}, s{S_T0}, s{S_S}")
    a(f"v_lshrrev_b32 v{t}, 6, v0")
    a(f"v_and_b32 v{L}, 63, v0")
    a(f"v_readfirstlane_b32 s{S_WID}, v{t}")
    for (r, n) in ((S_X, 2359296), (S_W, 1990656), (S_WO, 663552), (S_WS, 268435456), (S_OUT, 4718592)):
        a(f"s_mov_b32 s{r+2}, {n}")
        a(f"s_mov_b32 s{r+3}, 0x00020000")
    a(f"s_and_b32 s{S_M}, s{S_WID}, 3")
    a(f"s_lshr_b32 s{S_HEAD}, s{S_WID}, 2")
    a(f"s_sub_u32 s{S_MB}, 7, s{S_M}")
    a(f"s_cmp_lt_u32 s{S_WID}, 4")
    a("s_cbranch_scc1 L_COMPUTE")

    emit_masks = lambda: emit_masks_(a)
    emit_p2_patterns = lambda: emit_p2_patterns_(a)

    a(f"s_sub_u32 s{S_L}, s{S_WID}, 4")
    a(f"v_lshrrev_b32 v{t}, 3, v{L}")
    a(f"v_mul_u32_u24 v{t}, 1152, v{t}")
    a(f"v_lshrrev_b32 v{t+1}, 4, v{L}")
    a(f"v_and_b32 v{t+2}, 7, v{L}")
    a(f"v_xor_b32 v{t+3}, v{t+2}, v{t+1}")
    a(f"v_lshl_add_u32 v{V_AX}, v{t+3}, 4, v{t}")
    a(f"v_xor_b32 v{t+3}, 4, v{t+3}")
    a(f"v_lshl_add_u32 v{V_AX+1}, v{t+3}, 4, v{t}")
    a(f"s_mul_i32 s{S_T0}, s{S_HP}, 72")
    a(f"s_and_b32 s{S_T0}, s{S_T0}, 0xfffffff0")
    a(f"v_and_b32 v{t+2}, 15, v{L}")
    a(f"v_mul_u32_u24 v{t+4}, 3456, v{t+1}")
    a(f"v_add_u32 v{t+4}, s{S_T0}, v{t+4}")
    for var in range(2):
        a(f"v_lshlrev_b32 v{t+3}, 1, v{t+1}")
        a(f"v_sub_u32 v{t+3}, v{t+2}, v{t+3}")
        if var: a(f"v_subrev_u32 v{t+3}, 8, v{t+3}")
        a(f"v_and_b32 v{t+3}, 15, v{t+3}")
        a(f"v_min_u32 v{t+3}, 14, v{t+3}")
        a(f"v_mul_u32_u24 v{t+5}, 13, v{t+3}")
        a(f"v_lshrrev_b32 v{t+5}, 6, v{t+5}")
        a(f"v_mul_u32_u24 v{t+6}, 5, v{t+5}")
        a(f"v_sub_u32 v{t+6}, v{t+3}, v{t+6}")
        a(f"v_mul_u32_u24 v{t+5}, 1152, v{t+5}")
        a(f"v_lshl_add_u32 v{t+6}, v{t+6}, 4, v{t+5}")
        a(f"v_add_u32 v{V_AX+2+var}, v{t+4}, v{t+6}")
    for i in range(8):
        a(f"v_add_u32 v{V_LDX+i}, {i*9216-(i&3)*1024}, v{V_AX+(i&1)}")
    for i in range(4):
        a(f"v_add_u32 v{V_LDW+i}, {i*4*3456-i*1024}, v{V_AX+2+(i>>1)}")
    a(f"s_lshl_b32 s{S_T0}, s{S_S}, 8")
    a(f"s_lshl_b32 s{S_T1}, s{S_L}, 6")
    a(f"s_add_u32 s{S_T0}, s{S_T0}, s{S_T1}")
    a(f"s_mul_i32 s{S_XB}, s{S_T0}, 1152")
    a(f"s_mul_i32 s{S_WB}, s{S_L}, {16*3456}")
    a(f"s_lshl_b32 s{S_LX}, s{S_L}, 13")
    a(f"s_lshl_b32 s{S_LW}, s{S_L}, 12")
    a(f"s_add_u32 s{S_LW}, s{S_LW}, 32768")
    a(f"s_mov_b32 s{S_SB}, 0")
    def chunk_pre():
        a(f"s_lshl_b32 s{S_T0}, s{S_C}, 7")
        a(f"s_add_u32 s{S_T0}, s{S_T0}, s{S_XB}")
        a(f"s_mul_i32 s{S_T1}, s{S_C}, {64*3456}")
        a(f"s_add_u32 s{S_T1}, s{S_T1}, s{S_WB}")
        a(f"s_add_u32 s{S_T2}, s{S_SB}, s{S_LW}")
        a(f"s_add_u32 s{S_T3}, s{S_SB}, s{S_LX}")
        a(f"s_add_u32 s{S_C}, s{S_C}, 1")
        a(f"s_cmp_eq_u32 s{S_C}, 9")
        a(f"s_cselect_b32 s{S_C}, 0, s{S_C}")
        a(f"s_add_u32 s{S_SB}, s{S_SB}, {STAGE}")
        a(f"s_cmp_eq_u32 s{S_SB}, {3*STAGE}")
        a(f"s_cselect_b32 s{S_SB}, 0, s{S_SB}")
    def chunk_w():
        a(f"s_mov_b32 m0, s{S_T2}")
        a("s_nop 0")
        for i in range(4):
            a(f"buffer_load_dwordx4 v{V_LDW+i}, s[{S_W}:{S_W+3}], s{S_T1} offen offset:{i*1024} lds")
    def chunk_x(lo, hi):
        for i in range(lo, hi):
            if i == lo or i == 4:
                a(f"s_add_u32 m0, s{S_T3}, {(i&~3)*1024}")
                a("s_nop 0")
            a(f"buffer_load_dwordx4 v{V_LDX+i}, s[{S_X}:{S_X+3}], s{S_T0} offen offset:{(i&3)*1024} lds")
    chunk_pre()
    a("s_waitcnt lgkmcnt(0)")
    chunk_w(); chunk_x(0, 8)
    chunk_pre(); chunk_w(); chunk_x(0, 2)
    a("s_waitcnt vmcnt(6)")
    a("s_barrier")
    chunk_x(2, 8)
    chunk_pre()
    a(f"s_mov_b32 s{S_K}, 2")
    a.lab("L_LD")
    chunk_w(); chunk_x(0, 8)
    chunk_pre()
    a(f"s_add_u32 s{S_K}, s{S_K}, 1")
    a(f"s_cmp_lt_u32 s{S_K}, 9")
    a("s_waitcnt vmcnt(12)")
    a("s_barrier")
    a("s_cbranch_scc1 L_LD")
    a(f"s_lshl_b32 s{S_T0}, s{S_L}, 6")
    a(f"v_add_u32 v{t}, s{S_T0}, v{L}")
    a(f"v_mul_u32_u24 v{t+1}, 7282, v{t}")
    a(f"v_lshrrev_b32 v{t+1}, 16, v{t+1}")
    a(f"v_mul_u32_u24 v{t+2}, 9, v{t+1}")
    a(f"v_sub_u32 v{t+2}, v{t}, v{t+2}")
    a(f"v_mul_u32_u24 v{t+1}, 1152, v{t+1}")
    a(f"v_lshl_add_u32 v{t+1}, v{t+2}, 7, v{t+1}")
    a(f"s_mul_i32 s{S_T0}, s{S_I}, {18*1152}")
    a(f"v_cmp_gt_u32 vcc, 162, v{t}")
    a(f"v_cndmask_b32_e64 v{t+1}, 0, v{t+1}, vcc")
    a(f"buffer_load_dword v255, v{t+1}, s[{S_WO}:{S_WO+3}], s{S_T0} offen")
    emit_masks()
    emit_p2_patterns()
    a(f"v_mul_u32_u24 v{t+1}, 7282, v{L}")
    a(f"v_lshrrev_b32 v{t+1}, 16, v{t+1}")
    a(f"v_mul_u32_u24 v{t+2}, 9, v{t+1}")
    a(f"v_sub_u32 v{t+2}, v{L}, v{t+2}")
    a(f"v_mul_u32_u24 v{t+1}, 1152, v{t+1}")
    a(f"v_lshl_add_u32 v{t+1}, v{t+2}, 4, v{t+1}")
    a(f"s_and_b32 s{S_T0}, s{S_HP}, 7")
    a(f"s_mul_i32 s{S_T0}, s{S_T0}, 144")
    a(f"v_add_u32 v{V_WOV}, s{S_T0}, v{t+1}")
    for j in range(1, 4): a(f"v_add_u32 v{V_WOV+j}, {j*(8064-1008)}, v{V_WOV}")
    a(f"s_mul_i32 s{S_T0}, s{S_L}, {21*1008}")
    a(f"s_mul_i32 s{S_T1}, s{S_L}, {21*8064}")
    a("s_waitcnt vmcnt(1)")
    a("s_barrier")
    WO = f"s[{S_WO}:{S_WO+3}]"
    NW1 = 8 if 'wo8' not in exp else 4
    a(f"s_bitset0_b64 exec, 63")
    for j in range(21):
        if j == NW1:
            a(f"s_mov_b64 exec, -1")
            a("s_barrier")
            a(f"s_bitset0_b64 exec, 63")
        if j == 19:
            a(f"s_cmp_eq_u32 s{S_L}, 3")
            a("s_cbranch_scc0 L_WO_N")
            a(f"s_mov_b64 exec, 0x3ffff")
            a(f"buffer_load_dwordx4 v{V_WOV+(j&3)}, {WO}, s{S_T2} offen offset:{(j&3)*1008} lds")
            a("s_branch L_WO_DONE")
            a.lab("L_WO_N")
        if j % 4 == 0:
            a(f"s_add_u32 m0, s{S_T0}, {j*1008}")
            a(f"s_add_u32 s{S_T2}, s{S_T1}, {j*8064}")
        a(f"buffer_load_dwordx4 v{V_WOV+(j&3)}, {WO}, s{S_T2} offen offset:{(j&3)*1008} lds")
    a.lab("L_WO_DONE")
    a(f"s_mov_b64 exec, -1")
    for r in range(16):
        a(f"v_mov_b32 v{OA+r}, 0")
        a(f"v_mov_b32 v{OB+r}, 0")
    a(f"v_lshlrev_b32 v{V_PA}, 4, v{L}")
    a(f"s_lshl_b32 s{S_T0}, s{S_L}, 10")
    a(f"v_add_u32 v{V_PA}, s{S_T0}, v{V_PA}")
    a(f"v_add_u32 v{V_PA+1}, {KV_OWN}, v{V_PA}")
    a(f"s_mul_i32 s{S_T1}, s{S_IDX}, 36864")
    a("s_barrier")
    a(f"s_cmp_eq_u32 s{S_S}, 7")
    a("s_cbranch_scc1 L_NOPUB")
    order = [8, 7, 6, 5, 4, 3, 2, 1, 0]
    for c, i in enumerate(order):
        a(f"ds_read_b128 v[{VH+4*c}:{VH+4*c+3}], v{V_PA+1} offset:{i*4096}")
    for c, i in enumerate(order[:5]):
        a(f"s_waitcnt lgkmcnt({8-c})")
        a(f"s_add_u32 s{S_T2}, s{S_T1}, {i*4096}")
        a(f"buffer_store_dwordx4 v[{VH+4*c}:{VH+4*c+3}], v{V_PA}, {WS}, s{S_T2} offen sc1")
    a.lab("L_NOPUB")
    a("s_branch L_P2")

    a.lab("L_COMPUTE")
    a(f"v_and_b32 v{t}, 15, v{L}")
    a(f"v_lshrrev_b32 v{t+1}, 4, v{L}")
    a(f"v_lshrrev_b32 v{t+2}, 1, v{t}")
    a(f"s_lshl_b32 s{S_T0}, s{S_WID}, 6")
    a(f"v_add_u32 v{t+3}, s{S_T0}, v{t}")
    a(f"v_lshlrev_b32 v{t+3}, 7, v{t+3}")
    a(f"v_xor_b32 v{t+4}, v{t+1}, v{t+2}")
    a(f"v_lshlrev_b32 v{t+5}, 4, v{t+4}")
    a(f"v_add_u32 v{V_AX}, v{t+3}, v{t+5}")
    a(f"v_xor_b32 v{t+4}, 4, v{t+4}")
    a(f"v_lshlrev_b32 v{t+5}, 4, v{t+4}")
    a(f"v_add_u32 v{V_AX+1}, v{t+3}, v{t+5}")
    a(f"v_bfe_u32 v{t}, v{L}, 2, 2")
    a(f"v_and_b32 v{t+2}, 3, v{L}")
    a(f"v_and_b32 v{t+3}, 1, v{t+1}")
    a(f"v_lshl_add_u32 v{t+3}, v{t+3}, 2, v{t}")
    a(f"v_lshlrev_b32 v{t+3}, 5, v{t+3}")
    a(f"v_lshl_add_u32 v{t+4}, v{t+1}, 3, v{t}")
    a(f"v_lshlrev_b32 v{t+4}, 8, v{t+4}")
    a(f"v_add_u32 v{t+4}, 32768, v{t+4}")
    a(f"v_lshlrev_b32 v{t+5}, 3, v{t+2}")
    a(f"s_and_b32 s{S_T1}, s{S_HP}, 1")
    a(f"s_lshl_b32 s{S_T1}, s{S_T1}, 3")
    a(f"v_add3_u32 v{t+5}, v{t+5}, v{t+3}, s{S_T1}")
    for Tn in range(6):
        off = 80*(Tn >> 1) + (40 if Tn & 1 else 0)
        a(f"v_add_u32 v{t+6}, {off}, v{t+5}")
        a(f"v_and_b32 v{t+6}, 255, v{t+6}")
        a(f"v_add_u32 v{V_AW+Tn}, v{t+4}, v{t+6}")
    a(f"v_min_u32 v{t+6}, 2, v{t+2}")
    a(f"v_mul_u32_u24 v{t+6}, 80, v{t+6}")
    a(f"v_add3_u32 v{t+6}, v{t+6}, v{t+3}, s{S_T1}")
    a(f"v_add_u32 v{t+6}, 32, v{t+6}")
    a(f"v_and_b32 v{t+6}, 255, v{t+6}")
    a(f"v_add_u32 v{V_AW+6}, v{t+4}, v{t+6}")
    a(f"v_and_b32 v{t}, 15, v{L}")
    a(f"v_lshrrev_b32 v{t+1}, 4, v{L}")
    a(f"v_and_b32 v{t+2}, 1, v{t+1}")
    a(f"v_lshl_add_u32 v{t+2}, v{t+2}, 4, v{t}")
    a(f"v_lshrrev_b32 v{t+3}, 2, v{t}")
    a(f"v_lshrrev_b32 v{t+4}, 3, v{t}")
    a(f"v_xor_b32 v{t+3}, v{t+3}, v{t+4}")
    a(f"v_lshrrev_b32 v{t+4}, 1, v{t+1}")
    a(f"v_xor_b32 v{t+3}, v{t+3}, v{t+4}")
    a(f"v_and_b32 v{t+3}, 1, v{t+3}")
    a(f"v_lshlrev_b32 v{t+3}, 4, v{t+3}")
    a(f"v_lshl_add_u32 v{t+3}, v{t+2}, 5, v{t+3}")
    a(f"s_mul_i32 s{S_T0}, s{S_WID}, {2*TILE}")
    a(f"s_add_u32 s{S_T0}, s{S_T0}, {KV_OWN}")
    a(f"s_mul_i32 s{S_T1}, s{S_WID}, {2*QTILE}")
    a(f"s_add_u32 s{S_T1}, s{S_T1}, {Q_BASE}")
    a(f"v_add_u32 v{vEK}, s{S_T0}, v{t+3}")
    a(f"v_add_u32 v{vEQ}, s{S_T1}, v{t+3}")
    a(f"v_mul_u32_u24 v{t+4}, 72, v{t}")
    a(f"v_lshl_add_u32 v{t+5}, v{t+1}, 3, v{t+4}")
    a(f"v_add_u32 v{t+5}, 2304, v{t+5}")
    a(f"v_add_u32 v{vEV}, s{S_T0}, v{t+5}")
    a(f"v_lshlrev_b32 v{t+5}, 3, v{t}")
    a(f"v_add_u32 v{t+5}, 2048, v{t+5}")
    a(f"v_add_u32 v{t+6}, s{S_T1}, v{t+5}")
    a(f"v_add_u32 v{t+7}, s{S_T0}, v{t+5}")
    a(f"v_add_u32 v{t+4}, {2304+32}, v{t+4}")
    a(f"v_add_u32 v{t+4}, s{S_T0}, v{t+4}")
    a(f"v_mov_b32 v{vDr}, 128")
    a(f"v_mov_b32 v{vDt}, {TILE}")
    a(f"v_mov_b32 v{vF}, 1.0")
    a(f"v_mov_b32 v{vE6}, v{t+7}")
    a(f"v_cmp_eq_u32 vcc, 0, v{t+1}")
    a(f"v_mov_b32 v{t+5}, {QTILE}")
    a(f"v_mov_b32 v{vC}, {f32bits(QSCALE):#x}")
    a(f"v_cndmask_b32 v{vE6}, v{vE6}, v{t+6}, vcc")
    a(f"v_cndmask_b32 v{vDt}, v{vDt}, v{t+5}, vcc")
    a(f"v_cndmask_b32 v{vF}, v{vF}, v{vC}, vcc")
    a(f"v_cmp_eq_u32 vcc, 2, v{t+1}")
    a(f"v_mov_b32 v{t+5}, 1152")
    a(f"v_mov_b32 v{vC+1}, v{vC}")
    a(f"v_cndmask_b32 v{vE6}, v{vE6}, v{t+4}, vcc")
    a(f"v_cndmask_b32 v{vDr}, v{vDr}, v{t+5}, vcc")
    a(f"v_mov_b32 v{vF+1}, v{vF}")
    a("s_waitcnt lgkmcnt(0)")
    if 'nocp' not in exp:
        a(f"s_cmp_lg_u32 s{S_WID}, 3")
        a("s_cbranch_scc1 L_NOCP")
        a(f"s_getpc_b64 s[{S_RET}:{S_RET+1}]")
        a.lab("L_PCREF")
        a(f"s_sub_u32 s{S_RET}, s{S_RET}, L_PCREF-{NAME}_kernel")
        a(f"s_subb_u32 s{S_RET+1}, s{S_RET+1}, 0")
        a(f"s_mul_i32 s{S_T0}, s{S_I}, {5*128}")
        a(f"v_lshlrev_b32 v{t}, 7, v{L}")
        a(f"v_add_u32 v{t}, s{S_T0}, v{t}")
        a(f"s_mov_b32 s{S_T1}, L_END-{NAME}_kernel")
        a(f"v_cmp_gt_u32 vcc, s{S_T1}, v{t}")
        a(f"s_and_b64 vcc, vcc, 31")
        a(f"s_and_saveexec_b64 s[{S_SAVE}:{S_SAVE+1}], vcc")
        a("s_cbranch_execz L_NOCP2")
        a(f"global_load_dword v{V_TL}, v{t}, s[{S_RET}:{S_RET+1}]")
        a.lab("L_NOCP2")
        rest_exec()
        a.lab("L_NOCP")
    a(f"s_cmp_lg_u32 s{S_WID}, 0")
    a("s_cbranch_scc1 L_NOG0")
    a(f"s_lshl_b32 s{S_T0}, s{S_IDX}, 8")
    a(f"s_add_u32 s{S_T0}, s{S_T0}, {WS_FLAG}")
    a(f"s_lshl_b32 s{S_T1}, s{S_GRP}, 12")
    a(f"s_add_u32 s{S_T1}, s{S_T1}, {WS_OF}")
    a(f"v_mov_b32 v{t}, 0")
    a(f"buffer_load_dword v{V_TG}, v{t}, {WS}, s{S_T0} offen sc1")
    a(f"s_sub_u32 s{S_T0}, s{S_T0}, 256")
    a(f"s_max_u32 s{S_T0}, s{S_T0}, {WS_FLAG}")
    a(f"buffer_load_dword v{V_TG+1}, v{t}, {WS}, s{S_T0} offen sc1")
    a(f"buffer_load_dword v{V_TG+2}, v{t}, {WS}, s{S_T1} offen sc1")
    a.lab("L_NOG0")
    for i in range(112):
        a(f"v_mov_b32 v{V_ACC+i}, 0")
    emit_masks()
    emit_p2_patterns()
    a(f"v_mov_b32 v{t+2}, 0x3f803f80")
    a(f"v_mov_b32 v{t+3}, 0x3f803f80")
    a(f"v_mul_u32_u24 v{t+4}, 576, v{L}")
    a(f"v_add_u32 v{t+4}, {MISC}, v{t+4}")
    save_exec(15)
    a(f"ds_write_b64 v{t+4}, v[{t+2}:{t+3}]")
    rest_exec()
    a(f"s_cmp_lg_u32 s{S_WID}, 0")
    a("s_cbranch_scc1 L_NOG1")
    a("s_waitcnt vmcnt(0)")
    for i in range(3): a(f"v_add_u32 v{V_TG+i}, {TAG_INC:#x}, v{V_TG+i}")
    a(f"v_mov_b32 v{V_TG+3}, 0")
    a(f"v_mov_b32 v{t+4}, {TAGS_LDS}")
    save_exec(1)
    a(f"ds_write_b128 v{t+4}, v[{V_TG}:{V_TG+3}]")
    for i in range(4): a(f"v_mov_b32 v{V_TG+i}, 0")
    a(f"ds_write_b128 v{t+4}, v[{V_TG}:{V_TG+3}] offset:16")
    rest_exec()
    a.lab("L_NOG1")
    a("s_waitcnt lgkmcnt(0)")
    a("s_barrier")
    if "tsh" not in exp and "tsj" not in exp: ts(1)
    def reads(setb, ks):
        xs = [f"ds_read_b128 v[{setb+4*mt}:{setb+4*mt+3}], v{V_AX+ks} offset:{mt*2048}" for mt in range(4)]
        ws = []
        for Tn in range(7):
            b = setb + 16 + 4*Tn
            ws.append(f"ds_read_b64_tr_b16 v[{b}:{b+1}], v{V_AW+Tn} offset:{ks*8192}")
            ws.append(f"ds_read_b64_tr_b16 v[{b+2}:{b+3}], v{V_AW+Tn} offset:{ks*8192+1024}")
        return [xs[0], ws[0], ws[1], xs[1], ws[2], ws[3], xs[2], ws[4], ws[5], xs[3]] + ws[6:]
    def mfmas(setb):
        m = []
        for Tn in range(7):
            for mt in range(4):
                d = V_ACC + (mt*7+Tn)*4
                m.append(f"v_mfma_f32_16x16x32_bf16 v[{d}:{d+3}], v[{setb+16+4*Tn}:{setb+16+4*Tn+3}], v[{setb+4*mt}:{setb+4*mt+3}], v[{d}:{d+3}]")
        return m
    def interleave(ms, extra, per=1):
        ri = 0
        for i, m in enumerate(ms):
            a(m)
            for _ in range(per):
                if ri < len(extra): a(extra[ri]); ri += 1
        while ri < len(extra):
            a(extra[ri]); ri += 1
    for i in range(4): a(f"v_mov_b32 v{V_TG+i}, -1")
    a(f"v_lshlrev_b32 v{V_TL+1}, 4, v{L}")
    a(f"s_lshl_b32 s{S_XB}, s{S_GRP}, 18")
    a(f"s_add_u32 s{S_XB}, s{S_XB}, {WS_O}")
    a(f"s_lshl_b32 s{S_T0}, s{S_WID}, 16")
    a(f"s_add_u32 s{S_XB}, s{S_XB}, s{S_T0}")
    a(f"s_lshl_b32 s{S_T0}, s{S_HP}, 10")
    a(f"s_add_u32 s{S_XB}, s{S_XB}, s{S_T0}")
    a(f"s_lshl_b32 s{S_WB}, s{S_GRP}, 15")
    a(f"s_add_u32 s{S_WB}, s{S_WB}, {WS_OR}")
    a(f"s_lshl_b32 s{S_T0}, s{S_HP}, 1")
    a(f"s_and_b32 s{S_T1}, s{S_WID}, 1")
    a(f"s_add_u32 s{S_T0}, s{S_T0}, s{S_T1}")
    a(f"s_lshl_b32 s{S_T0}, s{S_T0}, 10")
    a(f"s_add_u32 s{S_WB}, s{S_WB}, s{S_T0}")
    for rd in reads(V_SET0, 0): a(rd)
    a(f"s_mov_b32 s{S_K}, 0")
    a(f"s_mov_b32 s{S_SB}, 0")
    if 'tb' in exp: a(f"v_mov_b32 v{V_TL}, 0")
    a.lab("L_GEMM")
    a(f"s_cmp_ge_u32 s{S_K}, 5")
    a("s_cbranch_scc1 L_GEMM_NS")
    a(f"s_cmp_eq_u32 s{S_K}, 4")
    a(f"s_cselect_b32 s{S_XB}, s{S_WB}, s{S_XB}")
    a(f"buffer_store_dwordx4 v[{V_TG}:{V_TG+3}], v{V_TL+1}, {WS}, s{S_XB} offen sc1")
    a(f"s_add_u32 s{S_XB}, s{S_XB}, 16384")
    a.lab("L_GEMM_NS")
    a("s_waitcnt lgkmcnt(0)")
    if 'tb' in exp:
        a(f"s_sub_u32 s92, s92, s70")
        a(f"s_mov_b32 m0, s{S_K}")
        a("s_nop 4")
        a(f"v_writelane_b32 v{V_TL}, s92, m0")
    sal = [f"s_add_u32 s{S_SB}, s{S_SB}, 1", f"s_cmp_eq_u32 s{S_SB}, 3", f"s_mov_b32 s{S_T0}, {STAGE}",
           f"s_cselect_b32 s{S_T0}, {(-2*STAGE) & 0xffffffff}, s{S_T0}", f"s_cselect_b32 s{S_SB}, 0, s{S_SB}"]
    interleave(mfmas(V_SET0), reads(V_SET1, 1) + sal)
    a("s_waitcnt lgkmcnt(0)")
    a("s_barrier")
    if 'tb' in exp: a("s_memtime s[92:93]")
    rd = reads(V_SET0, 0)
    adds = [f"v_add_u32 v{V_AX+i}, s{S_T0}, v{V_AX+i}" for i in range(9)]
    ex = [adds[0], adds[2], rd[0], rd[1], rd[2], adds[3], rd[3], rd[4], rd[5], adds[4], rd[6], rd[7], rd[8], rd[9],
          adds[5], rd[10], rd[11], adds[6], rd[12], rd[13], adds[7], rd[14], rd[15], adds[8], rd[16], rd[17], adds[1],
          f"s_add_u32 s{S_K}, s{S_K}, 1", f"s_cmp_lt_u32 s{S_K}, 9"]
    ms = mfmas(V_SET1)
    ri = 0
    for i, m in enumerate(ms):
        a(m)
        n = 2 if i < 6 else 1
        for _ in range(n):
            if ri < len(ex): a(ex[ri]); ri += 1
    assert ri == len(ex)
    a("s_cbranch_scc1 L_GEMM")
    if "tsh" not in exp and "tsj" not in exp: ts(2)
    a.c("phase-1 epilogue")
    a("s_waitcnt lgkmcnt(0)")
    acc = lambda mt, Tn: V_ACC + (mt*7+Tn)*4
    e = [V_SET0]
    def qk_tile(Tn, base_reg, pstride, hoff):
        for p in range(2):
            R = e[0]; e[0] += 4
            da, db = acc(2*p, Tn), acc(2*p+1, Tn)
            a(f"v_cvt_pk_bf16_f32 v{R}, v{da}, v{da+1}")
            a(f"v_cvt_pk_bf16_f32 v{R+2}, v{db}, v{db+1}")
            a(f"v_cvt_pk_bf16_f32 v{R+1}, v{da+2}, v{da+3}")
            a(f"v_cvt_pk_bf16_f32 v{R+3}, v{db+2}, v{db+3}")
            a("s_nop 0")
            a(f"v_permlane16_swap_b32 v{R}, v{R+2}")
            a(f"v_permlane16_swap_b32 v{R+1}, v{R+3}")
            a(f"ds_write_b128 v{base_reg}, v[{R}:{R+3}] offset:{p*pstride+hoff}")
    a("s_nop 3")
    qk_tile(2, vEK, TILE, 0)
    qk_tile(3, vEK, TILE, 1024)
    for Tn in (4, 5):
        for mt in range(4):
            R = e[0]; e[0] += 2
            d = acc(mt, Tn)
            a(f"v_cvt_pk_bf16_f32 v{R}, v{d}, v{d+1}")
            a(f"v_cvt_pk_bf16_f32 v{R+1}, v{d+2}, v{d+3}")
            a(f"ds_write_b64 v{vEV}, v[{R}:{R+1}] offset:{(mt>>1)*TILE + (mt&1)*1152 + (40 if Tn==5 else 0)}")
    R6 = e[0]; e[0] += 8
    for mt in range(4):
        d = acc(mt, 6)
        a(f"v_pk_mul_f32 v[{d}:{d+1}], v[{d}:{d+1}], v[{vF}:{vF+1}]")
        a(f"v_pk_mul_f32 v[{d+2}:{d+3}], v[{d+2}:{d+3}], v[{vF}:{vF+1}]")
    for mt in range(4):
        d = acc(mt, 6)
        a(f"v_cvt_pk_bf16_f32 v{R6+2*mt}, v{d}, v{d+1}")
        a(f"v_cvt_pk_bf16_f32 v{R6+2*mt+1}, v{d+2}, v{d+3}")
    a(f"v_add_u32 v{t}, v{vE6}, v{vDr}")
    a(f"v_add_u32 v{t+1}, v{vE6}, v{vDt}")
    a(f"v_add_u32 v{t+2}, v{t+1}, v{vDr}")
    a(f"s_mov_b64 s[{S_SAVE}:{S_SAVE+1}], exec")
    a(f"s_mov_b32 exec_hi, 0x0000ffff")
    a(f"ds_write_b64 v{vE6}, v[{R6}:{R6+1}]")
    a(f"ds_write_b64 v{t}, v[{R6+2}:{R6+3}]")
    a(f"ds_write_b64 v{t+1}, v[{R6+4}:{R6+5}]")
    a(f"ds_write_b64 v{t+2}, v[{R6+6}:{R6+7}]")
    rest_exec()
    a("s_waitcnt lgkmcnt(0)")
    a("s_barrier")
    a(f"v_mov_b32 v{t}, {TAGS_LDS+8}")
    a(f"ds_read_b32 v{t+3}, v{t}")
    a(f"s_lshl_b32 s{S_OFS}, s{S_GRP}, 12")
    a(f"s_add_u32 s{S_OFS}, s{S_OFS}, {WS_OF}")
    a("s_waitcnt vmcnt(0) lgkmcnt(0)")
    a(f"v_readfirstlane_b32 s{S_TAGO}, v{t+3}")
    oflag(a, "L_CLR", CNTOB, 128, save_exec, rest_exec, last=3)
    for mt in range(4):
        for Tn in (0, 1):
            d = acc(mt, Tn)
            a(f"v_pk_mul_f32 v[{d}:{d+1}], v[{d}:{d+1}], v[{vC}:{vC+1}]")
            a(f"v_pk_mul_f32 v[{d+2}:{d+3}], v[{d+2}:{d+3}], v[{vC}:{vC+1}]")
    e[0] = 84
    qk_tile(0, vEQ, QTILE, 0)
    qk_tile(1, vEQ, QTILE, 1024)
    for r in range(16):
        a(f"v_mov_b32 v{OA+r}, 0")
        a(f"v_mov_b32 v{OB+r}, 0")

    a.lab("L_P2")
    a(f"v_mov_b32 v{t}, {TAGS_LDS}")
    a(f"ds_read_b128 v[{V_TG}:{V_TG+3}], v{t}")
    a("s_waitcnt lgkmcnt(0)")
    a("s_barrier")
    ts(3)
    if debug_stage == 1:
        a(f"s_lshl_b32 s{S_T0}, s{S_IDX}, 16")
        a(f"v_lshlrev_b32 v{t}, 4, v0")
        for i in range(7):
            a(f"v_add_u32 v{t+1}, {KV_OWN + i*8192}, v{t}")
            a(f"ds_read_b128 v[40:43], v{t+1}")
            a("s_waitcnt lgkmcnt(0)")
            a(f"v_add_u32 v{t+2}, {i*8192}, v{t}")
            a(f"buffer_store_dwordx4 v[40:43], v{t+2}, {WS}, s{S_T0} offen")
            a("s_waitcnt vmcnt(0)")
        a("s_branch L_FIN")
    if debug_stage == 9:
        a("s_branch L_FIN")
    if debug_stage not in (1, 9):
        phase2(a, debug_stage, ts, exp, save_exec, rest_exec)
        phase3(a, debug_stage, ts, exp, save_exec, rest_exec)
    a.lab("L_FIN")
    if timing:
        a("s_waitcnt vmcnt(0) lgkmcnt(0)")
        a(f"{'s_memrealtime' if 'abs' in exp else 's_memtime'} s[94:95]")
        a("s_waitcnt lgkmcnt(0)")
        a(f"s_lshl_b32 s{S_T0}, s2, 3")
        a(f"s_add_u32 s{S_T0}, s{S_T0}, s{S_WID}")
        a(f"s_lshl_b32 s{S_T0}, s{S_T0}, 6")
        a(f"s_add_u32 s{S_T0}, s{S_T0}, {TIMING_OFF}")
        for i in range(13):
            a(f"s_sub_u32 s{S_T1}, s{70+2*i}, s70" if (i and 'abs' not in exp) else f"s_mov_b32 s{S_T1}, s{70+2*i}")
            a(f"s_cmp_eq_u32 s{70+2*i}, 0")
            a(f"s_cselect_b32 s{S_T1}, 0, s{S_T1}")
            a(f"v_mov_b32 v{40+i}, s{S_T1}")
        if 'tb' in exp:
            a(f"v_lshlrev_b32 v2, 2, v{V_LANE}")
            a(f"s_add_u32 s{S_T1}, s{S_T0}, {1<<20}")
            a(f"s_mov_b64 exec, 0xffff")
            a(f"buffer_store_dword v{V_TL}, v2, {WS}, s{S_T1} offen")
        a(f"v_mov_b32 v2, 0")
        a(f"s_mov_b64 exec, 1")
        for i in range(3):
            a(f"buffer_store_dwordx4 v[{40+4*i}:{43+4*i}], v2, {WS}, s{S_T0} offen offset:{16*i}")
        a(f"buffer_store_dword v52, v2, {WS}, s{S_T0} offen offset:48")
        a("s_waitcnt vmcnt(0)")
    a.lab("L_END")
    a("s_endpgm")
    a(f""".section .rodata,"a"
.p2align 6
.amdhsa_kernel {NAME}_kernel
  .amdhsa_next_free_vgpr 256
  .amdhsa_next_free_sgpr 102
  .amdhsa_accum_offset 256
  .amdhsa_group_segment_fixed_size 0
  .amdhsa_kernarg_size 72
  .amdhsa_user_sgpr_count 2
  .amdhsa_user_sgpr_kernarg_segment_ptr 1
  .amdhsa_system_sgpr_workgroup_id_x 1
.end_amdhsa_kernel""")
    return a.text()

WS = f"s[{S_WS}:{S_WS+3}]"

def spin_poll(a, name, check_lines, load_line, limit=2000000, first_done=False):
    a(f"s_mov_b32 s{S_CNT}, 0")
    if first_done: a(f"s_branch {name}_W")
    a.lab(name)
    a(load_line)
    a.lab(name + "_W")
    a(f"s_add_u32 s{S_CNT}, s{S_CNT}, 1")
    a("s_waitcnt vmcnt(0)")
    for l in check_lines: a(l)
    a(f"s_cbranch_scc1 {name}_OK")
    a(f"s_cmp_lt_u32 s{S_CNT}, {limit}")
    a(f"s_cbranch_scc1 {name}")
    a.lab(name + "_OK")

def lds_inc(a, addr, save_exec, rest_exec, rtn=None):
    t = T
    a(f"v_mov_b32 v{t}, {addr}")
    a(f"v_mov_b32 v{t+1}, 1")
    save_exec(1)
    if rtn is None: a(f"ds_add_u32 v{t}, v{t+1}")
    else: a(f"ds_add_rtn_u32 v{rtn}, v{t}, v{t+1}")
    rest_exec()

def lds_wait(a, name, addr, val):
    t = T
    a(f"v_mov_b32 v{t}, {addr}")
    a(f"s_mov_b32 s{S_CNT}, 0")
    a.lab(name)
    a(f"ds_read_b32 v{t+1}, v{t}")
    a(f"s_add_u32 s{S_CNT}, s{S_CNT}, 1")
    a("s_waitcnt lgkmcnt(0)")
    a(f"v_readfirstlane_b32 s{S_T0}, v{t+1}")
    a(f"s_cmp_ge_u32 s{S_T0}, {val}")
    a(f"s_cbranch_scc1 {name}_OK")
    a(f"s_cmp_lt_u32 s{S_CNT}, 20000000")
    a(f"s_cbranch_scc1 {name}")
    a.lab(name + "_OK")

def hook_point(a, tag):
    a(f"s_add_u32 s{S_U}, s{S_U}, 1")
    a(f"s_cmp_lg_u32 s{S_U}, s{S_HOOK}")
    a(f"s_cbranch_scc1 {tag}")
    a(f"s_call_b64 s[{S_RET2}:{S_RET2+1}], L_HOOK")
    a.lab(tag)

def run_code(a, name, QM, QR, O, exp):
    cnt = [0]
    def qk1(creg):
        c = "0" if creg is None else f"v[{creg}:{creg+15}]"
        a(f"v_mfma_f32_32x32x16_bf16 v[{VS}:{VS+15}], v[{VKF}:{VKF+3}], v[{QM}:{QM+3}], {c}")
    def qk2():
        a(f"v_mfma_f32_32x32x16_bf16 v[{VS}:{VS+15}], v[{VKR}:{VKR+3}], v[{QR}:{QR+3}], v[{VS}:{VS+15}]")
    def pv(V, P):
        a(f"v_mfma_f32_32x32x16_bf16 v[{O}:{O+15}], v[{V}:{V+3}], v[{P}:{P+3}], v[{O}:{O+15}]")
    def kread():
        a(f"ds_read_b128 v[{VKF}:{VKF+3}], v{A_K}")
        a(f"ds_read_b64 v[{VKR}:{VKR+1}], v{A_KR}")
    def kstep():
        a(f"v_add_u32 v{A_K}, v{ST_K}, v{A_K}")
        a(f"v_add_u32 v{A_KR}, v{ST_K}, v{A_KR}")
    def vread(V, off):
        a(f"ds_read_b64_tr_b16 v[{V}:{V+1}], v{A_V} offset:{off}")
        a(f"ds_read_b64_tr_b16 v[{V+2}:{V+3}], v{A_V} offset:{off+576}")
    def cvt(j): a(f"v_cvt_pk_bf16_f32 v{VP+j}, v{VE+2*j}, v{VE+2*j+1}")
    def ex(r): a(f"v_exp_f32 v{VE+r}, v{VS+r}")
    def unit(D):
        for r in range(8): ex(r)
        for j in range(4): cvt(j)
        ex(8); ex(9)
        a("s_waitcnt lgkmcnt(0)")
        pv(VVA, VP)
        for r in range(10, 16): ex(r)
        if D:
            qk1(V_MASK if D == "mask" else None)
            for j in range(4, 8): cvt(j)
            vread(VVA, 0)
            qk2()
            kstep()
            kread()
            pv(VVB, VP+4)
            vread(VVB, 1152)
            a(f"v_add_u32 v{A_V}, v{ST_V}, v{A_V}")
        else:
            a("s_nop 0")
            for j in range(4, 8): cvt(j)
            a("s_nop 1")
            pv(VVB, VP+4)
    a.lab(name)
    kread()
    a(f"s_cmp_eq_u32 s{S_N}, 1")
    a(f"s_cbranch_scc1 {name}_M1")
    kstep()
    a("s_waitcnt lgkmcnt(0)")
    qk1(None); qk2()
    vread(VVA, 0); kread(); vread(VVB, 1152)
    a(f"v_add_u32 v{A_V}, v{ST_V}, v{A_V}")
    a(f"s_sub_u32 s{S_N}, s{S_N}, 2")
    a.lab(name + "_BT")
    a(f"s_cmp_eq_u32 s{S_N}, 0")
    a(f"s_cbranch_scc1 {name}_MK0")
    a(f"s_sub_u32 s{S_E}, s{S_HOOK}, s{S_U}")
    a(f"s_min_u32 s{S_E}, s{S_E}, s{S_N}")
    a(f"s_sub_u32 s{S_N}, s{S_N}, s{S_E}")
    a(f"s_add_u32 s{S_U}, s{S_U}, s{S_E}")
    a(f"s_sub_u32 s{S_E}, s{S_E}, 1")
    a.lab(name + "_LP")
    unit("plain")
    a(f"s_sub_u32 s{S_E}, s{S_E}, 1")
    a("s_nop 1")
    a(f"s_cbranch_scc0 {name}_LP")
    a(f"s_cmp_lg_u32 s{S_U}, s{S_HOOK}")
    a(f"s_cbranch_scc1 {name}_BT")
    a(f"s_call_b64 s[{S_RET2}:{S_RET2+1}], L_HOOK")
    a(f"s_branch {name}_BT")
    a.lab(name + "_MK0")
    a("s_nop 3")
    a.lab(name + "_MK")
    unit("mask")
    hook_point(a, f"{name}_H1")
    a("s_nop 1")
    a.lab(name + "_FN")
    unit(None)
    hook_point(a, f"{name}_H2")
    a(f"s_setpc_b64 s[{S_RET}:{S_RET+1}]")
    a.lab(name + "_M1")
    a("s_waitcnt lgkmcnt(0)")
    qk1(V_MASK); qk2()
    vread(VVA, 0); vread(VVB, 1152)
    a("s_nop 7")
    a(f"s_branch {name}_FN")

def set_run(a, region, tile_sreg, n_lines, step):
    a(f"s_mul_i32 s{S_T0}, s{tile_sreg}, {TILE}" if tile_sreg is not None else f"s_mov_b32 s{S_T0}, 0")
    a(f"s_add_u32 s{S_T0}, s{S_T0}, {region}")
    a(f"v_add_u32 v{A_K}, s{S_T0}, v{B_K}")
    a(f"v_add_u32 v{A_KR}, s{S_T0}, v{B_KR}")
    a(f"v_and_b32 v{A_V}, s{S_T0}, v{MK_V}")
    a(f"v_add_u32 v{A_V}, v{B_V}, v{A_V}")
    a(f"v_mov_b32 v{ST_K}, {step & 0xffffffff:#x}")
    a(f"v_and_b32 v{ST_V}, v{ST_K}, v{MK_V}")
    for l in n_lines: a(l)

F_MD, F_MF, F_M = 190, 206, 222
S_FQ, S_FT, S_FK, S_FP, S_FI2 = 32+12, 45, 46, 47, 48

def safety_check(a, O, isB, qb_sreg, tag):
    t = T
    a(f"v_max3_f32 v{t}, |v{O}|, |v{O+1}|, |v{O+2}|")
    for k in range(3, 11, 2): a(f"v_max3_f32 v{t}, v{t}, |v{O+k}|, |v{O+k+1}|")
    a(f"v_max_f32 v{t}, v{t}, |v{O+11}|".replace("v_max_f32", "v_max_f32_e64"))
    a(f"v_mov_b32 v{t+1}, 0x21800000")
    a(f"v_mov_b32 v{t+2}, 0x5d800000")
    a(f"v_mov_b32 v{t+3}, 0x7f000000")
    a(f"v_cmp_nge_f32 vcc, v{O+12}, v{t+1}")
    a(f"v_cmp_nle_f32 s[{S_BAD}:{S_BAD+1}], v{O+12}, v{t+2}")
    a(f"s_or_b64 vcc, vcc, s[{S_BAD}:{S_BAD+1}]")
    a(f"v_cmp_nlt_f32 s[{S_BAD}:{S_BAD+1}], v{t}, v{t+3}")
    a(f"s_or_b64 vcc, vcc, s[{S_BAD}:{S_BAD+1}]")
    a("s_cmp_eq_u64 vcc, 0")
    a(f"s_cbranch_scc1 L_SAFE{tag}")
    a(f"s_mov_b32 s{S_FQ}, s{qb_sreg}")
    if isB:
        for r in range(8): a(f"v_swap_b32 v{QA_M+r}, v{QB_M+r}")
        for r in range(16): a(f"v_swap_b32 v{OA+r}, v{OB+r}")
    a(f"s_call_b64 s[{S_RET}:{S_RET+1}], L_FB")
    if isB:
        for r in range(8): a(f"v_swap_b32 v{QA_M+r}, v{QB_M+r}")
        for r in range(16): a(f"v_swap_b32 v{OA+r}, v{OB+r}")
    a.lab(f"L_SAFE{tag}")

def fallback_code(a):
    t = T; L = V_LANE
    a.lab("L_FB")
    a(f"v_and_b32 v{t}, 31, v{L}")
    a(f"v_lshrrev_b32 v{t+1}, 5, v{L}")
    a(f"v_lshlrev_b32 v{t+1}, 2, v{t+1}")
    a(f"v_sub_u32 v{t}, v{t}, v{t+1}")
    a(f"v_mov_b32 v{t+1}, {NEG:#x}")
    for r in range(16):
        jj = (r & 3) + 8*(r >> 2)
        a(f"v_cmp_le_i32 vcc, {jj}, v{t}")
        a("s_nop 1")
        a(f"v_cndmask_b32_e64 v{F_MD+r}, v{t+1}, 0, vcc")
        a(f"v_sub_f32 v{F_MF+r}, v{t+1}, v{F_MD+r}")
    a(f"v_mov_b32 v{F_M}, 0xff800000")
    a(f"s_mov_b32 s{S_FP}, 0")
    a.lab("L_FB_PASS")
    a(f"s_mov_b32 s{S_FI2}, 0")
    a.lab("L_FB_OWN")
    a(f"s_mul_i32 s{S_FT}, s{S_FI2}, {TILE}")
    a(f"s_add_u32 s{S_FT}, s{S_FT}, {KV_OWN}")
    a(f"s_cmp_eq_u32 s{S_FI2}, s{S_FQ}")
    a(f"s_cselect_b32 s{S_FK}, 1, 0")
    a(f"s_call_b64 s[{S_RET2}:{S_RET2+1}], L_FB_TILE")
    a(f"s_add_u32 s{S_FI2}, s{S_FI2}, 1")
    a(f"s_cmp_le_u32 s{S_FI2}, s{S_FQ}")
    a("s_cbranch_scc1 L_FB_OWN")
    a(f"s_cmp_eq_u32 s{S_S}, 0")
    a("s_cbranch_scc1 L_FB_PEND")
    a(f"s_mov_b32 s{S_FI2}, s{S_FQ}")
    a.lab("L_FB_HALO")
    a(f"s_mul_i32 s{S_FT}, s{S_FI2}, {TILE}")
    a(f"s_add_u32 s{S_FT}, s{S_FT}, {KV_HALO}")
    a(f"s_cmp_eq_u32 s{S_FI2}, s{S_FQ}")
    a(f"s_cselect_b32 s{S_FK}, 2, 0")
    a(f"s_call_b64 s[{S_RET2}:{S_RET2+1}], L_FB_TILE")
    a(f"s_add_u32 s{S_FI2}, s{S_FI2}, 1")
    a(f"s_cmp_le_u32 s{S_FI2}, 7")
    a("s_cbranch_scc1 L_FB_HALO")
    a.lab("L_FB_PEND")
    a(f"s_cmp_eq_u32 s{S_FP}, 1")
    a("s_cbranch_scc1 L_FB_DONE")
    a(f"v_mov_b32 v{t}, v{F_M}")
    a("s_nop 1")
    a(f"v_permlane32_swap_b32 v{F_M}, v{t}")
    a("s_nop 1")
    a(f"v_max_f32 v{F_M}, v{F_M}, v{t}")
    for r in range(16): a(f"v_mov_b32 v{OA+r}, 0")
    a(f"s_mov_b32 s{S_FP}, 1")
    a("s_branch L_FB_PASS")
    a.lab("L_FB_DONE")
    a("s_nop 15")
    a(f"s_setpc_b64 s[{S_RET}:{S_RET+1}]")
    a.lab("L_FB_TILE")
    a(f"v_add_u32 v{A_K}, s{S_FT}, v{B_K}")
    a(f"v_add_u32 v{A_KR}, s{S_FT}, v{B_KR}")
    a(f"v_and_b32 v{A_V}, s{S_FT}, v{MK_V}")
    a(f"v_add_u32 v{A_V}, v{B_V}, v{A_V}")
    a(f"ds_read_b128 v[{VKF}:{VKF+3}], v{A_K}")
    a(f"ds_read_b64 v[{VKR}:{VKR+1}], v{A_KR}")
    a(f"ds_read_b64_tr_b16 v[{VVA}:{VVA+1}], v{A_V}")
    a(f"ds_read_b64_tr_b16 v[{VVA+2}:{VVA+3}], v{A_V} offset:576")
    a(f"ds_read_b64_tr_b16 v[{VVB}:{VVB+1}], v{A_V} offset:1152")
    a(f"ds_read_b64_tr_b16 v[{VVB+2}:{VVB+3}], v{A_V} offset:1728")
    a("s_waitcnt lgkmcnt(0)")
    a(f"v_mfma_f32_32x32x16_bf16 v[{VS}:{VS+15}], v[{VKF}:{VKF+3}], v[{QA_M}:{QA_M+3}], 0")
    a(f"v_mfma_f32_32x32x16_bf16 v[{VS}:{VS+15}], v[{VKR}:{VKR+3}], v[{QA_R}:{QA_R+3}], v[{VS}:{VS+15}]")
    a("s_nop 15")
    a(f"s_cmp_eq_u32 s{S_FK}, 0")
    a("s_cbranch_scc1 L_FB_NM")
    a(f"s_cmp_eq_u32 s{S_FK}, 1")
    a("s_cbranch_scc0 L_FB_FM")
    for r in range(16): a(f"v_add_f32 v{VS+r}, v{VS+r}, v{F_MD+r}")
    a("s_branch L_FB_NM")
    a.lab("L_FB_FM")
    for r in range(16): a(f"v_add_f32 v{VS+r}, v{VS+r}, v{F_MF+r}")
    a.lab("L_FB_NM")
    a(f"s_cmp_eq_u32 s{S_FP}, 0")
    a("s_cbranch_scc0 L_FB_P1")
    for r in range(0, 16, 2): a(f"v_max3_f32 v{F_M}, v{F_M}, v{VS+r}, v{VS+r+1}")
    a(f"s_setpc_b64 s[{S_RET2}:{S_RET2+1}]")
    a.lab("L_FB_P1")
    for r in range(16): a(f"v_sub_f32 v{VS+r}, v{VS+r}, v{F_M}")
    for r in range(16): a(f"v_exp_f32 v{VE+r}, v{VS+r}")
    a("s_nop 0")
    for j in range(8): a(f"v_cvt_pk_bf16_f32 v{VP+j}, v{VE+2*j}, v{VE+2*j+1}")
    a("s_nop 1")
    a(f"v_mfma_f32_32x32x16_bf16 v[{OA}:{OA+15}], v[{VVA}:{VVA+3}], v[{VP}:{VP+3}], v[{OA}:{OA+15}]")
    a(f"v_mfma_f32_32x32x16_bf16 v[{OA}:{OA+15}], v[{VVB}:{VVB+3}], v[{VP+4}:{VP+7}], v[{OA}:{OA+15}]")
    a("s_nop 7")
    a(f"s_setpc_b64 s[{S_RET2}:{S_RET2+1}]")

def finalize(a, O, qb_sreg, save_exec, rest_exec):
    t = T; R = VS
    a(f"v_rcp_f32 v{t+2}, v{O+12}")
    a(f"s_lshl_b32 s{S_T0}, s{qb_sreg}, 15")
    a(f"s_add_u32 s{S_T1}, s{S_T0}, s{S_OM}")
    a(f"s_lshl_b32 s{S_T0}, s{qb_sreg}, 7")
    a(f"s_add_u32 s{S_T2}, s{S_T0}, s{S_OR}")
    for r in range(12): a(f"v_mul_f32 v{O+r}, v{O+r}, v{t+2}")
    a(f"v_cvt_pk_bf16_f32 v{R}, v{O}, v{O+1}")
    a(f"v_cvt_pk_bf16_f32 v{R+1}, v{O+2}, v{O+3}")
    a(f"v_cvt_pk_bf16_f32 v{R+2}, v{O+4}, v{O+5}")
    a(f"v_cvt_pk_bf16_f32 v{R+3}, v{O+6}, v{O+7}")
    a(f"v_cvt_pk_bf16_f32 v{R+4}, v{O+8}, v{O+9}")
    a(f"v_cvt_pk_bf16_f32 v{R+5}, v{O+10}, v{O+11}")
    a(f"s_cmp_eq_u32 s{S_HEAD}, 0")
    a(f"s_cselect_b64 s[{S_SAVE}:{S_SAVE+1}], -1, 0")
    a(f"v_permlane32_swap_b32 v{R}, v{R+2}")
    a(f"v_permlane32_swap_b32 v{R+1}, v{R+3}")
    a(f"v_cndmask_b32_e64 v{R+4}, v{R+5}, v{R+4}, s[{S_SAVE}:{S_SAVE+1}]")
    a(f"buffer_store_dwordx4 v[{R}:{R+3}], v{V_OA1}, {WS}, s{S_T1} offen sc1")
    a(f"s_mov_b64 s[{S_SAVE}:{S_SAVE+1}], exec")
    a(f"s_mov_b32 exec_hi, 0")
    a(f"buffer_store_dword v{R+4}, v{V_OA2}, {WS}, s{S_T2} offen sc1")
    rest_exec()

def oflag(a, name, cnt_addr, flag_off, save_exec, rest_exec, after_store=None, last=7):
    t = T
    lds_inc(a, cnt_addr, save_exec, rest_exec, rtn=t+2)
    a("s_waitcnt lgkmcnt(0)")
    a(f"v_readfirstlane_b32 s{S_T0}, v{t+2}")
    a(f"s_cmp_lg_u32 s{S_T0}, {last}")
    a(f"s_cbranch_scc1 {name}")
    a(f"s_lshl_b32 s{S_T0}, s{S_HP}, 2")
    a(f"s_add_u32 s{S_T0}, s{S_T0}, s{S_OFS}")
    a(f"v_lshlrev_b32 v{t}, 7, v{V_LANE}")
    a(f"v_mov_b32 v{t+1}, s{S_TAGO}")
    save_exec("0xffff")
    a(f"buffer_store_dword v{t+1}, v{t}, {WS}, s{S_T0} offen offset:{flag_off} sc1")
    rest_exec()
    if after_store: after_store()
    a.lab(name)

def phase2(a, debug_stage, ts, exp, save_exec, rest_exec):
    t = T; L = V_LANE
    UH = (4, 6, 8)
    if 'hkA' in exp: UH = (3, 5, 7)
    if 'hkB' in exp: UH = (4, 6, 7)
    if 'hkC' in exp: UH = (5, 7, 8)
    UP = 15
    a.c("======== phase 2 ========")
    a(f"v_readfirstlane_b32 s{S_TAGOUT}, v{V_TG}")
    a(f"v_readfirstlane_b32 s{S_TAGIN}, v{V_TG+1}")
    a(f"v_readfirstlane_b32 s{S_TAGO}, v{V_TG+2}")
    a(f"s_lshl_b32 s{S_T0}, s{S_GRP}, 18")
    a(f"s_add_u32 s{S_T0}, s{S_T0}, {WS_O}")
    a(f"s_lshl_b32 s{S_T1}, s{S_HP}, 10")
    a(f"s_lshl_b32 s{S_T2}, s{S_HEAD}, 9")
    a(f"s_add_u32 s{S_T1}, s{S_T1}, s{S_T2}")
    a(f"s_add_u32 s{S_OM}, s{S_T1}, s{S_T0}")
    a(f"s_lshl_b32 s{S_T0}, s{S_GRP}, 15")
    a(f"s_add_u32 s{S_T0}, s{S_T0}, {WS_OR}")
    a(f"s_lshl_b32 s{S_T1}, s{S_HP}, 1")
    a(f"s_add_u32 s{S_T1}, s{S_T1}, s{S_HEAD}")
    a(f"s_lshl_b32 s{S_T1}, s{S_T1}, 10")
    a(f"s_add_u32 s{S_OR}, s{S_T1}, s{S_T0}")
    a(f"s_lshl_b32 s{S_OFS}, s{S_GRP}, 12")
    a(f"s_add_u32 s{S_OFS}, s{S_OFS}, {WS_OF}")
    a(f"v_bfe_u32 v{V_OA1}, v{L}, 4, 1")
    a(f"v_lshlrev_b32 v{V_OA1}, 14, v{V_OA1}")
    a(f"v_and_b32 v{t+4}, 15, v{L}")
    a(f"v_lshl_add_u32 v{V_OA1}, v{t+4}, 4, v{V_OA1}")
    a(f"v_lshrrev_b32 v{t+4}, 5, v{L}")
    a(f"v_lshl_add_u32 v{V_OA1}, v{t+4}, 8, v{V_OA1}")
    a(f"v_lshlrev_b32 v{V_OA2}, 2, v{L}")
    for (QM, QR, sreg) in ((QA_M, QA_R, S_M), (QB_M, QB_R, S_MB)):
        a(f"s_mul_i32 s{S_T0}, s{sreg}, {QTILE}")
        a(f"s_add_u32 s{S_T0}, s{S_T0}, {Q_BASE}")
        a(f"v_add_u32 v{t+2}, s{S_T0}, v{B_K}")
        a(f"v_add_u32 v{t+3}, s{S_T0}, v{B_KR}")
        a(f"ds_read_b128 v[{QM}:{QM+3}], v{t+2}")
        a(f"ds_read_b64 v[{QR}:{QR+1}], v{t+3}")
    a(f"s_cmp_eq_u32 s{S_HEAD}, 0")
    a(f"s_cselect_b32 s{S_T0}, -1, 0")
    a(f"s_cselect_b32 s{S_T1}, 0, -1")
    a(f"v_cmp_gt_u32 vcc, 32, v{L}")
    a(f"v_mov_b32 v{t}, s{S_T0}")
    a(f"v_mov_b32 v{t+1}, s{S_T1}")
    a(f"v_cndmask_b32_e64 v{t}, 0, v{t}, vcc")
    a(f"v_cndmask_b32_e64 v{t+1}, 0, v{t+1}, vcc")
    a(f"v_mov_b32 v{VKR+2}, 0")
    a(f"v_mov_b32 v{VKR+3}, 0")
    for QR in (QA_R, QB_R):
        a(f"v_mov_b32 v{QR+2}, 0")
        a(f"v_mov_b32 v{QR+3}, 0")
    a("s_waitcnt lgkmcnt(0)")
    for QR in (QA_R, QB_R):
        a(f"v_and_b32 v{QR}, v{QR}, v{t}")
        a(f"v_and_b32 v{QR+1}, v{QR+1}, v{t+1}")
    lds_inc(a, CNTQ, save_exec, rest_exec)
    a(f"s_mov_b32 s{S_U}, 0")
    a(f"s_mov_b32 s{S_HST}, 0")
    a(f"s_mov_b32 s{S_HOOK}, {UP}")
    a(f"s_mov_b32 s{S_HST}, 3")
    a(f"s_cmp_lt_u32 s{S_WID}, 4")
    a(f"s_cbranch_scc1 L_HS2")
    a(f"s_mov_b32 s{S_HST}, 0")
    a(f"s_mov_b32 s{S_HOOK}, {UH[0]}")
    a(f"s_cmp_eq_u32 s{S_S}, 7")
    a(f"s_cbranch_scc1 L_HS1")
    a(f"s_mul_i32 s{S_T1}, s{S_IDX}, 36864")
    for c, i in enumerate([3, 2, 1, 0]):
        a(f"s_add_u32 s{S_T2}, s{S_T1}, {i*4096}")
        a(f"buffer_store_dwordx4 v[{VH+20+4*c}:{VH+20+4*c+3}], v{V_PA}, {WS}, s{S_T2} offen sc1")
    a.lab("L_HS1")
    if 'noprio' not in exp: a("s_setprio 1")
    a.lab("L_HS2")
    ts(4)
    set_run(a, KV_OWN, None, [f"s_add_u32 s{S_N}, s{S_M}, 1"], TILE)
    a(f"s_call_b64 s[{S_RET}:{S_RET+1}], L_RUNA")
    set_run(a, KV_OWN, None, [f"s_sub_u32 s{S_N}, 8, s{S_M}"], TILE)
    a(f"s_call_b64 s[{S_RET}:{S_RET+1}], L_RUNB")
    ts(5)
    a(f"s_cmp_eq_u32 s{S_S}, 0")
    a("s_cbranch_scc1 L_FINAL0")
    a(f"v_mov_b32 v{t+2}, {NEG:#x}")
    for r in range(16): a(f"v_sub_f32 v{V_MASK+r}, v{t+2}, v{V_MASK+r}")
    a(f"s_cmp_lt_u32 s{S_WID}, 4")
    a("s_cbranch_scc1 L_H5DONE")
    lds_wait(a, "L_WQ", CNTQ, 8)
    a(f"v_add_u32 v{V_PA+1}, {KV_HALO}, v{V_PA}")
    for c, i in enumerate([8, 7, 6, 5, 4, 3, 2, 1, 0]):
        a(f"s_waitcnt vmcnt({8-c})")
        a(f"ds_write_b128 v{V_PA+1}, v[{VH+4*c}:{VH+4*c+3}] offset:{i*4096}")
    a(f"s_cmp_lg_u32 s{S_WID}, 4")
    a("s_cbranch_scc1 L_H5DONE")
    a(f"s_sub_u32 s{S_T0}, s{S_IDX}, 1")
    a(f"s_lshl_b32 s{S_T0}, s{S_T0}, 8")
    a(f"s_add_u32 s{S_T0}, s{S_T0}, {WS_FLAG}")
    a(f"v_mov_b32 v{t}, 0")
    a(f"v_mov_b32 v{t+1}, s{S_TAGIN}")
    save_exec(1)
    a(f"buffer_store_dword v{t+1}, v{t}, {WS}, s{S_T0} offen sc1")
    rest_exec()
    a.lab("L_H5DONE")
    a("s_waitcnt lgkmcnt(0)")
    a("s_setprio 0")
    a("s_barrier")
    if "tsh" not in exp: ts(7)
    a(f"s_mov_b32 s{S_T4}, 7")
    set_run(a, KV_HALO, S_T4, [f"s_add_u32 s{S_N}, s{S_M}, 1"], -TILE)
    a(f"s_call_b64 s[{S_RET}:{S_RET+1}], L_RUNB")
    a("s_nop 7")
    a("s_nop 3")
    safety_check(a, OB, True, S_MB, "B1")
    finalize(a, OB, S_MB, save_exec, rest_exec)
    a(f"s_mov_b32 s{S_T4}, 7")
    set_run(a, KV_HALO, S_T4, [f"s_sub_u32 s{S_N}, 8, s{S_M}"], -TILE)
    a(f"s_call_b64 s[{S_RET}:{S_RET+1}], L_RUNA")
    a("s_branch L_FINALA")
    a.lab("L_FINAL0")
    a("s_waitcnt vmcnt(0)")
    a("s_setprio 0")
    a("s_barrier")
    a("s_nop 7")
    a("s_nop 3")
    safety_check(a, OB, True, S_MB, "B0")
    finalize(a, OB, S_MB, save_exec, rest_exec)
    a.lab("L_FINALA")
    if "tsh" not in exp: ts(8)
    a("s_nop 7")
    a("s_nop 3")
    safety_check(a, OA, False, S_M, "A")
    finalize(a, OA, S_M, save_exec, rest_exec)
    a("s_branch L_P3")
    fallback_code(a)

    a.lab("L_HOOK")
    a(f"s_cmp_eq_u32 s{S_HST}, 1")
    a("s_cbranch_scc1 L_HK1")
    a(f"s_cmp_eq_u32 s{S_HST}, 2")
    a("s_cbranch_scc1 L_HK2")
    a(f"s_cmp_eq_u32 s{S_HST}, 3")
    a("s_cbranch_scc1 L_HK3")
    a(f"s_mov_b32 s{S_HST}, 1")
    a(f"s_mov_b32 s{S_HOOK}, {UH[1]}")
    a(f"s_cmp_eq_u32 s{S_S}, 7")
    a("s_cbranch_scc1 L_HRET")
    a("s_waitcnt vmcnt(0)")
    a(f"s_lshl_b32 s{S_T0}, s{S_IDX}, 8")
    a(f"s_lshl_b32 s{S_T1}, s{S_L}, 2")
    a(f"s_add_u32 s{S_T0}, s{S_T0}, s{S_T1}")
    a(f"s_add_u32 s{S_T0}, s{S_T0}, {WS_FLAG+128}")
    a(f"v_mov_b32 v{t}, 0")
    a(f"v_mov_b32 v{t+1}, s{S_TAGOUT}")
    save_exec(1)
    a(f"buffer_store_dword v{t+1}, v{t}, {WS}, s{S_T0} offen sc1")
    rest_exec()
    a("s_branch L_HRET")
    a.lab("L_HK3")
    a(f"s_mov_b32 s{S_HST}, 4")
    a(f"s_mov_b32 s{S_HOOK}, 1000")
    a(f"s_lshl_b32 s{S_T0}, s{S_HP}, 7")
    a(f"s_add_u32 s{S_T0}, s{S_T0}, s{S_OFS}")
    save_exec("0xffff")
    a(f"v_lshlrev_b32 v{t}, 2, v{L}")
    a(f"buffer_load_dword v{V_TG+1}, v{t}, {WS}, s{S_T0} offen offset:128 sc1")
    rest_exec()
    a("s_branch L_HRET")
    a.lab("L_HK1")
    a(f"s_mov_b32 s{S_HST}, 2")
    a(f"s_mov_b32 s{S_HOOK}, {UH[2]}")
    a(f"s_cmp_eq_u32 s{S_S}, 0")
    a("s_cbranch_scc0 L_HK1A")
    a(f"s_mov_b32 s{S_HOOK}, 1000")
    a("s_branch L_HRET")
    a.lab("L_HK1A")
    a(f"s_sub_u32 s{S_H1}, s{S_IDX}, 1")
    a(f"s_lshl_b32 s{S_H1}, s{S_H1}, 8")
    a(f"s_lshl_b32 s{S_T0}, s{S_L}, 2")
    a(f"s_add_u32 s{S_H1}, s{S_H1}, s{S_T0}")
    a(f"s_add_u32 s{S_H1}, s{S_H1}, {WS_FLAG+128}")
    a(f"v_mov_b32 v{t}, 0")
    a(f"buffer_load_dword v{V_TG}, v{t}, {WS}, s{S_H1} offen sc1")
    a("s_branch L_HRET")
    a.lab("L_HK2")
    a(f"s_mov_b32 s{S_HST}, 3")
    a(f"s_mov_b32 s{S_HOOK}, {UP}")
    a("s_waitcnt vmcnt(0)")
    a(f"v_readfirstlane_b32 s{S_T0}, v{V_TG}")
    a(f"s_cmp_eq_u32 s{S_T0}, s{S_TAGIN}")
    a("s_cbranch_scc1 L_POLL1_OK")
    a(f"v_mov_b32 v{t}, 0")
    spin_poll(a, "L_POLL1",
              [f"v_readfirstlane_b32 s{S_T0}, v{V_TG}", f"s_cmp_eq_u32 s{S_T0}, s{S_TAGIN}"],
              f"buffer_load_dword v{V_TG}, v{t}, {WS}, s{S_H1} offen sc1")
    a(f"s_sub_u32 s{S_T0}, s{S_IDX}, 1")
    a(f"s_mul_i32 s{S_T0}, s{S_T0}, 36864")
    for c, i in enumerate([8, 7, 6, 5, 4, 3, 2, 1, 0]):
        a(f"s_add_u32 s{S_T1}, s{S_T0}, {i*4096}")
        a(f"buffer_load_dwordx4 v[{VH+4*c}:{VH+4*c+3}], v{V_PA}, {WS}, s{S_T1} offen sc1")
    a.lab("L_HRET")
    a(f"s_setpc_b64 s[{S_RET2}:{S_RET2+1}]")
    run_code(a, "L_RUNA", QA_M, QA_R, OA, exp)
    run_code(a, "L_RUNB", QB_M, QB_R, OB, exp)

def pub_stores(a, stage_off, base):
    a(f"s_add_u32 s{S_T2}, s{S_T1}, {stage_off}")
    a(f"buffer_store_dwordx4 v[{base}:{base+3}], v{V_PA}, {WS}, s{S_T2} offen sc1")
    for i in range(1, 4):
        a(f"s_add_u32 s{S_T3}, s{S_T2}, {i*4096}")
        a(f"buffer_store_dwordx4 v[{base+4*i}:{base+4*i+3}], v{V_PA}, {WS}, s{S_T3} offen sc1")
    a(f"buffer_store_dwordx4 v[{base+16}:{base+19}], v{V_PA+2}, {WS}, s{S_T2} offen sc1")

def halo_loads(a, stage_off, base):
    a(f"s_sub_u32 s{S_T0}, s{S_IDX}, 1")
    a(f"s_mul_i32 s{S_T0}, s{S_T0}, 36864")
    a(f"s_add_u32 s{S_T0}, s{S_T0}, s{S_SO}")
    for i in range(4):
        a(f"s_add_u32 s{S_T1}, s{S_T0}, {i*4096}")
        a(f"buffer_load_dwordx4 v[{base+4*i}:{base+4*i+3}], v{V_PA}, {WS}, s{S_T1} offen sc1")
    a(f"buffer_load_dwordx4 v[{base+16}:{base+19}], v{V_PA+2}, {WS}, s{S_T0} offen sc1")

def phase3(a, debug_stage, ts, exp, save_exec, rest_exec):
    t = T; L = V_LANE
    OF, AC, WF0, WF1 = 20, 92, 132, 152
    AW, AW2, PF, VO, VOUT, VR = 10, 11, 13, 14, 15, 16
    PA, PB = 12, 9
    S_PL, S_PR, S_PM = 4, 68, 40
    SCR = KV_OWN
    ORD = {0: [0, 2, 4, 6, 1, 3, 5, 7, 8], 1: [9, 11, 13, 15, 10, 12, 14, 16, 17]}
    GM = {0: 0x0055, 1: 0xAA00}; RM = {0: 0x01AA, 1: 0xFFFF}
    a.lab("L_P3")
    a.c("======== phase 3 ========")
    a(f"s_lshl_b32 s{S_PL}, s{S_HP}, 7")
    a(f"s_add_u32 s{S_PL}, s{S_PL}, s{S_OFS}")
    def poll_issue():
        save_exec("0xffff")
        a(f"v_lshlrev_b32 v{t+2}, 2, v{L}")
        a(f"buffer_load_dword v{PF}, v{t+2}, {WS}, s{S_PL} offen offset:128 sc1")
        rest_exec()
    def poll_check(name, mask):
        save_exec(f"{mask:#x}")
        a(f"v_cmp_ne_u32 vcc, s{S_TAGO}, v{PF}")
        a("s_nop 1")
        a("s_cmp_eq_u64 vcc, 0")
        a(f"s_cbranch_scc1 {name}_OK")
        a(f"v_lshlrev_b32 v{t+2}, 2, v{L}")
        spin_poll(a, name,
                  [f"v_cmp_ne_u32 vcc, s{S_TAGO}, v{PF}", "s_nop 1", "s_cmp_eq_u64 vcc, 0"],
                  f"buffer_load_dword v{PF}, v{t+2}, {WS}, s{S_PL} offen offset:128 sc1")
        rest_exec()
    a(f"s_lshr_b32 s{S_T1}, s{S_HP}, 3")
    a(f"s_lshl_b32 s{S_T1}, s{S_T1}, 3")
    a(f"s_lshl_b32 s{S_T2}, s{S_M}, 1")
    a(f"s_add_u32 s{S_T1}, s{S_T1}, s{S_T2}")
    a(f"s_lshl_b32 s{S_T0}, s{S_GRP}, 18")
    a(f"s_add_u32 s{S_T0}, s{S_T0}, {WS_O}")
    a(f"s_lshl_b32 s{S_T2}, s{S_T1}, 14")
    a(f"s_add_u32 s{S_PM}, s{S_T0}, s{S_T2}")
    a(f"s_lshl_b32 s{S_T0}, s{S_GRP}, 15")
    a(f"s_add_u32 s{S_T0}, s{S_T0}, {WS_OR}")
    a(f"s_lshl_b32 s{S_T2}, s{S_T1}, 6")
    a(f"s_add_u32 s{S_PR}, s{S_T0}, s{S_T2}")
    a(f"v_lshrrev_b32 v{VR}, 4, v{L}")
    a(f"v_lshlrev_b32 v{VR}, 12, v{VR}")
    a(f"v_and_b32 v{t+4}, 15, v{L}")
    a(f"v_lshl_add_u32 v{VR}, v{t+4}, 2, v{VR}")
    a(f"v_add_u32 v{VR+1}, 64, v{VR}")
    a(f"v_lshrrev_b32 v{t+1}, 4, v{L}")
    a(f"v_bfe_u32 v{t+2}, v{L}, 2, 2")
    a(f"v_and_b32 v{t+3}, 3, v{L}")
    a(f"v_lshrrev_b32 v{t+4}, 1, v{t+1}")
    a(f"v_lshlrev_b32 v{t+4}, 2, v{t+4}")
    a(f"v_lshl_add_u32 v{t+4}, v{t+1}, 3, v{t+4}")
    a(f"v_add_u32 v{t+4}, v{t+4}, v{t+2}")
    a(f"v_mul_u32_u24 v{t+4}, 144, v{t+4}")
    a(f"v_lshl_add_u32 v{AW}, v{t+3}, 3, v{t+4}")
    a(f"s_mul_i32 s{S_T0}, s{S_HEAD}, {9*5184}")
    a(f"v_add_u32 v{AW}, s{S_T0}, v{AW}")
    a(f"v_mul_u32_u24 v{t+4}, 72, v{t+1}")
    a(f"v_add3_u32 v{t+4}, v{t+4}, v{t+2}, 16")
    a(f"v_mul_u32_u24 v{t+4}, 144, v{t+4}")
    a(f"v_lshl_add_u32 v{AW2}, v{t+3}, 3, v{t+4}")
    a(f"v_lshlrev_b32 v{VO}, 4, v{L}")
    a(f"s_lshl_b32 s{S_T1}, s{S_T1}, 4")
    a(f"s_lshl_b32 s{S_T2}, s{S_S}, 8")
    a(f"s_add_u32 s{S_T1}, s{S_T1}, s{S_T2}")
    a(f"s_lshl_b32 s{S_T2}, s{S_HEAD}, 4")
    a(f"s_add_u32 s{S_T1}, s{S_T1}, s{S_T2}")
    a(f"s_mul_i32 s{S_T1}, s{S_T1}, 2304")
    a(f"s_mul_i32 s{S_T2}, s{S_B}, 1152")
    a(f"s_add_u32 s{S_T1}, s{S_T1}, s{S_T2}")
    a(f"s_and_b32 s{S_T2}, s{S_HP}, 7")
    a(f"s_mul_i32 s{S_T2}, s{S_T2}, 144")
    a(f"s_add_u32 s{S_T5}, s{S_T1}, s{S_T2}")
    a(f"v_and_b32 v{VOUT}, 15, v{L}")
    a(f"v_mul_u32_u24 v{VOUT}, 2304, v{VOUT}")
    a(f"v_lshrrev_b32 v{t+4}, 4, v{L}")
    a(f"v_lshl_add_u32 v{VOUT}, v{t+4}, 3, v{VOUT}")
    a(f"s_mul_i32 s{S_T0}, s{S_WID}, 5120")
    a(f"s_add_u32 s{S_T0}, s{S_T0}, {SCR}")
    a(f"v_add_u32 v18, s{S_T0}, v{VO}")
    a(f"s_xor_b32 s{S_T1}, s{S_WID}, 4")
    a(f"s_mul_i32 s{S_T1}, s{S_T1}, 5120")
    a(f"s_add_u32 s{S_T1}, s{S_T1}, {SCR}")
    a(f"v_add_u32 v19, s{S_T1}, v{VO}")
    OUT = f"s[{S_OUT}:{S_OUT+3}]"
    def wreads(kap, kh, WF):
        l = []
        for Tn in range(5):
            b = WF + 4*Tn
            if kap >= 16:
                o0 = (kap-16)*8*36*144 + Tn*32
                l.append(f"ds_read_b64_tr_b16 v[{b}:{b+1}], v{AW2} offset:{o0}")
                l.append(f"ds_read_b64_tr_b16 v[{b+2}:{b+3}], v{AW2} offset:{o0+36*144}")
            else:
                o0 = (kap - 9*kh)*5184 + Tn*32
                l.append(f"ds_read_b64_tr_b16 v[{b}:{b+1}], v{AW} offset:{o0}")
                l.append(f"ds_read_b64_tr_b16 v[{b+2}:{b+3}], v{AW} offset:{o0+576}")
        return l
    def loads(kh, slots):
        nl = []
        for jx in slots:
            kap = ORD[kh][jx]
            if kap >= 16:
                a(f"s_add_u32 s{S_T0}, s{S_PR}, {(kap-16)*16*1024}")
                for mt in range(2):
                    for i in range(4):
                        a(f"buffer_load_dword v{OF+36*mt+4*jx+i}, v{VR+mt}, {WS}, s{S_T0} offen offset:{i*1024} sc1")
                nl.append(8)
            else:
                a(f"s_add_u32 s{S_T0}, s{S_PM}, {kap*1024}")
                a(f"s_add_u32 s{S_T1}, s{S_PM}, {kap*1024+16384}")
                a(f"buffer_load_dwordx4 v[{OF+4*jx}:{OF+4*jx+3}], v{VO}, {WS}, s{S_T0} offen sc1")
                a(f"buffer_load_dwordx4 v[{OF+36+4*jx}:{OF+36+4*jx+3}], v{VO}, {WS}, s{S_T1} offen sc1")
                nl.append(2)
        return nl
    def mfm(kh, slots, nl, extra, last_next, novm=False):
        for c, jx in enumerate(slots):
            cur = WF0 if jx % 2 == 0 else WF1
            nxt = WF1 if jx % 2 == 0 else WF0
            a("s_waitcnt lgkmcnt(0)" if novm else f"s_waitcnt vmcnt({sum(nl[c+1:])+extra}) lgkmcnt(0)")
            rs = wreads(ORD[kh][jx+1], kh, nxt) if jx < 8 else []
            ri = 0
            for Tn in range(5):
                for mt in range(2):
                    d = AC + (mt*5+Tn)*4; o = OF + 36*mt + 4*jx
                    cc = "0" if jx == 0 else f"v[{d}:{d+3}]"
                    a(f"v_mfma_f32_16x16x32_bf16 v[{d}:{d+3}], v[{cur+4*Tn}:{cur+4*Tn+3}], v[{o}:{o+3}], {cc}")
                    if ri < len(rs): a(rs[ri]); ri += 1
    def add_out(q, base, Tn, pk):
        for r in range(4): a(f"v_add_f32 v{q+r}, v{q+r}, v{base+4*Tn+r}")
        a(f"v_cvt_pk_bf16_f32 v{pk}, v{q}, v{q+1}")
        a(f"v_cvt_pk_bf16_f32 v{pk+1}, v{q+2}, v{q+3}")
        if Tn == 4:
            a(f"s_mov_b64 s[{S_SAVE}:{S_SAVE+1}], exec")
            a(f"s_mov_b32 exec_hi, 0")
        omod = " nt" if 'ont' in exp else " sc1" if 'osc1' in exp else " sc0 sc1" if 'osc01' in exp else ""
        a(f"buffer_store_dwordx2 v[{pk}:{pk+1}], v{VOUT}, {OUT}, s{S_T5} offen offset:{Tn*32}{omod}")
        if Tn == 4: rest_exec()
    def nloads(kh, slots):
        return [8 if ORD[kh][jx] >= 16 else 2 for jx in slots]
    def validate(kh, slots, younger):
        nl = nloads(kh, slots); first = True
        for c, jx in enumerate(slots):
            a(f"s_waitcnt vmcnt({sum(nl[c+1:])+younger})")
            rr = [OF+4*jx+i for i in range(4)] + [OF+36+4*jx+i for i in range(4)]
            if first:
                a(f"v_max3_u32 v{t+3}, v{rr[0]}, v{rr[1]}, v{rr[2]}"); rr = rr[3:]; first = False
                a(f"v_max_u32 v{t+3}, v{t+3}, v{rr[0]}"); rr = rr[1:]
            for k in range(0, len(rr), 2):
                a(f"v_max3_u32 v{t+3}, v{t+3}, v{rr[k]}, v{rr[k+1]}")
        a(f"v_cmp_eq_u32 vcc, -1, v{t+3}")
        a("s_nop 1")
        a("s_cmp_eq_u64 vcc, 0")
    def probe_addr(kh, slots):
        mains = [jx for jx in slots if ORD[kh][jx] < 16]
        a(f"v_mov_b32 v{t+3}, {ORD[kh][mains[0]]*1024 + 16384 + 1020}")
        a(f"v_lshlrev_b32 v{PA}, 11, v{L}")
        a(f"v_add_u32 v{PA}, v{t+3}, v{PA}")
        return (1 << min(len(mains), 4)) - 1
    def probe_issue(mask):
        save_exec(f"{mask:#x}")
        a(f"buffer_load_dword v{PB}, v{PA}, {WS}, s{S_PM} offen sc1")
        rest_exec()
    def probe_loop(mask, name, first_issued):
        save_exec(f"{mask:#x}")
        a(f"s_mov_b32 s{S_CNT}, 0")
        if first_issued: a(f"s_branch {name}_PW")
        a.lab(name + "_P")
        a(f"buffer_load_dword v{PB}, v{PA}, {WS}, s{S_PM} offen sc1")
        a.lab(name + "_PW")
        a(f"s_add_u32 s{S_CNT}, s{S_CNT}, 1")
        a("s_waitcnt vmcnt(0)")
        a(f"v_cmp_eq_u32 vcc, -1, v{PB}")
        a("s_nop 1")
        a("s_cmp_eq_u64 vcc, 0")
        a(f"s_cbranch_scc1 {name}_PO")
        a(f"s_cmp_lt_u32 s{S_CNT}, 2000000")
        a(f"s_cbranch_scc1 {name}_P")
        a.lab(name + "_PO")
        rest_exec()
    def load_validate_loop(kh, slots, name):
        a(f"s_mov_b32 s{S_N}, 0")
        a.lab(name + "_L")
        loads(kh, slots)
        validate(kh, slots, 0)
        a(f"s_cbranch_scc1 {name}_OK")
        a(f"s_add_u32 s{S_N}, s{S_N}, 1")
        a(f"s_cmp_lt_u32 s{S_N}, 100000")
        a(f"s_cbranch_scc1 {name}_L")
        a.lab(name + "_OK")
    def path(kh):
        K = f"K{kh}"
        G, R = list(range(4)), list(range(4, 9))
        for rd in wreads(ORD[kh][0], kh, WF0): a(rd)
        ts(10)
        a(f"s_lshr_b32 s{S_T0}, 0x55AA, s{S_HP}")
        a(f"s_bitcmp1_b32 s{S_T0}, 0")
        a(f"s_cbranch_scc1 L_SG{K}_GO")
        mk = probe_addr(kh, G)
        probe_loop(mk, f"L_SG{K}", False)
        a.lab(f"L_SG{K}_GO")
        load_validate_loop(kh, G, f"L_SGV{K}")
        mk = probe_addr(kh, R)
        probe_issue(mk)
        mfm(kh, G, [0]*4, 0, None, novm=True)
        ts(9)
        probe_loop(mk, f"L_SR{K}", True)
        load_validate_loop(kh, R, f"L_SRV{K}")
        mfm(kh, R, [0]*5, 0, None, novm=True)
        ts(11)
        send = AC + 20 if kh == 0 else AC
        keep = AC if kh == 0 else AC + 20
        lds_wait(a, f"L_WOA{K}", CNTOA, 8)
        for Tn in range(5): a(f"ds_write_b128 v18, v[{send+4*Tn}:{send+4*Tn+3}] offset:{Tn*1024}")
        a("s_waitcnt lgkmcnt(0)")
        a("s_barrier")
        for Tn in range(5): a(f"ds_read_b128 v[{OF+4*Tn}:{OF+4*Tn+3}], v19 offset:{Tn*1024}")
        for Tn in range(5):
            a(f"s_waitcnt lgkmcnt({4-Tn})")
            add_out(OF+4*Tn, keep, Tn, OF+20+2*Tn)
    lds_inc(a, CNTOA, save_exec, rest_exec)
    a(f"s_cmp_eq_u32 s{S_HST}, 4")
    a("s_cbranch_scc0 L_P3C0")
    a("s_waitcnt vmcnt(2)")
    a(f"v_mov_b32 v{PF}, v{V_TG+1}")
    a("s_branch L_P3C1")
    a.lab("L_P3C0")
    poll_issue()
    a("s_waitcnt vmcnt(0)")
    a.lab("L_P3C1")
    poll_check("L_POLLC", 0xFFFF)
    if debug_stage == 2:
        a("s_waitcnt vmcnt(0)")
        a("s_branch L_FIN")
        return
    a(f"s_cmp_eq_u32 s{S_HEAD}, 0")
    a("s_cbranch_scc0 L_P3K1")
    path(0)
    a("s_branch L_FIN")
    a.lab("L_P3K1")
    path(1)
    a(f"s_cmp_lg_u32 s{S_HP}, 0")
    a("s_cbranch_scc1 L_FIN")
    a(f"s_cmp_lg_u32 s{S_WID}, 4")
    a("s_cbranch_scc1 L_FIN")
    a(f"v_mov_b32 v{t}, 0")
    a(f"v_mov_b32 v{t+1}, s{S_TAGO}")
    a(f"s_mov_b64 exec, 1")
    a(f"buffer_store_dword v{t+1}, v{t}, {WS}, s{S_OFS} offen sc1")

if __name__ == "__main__":
    import argparse
    p = argparse.ArgumentParser(); p.add_argument("--debug", type=int, default=0)
    p.add_argument("--timing", action="store_true"); p.add_argument("--exp", default=""); p.add_argument("-o", default="/dev/stdout")
    args = p.parse_args()
    open(args.o, "w").write(gen(args.debug, args.timing, args.exp))
```

```python
import sys, math, struct

NAME = "concat_heads__sliding_block__sliding_block__prompt"

STAGE   = 49152
WO_BASE = 0
KV_OWN  = 82944
KV_HALO = 119808
Q_BASE  = 119808
MISC    = 156672
TAGS_LDS = MISC + 2048
CNT2, CNT1, CNTQ, CNTOB, CNTOA = TAGS_LDS+12, TAGS_LDS+16, TAGS_LDS+20, TAGS_LDS+24, TAGS_LDS+28
LDS_TOTAL = 163840
TILE    = 4608
QTILE   = 2304
WS_KV   = 0
WS_O    = 256*36864
WS_OR   = WS_O + 16*262144
WS_FLAG = WS_OR + 16*32768
WS_OF   = WS_FLAG + 65536
TIMING_OFF = 24<<20
TAG_INC = 0x9E3779B1
NEG     = 0xFF61B1E6
QSCALE  = (18.0 ** -0.5) * math.log2(math.e)
def f32bits(x): return struct.unpack("<I", struct.pack("<f", x))[0]

class Asm:
    def __init__(self): self.l = []
    def __call__(self, s=""):
        for line in s.split("\n"):
            self.l.append("  " + line.strip())
    def lab(self, n): self.l.append(n + ":")
    def c(self, s): self.l.append("  ; " + s)
    def text(self): return "\n".join(self.l) + "\n"

S_X, S_W, S_WO, S_WS, S_OUT = 8, 12, 16, 20, 24
S_B, S_S, S_HP, S_WID = 28, 29, 30, 31
S_T0, S_T1, S_T2, S_T3, S_T4, S_T5 = 32, 33, 34, 35, 36, 37
S_I = 38
S_L = 39
S_TAGIN, S_TAGOUT, S_TAGO = 40, 41, 42
S_K, S_C, S_SB, S_XB, S_WB = 43, 44, 45, 46, 47
S_LX, S_LW = 48, 49
S_N = 50
S_U = 51
S_RET = 52
S_IDX, S_GRP, S_HEAD, S_M = 54, 55, 56, 57
S_SAVE = 58
S_CNT = 60
S_HOOK = 61
S_BAD = 62
S_RET2 = 64
S_MB = 66
S_HST = 67
S_H0, S_H1 = 68, 69
S_E = 98
S_SO, S_FI = 99, 100
S_OM, S_OR, S_OFS = 6, 7, 5

V_LANE = 1
T = 2
V_AX = 10
V_AW = 12
V_MASK = 20
V_SET0, V_SET1, V_ACC = 36, 80, 124
V_LDX, V_LDW = 36, 44
V_TG = 236
B_K, B_KR, B_V, MK_V = 240, 241, 242, 243
vEK, vEQ, vEV, vE6, vDr, vDt, vF, vC = 244, 245, 246, 247, 248, 249, 250, 252
V_TL = 254
QA_M, QA_R, QB_M, QB_R = 36, 40, 44, 48
OA, OB = 52, 68
VS, VE, VP = 84, 100, 116
VKF, VKR, VVA, VVB = 124, 128, 132, 136
A_K, A_KR, A_V, ST_V, ST_K = 10, 11, 12, 13, 14
VH = 140
V_WOV = 180
V_OA1, V_OA2 = 188, 189
V_PA = 184

def emit_masks_(a):
    t = T; L = V_LANE
    a(f"v_and_b32 v{t}, 31, v{L}")
    a(f"v_lshrrev_b32 v{t+1}, 5, v{L}")
    a(f"v_lshlrev_b32 v{t+1}, 2, v{t+1}")
    a(f"v_sub_u32 v{t}, v{t}, v{t+1}")
    a(f"v_mov_b32 v{t+1}, {NEG:#x}")
    for r in range(16):
        jj = (r & 3) + 8*(r >> 2)
        a(f"v_cmp_le_i32 vcc, {jj}, v{t}")
        a("s_nop 1")
        a(f"v_cndmask_b32_e64 v{V_MASK+r}, v{t+1}, 0, vcc")
def emit_p2_patterns_(a):
    t = T; L = V_LANE
    a(f"v_and_b32 v{t}, 31, v{L}")
    a(f"v_lshrrev_b32 v{t+1}, 5, v{L}")
    a(f"v_lshrrev_b32 v{t+2}, 2, v{t}")
    a(f"v_lshrrev_b32 v{t+3}, 3, v{t}")
    a(f"v_xor_b32 v{t+2}, v{t+2}, v{t+3}")
    a(f"v_xor_b32 v{t+2}, v{t+2}, v{t+1}")
    a(f"v_and_b32 v{t+2}, 1, v{t+2}")
    a(f"v_lshlrev_b32 v{t+2}, 4, v{t+2}")
    a(f"v_lshl_add_u32 v{t+2}, v{t}, 5, v{t+2}")
    a(f"s_lshl_b32 s{S_T0}, s{S_HEAD}, 10")
    a(f"v_add_u32 v{B_K}, s{S_T0}, v{t+2}")
    a(f"v_lshlrev_b32 v{B_KR}, 3, v{t}")
    a(f"v_add_u32 v{B_KR}, 2048, v{B_KR}")
    a(f"v_bfe_u32 v{t+2}, v{L}, 2, 2")
    a(f"v_lshl_add_u32 v{t+2}, v{t+1}, 2, v{t+2}")
    a(f"v_mul_u32_u24 v{t+2}, 72, v{t+2}")
    a(f"v_add_u32 v{t+2}, 2304, v{t+2}")
    a(f"v_and_b32 v{t+3}, 3, v{L}")
    a(f"v_lshlrev_b32 v{t+4}, 3, v{t+3}")
    a(f"s_mul_i32 s{S_T0}, s{S_HEAD}, 40")
    a(f"v_add3_u32 v{t+4}, v{t+4}, v{t+2}, s{S_T0}")
    a(f"v_add_u32 v{t+5}, 32, v{t+2}")
    a(f"v_bfe_u32 v{t+6}, v{L}, 4, 1")
    a(f"v_cmp_eq_u32 vcc, 1, v{t+6}")
    a(f"v_lshrrev_b32 v{t+7}, 1, v{t+3}")
    a(f"v_and_b32 v{t+7}, v{t+7}, v{t+6}")
    a(f"v_cndmask_b32 v{B_V}, v{t+4}, v{t+5}, vcc")
    a(f"v_cmp_eq_u32 vcc, 1, v{t+7}")
    a(f"v_mov_b32 v{t+5}, {MISC}")
    a(f"v_mov_b32 v{t+6}, -1")
    a(f"v_cndmask_b32 v{B_V}, v{B_V}, v{t+5}, vcc")
    a(f"v_cndmask_b32_e64 v{MK_V}, v{t+6}, 0, vcc")


def gen(debug_stage=0, timing=False, exp=''):
    a = Asm()
    t = T; L = V_LANE
    def ts(i, force=False):
        if timing and ('tsk' not in exp or force or i in (0, 8, 9, 10, 11)): a(f"{'s_memrealtime' if 'abs' in exp else 's_memtime'} s[{70+2*i}:{71+2*i}]")
    WS = f"s[{S_WS}:{S_WS+3}]"
    def save_exec(val):
        a(f"s_mov_b64 s[{S_SAVE}:{S_SAVE+1}], exec")
        a(f"s_mov_b64 exec, {val}")
    def rest_exec():
        a(f"s_mov_b64 exec, s[{S_SAVE}:{S_SAVE+1}]")

    a.l += [f"; Kernarg layout (72 bytes): A_x, A_wqkv, A_wo, B_x, B_wqkv, B_wo, out, debug, ws",
            f"; @launch grid=(256,1,1) block=(512,1,1) lds={LDS_TOTAL}"]
    a(f""".amdgcn_target "amdgcn-amd-amdhsa--gfx950"
.text
.globl {NAME}_kernel
.p2align 8
.type {NAME}_kernel,@function""")
    a.lab(f"{NAME}_kernel")
    a("s_cmp_ge_u32 s2, 256")
    a("s_cbranch_scc1 L_END")
    a(f"s_and_b32 s3, s2, 7")
    if 'xmap' in exp:
        a(f"s_bfe_u32 s{S_B}, s3, 0x10001")
    else:
        a(f"s_lshr_b32 s{S_B}, s3, 2")
    a(f"s_mul_i32 s{S_T0}, s{S_B}, 24")
    a(f"s_add_u32 s4, s0, s{S_T0}")
    a(f"s_addc_u32 s5, s1, 0")
    a(f"s_load_dwordx2 s[{S_X}:{S_X+1}], s[4:5], 0")
    a(f"s_load_dwordx2 s[{S_W}:{S_W+1}], s[4:5], 8")
    a(f"s_load_dwordx2 s[{S_WO}:{S_WO+1}], s[4:5], 16")
    a(f"s_load_dwordx2 s[{S_OUT}:{S_OUT+1}], s[0:1], 48")
    a(f"s_load_dwordx2 s[{S_WS}:{S_WS+1}], s[0:1], 64")
    if timing:
        for i in range(13): a(f"s_mov_b32 s{70+2*i}, 0")
    ts(0)
    a(f"s_lshr_b32 s{S_I}, s2, 3")
    if 'xmap' in exp:
        a(f"s_and_b32 s{S_T2}, s3, 1")
        a(f"s_lshl_b32 s{S_T2}, s{S_T2}, 2")
        a(f"s_and_b32 s{S_T3}, s{S_I}, 3")
        a(f"s_add_u32 s{S_S}, s{S_T2}, s{S_T3}")
        a(f"s_lshr_b32 s{S_T4}, s{S_I}, 2")
        a(f"s_cmp_lt_u32 s3, 4")
        a(f"s_mov_b32 s{S_T2}, 0xFDB96420")
        a(f"s_cselect_b32 s{S_T2}, 0xECA87531, s{S_T2}")
        a(f"s_lshl_b32 s{S_T0}, s{S_T4}, 2")
        a(f"s_lshr_b32 s{S_T2}, s{S_T2}, s{S_T0}")
        a(f"s_and_b32 s{S_HP}, s{S_T2}, 15")
    else:
        a(f"s_lshr_b32 s{S_T2}, s3, 1")
        a(f"s_and_b32 s{S_T2}, s{S_T2}, 1")
        a(f"s_lshl_b32 s{S_T2}, s{S_T2}, 2")
        a(f"s_and_b32 s{S_T3}, s{S_I}, 3")
        a(f"s_add_u32 s{S_S}, s{S_T2}, s{S_T3}")
        a(f"s_and_b32 s{S_T2}, s3, 1")
        a(f"s_lshl_b32 s{S_T2}, s{S_T2}, 3")
        a(f"s_lshr_b32 s{S_T4}, s{S_I}, 2")
        a(f"s_add_u32 s{S_HP}, s{S_T2}, s{S_T4}")
    a(f"s_lshl_b32 s{S_T3}, s{S_T3}, 1")
    a(f"s_add_u32 s{S_C}, s{S_T4}, s{S_T3}")
    a(f"s_cmp_ge_u32 s{S_C}, 9")
    a(f"s_cselect_b32 s{S_T3}, 9, 0")
    a(f"s_sub_u32 s{S_C}, s{S_C}, s{S_T3}")
    if 'norot' in exp: a(f"s_mov_b32 s{S_C}, 0")
    for key, mul in (('rot2', 2), ('rot3', 3)):
        if key in exp or (key == 'rot2' and 'rot' not in exp):
            a(f"s_lshr_b32 s{S_C}, s{S_T4}, 1")
            a(f"s_and_b32 s{S_T3}, s{S_I}, 3")
            a(f"s_add_u32 s{S_C}, s{S_C}, s{S_T3}")
            a(f"s_mul_i32 s{S_C}, s{S_C}, {mul}")
            for _ in range(2):
                a(f"s_cmp_ge_u32 s{S_C}, 9")
                a(f"s_cselect_b32 s{S_T3}, 9, 0")
                a(f"s_sub_u32 s{S_C}, s{S_C}, s{S_T3}")
    if 'rot4' in exp:
        a(f"s_lshr_b32 s{S_C}, s{S_T4}, 2")
        a(f"s_and_b32 s{S_T3}, s{S_I}, 3")
        a(f"s_lshr_b32 s{S_T3}, s{S_T3}, 1")
        a(f"s_add_u32 s{S_C}, s{S_C}, s{S_T3}")
        a(f"s_mul_i32 s{S_C}, s{S_C}, 3")
    a(f"s_lshl_b32 s{S_T0}, s{S_B}, 4")
    a(f"s_add_u32 s{S_T0}, s{S_T0}, s{S_HP}")
    a(f"s_lshl_b32 s{S_T0}, s{S_T0}, 3")
    a(f"s_add_u32 s{S_IDX}, s{S_T0}, s{S_S}")
    a(f"s_lshl_b32 s{S_T0}, s{S_B}, 3")
    a(f"s_add_u32 s{S_GRP}, s{S_T0}, s{S_S}")
    a(f"v_lshrrev_b32 v{t}, 6, v0")
    a(f"v_and_b32 v{L}, 63, v0")
    a(f"v_readfirstlane_b32 s{S_WID}, v{t}")
    for (r, n) in ((S_X, 2359296), (S_W, 1990656), (S_WO, 663552), (S_WS, 268435456), (S_OUT, 4718592)):
        a(f"s_mov_b32 s{r+2}, {n}")
        a(f"s_mov_b32 s{r+3}, 0x00020000")
    a(f"s_and_b32 s{S_M}, s{S_WID}, 3")
    a(f"s_lshr_b32 s{S_HEAD}, s{S_WID}, 2")
    a(f"s_sub_u32 s{S_MB}, 7, s{S_M}")
    a(f"s_cmp_lt_u32 s{S_WID}, 4")
    a("s_cbranch_scc1 L_COMPUTE")

    emit_masks = lambda: emit_masks_(a)
    emit_p2_patterns = lambda: emit_p2_patterns_(a)

    a(f"s_sub_u32 s{S_L}, s{S_WID}, 4")
    a(f"v_lshrrev_b32 v{t}, 3, v{L}")
    a(f"v_mul_u32_u24 v{t}, 1152, v{t}")
    a(f"v_lshrrev_b32 v{t+1}, 4, v{L}")
    a(f"v_and_b32 v{t+2}, 7, v{L}")
    a(f"v_xor_b32 v{t+3}, v{t+2}, v{t+1}")
    a(f"v_lshl_add_u32 v{V_AX}, v{t+3}, 4, v{t}")
    a(f"v_xor_b32 v{t+3}, 4, v{t+3}")
    a(f"v_lshl_add_u32 v{V_AX+1}, v{t+3}, 4, v{t}")
    a(f"s_mul_i32 s{S_T0}, s{S_HP}, 72")
    a(f"s_and_b32 s{S_T0}, s{S_T0}, 0xfffffff0")
    a(f"v_and_b32 v{t+2}, 15, v{L}")
    a(f"v_mul_u32_u24 v{t+4}, 3456, v{t+1}")
    a(f"v_add_u32 v{t+4}, s{S_T0}, v{t+4}")
    for var in range(2):
        a(f"v_lshlrev_b32 v{t+3}, 1, v{t+1}")
        a(f"v_sub_u32 v{t+3}, v{t+2}, v{t+3}")
        if var: a(f"v_subrev_u32 v{t+3}, 8, v{t+3}")
        a(f"v_and_b32 v{t+3}, 15, v{t+3}")
        a(f"v_min_u32 v{t+3}, 14, v{t+3}")
        a(f"v_mul_u32_u24 v{t+5}, 13, v{t+3}")
        a(f"v_lshrrev_b32 v{t+5}, 6, v{t+5}")
        a(f"v_mul_u32_u24 v{t+6}, 5, v{t+5}")
        a(f"v_sub_u32 v{t+6}, v{t+3}, v{t+6}")
        a(f"v_mul_u32_u24 v{t+5}, 1152, v{t+5}")
        a(f"v_lshl_add_u32 v{t+6}, v{t+6}, 4, v{t+5}")
        a(f"v_add_u32 v{V_AX+2+var}, v{t+4}, v{t+6}")
    for i in range(8):
        a(f"v_add_u32 v{V_LDX+i}, {i*9216-(i&3)*1024}, v{V_AX+(i&1)}")
    for i in range(4):
        a(f"v_add_u32 v{V_LDW+i}, {i*4*3456-i*1024}, v{V_AX+2+(i>>1)}")
    a(f"s_lshl_b32 s{S_T0}, s{S_S}, 8")
    a(f"s_lshl_b32 s{S_T1}, s{S_L}, 6")
    a(f"s_add_u32 s{S_T0}, s{S_T0}, s{S_T1}")
    a(f"s_mul_i32 s{S_XB}, s{S_T0}, 1152")
    a(f"s_mul_i32 s{S_WB}, s{S_L}, {16*3456}")
    a(f"s_lshl_b32 s{S_LX}, s{S_L}, 13")
    a(f"s_lshl_b32 s{S_LW}, s{S_L}, 12")
    a(f"s_add_u32 s{S_LW}, s{S_LW}, 32768")
    a(f"s_mov_b32 s{S_SB}, 0")
    def chunk_pre():
        a(f"s_lshl_b32 s{S_T0}, s{S_C}, 7")
        a(f"s_add_u32 s{S_T0}, s{S_T0}, s{S_XB}")
        a(f"s_mul_i32 s{S_T1}, s{S_C}, {64*3456}")
        a(f"s_add_u32 s{S_T1}, s{S_T1}, s{S_WB}")
        a(f"s_add_u32 s{S_T2}, s{S_SB}, s{S_LW}")
        a(f"s_add_u32 s{S_T3}, s{S_SB}, s{S_LX}")
        a(f"s_add_u32 s{S_C}, s{S_C}, 1")
        a(f"s_cmp_eq_u32 s{S_C}, 9")
        a(f"s_cselect_b32 s{S_C}, 0, s{S_C}")
        a(f"s_add_u32 s{S_SB}, s{S_SB}, {STAGE}")
        a(f"s_cmp_eq_u32 s{S_SB}, {3*STAGE}")
        a(f"s_cselect_b32 s{S_SB}, 0, s{S_SB}")
    def chunk_w():
        a(f"s_mov_b32 m0, s{S_T2}")
        a("s_nop 0")
        for i in range(4):
            a(f"buffer_load_dwordx4 v{V_LDW+i}, s[{S_W}:{S_W+3}], s{S_T1} offen offset:{i*1024} lds")
    def chunk_x(lo, hi):
        for i in range(lo, hi):
            if i == lo or i == 4:
                a(f"s_add_u32 m0, s{S_T3}, {(i&~3)*1024}")
                a("s_nop 0")
            a(f"buffer_load_dwordx4 v{V_LDX+i}, s[{S_X}:{S_X+3}], s{S_T0} offen offset:{(i&3)*1024} lds")
    chunk_pre()
    a("s_waitcnt lgkmcnt(0)")
    chunk_w(); chunk_x(0, 8)
    chunk_pre(); chunk_w(); chunk_x(0, 2)
    a("s_waitcnt vmcnt(6)")
    a("s_barrier")
    chunk_x(2, 8)
    chunk_pre()
    a(f"s_mov_b32 s{S_K}, 2")
    a.lab("L_LD")
    chunk_w(); chunk_x(0, 8)
    chunk_pre()
    a(f"s_add_u32 s{S_K}, s{S_K}, 1")
    a(f"s_cmp_lt_u32 s{S_K}, 9")
    a("s_waitcnt vmcnt(12)")
    a("s_barrier")
    a("s_cbranch_scc1 L_LD")
    a(f"s_lshl_b32 s{S_T0}, s{S_L}, 6")
    a(f"v_add_u32 v{t}, s{S_T0}, v{L}")
    a(f"v_mul_u32_u24 v{t+1}, 7282, v{t}")
    a(f"v_lshrrev_b32 v{t+1}, 16, v{t+1}")
    a(f"v_mul_u32_u24 v{t+2}, 9, v{t+1}")
    a(f"v_sub_u32 v{t+2}, v{t}, v{t+2}")
    a(f"v_mul_u32_u24 v{t+1}, 1152, v{t+1}")
    a(f"v_lshl_add_u32 v{t+1}, v{t+2}, 7, v{t+1}")
    a(f"s_mul_i32 s{S_T0}, s{S_I}, {18*1152}")
    a(f"v_cmp_gt_u32 vcc, 162, v{t}")
    a(f"v_cndmask_b32_e64 v{t+1}, 0, v{t+1}, vcc")
    a(f"buffer_load_dword v255, v{t+1}, s[{S_WO}:{S_WO+3}], s{S_T0} offen")
    emit_masks()
    emit_p2_patterns()
    a(f"v_mul_u32_u24 v{t+1}, 7282, v{L}")
    a(f"v_lshrrev_b32 v{t+1}, 16, v{t+1}")
    a(f"v_mul_u32_u24 v{t+2}, 9, v{t+1}")
    a(f"v_sub_u32 v{t+2}, v{L}, v{t+2}")
    a(f"v_mul_u32_u24 v{t+1}, 1152, v{t+1}")
    a(f"v_lshl_add_u32 v{t+1}, v{t+2}, 4, v{t+1}")
    a(f"s_and_b32 s{S_T0}, s{S_HP}, 7")
    a(f"s_mul_i32 s{S_T0}, s{S_T0}, 144")
    a(f"v_add_u32 v{V_WOV}, s{S_T0}, v{t+1}")
    for j in range(1, 4): a(f"v_add_u32 v{V_WOV+j}, {j*(8064-1008)}, v{V_WOV}")
    a(f"s_mul_i32 s{S_T0}, s{S_L}, {21*1008}")
    a(f"s_mul_i32 s{S_T1}, s{S_L}, {21*8064}")
    a("s_waitcnt vmcnt(1)")
    a("s_barrier")
    WO = f"s[{S_WO}:{S_WO+3}]"
    NW1 = 8 if 'wo8' not in exp else 4
    a(f"s_bitset0_b64 exec, 63")
    for j in range(21):
        if j == NW1:
            a(f"s_mov_b64 exec, -1")
            a("s_barrier")
            a(f"s_bitset0_b64 exec, 63")
        if j == 19:
            a(f"s_cmp_eq_u32 s{S_L}, 3")
            a("s_cbranch_scc0 L_WO_N")
            a(f"s_mov_b64 exec, 0x3ffff")
            a(f"buffer_load_dwordx4 v{V_WOV+(j&3)}, {WO}, s{S_T2} offen offset:{(j&3)*1008} lds")
            a("s_branch L_WO_DONE")
            a.lab("L_WO_N")
        if j % 4 == 0:
            a(f"s_add_u32 m0, s{S_T0}, {j*1008}")
            a(f"s_add_u32 s{S_T2}, s{S_T1}, {j*8064}")
        a(f"buffer_load_dwordx4 v{V_WOV+(j&3)}, {WO}, s{S_T2} offen offset:{(j&3)*1008} lds")
    a.lab("L_WO_DONE")
    a(f"s_mov_b64 exec, -1")
    for r in range(16):
        a(f"v_mov_b32 v{OA+r}, 0")
        a(f"v_mov_b32 v{OB+r}, 0")
    a(f"v_lshlrev_b32 v{V_PA}, 4, v{L}")
    a(f"s_lshl_b32 s{S_T0}, s{S_L}, 10")
    a(f"v_add_u32 v{V_PA}, s{S_T0}, v{V_PA}")
    a(f"v_add_u32 v{V_PA+1}, {KV_OWN}, v{V_PA}")
    a(f"s_mul_i32 s{S_T1}, s{S_IDX}, 36864")
    a("s_barrier")
    a(f"s_cmp_eq_u32 s{S_S}, 7")
    a("s_cbranch_scc1 L_NOPUB")
    order = [8, 7, 6, 5, 4, 3, 2, 1, 0]
    for c, i in enumerate(order):
        a(f"ds_read_b128 v[{VH+4*c}:{VH+4*c+3}], v{V_PA+1} offset:{i*4096}")
    for c, i in enumerate(order[:5]):
        a(f"s_waitcnt lgkmcnt({8-c})")
        a(f"s_add_u32 s{S_T2}, s{S_T1}, {i*4096}")
        a(f"buffer_store_dwordx4 v[{VH+4*c}:{VH+4*c+3}], v{V_PA}, {WS}, s{S_T2} offen sc1")
    a.lab("L_NOPUB")
    a("s_branch L_P2")

    a.lab("L_COMPUTE")
    a(f"v_and_b32 v{t}, 15, v{L}")
    a(f"v_lshrrev_b32 v{t+1}, 4, v{L}")
    a(f"v_lshrrev_b32 v{t+2}, 1, v{t}")
    a(f"s_lshl_b32 s{S_T0}, s{S_WID}, 6")
    a(f"v_add_u32 v{t+3}, s{S_T0}, v{t}")
    a(f"v_lshlrev_b32 v{t+3}, 7, v{t+3}")
    a(f"v_xor_b32 v{t+4}, v{t+1}, v{t+2}")
    a(f"v_lshlrev_b32 v{t+5}, 4, v{t+4}")
    a(f"v_add_u32 v{V_AX}, v{t+3}, v{t+5}")
    a(f"v_xor_b32 v{t+4}, 4, v{t+4}")
    a(f"v_lshlrev_b32 v{t+5}, 4, v{t+4}")
    a(f"v_add_u32 v{V_AX+1}, v{t+3}, v{t+5}")
    a(f"v_bfe_u32 v{t}, v{L}, 2, 2")
    a(f"v_and_b32 v{t+2}, 3, v{L}")
    a(f"v_and_b32 v{t+3}, 1, v{t+1}")
    a(f"v_lshl_add_u32 v{t+3}, v{t+3}, 2, v{t}")
    a(f"v_lshlrev_b32 v{t+3}, 5, v{t+3}")
    a(f"v_lshl_add_u32 v{t+4}, v{t+1}, 3, v{t}")
    a(f"v_lshlrev_b32 v{t+4}, 8, v{t+4}")
    a(f"v_add_u32 v{t+4}, 32768, v{t+4}")
    a(f"v_lshlrev_b32 v{t+5}, 3, v{t+2}")
    a(f"s_and_b32 s{S_T1}, s{S_HP}, 1")
    a(f"s_lshl_b32 s{S_T1}, s{S_T1}, 3")
    a(f"v_add3_u32 v{t+5}, v{t+5}, v{t+3}, s{S_T1}")
    for Tn in range(6):
        off = 80*(Tn >> 1) + (40 if Tn & 1 else 0)
        a(f"v_add_u32 v{t+6}, {off}, v{t+5}")
        a(f"v_and_b32 v{t+6}, 255, v{t+6}")
        a(f"v_add_u32 v{V_AW+Tn}, v{t+4}, v{t+6}")
    a(f"v_min_u32 v{t+6}, 2, v{t+2}")
    a(f"v_mul_u32_u24 v{t+6}, 80, v{t+6}")
    a(f"v_add3_u32 v{t+6}, v{t+6}, v{t+3}, s{S_T1}")
    a(f"v_add_u32 v{t+6}, 32, v{t+6}")
    a(f"v_and_b32 v{t+6}, 255, v{t+6}")
    a(f"v_add_u32 v{V_AW+6}, v{t+4}, v{t+6}")
    a(f"v_and_b32 v{t}, 15, v{L}")
    a(f"v_lshrrev_b32 v{t+1}, 4, v{L}")
    a(f"v_and_b32 v{t+2}, 1, v{t+1}")
    a(f"v_lshl_add_u32 v{t+2}, v{t+2}, 4, v{t}")
    a(f"v_lshrrev_b32 v{t+3}, 2, v{t}")
    a(f"v_lshrrev_b32 v{t+4}, 3, v{t}")
    a(f"v_xor_b32 v{t+3}, v{t+3}, v{t+4}")
    a(f"v_lshrrev_b32 v{t+4}, 1, v{t+1}")
    a(f"v_xor_b32 v{t+3}, v{t+3}, v{t+4}")
    a(f"v_and_b32 v{t+3}, 1, v{t+3}")
    a(f"v_lshlrev_b32 v{t+3}, 4, v{t+3}")
    a(f"v_lshl_add_u32 v{t+3}, v{t+2}, 5, v{t+3}")
    a(f"s_mul_i32 s{S_T0}, s{S_WID}, {2*TILE}")
    a(f"s_add_u32 s{S_T0}, s{S_T0}, {KV_OWN}")
    a(f"s_mul_i32 s{S_T1}, s{S_WID}, {2*QTILE}")
    a(f"s_add_u32 s{S_T1}, s{S_T1}, {Q_BASE}")
    a(f"v_add_u32 v{vEK}, s{S_T0}, v{t+3}")
    a(f"v_add_u32 v{vEQ}, s{S_T1}, v{t+3}")
    a(f"v_mul_u32_u24 v{t+4}, 72, v{t}")
    a(f"v_lshl_add_u32 v{t+5}, v{t+1}, 3, v{t+4}")
    a(f"v_add_u32 v{t+5}, 2304, v{t+5}")
    a(f"v_add_u32 v{vEV}, s{S_T0}, v{t+5}")
    a(f"v_lshlrev_b32 v{t+5}, 3, v{t}")
    a(f"v_add_u32 v{t+5}, 2048, v{t+5}")
    a(f"v_add_u32 v{t+6}, s{S_T1}, v{t+5}")
    a(f"v_add_u32 v{t+7}, s{S_T0}, v{t+5}")
    a(f"v_add_u32 v{t+4}, {2304+32}, v{t+4}")
    a(f"v_add_u32 v{t+4}, s{S_T0}, v{t+4}")
    a(f"v_mov_b32 v{vDr}, 128")
    a(f"v_mov_b32 v{vDt}, {TILE}")
    a(f"v_mov_b32 v{vF}, 1.0")
    a(f"v_mov_b32 v{vE6}, v{t+7}")
    a(f"v_cmp_eq_u32 vcc, 0, v{t+1}")
    a(f"v_mov_b32 v{t+5}, {QTILE}")
    a(f"v_mov_b32 v{vC}, {f32bits(QSCALE):#x}")
    a(f"v_cndmask_b32 v{vE6}, v{vE6}, v{t+6}, vcc")
    a(f"v_cndmask_b32 v{vDt}, v{vDt}, v{t+5}, vcc")
    a(f"v_cndmask_b32 v{vF}, v{vF}, v{vC}, vcc")
    a(f"v_cmp_eq_u32 vcc, 2, v{t+1}")
    a(f"v_mov_b32 v{t+5}, 1152")
    a(f"v_mov_b32 v{vC+1}, v{vC}")
    a(f"v_cndmask_b32 v{vE6}, v{vE6}, v{t+4}, vcc")
    a(f"v_cndmask_b32 v{vDr}, v{vDr}, v{t+5}, vcc")
    a(f"v_mov_b32 v{vF+1}, v{vF}")
    a("s_waitcnt lgkmcnt(0)")
    if 'nocp' not in exp:
        a(f"s_cmp_lg_u32 s{S_WID}, 3")
        a("s_cbranch_scc1 L_NOCP")
        a(f"s_getpc_b64 s[{S_RET}:{S_RET+1}]")
        a.lab("L_PCREF")
        a(f"s_sub_u32 s{S_RET}, s{S_RET}, L_PCREF-{NAME}_kernel")
        a(f"s_subb_u32 s{S_RET+1}, s{S_RET+1}, 0")
        a(f"s_mul_i32 s{S_T0}, s{S_I}, {5*128}")
        a(f"v_lshlrev_b32 v{t}, 7, v{L}")
        a(f"v_add_u32 v{t}, s{S_T0}, v{t}")
        a(f"s_mov_b32 s{S_T1}, L_END-{NAME}_kernel")
        a(f"v_cmp_gt_u32 vcc, s{S_T1}, v{t}")
        a(f"s_and_b64 vcc, vcc, 31")
        a(f"s_and_saveexec_b64 s[{S_SAVE}:{S_SAVE+1}], vcc")
        a("s_cbranch_execz L_NOCP2")
        a(f"global_load_dword v{V_TL}, v{t}, s[{S_RET}:{S_RET+1}]")
        a.lab("L_NOCP2")
        rest_exec()
        a.lab("L_NOCP")
    a(f"s_cmp_lg_u32 s{S_WID}, 0")
    a("s_cbranch_scc1 L_NOG0")
    a(f"s_lshl_b32 s{S_T0}, s{S_IDX}, 8")
    a(f"s_add_u32 s{S_T0}, s{S_T0}, {WS_FLAG}")
    a(f"s_lshl_b32 s{S_T1}, s{S_GRP}, 12")
    a(f"s_add_u32 s{S_T1}, s{S_T1}, {WS_OF}")
    a(f"v_mov_b32 v{t}, 0")
    a(f"buffer_load_dword v{V_TG}, v{t}, {WS}, s{S_T0} offen sc1")
    a(f"s_sub_u32 s{S_T0}, s{S_T0}, 256")
    a(f"s_max_u32 s{S_T0}, s{S_T0}, {WS_FLAG}")
    a(f"buffer_load_dword v{V_TG+1}, v{t}, {WS}, s{S_T0} offen sc1")
    a(f"buffer_load_dword v{V_TG+2}, v{t}, {WS}, s{S_T1} offen sc1")
    a.lab("L_NOG0")
    for i in range(112):
        a(f"v_mov_b32 v{V_ACC+i}, 0")
    emit_masks()
    emit_p2_patterns()
    a(f"v_mov_b32 v{t+2}, 0x3f803f80")
    a(f"v_mov_b32 v{t+3}, 0x3f803f80")
    a(f"v_mul_u32_u24 v{t+4}, 576, v{L}")
    a(f"v_add_u32 v{t+4}, {MISC}, v{t+4}")
    save_exec(15)
    a(f"ds_write_b64 v{t+4}, v[{t+2}:{t+3}]")
    rest_exec()
    a(f"s_cmp_lg_u32 s{S_WID}, 0")
    a("s_cbranch_scc1 L_NOG1")
    a("s_waitcnt vmcnt(0)")
    for i in range(3): a(f"v_add_u32 v{V_TG+i}, {TAG_INC:#x}, v{V_TG+i}")
    a(f"v_mov_b32 v{V_TG+3}, 0")
    a(f"v_mov_b32 v{t+4}, {TAGS_LDS}")
    save_exec(1)
    a(f"ds_write_b128 v{t+4}, v[{V_TG}:{V_TG+3}]")
    for i in range(4): a(f"v_mov_b32 v{V_TG+i}, 0")
    a(f"ds_write_b128 v{t+4}, v[{V_TG}:{V_TG+3}] offset:16")
    rest_exec()
    a.lab("L_NOG1")
    a("s_waitcnt lgkmcnt(0)")
    a("s_barrier")
    if "tsh" not in exp and "tsj" not in exp: ts(1)
    def reads(setb, ks):
        xs = [f"ds_read_b128 v[{setb+4*mt}:{setb+4*mt+3}], v{V_AX+ks} offset:{mt*2048}" for mt in range(4)]
        ws = []
        for Tn in range(7):
            b = setb + 16 + 4*Tn
            ws.append(f"ds_read_b64_tr_b16 v[{b}:{b+1}], v{V_AW+Tn} offset:{ks*8192}")
            ws.append(f"ds_read_b64_tr_b16 v[{b+2}:{b+3}], v{V_AW+Tn} offset:{ks*8192+1024}")
        return [xs[0], ws[0], ws[1], xs[1], ws[2], ws[3], xs[2], ws[4], ws[5], xs[3]] + ws[6:]
    def mfmas(setb):
        m = []
        for Tn in range(7):
            for mt in range(4):
                d = V_ACC + (mt*7+Tn)*4
                m.append(f"v_mfma_f32_16x16x32_bf16 v[{d}:{d+3}], v[{setb+16+4*Tn}:{setb+16+4*Tn+3}], v[{setb+4*mt}:{setb+4*mt+3}], v[{d}:{d+3}]")
        return m
    def interleave(ms, extra, per=1):
        ri = 0
        for i, m in enumerate(ms):
            a(m)
            for _ in range(per):
                if ri < len(extra): a(extra[ri]); ri += 1
        while ri < len(extra):
            a(extra[ri]); ri += 1
    for i in range(4): a(f"v_mov_b32 v{V_TG+i}, -1")
    a(f"v_lshlrev_b32 v{V_TL+1}, 4, v{L}")
    a(f"s_lshl_b32 s{S_XB}, s{S_GRP}, 18")
    a(f"s_add_u32 s{S_XB}, s{S_XB}, {WS_O}")
    a(f"s_lshl_b32 s{S_T0}, s{S_WID}, 16")
    a(f"s_add_u32 s{S_XB}, s{S_XB}, s{S_T0}")
    a(f"s_lshl_b32 s{S_T0}, s{S_HP}, 10")
    a(f"s_add_u32 s{S_XB}, s{S_XB}, s{S_T0}")
    a(f"s_lshl_b32 s{S_WB}, s{S_GRP}, 15")
    a(f"s_add_u32 s{S_WB}, s{S_WB}, {WS_OR}")
    a(f"s_lshl_b32 s{S_T0}, s{S_HP}, 1")
    a(f"s_and_b32 s{S_T1}, s{S_WID}, 1")
    a(f"s_add_u32 s{S_T0}, s{S_T0}, s{S_T1}")
    a(f"s_lshl_b32 s{S_T0}, s{S_T0}, 10")
    a(f"s_add_u32 s{S_WB}, s{S_WB}, s{S_T0}")
    for rd in reads(V_SET0, 0): a(rd)
    a(f"s_mov_b32 s{S_K}, 0")
    a(f"s_mov_b32 s{S_SB}, 0")
    if 'tb' in exp: a(f"v_mov_b32 v{V_TL}, 0")
    a.lab("L_GEMM")
    a(f"s_cmp_ge_u32 s{S_K}, 5")
    a("s_cbranch_scc1 L_GEMM_NS")
    a(f"s_cmp_eq_u32 s{S_K}, 4")
    a(f"s_cselect_b32 s{S_XB}, s{S_WB}, s{S_XB}")
    a(f"buffer_store_dwordx4 v[{V_TG}:{V_TG+3}], v{V_TL+1}, {WS}, s{S_XB} offen sc1")
    a(f"s_add_u32 s{S_XB}, s{S_XB}, 16384")
    a.lab("L_GEMM_NS")
    a("s_waitcnt lgkmcnt(0)")
    if 'tb' in exp:
        a(f"s_sub_u32 s92, s92, s70")
        a(f"s_mov_b32 m0, s{S_K}")
        a("s_nop 4")
        a(f"v_writelane_b32 v{V_TL}, s92, m0")
    sal = [f"s_add_u32 s{S_SB}, s{S_SB}, 1", f"s_cmp_eq_u32 s{S_SB}, 3", f"s_mov_b32 s{S_T0}, {STAGE}",
           f"s_cselect_b32 s{S_T0}, {(-2*STAGE) & 0xffffffff}, s{S_T0}", f"s_cselect_b32 s{S_SB}, 0, s{S_SB}"]
    interleave(mfmas(V_SET0), reads(V_SET1, 1) + sal)
    a("s_waitcnt lgkmcnt(0)")
    a("s_barrier")
    if 'tb' in exp: a("s_memtime s[92:93]")
    rd = reads(V_SET0, 0)
    adds = [f"v_add_u32 v{V_AX+i}, s{S_T0}, v{V_AX+i}" for i in range(9)]
    ex = [adds[0], adds[2], rd[0], rd[1], rd[2], adds[3], rd[3], rd[4], rd[5], adds[4], rd[6], rd[7], rd[8], rd[9],
          adds[5], rd[10], rd[11], adds[6], rd[12], rd[13], adds[7], rd[14], rd[15], adds[8], rd[16], rd[17], adds[1],
          f"s_add_u32 s{S_K}, s{S_K}, 1", f"s_cmp_lt_u32 s{S_K}, 9"]
    ms = mfmas(V_SET1)
    ri = 0
    for i, m in enumerate(ms):
        a(m)
        n = 2 if i < 6 else 1
        for _ in range(n):
            if ri < len(ex): a(ex[ri]); ri += 1
    assert ri == len(ex)
    a("s_cbranch_scc1 L_GEMM")
    if "tsh" not in exp and "tsj" not in exp: ts(2)
    a.c("phase-1 epilogue")
    a("s_waitcnt lgkmcnt(0)")
    acc = lambda mt, Tn: V_ACC + (mt*7+Tn)*4
    e = [V_SET0]
    def qk_tile(Tn, base_reg, pstride, hoff):
        for p in range(2):
            R = e[0]; e[0] += 4
            da, db = acc(2*p, Tn), acc(2*p+1, Tn)
            a(f"v_cvt_pk_bf16_f32 v{R}, v{da}, v{da+1}")
            a(f"v_cvt_pk_bf16_f32 v{R+2}, v{db}, v{db+1}")
            a(f"v_cvt_pk_bf16_f32 v{R+1}, v{da+2}, v{da+3}")
            a(f"v_cvt_pk_bf16_f32 v{R+3}, v{db+2}, v{db+3}")
            a("s_nop 0")
            a(f"v_permlane16_swap_b32 v{R}, v{R+2}")
            a(f"v_permlane16_swap_b32 v{R+1}, v{R+3}")
            a(f"ds_write_b128 v{base_reg}, v[{R}:{R+3}] offset:{p*pstride+hoff}")
    a("s_nop 3")
    qk_tile(2, vEK, TILE, 0)
    qk_tile(3, vEK, TILE, 1024)
    for Tn in (4, 5):
        for mt in range(4):
            R = e[0]; e[0] += 2
            d = acc(mt, Tn)
            a(f"v_cvt_pk_bf16_f32 v{R}, v{d}, v{d+1}")
            a(f"v_cvt_pk_bf16_f32 v{R+1}, v{d+2}, v{d+3}")
            a(f"ds_write_b64 v{vEV}, v[{R}:{R+1}] offset:{(mt>>1)*TILE + (mt&1)*1152 + (40 if Tn==5 else 0)}")
    R6 = e[0]; e[0] += 8
    for mt in range(4):
        d = acc(mt, 6)
        a(f"v_pk_mul_f32 v[{d}:{d+1}], v[{d}:{d+1}], v[{vF}:{vF+1}]")
        a(f"v_pk_mul_f32 v[{d+2}:{d+3}], v[{d+2}:{d+3}], v[{vF}:{vF+1}]")
    for mt in range(4):
        d = acc(mt, 6)
        a(f"v_cvt_pk_bf16_f32 v{R6+2*mt}, v{d}, v{d+1}")
        a(f"v_cvt_pk_bf16_f32 v{R6+2*mt+1}, v{d+2}, v{d+3}")
    a(f"v_add_u32 v{t}, v{vE6}, v{vDr}")
    a(f"v_add_u32 v{t+1}, v{vE6}, v{vDt}")
    a(f"v_add_u32 v{t+2}, v{t+1}, v{vDr}")
    a(f"s_mov_b64 s[{S_SAVE}:{S_SAVE+1}], exec")
    a(f"s_mov_b32 exec_hi, 0x0000ffff")
    a(f"ds_write_b64 v{vE6}, v[{R6}:{R6+1}]")
    a(f"ds_write_b64 v{t}, v[{R6+2}:{R6+3}]")
    a(f"ds_write_b64 v{t+1}, v[{R6+4}:{R6+5}]")
    a(f"ds_write_b64 v{t+2}, v[{R6+6}:{R6+7}]")
    rest_exec()
    a("s_waitcnt lgkmcnt(0)")
    a("s_barrier")
    a(f"v_mov_b32 v{t}, {TAGS_LDS+8}")
    a(f"ds_read_b32 v{t+3}, v{t}")
    a(f"s_lshl_b32 s{S_OFS}, s{S_GRP}, 12")
    a(f"s_add_u32 s{S_OFS}, s{S_OFS}, {WS_OF}")
    a("s_waitcnt vmcnt(0) lgkmcnt(0)")
    a(f"v_readfirstlane_b32 s{S_TAGO}, v{t+3}")
    oflag(a, "L_CLR", CNTOB, 128, save_exec, rest_exec, last=3)
    for mt in range(4):
        for Tn in (0, 1):
            d = acc(mt, Tn)
            a(f"v_pk_mul_f32 v[{d}:{d+1}], v[{d}:{d+1}], v[{vC}:{vC+1}]")
            a(f"v_pk_mul_f32 v[{d+2}:{d+3}], v[{d+2}:{d+3}], v[{vC}:{vC+1}]")
    e[0] = 84
    qk_tile(0, vEQ, QTILE, 0)
    qk_tile(1, vEQ, QTILE, 1024)
    for r in range(16):
        a(f"v_mov_b32 v{OA+r}, 0")
        a(f"v_mov_b32 v{OB+r}, 0")

    a.lab("L_P2")
    a(f"v_mov_b32 v{t}, {TAGS_LDS}")
    a(f"ds_read_b128 v[{V_TG}:{V_TG+3}], v{t}")
    a("s_waitcnt lgkmcnt(0)")
    a("s_barrier")
    ts(3)
    if debug_stage == 1:
        a(f"s_lshl_b32 s{S_T0}, s{S_IDX}, 16")
        a(f"v_lshlrev_b32 v{t}, 4, v0")
        for i in range(7):
            a(f"v_add_u32 v{t+1}, {KV_OWN + i*8192}, v{t}")
            a(f"ds_read_b128 v[40:43], v{t+1}")
            a("s_waitcnt lgkmcnt(0)")
            a(f"v_add_u32 v{t+2}, {i*8192}, v{t}")
            a(f"buffer_store_dwordx4 v[40:43], v{t+2}, {WS}, s{S_T0} offen")
            a("s_waitcnt vmcnt(0)")
        a("s_branch L_FIN")
    if debug_stage == 9:
        a("s_branch L_FIN")
    if debug_stage not in (1, 9):
        phase2(a, debug_stage, ts, exp, save_exec, rest_exec)
        phase3(a, debug_stage, ts, exp, save_exec, rest_exec)
    a.lab("L_FIN")
    if timing:
        a("s_waitcnt vmcnt(0) lgkmcnt(0)")
        a(f"{'s_memrealtime' if 'abs' in exp else 's_memtime'} s[94:95]")
        a("s_waitcnt lgkmcnt(0)")
        a(f"s_lshl_b32 s{S_T0}, s2, 3")
        a(f"s_add_u32 s{S_T0}, s{S_T0}, s{S_WID}")
        a(f"s_lshl_b32 s{S_T0}, s{S_T0}, 6")
        a(f"s_add_u32 s{S_T0}, s{S_T0}, {TIMING_OFF}")
        for i in range(13):
            a(f"s_sub_u32 s{S_T1}, s{70+2*i}, s70" if (i and 'abs' not in exp) else f"s_mov_b32 s{S_T1}, s{70+2*i}")
            a(f"s_cmp_eq_u32 s{70+2*i}, 0")
            a(f"s_cselect_b32 s{S_T1}, 0, s{S_T1}")
            a(f"v_mov_b32 v{40+i}, s{S_T1}")
        if 'tb' in exp:
            a(f"v_lshlrev_b32 v2, 2, v{V_LANE}")
            a(f"s_add_u32 s{S_T1}, s{S_T0}, {1<<20}")
            a(f"s_mov_b64 exec, 0xffff")
            a(f"buffer_store_dword v{V_TL}, v2, {WS}, s{S_T1} offen")
        a(f"v_mov_b32 v2, 0")
        a(f"s_mov_b64 exec, 1")
        for i in range(3):
            a(f"buffer_store_dwordx4 v[{40+4*i}:{43+4*i}], v2, {WS}, s{S_T0} offen offset:{16*i}")
        a(f"buffer_store_dword v52, v2, {WS}, s{S_T0} offen offset:48")
        a("s_waitcnt vmcnt(0)")
    a.lab("L_END")
    a("s_endpgm")
    a(f""".section .rodata,"a"
.p2align 6
.amdhsa_kernel {NAME}_kernel
  .amdhsa_next_free_vgpr 256
  .amdhsa_next_free_sgpr 102
  .amdhsa_accum_offset 256
  .amdhsa_group_segment_fixed_size 0
  .amdhsa_kernarg_size 72
  .amdhsa_user_sgpr_count 2
  .amdhsa_user_sgpr_kernarg_segment_ptr 1
  .amdhsa_system_sgpr_workgroup_id_x 1
.end_amdhsa_kernel""")
    return a.text()

WS = f"s[{S_WS}:{S_WS+3}]"

def spin_poll(a, name, check_lines, load_line, limit=2000000, first_done=False):
    a(f"s_mov_b32 s{S_CNT}, 0")
    if first_done: a(f"s_branch {name}_W")
    a.lab(name)
    a(load_line)
    a.lab(name + "_W")
    a(f"s_add_u32 s{S_CNT}, s{S_CNT}, 1")
    a("s_waitcnt vmcnt(0)")
    for l in check_lines: a(l)
    a(f"s_cbranch_scc1 {name}_OK")
    a(f"s_cmp_lt_u32 s{S_CNT}, {limit}")
    a(f"s_cbranch_scc1 {name}")
    a.lab(name + "_OK")

def lds_inc(a, addr, save_exec, rest_exec, rtn=None):
    t = T
    a(f"v_mov_b32 v{t}, {addr}")
    a(f"v_mov_b32 v{t+1}, 1")
    save_exec(1)
    if rtn is None: a(f"ds_add_u32 v{t}, v{t+1}")
    else: a(f"ds_add_rtn_u32 v{rtn}, v{t}, v{t+1}")
    rest_exec()

def lds_wait(a, name, addr, val):
    t = T
    a(f"v_mov_b32 v{t}, {addr}")
    a(f"s_mov_b32 s{S_CNT}, 0")
    a.lab(name)
    a(f"ds_read_b32 v{t+1}, v{t}")
    a(f"s_add_u32 s{S_CNT}, s{S_CNT}, 1")
    a("s_waitcnt lgkmcnt(0)")
    a(f"v_readfirstlane_b32 s{S_T0}, v{t+1}")
    a(f"s_cmp_ge_u32 s{S_T0}, {val}")
    a(f"s_cbranch_scc1 {name}_OK")
    a(f"s_cmp_lt_u32 s{S_CNT}, 20000000")
    a(f"s_cbranch_scc1 {name}")
    a.lab(name + "_OK")

def hook_point(a, tag):
    a(f"s_add_u32 s{S_U}, s{S_U}, 1")
    a(f"s_cmp_lg_u32 s{S_U}, s{S_HOOK}")
    a(f"s_cbranch_scc1 {tag}")
    a(f"s_call_b64 s[{S_RET2}:{S_RET2+1}], L_HOOK")
    a.lab(tag)

def run_code(a, name, QM, QR, O, exp):
    cnt = [0]
    def qk1(creg):
        c = "0" if creg is None else f"v[{creg}:{creg+15}]"
        a(f"v_mfma_f32_32x32x16_bf16 v[{VS}:{VS+15}], v[{VKF}:{VKF+3}], v[{QM}:{QM+3}], {c}")
    def qk2():
        a(f"v_mfma_f32_32x32x16_bf16 v[{VS}:{VS+15}], v[{VKR}:{VKR+3}], v[{QR}:{QR+3}], v[{VS}:{VS+15}]")
    def pv(V, P):
        a(f"v_mfma_f32_32x32x16_bf16 v[{O}:{O+15}], v[{V}:{V+3}], v[{P}:{P+3}], v[{O}:{O+15}]")
    def kread():
        a(f"ds_read_b128 v[{VKF}:{VKF+3}], v{A_K}")
        a(f"ds_read_b64 v[{VKR}:{VKR+1}], v{A_KR}")
    def kstep():
        a(f"v_add_u32 v{A_K}, v{ST_K}, v{A_K}")
        a(f"v_add_u32 v{A_KR}, v{ST_K}, v{A_KR}")
    def vread(V, off):
        a(f"ds_read_b64_tr_b16 v[{V}:{V+1}], v{A_V} offset:{off}")
        a(f"ds_read_b64_tr_b16 v[{V+2}:{V+3}], v{A_V} offset:{off+576}")
    def cvt(j): a(f"v_cvt_pk_bf16_f32 v{VP+j}, v{VE+2*j}, v{VE+2*j+1}")
    def ex(r): a(f"v_exp_f32 v{VE+r}, v{VS+r}")
    def unit(D):
        for r in range(8): ex(r)
        for j in range(4): cvt(j)
        ex(8); ex(9)
        a("s_waitcnt lgkmcnt(0)")
        pv(VVA, VP)
        for r in range(10, 16): ex(r)
        if D:
            qk1(V_MASK if D == "mask" else None)
            for j in range(4, 8): cvt(j)
            vread(VVA, 0)
            qk2()
            kstep()
            kread()
            pv(VVB, VP+4)
            vread(VVB, 1152)
            a(f"v_add_u32 v{A_V}, v{ST_V}, v{A_V}")
        else:
            a("s_nop 0")
            for j in range(4, 8): cvt(j)
            a("s_nop 1")
            pv(VVB, VP+4)
    a.lab(name)
    kread()
    a(f"s_cmp_eq_u32 s{S_N}, 1")
    a(f"s_cbranch_scc1 {name}_M1")
    kstep()
    a("s_waitcnt lgkmcnt(0)")
    qk1(None); qk2()
    vread(VVA, 0); kread(); vread(VVB, 1152)
    a(f"v_add_u32 v{A_V}, v{ST_V}, v{A_V}")
    a(f"s_sub_u32 s{S_N}, s{S_N}, 2")
    a.lab(name + "_BT")
    a(f"s_cmp_eq_u32 s{S_N}, 0")
    a(f"s_cbranch_scc1 {name}_MK0")
    a(f"s_sub_u32 s{S_E}, s{S_HOOK}, s{S_U}")
    a(f"s_min_u32 s{S_E}, s{S_E}, s{S_N}")
    a(f"s_sub_u32 s{S_N}, s{S_N}, s{S_E}")
    a(f"s_add_u32 s{S_U}, s{S_U}, s{S_E}")
    a(f"s_sub_u32 s{S_E}, s{S_E}, 1")
    a.lab(name + "_LP")
    unit("plain")
    a(f"s_sub_u32 s{S_E}, s{S_E}, 1")
    a("s_nop 1")
    a(f"s_cbranch_scc0 {name}_LP")
    a(f"s_cmp_lg_u32 s{S_U}, s{S_HOOK}")
    a(f"s_cbranch_scc1 {name}_BT")
    a(f"s_call_b64 s[{S_RET2}:{S_RET2+1}], L_HOOK")
    a(f"s_branch {name}_BT")
    a.lab(name + "_MK0")
    a("s_nop 3")
    a.lab(name + "_MK")
    unit("mask")
    hook_point(a, f"{name}_H1")
    a("s_nop 1")
    a.lab(name + "_FN")
    unit(None)
    hook_point(a, f"{name}_H2")
    a(f"s_setpc_b64 s[{S_RET}:{S_RET+1}]")
    a.lab(name + "_M1")
    a("s_waitcnt lgkmcnt(0)")
    qk1(V_MASK); qk2()
    vread(VVA, 0); vread(VVB, 1152)
    a("s_nop 7")
    a(f"s_branch {name}_FN")

def set_run(a, region, tile_sreg, n_lines, step):
    a(f"s_mul_i32 s{S_T0}, s{tile_sreg}, {TILE}" if tile_sreg is not None else f"s_mov_b32 s{S_T0}, 0")
    a(f"s_add_u32 s{S_T0}, s{S_T0}, {region}")
    a(f"v_add_u32 v{A_K}, s{S_T0}, v{B_K}")
    a(f"v_add_u32 v{A_KR}, s{S_T0}, v{B_KR}")
    a(f"v_and_b32 v{A_V}, s{S_T0}, v{MK_V}")
    a(f"v_add_u32 v{A_V}, v{B_V}, v{A_V}")
    a(f"v_mov_b32 v{ST_K}, {step & 0xffffffff:#x}")
    a(f"v_and_b32 v{ST_V}, v{ST_K}, v{MK_V}")
    for l in n_lines: a(l)

F_MD, F_MF, F_M = 190, 206, 222
S_FQ, S_FT, S_FK, S_FP, S_FI2 = 32+12, 45, 46, 47, 48

def safety_check(a, O, isB, qb_sreg, tag):
    t = T
    a(f"v_max3_f32 v{t}, |v{O}|, |v{O+1}|, |v{O+2}|")
    for k in range(3, 11, 2): a(f"v_max3_f32 v{t}, v{t}, |v{O+k}|, |v{O+k+1}|")
    a(f"v_max_f32 v{t}, v{t}, |v{O+11}|".replace("v_max_f32", "v_max_f32_e64"))
    a(f"v_mov_b32 v{t+1}, 0x21800000")
    a(f"v_mov_b32 v{t+2}, 0x5d800000")
    a(f"v_mov_b32 v{t+3}, 0x7f000000")
    a(f"v_cmp_nge_f32 vcc, v{O+12}, v{t+1}")
    a(f"v_cmp_nle_f32 s[{S_BAD}:{S_BAD+1}], v{O+12}, v{t+2}")
    a(f"s_or_b64 vcc, vcc, s[{S_BAD}:{S_BAD+1}]")
    a(f"v_cmp_nlt_f32 s[{S_BAD}:{S_BAD+1}], v{t}, v{t+3}")
    a(f"s_or_b64 vcc, vcc, s[{S_BAD}:{S_BAD+1}]")
    a("s_cmp_eq_u64 vcc, 0")
    a(f"s_cbranch_scc1 L_SAFE{tag}")
    a(f"s_mov_b32 s{S_FQ}, s{qb_sreg}")
    if isB:
        for r in range(8): a(f"v_swap_b32 v{QA_M+r}, v{QB_M+r}")
        for r in range(16): a(f"v_swap_b32 v{OA+r}, v{OB+r}")
    a(f"s_call_b64 s[{S_RET}:{S_RET+1}], L_FB")
    if isB:
        for r in range(8): a(f"v_swap_b32 v{QA_M+r}, v{QB_M+r}")
        for r in range(16): a(f"v_swap_b32 v{OA+r}, v{OB+r}")
    a.lab(f"L_SAFE{tag}")

def fallback_code(a):
    t = T; L = V_LANE
    a.lab("L_FB")
    a(f"v_and_b32 v{t}, 31, v{L}")
    a(f"v_lshrrev_b32 v{t+1}, 5, v{L}")
    a(f"v_lshlrev_b32 v{t+1}, 2, v{t+1}")
    a(f"v_sub_u32 v{t}, v{t}, v{t+1}")
    a(f"v_mov_b32 v{t+1}, {NEG:#x}")
    for r in range(16):
        jj = (r & 3) + 8*(r >> 2)
        a(f"v_cmp_le_i32 vcc, {jj}, v{t}")
        a("s_nop 1")
        a(f"v_cndmask_b32_e64 v{F_MD+r}, v{t+1}, 0, vcc")
        a(f"v_sub_f32 v{F_MF+r}, v{t+1}, v{F_MD+r}")
    a(f"v_mov_b32 v{F_M}, 0xff800000")
    a(f"s_mov_b32 s{S_FP}, 0")
    a.lab("L_FB_PASS")
    a(f"s_mov_b32 s{S_FI2}, 0")
    a.lab("L_FB_OWN")
    a(f"s_mul_i32 s{S_FT}, s{S_FI2}, {TILE}")
    a(f"s_add_u32 s{S_FT}, s{S_FT}, {KV_OWN}")
    a(f"s_cmp_eq_u32 s{S_FI2}, s{S_FQ}")
    a(f"s_cselect_b32 s{S_FK}, 1, 0")
    a(f"s_call_b64 s[{S_RET2}:{S_RET2+1}], L_FB_TILE")
    a(f"s_add_u32 s{S_FI2}, s{S_FI2}, 1")
    a(f"s_cmp_le_u32 s{S_FI2}, s{S_FQ}")
    a("s_cbranch_scc1 L_FB_OWN")
    a(f"s_cmp_eq_u32 s{S_S}, 0")
    a("s_cbranch_scc1 L_FB_PEND")
    a(f"s_mov_b32 s{S_FI2}, s{S_FQ}")
    a.lab("L_FB_HALO")
    a(f"s_mul_i32 s{S_FT}, s{S_FI2}, {TILE}")
    a(f"s_add_u32 s{S_FT}, s{S_FT}, {KV_HALO}")
    a(f"s_cmp_eq_u32 s{S_FI2}, s{S_FQ}")
    a(f"s_cselect_b32 s{S_FK}, 2, 0")
    a(f"s_call_b64 s[{S_RET2}:{S_RET2+1}], L_FB_TILE")
    a(f"s_add_u32 s{S_FI2}, s{S_FI2}, 1")
    a(f"s_cmp_le_u32 s{S_FI2}, 7")
    a("s_cbranch_scc1 L_FB_HALO")
    a.lab("L_FB_PEND")
    a(f"s_cmp_eq_u32 s{S_FP}, 1")
    a("s_cbranch_scc1 L_FB_DONE")
    a(f"v_mov_b32 v{t}, v{F_M}")
    a("s_nop 1")
    a(f"v_permlane32_swap_b32 v{F_M}, v{t}")
    a("s_nop 1")
    a(f"v_max_f32 v{F_M}, v{F_M}, v{t}")
    for r in range(16): a(f"v_mov_b32 v{OA+r}, 0")
    a(f"s_mov_b32 s{S_FP}, 1")
    a("s_branch L_FB_PASS")
    a.lab("L_FB_DONE")
    a("s_nop 15")
    a(f"s_setpc_b64 s[{S_RET}:{S_RET+1}]")
    a.lab("L_FB_TILE")
    a(f"v_add_u32 v{A_K}, s{S_FT}, v{B_K}")
    a(f"v_add_u32 v{A_KR}, s{S_FT}, v{B_KR}")
    a(f"v_and_b32 v{A_V}, s{S_FT}, v{MK_V}")
    a(f"v_add_u32 v{A_V}, v{B_V}, v{A_V}")
    a(f"ds_read_b128 v[{VKF}:{VKF+3}], v{A_K}")
    a(f"ds_read_b64 v[{VKR}:{VKR+1}], v{A_KR}")
    a(f"ds_read_b64_tr_b16 v[{VVA}:{VVA+1}], v{A_V}")
    a(f"ds_read_b64_tr_b16 v[{VVA+2}:{VVA+3}], v{A_V} offset:576")
    a(f"ds_read_b64_tr_b16 v[{VVB}:{VVB+1}], v{A_V} offset:1152")
    a(f"ds_read_b64_tr_b16 v[{VVB+2}:{VVB+3}], v{A_V} offset:1728")
    a("s_waitcnt lgkmcnt(0)")
    a(f"v_mfma_f32_32x32x16_bf16 v[{VS}:{VS+15}], v[{VKF}:{VKF+3}], v[{QA_M}:{QA_M+3}], 0")
    a(f"v_mfma_f32_32x32x16_bf16 v[{VS}:{VS+15}], v[{VKR}:{VKR+3}], v[{QA_R}:{QA_R+3}], v[{VS}:{VS+15}]")
    a("s_nop 15")
    a(f"s_cmp_eq_u32 s{S_FK}, 0")
    a("s_cbranch_scc1 L_FB_NM")
    a(f"s_cmp_eq_u32 s{S_FK}, 1")
    a("s_cbranch_scc0 L_FB_FM")
    for r in range(16): a(f"v_add_f32 v{VS+r}, v{VS+r}, v{F_MD+r}")
    a("s_branch L_FB_NM")
    a.lab("L_FB_FM")
    for r in range(16): a(f"v_add_f32 v{VS+r}, v{VS+r}, v{F_MF+r}")
    a.lab("L_FB_NM")
    a(f"s_cmp_eq_u32 s{S_FP}, 0")
    a("s_cbranch_scc0 L_FB_P1")
    for r in range(0, 16, 2): a(f"v_max3_f32 v{F_M}, v{F_M}, v{VS+r}, v{VS+r+1}")
    a(f"s_setpc_b64 s[{S_RET2}:{S_RET2+1}]")
    a.lab("L_FB_P1")
    for r in range(16): a(f"v_sub_f32 v{VS+r}, v{VS+r}, v{F_M}")
    for r in range(16): a(f"v_exp_f32 v{VE+r}, v{VS+r}")
    a("s_nop 0")
    for j in range(8): a(f"v_cvt_pk_bf16_f32 v{VP+j}, v{VE+2*j}, v{VE+2*j+1}")
    a("s_nop 1")
    a(f"v_mfma_f32_32x32x16_bf16 v[{OA}:{OA+15}], v[{VVA}:{VVA+3}], v[{VP}:{VP+3}], v[{OA}:{OA+15}]")
    a(f"v_mfma_f32_32x32x16_bf16 v[{OA}:{OA+15}], v[{VVB}:{VVB+3}], v[{VP+4}:{VP+7}], v[{OA}:{OA+15}]")
    a("s_nop 7")
    a(f"s_setpc_b64 s[{S_RET2}:{S_RET2+1}]")

def finalize(a, O, qb_sreg, save_exec, rest_exec):
    t = T; R = VS
    a(f"v_rcp_f32 v{t+2}, v{O+12}")
    a(f"s_lshl_b32 s{S_T0}, s{qb_sreg}, 15")
    a(f"s_add_u32 s{S_T1}, s{S_T0}, s{S_OM}")
    a(f"s_lshl_b32 s{S_T0}, s{qb_sreg}, 7")
    a(f"s_add_u32 s{S_T2}, s{S_T0}, s{S_OR}")
    for r in range(12): a(f"v_mul_f32 v{O+r}, v{O+r}, v{t+2}")
    a(f"v_cvt_pk_bf16_f32 v{R}, v{O}, v{O+1}")
    a(f"v_cvt_pk_bf16_f32 v{R+1}, v{O+2}, v{O+3}")
    a(f"v_cvt_pk_bf16_f32 v{R+2}, v{O+4}, v{O+5}")
    a(f"v_cvt_pk_bf16_f32 v{R+3}, v{O+6}, v{O+7}")
    a(f"v_cvt_pk_bf16_f32 v{R+4}, v{O+8}, v{O+9}")
    a(f"v_cvt_pk_bf16_f32 v{R+5}, v{O+10}, v{O+11}")
    a(f"s_cmp_eq_u32 s{S_HEAD}, 0")
    a(f"s_cselect_b64 s[{S_SAVE}:{S_SAVE+1}], -1, 0")
    a(f"v_permlane32_swap_b32 v{R}, v{R+2}")
    a(f"v_permlane32_swap_b32 v{R+1}, v{R+3}")
    a(f"v_cndmask_b32_e64 v{R+4}, v{R+5}, v{R+4}, s[{S_SAVE}:{S_SAVE+1}]")
    a(f"buffer_store_dwordx4 v[{R}:{R+3}], v{V_OA1}, {WS}, s{S_T1} offen sc1")
    a(f"s_mov_b64 s[{S_SAVE}:{S_SAVE+1}], exec")
    a(f"s_mov_b32 exec_hi, 0")
    a(f"buffer_store_dword v{R+4}, v{V_OA2}, {WS}, s{S_T2} offen sc1")
    rest_exec()

def oflag(a, name, cnt_addr, flag_off, save_exec, rest_exec, after_store=None, last=7):
    t = T
    lds_inc(a, cnt_addr, save_exec, rest_exec, rtn=t+2)
    a("s_waitcnt lgkmcnt(0)")
    a(f"v_readfirstlane_b32 s{S_T0}, v{t+2}")
    a(f"s_cmp_lg_u32 s{S_T0}, {last}")
    a(f"s_cbranch_scc1 {name}")
    a(f"s_lshl_b32 s{S_T0}, s{S_HP}, 2")
    a(f"s_add_u32 s{S_T0}, s{S_T0}, s{S_OFS}")
    a(f"v_lshlrev_b32 v{t}, 7, v{V_LANE}")
    a(f"v_mov_b32 v{t+1}, s{S_TAGO}")
    save_exec("0xffff")
    a(f"buffer_store_dword v{t+1}, v{t}, {WS}, s{S_T0} offen offset:{flag_off} sc1")
    rest_exec()
    if after_store: after_store()
    a.lab(name)

def phase2(a, debug_stage, ts, exp, save_exec, rest_exec):
    t = T; L = V_LANE
    UH = (4, 6, 8)
    if 'hkA' in exp: UH = (3, 5, 7)
    if 'hkB' in exp: UH = (4, 6, 7)
    if 'hkC' in exp: UH = (5, 7, 8)
    UP = 15
    a.c("======== phase 2 ========")
    a(f"v_readfirstlane_b32 s{S_TAGOUT}, v{V_TG}")
    a(f"v_readfirstlane_b32 s{S_TAGIN}, v{V_TG+1}")
    a(f"v_readfirstlane_b32 s{S_TAGO}, v{V_TG+2}")
    a(f"s_lshl_b32 s{S_T0}, s{S_GRP}, 18")
    a(f"s_add_u32 s{S_T0}, s{S_T0}, {WS_O}")
    a(f"s_lshl_b32 s{S_T1}, s{S_HP}, 10")
    a(f"s_lshl_b32 s{S_T2}, s{S_HEAD}, 9")
    a(f"s_add_u32 s{S_T1}, s{S_T1}, s{S_T2}")
    a(f"s_add_u32 s{S_OM}, s{S_T1}, s{S_T0}")
    a(f"s_lshl_b32 s{S_T0}, s{S_GRP}, 15")
    a(f"s_add_u32 s{S_T0}, s{S_T0}, {WS_OR}")
    a(f"s_lshl_b32 s{S_T1}, s{S_HP}, 1")
    a(f"s_add_u32 s{S_T1}, s{S_T1}, s{S_HEAD}")
    a(f"s_lshl_b32 s{S_T1}, s{S_T1}, 10")
    a(f"s_add_u32 s{S_OR}, s{S_T1}, s{S_T0}")
    a(f"s_lshl_b32 s{S_OFS}, s{S_GRP}, 12")
    a(f"s_add_u32 s{S_OFS}, s{S_OFS}, {WS_OF}")
    a(f"v_bfe_u32 v{V_OA1}, v{L}, 4, 1")
    a(f"v_lshlrev_b32 v{V_OA1}, 14, v{V_OA1}")
    a(f"v_and_b32 v{t+4}, 15, v{L}")
    a(f"v_lshl_add_u32 v{V_OA1}, v{t+4}, 4, v{V_OA1}")
    a(f"v_lshrrev_b32 v{t+4}, 5, v{L}")
    a(f"v_lshl_add_u32 v{V_OA1}, v{t+4}, 8, v{V_OA1}")
    a(f"v_lshlrev_b32 v{V_OA2}, 2, v{L}")
    for (QM, QR, sreg) in ((QA_M, QA_R, S_M), (QB_M, QB_R, S_MB)):
        a(f"s_mul_i32 s{S_T0}, s{sreg}, {QTILE}")
        a(f"s_add_u32 s{S_T0}, s{S_T0}, {Q_BASE}")
        a(f"v_add_u32 v{t+2}, s{S_T0}, v{B_K}")
        a(f"v_add_u32 v{t+3}, s{S_T0}, v{B_KR}")
        a(f"ds_read_b128 v[{QM}:{QM+3}], v{t+2}")
        a(f"ds_read_b64 v[{QR}:{QR+1}], v{t+3}")
    a(f"s_cmp_eq_u32 s{S_HEAD}, 0")
    a(f"s_cselect_b32 s{S_T0}, -1, 0")
    a(f"s_cselect_b32 s{S_T1}, 0, -1")
    a(f"v_cmp_gt_u32 vcc, 32, v{L}")
    a(f"v_mov_b32 v{t}, s{S_T0}")
    a(f"v_mov_b32 v{t+1}, s{S_T1}")
    a(f"v_cndmask_b32_e64 v{t}, 0, v{t}, vcc")
    a(f"v_cndmask_b32_e64 v{t+1}, 0, v{t+1}, vcc")
    a(f"v_mov_b32 v{VKR+2}, 0")
    a(f"v_mov_b32 v{VKR+3}, 0")
    for QR in (QA_R, QB_R):
        a(f"v_mov_b32 v{QR+2}, 0")
        a(f"v_mov_b32 v{QR+3}, 0")
    a("s_waitcnt lgkmcnt(0)")
    for QR in (QA_R, QB_R):
        a(f"v_and_b32 v{QR}, v{QR}, v{t}")
        a(f"v_and_b32 v{QR+1}, v{QR+1}, v{t+1}")
    lds_inc(a, CNTQ, save_exec, rest_exec)
    a(f"s_mov_b32 s{S_U}, 0")
    a(f"s_mov_b32 s{S_HST}, 0")
    a(f"s_mov_b32 s{S_HOOK}, {UP}")
    a(f"s_mov_b32 s{S_HST}, 3")
    a(f"s_cmp_lt_u32 s{S_WID}, 4")
    a(f"s_cbranch_scc1 L_HS2")
    a(f"s_mov_b32 s{S_HST}, 0")
    a(f"s_mov_b32 s{S_HOOK}, {UH[0]}")
    a(f"s_cmp_eq_u32 s{S_S}, 7")
    a(f"s_cbranch_scc1 L_HS1")
    a(f"s_mul_i32 s{S_T1}, s{S_IDX}, 36864")
    for c, i in enumerate([3, 2, 1, 0]):
        a(f"s_add_u32 s{S_T2}, s{S_T1}, {i*4096}")
        a(f"buffer_store_dwordx4 v[{VH+20+4*c}:{VH+20+4*c+3}], v{V_PA}, {WS}, s{S_T2} offen sc1")
    a.lab("L_HS1")
    if 'noprio' not in exp: a("s_setprio 1")
    a.lab("L_HS2")
    ts(4)
    set_run(a, KV_OWN, None, [f"s_add_u32 s{S_N}, s{S_M}, 1"], TILE)
    a(f"s_call_b64 s[{S_RET}:{S_RET+1}], L_RUNA")
    set_run(a, KV_OWN, None, [f"s_sub_u32 s{S_N}, 8, s{S_M}"], TILE)
    a(f"s_call_b64 s[{S_RET}:{S_RET+1}], L_RUNB")
    ts(5)
    a(f"s_cmp_eq_u32 s{S_S}, 0")
    a("s_cbranch_scc1 L_FINAL0")
    a(f"v_mov_b32 v{t+2}, {NEG:#x}")
    for r in range(16): a(f"v_sub_f32 v{V_MASK+r}, v{t+2}, v{V_MASK+r}")
    a(f"s_cmp_lt_u32 s{S_WID}, 4")
    a("s_cbranch_scc1 L_H5DONE")
    lds_wait(a, "L_WQ", CNTQ, 8)
    a(f"v_add_u32 v{V_PA+1}, {KV_HALO}, v{V_PA}")
    for c, i in enumerate([8, 7, 6, 5, 4, 3, 2, 1, 0]):
        a(f"s_waitcnt vmcnt({8-c})")
        a(f"ds_write_b128 v{V_PA+1}, v[{VH+4*c}:{VH+4*c+3}] offset:{i*4096}")
    a(f"s_cmp_lg_u32 s{S_WID}, 4")
    a("s_cbranch_scc1 L_H5DONE")
    a(f"s_sub_u32 s{S_T0}, s{S_IDX}, 1")
    a(f"s_lshl_b32 s{S_T0}, s{S_T0}, 8")
    a(f"s_add_u32 s{S_T0}, s{S_T0}, {WS_FLAG}")
    a(f"v_mov_b32 v{t}, 0")
    a(f"v_mov_b32 v{t+1}, s{S_TAGIN}")
    save_exec(1)
    a(f"buffer_store_dword v{t+1}, v{t}, {WS}, s{S_T0} offen sc1")
    rest_exec()
    a.lab("L_H5DONE")
    a("s_waitcnt lgkmcnt(0)")
    a("s_setprio 0")
    a("s_barrier")
    if "tsh" not in exp: ts(7)
    a(f"s_mov_b32 s{S_T4}, 7")
    set_run(a, KV_HALO, S_T4, [f"s_add_u32 s{S_N}, s{S_M}, 1"], -TILE)
    a(f"s_call_b64 s[{S_RET}:{S_RET+1}], L_RUNB")
    a("s_nop 7")
    a("s_nop 3")
    safety_check(a, OB, True, S_MB, "B1")
    finalize(a, OB, S_MB, save_exec, rest_exec)
    a(f"s_mov_b32 s{S_T4}, 7")
    set_run(a, KV_HALO, S_T4, [f"s_sub_u32 s{S_N}, 8, s{S_M}"], -TILE)
    a(f"s_call_b64 s[{S_RET}:{S_RET+1}], L_RUNA")
    a("s_branch L_FINALA")
    a.lab("L_FINAL0")
    a("s_waitcnt vmcnt(0)")
    a("s_setprio 0")
    a("s_barrier")
    a("s_nop 7")
    a("s_nop 3")
    safety_check(a, OB, True, S_MB, "B0")
    finalize(a, OB, S_MB, save_exec, rest_exec)
    a.lab("L_FINALA")
    if "tsh" not in exp: ts(8)
    a("s_nop 7")
    a("s_nop 3")
    safety_check(a, OA, False, S_M, "A")
    finalize(a, OA, S_M, save_exec, rest_exec)
    a("s_branch L_P3")
    fallback_code(a)

    a.lab("L_HOOK")
    a(f"s_cmp_eq_u32 s{S_HST}, 1")
    a("s_cbranch_scc1 L_HK1")
    a(f"s_cmp_eq_u32 s{S_HST}, 2")
    a("s_cbranch_scc1 L_HK2")
    a(f"s_cmp_eq_u32 s{S_HST}, 3")
    a("s_cbranch_scc1 L_HK3")
    a(f"s_mov_b32 s{S_HST}, 1")
    a(f"s_mov_b32 s{S_HOOK}, {UH[1]}")
    a(f"s_cmp_eq_u32 s{S_S}, 7")
    a("s_cbranch_scc1 L_HRET")
    a("s_waitcnt vmcnt(0)")
    a(f"s_lshl_b32 s{S_T0}, s{S_IDX}, 8")
    a(f"s_lshl_b32 s{S_T1}, s{S_L}, 2")
    a(f"s_add_u32 s{S_T0}, s{S_T0}, s{S_T1}")
    a(f"s_add_u32 s{S_T0}, s{S_T0}, {WS_FLAG+128}")
    a(f"v_mov_b32 v{t}, 0")
    a(f"v_mov_b32 v{t+1}, s{S_TAGOUT}")
    save_exec(1)
    a(f"buffer_store_dword v{t+1}, v{t}, {WS}, s{S_T0} offen sc1")
    rest_exec()
    a("s_branch L_HRET")
    a.lab("L_HK3")
    a(f"s_mov_b32 s{S_HST}, 4")
    a(f"s_mov_b32 s{S_HOOK}, 1000")
    a(f"s_lshl_b32 s{S_T0}, s{S_HP}, 7")
    a(f"s_add_u32 s{S_T0}, s{S_T0}, s{S_OFS}")
    save_exec("0xffff")
    a(f"v_lshlrev_b32 v{t}, 2, v{L}")
    a(f"buffer_load_dword v{V_TG+1}, v{t}, {WS}, s{S_T0} offen offset:128 sc1")
    rest_exec()
    a("s_branch L_HRET")
    a.lab("L_HK1")
    a(f"s_mov_b32 s{S_HST}, 2")
    a(f"s_mov_b32 s{S_HOOK}, {UH[2]}")
    a(f"s_cmp_eq_u32 s{S_S}, 0")
    a("s_cbranch_scc0 L_HK1A")
    a(f"s_mov_b32 s{S_HOOK}, 1000")
    a("s_branch L_HRET")
    a.lab("L_HK1A")
    a(f"s_sub_u32 s{S_H1}, s{S_IDX}, 1")
    a(f"s_lshl_b32 s{S_H1}, s{S_H1}, 8")
    a(f"s_lshl_b32 s{S_T0}, s{S_L}, 2")
    a(f"s_add_u32 s{S_H1}, s{S_H1}, s{S_T0}")
    a(f"s_add_u32 s{S_H1}, s{S_H1}, {WS_FLAG+128}")
    a(f"v_mov_b32 v{t}, 0")
    a(f"buffer_load_dword v{V_TG}, v{t}, {WS}, s{S_H1} offen sc1")
    a("s_branch L_HRET")
    a.lab("L_HK2")
    a(f"s_mov_b32 s{S_HST}, 3")
    a(f"s_mov_b32 s{S_HOOK}, {UP}")
    a("s_waitcnt vmcnt(0)")
    a(f"v_readfirstlane_b32 s{S_T0}, v{V_TG}")
    a(f"s_cmp_eq_u32 s{S_T0}, s{S_TAGIN}")
    a("s_cbranch_scc1 L_POLL1_OK")
    a(f"v_mov_b32 v{t}, 0")
    spin_poll(a, "L_POLL1",
              [f"v_readfirstlane_b32 s{S_T0}, v{V_TG}", f"s_cmp_eq_u32 s{S_T0}, s{S_TAGIN}"],
              f"buffer_load_dword v{V_TG}, v{t}, {WS}, s{S_H1} offen sc1")
    a(f"s_sub_u32 s{S_T0}, s{S_IDX}, 1")
    a(f"s_mul_i32 s{S_T0}, s{S_T0}, 36864")
    for c, i in enumerate([8, 7, 6, 5, 4, 3, 2, 1, 0]):
        a(f"s_add_u32 s{S_T1}, s{S_T0}, {i*4096}")
        a(f"buffer_load_dwordx4 v[{VH+4*c}:{VH+4*c+3}], v{V_PA}, {WS}, s{S_T1} offen sc1")
    a.lab("L_HRET")
    a(f"s_setpc_b64 s[{S_RET2}:{S_RET2+1}]")
    run_code(a, "L_RUNA", QA_M, QA_R, OA, exp)
    run_code(a, "L_RUNB", QB_M, QB_R, OB, exp)

def pub_stores(a, stage_off, base):
    a(f"s_add_u32 s{S_T2}, s{S_T1}, {stage_off}")
    a(f"buffer_store_dwordx4 v[{base}:{base+3}], v{V_PA}, {WS}, s{S_T2} offen sc1")
    for i in range(1, 4):
        a(f"s_add_u32 s{S_T3}, s{S_T2}, {i*4096}")
        a(f"buffer_store_dwordx4 v[{base+4*i}:{base+4*i+3}], v{V_PA}, {WS}, s{S_T3} offen sc1")
    a(f"buffer_store_dwordx4 v[{base+16}:{base+19}], v{V_PA+2}, {WS}, s{S_T2} offen sc1")

def halo_loads(a, stage_off, base):
    a(f"s_sub_u32 s{S_T0}, s{S_IDX}, 1")
    a(f"s_mul_i32 s{S_T0}, s{S_T0}, 36864")
    a(f"s_add_u32 s{S_T0}, s{S_T0}, s{S_SO}")
    for i in range(4):
        a(f"s_add_u32 s{S_T1}, s{S_T0}, {i*4096}")
        a(f"buffer_load_dwordx4 v[{base+4*i}:{base+4*i+3}], v{V_PA}, {WS}, s{S_T1} offen sc1")
    a(f"buffer_load_dwordx4 v[{base+16}:{base+19}], v{V_PA+2}, {WS}, s{S_T0} offen sc1")

def phase3(a, debug_stage, ts, exp, save_exec, rest_exec):
    t = T; L = V_LANE
    OF, AC, WF0, WF1 = 20, 92, 132, 152
    AW, AW2, PF, VO, VOUT, VR = 10, 11, 13, 14, 15, 16
    PA, PB = 12, 9
    S_PL, S_PR, S_PM = 4, 68, 40
    SCR = KV_OWN
    ORD = {0: [0, 2, 4, 6, 1, 3, 5, 7, 8], 1: [9, 11, 13, 15, 10, 12, 14, 16, 17]}
    GM = {0: 0x0055, 1: 0xAA00}; RM = {0: 0x01AA, 1: 0xFFFF}
    a.lab("L_P3")
    a.c("======== phase 3 ========")
    a(f"s_lshl_b32 s{S_PL}, s{S_HP}, 7")
    a(f"s_add_u32 s{S_PL}, s{S_PL}, s{S_OFS}")
    def poll_issue():
        save_exec("0xffff")
        a(f"v_lshlrev_b32 v{t+2}, 2, v{L}")
        a(f"buffer_load_dword v{PF}, v{t+2}, {WS}, s{S_PL} offen offset:128 sc1")
        rest_exec()
    def poll_check(name, mask):
        save_exec(f"{mask:#x}")
        a(f"v_cmp_ne_u32 vcc, s{S_TAGO}, v{PF}")
        a("s_nop 1")
        a("s_cmp_eq_u64 vcc, 0")
        a(f"s_cbranch_scc1 {name}_OK")
        a(f"v_lshlrev_b32 v{t+2}, 2, v{L}")
        spin_poll(a, name,
                  [f"v_cmp_ne_u32 vcc, s{S_TAGO}, v{PF}", "s_nop 1", "s_cmp_eq_u64 vcc, 0"],
                  f"buffer_load_dword v{PF}, v{t+2}, {WS}, s{S_PL} offen offset:128 sc1")
        rest_exec()
    a(f"s_lshr_b32 s{S_T1}, s{S_HP}, 3")
    a(f"s_lshl_b32 s{S_T1}, s{S_T1}, 3")
    a(f"s_lshl_b32 s{S_T2}, s{S_M}, 1")
    a(f"s_add_u32 s{S_T1}, s{S_T1}, s{S_T2}")
    a(f"s_lshl_b32 s{S_T0}, s{S_GRP}, 18")
    a(f"s_add_u32 s{S_T0}, s{S_T0}, {WS_O}")
    a(f"s_lshl_b32 s{S_T2}, s{S_T1}, 14")
    a(f"s_add_u32 s{S_PM}, s{S_T0}, s{S_T2}")
    a(f"s_lshl_b32 s{S_T0}, s{S_GRP}, 15")
    a(f"s_add_u32 s{S_T0}, s{S_T0}, {WS_OR}")
    a(f"s_lshl_b32 s{S_T2}, s{S_T1}, 6")
    a(f"s_add_u32 s{S_PR}, s{S_T0}, s{S_T2}")
    a(f"v_lshrrev_b32 v{VR}, 4, v{L}")
    a(f"v_lshlrev_b32 v{VR}, 12, v{VR}")
    a(f"v_and_b32 v{t+4}, 15, v{L}")
    a(f"v_lshl_add_u32 v{VR}, v{t+4}, 2, v{VR}")
    a(f"v_add_u32 v{VR+1}, 64, v{VR}")
    a(f"v_lshrrev_b32 v{t+1}, 4, v{L}")
    a(f"v_bfe_u32 v{t+2}, v{L}, 2, 2")
    a(f"v_and_b32 v{t+3}, 3, v{L}")
    a(f"v_lshrrev_b32 v{t+4}, 1, v{t+1}")
    a(f"v_lshlrev_b32 v{t+4}, 2, v{t+4}")
    a(f"v_lshl_add_u32 v{t+4}, v{t+1}, 3, v{t+4}")
    a(f"v_add_u32 v{t+4}, v{t+4}, v{t+2}")
    a(f"v_mul_u32_u24 v{t+4}, 144, v{t+4}")
    a(f"v_lshl_add_u32 v{AW}, v{t+3}, 3, v{t+4}")
    a(f"s_mul_i32 s{S_T0}, s{S_HEAD}, {9*5184}")
    a(f"v_add_u32 v{AW}, s{S_T0}, v{AW}")
    a(f"v_mul_u32_u24 v{t+4}, 72, v{t+1}")
    a(f"v_add3_u32 v{t+4}, v{t+4}, v{t+2}, 16")
    a(f"v_mul_u32_u24 v{t+4}, 144, v{t+4}")
    a(f"v_lshl_add_u32 v{AW2}, v{t+3}, 3, v{t+4}")
    a(f"v_lshlrev_b32 v{VO}, 4, v{L}")
    a(f"s_lshl_b32 s{S_T1}, s{S_T1}, 4")
    a(f"s_lshl_b32 s{S_T2}, s{S_S}, 8")
    a(f"s_add_u32 s{S_T1}, s{S_T1}, s{S_T2}")
    a(f"s_lshl_b32 s{S_T2}, s{S_HEAD}, 4")
    a(f"s_add_u32 s{S_T1}, s{S_T1}, s{S_T2}")
    a(f"s_mul_i32 s{S_T1}, s{S_T1}, 2304")
    a(f"s_mul_i32 s{S_T2}, s{S_B}, 1152")
    a(f"s_add_u32 s{S_T1}, s{S_T1}, s{S_T2}")
    a(f"s_and_b32 s{S_T2}, s{S_HP}, 7")
    a(f"s_mul_i32 s{S_T2}, s{S_T2}, 144")
    a(f"s_add_u32 s{S_T5}, s{S_T1}, s{S_T2}")
    a(f"v_and_b32 v{VOUT}, 15, v{L}")
    a(f"v_mul_u32_u24 v{VOUT}, 2304, v{VOUT}")
    a(f"v_lshrrev_b32 v{t+4}, 4, v{L}")
    a(f"v_lshl_add_u32 v{VOUT}, v{t+4}, 3, v{VOUT}")
    a(f"s_mul_i32 s{S_T0}, s{S_WID}, 5120")
    a(f"s_add_u32 s{S_T0}, s{S_T0}, {SCR}")
    a(f"v_add_u32 v18, s{S_T0}, v{VO}")
    a(f"s_xor_b32 s{S_T1}, s{S_WID}, 4")
    a(f"s_mul_i32 s{S_T1}, s{S_T1}, 5120")
    a(f"s_add_u32 s{S_T1}, s{S_T1}, {SCR}")
    a(f"v_add_u32 v19, s{S_T1}, v{VO}")
    OUT = f"s[{S_OUT}:{S_OUT+3}]"
    def wreads(kap, kh, WF):
        l = []
        for Tn in range(5):
            b = WF + 4*Tn
            if kap >= 16:
                o0 = (kap-16)*8*36*144 + Tn*32
                l.append(f"ds_read_b64_tr_b16 v[{b}:{b+1}], v{AW2} offset:{o0}")
                l.append(f"ds_read_b64_tr_b16 v[{b+2}:{b+3}], v{AW2} offset:{o0+36*144}")
            else:
                o0 = (kap - 9*kh)*5184 + Tn*32
                l.append(f"ds_read_b64_tr_b16 v[{b}:{b+1}], v{AW} offset:{o0}")
                l.append(f"ds_read_b64_tr_b16 v[{b+2}:{b+3}], v{AW} offset:{o0+576}")
        return l
    def loads(kh, slots):
        nl = []
        for jx in slots:
            kap = ORD[kh][jx]
            if kap >= 16:
                a(f"s_add_u32 s{S_T0}, s{S_PR}, {(kap-16)*16*1024}")
                for mt in range(2):
                    for i in range(4):
                        a(f"buffer_load_dword v{OF+36*mt+4*jx+i}, v{VR+mt}, {WS}, s{S_T0} offen offset:{i*1024} sc1")
                nl.append(8)
            else:
                a(f"s_add_u32 s{S_T0}, s{S_PM}, {kap*1024}")
                a(f"s_add_u32 s{S_T1}, s{S_PM}, {kap*1024+16384}")
                a(f"buffer_load_dwordx4 v[{OF+4*jx}:{OF+4*jx+3}], v{VO}, {WS}, s{S_T0} offen sc1")
                a(f"buffer_load_dwordx4 v[{OF+36+4*jx}:{OF+36+4*jx+3}], v{VO}, {WS}, s{S_T1} offen sc1")
                nl.append(2)
        return nl
    def mfm(kh, slots, nl, extra, last_next, novm=False):
        for c, jx in enumerate(slots):
            cur = WF0 if jx % 2 == 0 else WF1
            nxt = WF1 if jx % 2 == 0 else WF0
            a("s_waitcnt lgkmcnt(0)" if novm else f"s_waitcnt vmcnt({sum(nl[c+1:])+extra}) lgkmcnt(0)")
            rs = wreads(ORD[kh][jx+1], kh, nxt) if jx < 8 else []
            ri = 0
            for Tn in range(5):
                for mt in range(2):
                    d = AC + (mt*5+Tn)*4; o = OF + 36*mt + 4*jx
                    cc = "0" if jx == 0 else f"v[{d}:{d+3}]"
                    a(f"v_mfma_f32_16x16x32_bf16 v[{d}:{d+3}], v[{cur+4*Tn}:{cur+4*Tn+3}], v[{o}:{o+3}], {cc}")
                    if ri < len(rs): a(rs[ri]); ri += 1
    def add_out(q, base, Tn, pk):
        for r in range(4): a(f"v_add_f32 v{q+r}, v{q+r}, v{base+4*Tn+r}")
        a(f"v_cvt_pk_bf16_f32 v{pk}, v{q}, v{q+1}")
        a(f"v_cvt_pk_bf16_f32 v{pk+1}, v{q+2}, v{q+3}")
        if Tn == 4:
            a(f"s_mov_b64 s[{S_SAVE}:{S_SAVE+1}], exec")
            a(f"s_mov_b32 exec_hi, 0")
        omod = " nt" if 'ont' in exp else " sc1" if 'osc1' in exp else " sc0 sc1" if 'osc01' in exp else ""
        a(f"buffer_store_dwordx2 v[{pk}:{pk+1}], v{VOUT}, {OUT}, s{S_T5} offen offset:{Tn*32}{omod}")
        if Tn == 4: rest_exec()
    def nloads(kh, slots):
        return [8 if ORD[kh][jx] >= 16 else 2 for jx in slots]
    def validate(kh, slots, younger):
        nl = nloads(kh, slots); first = True
        for c, jx in enumerate(slots):
            a(f"s_waitcnt vmcnt({sum(nl[c+1:])+younger})")
            rr = [OF+4*jx+i for i in range(4)] + [OF+36+4*jx+i for i in range(4)]
            if first:
                a(f"v_max3_u32 v{t+3}, v{rr[0]}, v{rr[1]}, v{rr[2]}"); rr = rr[3:]; first = False
                a(f"v_max_u32 v{t+3}, v{t+3}, v{rr[0]}"); rr = rr[1:]
            for k in range(0, len(rr), 2):
                a(f"v_max3_u32 v{t+3}, v{t+3}, v{rr[k]}, v{rr[k+1]}")
        a(f"v_cmp_eq_u32 vcc, -1, v{t+3}")
        a("s_nop 1")
        a("s_cmp_eq_u64 vcc, 0")
    def probe_addr(kh, slots):
        mains = [jx for jx in slots if ORD[kh][jx] < 16]
        a(f"v_mov_b32 v{t+3}, {ORD[kh][mains[0]]*1024 + 16384 + 1020}")
        a(f"v_lshlrev_b32 v{PA}, 11, v{L}")
        a(f"v_add_u32 v{PA}, v{t+3}, v{PA}")
        return (1 << min(len(mains), 4)) - 1
    def probe_issue(mask):
        save_exec(f"{mask:#x}")
        a(f"buffer_load_dword v{PB}, v{PA}, {WS}, s{S_PM} offen sc1")
        rest_exec()
    def probe_loop(mask, name, first_issued):
        save_exec(f"{mask:#x}")
        a(f"s_mov_b32 s{S_CNT}, 0")
        if first_issued: a(f"s_branch {name}_PW")
        a.lab(name + "_P")
        a(f"buffer_load_dword v{PB}, v{PA}, {WS}, s{S_PM} offen sc1")
        a.lab(name + "_PW")
        a(f"s_add_u32 s{S_CNT}, s{S_CNT}, 1")
        a("s_waitcnt vmcnt(0)")
        a(f"v_cmp_eq_u32 vcc, -1, v{PB}")
        a("s_nop 1")
        a("s_cmp_eq_u64 vcc, 0")
        a(f"s_cbranch_scc1 {name}_PO")
        a(f"s_cmp_lt_u32 s{S_CNT}, 2000000")
        a(f"s_cbranch_scc1 {name}_P")
        a.lab(name + "_PO")
        rest_exec()
    def load_validate_loop(kh, slots, name):
        a(f"s_mov_b32 s{S_N}, 0")
        a.lab(name + "_L")
        loads(kh, slots)
        validate(kh, slots, 0)
        a(f"s_cbranch_scc1 {name}_OK")
        a(f"s_add_u32 s{S_N}, s{S_N}, 1")
        a(f"s_cmp_lt_u32 s{S_N}, 100000")
        a(f"s_cbranch_scc1 {name}_L")
        a.lab(name + "_OK")
    def path(kh):
        K = f"K{kh}"
        G, R = list(range(4)), list(range(4, 9))
        for rd in wreads(ORD[kh][0], kh, WF0): a(rd)
        ts(10)
        a(f"s_lshr_b32 s{S_T0}, 0x55AA, s{S_HP}")
        a(f"s_bitcmp1_b32 s{S_T0}, 0")
        a(f"s_cbranch_scc1 L_SG{K}_GO")
        mk = probe_addr(kh, G)
        probe_loop(mk, f"L_SG{K}", False)
        a.lab(f"L_SG{K}_GO")
        load_validate_loop(kh, G, f"L_SGV{K}")
        mk = probe_addr(kh, R)
        probe_issue(mk)
        mfm(kh, G, [0]*4, 0, None, novm=True)
        ts(9)
        probe_loop(mk, f"L_SR{K}", True)
        load_validate_loop(kh, R, f"L_SRV{K}")
        mfm(kh, R, [0]*5, 0, None, novm=True)
        ts(11)
        send = AC + 20 if kh == 0 else AC
        keep = AC if kh == 0 else AC + 20
        lds_wait(a, f"L_WOA{K}", CNTOA, 8)
        for Tn in range(5): a(f"ds_write_b128 v18, v[{send+4*Tn}:{send+4*Tn+3}] offset:{Tn*1024}")
        a("s_waitcnt lgkmcnt(0)")
        a("s_barrier")
        for Tn in range(5): a(f"ds_read_b128 v[{OF+4*Tn}:{OF+4*Tn+3}], v19 offset:{Tn*1024}")
        for Tn in range(5):
            a(f"s_waitcnt lgkmcnt({4-Tn})")
            add_out(OF+4*Tn, keep, Tn, OF+20+2*Tn)
    lds_inc(a, CNTOA, save_exec, rest_exec)
    a(f"s_cmp_eq_u32 s{S_HST}, 4")
    a("s_cbranch_scc0 L_P3C0")
    a("s_waitcnt vmcnt(2)")
    a(f"v_mov_b32 v{PF}, v{V_TG+1}")
    a("s_branch L_P3C1")
    a.lab("L_P3C0")
    poll_issue()
    a("s_waitcnt vmcnt(0)")
    a.lab("L_P3C1")
    poll_check("L_POLLC", 0xFFFF)
    if debug_stage == 2:
        a("s_waitcnt vmcnt(0)")
        a("s_branch L_FIN")
        return
    a(f"s_cmp_eq_u32 s{S_HEAD}, 0")
    a("s_cbranch_scc0 L_P3K1")
    path(0)
    a("s_branch L_FIN")
    a.lab("L_P3K1")
    path(1)
    a(f"s_cmp_lg_u32 s{S_HP}, 0")
    a("s_cbranch_scc1 L_FIN")
    a(f"s_cmp_lg_u32 s{S_WID}, 4")
    a("s_cbranch_scc1 L_FIN")
    a(f"v_mov_b32 v{t}, 0")
    a(f"v_mov_b32 v{t+1}, s{S_TAGO}")
    a(f"s_mov_b64 exec, 1")
    a(f"buffer_store_dword v{t+1}, v{t}, {WS}, s{S_OFS} offen sc1")

if __name__ == "__main__":
    import argparse
    p = argparse.ArgumentParser(); p.add_argument("--debug", type=int, default=0)
    p.add_argument("--timing", action="store_true"); p.add_argument("--exp", default=""); p.add_argument("-o", default="/dev/stdout")
    args = p.parse_args()
    open(args.o, "w").write(gen(args.debug, args.timing, args.exp))
```

```python
import sys, math, struct

NAME = "concat_heads__sliding_block__sliding_block__prompt"

STAGE   = 49152
WO_BASE = 0
KV_OWN  = 82944
KV_HALO = 119808
Q_BASE  = 119808
MISC    = 156672
TAGS_LDS = MISC + 2048
CNT2, CNT1, CNTQ, CNTOB, CNTOA = TAGS_LDS+12, TAGS_LDS+16, TAGS_LDS+20, TAGS_LDS+24, TAGS_LDS+28
LDS_TOTAL = 163840
TILE    = 4608
QTILE   = 2304
WS_KV   = 0
WS_O    = 256*36864
WS_OR   = WS_O + 16*262144
WS_FLAG = WS_OR + 16*32768
WS_OF   = WS_FLAG + 65536
TIMING_OFF = 24<<20
TAG_INC = 0x9E3779B1
NEG     = 0xFF61B1E6
QSCALE  = (18.0 ** -0.5) * math.log2(math.e)
def f32bits(x): return struct.unpack("<I", struct.pack("<f", x))[0]

class Asm:
    def __init__(self): self.l = []
    def __call__(self, s=""):
        for line in s.split("\n"):
            self.l.append("  " + line.strip())
    def lab(self, n): self.l.append(n + ":")
    def c(self, s): self.l.append("  ; " + s)
    def text(self): return "\n".join(self.l) + "\n"

S_X, S_W, S_WO, S_WS, S_OUT = 8, 12, 16, 20, 24
S_B, S_S, S_HP, S_WID = 28, 29, 30, 31
S_T0, S_T1, S_T2, S_T3, S_T4, S_T5 = 32, 33, 34, 35, 36, 37
S_I = 38
S_L = 39
S_TAGIN, S_TAGOUT, S_TAGO = 40, 41, 42
S_K, S_C, S_SB, S_XB, S_WB = 43, 44, 45, 46, 47
S_LX, S_LW = 48, 49
S_N = 50
S_U = 51
S_RET = 52
S_IDX, S_GRP, S_HEAD, S_M = 54, 55, 56, 57
S_SAVE = 58
S_CNT = 60
S_HOOK = 61
S_BAD = 62
S_RET2 = 64
S_MB = 66
S_HST = 67
S_H0, S_H1 = 68, 69
S_E = 98
S_SO, S_FI = 99, 100
S_OM, S_OR, S_OFS = 6, 7, 5

V_LANE = 1
T = 2
V_AX = 10
V_AW = 12
V_MASK = 20
V_SET0, V_SET1, V_ACC = 36, 80, 124
V_LDX, V_LDW = 36, 44
V_TG = 236
B_K, B_KR, B_V, MK_V = 240, 241, 242, 243
vEK, vEQ, vEV, vE6, vDr, vDt, vF, vC = 244, 245, 246, 247, 248, 249, 250, 252
V_TL = 254
QA_M, QA_R, QB_M, QB_R = 36, 40, 44, 48
OA, OB = 52, 68
VS, VE, VP = 84, 100, 116
VKF, VKR, VVA, VVB = 124, 128, 132, 136
A_K, A_KR, A_V, ST_V, ST_K = 10, 11, 12, 13, 14
VH = 140
V_WOV = 180
V_OA1, V_OA2 = 188, 189
V_PA = 184

def emit_masks_(a):
    t = T; L = V_LANE
    a(f"v_and_b32 v{t}, 31, v{L}")
    a(f"v_lshrrev_b32 v{t+1}, 5, v{L}")
    a(f"v_lshlrev_b32 v{t+1}, 2, v{t+1}")
    a(f"v_sub_u32 v{t}, v{t}, v{t+1}")
    a(f"v_mov_b32 v{t+1}, {NEG:#x}")
    for r in range(16):
        jj = (r & 3) + 8*(r >> 2)
        a(f"v_cmp_le_i32 vcc, {jj}, v{t}")
        a("s_nop 1")
        a(f"v_cndmask_b32_e64 v{V_MASK+r}, v{t+1}, 0, vcc")
def emit_p2_patterns_(a):
    t = T; L = V_LANE
    a(f"v_and_b32 v{t}, 31, v{L}")
    a(f"v_lshrrev_b32 v{t+1}, 5, v{L}")
    a(f"v_lshrrev_b32 v{t+2}, 2, v{t}")
    a(f"v_lshrrev_b32 v{t+3}, 3, v{t}")
    a(f"v_xor_b32 v{t+2}, v{t+2}, v{t+3}")
    a(f"v_xor_b32 v{t+2}, v{t+2}, v{t+1}")
    a(f"v_and_b32 v{t+2}, 1, v{t+2}")
    a(f"v_lshlrev_b32 v{t+2}, 4, v{t+2}")
    a(f"v_lshl_add_u32 v{t+2}, v{t}, 5, v{t+2}")
    a(f"s_lshl_b32 s{S_T0}, s{S_HEAD}, 10")
    a(f"v_add_u32 v{B_K}, s{S_T0}, v{t+2}")
    a(f"v_lshlrev_b32 v{B_KR}, 3, v{t}")
    a(f"v_add_u32 v{B_KR}, 2048, v{B_KR}")
    a(f"v_bfe_u32 v{t+2}, v{L}, 2, 2")
    a(f"v_lshl_add_u32 v{t+2}, v{t+1}, 2, v{t+2}")
    a(f"v_mul_u32_u24 v{t+2}, 72, v{t+2}")
    a(f"v_add_u32 v{t+2}, 2304, v{t+2}")
    a(f"v_and_b32 v{t+3}, 3, v{L}")
    a(f"v_lshlrev_b32 v{t+4}, 3, v{t+3}")
    a(f"s_mul_i32 s{S_T0}, s{S_HEAD}, 40")
    a(f"v_add3_u32 v{t+4}, v{t+4}, v{t+2}, s{S_T0}")
    a(f"v_add_u32 v{t+5}, 32, v{t+2}")
    a(f"v_bfe_u32 v{t+6}, v{L}, 4, 1")
    a(f"v_cmp_eq_u32 vcc, 1, v{t+6}")
    a(f"v_lshrrev_b32 v{t+7}, 1, v{t+3}")
    a(f"v_and_b32 v{t+7}, v{t+7}, v{t+6}")
    a(f"v_cndmask_b32 v{B_V}, v{t+4}, v{t+5}, vcc")
    a(f"v_cmp_eq_u32 vcc, 1, v{t+7}")
    a(f"v_mov_b32 v{t+5}, {MISC}")
    a(f"v_mov_b32 v{t+6}, -1")
    a(f"v_cndmask_b32 v{B_V}, v{B_V}, v{t+5}, vcc")
    a(f"v_cndmask_b32_e64 v{MK_V}, v{t+6}, 0, vcc")


def gen(debug_stage=0, timing=False, exp=''):
    a = Asm()
    t = T; L = V_LANE
    def ts(i, force=False):
        if timing and ('tsk' not in exp or force or i in (0, 8, 9, 10, 11)): a(f"{'s_memrealtime' if 'abs' in exp else 's_memtime'} s[{70+2*i}:{71+2*i}]")
    WS = f"s[{S_WS}:{S_WS+3}]"
    def save_exec(val):
        a(f"s_mov_b64 s[{S_SAVE}:{S_SAVE+1}], exec")
        a(f"s_mov_b64 exec, {val}")
    def rest_exec():
        a(f"s_mov_b64 exec, s[{S_SAVE}:{S_SAVE+1}]")

    a.l += [f"; Kernarg layout (72 bytes): A_x, A_wqkv, A_wo, B_x, B_wqkv, B_wo, out, debug, ws",
            f"; @launch grid=(256,1,1) block=(512,1,1) lds={LDS_TOTAL}"]
    a(f""".amdgcn_target "amdgcn-amd-amdhsa--gfx950"
.text
.globl {NAME}_kernel
.p2align 8
.type {NAME}_kernel,@function""")
    a.lab(f"{NAME}_kernel")
    a("s_cmp_ge_u32 s2, 256")
    a("s_cbranch_scc1 L_END")
    a(f"s_and_b32 s3, s2, 7")
    if 'xmap' in exp:
        a(f"s_bfe_u32 s{S_B}, s3, 0x10001")
    else:
        a(f"s_lshr_b32 s{S_B}, s3, 2")
    a(f"s_mul_i32 s{S_T0}, s{S_B}, 24")
    a(f"s_add_u32 s4, s0, s{S_T0}")
    a(f"s_addc_u32 s5, s1, 0")
    a(f"s_load_dwordx2 s[{S_X}:{S_X+1}], s[4:5], 0")
    a(f"s_load_dwordx2 s[{S_W}:{S_W+1}], s[4:5], 8")
    a(f"s_load_dwordx2 s[{S_WO}:{S_WO+1}], s[4:5], 16")
    a(f"s_load_dwordx2 s[{S_OUT}:{S_OUT+1}], s[0:1], 48")
    a(f"s_load_dwordx2 s[{S_WS}:{S_WS+1}], s[0:1], 64")
    if timing:
        for i in range(13): a(f"s_mov_b32 s{70+2*i}, 0")
    ts(0)
    a(f"s_lshr_b32 s{S_I}, s2, 3")
    if 'xmap' in exp:
        a(f"s_and_b32 s{S_T2}, s3, 1")
        a(f"s_lshl_b32 s{S_T2}, s{S_T2}, 2")
        a(f"s_and_b32 s{S_T3}, s{S_I}, 3")
        a(f"s_add_u32 s{S_S}, s{S_T2}, s{S_T3}")
        a(f"s_lshr_b32 s{S_T4}, s{S_I}, 2")
        a(f"s_cmp_lt_u32 s3, 4")
        a(f"s_mov_b32 s{S_T2}, 0xFDB96420")
        a(f"s_cselect_b32 s{S_T2}, 0xECA87531, s{S_T2}")
        a(f"s_lshl_b32 s{S_T0}, s{S_T4}, 2")
        a(f"s_lshr_b32 s{S_T2}, s{S_T2}, s{S_T0}")
        a(f"s_and_b32 s{S_HP}, s{S_T2}, 15")
    else:
        a(f"s_lshr_b32 s{S_T2}, s3, 1")
        a(f"s_and_b32 s{S_T2}, s{S_T2}, 1")
        a(f"s_lshl_b32 s{S_T2}, s{S_T2}, 2")
        a(f"s_and_b32 s{S_T3}, s{S_I}, 3")
        a(f"s_add_u32 s{S_S}, s{S_T2}, s{S_T3}")
        a(f"s_and_b32 s{S_T2}, s3, 1")
        a(f"s_lshl_b32 s{S_T2}, s{S_T2}, 3")
        a(f"s_lshr_b32 s{S_T4}, s{S_I}, 2")
        a(f"s_add_u32 s{S_HP}, s{S_T2}, s{S_T4}")
    a(f"s_lshl_b32 s{S_T3}, s{S_T3}, 1")
    a(f"s_add_u32 s{S_C}, s{S_T4}, s{S_T3}")
    a(f"s_cmp_ge_u32 s{S_C}, 9")
    a(f"s_cselect_b32 s{S_T3}, 9, 0")
    a(f"s_sub_u32 s{S_C}, s{S_C}, s{S_T3}")
    if 'norot' in exp: a(f"s_mov_b32 s{S_C}, 0")
    for key, mul in (('rot2', 2), ('rot3', 3)):
        if key in exp or (key == 'rot2' and 'rot' not in exp):
            a(f"s_lshr_b32 s{S_C}, s{S_T4}, 1")
            a(f"s_and_b32 s{S_T3}, s{S_I}, 3")
            a(f"s_add_u32 s{S_C}, s{S_C}, s{S_T3}")
            a(f"s_mul_i32 s{S_C}, s{S_C}, {mul}")
            for _ in range(2):
                a(f"s_cmp_ge_u32 s{S_C}, 9")
                a(f"s_cselect_b32 s{S_T3}, 9, 0")
                a(f"s_sub_u32 s{S_C}, s{S_C}, s{S_T3}")
    if 'rot4' in exp:
        a(f"s_lshr_b32 s{S_C}, s{S_T4}, 2")
        a(f"s_and_b32 s{S_T3}, s{S_I}, 3")
        a(f"s_lshr_b32 s{S_T3}, s{S_T3}, 1")
        a(f"s_add_u32 s{S_C}, s{S_C}, s{S_T3}")
        a(f"s_mul_i32 s{S_C}, s{S_C}, 3")
    a(f"s_lshl_b32 s{S_T0}, s{S_B}, 4")
    a(f"s_add_u32 s{S_T0}, s{S_T0}, s{S_HP}")
    a(f"s_lshl_b32 s{S_T0}, s{S_T0}, 3")
    a(f"s_add_u32 s{S_IDX}, s{S_T0}, s{S_S}")
    a(f"s_lshl_b32 s{S_T0}, s{S_B}, 3")
    a(f"s_add_u32 s{S_GRP}, s{S_T0}, s{S_S}")
    a(f"v_lshrrev_b32 v{t}, 6, v0")
    a(f"v_and_b32 v{L}, 63, v0")
    a(f"v_readfirstlane_b32 s{S_WID}, v{t}")
    for (r, n) in ((S_X, 2359296), (S_W, 1990656), (S_WO, 663552), (S_WS, 268435456), (S_OUT, 4718592)):
        a(f"s_mov_b32 s{r+2}, {n}")
        a(f"s_mov_b32 s{r+3}, 0x00020000")
    a(f"s_and_b32 s{S_M}, s{S_WID}, 3")
    a(f"s_lshr_b32 s{S_HEAD}, s{S_WID}, 2")
    a(f"s_sub_u32 s{S_MB}, 7, s{S_M}")
    a(f"s_lshl_b32 s{S_T0}, s{S_GRP}, 18")
    a(f"s_add_u32 s{S_T0}, s{S_T0}, {WS_O}")
    a(f"s_lshl_b32 s{S_T1}, s{S_HP}, 10")
    a(f"s_lshl_b32 s{S_T2}, s{S_HEAD}, 9")
    a(f"s_add_u32 s{S_T1}, s{S_T1}, s{S_T2}")
    a(f"s_add_u32 s{S_OM}, s{S_T1}, s{S_T0}")
    a(f"s_lshl_b32 s{S_T0}, s{S_GRP}, 15")
    a(f"s_add_u32 s{S_T0}, s{S_T0}, {WS_OR}")
    a(f"s_lshl_b32 s{S_T1}, s{S_HP}, 1")
    a(f"s_add_u32 s{S_T1}, s{S_T1}, s{S_HEAD}")
    a(f"s_lshl_b32 s{S_T1}, s{S_T1}, 10")
    a(f"s_add_u32 s{S_OR}, s{S_T1}, s{S_T0}")
    a(f"s_lshl_b32 s{S_OFS}, s{S_GRP}, 12")
    a(f"s_add_u32 s{S_OFS}, s{S_OFS}, {WS_OF}")
    a(f"s_cmp_lt_u32 s{S_WID}, 4")
    a("s_cbranch_scc1 L_COMPUTE")

    emit_masks = lambda: emit_masks_(a)
    emit_p2_patterns = lambda: emit_p2_patterns_(a)

    a(f"s_sub_u32 s{S_L}, s{S_WID}, 4")
    a(f"v_lshrrev_b32 v{t}, 3, v{L}")
    a(f"v_mul_u32_u24 v{t}, 1152, v{t}")
    a(f"v_lshrrev_b32 v{t+1}, 4, v{L}")
    a(f"v_and_b32 v{t+2}, 7, v{L}")
    a(f"v_xor_b32 v{t+3}, v{t+2}, v{t+1}")
    a(f"v_lshl_add_u32 v{V_AX}, v{t+3}, 4, v{t}")
    a(f"v_xor_b32 v{t+3}, 4, v{t+3}")
    a(f"v_lshl_add_u32 v{V_AX+1}, v{t+3}, 4, v{t}")
    a(f"s_mul_i32 s{S_T0}, s{S_HP}, 72")
    a(f"s_and_b32 s{S_T0}, s{S_T0}, 0xfffffff0")
    a(f"v_and_b32 v{t+2}, 15, v{L}")
    a(f"v_mul_u32_u24 v{t+4}, 3456, v{t+1}")
    a(f"v_add_u32 v{t+4}, s{S_T0}, v{t+4}")
    for var in range(2):
        a(f"v_lshlrev_b32 v{t+3}, 1, v{t+1}")
        a(f"v_sub_u32 v{t+3}, v{t+2}, v{t+3}")
        if var: a(f"v_subrev_u32 v{t+3}, 8, v{t+3}")
        a(f"v_and_b32 v{t+3}, 15, v{t+3}")
        a(f"v_min_u32 v{t+3}, 14, v{t+3}")
        a(f"v_mul_u32_u24 v{t+5}, 13, v{t+3}")
        a(f"v_lshrrev_b32 v{t+5}, 6, v{t+5}")
        a(f"v_mul_u32_u24 v{t+6}, 5, v{t+5}")
        a(f"v_sub_u32 v{t+6}, v{t+3}, v{t+6}")
        a(f"v_mul_u32_u24 v{t+5}, 1152, v{t+5}")
        a(f"v_lshl_add_u32 v{t+6}, v{t+6}, 4, v{t+5}")
        a(f"v_add_u32 v{V_AX+2+var}, v{t+4}, v{t+6}")
    for i in range(8):
        a(f"v_add_u32 v{V_LDX+i}, {i*9216-(i&3)*1024}, v{V_AX+(i&1)}")
    for i in range(4):
        a(f"v_add_u32 v{V_LDW+i}, {i*4*3456-i*1024}, v{V_AX+2+(i>>1)}")
    a(f"s_lshl_b32 s{S_T0}, s{S_S}, 8")
    a(f"s_lshl_b32 s{S_T1}, s{S_L}, 6")
    a(f"s_add_u32 s{S_T0}, s{S_T0}, s{S_T1}")
    a(f"s_mul_i32 s{S_XB}, s{S_T0}, 1152")
    a(f"s_mul_i32 s{S_WB}, s{S_L}, {16*3456}")
    a(f"s_lshl_b32 s{S_LX}, s{S_L}, 13")
    a(f"s_lshl_b32 s{S_LW}, s{S_L}, 12")
    a(f"s_add_u32 s{S_LW}, s{S_LW}, 32768")
    a(f"s_mov_b32 s{S_SB}, 0")
    def chunk_pre():
        a(f"s_lshl_b32 s{S_T0}, s{S_C}, 7")
        a(f"s_add_u32 s{S_T0}, s{S_T0}, s{S_XB}")
        a(f"s_mul_i32 s{S_T1}, s{S_C}, {64*3456}")
        a(f"s_add_u32 s{S_T1}, s{S_T1}, s{S_WB}")
        a(f"s_add_u32 s{S_T2}, s{S_SB}, s{S_LW}")
        a(f"s_add_u32 s{S_T3}, s{S_SB}, s{S_LX}")
        a(f"s_add_u32 s{S_C}, s{S_C}, 1")
        a(f"s_cmp_eq_u32 s{S_C}, 9")
        a(f"s_cselect_b32 s{S_C}, 0, s{S_C}")
        a(f"s_add_u32 s{S_SB}, s{S_SB}, {STAGE}")
        a(f"s_cmp_eq_u32 s{S_SB}, {3*STAGE}")
        a(f"s_cselect_b32 s{S_SB}, 0, s{S_SB}")
    def chunk_w():
        a(f"s_mov_b32 m0, s{S_T2}")
        a("s_nop 0")
        for i in range(4):
            a(f"buffer_load_dwordx4 v{V_LDW+i}, s[{S_W}:{S_W+3}], s{S_T1} offen offset:{i*1024} lds")
    def chunk_x(lo, hi):
        for i in range(lo, hi):
            if i == lo or i == 4:
                a(f"s_add_u32 m0, s{S_T3}, {(i&~3)*1024}")
                a("s_nop 0")
            a(f"buffer_load_dwordx4 v{V_LDX+i}, s[{S_X}:{S_X+3}], s{S_T0} offen offset:{(i&3)*1024} lds")
    chunk_pre()
    a("s_waitcnt lgkmcnt(0)")
    chunk_w(); chunk_x(0, 8)
    chunk_pre(); chunk_w(); chunk_x(0, 2)
    a("s_waitcnt vmcnt(6)")
    a("s_barrier")
    chunk_x(2, 8)
    chunk_pre()
    a(f"s_mov_b32 s{S_K}, 2")
    a.lab("L_LD")
    chunk_w(); chunk_x(0, 8)
    chunk_pre()
    a(f"s_add_u32 s{S_K}, s{S_K}, 1")
    a(f"s_cmp_lt_u32 s{S_K}, 9")
    a("s_waitcnt vmcnt(12)")
    a("s_barrier")
    a("s_cbranch_scc1 L_LD")
    a(f"s_lshl_b32 s{S_T0}, s{S_L}, 6")
    a(f"v_add_u32 v{t}, s{S_T0}, v{L}")
    a(f"v_mul_u32_u24 v{t+1}, 7282, v{t}")
    a(f"v_lshrrev_b32 v{t+1}, 16, v{t+1}")
    a(f"v_mul_u32_u24 v{t+2}, 9, v{t+1}")
    a(f"v_sub_u32 v{t+2}, v{t}, v{t+2}")
    a(f"v_mul_u32_u24 v{t+1}, 1152, v{t+1}")
    a(f"v_lshl_add_u32 v{t+1}, v{t+2}, 7, v{t+1}")
    a(f"s_mul_i32 s{S_T0}, s{S_I}, {18*1152}")
    a(f"v_cmp_gt_u32 vcc, 162, v{t}")
    a(f"v_cndmask_b32_e64 v{t+1}, 0, v{t+1}, vcc")
    a(f"buffer_load_dword v255, v{t+1}, s[{S_WO}:{S_WO+3}], s{S_T0} offen")
    emit_masks()
    emit_p2_patterns()
    a(f"v_mul_u32_u24 v{t+1}, 7282, v{L}")
    a(f"v_lshrrev_b32 v{t+1}, 16, v{t+1}")
    a(f"v_mul_u32_u24 v{t+2}, 9, v{t+1}")
    a(f"v_sub_u32 v{t+2}, v{L}, v{t+2}")
    a(f"v_mul_u32_u24 v{t+1}, 1152, v{t+1}")
    a(f"v_lshl_add_u32 v{t+1}, v{t+2}, 4, v{t+1}")
    a(f"s_and_b32 s{S_T0}, s{S_HP}, 7")
    a(f"s_mul_i32 s{S_T0}, s{S_T0}, 144")
    a(f"v_add_u32 v{V_WOV}, s{S_T0}, v{t+1}")
    for j in range(1, 4): a(f"v_add_u32 v{V_WOV+j}, {j*(8064-1008)}, v{V_WOV}")
    a(f"s_mul_i32 s{S_T0}, s{S_L}, {21*1008}")
    a(f"s_mul_i32 s{S_T1}, s{S_L}, {21*8064}")
    a("s_waitcnt vmcnt(1)")
    a("s_barrier")
    WO = f"s[{S_WO}:{S_WO+3}]"
    NW1 = 8 if 'wo8' not in exp else 4
    a(f"s_bitset0_b64 exec, 63")
    for j in range(21):
        if j == NW1:
            a(f"s_mov_b64 exec, -1")
            a("s_barrier")
            a(f"s_bitset0_b64 exec, 63")
        if j == 19:
            a(f"s_cmp_eq_u32 s{S_L}, 3")
            a("s_cbranch_scc0 L_WO_N")
            a(f"s_mov_b64 exec, 0x3ffff")
            a(f"buffer_load_dwordx4 v{V_WOV+(j&3)}, {WO}, s{S_T2} offen offset:{(j&3)*1008} lds")
            a("s_branch L_WO_DONE")
            a.lab("L_WO_N")
        if j % 4 == 0:
            a(f"s_add_u32 m0, s{S_T0}, {j*1008}")
            a(f"s_add_u32 s{S_T2}, s{S_T1}, {j*8064}")
        a(f"buffer_load_dwordx4 v{V_WOV+(j&3)}, {WO}, s{S_T2} offen offset:{(j&3)*1008} lds")
    a.lab("L_WO_DONE")
    a(f"s_mov_b64 exec, -1")
    for r in range(16):
        a(f"v_mov_b32 v{OA+r}, 0")
        a(f"v_mov_b32 v{OB+r}, 0")
    a(f"v_lshlrev_b32 v{V_PA}, 4, v{L}")
    a(f"s_lshl_b32 s{S_T0}, s{S_L}, 10")
    a(f"v_add_u32 v{V_PA}, s{S_T0}, v{V_PA}")
    a(f"v_add_u32 v{V_PA+1}, {KV_OWN}, v{V_PA}")
    a(f"s_mul_i32 s{S_T1}, s{S_IDX}, 36864")
    a("s_barrier")
    a(f"s_cmp_eq_u32 s{S_S}, 7")
    a("s_cbranch_scc1 L_NOPUB")
    order = [8, 7, 6, 5, 4, 3, 2, 1, 0]
    for c, i in enumerate(order):
        a(f"ds_read_b128 v[{VH+4*c}:{VH+4*c+3}], v{V_PA+1} offset:{i*4096}")
    for c, i in enumerate(order[:5]):
        a(f"s_waitcnt lgkmcnt({8-c})")
        a(f"s_add_u32 s{S_T2}, s{S_T1}, {i*4096}")
        a(f"buffer_store_dwordx4 v[{VH+4*c}:{VH+4*c+3}], v{V_PA}, {WS}, s{S_T2} offen sc1")
    a.lab("L_NOPUB")
    a("s_branch L_P2")

    a.lab("L_COMPUTE")
    a(f"v_and_b32 v{t}, 15, v{L}")
    a(f"v_lshrrev_b32 v{t+1}, 4, v{L}")
    a(f"v_lshrrev_b32 v{t+2}, 1, v{t}")
    a(f"s_lshl_b32 s{S_T0}, s{S_WID}, 6")
    a(f"v_add_u32 v{t+3}, s{S_T0}, v{t}")
    a(f"v_lshlrev_b32 v{t+3}, 7, v{t+3}")
    a(f"v_xor_b32 v{t+4}, v{t+1}, v{t+2}")
    a(f"v_lshlrev_b32 v{t+5}, 4, v{t+4}")
    a(f"v_add_u32 v{V_AX}, v{t+3}, v{t+5}")
    a(f"v_xor_b32 v{t+4}, 4, v{t+4}")
    a(f"v_lshlrev_b32 v{t+5}, 4, v{t+4}")
    a(f"v_add_u32 v{V_AX+1}, v{t+3}, v{t+5}")
    a(f"v_bfe_u32 v{t}, v{L}, 2, 2")
    a(f"v_and_b32 v{t+2}, 3, v{L}")
    a(f"v_and_b32 v{t+3}, 1, v{t+1}")
    a(f"v_lshl_add_u32 v{t+3}, v{t+3}, 2, v{t}")
    a(f"v_lshlrev_b32 v{t+3}, 5, v{t+3}")
    a(f"v_lshl_add_u32 v{t+4}, v{t+1}, 3, v{t}")
    a(f"v_lshlrev_b32 v{t+4}, 8, v{t+4}")
    a(f"v_add_u32 v{t+4}, 32768, v{t+4}")
    a(f"v_lshlrev_b32 v{t+5}, 3, v{t+2}")
    a(f"s_and_b32 s{S_T1}, s{S_HP}, 1")
    a(f"s_lshl_b32 s{S_T1}, s{S_T1}, 3")
    a(f"v_add3_u32 v{t+5}, v{t+5}, v{t+3}, s{S_T1}")
    for Tn in range(6):
        off = 80*(Tn >> 1) + (40 if Tn & 1 else 0)
        a(f"v_add_u32 v{t+6}, {off}, v{t+5}")
        a(f"v_and_b32 v{t+6}, 255, v{t+6}")
        a(f"v_add_u32 v{V_AW+Tn}, v{t+4}, v{t+6}")
    a(f"v_min_u32 v{t+6}, 2, v{t+2}")
    a(f"v_mul_u32_u24 v{t+6}, 80, v{t+6}")
    a(f"v_add3_u32 v{t+6}, v{t+6}, v{t+3}, s{S_T1}")
    a(f"v_add_u32 v{t+6}, 32, v{t+6}")
    a(f"v_and_b32 v{t+6}, 255, v{t+6}")
    a(f"v_add_u32 v{V_AW+6}, v{t+4}, v{t+6}")
    a(f"v_and_b32 v{t}, 15, v{L}")
    a(f"v_lshrrev_b32 v{t+1}, 4, v{L}")
    a(f"v_and_b32 v{t+2}, 1, v{t+1}")
    a(f"v_lshl_add_u32 v{t+2}, v{t+2}, 4, v{t}")
    a(f"v_lshrrev_b32 v{t+3}, 2, v{t}")
    a(f"v_lshrrev_b32 v{t+4}, 3, v{t}")
    a(f"v_xor_b32 v{t+3}, v{t+3}, v{t+4}")
    a(f"v_lshrrev_b32 v{t+4}, 1, v{t+1}")
    a(f"v_xor_b32 v{t+3}, v{t+3}, v{t+4}")
    a(f"v_and_b32 v{t+3}, 1, v{t+3}")
    a(f"v_lshlrev_b32 v{t+3}, 4, v{t+3}")
    a(f"v_lshl_add_u32 v{t+3}, v{t+2}, 5, v{t+3}")
    a(f"s_mul_i32 s{S_T0}, s{S_WID}, {2*TILE}")
    a(f"s_add_u32 s{S_T0}, s{S_T0}, {KV_OWN}")
    a(f"s_mul_i32 s{S_T1}, s{S_WID}, {2*QTILE}")
    a(f"s_add_u32 s{S_T1}, s{S_T1}, {Q_BASE}")
    a(f"v_add_u32 v{vEK}, s{S_T0}, v{t+3}")
    a(f"v_add_u32 v{vEQ}, s{S_T1}, v{t+3}")
    a(f"v_mul_u32_u24 v{t+4}, 72, v{t}")
    a(f"v_lshl_add_u32 v{t+5}, v{t+1}, 3, v{t+4}")
    a(f"v_add_u32 v{t+5}, 2304, v{t+5}")
    a(f"v_add_u32 v{vEV}, s{S_T0}, v{t+5}")
    a(f"v_lshlrev_b32 v{t+5}, 3, v{t}")
    a(f"v_add_u32 v{t+5}, 2048, v{t+5}")
    a(f"v_add_u32 v{t+6}, s{S_T1}, v{t+5}")
    a(f"v_add_u32 v{t+7}, s{S_T0}, v{t+5}")
    a(f"v_add_u32 v{t+4}, {2304+32}, v{t+4}")
    a(f"v_add_u32 v{t+4}, s{S_T0}, v{t+4}")
    a(f"v_mov_b32 v{vDr}, 128")
    a(f"v_mov_b32 v{vDt}, {TILE}")
    a(f"v_mov_b32 v{vF}, 1.0")
    a(f"v_mov_b32 v{vE6}, v{t+7}")
    a(f"v_cmp_eq_u32 vcc, 0, v{t+1}")
    a(f"v_mov_b32 v{t+5}, {QTILE}")
    a(f"v_mov_b32 v{vC}, {f32bits(QSCALE):#x}")
    a(f"v_cndmask_b32 v{vE6}, v{vE6}, v{t+6}, vcc")
    a(f"v_cndmask_b32 v{vDt}, v{vDt}, v{t+5}, vcc")
    a(f"v_cndmask_b32 v{vF}, v{vF}, v{vC}, vcc")
    a(f"v_cmp_eq_u32 vcc, 2, v{t+1}")
    a(f"v_mov_b32 v{t+5}, 1152")
    a(f"v_mov_b32 v{vC+1}, v{vC}")
    a(f"v_cndmask_b32 v{vE6}, v{vE6}, v{t+4}, vcc")
    a(f"v_cndmask_b32 v{vDr}, v{vDr}, v{t+5}, vcc")
    a(f"v_mov_b32 v{vF+1}, v{vF}")
    a("s_waitcnt lgkmcnt(0)")
    if 'nocp' not in exp:
        a(f"s_cmp_lg_u32 s{S_WID}, 3")
        a("s_cbranch_scc1 L_NOCP")
        a(f"s_getpc_b64 s[{S_RET}:{S_RET+1}]")
        a.lab("L_PCREF")
        a(f"s_sub_u32 s{S_RET}, s{S_RET}, L_PCREF-{NAME}_kernel")
        a(f"s_subb_u32 s{S_RET+1}, s{S_RET+1}, 0")
        a(f"s_mul_i32 s{S_T0}, s{S_I}, {5*128}")
        a(f"v_lshlrev_b32 v{t}, 7, v{L}")
        a(f"v_add_u32 v{t}, s{S_T0}, v{t}")
        a(f"s_mov_b32 s{S_T1}, L_END-{NAME}_kernel")
        a(f"v_cmp_gt_u32 vcc, s{S_T1}, v{t}")
        a(f"s_and_b64 vcc, vcc, 31")
        a(f"s_and_saveexec_b64 s[{S_SAVE}:{S_SAVE+1}], vcc")
        a("s_cbranch_execz L_NOCP2")
        a(f"global_load_dword v{V_TL}, v{t}, s[{S_RET}:{S_RET+1}]")
        a.lab("L_NOCP2")
        rest_exec()
        a.lab("L_NOCP")
    a(f"s_cmp_lg_u32 s{S_WID}, 0")
    a("s_cbranch_scc1 L_NOG0")
    a(f"s_lshl_b32 s{S_T0}, s{S_IDX}, 8")
    a(f"s_add_u32 s{S_T0}, s{S_T0}, {WS_FLAG}")
    a(f"s_lshl_b32 s{S_T1}, s{S_GRP}, 12")
    a(f"s_add_u32 s{S_T1}, s{S_T1}, {WS_OF}")
    a(f"v_mov_b32 v{t}, 0")
    a(f"buffer_load_dword v{V_TG}, v{t}, {WS}, s{S_T0} offen sc1")
    a(f"s_sub_u32 s{S_T0}, s{S_T0}, 256")
    a(f"s_max_u32 s{S_T0}, s{S_T0}, {WS_FLAG}")
    a(f"buffer_load_dword v{V_TG+1}, v{t}, {WS}, s{S_T0} offen sc1")
    a(f"buffer_load_dword v{V_TG+2}, v{t}, {WS}, s{S_T1} offen sc1")
    a.lab("L_NOG0")
    for i in range(112):
        a(f"v_mov_b32 v{V_ACC+i}, 0")
    emit_masks()
    emit_p2_patterns()
    a(f"v_mov_b32 v{t+2}, 0x3f803f80")
    a(f"v_mov_b32 v{t+3}, 0x3f803f80")
    a(f"v_mul_u32_u24 v{t+4}, 576, v{L}")
    a(f"v_add_u32 v{t+4}, {MISC}, v{t+4}")
    save_exec(15)
    a(f"ds_write_b64 v{t+4}, v[{t+2}:{t+3}]")
    rest_exec()
    a(f"s_cmp_lg_u32 s{S_WID}, 0")
    a("s_cbranch_scc1 L_NOG1")
    a("s_waitcnt vmcnt(0)")
    for i in range(3): a(f"v_add_u32 v{V_TG+i}, {TAG_INC:#x}, v{V_TG+i}")
    a(f"v_mov_b32 v{V_TG+3}, 0")
    a(f"v_mov_b32 v{t+4}, {TAGS_LDS}")
    save_exec(1)
    a(f"ds_write_b128 v{t+4}, v[{V_TG}:{V_TG+3}]")
    for i in range(4): a(f"v_mov_b32 v{V_TG+i}, 0")
    a(f"ds_write_b128 v{t+4}, v[{V_TG}:{V_TG+3}] offset:16")
    rest_exec()
    a.lab("L_NOG1")
    a("s_waitcnt lgkmcnt(0)")
    a("s_barrier")
    if "tsh" not in exp and "tsj" not in exp: ts(1)
    def reads(setb, ks):
        xs = [f"ds_read_b128 v[{setb+4*mt}:{setb+4*mt+3}], v{V_AX+ks} offset:{mt*2048}" for mt in range(4)]
        ws = []
        for Tn in range(7):
            b = setb + 16 + 4*Tn
            ws.append(f"ds_read_b64_tr_b16 v[{b}:{b+1}], v{V_AW+Tn} offset:{ks*8192}")
            ws.append(f"ds_read_b64_tr_b16 v[{b+2}:{b+3}], v{V_AW+Tn} offset:{ks*8192+1024}")
        return [xs[0], ws[0], ws[1], xs[1], ws[2], ws[3], xs[2], ws[4], ws[5], xs[3]] + ws[6:]
    def mfmas(setb):
        m = []
        for Tn in range(7):
            for mt in range(4):
                d = V_ACC + (mt*7+Tn)*4
                m.append(f"v_mfma_f32_16x16x32_bf16 v[{d}:{d+3}], v[{setb+16+4*Tn}:{setb+16+4*Tn+3}], v[{setb+4*mt}:{setb+4*mt+3}], v[{d}:{d+3}]")
        return m
    def interleave(ms, extra, per=1):
        ri = 0
        for i, m in enumerate(ms):
            a(m)
            for _ in range(per):
                if ri < len(extra): a(extra[ri]); ri += 1
        while ri < len(extra):
            a(extra[ri]); ri += 1
    for i in range(4): a(f"v_mov_b32 v{V_TG+i}, -1")
    a(f"v_lshlrev_b32 v{V_TL+1}, 4, v{L}")
    a(f"s_lshl_b32 s{S_XB}, s{S_GRP}, 18")
    a(f"s_add_u32 s{S_XB}, s{S_XB}, {WS_O}")
    a(f"s_lshl_b32 s{S_T0}, s{S_WID}, 16")
    a(f"s_add_u32 s{S_XB}, s{S_XB}, s{S_T0}")
    a(f"s_lshl_b32 s{S_T0}, s{S_HP}, 10")
    a(f"s_add_u32 s{S_XB}, s{S_XB}, s{S_T0}")
    a(f"s_lshl_b32 s{S_WB}, s{S_GRP}, 15")
    a(f"s_add_u32 s{S_WB}, s{S_WB}, {WS_OR}")
    a(f"s_lshl_b32 s{S_T0}, s{S_HP}, 1")
    a(f"s_and_b32 s{S_T1}, s{S_WID}, 1")
    a(f"s_add_u32 s{S_T0}, s{S_T0}, s{S_T1}")
    a(f"s_lshl_b32 s{S_T0}, s{S_T0}, 10")
    a(f"s_add_u32 s{S_WB}, s{S_WB}, s{S_T0}")
    for rd in reads(V_SET0, 0): a(rd)
    a(f"s_mov_b32 s{S_K}, 0")
    a(f"s_mov_b32 s{S_SB}, 0")
    if 'tb' in exp: a(f"v_mov_b32 v{V_TL}, 0")
    a.lab("L_GEMM")
    a(f"s_cmp_ge_u32 s{S_K}, 5")
    a("s_cbranch_scc1 L_GEMM_NS")
    a(f"s_cmp_eq_u32 s{S_K}, 4")
    a(f"s_cselect_b32 s{S_XB}, s{S_WB}, s{S_XB}")
    a(f"buffer_store_dwordx4 v[{V_TG}:{V_TG+3}], v{V_TL+1}, {WS}, s{S_XB} offen sc1")
    a(f"s_add_u32 s{S_XB}, s{S_XB}, 16384")
    a.lab("L_GEMM_NS")
    a(f"s_cmp_eq_u32 s{S_K}, 7")
    a("s_cbranch_scc0 L_GEMM_NC")
    a(f"v_mov_b32 v{t}, {TAGS_LDS+8}")
    a(f"ds_read_b32 v{t+3}, v{t}")
    a("s_waitcnt vmcnt(0) lgkmcnt(0)")
    a(f"v_readfirstlane_b32 s{S_TAGO}, v{t+3}")
    oflag(a, "L_CLR", CNTOB, 128, save_exec, rest_exec, last=3)
    a.lab("L_GEMM_NC")
    a("s_waitcnt lgkmcnt(0)")
    if 'tb' in exp:
        a(f"s_sub_u32 s92, s92, s70")
        a(f"s_mov_b32 m0, s{S_K}")
        a("s_nop 4")
        a(f"v_writelane_b32 v{V_TL}, s92, m0")
    sal = [f"s_add_u32 s{S_SB}, s{S_SB}, 1", f"s_cmp_eq_u32 s{S_SB}, 3", f"s_mov_b32 s{S_T0}, {STAGE}",
           f"s_cselect_b32 s{S_T0}, {(-2*STAGE) & 0xffffffff}, s{S_T0}", f"s_cselect_b32 s{S_SB}, 0, s{S_SB}"]
    interleave(mfmas(V_SET0), reads(V_SET1, 1) + sal)
    a("s_waitcnt lgkmcnt(0)")
    a("s_barrier")
    if 'tb' in exp: a("s_memtime s[92:93]")
    rd = reads(V_SET0, 0)
    adds = [f"v_add_u32 v{V_AX+i}, s{S_T0}, v{V_AX+i}" for i in range(9)]
    ex = [adds[0], adds[2], rd[0], rd[1], rd[2], adds[3], rd[3], rd[4], rd[5], adds[4], rd[6], rd[7], rd[8], rd[9],
          adds[5], rd[10], rd[11], adds[6], rd[12], rd[13], adds[7], rd[14], rd[15], adds[8], rd[16], rd[17], adds[1],
          f"s_add_u32 s{S_K}, s{S_K}, 1", f"s_cmp_lt_u32 s{S_K}, 9"]
    ms = mfmas(V_SET1)
    ri = 0
    for i, m in enumerate(ms):
        a(m)
        n = 2 if i < 6 else 1
        for _ in range(n):
            if ri < len(ex): a(ex[ri]); ri += 1
    assert ri == len(ex)
    a("s_cbranch_scc1 L_GEMM")
    if "tsh" not in exp and "tsj" not in exp: ts(2)
    a.c("phase-1 epilogue")
    a("s_waitcnt lgkmcnt(0)")
    acc = lambda mt, Tn: V_ACC + (mt*7+Tn)*4
    e = [V_SET0]
    def qk_tile(Tn, base_reg, pstride, hoff):
        for p in range(2):
            R = e[0]; e[0] += 4
            da, db = acc(2*p, Tn), acc(2*p+1, Tn)
            a(f"v_cvt_pk_bf16_f32 v{R}, v{da}, v{da+1}")
            a(f"v_cvt_pk_bf16_f32 v{R+2}, v{db}, v{db+1}")
            a(f"v_cvt_pk_bf16_f32 v{R+1}, v{da+2}, v{da+3}")
            a(f"v_cvt_pk_bf16_f32 v{R+3}, v{db+2}, v{db+3}")
            a("s_nop 0")
            a(f"v_permlane16_swap_b32 v{R}, v{R+2}")
            a(f"v_permlane16_swap_b32 v{R+1}, v{R+3}")
            a(f"ds_write_b128 v{base_reg}, v[{R}:{R+3}] offset:{p*pstride+hoff}")
    a("s_nop 3")
    qk_tile(2, vEK, TILE, 0)
    qk_tile(3, vEK, TILE, 1024)
    for Tn in (4, 5):
        for mt in range(4):
            R = e[0]; e[0] += 2
            d = acc(mt, Tn)
            a(f"v_cvt_pk_bf16_f32 v{R}, v{d}, v{d+1}")
            a(f"v_cvt_pk_bf16_f32 v{R+1}, v{d+2}, v{d+3}")
            a(f"ds_write_b64 v{vEV}, v[{R}:{R+1}] offset:{(mt>>1)*TILE + (mt&1)*1152 + (40 if Tn==5 else 0)}")
    R6 = e[0]; e[0] += 8
    for mt in range(4):
        d = acc(mt, 6)
        a(f"v_pk_mul_f32 v[{d}:{d+1}], v[{d}:{d+1}], v[{vF}:{vF+1}]")
        a(f"v_pk_mul_f32 v[{d+2}:{d+3}], v[{d+2}:{d+3}], v[{vF}:{vF+1}]")
    for mt in range(4):
        d = acc(mt, 6)
        a(f"v_cvt_pk_bf16_f32 v{R6+2*mt}, v{d}, v{d+1}")
        a(f"v_cvt_pk_bf16_f32 v{R6+2*mt+1}, v{d+2}, v{d+3}")
    a(f"v_add_u32 v{t}, v{vE6}, v{vDr}")
    a(f"v_add_u32 v{t+1}, v{vE6}, v{vDt}")
    a(f"v_add_u32 v{t+2}, v{t+1}, v{vDr}")
    a(f"s_mov_b64 s[{S_SAVE}:{S_SAVE+1}], exec")
    a(f"s_mov_b32 exec_hi, 0x0000ffff")
    a(f"ds_write_b64 v{vE6}, v[{R6}:{R6+1}]")
    a(f"ds_write_b64 v{t}, v[{R6+2}:{R6+3}]")
    a(f"ds_write_b64 v{t+1}, v[{R6+4}:{R6+5}]")
    a(f"ds_write_b64 v{t+2}, v[{R6+6}:{R6+7}]")
    rest_exec()
    a("s_waitcnt lgkmcnt(0)")
    a("s_barrier")
    for mt in range(4):
        for Tn in (0, 1):
            d = acc(mt, Tn)
            a(f"v_pk_mul_f32 v[{d}:{d+1}], v[{d}:{d+1}], v[{vC}:{vC+1}]")
            a(f"v_pk_mul_f32 v[{d+2}:{d+3}], v[{d+2}:{d+3}], v[{vC}:{vC+1}]")
    e[0] = 84
    qk_tile(0, vEQ, QTILE, 0)
    qk_tile(1, vEQ, QTILE, 1024)
    for r in range(16):
        a(f"v_mov_b32 v{OA+r}, 0")
        a(f"v_mov_b32 v{OB+r}, 0")

    a.lab("L_P2")
    a(f"v_mov_b32 v{t}, {TAGS_LDS}")
    a(f"ds_read_b128 v[{V_TG}:{V_TG+3}], v{t}")
    a("s_waitcnt lgkmcnt(0)")
    a("s_barrier")
    ts(3)
    if debug_stage == 1:
        a(f"s_lshl_b32 s{S_T0}, s{S_IDX}, 16")
        a(f"v_lshlrev_b32 v{t}, 4, v0")
        for i in range(7):
            a(f"v_add_u32 v{t+1}, {KV_OWN + i*8192}, v{t}")
            a(f"ds_read_b128 v[40:43], v{t+1}")
            a("s_waitcnt lgkmcnt(0)")
            a(f"v_add_u32 v{t+2}, {i*8192}, v{t}")
            a(f"buffer_store_dwordx4 v[40:43], v{t+2}, {WS}, s{S_T0} offen")
            a("s_waitcnt vmcnt(0)")
        a("s_branch L_FIN")
    if debug_stage == 9:
        a("s_branch L_FIN")
    if debug_stage not in (1, 9):
        phase2(a, debug_stage, ts, exp, save_exec, rest_exec)
        phase3(a, debug_stage, ts, exp, save_exec, rest_exec)
    a.lab("L_FIN")
    if timing:
        a("s_waitcnt vmcnt(0) lgkmcnt(0)")
        a(f"{'s_memrealtime' if 'abs' in exp else 's_memtime'} s[94:95]")
        a("s_waitcnt lgkmcnt(0)")
        a(f"s_lshl_b32 s{S_T0}, s2, 3")
        a(f"s_add_u32 s{S_T0}, s{S_T0}, s{S_WID}")
        a(f"s_lshl_b32 s{S_T0}, s{S_T0}, 6")
        a(f"s_add_u32 s{S_T0}, s{S_T0}, {TIMING_OFF}")
        for i in range(13):
            a(f"s_sub_u32 s{S_T1}, s{70+2*i}, s70" if (i and 'abs' not in exp) else f"s_mov_b32 s{S_T1}, s{70+2*i}")
            a(f"s_cmp_eq_u32 s{70+2*i}, 0")
            a(f"s_cselect_b32 s{S_T1}, 0, s{S_T1}")
            a(f"v_mov_b32 v{40+i}, s{S_T1}")
        if 'tb' in exp:
            a(f"v_lshlrev_b32 v2, 2, v{V_LANE}")
            a(f"s_add_u32 s{S_T1}, s{S_T0}, {1<<20}")
            a(f"s_mov_b64 exec, 0xffff")
            a(f"buffer_store_dword v{V_TL}, v2, {WS}, s{S_T1} offen")
        a(f"v_mov_b32 v2, 0")
        a(f"s_mov_b64 exec, 1")
        for i in range(3):
            a(f"buffer_store_dwordx4 v[{40+4*i}:{43+4*i}], v2, {WS}, s{S_T0} offen offset:{16*i}")
        a(f"buffer_store_dword v52, v2, {WS}, s{S_T0} offen offset:48")
        a("s_waitcnt vmcnt(0)")
    a.lab("L_END")
    a("s_endpgm")
    a(f""".section .rodata,"a"
.p2align 6
.amdhsa_kernel {NAME}_kernel
  .amdhsa_next_free_vgpr 256
  .amdhsa_next_free_sgpr 102
  .amdhsa_accum_offset 256
  .amdhsa_group_segment_fixed_size 0
  .amdhsa_kernarg_size 72
  .amdhsa_user_sgpr_count 2
  .amdhsa_user_sgpr_kernarg_segment_ptr 1
  .amdhsa_system_sgpr_workgroup_id_x 1
.end_amdhsa_kernel""")
    return a.text()

WS = f"s[{S_WS}:{S_WS+3}]"

def spin_poll(a, name, check_lines, load_line, limit=2000000, first_done=False):
    a(f"s_mov_b32 s{S_CNT}, 0")
    if first_done: a(f"s_branch {name}_W")
    a.lab(name)
    a(load_line)
    a.lab(name + "_W")
    a(f"s_add_u32 s{S_CNT}, s{S_CNT}, 1")
    a("s_waitcnt vmcnt(0)")
    for l in check_lines: a(l)
    a(f"s_cbranch_scc1 {name}_OK")
    a(f"s_cmp_lt_u32 s{S_CNT}, {limit}")
    a(f"s_cbranch_scc1 {name}")
    a.lab(name + "_OK")

def lds_inc(a, addr, save_exec, rest_exec, rtn=None):
    t = T
    a(f"v_mov_b32 v{t}, {addr}")
    a(f"v_mov_b32 v{t+1}, 1")
    save_exec(1)
    if rtn is None: a(f"ds_add_u32 v{t}, v{t+1}")
    else: a(f"ds_add_rtn_u32 v{rtn}, v{t}, v{t+1}")
    rest_exec()

def lds_wait(a, name, addr, val):
    t = T
    a(f"v_mov_b32 v{t}, {addr}")
    a(f"s_mov_b32 s{S_CNT}, 0")
    a.lab(name)
    a(f"ds_read_b32 v{t+1}, v{t}")
    a(f"s_add_u32 s{S_CNT}, s{S_CNT}, 1")
    a("s_waitcnt lgkmcnt(0)")
    a(f"v_readfirstlane_b32 s{S_T0}, v{t+1}")
    a(f"s_cmp_ge_u32 s{S_T0}, {val}")
    a(f"s_cbranch_scc1 {name}_OK")
    a(f"s_cmp_lt_u32 s{S_CNT}, 20000000")
    a(f"s_cbranch_scc1 {name}")
    a.lab(name + "_OK")

def hook_point(a, tag):
    a(f"s_add_u32 s{S_U}, s{S_U}, 1")
    a(f"s_cmp_lg_u32 s{S_U}, s{S_HOOK}")
    a(f"s_cbranch_scc1 {tag}")
    a(f"s_call_b64 s[{S_RET2}:{S_RET2+1}], L_HOOK")
    a.lab(tag)

def run_code(a, name, QM, QR, O, exp):
    cnt = [0]
    def qk1(creg):
        c = "0" if creg is None else f"v[{creg}:{creg+15}]"
        a(f"v_mfma_f32_32x32x16_bf16 v[{VS}:{VS+15}], v[{VKF}:{VKF+3}], v[{QM}:{QM+3}], {c}")
    def qk2():
        a(f"v_mfma_f32_32x32x16_bf16 v[{VS}:{VS+15}], v[{VKR}:{VKR+3}], v[{QR}:{QR+3}], v[{VS}:{VS+15}]")
    def pv(V, P):
        a(f"v_mfma_f32_32x32x16_bf16 v[{O}:{O+15}], v[{V}:{V+3}], v[{P}:{P+3}], v[{O}:{O+15}]")
    def kread():
        a(f"ds_read_b128 v[{VKF}:{VKF+3}], v{A_K}")
        a(f"ds_read_b64 v[{VKR}:{VKR+1}], v{A_KR}")
    def kstep():
        a(f"v_add_u32 v{A_K}, v{ST_K}, v{A_K}")
        a(f"v_add_u32 v{A_KR}, v{ST_K}, v{A_KR}")
    def vread(V, off):
        a(f"ds_read_b64_tr_b16 v[{V}:{V+1}], v{A_V} offset:{off}")
        a(f"ds_read_b64_tr_b16 v[{V+2}:{V+3}], v{A_V} offset:{off+576}")
    def cvt(j): a(f"v_cvt_pk_bf16_f32 v{VP+j}, v{VE+2*j}, v{VE+2*j+1}")
    def ex(r): a(f"v_exp_f32 v{VE+r}, v{VS+r}")
    def unit(D):
        for r in range(8): ex(r)
        for j in range(4): cvt(j)
        ex(8); ex(9)
        a("s_waitcnt lgkmcnt(0)")
        pv(VVA, VP)
        for r in range(10, 16): ex(r)
        if D:
            qk1(V_MASK if D == "mask" else None)
            for j in range(4, 8): cvt(j)
            vread(VVA, 0)
            qk2()
            kstep()
            kread()
            pv(VVB, VP+4)
            vread(VVB, 1152)
            a(f"v_add_u32 v{A_V}, v{ST_V}, v{A_V}")
        else:
            a("s_nop 0")
            for j in range(4, 8): cvt(j)
            a("s_nop 1")
            pv(VVB, VP+4)
    a.lab(name)
    kread()
    a(f"s_cmp_eq_u32 s{S_N}, 1")
    a(f"s_cbranch_scc1 {name}_M1")
    kstep()
    a("s_waitcnt lgkmcnt(0)")
    qk1(None); qk2()
    vread(VVA, 0); kread(); vread(VVB, 1152)
    a(f"v_add_u32 v{A_V}, v{ST_V}, v{A_V}")
    a(f"s_sub_u32 s{S_N}, s{S_N}, 2")
    a.lab(name + "_BT")
    a(f"s_cmp_eq_u32 s{S_N}, 0")
    a(f"s_cbranch_scc1 {name}_MK0")
    a(f"s_sub_u32 s{S_E}, s{S_HOOK}, s{S_U}")
    a(f"s_min_u32 s{S_E}, s{S_E}, s{S_N}")
    a(f"s_sub_u32 s{S_N}, s{S_N}, s{S_E}")
    a(f"s_add_u32 s{S_U}, s{S_U}, s{S_E}")
    a(f"s_sub_u32 s{S_E}, s{S_E}, 1")
    a.lab(name + "_LP")
    unit("plain")
    a(f"s_sub_u32 s{S_E}, s{S_E}, 1")
    a("s_nop 1")
    a(f"s_cbranch_scc0 {name}_LP")
    a(f"s_cmp_lg_u32 s{S_U}, s{S_HOOK}")
    a(f"s_cbranch_scc1 {name}_BT")
    a(f"s_call_b64 s[{S_RET2}:{S_RET2+1}], L_HOOK")
    a(f"s_branch {name}_BT")
    a.lab(name + "_MK0")
    a("s_nop 3")
    a.lab(name + "_MK")
    unit("mask")
    hook_point(a, f"{name}_H1")
    a("s_nop 1")
    a.lab(name + "_FN")
    unit(None)
    hook_point(a, f"{name}_H2")
    a(f"s_setpc_b64 s[{S_RET}:{S_RET+1}]")
    a.lab(name + "_M1")
    a("s_waitcnt lgkmcnt(0)")
    qk1(V_MASK); qk2()
    vread(VVA, 0); vread(VVB, 1152)
    a("s_nop 7")
    a(f"s_branch {name}_FN")

def set_run(a, region, tile_sreg, n_lines, step):
    a(f"s_mul_i32 s{S_T0}, s{tile_sreg}, {TILE}" if tile_sreg is not None else f"s_mov_b32 s{S_T0}, 0")
    a(f"s_add_u32 s{S_T0}, s{S_T0}, {region}")
    a(f"v_add_u32 v{A_K}, s{S_T0}, v{B_K}")
    a(f"v_add_u32 v{A_KR}, s{S_T0}, v{B_KR}")
    a(f"v_and_b32 v{A_V}, s{S_T0}, v{MK_V}")
    a(f"v_add_u32 v{A_V}, v{B_V}, v{A_V}")
    a(f"v_mov_b32 v{ST_K}, {step & 0xffffffff:#x}")
    a(f"v_and_b32 v{ST_V}, v{ST_K}, v{MK_V}")
    for l in n_lines: a(l)

F_MD, F_MF, F_M = 190, 206, 222
S_FQ, S_FT, S_FK, S_FP, S_FI2 = 32+12, 45, 46, 47, 48

def safety_check(a, O, isB, qb_sreg, tag):
    t = T
    a(f"v_max3_f32 v{t}, |v{O}|, |v{O+1}|, |v{O+2}|")
    for k in range(3, 11, 2): a(f"v_max3_f32 v{t}, v{t}, |v{O+k}|, |v{O+k+1}|")
    a(f"v_max_f32 v{t}, v{t}, |v{O+11}|".replace("v_max_f32", "v_max_f32_e64"))
    a(f"v_mov_b32 v{t+1}, 0x21800000")
    a(f"v_mov_b32 v{t+2}, 0x5d800000")
    a(f"v_mov_b32 v{t+3}, 0x7f000000")
    a(f"v_cmp_nge_f32 vcc, v{O+12}, v{t+1}")
    a(f"v_cmp_nle_f32 s[{S_BAD}:{S_BAD+1}], v{O+12}, v{t+2}")
    a(f"s_or_b64 vcc, vcc, s[{S_BAD}:{S_BAD+1}]")
    a(f"v_cmp_nlt_f32 s[{S_BAD}:{S_BAD+1}], v{t}, v{t+3}")
    a(f"s_or_b64 vcc, vcc, s[{S_BAD}:{S_BAD+1}]")
    a("s_cmp_eq_u64 vcc, 0")
    a(f"s_cbranch_scc1 L_SAFE{tag}")
    a(f"s_mov_b32 s{S_FQ}, s{qb_sreg}")
    if isB:
        for r in range(8): a(f"v_swap_b32 v{QA_M+r}, v{QB_M+r}")
        for r in range(16): a(f"v_swap_b32 v{OA+r}, v{OB+r}")
    a(f"s_call_b64 s[{S_RET}:{S_RET+1}], L_FB")
    if isB:
        for r in range(8): a(f"v_swap_b32 v{QA_M+r}, v{QB_M+r}")
        for r in range(16): a(f"v_swap_b32 v{OA+r}, v{OB+r}")
    a.lab(f"L_SAFE{tag}")

def fallback_code(a):
    t = T; L = V_LANE
    a.lab("L_FB")
    a(f"v_and_b32 v{t}, 31, v{L}")
    a(f"v_lshrrev_b32 v{t+1}, 5, v{L}")
    a(f"v_lshlrev_b32 v{t+1}, 2, v{t+1}")
    a(f"v_sub_u32 v{t}, v{t}, v{t+1}")
    a(f"v_mov_b32 v{t+1}, {NEG:#x}")
    for r in range(16):
        jj = (r & 3) + 8*(r >> 2)
        a(f"v_cmp_le_i32 vcc, {jj}, v{t}")
        a("s_nop 1")
        a(f"v_cndmask_b32_e64 v{F_MD+r}, v{t+1}, 0, vcc")
        a(f"v_sub_f32 v{F_MF+r}, v{t+1}, v{F_MD+r}")
    a(f"v_mov_b32 v{F_M}, 0xff800000")
    a(f"s_mov_b32 s{S_FP}, 0")
    a.lab("L_FB_PASS")
    a(f"s_mov_b32 s{S_FI2}, 0")
    a.lab("L_FB_OWN")
    a(f"s_mul_i32 s{S_FT}, s{S_FI2}, {TILE}")
    a(f"s_add_u32 s{S_FT}, s{S_FT}, {KV_OWN}")
    a(f"s_cmp_eq_u32 s{S_FI2}, s{S_FQ}")
    a(f"s_cselect_b32 s{S_FK}, 1, 0")
    a(f"s_call_b64 s[{S_RET2}:{S_RET2+1}], L_FB_TILE")
    a(f"s_add_u32 s{S_FI2}, s{S_FI2}, 1")
    a(f"s_cmp_le_u32 s{S_FI2}, s{S_FQ}")
    a("s_cbranch_scc1 L_FB_OWN")
    a(f"s_cmp_eq_u32 s{S_S}, 0")
    a("s_cbranch_scc1 L_FB_PEND")
    a(f"s_mov_b32 s{S_FI2}, s{S_FQ}")
    a.lab("L_FB_HALO")
    a(f"s_mul_i32 s{S_FT}, s{S_FI2}, {TILE}")
    a(f"s_add_u32 s{S_FT}, s{S_FT}, {KV_HALO}")
    a(f"s_cmp_eq_u32 s{S_FI2}, s{S_FQ}")
    a(f"s_cselect_b32 s{S_FK}, 2, 0")
    a(f"s_call_b64 s[{S_RET2}:{S_RET2+1}], L_FB_TILE")
    a(f"s_add_u32 s{S_FI2}, s{S_FI2}, 1")
    a(f"s_cmp_le_u32 s{S_FI2}, 7")
    a("s_cbranch_scc1 L_FB_HALO")
    a.lab("L_FB_PEND")
    a(f"s_cmp_eq_u32 s{S_FP}, 1")
    a("s_cbranch_scc1 L_FB_DONE")
    a(f"v_mov_b32 v{t}, v{F_M}")
    a("s_nop 1")
    a(f"v_permlane32_swap_b32 v{F_M}, v{t}")
    a("s_nop 1")
    a(f"v_max_f32 v{F_M}, v{F_M}, v{t}")
    for r in range(16): a(f"v_mov_b32 v{OA+r}, 0")
    a(f"s_mov_b32 s{S_FP}, 1")
    a("s_branch L_FB_PASS")
    a.lab("L_FB_DONE")
    a("s_nop 15")
    a(f"s_setpc_b64 s[{S_RET}:{S_RET+1}]")
    a.lab("L_FB_TILE")
    a(f"v_add_u32 v{A_K}, s{S_FT}, v{B_K}")
    a(f"v_add_u32 v{A_KR}, s{S_FT}, v{B_KR}")
    a(f"v_and_b32 v{A_V}, s{S_FT}, v{MK_V}")
    a(f"v_add_u32 v{A_V}, v{B_V}, v{A_V}")
    a(f"ds_read_b128 v[{VKF}:{VKF+3}], v{A_K}")
    a(f"ds_read_b64 v[{VKR}:{VKR+1}], v{A_KR}")
    a(f"ds_read_b64_tr_b16 v[{VVA}:{VVA+1}], v{A_V}")
    a(f"ds_read_b64_tr_b16 v[{VVA+2}:{VVA+3}], v{A_V} offset:576")
    a(f"ds_read_b64_tr_b16 v[{VVB}:{VVB+1}], v{A_V} offset:1152")
    a(f"ds_read_b64_tr_b16 v[{VVB+2}:{VVB+3}], v{A_V} offset:1728")
    a("s_waitcnt lgkmcnt(0)")
    a(f"v_mfma_f32_32x32x16_bf16 v[{VS}:{VS+15}], v[{VKF}:{VKF+3}], v[{QA_M}:{QA_M+3}], 0")
    a(f"v_mfma_f32_32x32x16_bf16 v[{VS}:{VS+15}], v[{VKR}:{VKR+3}], v[{QA_R}:{QA_R+3}], v[{VS}:{VS+15}]")
    a("s_nop 15")
    a(f"s_cmp_eq_u32 s{S_FK}, 0")
    a("s_cbranch_scc1 L_FB_NM")
    a(f"s_cmp_eq_u32 s{S_FK}, 1")
    a("s_cbranch_scc0 L_FB_FM")
    for r in range(16): a(f"v_add_f32 v{VS+r}, v{VS+r}, v{F_MD+r}")
    a("s_branch L_FB_NM")
    a.lab("L_FB_FM")
    for r in range(16): a(f"v_add_f32 v{VS+r}, v{VS+r}, v{F_MF+r}")
    a.lab("L_FB_NM")
    a(f"s_cmp_eq_u32 s{S_FP}, 0")
    a("s_cbranch_scc0 L_FB_P1")
    for r in range(0, 16, 2): a(f"v_max3_f32 v{F_M}, v{F_M}, v{VS+r}, v{VS+r+1}")
    a(f"s_setpc_b64 s[{S_RET2}:{S_RET2+1}]")
    a.lab("L_FB_P1")
    for r in range(16): a(f"v_sub_f32 v{VS+r}, v{VS+r}, v{F_M}")
    for r in range(16): a(f"v_exp_f32 v{VE+r}, v{VS+r}")
    a("s_nop 0")
    for j in range(8): a(f"v_cvt_pk_bf16_f32 v{VP+j}, v{VE+2*j}, v{VE+2*j+1}")
    a("s_nop 1")
    a(f"v_mfma_f32_32x32x16_bf16 v[{OA}:{OA+15}], v[{VVA}:{VVA+3}], v[{VP}:{VP+3}], v[{OA}:{OA+15}]")
    a(f"v_mfma_f32_32x32x16_bf16 v[{OA}:{OA+15}], v[{VVB}:{VVB+3}], v[{VP+4}:{VP+7}], v[{OA}:{OA+15}]")
    a("s_nop 7")
    a(f"s_setpc_b64 s[{S_RET2}:{S_RET2+1}]")

def finalize(a, O, qb_sreg, save_exec, rest_exec):
    t = T; R = VS
    a(f"v_rcp_f32 v{t+2}, v{O+12}")
    a(f"s_lshl_b32 s{S_T0}, s{qb_sreg}, 15")
    a(f"s_add_u32 s{S_T1}, s{S_T0}, s{S_OM}")
    a(f"s_lshl_b32 s{S_T0}, s{qb_sreg}, 7")
    a(f"s_add_u32 s{S_T2}, s{S_T0}, s{S_OR}")
    for r in range(12): a(f"v_mul_f32 v{O+r}, v{O+r}, v{t+2}")
    a(f"v_cvt_pk_bf16_f32 v{R}, v{O}, v{O+1}")
    a(f"v_cvt_pk_bf16_f32 v{R+1}, v{O+2}, v{O+3}")
    a(f"v_cvt_pk_bf16_f32 v{R+2}, v{O+4}, v{O+5}")
    a(f"v_cvt_pk_bf16_f32 v{R+3}, v{O+6}, v{O+7}")
    a(f"v_cvt_pk_bf16_f32 v{R+4}, v{O+8}, v{O+9}")
    a(f"v_cvt_pk_bf16_f32 v{R+5}, v{O+10}, v{O+11}")
    a(f"s_cmp_eq_u32 s{S_HEAD}, 0")
    a(f"s_cselect_b64 s[{S_SAVE}:{S_SAVE+1}], -1, 0")
    a(f"v_permlane32_swap_b32 v{R}, v{R+2}")
    a(f"v_permlane32_swap_b32 v{R+1}, v{R+3}")
    a(f"v_cndmask_b32_e64 v{R+4}, v{R+5}, v{R+4}, s[{S_SAVE}:{S_SAVE+1}]")
    a(f"buffer_store_dwordx4 v[{R}:{R+3}], v{V_OA1}, {WS}, s{S_T1} offen sc1")
    a(f"s_mov_b64 s[{S_SAVE}:{S_SAVE+1}], exec")
    a(f"s_mov_b32 exec_hi, 0")
    a(f"buffer_store_dword v{R+4}, v{V_OA2}, {WS}, s{S_T2} offen sc1")
    rest_exec()

def oflag(a, name, cnt_addr, flag_off, save_exec, rest_exec, after_store=None, last=7):
    t = T
    lds_inc(a, cnt_addr, save_exec, rest_exec, rtn=t+2)
    a("s_waitcnt lgkmcnt(0)")
    a(f"v_readfirstlane_b32 s{S_T0}, v{t+2}")
    a(f"s_cmp_lg_u32 s{S_T0}, {last}")
    a(f"s_cbranch_scc1 {name}")
    a(f"s_lshl_b32 s{S_T0}, s{S_HP}, 2")
    a(f"s_add_u32 s{S_T0}, s{S_T0}, s{S_OFS}")
    a(f"v_lshlrev_b32 v{t}, 7, v{V_LANE}")
    a(f"v_mov_b32 v{t+1}, s{S_TAGO}")
    save_exec("0xffff")
    a(f"buffer_store_dword v{t+1}, v{t}, {WS}, s{S_T0} offen offset:{flag_off} sc1")
    rest_exec()
    if after_store: after_store()
    a.lab(name)

def phase2(a, debug_stage, ts, exp, save_exec, rest_exec):
    t = T; L = V_LANE
    UH = (4, 6, 8)
    if 'hkA' in exp: UH = (3, 5, 7)
    if 'hkB' in exp: UH = (4, 6, 7)
    if 'hkC' in exp: UH = (5, 7, 8)
    UP = 15
    a.c("======== phase 2 ========")
    a(f"v_readfirstlane_b32 s{S_TAGOUT}, v{V_TG}")
    a(f"v_readfirstlane_b32 s{S_TAGIN}, v{V_TG+1}")
    a(f"v_readfirstlane_b32 s{S_TAGO}, v{V_TG+2}")
    a(f"v_bfe_u32 v{V_OA1}, v{L}, 4, 1")
    a(f"v_lshlrev_b32 v{V_OA1}, 14, v{V_OA1}")
    a(f"v_and_b32 v{t+4}, 15, v{L}")
    a(f"v_lshl_add_u32 v{V_OA1}, v{t+4}, 4, v{V_OA1}")
    a(f"v_lshrrev_b32 v{t+4}, 5, v{L}")
    a(f"v_lshl_add_u32 v{V_OA1}, v{t+4}, 8, v{V_OA1}")
    a(f"v_lshlrev_b32 v{V_OA2}, 2, v{L}")
    for (QM, QR, sreg) in ((QA_M, QA_R, S_M), (QB_M, QB_R, S_MB)):
        a(f"s_mul_i32 s{S_T0}, s{sreg}, {QTILE}")
        a(f"s_add_u32 s{S_T0}, s{S_T0}, {Q_BASE}")
        a(f"v_add_u32 v{t+2}, s{S_T0}, v{B_K}")
        a(f"v_add_u32 v{t+3}, s{S_T0}, v{B_KR}")
        a(f"ds_read_b128 v[{QM}:{QM+3}], v{t+2}")
        a(f"ds_read_b64 v[{QR}:{QR+1}], v{t+3}")
    a(f"s_cmp_eq_u32 s{S_HEAD}, 0")
    a(f"s_cselect_b32 s{S_T0}, -1, 0")
    a(f"s_cselect_b32 s{S_T1}, 0, -1")
    a(f"v_cmp_gt_u32 vcc, 32, v{L}")
    a(f"v_mov_b32 v{t}, s{S_T0}")
    a(f"v_mov_b32 v{t+1}, s{S_T1}")
    a(f"v_cndmask_b32_e64 v{t}, 0, v{t}, vcc")
    a(f"v_cndmask_b32_e64 v{t+1}, 0, v{t+1}, vcc")
    a(f"v_mov_b32 v{VKR+2}, 0")
    a(f"v_mov_b32 v{VKR+3}, 0")
    for QR in (QA_R, QB_R):
        a(f"v_mov_b32 v{QR+2}, 0")
        a(f"v_mov_b32 v{QR+3}, 0")
    a("s_waitcnt lgkmcnt(0)")
    for QR in (QA_R, QB_R):
        a(f"v_and_b32 v{QR}, v{QR}, v{t}")
        a(f"v_and_b32 v{QR+1}, v{QR+1}, v{t+1}")
    lds_inc(a, CNTQ, save_exec, rest_exec)
    a(f"s_mov_b32 s{S_U}, 0")
    a(f"s_mov_b32 s{S_HST}, 0")
    a(f"s_mov_b32 s{S_HOOK}, {UP}")
    a(f"s_mov_b32 s{S_HST}, 3")
    a(f"s_cmp_lt_u32 s{S_WID}, 4")
    a(f"s_cbranch_scc1 L_HS2")
    a(f"s_mov_b32 s{S_HST}, 0")
    a(f"s_mov_b32 s{S_HOOK}, {UH[0]}")
    a(f"s_cmp_eq_u32 s{S_S}, 7")
    a(f"s_cbranch_scc1 L_HS1")
    a(f"s_mul_i32 s{S_T1}, s{S_IDX}, 36864")
    for c, i in enumerate([3, 2, 1, 0]):
        a(f"s_add_u32 s{S_T2}, s{S_T1}, {i*4096}")
        a(f"buffer_store_dwordx4 v[{VH+20+4*c}:{VH+20+4*c+3}], v{V_PA}, {WS}, s{S_T2} offen sc1")
    a.lab("L_HS1")
    if 'noprio' not in exp: a("s_setprio 1")
    a.lab("L_HS2")
    ts(4)
    set_run(a, KV_OWN, None, [f"s_add_u32 s{S_N}, s{S_M}, 1"], TILE)
    a(f"s_call_b64 s[{S_RET}:{S_RET+1}], L_RUNA")
    set_run(a, KV_OWN, None, [f"s_sub_u32 s{S_N}, 8, s{S_M}"], TILE)
    a(f"s_call_b64 s[{S_RET}:{S_RET+1}], L_RUNB")
    ts(5)
    a(f"s_cmp_eq_u32 s{S_S}, 0")
    a("s_cbranch_scc1 L_FINAL0")
    a(f"v_mov_b32 v{t+2}, {NEG:#x}")
    for r in range(16): a(f"v_sub_f32 v{V_MASK+r}, v{t+2}, v{V_MASK+r}")
    a(f"s_cmp_lt_u32 s{S_WID}, 4")
    a("s_cbranch_scc1 L_H5DONE")
    lds_wait(a, "L_WQ", CNTQ, 8)
    a(f"v_add_u32 v{V_PA+1}, {KV_HALO}, v{V_PA}")
    for c, i in enumerate([8, 7, 6, 5, 4, 3, 2, 1, 0]):
        a(f"s_waitcnt vmcnt({8-c})")
        a(f"ds_write_b128 v{V_PA+1}, v[{VH+4*c}:{VH+4*c+3}] offset:{i*4096}")
    a(f"s_cmp_lg_u32 s{S_WID}, 4")
    a("s_cbranch_scc1 L_H5DONE")
    a(f"s_sub_u32 s{S_T0}, s{S_IDX}, 1")
    a(f"s_lshl_b32 s{S_T0}, s{S_T0}, 8")
    a(f"s_add_u32 s{S_T0}, s{S_T0}, {WS_FLAG}")
    a(f"v_mov_b32 v{t}, 0")
    a(f"v_mov_b32 v{t+1}, s{S_TAGIN}")
    save_exec(1)
    a(f"buffer_store_dword v{t+1}, v{t}, {WS}, s{S_T0} offen sc1")
    rest_exec()
    a.lab("L_H5DONE")
    a("s_waitcnt lgkmcnt(0)")
    a("s_setprio 0")
    a("s_barrier")
    if "tsh" not in exp: ts(7)
    a(f"s_mov_b32 s{S_T4}, 7")
    set_run(a, KV_HALO, S_T4, [f"s_add_u32 s{S_N}, s{S_M}, 1"], -TILE)
    a(f"s_call_b64 s[{S_RET}:{S_RET+1}], L_RUNB")
    a("s_nop 7")
    a("s_nop 3")
    safety_check(a, OB, True, S_MB, "B1")
    finalize(a, OB, S_MB, save_exec, rest_exec)
    a(f"s_mov_b32 s{S_T4}, 7")
    set_run(a, KV_HALO, S_T4, [f"s_sub_u32 s{S_N}, 8, s{S_M}"], -TILE)
    a(f"s_call_b64 s[{S_RET}:{S_RET+1}], L_RUNA")
    a("s_branch L_FINALA")
    a.lab("L_FINAL0")
    a("s_waitcnt vmcnt(0)")
    a("s_setprio 0")
    a("s_barrier")
    a("s_nop 7")
    a("s_nop 3")
    safety_check(a, OB, True, S_MB, "B0")
    finalize(a, OB, S_MB, save_exec, rest_exec)
    a.lab("L_FINALA")
    if "tsh" not in exp: ts(8)
    a("s_nop 7")
    a("s_nop 3")
    safety_check(a, OA, False, S_M, "A")
    finalize(a, OA, S_M, save_exec, rest_exec)
    a("s_branch L_P3")
    fallback_code(a)

    a.lab("L_HOOK")
    a(f"s_cmp_eq_u32 s{S_HST}, 1")
    a("s_cbranch_scc1 L_HK1")
    a(f"s_cmp_eq_u32 s{S_HST}, 2")
    a("s_cbranch_scc1 L_HK2")
    a(f"s_cmp_eq_u32 s{S_HST}, 3")
    a("s_cbranch_scc1 L_HK3")
    a(f"s_mov_b32 s{S_HST}, 1")
    a(f"s_mov_b32 s{S_HOOK}, {UH[1]}")
    a(f"s_cmp_eq_u32 s{S_S}, 7")
    a("s_cbranch_scc1 L_HRET")
    a("s_waitcnt vmcnt(0)")
    a(f"s_lshl_b32 s{S_T0}, s{S_IDX}, 8")
    a(f"s_lshl_b32 s{S_T1}, s{S_L}, 2")
    a(f"s_add_u32 s{S_T0}, s{S_T0}, s{S_T1}")
    a(f"s_add_u32 s{S_T0}, s{S_T0}, {WS_FLAG+128}")
    a(f"v_mov_b32 v{t}, 0")
    a(f"v_mov_b32 v{t+1}, s{S_TAGOUT}")
    save_exec(1)
    a(f"buffer_store_dword v{t+1}, v{t}, {WS}, s{S_T0} offen sc1")
    rest_exec()
    a("s_branch L_HRET")
    a.lab("L_HK3")
    a(f"s_mov_b32 s{S_HST}, 4")
    a(f"s_mov_b32 s{S_HOOK}, 1000")
    a(f"s_lshl_b32 s{S_T0}, s{S_HP}, 7")
    a(f"s_add_u32 s{S_T0}, s{S_T0}, s{S_OFS}")
    save_exec("0xffff")
    a(f"v_lshlrev_b32 v{t}, 2, v{L}")
    a(f"buffer_load_dword v{V_TG+1}, v{t}, {WS}, s{S_T0} offen offset:128 sc1")
    rest_exec()
    a("s_branch L_HRET")
    a.lab("L_HK1")
    a(f"s_mov_b32 s{S_HST}, 2")
    a(f"s_mov_b32 s{S_HOOK}, {UH[2]}")
    a(f"s_cmp_eq_u32 s{S_S}, 0")
    a("s_cbranch_scc0 L_HK1A")
    a(f"s_mov_b32 s{S_HOOK}, 1000")
    a("s_branch L_HRET")
    a.lab("L_HK1A")
    a(f"s_sub_u32 s{S_H1}, s{S_IDX}, 1")
    a(f"s_lshl_b32 s{S_H1}, s{S_H1}, 8")
    a(f"s_lshl_b32 s{S_T0}, s{S_L}, 2")
    a(f"s_add_u32 s{S_H1}, s{S_H1}, s{S_T0}")
    a(f"s_add_u32 s{S_H1}, s{S_H1}, {WS_FLAG+128}")
    a(f"v_mov_b32 v{t}, 0")
    a(f"buffer_load_dword v{V_TG}, v{t}, {WS}, s{S_H1} offen sc1")
    a("s_branch L_HRET")
    a.lab("L_HK2")
    a(f"s_mov_b32 s{S_HST}, 3")
    a(f"s_mov_b32 s{S_HOOK}, {UP}")
    a("s_waitcnt vmcnt(0)")
    a(f"v_readfirstlane_b32 s{S_T0}, v{V_TG}")
    a(f"s_cmp_eq_u32 s{S_T0}, s{S_TAGIN}")
    a("s_cbranch_scc1 L_POLL1_OK")
    a(f"v_mov_b32 v{t}, 0")
    spin_poll(a, "L_POLL1",
              [f"v_readfirstlane_b32 s{S_T0}, v{V_TG}", f"s_cmp_eq_u32 s{S_T0}, s{S_TAGIN}"],
              f"buffer_load_dword v{V_TG}, v{t}, {WS}, s{S_H1} offen sc1")
    a(f"s_sub_u32 s{S_T0}, s{S_IDX}, 1")
    a(f"s_mul_i32 s{S_T0}, s{S_T0}, 36864")
    for c, i in enumerate([8, 7, 6, 5, 4, 3, 2, 1, 0]):
        a(f"s_add_u32 s{S_T1}, s{S_T0}, {i*4096}")
        a(f"buffer_load_dwordx4 v[{VH+4*c}:{VH+4*c+3}], v{V_PA}, {WS}, s{S_T1} offen sc1")
    a.lab("L_HRET")
    a(f"s_setpc_b64 s[{S_RET2}:{S_RET2+1}]")
    run_code(a, "L_RUNA", QA_M, QA_R, OA, exp)
    run_code(a, "L_RUNB", QB_M, QB_R, OB, exp)

def pub_stores(a, stage_off, base):
    a(f"s_add_u32 s{S_T2}, s{S_T1}, {stage_off}")
    a(f"buffer_store_dwordx4 v[{base}:{base+3}], v{V_PA}, {WS}, s{S_T2} offen sc1")
    for i in range(1, 4):
        a(f"s_add_u32 s{S_T3}, s{S_T2}, {i*4096}")
        a(f"buffer_store_dwordx4 v[{base+4*i}:{base+4*i+3}], v{V_PA}, {WS}, s{S_T3} offen sc1")
    a(f"buffer_store_dwordx4 v[{base+16}:{base+19}], v{V_PA+2}, {WS}, s{S_T2} offen sc1")

def halo_loads(a, stage_off, base):
    a(f"s_sub_u32 s{S_T0}, s{S_IDX}, 1")
    a(f"s_mul_i32 s{S_T0}, s{S_T0}, 36864")
    a(f"s_add_u32 s{S_T0}, s{S_T0}, s{S_SO}")
    for i in range(4):
        a(f"s_add_u32 s{S_T1}, s{S_T0}, {i*4096}")
        a(f"buffer_load_dwordx4 v[{base+4*i}:{base+4*i+3}], v{V_PA}, {WS}, s{S_T1} offen sc1")
    a(f"buffer_load_dwordx4 v[{base+16}:{base+19}], v{V_PA+2}, {WS}, s{S_T0} offen sc1")

def phase3(a, debug_stage, ts, exp, save_exec, rest_exec):
    t = T; L = V_LANE
    OF, AC, WF0, WF1 = 20, 92, 132, 152
    AW, AW2, PF, VO, VOUT, VR = 10, 11, 13, 14, 15, 16
    PA, PB = 12, 9
    S_PL, S_PR, S_PM = 4, 68, 40
    SCR = KV_OWN
    ORD = {0: [0, 2, 4, 6, 1, 3, 5, 7, 8], 1: [9, 11, 13, 15, 10, 12, 14, 16, 17]}
    GM = {0: 0x0055, 1: 0xAA00}; RM = {0: 0x01AA, 1: 0xFFFF}
    a.lab("L_P3")
    a.c("======== phase 3 ========")
    a(f"s_lshl_b32 s{S_PL}, s{S_HP}, 7")
    a(f"s_add_u32 s{S_PL}, s{S_PL}, s{S_OFS}")
    def poll_issue():
        save_exec("0xffff")
        a(f"v_lshlrev_b32 v{t+2}, 2, v{L}")
        a(f"buffer_load_dword v{PF}, v{t+2}, {WS}, s{S_PL} offen offset:128 sc1")
        rest_exec()
    def poll_check(name, mask):
        save_exec(f"{mask:#x}")
        a(f"v_cmp_ne_u32 vcc, s{S_TAGO}, v{PF}")
        a("s_nop 1")
        a("s_cmp_eq_u64 vcc, 0")
        a(f"s_cbranch_scc1 {name}_OK")
        a(f"v_lshlrev_b32 v{t+2}, 2, v{L}")
        spin_poll(a, name,
                  [f"v_cmp_ne_u32 vcc, s{S_TAGO}, v{PF}", "s_nop 1", "s_cmp_eq_u64 vcc, 0"],
                  f"buffer_load_dword v{PF}, v{t+2}, {WS}, s{S_PL} offen offset:128 sc1")
        rest_exec()
    a(f"s_lshr_b32 s{S_T1}, s{S_HP}, 3")
    a(f"s_lshl_b32 s{S_T1}, s{S_T1}, 3")
    a(f"s_lshl_b32 s{S_T2}, s{S_M}, 1")
    a(f"s_add_u32 s{S_T1}, s{S_T1}, s{S_T2}")
    a(f"s_lshl_b32 s{S_T0}, s{S_GRP}, 18")
    a(f"s_add_u32 s{S_T0}, s{S_T0}, {WS_O}")
    a(f"s_lshl_b32 s{S_T2}, s{S_T1}, 14")
    a(f"s_add_u32 s{S_PM}, s{S_T0}, s{S_T2}")
    a(f"s_lshl_b32 s{S_T0}, s{S_GRP}, 15")
    a(f"s_add_u32 s{S_T0}, s{S_T0}, {WS_OR}")
    a(f"s_lshl_b32 s{S_T2}, s{S_T1}, 6")
    a(f"s_add_u32 s{S_PR}, s{S_T0}, s{S_T2}")
    a(f"v_lshrrev_b32 v{VR}, 4, v{L}")
    a(f"v_lshlrev_b32 v{VR}, 12, v{VR}")
    a(f"v_and_b32 v{t+4}, 15, v{L}")
    a(f"v_lshl_add_u32 v{VR}, v{t+4}, 2, v{VR}")
    a(f"v_add_u32 v{VR+1}, 64, v{VR}")
    a(f"v_lshrrev_b32 v{t+1}, 4, v{L}")
    a(f"v_bfe_u32 v{t+2}, v{L}, 2, 2")
    a(f"v_and_b32 v{t+3}, 3, v{L}")
    a(f"v_lshrrev_b32 v{t+4}, 1, v{t+1}")
    a(f"v_lshlrev_b32 v{t+4}, 2, v{t+4}")
    a(f"v_lshl_add_u32 v{t+4}, v{t+1}, 3, v{t+4}")
    a(f"v_add_u32 v{t+4}, v{t+4}, v{t+2}")
    a(f"v_mul_u32_u24 v{t+4}, 144, v{t+4}")
    a(f"v_lshl_add_u32 v{AW}, v{t+3}, 3, v{t+4}")
    a(f"s_mul_i32 s{S_T0}, s{S_HEAD}, {9*5184}")
    a(f"v_add_u32 v{AW}, s{S_T0}, v{AW}")
    a(f"v_mul_u32_u24 v{t+4}, 72, v{t+1}")
    a(f"v_add3_u32 v{t+4}, v{t+4}, v{t+2}, 16")
    a(f"v_mul_u32_u24 v{t+4}, 144, v{t+4}")
    a(f"v_lshl_add_u32 v{AW2}, v{t+3}, 3, v{t+4}")
    a(f"v_lshlrev_b32 v{VO}, 4, v{L}")
    a(f"s_lshl_b32 s{S_T1}, s{S_T1}, 4")
    a(f"s_lshl_b32 s{S_T2}, s{S_S}, 8")
    a(f"s_add_u32 s{S_T1}, s{S_T1}, s{S_T2}")
    a(f"s_lshl_b32 s{S_T2}, s{S_HEAD}, 4")
    a(f"s_add_u32 s{S_T1}, s{S_T1}, s{S_T2}")
    a(f"s_mul_i32 s{S_T1}, s{S_T1}, 2304")
    a(f"s_mul_i32 s{S_T2}, s{S_B}, 1152")
    a(f"s_add_u32 s{S_T1}, s{S_T1}, s{S_T2}")
    a(f"s_and_b32 s{S_T2}, s{S_HP}, 7")
    a(f"s_mul_i32 s{S_T2}, s{S_T2}, 144")
    a(f"s_add_u32 s{S_T5}, s{S_T1}, s{S_T2}")
    a(f"v_and_b32 v{VOUT}, 15, v{L}")
    a(f"v_mul_u32_u24 v{VOUT}, 2304, v{VOUT}")
    a(f"v_lshrrev_b32 v{t+4}, 4, v{L}")
    a(f"v_lshl_add_u32 v{VOUT}, v{t+4}, 3, v{VOUT}")
    a(f"s_mul_i32 s{S_T0}, s{S_WID}, 5120")
    a(f"s_add_u32 s{S_T0}, s{S_T0}, {SCR}")
    a(f"v_add_u32 v18, s{S_T0}, v{VO}")
    a(f"s_xor_b32 s{S_T1}, s{S_WID}, 4")
    a(f"s_mul_i32 s{S_T1}, s{S_T1}, 5120")
    a(f"s_add_u32 s{S_T1}, s{S_T1}, {SCR}")
    a(f"v_add_u32 v19, s{S_T1}, v{VO}")
    OUT = f"s[{S_OUT}:{S_OUT+3}]"
    def wreads(kap, kh, WF):
        l = []
        for Tn in range(5):
            b = WF + 4*Tn
            if kap >= 16:
                o0 = (kap-16)*8*36*144 + Tn*32
                l.append(f"ds_read_b64_tr_b16 v[{b}:{b+1}], v{AW2} offset:{o0}")
                l.append(f"ds_read_b64_tr_b16 v[{b+2}:{b+3}], v{AW2} offset:{o0+36*144}")
            else:
                o0 = (kap - 9*kh)*5184 + Tn*32
                l.append(f"ds_read_b64_tr_b16 v[{b}:{b+1}], v{AW} offset:{o0}")
                l.append(f"ds_read_b64_tr_b16 v[{b+2}:{b+3}], v{AW} offset:{o0+576}")
        return l
    def loads(kh, slots):
        nl = []
        for jx in slots:
            kap = ORD[kh][jx]
            if kap >= 16:
                a(f"s_add_u32 s{S_T0}, s{S_PR}, {(kap-16)*16*1024}")
                for mt in range(2):
                    for i in range(4):
                        a(f"buffer_load_dword v{OF+36*mt+4*jx+i}, v{VR+mt}, {WS}, s{S_T0} offen offset:{i*1024} sc1")
                nl.append(8)
            else:
                a(f"s_add_u32 s{S_T0}, s{S_PM}, {kap*1024}")
                a(f"s_add_u32 s{S_T1}, s{S_PM}, {kap*1024+16384}")
                a(f"buffer_load_dwordx4 v[{OF+4*jx}:{OF+4*jx+3}], v{VO}, {WS}, s{S_T0} offen sc1")
                a(f"buffer_load_dwordx4 v[{OF+36+4*jx}:{OF+36+4*jx+3}], v{VO}, {WS}, s{S_T1} offen sc1")
                nl.append(2)
        return nl
    def mfm(kh, slots, nl, extra, last_next, novm=False):
        for c, jx in enumerate(slots):
            cur = WF0 if jx % 2 == 0 else WF1
            nxt = WF1 if jx % 2 == 0 else WF0
            a("s_waitcnt lgkmcnt(0)" if novm else f"s_waitcnt vmcnt({sum(nl[c+1:])+extra}) lgkmcnt(0)")
            rs = wreads(ORD[kh][jx+1], kh, nxt) if jx < 8 else []
            ri = 0
            for Tn in range(5):
                for mt in range(2):
                    d = AC + (mt*5+Tn)*4; o = OF + 36*mt + 4*jx
                    cc = "0" if jx == 0 else f"v[{d}:{d+3}]"
                    a(f"v_mfma_f32_16x16x32_bf16 v[{d}:{d+3}], v[{cur+4*Tn}:{cur+4*Tn+3}], v[{o}:{o+3}], {cc}")
                    if ri < len(rs): a(rs[ri]); ri += 1
    def add_out(q, base, Tn, pk):
        for r in range(4): a(f"v_add_f32 v{q+r}, v{q+r}, v{base+4*Tn+r}")
        a(f"v_cvt_pk_bf16_f32 v{pk}, v{q}, v{q+1}")
        a(f"v_cvt_pk_bf16_f32 v{pk+1}, v{q+2}, v{q+3}")
        if Tn == 4:
            a(f"s_mov_b64 s[{S_SAVE}:{S_SAVE+1}], exec")
            a(f"s_mov_b32 exec_hi, 0")
        omod = " nt" if 'ont' in exp else " sc1" if 'osc1' in exp else " sc0 sc1" if 'osc01' in exp else ""
        a(f"buffer_store_dwordx2 v[{pk}:{pk+1}], v{VOUT}, {OUT}, s{S_T5} offen offset:{Tn*32}{omod}")
        if Tn == 4: rest_exec()
    def nloads(kh, slots):
        return [8 if ORD[kh][jx] >= 16 else 2 for jx in slots]
    def validate(kh, slots, younger):
        nl = nloads(kh, slots); first = True
        for c, jx in enumerate(slots):
            a(f"s_waitcnt vmcnt({sum(nl[c+1:])+younger})")
            rr = [OF+4*jx+i for i in range(4)] + [OF+36+4*jx+i for i in range(4)]
            if first:
                a(f"v_max3_u32 v{t+3}, v{rr[0]}, v{rr[1]}, v{rr[2]}"); rr = rr[3:]; first = False
                a(f"v_max_u32 v{t+3}, v{t+3}, v{rr[0]}"); rr = rr[1:]
            for k in range(0, len(rr), 2):
                a(f"v_max3_u32 v{t+3}, v{t+3}, v{rr[k]}, v{rr[k+1]}")
        a(f"v_cmp_eq_u32 vcc, -1, v{t+3}")
        a("s_nop 1")
        a("s_cmp_eq_u64 vcc, 0")
    def probe_addr(kh, slots):
        mains = [jx for jx in slots if ORD[kh][jx] < 16]
        a(f"v_mov_b32 v{t+3}, {ORD[kh][mains[0]]*1024 + 16384 + 1020}")
        a(f"v_lshlrev_b32 v{PA}, 11, v{L}")
        a(f"v_add_u32 v{PA}, v{t+3}, v{PA}")
        return (1 << min(len(mains), 4)) - 1
    def probe_issue(mask):
        save_exec(f"{mask:#x}")
        a(f"buffer_load_dword v{PB}, v{PA}, {WS}, s{S_PM} offen sc1")
        rest_exec()
    def probe_loop(mask, name, first_issued):
        save_exec(f"{mask:#x}")
        a(f"s_mov_b32 s{S_CNT}, 0")
        if first_issued: a(f"s_branch {name}_PW")
        a.lab(name + "_P")
        a(f"buffer_load_dword v{PB}, v{PA}, {WS}, s{S_PM} offen sc1")
        a.lab(name + "_PW")
        a(f"s_add_u32 s{S_CNT}, s{S_CNT}, 1")
        a("s_waitcnt vmcnt(0)")
        a(f"v_cmp_eq_u32 vcc, -1, v{PB}")
        a("s_nop 1")
        a("s_cmp_eq_u64 vcc, 0")
        a(f"s_cbranch_scc1 {name}_PO")
        a(f"s_cmp_lt_u32 s{S_CNT}, 2000000")
        a(f"s_cbranch_scc1 {name}_P")
        a.lab(name + "_PO")
        rest_exec()
    def load_validate_loop(kh, slots, name):
        a(f"s_mov_b32 s{S_N}, 0")
        a.lab(name + "_L")
        loads(kh, slots)
        validate(kh, slots, 0)
        a(f"s_cbranch_scc1 {name}_OK")
        a(f"s_add_u32 s{S_N}, s{S_N}, 1")
        a(f"s_cmp_lt_u32 s{S_N}, 100000")
        a(f"s_cbranch_scc1 {name}_L")
        a.lab(name + "_OK")
    def path(kh):
        K = f"K{kh}"
        G, R = list(range(4)), list(range(4, 9))
        for rd in wreads(ORD[kh][0], kh, WF0): a(rd)
        ts(10)
        a(f"s_lshr_b32 s{S_T0}, 0x55AA, s{S_HP}")
        a(f"s_bitcmp1_b32 s{S_T0}, 0")
        a(f"s_cbranch_scc1 L_SG{K}_GO")
        mk = probe_addr(kh, G)
        probe_loop(mk, f"L_SG{K}", False)
        a.lab(f"L_SG{K}_GO")
        load_validate_loop(kh, G, f"L_SGV{K}")
        mk = probe_addr(kh, R)
        probe_issue(mk)
        mfm(kh, G, [0]*4, 0, None, novm=True)
        ts(9)
        probe_loop(mk, f"L_SR{K}", True)
        lds_wait(a, f"L_WOA{K}", CNTOA, 8)
        load_validate_loop(kh, R, f"L_SRV{K}")
        mfm(kh, R, [0]*5, 0, None, novm=True)
        ts(11)
        send = AC + 20 if kh == 0 else AC
        keep = AC if kh == 0 else AC + 20
        a("s_nop 7")
        for Tn in range(5): a(f"ds_write_b128 v18, v[{send+4*Tn}:{send+4*Tn+3}] offset:{Tn*1024}")
        a("s_waitcnt lgkmcnt(0)")
        a("s_barrier")
        for Tn in range(5): a(f"ds_read_b128 v[{OF+4*Tn}:{OF+4*Tn+3}], v19 offset:{Tn*1024}")
        for Tn in range(5):
            a(f"s_waitcnt lgkmcnt({4-Tn})")
            add_out(OF+4*Tn, keep, Tn, OF+20+2*Tn)
    lds_inc(a, CNTOA, save_exec, rest_exec)
    a(f"s_cmp_eq_u32 s{S_HST}, 4")
    a("s_cbranch_scc0 L_P3C0")
    a("s_waitcnt vmcnt(2)")
    a(f"v_mov_b32 v{PF}, v{V_TG+1}")
    a("s_branch L_P3C1")
    a.lab("L_P3C0")
    poll_issue()
    a("s_waitcnt vmcnt(0)")
    a.lab("L_P3C1")
    poll_check("L_POLLC", 0xFFFF)
    if debug_stage == 2:
        a("s_waitcnt vmcnt(0)")
        a("s_branch L_FIN")
        return
    a(f"s_cmp_eq_u32 s{S_HEAD}, 0")
    a("s_cbranch_scc0 L_P3K1")
    path(0)
    a("s_branch L_FIN")
    a.lab("L_P3K1")
    path(1)
    a(f"s_cmp_lg_u32 s{S_HP}, 0")
    a("s_cbranch_scc1 L_FIN")
    a(f"s_cmp_lg_u32 s{S_WID}, 4")
    a("s_cbranch_scc1 L_FIN")
    a(f"v_mov_b32 v{t}, 0")
    a(f"v_mov_b32 v{t+1}, s{S_TAGO}")
    a(f"s_mov_b64 exec, 1")
    a(f"buffer_store_dword v{t+1}, v{t}, {WS}, s{S_OFS} offen sc1")

if __name__ == "__main__":
    import argparse
    p = argparse.ArgumentParser(); p.add_argument("--debug", type=int, default=0)
    p.add_argument("--timing", action="store_true"); p.add_argument("--exp", default=""); p.add_argument("-o", default="/dev/stdout")
    args = p.parse_args()
    open(args.o, "w").write(gen(args.debug, args.timing, args.exp))
```

```python
import sys, math, struct

NAME = "concat_heads__sliding_block__sliding_block__prompt"

STAGE   = 49152
WO_BASE = 0
KV_OWN  = 82944
KV_HALO = 119808
Q_BASE  = 119808
MISC    = 156672
TAGS_LDS = MISC + 2048
CNT2, CNT1, CNTQ, CNTOB, CNTOA = TAGS_LDS+12, TAGS_LDS+16, TAGS_LDS+20, TAGS_LDS+24, TAGS_LDS+28
LDS_TOTAL = 163840
TILE    = 4608
QTILE   = 2304
WS_KV   = 0
WS_O    = 256*36864
WS_OR   = WS_O + 16*262144
WS_FLAG = WS_OR + 16*32768
WS_OF   = WS_FLAG + 65536
TIMING_OFF = 24<<20
TAG_INC = 0x9E3779B1
NEG     = 0xFF61B1E6
QSCALE  = (18.0 ** -0.5) * math.log2(math.e)
def f32bits(x): return struct.unpack("<I", struct.pack("<f", x))[0]

class Asm:
    def __init__(self): self.l = []
    def __call__(self, s=""):
        for line in s.split("\n"):
            self.l.append("  " + line.strip())
    def lab(self, n): self.l.append(n + ":")
    def c(self, s): self.l.append("  ; " + s)
    def text(self): return "\n".join(self.l) + "\n"

S_X, S_W, S_WO, S_WS, S_OUT = 8, 12, 16, 20, 24
S_B, S_S, S_HP, S_WID = 28, 29, 30, 31
S_T0, S_T1, S_T2, S_T3, S_T4, S_T5 = 32, 33, 34, 35, 36, 37
S_I = 38
S_L = 39
S_TAGIN, S_TAGOUT, S_TAGO = 40, 41, 42
S_K, S_C, S_SB, S_XB, S_WB = 43, 44, 45, 46, 47
S_LX, S_LW = 48, 49
S_N = 50
S_U = 51
S_RET = 52
S_IDX, S_GRP, S_HEAD, S_M = 54, 55, 56, 57
S_SAVE = 58
S_CNT = 60
S_HOOK = 61
S_BAD = 62
S_RET2 = 64
S_MB = 66
S_HST = 67
S_H0, S_H1 = 68, 69
S_E = 98
S_SO, S_FI = 99, 100
S_OM, S_OR, S_OFS = 6, 7, 5

V_LANE = 1
T = 2
V_AX = 10
V_AW = 12
V_MASK = 20
V_SET0, V_SET1, V_ACC = 36, 80, 124
V_LDX, V_LDW = 36, 44
V_TG = 236
B_K, B_KR, B_V, MK_V = 240, 241, 242, 243
vEK, vEQ, vEV, vE6, vDr, vDt, vF, vC = 244, 245, 246, 247, 248, 249, 250, 252
V_TL = 254
QA_M, QA_R, QB_M, QB_R = 36, 40, 44, 48
OA, OB = 52, 68
VS, VE, VP = 84, 100, 116
VKF, VKR, VVA, VVB = 124, 128, 132, 136
A_K, A_KR, A_V, ST_V, ST_K = 10, 11, 12, 13, 14
VH = 140
V_WOV = 180
V_OA1, V_OA2 = 188, 189
V_PA = 184

def emit_masks_(a):
    t = T; L = V_LANE
    a(f"v_and_b32 v{t}, 31, v{L}")
    a(f"v_lshrrev_b32 v{t+1}, 5, v{L}")
    a(f"v_lshlrev_b32 v{t+1}, 2, v{t+1}")
    a(f"v_sub_u32 v{t}, v{t}, v{t+1}")
    a(f"v_mov_b32 v{t+1}, {NEG:#x}")
    for r in range(16):
        jj = (r & 3) + 8*(r >> 2)
        a(f"v_cmp_le_i32 vcc, {jj}, v{t}")
        a("s_nop 1")
        a(f"v_cndmask_b32_e64 v{V_MASK+r}, v{t+1}, 0, vcc")
def emit_p2_patterns_(a):
    t = T; L = V_LANE
    a(f"v_and_b32 v{t}, 31, v{L}")
    a(f"v_lshrrev_b32 v{t+1}, 5, v{L}")
    a(f"v_lshrrev_b32 v{t+2}, 2, v{t}")
    a(f"v_lshrrev_b32 v{t+3}, 3, v{t}")
    a(f"v_xor_b32 v{t+2}, v{t+2}, v{t+3}")
    a(f"v_xor_b32 v{t+2}, v{t+2}, v{t+1}")
    a(f"v_and_b32 v{t+2}, 1, v{t+2}")
    a(f"v_lshlrev_b32 v{t+2}, 4, v{t+2}")
    a(f"v_lshl_add_u32 v{t+2}, v{t}, 5, v{t+2}")
    a(f"s_lshl_b32 s{S_T0}, s{S_HEAD}, 10")
    a(f"v_add_u32 v{B_K}, s{S_T0}, v{t+2}")
    a(f"v_lshlrev_b32 v{B_KR}, 3, v{t}")
    a(f"v_add_u32 v{B_KR}, 2048, v{B_KR}")
    a(f"v_bfe_u32 v{t+2}, v{L}, 2, 2")
    a(f"v_lshl_add_u32 v{t+2}, v{t+1}, 2, v{t+2}")
    a(f"v_mul_u32_u24 v{t+2}, 72, v{t+2}")
    a(f"v_add_u32 v{t+2}, 2304, v{t+2}")
    a(f"v_and_b32 v{t+3}, 3, v{L}")
    a(f"v_lshlrev_b32 v{t+4}, 3, v{t+3}")
    a(f"s_mul_i32 s{S_T0}, s{S_HEAD}, 40")
    a(f"v_add3_u32 v{t+4}, v{t+4}, v{t+2}, s{S_T0}")
    a(f"v_add_u32 v{t+5}, 32, v{t+2}")
    a(f"v_bfe_u32 v{t+6}, v{L}, 4, 1")
    a(f"v_cmp_eq_u32 vcc, 1, v{t+6}")
    a(f"v_lshrrev_b32 v{t+7}, 1, v{t+3}")
    a(f"v_and_b32 v{t+7}, v{t+7}, v{t+6}")
    a(f"v_cndmask_b32 v{B_V}, v{t+4}, v{t+5}, vcc")
    a(f"v_cmp_eq_u32 vcc, 1, v{t+7}")
    a(f"v_mov_b32 v{t+5}, {MISC}")
    a(f"v_mov_b32 v{t+6}, -1")
    a(f"v_cndmask_b32 v{B_V}, v{B_V}, v{t+5}, vcc")
    a(f"v_cndmask_b32_e64 v{MK_V}, v{t+6}, 0, vcc")


def gen(debug_stage=0, timing=False, exp=''):
    a = Asm()
    t = T; L = V_LANE
    def ts(i, force=False):
        if timing and ('tsk' not in exp or force or i in (0, 8, 9, 10, 11)): a(f"{'s_memrealtime' if ('abs' in exp or 'hdbg' in exp) else 's_memtime'} s[{70+2*i}:{71+2*i}]")
    WS = f"s[{S_WS}:{S_WS+3}]"
    def save_exec(val):
        a(f"s_mov_b64 s[{S_SAVE}:{S_SAVE+1}], exec")
        a(f"s_mov_b64 exec, {val}")
    def rest_exec():
        a(f"s_mov_b64 exec, s[{S_SAVE}:{S_SAVE+1}]")

    a.l += [f"; Kernarg layout (72 bytes): A_x, A_wqkv, A_wo, B_x, B_wqkv, B_wo, out, debug, ws",
            f"; @launch grid=(256,1,1) block=(512,1,1) lds={LDS_TOTAL}"]
    a(f""".amdgcn_target "amdgcn-amd-amdhsa--gfx950"
.text
.globl {NAME}_kernel
.p2align 8
.type {NAME}_kernel,@function""")
    a.lab(f"{NAME}_kernel")
    a("s_cmp_ge_u32 s2, 256")
    a("s_cbranch_scc1 L_END")
    a(f"s_and_b32 s3, s2, 7")
    if 'xmap' in exp:
        a(f"s_bfe_u32 s{S_B}, s3, 0x10001")
    else:
        a(f"s_lshr_b32 s{S_B}, s3, 2")
    a(f"s_mul_i32 s{S_T0}, s{S_B}, 24")
    a(f"s_add_u32 s4, s0, s{S_T0}")
    a(f"s_addc_u32 s5, s1, 0")
    a(f"s_load_dwordx2 s[{S_X}:{S_X+1}], s[4:5], 0")
    a(f"s_load_dwordx2 s[{S_W}:{S_W+1}], s[4:5], 8")
    a(f"s_load_dwordx2 s[{S_WO}:{S_WO+1}], s[4:5], 16")
    a(f"s_load_dwordx2 s[{S_OUT}:{S_OUT+1}], s[0:1], 48")
    a(f"s_load_dwordx2 s[{S_WS}:{S_WS+1}], s[0:1], 64")
    if timing:
        for i in range(13): a(f"s_mov_b32 s{70+2*i}, 0")
    ts(0)
    a(f"s_lshr_b32 s{S_I}, s2, 3")
    if 'xmap' in exp:
        a(f"s_and_b32 s{S_T2}, s3, 1")
        a(f"s_lshl_b32 s{S_T2}, s{S_T2}, 2")
        a(f"s_and_b32 s{S_T3}, s{S_I}, 3")
        a(f"s_add_u32 s{S_S}, s{S_T2}, s{S_T3}")
        a(f"s_lshr_b32 s{S_T4}, s{S_I}, 2")
        a(f"s_cmp_lt_u32 s3, 4")
        a(f"s_mov_b32 s{S_T2}, 0xFDB96420")
        a(f"s_cselect_b32 s{S_T2}, 0xECA87531, s{S_T2}")
        a(f"s_lshl_b32 s{S_T0}, s{S_T4}, 2")
        a(f"s_lshr_b32 s{S_T2}, s{S_T2}, s{S_T0}")
        a(f"s_and_b32 s{S_HP}, s{S_T2}, 15")
    else:
        a(f"s_lshr_b32 s{S_T2}, s3, 1")
        a(f"s_and_b32 s{S_T2}, s{S_T2}, 1")
        a(f"s_lshl_b32 s{S_T2}, s{S_T2}, 2")
        a(f"s_and_b32 s{S_T3}, s{S_I}, 3")
        a(f"s_add_u32 s{S_S}, s{S_T2}, s{S_T3}")
        a(f"s_and_b32 s{S_T2}, s3, 1")
        a(f"s_lshl_b32 s{S_T2}, s{S_T2}, 3")
        a(f"s_lshr_b32 s{S_T4}, s{S_I}, 2")
        a(f"s_add_u32 s{S_HP}, s{S_T2}, s{S_T4}")
    a(f"s_lshl_b32 s{S_T3}, s{S_T3}, 1")
    a(f"s_add_u32 s{S_C}, s{S_T4}, s{S_T3}")
    a(f"s_cmp_ge_u32 s{S_C}, 9")
    a(f"s_cselect_b32 s{S_T3}, 9, 0")
    a(f"s_sub_u32 s{S_C}, s{S_C}, s{S_T3}")
    if 'norot' in exp: a(f"s_mov_b32 s{S_C}, 0")
    for key, mul in (('rot2', 2), ('rot3', 3)):
        if key in exp or (key == 'rot2' and 'rot' not in exp):
            a(f"s_lshr_b32 s{S_C}, s{S_T4}, 1")
            a(f"s_and_b32 s{S_T3}, s{S_I}, 3")
            a(f"s_add_u32 s{S_C}, s{S_C}, s{S_T3}")
            a(f"s_mul_i32 s{S_C}, s{S_C}, {mul}")
            for _ in range(2):
                a(f"s_cmp_ge_u32 s{S_C}, 9")
                a(f"s_cselect_b32 s{S_T3}, 9, 0")
                a(f"s_sub_u32 s{S_C}, s{S_C}, s{S_T3}")
    if 'rot4' in exp:
        a(f"s_lshr_b32 s{S_C}, s{S_T4}, 2")
        a(f"s_and_b32 s{S_T3}, s{S_I}, 3")
        a(f"s_lshr_b32 s{S_T3}, s{S_T3}, 1")
        a(f"s_add_u32 s{S_C}, s{S_C}, s{S_T3}")
        a(f"s_mul_i32 s{S_C}, s{S_C}, 3")
    a(f"s_lshl_b32 s{S_T0}, s{S_B}, 4")
    a(f"s_add_u32 s{S_T0}, s{S_T0}, s{S_HP}")
    a(f"s_lshl_b32 s{S_T0}, s{S_T0}, 3")
    a(f"s_add_u32 s{S_IDX}, s{S_T0}, s{S_S}")
    a(f"s_lshl_b32 s{S_T0}, s{S_B}, 3")
    a(f"s_add_u32 s{S_GRP}, s{S_T0}, s{S_S}")
    a(f"v_lshrrev_b32 v{t}, 6, v0")
    a(f"v_and_b32 v{L}, 63, v0")
    a(f"v_readfirstlane_b32 s{S_WID}, v{t}")
    for (r, n) in ((S_X, 2359296), (S_W, 1990656), (S_WO, 663552), (S_WS, 268435456), (S_OUT, 4718592)):
        a(f"s_mov_b32 s{r+2}, {n}")
        a(f"s_mov_b32 s{r+3}, 0x00020000")
    a(f"s_and_b32 s{S_M}, s{S_WID}, 3")
    a(f"s_lshr_b32 s{S_HEAD}, s{S_WID}, 2")
    a(f"s_sub_u32 s{S_MB}, 7, s{S_M}")
    a(f"s_lshl_b32 s{S_T0}, s{S_GRP}, 18")
    a(f"s_add_u32 s{S_T0}, s{S_T0}, {WS_O}")
    a(f"s_lshl_b32 s{S_T1}, s{S_HP}, 10")
    a(f"s_lshl_b32 s{S_T2}, s{S_HEAD}, 9")
    a(f"s_add_u32 s{S_T1}, s{S_T1}, s{S_T2}")
    a(f"s_add_u32 s{S_OM}, s{S_T1}, s{S_T0}")
    a(f"s_lshl_b32 s{S_T0}, s{S_GRP}, 15")
    a(f"s_add_u32 s{S_T0}, s{S_T0}, {WS_OR}")
    a(f"s_lshl_b32 s{S_T1}, s{S_HP}, 1")
    a(f"s_add_u32 s{S_T1}, s{S_T1}, s{S_HEAD}")
    a(f"s_lshl_b32 s{S_T1}, s{S_T1}, 10")
    a(f"s_add_u32 s{S_OR}, s{S_T1}, s{S_T0}")
    a(f"s_lshl_b32 s{S_OFS}, s{S_GRP}, 12")
    a(f"s_add_u32 s{S_OFS}, s{S_OFS}, {WS_OF}")
    a(f"s_cmp_lt_u32 s{S_WID}, 4")
    a("s_cbranch_scc1 L_COMPUTE")

    emit_masks = lambda: emit_masks_(a)
    emit_p2_patterns = lambda: emit_p2_patterns_(a)

    a(f"s_sub_u32 s{S_L}, s{S_WID}, 4")
    a(f"v_lshrrev_b32 v{t}, 3, v{L}")
    a(f"v_mul_u32_u24 v{t}, 1152, v{t}")
    a(f"v_lshrrev_b32 v{t+1}, 4, v{L}")
    a(f"v_and_b32 v{t+2}, 7, v{L}")
    a(f"v_xor_b32 v{t+3}, v{t+2}, v{t+1}")
    a(f"v_lshl_add_u32 v{V_AX}, v{t+3}, 4, v{t}")
    a(f"v_xor_b32 v{t+3}, 4, v{t+3}")
    a(f"v_lshl_add_u32 v{V_AX+1}, v{t+3}, 4, v{t}")
    a(f"s_mul_i32 s{S_T0}, s{S_HP}, 72")
    a(f"s_and_b32 s{S_T0}, s{S_T0}, 0xfffffff0")
    a(f"v_and_b32 v{t+2}, 15, v{L}")
    a(f"v_mul_u32_u24 v{t+4}, 3456, v{t+1}")
    a(f"v_add_u32 v{t+4}, s{S_T0}, v{t+4}")
    for var in range(2):
        a(f"v_lshlrev_b32 v{t+3}, 1, v{t+1}")
        a(f"v_sub_u32 v{t+3}, v{t+2}, v{t+3}")
        if var: a(f"v_subrev_u32 v{t+3}, 8, v{t+3}")
        a(f"v_and_b32 v{t+3}, 15, v{t+3}")
        a(f"v_min_u32 v{t+3}, 14, v{t+3}")
        a(f"v_mul_u32_u24 v{t+5}, 13, v{t+3}")
        a(f"v_lshrrev_b32 v{t+5}, 6, v{t+5}")
        a(f"v_mul_u32_u24 v{t+6}, 5, v{t+5}")
        a(f"v_sub_u32 v{t+6}, v{t+3}, v{t+6}")
        a(f"v_mul_u32_u24 v{t+5}, 1152, v{t+5}")
        a(f"v_lshl_add_u32 v{t+6}, v{t+6}, 4, v{t+5}")
        a(f"v_add_u32 v{V_AX+2+var}, v{t+4}, v{t+6}")
    for i in range(8):
        a(f"v_add_u32 v{V_LDX+i}, {i*9216-(i&3)*1024}, v{V_AX+(i&1)}")
    for i in range(4):
        a(f"v_add_u32 v{V_LDW+i}, {i*4*3456-i*1024}, v{V_AX+2+(i>>1)}")
    a(f"s_lshl_b32 s{S_T0}, s{S_S}, 8")
    a(f"s_lshl_b32 s{S_T1}, s{S_L}, 6")
    a(f"s_add_u32 s{S_T0}, s{S_T0}, s{S_T1}")
    a(f"s_mul_i32 s{S_XB}, s{S_T0}, 1152")
    a(f"s_mul_i32 s{S_WB}, s{S_L}, {16*3456}")
    a(f"s_lshl_b32 s{S_LX}, s{S_L}, 13")
    a(f"s_lshl_b32 s{S_LW}, s{S_L}, 12")
    a(f"s_add_u32 s{S_LW}, s{S_LW}, 32768")
    a(f"s_mov_b32 s{S_SB}, 0")
    def chunk_pre():
        a(f"s_lshl_b32 s{S_T0}, s{S_C}, 7")
        a(f"s_add_u32 s{S_T0}, s{S_T0}, s{S_XB}")
        a(f"s_mul_i32 s{S_T1}, s{S_C}, {64*3456}")
        a(f"s_add_u32 s{S_T1}, s{S_T1}, s{S_WB}")
        a(f"s_add_u32 s{S_T2}, s{S_SB}, s{S_LW}")
        a(f"s_add_u32 s{S_T3}, s{S_SB}, s{S_LX}")
        a(f"s_add_u32 s{S_C}, s{S_C}, 1")
        a(f"s_cmp_eq_u32 s{S_C}, 9")
        a(f"s_cselect_b32 s{S_C}, 0, s{S_C}")
        a(f"s_add_u32 s{S_SB}, s{S_SB}, {STAGE}")
        a(f"s_cmp_eq_u32 s{S_SB}, {3*STAGE}")
        a(f"s_cselect_b32 s{S_SB}, 0, s{S_SB}")
    def chunk_w():
        a(f"s_mov_b32 m0, s{S_T2}")
        a("s_nop 0")
        for i in range(4):
            a(f"buffer_load_dwordx4 v{V_LDW+i}, s[{S_W}:{S_W+3}], s{S_T1} offen offset:{i*1024} lds")
    def chunk_x(lo, hi):
        for i in range(lo, hi):
            if i == lo or i == 4:
                a(f"s_add_u32 m0, s{S_T3}, {(i&~3)*1024}")
                a("s_nop 0")
            a(f"buffer_load_dwordx4 v{V_LDX+i}, s[{S_X}:{S_X+3}], s{S_T0} offen offset:{(i&3)*1024} lds")
    chunk_pre()
    a("s_waitcnt lgkmcnt(0)")
    chunk_w(); chunk_x(0, 8)
    chunk_pre(); chunk_w(); chunk_x(0, 2)
    a("s_waitcnt vmcnt(6)")
    a("s_barrier")
    chunk_x(2, 8)
    chunk_pre()
    a(f"s_mov_b32 s{S_K}, 2")
    a.lab("L_LD")
    chunk_w(); chunk_x(0, 8)
    chunk_pre()
    a(f"s_add_u32 s{S_K}, s{S_K}, 1")
    a(f"s_cmp_lt_u32 s{S_K}, 9")
    a("s_waitcnt vmcnt(12)")
    a("s_barrier")
    a("s_cbranch_scc1 L_LD")
    a(f"s_lshl_b32 s{S_T0}, s{S_L}, 6")
    a(f"v_add_u32 v{t}, s{S_T0}, v{L}")
    a(f"v_mul_u32_u24 v{t+1}, 7282, v{t}")
    a(f"v_lshrrev_b32 v{t+1}, 16, v{t+1}")
    a(f"v_mul_u32_u24 v{t+2}, 9, v{t+1}")
    a(f"v_sub_u32 v{t+2}, v{t}, v{t+2}")
    a(f"v_mul_u32_u24 v{t+1}, 1152, v{t+1}")
    a(f"v_lshl_add_u32 v{t+1}, v{t+2}, 7, v{t+1}")
    a(f"s_mul_i32 s{S_T0}, s{S_I}, {18*1152}")
    a(f"v_cmp_gt_u32 vcc, 162, v{t}")
    a(f"v_cndmask_b32_e64 v{t+1}, 0, v{t+1}, vcc")
    a(f"buffer_load_dword v255, v{t+1}, s[{S_WO}:{S_WO+3}], s{S_T0} offen")
    emit_masks()
    emit_p2_patterns()
    a(f"v_mul_u32_u24 v{t+1}, 7282, v{L}")
    a(f"v_lshrrev_b32 v{t+1}, 16, v{t+1}")
    a(f"v_mul_u32_u24 v{t+2}, 9, v{t+1}")
    a(f"v_sub_u32 v{t+2}, v{L}, v{t+2}")
    a(f"v_mul_u32_u24 v{t+1}, 1152, v{t+1}")
    a(f"v_lshl_add_u32 v{t+1}, v{t+2}, 4, v{t+1}")
    a(f"s_and_b32 s{S_T0}, s{S_HP}, 7")
    a(f"s_mul_i32 s{S_T0}, s{S_T0}, 144")
    a(f"v_add_u32 v{V_WOV}, s{S_T0}, v{t+1}")
    for j in range(1, 4): a(f"v_add_u32 v{V_WOV+j}, {j*(8064-1008)}, v{V_WOV}")
    a(f"s_mul_i32 s{S_T0}, s{S_L}, {21*1008}")
    a(f"s_mul_i32 s{S_T1}, s{S_L}, {21*8064}")
    a("s_waitcnt vmcnt(1)")
    a("s_barrier")
    WO = f"s[{S_WO}:{S_WO+3}]"
    NW1 = 8 if 'wo8' not in exp else 4
    a(f"s_bitset0_b64 exec, 63")
    for j in range(21):
        if j == NW1:
            a(f"s_mov_b64 exec, -1")
            a("s_barrier")
            a(f"s_bitset0_b64 exec, 63")
        if j == 19:
            a(f"s_cmp_eq_u32 s{S_L}, 3")
            a("s_cbranch_scc0 L_WO_N")
            a(f"s_mov_b64 exec, 0x3ffff")
            a(f"buffer_load_dwordx4 v{V_WOV+(j&3)}, {WO}, s{S_T2} offen offset:{(j&3)*1008} lds")
            a("s_branch L_WO_DONE")
            a.lab("L_WO_N")
        if j % 4 == 0:
            a(f"s_add_u32 m0, s{S_T0}, {j*1008}")
            a(f"s_add_u32 s{S_T2}, s{S_T1}, {j*8064}")
        a(f"buffer_load_dwordx4 v{V_WOV+(j&3)}, {WO}, s{S_T2} offen offset:{(j&3)*1008} lds")
    a.lab("L_WO_DONE")
    a(f"s_mov_b64 exec, -1")
    for r in range(16):
        a(f"v_mov_b32 v{OA+r}, 0")
        a(f"v_mov_b32 v{OB+r}, 0")
    a(f"v_lshlrev_b32 v{V_PA}, 4, v{L}")
    a(f"s_lshl_b32 s{S_T0}, s{S_L}, 10")
    a(f"v_add_u32 v{V_PA}, s{S_T0}, v{V_PA}")
    a(f"v_add_u32 v{V_PA+1}, {KV_OWN}, v{V_PA}")
    a(f"s_mul_i32 s{S_T1}, s{S_IDX}, 36864")
    a("s_barrier")
    a(f"s_cmp_eq_u32 s{S_S}, 7")
    a("s_cbranch_scc1 L_NOPUB")
    order = [8, 7, 6, 5, 4, 3, 2, 1, 0]
    for c, i in enumerate(order):
        a(f"ds_read_b128 v[{VH+4*c}:{VH+4*c+3}], v{V_PA+1} offset:{i*4096}")
    for c, i in enumerate(order[:5]):
        a(f"s_waitcnt lgkmcnt({8-c})")
        a(f"s_add_u32 s{S_T2}, s{S_T1}, {i*4096}")
        a(f"buffer_store_dwordx4 v[{VH+4*c}:{VH+4*c+3}], v{V_PA}, {WS}, s{S_T2} offen sc1")
    a.lab("L_NOPUB")
    a("s_branch L_P2")

    a.lab("L_COMPUTE")
    a(f"v_and_b32 v{t}, 15, v{L}")
    a(f"v_lshrrev_b32 v{t+1}, 4, v{L}")
    a(f"v_lshrrev_b32 v{t+2}, 1, v{t}")
    a(f"s_lshl_b32 s{S_T0}, s{S_WID}, 6")
    a(f"v_add_u32 v{t+3}, s{S_T0}, v{t}")
    a(f"v_lshlrev_b32 v{t+3}, 7, v{t+3}")
    a(f"v_xor_b32 v{t+4}, v{t+1}, v{t+2}")
    a(f"v_lshlrev_b32 v{t+5}, 4, v{t+4}")
    a(f"v_add_u32 v{V_AX}, v{t+3}, v{t+5}")
    a(f"v_xor_b32 v{t+4}, 4, v{t+4}")
    a(f"v_lshlrev_b32 v{t+5}, 4, v{t+4}")
    a(f"v_add_u32 v{V_AX+1}, v{t+3}, v{t+5}")
    a(f"v_bfe_u32 v{t}, v{L}, 2, 2")
    a(f"v_and_b32 v{t+2}, 3, v{L}")
    a(f"v_and_b32 v{t+3}, 1, v{t+1}")
    a(f"v_lshl_add_u32 v{t+3}, v{t+3}, 2, v{t}")
    a(f"v_lshlrev_b32 v{t+3}, 5, v{t+3}")
    a(f"v_lshl_add_u32 v{t+4}, v{t+1}, 3, v{t}")
    a(f"v_lshlrev_b32 v{t+4}, 8, v{t+4}")
    a(f"v_add_u32 v{t+4}, 32768, v{t+4}")
    a(f"v_lshlrev_b32 v{t+5}, 3, v{t+2}")
    a(f"s_and_b32 s{S_T1}, s{S_HP}, 1")
    a(f"s_lshl_b32 s{S_T1}, s{S_T1}, 3")
    a(f"v_add3_u32 v{t+5}, v{t+5}, v{t+3}, s{S_T1}")
    for Tn in range(6):
        off = 80*(Tn >> 1) + (40 if Tn & 1 else 0)
        a(f"v_add_u32 v{t+6}, {off}, v{t+5}")
        a(f"v_and_b32 v{t+6}, 255, v{t+6}")
        a(f"v_add_u32 v{V_AW+Tn}, v{t+4}, v{t+6}")
    a(f"v_min_u32 v{t+6}, 2, v{t+2}")
    a(f"v_mul_u32_u24 v{t+6}, 80, v{t+6}")
    a(f"v_add3_u32 v{t+6}, v{t+6}, v{t+3}, s{S_T1}")
    a(f"v_add_u32 v{t+6}, 32, v{t+6}")
    a(f"v_and_b32 v{t+6}, 255, v{t+6}")
    a(f"v_add_u32 v{V_AW+6}, v{t+4}, v{t+6}")
    a(f"v_and_b32 v{t}, 15, v{L}")
    a(f"v_lshrrev_b32 v{t+1}, 4, v{L}")
    a(f"v_and_b32 v{t+2}, 1, v{t+1}")
    a(f"v_lshl_add_u32 v{t+2}, v{t+2}, 4, v{t}")
    a(f"v_lshrrev_b32 v{t+3}, 2, v{t}")
    a(f"v_lshrrev_b32 v{t+4}, 3, v{t}")
    a(f"v_xor_b32 v{t+3}, v{t+3}, v{t+4}")
    a(f"v_lshrrev_b32 v{t+4}, 1, v{t+1}")
    a(f"v_xor_b32 v{t+3}, v{t+3}, v{t+4}")
    a(f"v_and_b32 v{t+3}, 1, v{t+3}")
    a(f"v_lshlrev_b32 v{t+3}, 4, v{t+3}")
    a(f"v_lshl_add_u32 v{t+3}, v{t+2}, 5, v{t+3}")
    a(f"s_mul_i32 s{S_T0}, s{S_WID}, {2*TILE}")
    a(f"s_add_u32 s{S_T0}, s{S_T0}, {KV_OWN}")
    a(f"s_mul_i32 s{S_T1}, s{S_WID}, {2*QTILE}")
    a(f"s_add_u32 s{S_T1}, s{S_T1}, {Q_BASE}")
    a(f"v_add_u32 v{vEK}, s{S_T0}, v{t+3}")
    a(f"v_add_u32 v{vEQ}, s{S_T1}, v{t+3}")
    a(f"v_mul_u32_u24 v{t+4}, 72, v{t}")
    a(f"v_lshl_add_u32 v{t+5}, v{t+1}, 3, v{t+4}")
    a(f"v_add_u32 v{t+5}, 2304, v{t+5}")
    a(f"v_add_u32 v{vEV}, s{S_T0}, v{t+5}")
    a(f"v_lshlrev_b32 v{t+5}, 3, v{t}")
    a(f"v_add_u32 v{t+5}, 2048, v{t+5}")
    a(f"v_add_u32 v{t+6}, s{S_T1}, v{t+5}")
    a(f"v_add_u32 v{t+7}, s{S_T0}, v{t+5}")
    a(f"v_add_u32 v{t+4}, {2304+32}, v{t+4}")
    a(f"v_add_u32 v{t+4}, s{S_T0}, v{t+4}")
    a(f"v_mov_b32 v{vDr}, 128")
    a(f"v_mov_b32 v{vDt}, {TILE}")
    a(f"v_mov_b32 v{vF}, 1.0")
    a(f"v_mov_b32 v{vE6}, v{t+7}")
    a(f"v_cmp_eq_u32 vcc, 0, v{t+1}")
    a(f"v_mov_b32 v{t+5}, {QTILE}")
    a(f"v_mov_b32 v{vC}, {f32bits(QSCALE):#x}")
    a(f"v_cndmask_b32 v{vE6}, v{vE6}, v{t+6}, vcc")
    a(f"v_cndmask_b32 v{vDt}, v{vDt}, v{t+5}, vcc")
    a(f"v_cndmask_b32 v{vF}, v{vF}, v{vC}, vcc")
    a(f"v_cmp_eq_u32 vcc, 2, v{t+1}")
    a(f"v_mov_b32 v{t+5}, 1152")
    a(f"v_mov_b32 v{vC+1}, v{vC}")
    a(f"v_cndmask_b32 v{vE6}, v{vE6}, v{t+4}, vcc")
    a(f"v_cndmask_b32 v{vDr}, v{vDr}, v{t+5}, vcc")
    a(f"v_mov_b32 v{vF+1}, v{vF}")
    a("s_waitcnt lgkmcnt(0)")
    if 'nocp' not in exp:
        a(f"s_cmp_lg_u32 s{S_WID}, 3")
        a("s_cbranch_scc1 L_NOCP")
        a(f"s_getpc_b64 s[{S_RET}:{S_RET+1}]")
        a.lab("L_PCREF")
        a(f"s_sub_u32 s{S_RET}, s{S_RET}, L_PCREF-{NAME}_kernel")
        a(f"s_subb_u32 s{S_RET+1}, s{S_RET+1}, 0")
        a(f"s_mul_i32 s{S_T0}, s{S_I}, {5*128}")
        a(f"v_lshlrev_b32 v{t}, 7, v{L}")
        a(f"v_add_u32 v{t}, s{S_T0}, v{t}")
        a(f"s_mov_b32 s{S_T1}, L_END-{NAME}_kernel")
        a(f"v_cmp_gt_u32 vcc, s{S_T1}, v{t}")
        a(f"s_and_b64 vcc, vcc, 31")
        a(f"s_and_saveexec_b64 s[{S_SAVE}:{S_SAVE+1}], vcc")
        a("s_cbranch_execz L_NOCP2")
        a(f"global_load_dword v{V_TL}, v{t}, s[{S_RET}:{S_RET+1}]")
        a.lab("L_NOCP2")
        rest_exec()
        a.lab("L_NOCP")
    a(f"s_cmp_lg_u32 s{S_WID}, 0")
    a("s_cbranch_scc1 L_NOG0")
    a(f"s_lshl_b32 s{S_T0}, s{S_IDX}, 8")
    a(f"s_add_u32 s{S_T0}, s{S_T0}, {WS_FLAG}")
    a(f"s_lshl_b32 s{S_T1}, s{S_GRP}, 12")
    a(f"s_add_u32 s{S_T1}, s{S_T1}, {WS_OF}")
    a(f"v_mov_b32 v{t}, 0")
    a(f"buffer_load_dword v{V_TG}, v{t}, {WS}, s{S_T0} offen sc1")
    a(f"s_sub_u32 s{S_T0}, s{S_T0}, 256")
    a(f"s_max_u32 s{S_T0}, s{S_T0}, {WS_FLAG}")
    a(f"buffer_load_dword v{V_TG+1}, v{t}, {WS}, s{S_T0} offen sc1")
    a(f"buffer_load_dword v{V_TG+2}, v{t}, {WS}, s{S_T1} offen sc1")
    a.lab("L_NOG0")
    for i in range(112):
        a(f"v_mov_b32 v{V_ACC+i}, 0")
    emit_masks()
    emit_p2_patterns()
    a(f"v_mov_b32 v{t+2}, 0x3f803f80")
    a(f"v_mov_b32 v{t+3}, 0x3f803f80")
    a(f"v_mul_u32_u24 v{t+4}, 576, v{L}")
    a(f"v_add_u32 v{t+4}, {MISC}, v{t+4}")
    save_exec(15)
    a(f"ds_write_b64 v{t+4}, v[{t+2}:{t+3}]")
    rest_exec()
    a(f"s_cmp_lg_u32 s{S_WID}, 0")
    a("s_cbranch_scc1 L_NOG1")
    a("s_waitcnt vmcnt(0)")
    for i in range(3): a(f"v_add_u32 v{V_TG+i}, {TAG_INC:#x}, v{V_TG+i}")
    a(f"v_mov_b32 v{V_TG+3}, 0")
    a(f"v_mov_b32 v{t+4}, {TAGS_LDS}")
    save_exec(1)
    a(f"ds_write_b128 v{t+4}, v[{V_TG}:{V_TG+3}]")
    for i in range(4): a(f"v_mov_b32 v{V_TG+i}, 0")
    a(f"ds_write_b128 v{t+4}, v[{V_TG}:{V_TG+3}] offset:16")
    rest_exec()
    a.lab("L_NOG1")
    a("s_waitcnt lgkmcnt(0)")
    a("s_barrier")
    if "tsh" not in exp and "tsj" not in exp: ts(1)
    def reads(setb, ks):
        xs = [f"ds_read_b128 v[{setb+4*mt}:{setb+4*mt+3}], v{V_AX+ks} offset:{mt*2048}" for mt in range(4)]
        ws = []
        for Tn in range(7):
            b = setb + 16 + 4*Tn
            ws.append(f"ds_read_b64_tr_b16 v[{b}:{b+1}], v{V_AW+Tn} offset:{ks*8192}")
            ws.append(f"ds_read_b64_tr_b16 v[{b+2}:{b+3}], v{V_AW+Tn} offset:{ks*8192+1024}")
        return [xs[0], ws[0], ws[1], xs[1], ws[2], ws[3], xs[2], ws[4], ws[5], xs[3]] + ws[6:]
    def mfmas(setb):
        m = []
        for Tn in range(7):
            for mt in range(4):
                d = V_ACC + (mt*7+Tn)*4
                m.append(f"v_mfma_f32_16x16x32_bf16 v[{d}:{d+3}], v[{setb+16+4*Tn}:{setb+16+4*Tn+3}], v[{setb+4*mt}:{setb+4*mt+3}], v[{d}:{d+3}]")
        return m
    def interleave(ms, extra, per=1):
        ri = 0
        for i, m in enumerate(ms):
            a(m)
            for _ in range(per):
                if ri < len(extra): a(extra[ri]); ri += 1
        while ri < len(extra):
            a(extra[ri]); ri += 1
    for i in range(4): a(f"v_mov_b32 v{V_TG+i}, -1")
    a(f"v_lshlrev_b32 v{V_TL+1}, 4, v{L}")
    a(f"s_lshl_b32 s{S_XB}, s{S_GRP}, 18")
    a(f"s_add_u32 s{S_XB}, s{S_XB}, {WS_O}")
    a(f"s_lshl_b32 s{S_T0}, s{S_WID}, 16")
    a(f"s_add_u32 s{S_XB}, s{S_XB}, s{S_T0}")
    a(f"s_lshl_b32 s{S_T0}, s{S_HP}, 10")
    a(f"s_add_u32 s{S_XB}, s{S_XB}, s{S_T0}")
    a(f"s_lshl_b32 s{S_WB}, s{S_GRP}, 15")
    a(f"s_add_u32 s{S_WB}, s{S_WB}, {WS_OR}")
    a(f"s_lshl_b32 s{S_T0}, s{S_HP}, 1")
    a(f"s_and_b32 s{S_T1}, s{S_WID}, 1")
    a(f"s_add_u32 s{S_T0}, s{S_T0}, s{S_T1}")
    a(f"s_lshl_b32 s{S_T0}, s{S_T0}, 10")
    a(f"s_add_u32 s{S_WB}, s{S_WB}, s{S_T0}")
    for rd in reads(V_SET0, 0): a(rd)
    a(f"s_mov_b32 s{S_K}, 0")
    a(f"s_mov_b32 s{S_SB}, 0")
    if 'tb' in exp: a(f"v_mov_b32 v{V_TL}, 0")
    a.lab("L_GEMM")
    a(f"s_cmp_ge_u32 s{S_K}, 5")
    a("s_cbranch_scc1 L_GEMM_NS")
    a(f"s_cmp_eq_u32 s{S_K}, 4")
    a(f"s_cselect_b32 s{S_XB}, s{S_WB}, s{S_XB}")
    a(f"buffer_store_dwordx4 v[{V_TG}:{V_TG+3}], v{V_TL+1}, {WS}, s{S_XB} offen sc1")
    a(f"s_add_u32 s{S_XB}, s{S_XB}, 16384")
    a.lab("L_GEMM_NS")
    a(f"s_cmp_eq_u32 s{S_K}, 7")
    a("s_cbranch_scc0 L_GEMM_NC")
    a(f"v_mov_b32 v{t}, {TAGS_LDS+8}")
    a(f"ds_read_b32 v{t+3}, v{t}")
    a("s_waitcnt vmcnt(0) lgkmcnt(0)")
    a(f"v_readfirstlane_b32 s{S_TAGO}, v{t+3}")
    oflag(a, "L_CLR", CNTOB, 128, save_exec, rest_exec, last=3)
    a.lab("L_GEMM_NC")
    a("s_waitcnt lgkmcnt(0)")
    if 'tb' in exp:
        a(f"s_sub_u32 s92, s92, s70")
        a(f"s_mov_b32 m0, s{S_K}")
        a("s_nop 4")
        a(f"v_writelane_b32 v{V_TL}, s92, m0")
    sal = [f"s_add_u32 s{S_SB}, s{S_SB}, 1", f"s_cmp_eq_u32 s{S_SB}, 3", f"s_mov_b32 s{S_T0}, {STAGE}",
           f"s_cselect_b32 s{S_T0}, {(-2*STAGE) & 0xffffffff}, s{S_T0}", f"s_cselect_b32 s{S_SB}, 0, s{S_SB}"]
    interleave(mfmas(V_SET0), reads(V_SET1, 1) + sal)
    a("s_waitcnt lgkmcnt(0)")
    a("s_barrier")
    if 'tb' in exp: a("s_memtime s[92:93]")
    rd = reads(V_SET0, 0)
    adds = [f"v_add_u32 v{V_AX+i}, s{S_T0}, v{V_AX+i}" for i in range(9)]
    ex = [adds[0], adds[2], rd[0], rd[1], rd[2], adds[3], rd[3], rd[4], rd[5], adds[4], rd[6], rd[7], rd[8], rd[9],
          adds[5], rd[10], rd[11], adds[6], rd[12], rd[13], adds[7], rd[14], rd[15], adds[8], rd[16], rd[17], adds[1],
          f"s_add_u32 s{S_K}, s{S_K}, 1", f"s_cmp_lt_u32 s{S_K}, 9"]
    ms = mfmas(V_SET1)
    ri = 0
    for i, m in enumerate(ms):
        a(m)
        n = 2 if i < 6 else 1
        for _ in range(n):
            if ri < len(ex): a(ex[ri]); ri += 1
    assert ri == len(ex)
    a("s_cbranch_scc1 L_GEMM")
    if "tsh" not in exp and "tsj" not in exp: ts(2)
    a.c("phase-1 epilogue")
    a("s_waitcnt lgkmcnt(0)")
    acc = lambda mt, Tn: V_ACC + (mt*7+Tn)*4
    e = [V_SET0]
    def qk_tile(Tn, base_reg, pstride, hoff):
        for p in range(2):
            R = e[0]; e[0] += 4
            da, db = acc(2*p, Tn), acc(2*p+1, Tn)
            a(f"v_cvt_pk_bf16_f32 v{R}, v{da}, v{da+1}")
            a(f"v_cvt_pk_bf16_f32 v{R+2}, v{db}, v{db+1}")
            a(f"v_cvt_pk_bf16_f32 v{R+1}, v{da+2}, v{da+3}")
            a(f"v_cvt_pk_bf16_f32 v{R+3}, v{db+2}, v{db+3}")
            a("s_nop 0")
            a(f"v_permlane16_swap_b32 v{R}, v{R+2}")
            a(f"v_permlane16_swap_b32 v{R+1}, v{R+3}")
            a(f"ds_write_b128 v{base_reg}, v[{R}:{R+3}] offset:{p*pstride+hoff}")
    a("s_nop 3")
    qk_tile(2, vEK, TILE, 0)
    qk_tile(3, vEK, TILE, 1024)
    for Tn in (4, 5):
        for mt in range(4):
            R = e[0]; e[0] += 2
            d = acc(mt, Tn)
            a(f"v_cvt_pk_bf16_f32 v{R}, v{d}, v{d+1}")
            a(f"v_cvt_pk_bf16_f32 v{R+1}, v{d+2}, v{d+3}")
            a(f"ds_write_b64 v{vEV}, v[{R}:{R+1}] offset:{(mt>>1)*TILE + (mt&1)*1152 + (40 if Tn==5 else 0)}")
    R6 = e[0]; e[0] += 8
    for mt in range(4):
        d = acc(mt, 6)
        a(f"v_pk_mul_f32 v[{d}:{d+1}], v[{d}:{d+1}], v[{vF}:{vF+1}]")
        a(f"v_pk_mul_f32 v[{d+2}:{d+3}], v[{d+2}:{d+3}], v[{vF}:{vF+1}]")
    for mt in range(4):
        d = acc(mt, 6)
        a(f"v_cvt_pk_bf16_f32 v{R6+2*mt}, v{d}, v{d+1}")
        a(f"v_cvt_pk_bf16_f32 v{R6+2*mt+1}, v{d+2}, v{d+3}")
    a(f"v_add_u32 v{t}, v{vE6}, v{vDr}")
    a(f"v_add_u32 v{t+1}, v{vE6}, v{vDt}")
    a(f"v_add_u32 v{t+2}, v{t+1}, v{vDr}")
    a(f"s_mov_b64 s[{S_SAVE}:{S_SAVE+1}], exec")
    a(f"s_mov_b32 exec_hi, 0x0000ffff")
    a(f"ds_write_b64 v{vE6}, v[{R6}:{R6+1}]")
    a(f"ds_write_b64 v{t}, v[{R6+2}:{R6+3}]")
    a(f"ds_write_b64 v{t+1}, v[{R6+4}:{R6+5}]")
    a(f"ds_write_b64 v{t+2}, v[{R6+6}:{R6+7}]")
    rest_exec()
    a("s_waitcnt lgkmcnt(0)")
    a("s_barrier")
    for mt in range(4):
        for Tn in (0, 1):
            d = acc(mt, Tn)
            a(f"v_pk_mul_f32 v[{d}:{d+1}], v[{d}:{d+1}], v[{vC}:{vC+1}]")
            a(f"v_pk_mul_f32 v[{d+2}:{d+3}], v[{d+2}:{d+3}], v[{vC}:{vC+1}]")
    e[0] = 84
    qk_tile(0, vEQ, QTILE, 0)
    qk_tile(1, vEQ, QTILE, 1024)
    for r in range(16):
        a(f"v_mov_b32 v{OA+r}, 0")
        a(f"v_mov_b32 v{OB+r}, 0")

    a.lab("L_P2")
    a(f"v_mov_b32 v{t}, {TAGS_LDS}")
    a(f"ds_read_b128 v[{V_TG}:{V_TG+3}], v{t}")
    a("s_waitcnt lgkmcnt(0)")
    a("s_barrier")
    ts(3)
    if debug_stage == 1:
        a(f"s_lshl_b32 s{S_T0}, s{S_IDX}, 16")
        a(f"v_lshlrev_b32 v{t}, 4, v0")
        for i in range(7):
            a(f"v_add_u32 v{t+1}, {KV_OWN + i*8192}, v{t}")
            a(f"ds_read_b128 v[40:43], v{t+1}")
            a("s_waitcnt lgkmcnt(0)")
            a(f"v_add_u32 v{t+2}, {i*8192}, v{t}")
            a(f"buffer_store_dwordx4 v[40:43], v{t+2}, {WS}, s{S_T0} offen")
            a("s_waitcnt vmcnt(0)")
        a("s_branch L_FIN")
    if debug_stage == 9:
        a("s_branch L_FIN")
    if debug_stage not in (1, 9):
        phase2(a, debug_stage, ts, exp, save_exec, rest_exec)
        phase3(a, debug_stage, ts, exp, save_exec, rest_exec)
    a.lab("L_FIN")
    if 'hdbg' in exp:
        a("s_waitcnt vmcnt(0) lgkmcnt(0)")
        a("s_memrealtime s[94:95]")
        a(f"s_load_dwordx2 s[{S_X}:{S_X+1}], s[0:1], 56")
        a("s_waitcnt lgkmcnt(0)")
        a(f"s_cmp_lg_u32 s{S_WID}, 4")
        a("s_cbranch_scc1 L_END")
        a(f"s_mov_b32 s{S_X+2}, 256")
        a(f"s_mov_b32 s{S_X+3}, 0x00020000")
        a("s_mov_b64 exec, 1")
        a("v_mov_b32 v2, 0")
        a("s_not_b32 s33, s70")
        a("v_mov_b32 v3, s33")
        a(f"buffer_atomic_umax v3, v2, s[{S_X}:{S_X+3}], 0 offen offset:0")
        a("v_mov_b32 v3, s70")
        a(f"buffer_atomic_umax v3, v2, s[{S_X}:{S_X+3}], 0 offen offset:4")
        for k, i in enumerate((3, 4, 5, 7, 8, 10, 9, 11, 12)):
            a(f"v_mov_b32 v{4+k}, s{70+2*i}")
            a(f"buffer_atomic_umax v{4+k}, v2, s[{S_X}:{S_X+3}], 0 offen offset:{8+4*k}")
        a("s_waitcnt vmcnt(0)")
        a("s_branch L_END")
    if timing:
        a("s_waitcnt vmcnt(0) lgkmcnt(0)")
        a(f"{'s_memrealtime' if ('abs' in exp or 'hdbg' in exp) else 's_memtime'} s[94:95]")
        a("s_waitcnt lgkmcnt(0)")
        a(f"s_lshl_b32 s{S_T0}, s2, 3")
        a(f"s_add_u32 s{S_T0}, s{S_T0}, s{S_WID}")
        a(f"s_lshl_b32 s{S_T0}, s{S_T0}, 6")
        a(f"s_add_u32 s{S_T0}, s{S_T0}, {TIMING_OFF}")
        for i in range(13):
            a(f"s_sub_u32 s{S_T1}, s{70+2*i}, s70" if (i and 'abs' not in exp) else f"s_mov_b32 s{S_T1}, s{70+2*i}")
            a(f"s_cmp_eq_u32 s{70+2*i}, 0")
            a(f"s_cselect_b32 s{S_T1}, 0, s{S_T1}")
            a(f"v_mov_b32 v{40+i}, s{S_T1}")
        if 'tb' in exp:
            a(f"v_lshlrev_b32 v2, 2, v{V_LANE}")
            a(f"s_add_u32 s{S_T1}, s{S_T0}, {1<<20}")
            a(f"s_mov_b64 exec, 0xffff")
            a(f"buffer_store_dword v{V_TL}, v2, {WS}, s{S_T1} offen")
        a(f"v_mov_b32 v2, 0")
        a(f"s_mov_b64 exec, 1")
        for i in range(3):
            a(f"buffer_store_dwordx4 v[{40+4*i}:{43+4*i}], v2, {WS}, s{S_T0} offen offset:{16*i}")
        a(f"buffer_store_dword v52, v2, {WS}, s{S_T0} offen offset:48")
        a("s_waitcnt vmcnt(0)")
    a.lab("L_END")
    a("s_endpgm")
    a(f""".section .rodata,"a"
.p2align 6
.amdhsa_kernel {NAME}_kernel
  .amdhsa_next_free_vgpr 256
  .amdhsa_next_free_sgpr 102
  .amdhsa_accum_offset 256
  .amdhsa_group_segment_fixed_size 0
  .amdhsa_kernarg_size 72
  .amdhsa_user_sgpr_count 2
  .amdhsa_user_sgpr_kernarg_segment_ptr 1
  .amdhsa_system_sgpr_workgroup_id_x 1
.end_amdhsa_kernel""")
    return a.text()

WS = f"s[{S_WS}:{S_WS+3}]"

def spin_poll(a, name, check_lines, load_line, limit=2000000, first_done=False):
    a(f"s_mov_b32 s{S_CNT}, 0")
    if first_done: a(f"s_branch {name}_W")
    a.lab(name)
    a(load_line)
    a.lab(name + "_W")
    a(f"s_add_u32 s{S_CNT}, s{S_CNT}, 1")
    a("s_waitcnt vmcnt(0)")
    for l in check_lines: a(l)
    a(f"s_cbranch_scc1 {name}_OK")
    a(f"s_cmp_lt_u32 s{S_CNT}, {limit}")
    a(f"s_cbranch_scc1 {name}")
    a.lab(name + "_OK")

def lds_inc(a, addr, save_exec, rest_exec, rtn=None):
    t = T
    a(f"v_mov_b32 v{t}, {addr}")
    a(f"v_mov_b32 v{t+1}, 1")
    save_exec(1)
    if rtn is None: a(f"ds_add_u32 v{t}, v{t+1}")
    else: a(f"ds_add_rtn_u32 v{rtn}, v{t}, v{t+1}")
    rest_exec()

def lds_wait(a, name, addr, val):
    t = T
    a(f"v_mov_b32 v{t}, {addr}")
    a(f"s_mov_b32 s{S_CNT}, 0")
    a.lab(name)
    a(f"ds_read_b32 v{t+1}, v{t}")
    a(f"s_add_u32 s{S_CNT}, s{S_CNT}, 1")
    a("s_waitcnt lgkmcnt(0)")
    a(f"v_readfirstlane_b32 s{S_T0}, v{t+1}")
    a(f"s_cmp_ge_u32 s{S_T0}, {val}")
    a(f"s_cbranch_scc1 {name}_OK")
    a(f"s_cmp_lt_u32 s{S_CNT}, 20000000")
    a(f"s_cbranch_scc1 {name}")
    a.lab(name + "_OK")

def hook_point(a, tag):
    a(f"s_add_u32 s{S_U}, s{S_U}, 1")
    a(f"s_cmp_lg_u32 s{S_U}, s{S_HOOK}")
    a(f"s_cbranch_scc1 {tag}")
    a(f"s_call_b64 s[{S_RET2}:{S_RET2+1}], L_HOOK")
    a.lab(tag)

def run_code(a, name, QM, QR, O, exp):
    cnt = [0]
    def qk1(creg):
        c = "0" if creg is None else f"v[{creg}:{creg+15}]"
        a(f"v_mfma_f32_32x32x16_bf16 v[{VS}:{VS+15}], v[{VKF}:{VKF+3}], v[{QM}:{QM+3}], {c}")
    def qk2():
        a(f"v_mfma_f32_32x32x16_bf16 v[{VS}:{VS+15}], v[{VKR}:{VKR+3}], v[{QR}:{QR+3}], v[{VS}:{VS+15}]")
    def pv(V, P):
        a(f"v_mfma_f32_32x32x16_bf16 v[{O}:{O+15}], v[{V}:{V+3}], v[{P}:{P+3}], v[{O}:{O+15}]")
    def kread():
        a(f"ds_read_b128 v[{VKF}:{VKF+3}], v{A_K}")
        a(f"ds_read_b64 v[{VKR}:{VKR+1}], v{A_KR}")
    def kstep():
        a(f"v_add_u32 v{A_K}, v{ST_K}, v{A_K}")
        a(f"v_add_u32 v{A_KR}, v{ST_K}, v{A_KR}")
    def vread(V, off):
        a(f"ds_read_b64_tr_b16 v[{V}:{V+1}], v{A_V} offset:{off}")
        a(f"ds_read_b64_tr_b16 v[{V+2}:{V+3}], v{A_V} offset:{off+576}")
    def cvt(j): a(f"v_cvt_pk_bf16_f32 v{VP+j}, v{VE+2*j}, v{VE+2*j+1}")
    def ex(r): a(f"v_exp_f32 v{VE+r}, v{VS+r}")
    def unit(D):
        for r in range(8): ex(r)
        for j in range(4): cvt(j)
        ex(8); ex(9)
        a("s_waitcnt lgkmcnt(0)")
        pv(VVA, VP)
        for r in range(10, 16): ex(r)
        if D:
            qk1(V_MASK if D == "mask" else None)
            for j in range(4, 8): cvt(j)
            vread(VVA, 0)
            qk2()
            kstep()
            kread()
            pv(VVB, VP+4)
            vread(VVB, 1152)
            a(f"v_add_u32 v{A_V}, v{ST_V}, v{A_V}")
        else:
            a("s_nop 0")
            for j in range(4, 8): cvt(j)
            a("s_nop 1")
            pv(VVB, VP+4)
    a.lab(name)
    kread()
    a(f"s_cmp_eq_u32 s{S_N}, 1")
    a(f"s_cbranch_scc1 {name}_M1")
    kstep()
    a("s_waitcnt lgkmcnt(0)")
    qk1(None); qk2()
    vread(VVA, 0); kread(); vread(VVB, 1152)
    a(f"v_add_u32 v{A_V}, v{ST_V}, v{A_V}")
    a(f"s_sub_u32 s{S_N}, s{S_N}, 2")
    a.lab(name + "_BT")
    a(f"s_cmp_eq_u32 s{S_N}, 0")
    a(f"s_cbranch_scc1 {name}_MK0")
    a(f"s_sub_u32 s{S_E}, s{S_HOOK}, s{S_U}")
    a(f"s_min_u32 s{S_E}, s{S_E}, s{S_N}")
    a(f"s_sub_u32 s{S_N}, s{S_N}, s{S_E}")
    a(f"s_add_u32 s{S_U}, s{S_U}, s{S_E}")
    a(f"s_sub_u32 s{S_E}, s{S_E}, 1")
    a.lab(name + "_LP")
    unit("plain")
    a(f"s_sub_u32 s{S_E}, s{S_E}, 1")
    a("s_nop 1")
    a(f"s_cbranch_scc0 {name}_LP")
    a(f"s_cmp_lg_u32 s{S_U}, s{S_HOOK}")
    a(f"s_cbranch_scc1 {name}_BT")
    a(f"s_call_b64 s[{S_RET2}:{S_RET2+1}], L_HOOK")
    a(f"s_branch {name}_BT")
    a.lab(name + "_MK0")
    a("s_nop 3")
    a.lab(name + "_MK")
    unit("mask")
    hook_point(a, f"{name}_H1")
    a("s_nop 1")
    a.lab(name + "_FN")
    unit(None)
    hook_point(a, f"{name}_H2")
    a(f"s_setpc_b64 s[{S_RET}:{S_RET+1}]")
    a.lab(name + "_M1")
    a("s_waitcnt lgkmcnt(0)")
    qk1(V_MASK); qk2()
    vread(VVA, 0); vread(VVB, 1152)
    a("s_nop 7")
    a(f"s_branch {name}_FN")

def set_run(a, region, tile_sreg, n_lines, step):
    a(f"s_mul_i32 s{S_T0}, s{tile_sreg}, {TILE}" if tile_sreg is not None else f"s_mov_b32 s{S_T0}, 0")
    a(f"s_add_u32 s{S_T0}, s{S_T0}, {region}")
    a(f"v_add_u32 v{A_K}, s{S_T0}, v{B_K}")
    a(f"v_add_u32 v{A_KR}, s{S_T0}, v{B_KR}")
    a(f"v_and_b32 v{A_V}, s{S_T0}, v{MK_V}")
    a(f"v_add_u32 v{A_V}, v{B_V}, v{A_V}")
    a(f"v_mov_b32 v{ST_K}, {step & 0xffffffff:#x}")
    a(f"v_and_b32 v{ST_V}, v{ST_K}, v{MK_V}")
    for l in n_lines: a(l)

F_MD, F_MF, F_M = 190, 206, 222
S_FQ, S_FT, S_FK, S_FP, S_FI2 = 32+12, 45, 46, 47, 48

def safety_check(a, O, isB, qb_sreg, tag):
    t = T
    a(f"v_max3_f32 v{t}, |v{O}|, |v{O+1}|, |v{O+2}|")
    for k in range(3, 11, 2): a(f"v_max3_f32 v{t}, v{t}, |v{O+k}|, |v{O+k+1}|")
    a(f"v_max_f32 v{t}, v{t}, |v{O+11}|".replace("v_max_f32", "v_max_f32_e64"))
    a(f"v_mov_b32 v{t+1}, 0x21800000")
    a(f"v_mov_b32 v{t+2}, 0x5d800000")
    a(f"v_mov_b32 v{t+3}, 0x7f000000")
    a(f"v_cmp_nge_f32 vcc, v{O+12}, v{t+1}")
    a(f"v_cmp_nle_f32 s[{S_BAD}:{S_BAD+1}], v{O+12}, v{t+2}")
    a(f"s_or_b64 vcc, vcc, s[{S_BAD}:{S_BAD+1}]")
    a(f"v_cmp_nlt_f32 s[{S_BAD}:{S_BAD+1}], v{t}, v{t+3}")
    a(f"s_or_b64 vcc, vcc, s[{S_BAD}:{S_BAD+1}]")
    a("s_cmp_eq_u64 vcc, 0")
    a(f"s_cbranch_scc1 L_SAFE{tag}")
    a(f"s_mov_b32 s{S_FQ}, s{qb_sreg}")
    if isB:
        for r in range(8): a(f"v_swap_b32 v{QA_M+r}, v{QB_M+r}")
        for r in range(16): a(f"v_swap_b32 v{OA+r}, v{OB+r}")
    a(f"s_call_b64 s[{S_RET}:{S_RET+1}], L_FB")
    if isB:
        for r in range(8): a(f"v_swap_b32 v{QA_M+r}, v{QB_M+r}")
        for r in range(16): a(f"v_swap_b32 v{OA+r}, v{OB+r}")
    a.lab(f"L_SAFE{tag}")

def fallback_code(a):
    t = T; L = V_LANE
    a.lab("L_FB")
    a(f"v_and_b32 v{t}, 31, v{L}")
    a(f"v_lshrrev_b32 v{t+1}, 5, v{L}")
    a(f"v_lshlrev_b32 v{t+1}, 2, v{t+1}")
    a(f"v_sub_u32 v{t}, v{t}, v{t+1}")
    a(f"v_mov_b32 v{t+1}, {NEG:#x}")
    for r in range(16):
        jj = (r & 3) + 8*(r >> 2)
        a(f"v_cmp_le_i32 vcc, {jj}, v{t}")
        a("s_nop 1")
        a(f"v_cndmask_b32_e64 v{F_MD+r}, v{t+1}, 0, vcc")
        a(f"v_sub_f32 v{F_MF+r}, v{t+1}, v{F_MD+r}")
    a(f"v_mov_b32 v{F_M}, 0xff800000")
    a(f"s_mov_b32 s{S_FP}, 0")
    a.lab("L_FB_PASS")
    a(f"s_mov_b32 s{S_FI2}, 0")
    a.lab("L_FB_OWN")
    a(f"s_mul_i32 s{S_FT}, s{S_FI2}, {TILE}")
    a(f"s_add_u32 s{S_FT}, s{S_FT}, {KV_OWN}")
    a(f"s_cmp_eq_u32 s{S_FI2}, s{S_FQ}")
    a(f"s_cselect_b32 s{S_FK}, 1, 0")
    a(f"s_call_b64 s[{S_RET2}:{S_RET2+1}], L_FB_TILE")
    a(f"s_add_u32 s{S_FI2}, s{S_FI2}, 1")
    a(f"s_cmp_le_u32 s{S_FI2}, s{S_FQ}")
    a("s_cbranch_scc1 L_FB_OWN")
    a(f"s_cmp_eq_u32 s{S_S}, 0")
    a("s_cbranch_scc1 L_FB_PEND")
    a(f"s_mov_b32 s{S_FI2}, s{S_FQ}")
    a.lab("L_FB_HALO")
    a(f"s_mul_i32 s{S_FT}, s{S_FI2}, {TILE}")
    a(f"s_add_u32 s{S_FT}, s{S_FT}, {KV_HALO}")
    a(f"s_cmp_eq_u32 s{S_FI2}, s{S_FQ}")
    a(f"s_cselect_b32 s{S_FK}, 2, 0")
    a(f"s_call_b64 s[{S_RET2}:{S_RET2+1}], L_FB_TILE")
    a(f"s_add_u32 s{S_FI2}, s{S_FI2}, 1")
    a(f"s_cmp_le_u32 s{S_FI2}, 7")
    a("s_cbranch_scc1 L_FB_HALO")
    a.lab("L_FB_PEND")
    a(f"s_cmp_eq_u32 s{S_FP}, 1")
    a("s_cbranch_scc1 L_FB_DONE")
    a(f"v_mov_b32 v{t}, v{F_M}")
    a("s_nop 1")
    a(f"v_permlane32_swap_b32 v{F_M}, v{t}")
    a("s_nop 1")
    a(f"v_max_f32 v{F_M}, v{F_M}, v{t}")
    for r in range(16): a(f"v_mov_b32 v{OA+r}, 0")
    a(f"s_mov_b32 s{S_FP}, 1")
    a("s_branch L_FB_PASS")
    a.lab("L_FB_DONE")
    a("s_nop 15")
    a(f"s_setpc_b64 s[{S_RET}:{S_RET+1}]")
    a.lab("L_FB_TILE")
    a(f"v_add_u32 v{A_K}, s{S_FT}, v{B_K}")
    a(f"v_add_u32 v{A_KR}, s{S_FT}, v{B_KR}")
    a(f"v_and_b32 v{A_V}, s{S_FT}, v{MK_V}")
    a(f"v_add_u32 v{A_V}, v{B_V}, v{A_V}")
    a(f"ds_read_b128 v[{VKF}:{VKF+3}], v{A_K}")
    a(f"ds_read_b64 v[{VKR}:{VKR+1}], v{A_KR}")
    a(f"ds_read_b64_tr_b16 v[{VVA}:{VVA+1}], v{A_V}")
    a(f"ds_read_b64_tr_b16 v[{VVA+2}:{VVA+3}], v{A_V} offset:576")
    a(f"ds_read_b64_tr_b16 v[{VVB}:{VVB+1}], v{A_V} offset:1152")
    a(f"ds_read_b64_tr_b16 v[{VVB+2}:{VVB+3}], v{A_V} offset:1728")
    a("s_waitcnt lgkmcnt(0)")
    a(f"v_mfma_f32_32x32x16_bf16 v[{VS}:{VS+15}], v[{VKF}:{VKF+3}], v[{QA_M}:{QA_M+3}], 0")
    a(f"v_mfma_f32_32x32x16_bf16 v[{VS}:{VS+15}], v[{VKR}:{VKR+3}], v[{QA_R}:{QA_R+3}], v[{VS}:{VS+15}]")
    a("s_nop 15")
    a(f"s_cmp_eq_u32 s{S_FK}, 0")
    a("s_cbranch_scc1 L_FB_NM")
    a(f"s_cmp_eq_u32 s{S_FK}, 1")
    a("s_cbranch_scc0 L_FB_FM")
    for r in range(16): a(f"v_add_f32 v{VS+r}, v{VS+r}, v{F_MD+r}")
    a("s_branch L_FB_NM")
    a.lab("L_FB_FM")
    for r in range(16): a(f"v_add_f32 v{VS+r}, v{VS+r}, v{F_MF+r}")
    a.lab("L_FB_NM")
    a(f"s_cmp_eq_u32 s{S_FP}, 0")
    a("s_cbranch_scc0 L_FB_P1")
    for r in range(0, 16, 2): a(f"v_max3_f32 v{F_M}, v{F_M}, v{VS+r}, v{VS+r+1}")
    a(f"s_setpc_b64 s[{S_RET2}:{S_RET2+1}]")
    a.lab("L_FB_P1")
    for r in range(16): a(f"v_sub_f32 v{VS+r}, v{VS+r}, v{F_M}")
    for r in range(16): a(f"v_exp_f32 v{VE+r}, v{VS+r}")
    a("s_nop 0")
    for j in range(8): a(f"v_cvt_pk_bf16_f32 v{VP+j}, v{VE+2*j}, v{VE+2*j+1}")
    a("s_nop 1")
    a(f"v_mfma_f32_32x32x16_bf16 v[{OA}:{OA+15}], v[{VVA}:{VVA+3}], v[{VP}:{VP+3}], v[{OA}:{OA+15}]")
    a(f"v_mfma_f32_32x32x16_bf16 v[{OA}:{OA+15}], v[{VVB}:{VVB+3}], v[{VP+4}:{VP+7}], v[{OA}:{OA+15}]")
    a("s_nop 7")
    a(f"s_setpc_b64 s[{S_RET2}:{S_RET2+1}]")

def finalize(a, O, qb_sreg, save_exec, rest_exec):
    t = T; R = VS
    a(f"v_rcp_f32 v{t+2}, v{O+12}")
    a(f"s_lshl_b32 s{S_T0}, s{qb_sreg}, 15")
    a(f"s_add_u32 s{S_T1}, s{S_T0}, s{S_OM}")
    a(f"s_lshl_b32 s{S_T0}, s{qb_sreg}, 7")
    a(f"s_add_u32 s{S_T2}, s{S_T0}, s{S_OR}")
    for r in range(12): a(f"v_mul_f32 v{O+r}, v{O+r}, v{t+2}")
    a(f"v_cvt_pk_bf16_f32 v{R}, v{O}, v{O+1}")
    a(f"v_cvt_pk_bf16_f32 v{R+1}, v{O+2}, v{O+3}")
    a(f"v_cvt_pk_bf16_f32 v{R+2}, v{O+4}, v{O+5}")
    a(f"v_cvt_pk_bf16_f32 v{R+3}, v{O+6}, v{O+7}")
    a(f"v_cvt_pk_bf16_f32 v{R+4}, v{O+8}, v{O+9}")
    a(f"v_cvt_pk_bf16_f32 v{R+5}, v{O+10}, v{O+11}")
    a(f"s_cmp_eq_u32 s{S_HEAD}, 0")
    a(f"s_cselect_b64 s[{S_SAVE}:{S_SAVE+1}], -1, 0")
    a(f"v_permlane32_swap_b32 v{R}, v{R+2}")
    a(f"v_permlane32_swap_b32 v{R+1}, v{R+3}")
    a(f"v_cndmask_b32_e64 v{R+4}, v{R+5}, v{R+4}, s[{S_SAVE}:{S_SAVE+1}]")
    a(f"buffer_store_dwordx4 v[{R}:{R+3}], v{V_OA1}, {WS}, s{S_T1} offen sc1")
    a(f"s_mov_b64 s[{S_SAVE}:{S_SAVE+1}], exec")
    a(f"s_mov_b32 exec_hi, 0")
    a(f"buffer_store_dword v{R+4}, v{V_OA2}, {WS}, s{S_T2} offen sc1")
    rest_exec()

def oflag(a, name, cnt_addr, flag_off, save_exec, rest_exec, after_store=None, last=7):
    t = T
    lds_inc(a, cnt_addr, save_exec, rest_exec, rtn=t+2)
    a("s_waitcnt lgkmcnt(0)")
    a(f"v_readfirstlane_b32 s{S_T0}, v{t+2}")
    a(f"s_cmp_lg_u32 s{S_T0}, {last}")
    a(f"s_cbranch_scc1 {name}")
    a(f"s_lshl_b32 s{S_T0}, s{S_HP}, 2")
    a(f"s_add_u32 s{S_T0}, s{S_T0}, s{S_OFS}")
    a(f"v_lshlrev_b32 v{t}, 7, v{V_LANE}")
    a(f"v_mov_b32 v{t+1}, s{S_TAGO}")
    save_exec("0xffff")
    a(f"buffer_store_dword v{t+1}, v{t}, {WS}, s{S_T0} offen offset:{flag_off} sc1")
    rest_exec()
    if after_store: after_store()
    a.lab(name)

def phase2(a, debug_stage, ts, exp, save_exec, rest_exec):
    t = T; L = V_LANE
    UH = (4, 6, 8)
    if 'hkA' in exp: UH = (3, 5, 7)
    if 'hkB' in exp: UH = (4, 6, 7)
    if 'hkC' in exp: UH = (5, 7, 8)
    UP = 15
    a.c("======== phase 2 ========")
    a(f"v_readfirstlane_b32 s{S_TAGOUT}, v{V_TG}")
    a(f"v_readfirstlane_b32 s{S_TAGIN}, v{V_TG+1}")
    a(f"v_readfirstlane_b32 s{S_TAGO}, v{V_TG+2}")
    a(f"v_bfe_u32 v{V_OA1}, v{L}, 4, 1")
    a(f"v_lshlrev_b32 v{V_OA1}, 14, v{V_OA1}")
    a(f"v_and_b32 v{t+4}, 15, v{L}")
    a(f"v_lshl_add_u32 v{V_OA1}, v{t+4}, 4, v{V_OA1}")
    a(f"v_lshrrev_b32 v{t+4}, 5, v{L}")
    a(f"v_lshl_add_u32 v{V_OA1}, v{t+4}, 8, v{V_OA1}")
    a(f"v_lshlrev_b32 v{V_OA2}, 2, v{L}")
    for (QM, QR, sreg) in ((QA_M, QA_R, S_M), (QB_M, QB_R, S_MB)):
        a(f"s_mul_i32 s{S_T0}, s{sreg}, {QTILE}")
        a(f"s_add_u32 s{S_T0}, s{S_T0}, {Q_BASE}")
        a(f"v_add_u32 v{t+2}, s{S_T0}, v{B_K}")
        a(f"v_add_u32 v{t+3}, s{S_T0}, v{B_KR}")
        a(f"ds_read_b128 v[{QM}:{QM+3}], v{t+2}")
        a(f"ds_read_b64 v[{QR}:{QR+1}], v{t+3}")
    a(f"s_cmp_eq_u32 s{S_HEAD}, 0")
    a(f"s_cselect_b32 s{S_T0}, -1, 0")
    a(f"s_cselect_b32 s{S_T1}, 0, -1")
    a(f"v_cmp_gt_u32 vcc, 32, v{L}")
    a(f"v_mov_b32 v{t}, s{S_T0}")
    a(f"v_mov_b32 v{t+1}, s{S_T1}")
    a(f"v_cndmask_b32_e64 v{t}, 0, v{t}, vcc")
    a(f"v_cndmask_b32_e64 v{t+1}, 0, v{t+1}, vcc")
    a(f"v_mov_b32 v{VKR+2}, 0")
    a(f"v_mov_b32 v{VKR+3}, 0")
    for QR in (QA_R, QB_R):
        a(f"v_mov_b32 v{QR+2}, 0")
        a(f"v_mov_b32 v{QR+3}, 0")
    a("s_waitcnt lgkmcnt(0)")
    for QR in (QA_R, QB_R):
        a(f"v_and_b32 v{QR}, v{QR}, v{t}")
        a(f"v_and_b32 v{QR+1}, v{QR+1}, v{t+1}")
    lds_inc(a, CNTQ, save_exec, rest_exec)
    a(f"s_mov_b32 s{S_U}, 0")
    a(f"s_mov_b32 s{S_HST}, 0")
    a(f"s_mov_b32 s{S_HOOK}, {UP}")
    a(f"s_mov_b32 s{S_HST}, 3")
    a(f"s_cmp_lt_u32 s{S_WID}, 4")
    a(f"s_cbranch_scc1 L_HS2")
    a(f"s_mov_b32 s{S_HST}, 0")
    a(f"s_mov_b32 s{S_HOOK}, {UH[0]}")
    a(f"s_cmp_eq_u32 s{S_S}, 7")
    a(f"s_cbranch_scc1 L_HS1")
    a(f"s_mul_i32 s{S_T1}, s{S_IDX}, 36864")
    for c, i in enumerate([3, 2, 1, 0]):
        a(f"s_add_u32 s{S_T2}, s{S_T1}, {i*4096}")
        a(f"buffer_store_dwordx4 v[{VH+20+4*c}:{VH+20+4*c+3}], v{V_PA}, {WS}, s{S_T2} offen sc1")
    a.lab("L_HS1")
    if 'noprio' not in exp: a("s_setprio 1")
    a.lab("L_HS2")
    ts(4)
    set_run(a, KV_OWN, None, [f"s_add_u32 s{S_N}, s{S_M}, 1"], TILE)
    a(f"s_call_b64 s[{S_RET}:{S_RET+1}], L_RUNA")
    set_run(a, KV_OWN, None, [f"s_sub_u32 s{S_N}, 8, s{S_M}"], TILE)
    a(f"s_call_b64 s[{S_RET}:{S_RET+1}], L_RUNB")
    ts(5)
    a(f"s_cmp_eq_u32 s{S_S}, 0")
    a("s_cbranch_scc1 L_FINAL0")
    a(f"v_mov_b32 v{t+2}, {NEG:#x}")
    for r in range(16): a(f"v_sub_f32 v{V_MASK+r}, v{t+2}, v{V_MASK+r}")
    a(f"s_cmp_lt_u32 s{S_WID}, 4")
    a("s_cbranch_scc1 L_H5DONE")
    lds_wait(a, "L_WQ", CNTQ, 8)
    a(f"v_add_u32 v{V_PA+1}, {KV_HALO}, v{V_PA}")
    for c, i in enumerate([8, 7, 6, 5, 4, 3, 2, 1, 0]):
        a(f"s_waitcnt vmcnt({8-c})")
        a(f"ds_write_b128 v{V_PA+1}, v[{VH+4*c}:{VH+4*c+3}] offset:{i*4096}")
    a(f"s_cmp_lg_u32 s{S_WID}, 4")
    a("s_cbranch_scc1 L_H5DONE")
    a(f"s_sub_u32 s{S_T0}, s{S_IDX}, 1")
    a(f"s_lshl_b32 s{S_T0}, s{S_T0}, 8")
    a(f"s_add_u32 s{S_T0}, s{S_T0}, {WS_FLAG}")
    a(f"v_mov_b32 v{t}, 0")
    a(f"v_mov_b32 v{t+1}, s{S_TAGIN}")
    save_exec(1)
    a(f"buffer_store_dword v{t+1}, v{t}, {WS}, s{S_T0} offen sc1")
    rest_exec()
    a.lab("L_H5DONE")
    a("s_waitcnt lgkmcnt(0)")
    a("s_setprio 0")
    a("s_barrier")
    if "tsh" not in exp: ts(7)
    a(f"s_mov_b32 s{S_T4}, 7")
    set_run(a, KV_HALO, S_T4, [f"s_add_u32 s{S_N}, s{S_M}, 1"], -TILE)
    a(f"s_call_b64 s[{S_RET}:{S_RET+1}], L_RUNB")
    a("s_nop 7")
    a("s_nop 3")
    safety_check(a, OB, True, S_MB, "B1")
    finalize(a, OB, S_MB, save_exec, rest_exec)
    a(f"s_mov_b32 s{S_T4}, 7")
    set_run(a, KV_HALO, S_T4, [f"s_sub_u32 s{S_N}, 8, s{S_M}"], -TILE)
    a(f"s_call_b64 s[{S_RET}:{S_RET+1}], L_RUNA")
    a("s_branch L_FINALA")
    a.lab("L_FINAL0")
    a("s_waitcnt vmcnt(0)")
    a("s_setprio 0")
    a("s_barrier")
    a("s_nop 7")
    a("s_nop 3")
    safety_check(a, OB, True, S_MB, "B0")
    finalize(a, OB, S_MB, save_exec, rest_exec)
    a.lab("L_FINALA")
    if "tsh" not in exp: ts(8)
    a("s_nop 7")
    a("s_nop 3")
    safety_check(a, OA, False, S_M, "A")
    finalize(a, OA, S_M, save_exec, rest_exec)
    a("s_branch L_P3")
    fallback_code(a)

    a.lab("L_HOOK")
    a(f"s_cmp_eq_u32 s{S_HST}, 1")
    a("s_cbranch_scc1 L_HK1")
    a(f"s_cmp_eq_u32 s{S_HST}, 2")
    a("s_cbranch_scc1 L_HK2")
    a(f"s_cmp_eq_u32 s{S_HST}, 3")
    a("s_cbranch_scc1 L_HK3")
    a(f"s_mov_b32 s{S_HST}, 1")
    a(f"s_mov_b32 s{S_HOOK}, {UH[1]}")
    a(f"s_cmp_eq_u32 s{S_S}, 7")
    a("s_cbranch_scc1 L_HRET")
    a("s_waitcnt vmcnt(0)")
    a(f"s_lshl_b32 s{S_T0}, s{S_IDX}, 8")
    a(f"s_lshl_b32 s{S_T1}, s{S_L}, 2")
    a(f"s_add_u32 s{S_T0}, s{S_T0}, s{S_T1}")
    a(f"s_add_u32 s{S_T0}, s{S_T0}, {WS_FLAG+128}")
    a(f"v_mov_b32 v{t}, 0")
    a(f"v_mov_b32 v{t+1}, s{S_TAGOUT}")
    save_exec(1)
    a(f"buffer_store_dword v{t+1}, v{t}, {WS}, s{S_T0} offen sc1")
    rest_exec()
    a("s_branch L_HRET")
    a.lab("L_HK3")
    a(f"s_mov_b32 s{S_HST}, 4")
    a(f"s_mov_b32 s{S_HOOK}, 1000")
    a(f"s_lshl_b32 s{S_T0}, s{S_HP}, 7")
    a(f"s_add_u32 s{S_T0}, s{S_T0}, s{S_OFS}")
    save_exec("0xffff")
    a(f"v_lshlrev_b32 v{t}, 2, v{L}")
    a(f"buffer_load_dword v{V_TG+1}, v{t}, {WS}, s{S_T0} offen offset:128 sc1")
    rest_exec()
    a("s_branch L_HRET")
    a.lab("L_HK1")
    a(f"s_mov_b32 s{S_HST}, 2")
    a(f"s_mov_b32 s{S_HOOK}, {UH[2]}")
    a(f"s_cmp_eq_u32 s{S_S}, 0")
    a("s_cbranch_scc0 L_HK1A")
    a(f"s_mov_b32 s{S_HOOK}, 1000")
    a("s_branch L_HRET")
    a.lab("L_HK1A")
    a(f"s_sub_u32 s{S_H1}, s{S_IDX}, 1")
    a(f"s_lshl_b32 s{S_H1}, s{S_H1}, 8")
    a(f"s_lshl_b32 s{S_T0}, s{S_L}, 2")
    a(f"s_add_u32 s{S_H1}, s{S_H1}, s{S_T0}")
    a(f"s_add_u32 s{S_H1}, s{S_H1}, {WS_FLAG+128}")
    a(f"v_mov_b32 v{t}, 0")
    a(f"buffer_load_dword v{V_TG}, v{t}, {WS}, s{S_H1} offen sc1")
    a("s_branch L_HRET")
    a.lab("L_HK2")
    a(f"s_mov_b32 s{S_HST}, 3")
    a(f"s_mov_b32 s{S_HOOK}, {UP}")
    a("s_waitcnt vmcnt(0)")
    a(f"v_readfirstlane_b32 s{S_T0}, v{V_TG}")
    a(f"s_cmp_eq_u32 s{S_T0}, s{S_TAGIN}")
    a("s_cbranch_scc1 L_POLL1_OK")
    a(f"v_mov_b32 v{t}, 0")
    spin_poll(a, "L_POLL1",
              [f"v_readfirstlane_b32 s{S_T0}, v{V_TG}", f"s_cmp_eq_u32 s{S_T0}, s{S_TAGIN}"],
              f"buffer_load_dword v{V_TG}, v{t}, {WS}, s{S_H1} offen sc1")
    a(f"s_sub_u32 s{S_T0}, s{S_IDX}, 1")
    a(f"s_mul_i32 s{S_T0}, s{S_T0}, 36864")
    for c, i in enumerate([8, 7, 6, 5, 4, 3, 2, 1, 0]):
        a(f"s_add_u32 s{S_T1}, s{S_T0}, {i*4096}")
        a(f"buffer_load_dwordx4 v[{VH+4*c}:{VH+4*c+3}], v{V_PA}, {WS}, s{S_T1} offen sc1")
    a.lab("L_HRET")
    a(f"s_setpc_b64 s[{S_RET2}:{S_RET2+1}]")
    run_code(a, "L_RUNA", QA_M, QA_R, OA, exp)
    run_code(a, "L_RUNB", QB_M, QB_R, OB, exp)

def pub_stores(a, stage_off, base):
    a(f"s_add_u32 s{S_T2}, s{S_T1}, {stage_off}")
    a(f"buffer_store_dwordx4 v[{base}:{base+3}], v{V_PA}, {WS}, s{S_T2} offen sc1")
    for i in range(1, 4):
        a(f"s_add_u32 s{S_T3}, s{S_T2}, {i*4096}")
        a(f"buffer_store_dwordx4 v[{base+4*i}:{base+4*i+3}], v{V_PA}, {WS}, s{S_T3} offen sc1")
    a(f"buffer_store_dwordx4 v[{base+16}:{base+19}], v{V_PA+2}, {WS}, s{S_T2} offen sc1")

def halo_loads(a, stage_off, base):
    a(f"s_sub_u32 s{S_T0}, s{S_IDX}, 1")
    a(f"s_mul_i32 s{S_T0}, s{S_T0}, 36864")
    a(f"s_add_u32 s{S_T0}, s{S_T0}, s{S_SO}")
    for i in range(4):
        a(f"s_add_u32 s{S_T1}, s{S_T0}, {i*4096}")
        a(f"buffer_load_dwordx4 v[{base+4*i}:{base+4*i+3}], v{V_PA}, {WS}, s{S_T1} offen sc1")
    a(f"buffer_load_dwordx4 v[{base+16}:{base+19}], v{V_PA+2}, {WS}, s{S_T0} offen sc1")

def phase3(a, debug_stage, ts, exp, save_exec, rest_exec):
    t = T; L = V_LANE
    OF, AC, WF0, WF1 = 20, 92, 132, 152
    AW, AW2, PF, VO, VOUT, VR = 10, 11, 13, 14, 15, 16
    PA, PB = 12, 9
    S_PL, S_PR, S_PM = 4, 68, 40
    SCR = KV_OWN
    ORD = {0: [0, 2, 4, 6, 1, 3, 5, 7, 8], 1: [9, 11, 13, 15, 10, 12, 14, 16, 17]}
    GM = {0: 0x0055, 1: 0xAA00}; RM = {0: 0x01AA, 1: 0xFFFF}
    a.lab("L_P3")
    a.c("======== phase 3 ========")
    a(f"s_lshl_b32 s{S_PL}, s{S_HP}, 7")
    a(f"s_add_u32 s{S_PL}, s{S_PL}, s{S_OFS}")
    def poll_issue():
        save_exec("0xffff")
        a(f"v_lshlrev_b32 v{t+2}, 2, v{L}")
        a(f"buffer_load_dword v{PF}, v{t+2}, {WS}, s{S_PL} offen offset:128 sc1")
        rest_exec()
    def poll_check(name, mask):
        save_exec(f"{mask:#x}")
        a(f"v_cmp_ne_u32 vcc, s{S_TAGO}, v{PF}")
        a("s_nop 1")
        a("s_cmp_eq_u64 vcc, 0")
        a(f"s_cbranch_scc1 {name}_OK")
        a(f"v_lshlrev_b32 v{t+2}, 2, v{L}")
        spin_poll(a, name,
                  [f"v_cmp_ne_u32 vcc, s{S_TAGO}, v{PF}", "s_nop 1", "s_cmp_eq_u64 vcc, 0"],
                  f"buffer_load_dword v{PF}, v{t+2}, {WS}, s{S_PL} offen offset:128 sc1")
        rest_exec()
    a(f"s_lshr_b32 s{S_T1}, s{S_HP}, 3")
    a(f"s_lshl_b32 s{S_T1}, s{S_T1}, 3")
    a(f"s_lshl_b32 s{S_T2}, s{S_M}, 1")
    a(f"s_add_u32 s{S_T1}, s{S_T1}, s{S_T2}")
    a(f"s_lshl_b32 s{S_T0}, s{S_GRP}, 18")
    a(f"s_add_u32 s{S_T0}, s{S_T0}, {WS_O}")
    a(f"s_lshl_b32 s{S_T2}, s{S_T1}, 14")
    a(f"s_add_u32 s{S_PM}, s{S_T0}, s{S_T2}")
    a(f"s_lshl_b32 s{S_T0}, s{S_GRP}, 15")
    a(f"s_add_u32 s{S_T0}, s{S_T0}, {WS_OR}")
    a(f"s_lshl_b32 s{S_T2}, s{S_T1}, 6")
    a(f"s_add_u32 s{S_PR}, s{S_T0}, s{S_T2}")
    a(f"v_lshrrev_b32 v{VR}, 4, v{L}")
    a(f"v_lshlrev_b32 v{VR}, 12, v{VR}")
    a(f"v_and_b32 v{t+4}, 15, v{L}")
    a(f"v_lshl_add_u32 v{VR}, v{t+4}, 2, v{VR}")
    a(f"v_add_u32 v{VR+1}, 64, v{VR}")
    a(f"v_lshrrev_b32 v{t+1}, 4, v{L}")
    a(f"v_bfe_u32 v{t+2}, v{L}, 2, 2")
    a(f"v_and_b32 v{t+3}, 3, v{L}")
    a(f"v_lshrrev_b32 v{t+4}, 1, v{t+1}")
    a(f"v_lshlrev_b32 v{t+4}, 2, v{t+4}")
    a(f"v_lshl_add_u32 v{t+4}, v{t+1}, 3, v{t+4}")
    a(f"v_add_u32 v{t+4}, v{t+4}, v{t+2}")
    a(f"v_mul_u32_u24 v{t+4}, 144, v{t+4}")
    a(f"v_lshl_add_u32 v{AW}, v{t+3}, 3, v{t+4}")
    a(f"s_mul_i32 s{S_T0}, s{S_HEAD}, {9*5184}")
    a(f"v_add_u32 v{AW}, s{S_T0}, v{AW}")
    a(f"v_mul_u32_u24 v{t+4}, 72, v{t+1}")
    a(f"v_add3_u32 v{t+4}, v{t+4}, v{t+2}, 16")
    a(f"v_mul_u32_u24 v{t+4}, 144, v{t+4}")
    a(f"v_lshl_add_u32 v{AW2}, v{t+3}, 3, v{t+4}")
    a(f"v_lshlrev_b32 v{VO}, 4, v{L}")
    a(f"s_lshl_b32 s{S_T1}, s{S_T1}, 4")
    a(f"s_lshl_b32 s{S_T2}, s{S_S}, 8")
    a(f"s_add_u32 s{S_T1}, s{S_T1}, s{S_T2}")
    a(f"s_lshl_b32 s{S_T2}, s{S_HEAD}, 4")
    a(f"s_add_u32 s{S_T1}, s{S_T1}, s{S_T2}")
    a(f"s_mul_i32 s{S_T1}, s{S_T1}, 2304")
    a(f"s_mul_i32 s{S_T2}, s{S_B}, 1152")
    a(f"s_add_u32 s{S_T1}, s{S_T1}, s{S_T2}")
    a(f"s_and_b32 s{S_T2}, s{S_HP}, 7")
    a(f"s_mul_i32 s{S_T2}, s{S_T2}, 144")
    a(f"s_add_u32 s{S_T5}, s{S_T1}, s{S_T2}")
    a(f"v_and_b32 v{VOUT}, 15, v{L}")
    a(f"v_mul_u32_u24 v{VOUT}, 2304, v{VOUT}")
    a(f"v_lshrrev_b32 v{t+4}, 4, v{L}")
    a(f"v_lshl_add_u32 v{VOUT}, v{t+4}, 3, v{VOUT}")
    a(f"s_mul_i32 s{S_T0}, s{S_WID}, 5120")
    a(f"s_add_u32 s{S_T0}, s{S_T0}, {SCR}")
    a(f"v_add_u32 v18, s{S_T0}, v{VO}")
    a(f"s_xor_b32 s{S_T1}, s{S_WID}, 4")
    a(f"s_mul_i32 s{S_T1}, s{S_T1}, 5120")
    a(f"s_add_u32 s{S_T1}, s{S_T1}, {SCR}")
    a(f"v_add_u32 v19, s{S_T1}, v{VO}")
    OUT = f"s[{S_OUT}:{S_OUT+3}]"
    def wreads(kap, kh, WF):
        l = []
        for Tn in range(5):
            b = WF + 4*Tn
            if kap >= 16:
                o0 = (kap-16)*8*36*144 + Tn*32
                l.append(f"ds_read_b64_tr_b16 v[{b}:{b+1}], v{AW2} offset:{o0}")
                l.append(f"ds_read_b64_tr_b16 v[{b+2}:{b+3}], v{AW2} offset:{o0+36*144}")
            else:
                o0 = (kap - 9*kh)*5184 + Tn*32
                l.append(f"ds_read_b64_tr_b16 v[{b}:{b+1}], v{AW} offset:{o0}")
                l.append(f"ds_read_b64_tr_b16 v[{b+2}:{b+3}], v{AW} offset:{o0+576}")
        return l
    def loads(kh, slots):
        nl = []
        for jx in slots:
            kap = ORD[kh][jx]
            if kap >= 16:
                a(f"s_add_u32 s{S_T0}, s{S_PR}, {(kap-16)*16*1024}")
                for mt in range(2):
                    for i in range(4):
                        a(f"buffer_load_dword v{OF+36*mt+4*jx+i}, v{VR+mt}, {WS}, s{S_T0} offen offset:{i*1024} sc1")
                nl.append(8)
            else:
                a(f"s_add_u32 s{S_T0}, s{S_PM}, {kap*1024}")
                a(f"s_add_u32 s{S_T1}, s{S_PM}, {kap*1024+16384}")
                a(f"buffer_load_dwordx4 v[{OF+4*jx}:{OF+4*jx+3}], v{VO}, {WS}, s{S_T0} offen sc1")
                a(f"buffer_load_dwordx4 v[{OF+36+4*jx}:{OF+36+4*jx+3}], v{VO}, {WS}, s{S_T1} offen sc1")
                nl.append(2)
        return nl
    def mfm(kh, slots, nl, extra, last_next, novm=False):
        for c, jx in enumerate(slots):
            cur = WF0 if jx % 2 == 0 else WF1
            nxt = WF1 if jx % 2 == 0 else WF0
            a("s_waitcnt lgkmcnt(0)" if novm else f"s_waitcnt vmcnt({sum(nl[c+1:])+extra}) lgkmcnt(0)")
            rs = wreads(ORD[kh][jx+1], kh, nxt) if jx < 8 else []
            ri = 0
            for Tn in range(5):
                for mt in range(2):
                    d = AC + (mt*5+Tn)*4; o = OF + 36*mt + 4*jx
                    cc = "0" if jx == 0 else f"v[{d}:{d+3}]"
                    a(f"v_mfma_f32_16x16x32_bf16 v[{d}:{d+3}], v[{cur+4*Tn}:{cur+4*Tn+3}], v[{o}:{o+3}], {cc}")
                    if ri < len(rs): a(rs[ri]); ri += 1
    def add_out(q, base, Tn, pk):
        for r in range(4): a(f"v_add_f32 v{q+r}, v{q+r}, v{base+4*Tn+r}")
        a(f"v_cvt_pk_bf16_f32 v{pk}, v{q}, v{q+1}")
        a(f"v_cvt_pk_bf16_f32 v{pk+1}, v{q+2}, v{q+3}")
        if Tn == 4:
            a(f"s_mov_b64 s[{S_SAVE}:{S_SAVE+1}], exec")
            a(f"s_mov_b32 exec_hi, 0")
        omod = " nt" if 'ont' in exp else " sc1" if 'osc1' in exp else " sc0 sc1" if 'osc01' in exp else ""
        a(f"buffer_store_dwordx2 v[{pk}:{pk+1}], v{VOUT}, {OUT}, s{S_T5} offen offset:{Tn*32}{omod}")
        if Tn == 4: rest_exec()
    def nloads(kh, slots):
        return [8 if ORD[kh][jx] >= 16 else 2 for jx in slots]
    def validate(kh, slots, younger):
        nl = nloads(kh, slots); first = True
        for c, jx in enumerate(slots):
            a(f"s_waitcnt vmcnt({sum(nl[c+1:])+younger})")
            rr = [OF+4*jx+i for i in range(4)] + [OF+36+4*jx+i for i in range(4)]
            if first:
                a(f"v_max3_u32 v{t+3}, v{rr[0]}, v{rr[1]}, v{rr[2]}"); rr = rr[3:]; first = False
                a(f"v_max_u32 v{t+3}, v{t+3}, v{rr[0]}"); rr = rr[1:]
            for k in range(0, len(rr), 2):
                a(f"v_max3_u32 v{t+3}, v{t+3}, v{rr[k]}, v{rr[k+1]}")
        a(f"v_cmp_eq_u32 vcc, -1, v{t+3}")
        a("s_nop 1")
        a("s_cmp_eq_u64 vcc, 0")
    def probe_addr(kh, slots):
        mains = [jx for jx in slots if ORD[kh][jx] < 16]
        a(f"v_mov_b32 v{t+3}, {ORD[kh][mains[0]]*1024 + 16384 + 1020}")
        a(f"v_lshlrev_b32 v{PA}, 11, v{L}")
        a(f"v_add_u32 v{PA}, v{t+3}, v{PA}")
        return (1 << min(len(mains), 4)) - 1
    def probe_issue(mask):
        save_exec(f"{mask:#x}")
        a(f"buffer_load_dword v{PB}, v{PA}, {WS}, s{S_PM} offen sc1")
        rest_exec()
    def probe_loop(mask, name, first_issued):
        save_exec(f"{mask:#x}")
        a(f"s_mov_b32 s{S_CNT}, 0")
        if first_issued: a(f"s_branch {name}_PW")
        a.lab(name + "_P")
        a(f"buffer_load_dword v{PB}, v{PA}, {WS}, s{S_PM} offen sc1")
        a.lab(name + "_PW")
        a(f"s_add_u32 s{S_CNT}, s{S_CNT}, 1")
        a("s_waitcnt vmcnt(0)")
        a(f"v_cmp_eq_u32 vcc, -1, v{PB}")
        a("s_nop 1")
        a("s_cmp_eq_u64 vcc, 0")
        a(f"s_cbranch_scc1 {name}_PO")
        a(f"s_cmp_lt_u32 s{S_CNT}, 2000000")
        a(f"s_cbranch_scc1 {name}_P")
        a.lab(name + "_PO")
        rest_exec()
    def load_validate_loop(kh, slots, name):
        a(f"s_mov_b32 s{S_N}, 0")
        a.lab(name + "_L")
        loads(kh, slots)
        validate(kh, slots, 0)
        a(f"s_cbranch_scc1 {name}_OK")
        a(f"s_add_u32 s{S_N}, s{S_N}, 1")
        a(f"s_cmp_lt_u32 s{S_N}, 100000")
        a(f"s_cbranch_scc1 {name}_L")
        a.lab(name + "_OK")
    def path(kh):
        K = f"K{kh}"
        G, R = list(range(4)), list(range(4, 9))
        for rd in wreads(ORD[kh][0], kh, WF0): a(rd)
        ts(10)
        a(f"s_lshr_b32 s{S_T0}, 0x55AA, s{S_HP}")
        a(f"s_bitcmp1_b32 s{S_T0}, 0")
        a(f"s_cbranch_scc1 L_SG{K}_GO")
        mk = probe_addr(kh, G)
        probe_loop(mk, f"L_SG{K}", False)
        a.lab(f"L_SG{K}_GO")
        load_validate_loop(kh, G, f"L_SGV{K}")
        mk = probe_addr(kh, R)
        a(f"s_lshr_b32 s{S_T0}, 0x55AA, s{S_HP}")
        a(f"s_bitcmp1_b32 s{S_T0}, 0")
        a(f"s_cbranch_scc0 L_SR{K}_EARLY")
        loads(kh, R)
        mfm(kh, G, [0]*4, 0, None, novm=True)
        ts(9)
        lds_wait(a, f"L_WOB{K}", CNTOA, 8)
        validate(kh, R, 0)
        a(f"s_cbranch_scc1 L_SRV{K}_OK")
        probe_loop(mk, f"L_SS{K}", False)
        a(f"s_branch L_SR{K}_LV")
        a.lab(f"L_SR{K}_EARLY")
        probe_issue(mk)
        mfm(kh, G, [0]*4, 0, None, novm=True)
        ts(9)
        lds_wait(a, f"L_WOA{K}", CNTOA, 8)
        probe_loop(mk, f"L_SR{K}", True)
        a.lab(f"L_SR{K}_LV")
        load_validate_loop(kh, R, f"L_SRV{K}")
        mfm(kh, R, [0]*5, 0, None, novm=True)
        ts(11)
        send = AC + 20 if kh == 0 else AC
        keep = AC if kh == 0 else AC + 20
        a("s_nop 7")
        for Tn in range(5): a(f"ds_write_b128 v18, v[{send+4*Tn}:{send+4*Tn+3}] offset:{Tn*1024}")
        a("s_waitcnt lgkmcnt(0)")
        a("s_barrier")
        for Tn in range(5): a(f"ds_read_b128 v[{OF+4*Tn}:{OF+4*Tn+3}], v19 offset:{Tn*1024}")
        for Tn in range(5):
            a(f"s_waitcnt lgkmcnt({4-Tn})")
            add_out(OF+4*Tn, keep, Tn, OF+20+2*Tn)
    lds_inc(a, CNTOA, save_exec, rest_exec)
    a(f"s_cmp_eq_u32 s{S_HST}, 4")
    a("s_cbranch_scc0 L_P3C0")
    a("s_waitcnt vmcnt(2)")
    a(f"v_mov_b32 v{PF}, v{V_TG+1}")
    a("s_branch L_P3C1")
    a.lab("L_P3C0")
    poll_issue()
    a("s_waitcnt vmcnt(0)")
    a.lab("L_P3C1")
    poll_check("L_POLLC", 0xFFFF)
    if debug_stage == 2:
        a("s_waitcnt vmcnt(0)")
        a("s_branch L_FIN")
        return
    a(f"s_cmp_eq_u32 s{S_HEAD}, 0")
    a("s_cbranch_scc0 L_P3K1")
    path(0)
    a("s_branch L_FIN")
    a.lab("L_P3K1")
    path(1)
    a(f"s_cmp_lg_u32 s{S_HP}, 0")
    a("s_cbranch_scc1 L_FIN")
    a(f"s_cmp_lg_u32 s{S_WID}, 4")
    a("s_cbranch_scc1 L_FIN")
    a(f"v_mov_b32 v{t}, 0")
    a(f"v_mov_b32 v{t+1}, s{S_TAGO}")
    a(f"s_mov_b64 exec, 1")
    a(f"buffer_store_dword v{t+1}, v{t}, {WS}, s{S_OFS} offen sc1")

if __name__ == "__main__":
    import argparse
    p = argparse.ArgumentParser(); p.add_argument("--debug", type=int, default=0)
    p.add_argument("--timing", action="store_true"); p.add_argument("--exp", default=""); p.add_argument("-o", default="/dev/stdout")
    args = p.parse_args()
    open(args.o, "w").write(gen(args.debug, args.timing, args.exp))
```

```python
import sys, math, struct

NAME = "concat_heads__sliding_block__sliding_block__prompt"

STAGE   = 49152
WO_BASE = 0
KV_OWN  = 82944
KV_HALO = 119808
Q_BASE  = 119808
MISC    = 156672
TAGS_LDS = MISC + 2048
CNT2, CNT1, CNTQ, CNTOB, CNTOA = TAGS_LDS+12, TAGS_LDS+16, TAGS_LDS+20, TAGS_LDS+24, TAGS_LDS+28
LDS_TOTAL = 163840
TILE    = 4608
QTILE   = 2304
WS_KV   = 0
WS_O    = 256*36864
WS_OR   = WS_O + 16*262144
WS_FLAG = WS_OR + 16*32768
WS_OF   = WS_FLAG + 65536
TIMING_OFF = 24<<20
TAG_INC = 0x9E3779B1
NEG     = 0xFF61B1E6
QSCALE  = (18.0 ** -0.5) * math.log2(math.e)
def f32bits(x): return struct.unpack("<I", struct.pack("<f", x))[0]

class Asm:
    def __init__(self): self.l = []
    def __call__(self, s=""):
        for line in s.split("\n"):
            self.l.append("  " + line.strip())
    def lab(self, n): self.l.append(n + ":")
    def c(self, s): self.l.append("  ; " + s)
    def text(self): return "\n".join(self.l) + "\n"

S_X, S_W, S_WO, S_WS, S_OUT = 8, 12, 16, 20, 24
S_B, S_S, S_HP, S_WID = 28, 29, 30, 31
S_T0, S_T1, S_T2, S_T3, S_T4, S_T5 = 32, 33, 34, 35, 36, 37
S_I = 38
S_L = 39
S_TAGIN, S_TAGOUT, S_TAGO = 40, 41, 42
S_K, S_C, S_SB, S_XB, S_WB = 43, 44, 45, 46, 47
S_LX, S_LW = 48, 49
S_N = 50
S_U = 51
S_RET = 52
S_IDX, S_GRP, S_HEAD, S_M = 54, 55, 56, 57
S_SAVE = 58
S_CNT = 60
S_HOOK = 61
S_BAD = 62
S_RET2 = 64
S_MB = 66
S_HST = 67
S_H0, S_H1 = 68, 69
S_E = 98
S_SO, S_FI = 99, 100
S_OM, S_OR, S_OFS = 6, 7, 5

V_LANE = 1
T = 2
V_AX = 10
V_AW = 12
V_MASK = 20
V_SET0, V_SET1, V_ACC = 36, 80, 124
V_LDX, V_LDW = 36, 44
V_TG = 236
B_K, B_KR, B_V, MK_V = 240, 241, 242, 243
vEK, vEQ, vEV, vE6, vDr, vDt, vF, vC = 244, 245, 246, 247, 248, 249, 250, 252
V_TL = 254
QA_M, QA_R, QB_M, QB_R = 36, 40, 44, 48
OA, OB = 52, 68
VS, VE, VP = 84, 100, 116
VKF, VKR, VVA, VVB = 124, 128, 132, 136
A_K, A_KR, A_V, ST_V, ST_K = 10, 11, 12, 13, 14
VH = 140
V_WOV = 180
V_OA1, V_OA2 = 188, 189
V_PA = 184

def emit_masks_(a):
    t = T; L = V_LANE
    a(f"v_and_b32 v{t}, 31, v{L}")
    a(f"v_lshrrev_b32 v{t+1}, 5, v{L}")
    a(f"v_lshlrev_b32 v{t+1}, 2, v{t+1}")
    a(f"v_sub_u32 v{t}, v{t}, v{t+1}")
    a(f"v_mov_b32 v{t+1}, {NEG:#x}")
    for r in range(16):
        jj = (r & 3) + 8*(r >> 2)
        a(f"v_cmp_le_i32 vcc, {jj}, v{t}")
        a("s_nop 1")
        a(f"v_cndmask_b32_e64 v{V_MASK+r}, v{t+1}, 0, vcc")
def emit_p2_patterns_(a):
    t = T; L = V_LANE
    a(f"v_and_b32 v{t}, 31, v{L}")
    a(f"v_lshrrev_b32 v{t+1}, 5, v{L}")
    a(f"v_lshrrev_b32 v{t+2}, 2, v{t}")
    a(f"v_lshrrev_b32 v{t+3}, 3, v{t}")
    a(f"v_xor_b32 v{t+2}, v{t+2}, v{t+3}")
    a(f"v_xor_b32 v{t+2}, v{t+2}, v{t+1}")
    a(f"v_and_b32 v{t+2}, 1, v{t+2}")
    a(f"v_lshlrev_b32 v{t+2}, 4, v{t+2}")
    a(f"v_lshl_add_u32 v{t+2}, v{t}, 5, v{t+2}")
    a(f"s_lshl_b32 s{S_T0}, s{S_HEAD}, 10")
    a(f"v_add_u32 v{B_K}, s{S_T0}, v{t+2}")
    a(f"v_lshlrev_b32 v{B_KR}, 3, v{t}")
    a(f"v_add_u32 v{B_KR}, 2048, v{B_KR}")
    a(f"v_bfe_u32 v{t+2}, v{L}, 2, 2")
    a(f"v_lshl_add_u32 v{t+2}, v{t+1}, 2, v{t+2}")
    a(f"v_mul_u32_u24 v{t+2}, 72, v{t+2}")
    a(f"v_add_u32 v{t+2}, 2304, v{t+2}")
    a(f"v_and_b32 v{t+3}, 3, v{L}")
    a(f"v_lshlrev_b32 v{t+4}, 3, v{t+3}")
    a(f"s_mul_i32 s{S_T0}, s{S_HEAD}, 40")
    a(f"v_add3_u32 v{t+4}, v{t+4}, v{t+2}, s{S_T0}")
    a(f"v_add_u32 v{t+5}, 32, v{t+2}")
    a(f"v_bfe_u32 v{t+6}, v{L}, 4, 1")
    a(f"v_cmp_eq_u32 vcc, 1, v{t+6}")
    a(f"v_lshrrev_b32 v{t+7}, 1, v{t+3}")
    a(f"v_and_b32 v{t+7}, v{t+7}, v{t+6}")
    a(f"v_cndmask_b32 v{B_V}, v{t+4}, v{t+5}, vcc")
    a(f"v_cmp_eq_u32 vcc, 1, v{t+7}")
    a(f"v_mov_b32 v{t+5}, {MISC}")
    a(f"v_mov_b32 v{t+6}, -1")
    a(f"v_cndmask_b32 v{B_V}, v{B_V}, v{t+5}, vcc")
    a(f"v_cndmask_b32_e64 v{MK_V}, v{t+6}, 0, vcc")


def gen(debug_stage=0, timing=False, exp=''):
    a = Asm()
    t = T; L = V_LANE
    def ts(i, force=False):
        if timing and ('tsk' not in exp or force or i in (0, 8, 9, 10, 11)): a(f"{'s_memrealtime' if ('abs' in exp or 'hdbg' in exp) else 's_memtime'} s[{70+2*i}:{71+2*i}]")
    WS = f"s[{S_WS}:{S_WS+3}]"
    def save_exec(val):
        a(f"s_mov_b64 s[{S_SAVE}:{S_SAVE+1}], exec")
        a(f"s_mov_b64 exec, {val}")
    def rest_exec():
        a(f"s_mov_b64 exec, s[{S_SAVE}:{S_SAVE+1}]")

    a.l += [f"; Kernarg layout (72 bytes): A_x, A_wqkv, A_wo, B_x, B_wqkv, B_wo, out, debug, ws",
            f"; @launch grid=(256,1,1) block=(512,1,1) lds={LDS_TOTAL}"]
    a(f""".amdgcn_target "amdgcn-amd-amdhsa--gfx950"
.text
.globl {NAME}_kernel
.p2align 8
.type {NAME}_kernel,@function""")
    a.lab(f"{NAME}_kernel")
    a("s_cmp_ge_u32 s2, 256")
    a("s_cbranch_scc1 L_END")
    a(f"s_and_b32 s3, s2, 7")
    if 'xmap' in exp:
        a(f"s_bfe_u32 s{S_B}, s3, 0x10001")
    else:
        a(f"s_lshr_b32 s{S_B}, s3, 2")
    a(f"s_mul_i32 s{S_T0}, s{S_B}, 24")
    a(f"s_add_u32 s4, s0, s{S_T0}")
    a(f"s_addc_u32 s5, s1, 0")
    a(f"s_load_dwordx2 s[{S_X}:{S_X+1}], s[4:5], 0")
    a(f"s_load_dwordx2 s[{S_W}:{S_W+1}], s[4:5], 8")
    a(f"s_load_dwordx2 s[{S_WO}:{S_WO+1}], s[4:5], 16")
    a(f"s_load_dwordx2 s[{S_OUT}:{S_OUT+1}], s[0:1], 48")
    a(f"s_load_dwordx2 s[{S_WS}:{S_WS+1}], s[0:1], 64")
    if timing:
        for i in range(13): a(f"s_mov_b32 s{70+2*i}, 0")
    ts(0)
    a(f"s_lshr_b32 s{S_I}, s2, 3")
    if 'xmap' in exp:
        a(f"s_and_b32 s{S_T2}, s3, 1")
        a(f"s_lshl_b32 s{S_T2}, s{S_T2}, 2")
        a(f"s_and_b32 s{S_T3}, s{S_I}, 3")
        a(f"s_add_u32 s{S_S}, s{S_T2}, s{S_T3}")
        a(f"s_lshr_b32 s{S_T4}, s{S_I}, 2")
        a(f"s_cmp_lt_u32 s3, 4")
        a(f"s_mov_b32 s{S_T2}, 0xFDB96420")
        a(f"s_cselect_b32 s{S_T2}, 0xECA87531, s{S_T2}")
        a(f"s_lshl_b32 s{S_T0}, s{S_T4}, 2")
        a(f"s_lshr_b32 s{S_T2}, s{S_T2}, s{S_T0}")
        a(f"s_and_b32 s{S_HP}, s{S_T2}, 15")
    else:
        a(f"s_lshr_b32 s{S_T2}, s3, 1")
        a(f"s_and_b32 s{S_T2}, s{S_T2}, 1")
        a(f"s_lshl_b32 s{S_T2}, s{S_T2}, 2")
        a(f"s_and_b32 s{S_T3}, s{S_I}, 3")
        a(f"s_add_u32 s{S_S}, s{S_T2}, s{S_T3}")
        a(f"s_and_b32 s{S_T2}, s3, 1")
        a(f"s_lshl_b32 s{S_T2}, s{S_T2}, 3")
        a(f"s_lshr_b32 s{S_T4}, s{S_I}, 2")
        a(f"s_add_u32 s{S_HP}, s{S_T2}, s{S_T4}")
    a(f"s_lshl_b32 s{S_T3}, s{S_T3}, 1")
    a(f"s_add_u32 s{S_C}, s{S_T4}, s{S_T3}")
    a(f"s_cmp_ge_u32 s{S_C}, 9")
    a(f"s_cselect_b32 s{S_T3}, 9, 0")
    a(f"s_sub_u32 s{S_C}, s{S_C}, s{S_T3}")
    if 'norot' in exp: a(f"s_mov_b32 s{S_C}, 0")
    for key, mul in (('rot2', 2), ('rot3', 3)):
        if key in exp or (key == 'rot2' and 'rot' not in exp):
            a(f"s_lshr_b32 s{S_C}, s{S_T4}, 1")
            a(f"s_and_b32 s{S_T3}, s{S_I}, 3")
            a(f"s_add_u32 s{S_C}, s{S_C}, s{S_T3}")
            a(f"s_mul_i32 s{S_C}, s{S_C}, {mul}")
            for _ in range(2):
                a(f"s_cmp_ge_u32 s{S_C}, 9")
                a(f"s_cselect_b32 s{S_T3}, 9, 0")
                a(f"s_sub_u32 s{S_C}, s{S_C}, s{S_T3}")
    if 'rot4' in exp:
        a(f"s_lshr_b32 s{S_C}, s{S_T4}, 2")
        a(f"s_and_b32 s{S_T3}, s{S_I}, 3")
        a(f"s_lshr_b32 s{S_T3}, s{S_T3}, 1")
        a(f"s_add_u32 s{S_C}, s{S_C}, s{S_T3}")
        a(f"s_mul_i32 s{S_C}, s{S_C}, 3")
    a(f"s_lshl_b32 s{S_T0}, s{S_B}, 4")
    a(f"s_add_u32 s{S_T0}, s{S_T0}, s{S_HP}")
    a(f"s_lshl_b32 s{S_T0}, s{S_T0}, 3")
    a(f"s_add_u32 s{S_IDX}, s{S_T0}, s{S_S}")
    a(f"s_lshl_b32 s{S_T0}, s{S_B}, 3")
    a(f"s_add_u32 s{S_GRP}, s{S_T0}, s{S_S}")
    a(f"v_lshrrev_b32 v{t}, 6, v0")
    a(f"v_and_b32 v{L}, 63, v0")
    a(f"v_readfirstlane_b32 s{S_WID}, v{t}")
    for (r, n) in ((S_X, 2359296), (S_W, 1990656), (S_WO, 663552), (S_WS, 268435456), (S_OUT, 4718592)):
        a(f"s_mov_b32 s{r+2}, {n}")
        a(f"s_mov_b32 s{r+3}, 0x00020000")
    a(f"s_and_b32 s{S_M}, s{S_WID}, 3")
    a(f"s_lshr_b32 s{S_HEAD}, s{S_WID}, 2")
    a(f"s_sub_u32 s{S_MB}, 7, s{S_M}")
    a(f"s_lshl_b32 s{S_T0}, s{S_GRP}, 18")
    a(f"s_add_u32 s{S_T0}, s{S_T0}, {WS_O}")
    a(f"s_lshl_b32 s{S_T1}, s{S_HP}, 10")
    a(f"s_lshl_b32 s{S_T2}, s{S_HEAD}, 9")
    a(f"s_add_u32 s{S_T1}, s{S_T1}, s{S_T2}")
    a(f"s_add_u32 s{S_OM}, s{S_T1}, s{S_T0}")
    a(f"s_lshl_b32 s{S_T0}, s{S_GRP}, 15")
    a(f"s_add_u32 s{S_T0}, s{S_T0}, {WS_OR}")
    a(f"s_lshl_b32 s{S_T1}, s{S_HP}, 1")
    a(f"s_add_u32 s{S_T1}, s{S_T1}, s{S_HEAD}")
    a(f"s_lshl_b32 s{S_T1}, s{S_T1}, 10")
    a(f"s_add_u32 s{S_OR}, s{S_T1}, s{S_T0}")
    a(f"s_lshl_b32 s{S_OFS}, s{S_GRP}, 12")
    a(f"s_add_u32 s{S_OFS}, s{S_OFS}, {WS_OF}")
    a(f"s_cmp_lt_u32 s{S_WID}, 4")
    a("s_cbranch_scc1 L_COMPUTE")

    emit_masks = lambda: emit_masks_(a)
    emit_p2_patterns = lambda: emit_p2_patterns_(a)

    a(f"s_sub_u32 s{S_L}, s{S_WID}, 4")
    a(f"v_lshrrev_b32 v{t}, 3, v{L}")
    a(f"v_mul_u32_u24 v{t}, 1152, v{t}")
    a(f"v_lshrrev_b32 v{t+1}, 4, v{L}")
    a(f"v_and_b32 v{t+2}, 7, v{L}")
    a(f"v_xor_b32 v{t+3}, v{t+2}, v{t+1}")
    a(f"v_lshl_add_u32 v{V_AX}, v{t+3}, 4, v{t}")
    a(f"v_xor_b32 v{t+3}, 4, v{t+3}")
    a(f"v_lshl_add_u32 v{V_AX+1}, v{t+3}, 4, v{t}")
    a(f"s_mul_i32 s{S_T0}, s{S_HP}, 72")
    a(f"s_and_b32 s{S_T0}, s{S_T0}, 0xfffffff0")
    a(f"v_and_b32 v{t+2}, 15, v{L}")
    a(f"v_mul_u32_u24 v{t+4}, 3456, v{t+1}")
    a(f"v_add_u32 v{t+4}, s{S_T0}, v{t+4}")
    for var in range(2):
        a(f"v_lshlrev_b32 v{t+3}, 1, v{t+1}")
        a(f"v_sub_u32 v{t+3}, v{t+2}, v{t+3}")
        if var: a(f"v_subrev_u32 v{t+3}, 8, v{t+3}")
        a(f"v_and_b32 v{t+3}, 15, v{t+3}")
        a(f"v_min_u32 v{t+3}, 14, v{t+3}")
        a(f"v_mul_u32_u24 v{t+5}, 13, v{t+3}")
        a(f"v_lshrrev_b32 v{t+5}, 6, v{t+5}")
        a(f"v_mul_u32_u24 v{t+6}, 5, v{t+5}")
        a(f"v_sub_u32 v{t+6}, v{t+3}, v{t+6}")
        a(f"v_mul_u32_u24 v{t+5}, 1152, v{t+5}")
        a(f"v_lshl_add_u32 v{t+6}, v{t+6}, 4, v{t+5}")
        a(f"v_add_u32 v{V_AX+2+var}, v{t+4}, v{t+6}")
    for i in range(8):
        a(f"v_add_u32 v{V_LDX+i}, {i*9216-(i&3)*1024}, v{V_AX+(i&1)}")
    for i in range(4):
        a(f"v_add_u32 v{V_LDW+i}, {i*4*3456-i*1024}, v{V_AX+2+(i>>1)}")
    a(f"s_lshl_b32 s{S_T0}, s{S_S}, 8")
    a(f"s_lshl_b32 s{S_T1}, s{S_L}, 6")
    a(f"s_add_u32 s{S_T0}, s{S_T0}, s{S_T1}")
    a(f"s_mul_i32 s{S_XB}, s{S_T0}, 1152")
    a(f"s_mul_i32 s{S_WB}, s{S_L}, {16*3456}")
    a(f"s_lshl_b32 s{S_LX}, s{S_L}, 13")
    a(f"s_lshl_b32 s{S_LW}, s{S_L}, 12")
    a(f"s_add_u32 s{S_LW}, s{S_LW}, 32768")
    a(f"s_mov_b32 s{S_SB}, 0")
    def chunk_pre():
        a(f"s_lshl_b32 s{S_T0}, s{S_C}, 7")
        a(f"s_add_u32 s{S_T0}, s{S_T0}, s{S_XB}")
        a(f"s_mul_i32 s{S_T1}, s{S_C}, {64*3456}")
        a(f"s_add_u32 s{S_T1}, s{S_T1}, s{S_WB}")
        a(f"s_add_u32 s{S_T2}, s{S_SB}, s{S_LW}")
        a(f"s_add_u32 s{S_T3}, s{S_SB}, s{S_LX}")
        a(f"s_add_u32 s{S_C}, s{S_C}, 1")
        a(f"s_cmp_eq_u32 s{S_C}, 9")
        a(f"s_cselect_b32 s{S_C}, 0, s{S_C}")
        a(f"s_add_u32 s{S_SB}, s{S_SB}, {STAGE}")
        a(f"s_cmp_eq_u32 s{S_SB}, {3*STAGE}")
        a(f"s_cselect_b32 s{S_SB}, 0, s{S_SB}")
    def chunk_w():
        a(f"s_mov_b32 m0, s{S_T2}")
        a("s_nop 0")
        for i in range(4):
            a(f"buffer_load_dwordx4 v{V_LDW+i}, s[{S_W}:{S_W+3}], s{S_T1} offen offset:{i*1024} lds")
    def chunk_x(lo, hi):
        for i in range(lo, hi):
            if i == lo or i == 4:
                a(f"s_add_u32 m0, s{S_T3}, {(i&~3)*1024}")
                a("s_nop 0")
            a(f"buffer_load_dwordx4 v{V_LDX+i}, s[{S_X}:{S_X+3}], s{S_T0} offen offset:{(i&3)*1024} lds")
    chunk_pre()
    a("s_waitcnt lgkmcnt(0)")
    chunk_w(); chunk_x(0, 8)
    chunk_pre(); chunk_w(); chunk_x(0, 2)
    a("s_waitcnt vmcnt(6)")
    a("s_barrier")
    chunk_x(2, 8)
    chunk_pre()
    a(f"s_mov_b32 s{S_K}, 2")
    a.lab("L_LD")
    chunk_w(); chunk_x(0, 8)
    chunk_pre()
    a(f"s_add_u32 s{S_K}, s{S_K}, 1")
    a(f"s_cmp_lt_u32 s{S_K}, 9")
    a("s_waitcnt vmcnt(12)")
    a("s_barrier")
    a("s_cbranch_scc1 L_LD")
    a(f"s_lshl_b32 s{S_T0}, s{S_L}, 6")
    a(f"v_add_u32 v{t}, s{S_T0}, v{L}")
    a(f"v_mul_u32_u24 v{t+1}, 7282, v{t}")
    a(f"v_lshrrev_b32 v{t+1}, 16, v{t+1}")
    a(f"v_mul_u32_u24 v{t+2}, 9, v{t+1}")
    a(f"v_sub_u32 v{t+2}, v{t}, v{t+2}")
    a(f"v_mul_u32_u24 v{t+1}, 1152, v{t+1}")
    a(f"v_lshl_add_u32 v{t+1}, v{t+2}, 7, v{t+1}")
    a(f"s_mul_i32 s{S_T0}, s{S_I}, {18*1152}")
    a(f"v_cmp_gt_u32 vcc, 162, v{t}")
    a(f"v_cndmask_b32_e64 v{t+1}, 0, v{t+1}, vcc")
    a(f"buffer_load_dword v255, v{t+1}, s[{S_WO}:{S_WO+3}], s{S_T0} offen")
    emit_masks()
    emit_p2_patterns()
    a(f"v_mul_u32_u24 v{t+1}, 7282, v{L}")
    a(f"v_lshrrev_b32 v{t+1}, 16, v{t+1}")
    a(f"v_mul_u32_u24 v{t+2}, 9, v{t+1}")
    a(f"v_sub_u32 v{t+2}, v{L}, v{t+2}")
    a(f"v_mul_u32_u24 v{t+1}, 1152, v{t+1}")
    a(f"v_lshl_add_u32 v{t+1}, v{t+2}, 4, v{t+1}")
    a(f"s_and_b32 s{S_T0}, s{S_HP}, 7")
    a(f"s_mul_i32 s{S_T0}, s{S_T0}, 144")
    a(f"v_add_u32 v{V_WOV}, s{S_T0}, v{t+1}")
    for j in range(1, 4): a(f"v_add_u32 v{V_WOV+j}, {j*(8064-1008)}, v{V_WOV}")
    a(f"s_mul_i32 s{S_T0}, s{S_L}, {21*1008}")
    a(f"s_mul_i32 s{S_T1}, s{S_L}, {21*8064}")
    a("s_waitcnt vmcnt(1)")
    a("s_barrier")
    WO = f"s[{S_WO}:{S_WO+3}]"
    NW1 = 8 if 'wo8' not in exp else 4
    a(f"s_bitset0_b64 exec, 63")
    for j in range(21):
        if j == NW1:
            a(f"s_mov_b64 exec, -1")
            a("s_barrier")
            a(f"s_bitset0_b64 exec, 63")
        if j == 19:
            a(f"s_cmp_eq_u32 s{S_L}, 3")
            a("s_cbranch_scc0 L_WO_N")
            a(f"s_mov_b64 exec, 0x3ffff")
            a(f"buffer_load_dwordx4 v{V_WOV+(j&3)}, {WO}, s{S_T2} offen offset:{(j&3)*1008} lds")
            a("s_branch L_WO_DONE")
            a.lab("L_WO_N")
        if j % 4 == 0:
            a(f"s_add_u32 m0, s{S_T0}, {j*1008}")
            a(f"s_add_u32 s{S_T2}, s{S_T1}, {j*8064}")
        a(f"buffer_load_dwordx4 v{V_WOV+(j&3)}, {WO}, s{S_T2} offen offset:{(j&3)*1008} lds")
    a.lab("L_WO_DONE")
    a(f"s_mov_b64 exec, -1")
    for r in range(16):
        a(f"v_mov_b32 v{OA+r}, 0")
        a(f"v_mov_b32 v{OB+r}, 0")
    a(f"v_lshlrev_b32 v{V_PA}, 4, v{L}")
    a(f"s_lshl_b32 s{S_T0}, s{S_L}, 10")
    a(f"v_add_u32 v{V_PA}, s{S_T0}, v{V_PA}")
    a(f"v_add_u32 v{V_PA+1}, {KV_OWN}, v{V_PA}")
    a(f"s_mul_i32 s{S_T1}, s{S_IDX}, 36864")
    a("s_barrier")
    a(f"s_cmp_eq_u32 s{S_S}, 7")
    a("s_cbranch_scc1 L_NOPUB")
    order = [8, 7, 6, 5, 4, 3, 2, 1, 0]
    for c, i in enumerate(order):
        a(f"ds_read_b128 v[{VH+4*c}:{VH+4*c+3}], v{V_PA+1} offset:{i*4096}")
    for c, i in enumerate(order[:5]):
        a(f"s_waitcnt lgkmcnt({8-c})")
        a(f"s_add_u32 s{S_T2}, s{S_T1}, {i*4096}")
        a(f"buffer_store_dwordx4 v[{VH+4*c}:{VH+4*c+3}], v{V_PA}, {WS}, s{S_T2} offen sc1")
    a.lab("L_NOPUB")
    a("s_branch L_P2")

    a.lab("L_COMPUTE")
    if 'nodry' not in exp:
        emit_p2_patterns()
        a(f"s_mov_b32 s{S_U}, 0")
        a(f"s_mov_b32 s{S_HOOK}, 100000")
        set_run(a, KV_OWN, None, [f"s_mov_b32 s{S_N}, 3"], TILE)
        a(f"s_bitcmp1_b32 s{S_WID}, 0")
        a("s_cbranch_scc1 L_DRYB")
        a(f"s_call_b64 s[{S_RET}:{S_RET+1}], L_RUNA")
        a("s_branch L_DRYE")
        a.lab("L_DRYB")
        a(f"s_call_b64 s[{S_RET}:{S_RET+1}], L_RUNB")
        a.lab("L_DRYE")
        a("s_waitcnt lgkmcnt(0)")
    a(f"v_and_b32 v{t}, 15, v{L}")
    a(f"v_lshrrev_b32 v{t+1}, 4, v{L}")
    a(f"v_lshrrev_b32 v{t+2}, 1, v{t}")
    a(f"s_lshl_b32 s{S_T0}, s{S_WID}, 6")
    a(f"v_add_u32 v{t+3}, s{S_T0}, v{t}")
    a(f"v_lshlrev_b32 v{t+3}, 7, v{t+3}")
    a(f"v_xor_b32 v{t+4}, v{t+1}, v{t+2}")
    a(f"v_lshlrev_b32 v{t+5}, 4, v{t+4}")
    a(f"v_add_u32 v{V_AX}, v{t+3}, v{t+5}")
    a(f"v_xor_b32 v{t+4}, 4, v{t+4}")
    a(f"v_lshlrev_b32 v{t+5}, 4, v{t+4}")
    a(f"v_add_u32 v{V_AX+1}, v{t+3}, v{t+5}")
    a(f"v_bfe_u32 v{t}, v{L}, 2, 2")
    a(f"v_and_b32 v{t+2}, 3, v{L}")
    a(f"v_and_b32 v{t+3}, 1, v{t+1}")
    a(f"v_lshl_add_u32 v{t+3}, v{t+3}, 2, v{t}")
    a(f"v_lshlrev_b32 v{t+3}, 5, v{t+3}")
    a(f"v_lshl_add_u32 v{t+4}, v{t+1}, 3, v{t}")
    a(f"v_lshlrev_b32 v{t+4}, 8, v{t+4}")
    a(f"v_add_u32 v{t+4}, 32768, v{t+4}")
    a(f"v_lshlrev_b32 v{t+5}, 3, v{t+2}")
    a(f"s_and_b32 s{S_T1}, s{S_HP}, 1")
    a(f"s_lshl_b32 s{S_T1}, s{S_T1}, 3")
    a(f"v_add3_u32 v{t+5}, v{t+5}, v{t+3}, s{S_T1}")
    for Tn in range(6):
        off = 80*(Tn >> 1) + (40 if Tn & 1 else 0)
        a(f"v_add_u32 v{t+6}, {off}, v{t+5}")
        a(f"v_and_b32 v{t+6}, 255, v{t+6}")
        a(f"v_add_u32 v{V_AW+Tn}, v{t+4}, v{t+6}")
    a(f"v_min_u32 v{t+6}, 2, v{t+2}")
    a(f"v_mul_u32_u24 v{t+6}, 80, v{t+6}")
    a(f"v_add3_u32 v{t+6}, v{t+6}, v{t+3}, s{S_T1}")
    a(f"v_add_u32 v{t+6}, 32, v{t+6}")
    a(f"v_and_b32 v{t+6}, 255, v{t+6}")
    a(f"v_add_u32 v{V_AW+6}, v{t+4}, v{t+6}")
    a(f"v_and_b32 v{t}, 15, v{L}")
    a(f"v_lshrrev_b32 v{t+1}, 4, v{L}")
    a(f"v_and_b32 v{t+2}, 1, v{t+1}")
    a(f"v_lshl_add_u32 v{t+2}, v{t+2}, 4, v{t}")
    a(f"v_lshrrev_b32 v{t+3}, 2, v{t}")
    a(f"v_lshrrev_b32 v{t+4}, 3, v{t}")
    a(f"v_xor_b32 v{t+3}, v{t+3}, v{t+4}")
    a(f"v_lshrrev_b32 v{t+4}, 1, v{t+1}")
    a(f"v_xor_b32 v{t+3}, v{t+3}, v{t+4}")
    a(f"v_and_b32 v{t+3}, 1, v{t+3}")
    a(f"v_lshlrev_b32 v{t+3}, 4, v{t+3}")
    a(f"v_lshl_add_u32 v{t+3}, v{t+2}, 5, v{t+3}")
    a(f"s_mul_i32 s{S_T0}, s{S_WID}, {2*TILE}")
    a(f"s_add_u32 s{S_T0}, s{S_T0}, {KV_OWN}")
    a(f"s_mul_i32 s{S_T1}, s{S_WID}, {2*QTILE}")
    a(f"s_add_u32 s{S_T1}, s{S_T1}, {Q_BASE}")
    a(f"v_add_u32 v{vEK}, s{S_T0}, v{t+3}")
    a(f"v_add_u32 v{vEQ}, s{S_T1}, v{t+3}")
    a(f"v_mul_u32_u24 v{t+4}, 72, v{t}")
    a(f"v_lshl_add_u32 v{t+5}, v{t+1}, 3, v{t+4}")
    a(f"v_add_u32 v{t+5}, 2304, v{t+5}")
    a(f"v_add_u32 v{vEV}, s{S_T0}, v{t+5}")
    a(f"v_lshlrev_b32 v{t+5}, 3, v{t}")
    a(f"v_add_u32 v{t+5}, 2048, v{t+5}")
    a(f"v_add_u32 v{t+6}, s{S_T1}, v{t+5}")
    a(f"v_add_u32 v{t+7}, s{S_T0}, v{t+5}")
    a(f"v_add_u32 v{t+4}, {2304+32}, v{t+4}")
    a(f"v_add_u32 v{t+4}, s{S_T0}, v{t+4}")
    a(f"v_mov_b32 v{vDr}, 128")
    a(f"v_mov_b32 v{vDt}, {TILE}")
    a(f"v_mov_b32 v{vF}, 1.0")
    a(f"v_mov_b32 v{vE6}, v{t+7}")
    a(f"v_cmp_eq_u32 vcc, 0, v{t+1}")
    a(f"v_mov_b32 v{t+5}, {QTILE}")
    a(f"v_mov_b32 v{vC}, {f32bits(QSCALE):#x}")
    a(f"v_cndmask_b32 v{vE6}, v{vE6}, v{t+6}, vcc")
    a(f"v_cndmask_b32 v{vDt}, v{vDt}, v{t+5}, vcc")
    a(f"v_cndmask_b32 v{vF}, v{vF}, v{vC}, vcc")
    a(f"v_cmp_eq_u32 vcc, 2, v{t+1}")
    a(f"v_mov_b32 v{t+5}, 1152")
    a(f"v_mov_b32 v{vC+1}, v{vC}")
    a(f"v_cndmask_b32 v{vE6}, v{vE6}, v{t+4}, vcc")
    a(f"v_cndmask_b32 v{vDr}, v{vDr}, v{t+5}, vcc")
    a(f"v_mov_b32 v{vF+1}, v{vF}")
    a("s_waitcnt lgkmcnt(0)")
    if 'nocp' not in exp:
        a(f"s_cmp_lg_u32 s{S_WID}, 3")
        a("s_cbranch_scc1 L_NOCP")
        a(f"s_getpc_b64 s[{S_RET}:{S_RET+1}]")
        a.lab("L_PCREF")
        a(f"s_sub_u32 s{S_RET}, s{S_RET}, L_PCREF-{NAME}_kernel")
        a(f"s_subb_u32 s{S_RET+1}, s{S_RET+1}, 0")
        a(f"s_mul_i32 s{S_T0}, s{S_I}, {5*128}")
        a(f"v_lshlrev_b32 v{t}, 7, v{L}")
        a(f"v_add_u32 v{t}, s{S_T0}, v{t}")
        a(f"s_mov_b32 s{S_T1}, L_END-{NAME}_kernel")
        a(f"v_cmp_gt_u32 vcc, s{S_T1}, v{t}")
        a(f"s_and_b64 vcc, vcc, 31")
        a(f"s_and_saveexec_b64 s[{S_SAVE}:{S_SAVE+1}], vcc")
        a("s_cbranch_execz L_NOCP2")
        a(f"global_load_dword v{V_TL}, v{t}, s[{S_RET}:{S_RET+1}]")
        a.lab("L_NOCP2")
        rest_exec()
        a.lab("L_NOCP")
    a(f"s_cmp_lg_u32 s{S_WID}, 0")
    a("s_cbranch_scc1 L_NOG0")
    a(f"s_lshl_b32 s{S_T0}, s{S_IDX}, 8")
    a(f"s_add_u32 s{S_T0}, s{S_T0}, {WS_FLAG}")
    a(f"s_lshl_b32 s{S_T1}, s{S_GRP}, 12")
    a(f"s_add_u32 s{S_T1}, s{S_T1}, {WS_OF}")
    a(f"v_mov_b32 v{t}, 0")
    a(f"buffer_load_dword v{V_TG}, v{t}, {WS}, s{S_T0} offen sc1")
    a(f"s_sub_u32 s{S_T0}, s{S_T0}, 256")
    a(f"s_max_u32 s{S_T0}, s{S_T0}, {WS_FLAG}")
    a(f"buffer_load_dword v{V_TG+1}, v{t}, {WS}, s{S_T0} offen sc1")
    a(f"buffer_load_dword v{V_TG+2}, v{t}, {WS}, s{S_T1} offen sc1")
    a.lab("L_NOG0")
    for i in range(112):
        a(f"v_mov_b32 v{V_ACC+i}, 0")
    emit_masks()
    emit_p2_patterns()
    a(f"v_mov_b32 v{t+2}, 0x3f803f80")
    a(f"v_mov_b32 v{t+3}, 0x3f803f80")
    a(f"v_mul_u32_u24 v{t+4}, 576, v{L}")
    a(f"v_add_u32 v{t+4}, {MISC}, v{t+4}")
    save_exec(15)
    a(f"ds_write_b64 v{t+4}, v[{t+2}:{t+3}]")
    rest_exec()
    a(f"s_cmp_lg_u32 s{S_WID}, 0")
    a("s_cbranch_scc1 L_NOG1")
    a("s_waitcnt vmcnt(0)")
    for i in range(3): a(f"v_add_u32 v{V_TG+i}, {TAG_INC:#x}, v{V_TG+i}")
    a(f"v_mov_b32 v{V_TG+3}, 0")
    a(f"v_mov_b32 v{t+4}, {TAGS_LDS}")
    save_exec(1)
    a(f"ds_write_b128 v{t+4}, v[{V_TG}:{V_TG+3}]")
    for i in range(4): a(f"v_mov_b32 v{V_TG+i}, 0")
    a(f"ds_write_b128 v{t+4}, v[{V_TG}:{V_TG+3}] offset:16")
    rest_exec()
    a.lab("L_NOG1")
    a("s_waitcnt lgkmcnt(0)")
    a("s_barrier")
    if "tsh" not in exp and "tsj" not in exp: ts(1)
    def reads(setb, ks):
        xs = [f"ds_read_b128 v[{setb+4*mt}:{setb+4*mt+3}], v{V_AX+ks} offset:{mt*2048}" for mt in range(4)]
        ws = []
        for Tn in range(7):
            b = setb + 16 + 4*Tn
            ws.append(f"ds_read_b64_tr_b16 v[{b}:{b+1}], v{V_AW+Tn} offset:{ks*8192}")
            ws.append(f"ds_read_b64_tr_b16 v[{b+2}:{b+3}], v{V_AW+Tn} offset:{ks*8192+1024}")
        return [xs[0], ws[0], ws[1], xs[1], ws[2], ws[3], xs[2], ws[4], ws[5], xs[3]] + ws[6:]
    def mfmas(setb):
        m = []
        for Tn in range(7):
            for mt in range(4):
                d = V_ACC + (mt*7+Tn)*4
                m.append(f"v_mfma_f32_16x16x32_bf16 v[{d}:{d+3}], v[{setb+16+4*Tn}:{setb+16+4*Tn+3}], v[{setb+4*mt}:{setb+4*mt+3}], v[{d}:{d+3}]")
        return m
    def interleave(ms, extra, per=1):
        ri = 0
        for i, m in enumerate(ms):
            a(m)
            for _ in range(per):
                if ri < len(extra): a(extra[ri]); ri += 1
        while ri < len(extra):
            a(extra[ri]); ri += 1
    for i in range(4): a(f"v_mov_b32 v{V_TG+i}, -1")
    a(f"v_lshlrev_b32 v{V_TL+1}, 4, v{L}")
    a(f"s_lshl_b32 s{S_XB}, s{S_GRP}, 18")
    a(f"s_add_u32 s{S_XB}, s{S_XB}, {WS_O}")
    a(f"s_lshl_b32 s{S_T0}, s{S_WID}, 16")
    a(f"s_add_u32 s{S_XB}, s{S_XB}, s{S_T0}")
    a(f"s_lshl_b32 s{S_T0}, s{S_HP}, 10")
    a(f"s_add_u32 s{S_XB}, s{S_XB}, s{S_T0}")
    a(f"s_lshl_b32 s{S_WB}, s{S_GRP}, 15")
    a(f"s_add_u32 s{S_WB}, s{S_WB}, {WS_OR}")
    a(f"s_lshl_b32 s{S_T0}, s{S_HP}, 1")
    a(f"s_and_b32 s{S_T1}, s{S_WID}, 1")
    a(f"s_add_u32 s{S_T0}, s{S_T0}, s{S_T1}")
    a(f"s_lshl_b32 s{S_T0}, s{S_T0}, 10")
    a(f"s_add_u32 s{S_WB}, s{S_WB}, s{S_T0}")
    for rd in reads(V_SET0, 0): a(rd)
    a(f"s_mov_b32 s{S_K}, 0")
    a(f"s_mov_b32 s{S_SB}, 0")
    if 'tb' in exp: a(f"v_mov_b32 v{V_TL}, 0")
    a.lab("L_GEMM")
    a(f"s_cmp_ge_u32 s{S_K}, 5")
    a("s_cbranch_scc1 L_GEMM_NS")
    a(f"s_cmp_eq_u32 s{S_K}, 4")
    a(f"s_cselect_b32 s{S_XB}, s{S_WB}, s{S_XB}")
    a(f"buffer_store_dwordx4 v[{V_TG}:{V_TG+3}], v{V_TL+1}, {WS}, s{S_XB} offen sc1")
    a(f"s_add_u32 s{S_XB}, s{S_XB}, 16384")
    a.lab("L_GEMM_NS")
    a(f"s_cmp_eq_u32 s{S_K}, 7")
    a("s_cbranch_scc0 L_GEMM_NC")
    a(f"v_mov_b32 v{t}, {TAGS_LDS+8}")
    a(f"ds_read_b32 v{t+3}, v{t}")
    a("s_waitcnt vmcnt(0) lgkmcnt(0)")
    a(f"v_readfirstlane_b32 s{S_TAGO}, v{t+3}")
    oflag(a, "L_CLR", CNTOB, 128, save_exec, rest_exec, last=3)
    a.lab("L_GEMM_NC")
    a("s_waitcnt lgkmcnt(0)")
    if 'tb' in exp:
        a(f"s_sub_u32 s92, s92, s70")
        a(f"s_mov_b32 m0, s{S_K}")
        a("s_nop 4")
        a(f"v_writelane_b32 v{V_TL}, s92, m0")
    sal = [f"s_add_u32 s{S_SB}, s{S_SB}, 1", f"s_cmp_eq_u32 s{S_SB}, 3", f"s_mov_b32 s{S_T0}, {STAGE}",
           f"s_cselect_b32 s{S_T0}, {(-2*STAGE) & 0xffffffff}, s{S_T0}", f"s_cselect_b32 s{S_SB}, 0, s{S_SB}"]
    interleave(mfmas(V_SET0), reads(V_SET1, 1) + sal)
    a("s_waitcnt lgkmcnt(0)")
    a("s_barrier")
    if 'tb' in exp: a("s_memtime s[92:93]")
    rd = reads(V_SET0, 0)
    adds = [f"v_add_u32 v{V_AX+i}, s{S_T0}, v{V_AX+i}" for i in range(9)]
    ex = [adds[0], adds[2], rd[0], rd[1], rd[2], adds[3], rd[3], rd[4], rd[5], adds[4], rd[6], rd[7], rd[8], rd[9],
          adds[5], rd[10], rd[11], adds[6], rd[12], rd[13], adds[7], rd[14], rd[15], adds[8], rd[16], rd[17], adds[1],
          f"s_add_u32 s{S_K}, s{S_K}, 1", f"s_cmp_lt_u32 s{S_K}, 9"]
    ms = mfmas(V_SET1)
    ri = 0
    for i, m in enumerate(ms):
        a(m)
        n = 2 if i < 6 else 1
        for _ in range(n):
            if ri < len(ex): a(ex[ri]); ri += 1
    assert ri == len(ex)
    a("s_cbranch_scc1 L_GEMM")
    if "tsh" not in exp and "tsj" not in exp: ts(2)
    a.c("phase-1 epilogue")
    a("s_waitcnt lgkmcnt(0)")
    acc = lambda mt, Tn: V_ACC + (mt*7+Tn)*4
    e = [V_SET0]
    def qk_tile(Tn, base_reg, pstride, hoff):
        for p in range(2):
            R = e[0]; e[0] += 4
            da, db = acc(2*p, Tn), acc(2*p+1, Tn)
            a(f"v_cvt_pk_bf16_f32 v{R}, v{da}, v{da+1}")
            a(f"v_cvt_pk_bf16_f32 v{R+2}, v{db}, v{db+1}")
            a(f"v_cvt_pk_bf16_f32 v{R+1}, v{da+2}, v{da+3}")
            a(f"v_cvt_pk_bf16_f32 v{R+3}, v{db+2}, v{db+3}")
            a("s_nop 0")
            a(f"v_permlane16_swap_b32 v{R}, v{R+2}")
            a(f"v_permlane16_swap_b32 v{R+1}, v{R+3}")
            a(f"ds_write_b128 v{base_reg}, v[{R}:{R+3}] offset:{p*pstride+hoff}")
    a("s_nop 3")
    qk_tile(2, vEK, TILE, 0)
    qk_tile(3, vEK, TILE, 1024)
    for Tn in (4, 5):
        for mt in range(4):
            R = e[0]; e[0] += 2
            d = acc(mt, Tn)
            a(f"v_cvt_pk_bf16_f32 v{R}, v{d}, v{d+1}")
            a(f"v_cvt_pk_bf16_f32 v{R+1}, v{d+2}, v{d+3}")
            a(f"ds_write_b64 v{vEV}, v[{R}:{R+1}] offset:{(mt>>1)*TILE + (mt&1)*1152 + (40 if Tn==5 else 0)}")
    R6 = e[0]; e[0] += 8
    for mt in range(4):
        d = acc(mt, 6)
        a(f"v_pk_mul_f32 v[{d}:{d+1}], v[{d}:{d+1}], v[{vF}:{vF+1}]")
        a(f"v_pk_mul_f32 v[{d+2}:{d+3}], v[{d+2}:{d+3}], v[{vF}:{vF+1}]")
    for mt in range(4):
        d = acc(mt, 6)
        a(f"v_cvt_pk_bf16_f32 v{R6+2*mt}, v{d}, v{d+1}")
        a(f"v_cvt_pk_bf16_f32 v{R6+2*mt+1}, v{d+2}, v{d+3}")
    a(f"v_add_u32 v{t}, v{vE6}, v{vDr}")
    a(f"v_add_u32 v{t+1}, v{vE6}, v{vDt}")
    a(f"v_add_u32 v{t+2}, v{t+1}, v{vDr}")
    a(f"s_mov_b64 s[{S_SAVE}:{S_SAVE+1}], exec")
    a(f"s_mov_b32 exec_hi, 0x0000ffff")
    a(f"ds_write_b64 v{vE6}, v[{R6}:{R6+1}]")
    a(f"ds_write_b64 v{t}, v[{R6+2}:{R6+3}]")
    a(f"ds_write_b64 v{t+1}, v[{R6+4}:{R6+5}]")
    a(f"ds_write_b64 v{t+2}, v[{R6+6}:{R6+7}]")
    rest_exec()
    a("s_waitcnt lgkmcnt(0)")
    a("s_barrier")
    for mt in range(4):
        for Tn in (0, 1):
            d = acc(mt, Tn)
            a(f"v_pk_mul_f32 v[{d}:{d+1}], v[{d}:{d+1}], v[{vC}:{vC+1}]")
            a(f"v_pk_mul_f32 v[{d+2}:{d+3}], v[{d+2}:{d+3}], v[{vC}:{vC+1}]")
    e[0] = 84
    qk_tile(0, vEQ, QTILE, 0)
    qk_tile(1, vEQ, QTILE, 1024)
    for r in range(16):
        a(f"v_mov_b32 v{OA+r}, 0")
        a(f"v_mov_b32 v{OB+r}, 0")

    a.lab("L_P2")
    a(f"v_mov_b32 v{t}, {TAGS_LDS}")
    a(f"ds_read_b128 v[{V_TG}:{V_TG+3}], v{t}")
    a("s_waitcnt lgkmcnt(0)")
    a("s_barrier")
    ts(3)
    if debug_stage == 1:
        a(f"s_lshl_b32 s{S_T0}, s{S_IDX}, 16")
        a(f"v_lshlrev_b32 v{t}, 4, v0")
        for i in range(7):
            a(f"v_add_u32 v{t+1}, {KV_OWN + i*8192}, v{t}")
            a(f"ds_read_b128 v[40:43], v{t+1}")
            a("s_waitcnt lgkmcnt(0)")
            a(f"v_add_u32 v{t+2}, {i*8192}, v{t}")
            a(f"buffer_store_dwordx4 v[40:43], v{t+2}, {WS}, s{S_T0} offen")
            a("s_waitcnt vmcnt(0)")
        a("s_branch L_FIN")
    if debug_stage == 9:
        a("s_branch L_FIN")
    if debug_stage not in (1, 9):
        phase2(a, debug_stage, ts, exp, save_exec, rest_exec)
        phase3(a, debug_stage, ts, exp, save_exec, rest_exec)
    a.lab("L_FIN")
    if 'hdbg' in exp:
        a("s_waitcnt vmcnt(0) lgkmcnt(0)")
        a("s_memrealtime s[94:95]")
        a(f"s_load_dwordx2 s[{S_X}:{S_X+1}], s[0:1], 56")
        a("s_waitcnt lgkmcnt(0)")
        a(f"s_cmp_lg_u32 s{S_WID}, 4")
        a("s_cbranch_scc1 L_END")
        a(f"s_mov_b32 s{S_X+2}, 256")
        a(f"s_mov_b32 s{S_X+3}, 0x00020000")
        a("s_mov_b64 exec, 1")
        a("v_mov_b32 v2, 0")
        a("s_not_b32 s33, s70")
        a("v_mov_b32 v3, s33")
        a(f"buffer_atomic_umax v3, v2, s[{S_X}:{S_X+3}], 0 offen offset:0")
        a("v_mov_b32 v3, s70")
        a(f"buffer_atomic_umax v3, v2, s[{S_X}:{S_X+3}], 0 offen offset:4")
        for k, i in enumerate((3, 4, 5, 7, 8, 10, 9, 11, 12)):
            a(f"v_mov_b32 v{4+k}, s{70+2*i}")
            a(f"buffer_atomic_umax v{4+k}, v2, s[{S_X}:{S_X+3}], 0 offen offset:{8+4*k}")
        a("s_waitcnt vmcnt(0)")
        a("s_branch L_END")
    if timing:
        a("s_waitcnt vmcnt(0) lgkmcnt(0)")
        a(f"{'s_memrealtime' if ('abs' in exp or 'hdbg' in exp) else 's_memtime'} s[94:95]")
        a("s_waitcnt lgkmcnt(0)")
        a(f"s_lshl_b32 s{S_T0}, s2, 3")
        a(f"s_add_u32 s{S_T0}, s{S_T0}, s{S_WID}")
        a(f"s_lshl_b32 s{S_T0}, s{S_T0}, 6")
        a(f"s_add_u32 s{S_T0}, s{S_T0}, {TIMING_OFF}")
        for i in range(13):
            a(f"s_sub_u32 s{S_T1}, s{70+2*i}, s70" if (i and 'abs' not in exp) else f"s_mov_b32 s{S_T1}, s{70+2*i}")
            a(f"s_cmp_eq_u32 s{70+2*i}, 0")
            a(f"s_cselect_b32 s{S_T1}, 0, s{S_T1}")
            a(f"v_mov_b32 v{40+i}, s{S_T1}")
        if 'tb' in exp:
            a(f"v_lshlrev_b32 v2, 2, v{V_LANE}")
            a(f"s_add_u32 s{S_T1}, s{S_T0}, {1<<20}")
            a(f"s_mov_b64 exec, 0xffff")
            a(f"buffer_store_dword v{V_TL}, v2, {WS}, s{S_T1} offen")
        a(f"v_mov_b32 v2, 0")
        a(f"s_mov_b64 exec, 1")
        for i in range(3):
            a(f"buffer_store_dwordx4 v[{40+4*i}:{43+4*i}], v2, {WS}, s{S_T0} offen offset:{16*i}")
        a(f"buffer_store_dword v52, v2, {WS}, s{S_T0} offen offset:48")
        a("s_waitcnt vmcnt(0)")
    a.lab("L_END")
    a("s_endpgm")
    a(f""".section .rodata,"a"
.p2align 6
.amdhsa_kernel {NAME}_kernel
  .amdhsa_next_free_vgpr 256
  .amdhsa_next_free_sgpr 102
  .amdhsa_accum_offset 256
  .amdhsa_group_segment_fixed_size 0
  .amdhsa_kernarg_size 72
  .amdhsa_user_sgpr_count 2
  .amdhsa_user_sgpr_kernarg_segment_ptr 1
  .amdhsa_system_sgpr_workgroup_id_x 1
.end_amdhsa_kernel""")
    return a.text()

WS = f"s[{S_WS}:{S_WS+3}]"

def spin_poll(a, name, check_lines, load_line, limit=2000000, first_done=False):
    a(f"s_mov_b32 s{S_CNT}, 0")
    if first_done: a(f"s_branch {name}_W")
    a.lab(name)
    a(load_line)
    a.lab(name + "_W")
    a(f"s_add_u32 s{S_CNT}, s{S_CNT}, 1")
    a("s_waitcnt vmcnt(0)")
    for l in check_lines: a(l)
    a(f"s_cbranch_scc1 {name}_OK")
    a(f"s_cmp_lt_u32 s{S_CNT}, {limit}")
    a(f"s_cbranch_scc1 {name}")
    a.lab(name + "_OK")

def lds_inc(a, addr, save_exec, rest_exec, rtn=None):
    t = T
    a(f"v_mov_b32 v{t}, {addr}")
    a(f"v_mov_b32 v{t+1}, 1")
    save_exec(1)
    if rtn is None: a(f"ds_add_u32 v{t}, v{t+1}")
    else: a(f"ds_add_rtn_u32 v{rtn}, v{t}, v{t+1}")
    rest_exec()

def lds_wait(a, name, addr, val):
    t = T
    a(f"v_mov_b32 v{t}, {addr}")
    a(f"s_mov_b32 s{S_CNT}, 0")
    a.lab(name)
    a(f"ds_read_b32 v{t+1}, v{t}")
    a(f"s_add_u32 s{S_CNT}, s{S_CNT}, 1")
    a("s_waitcnt lgkmcnt(0)")
    a(f"v_readfirstlane_b32 s{S_T0}, v{t+1}")
    a(f"s_cmp_ge_u32 s{S_T0}, {val}")
    a(f"s_cbranch_scc1 {name}_OK")
    a(f"s_cmp_lt_u32 s{S_CNT}, 20000000")
    a(f"s_cbranch_scc1 {name}")
    a.lab(name + "_OK")

def hook_point(a, tag):
    a(f"s_add_u32 s{S_U}, s{S_U}, 1")
    a(f"s_cmp_lg_u32 s{S_U}, s{S_HOOK}")
    a(f"s_cbranch_scc1 {tag}")
    a(f"s_call_b64 s[{S_RET2}:{S_RET2+1}], L_HOOK")
    a.lab(tag)

def run_code(a, name, QM, QR, O, exp):
    cnt = [0]
    def qk1(creg):
        c = "0" if creg is None else f"v[{creg}:{creg+15}]"
        a(f"v_mfma_f32_32x32x16_bf16 v[{VS}:{VS+15}], v[{VKF}:{VKF+3}], v[{QM}:{QM+3}], {c}")
    def qk2():
        a(f"v_mfma_f32_32x32x16_bf16 v[{VS}:{VS+15}], v[{VKR}:{VKR+3}], v[{QR}:{QR+3}], v[{VS}:{VS+15}]")
    def pv(V, P):
        a(f"v_mfma_f32_32x32x16_bf16 v[{O}:{O+15}], v[{V}:{V+3}], v[{P}:{P+3}], v[{O}:{O+15}]")
    def kread():
        a(f"ds_read_b128 v[{VKF}:{VKF+3}], v{A_K}")
        a(f"ds_read_b64 v[{VKR}:{VKR+1}], v{A_KR}")
    def kstep():
        a(f"v_add_u32 v{A_K}, v{ST_K}, v{A_K}")
        a(f"v_add_u32 v{A_KR}, v{ST_K}, v{A_KR}")
    def vread(V, off):
        a(f"ds_read_b64_tr_b16 v[{V}:{V+1}], v{A_V} offset:{off}")
        a(f"ds_read_b64_tr_b16 v[{V+2}:{V+3}], v{A_V} offset:{off+576}")
    def cvt(j): a(f"v_cvt_pk_bf16_f32 v{VP+j}, v{VE+2*j}, v{VE+2*j+1}")
    def ex(r): a(f"v_exp_f32 v{VE+r}, v{VS+r}")
    def unit(D):
        for r in range(8): ex(r)
        for j in range(4): cvt(j)
        ex(8); ex(9)
        a("s_waitcnt lgkmcnt(0)")
        pv(VVA, VP)
        for r in range(10, 16): ex(r)
        if D:
            qk1(V_MASK if D == "mask" else None)
            for j in range(4, 8): cvt(j)
            vread(VVA, 0)
            qk2()
            kstep()
            kread()
            pv(VVB, VP+4)
            vread(VVB, 1152)
            a(f"v_add_u32 v{A_V}, v{ST_V}, v{A_V}")
        else:
            a("s_nop 0")
            for j in range(4, 8): cvt(j)
            a("s_nop 1")
            pv(VVB, VP+4)
    a.lab(name)
    kread()
    a(f"s_cmp_eq_u32 s{S_N}, 1")
    a(f"s_cbranch_scc1 {name}_M1")
    kstep()
    a("s_waitcnt lgkmcnt(0)")
    qk1(None); qk2()
    vread(VVA, 0); kread(); vread(VVB, 1152)
    a(f"v_add_u32 v{A_V}, v{ST_V}, v{A_V}")
    a(f"s_sub_u32 s{S_N}, s{S_N}, 2")
    a.lab(name + "_BT")
    a(f"s_cmp_eq_u32 s{S_N}, 0")
    a(f"s_cbranch_scc1 {name}_MK0")
    a(f"s_sub_u32 s{S_E}, s{S_HOOK}, s{S_U}")
    a(f"s_min_u32 s{S_E}, s{S_E}, s{S_N}")
    a(f"s_sub_u32 s{S_N}, s{S_N}, s{S_E}")
    a(f"s_add_u32 s{S_U}, s{S_U}, s{S_E}")
    a(f"s_sub_u32 s{S_E}, s{S_E}, 1")
    a.lab(name + "_LP")
    unit("plain")
    a(f"s_sub_u32 s{S_E}, s{S_E}, 1")
    a("s_nop 1")
    a(f"s_cbranch_scc0 {name}_LP")
    a(f"s_cmp_lg_u32 s{S_U}, s{S_HOOK}")
    a(f"s_cbranch_scc1 {name}_BT")
    a(f"s_call_b64 s[{S_RET2}:{S_RET2+1}], L_HOOK")
    a(f"s_branch {name}_BT")
    a.lab(name + "_MK0")
    a("s_nop 3")
    a.lab(name + "_MK")
    unit("mask")
    hook_point(a, f"{name}_H1")
    a("s_nop 1")
    a.lab(name + "_FN")
    unit(None)
    hook_point(a, f"{name}_H2")
    a(f"s_setpc_b64 s[{S_RET}:{S_RET+1}]")
    a.lab(name + "_M1")
    a("s_waitcnt lgkmcnt(0)")
    qk1(V_MASK); qk2()
    vread(VVA, 0); vread(VVB, 1152)
    a("s_nop 7")
    a(f"s_branch {name}_FN")

def set_run(a, region, tile_sreg, n_lines, step):
    a(f"s_mul_i32 s{S_T0}, s{tile_sreg}, {TILE}" if tile_sreg is not None else f"s_mov_b32 s{S_T0}, 0")
    a(f"s_add_u32 s{S_T0}, s{S_T0}, {region}")
    a(f"v_add_u32 v{A_K}, s{S_T0}, v{B_K}")
    a(f"v_add_u32 v{A_KR}, s{S_T0}, v{B_KR}")
    a(f"v_and_b32 v{A_V}, s{S_T0}, v{MK_V}")
    a(f"v_add_u32 v{A_V}, v{B_V}, v{A_V}")
    a(f"v_mov_b32 v{ST_K}, {step & 0xffffffff:#x}")
    a(f"v_and_b32 v{ST_V}, v{ST_K}, v{MK_V}")
    for l in n_lines: a(l)

F_MD, F_MF, F_M = 190, 206, 222
S_FQ, S_FT, S_FK, S_FP, S_FI2 = 32+12, 45, 46, 47, 48

def safety_check(a, O, isB, qb_sreg, tag):
    t = T
    a(f"v_max3_f32 v{t}, |v{O}|, |v{O+1}|, |v{O+2}|")
    for k in range(3, 11, 2): a(f"v_max3_f32 v{t}, v{t}, |v{O+k}|, |v{O+k+1}|")
    a(f"v_max_f32 v{t}, v{t}, |v{O+11}|".replace("v_max_f32", "v_max_f32_e64"))
    a(f"v_mov_b32 v{t+1}, 0x21800000")
    a(f"v_mov_b32 v{t+2}, 0x5d800000")
    a(f"v_mov_b32 v{t+3}, 0x7f000000")
    a(f"v_cmp_nge_f32 vcc, v{O+12}, v{t+1}")
    a(f"v_cmp_nle_f32 s[{S_BAD}:{S_BAD+1}], v{O+12}, v{t+2}")
    a(f"s_or_b64 vcc, vcc, s[{S_BAD}:{S_BAD+1}]")
    a(f"v_cmp_nlt_f32 s[{S_BAD}:{S_BAD+1}], v{t}, v{t+3}")
    a(f"s_or_b64 vcc, vcc, s[{S_BAD}:{S_BAD+1}]")
    a("s_cmp_eq_u64 vcc, 0")
    a(f"s_cbranch_scc1 L_SAFE{tag}")
    a(f"s_mov_b32 s{S_FQ}, s{qb_sreg}")
    if isB:
        for r in range(8): a(f"v_swap_b32 v{QA_M+r}, v{QB_M+r}")
        for r in range(16): a(f"v_swap_b32 v{OA+r}, v{OB+r}")
    a(f"s_call_b64 s[{S_RET}:{S_RET+1}], L_FB")
    if isB:
        for r in range(8): a(f"v_swap_b32 v{QA_M+r}, v{QB_M+r}")
        for r in range(16): a(f"v_swap_b32 v{OA+r}, v{OB+r}")
    a.lab(f"L_SAFE{tag}")

def fallback_code(a):
    t = T; L = V_LANE
    a.lab("L_FB")
    a(f"v_and_b32 v{t}, 31, v{L}")
    a(f"v_lshrrev_b32 v{t+1}, 5, v{L}")
    a(f"v_lshlrev_b32 v{t+1}, 2, v{t+1}")
    a(f"v_sub_u32 v{t}, v{t}, v{t+1}")
    a(f"v_mov_b32 v{t+1}, {NEG:#x}")
    for r in range(16):
        jj = (r & 3) + 8*(r >> 2)
        a(f"v_cmp_le_i32 vcc, {jj}, v{t}")
        a("s_nop 1")
        a(f"v_cndmask_b32_e64 v{F_MD+r}, v{t+1}, 0, vcc")
        a(f"v_sub_f32 v{F_MF+r}, v{t+1}, v{F_MD+r}")
    a(f"v_mov_b32 v{F_M}, 0xff800000")
    a(f"s_mov_b32 s{S_FP}, 0")
    a.lab("L_FB_PASS")
    a(f"s_mov_b32 s{S_FI2}, 0")
    a.lab("L_FB_OWN")
    a(f"s_mul_i32 s{S_FT}, s{S_FI2}, {TILE}")
    a(f"s_add_u32 s{S_FT}, s{S_FT}, {KV_OWN}")
    a(f"s_cmp_eq_u32 s{S_FI2}, s{S_FQ}")
    a(f"s_cselect_b32 s{S_FK}, 1, 0")
    a(f"s_call_b64 s[{S_RET2}:{S_RET2+1}], L_FB_TILE")
    a(f"s_add_u32 s{S_FI2}, s{S_FI2}, 1")
    a(f"s_cmp_le_u32 s{S_FI2}, s{S_FQ}")
    a("s_cbranch_scc1 L_FB_OWN")
    a(f"s_cmp_eq_u32 s{S_S}, 0")
    a("s_cbranch_scc1 L_FB_PEND")
    a(f"s_mov_b32 s{S_FI2}, s{S_FQ}")
    a.lab("L_FB_HALO")
    a(f"s_mul_i32 s{S_FT}, s{S_FI2}, {TILE}")
    a(f"s_add_u32 s{S_FT}, s{S_FT}, {KV_HALO}")
    a(f"s_cmp_eq_u32 s{S_FI2}, s{S_FQ}")
    a(f"s_cselect_b32 s{S_FK}, 2, 0")
    a(f"s_call_b64 s[{S_RET2}:{S_RET2+1}], L_FB_TILE")
    a(f"s_add_u32 s{S_FI2}, s{S_FI2}, 1")
    a(f"s_cmp_le_u32 s{S_FI2}, 7")
    a("s_cbranch_scc1 L_FB_HALO")
    a.lab("L_FB_PEND")
    a(f"s_cmp_eq_u32 s{S_FP}, 1")
    a("s_cbranch_scc1 L_FB_DONE")
    a(f"v_mov_b32 v{t}, v{F_M}")
    a("s_nop 1")
    a(f"v_permlane32_swap_b32 v{F_M}, v{t}")
    a("s_nop 1")
    a(f"v_max_f32 v{F_M}, v{F_M}, v{t}")
    for r in range(16): a(f"v_mov_b32 v{OA+r}, 0")
    a(f"s_mov_b32 s{S_FP}, 1")
    a("s_branch L_FB_PASS")
    a.lab("L_FB_DONE")
    a("s_nop 15")
    a(f"s_setpc_b64 s[{S_RET}:{S_RET+1}]")
    a.lab("L_FB_TILE")
    a(f"v_add_u32 v{A_K}, s{S_FT}, v{B_K}")
    a(f"v_add_u32 v{A_KR}, s{S_FT}, v{B_KR}")
    a(f"v_and_b32 v{A_V}, s{S_FT}, v{MK_V}")
    a(f"v_add_u32 v{A_V}, v{B_V}, v{A_V}")
    a(f"ds_read_b128 v[{VKF}:{VKF+3}], v{A_K}")
    a(f"ds_read_b64 v[{VKR}:{VKR+1}], v{A_KR}")
    a(f"ds_read_b64_tr_b16 v[{VVA}:{VVA+1}], v{A_V}")
    a(f"ds_read_b64_tr_b16 v[{VVA+2}:{VVA+3}], v{A_V} offset:576")
    a(f"ds_read_b64_tr_b16 v[{VVB}:{VVB+1}], v{A_V} offset:1152")
    a(f"ds_read_b64_tr_b16 v[{VVB+2}:{VVB+3}], v{A_V} offset:1728")
    a("s_waitcnt lgkmcnt(0)")
    a(f"v_mfma_f32_32x32x16_bf16 v[{VS}:{VS+15}], v[{VKF}:{VKF+3}], v[{QA_M}:{QA_M+3}], 0")
    a(f"v_mfma_f32_32x32x16_bf16 v[{VS}:{VS+15}], v[{VKR}:{VKR+3}], v[{QA_R}:{QA_R+3}], v[{VS}:{VS+15}]")
    a("s_nop 15")
    a(f"s_cmp_eq_u32 s{S_FK}, 0")
    a("s_cbranch_scc1 L_FB_NM")
    a(f"s_cmp_eq_u32 s{S_FK}, 1")
    a("s_cbranch_scc0 L_FB_FM")
    for r in range(16): a(f"v_add_f32 v{VS+r}, v{VS+r}, v{F_MD+r}")
    a("s_branch L_FB_NM")
    a.lab("L_FB_FM")
    for r in range(16): a(f"v_add_f32 v{VS+r}, v{VS+r}, v{F_MF+r}")
    a.lab("L_FB_NM")
    a(f"s_cmp_eq_u32 s{S_FP}, 0")
    a("s_cbranch_scc0 L_FB_P1")
    for r in range(0, 16, 2): a(f"v_max3_f32 v{F_M}, v{F_M}, v{VS+r}, v{VS+r+1}")
    a(f"s_setpc_b64 s[{S_RET2}:{S_RET2+1}]")
    a.lab("L_FB_P1")
    for r in range(16): a(f"v_sub_f32 v{VS+r}, v{VS+r}, v{F_M}")
    for r in range(16): a(f"v_exp_f32 v{VE+r}, v{VS+r}")
    a("s_nop 0")
    for j in range(8): a(f"v_cvt_pk_bf16_f32 v{VP+j}, v{VE+2*j}, v{VE+2*j+1}")
    a("s_nop 1")
    a(f"v_mfma_f32_32x32x16_bf16 v[{OA}:{OA+15}], v[{VVA}:{VVA+3}], v[{VP}:{VP+3}], v[{OA}:{OA+15}]")
    a(f"v_mfma_f32_32x32x16_bf16 v[{OA}:{OA+15}], v[{VVB}:{VVB+3}], v[{VP+4}:{VP+7}], v[{OA}:{OA+15}]")
    a("s_nop 7")
    a(f"s_setpc_b64 s[{S_RET2}:{S_RET2+1}]")

def finalize(a, O, qb_sreg, save_exec, rest_exec):
    t = T; R = VS
    a(f"v_rcp_f32 v{t+2}, v{O+12}")
    a(f"s_lshl_b32 s{S_T0}, s{qb_sreg}, 15")
    a(f"s_add_u32 s{S_T1}, s{S_T0}, s{S_OM}")
    a(f"s_lshl_b32 s{S_T0}, s{qb_sreg}, 7")
    a(f"s_add_u32 s{S_T2}, s{S_T0}, s{S_OR}")
    for r in range(12): a(f"v_mul_f32 v{O+r}, v{O+r}, v{t+2}")
    a(f"v_cvt_pk_bf16_f32 v{R}, v{O}, v{O+1}")
    a(f"v_cvt_pk_bf16_f32 v{R+1}, v{O+2}, v{O+3}")
    a(f"v_cvt_pk_bf16_f32 v{R+2}, v{O+4}, v{O+5}")
    a(f"v_cvt_pk_bf16_f32 v{R+3}, v{O+6}, v{O+7}")
    a(f"v_cvt_pk_bf16_f32 v{R+4}, v{O+8}, v{O+9}")
    a(f"v_cvt_pk_bf16_f32 v{R+5}, v{O+10}, v{O+11}")
    a(f"s_cmp_eq_u32 s{S_HEAD}, 0")
    a(f"s_cselect_b64 s[{S_SAVE}:{S_SAVE+1}], -1, 0")
    a(f"v_permlane32_swap_b32 v{R}, v{R+2}")
    a(f"v_permlane32_swap_b32 v{R+1}, v{R+3}")
    a(f"v_cndmask_b32_e64 v{R+4}, v{R+5}, v{R+4}, s[{S_SAVE}:{S_SAVE+1}]")
    a(f"buffer_store_dwordx4 v[{R}:{R+3}], v{V_OA1}, {WS}, s{S_T1} offen sc1")
    a(f"s_mov_b64 s[{S_SAVE}:{S_SAVE+1}], exec")
    a(f"s_mov_b32 exec_hi, 0")
    a(f"buffer_store_dword v{R+4}, v{V_OA2}, {WS}, s{S_T2} offen sc1")
    rest_exec()

def oflag(a, name, cnt_addr, flag_off, save_exec, rest_exec, after_store=None, last=7):
    t = T
    lds_inc(a, cnt_addr, save_exec, rest_exec, rtn=t+2)
    a("s_waitcnt lgkmcnt(0)")
    a(f"v_readfirstlane_b32 s{S_T0}, v{t+2}")
    a(f"s_cmp_lg_u32 s{S_T0}, {last}")
    a(f"s_cbranch_scc1 {name}")
    a(f"s_lshl_b32 s{S_T0}, s{S_HP}, 2")
    a(f"s_add_u32 s{S_T0}, s{S_T0}, s{S_OFS}")
    a(f"v_lshlrev_b32 v{t}, 7, v{V_LANE}")
    a(f"v_mov_b32 v{t+1}, s{S_TAGO}")
    save_exec("0xffff")
    a(f"buffer_store_dword v{t+1}, v{t}, {WS}, s{S_T0} offen offset:{flag_off} sc1")
    rest_exec()
    if after_store: after_store()
    a.lab(name)

def phase2(a, debug_stage, ts, exp, save_exec, rest_exec):
    t = T; L = V_LANE
    UH = (4, 6, 8)
    if 'hkA' in exp: UH = (3, 5, 7)
    if 'hkB' in exp: UH = (4, 6, 7)
    if 'hkC' in exp: UH = (5, 7, 8)
    UP = 15
    a.c("======== phase 2 ========")
    a(f"v_readfirstlane_b32 s{S_TAGOUT}, v{V_TG}")
    a(f"v_readfirstlane_b32 s{S_TAGIN}, v{V_TG+1}")
    a(f"v_readfirstlane_b32 s{S_TAGO}, v{V_TG+2}")
    a(f"v_bfe_u32 v{V_OA1}, v{L}, 4, 1")
    a(f"v_lshlrev_b32 v{V_OA1}, 14, v{V_OA1}")
    a(f"v_and_b32 v{t+4}, 15, v{L}")
    a(f"v_lshl_add_u32 v{V_OA1}, v{t+4}, 4, v{V_OA1}")
    a(f"v_lshrrev_b32 v{t+4}, 5, v{L}")
    a(f"v_lshl_add_u32 v{V_OA1}, v{t+4}, 8, v{V_OA1}")
    a(f"v_lshlrev_b32 v{V_OA2}, 2, v{L}")
    for (QM, QR, sreg) in ((QA_M, QA_R, S_M), (QB_M, QB_R, S_MB)):
        a(f"s_mul_i32 s{S_T0}, s{sreg}, {QTILE}")
        a(f"s_add_u32 s{S_T0}, s{S_T0}, {Q_BASE}")
        a(f"v_add_u32 v{t+2}, s{S_T0}, v{B_K}")
        a(f"v_add_u32 v{t+3}, s{S_T0}, v{B_KR}")
        a(f"ds_read_b128 v[{QM}:{QM+3}], v{t+2}")
        a(f"ds_read_b64 v[{QR}:{QR+1}], v{t+3}")
    a(f"s_cmp_eq_u32 s{S_HEAD}, 0")
    a(f"s_cselect_b32 s{S_T0}, -1, 0")
    a(f"s_cselect_b32 s{S_T1}, 0, -1")
    a(f"v_cmp_gt_u32 vcc, 32, v{L}")
    a(f"v_mov_b32 v{t}, s{S_T0}")
    a(f"v_mov_b32 v{t+1}, s{S_T1}")
    a(f"v_cndmask_b32_e64 v{t}, 0, v{t}, vcc")
    a(f"v_cndmask_b32_e64 v{t+1}, 0, v{t+1}, vcc")
    a(f"v_mov_b32 v{VKR+2}, 0")
    a(f"v_mov_b32 v{VKR+3}, 0")
    for QR in (QA_R, QB_R):
        a(f"v_mov_b32 v{QR+2}, 0")
        a(f"v_mov_b32 v{QR+3}, 0")
    a("s_waitcnt lgkmcnt(0)")
    for QR in (QA_R, QB_R):
        a(f"v_and_b32 v{QR}, v{QR}, v{t}")
        a(f"v_and_b32 v{QR+1}, v{QR+1}, v{t+1}")
    lds_inc(a, CNTQ, save_exec, rest_exec)
    a(f"s_mov_b32 s{S_U}, 0")
    a(f"s_mov_b32 s{S_HST}, 0")
    a(f"s_mov_b32 s{S_HOOK}, {UP}")
    a(f"s_mov_b32 s{S_HST}, 3")
    a(f"s_cmp_lt_u32 s{S_WID}, 4")
    a(f"s_cbranch_scc1 L_HS2")
    a(f"s_mov_b32 s{S_HST}, 0")
    a(f"s_mov_b32 s{S_HOOK}, {UH[0]}")
    a(f"s_cmp_eq_u32 s{S_S}, 7")
    a(f"s_cbranch_scc1 L_HS1")
    a(f"s_mul_i32 s{S_T1}, s{S_IDX}, 36864")
    for c, i in enumerate([3, 2, 1, 0]):
        a(f"s_add_u32 s{S_T2}, s{S_T1}, {i*4096}")
        a(f"buffer_store_dwordx4 v[{VH+20+4*c}:{VH+20+4*c+3}], v{V_PA}, {WS}, s{S_T2} offen sc1")
    a.lab("L_HS1")
    if 'noprio' not in exp: a("s_setprio 1")
    a.lab("L_HS2")
    ts(4)
    set_run(a, KV_OWN, None, [f"s_add_u32 s{S_N}, s{S_M}, 1"], TILE)
    a(f"s_call_b64 s[{S_RET}:{S_RET+1}], L_RUNA")
    set_run(a, KV_OWN, None, [f"s_sub_u32 s{S_N}, 8, s{S_M}"], TILE)
    a(f"s_call_b64 s[{S_RET}:{S_RET+1}], L_RUNB")
    ts(5)
    a(f"s_cmp_eq_u32 s{S_S}, 0")
    a("s_cbranch_scc1 L_FINAL0")
    a(f"v_mov_b32 v{t+2}, {NEG:#x}")
    for r in range(16): a(f"v_sub_f32 v{V_MASK+r}, v{t+2}, v{V_MASK+r}")
    a(f"s_cmp_lt_u32 s{S_WID}, 4")
    a("s_cbranch_scc1 L_H5DONE")
    lds_wait(a, "L_WQ", CNTQ, 8)
    a(f"v_add_u32 v{V_PA+1}, {KV_HALO}, v{V_PA}")
    for c, i in enumerate([8, 7, 6, 5, 4, 3, 2, 1, 0]):
        a(f"s_waitcnt vmcnt({8-c})")
        a(f"ds_write_b128 v{V_PA+1}, v[{VH+4*c}:{VH+4*c+3}] offset:{i*4096}")
    a(f"s_cmp_lg_u32 s{S_WID}, 4")
    a("s_cbranch_scc1 L_H5DONE")
    a(f"s_sub_u32 s{S_T0}, s{S_IDX}, 1")
    a(f"s_lshl_b32 s{S_T0}, s{S_T0}, 8")
    a(f"s_add_u32 s{S_T0}, s{S_T0}, {WS_FLAG}")
    a(f"v_mov_b32 v{t}, 0")
    a(f"v_mov_b32 v{t+1}, s{S_TAGIN}")
    save_exec(1)
    a(f"buffer_store_dword v{t+1}, v{t}, {WS}, s{S_T0} offen sc1")
    rest_exec()
    a.lab("L_H5DONE")
    a("s_waitcnt lgkmcnt(0)")
    a("s_setprio 0")
    a("s_barrier")
    if "tsh" not in exp: ts(7)
    a(f"s_mov_b32 s{S_T4}, 7")
    set_run(a, KV_HALO, S_T4, [f"s_add_u32 s{S_N}, s{S_M}, 1"], -TILE)
    a(f"s_call_b64 s[{S_RET}:{S_RET+1}], L_RUNB")
    a("s_nop 7")
    a("s_nop 3")
    safety_check(a, OB, True, S_MB, "B1")
    finalize(a, OB, S_MB, save_exec, rest_exec)
    a(f"s_mov_b32 s{S_T4}, 7")
    set_run(a, KV_HALO, S_T4, [f"s_sub_u32 s{S_N}, 8, s{S_M}"], -TILE)
    a(f"s_call_b64 s[{S_RET}:{S_RET+1}], L_RUNA")
    a("s_branch L_FINALA")
    a.lab("L_FINAL0")
    a("s_waitcnt vmcnt(0)")
    a("s_setprio 0")
    a("s_barrier")
    a("s_nop 7")
    a("s_nop 3")
    safety_check(a, OB, True, S_MB, "B0")
    finalize(a, OB, S_MB, save_exec, rest_exec)
    a.lab("L_FINALA")
    if "tsh" not in exp: ts(8)
    a("s_nop 7")
    a("s_nop 3")
    safety_check(a, OA, False, S_M, "A")
    finalize(a, OA, S_M, save_exec, rest_exec)
    a("s_branch L_P3")
    fallback_code(a)

    a.lab("L_HOOK")
    a(f"s_cmp_eq_u32 s{S_HST}, 1")
    a("s_cbranch_scc1 L_HK1")
    a(f"s_cmp_eq_u32 s{S_HST}, 2")
    a("s_cbranch_scc1 L_HK2")
    a(f"s_cmp_eq_u32 s{S_HST}, 3")
    a("s_cbranch_scc1 L_HK3")
    a(f"s_mov_b32 s{S_HST}, 1")
    a(f"s_mov_b32 s{S_HOOK}, {UH[1]}")
    a(f"s_cmp_eq_u32 s{S_S}, 7")
    a("s_cbranch_scc1 L_HRET")
    a("s_waitcnt vmcnt(0)")
    a(f"s_lshl_b32 s{S_T0}, s{S_IDX}, 8")
    a(f"s_lshl_b32 s{S_T1}, s{S_L}, 2")
    a(f"s_add_u32 s{S_T0}, s{S_T0}, s{S_T1}")
    a(f"s_add_u32 s{S_T0}, s{S_T0}, {WS_FLAG+128}")
    a(f"v_mov_b32 v{t}, 0")
    a(f"v_mov_b32 v{t+1}, s{S_TAGOUT}")
    save_exec(1)
    a(f"buffer_store_dword v{t+1}, v{t}, {WS}, s{S_T0} offen sc1")
    rest_exec()
    a("s_branch L_HRET")
    a.lab("L_HK3")
    a(f"s_mov_b32 s{S_HST}, 4")
    a(f"s_mov_b32 s{S_HOOK}, 1000")
    a(f"s_lshl_b32 s{S_T0}, s{S_HP}, 7")
    a(f"s_add_u32 s{S_T0}, s{S_T0}, s{S_OFS}")
    save_exec("0xffff")
    a(f"v_lshlrev_b32 v{t}, 2, v{L}")
    a(f"buffer_load_dword v{V_TG+1}, v{t}, {WS}, s{S_T0} offen offset:128 sc1")
    rest_exec()
    a("s_branch L_HRET")
    a.lab("L_HK1")
    a(f"s_mov_b32 s{S_HST}, 2")
    a(f"s_mov_b32 s{S_HOOK}, {UH[2]}")
    a(f"s_cmp_eq_u32 s{S_S}, 0")
    a("s_cbranch_scc0 L_HK1A")
    a(f"s_mov_b32 s{S_HOOK}, 1000")
    a("s_branch L_HRET")
    a.lab("L_HK1A")
    a(f"s_sub_u32 s{S_H1}, s{S_IDX}, 1")
    a(f"s_lshl_b32 s{S_H1}, s{S_H1}, 8")
    a(f"s_lshl_b32 s{S_T0}, s{S_L}, 2")
    a(f"s_add_u32 s{S_H1}, s{S_H1}, s{S_T0}")
    a(f"s_add_u32 s{S_H1}, s{S_H1}, {WS_FLAG+128}")
    a(f"v_mov_b32 v{t}, 0")
    a(f"buffer_load_dword v{V_TG}, v{t}, {WS}, s{S_H1} offen sc1")
    a("s_branch L_HRET")
    a.lab("L_HK2")
    a(f"s_mov_b32 s{S_HST}, 3")
    a(f"s_mov_b32 s{S_HOOK}, {UP}")
    a("s_waitcnt vmcnt(0)")
    a(f"v_readfirstlane_b32 s{S_T0}, v{V_TG}")
    a(f"s_cmp_eq_u32 s{S_T0}, s{S_TAGIN}")
    a("s_cbranch_scc1 L_POLL1_OK")
    a(f"v_mov_b32 v{t}, 0")
    spin_poll(a, "L_POLL1",
              [f"v_readfirstlane_b32 s{S_T0}, v{V_TG}", f"s_cmp_eq_u32 s{S_T0}, s{S_TAGIN}"],
              f"buffer_load_dword v{V_TG}, v{t}, {WS}, s{S_H1} offen sc1")
    a(f"s_sub_u32 s{S_T0}, s{S_IDX}, 1")
    a(f"s_mul_i32 s{S_T0}, s{S_T0}, 36864")
    for c, i in enumerate([8, 7, 6, 5, 4, 3, 2, 1, 0]):
        a(f"s_add_u32 s{S_T1}, s{S_T0}, {i*4096}")
        a(f"buffer_load_dwordx4 v[{VH+4*c}:{VH+4*c+3}], v{V_PA}, {WS}, s{S_T1} offen sc1")
    a.lab("L_HRET")
    a(f"s_setpc_b64 s[{S_RET2}:{S_RET2+1}]")
    run_code(a, "L_RUNA", QA_M, QA_R, OA, exp)
    run_code(a, "L_RUNB", QB_M, QB_R, OB, exp)

def pub_stores(a, stage_off, base):
    a(f"s_add_u32 s{S_T2}, s{S_T1}, {stage_off}")
    a(f"buffer_store_dwordx4 v[{base}:{base+3}], v{V_PA}, {WS}, s{S_T2} offen sc1")
    for i in range(1, 4):
        a(f"s_add_u32 s{S_T3}, s{S_T2}, {i*4096}")
        a(f"buffer_store_dwordx4 v[{base+4*i}:{base+4*i+3}], v{V_PA}, {WS}, s{S_T3} offen sc1")
    a(f"buffer_store_dwordx4 v[{base+16}:{base+19}], v{V_PA+2}, {WS}, s{S_T2} offen sc1")

def halo_loads(a, stage_off, base):
    a(f"s_sub_u32 s{S_T0}, s{S_IDX}, 1")
    a(f"s_mul_i32 s{S_T0}, s{S_T0}, 36864")
    a(f"s_add_u32 s{S_T0}, s{S_T0}, s{S_SO}")
    for i in range(4):
        a(f"s_add_u32 s{S_T1}, s{S_T0}, {i*4096}")
        a(f"buffer_load_dwordx4 v[{base+4*i}:{base+4*i+3}], v{V_PA}, {WS}, s{S_T1} offen sc1")
    a(f"buffer_load_dwordx4 v[{base+16}:{base+19}], v{V_PA+2}, {WS}, s{S_T0} offen sc1")

def phase3(a, debug_stage, ts, exp, save_exec, rest_exec):
    t = T; L = V_LANE
    OF, AC, WF0, WF1 = 20, 92, 132, 152
    AW, AW2, PF, VO, VOUT, VR = 10, 11, 13, 14, 15, 16
    PA, PB = 12, 9
    S_PL, S_PR, S_PM = 4, 68, 40
    SCR = KV_OWN
    ORD = {0: [0, 2, 4, 6, 1, 3, 5, 7, 8], 1: [9, 11, 13, 15, 10, 12, 14, 16, 17]}
    GM = {0: 0x0055, 1: 0xAA00}; RM = {0: 0x01AA, 1: 0xFFFF}
    a.lab("L_P3")
    a.c("======== phase 3 ========")
    a(f"s_lshl_b32 s{S_PL}, s{S_HP}, 7")
    a(f"s_add_u32 s{S_PL}, s{S_PL}, s{S_OFS}")
    def poll_issue():
        save_exec("0xffff")
        a(f"v_lshlrev_b32 v{t+2}, 2, v{L}")
        a(f"buffer_load_dword v{PF}, v{t+2}, {WS}, s{S_PL} offen offset:128 sc1")
        rest_exec()
    def poll_check(name, mask):
        save_exec(f"{mask:#x}")
        a(f"v_cmp_ne_u32 vcc, s{S_TAGO}, v{PF}")
        a("s_nop 1")
        a("s_cmp_eq_u64 vcc, 0")
        a(f"s_cbranch_scc1 {name}_OK")
        a(f"v_lshlrev_b32 v{t+2}, 2, v{L}")
        spin_poll(a, name,
                  [f"v_cmp_ne_u32 vcc, s{S_TAGO}, v{PF}", "s_nop 1", "s_cmp_eq_u64 vcc, 0"],
                  f"buffer_load_dword v{PF}, v{t+2}, {WS}, s{S_PL} offen offset:128 sc1")
        rest_exec()
    a(f"s_lshr_b32 s{S_T1}, s{S_HP}, 3")
    a(f"s_lshl_b32 s{S_T1}, s{S_T1}, 3")
    a(f"s_lshl_b32 s{S_T2}, s{S_M}, 1")
    a(f"s_add_u32 s{S_T1}, s{S_T1}, s{S_T2}")
    a(f"s_lshl_b32 s{S_T0}, s{S_GRP}, 18")
    a(f"s_add_u32 s{S_T0}, s{S_T0}, {WS_O}")
    a(f"s_lshl_b32 s{S_T2}, s{S_T1}, 14")
    a(f"s_add_u32 s{S_PM}, s{S_T0}, s{S_T2}")
    a(f"s_lshl_b32 s{S_T0}, s{S_GRP}, 15")
    a(f"s_add_u32 s{S_T0}, s{S_T0}, {WS_OR}")
    a(f"s_lshl_b32 s{S_T2}, s{S_T1}, 6")
    a(f"s_add_u32 s{S_PR}, s{S_T0}, s{S_T2}")
    a(f"v_lshrrev_b32 v{VR}, 4, v{L}")
    a(f"v_lshlrev_b32 v{VR}, 12, v{VR}")
    a(f"v_and_b32 v{t+4}, 15, v{L}")
    a(f"v_lshl_add_u32 v{VR}, v{t+4}, 2, v{VR}")
    a(f"v_add_u32 v{VR+1}, 64, v{VR}")
    a(f"v_lshrrev_b32 v{t+1}, 4, v{L}")
    a(f"v_bfe_u32 v{t+2}, v{L}, 2, 2")
    a(f"v_and_b32 v{t+3}, 3, v{L}")
    a(f"v_lshrrev_b32 v{t+4}, 1, v{t+1}")
    a(f"v_lshlrev_b32 v{t+4}, 2, v{t+4}")
    a(f"v_lshl_add_u32 v{t+4}, v{t+1}, 3, v{t+4}")
    a(f"v_add_u32 v{t+4}, v{t+4}, v{t+2}")
    a(f"v_mul_u32_u24 v{t+4}, 144, v{t+4}")
    a(f"v_lshl_add_u32 v{AW}, v{t+3}, 3, v{t+4}")
    a(f"s_mul_i32 s{S_T0}, s{S_HEAD}, {9*5184}")
    a(f"v_add_u32 v{AW}, s{S_T0}, v{AW}")
    a(f"v_mul_u32_u24 v{t+4}, 72, v{t+1}")
    a(f"v_add3_u32 v{t+4}, v{t+4}, v{t+2}, 16")
    a(f"v_mul_u32_u24 v{t+4}, 144, v{t+4}")
    a(f"v_lshl_add_u32 v{AW2}, v{t+3}, 3, v{t+4}")
    a(f"v_lshlrev_b32 v{VO}, 4, v{L}")
    a(f"s_lshl_b32 s{S_T1}, s{S_T1}, 4")
    a(f"s_lshl_b32 s{S_T2}, s{S_S}, 8")
    a(f"s_add_u32 s{S_T1}, s{S_T1}, s{S_T2}")
    a(f"s_lshl_b32 s{S_T2}, s{S_HEAD}, 4")
    a(f"s_add_u32 s{S_T1}, s{S_T1}, s{S_T2}")
    a(f"s_mul_i32 s{S_T1}, s{S_T1}, 2304")
    a(f"s_mul_i32 s{S_T2}, s{S_B}, 1152")
    a(f"s_add_u32 s{S_T1}, s{S_T1}, s{S_T2}")
    a(f"s_and_b32 s{S_T2}, s{S_HP}, 7")
    a(f"s_mul_i32 s{S_T2}, s{S_T2}, 144")
    a(f"s_add_u32 s{S_T5}, s{S_T1}, s{S_T2}")
    a(f"v_and_b32 v{VOUT}, 15, v{L}")
    a(f"v_mul_u32_u24 v{VOUT}, 2304, v{VOUT}")
    a(f"v_lshrrev_b32 v{t+4}, 4, v{L}")
    a(f"v_lshl_add_u32 v{VOUT}, v{t+4}, 3, v{VOUT}")
    a(f"s_mul_i32 s{S_T0}, s{S_WID}, 5120")
    a(f"s_add_u32 s{S_T0}, s{S_T0}, {SCR}")
    a(f"v_add_u32 v18, s{S_T0}, v{VO}")
    a(f"s_xor_b32 s{S_T1}, s{S_WID}, 4")
    a(f"s_mul_i32 s{S_T1}, s{S_T1}, 5120")
    a(f"s_add_u32 s{S_T1}, s{S_T1}, {SCR}")
    a(f"v_add_u32 v19, s{S_T1}, v{VO}")
    OUT = f"s[{S_OUT}:{S_OUT+3}]"
    def wreads(kap, kh, WF):
        l = []
        for Tn in range(5):
            b = WF + 4*Tn
            if kap >= 16:
                o0 = (kap-16)*8*36*144 + Tn*32
                l.append(f"ds_read_b64_tr_b16 v[{b}:{b+1}], v{AW2} offset:{o0}")
                l.append(f"ds_read_b64_tr_b16 v[{b+2}:{b+3}], v{AW2} offset:{o0+36*144}")
            else:
                o0 = (kap - 9*kh)*5184 + Tn*32
                l.append(f"ds_read_b64_tr_b16 v[{b}:{b+1}], v{AW} offset:{o0}")
                l.append(f"ds_read_b64_tr_b16 v[{b+2}:{b+3}], v{AW} offset:{o0+576}")
        return l
    def loads(kh, slots):
        nl = []
        for jx in slots:
            kap = ORD[kh][jx]
            if kap >= 16:
                a(f"s_add_u32 s{S_T0}, s{S_PR}, {(kap-16)*16*1024}")
                for mt in range(2):
                    for i in range(4):
                        a(f"buffer_load_dword v{OF+36*mt+4*jx+i}, v{VR+mt}, {WS}, s{S_T0} offen offset:{i*1024} sc1")
                nl.append(8)
            else:
                a(f"s_add_u32 s{S_T0}, s{S_PM}, {kap*1024}")
                a(f"s_add_u32 s{S_T1}, s{S_PM}, {kap*1024+16384}")
                a(f"buffer_load_dwordx4 v[{OF+4*jx}:{OF+4*jx+3}], v{VO}, {WS}, s{S_T0} offen sc1")
                a(f"buffer_load_dwordx4 v[{OF+36+4*jx}:{OF+36+4*jx+3}], v{VO}, {WS}, s{S_T1} offen sc1")
                nl.append(2)
        return nl
    def mfm(kh, slots, nl, extra, last_next, novm=False):
        for c, jx in enumerate(slots):
            cur = WF0 if jx % 2 == 0 else WF1
            nxt = WF1 if jx % 2 == 0 else WF0
            a("s_waitcnt lgkmcnt(0)" if novm else f"s_waitcnt vmcnt({sum(nl[c+1:])+extra}) lgkmcnt(0)")
            rs = wreads(ORD[kh][jx+1], kh, nxt) if jx < 8 else []
            ri = 0
            for Tn in range(5):
                for mt in range(2):
                    d = AC + (mt*5+Tn)*4; o = OF + 36*mt + 4*jx
                    cc = "0" if jx == 0 else f"v[{d}:{d+3}]"
                    a(f"v_mfma_f32_16x16x32_bf16 v[{d}:{d+3}], v[{cur+4*Tn}:{cur+4*Tn+3}], v[{o}:{o+3}], {cc}")
                    if ri < len(rs): a(rs[ri]); ri += 1
    def add_out(q, base, Tn, pk):
        for r in range(4): a(f"v_add_f32 v{q+r}, v{q+r}, v{base+4*Tn+r}")
        a(f"v_cvt_pk_bf16_f32 v{pk}, v{q}, v{q+1}")
        a(f"v_cvt_pk_bf16_f32 v{pk+1}, v{q+2}, v{q+3}")
        if Tn == 4:
            a(f"s_mov_b64 s[{S_SAVE}:{S_SAVE+1}], exec")
            a(f"s_mov_b32 exec_hi, 0")
        omod = " nt" if 'ont' in exp else " sc1" if 'osc1' in exp else " sc0 sc1" if 'osc01' in exp else ""
        a(f"buffer_store_dwordx2 v[{pk}:{pk+1}], v{VOUT}, {OUT}, s{S_T5} offen offset:{Tn*32}{omod}")
        if Tn == 4: rest_exec()
    def nloads(kh, slots):
        return [8 if ORD[kh][jx] >= 16 else 2 for jx in slots]
    def validate(kh, slots, younger):
        nl = nloads(kh, slots); first = True
        for c, jx in enumerate(slots):
            a(f"s_waitcnt vmcnt({sum(nl[c+1:])+younger})")
            rr = [OF+4*jx+i for i in range(4)] + [OF+36+4*jx+i for i in range(4)]
            if first:
                a(f"v_max3_u32 v{t+3}, v{rr[0]}, v{rr[1]}, v{rr[2]}"); rr = rr[3:]; first = False
                a(f"v_max_u32 v{t+3}, v{t+3}, v{rr[0]}"); rr = rr[1:]
            for k in range(0, len(rr), 2):
                a(f"v_max3_u32 v{t+3}, v{t+3}, v{rr[k]}, v{rr[k+1]}")
        a(f"v_cmp_eq_u32 vcc, -1, v{t+3}")
        a("s_nop 1")
        a("s_cmp_eq_u64 vcc, 0")
    def probe_addr(kh, slots):
        mains = [jx for jx in slots if ORD[kh][jx] < 16]
        a(f"v_mov_b32 v{t+3}, {ORD[kh][mains[0]]*1024 + 16384 + 1020}")
        a(f"v_lshlrev_b32 v{PA}, 11, v{L}")
        a(f"v_add_u32 v{PA}, v{t+3}, v{PA}")
        return (1 << min(len(mains), 4)) - 1
    def probe_issue(mask):
        save_exec(f"{mask:#x}")
        a(f"buffer_load_dword v{PB}, v{PA}, {WS}, s{S_PM} offen sc1")
        rest_exec()
    def probe_loop(mask, name, first_issued):
        save_exec(f"{mask:#x}")
        a(f"s_mov_b32 s{S_CNT}, 0")
        if first_issued: a(f"s_branch {name}_PW")
        a.lab(name + "_P")
        a(f"buffer_load_dword v{PB}, v{PA}, {WS}, s{S_PM} offen sc1")
        a.lab(name + "_PW")
        a(f"s_add_u32 s{S_CNT}, s{S_CNT}, 1")
        a("s_waitcnt vmcnt(0)")
        a(f"v_cmp_eq_u32 vcc, -1, v{PB}")
        a("s_nop 1")
        a("s_cmp_eq_u64 vcc, 0")
        a(f"s_cbranch_scc1 {name}_PO")
        a(f"s_cmp_lt_u32 s{S_CNT}, 2000000")
        a(f"s_cbranch_scc1 {name}_P")
        a.lab(name + "_PO")
        rest_exec()
    def load_validate_loop(kh, slots, name):
        a(f"s_mov_b32 s{S_N}, 0")
        a.lab(name + "_L")
        loads(kh, slots)
        validate(kh, slots, 0)
        a(f"s_cbranch_scc1 {name}_OK")
        a(f"s_add_u32 s{S_N}, s{S_N}, 1")
        a(f"s_cmp_lt_u32 s{S_N}, 100000")
        a(f"s_cbranch_scc1 {name}_L")
        a.lab(name + "_OK")
    def path(kh):
        K = f"K{kh}"
        G, R = list(range(4)), list(range(4, 9))
        for rd in wreads(ORD[kh][0], kh, WF0): a(rd)
        ts(10)
        a(f"s_lshr_b32 s{S_T0}, 0x55AA, s{S_HP}")
        a(f"s_bitcmp1_b32 s{S_T0}, 0")
        a(f"s_cbranch_scc1 L_SG{K}_GO")
        mk = probe_addr(kh, G)
        probe_loop(mk, f"L_SG{K}", False)
        a.lab(f"L_SG{K}_GO")
        load_validate_loop(kh, G, f"L_SGV{K}")
        mk = probe_addr(kh, R)
        a(f"s_lshr_b32 s{S_T0}, 0x55AA, s{S_HP}")
        a(f"s_bitcmp1_b32 s{S_T0}, 0")
        a(f"s_cbranch_scc0 L_SR{K}_EARLY")
        loads(kh, R)
        mfm(kh, G, [0]*4, 0, None, novm=True)
        ts(9)
        lds_wait(a, f"L_WOB{K}", CNTOA, 8)
        validate(kh, R, 0)
        a(f"s_cbranch_scc1 L_SRV{K}_OK")
        probe_loop(mk, f"L_SS{K}", False)
        a(f"s_branch L_SR{K}_LV")
        a.lab(f"L_SR{K}_EARLY")
        probe_issue(mk)
        mfm(kh, G, [0]*4, 0, None, novm=True)
        ts(9)
        lds_wait(a, f"L_WOA{K}", CNTOA, 8)
        probe_loop(mk, f"L_SR{K}", True)
        a.lab(f"L_SR{K}_LV")
        load_validate_loop(kh, R, f"L_SRV{K}")
        mfm(kh, R, [0]*5, 0, None, novm=True)
        ts(11)
        send = AC + 20 if kh == 0 else AC
        keep = AC if kh == 0 else AC + 20
        a("s_nop 7")
        for Tn in range(5): a(f"ds_write_b128 v18, v[{send+4*Tn}:{send+4*Tn+3}] offset:{Tn*1024}")
        a("s_waitcnt lgkmcnt(0)")
        a("s_barrier")
        for Tn in range(5): a(f"ds_read_b128 v[{OF+4*Tn}:{OF+4*Tn+3}], v19 offset:{Tn*1024}")
        for Tn in range(5):
            a(f"s_waitcnt lgkmcnt({4-Tn})")
            add_out(OF+4*Tn, keep, Tn, OF+20+2*Tn)
    lds_inc(a, CNTOA, save_exec, rest_exec)
    a(f"s_cmp_eq_u32 s{S_HST}, 4")
    a("s_cbranch_scc0 L_P3C0")
    a("s_waitcnt vmcnt(2)")
    a(f"v_mov_b32 v{PF}, v{V_TG+1}")
    a("s_branch L_P3C1")
    a.lab("L_P3C0")
    poll_issue()
    a("s_waitcnt vmcnt(0)")
    a.lab("L_P3C1")
    poll_check("L_POLLC", 0xFFFF)
    if debug_stage == 2:
        a("s_waitcnt vmcnt(0)")
        a("s_branch L_FIN")
        return
    a(f"s_cmp_eq_u32 s{S_HEAD}, 0")
    a("s_cbranch_scc0 L_P3K1")
    path(0)
    a("s_branch L_FIN")
    a.lab("L_P3K1")
    path(1)
    a(f"s_cmp_lg_u32 s{S_HP}, 0")
    a("s_cbranch_scc1 L_FIN")
    a(f"s_cmp_lg_u32 s{S_WID}, 4")
    a("s_cbranch_scc1 L_FIN")
    a(f"v_mov_b32 v{t}, 0")
    a(f"v_mov_b32 v{t+1}, s{S_TAGO}")
    a(f"s_mov_b64 exec, 1")
    a(f"buffer_store_dword v{t+1}, v{t}, {WS}, s{S_OFS} offen sc1")

if __name__ == "__main__":
    import argparse
    p = argparse.ArgumentParser(); p.add_argument("--debug", type=int, default=0)
    p.add_argument("--timing", action="store_true"); p.add_argument("--exp", default=""); p.add_argument("-o", default="/dev/stdout")
    args = p.parse_args()
    open(args.o, "w").write(gen(args.debug, args.timing, args.exp))
```

```python
import sys, math, struct

NAME = "concat_heads__sliding_block__sliding_block__prompt"

STAGE   = 49152
WO_BASE = 0
KV_OWN  = 82944
KV_HALO = 119808
Q_BASE  = 119808
MISC    = 156672
TAGS_LDS = MISC + 2048
CNT2, CNT1, CNTQ, CNTOB, CNTOA = TAGS_LDS+12, TAGS_LDS+16, TAGS_LDS+20, TAGS_LDS+24, TAGS_LDS+28
LDS_TOTAL = 163840
TILE    = 4608
QTILE   = 2304
WS_KV   = 0
WS_O    = 256*36864
WS_OR   = WS_O + 16*262144
WS_FLAG = WS_OR + 16*32768
WS_OF   = WS_FLAG + 65536
TIMING_OFF = 24<<20
TAG_INC = 0x9E3779B1
NEG     = 0xFF61B1E6
QSCALE  = (18.0 ** -0.5) * math.log2(math.e)
def f32bits(x): return struct.unpack("<I", struct.pack("<f", x))[0]

class Asm:
    def __init__(self): self.l = []
    def __call__(self, s=""):
        for line in s.split("\n"):
            self.l.append("  " + line.strip())
    def lab(self, n): self.l.append(n + ":")
    def c(self, s): self.l.append("  ; " + s)
    def text(self): return "\n".join(self.l) + "\n"

S_X, S_W, S_WO, S_WS, S_OUT = 8, 12, 16, 20, 24
S_B, S_S, S_HP, S_WID = 28, 29, 30, 31
S_T0, S_T1, S_T2, S_T3, S_T4, S_T5 = 32, 33, 34, 35, 36, 37
S_I = 38
S_L = 39
S_TAGIN, S_TAGOUT, S_TAGO = 40, 41, 42
S_K, S_C, S_SB, S_XB, S_WB = 43, 44, 45, 46, 47
S_LX, S_LW = 48, 49
S_N = 50
S_U = 51
S_RET = 52
S_IDX, S_GRP, S_HEAD, S_M = 54, 55, 56, 57
S_SAVE = 58
S_CNT = 60
S_HOOK = 61
S_BAD = 62
S_RET2 = 64
S_MB = 66
S_HST = 67
S_H0, S_H1 = 68, 69
S_E = 98
S_SO, S_FI = 99, 100
S_OM, S_OR, S_OFS = 6, 7, 5

V_LANE = 1
T = 2
V_AX = 10
V_AW = 12
V_MASK = 20
V_SET0, V_SET1, V_ACC = 36, 80, 124
V_LDX, V_LDW = 36, 44
V_TG = 236
B_K, B_KR, B_V, MK_V = 240, 241, 242, 243
vEK, vEQ, vEV, vE6, vDr, vDt, vF, vC = 244, 245, 246, 247, 248, 249, 250, 252
V_TL = 254
QA_M, QA_R, QB_M, QB_R = 36, 40, 44, 48
OA, OB = 52, 68
VS, VE, VP = 84, 100, 116
VKF, VKR, VVA, VVB = 124, 128, 132, 136
A_K, A_KR, A_V, ST_V, ST_K = 10, 11, 12, 13, 14
VH = 140
V_WOV = 180
V_OA1, V_OA2 = 188, 189
V_PA = 184

def emit_masks_(a):
    t = T; L = V_LANE
    a(f"v_and_b32 v{t}, 31, v{L}")
    a(f"v_lshrrev_b32 v{t+1}, 5, v{L}")
    a(f"v_lshlrev_b32 v{t+1}, 2, v{t+1}")
    a(f"v_sub_u32 v{t}, v{t}, v{t+1}")
    a(f"v_mov_b32 v{t+1}, {NEG:#x}")
    for r in range(16):
        jj = (r & 3) + 8*(r >> 2)
        a(f"v_cmp_le_i32 vcc, {jj}, v{t}")
        a("s_nop 1")
        a(f"v_cndmask_b32_e64 v{V_MASK+r}, v{t+1}, 0, vcc")
def emit_p2_patterns_(a):
    t = T; L = V_LANE
    a(f"v_and_b32 v{t}, 31, v{L}")
    a(f"v_lshrrev_b32 v{t+1}, 5, v{L}")
    a(f"v_lshrrev_b32 v{t+2}, 2, v{t}")
    a(f"v_lshrrev_b32 v{t+3}, 3, v{t}")
    a(f"v_xor_b32 v{t+2}, v{t+2}, v{t+3}")
    a(f"v_xor_b32 v{t+2}, v{t+2}, v{t+1}")
    a(f"v_and_b32 v{t+2}, 1, v{t+2}")
    a(f"v_lshlrev_b32 v{t+2}, 4, v{t+2}")
    a(f"v_lshl_add_u32 v{t+2}, v{t}, 5, v{t+2}")
    a(f"s_lshl_b32 s{S_T0}, s{S_HEAD}, 10")
    a(f"v_add_u32 v{B_K}, s{S_T0}, v{t+2}")
    a(f"v_lshlrev_b32 v{B_KR}, 3, v{t}")
    a(f"v_add_u32 v{B_KR}, 2048, v{B_KR}")
    a(f"v_bfe_u32 v{t+2}, v{L}, 2, 2")
    a(f"v_lshl_add_u32 v{t+2}, v{t+1}, 2, v{t+2}")
    a(f"v_mul_u32_u24 v{t+2}, 72, v{t+2}")
    a(f"v_add_u32 v{t+2}, 2304, v{t+2}")
    a(f"v_and_b32 v{t+3}, 3, v{L}")
    a(f"v_lshlrev_b32 v{t+4}, 3, v{t+3}")
    a(f"s_mul_i32 s{S_T0}, s{S_HEAD}, 40")
    a(f"v_add3_u32 v{t+4}, v{t+4}, v{t+2}, s{S_T0}")
    a(f"v_add_u32 v{t+5}, 32, v{t+2}")
    a(f"v_bfe_u32 v{t+6}, v{L}, 4, 1")
    a(f"v_cmp_eq_u32 vcc, 1, v{t+6}")
    a(f"v_lshrrev_b32 v{t+7}, 1, v{t+3}")
    a(f"v_and_b32 v{t+7}, v{t+7}, v{t+6}")
    a(f"v_cndmask_b32 v{B_V}, v{t+4}, v{t+5}, vcc")
    a(f"v_cmp_eq_u32 vcc, 1, v{t+7}")
    a(f"v_mov_b32 v{t+5}, {MISC}")
    a(f"v_mov_b32 v{t+6}, -1")
    a(f"v_cndmask_b32 v{B_V}, v{B_V}, v{t+5}, vcc")
    a(f"v_cndmask_b32_e64 v{MK_V}, v{t+6}, 0, vcc")


def gen(debug_stage=0, timing=False, exp=''):
    a = Asm()
    t = T; L = V_LANE
    def ts(i, force=False):
        if timing and ('tsk' not in exp or force or i in (0, 8, 9, 10, 11)): a(f"{'s_memrealtime' if ('abs' in exp or 'hdbg' in exp) else 's_memtime'} s[{70+2*i}:{71+2*i}]")
    WS = f"s[{S_WS}:{S_WS+3}]"
    def save_exec(val):
        a(f"s_mov_b64 s[{S_SAVE}:{S_SAVE+1}], exec")
        a(f"s_mov_b64 exec, {val}")
    def rest_exec():
        a(f"s_mov_b64 exec, s[{S_SAVE}:{S_SAVE+1}]")

    a.l += [f"; Kernarg layout (72 bytes): A_x, A_wqkv, A_wo, B_x, B_wqkv, B_wo, out, debug, ws",
            f"; @launch grid=(256,1,1) block=(512,1,1) lds={LDS_TOTAL}"]
    a(f""".amdgcn_target "amdgcn-amd-amdhsa--gfx950"
.text
.globl {NAME}_kernel
.p2align 8
.type {NAME}_kernel,@function""")
    a.lab(f"{NAME}_kernel")
    a("s_cmp_ge_u32 s2, 256")
    a("s_cbranch_scc1 L_END")
    a(f"s_and_b32 s3, s2, 7")
    if 'xmap' in exp:
        a(f"s_bfe_u32 s{S_B}, s3, 0x10001")
    else:
        a(f"s_lshr_b32 s{S_B}, s3, 2")
    a(f"s_mul_i32 s{S_T0}, s{S_B}, 24")
    a(f"s_add_u32 s4, s0, s{S_T0}")
    a(f"s_addc_u32 s5, s1, 0")
    a(f"s_load_dwordx2 s[{S_X}:{S_X+1}], s[4:5], 0")
    a(f"s_load_dwordx2 s[{S_W}:{S_W+1}], s[4:5], 8")
    a(f"s_load_dwordx2 s[{S_WO}:{S_WO+1}], s[4:5], 16")
    a(f"s_load_dwordx2 s[{S_OUT}:{S_OUT+1}], s[0:1], 48")
    a(f"s_load_dwordx2 s[{S_WS}:{S_WS+1}], s[0:1], 64")
    if timing:
        for i in range(13): a(f"s_mov_b32 s{70+2*i}, 0")
    ts(0)
    a(f"s_lshr_b32 s{S_I}, s2, 3")
    if 'xmap' in exp:
        a(f"s_and_b32 s{S_T2}, s3, 1")
        a(f"s_lshl_b32 s{S_T2}, s{S_T2}, 2")
        a(f"s_and_b32 s{S_T3}, s{S_I}, 3")
        a(f"s_add_u32 s{S_S}, s{S_T2}, s{S_T3}")
        a(f"s_lshr_b32 s{S_T4}, s{S_I}, 2")
        a(f"s_cmp_lt_u32 s3, 4")
        a(f"s_mov_b32 s{S_T2}, 0xFDB96420")
        a(f"s_cselect_b32 s{S_T2}, 0xECA87531, s{S_T2}")
        a(f"s_lshl_b32 s{S_T0}, s{S_T4}, 2")
        a(f"s_lshr_b32 s{S_T2}, s{S_T2}, s{S_T0}")
        a(f"s_and_b32 s{S_HP}, s{S_T2}, 15")
    else:
        a(f"s_lshr_b32 s{S_T2}, s3, 1")
        a(f"s_and_b32 s{S_T2}, s{S_T2}, 1")
        a(f"s_lshl_b32 s{S_T2}, s{S_T2}, 2")
        a(f"s_and_b32 s{S_T3}, s{S_I}, 3")
        a(f"s_add_u32 s{S_S}, s{S_T2}, s{S_T3}")
        a(f"s_and_b32 s{S_T2}, s3, 1")
        a(f"s_lshl_b32 s{S_T2}, s{S_T2}, 3")
        a(f"s_lshr_b32 s{S_T4}, s{S_I}, 2")
        a(f"s_add_u32 s{S_HP}, s{S_T2}, s{S_T4}")
    a(f"s_lshl_b32 s{S_T3}, s{S_T3}, 1")
    a(f"s_add_u32 s{S_C}, s{S_T4}, s{S_T3}")
    a(f"s_cmp_ge_u32 s{S_C}, 9")
    a(f"s_cselect_b32 s{S_T3}, 9, 0")
    a(f"s_sub_u32 s{S_C}, s{S_C}, s{S_T3}")
    if 'norot' in exp: a(f"s_mov_b32 s{S_C}, 0")
    for key, mul in (('rot2', 2), ('rot3', 3)):
        if key in exp or (key == 'rot2' and 'rot' not in exp):
            a(f"s_lshr_b32 s{S_C}, s{S_T4}, 1")
            a(f"s_and_b32 s{S_T3}, s{S_I}, 3")
            a(f"s_add_u32 s{S_C}, s{S_C}, s{S_T3}")
            a(f"s_mul_i32 s{S_C}, s{S_C}, {mul}")
            for _ in range(2):
                a(f"s_cmp_ge_u32 s{S_C}, 9")
                a(f"s_cselect_b32 s{S_T3}, 9, 0")
                a(f"s_sub_u32 s{S_C}, s{S_C}, s{S_T3}")
    if 'rot4' in exp:
        a(f"s_lshr_b32 s{S_C}, s{S_T4}, 2")
        a(f"s_and_b32 s{S_T3}, s{S_I}, 3")
        a(f"s_lshr_b32 s{S_T3}, s{S_T3}, 1")
        a(f"s_add_u32 s{S_C}, s{S_C}, s{S_T3}")
        a(f"s_mul_i32 s{S_C}, s{S_C}, 3")
    a(f"s_lshl_b32 s{S_T0}, s{S_B}, 4")
    a(f"s_add_u32 s{S_T0}, s{S_T0}, s{S_HP}")
    a(f"s_lshl_b32 s{S_T0}, s{S_T0}, 3")
    a(f"s_add_u32 s{S_IDX}, s{S_T0}, s{S_S}")
    a(f"s_lshl_b32 s{S_T0}, s{S_B}, 3")
    a(f"s_add_u32 s{S_GRP}, s{S_T0}, s{S_S}")
    a(f"v_lshrrev_b32 v{t}, 6, v0")
    a(f"v_and_b32 v{L}, 63, v0")
    a(f"v_readfirstlane_b32 s{S_WID}, v{t}")
    for (r, n) in ((S_X, 2359296), (S_W, 1990656), (S_WO, 663552), (S_WS, 268435456), (S_OUT, 4718592)):
        a(f"s_mov_b32 s{r+2}, {n}")
        a(f"s_mov_b32 s{r+3}, 0x00020000")
    a(f"s_and_b32 s{S_M}, s{S_WID}, 3")
    a(f"s_lshr_b32 s{S_HEAD}, s{S_WID}, 2")
    a(f"s_sub_u32 s{S_MB}, 7, s{S_M}")
    a(f"s_lshl_b32 s{S_T0}, s{S_GRP}, 18")
    a(f"s_add_u32 s{S_T0}, s{S_T0}, {WS_O}")
    a(f"s_lshl_b32 s{S_T1}, s{S_HP}, 10")
    a(f"s_lshl_b32 s{S_T2}, s{S_HEAD}, 9")
    a(f"s_add_u32 s{S_T1}, s{S_T1}, s{S_T2}")
    a(f"s_add_u32 s{S_OM}, s{S_T1}, s{S_T0}")
    a(f"s_lshl_b32 s{S_T0}, s{S_GRP}, 15")
    a(f"s_add_u32 s{S_T0}, s{S_T0}, {WS_OR}")
    a(f"s_lshl_b32 s{S_T1}, s{S_HP}, 1")
    a(f"s_add_u32 s{S_T1}, s{S_T1}, s{S_HEAD}")
    a(f"s_lshl_b32 s{S_T1}, s{S_T1}, 10")
    a(f"s_add_u32 s{S_OR}, s{S_T1}, s{S_T0}")
    a(f"s_lshl_b32 s{S_OFS}, s{S_GRP}, 12")
    a(f"s_add_u32 s{S_OFS}, s{S_OFS}, {WS_OF}")
    a(f"s_cmp_lt_u32 s{S_WID}, 4")
    a("s_cbranch_scc1 L_COMPUTE")

    emit_masks = lambda: emit_masks_(a)
    emit_p2_patterns = lambda: emit_p2_patterns_(a)

    a(f"s_sub_u32 s{S_L}, s{S_WID}, 4")
    a(f"v_lshrrev_b32 v{t}, 3, v{L}")
    a(f"v_mul_u32_u24 v{t}, 1152, v{t}")
    a(f"v_lshrrev_b32 v{t+1}, 4, v{L}")
    a(f"v_and_b32 v{t+2}, 7, v{L}")
    a(f"v_xor_b32 v{t+3}, v{t+2}, v{t+1}")
    a(f"v_lshl_add_u32 v{V_AX}, v{t+3}, 4, v{t}")
    a(f"v_xor_b32 v{t+3}, 4, v{t+3}")
    a(f"v_lshl_add_u32 v{V_AX+1}, v{t+3}, 4, v{t}")
    a(f"s_mul_i32 s{S_T0}, s{S_HP}, 72")
    a(f"s_and_b32 s{S_T0}, s{S_T0}, 0xfffffff0")
    a(f"v_and_b32 v{t+2}, 15, v{L}")
    a(f"v_mul_u32_u24 v{t+4}, 3456, v{t+1}")
    a(f"v_add_u32 v{t+4}, s{S_T0}, v{t+4}")
    for var in range(2):
        a(f"v_lshlrev_b32 v{t+3}, 1, v{t+1}")
        a(f"v_sub_u32 v{t+3}, v{t+2}, v{t+3}")
        if var: a(f"v_subrev_u32 v{t+3}, 8, v{t+3}")
        a(f"v_and_b32 v{t+3}, 15, v{t+3}")
        a(f"v_min_u32 v{t+3}, 14, v{t+3}")
        a(f"v_mul_u32_u24 v{t+5}, 13, v{t+3}")
        a(f"v_lshrrev_b32 v{t+5}, 6, v{t+5}")
        a(f"v_mul_u32_u24 v{t+6}, 5, v{t+5}")
        a(f"v_sub_u32 v{t+6}, v{t+3}, v{t+6}")
        a(f"v_mul_u32_u24 v{t+5}, 1152, v{t+5}")
        a(f"v_lshl_add_u32 v{t+6}, v{t+6}, 4, v{t+5}")
        a(f"v_add_u32 v{V_AX+2+var}, v{t+4}, v{t+6}")
    for i in range(8):
        a(f"v_add_u32 v{V_LDX+i}, {i*9216-(i&3)*1024}, v{V_AX+(i&1)}")
    for i in range(4):
        a(f"v_add_u32 v{V_LDW+i}, {i*4*3456-i*1024}, v{V_AX+2+(i>>1)}")
    a(f"s_lshl_b32 s{S_T0}, s{S_S}, 8")
    a(f"s_lshl_b32 s{S_T1}, s{S_L}, 6")
    a(f"s_add_u32 s{S_T0}, s{S_T0}, s{S_T1}")
    a(f"s_mul_i32 s{S_XB}, s{S_T0}, 1152")
    a(f"s_mul_i32 s{S_WB}, s{S_L}, {16*3456}")
    a(f"s_lshl_b32 s{S_LX}, s{S_L}, 13")
    a(f"s_lshl_b32 s{S_LW}, s{S_L}, 12")
    a(f"s_add_u32 s{S_LW}, s{S_LW}, 32768")
    a(f"s_mov_b32 s{S_SB}, 0")
    def chunk_pre():
        a(f"s_lshl_b32 s{S_T0}, s{S_C}, 7")
        a(f"s_add_u32 s{S_T0}, s{S_T0}, s{S_XB}")
        a(f"s_mul_i32 s{S_T1}, s{S_C}, {64*3456}")
        a(f"s_add_u32 s{S_T1}, s{S_T1}, s{S_WB}")
        a(f"s_add_u32 s{S_T2}, s{S_SB}, s{S_LW}")
        a(f"s_add_u32 s{S_T3}, s{S_SB}, s{S_LX}")
        a(f"s_add_u32 s{S_C}, s{S_C}, 1")
        a(f"s_cmp_eq_u32 s{S_C}, 9")
        a(f"s_cselect_b32 s{S_C}, 0, s{S_C}")
        a(f"s_add_u32 s{S_SB}, s{S_SB}, {STAGE}")
        a(f"s_cmp_eq_u32 s{S_SB}, {3*STAGE}")
        a(f"s_cselect_b32 s{S_SB}, 0, s{S_SB}")
    def chunk_w():
        a(f"s_mov_b32 m0, s{S_T2}")
        a("s_nop 0")
        for i in range(4):
            a(f"buffer_load_dwordx4 v{V_LDW+i}, s[{S_W}:{S_W+3}], s{S_T1} offen offset:{i*1024} lds")
    def chunk_x(lo, hi):
        for i in range(lo, hi):
            if i == lo or i == 4:
                a(f"s_add_u32 m0, s{S_T3}, {(i&~3)*1024}")
                a("s_nop 0")
            a(f"buffer_load_dwordx4 v{V_LDX+i}, s[{S_X}:{S_X+3}], s{S_T0} offen offset:{(i&3)*1024} lds")
    chunk_pre()
    a("s_waitcnt lgkmcnt(0)")
    chunk_w(); chunk_x(0, 8)
    chunk_pre(); chunk_w(); chunk_x(0, 2)
    a("s_waitcnt vmcnt(6)")
    a("s_barrier")
    chunk_x(2, 8)
    chunk_pre()
    a(f"s_mov_b32 s{S_K}, 2")
    a.lab("L_LD")
    chunk_w(); chunk_x(0, 8)
    chunk_pre()
    a(f"s_add_u32 s{S_K}, s{S_K}, 1")
    a(f"s_cmp_lt_u32 s{S_K}, 9")
    a("s_waitcnt vmcnt(12)")
    a("s_barrier")
    a("s_cbranch_scc1 L_LD")
    a(f"s_lshl_b32 s{S_T0}, s{S_L}, 6")
    a(f"v_add_u32 v{t}, s{S_T0}, v{L}")
    a(f"v_mul_u32_u24 v{t+1}, 7282, v{t}")
    a(f"v_lshrrev_b32 v{t+1}, 16, v{t+1}")
    a(f"v_mul_u32_u24 v{t+2}, 9, v{t+1}")
    a(f"v_sub_u32 v{t+2}, v{t}, v{t+2}")
    a(f"v_mul_u32_u24 v{t+1}, 1152, v{t+1}")
    a(f"v_lshl_add_u32 v{t+1}, v{t+2}, 7, v{t+1}")
    a(f"s_mul_i32 s{S_T0}, s{S_I}, {18*1152}")
    a(f"v_cmp_gt_u32 vcc, 162, v{t}")
    a(f"v_cndmask_b32_e64 v{t+1}, 0, v{t+1}, vcc")
    a(f"buffer_load_dword v255, v{t+1}, s[{S_WO}:{S_WO+3}], s{S_T0} offen")
    emit_masks()
    emit_p2_patterns()
    a(f"v_mul_u32_u24 v{t+1}, 7282, v{L}")
    a(f"v_lshrrev_b32 v{t+1}, 16, v{t+1}")
    a(f"v_mul_u32_u24 v{t+2}, 9, v{t+1}")
    a(f"v_sub_u32 v{t+2}, v{L}, v{t+2}")
    a(f"v_mul_u32_u24 v{t+1}, 1152, v{t+1}")
    a(f"v_lshl_add_u32 v{t+1}, v{t+2}, 4, v{t+1}")
    a(f"s_and_b32 s{S_T0}, s{S_HP}, 7")
    a(f"s_mul_i32 s{S_T0}, s{S_T0}, 144")
    a(f"v_add_u32 v{V_WOV}, s{S_T0}, v{t+1}")
    for j in range(1, 4): a(f"v_add_u32 v{V_WOV+j}, {j*(8064-1008)}, v{V_WOV}")
    a(f"s_mul_i32 s{S_T0}, s{S_L}, {21*1008}")
    a(f"s_mul_i32 s{S_T1}, s{S_L}, {21*8064}")
    a("s_waitcnt vmcnt(1)")
    a("s_barrier")
    WO = f"s[{S_WO}:{S_WO+3}]"
    NW1 = 8 if 'wo8' not in exp else 4
    a(f"s_bitset0_b64 exec, 63")
    for j in range(21):
        if j == NW1:
            a(f"s_mov_b64 exec, -1")
            a("s_barrier")
            a(f"s_bitset0_b64 exec, 63")
        if j == 19:
            a(f"s_cmp_eq_u32 s{S_L}, 3")
            a("s_cbranch_scc0 L_WO_N")
            a(f"s_mov_b64 exec, 0x3ffff")
            a(f"buffer_load_dwordx4 v{V_WOV+(j&3)}, {WO}, s{S_T2} offen offset:{(j&3)*1008} lds")
            a("s_branch L_WO_DONE")
            a.lab("L_WO_N")
        if j % 4 == 0:
            a(f"s_add_u32 m0, s{S_T0}, {j*1008}")
            a(f"s_add_u32 s{S_T2}, s{S_T1}, {j*8064}")
        a(f"buffer_load_dwordx4 v{V_WOV+(j&3)}, {WO}, s{S_T2} offen offset:{(j&3)*1008} lds")
    a.lab("L_WO_DONE")
    a(f"s_mov_b64 exec, -1")
    for r in range(16):
        a(f"v_mov_b32 v{OA+r}, 0")
        a(f"v_mov_b32 v{OB+r}, 0")
    a(f"v_lshlrev_b32 v{V_PA}, 4, v{L}")
    a(f"s_lshl_b32 s{S_T0}, s{S_L}, 10")
    a(f"v_add_u32 v{V_PA}, s{S_T0}, v{V_PA}")
    a(f"v_add_u32 v{V_PA+1}, {KV_OWN}, v{V_PA}")
    a(f"s_mul_i32 s{S_T1}, s{S_IDX}, 36864")
    a("s_barrier")
    a(f"s_cmp_eq_u32 s{S_S}, 7")
    a("s_cbranch_scc1 L_NOPUB")
    order = [8, 7, 6, 5, 4, 3, 2, 1, 0]
    for c, i in enumerate(order):
        a(f"ds_read_b128 v[{VH+4*c}:{VH+4*c+3}], v{V_PA+1} offset:{i*4096}")
    for c, i in enumerate(order[:5]):
        a(f"s_waitcnt lgkmcnt({8-c})")
        a(f"s_add_u32 s{S_T2}, s{S_T1}, {i*4096}")
        a(f"buffer_store_dwordx4 v[{VH+4*c}:{VH+4*c+3}], v{V_PA}, {WS}, s{S_T2} offen sc1")
    a.lab("L_NOPUB")
    a("s_branch L_P2")

    a.lab("L_COMPUTE")
    if 'dry' in exp and 'nodry' not in exp:
        emit_p2_patterns()
        a(f"s_mov_b32 s{S_U}, 0")
        a(f"s_mov_b32 s{S_HOOK}, 100000")
        set_run(a, KV_OWN, None, [f"s_mov_b32 s{S_N}, 3"], TILE)
        a(f"s_bitcmp1_b32 s{S_WID}, 0")
        a("s_cbranch_scc1 L_DRYB")
        a(f"s_call_b64 s[{S_RET}:{S_RET+1}], L_RUNA")
        a("s_branch L_DRYE")
        a.lab("L_DRYB")
        a(f"s_call_b64 s[{S_RET}:{S_RET+1}], L_RUNB")
        a.lab("L_DRYE")
        a("s_waitcnt lgkmcnt(0)")
    a(f"v_and_b32 v{t}, 15, v{L}")
    a(f"v_lshrrev_b32 v{t+1}, 4, v{L}")
    a(f"v_lshrrev_b32 v{t+2}, 1, v{t}")
    a(f"s_lshl_b32 s{S_T0}, s{S_WID}, 6")
    a(f"v_add_u32 v{t+3}, s{S_T0}, v{t}")
    a(f"v_lshlrev_b32 v{t+3}, 7, v{t+3}")
    a(f"v_xor_b32 v{t+4}, v{t+1}, v{t+2}")
    a(f"v_lshlrev_b32 v{t+5}, 4, v{t+4}")
    a(f"v_add_u32 v{V_AX}, v{t+3}, v{t+5}")
    a(f"v_xor_b32 v{t+4}, 4, v{t+4}")
    a(f"v_lshlrev_b32 v{t+5}, 4, v{t+4}")
    a(f"v_add_u32 v{V_AX+1}, v{t+3}, v{t+5}")
    a(f"v_bfe_u32 v{t}, v{L}, 2, 2")
    a(f"v_and_b32 v{t+2}, 3, v{L}")
    a(f"v_and_b32 v{t+3}, 1, v{t+1}")
    a(f"v_lshl_add_u32 v{t+3}, v{t+3}, 2, v{t}")
    a(f"v_lshlrev_b32 v{t+3}, 5, v{t+3}")
    a(f"v_lshl_add_u32 v{t+4}, v{t+1}, 3, v{t}")
    a(f"v_lshlrev_b32 v{t+4}, 8, v{t+4}")
    a(f"v_add_u32 v{t+4}, 32768, v{t+4}")
    a(f"v_lshlrev_b32 v{t+5}, 3, v{t+2}")
    a(f"s_and_b32 s{S_T1}, s{S_HP}, 1")
    a(f"s_lshl_b32 s{S_T1}, s{S_T1}, 3")
    a(f"v_add3_u32 v{t+5}, v{t+5}, v{t+3}, s{S_T1}")
    for Tn in range(6):
        off = 80*(Tn >> 1) + (40 if Tn & 1 else 0)
        a(f"v_add_u32 v{t+6}, {off}, v{t+5}")
        a(f"v_and_b32 v{t+6}, 255, v{t+6}")
        a(f"v_add_u32 v{V_AW+Tn}, v{t+4}, v{t+6}")
    a(f"v_min_u32 v{t+6}, 2, v{t+2}")
    a(f"v_mul_u32_u24 v{t+6}, 80, v{t+6}")
    a(f"v_add3_u32 v{t+6}, v{t+6}, v{t+3}, s{S_T1}")
    a(f"v_add_u32 v{t+6}, 32, v{t+6}")
    a(f"v_and_b32 v{t+6}, 255, v{t+6}")
    a(f"v_add_u32 v{V_AW+6}, v{t+4}, v{t+6}")
    a(f"v_and_b32 v{t}, 15, v{L}")
    a(f"v_lshrrev_b32 v{t+1}, 4, v{L}")
    a(f"v_and_b32 v{t+2}, 1, v{t+1}")
    a(f"v_lshl_add_u32 v{t+2}, v{t+2}, 4, v{t}")
    a(f"v_lshrrev_b32 v{t+3}, 2, v{t}")
    a(f"v_lshrrev_b32 v{t+4}, 3, v{t}")
    a(f"v_xor_b32 v{t+3}, v{t+3}, v{t+4}")
    a(f"v_lshrrev_b32 v{t+4}, 1, v{t+1}")
    a(f"v_xor_b32 v{t+3}, v{t+3}, v{t+4}")
    a(f"v_and_b32 v{t+3}, 1, v{t+3}")
    a(f"v_lshlrev_b32 v{t+3}, 4, v{t+3}")
    a(f"v_lshl_add_u32 v{t+3}, v{t+2}, 5, v{t+3}")
    a(f"s_mul_i32 s{S_T0}, s{S_WID}, {2*TILE}")
    a(f"s_add_u32 s{S_T0}, s{S_T0}, {KV_OWN}")
    a(f"s_mul_i32 s{S_T1}, s{S_WID}, {2*QTILE}")
    a(f"s_add_u32 s{S_T1}, s{S_T1}, {Q_BASE}")
    a(f"v_add_u32 v{vEK}, s{S_T0}, v{t+3}")
    a(f"v_add_u32 v{vEQ}, s{S_T1}, v{t+3}")
    a(f"v_mul_u32_u24 v{t+4}, 72, v{t}")
    a(f"v_lshl_add_u32 v{t+5}, v{t+1}, 3, v{t+4}")
    a(f"v_add_u32 v{t+5}, 2304, v{t+5}")
    a(f"v_add_u32 v{vEV}, s{S_T0}, v{t+5}")
    a(f"v_lshlrev_b32 v{t+5}, 3, v{t}")
    a(f"v_add_u32 v{t+5}, 2048, v{t+5}")
    a(f"v_add_u32 v{t+6}, s{S_T1}, v{t+5}")
    a(f"v_add_u32 v{t+7}, s{S_T0}, v{t+5}")
    a(f"v_add_u32 v{t+4}, {2304+32}, v{t+4}")
    a(f"v_add_u32 v{t+4}, s{S_T0}, v{t+4}")
    a(f"v_mov_b32 v{vDr}, 128")
    a(f"v_mov_b32 v{vDt}, {TILE}")
    a(f"v_mov_b32 v{vF}, 1.0")
    a(f"v_mov_b32 v{vE6}, v{t+7}")
    a(f"v_cmp_eq_u32 vcc, 0, v{t+1}")
    a(f"v_mov_b32 v{t+5}, {QTILE}")
    a(f"v_mov_b32 v{vC}, {f32bits(QSCALE):#x}")
    a(f"v_cndmask_b32 v{vE6}, v{vE6}, v{t+6}, vcc")
    a(f"v_cndmask_b32 v{vDt}, v{vDt}, v{t+5}, vcc")
    a(f"v_cndmask_b32 v{vF}, v{vF}, v{vC}, vcc")
    a(f"v_cmp_eq_u32 vcc, 2, v{t+1}")
    a(f"v_mov_b32 v{t+5}, 1152")
    a(f"v_mov_b32 v{vC+1}, v{vC}")
    a(f"v_cndmask_b32 v{vE6}, v{vE6}, v{t+4}, vcc")
    a(f"v_cndmask_b32 v{vDr}, v{vDr}, v{t+5}, vcc")
    a(f"v_mov_b32 v{vF+1}, v{vF}")
    a("s_waitcnt lgkmcnt(0)")
    if 'nocp' not in exp:
        a(f"s_cmp_lg_u32 s{S_WID}, 3")
        a("s_cbranch_scc1 L_NOCP")
        a(f"s_getpc_b64 s[{S_RET}:{S_RET+1}]")
        a.lab("L_PCREF")
        a(f"s_sub_u32 s{S_RET}, s{S_RET}, L_PCREF-{NAME}_kernel")
        a(f"s_subb_u32 s{S_RET+1}, s{S_RET+1}, 0")
        a(f"s_mul_i32 s{S_T0}, s{S_I}, {5*128}")
        a(f"v_lshlrev_b32 v{t}, 7, v{L}")
        a(f"v_add_u32 v{t}, s{S_T0}, v{t}")
        a(f"s_mov_b32 s{S_T1}, L_END-{NAME}_kernel")
        a(f"v_cmp_gt_u32 vcc, s{S_T1}, v{t}")
        a(f"s_and_b64 vcc, vcc, 31")
        a(f"s_and_saveexec_b64 s[{S_SAVE}:{S_SAVE+1}], vcc")
        a("s_cbranch_execz L_NOCP2")
        a(f"global_load_dword v{V_TL}, v{t}, s[{S_RET}:{S_RET+1}]")
        a.lab("L_NOCP2")
        rest_exec()
        a.lab("L_NOCP")
    a(f"s_cmp_lg_u32 s{S_WID}, 0")
    a("s_cbranch_scc1 L_NOG0")
    a(f"s_lshl_b32 s{S_T0}, s{S_IDX}, 8")
    a(f"s_add_u32 s{S_T0}, s{S_T0}, {WS_FLAG}")
    a(f"s_lshl_b32 s{S_T1}, s{S_GRP}, 12")
    a(f"s_add_u32 s{S_T1}, s{S_T1}, {WS_OF}")
    a(f"v_mov_b32 v{t}, 0")
    a(f"buffer_load_dword v{V_TG}, v{t}, {WS}, s{S_T0} offen sc1")
    a(f"s_sub_u32 s{S_T0}, s{S_T0}, 256")
    a(f"s_max_u32 s{S_T0}, s{S_T0}, {WS_FLAG}")
    a(f"buffer_load_dword v{V_TG+1}, v{t}, {WS}, s{S_T0} offen sc1")
    a(f"buffer_load_dword v{V_TG+2}, v{t}, {WS}, s{S_T1} offen sc1")
    a.lab("L_NOG0")
    for i in range(112):
        a(f"v_mov_b32 v{V_ACC+i}, 0")
    emit_masks()
    emit_p2_patterns()
    a(f"v_mov_b32 v{t+2}, 0x3f803f80")
    a(f"v_mov_b32 v{t+3}, 0x3f803f80")
    a(f"v_mul_u32_u24 v{t+4}, 576, v{L}")
    a(f"v_add_u32 v{t+4}, {MISC}, v{t+4}")
    save_exec(15)
    a(f"ds_write_b64 v{t+4}, v[{t+2}:{t+3}]")
    rest_exec()
    a(f"s_cmp_lg_u32 s{S_WID}, 0")
    a("s_cbranch_scc1 L_NOG1")
    a("s_waitcnt vmcnt(0)")
    for i in range(3): a(f"v_add_u32 v{V_TG+i}, {TAG_INC:#x}, v{V_TG+i}")
    a(f"v_mov_b32 v{V_TG+3}, 0")
    a(f"v_mov_b32 v{t+4}, {TAGS_LDS}")
    save_exec(1)
    a(f"ds_write_b128 v{t+4}, v[{V_TG}:{V_TG+3}]")
    for i in range(4): a(f"v_mov_b32 v{V_TG+i}, 0")
    a(f"ds_write_b128 v{t+4}, v[{V_TG}:{V_TG+3}] offset:16")
    rest_exec()
    a.lab("L_NOG1")
    a("s_waitcnt lgkmcnt(0)")
    a("s_barrier")
    if "tsh" not in exp and "tsj" not in exp: ts(1)
    def reads(setb, ks):
        xs = [f"ds_read_b128 v[{setb+4*mt}:{setb+4*mt+3}], v{V_AX+ks} offset:{mt*2048}" for mt in range(4)]
        ws = []
        for Tn in range(7):
            b = setb + 16 + 4*Tn
            ws.append(f"ds_read_b64_tr_b16 v[{b}:{b+1}], v{V_AW+Tn} offset:{ks*8192}")
            ws.append(f"ds_read_b64_tr_b16 v[{b+2}:{b+3}], v{V_AW+Tn} offset:{ks*8192+1024}")
        return [xs[0], ws[0], ws[1], xs[1], ws[2], ws[3], xs[2], ws[4], ws[5], xs[3]] + ws[6:]
    def mfmas(setb):
        m = []
        for Tn in range(7):
            for mt in range(4):
                d = V_ACC + (mt*7+Tn)*4
                m.append(f"v_mfma_f32_16x16x32_bf16 v[{d}:{d+3}], v[{setb+16+4*Tn}:{setb+16+4*Tn+3}], v[{setb+4*mt}:{setb+4*mt+3}], v[{d}:{d+3}]")
        return m
    def interleave(ms, extra, per=1):
        ri = 0
        for i, m in enumerate(ms):
            a(m)
            for _ in range(per):
                if ri < len(extra): a(extra[ri]); ri += 1
        while ri < len(extra):
            a(extra[ri]); ri += 1
    for i in range(4): a(f"v_mov_b32 v{V_TG+i}, -1")
    a(f"v_lshlrev_b32 v{V_TL+1}, 4, v{L}")
    a(f"s_lshl_b32 s{S_XB}, s{S_GRP}, 18")
    a(f"s_add_u32 s{S_XB}, s{S_XB}, {WS_O}")
    a(f"s_lshl_b32 s{S_T0}, s{S_WID}, 16")
    a(f"s_add_u32 s{S_XB}, s{S_XB}, s{S_T0}")
    a(f"s_lshl_b32 s{S_T0}, s{S_HP}, 10")
    a(f"s_add_u32 s{S_XB}, s{S_XB}, s{S_T0}")
    a(f"s_lshl_b32 s{S_WB}, s{S_GRP}, 15")
    a(f"s_add_u32 s{S_WB}, s{S_WB}, {WS_OR}")
    a(f"s_lshl_b32 s{S_T0}, s{S_HP}, 1")
    a(f"s_and_b32 s{S_T1}, s{S_WID}, 1")
    a(f"s_add_u32 s{S_T0}, s{S_T0}, s{S_T1}")
    a(f"s_lshl_b32 s{S_T0}, s{S_T0}, 10")
    a(f"s_add_u32 s{S_WB}, s{S_WB}, s{S_T0}")
    for rd in reads(V_SET0, 0): a(rd)
    a(f"s_mov_b32 s{S_K}, 0")
    a(f"s_mov_b32 s{S_SB}, 0")
    if 'tb' in exp: a(f"v_mov_b32 v{V_TL}, 0")
    a.lab("L_GEMM")
    a(f"s_cmp_ge_u32 s{S_K}, 5")
    a("s_cbranch_scc1 L_GEMM_NS")
    a(f"s_cmp_eq_u32 s{S_K}, 4")
    a(f"s_cselect_b32 s{S_XB}, s{S_WB}, s{S_XB}")
    a(f"buffer_store_dwordx4 v[{V_TG}:{V_TG+3}], v{V_TL+1}, {WS}, s{S_XB} offen sc1")
    a(f"s_add_u32 s{S_XB}, s{S_XB}, 16384")
    a.lab("L_GEMM_NS")
    a(f"s_cmp_eq_u32 s{S_K}, 7")
    a("s_cbranch_scc0 L_GEMM_NC")
    a(f"v_mov_b32 v{t}, {TAGS_LDS+8}")
    a(f"ds_read_b32 v{t+3}, v{t}")
    a("s_waitcnt vmcnt(0) lgkmcnt(0)")
    a(f"v_readfirstlane_b32 s{S_TAGO}, v{t+3}")
    oflag(a, "L_CLR", CNTOB, 128, save_exec, rest_exec, last=3)
    a.lab("L_GEMM_NC")
    a("s_waitcnt lgkmcnt(0)")
    if 'tb' in exp:
        a(f"s_sub_u32 s92, s92, s70")
        a(f"s_mov_b32 m0, s{S_K}")
        a("s_nop 4")
        a(f"v_writelane_b32 v{V_TL}, s92, m0")
    sal = [f"s_add_u32 s{S_SB}, s{S_SB}, 1", f"s_cmp_eq_u32 s{S_SB}, 3", f"s_mov_b32 s{S_T0}, {STAGE}",
           f"s_cselect_b32 s{S_T0}, {(-2*STAGE) & 0xffffffff}, s{S_T0}", f"s_cselect_b32 s{S_SB}, 0, s{S_SB}"]
    interleave(mfmas(V_SET0), reads(V_SET1, 1) + sal)
    a("s_waitcnt lgkmcnt(0)")
    a("s_barrier")
    if 'tb' in exp: a("s_memtime s[92:93]")
    rd = reads(V_SET0, 0)
    adds = [f"v_add_u32 v{V_AX+i}, s{S_T0}, v{V_AX+i}" for i in range(9)]
    ex = [adds[0], adds[2], rd[0], rd[1], rd[2], adds[3], rd[3], rd[4], rd[5], adds[4], rd[6], rd[7], rd[8], rd[9],
          adds[5], rd[10], rd[11], adds[6], rd[12], rd[13], adds[7], rd[14], rd[15], adds[8], rd[16], rd[17], adds[1],
          f"s_add_u32 s{S_K}, s{S_K}, 1", f"s_cmp_lt_u32 s{S_K}, 9"]
    ms = mfmas(V_SET1)
    ri = 0
    for i, m in enumerate(ms):
        a(m)
        n = 2 if i < 6 else 1
        for _ in range(n):
            if ri < len(ex): a(ex[ri]); ri += 1
    assert ri == len(ex)
    a("s_cbranch_scc1 L_GEMM")
    if "tsh" not in exp and "tsj" not in exp: ts(2)
    a.c("phase-1 epilogue")
    a("s_waitcnt lgkmcnt(0)")
    acc = lambda mt, Tn: V_ACC + (mt*7+Tn)*4
    e = [V_SET0]
    def qk_tile(Tn, base_reg, pstride, hoff):
        for p in range(2):
            R = e[0]; e[0] += 4
            da, db = acc(2*p, Tn), acc(2*p+1, Tn)
            a(f"v_cvt_pk_bf16_f32 v{R}, v{da}, v{da+1}")
            a(f"v_cvt_pk_bf16_f32 v{R+2}, v{db}, v{db+1}")
            a(f"v_cvt_pk_bf16_f32 v{R+1}, v{da+2}, v{da+3}")
            a(f"v_cvt_pk_bf16_f32 v{R+3}, v{db+2}, v{db+3}")
            a("s_nop 0")
            a(f"v_permlane16_swap_b32 v{R}, v{R+2}")
            a(f"v_permlane16_swap_b32 v{R+1}, v{R+3}")
            a(f"ds_write_b128 v{base_reg}, v[{R}:{R+3}] offset:{p*pstride+hoff}")
    a("s_nop 3")
    qk_tile(2, vEK, TILE, 0)
    qk_tile(3, vEK, TILE, 1024)
    for Tn in (4, 5):
        for mt in range(4):
            R = e[0]; e[0] += 2
            d = acc(mt, Tn)
            a(f"v_cvt_pk_bf16_f32 v{R}, v{d}, v{d+1}")
            a(f"v_cvt_pk_bf16_f32 v{R+1}, v{d+2}, v{d+3}")
            a(f"ds_write_b64 v{vEV}, v[{R}:{R+1}] offset:{(mt>>1)*TILE + (mt&1)*1152 + (40 if Tn==5 else 0)}")
    R6 = e[0]; e[0] += 8
    for mt in range(4):
        d = acc(mt, 6)
        a(f"v_pk_mul_f32 v[{d}:{d+1}], v[{d}:{d+1}], v[{vF}:{vF+1}]")
        a(f"v_pk_mul_f32 v[{d+2}:{d+3}], v[{d+2}:{d+3}], v[{vF}:{vF+1}]")
    for mt in range(4):
        d = acc(mt, 6)
        a(f"v_cvt_pk_bf16_f32 v{R6+2*mt}, v{d}, v{d+1}")
        a(f"v_cvt_pk_bf16_f32 v{R6+2*mt+1}, v{d+2}, v{d+3}")
    a(f"v_add_u32 v{t}, v{vE6}, v{vDr}")
    a(f"v_add_u32 v{t+1}, v{vE6}, v{vDt}")
    a(f"v_add_u32 v{t+2}, v{t+1}, v{vDr}")
    a(f"s_mov_b64 s[{S_SAVE}:{S_SAVE+1}], exec")
    a(f"s_mov_b32 exec_hi, 0x0000ffff")
    a(f"ds_write_b64 v{vE6}, v[{R6}:{R6+1}]")
    a(f"ds_write_b64 v{t}, v[{R6+2}:{R6+3}]")
    a(f"ds_write_b64 v{t+1}, v[{R6+4}:{R6+5}]")
    a(f"ds_write_b64 v{t+2}, v[{R6+6}:{R6+7}]")
    rest_exec()
    a("s_waitcnt lgkmcnt(0)")
    a("s_barrier")
    for mt in range(4):
        for Tn in (0, 1):
            d = acc(mt, Tn)
            a(f"v_pk_mul_f32 v[{d}:{d+1}], v[{d}:{d+1}], v[{vC}:{vC+1}]")
            a(f"v_pk_mul_f32 v[{d+2}:{d+3}], v[{d+2}:{d+3}], v[{vC}:{vC+1}]")
    e[0] = 84
    qk_tile(0, vEQ, QTILE, 0)
    qk_tile(1, vEQ, QTILE, 1024)
    for r in range(16):
        a(f"v_mov_b32 v{OA+r}, 0")
        a(f"v_mov_b32 v{OB+r}, 0")

    a.lab("L_P2")
    a(f"v_mov_b32 v{t}, {TAGS_LDS}")
    a(f"ds_read_b128 v[{V_TG}:{V_TG+3}], v{t}")
    a("s_waitcnt lgkmcnt(0)")
    a("s_barrier")
    ts(3)
    if debug_stage == 1:
        a(f"s_lshl_b32 s{S_T0}, s{S_IDX}, 16")
        a(f"v_lshlrev_b32 v{t}, 4, v0")
        for i in range(7):
            a(f"v_add_u32 v{t+1}, {KV_OWN + i*8192}, v{t}")
            a(f"ds_read_b128 v[40:43], v{t+1}")
            a("s_waitcnt lgkmcnt(0)")
            a(f"v_add_u32 v{t+2}, {i*8192}, v{t}")
            a(f"buffer_store_dwordx4 v[40:43], v{t+2}, {WS}, s{S_T0} offen")
            a("s_waitcnt vmcnt(0)")
        a("s_branch L_FIN")
    if debug_stage == 9:
        a("s_branch L_FIN")
    if debug_stage not in (1, 9):
        phase2(a, debug_stage, ts, exp, save_exec, rest_exec)
        phase3(a, debug_stage, ts, exp, save_exec, rest_exec)
    a.lab("L_FIN")
    if 'hdbg' in exp:
        a("s_waitcnt vmcnt(0) lgkmcnt(0)")
        a("s_memrealtime s[94:95]")
        a(f"s_load_dwordx2 s[{S_X}:{S_X+1}], s[0:1], 56")
        a("s_waitcnt lgkmcnt(0)")
        a(f"s_cmp_lg_u32 s{S_WID}, 4")
        a("s_cbranch_scc1 L_END")
        a(f"s_mov_b32 s{S_X+2}, 256")
        a(f"s_mov_b32 s{S_X+3}, 0x00020000")
        a("s_mov_b64 exec, 1")
        a("v_mov_b32 v2, 0")
        a("s_not_b32 s33, s70")
        a("v_mov_b32 v3, s33")
        a(f"buffer_atomic_umax v3, v2, s[{S_X}:{S_X+3}], 0 offen offset:0")
        a("v_mov_b32 v3, s70")
        a(f"buffer_atomic_umax v3, v2, s[{S_X}:{S_X+3}], 0 offen offset:4")
        for k, i in enumerate((3, 4, 5, 7, 8, 10, 9, 11, 12)):
            a(f"v_mov_b32 v{4+k}, s{70+2*i}")
            a(f"buffer_atomic_umax v{4+k}, v2, s[{S_X}:{S_X+3}], 0 offen offset:{8+4*k}")
        a("s_waitcnt vmcnt(0)")
        a("s_branch L_END")
    if timing:
        a("s_waitcnt vmcnt(0) lgkmcnt(0)")
        a(f"{'s_memrealtime' if ('abs' in exp or 'hdbg' in exp) else 's_memtime'} s[94:95]")
        a("s_waitcnt lgkmcnt(0)")
        a(f"s_lshl_b32 s{S_T0}, s2, 3")
        a(f"s_add_u32 s{S_T0}, s{S_T0}, s{S_WID}")
        a(f"s_lshl_b32 s{S_T0}, s{S_T0}, 6")
        a(f"s_add_u32 s{S_T0}, s{S_T0}, {TIMING_OFF}")
        for i in range(13):
            a(f"s_sub_u32 s{S_T1}, s{70+2*i}, s70" if (i and 'abs' not in exp) else f"s_mov_b32 s{S_T1}, s{70+2*i}")
            a(f"s_cmp_eq_u32 s{70+2*i}, 0")
            a(f"s_cselect_b32 s{S_T1}, 0, s{S_T1}")
            a(f"v_mov_b32 v{40+i}, s{S_T1}")
        if 'tb' in exp:
            a(f"v_lshlrev_b32 v2, 2, v{V_LANE}")
            a(f"s_add_u32 s{S_T1}, s{S_T0}, {1<<20}")
            a(f"s_mov_b64 exec, 0xffff")
            a(f"buffer_store_dword v{V_TL}, v2, {WS}, s{S_T1} offen")
        a(f"v_mov_b32 v2, 0")
        a(f"s_mov_b64 exec, 1")
        for i in range(3):
            a(f"buffer_store_dwordx4 v[{40+4*i}:{43+4*i}], v2, {WS}, s{S_T0} offen offset:{16*i}")
        a(f"buffer_store_dword v52, v2, {WS}, s{S_T0} offen offset:48")
        a("s_waitcnt vmcnt(0)")
    a.lab("L_END")
    a("s_endpgm")
    a(f""".section .rodata,"a"
.p2align 6
.amdhsa_kernel {NAME}_kernel
  .amdhsa_next_free_vgpr 256
  .amdhsa_next_free_sgpr 102
  .amdhsa_accum_offset 256
  .amdhsa_group_segment_fixed_size 0
  .amdhsa_kernarg_size 72
  .amdhsa_user_sgpr_count 2
  .amdhsa_user_sgpr_kernarg_segment_ptr 1
  .amdhsa_system_sgpr_workgroup_id_x 1
.end_amdhsa_kernel""")
    return a.text()

WS = f"s[{S_WS}:{S_WS+3}]"

def spin_poll(a, name, check_lines, load_line, limit=2000000, first_done=False):
    a(f"s_mov_b32 s{S_CNT}, 0")
    if first_done: a(f"s_branch {name}_W")
    a.lab(name)
    a(load_line)
    a.lab(name + "_W")
    a(f"s_add_u32 s{S_CNT}, s{S_CNT}, 1")
    a("s_waitcnt vmcnt(0)")
    for l in check_lines: a(l)
    a(f"s_cbranch_scc1 {name}_OK")
    a(f"s_cmp_lt_u32 s{S_CNT}, {limit}")
    a(f"s_cbranch_scc1 {name}")
    a.lab(name + "_OK")

def lds_inc(a, addr, save_exec, rest_exec, rtn=None):
    t = T
    a(f"v_mov_b32 v{t}, {addr}")
    a(f"v_mov_b32 v{t+1}, 1")
    save_exec(1)
    if rtn is None: a(f"ds_add_u32 v{t}, v{t+1}")
    else: a(f"ds_add_rtn_u32 v{rtn}, v{t}, v{t+1}")
    rest_exec()

def lds_wait(a, name, addr, val):
    t = T
    a(f"v_mov_b32 v{t}, {addr}")
    a(f"s_mov_b32 s{S_CNT}, 0")
    a.lab(name)
    a(f"ds_read_b32 v{t+1}, v{t}")
    a(f"s_add_u32 s{S_CNT}, s{S_CNT}, 1")
    a("s_waitcnt lgkmcnt(0)")
    a(f"v_readfirstlane_b32 s{S_T0}, v{t+1}")
    a(f"s_cmp_ge_u32 s{S_T0}, {val}")
    a(f"s_cbranch_scc1 {name}_OK")
    a(f"s_cmp_lt_u32 s{S_CNT}, 20000000")
    a(f"s_cbranch_scc1 {name}")
    a.lab(name + "_OK")

def hook_point(a, tag):
    a(f"s_add_u32 s{S_U}, s{S_U}, 1")
    a(f"s_cmp_lg_u32 s{S_U}, s{S_HOOK}")
    a(f"s_cbranch_scc1 {tag}")
    a(f"s_call_b64 s[{S_RET2}:{S_RET2+1}], L_HOOK")
    a.lab(tag)

def run_code(a, name, QM, QR, O, exp):
    cnt = [0]
    def qk1(creg):
        c = "0" if creg is None else f"v[{creg}:{creg+15}]"
        a(f"v_mfma_f32_32x32x16_bf16 v[{VS}:{VS+15}], v[{VKF}:{VKF+3}], v[{QM}:{QM+3}], {c}")
    def qk2():
        a(f"v_mfma_f32_32x32x16_bf16 v[{VS}:{VS+15}], v[{VKR}:{VKR+3}], v[{QR}:{QR+3}], v[{VS}:{VS+15}]")
    def pv(V, P):
        a(f"v_mfma_f32_32x32x16_bf16 v[{O}:{O+15}], v[{V}:{V+3}], v[{P}:{P+3}], v[{O}:{O+15}]")
    def kread():
        a(f"ds_read_b128 v[{VKF}:{VKF+3}], v{A_K}")
        a(f"ds_read_b64 v[{VKR}:{VKR+1}], v{A_KR}")
    def kstep():
        a(f"v_add_u32 v{A_K}, v{ST_K}, v{A_K}")
        a(f"v_add_u32 v{A_KR}, v{ST_K}, v{A_KR}")
    def vread(V, off):
        a(f"ds_read_b64_tr_b16 v[{V}:{V+1}], v{A_V} offset:{off}")
        a(f"ds_read_b64_tr_b16 v[{V+2}:{V+3}], v{A_V} offset:{off+576}")
    def cvt(j): a(f"v_cvt_pk_bf16_f32 v{VP+j}, v{VE+2*j}, v{VE+2*j+1}")
    def ex(r): a(f"v_exp_f32 v{VE+r}, v{VS+r}")
    def unit(D):
        if 'pf' in exp: a("s_setprio 1" if 'pfi' not in exp else "s_setprio 0")
        for r in range(8): ex(r)
        for j in range(4): cvt(j)
        ex(8); ex(9)
        a("s_waitcnt lgkmcnt(0)")
        pv(VVA, VP)
        for r in range(10, 16): ex(r)
        if 'pf' in exp: a("s_setprio 0" if 'pfi' not in exp else "s_setprio 1")
        if D:
            qk1(V_MASK if D == "mask" else None)
            for j in range(4, 8): cvt(j)
            vread(VVA, 0)
            qk2()
            kstep()
            kread()
            pv(VVB, VP+4)
            vread(VVB, 1152)
            a(f"v_add_u32 v{A_V}, v{ST_V}, v{A_V}")
        else:
            a("s_nop 0")
            for j in range(4, 8): cvt(j)
            a("s_nop 1")
            pv(VVB, VP+4)
    a.lab(name)
    kread()
    a(f"s_cmp_eq_u32 s{S_N}, 1")
    a(f"s_cbranch_scc1 {name}_M1")
    kstep()
    a("s_waitcnt lgkmcnt(0)")
    qk1(None); qk2()
    vread(VVA, 0); kread(); vread(VVB, 1152)
    a(f"v_add_u32 v{A_V}, v{ST_V}, v{A_V}")
    a(f"s_sub_u32 s{S_N}, s{S_N}, 2")
    a.lab(name + "_BT")
    a(f"s_cmp_eq_u32 s{S_N}, 0")
    a(f"s_cbranch_scc1 {name}_MK0")
    a(f"s_sub_u32 s{S_E}, s{S_HOOK}, s{S_U}")
    a(f"s_min_u32 s{S_E}, s{S_E}, s{S_N}")
    a(f"s_sub_u32 s{S_N}, s{S_N}, s{S_E}")
    a(f"s_add_u32 s{S_U}, s{S_U}, s{S_E}")
    a(f"s_sub_u32 s{S_E}, s{S_E}, 1")
    a.lab(name + "_LP")
    unit("plain")
    a(f"s_sub_u32 s{S_E}, s{S_E}, 1")
    a("s_nop 1")
    a(f"s_cbranch_scc0 {name}_LP")
    a(f"s_cmp_lg_u32 s{S_U}, s{S_HOOK}")
    a(f"s_cbranch_scc1 {name}_BT")
    a(f"s_call_b64 s[{S_RET2}:{S_RET2+1}], L_HOOK")
    a(f"s_branch {name}_BT")
    a.lab(name + "_MK0")
    a("s_nop 3")
    a.lab(name + "_MK")
    unit("mask")
    hook_point(a, f"{name}_H1")
    a("s_nop 1")
    a.lab(name + "_FN")
    unit(None)
    hook_point(a, f"{name}_H2")
    a(f"s_setpc_b64 s[{S_RET}:{S_RET+1}]")
    a.lab(name + "_M1")
    a("s_waitcnt lgkmcnt(0)")
    qk1(V_MASK); qk2()
    vread(VVA, 0); vread(VVB, 1152)
    a("s_nop 7")
    a(f"s_branch {name}_FN")

def set_run(a, region, tile_sreg, n_lines, step):
    a(f"s_mul_i32 s{S_T0}, s{tile_sreg}, {TILE}" if tile_sreg is not None else f"s_mov_b32 s{S_T0}, 0")
    a(f"s_add_u32 s{S_T0}, s{S_T0}, {region}")
    a(f"v_add_u32 v{A_K}, s{S_T0}, v{B_K}")
    a(f"v_add_u32 v{A_KR}, s{S_T0}, v{B_KR}")
    a(f"v_and_b32 v{A_V}, s{S_T0}, v{MK_V}")
    a(f"v_add_u32 v{A_V}, v{B_V}, v{A_V}")
    a(f"v_mov_b32 v{ST_K}, {step & 0xffffffff:#x}")
    a(f"v_and_b32 v{ST_V}, v{ST_K}, v{MK_V}")
    for l in n_lines: a(l)

F_MD, F_MF, F_M = 190, 206, 222
S_FQ, S_FT, S_FK, S_FP, S_FI2 = 32+12, 45, 46, 47, 48

def safety_check(a, O, isB, qb_sreg, tag):
    t = T
    a(f"v_max3_f32 v{t}, |v{O}|, |v{O+1}|, |v{O+2}|")
    for k in range(3, 11, 2): a(f"v_max3_f32 v{t}, v{t}, |v{O+k}|, |v{O+k+1}|")
    a(f"v_max_f32 v{t}, v{t}, |v{O+11}|".replace("v_max_f32", "v_max_f32_e64"))
    a(f"v_mov_b32 v{t+1}, 0x21800000")
    a(f"v_mov_b32 v{t+2}, 0x5d800000")
    a(f"v_mov_b32 v{t+3}, 0x7f000000")
    a(f"v_cmp_nge_f32 vcc, v{O+12}, v{t+1}")
    a(f"v_cmp_nle_f32 s[{S_BAD}:{S_BAD+1}], v{O+12}, v{t+2}")
    a(f"s_or_b64 vcc, vcc, s[{S_BAD}:{S_BAD+1}]")
    a(f"v_cmp_nlt_f32 s[{S_BAD}:{S_BAD+1}], v{t}, v{t+3}")
    a(f"s_or_b64 vcc, vcc, s[{S_BAD}:{S_BAD+1}]")
    a("s_cmp_eq_u64 vcc, 0")
    a(f"s_cbranch_scc1 L_SAFE{tag}")
    a(f"s_mov_b32 s{S_FQ}, s{qb_sreg}")
    if isB:
        for r in range(8): a(f"v_swap_b32 v{QA_M+r}, v{QB_M+r}")
        for r in range(16): a(f"v_swap_b32 v{OA+r}, v{OB+r}")
    a(f"s_call_b64 s[{S_RET}:{S_RET+1}], L_FB")
    if isB:
        for r in range(8): a(f"v_swap_b32 v{QA_M+r}, v{QB_M+r}")
        for r in range(16): a(f"v_swap_b32 v{OA+r}, v{OB+r}")
    a.lab(f"L_SAFE{tag}")

def fallback_code(a):
    t = T; L = V_LANE
    a.lab("L_FB")
    a(f"v_and_b32 v{t}, 31, v{L}")
    a(f"v_lshrrev_b32 v{t+1}, 5, v{L}")
    a(f"v_lshlrev_b32 v{t+1}, 2, v{t+1}")
    a(f"v_sub_u32 v{t}, v{t}, v{t+1}")
    a(f"v_mov_b32 v{t+1}, {NEG:#x}")
    for r in range(16):
        jj = (r & 3) + 8*(r >> 2)
        a(f"v_cmp_le_i32 vcc, {jj}, v{t}")
        a("s_nop 1")
        a(f"v_cndmask_b32_e64 v{F_MD+r}, v{t+1}, 0, vcc")
        a(f"v_sub_f32 v{F_MF+r}, v{t+1}, v{F_MD+r}")
    a(f"v_mov_b32 v{F_M}, 0xff800000")
    a(f"s_mov_b32 s{S_FP}, 0")
    a.lab("L_FB_PASS")
    a(f"s_mov_b32 s{S_FI2}, 0")
    a.lab("L_FB_OWN")
    a(f"s_mul_i32 s{S_FT}, s{S_FI2}, {TILE}")
    a(f"s_add_u32 s{S_FT}, s{S_FT}, {KV_OWN}")
    a(f"s_cmp_eq_u32 s{S_FI2}, s{S_FQ}")
    a(f"s_cselect_b32 s{S_FK}, 1, 0")
    a(f"s_call_b64 s[{S_RET2}:{S_RET2+1}], L_FB_TILE")
    a(f"s_add_u32 s{S_FI2}, s{S_FI2}, 1")
    a(f"s_cmp_le_u32 s{S_FI2}, s{S_FQ}")
    a("s_cbranch_scc1 L_FB_OWN")
    a(f"s_cmp_eq_u32 s{S_S}, 0")
    a("s_cbranch_scc1 L_FB_PEND")
    a(f"s_mov_b32 s{S_FI2}, s{S_FQ}")
    a.lab("L_FB_HALO")
    a(f"s_mul_i32 s{S_FT}, s{S_FI2}, {TILE}")
    a(f"s_add_u32 s{S_FT}, s{S_FT}, {KV_HALO}")
    a(f"s_cmp_eq_u32 s{S_FI2}, s{S_FQ}")
    a(f"s_cselect_b32 s{S_FK}, 2, 0")
    a(f"s_call_b64 s[{S_RET2}:{S_RET2+1}], L_FB_TILE")
    a(f"s_add_u32 s{S_FI2}, s{S_FI2}, 1")
    a(f"s_cmp_le_u32 s{S_FI2}, 7")
    a("s_cbranch_scc1 L_FB_HALO")
    a.lab("L_FB_PEND")
    a(f"s_cmp_eq_u32 s{S_FP}, 1")
    a("s_cbranch_scc1 L_FB_DONE")
    a(f"v_mov_b32 v{t}, v{F_M}")
    a("s_nop 1")
    a(f"v_permlane32_swap_b32 v{F_M}, v{t}")
    a("s_nop 1")
    a(f"v_max_f32 v{F_M}, v{F_M}, v{t}")
    for r in range(16): a(f"v_mov_b32 v{OA+r}, 0")
    a(f"s_mov_b32 s{S_FP}, 1")
    a("s_branch L_FB_PASS")
    a.lab("L_FB_DONE")
    a("s_nop 15")
    a(f"s_setpc_b64 s[{S_RET}:{S_RET+1}]")
    a.lab("L_FB_TILE")
    a(f"v_add_u32 v{A_K}, s{S_FT}, v{B_K}")
    a(f"v_add_u32 v{A_KR}, s{S_FT}, v{B_KR}")
    a(f"v_and_b32 v{A_V}, s{S_FT}, v{MK_V}")
    a(f"v_add_u32 v{A_V}, v{B_V}, v{A_V}")
    a(f"ds_read_b128 v[{VKF}:{VKF+3}], v{A_K}")
    a(f"ds_read_b64 v[{VKR}:{VKR+1}], v{A_KR}")
    a(f"ds_read_b64_tr_b16 v[{VVA}:{VVA+1}], v{A_V}")
    a(f"ds_read_b64_tr_b16 v[{VVA+2}:{VVA+3}], v{A_V} offset:576")
    a(f"ds_read_b64_tr_b16 v[{VVB}:{VVB+1}], v{A_V} offset:1152")
    a(f"ds_read_b64_tr_b16 v[{VVB+2}:{VVB+3}], v{A_V} offset:1728")
    a("s_waitcnt lgkmcnt(0)")
    a(f"v_mfma_f32_32x32x16_bf16 v[{VS}:{VS+15}], v[{VKF}:{VKF+3}], v[{QA_M}:{QA_M+3}], 0")
    a(f"v_mfma_f32_32x32x16_bf16 v[{VS}:{VS+15}], v[{VKR}:{VKR+3}], v[{QA_R}:{QA_R+3}], v[{VS}:{VS+15}]")
    a("s_nop 15")
    a(f"s_cmp_eq_u32 s{S_FK}, 0")
    a("s_cbranch_scc1 L_FB_NM")
    a(f"s_cmp_eq_u32 s{S_FK}, 1")
    a("s_cbranch_scc0 L_FB_FM")
    for r in range(16): a(f"v_add_f32 v{VS+r}, v{VS+r}, v{F_MD+r}")
    a("s_branch L_FB_NM")
    a.lab("L_FB_FM")
    for r in range(16): a(f"v_add_f32 v{VS+r}, v{VS+r}, v{F_MF+r}")
    a.lab("L_FB_NM")
    a(f"s_cmp_eq_u32 s{S_FP}, 0")
    a("s_cbranch_scc0 L_FB_P1")
    for r in range(0, 16, 2): a(f"v_max3_f32 v{F_M}, v{F_M}, v{VS+r}, v{VS+r+1}")
    a(f"s_setpc_b64 s[{S_RET2}:{S_RET2+1}]")
    a.lab("L_FB_P1")
    for r in range(16): a(f"v_sub_f32 v{VS+r}, v{VS+r}, v{F_M}")
    for r in range(16): a(f"v_exp_f32 v{VE+r}, v{VS+r}")
    a("s_nop 0")
    for j in range(8): a(f"v_cvt_pk_bf16_f32 v{VP+j}, v{VE+2*j}, v{VE+2*j+1}")
    a("s_nop 1")
    a(f"v_mfma_f32_32x32x16_bf16 v[{OA}:{OA+15}], v[{VVA}:{VVA+3}], v[{VP}:{VP+3}], v[{OA}:{OA+15}]")
    a(f"v_mfma_f32_32x32x16_bf16 v[{OA}:{OA+15}], v[{VVB}:{VVB+3}], v[{VP+4}:{VP+7}], v[{OA}:{OA+15}]")
    a("s_nop 7")
    a(f"s_setpc_b64 s[{S_RET2}:{S_RET2+1}]")

def finalize(a, O, qb_sreg, save_exec, rest_exec):
    t = T; R = VS
    a(f"v_rcp_f32 v{t+2}, v{O+12}")
    a(f"s_lshl_b32 s{S_T0}, s{qb_sreg}, 15")
    a(f"s_add_u32 s{S_T1}, s{S_T0}, s{S_OM}")
    a(f"s_lshl_b32 s{S_T0}, s{qb_sreg}, 7")
    a(f"s_add_u32 s{S_T2}, s{S_T0}, s{S_OR}")
    for r in range(12): a(f"v_mul_f32 v{O+r}, v{O+r}, v{t+2}")
    a(f"v_cvt_pk_bf16_f32 v{R}, v{O}, v{O+1}")
    a(f"v_cvt_pk_bf16_f32 v{R+1}, v{O+2}, v{O+3}")
    a(f"v_cvt_pk_bf16_f32 v{R+2}, v{O+4}, v{O+5}")
    a(f"v_cvt_pk_bf16_f32 v{R+3}, v{O+6}, v{O+7}")
    a(f"v_cvt_pk_bf16_f32 v{R+4}, v{O+8}, v{O+9}")
    a(f"v_cvt_pk_bf16_f32 v{R+5}, v{O+10}, v{O+11}")
    a(f"s_cmp_eq_u32 s{S_HEAD}, 0")
    a(f"s_cselect_b64 s[{S_SAVE}:{S_SAVE+1}], -1, 0")
    a(f"v_permlane32_swap_b32 v{R}, v{R+2}")
    a(f"v_permlane32_swap_b32 v{R+1}, v{R+3}")
    a(f"v_cndmask_b32_e64 v{R+4}, v{R+5}, v{R+4}, s[{S_SAVE}:{S_SAVE+1}]")
    a(f"buffer_store_dwordx4 v[{R}:{R+3}], v{V_OA1}, {WS}, s{S_T1} offen sc1")
    a(f"s_mov_b64 s[{S_SAVE}:{S_SAVE+1}], exec")
    a(f"s_mov_b32 exec_hi, 0")
    a(f"buffer_store_dword v{R+4}, v{V_OA2}, {WS}, s{S_T2} offen sc1")
    rest_exec()

def oflag(a, name, cnt_addr, flag_off, save_exec, rest_exec, after_store=None, last=7):
    t = T
    lds_inc(a, cnt_addr, save_exec, rest_exec, rtn=t+2)
    a("s_waitcnt lgkmcnt(0)")
    a(f"v_readfirstlane_b32 s{S_T0}, v{t+2}")
    a(f"s_cmp_lg_u32 s{S_T0}, {last}")
    a(f"s_cbranch_scc1 {name}")
    a(f"s_lshl_b32 s{S_T0}, s{S_HP}, 2")
    a(f"s_add_u32 s{S_T0}, s{S_T0}, s{S_OFS}")
    a(f"v_lshlrev_b32 v{t}, 7, v{V_LANE}")
    a(f"v_mov_b32 v{t+1}, s{S_TAGO}")
    save_exec("0xffff")
    a(f"buffer_store_dword v{t+1}, v{t}, {WS}, s{S_T0} offen offset:{flag_off} sc1")
    rest_exec()
    if after_store: after_store()
    a.lab(name)

def phase2(a, debug_stage, ts, exp, save_exec, rest_exec):
    t = T; L = V_LANE
    UH = (4, 6, 8)
    if 'hkA' in exp: UH = (3, 5, 7)
    if 'hkB' in exp: UH = (4, 6, 7)
    if 'hkC' in exp: UH = (5, 7, 8)
    UP = 15
    a.c("======== phase 2 ========")
    a(f"v_readfirstlane_b32 s{S_TAGOUT}, v{V_TG}")
    a(f"v_readfirstlane_b32 s{S_TAGIN}, v{V_TG+1}")
    a(f"v_readfirstlane_b32 s{S_TAGO}, v{V_TG+2}")
    a(f"v_bfe_u32 v{V_OA1}, v{L}, 4, 1")
    a(f"v_lshlrev_b32 v{V_OA1}, 14, v{V_OA1}")
    a(f"v_and_b32 v{t+4}, 15, v{L}")
    a(f"v_lshl_add_u32 v{V_OA1}, v{t+4}, 4, v{V_OA1}")
    a(f"v_lshrrev_b32 v{t+4}, 5, v{L}")
    a(f"v_lshl_add_u32 v{V_OA1}, v{t+4}, 8, v{V_OA1}")
    a(f"v_lshlrev_b32 v{V_OA2}, 2, v{L}")
    for (QM, QR, sreg) in ((QA_M, QA_R, S_M), (QB_M, QB_R, S_MB)):
        a(f"s_mul_i32 s{S_T0}, s{sreg}, {QTILE}")
        a(f"s_add_u32 s{S_T0}, s{S_T0}, {Q_BASE}")
        a(f"v_add_u32 v{t+2}, s{S_T0}, v{B_K}")
        a(f"v_add_u32 v{t+3}, s{S_T0}, v{B_KR}")
        a(f"ds_read_b128 v[{QM}:{QM+3}], v{t+2}")
        a(f"ds_read_b64 v[{QR}:{QR+1}], v{t+3}")
    a(f"s_cmp_eq_u32 s{S_HEAD}, 0")
    a(f"s_cselect_b32 s{S_T0}, -1, 0")
    a(f"s_cselect_b32 s{S_T1}, 0, -1")
    a(f"v_cmp_gt_u32 vcc, 32, v{L}")
    a(f"v_mov_b32 v{t}, s{S_T0}")
    a(f"v_mov_b32 v{t+1}, s{S_T1}")
    a(f"v_cndmask_b32_e64 v{t}, 0, v{t}, vcc")
    a(f"v_cndmask_b32_e64 v{t+1}, 0, v{t+1}, vcc")
    a(f"v_mov_b32 v{VKR+2}, 0")
    a(f"v_mov_b32 v{VKR+3}, 0")
    for QR in (QA_R, QB_R):
        a(f"v_mov_b32 v{QR+2}, 0")
        a(f"v_mov_b32 v{QR+3}, 0")
    a("s_waitcnt lgkmcnt(0)")
    for QR in (QA_R, QB_R):
        a(f"v_and_b32 v{QR}, v{QR}, v{t}")
        a(f"v_and_b32 v{QR+1}, v{QR+1}, v{t+1}")
    lds_inc(a, CNTQ, save_exec, rest_exec)
    a(f"s_mov_b32 s{S_U}, 0")
    a(f"s_mov_b32 s{S_HST}, 0")
    a(f"s_mov_b32 s{S_HOOK}, {UP}")
    a(f"s_mov_b32 s{S_HST}, 3")
    a(f"s_cmp_lt_u32 s{S_WID}, 4")
    a(f"s_cbranch_scc1 L_HS2")
    a(f"s_mov_b32 s{S_HST}, 0")
    a(f"s_mov_b32 s{S_HOOK}, {UH[0]}")
    a(f"s_cmp_eq_u32 s{S_S}, 7")
    a(f"s_cbranch_scc1 L_HS1")
    a(f"s_mul_i32 s{S_T1}, s{S_IDX}, 36864")
    for c, i in enumerate([3, 2, 1, 0]):
        a(f"s_add_u32 s{S_T2}, s{S_T1}, {i*4096}")
        a(f"buffer_store_dwordx4 v[{VH+20+4*c}:{VH+20+4*c+3}], v{V_PA}, {WS}, s{S_T2} offen sc1")
    a.lab("L_HS1")
    if 'noprio' not in exp and 'pf' not in exp: a("s_setprio 1")
    a.lab("L_HS2")
    ts(4)
    set_run(a, KV_OWN, None, [f"s_add_u32 s{S_N}, s{S_M}, 1"], TILE)
    a(f"s_call_b64 s[{S_RET}:{S_RET+1}], L_RUNA")
    set_run(a, KV_OWN, None, [f"s_sub_u32 s{S_N}, 8, s{S_M}"], TILE)
    a(f"s_call_b64 s[{S_RET}:{S_RET+1}], L_RUNB")
    ts(5)
    a(f"s_cmp_eq_u32 s{S_S}, 0")
    a("s_cbranch_scc1 L_FINAL0")
    a(f"v_mov_b32 v{t+2}, {NEG:#x}")
    for r in range(16): a(f"v_sub_f32 v{V_MASK+r}, v{t+2}, v{V_MASK+r}")
    a(f"s_cmp_lt_u32 s{S_WID}, 4")
    a("s_cbranch_scc1 L_H5DONE")
    lds_wait(a, "L_WQ", CNTQ, 8)
    a(f"v_add_u32 v{V_PA+1}, {KV_HALO}, v{V_PA}")
    for c, i in enumerate([8, 7, 6, 5, 4, 3, 2, 1, 0]):
        a(f"s_waitcnt vmcnt({8-c})")
        a(f"ds_write_b128 v{V_PA+1}, v[{VH+4*c}:{VH+4*c+3}] offset:{i*4096}")
    a(f"s_cmp_lg_u32 s{S_WID}, 4")
    a("s_cbranch_scc1 L_H5DONE")
    a(f"s_sub_u32 s{S_T0}, s{S_IDX}, 1")
    a(f"s_lshl_b32 s{S_T0}, s{S_T0}, 8")
    a(f"s_add_u32 s{S_T0}, s{S_T0}, {WS_FLAG}")
    a(f"v_mov_b32 v{t}, 0")
    a(f"v_mov_b32 v{t+1}, s{S_TAGIN}")
    save_exec(1)
    a(f"buffer_store_dword v{t+1}, v{t}, {WS}, s{S_T0} offen sc1")
    rest_exec()
    a.lab("L_H5DONE")
    a("s_waitcnt lgkmcnt(0)")
    if 'ph' not in exp: a("s_setprio 0")
    a("s_barrier")
    if "tsh" not in exp: ts(7)
    a(f"s_mov_b32 s{S_T4}, 7")
    set_run(a, KV_HALO, S_T4, [f"s_add_u32 s{S_N}, s{S_M}, 1"], -TILE)
    a(f"s_call_b64 s[{S_RET}:{S_RET+1}], L_RUNB")
    a("s_nop 7")
    a("s_nop 3")
    safety_check(a, OB, True, S_MB, "B1")
    finalize(a, OB, S_MB, save_exec, rest_exec)
    if 'ph' in exp and 'phx' not in exp: a("s_setprio 0")
    a(f"s_mov_b32 s{S_T4}, 7")
    set_run(a, KV_HALO, S_T4, [f"s_sub_u32 s{S_N}, 8, s{S_M}"], -TILE)
    a(f"s_call_b64 s[{S_RET}:{S_RET+1}], L_RUNA")
    a("s_branch L_FINALA")
    a.lab("L_FINAL0")
    a("s_waitcnt vmcnt(0)")
    a("s_setprio 0")
    a("s_barrier")
    a("s_nop 7")
    a("s_nop 3")
    safety_check(a, OB, True, S_MB, "B0")
    finalize(a, OB, S_MB, save_exec, rest_exec)
    a.lab("L_FINALA")
    a("s_setprio 0")
    if "tsh" not in exp: ts(8)
    a("s_nop 7")
    a("s_nop 3")
    safety_check(a, OA, False, S_M, "A")
    finalize(a, OA, S_M, save_exec, rest_exec)
    a("s_branch L_P3")
    fallback_code(a)

    a.lab("L_HOOK")
    a(f"s_cmp_eq_u32 s{S_HST}, 1")
    a("s_cbranch_scc1 L_HK1")
    a(f"s_cmp_eq_u32 s{S_HST}, 2")
    a("s_cbranch_scc1 L_HK2")
    a(f"s_cmp_eq_u32 s{S_HST}, 3")
    a("s_cbranch_scc1 L_HK3")
    a(f"s_mov_b32 s{S_HST}, 1")
    a(f"s_mov_b32 s{S_HOOK}, {UH[1]}")
    a(f"s_cmp_eq_u32 s{S_S}, 7")
    a("s_cbranch_scc1 L_HRET")
    a("s_waitcnt vmcnt(0)")
    a(f"s_lshl_b32 s{S_T0}, s{S_IDX}, 8")
    a(f"s_lshl_b32 s{S_T1}, s{S_L}, 2")
    a(f"s_add_u32 s{S_T0}, s{S_T0}, s{S_T1}")
    a(f"s_add_u32 s{S_T0}, s{S_T0}, {WS_FLAG+128}")
    a(f"v_mov_b32 v{t}, 0")
    a(f"v_mov_b32 v{t+1}, s{S_TAGOUT}")
    save_exec(1)
    a(f"buffer_store_dword v{t+1}, v{t}, {WS}, s{S_T0} offen sc1")
    rest_exec()
    a("s_branch L_HRET")
    a.lab("L_HK3")
    a(f"s_mov_b32 s{S_HST}, 4")
    a(f"s_mov_b32 s{S_HOOK}, 1000")
    a(f"s_lshl_b32 s{S_T0}, s{S_HP}, 7")
    a(f"s_add_u32 s{S_T0}, s{S_T0}, s{S_OFS}")
    save_exec("0xffff")
    a(f"v_lshlrev_b32 v{t}, 2, v{L}")
    a(f"buffer_load_dword v{V_TG+1}, v{t}, {WS}, s{S_T0} offen offset:128 sc1")
    rest_exec()
    a("s_branch L_HRET")
    a.lab("L_HK1")
    a(f"s_mov_b32 s{S_HST}, 2")
    a(f"s_mov_b32 s{S_HOOK}, {UH[2]}")
    a(f"s_cmp_eq_u32 s{S_S}, 0")
    a("s_cbranch_scc0 L_HK1A")
    a(f"s_mov_b32 s{S_HOOK}, 1000")
    a("s_branch L_HRET")
    a.lab("L_HK1A")
    a(f"s_sub_u32 s{S_H1}, s{S_IDX}, 1")
    a(f"s_lshl_b32 s{S_H1}, s{S_H1}, 8")
    a(f"s_lshl_b32 s{S_T0}, s{S_L}, 2")
    a(f"s_add_u32 s{S_H1}, s{S_H1}, s{S_T0}")
    a(f"s_add_u32 s{S_H1}, s{S_H1}, {WS_FLAG+128}")
    a(f"v_mov_b32 v{t}, 0")
    a(f"buffer_load_dword v{V_TG}, v{t}, {WS}, s{S_H1} offen sc1")
    a("s_branch L_HRET")
    a.lab("L_HK2")
    a(f"s_mov_b32 s{S_HST}, 3")
    a(f"s_mov_b32 s{S_HOOK}, {UP}")
    a("s_waitcnt vmcnt(0)")
    a(f"v_readfirstlane_b32 s{S_T0}, v{V_TG}")
    a(f"s_cmp_eq_u32 s{S_T0}, s{S_TAGIN}")
    a("s_cbranch_scc1 L_POLL1_OK")
    a(f"v_mov_b32 v{t}, 0")
    spin_poll(a, "L_POLL1",
              [f"v_readfirstlane_b32 s{S_T0}, v{V_TG}", f"s_cmp_eq_u32 s{S_T0}, s{S_TAGIN}"],
              f"buffer_load_dword v{V_TG}, v{t}, {WS}, s{S_H1} offen sc1")
    a(f"s_sub_u32 s{S_T0}, s{S_IDX}, 1")
    a(f"s_mul_i32 s{S_T0}, s{S_T0}, 36864")
    for c, i in enumerate([8, 7, 6, 5, 4, 3, 2, 1, 0]):
        a(f"s_add_u32 s{S_T1}, s{S_T0}, {i*4096}")
        a(f"buffer_load_dwordx4 v[{VH+4*c}:{VH+4*c+3}], v{V_PA}, {WS}, s{S_T1} offen sc1")
    a.lab("L_HRET")
    a(f"s_setpc_b64 s[{S_RET2}:{S_RET2+1}]")
    run_code(a, "L_RUNA", QA_M, QA_R, OA, exp)
    run_code(a, "L_RUNB", QB_M, QB_R, OB, exp)

def pub_stores(a, stage_off, base):
    a(f"s_add_u32 s{S_T2}, s{S_T1}, {stage_off}")
    a(f"buffer_store_dwordx4 v[{base}:{base+3}], v{V_PA}, {WS}, s{S_T2} offen sc1")
    for i in range(1, 4):
        a(f"s_add_u32 s{S_T3}, s{S_T2}, {i*4096}")
        a(f"buffer_store_dwordx4 v[{base+4*i}:{base+4*i+3}], v{V_PA}, {WS}, s{S_T3} offen sc1")
    a(f"buffer_store_dwordx4 v[{base+16}:{base+19}], v{V_PA+2}, {WS}, s{S_T2} offen sc1")

def halo_loads(a, stage_off, base):
    a(f"s_sub_u32 s{S_T0}, s{S_IDX}, 1")
    a(f"s_mul_i32 s{S_T0}, s{S_T0}, 36864")
    a(f"s_add_u32 s{S_T0}, s{S_T0}, s{S_SO}")
    for i in range(4):
        a(f"s_add_u32 s{S_T1}, s{S_T0}, {i*4096}")
        a(f"buffer_load_dwordx4 v[{base+4*i}:{base+4*i+3}], v{V_PA}, {WS}, s{S_T1} offen sc1")
    a(f"buffer_load_dwordx4 v[{base+16}:{base+19}], v{V_PA+2}, {WS}, s{S_T0} offen sc1")

def phase3(a, debug_stage, ts, exp, save_exec, rest_exec):
    t = T; L = V_LANE
    OF, AC, WF0, WF1 = 20, 92, 132, 152
    AW, AW2, PF, VO, VOUT, VR = 10, 11, 13, 14, 15, 16
    PA, PB = 12, 9
    S_PL, S_PR, S_PM = 4, 68, 40
    SCR = KV_OWN
    ORD = {0: [0, 2, 4, 6, 1, 3, 5, 7, 8], 1: [9, 11, 13, 15, 10, 12, 14, 16, 17]}
    GM = {0: 0x0055, 1: 0xAA00}; RM = {0: 0x01AA, 1: 0xFFFF}
    a.lab("L_P3")
    a.c("======== phase 3 ========")
    a(f"s_lshl_b32 s{S_PL}, s{S_HP}, 7")
    a(f"s_add_u32 s{S_PL}, s{S_PL}, s{S_OFS}")
    def poll_issue():
        save_exec("0xffff")
        a(f"v_lshlrev_b32 v{t+2}, 2, v{L}")
        a(f"buffer_load_dword v{PF}, v{t+2}, {WS}, s{S_PL} offen offset:128 sc1")
        rest_exec()
    def poll_check(name, mask):
        save_exec(f"{mask:#x}")
        a(f"v_cmp_ne_u32 vcc, s{S_TAGO}, v{PF}")
        a("s_nop 1")
        a("s_cmp_eq_u64 vcc, 0")
        a(f"s_cbranch_scc1 {name}_OK")
        a(f"v_lshlrev_b32 v{t+2}, 2, v{L}")
        spin_poll(a, name,
                  [f"v_cmp_ne_u32 vcc, s{S_TAGO}, v{PF}", "s_nop 1", "s_cmp_eq_u64 vcc, 0"],
                  f"buffer_load_dword v{PF}, v{t+2}, {WS}, s{S_PL} offen offset:128 sc1")
        rest_exec()
    a(f"s_lshr_b32 s{S_T1}, s{S_HP}, 3")
    a(f"s_lshl_b32 s{S_T1}, s{S_T1}, 3")
    a(f"s_lshl_b32 s{S_T2}, s{S_M}, 1")
    a(f"s_add_u32 s{S_T1}, s{S_T1}, s{S_T2}")
    a(f"s_lshl_b32 s{S_T0}, s{S_GRP}, 18")
    a(f"s_add_u32 s{S_T0}, s{S_T0}, {WS_O}")
    a(f"s_lshl_b32 s{S_T2}, s{S_T1}, 14")
    a(f"s_add_u32 s{S_PM}, s{S_T0}, s{S_T2}")
    a(f"s_lshl_b32 s{S_T0}, s{S_GRP}, 15")
    a(f"s_add_u32 s{S_T0}, s{S_T0}, {WS_OR}")
    a(f"s_lshl_b32 s{S_T2}, s{S_T1}, 6")
    a(f"s_add_u32 s{S_PR}, s{S_T0}, s{S_T2}")
    a(f"v_lshrrev_b32 v{VR}, 4, v{L}")
    a(f"v_lshlrev_b32 v{VR}, 12, v{VR}")
    a(f"v_and_b32 v{t+4}, 15, v{L}")
    a(f"v_lshl_add_u32 v{VR}, v{t+4}, 2, v{VR}")
    a(f"v_add_u32 v{VR+1}, 64, v{VR}")
    a(f"v_lshrrev_b32 v{t+1}, 4, v{L}")
    a(f"v_bfe_u32 v{t+2}, v{L}, 2, 2")
    a(f"v_and_b32 v{t+3}, 3, v{L}")
    a(f"v_lshrrev_b32 v{t+4}, 1, v{t+1}")
    a(f"v_lshlrev_b32 v{t+4}, 2, v{t+4}")
    a(f"v_lshl_add_u32 v{t+4}, v{t+1}, 3, v{t+4}")
    a(f"v_add_u32 v{t+4}, v{t+4}, v{t+2}")
    a(f"v_mul_u32_u24 v{t+4}, 144, v{t+4}")
    a(f"v_lshl_add_u32 v{AW}, v{t+3}, 3, v{t+4}")
    a(f"s_mul_i32 s{S_T0}, s{S_HEAD}, {9*5184}")
    a(f"v_add_u32 v{AW}, s{S_T0}, v{AW}")
    a(f"v_mul_u32_u24 v{t+4}, 72, v{t+1}")
    a(f"v_add3_u32 v{t+4}, v{t+4}, v{t+2}, 16")
    a(f"v_mul_u32_u24 v{t+4}, 144, v{t+4}")
    a(f"v_lshl_add_u32 v{AW2}, v{t+3}, 3, v{t+4}")
    a(f"v_lshlrev_b32 v{VO}, 4, v{L}")
    a(f"s_lshl_b32 s{S_T1}, s{S_T1}, 4")
    a(f"s_lshl_b32 s{S_T2}, s{S_S}, 8")
    a(f"s_add_u32 s{S_T1}, s{S_T1}, s{S_T2}")
    a(f"s_lshl_b32 s{S_T2}, s{S_HEAD}, 4")
    a(f"s_add_u32 s{S_T1}, s{S_T1}, s{S_T2}")
    a(f"s_mul_i32 s{S_T1}, s{S_T1}, 2304")
    a(f"s_mul_i32 s{S_T2}, s{S_B}, 1152")
    a(f"s_add_u32 s{S_T1}, s{S_T1}, s{S_T2}")
    a(f"s_and_b32 s{S_T2}, s{S_HP}, 7")
    a(f"s_mul_i32 s{S_T2}, s{S_T2}, 144")
    a(f"s_add_u32 s{S_T5}, s{S_T1}, s{S_T2}")
    a(f"v_and_b32 v{VOUT}, 15, v{L}")
    a(f"v_mul_u32_u24 v{VOUT}, 2304, v{VOUT}")
    a(f"v_lshrrev_b32 v{t+4}, 4, v{L}")
    a(f"v_lshl_add_u32 v{VOUT}, v{t+4}, 3, v{VOUT}")
    a(f"s_mul_i32 s{S_T0}, s{S_WID}, 5120")
    a(f"s_add_u32 s{S_T0}, s{S_T0}, {SCR}")
    a(f"v_add_u32 v18, s{S_T0}, v{VO}")
    a(f"s_xor_b32 s{S_T1}, s{S_WID}, 4")
    a(f"s_mul_i32 s{S_T1}, s{S_T1}, 5120")
    a(f"s_add_u32 s{S_T1}, s{S_T1}, {SCR}")
    a(f"v_add_u32 v19, s{S_T1}, v{VO}")
    OUT = f"s[{S_OUT}:{S_OUT+3}]"
    def wreads(kap, kh, WF):
        l = []
        for Tn in range(5):
            b = WF + 4*Tn
            if kap >= 16:
                o0 = (kap-16)*8*36*144 + Tn*32
                l.append(f"ds_read_b64_tr_b16 v[{b}:{b+1}], v{AW2} offset:{o0}")
                l.append(f"ds_read_b64_tr_b16 v[{b+2}:{b+3}], v{AW2} offset:{o0+36*144}")
            else:
                o0 = (kap - 9*kh)*5184 + Tn*32
                l.append(f"ds_read_b64_tr_b16 v[{b}:{b+1}], v{AW} offset:{o0}")
                l.append(f"ds_read_b64_tr_b16 v[{b+2}:{b+3}], v{AW} offset:{o0+576}")
        return l
    def loads(kh, slots):
        nl = []
        for jx in slots:
            kap = ORD[kh][jx]
            if kap >= 16:
                a(f"s_add_u32 s{S_T0}, s{S_PR}, {(kap-16)*16*1024}")
                for mt in range(2):
                    for i in range(4):
                        a(f"buffer_load_dword v{OF+36*mt+4*jx+i}, v{VR+mt}, {WS}, s{S_T0} offen offset:{i*1024} sc1")
                nl.append(8)
            else:
                a(f"s_add_u32 s{S_T0}, s{S_PM}, {kap*1024}")
                a(f"s_add_u32 s{S_T1}, s{S_PM}, {kap*1024+16384}")
                a(f"buffer_load_dwordx4 v[{OF+4*jx}:{OF+4*jx+3}], v{VO}, {WS}, s{S_T0} offen sc1")
                a(f"buffer_load_dwordx4 v[{OF+36+4*jx}:{OF+36+4*jx+3}], v{VO}, {WS}, s{S_T1} offen sc1")
                nl.append(2)
        return nl
    def mfm(kh, slots, nl, extra, last_next, novm=False):
        for c, jx in enumerate(slots):
            cur = WF0 if jx % 2 == 0 else WF1
            nxt = WF1 if jx % 2 == 0 else WF0
            a("s_waitcnt lgkmcnt(0)" if novm else f"s_waitcnt vmcnt({sum(nl[c+1:])+extra}) lgkmcnt(0)")
            rs = wreads(ORD[kh][jx+1], kh, nxt) if jx < 8 else []
            ri = 0
            for Tn in range(5):
                for mt in range(2):
                    d = AC + (mt*5+Tn)*4; o = OF + 36*mt + 4*jx
                    cc = "0" if jx == 0 else f"v[{d}:{d+3}]"
                    a(f"v_mfma_f32_16x16x32_bf16 v[{d}:{d+3}], v[{cur+4*Tn}:{cur+4*Tn+3}], v[{o}:{o+3}], {cc}")
                    if ri < len(rs): a(rs[ri]); ri += 1
    def add_out(q, base, Tn, pk):
        for r in range(4): a(f"v_add_f32 v{q+r}, v{q+r}, v{base+4*Tn+r}")
        a(f"v_cvt_pk_bf16_f32 v{pk}, v{q}, v{q+1}")
        a(f"v_cvt_pk_bf16_f32 v{pk+1}, v{q+2}, v{q+3}")
        if Tn == 4:
            a(f"s_mov_b64 s[{S_SAVE}:{S_SAVE+1}], exec")
            a(f"s_mov_b32 exec_hi, 0")
        omod = " nt" if 'ont' in exp else " sc1" if 'osc1' in exp else " sc0 sc1" if 'osc01' in exp else ""
        a(f"buffer_store_dwordx2 v[{pk}:{pk+1}], v{VOUT}, {OUT}, s{S_T5} offen offset:{Tn*32}{omod}")
        if Tn == 4: rest_exec()
    def nloads(kh, slots):
        return [8 if ORD[kh][jx] >= 16 else 2 for jx in slots]
    def validate(kh, slots, younger):
        nl = nloads(kh, slots); first = True
        for c, jx in enumerate(slots):
            a(f"s_waitcnt vmcnt({sum(nl[c+1:])+younger})")
            rr = [OF+4*jx+i for i in range(4)] + [OF+36+4*jx+i for i in range(4)]
            if first:
                a(f"v_max3_u32 v{t+3}, v{rr[0]}, v{rr[1]}, v{rr[2]}"); rr = rr[3:]; first = False
                a(f"v_max_u32 v{t+3}, v{t+3}, v{rr[0]}"); rr = rr[1:]
            for k in range(0, len(rr), 2):
                a(f"v_max3_u32 v{t+3}, v{t+3}, v{rr[k]}, v{rr[k+1]}")
        a(f"v_cmp_eq_u32 vcc, -1, v{t+3}")
        a("s_nop 1")
        a("s_cmp_eq_u64 vcc, 0")
    def probe_addr(kh, slots):
        mains = [jx for jx in slots if ORD[kh][jx] < 16]
        a(f"v_mov_b32 v{t+3}, {ORD[kh][mains[0]]*1024 + 16384 + 1020}")
        a(f"v_lshlrev_b32 v{PA}, 11, v{L}")
        a(f"v_add_u32 v{PA}, v{t+3}, v{PA}")
        return (1 << min(len(mains), 4)) - 1
    def probe_issue(mask):
        save_exec(f"{mask:#x}")
        a(f"buffer_load_dword v{PB}, v{PA}, {WS}, s{S_PM} offen sc1")
        rest_exec()
    def probe_loop(mask, name, first_issued):
        save_exec(f"{mask:#x}")
        a(f"s_mov_b32 s{S_CNT}, 0")
        if first_issued: a(f"s_branch {name}_PW")
        a.lab(name + "_P")
        a(f"buffer_load_dword v{PB}, v{PA}, {WS}, s{S_PM} offen sc1")
        a.lab(name + "_PW")
        a(f"s_add_u32 s{S_CNT}, s{S_CNT}, 1")
        a("s_waitcnt vmcnt(0)")
        a(f"v_cmp_eq_u32 vcc, -1, v{PB}")
        a("s_nop 1")
        a("s_cmp_eq_u64 vcc, 0")
        a(f"s_cbranch_scc1 {name}_PO")
        a(f"s_cmp_lt_u32 s{S_CNT}, 2000000")
        a(f"s_cbranch_scc1 {name}_P")
        a.lab(name + "_PO")
        rest_exec()
    def load_validate_loop(kh, slots, name):
        a(f"s_mov_b32 s{S_N}, 0")
        a.lab(name + "_L")
        loads(kh, slots)
        validate(kh, slots, 0)
        a(f"s_cbranch_scc1 {name}_OK")
        a(f"s_add_u32 s{S_N}, s{S_N}, 1")
        a(f"s_cmp_lt_u32 s{S_N}, 100000")
        a(f"s_cbranch_scc1 {name}_L")
        a.lab(name + "_OK")
    def path(kh):
        K = f"K{kh}"
        G, R = list(range(4)), list(range(4, 9))
        for rd in wreads(ORD[kh][0], kh, WF0): a(rd)
        ts(10)
        a(f"s_lshr_b32 s{S_T0}, 0x55AA, s{S_HP}")
        a(f"s_bitcmp1_b32 s{S_T0}, 0")
        a(f"s_cbranch_scc1 L_SG{K}_GO")
        mk = probe_addr(kh, G)
        probe_loop(mk, f"L_SG{K}", False)
        a.lab(f"L_SG{K}_GO")
        load_validate_loop(kh, G, f"L_SGV{K}")
        mk = probe_addr(kh, R)
        a(f"s_lshr_b32 s{S_T0}, 0x55AA, s{S_HP}")
        a(f"s_bitcmp1_b32 s{S_T0}, 0")
        a(f"s_cbranch_scc0 L_SR{K}_EARLY")
        loads(kh, R)
        mfm(kh, G, [0]*4, 0, None, novm=True)
        ts(9)
        lds_wait(a, f"L_WOB{K}", CNTOA, 8)
        validate(kh, R, 0)
        a(f"s_cbranch_scc1 L_SRV{K}_OK")
        probe_loop(mk, f"L_SS{K}", False)
        a(f"s_branch L_SR{K}_LV")
        a.lab(f"L_SR{K}_EARLY")
        probe_issue(mk)
        mfm(kh, G, [0]*4, 0, None, novm=True)
        ts(9)
        lds_wait(a, f"L_WOA{K}", CNTOA, 8)
        probe_loop(mk, f"L_SR{K}", True)
        a.lab(f"L_SR{K}_LV")
        load_validate_loop(kh, R, f"L_SRV{K}")
        mfm(kh, R, [0]*5, 0, None, novm=True)
        ts(11)
        send = AC + 20 if kh == 0 else AC
        keep = AC if kh == 0 else AC + 20
        a("s_nop 7")
        for Tn in range(5): a(f"ds_write_b128 v18, v[{send+4*Tn}:{send+4*Tn+3}] offset:{Tn*1024}")
        a("s_waitcnt lgkmcnt(0)")
        a("s_barrier")
        for Tn in range(5): a(f"ds_read_b128 v[{OF+4*Tn}:{OF+4*Tn+3}], v19 offset:{Tn*1024}")
        for Tn in range(5):
            a(f"s_waitcnt lgkmcnt({4-Tn})")
            add_out(OF+4*Tn, keep, Tn, OF+20+2*Tn)
    lds_inc(a, CNTOA, save_exec, rest_exec)
    a(f"s_cmp_eq_u32 s{S_HST}, 4")
    a("s_cbranch_scc0 L_P3C0")
    a("s_waitcnt vmcnt(2)")
    a(f"v_mov_b32 v{PF}, v{V_TG+1}")
    a("s_branch L_P3C1")
    a.lab("L_P3C0")
    poll_issue()
    a("s_waitcnt vmcnt(0)")
    a.lab("L_P3C1")
    poll_check("L_POLLC", 0xFFFF)
    if debug_stage == 2:
        a("s_waitcnt vmcnt(0)")
        a("s_branch L_FIN")
        return
    a(f"s_cmp_eq_u32 s{S_HEAD}, 0")
    a("s_cbranch_scc0 L_P3K1")
    path(0)
    a("s_branch L_FIN")
    a.lab("L_P3K1")
    path(1)
    a(f"s_cmp_lg_u32 s{S_HP}, 0")
    a("s_cbranch_scc1 L_FIN")
    a(f"s_cmp_lg_u32 s{S_WID}, 4")
    a("s_cbranch_scc1 L_FIN")
    a(f"v_mov_b32 v{t}, 0")
    a(f"v_mov_b32 v{t+1}, s{S_TAGO}")
    a(f"s_mov_b64 exec, 1")
    a(f"buffer_store_dword v{t+1}, v{t}, {WS}, s{S_OFS} offen sc1")

if __name__ == "__main__":
    import argparse
    p = argparse.ArgumentParser(); p.add_argument("--debug", type=int, default=0)
    p.add_argument("--timing", action="store_true"); p.add_argument("--exp", default=""); p.add_argument("-o", default="/dev/stdout")
    args = p.parse_args()
    open(args.o, "w").write(gen(args.debug, args.timing, args.exp))
```

```python
import sys, math, struct

NAME = "concat_heads__sliding_block__sliding_block__prompt"

STAGE   = 49152
WO_BASE = 0
KV_OWN  = 82944
KV_HALO = 119808
Q_BASE  = 119808
MISC    = 156672
TAGS_LDS = MISC + 2048
CNT2, CNT1, CNTQ, CNTOB, CNTOA = TAGS_LDS+12, TAGS_LDS+16, TAGS_LDS+20, TAGS_LDS+24, TAGS_LDS+28
LDS_TOTAL = 163840
TILE    = 4608
QTILE   = 2304
WS_KV   = 0
WS_O    = 256*36864
WS_OR   = WS_O + 16*262144
WS_FLAG = WS_OR + 16*32768
WS_OF   = WS_FLAG + 65536
TIMING_OFF = 24<<20
TAG_INC = 0x9E3779B1
NEG     = 0xFF61B1E6
QSCALE  = (18.0 ** -0.5) * math.log2(math.e)
def f32bits(x): return struct.unpack("<I", struct.pack("<f", x))[0]

class Asm:
    def __init__(self): self.l = []
    def __call__(self, s=""):
        for line in s.split("\n"):
            self.l.append("  " + line.strip())
    def lab(self, n): self.l.append(n + ":")
    def c(self, s): self.l.append("  ; " + s)
    def text(self): return "\n".join(self.l) + "\n"

S_X, S_W, S_WO, S_WS, S_OUT = 8, 12, 16, 20, 24
S_B, S_S, S_HP, S_WID = 28, 29, 30, 31
S_T0, S_T1, S_T2, S_T3, S_T4, S_T5 = 32, 33, 34, 35, 36, 37
S_I = 38
S_L = 39
S_TAGIN, S_TAGOUT, S_TAGO = 40, 41, 42
S_K, S_C, S_SB, S_XB, S_WB = 43, 44, 45, 46, 47
S_LX, S_LW = 48, 49
S_N = 50
S_U = 51
S_RET = 52
S_IDX, S_GRP, S_HEAD, S_M = 54, 55, 56, 57
S_SAVE = 58
S_CNT = 60
S_HOOK = 61
S_BAD = 62
S_RET2 = 64
S_MB = 66
S_HST = 67
S_H0, S_H1 = 68, 69
S_E = 98
S_SO, S_FI = 99, 100
S_OM, S_OR, S_OFS = 6, 7, 5

V_LANE = 1
T = 2
V_AX = 10
V_AW = 12
V_MASK = 20
V_SET0, V_SET1, V_ACC = 36, 80, 124
V_LDX, V_LDW = 36, 44
V_TG = 236
B_K, B_KR, B_V, MK_V = 240, 241, 242, 243
vEK, vEQ, vEV, vE6, vDr, vDt, vF, vC = 244, 245, 246, 247, 248, 249, 250, 252
V_TL = 254
QA_M, QA_R, QB_M, QB_R = 36, 40, 44, 48
OA, OB = 52, 68
VS, VE, VP = 84, 100, 116
VKF, VKR, VVA, VVB = 124, 128, 132, 136
A_K, A_KR, A_V, ST_V, ST_K = 10, 11, 12, 13, 14
VH = 140
V_WOV = 180
V_OA1, V_OA2 = 188, 189
V_PA = 184

def emit_masks_(a):
    t = T; L = V_LANE
    a(f"v_and_b32 v{t}, 31, v{L}")
    a(f"v_lshrrev_b32 v{t+1}, 5, v{L}")
    a(f"v_lshlrev_b32 v{t+1}, 2, v{t+1}")
    a(f"v_sub_u32 v{t}, v{t}, v{t+1}")
    a(f"v_mov_b32 v{t+1}, {NEG:#x}")
    for r in range(16):
        jj = (r & 3) + 8*(r >> 2)
        a(f"v_cmp_le_i32 vcc, {jj}, v{t}")
        a("s_nop 1")
        a(f"v_cndmask_b32_e64 v{V_MASK+r}, v{t+1}, 0, vcc")
def emit_p2_patterns_(a):
    t = T; L = V_LANE
    a(f"v_and_b32 v{t}, 31, v{L}")
    a(f"v_lshrrev_b32 v{t+1}, 5, v{L}")
    a(f"v_lshrrev_b32 v{t+2}, 2, v{t}")
    a(f"v_lshrrev_b32 v{t+3}, 3, v{t}")
    a(f"v_xor_b32 v{t+2}, v{t+2}, v{t+3}")
    a(f"v_xor_b32 v{t+2}, v{t+2}, v{t+1}")
    a(f"v_and_b32 v{t+2}, 1, v{t+2}")
    a(f"v_lshlrev_b32 v{t+2}, 4, v{t+2}")
    a(f"v_lshl_add_u32 v{t+2}, v{t}, 5, v{t+2}")
    a(f"s_lshl_b32 s{S_T0}, s{S_HEAD}, 10")
    a(f"v_add_u32 v{B_K}, s{S_T0}, v{t+2}")
    a(f"v_lshlrev_b32 v{B_KR}, 3, v{t}")
    a(f"v_add_u32 v{B_KR}, 2048, v{B_KR}")
    a(f"v_bfe_u32 v{t+2}, v{L}, 2, 2")
    a(f"v_lshl_add_u32 v{t+2}, v{t+1}, 2, v{t+2}")
    a(f"v_mul_u32_u24 v{t+2}, 72, v{t+2}")
    a(f"v_add_u32 v{t+2}, 2304, v{t+2}")
    a(f"v_and_b32 v{t+3}, 3, v{L}")
    a(f"v_lshlrev_b32 v{t+4}, 3, v{t+3}")
    a(f"s_mul_i32 s{S_T0}, s{S_HEAD}, 40")
    a(f"v_add3_u32 v{t+4}, v{t+4}, v{t+2}, s{S_T0}")
    a(f"v_add_u32 v{t+5}, 32, v{t+2}")
    a(f"v_bfe_u32 v{t+6}, v{L}, 4, 1")
    a(f"v_cmp_eq_u32 vcc, 1, v{t+6}")
    a(f"v_lshrrev_b32 v{t+7}, 1, v{t+3}")
    a(f"v_and_b32 v{t+7}, v{t+7}, v{t+6}")
    a(f"v_cndmask_b32 v{B_V}, v{t+4}, v{t+5}, vcc")
    a(f"v_cmp_eq_u32 vcc, 1, v{t+7}")
    a(f"v_mov_b32 v{t+5}, {MISC}")
    a(f"v_mov_b32 v{t+6}, -1")
    a(f"v_cndmask_b32 v{B_V}, v{B_V}, v{t+5}, vcc")
    a(f"v_cndmask_b32_e64 v{MK_V}, v{t+6}, 0, vcc")


def gen(debug_stage=0, timing=False, exp=''):
    a = Asm()
    t = T; L = V_LANE
    def ts(i, force=False):
        if timing and ('tsk' not in exp or force or i in (0, 8, 9, 10, 11)): a(f"{'s_memrealtime' if ('abs' in exp or 'hdbg' in exp) else 's_memtime'} s[{70+2*i}:{71+2*i}]")
    WS = f"s[{S_WS}:{S_WS+3}]"
    def save_exec(val):
        a(f"s_mov_b64 s[{S_SAVE}:{S_SAVE+1}], exec")
        a(f"s_mov_b64 exec, {val}")
    def rest_exec():
        a(f"s_mov_b64 exec, s[{S_SAVE}:{S_SAVE+1}]")

    a.l += [f"; Kernarg layout (72 bytes): A_x, A_wqkv, A_wo, B_x, B_wqkv, B_wo, out, debug, ws",
            f"; @launch grid=(256,1,1) block=(512,1,1) lds={LDS_TOTAL}"]
    a(f""".amdgcn_target "amdgcn-amd-amdhsa--gfx950"
.text
.globl {NAME}_kernel
.p2align 8
.type {NAME}_kernel,@function""")
    a.lab(f"{NAME}_kernel")
    a("s_cmp_ge_u32 s2, 256")
    a("s_cbranch_scc1 L_END")
    a(f"s_and_b32 s3, s2, 7")
    if 'xmap' in exp:
        a(f"s_bfe_u32 s{S_B}, s3, 0x10001")
    else:
        a(f"s_lshr_b32 s{S_B}, s3, 2")
    a(f"s_mul_i32 s{S_T0}, s{S_B}, 24")
    a(f"s_add_u32 s4, s0, s{S_T0}")
    a(f"s_addc_u32 s5, s1, 0")
    a(f"s_load_dwordx2 s[{S_X}:{S_X+1}], s[4:5], 0")
    a(f"s_load_dwordx2 s[{S_W}:{S_W+1}], s[4:5], 8")
    a(f"s_load_dwordx2 s[{S_WO}:{S_WO+1}], s[4:5], 16")
    a(f"s_load_dwordx2 s[{S_OUT}:{S_OUT+1}], s[0:1], 48")
    a(f"s_load_dwordx2 s[{S_WS}:{S_WS+1}], s[0:1], 64")
    if timing:
        for i in range(13): a(f"s_mov_b32 s{70+2*i}, 0")
    ts(0)
    a(f"s_lshr_b32 s{S_I}, s2, 3")
    if 'xmap' in exp:
        a(f"s_and_b32 s{S_T2}, s3, 1")
        a(f"s_lshl_b32 s{S_T2}, s{S_T2}, 2")
        a(f"s_and_b32 s{S_T3}, s{S_I}, 3")
        a(f"s_add_u32 s{S_S}, s{S_T2}, s{S_T3}")
        a(f"s_lshr_b32 s{S_T4}, s{S_I}, 2")
        a(f"s_cmp_lt_u32 s3, 4")
        a(f"s_mov_b32 s{S_T2}, 0xFDB96420")
        a(f"s_cselect_b32 s{S_T2}, 0xECA87531, s{S_T2}")
        a(f"s_lshl_b32 s{S_T0}, s{S_T4}, 2")
        a(f"s_lshr_b32 s{S_T2}, s{S_T2}, s{S_T0}")
        a(f"s_and_b32 s{S_HP}, s{S_T2}, 15")
    else:
        a(f"s_lshr_b32 s{S_T2}, s3, 1")
        a(f"s_and_b32 s{S_T2}, s{S_T2}, 1")
        a(f"s_lshl_b32 s{S_T2}, s{S_T2}, 2")
        a(f"s_and_b32 s{S_T3}, s{S_I}, 3")
        a(f"s_add_u32 s{S_S}, s{S_T2}, s{S_T3}")
        a(f"s_and_b32 s{S_T2}, s3, 1")
        a(f"s_lshl_b32 s{S_T2}, s{S_T2}, 3")
        a(f"s_lshr_b32 s{S_T4}, s{S_I}, 2")
        a(f"s_add_u32 s{S_HP}, s{S_T2}, s{S_T4}")
    a(f"s_lshl_b32 s{S_T3}, s{S_T3}, 1")
    a(f"s_add_u32 s{S_C}, s{S_T4}, s{S_T3}")
    a(f"s_cmp_ge_u32 s{S_C}, 9")
    a(f"s_cselect_b32 s{S_T3}, 9, 0")
    a(f"s_sub_u32 s{S_C}, s{S_C}, s{S_T3}")
    if 'norot' in exp: a(f"s_mov_b32 s{S_C}, 0")
    for key, mul in (('rot2', 2), ('rot3', 3)):
        if key in exp or (key == 'rot2' and 'rot' not in exp):
            a(f"s_lshr_b32 s{S_C}, s{S_T4}, 1")
            a(f"s_and_b32 s{S_T3}, s{S_I}, 3")
            a(f"s_add_u32 s{S_C}, s{S_C}, s{S_T3}")
            a(f"s_mul_i32 s{S_C}, s{S_C}, {mul}")
            for _ in range(2):
                a(f"s_cmp_ge_u32 s{S_C}, 9")
                a(f"s_cselect_b32 s{S_T3}, 9, 0")
                a(f"s_sub_u32 s{S_C}, s{S_C}, s{S_T3}")
    if 'rot4' in exp:
        a(f"s_lshr_b32 s{S_C}, s{S_T4}, 2")
        a(f"s_and_b32 s{S_T3}, s{S_I}, 3")
        a(f"s_lshr_b32 s{S_T3}, s{S_T3}, 1")
        a(f"s_add_u32 s{S_C}, s{S_C}, s{S_T3}")
        a(f"s_mul_i32 s{S_C}, s{S_C}, 3")
    a(f"s_lshl_b32 s{S_T0}, s{S_B}, 4")
    a(f"s_add_u32 s{S_T0}, s{S_T0}, s{S_HP}")
    a(f"s_lshl_b32 s{S_T0}, s{S_T0}, 3")
    a(f"s_add_u32 s{S_IDX}, s{S_T0}, s{S_S}")
    a(f"s_lshl_b32 s{S_T0}, s{S_B}, 3")
    a(f"s_add_u32 s{S_GRP}, s{S_T0}, s{S_S}")
    a(f"v_lshrrev_b32 v{t}, 6, v0")
    a(f"v_and_b32 v{L}, 63, v0")
    a(f"v_readfirstlane_b32 s{S_WID}, v{t}")
    for (r, n) in ((S_X, 2359296), (S_W, 1990656), (S_WO, 663552), (S_WS, 268435456), (S_OUT, 4718592)):
        a(f"s_mov_b32 s{r+2}, {n}")
        a(f"s_mov_b32 s{r+3}, 0x00020000")
    a(f"s_and_b32 s{S_M}, s{S_WID}, 3")
    a(f"s_lshr_b32 s{S_HEAD}, s{S_WID}, 2")
    a(f"s_sub_u32 s{S_MB}, 7, s{S_M}")
    a(f"s_lshl_b32 s{S_T0}, s{S_GRP}, 18")
    a(f"s_add_u32 s{S_T0}, s{S_T0}, {WS_O}")
    a(f"s_lshl_b32 s{S_T1}, s{S_HP}, 10")
    a(f"s_lshl_b32 s{S_T2}, s{S_HEAD}, 9")
    a(f"s_add_u32 s{S_T1}, s{S_T1}, s{S_T2}")
    a(f"s_add_u32 s{S_OM}, s{S_T1}, s{S_T0}")
    a(f"s_lshl_b32 s{S_T0}, s{S_GRP}, 15")
    a(f"s_add_u32 s{S_T0}, s{S_T0}, {WS_OR}")
    a(f"s_lshl_b32 s{S_T1}, s{S_HP}, 1")
    a(f"s_add_u32 s{S_T1}, s{S_T1}, s{S_HEAD}")
    a(f"s_lshl_b32 s{S_T1}, s{S_T1}, 10")
    a(f"s_add_u32 s{S_OR}, s{S_T1}, s{S_T0}")
    a(f"s_lshl_b32 s{S_OFS}, s{S_GRP}, 12")
    a(f"s_add_u32 s{S_OFS}, s{S_OFS}, {WS_OF}")
    a(f"s_cmp_lt_u32 s{S_WID}, 4")
    a("s_cbranch_scc1 L_COMPUTE")

    emit_masks = lambda: emit_masks_(a)
    emit_p2_patterns = lambda: emit_p2_patterns_(a)

    a(f"s_sub_u32 s{S_L}, s{S_WID}, 4")
    a(f"v_lshrrev_b32 v{t}, 3, v{L}")
    a(f"v_mul_u32_u24 v{t}, 1152, v{t}")
    a(f"v_lshrrev_b32 v{t+1}, 4, v{L}")
    a(f"v_and_b32 v{t+2}, 7, v{L}")
    a(f"v_xor_b32 v{t+3}, v{t+2}, v{t+1}")
    a(f"v_lshl_add_u32 v{V_AX}, v{t+3}, 4, v{t}")
    a(f"v_xor_b32 v{t+3}, 4, v{t+3}")
    a(f"v_lshl_add_u32 v{V_AX+1}, v{t+3}, 4, v{t}")
    a(f"s_mul_i32 s{S_T0}, s{S_HP}, 72")
    a(f"s_and_b32 s{S_T0}, s{S_T0}, 0xfffffff0")
    a(f"v_and_b32 v{t+2}, 15, v{L}")
    a(f"v_mul_u32_u24 v{t+4}, 3456, v{t+1}")
    a(f"v_add_u32 v{t+4}, s{S_T0}, v{t+4}")
    for var in range(2):
        a(f"v_lshlrev_b32 v{t+3}, 1, v{t+1}")
        a(f"v_sub_u32 v{t+3}, v{t+2}, v{t+3}")
        if var: a(f"v_subrev_u32 v{t+3}, 8, v{t+3}")
        a(f"v_and_b32 v{t+3}, 15, v{t+3}")
        a(f"v_min_u32 v{t+3}, 14, v{t+3}")
        a(f"v_mul_u32_u24 v{t+5}, 13, v{t+3}")
        a(f"v_lshrrev_b32 v{t+5}, 6, v{t+5}")
        a(f"v_mul_u32_u24 v{t+6}, 5, v{t+5}")
        a(f"v_sub_u32 v{t+6}, v{t+3}, v{t+6}")
        a(f"v_mul_u32_u24 v{t+5}, 1152, v{t+5}")
        a(f"v_lshl_add_u32 v{t+6}, v{t+6}, 4, v{t+5}")
        a(f"v_add_u32 v{V_AX+2+var}, v{t+4}, v{t+6}")
    for i in range(8):
        a(f"v_add_u32 v{V_LDX+i}, {i*9216-(i&3)*1024}, v{V_AX+(i&1)}")
    for i in range(4):
        a(f"v_add_u32 v{V_LDW+i}, {i*4*3456-i*1024}, v{V_AX+2+(i>>1)}")
    a(f"s_lshl_b32 s{S_T0}, s{S_S}, 8")
    a(f"s_lshl_b32 s{S_T1}, s{S_L}, 6")
    a(f"s_add_u32 s{S_T0}, s{S_T0}, s{S_T1}")
    a(f"s_mul_i32 s{S_XB}, s{S_T0}, 1152")
    a(f"s_mul_i32 s{S_WB}, s{S_L}, {16*3456}")
    a(f"s_lshl_b32 s{S_LX}, s{S_L}, 13")
    a(f"s_lshl_b32 s{S_LW}, s{S_L}, 12")
    a(f"s_add_u32 s{S_LW}, s{S_LW}, 32768")
    a(f"s_mov_b32 s{S_SB}, 0")
    def chunk_pre():
        a(f"s_lshl_b32 s{S_T0}, s{S_C}, 7")
        a(f"s_add_u32 s{S_T0}, s{S_T0}, s{S_XB}")
        a(f"s_mul_i32 s{S_T1}, s{S_C}, {64*3456}")
        a(f"s_add_u32 s{S_T1}, s{S_T1}, s{S_WB}")
        a(f"s_add_u32 s{S_T2}, s{S_SB}, s{S_LW}")
        a(f"s_add_u32 s{S_T3}, s{S_SB}, s{S_LX}")
        a(f"s_add_u32 s{S_C}, s{S_C}, 1")
        a(f"s_cmp_eq_u32 s{S_C}, 9")
        a(f"s_cselect_b32 s{S_C}, 0, s{S_C}")
        a(f"s_add_u32 s{S_SB}, s{S_SB}, {STAGE}")
        a(f"s_cmp_eq_u32 s{S_SB}, {3*STAGE}")
        a(f"s_cselect_b32 s{S_SB}, 0, s{S_SB}")
    def chunk_w():
        a(f"s_mov_b32 m0, s{S_T2}")
        a("s_nop 0")
        for i in range(4):
            a(f"buffer_load_dwordx4 v{V_LDW+i}, s[{S_W}:{S_W+3}], s{S_T1} offen offset:{i*1024} lds")
    def chunk_x(lo, hi):
        for i in range(lo, hi):
            if i == lo or i == 4:
                a(f"s_add_u32 m0, s{S_T3}, {(i&~3)*1024}")
                a("s_nop 0")
            a(f"buffer_load_dwordx4 v{V_LDX+i}, s[{S_X}:{S_X+3}], s{S_T0} offen offset:{(i&3)*1024} lds")
    chunk_pre()
    a("s_waitcnt lgkmcnt(0)")
    chunk_w(); chunk_x(0, 8)
    chunk_pre(); chunk_w(); chunk_x(0, 2)
    a("s_waitcnt vmcnt(6)")
    a("s_barrier")
    chunk_x(2, 8)
    chunk_pre()
    a(f"s_mov_b32 s{S_K}, 2")
    a.lab("L_LD")
    chunk_w(); chunk_x(0, 8)
    chunk_pre()
    a(f"s_add_u32 s{S_K}, s{S_K}, 1")
    a(f"s_cmp_lt_u32 s{S_K}, 9")
    a("s_waitcnt vmcnt(12)")
    a("s_barrier")
    a("s_cbranch_scc1 L_LD")
    a(f"s_lshl_b32 s{S_T0}, s{S_L}, 6")
    a(f"v_add_u32 v{t}, s{S_T0}, v{L}")
    a(f"v_mul_u32_u24 v{t+1}, 7282, v{t}")
    a(f"v_lshrrev_b32 v{t+1}, 16, v{t+1}")
    a(f"v_mul_u32_u24 v{t+2}, 9, v{t+1}")
    a(f"v_sub_u32 v{t+2}, v{t}, v{t+2}")
    a(f"v_mul_u32_u24 v{t+1}, 1152, v{t+1}")
    a(f"v_lshl_add_u32 v{t+1}, v{t+2}, 7, v{t+1}")
    a(f"s_mul_i32 s{S_T0}, s{S_I}, {18*1152}")
    a(f"v_cmp_gt_u32 vcc, 162, v{t}")
    a(f"v_cndmask_b32_e64 v{t+1}, 0, v{t+1}, vcc")
    a(f"buffer_load_dword v255, v{t+1}, s[{S_WO}:{S_WO+3}], s{S_T0} offen")
    emit_masks()
    emit_p2_patterns()
    a(f"v_mul_u32_u24 v{t+1}, 7282, v{L}")
    a(f"v_lshrrev_b32 v{t+1}, 16, v{t+1}")
    a(f"v_mul_u32_u24 v{t+2}, 9, v{t+1}")
    a(f"v_sub_u32 v{t+2}, v{L}, v{t+2}")
    a(f"v_mul_u32_u24 v{t+1}, 1152, v{t+1}")
    a(f"v_lshl_add_u32 v{t+1}, v{t+2}, 4, v{t+1}")
    a(f"s_and_b32 s{S_T0}, s{S_HP}, 7")
    a(f"s_mul_i32 s{S_T0}, s{S_T0}, 144")
    a(f"v_add_u32 v{V_WOV}, s{S_T0}, v{t+1}")
    for j in range(1, 4): a(f"v_add_u32 v{V_WOV+j}, {j*(8064-1008)}, v{V_WOV}")
    a(f"s_mul_i32 s{S_T0}, s{S_L}, {21*1008}")
    a(f"s_mul_i32 s{S_T1}, s{S_L}, {21*8064}")
    a("s_waitcnt vmcnt(1)")
    a("s_barrier")
    WO = f"s[{S_WO}:{S_WO+3}]"
    NW1 = 8 if 'wo8' not in exp else 4
    a(f"s_bitset0_b64 exec, 63")
    for j in range(21):
        if j == NW1:
            a(f"s_mov_b64 exec, -1")
            a("s_barrier")
            a(f"s_bitset0_b64 exec, 63")
        if j == 19:
            a(f"s_cmp_eq_u32 s{S_L}, 3")
            a("s_cbranch_scc0 L_WO_N")
            a(f"s_mov_b64 exec, 0x3ffff")
            a(f"buffer_load_dwordx4 v{V_WOV+(j&3)}, {WO}, s{S_T2} offen offset:{(j&3)*1008} lds")
            a("s_branch L_WO_DONE")
            a.lab("L_WO_N")
        if j % 4 == 0:
            a(f"s_add_u32 m0, s{S_T0}, {j*1008}")
            a(f"s_add_u32 s{S_T2}, s{S_T1}, {j*8064}")
        a(f"buffer_load_dwordx4 v{V_WOV+(j&3)}, {WO}, s{S_T2} offen offset:{(j&3)*1008} lds")
    a.lab("L_WO_DONE")
    a(f"s_mov_b64 exec, -1")
    for r in range(16):
        a(f"v_mov_b32 v{OA+r}, 0")
        a(f"v_mov_b32 v{OB+r}, 0")
    a(f"v_lshlrev_b32 v{V_PA}, 4, v{L}")
    a(f"s_lshl_b32 s{S_T0}, s{S_L}, 10")
    a(f"v_add_u32 v{V_PA}, s{S_T0}, v{V_PA}")
    a(f"v_add_u32 v{V_PA+1}, {KV_OWN}, v{V_PA}")
    a(f"s_mul_i32 s{S_T1}, s{S_IDX}, 36864")
    a("s_barrier")
    a(f"s_cmp_eq_u32 s{S_S}, 7")
    a("s_cbranch_scc1 L_NOPUB")
    order = [8, 7, 6, 5, 4, 3, 2, 1, 0]
    for c, i in enumerate(order):
        a(f"ds_read_b128 v[{VH+4*c}:{VH+4*c+3}], v{V_PA+1} offset:{i*4096}")
    for c, i in enumerate(order[:5]):
        a(f"s_waitcnt lgkmcnt({8-c})")
        a(f"s_add_u32 s{S_T2}, s{S_T1}, {i*4096}")
        a(f"buffer_store_dwordx4 v[{VH+4*c}:{VH+4*c+3}], v{V_PA}, {WS}, s{S_T2} offen sc1")
    a.lab("L_NOPUB")
    a("s_branch L_P2")

    a.lab("L_COMPUTE")
    if 'dry' in exp and 'nodry' not in exp:
        emit_p2_patterns()
        a(f"s_mov_b32 s{S_U}, 0")
        a(f"s_mov_b32 s{S_HOOK}, 100000")
        set_run(a, KV_OWN, None, [f"s_mov_b32 s{S_N}, 3"], TILE)
        a(f"s_bitcmp1_b32 s{S_WID}, 0")
        a("s_cbranch_scc1 L_DRYB")
        a(f"s_call_b64 s[{S_RET}:{S_RET+1}], L_RUNA")
        a("s_branch L_DRYE")
        a.lab("L_DRYB")
        a(f"s_call_b64 s[{S_RET}:{S_RET+1}], L_RUNB")
        a.lab("L_DRYE")
        a("s_waitcnt lgkmcnt(0)")
    a(f"v_and_b32 v{t}, 15, v{L}")
    a(f"v_lshrrev_b32 v{t+1}, 4, v{L}")
    a(f"v_lshrrev_b32 v{t+2}, 1, v{t}")
    a(f"s_lshl_b32 s{S_T0}, s{S_WID}, 6")
    a(f"v_add_u32 v{t+3}, s{S_T0}, v{t}")
    a(f"v_lshlrev_b32 v{t+3}, 7, v{t+3}")
    a(f"v_xor_b32 v{t+4}, v{t+1}, v{t+2}")
    a(f"v_lshlrev_b32 v{t+5}, 4, v{t+4}")
    a(f"v_add_u32 v{V_AX}, v{t+3}, v{t+5}")
    a(f"v_xor_b32 v{t+4}, 4, v{t+4}")
    a(f"v_lshlrev_b32 v{t+5}, 4, v{t+4}")
    a(f"v_add_u32 v{V_AX+1}, v{t+3}, v{t+5}")
    a(f"v_bfe_u32 v{t}, v{L}, 2, 2")
    a(f"v_and_b32 v{t+2}, 3, v{L}")
    a(f"v_and_b32 v{t+3}, 1, v{t+1}")
    a(f"v_lshl_add_u32 v{t+3}, v{t+3}, 2, v{t}")
    a(f"v_lshlrev_b32 v{t+3}, 5, v{t+3}")
    a(f"v_lshl_add_u32 v{t+4}, v{t+1}, 3, v{t}")
    a(f"v_lshlrev_b32 v{t+4}, 8, v{t+4}")
    a(f"v_add_u32 v{t+4}, 32768, v{t+4}")
    a(f"v_lshlrev_b32 v{t+5}, 3, v{t+2}")
    a(f"s_and_b32 s{S_T1}, s{S_HP}, 1")
    a(f"s_lshl_b32 s{S_T1}, s{S_T1}, 3")
    a(f"v_add3_u32 v{t+5}, v{t+5}, v{t+3}, s{S_T1}")
    for Tn in range(6):
        off = 80*(Tn >> 1) + (40 if Tn & 1 else 0)
        a(f"v_add_u32 v{t+6}, {off}, v{t+5}")
        a(f"v_and_b32 v{t+6}, 255, v{t+6}")
        a(f"v_add_u32 v{V_AW+Tn}, v{t+4}, v{t+6}")
    a(f"v_min_u32 v{t+6}, 2, v{t+2}")
    a(f"v_mul_u32_u24 v{t+6}, 80, v{t+6}")
    a(f"v_add3_u32 v{t+6}, v{t+6}, v{t+3}, s{S_T1}")
    a(f"v_add_u32 v{t+6}, 32, v{t+6}")
    a(f"v_and_b32 v{t+6}, 255, v{t+6}")
    a(f"v_add_u32 v{V_AW+6}, v{t+4}, v{t+6}")
    a(f"v_and_b32 v{t}, 15, v{L}")
    a(f"v_lshrrev_b32 v{t+1}, 4, v{L}")
    a(f"v_and_b32 v{t+2}, 1, v{t+1}")
    a(f"v_lshl_add_u32 v{t+2}, v{t+2}, 4, v{t}")
    a(f"v_lshrrev_b32 v{t+3}, 2, v{t}")
    a(f"v_lshrrev_b32 v{t+4}, 3, v{t}")
    a(f"v_xor_b32 v{t+3}, v{t+3}, v{t+4}")
    a(f"v_lshrrev_b32 v{t+4}, 1, v{t+1}")
    a(f"v_xor_b32 v{t+3}, v{t+3}, v{t+4}")
    a(f"v_and_b32 v{t+3}, 1, v{t+3}")
    a(f"v_lshlrev_b32 v{t+3}, 4, v{t+3}")
    a(f"v_lshl_add_u32 v{t+3}, v{t+2}, 5, v{t+3}")
    a(f"s_mul_i32 s{S_T0}, s{S_WID}, {2*TILE}")
    a(f"s_add_u32 s{S_T0}, s{S_T0}, {KV_OWN}")
    a(f"s_mul_i32 s{S_T1}, s{S_WID}, {2*QTILE}")
    a(f"s_add_u32 s{S_T1}, s{S_T1}, {Q_BASE}")
    a(f"v_add_u32 v{vEK}, s{S_T0}, v{t+3}")
    a(f"v_add_u32 v{vEQ}, s{S_T1}, v{t+3}")
    a(f"v_mul_u32_u24 v{t+4}, 72, v{t}")
    a(f"v_lshl_add_u32 v{t+5}, v{t+1}, 3, v{t+4}")
    a(f"v_add_u32 v{t+5}, 2304, v{t+5}")
    a(f"v_add_u32 v{vEV}, s{S_T0}, v{t+5}")
    a(f"v_lshlrev_b32 v{t+5}, 3, v{t}")
    a(f"v_add_u32 v{t+5}, 2048, v{t+5}")
    a(f"v_add_u32 v{t+6}, s{S_T1}, v{t+5}")
    a(f"v_add_u32 v{t+7}, s{S_T0}, v{t+5}")
    a(f"v_add_u32 v{t+4}, {2304+32}, v{t+4}")
    a(f"v_add_u32 v{t+4}, s{S_T0}, v{t+4}")
    a(f"v_mov_b32 v{vDr}, 128")
    a(f"v_mov_b32 v{vDt}, {TILE}")
    a(f"v_mov_b32 v{vF}, 1.0")
    a(f"v_mov_b32 v{vE6}, v{t+7}")
    a(f"v_cmp_eq_u32 vcc, 0, v{t+1}")
    a(f"v_mov_b32 v{t+5}, {QTILE}")
    a(f"v_mov_b32 v{vC}, {f32bits(QSCALE):#x}")
    a(f"v_cndmask_b32 v{vE6}, v{vE6}, v{t+6}, vcc")
    a(f"v_cndmask_b32 v{vDt}, v{vDt}, v{t+5}, vcc")
    a(f"v_cndmask_b32 v{vF}, v{vF}, v{vC}, vcc")
    a(f"v_cmp_eq_u32 vcc, 2, v{t+1}")
    a(f"v_mov_b32 v{t+5}, 1152")
    a(f"v_mov_b32 v{vC+1}, v{vC}")
    a(f"v_cndmask_b32 v{vE6}, v{vE6}, v{t+4}, vcc")
    a(f"v_cndmask_b32 v{vDr}, v{vDr}, v{t+5}, vcc")
    a(f"v_mov_b32 v{vF+1}, v{vF}")
    a("s_waitcnt lgkmcnt(0)")
    if 'nocp' not in exp:
        a(f"s_cmp_lg_u32 s{S_WID}, 3")
        a("s_cbranch_scc1 L_NOCP")
        a(f"s_getpc_b64 s[{S_RET}:{S_RET+1}]")
        a.lab("L_PCREF")
        a(f"s_sub_u32 s{S_RET}, s{S_RET}, L_PCREF-{NAME}_kernel")
        a(f"s_subb_u32 s{S_RET+1}, s{S_RET+1}, 0")
        a(f"s_mul_i32 s{S_T0}, s{S_I}, {5*128}")
        a(f"v_lshlrev_b32 v{t}, 7, v{L}")
        a(f"v_add_u32 v{t}, s{S_T0}, v{t}")
        a(f"s_mov_b32 s{S_T1}, L_END-{NAME}_kernel")
        a(f"v_cmp_gt_u32 vcc, s{S_T1}, v{t}")
        a(f"s_and_b64 vcc, vcc, 31")
        a(f"s_and_saveexec_b64 s[{S_SAVE}:{S_SAVE+1}], vcc")
        a("s_cbranch_execz L_NOCP2")
        a(f"global_load_dword v{V_TL}, v{t}, s[{S_RET}:{S_RET+1}]")
        a.lab("L_NOCP2")
        rest_exec()
        a.lab("L_NOCP")
    a(f"s_cmp_lg_u32 s{S_WID}, 0")
    a("s_cbranch_scc1 L_NOG0")
    a(f"s_lshl_b32 s{S_T0}, s{S_IDX}, 8")
    a(f"s_add_u32 s{S_T0}, s{S_T0}, {WS_FLAG}")
    a(f"s_lshl_b32 s{S_T1}, s{S_GRP}, 12")
    a(f"s_add_u32 s{S_T1}, s{S_T1}, {WS_OF}")
    a(f"v_mov_b32 v{t}, 0")
    a(f"buffer_load_dword v{V_TG}, v{t}, {WS}, s{S_T0} offen sc1")
    a(f"s_sub_u32 s{S_T0}, s{S_T0}, 256")
    a(f"s_max_u32 s{S_T0}, s{S_T0}, {WS_FLAG}")
    a(f"buffer_load_dword v{V_TG+1}, v{t}, {WS}, s{S_T0} offen sc1")
    a(f"buffer_load_dword v{V_TG+2}, v{t}, {WS}, s{S_T1} offen sc1")
    a.lab("L_NOG0")
    for i in range(112):
        a(f"v_mov_b32 v{V_ACC+i}, 0")
    emit_masks()
    emit_p2_patterns()
    a(f"v_mov_b32 v{t+2}, 0x3f803f80")
    a(f"v_mov_b32 v{t+3}, 0x3f803f80")
    a(f"v_mul_u32_u24 v{t+4}, 576, v{L}")
    a(f"v_add_u32 v{t+4}, {MISC}, v{t+4}")
    save_exec(15)
    a(f"ds_write_b64 v{t+4}, v[{t+2}:{t+3}]")
    rest_exec()
    a(f"s_cmp_lg_u32 s{S_WID}, 0")
    a("s_cbranch_scc1 L_NOG1")
    a("s_waitcnt vmcnt(0)")
    for i in range(3): a(f"v_add_u32 v{V_TG+i}, {TAG_INC:#x}, v{V_TG+i}")
    a(f"v_mov_b32 v{V_TG+3}, 0")
    a(f"v_mov_b32 v{t+4}, {TAGS_LDS}")
    save_exec(1)
    a(f"ds_write_b128 v{t+4}, v[{V_TG}:{V_TG+3}]")
    for i in range(4): a(f"v_mov_b32 v{V_TG+i}, 0")
    a(f"ds_write_b128 v{t+4}, v[{V_TG}:{V_TG+3}] offset:16")
    rest_exec()
    a.lab("L_NOG1")
    a("s_waitcnt lgkmcnt(0)")
    a("s_barrier")
    if "tsh" not in exp and "tsj" not in exp: ts(1)
    def reads(setb, ks):
        xs = [f"ds_read_b128 v[{setb+4*mt}:{setb+4*mt+3}], v{V_AX+ks} offset:{mt*2048}" for mt in range(4)]
        ws = []
        for Tn in range(7):
            b = setb + 16 + 4*Tn
            ws.append(f"ds_read_b64_tr_b16 v[{b}:{b+1}], v{V_AW+Tn} offset:{ks*8192}")
            ws.append(f"ds_read_b64_tr_b16 v[{b+2}:{b+3}], v{V_AW+Tn} offset:{ks*8192+1024}")
        return [xs[0], ws[0], ws[1], xs[1], ws[2], ws[3], xs[2], ws[4], ws[5], xs[3]] + ws[6:]
    def mfmas(setb):
        m = []
        for Tn in range(7):
            for mt in range(4):
                d = V_ACC + (mt*7+Tn)*4
                m.append(f"v_mfma_f32_16x16x32_bf16 v[{d}:{d+3}], v[{setb+16+4*Tn}:{setb+16+4*Tn+3}], v[{setb+4*mt}:{setb+4*mt+3}], v[{d}:{d+3}]")
        return m
    def interleave(ms, extra, per=1):
        ri = 0
        for i, m in enumerate(ms):
            a(m)
            for _ in range(per):
                if ri < len(extra): a(extra[ri]); ri += 1
        while ri < len(extra):
            a(extra[ri]); ri += 1
    for i in range(4): a(f"v_mov_b32 v{V_TG+i}, -1")
    a(f"v_lshlrev_b32 v{V_TL+1}, 4, v{L}")
    a(f"s_lshl_b32 s{S_XB}, s{S_GRP}, 18")
    a(f"s_add_u32 s{S_XB}, s{S_XB}, {WS_O}")
    a(f"s_lshl_b32 s{S_T0}, s{S_WID}, 16")
    a(f"s_add_u32 s{S_XB}, s{S_XB}, s{S_T0}")
    a(f"s_lshl_b32 s{S_T0}, s{S_HP}, 10")
    a(f"s_add_u32 s{S_XB}, s{S_XB}, s{S_T0}")
    a(f"s_lshl_b32 s{S_WB}, s{S_GRP}, 15")
    a(f"s_add_u32 s{S_WB}, s{S_WB}, {WS_OR}")
    a(f"s_lshl_b32 s{S_T0}, s{S_HP}, 1")
    a(f"s_and_b32 s{S_T1}, s{S_WID}, 1")
    a(f"s_add_u32 s{S_T0}, s{S_T0}, s{S_T1}")
    a(f"s_lshl_b32 s{S_T0}, s{S_T0}, 10")
    a(f"s_add_u32 s{S_WB}, s{S_WB}, s{S_T0}")
    for rd in reads(V_SET0, 0): a(rd)
    a(f"s_mov_b32 s{S_K}, 0")
    a(f"s_mov_b32 s{S_SB}, 0")
    if 'tb' in exp: a(f"v_mov_b32 v{V_TL}, 0")
    a.lab("L_GEMM")
    a(f"s_cmp_lt_u32 s{S_K}, 7")
    a("s_cbranch_scc1 L_GEMM_NC")
    a(f"buffer_store_dwordx4 v[{V_TG}:{V_TG+3}], v{V_TL+1}, {WS}, s{S_XB} offen sc1")
    a(f"s_add_u32 s{S_XB}, s{S_XB}, 16384")
    a(f"buffer_store_dwordx4 v[{V_TG}:{V_TG+3}], v{V_TL+1}, {WS}, s{S_XB} offen sc1")
    a(f"s_add_u32 s{S_XB}, s{S_XB}, 16384")
    a(f"s_cmp_eq_u32 s{S_K}, 8")
    a("s_cbranch_scc1 L_GEMM_NC")
    a(f"buffer_store_dwordx4 v[{V_TG}:{V_TG+3}], v{V_TL+1}, {WS}, s{S_WB} offen sc1")
    a.lab("L_GEMM_NC")
    a("s_waitcnt lgkmcnt(0)")
    if 'tb' in exp:
        a(f"s_sub_u32 s92, s92, s70")
        a(f"s_mov_b32 m0, s{S_K}")
        a("s_nop 4")
        a(f"v_writelane_b32 v{V_TL}, s92, m0")
    sal = [f"s_add_u32 s{S_SB}, s{S_SB}, 1", f"s_cmp_eq_u32 s{S_SB}, 3", f"s_mov_b32 s{S_T0}, {STAGE}",
           f"s_cselect_b32 s{S_T0}, {(-2*STAGE) & 0xffffffff}, s{S_T0}", f"s_cselect_b32 s{S_SB}, 0, s{S_SB}"]
    interleave(mfmas(V_SET0), reads(V_SET1, 1) + sal)
    a("s_waitcnt lgkmcnt(0)")
    a("s_barrier")
    if 'tb' in exp: a("s_memtime s[92:93]")
    rd = reads(V_SET0, 0)
    adds = [f"v_add_u32 v{V_AX+i}, s{S_T0}, v{V_AX+i}" for i in range(9)]
    ex = [adds[0], adds[2], rd[0], rd[1], rd[2], adds[3], rd[3], rd[4], rd[5], adds[4], rd[6], rd[7], rd[8], rd[9],
          adds[5], rd[10], rd[11], adds[6], rd[12], rd[13], adds[7], rd[14], rd[15], adds[8], rd[16], rd[17], adds[1],
          f"s_add_u32 s{S_K}, s{S_K}, 1", f"s_cmp_lt_u32 s{S_K}, 9"]
    ms = mfmas(V_SET1)
    ri = 0
    for i, m in enumerate(ms):
        a(m)
        n = 2 if i < 6 else 1
        for _ in range(n):
            if ri < len(ex): a(ex[ri]); ri += 1
    assert ri == len(ex)
    a("s_cbranch_scc1 L_GEMM")
    if "tsh" not in exp and "tsj" not in exp: ts(2)
    a.c("phase-1 epilogue")
    a("s_waitcnt lgkmcnt(0)")
    acc = lambda mt, Tn: V_ACC + (mt*7+Tn)*4
    e = [V_SET0]
    def qk_tile(Tn, base_reg, pstride, hoff):
        for p in range(2):
            R = e[0]; e[0] += 4
            da, db = acc(2*p, Tn), acc(2*p+1, Tn)
            a(f"v_cvt_pk_bf16_f32 v{R}, v{da}, v{da+1}")
            a(f"v_cvt_pk_bf16_f32 v{R+2}, v{db}, v{db+1}")
            a(f"v_cvt_pk_bf16_f32 v{R+1}, v{da+2}, v{da+3}")
            a(f"v_cvt_pk_bf16_f32 v{R+3}, v{db+2}, v{db+3}")
            a("s_nop 0")
            a(f"v_permlane16_swap_b32 v{R}, v{R+2}")
            a(f"v_permlane16_swap_b32 v{R+1}, v{R+3}")
            a(f"ds_write_b128 v{base_reg}, v[{R}:{R+3}] offset:{p*pstride+hoff}")
    a("s_nop 3")
    qk_tile(2, vEK, TILE, 0)
    qk_tile(3, vEK, TILE, 1024)
    for Tn in (4, 5):
        for mt in range(4):
            R = e[0]; e[0] += 2
            d = acc(mt, Tn)
            a(f"v_cvt_pk_bf16_f32 v{R}, v{d}, v{d+1}")
            a(f"v_cvt_pk_bf16_f32 v{R+1}, v{d+2}, v{d+3}")
            a(f"ds_write_b64 v{vEV}, v[{R}:{R+1}] offset:{(mt>>1)*TILE + (mt&1)*1152 + (40 if Tn==5 else 0)}")
    R6 = e[0]; e[0] += 8
    for mt in range(4):
        d = acc(mt, 6)
        a(f"v_pk_mul_f32 v[{d}:{d+1}], v[{d}:{d+1}], v[{vF}:{vF+1}]")
        a(f"v_pk_mul_f32 v[{d+2}:{d+3}], v[{d+2}:{d+3}], v[{vF}:{vF+1}]")
    for mt in range(4):
        d = acc(mt, 6)
        a(f"v_cvt_pk_bf16_f32 v{R6+2*mt}, v{d}, v{d+1}")
        a(f"v_cvt_pk_bf16_f32 v{R6+2*mt+1}, v{d+2}, v{d+3}")
    a(f"v_add_u32 v{t}, v{vE6}, v{vDr}")
    a(f"v_add_u32 v{t+1}, v{vE6}, v{vDt}")
    a(f"v_add_u32 v{t+2}, v{t+1}, v{vDr}")
    a(f"s_mov_b64 s[{S_SAVE}:{S_SAVE+1}], exec")
    a(f"s_mov_b32 exec_hi, 0x0000ffff")
    a(f"ds_write_b64 v{vE6}, v[{R6}:{R6+1}]")
    a(f"ds_write_b64 v{t}, v[{R6+2}:{R6+3}]")
    a(f"ds_write_b64 v{t+1}, v[{R6+4}:{R6+5}]")
    a(f"ds_write_b64 v{t+2}, v[{R6+6}:{R6+7}]")
    rest_exec()
    a("s_waitcnt lgkmcnt(0)")
    a("s_barrier")
    for mt in range(4):
        for Tn in (0, 1):
            d = acc(mt, Tn)
            a(f"v_pk_mul_f32 v[{d}:{d+1}], v[{d}:{d+1}], v[{vC}:{vC+1}]")
            a(f"v_pk_mul_f32 v[{d+2}:{d+3}], v[{d+2}:{d+3}], v[{vC}:{vC+1}]")
    e[0] = 84
    qk_tile(0, vEQ, QTILE, 0)
    qk_tile(1, vEQ, QTILE, 1024)
    for r in range(16):
        a(f"v_mov_b32 v{OA+r}, 0")
        a(f"v_mov_b32 v{OB+r}, 0")

    a.lab("L_P2")
    a(f"v_mov_b32 v{t}, {TAGS_LDS}")
    a(f"ds_read_b128 v[{V_TG}:{V_TG+3}], v{t}")
    a("s_waitcnt lgkmcnt(0)")
    a("s_barrier")
    ts(3)
    if debug_stage == 1:
        a(f"s_lshl_b32 s{S_T0}, s{S_IDX}, 16")
        a(f"v_lshlrev_b32 v{t}, 4, v0")
        for i in range(7):
            a(f"v_add_u32 v{t+1}, {KV_OWN + i*8192}, v{t}")
            a(f"ds_read_b128 v[40:43], v{t+1}")
            a("s_waitcnt lgkmcnt(0)")
            a(f"v_add_u32 v{t+2}, {i*8192}, v{t}")
            a(f"buffer_store_dwordx4 v[40:43], v{t+2}, {WS}, s{S_T0} offen")
            a("s_waitcnt vmcnt(0)")
        a("s_branch L_FIN")
    if debug_stage == 9:
        a("s_branch L_FIN")
    if debug_stage not in (1, 9):
        phase2(a, debug_stage, ts, exp, save_exec, rest_exec)
        phase3(a, debug_stage, ts, exp, save_exec, rest_exec)
    a.lab("L_FIN")
    if 'hdbg' in exp:
        a("s_waitcnt vmcnt(0) lgkmcnt(0)")
        a("s_memrealtime s[94:95]")
        a(f"s_load_dwordx2 s[{S_X}:{S_X+1}], s[0:1], 56")
        a("s_waitcnt lgkmcnt(0)")
        a(f"s_cmp_lg_u32 s{S_WID}, 4")
        a("s_cbranch_scc1 L_END")
        a(f"s_mov_b32 s{S_X+2}, 256")
        a(f"s_mov_b32 s{S_X+3}, 0x00020000")
        a("s_mov_b64 exec, 1")
        a("v_mov_b32 v2, 0")
        a("s_not_b32 s33, s70")
        a("v_mov_b32 v3, s33")
        a(f"buffer_atomic_umax v3, v2, s[{S_X}:{S_X+3}], 0 offen offset:0")
        a("v_mov_b32 v3, s70")
        a(f"buffer_atomic_umax v3, v2, s[{S_X}:{S_X+3}], 0 offen offset:4")
        for k, i in enumerate((3, 4, 5, 7, 8, 10, 9, 11, 12)):
            a(f"v_mov_b32 v{4+k}, s{70+2*i}")
            a(f"buffer_atomic_umax v{4+k}, v2, s[{S_X}:{S_X+3}], 0 offen offset:{8+4*k}")
        a("s_waitcnt vmcnt(0)")
        a("s_branch L_END")
    if timing:
        a("s_waitcnt vmcnt(0) lgkmcnt(0)")
        a(f"{'s_memrealtime' if ('abs' in exp or 'hdbg' in exp) else 's_memtime'} s[94:95]")
        a("s_waitcnt lgkmcnt(0)")
        a(f"s_lshl_b32 s{S_T0}, s2, 3")
        a(f"s_add_u32 s{S_T0}, s{S_T0}, s{S_WID}")
        a(f"s_lshl_b32 s{S_T0}, s{S_T0}, 6")
        a(f"s_add_u32 s{S_T0}, s{S_T0}, {TIMING_OFF}")
        for i in range(13):
            a(f"s_sub_u32 s{S_T1}, s{70+2*i}, s70" if (i and 'abs' not in exp) else f"s_mov_b32 s{S_T1}, s{70+2*i}")
            a(f"s_cmp_eq_u32 s{70+2*i}, 0")
            a(f"s_cselect_b32 s{S_T1}, 0, s{S_T1}")
            a(f"v_mov_b32 v{40+i}, s{S_T1}")
        if 'tb' in exp:
            a(f"v_lshlrev_b32 v2, 2, v{V_LANE}")
            a(f"s_add_u32 s{S_T1}, s{S_T0}, {1<<20}")
            a(f"s_mov_b64 exec, 0xffff")
            a(f"buffer_store_dword v{V_TL}, v2, {WS}, s{S_T1} offen")
        a(f"v_mov_b32 v2, 0")
        a(f"s_mov_b64 exec, 1")
        for i in range(3):
            a(f"buffer_store_dwordx4 v[{40+4*i}:{43+4*i}], v2, {WS}, s{S_T0} offen offset:{16*i}")
        a(f"buffer_store_dword v52, v2, {WS}, s{S_T0} offen offset:48")
        a("s_waitcnt vmcnt(0)")
    a.lab("L_END")
    a("s_endpgm")
    a(f""".section .rodata,"a"
.p2align 6
.amdhsa_kernel {NAME}_kernel
  .amdhsa_next_free_vgpr 256
  .amdhsa_next_free_sgpr 102
  .amdhsa_accum_offset 256
  .amdhsa_group_segment_fixed_size 0
  .amdhsa_kernarg_size 72
  .amdhsa_user_sgpr_count 2
  .amdhsa_user_sgpr_kernarg_segment_ptr 1
  .amdhsa_system_sgpr_workgroup_id_x 1
.end_amdhsa_kernel""")
    return a.text()

WS = f"s[{S_WS}:{S_WS+3}]"

def spin_poll(a, name, check_lines, load_line, limit=2000000, first_done=False):
    a(f"s_mov_b32 s{S_CNT}, 0")
    if first_done: a(f"s_branch {name}_W")
    a.lab(name)
    a(load_line)
    a.lab(name + "_W")
    a(f"s_add_u32 s{S_CNT}, s{S_CNT}, 1")
    a("s_waitcnt vmcnt(0)")
    for l in check_lines: a(l)
    a(f"s_cbranch_scc1 {name}_OK")
    a(f"s_cmp_lt_u32 s{S_CNT}, {limit}")
    a(f"s_cbranch_scc1 {name}")
    a.lab(name + "_OK")

def lds_inc(a, addr, save_exec, rest_exec, rtn=None):
    t = T
    a(f"v_mov_b32 v{t}, {addr}")
    a(f"v_mov_b32 v{t+1}, 1")
    save_exec(1)
    if rtn is None: a(f"ds_add_u32 v{t}, v{t+1}")
    else: a(f"ds_add_rtn_u32 v{rtn}, v{t}, v{t+1}")
    rest_exec()

def lds_wait(a, name, addr, val):
    t = T
    a(f"v_mov_b32 v{t}, {addr}")
    a(f"s_mov_b32 s{S_CNT}, 0")
    a.lab(name)
    a(f"ds_read_b32 v{t+1}, v{t}")
    a(f"s_add_u32 s{S_CNT}, s{S_CNT}, 1")
    a("s_waitcnt lgkmcnt(0)")
    a(f"v_readfirstlane_b32 s{S_T0}, v{t+1}")
    a(f"s_cmp_ge_u32 s{S_T0}, {val}")
    a(f"s_cbranch_scc1 {name}_OK")
    a(f"s_cmp_lt_u32 s{S_CNT}, 20000000")
    a(f"s_cbranch_scc1 {name}")
    a.lab(name + "_OK")

def hook_point(a, tag):
    a(f"s_add_u32 s{S_U}, s{S_U}, 1")
    a(f"s_cmp_lg_u32 s{S_U}, s{S_HOOK}")
    a(f"s_cbranch_scc1 {tag}")
    a(f"s_call_b64 s[{S_RET2}:{S_RET2+1}], L_HOOK")
    a.lab(tag)

def run_code(a, name, QM, QR, O, exp):
    cnt = [0]
    def qk1(creg):
        c = "0" if creg is None else f"v[{creg}:{creg+15}]"
        a(f"v_mfma_f32_32x32x16_bf16 v[{VS}:{VS+15}], v[{VKF}:{VKF+3}], v[{QM}:{QM+3}], {c}")
    def qk2():
        a(f"v_mfma_f32_32x32x16_bf16 v[{VS}:{VS+15}], v[{VKR}:{VKR+3}], v[{QR}:{QR+3}], v[{VS}:{VS+15}]")
    def pv(V, P):
        a(f"v_mfma_f32_32x32x16_bf16 v[{O}:{O+15}], v[{V}:{V+3}], v[{P}:{P+3}], v[{O}:{O+15}]")
    def kread():
        a(f"ds_read_b128 v[{VKF}:{VKF+3}], v{A_K}")
        a(f"ds_read_b64 v[{VKR}:{VKR+1}], v{A_KR}")
    def kstep():
        a(f"v_add_u32 v{A_K}, v{ST_K}, v{A_K}")
        a(f"v_add_u32 v{A_KR}, v{ST_K}, v{A_KR}")
    def vread(V, off):
        a(f"ds_read_b64_tr_b16 v[{V}:{V+1}], v{A_V} offset:{off}")
        a(f"ds_read_b64_tr_b16 v[{V+2}:{V+3}], v{A_V} offset:{off+576}")
    def cvt(j): a(f"v_cvt_pk_bf16_f32 v{VP+j}, v{VE+2*j}, v{VE+2*j+1}")
    def ex(r): a(f"v_exp_f32 v{VE+r}, v{VS+r}")
    def unit(D):
        if 'pf' in exp: a("s_setprio 1" if 'pfi' not in exp else "s_setprio 0")
        for r in range(8): ex(r)
        for j in range(4): cvt(j)
        ex(8); ex(9)
        a("s_waitcnt lgkmcnt(0)")
        pv(VVA, VP)
        for r in range(10, 16): ex(r)
        if 'pf' in exp: a("s_setprio 0" if 'pfi' not in exp else "s_setprio 1")
        if D:
            qk1(V_MASK if D == "mask" else None)
            for j in range(4, 8): cvt(j)
            vread(VVA, 0)
            qk2()
            kstep()
            kread()
            pv(VVB, VP+4)
            vread(VVB, 1152)
            a(f"v_add_u32 v{A_V}, v{ST_V}, v{A_V}")
        else:
            a("s_nop 0")
            for j in range(4, 8): cvt(j)
            a("s_nop 1")
            pv(VVB, VP+4)
    a.lab(name)
    kread()
    a(f"s_cmp_eq_u32 s{S_N}, 1")
    a(f"s_cbranch_scc1 {name}_M1")
    kstep()
    a("s_waitcnt lgkmcnt(0)")
    qk1(None); qk2()
    vread(VVA, 0); kread(); vread(VVB, 1152)
    a(f"v_add_u32 v{A_V}, v{ST_V}, v{A_V}")
    a(f"s_sub_u32 s{S_N}, s{S_N}, 2")
    a.lab(name + "_BT")
    a(f"s_cmp_eq_u32 s{S_N}, 0")
    a(f"s_cbranch_scc1 {name}_MK0")
    a(f"s_sub_u32 s{S_E}, s{S_HOOK}, s{S_U}")
    a(f"s_min_u32 s{S_E}, s{S_E}, s{S_N}")
    a(f"s_sub_u32 s{S_N}, s{S_N}, s{S_E}")
    a(f"s_add_u32 s{S_U}, s{S_U}, s{S_E}")
    a(f"s_sub_u32 s{S_E}, s{S_E}, 1")
    a.lab(name + "_LP")
    unit("plain")
    a(f"s_sub_u32 s{S_E}, s{S_E}, 1")
    a("s_nop 1")
    a(f"s_cbranch_scc0 {name}_LP")
    a(f"s_cmp_lg_u32 s{S_U}, s{S_HOOK}")
    a(f"s_cbranch_scc1 {name}_BT")
    a(f"s_call_b64 s[{S_RET2}:{S_RET2+1}], L_HOOK")
    a(f"s_branch {name}_BT")
    a.lab(name + "_MK0")
    a("s_nop 3")
    a.lab(name + "_MK")
    unit("mask")
    hook_point(a, f"{name}_H1")
    a("s_nop 1")
    a.lab(name + "_FN")
    unit(None)
    hook_point(a, f"{name}_H2")
    a(f"s_setpc_b64 s[{S_RET}:{S_RET+1}]")
    a.lab(name + "_M1")
    a("s_waitcnt lgkmcnt(0)")
    qk1(V_MASK); qk2()
    vread(VVA, 0); vread(VVB, 1152)
    a("s_nop 7")
    a(f"s_branch {name}_FN")

def set_run(a, region, tile_sreg, n_lines, step):
    a(f"s_mul_i32 s{S_T0}, s{tile_sreg}, {TILE}" if tile_sreg is not None else f"s_mov_b32 s{S_T0}, 0")
    a(f"s_add_u32 s{S_T0}, s{S_T0}, {region}")
    a(f"v_add_u32 v{A_K}, s{S_T0}, v{B_K}")
    a(f"v_add_u32 v{A_KR}, s{S_T0}, v{B_KR}")
    a(f"v_and_b32 v{A_V}, s{S_T0}, v{MK_V}")
    a(f"v_add_u32 v{A_V}, v{B_V}, v{A_V}")
    a(f"v_mov_b32 v{ST_K}, {step & 0xffffffff:#x}")
    a(f"v_and_b32 v{ST_V}, v{ST_K}, v{MK_V}")
    for l in n_lines: a(l)

F_MD, F_MF, F_M = 190, 206, 222
S_FQ, S_FT, S_FK, S_FP, S_FI2 = 32+12, 45, 46, 47, 48

def safety_check(a, O, isB, qb_sreg, tag):
    t = T
    a(f"v_max3_f32 v{t}, |v{O}|, |v{O+1}|, |v{O+2}|")
    for k in range(3, 11, 2): a(f"v_max3_f32 v{t}, v{t}, |v{O+k}|, |v{O+k+1}|")
    a(f"v_max_f32 v{t}, v{t}, |v{O+11}|".replace("v_max_f32", "v_max_f32_e64"))
    a(f"v_mov_b32 v{t+1}, 0x21800000")
    a(f"v_mov_b32 v{t+2}, 0x5d800000")
    a(f"v_mov_b32 v{t+3}, 0x7f000000")
    a(f"v_cmp_nge_f32 vcc, v{O+12}, v{t+1}")
    a(f"v_cmp_nle_f32 s[{S_BAD}:{S_BAD+1}], v{O+12}, v{t+2}")
    a(f"s_or_b64 vcc, vcc, s[{S_BAD}:{S_BAD+1}]")
    a(f"v_cmp_nlt_f32 s[{S_BAD}:{S_BAD+1}], v{t}, v{t+3}")
    a(f"s_or_b64 vcc, vcc, s[{S_BAD}:{S_BAD+1}]")
    a("s_cmp_eq_u64 vcc, 0")
    a(f"s_cbranch_scc1 L_SAFE{tag}")
    a(f"s_mov_b32 s{S_FQ}, s{qb_sreg}")
    if isB:
        for r in range(8): a(f"v_swap_b32 v{QA_M+r}, v{QB_M+r}")
        for r in range(16): a(f"v_swap_b32 v{OA+r}, v{OB+r}")
    a(f"s_call_b64 s[{S_RET}:{S_RET+1}], L_FB")
    if isB:
        for r in range(8): a(f"v_swap_b32 v{QA_M+r}, v{QB_M+r}")
        for r in range(16): a(f"v_swap_b32 v{OA+r}, v{OB+r}")
    a.lab(f"L_SAFE{tag}")

def fallback_code(a):
    t = T; L = V_LANE
    a.lab("L_FB")
    a(f"v_and_b32 v{t}, 31, v{L}")
    a(f"v_lshrrev_b32 v{t+1}, 5, v{L}")
    a(f"v_lshlrev_b32 v{t+1}, 2, v{t+1}")
    a(f"v_sub_u32 v{t}, v{t}, v{t+1}")
    a(f"v_mov_b32 v{t+1}, {NEG:#x}")
    for r in range(16):
        jj = (r & 3) + 8*(r >> 2)
        a(f"v_cmp_le_i32 vcc, {jj}, v{t}")
        a("s_nop 1")
        a(f"v_cndmask_b32_e64 v{F_MD+r}, v{t+1}, 0, vcc")
        a(f"v_sub_f32 v{F_MF+r}, v{t+1}, v{F_MD+r}")
    a(f"v_mov_b32 v{F_M}, 0xff800000")
    a(f"s_mov_b32 s{S_FP}, 0")
    a.lab("L_FB_PASS")
    a(f"s_mov_b32 s{S_FI2}, 0")
    a.lab("L_FB_OWN")
    a(f"s_mul_i32 s{S_FT}, s{S_FI2}, {TILE}")
    a(f"s_add_u32 s{S_FT}, s{S_FT}, {KV_OWN}")
    a(f"s_cmp_eq_u32 s{S_FI2}, s{S_FQ}")
    a(f"s_cselect_b32 s{S_FK}, 1, 0")
    a(f"s_call_b64 s[{S_RET2}:{S_RET2+1}], L_FB_TILE")
    a(f"s_add_u32 s{S_FI2}, s{S_FI2}, 1")
    a(f"s_cmp_le_u32 s{S_FI2}, s{S_FQ}")
    a("s_cbranch_scc1 L_FB_OWN")
    a(f"s_cmp_eq_u32 s{S_S}, 0")
    a("s_cbranch_scc1 L_FB_PEND")
    a(f"s_mov_b32 s{S_FI2}, s{S_FQ}")
    a.lab("L_FB_HALO")
    a(f"s_mul_i32 s{S_FT}, s{S_FI2}, {TILE}")
    a(f"s_add_u32 s{S_FT}, s{S_FT}, {KV_HALO}")
    a(f"s_cmp_eq_u32 s{S_FI2}, s{S_FQ}")
    a(f"s_cselect_b32 s{S_FK}, 2, 0")
    a(f"s_call_b64 s[{S_RET2}:{S_RET2+1}], L_FB_TILE")
    a(f"s_add_u32 s{S_FI2}, s{S_FI2}, 1")
    a(f"s_cmp_le_u32 s{S_FI2}, 7")
    a("s_cbranch_scc1 L_FB_HALO")
    a.lab("L_FB_PEND")
    a(f"s_cmp_eq_u32 s{S_FP}, 1")
    a("s_cbranch_scc1 L_FB_DONE")
    a(f"v_mov_b32 v{t}, v{F_M}")
    a("s_nop 1")
    a(f"v_permlane32_swap_b32 v{F_M}, v{t}")
    a("s_nop 1")
    a(f"v_max_f32 v{F_M}, v{F_M}, v{t}")
    for r in range(16): a(f"v_mov_b32 v{OA+r}, 0")
    a(f"s_mov_b32 s{S_FP}, 1")
    a("s_branch L_FB_PASS")
    a.lab("L_FB_DONE")
    a("s_nop 15")
    a(f"s_setpc_b64 s[{S_RET}:{S_RET+1}]")
    a.lab("L_FB_TILE")
    a(f"v_add_u32 v{A_K}, s{S_FT}, v{B_K}")
    a(f"v_add_u32 v{A_KR}, s{S_FT}, v{B_KR}")
    a(f"v_and_b32 v{A_V}, s{S_FT}, v{MK_V}")
    a(f"v_add_u32 v{A_V}, v{B_V}, v{A_V}")
    a(f"ds_read_b128 v[{VKF}:{VKF+3}], v{A_K}")
    a(f"ds_read_b64 v[{VKR}:{VKR+1}], v{A_KR}")
    a(f"ds_read_b64_tr_b16 v[{VVA}:{VVA+1}], v{A_V}")
    a(f"ds_read_b64_tr_b16 v[{VVA+2}:{VVA+3}], v{A_V} offset:576")
    a(f"ds_read_b64_tr_b16 v[{VVB}:{VVB+1}], v{A_V} offset:1152")
    a(f"ds_read_b64_tr_b16 v[{VVB+2}:{VVB+3}], v{A_V} offset:1728")
    a("s_waitcnt lgkmcnt(0)")
    a(f"v_mfma_f32_32x32x16_bf16 v[{VS}:{VS+15}], v[{VKF}:{VKF+3}], v[{QA_M}:{QA_M+3}], 0")
    a(f"v_mfma_f32_32x32x16_bf16 v[{VS}:{VS+15}], v[{VKR}:{VKR+3}], v[{QA_R}:{QA_R+3}], v[{VS}:{VS+15}]")
    a("s_nop 15")
    a(f"s_cmp_eq_u32 s{S_FK}, 0")
    a("s_cbranch_scc1 L_FB_NM")
    a(f"s_cmp_eq_u32 s{S_FK}, 1")
    a("s_cbranch_scc0 L_FB_FM")
    for r in range(16): a(f"v_add_f32 v{VS+r}, v{VS+r}, v{F_MD+r}")
    a("s_branch L_FB_NM")
    a.lab("L_FB_FM")
    for r in range(16): a(f"v_add_f32 v{VS+r}, v{VS+r}, v{F_MF+r}")
    a.lab("L_FB_NM")
    a(f"s_cmp_eq_u32 s{S_FP}, 0")
    a("s_cbranch_scc0 L_FB_P1")
    for r in range(0, 16, 2): a(f"v_max3_f32 v{F_M}, v{F_M}, v{VS+r}, v{VS+r+1}")
    a(f"s_setpc_b64 s[{S_RET2}:{S_RET2+1}]")
    a.lab("L_FB_P1")
    for r in range(16): a(f"v_sub_f32 v{VS+r}, v{VS+r}, v{F_M}")
    for r in range(16): a(f"v_exp_f32 v{VE+r}, v{VS+r}")
    a("s_nop 0")
    for j in range(8): a(f"v_cvt_pk_bf16_f32 v{VP+j}, v{VE+2*j}, v{VE+2*j+1}")
    a("s_nop 1")
    a(f"v_mfma_f32_32x32x16_bf16 v[{OA}:{OA+15}], v[{VVA}:{VVA+3}], v[{VP}:{VP+3}], v[{OA}:{OA+15}]")
    a(f"v_mfma_f32_32x32x16_bf16 v[{OA}:{OA+15}], v[{VVB}:{VVB+3}], v[{VP+4}:{VP+7}], v[{OA}:{OA+15}]")
    a("s_nop 7")
    a(f"s_setpc_b64 s[{S_RET2}:{S_RET2+1}]")

def finalize(a, O, qb_sreg, save_exec, rest_exec):
    t = T; R = VS
    a(f"v_rcp_f32 v{t+2}, v{O+12}")
    a(f"s_lshl_b32 s{S_T0}, s{qb_sreg}, 15")
    a(f"s_add_u32 s{S_T1}, s{S_T0}, s{S_OM}")
    a(f"s_lshl_b32 s{S_T0}, s{qb_sreg}, 7")
    a(f"s_add_u32 s{S_T2}, s{S_T0}, s{S_OR}")
    for r in range(12): a(f"v_mul_f32 v{O+r}, v{O+r}, v{t+2}")
    a(f"v_cvt_pk_bf16_f32 v{R}, v{O}, v{O+1}")
    a(f"v_cvt_pk_bf16_f32 v{R+1}, v{O+2}, v{O+3}")
    a(f"v_cvt_pk_bf16_f32 v{R+2}, v{O+4}, v{O+5}")
    a(f"v_cvt_pk_bf16_f32 v{R+3}, v{O+6}, v{O+7}")
    a(f"v_cvt_pk_bf16_f32 v{R+4}, v{O+8}, v{O+9}")
    a(f"v_cvt_pk_bf16_f32 v{R+5}, v{O+10}, v{O+11}")
    a(f"s_cmp_eq_u32 s{S_HEAD}, 0")
    a(f"s_cselect_b64 s[{S_SAVE}:{S_SAVE+1}], -1, 0")
    a(f"v_permlane32_swap_b32 v{R}, v{R+2}")
    a(f"v_permlane32_swap_b32 v{R+1}, v{R+3}")
    a(f"v_cndmask_b32_e64 v{R+4}, v{R+5}, v{R+4}, s[{S_SAVE}:{S_SAVE+1}]")
    a(f"buffer_store_dwordx4 v[{R}:{R+3}], v{V_OA1}, {WS}, s{S_T1} offen sc1")
    a(f"s_mov_b64 s[{S_SAVE}:{S_SAVE+1}], exec")
    a(f"s_mov_b32 exec_hi, 0")
    a(f"buffer_store_dword v{R+4}, v{V_OA2}, {WS}, s{S_T2} offen sc1")
    rest_exec()

def oflag(a, name, cnt_addr, flag_off, save_exec, rest_exec, after_store=None, last=7):
    t = T
    lds_inc(a, cnt_addr, save_exec, rest_exec, rtn=t+2)
    a("s_waitcnt lgkmcnt(0)")
    a(f"v_readfirstlane_b32 s{S_T0}, v{t+2}")
    a(f"s_cmp_lg_u32 s{S_T0}, {last}")
    a(f"s_cbranch_scc1 {name}")
    a(f"s_lshl_b32 s{S_T0}, s{S_HP}, 2")
    a(f"s_add_u32 s{S_T0}, s{S_T0}, s{S_OFS}")
    a(f"v_lshlrev_b32 v{t}, 7, v{V_LANE}")
    a(f"v_mov_b32 v{t+1}, s{S_TAGO}")
    save_exec("0xffff")
    a(f"buffer_store_dword v{t+1}, v{t}, {WS}, s{S_T0} offen offset:{flag_off} sc1")
    rest_exec()
    if after_store: after_store()
    a.lab(name)

def phase2(a, debug_stage, ts, exp, save_exec, rest_exec):
    t = T; L = V_LANE
    UH = (4, 6, 8)
    if 'hkA' in exp: UH = (3, 5, 7)
    if 'hkB' in exp: UH = (4, 6, 7)
    if 'hkC' in exp: UH = (5, 7, 8)
    UP = 15
    a.c("======== phase 2 ========")
    a(f"v_readfirstlane_b32 s{S_TAGOUT}, v{V_TG}")
    a(f"v_readfirstlane_b32 s{S_TAGIN}, v{V_TG+1}")
    a(f"v_readfirstlane_b32 s{S_TAGO}, v{V_TG+2}")
    a(f"v_bfe_u32 v{V_OA1}, v{L}, 4, 1")
    a(f"v_lshlrev_b32 v{V_OA1}, 14, v{V_OA1}")
    a(f"v_and_b32 v{t+4}, 15, v{L}")
    a(f"v_lshl_add_u32 v{V_OA1}, v{t+4}, 4, v{V_OA1}")
    a(f"v_lshrrev_b32 v{t+4}, 5, v{L}")
    a(f"v_lshl_add_u32 v{V_OA1}, v{t+4}, 8, v{V_OA1}")
    a(f"v_lshlrev_b32 v{V_OA2}, 2, v{L}")
    for (QM, QR, sreg) in ((QA_M, QA_R, S_M), (QB_M, QB_R, S_MB)):
        a(f"s_mul_i32 s{S_T0}, s{sreg}, {QTILE}")
        a(f"s_add_u32 s{S_T0}, s{S_T0}, {Q_BASE}")
        a(f"v_add_u32 v{t+2}, s{S_T0}, v{B_K}")
        a(f"v_add_u32 v{t+3}, s{S_T0}, v{B_KR}")
        a(f"ds_read_b128 v[{QM}:{QM+3}], v{t+2}")
        a(f"ds_read_b64 v[{QR}:{QR+1}], v{t+3}")
    a(f"s_cmp_eq_u32 s{S_HEAD}, 0")
    a(f"s_cselect_b32 s{S_T0}, -1, 0")
    a(f"s_cselect_b32 s{S_T1}, 0, -1")
    a(f"v_cmp_gt_u32 vcc, 32, v{L}")
    a(f"v_mov_b32 v{t}, s{S_T0}")
    a(f"v_mov_b32 v{t+1}, s{S_T1}")
    a(f"v_cndmask_b32_e64 v{t}, 0, v{t}, vcc")
    a(f"v_cndmask_b32_e64 v{t+1}, 0, v{t+1}, vcc")
    a(f"v_mov_b32 v{VKR+2}, 0")
    a(f"v_mov_b32 v{VKR+3}, 0")
    for QR in (QA_R, QB_R):
        a(f"v_mov_b32 v{QR+2}, 0")
        a(f"v_mov_b32 v{QR+3}, 0")
    a("s_waitcnt lgkmcnt(0)")
    for QR in (QA_R, QB_R):
        a(f"v_and_b32 v{QR}, v{QR}, v{t}")
        a(f"v_and_b32 v{QR+1}, v{QR+1}, v{t+1}")
    lds_inc(a, CNTQ, save_exec, rest_exec)
    a(f"s_mov_b32 s{S_U}, 0")
    a(f"s_mov_b32 s{S_HST}, 0")
    a(f"s_mov_b32 s{S_HOOK}, 2")
    a(f"s_mov_b32 s{S_HST}, 5")
    a(f"s_cmp_lt_u32 s{S_WID}, 4")
    a(f"s_cbranch_scc1 L_HS2")
    a(f"s_mov_b32 s{S_HST}, 0")
    a(f"s_mov_b32 s{S_HOOK}, {UH[0]}")
    a(f"s_cmp_eq_u32 s{S_S}, 7")
    a(f"s_cbranch_scc1 L_HS1")
    a(f"s_mul_i32 s{S_T1}, s{S_IDX}, 36864")
    for c, i in enumerate([3, 2, 1, 0]):
        a(f"s_add_u32 s{S_T2}, s{S_T1}, {i*4096}")
        a(f"buffer_store_dwordx4 v[{VH+20+4*c}:{VH+20+4*c+3}], v{V_PA}, {WS}, s{S_T2} offen sc1")
    a.lab("L_HS1")
    if 'noprio' not in exp and 'pf' not in exp: a("s_setprio 1")
    a.lab("L_HS2")
    ts(4)
    set_run(a, KV_OWN, None, [f"s_add_u32 s{S_N}, s{S_M}, 1"], TILE)
    a(f"s_call_b64 s[{S_RET}:{S_RET+1}], L_RUNA")
    set_run(a, KV_OWN, None, [f"s_sub_u32 s{S_N}, 8, s{S_M}"], TILE)
    a(f"s_call_b64 s[{S_RET}:{S_RET+1}], L_RUNB")
    ts(5)
    a(f"s_cmp_eq_u32 s{S_S}, 0")
    a("s_cbranch_scc1 L_FINAL0")
    a(f"v_mov_b32 v{t+2}, {NEG:#x}")
    for r in range(16): a(f"v_sub_f32 v{V_MASK+r}, v{t+2}, v{V_MASK+r}")
    a(f"s_cmp_lt_u32 s{S_WID}, 4")
    a("s_cbranch_scc1 L_H5DONE")
    lds_wait(a, "L_WQ", CNTQ, 8)
    a(f"v_add_u32 v{V_PA+1}, {KV_HALO}, v{V_PA}")
    for c, i in enumerate([8, 7, 6, 5, 4, 3, 2, 1, 0]):
        a(f"s_waitcnt vmcnt({8-c})")
        a(f"ds_write_b128 v{V_PA+1}, v[{VH+4*c}:{VH+4*c+3}] offset:{i*4096}")
    a(f"s_cmp_lg_u32 s{S_WID}, 4")
    a("s_cbranch_scc1 L_H5DONE")
    a(f"s_sub_u32 s{S_T0}, s{S_IDX}, 1")
    a(f"s_lshl_b32 s{S_T0}, s{S_T0}, 8")
    a(f"s_add_u32 s{S_T0}, s{S_T0}, {WS_FLAG}")
    a(f"v_mov_b32 v{t}, 0")
    a(f"v_mov_b32 v{t+1}, s{S_TAGIN}")
    save_exec(1)
    a(f"buffer_store_dword v{t+1}, v{t}, {WS}, s{S_T0} offen sc1")
    rest_exec()
    a.lab("L_H5DONE")
    a("s_waitcnt lgkmcnt(0)")
    if 'noph' in exp: a("s_setprio 0")
    a("s_barrier")
    if "tsh" not in exp: ts(7)
    a(f"s_mov_b32 s{S_T4}, 7")
    set_run(a, KV_HALO, S_T4, [f"s_add_u32 s{S_N}, s{S_M}, 1"], -TILE)
    a(f"s_call_b64 s[{S_RET}:{S_RET+1}], L_RUNB")
    a("s_nop 7")
    a("s_nop 3")
    safety_check(a, OB, True, S_MB, "B1")
    finalize(a, OB, S_MB, save_exec, rest_exec)
    if 'noph' not in exp: a("s_setprio 0")
    a(f"s_mov_b32 s{S_T4}, 7")
    set_run(a, KV_HALO, S_T4, [f"s_sub_u32 s{S_N}, 8, s{S_M}"], -TILE)
    a(f"s_call_b64 s[{S_RET}:{S_RET+1}], L_RUNA")
    a("s_branch L_FINALA")
    a.lab("L_FINAL0")
    a("s_waitcnt vmcnt(0)")
    a("s_setprio 0")
    a("s_barrier")
    a("s_nop 7")
    a("s_nop 3")
    safety_check(a, OB, True, S_MB, "B0")
    finalize(a, OB, S_MB, save_exec, rest_exec)
    a.lab("L_FINALA")
    a("s_setprio 0")
    if "tsh" not in exp: ts(8)
    a("s_nop 7")
    a("s_nop 3")
    safety_check(a, OA, False, S_M, "A")
    finalize(a, OA, S_M, save_exec, rest_exec)
    a("s_branch L_P3")
    fallback_code(a)

    a.lab("L_HOOK")
    a(f"s_cmp_eq_u32 s{S_HST}, 1")
    a("s_cbranch_scc1 L_HK1")
    a(f"s_cmp_eq_u32 s{S_HST}, 2")
    a("s_cbranch_scc1 L_HK2")
    a(f"s_cmp_eq_u32 s{S_HST}, 3")
    a("s_cbranch_scc1 L_HK3")
    a(f"s_cmp_eq_u32 s{S_HST}, 5")
    a("s_cbranch_scc0 L_HK0")
    a(f"s_mov_b32 s{S_HST}, 3")
    a(f"s_mov_b32 s{S_HOOK}, {UP}")
    a("s_waitcnt vmcnt(0)")
    oflag(a, "L_CLR", CNTOB, 128, save_exec, rest_exec, last=3)
    a("s_branch L_HRET")
    a.lab("L_HK0")
    a(f"s_mov_b32 s{S_HST}, 1")
    a(f"s_mov_b32 s{S_HOOK}, {UH[1]}")
    a(f"s_cmp_eq_u32 s{S_S}, 7")
    a("s_cbranch_scc1 L_HRET")
    a("s_waitcnt vmcnt(0)")
    a(f"s_lshl_b32 s{S_T0}, s{S_IDX}, 8")
    a(f"s_lshl_b32 s{S_T1}, s{S_L}, 2")
    a(f"s_add_u32 s{S_T0}, s{S_T0}, s{S_T1}")
    a(f"s_add_u32 s{S_T0}, s{S_T0}, {WS_FLAG+128}")
    a(f"v_mov_b32 v{t}, 0")
    a(f"v_mov_b32 v{t+1}, s{S_TAGOUT}")
    save_exec(1)
    a(f"buffer_store_dword v{t+1}, v{t}, {WS}, s{S_T0} offen sc1")
    rest_exec()
    a("s_branch L_HRET")
    a.lab("L_HK3")
    a(f"s_mov_b32 s{S_HST}, 4")
    a(f"s_mov_b32 s{S_HOOK}, 1000")
    a(f"s_lshl_b32 s{S_T0}, s{S_HP}, 7")
    a(f"s_add_u32 s{S_T0}, s{S_T0}, s{S_OFS}")
    save_exec("0xffff")
    a(f"v_lshlrev_b32 v{t}, 2, v{L}")
    a(f"buffer_load_dword v{V_TG+1}, v{t}, {WS}, s{S_T0} offen offset:128 sc1")
    rest_exec()
    a("s_branch L_HRET")
    a.lab("L_HK1")
    a(f"s_mov_b32 s{S_HST}, 2")
    a(f"s_mov_b32 s{S_HOOK}, {UH[2]}")
    a(f"s_cmp_eq_u32 s{S_S}, 0")
    a("s_cbranch_scc0 L_HK1A")
    a(f"s_mov_b32 s{S_HOOK}, 1000")
    a("s_branch L_HRET")
    a.lab("L_HK1A")
    a(f"s_sub_u32 s{S_H1}, s{S_IDX}, 1")
    a(f"s_lshl_b32 s{S_H1}, s{S_H1}, 8")
    a(f"s_lshl_b32 s{S_T0}, s{S_L}, 2")
    a(f"s_add_u32 s{S_H1}, s{S_H1}, s{S_T0}")
    a(f"s_add_u32 s{S_H1}, s{S_H1}, {WS_FLAG+128}")
    a(f"v_mov_b32 v{t}, 0")
    a(f"buffer_load_dword v{V_TG}, v{t}, {WS}, s{S_H1} offen sc1")
    a("s_branch L_HRET")
    a.lab("L_HK2")
    a(f"s_mov_b32 s{S_HST}, 3")
    a(f"s_mov_b32 s{S_HOOK}, {UP}")
    a("s_waitcnt vmcnt(0)")
    a(f"v_readfirstlane_b32 s{S_T0}, v{V_TG}")
    a(f"s_cmp_eq_u32 s{S_T0}, s{S_TAGIN}")
    a("s_cbranch_scc1 L_POLL1_OK")
    a(f"v_mov_b32 v{t}, 0")
    spin_poll(a, "L_POLL1",
              [f"v_readfirstlane_b32 s{S_T0}, v{V_TG}", f"s_cmp_eq_u32 s{S_T0}, s{S_TAGIN}"],
              f"buffer_load_dword v{V_TG}, v{t}, {WS}, s{S_H1} offen sc1")
    a(f"s_sub_u32 s{S_T0}, s{S_IDX}, 1")
    a(f"s_mul_i32 s{S_T0}, s{S_T0}, 36864")
    for c, i in enumerate([8, 7, 6, 5, 4, 3, 2, 1, 0]):
        a(f"s_add_u32 s{S_T1}, s{S_T0}, {i*4096}")
        a(f"buffer_load_dwordx4 v[{VH+4*c}:{VH+4*c+3}], v{V_PA}, {WS}, s{S_T1} offen sc1")
    a.lab("L_HRET")
    a(f"s_setpc_b64 s[{S_RET2}:{S_RET2+1}]")
    run_code(a, "L_RUNA", QA_M, QA_R, OA, exp)
    run_code(a, "L_RUNB", QB_M, QB_R, OB, exp)

def pub_stores(a, stage_off, base):
    a(f"s_add_u32 s{S_T2}, s{S_T1}, {stage_off}")
    a(f"buffer_store_dwordx4 v[{base}:{base+3}], v{V_PA}, {WS}, s{S_T2} offen sc1")
    for i in range(1, 4):
        a(f"s_add_u32 s{S_T3}, s{S_T2}, {i*4096}")
        a(f"buffer_store_dwordx4 v[{base+4*i}:{base+4*i+3}], v{V_PA}, {WS}, s{S_T3} offen sc1")
    a(f"buffer_store_dwordx4 v[{base+16}:{base+19}], v{V_PA+2}, {WS}, s{S_T2} offen sc1")

def halo_loads(a, stage_off, base):
    a(f"s_sub_u32 s{S_T0}, s{S_IDX}, 1")
    a(f"s_mul_i32 s{S_T0}, s{S_T0}, 36864")
    a(f"s_add_u32 s{S_T0}, s{S_T0}, s{S_SO}")
    for i in range(4):
        a(f"s_add_u32 s{S_T1}, s{S_T0}, {i*4096}")
        a(f"buffer_load_dwordx4 v[{base+4*i}:{base+4*i+3}], v{V_PA}, {WS}, s{S_T1} offen sc1")
    a(f"buffer_load_dwordx4 v[{base+16}:{base+19}], v{V_PA+2}, {WS}, s{S_T0} offen sc1")

def phase3(a, debug_stage, ts, exp, save_exec, rest_exec):
    t = T; L = V_LANE
    OF, AC, WF0, WF1 = 20, 92, 132, 152
    AW, AW2, PF, VO, VOUT, VR = 10, 11, 13, 14, 15, 16
    PA, PB = 12, 9
    S_PL, S_PR, S_PM = 4, 68, 40
    SCR = KV_OWN
    ORD = {0: [0, 2, 4, 6, 1, 3, 5, 7, 8], 1: [9, 11, 13, 15, 10, 12, 14, 16, 17]}
    GM = {0: 0x0055, 1: 0xAA00}; RM = {0: 0x01AA, 1: 0xFFFF}
    a.lab("L_P3")
    a.c("======== phase 3 ========")
    a(f"s_lshl_b32 s{S_PL}, s{S_HP}, 7")
    a(f"s_add_u32 s{S_PL}, s{S_PL}, s{S_OFS}")
    def poll_issue():
        save_exec("0xffff")
        a(f"v_lshlrev_b32 v{t+2}, 2, v{L}")
        a(f"buffer_load_dword v{PF}, v{t+2}, {WS}, s{S_PL} offen offset:128 sc1")
        rest_exec()
    def poll_check(name, mask):
        save_exec(f"{mask:#x}")
        a(f"v_cmp_ne_u32 vcc, s{S_TAGO}, v{PF}")
        a("s_nop 1")
        a("s_cmp_eq_u64 vcc, 0")
        a(f"s_cbranch_scc1 {name}_OK")
        a(f"v_lshlrev_b32 v{t+2}, 2, v{L}")
        spin_poll(a, name,
                  [f"v_cmp_ne_u32 vcc, s{S_TAGO}, v{PF}", "s_nop 1", "s_cmp_eq_u64 vcc, 0"],
                  f"buffer_load_dword v{PF}, v{t+2}, {WS}, s{S_PL} offen offset:128 sc1")
        rest_exec()
    a(f"s_lshr_b32 s{S_T1}, s{S_HP}, 3")
    a(f"s_lshl_b32 s{S_T1}, s{S_T1}, 3")
    a(f"s_lshl_b32 s{S_T2}, s{S_M}, 1")
    a(f"s_add_u32 s{S_T1}, s{S_T1}, s{S_T2}")
    a(f"s_lshl_b32 s{S_T0}, s{S_GRP}, 18")
    a(f"s_add_u32 s{S_T0}, s{S_T0}, {WS_O}")
    a(f"s_lshl_b32 s{S_T2}, s{S_T1}, 14")
    a(f"s_add_u32 s{S_PM}, s{S_T0}, s{S_T2}")
    a(f"s_lshl_b32 s{S_T0}, s{S_GRP}, 15")
    a(f"s_add_u32 s{S_T0}, s{S_T0}, {WS_OR}")
    a(f"s_lshl_b32 s{S_T2}, s{S_T1}, 6")
    a(f"s_add_u32 s{S_PR}, s{S_T0}, s{S_T2}")
    a(f"v_lshrrev_b32 v{VR}, 4, v{L}")
    a(f"v_lshlrev_b32 v{VR}, 12, v{VR}")
    a(f"v_and_b32 v{t+4}, 15, v{L}")
    a(f"v_lshl_add_u32 v{VR}, v{t+4}, 2, v{VR}")
    a(f"v_add_u32 v{VR+1}, 64, v{VR}")
    a(f"v_lshrrev_b32 v{t+1}, 4, v{L}")
    a(f"v_bfe_u32 v{t+2}, v{L}, 2, 2")
    a(f"v_and_b32 v{t+3}, 3, v{L}")
    a(f"v_lshrrev_b32 v{t+4}, 1, v{t+1}")
    a(f"v_lshlrev_b32 v{t+4}, 2, v{t+4}")
    a(f"v_lshl_add_u32 v{t+4}, v{t+1}, 3, v{t+4}")
    a(f"v_add_u32 v{t+4}, v{t+4}, v{t+2}")
    a(f"v_mul_u32_u24 v{t+4}, 144, v{t+4}")
    a(f"v_lshl_add_u32 v{AW}, v{t+3}, 3, v{t+4}")
    a(f"s_mul_i32 s{S_T0}, s{S_HEAD}, {9*5184}")
    a(f"v_add_u32 v{AW}, s{S_T0}, v{AW}")
    a(f"v_mul_u32_u24 v{t+4}, 72, v{t+1}")
    a(f"v_add3_u32 v{t+4}, v{t+4}, v{t+2}, 16")
    a(f"v_mul_u32_u24 v{t+4}, 144, v{t+4}")
    a(f"v_lshl_add_u32 v{AW2}, v{t+3}, 3, v{t+4}")
    a(f"v_lshlrev_b32 v{VO}, 4, v{L}")
    a(f"s_lshl_b32 s{S_T1}, s{S_T1}, 4")
    a(f"s_lshl_b32 s{S_T2}, s{S_S}, 8")
    a(f"s_add_u32 s{S_T1}, s{S_T1}, s{S_T2}")
    a(f"s_lshl_b32 s{S_T2}, s{S_HEAD}, 4")
    a(f"s_add_u32 s{S_T1}, s{S_T1}, s{S_T2}")
    a(f"s_mul_i32 s{S_T1}, s{S_T1}, 2304")
    a(f"s_mul_i32 s{S_T2}, s{S_B}, 1152")
    a(f"s_add_u32 s{S_T1}, s{S_T1}, s{S_T2}")
    a(f"s_and_b32 s{S_T2}, s{S_HP}, 7")
    a(f"s_mul_i32 s{S_T2}, s{S_T2}, 144")
    a(f"s_add_u32 s{S_T5}, s{S_T1}, s{S_T2}")
    a(f"v_and_b32 v{VOUT}, 15, v{L}")
    a(f"v_mul_u32_u24 v{VOUT}, 2304, v{VOUT}")
    a(f"v_lshrrev_b32 v{t+4}, 4, v{L}")
    a(f"v_lshl_add_u32 v{VOUT}, v{t+4}, 3, v{VOUT}")
    a(f"s_mul_i32 s{S_T0}, s{S_WID}, 5120")
    a(f"s_add_u32 s{S_T0}, s{S_T0}, {SCR}")
    a(f"v_add_u32 v18, s{S_T0}, v{VO}")
    a(f"s_xor_b32 s{S_T1}, s{S_WID}, 4")
    a(f"s_mul_i32 s{S_T1}, s{S_T1}, 5120")
    a(f"s_add_u32 s{S_T1}, s{S_T1}, {SCR}")
    a(f"v_add_u32 v19, s{S_T1}, v{VO}")
    OUT = f"s[{S_OUT}:{S_OUT+3}]"
    def wreads(kap, kh, WF):
        l = []
        for Tn in range(5):
            b = WF + 4*Tn
            if kap >= 16:
                o0 = (kap-16)*8*36*144 + Tn*32
                l.append(f"ds_read_b64_tr_b16 v[{b}:{b+1}], v{AW2} offset:{o0}")
                l.append(f"ds_read_b64_tr_b16 v[{b+2}:{b+3}], v{AW2} offset:{o0+36*144}")
            else:
                o0 = (kap - 9*kh)*5184 + Tn*32
                l.append(f"ds_read_b64_tr_b16 v[{b}:{b+1}], v{AW} offset:{o0}")
                l.append(f"ds_read_b64_tr_b16 v[{b+2}:{b+3}], v{AW} offset:{o0+576}")
        return l
    def loads(kh, slots):
        nl = []
        for jx in slots:
            kap = ORD[kh][jx]
            if kap >= 16:
                a(f"s_add_u32 s{S_T0}, s{S_PR}, {(kap-16)*16*1024}")
                for mt in range(2):
                    for i in range(4):
                        a(f"buffer_load_dword v{OF+36*mt+4*jx+i}, v{VR+mt}, {WS}, s{S_T0} offen offset:{i*1024} sc1")
                nl.append(8)
            else:
                a(f"s_add_u32 s{S_T0}, s{S_PM}, {kap*1024}")
                a(f"s_add_u32 s{S_T1}, s{S_PM}, {kap*1024+16384}")
                a(f"buffer_load_dwordx4 v[{OF+4*jx}:{OF+4*jx+3}], v{VO}, {WS}, s{S_T0} offen sc1")
                a(f"buffer_load_dwordx4 v[{OF+36+4*jx}:{OF+36+4*jx+3}], v{VO}, {WS}, s{S_T1} offen sc1")
                nl.append(2)
        return nl
    def mfm(kh, slots, nl, extra, last_next, novm=False):
        for c, jx in enumerate(slots):
            cur = WF0 if jx % 2 == 0 else WF1
            nxt = WF1 if jx % 2 == 0 else WF0
            a("s_waitcnt lgkmcnt(0)" if novm else f"s_waitcnt vmcnt({sum(nl[c+1:])+extra}) lgkmcnt(0)")
            rs = wreads(ORD[kh][jx+1], kh, nxt) if jx < 8 else []
            ri = 0
            for Tn in range(5):
                for mt in range(2):
                    d = AC + (mt*5+Tn)*4; o = OF + 36*mt + 4*jx
                    cc = "0" if jx == 0 else f"v[{d}:{d+3}]"
                    a(f"v_mfma_f32_16x16x32_bf16 v[{d}:{d+3}], v[{cur+4*Tn}:{cur+4*Tn+3}], v[{o}:{o+3}], {cc}")
                    if ri < len(rs): a(rs[ri]); ri += 1
    def add_out(q, base, Tn, pk):
        for r in range(4): a(f"v_add_f32 v{q+r}, v{q+r}, v{base+4*Tn+r}")
        a(f"v_cvt_pk_bf16_f32 v{pk}, v{q}, v{q+1}")
        a(f"v_cvt_pk_bf16_f32 v{pk+1}, v{q+2}, v{q+3}")
        if Tn == 4:
            a(f"s_mov_b64 s[{S_SAVE}:{S_SAVE+1}], exec")
            a(f"s_mov_b32 exec_hi, 0")
        omod = " nt" if 'ont' in exp else " sc1" if 'osc1' in exp else " sc0 sc1" if 'osc01' in exp else ""
        a(f"buffer_store_dwordx2 v[{pk}:{pk+1}], v{VOUT}, {OUT}, s{S_T5} offen offset:{Tn*32}{omod}")
        if Tn == 4: rest_exec()
    def nloads(kh, slots):
        return [8 if ORD[kh][jx] >= 16 else 2 for jx in slots]
    def validate(kh, slots, younger):
        nl = nloads(kh, slots); first = True
        for c, jx in enumerate(slots):
            a(f"s_waitcnt vmcnt({sum(nl[c+1:])+younger})")
            rr = [OF+4*jx+i for i in range(4)] + [OF+36+4*jx+i for i in range(4)]
            if first:
                a(f"v_max3_u32 v{t+3}, v{rr[0]}, v{rr[1]}, v{rr[2]}"); rr = rr[3:]; first = False
                a(f"v_max_u32 v{t+3}, v{t+3}, v{rr[0]}"); rr = rr[1:]
            for k in range(0, len(rr), 2):
                a(f"v_max3_u32 v{t+3}, v{t+3}, v{rr[k]}, v{rr[k+1]}")
        a(f"v_cmp_eq_u32 vcc, -1, v{t+3}")
        a("s_nop 1")
        a("s_cmp_eq_u64 vcc, 0")
    def probe_addr(kh, slots):
        mains = [jx for jx in slots if ORD[kh][jx] < 16]
        a(f"v_mov_b32 v{t+3}, {ORD[kh][mains[0]]*1024 + 16384 + 1020}")
        a(f"v_lshlrev_b32 v{PA}, 11, v{L}")
        a(f"v_add_u32 v{PA}, v{t+3}, v{PA}")
        return (1 << min(len(mains), 4)) - 1
    def probe_issue(mask):
        save_exec(f"{mask:#x}")
        a(f"buffer_load_dword v{PB}, v{PA}, {WS}, s{S_PM} offen sc1")
        rest_exec()
    def probe_loop(mask, name, first_issued):
        save_exec(f"{mask:#x}")
        a(f"s_mov_b32 s{S_CNT}, 0")
        if first_issued: a(f"s_branch {name}_PW")
        a.lab(name + "_P")
        a(f"buffer_load_dword v{PB}, v{PA}, {WS}, s{S_PM} offen sc1")
        a.lab(name + "_PW")
        a(f"s_add_u32 s{S_CNT}, s{S_CNT}, 1")
        a("s_waitcnt vmcnt(0)")
        a(f"v_cmp_eq_u32 vcc, -1, v{PB}")
        a("s_nop 1")
        a("s_cmp_eq_u64 vcc, 0")
        a(f"s_cbranch_scc1 {name}_PO")
        a(f"s_cmp_lt_u32 s{S_CNT}, 2000000")
        a(f"s_cbranch_scc1 {name}_P")
        a.lab(name + "_PO")
        rest_exec()
    def load_validate_loop(kh, slots, name):
        a(f"s_mov_b32 s{S_N}, 0")
        a.lab(name + "_L")
        loads(kh, slots)
        validate(kh, slots, 0)
        a(f"s_cbranch_scc1 {name}_OK")
        a(f"s_add_u32 s{S_N}, s{S_N}, 1")
        a(f"s_cmp_lt_u32 s{S_N}, 100000")
        a(f"s_cbranch_scc1 {name}_L")
        a.lab(name + "_OK")
    def path(kh):
        K = f"K{kh}"
        G, R = list(range(4)), list(range(4, 9))
        for rd in wreads(ORD[kh][0], kh, WF0): a(rd)
        ts(10)
        a(f"s_lshr_b32 s{S_T0}, 0x55AA, s{S_HP}")
        a(f"s_bitcmp1_b32 s{S_T0}, 0")
        a(f"s_cbranch_scc1 L_SG{K}_GO")
        mk = probe_addr(kh, G)
        probe_loop(mk, f"L_SG{K}", False)
        a.lab(f"L_SG{K}_GO")
        load_validate_loop(kh, G, f"L_SGV{K}")
        mk = probe_addr(kh, R)
        a(f"s_lshr_b32 s{S_T0}, 0x55AA, s{S_HP}")
        a(f"s_bitcmp1_b32 s{S_T0}, 0")
        a(f"s_cbranch_scc0 L_SR{K}_EARLY")
        loads(kh, R)
        mfm(kh, G, [0]*4, 0, None, novm=True)
        ts(9)
        lds_wait(a, f"L_WOB{K}", CNTOA, 8)
        validate(kh, R, 0)
        a(f"s_cbranch_scc1 L_SRV{K}_OK")
        probe_loop(mk, f"L_SS{K}", False)
        a(f"s_branch L_SR{K}_LV")
        a.lab(f"L_SR{K}_EARLY")
        probe_issue(mk)
        mfm(kh, G, [0]*4, 0, None, novm=True)
        ts(9)
        lds_wait(a, f"L_WOA{K}", CNTOA, 8)
        probe_loop(mk, f"L_SR{K}", True)
        a.lab(f"L_SR{K}_LV")
        load_validate_loop(kh, R, f"L_SRV{K}")
        mfm(kh, R, [0]*5, 0, None, novm=True)
        ts(11)
        send = AC + 20 if kh == 0 else AC
        keep = AC if kh == 0 else AC + 20
        a("s_nop 7")
        for Tn in range(5): a(f"ds_write_b128 v18, v[{send+4*Tn}:{send+4*Tn+3}] offset:{Tn*1024}")
        a("s_waitcnt lgkmcnt(0)")
        a("s_barrier")
        for Tn in range(5): a(f"ds_read_b128 v[{OF+4*Tn}:{OF+4*Tn+3}], v19 offset:{Tn*1024}")
        for Tn in range(5):
            a(f"s_waitcnt lgkmcnt({4-Tn})")
            add_out(OF+4*Tn, keep, Tn, OF+20+2*Tn)
    lds_inc(a, CNTOA, save_exec, rest_exec)
    a(f"s_cmp_eq_u32 s{S_HST}, 4")
    a("s_cbranch_scc0 L_P3C0")
    a("s_waitcnt vmcnt(2)")
    a(f"v_mov_b32 v{PF}, v{V_TG+1}")
    a("s_branch L_P3C1")
    a.lab("L_P3C0")
    poll_issue()
    a("s_waitcnt vmcnt(0)")
    a.lab("L_P3C1")
    poll_check("L_POLLC", 0xFFFF)
    if debug_stage == 2:
        a("s_waitcnt vmcnt(0)")
        a("s_branch L_FIN")
        return
    a(f"s_cmp_eq_u32 s{S_HEAD}, 0")
    a("s_cbranch_scc0 L_P3K1")
    path(0)
    a("s_branch L_FIN")
    a.lab("L_P3K1")
    path(1)
    a(f"s_cmp_lg_u32 s{S_HP}, 0")
    a("s_cbranch_scc1 L_FIN")
    a(f"s_cmp_lg_u32 s{S_WID}, 4")
    a("s_cbranch_scc1 L_FIN")
    a(f"v_mov_b32 v{t}, 0")
    a(f"v_mov_b32 v{t+1}, s{S_TAGO}")
    a(f"s_mov_b64 exec, 1")
    a(f"buffer_store_dword v{t+1}, v{t}, {WS}, s{S_OFS} offen sc1")

if __name__ == "__main__":
    import argparse
    p = argparse.ArgumentParser(); p.add_argument("--debug", type=int, default=0)
    p.add_argument("--timing", action="store_true"); p.add_argument("--exp", default=""); p.add_argument("-o", default="/dev/stdout")
    args = p.parse_args()
    open(args.o, "w").write(gen(args.debug, args.timing, args.exp))
```

```python
import sys, math, struct

NAME = "concat_heads__sliding_block__sliding_block__prompt"

STAGE   = 49152
WO_BASE = 0
KV_OWN  = 82944
KV_HALO = 119808
Q_BASE  = 119808
MISC    = 156672
TAGS_LDS = MISC + 2048
CNT2, CNT1, CNTQ, CNTOB, CNTOA = TAGS_LDS+12, TAGS_LDS+16, TAGS_LDS+20, TAGS_LDS+24, TAGS_LDS+28
LDS_TOTAL = 163840
TILE    = 4608
QTILE   = 2304
WS_KV   = 0
WS_O    = 256*36864
WS_OR   = WS_O + 16*262144
WS_FLAG = WS_OR + 16*32768
WS_OF   = WS_FLAG + 65536
TIMING_OFF = 24<<20
TAG_INC = 0x9E3779B1
NEG     = 0xFF61B1E6
QSCALE  = (18.0 ** -0.5) * math.log2(math.e)
def f32bits(x): return struct.unpack("<I", struct.pack("<f", x))[0]

class Asm:
    def __init__(self): self.l = []
    def __call__(self, s=""):
        for line in s.split("\n"):
            self.l.append("  " + line.strip())
    def lab(self, n): self.l.append(n + ":")
    def c(self, s): self.l.append("  ; " + s)
    def text(self): return "\n".join(self.l) + "\n"

S_X, S_W, S_WO, S_WS, S_OUT = 8, 12, 16, 20, 24
S_B, S_S, S_HP, S_WID = 28, 29, 30, 31
S_T0, S_T1, S_T2, S_T3, S_T4, S_T5 = 32, 33, 34, 35, 36, 37
S_I = 38
S_L = 39
S_TAGIN, S_TAGOUT, S_TAGO = 40, 41, 42
S_K, S_C, S_SB, S_XB, S_WB = 43, 44, 45, 46, 47
S_LX, S_LW = 48, 49
S_N = 50
S_U = 51
S_RET = 52
S_IDX, S_GRP, S_HEAD, S_M = 54, 55, 56, 57
S_SAVE = 58
S_CNT = 60
S_HOOK = 61
S_BAD = 62
S_RET2 = 64
S_MB = 66
S_HST = 67
S_H0, S_H1 = 68, 69
S_E = 98
S_SO, S_FI = 99, 100
S_OM, S_OR, S_OFS = 6, 7, 5

V_LANE = 1
T = 2
V_AX = 10
V_AW = 12
V_MASK = 20
V_SET0, V_SET1, V_ACC = 36, 80, 124
V_LDX, V_LDW = 36, 44
V_TG = 236
B_K, B_KR, B_V, MK_V = 240, 241, 242, 243
vEK, vEQ, vEV, vE6, vDr, vDt, vF, vC = 244, 245, 246, 247, 248, 249, 250, 252
V_TL = 254
QA_M, QA_R, QB_M, QB_R = 36, 40, 44, 48
OA, OB = 52, 68
VS, VE, VP = 84, 100, 116
VKF, VKR, VVA, VVB = 124, 128, 132, 136
A_K, A_KR, A_V, ST_V, ST_K = 10, 11, 12, 13, 14
VH = 140
V_WOV = 180
V_OA1, V_OA2 = 188, 189
V_PA = 184

def emit_masks_(a):
    t = T; L = V_LANE
    a(f"v_and_b32 v{t}, 31, v{L}")
    a(f"v_lshrrev_b32 v{t+1}, 5, v{L}")
    a(f"v_lshlrev_b32 v{t+1}, 2, v{t+1}")
    a(f"v_sub_u32 v{t}, v{t}, v{t+1}")
    a(f"v_mov_b32 v{t+1}, {NEG:#x}")
    for r in range(16):
        jj = (r & 3) + 8*(r >> 2)
        a(f"v_cmp_le_i32 vcc, {jj}, v{t}")
        a("s_nop 1")
        a(f"v_cndmask_b32_e64 v{V_MASK+r}, v{t+1}, 0, vcc")
def emit_p2_patterns_(a):
    t = T; L = V_LANE
    a(f"v_and_b32 v{t}, 31, v{L}")
    a(f"v_lshrrev_b32 v{t+1}, 5, v{L}")
    a(f"v_lshrrev_b32 v{t+2}, 2, v{t}")
    a(f"v_lshrrev_b32 v{t+3}, 3, v{t}")
    a(f"v_xor_b32 v{t+2}, v{t+2}, v{t+3}")
    a(f"v_xor_b32 v{t+2}, v{t+2}, v{t+1}")
    a(f"v_and_b32 v{t+2}, 1, v{t+2}")
    a(f"v_lshlrev_b32 v{t+2}, 4, v{t+2}")
    a(f"v_lshl_add_u32 v{t+2}, v{t}, 5, v{t+2}")
    a(f"s_lshl_b32 s{S_T0}, s{S_HEAD}, 10")
    a(f"v_add_u32 v{B_K}, s{S_T0}, v{t+2}")
    a(f"v_lshlrev_b32 v{B_KR}, 3, v{t}")
    a(f"v_add_u32 v{B_KR}, 2048, v{B_KR}")
    a(f"v_bfe_u32 v{t+2}, v{L}, 2, 2")
    a(f"v_lshl_add_u32 v{t+2}, v{t+1}, 2, v{t+2}")
    a(f"v_mul_u32_u24 v{t+2}, 72, v{t+2}")
    a(f"v_add_u32 v{t+2}, 2304, v{t+2}")
    a(f"v_and_b32 v{t+3}, 3, v{L}")
    a(f"v_lshlrev_b32 v{t+4}, 3, v{t+3}")
    a(f"s_mul_i32 s{S_T0}, s{S_HEAD}, 40")
    a(f"v_add3_u32 v{t+4}, v{t+4}, v{t+2}, s{S_T0}")
    a(f"v_add_u32 v{t+5}, 32, v{t+2}")
    a(f"v_bfe_u32 v{t+6}, v{L}, 4, 1")
    a(f"v_cmp_eq_u32 vcc, 1, v{t+6}")
    a(f"v_lshrrev_b32 v{t+7}, 1, v{t+3}")
    a(f"v_and_b32 v{t+7}, v{t+7}, v{t+6}")
    a(f"v_cndmask_b32 v{B_V}, v{t+4}, v{t+5}, vcc")
    a(f"v_cmp_eq_u32 vcc, 1, v{t+7}")
    a(f"v_mov_b32 v{t+5}, {MISC}")
    a(f"v_mov_b32 v{t+6}, -1")
    a(f"v_cndmask_b32 v{B_V}, v{B_V}, v{t+5}, vcc")
    a(f"v_cndmask_b32_e64 v{MK_V}, v{t+6}, 0, vcc")


def gen(debug_stage=0, timing=False, exp=''):
    a = Asm()
    t = T; L = V_LANE
    def ts(i, force=False):
        if timing and ('tsk' not in exp or force or i in (0, 8, 9, 10, 11)): a(f"{'s_memrealtime' if ('abs' in exp or 'hdbg' in exp) else 's_memtime'} s[{70+2*i}:{71+2*i}]")
    WS = f"s[{S_WS}:{S_WS+3}]"
    def save_exec(val):
        a(f"s_mov_b64 s[{S_SAVE}:{S_SAVE+1}], exec")
        a(f"s_mov_b64 exec, {val}")
    def rest_exec():
        a(f"s_mov_b64 exec, s[{S_SAVE}:{S_SAVE+1}]")

    a.l += [f"; Kernarg layout (72 bytes): A_x, A_wqkv, A_wo, B_x, B_wqkv, B_wo, out, debug, ws",
            f"; @launch grid=(256,1,1) block=(512,1,1) lds={LDS_TOTAL}"]
    a(f""".amdgcn_target "amdgcn-amd-amdhsa--gfx950"
.text
.globl {NAME}_kernel
.p2align 8
.type {NAME}_kernel,@function""")
    a.lab(f"{NAME}_kernel")
    a("s_cmp_ge_u32 s2, 256")
    a("s_cbranch_scc1 L_END")
    a(f"s_and_b32 s3, s2, 7")
    if 'xmap' in exp:
        a(f"s_bfe_u32 s{S_B}, s3, 0x10001")
    else:
        a(f"s_lshr_b32 s{S_B}, s3, 2")
    a(f"s_mul_i32 s{S_T0}, s{S_B}, 24")
    a(f"s_add_u32 s4, s0, s{S_T0}")
    a(f"s_addc_u32 s5, s1, 0")
    a(f"s_load_dwordx2 s[{S_X}:{S_X+1}], s[4:5], 0")
    a(f"s_load_dwordx2 s[{S_W}:{S_W+1}], s[4:5], 8")
    a(f"s_load_dwordx2 s[{S_WO}:{S_WO+1}], s[4:5], 16")
    a(f"s_load_dwordx2 s[{S_OUT}:{S_OUT+1}], s[0:1], 48")
    a(f"s_load_dwordx2 s[{S_WS}:{S_WS+1}], s[0:1], 64")
    if timing:
        for i in range(13): a(f"s_mov_b32 s{70+2*i}, 0")
    ts(0)
    a(f"s_lshr_b32 s{S_I}, s2, 3")
    if 'xmap' in exp:
        a(f"s_and_b32 s{S_T2}, s3, 1")
        a(f"s_lshl_b32 s{S_T2}, s{S_T2}, 2")
        a(f"s_and_b32 s{S_T3}, s{S_I}, 3")
        a(f"s_add_u32 s{S_S}, s{S_T2}, s{S_T3}")
        a(f"s_lshr_b32 s{S_T4}, s{S_I}, 2")
        a(f"s_cmp_lt_u32 s3, 4")
        a(f"s_mov_b32 s{S_T2}, 0xFDB96420")
        a(f"s_cselect_b32 s{S_T2}, 0xECA87531, s{S_T2}")
        a(f"s_lshl_b32 s{S_T0}, s{S_T4}, 2")
        a(f"s_lshr_b32 s{S_T2}, s{S_T2}, s{S_T0}")
        a(f"s_and_b32 s{S_HP}, s{S_T2}, 15")
    else:
        a(f"s_lshr_b32 s{S_T2}, s3, 1")
        a(f"s_and_b32 s{S_T2}, s{S_T2}, 1")
        a(f"s_lshl_b32 s{S_T2}, s{S_T2}, 2")
        a(f"s_and_b32 s{S_T3}, s{S_I}, 3")
        a(f"s_add_u32 s{S_S}, s{S_T2}, s{S_T3}")
        a(f"s_and_b32 s{S_T2}, s3, 1")
        a(f"s_lshl_b32 s{S_T2}, s{S_T2}, 3")
        a(f"s_lshr_b32 s{S_T4}, s{S_I}, 2")
        a(f"s_add_u32 s{S_HP}, s{S_T2}, s{S_T4}")
    a(f"s_lshl_b32 s{S_T3}, s{S_T3}, 1")
    a(f"s_add_u32 s{S_C}, s{S_T4}, s{S_T3}")
    a(f"s_cmp_ge_u32 s{S_C}, 9")
    a(f"s_cselect_b32 s{S_T3}, 9, 0")
    a(f"s_sub_u32 s{S_C}, s{S_C}, s{S_T3}")
    if 'norot' in exp: a(f"s_mov_b32 s{S_C}, 0")
    for key, mul in (('rot2', 2), ('rot3', 3)):
        if key in exp or (key == 'rot2' and 'rot' not in exp):
            a(f"s_lshr_b32 s{S_C}, s{S_T4}, 1")
            a(f"s_and_b32 s{S_T3}, s{S_I}, 3")
            a(f"s_add_u32 s{S_C}, s{S_C}, s{S_T3}")
            a(f"s_mul_i32 s{S_C}, s{S_C}, {mul}")
            for _ in range(2):
                a(f"s_cmp_ge_u32 s{S_C}, 9")
                a(f"s_cselect_b32 s{S_T3}, 9, 0")
                a(f"s_sub_u32 s{S_C}, s{S_C}, s{S_T3}")
    if 'rot4' in exp:
        a(f"s_lshr_b32 s{S_C}, s{S_T4}, 2")
        a(f"s_and_b32 s{S_T3}, s{S_I}, 3")
        a(f"s_lshr_b32 s{S_T3}, s{S_T3}, 1")
        a(f"s_add_u32 s{S_C}, s{S_C}, s{S_T3}")
        a(f"s_mul_i32 s{S_C}, s{S_C}, 3")
    a(f"s_lshl_b32 s{S_T0}, s{S_B}, 4")
    a(f"s_add_u32 s{S_T0}, s{S_T0}, s{S_HP}")
    a(f"s_lshl_b32 s{S_T0}, s{S_T0}, 3")
    a(f"s_add_u32 s{S_IDX}, s{S_T0}, s{S_S}")
    a(f"s_lshl_b32 s{S_T0}, s{S_B}, 3")
    a(f"s_add_u32 s{S_GRP}, s{S_T0}, s{S_S}")
    a(f"v_lshrrev_b32 v{t}, 6, v0")
    a(f"v_and_b32 v{L}, 63, v0")
    a(f"v_readfirstlane_b32 s{S_WID}, v{t}")
    for (r, n) in ((S_X, 2359296), (S_W, 1990656), (S_WO, 663552), (S_WS, 268435456), (S_OUT, 4718592)):
        a(f"s_mov_b32 s{r+2}, {n}")
        a(f"s_mov_b32 s{r+3}, 0x00020000")
    a(f"s_and_b32 s{S_M}, s{S_WID}, 3")
    a(f"s_lshr_b32 s{S_HEAD}, s{S_WID}, 2")
    a(f"s_sub_u32 s{S_MB}, 7, s{S_M}")
    a(f"s_lshl_b32 s{S_T0}, s{S_GRP}, 18")
    a(f"s_add_u32 s{S_T0}, s{S_T0}, {WS_O}")
    a(f"s_lshl_b32 s{S_T1}, s{S_HP}, 10")
    a(f"s_lshl_b32 s{S_T2}, s{S_HEAD}, 9")
    a(f"s_add_u32 s{S_T1}, s{S_T1}, s{S_T2}")
    a(f"s_add_u32 s{S_OM}, s{S_T1}, s{S_T0}")
    a(f"s_lshl_b32 s{S_T0}, s{S_GRP}, 15")
    a(f"s_add_u32 s{S_T0}, s{S_T0}, {WS_OR}")
    a(f"s_lshl_b32 s{S_T1}, s{S_HP}, 1")
    a(f"s_add_u32 s{S_T1}, s{S_T1}, s{S_HEAD}")
    a(f"s_lshl_b32 s{S_T1}, s{S_T1}, 10")
    a(f"s_add_u32 s{S_OR}, s{S_T1}, s{S_T0}")
    a(f"s_lshl_b32 s{S_OFS}, s{S_GRP}, 12")
    a(f"s_add_u32 s{S_OFS}, s{S_OFS}, {WS_OF}")
    a(f"s_cmp_lt_u32 s{S_WID}, 4")
    a("s_cbranch_scc1 L_COMPUTE")

    emit_masks = lambda: emit_masks_(a)
    emit_p2_patterns = lambda: emit_p2_patterns_(a)

    a(f"s_sub_u32 s{S_L}, s{S_WID}, 4")
    a(f"v_lshrrev_b32 v{t}, 3, v{L}")
    a(f"v_mul_u32_u24 v{t}, 1152, v{t}")
    a(f"v_lshrrev_b32 v{t+1}, 4, v{L}")
    a(f"v_and_b32 v{t+2}, 7, v{L}")
    a(f"v_xor_b32 v{t+3}, v{t+2}, v{t+1}")
    a(f"v_lshl_add_u32 v{V_AX}, v{t+3}, 4, v{t}")
    a(f"v_xor_b32 v{t+3}, 4, v{t+3}")
    a(f"v_lshl_add_u32 v{V_AX+1}, v{t+3}, 4, v{t}")
    a(f"s_mul_i32 s{S_T0}, s{S_HP}, 72")
    a(f"s_and_b32 s{S_T0}, s{S_T0}, 0xfffffff0")
    a(f"v_and_b32 v{t+2}, 15, v{L}")
    a(f"v_mul_u32_u24 v{t+4}, 3456, v{t+1}")
    a(f"v_add_u32 v{t+4}, s{S_T0}, v{t+4}")
    for var in range(2):
        a(f"v_lshlrev_b32 v{t+3}, 1, v{t+1}")
        a(f"v_sub_u32 v{t+3}, v{t+2}, v{t+3}")
        if var: a(f"v_subrev_u32 v{t+3}, 8, v{t+3}")
        a(f"v_and_b32 v{t+3}, 15, v{t+3}")
        a(f"v_min_u32 v{t+3}, 14, v{t+3}")
        a(f"v_mul_u32_u24 v{t+5}, 13, v{t+3}")
        a(f"v_lshrrev_b32 v{t+5}, 6, v{t+5}")
        a(f"v_mul_u32_u24 v{t+6}, 5, v{t+5}")
        a(f"v_sub_u32 v{t+6}, v{t+3}, v{t+6}")
        a(f"v_mul_u32_u24 v{t+5}, 1152, v{t+5}")
        a(f"v_lshl_add_u32 v{t+6}, v{t+6}, 4, v{t+5}")
        a(f"v_add_u32 v{V_AX+2+var}, v{t+4}, v{t+6}")
    for i in range(8):
        a(f"v_add_u32 v{V_LDX+i}, {i*9216-(i&3)*1024}, v{V_AX+(i&1)}")
    for i in range(4):
        a(f"v_add_u32 v{V_LDW+i}, {i*4*3456-i*1024}, v{V_AX+2+(i>>1)}")
    a(f"s_lshl_b32 s{S_T0}, s{S_S}, 8")
    a(f"s_lshl_b32 s{S_T1}, s{S_L}, 6")
    a(f"s_add_u32 s{S_T0}, s{S_T0}, s{S_T1}")
    a(f"s_mul_i32 s{S_XB}, s{S_T0}, 1152")
    a(f"s_mul_i32 s{S_WB}, s{S_L}, {16*3456}")
    a(f"s_lshl_b32 s{S_LX}, s{S_L}, 13")
    a(f"s_lshl_b32 s{S_LW}, s{S_L}, 12")
    a(f"s_add_u32 s{S_LW}, s{S_LW}, 32768")
    a(f"s_mov_b32 s{S_SB}, 0")
    def chunk_pre():
        a(f"s_lshl_b32 s{S_T0}, s{S_C}, 7")
        a(f"s_add_u32 s{S_T0}, s{S_T0}, s{S_XB}")
        a(f"s_mul_i32 s{S_T1}, s{S_C}, {64*3456}")
        a(f"s_add_u32 s{S_T1}, s{S_T1}, s{S_WB}")
        a(f"s_add_u32 s{S_T2}, s{S_SB}, s{S_LW}")
        a(f"s_add_u32 s{S_T3}, s{S_SB}, s{S_LX}")
        a(f"s_add_u32 s{S_C}, s{S_C}, 1")
        a(f"s_cmp_eq_u32 s{S_C}, 9")
        a(f"s_cselect_b32 s{S_C}, 0, s{S_C}")
        a(f"s_add_u32 s{S_SB}, s{S_SB}, {STAGE}")
        a(f"s_cmp_eq_u32 s{S_SB}, {3*STAGE}")
        a(f"s_cselect_b32 s{S_SB}, 0, s{S_SB}")
    def chunk_w():
        a(f"s_mov_b32 m0, s{S_T2}")
        a("s_nop 0")
        for i in range(4):
            a(f"buffer_load_dwordx4 v{V_LDW+i}, s[{S_W}:{S_W+3}], s{S_T1} offen offset:{i*1024} lds")
    def chunk_x(lo, hi):
        for i in range(lo, hi):
            if i == lo or i == 4:
                a(f"s_add_u32 m0, s{S_T3}, {(i&~3)*1024}")
                a("s_nop 0")
            a(f"buffer_load_dwordx4 v{V_LDX+i}, s[{S_X}:{S_X+3}], s{S_T0} offen offset:{(i&3)*1024} lds")
    chunk_pre()
    a("s_waitcnt lgkmcnt(0)")
    if 'xfirst' in exp:
        chunk_x(0, 8); chunk_w()
    else:
        chunk_w(); chunk_x(0, 8)
    chunk_pre()
    if 'c1p0' in exp:
        a("s_waitcnt vmcnt(0)")
        a("s_barrier")
        chunk_w(); chunk_x(0, 8)
    elif 'c1p4' in exp:
        chunk_w()
        a("s_waitcnt vmcnt(4)")
        a("s_barrier")
        chunk_x(0, 8)
    elif 'c1p8' in exp:
        chunk_w(); chunk_x(0, 4)
        a("s_waitcnt vmcnt(8)")
        a("s_barrier")
        chunk_x(4, 8)
    else:
        chunk_w(); chunk_x(0, 2)
        a("s_waitcnt vmcnt(6)")
        a("s_barrier")
        chunk_x(2, 8)
    chunk_pre()
    a(f"s_mov_b32 s{S_K}, 2")
    a.lab("L_LD")
    chunk_w(); chunk_x(0, 8)
    chunk_pre()
    a(f"s_add_u32 s{S_K}, s{S_K}, 1")
    a(f"s_cmp_lt_u32 s{S_K}, 9")
    a("s_waitcnt vmcnt(12)")
    a("s_barrier")
    a("s_cbranch_scc1 L_LD")
    a(f"s_lshl_b32 s{S_T0}, s{S_L}, 6")
    a(f"v_add_u32 v{t}, s{S_T0}, v{L}")
    a(f"v_mul_u32_u24 v{t+1}, 7282, v{t}")
    a(f"v_lshrrev_b32 v{t+1}, 16, v{t+1}")
    a(f"v_mul_u32_u24 v{t+2}, 9, v{t+1}")
    a(f"v_sub_u32 v{t+2}, v{t}, v{t+2}")
    a(f"v_mul_u32_u24 v{t+1}, 1152, v{t+1}")
    a(f"v_lshl_add_u32 v{t+1}, v{t+2}, 7, v{t+1}")
    a(f"s_mul_i32 s{S_T0}, s{S_I}, {18*1152}")
    a(f"v_cmp_gt_u32 vcc, 162, v{t}")
    a(f"v_cndmask_b32_e64 v{t+1}, 0, v{t+1}, vcc")
    a(f"buffer_load_dword v255, v{t+1}, s[{S_WO}:{S_WO+3}], s{S_T0} offen")
    emit_masks()
    emit_p2_patterns()
    a(f"v_mul_u32_u24 v{t+1}, 7282, v{L}")
    a(f"v_lshrrev_b32 v{t+1}, 16, v{t+1}")
    a(f"v_mul_u32_u24 v{t+2}, 9, v{t+1}")
    a(f"v_sub_u32 v{t+2}, v{L}, v{t+2}")
    a(f"v_mul_u32_u24 v{t+1}, 1152, v{t+1}")
    a(f"v_lshl_add_u32 v{t+1}, v{t+2}, 4, v{t+1}")
    a(f"s_and_b32 s{S_T0}, s{S_HP}, 7")
    a(f"s_mul_i32 s{S_T0}, s{S_T0}, 144")
    a(f"v_add_u32 v{V_WOV}, s{S_T0}, v{t+1}")
    for j in range(1, 4): a(f"v_add_u32 v{V_WOV+j}, {j*(8064-1008)}, v{V_WOV}")
    a(f"s_mul_i32 s{S_T0}, s{S_L}, {21*1008}")
    a(f"s_mul_i32 s{S_T1}, s{S_L}, {21*8064}")
    a("s_waitcnt vmcnt(1)")
    a("s_barrier")
    WO = f"s[{S_WO}:{S_WO+3}]"
    NW1 = 8 if 'wo8' not in exp else 4
    a(f"s_bitset0_b64 exec, 63")
    for j in range(21):
        if j == NW1:
            a(f"s_mov_b64 exec, -1")
            a("s_barrier")
            a(f"s_bitset0_b64 exec, 63")
        if j == 19:
            a(f"s_cmp_eq_u32 s{S_L}, 3")
            a("s_cbranch_scc0 L_WO_N")
            a(f"s_mov_b64 exec, 0x3ffff")
            a(f"buffer_load_dwordx4 v{V_WOV+(j&3)}, {WO}, s{S_T2} offen offset:{(j&3)*1008} lds")
            a("s_branch L_WO_DONE")
            a.lab("L_WO_N")
        if j % 4 == 0:
            a(f"s_add_u32 m0, s{S_T0}, {j*1008}")
            a(f"s_add_u32 s{S_T2}, s{S_T1}, {j*8064}")
        a(f"buffer_load_dwordx4 v{V_WOV+(j&3)}, {WO}, s{S_T2} offen offset:{(j&3)*1008} lds")
    a.lab("L_WO_DONE")
    a(f"s_mov_b64 exec, -1")
    for r in range(16):
        a(f"v_mov_b32 v{OA+r}, 0")
        a(f"v_mov_b32 v{OB+r}, 0")
    a(f"v_lshlrev_b32 v{V_PA}, 4, v{L}")
    a(f"s_lshl_b32 s{S_T0}, s{S_L}, 10")
    a(f"v_add_u32 v{V_PA}, s{S_T0}, v{V_PA}")
    a(f"v_add_u32 v{V_PA+1}, {KV_OWN}, v{V_PA}")
    a(f"s_mul_i32 s{S_T1}, s{S_IDX}, 36864")
    a("s_barrier")
    a(f"s_cmp_eq_u32 s{S_S}, 7")
    a("s_cbranch_scc1 L_NOPUB")
    order = [8, 7, 6, 5, 4, 3, 2, 1, 0]
    for c, i in enumerate(order):
        a(f"ds_read_b128 v[{VH+4*c}:{VH+4*c+3}], v{V_PA+1} offset:{i*4096}")
    for c, i in enumerate(order[:5]):
        a(f"s_waitcnt lgkmcnt({8-c})")
        a(f"s_add_u32 s{S_T2}, s{S_T1}, {i*4096}")
        a(f"buffer_store_dwordx4 v[{VH+4*c}:{VH+4*c+3}], v{V_PA}, {WS}, s{S_T2} offen sc1")
    a.lab("L_NOPUB")
    a("s_branch L_P2")

    a.lab("L_COMPUTE")
    if 'dry' in exp and 'nodry' not in exp:
        emit_p2_patterns()
        a(f"s_mov_b32 s{S_U}, 0")
        a(f"s_mov_b32 s{S_HOOK}, 100000")
        set_run(a, KV_OWN, None, [f"s_mov_b32 s{S_N}, 3"], TILE)
        a(f"s_bitcmp1_b32 s{S_WID}, 0")
        a("s_cbranch_scc1 L_DRYB")
        a(f"s_call_b64 s[{S_RET}:{S_RET+1}], L_RUNA")
        a("s_branch L_DRYE")
        a.lab("L_DRYB")
        a(f"s_call_b64 s[{S_RET}:{S_RET+1}], L_RUNB")
        a.lab("L_DRYE")
        a("s_waitcnt lgkmcnt(0)")
    a(f"v_and_b32 v{t}, 15, v{L}")
    a(f"v_lshrrev_b32 v{t+1}, 4, v{L}")
    a(f"v_lshrrev_b32 v{t+2}, 1, v{t}")
    a(f"s_lshl_b32 s{S_T0}, s{S_WID}, 6")
    a(f"v_add_u32 v{t+3}, s{S_T0}, v{t}")
    a(f"v_lshlrev_b32 v{t+3}, 7, v{t+3}")
    a(f"v_xor_b32 v{t+4}, v{t+1}, v{t+2}")
    a(f"v_lshlrev_b32 v{t+5}, 4, v{t+4}")
    a(f"v_add_u32 v{V_AX}, v{t+3}, v{t+5}")
    a(f"v_xor_b32 v{t+4}, 4, v{t+4}")
    a(f"v_lshlrev_b32 v{t+5}, 4, v{t+4}")
    a(f"v_add_u32 v{V_AX+1}, v{t+3}, v{t+5}")
    a(f"v_bfe_u32 v{t}, v{L}, 2, 2")
    a(f"v_and_b32 v{t+2}, 3, v{L}")
    a(f"v_and_b32 v{t+3}, 1, v{t+1}")
    a(f"v_lshl_add_u32 v{t+3}, v{t+3}, 2, v{t}")
    a(f"v_lshlrev_b32 v{t+3}, 5, v{t+3}")
    a(f"v_lshl_add_u32 v{t+4}, v{t+1}, 3, v{t}")
    a(f"v_lshlrev_b32 v{t+4}, 8, v{t+4}")
    a(f"v_add_u32 v{t+4}, 32768, v{t+4}")
    a(f"v_lshlrev_b32 v{t+5}, 3, v{t+2}")
    a(f"s_and_b32 s{S_T1}, s{S_HP}, 1")
    a(f"s_lshl_b32 s{S_T1}, s{S_T1}, 3")
    a(f"v_add3_u32 v{t+5}, v{t+5}, v{t+3}, s{S_T1}")
    for Tn in range(6):
        off = 80*(Tn >> 1) + (40 if Tn & 1 else 0)
        a(f"v_add_u32 v{t+6}, {off}, v{t+5}")
        a(f"v_and_b32 v{t+6}, 255, v{t+6}")
        a(f"v_add_u32 v{V_AW+Tn}, v{t+4}, v{t+6}")
    a(f"v_min_u32 v{t+6}, 2, v{t+2}")
    a(f"v_mul_u32_u24 v{t+6}, 80, v{t+6}")
    a(f"v_add3_u32 v{t+6}, v{t+6}, v{t+3}, s{S_T1}")
    a(f"v_add_u32 v{t+6}, 32, v{t+6}")
    a(f"v_and_b32 v{t+6}, 255, v{t+6}")
    a(f"v_add_u32 v{V_AW+6}, v{t+4}, v{t+6}")
    a(f"v_and_b32 v{t}, 15, v{L}")
    a(f"v_lshrrev_b32 v{t+1}, 4, v{L}")
    a(f"v_and_b32 v{t+2}, 1, v{t+1}")
    a(f"v_lshl_add_u32 v{t+2}, v{t+2}, 4, v{t}")
    a(f"v_lshrrev_b32 v{t+3}, 2, v{t}")
    a(f"v_lshrrev_b32 v{t+4}, 3, v{t}")
    a(f"v_xor_b32 v{t+3}, v{t+3}, v{t+4}")
    a(f"v_lshrrev_b32 v{t+4}, 1, v{t+1}")
    a(f"v_xor_b32 v{t+3}, v{t+3}, v{t+4}")
    a(f"v_and_b32 v{t+3}, 1, v{t+3}")
    a(f"v_lshlrev_b32 v{t+3}, 4, v{t+3}")
    a(f"v_lshl_add_u32 v{t+3}, v{t+2}, 5, v{t+3}")
    a(f"s_mul_i32 s{S_T0}, s{S_WID}, {2*TILE}")
    a(f"s_add_u32 s{S_T0}, s{S_T0}, {KV_OWN}")
    a(f"s_mul_i32 s{S_T1}, s{S_WID}, {2*QTILE}")
    a(f"s_add_u32 s{S_T1}, s{S_T1}, {Q_BASE}")
    a(f"v_add_u32 v{vEK}, s{S_T0}, v{t+3}")
    a(f"v_add_u32 v{vEQ}, s{S_T1}, v{t+3}")
    a(f"v_mul_u32_u24 v{t+4}, 72, v{t}")
    a(f"v_lshl_add_u32 v{t+5}, v{t+1}, 3, v{t+4}")
    a(f"v_add_u32 v{t+5}, 2304, v{t+5}")
    a(f"v_add_u32 v{vEV}, s{S_T0}, v{t+5}")
    a(f"v_lshlrev_b32 v{t+5}, 3, v{t}")
    a(f"v_add_u32 v{t+5}, 2048, v{t+5}")
    a(f"v_add_u32 v{t+6}, s{S_T1}, v{t+5}")
    a(f"v_add_u32 v{t+7}, s{S_T0}, v{t+5}")
    a(f"v_add_u32 v{t+4}, {2304+32}, v{t+4}")
    a(f"v_add_u32 v{t+4}, s{S_T0}, v{t+4}")
    a(f"v_mov_b32 v{vDr}, 128")
    a(f"v_mov_b32 v{vDt}, {TILE}")
    a(f"v_mov_b32 v{vF}, 1.0")
    a(f"v_mov_b32 v{vE6}, v{t+7}")
    a(f"v_cmp_eq_u32 vcc, 0, v{t+1}")
    a(f"v_mov_b32 v{t+5}, {QTILE}")
    a(f"v_mov_b32 v{vC}, {f32bits(QSCALE):#x}")
    a(f"v_cndmask_b32 v{vE6}, v{vE6}, v{t+6}, vcc")
    a(f"v_cndmask_b32 v{vDt}, v{vDt}, v{t+5}, vcc")
    a(f"v_cndmask_b32 v{vF}, v{vF}, v{vC}, vcc")
    a(f"v_cmp_eq_u32 vcc, 2, v{t+1}")
    a(f"v_mov_b32 v{t+5}, 1152")
    a(f"v_mov_b32 v{vC+1}, v{vC}")
    a(f"v_cndmask_b32 v{vE6}, v{vE6}, v{t+4}, vcc")
    a(f"v_cndmask_b32 v{vDr}, v{vDr}, v{t+5}, vcc")
    a(f"v_mov_b32 v{vF+1}, v{vF}")
    a("s_waitcnt lgkmcnt(0)")
    if 'nocp' not in exp:
        a(f"s_cmp_lg_u32 s{S_WID}, 3")
        a("s_cbranch_scc1 L_NOCP")
        a(f"s_getpc_b64 s[{S_RET}:{S_RET+1}]")
        a.lab("L_PCREF")
        a(f"s_sub_u32 s{S_RET}, s{S_RET}, L_PCREF-{NAME}_kernel")
        a(f"s_subb_u32 s{S_RET+1}, s{S_RET+1}, 0")
        a(f"s_mul_i32 s{S_T0}, s{S_I}, {5*128}")
        a(f"v_lshlrev_b32 v{t}, 7, v{L}")
        a(f"v_add_u32 v{t}, s{S_T0}, v{t}")
        a(f"s_mov_b32 s{S_T1}, L_END-{NAME}_kernel")
        a(f"v_cmp_gt_u32 vcc, s{S_T1}, v{t}")
        a(f"s_and_b64 vcc, vcc, 31")
        a(f"s_and_saveexec_b64 s[{S_SAVE}:{S_SAVE+1}], vcc")
        a("s_cbranch_execz L_NOCP2")
        a(f"global_load_dword v{V_TL}, v{t}, s[{S_RET}:{S_RET+1}]")
        a.lab("L_NOCP2")
        rest_exec()
        a.lab("L_NOCP")
    a(f"s_cmp_lg_u32 s{S_WID}, 0")
    a("s_cbranch_scc1 L_NOG0")
    a(f"s_lshl_b32 s{S_T0}, s{S_IDX}, 8")
    a(f"s_add_u32 s{S_T0}, s{S_T0}, {WS_FLAG}")
    a(f"s_lshl_b32 s{S_T1}, s{S_GRP}, 12")
    a(f"s_add_u32 s{S_T1}, s{S_T1}, {WS_OF}")
    a(f"v_mov_b32 v{t}, 0")
    a(f"buffer_load_dword v{V_TG}, v{t}, {WS}, s{S_T0} offen sc1")
    a(f"s_sub_u32 s{S_T0}, s{S_T0}, 256")
    a(f"s_max_u32 s{S_T0}, s{S_T0}, {WS_FLAG}")
    a(f"buffer_load_dword v{V_TG+1}, v{t}, {WS}, s{S_T0} offen sc1")
    a(f"buffer_load_dword v{V_TG+2}, v{t}, {WS}, s{S_T1} offen sc1")
    a.lab("L_NOG0")
    for i in range(112):
        a(f"v_mov_b32 v{V_ACC+i}, 0")
    emit_masks()
    emit_p2_patterns()
    a(f"v_mov_b32 v{t+2}, 0x3f803f80")
    a(f"v_mov_b32 v{t+3}, 0x3f803f80")
    a(f"v_mul_u32_u24 v{t+4}, 576, v{L}")
    a(f"v_add_u32 v{t+4}, {MISC}, v{t+4}")
    save_exec(15)
    a(f"ds_write_b64 v{t+4}, v[{t+2}:{t+3}]")
    rest_exec()
    a(f"s_cmp_lg_u32 s{S_WID}, 0")
    a("s_cbranch_scc1 L_NOG1")
    a("s_waitcnt vmcnt(0)")
    for i in range(3): a(f"v_add_u32 v{V_TG+i}, {TAG_INC:#x}, v{V_TG+i}")
    a(f"v_mov_b32 v{V_TG+3}, 0")
    a(f"v_mov_b32 v{t+4}, {TAGS_LDS}")
    save_exec(1)
    a(f"ds_write_b128 v{t+4}, v[{V_TG}:{V_TG+3}]")
    for i in range(4): a(f"v_mov_b32 v{V_TG+i}, 0")
    a(f"ds_write_b128 v{t+4}, v[{V_TG}:{V_TG+3}] offset:16")
    rest_exec()
    a.lab("L_NOG1")
    a("s_waitcnt lgkmcnt(0)")
    a("s_barrier")
    if "tsh" not in exp and "tsj" not in exp: ts(1)
    def reads(setb, ks):
        xs = [f"ds_read_b128 v[{setb+4*mt}:{setb+4*mt+3}], v{V_AX+ks} offset:{mt*2048}" for mt in range(4)]
        ws = []
        for Tn in range(7):
            b = setb + 16 + 4*Tn
            ws.append(f"ds_read_b64_tr_b16 v[{b}:{b+1}], v{V_AW+Tn} offset:{ks*8192}")
            ws.append(f"ds_read_b64_tr_b16 v[{b+2}:{b+3}], v{V_AW+Tn} offset:{ks*8192+1024}")
        return [xs[0], ws[0], ws[1], xs[1], ws[2], ws[3], xs[2], ws[4], ws[5], xs[3]] + ws[6:]
    def mfmas(setb):
        m = []
        for Tn in range(7):
            for mt in range(4):
                d = V_ACC + (mt*7+Tn)*4
                m.append(f"v_mfma_f32_16x16x32_bf16 v[{d}:{d+3}], v[{setb+16+4*Tn}:{setb+16+4*Tn+3}], v[{setb+4*mt}:{setb+4*mt+3}], v[{d}:{d+3}]")
        return m
    def interleave(ms, extra, per=1):
        ri = 0
        for i, m in enumerate(ms):
            a(m)
            for _ in range(per):
                if ri < len(extra): a(extra[ri]); ri += 1
        while ri < len(extra):
            a(extra[ri]); ri += 1
    for i in range(4): a(f"v_mov_b32 v{V_TG+i}, -1")
    a(f"v_lshlrev_b32 v{V_TL+1}, 4, v{L}")
    a(f"s_lshl_b32 s{S_XB}, s{S_GRP}, 18")
    a(f"s_add_u32 s{S_XB}, s{S_XB}, {WS_O}")
    a(f"s_lshl_b32 s{S_T0}, s{S_WID}, 16")
    a(f"s_add_u32 s{S_XB}, s{S_XB}, s{S_T0}")
    a(f"s_lshl_b32 s{S_T0}, s{S_HP}, 10")
    a(f"s_add_u32 s{S_XB}, s{S_XB}, s{S_T0}")
    a(f"s_lshl_b32 s{S_WB}, s{S_GRP}, 15")
    a(f"s_add_u32 s{S_WB}, s{S_WB}, {WS_OR}")
    a(f"s_lshl_b32 s{S_T0}, s{S_HP}, 1")
    a(f"s_and_b32 s{S_T1}, s{S_WID}, 1")
    a(f"s_add_u32 s{S_T0}, s{S_T0}, s{S_T1}")
    a(f"s_lshl_b32 s{S_T0}, s{S_T0}, 10")
    a(f"s_add_u32 s{S_WB}, s{S_WB}, s{S_T0}")
    for rd in reads(V_SET0, 0): a(rd)
    a(f"s_mov_b32 s{S_K}, 0")
    a(f"s_mov_b32 s{S_SB}, 0")
    if 'tb' in exp: a(f"v_mov_b32 v{V_TL}, 0")
    a.lab("L_GEMM")
    a(f"s_cmp_lt_u32 s{S_K}, 7")
    a("s_cbranch_scc1 L_GEMM_NC")
    a(f"buffer_store_dwordx4 v[{V_TG}:{V_TG+3}], v{V_TL+1}, {WS}, s{S_XB} offen sc1")
    a(f"s_add_u32 s{S_XB}, s{S_XB}, 16384")
    a(f"buffer_store_dwordx4 v[{V_TG}:{V_TG+3}], v{V_TL+1}, {WS}, s{S_XB} offen sc1")
    a(f"s_add_u32 s{S_XB}, s{S_XB}, 16384")
    a(f"s_cmp_eq_u32 s{S_K}, 8")
    a("s_cbranch_scc1 L_GEMM_NC")
    a(f"buffer_store_dwordx4 v[{V_TG}:{V_TG+3}], v{V_TL+1}, {WS}, s{S_WB} offen sc1")
    a.lab("L_GEMM_NC")
    a("s_waitcnt lgkmcnt(0)")
    if 'tb' in exp:
        a(f"s_sub_u32 s92, s92, s70")
        a(f"s_mov_b32 m0, s{S_K}")
        a("s_nop 4")
        a(f"v_writelane_b32 v{V_TL}, s92, m0")
    sal = [f"s_add_u32 s{S_SB}, s{S_SB}, 1", f"s_cmp_eq_u32 s{S_SB}, 3", f"s_mov_b32 s{S_T0}, {STAGE}",
           f"s_cselect_b32 s{S_T0}, {(-2*STAGE) & 0xffffffff}, s{S_T0}", f"s_cselect_b32 s{S_SB}, 0, s{S_SB}"]
    interleave(mfmas(V_SET0), reads(V_SET1, 1) + sal)
    a("s_waitcnt lgkmcnt(0)")
    a("s_barrier")
    if 'tb' in exp: a("s_memtime s[92:93]")
    rd = reads(V_SET0, 0)
    adds = [f"v_add_u32 v{V_AX+i}, s{S_T0}, v{V_AX+i}" for i in range(9)]
    ex = [adds[0], adds[2], rd[0], rd[1], rd[2], adds[3], rd[3], rd[4], rd[5], adds[4], rd[6], rd[7], rd[8], rd[9],
          adds[5], rd[10], rd[11], adds[6], rd[12], rd[13], adds[7], rd[14], rd[15], adds[8], rd[16], rd[17], adds[1],
          f"s_add_u32 s{S_K}, s{S_K}, 1", f"s_cmp_lt_u32 s{S_K}, 9"]
    ms = mfmas(V_SET1)
    ri = 0
    for i, m in enumerate(ms):
        a(m)
        n = 2 if i < 6 else 1
        for _ in range(n):
            if ri < len(ex): a(ex[ri]); ri += 1
    assert ri == len(ex)
    a("s_cbranch_scc1 L_GEMM")
    if "tsh" not in exp and "tsj" not in exp: ts(2)
    a.c("phase-1 epilogue")
    a("s_waitcnt lgkmcnt(0)")
    acc = lambda mt, Tn: V_ACC + (mt*7+Tn)*4
    e = [V_SET0]
    def qk_tile(Tn, base_reg, pstride, hoff):
        for p in range(2):
            R = e[0]; e[0] += 4
            da, db = acc(2*p, Tn), acc(2*p+1, Tn)
            a(f"v_cvt_pk_bf16_f32 v{R}, v{da}, v{da+1}")
            a(f"v_cvt_pk_bf16_f32 v{R+2}, v{db}, v{db+1}")
            a(f"v_cvt_pk_bf16_f32 v{R+1}, v{da+2}, v{da+3}")
            a(f"v_cvt_pk_bf16_f32 v{R+3}, v{db+2}, v{db+3}")
            a("s_nop 0")
            a(f"v_permlane16_swap_b32 v{R}, v{R+2}")
            a(f"v_permlane16_swap_b32 v{R+1}, v{R+3}")
            a(f"ds_write_b128 v{base_reg}, v[{R}:{R+3}] offset:{p*pstride+hoff}")
    a("s_nop 3")
    qk_tile(2, vEK, TILE, 0)
    qk_tile(3, vEK, TILE, 1024)
    for Tn in (4, 5):
        for mt in range(4):
            R = e[0]; e[0] += 2
            d = acc(mt, Tn)
            a(f"v_cvt_pk_bf16_f32 v{R}, v{d}, v{d+1}")
            a(f"v_cvt_pk_bf16_f32 v{R+1}, v{d+2}, v{d+3}")
            a(f"ds_write_b64 v{vEV}, v[{R}:{R+1}] offset:{(mt>>1)*TILE + (mt&1)*1152 + (40 if Tn==5 else 0)}")
    R6 = e[0]; e[0] += 8
    for mt in range(4):
        d = acc(mt, 6)
        a(f"v_pk_mul_f32 v[{d}:{d+1}], v[{d}:{d+1}], v[{vF}:{vF+1}]")
        a(f"v_pk_mul_f32 v[{d+2}:{d+3}], v[{d+2}:{d+3}], v[{vF}:{vF+1}]")
    for mt in range(4):
        d = acc(mt, 6)
        a(f"v_cvt_pk_bf16_f32 v{R6+2*mt}, v{d}, v{d+1}")
        a(f"v_cvt_pk_bf16_f32 v{R6+2*mt+1}, v{d+2}, v{d+3}")
    a(f"v_add_u32 v{t}, v{vE6}, v{vDr}")
    a(f"v_add_u32 v{t+1}, v{vE6}, v{vDt}")
    a(f"v_add_u32 v{t+2}, v{t+1}, v{vDr}")
    a(f"s_mov_b64 s[{S_SAVE}:{S_SAVE+1}], exec")
    a(f"s_mov_b32 exec_hi, 0x0000ffff")
    a(f"ds_write_b64 v{vE6}, v[{R6}:{R6+1}]")
    a(f"ds_write_b64 v{t}, v[{R6+2}:{R6+3}]")
    a(f"ds_write_b64 v{t+1}, v[{R6+4}:{R6+5}]")
    a(f"ds_write_b64 v{t+2}, v[{R6+6}:{R6+7}]")
    rest_exec()
    a("s_waitcnt lgkmcnt(0)")
    a("s_barrier")
    for mt in range(4):
        for Tn in (0, 1):
            d = acc(mt, Tn)
            a(f"v_pk_mul_f32 v[{d}:{d+1}], v[{d}:{d+1}], v[{vC}:{vC+1}]")
            a(f"v_pk_mul_f32 v[{d+2}:{d+3}], v[{d+2}:{d+3}], v[{vC}:{vC+1}]")
    e[0] = 84
    qk_tile(0, vEQ, QTILE, 0)
    qk_tile(1, vEQ, QTILE, 1024)
    for r in range(16):
        a(f"v_mov_b32 v{OA+r}, 0")
        a(f"v_mov_b32 v{OB+r}, 0")

    a.lab("L_P2")
    a(f"v_mov_b32 v{t}, {TAGS_LDS}")
    a(f"ds_read_b128 v[{V_TG}:{V_TG+3}], v{t}")
    a("s_waitcnt lgkmcnt(0)")
    a("s_barrier")
    ts(3)
    if debug_stage == 1:
        a(f"s_lshl_b32 s{S_T0}, s{S_IDX}, 16")
        a(f"v_lshlrev_b32 v{t}, 4, v0")
        for i in range(7):
            a(f"v_add_u32 v{t+1}, {KV_OWN + i*8192}, v{t}")
            a(f"ds_read_b128 v[40:43], v{t+1}")
            a("s_waitcnt lgkmcnt(0)")
            a(f"v_add_u32 v{t+2}, {i*8192}, v{t}")
            a(f"buffer_store_dwordx4 v[40:43], v{t+2}, {WS}, s{S_T0} offen")
            a("s_waitcnt vmcnt(0)")
        a("s_branch L_FIN")
    if debug_stage == 9:
        a("s_branch L_FIN")
    if debug_stage not in (1, 9):
        phase2(a, debug_stage, ts, exp, save_exec, rest_exec)
        phase3(a, debug_stage, ts, exp, save_exec, rest_exec)
    a.lab("L_FIN")
    if 'hdbg' in exp:
        a("s_waitcnt vmcnt(0) lgkmcnt(0)")
        a("s_memrealtime s[94:95]")
        a(f"s_load_dwordx2 s[{S_X}:{S_X+1}], s[0:1], 56")
        a("s_waitcnt lgkmcnt(0)")
        a(f"s_cmp_lg_u32 s{S_WID}, 4")
        a("s_cbranch_scc1 L_END")
        a(f"s_mov_b32 s{S_X+2}, 256")
        a(f"s_mov_b32 s{S_X+3}, 0x00020000")
        a("s_mov_b64 exec, 1")
        a("v_mov_b32 v2, 0")
        a("s_not_b32 s33, s70")
        a("v_mov_b32 v3, s33")
        a(f"buffer_atomic_umax v3, v2, s[{S_X}:{S_X+3}], 0 offen offset:0")
        a("v_mov_b32 v3, s70")
        a(f"buffer_atomic_umax v3, v2, s[{S_X}:{S_X+3}], 0 offen offset:4")
        for k, i in enumerate((3, 4, 5, 7, 8, 10, 9, 11, 12)):
            a(f"v_mov_b32 v{4+k}, s{70+2*i}")
            a(f"buffer_atomic_umax v{4+k}, v2, s[{S_X}:{S_X+3}], 0 offen offset:{8+4*k}")
        a("s_waitcnt vmcnt(0)")
        a("s_branch L_END")
    if timing:
        a("s_waitcnt vmcnt(0) lgkmcnt(0)")
        a(f"{'s_memrealtime' if ('abs' in exp or 'hdbg' in exp) else 's_memtime'} s[94:95]")
        a("s_waitcnt lgkmcnt(0)")
        a(f"s_lshl_b32 s{S_T0}, s2, 3")
        a(f"s_add_u32 s{S_T0}, s{S_T0}, s{S_WID}")
        a(f"s_lshl_b32 s{S_T0}, s{S_T0}, 6")
        a(f"s_add_u32 s{S_T0}, s{S_T0}, {TIMING_OFF}")
        for i in range(13):
            a(f"s_sub_u32 s{S_T1}, s{70+2*i}, s70" if (i and 'abs' not in exp) else f"s_mov_b32 s{S_T1}, s{70+2*i}")
            a(f"s_cmp_eq_u32 s{70+2*i}, 0")
            a(f"s_cselect_b32 s{S_T1}, 0, s{S_T1}")
            a(f"v_mov_b32 v{40+i}, s{S_T1}")
        if 'tb' in exp:
            a(f"v_lshlrev_b32 v2, 2, v{V_LANE}")
            a(f"s_add_u32 s{S_T1}, s{S_T0}, {1<<20}")
            a(f"s_mov_b64 exec, 0xffff")
            a(f"buffer_store_dword v{V_TL}, v2, {WS}, s{S_T1} offen")
        a(f"v_mov_b32 v2, 0")
        a(f"s_mov_b64 exec, 1")
        for i in range(3):
            a(f"buffer_store_dwordx4 v[{40+4*i}:{43+4*i}], v2, {WS}, s{S_T0} offen offset:{16*i}")
        a(f"buffer_store_dword v52, v2, {WS}, s{S_T0} offen offset:48")
        a("s_waitcnt vmcnt(0)")
    a.lab("L_END")
    a("s_endpgm")
    a(f""".section .rodata,"a"
.p2align 6
.amdhsa_kernel {NAME}_kernel
  .amdhsa_next_free_vgpr 256
  .amdhsa_next_free_sgpr 102
  .amdhsa_accum_offset 256
  .amdhsa_group_segment_fixed_size 0
  .amdhsa_kernarg_size 72
  .amdhsa_user_sgpr_count 2
  .amdhsa_user_sgpr_kernarg_segment_ptr 1
  .amdhsa_system_sgpr_workgroup_id_x 1
.end_amdhsa_kernel""")
    return a.text()

WS = f"s[{S_WS}:{S_WS+3}]"

def spin_poll(a, name, check_lines, load_line, limit=2000000, first_done=False):
    a(f"s_mov_b32 s{S_CNT}, 0")
    if first_done: a(f"s_branch {name}_W")
    a.lab(name)
    a(load_line)
    a.lab(name + "_W")
    a(f"s_add_u32 s{S_CNT}, s{S_CNT}, 1")
    a("s_waitcnt vmcnt(0)")
    for l in check_lines: a(l)
    a(f"s_cbranch_scc1 {name}_OK")
    a(f"s_cmp_lt_u32 s{S_CNT}, {limit}")
    a(f"s_cbranch_scc1 {name}")
    a.lab(name + "_OK")

def lds_inc(a, addr, save_exec, rest_exec, rtn=None):
    t = T
    a(f"v_mov_b32 v{t}, {addr}")
    a(f"v_mov_b32 v{t+1}, 1")
    save_exec(1)
    if rtn is None: a(f"ds_add_u32 v{t}, v{t+1}")
    else: a(f"ds_add_rtn_u32 v{rtn}, v{t}, v{t+1}")
    rest_exec()

def lds_wait(a, name, addr, val):
    t = T
    a(f"v_mov_b32 v{t}, {addr}")
    a(f"s_mov_b32 s{S_CNT}, 0")
    a.lab(name)
    a(f"ds_read_b32 v{t+1}, v{t}")
    a(f"s_add_u32 s{S_CNT}, s{S_CNT}, 1")
    a("s_waitcnt lgkmcnt(0)")
    a(f"v_readfirstlane_b32 s{S_T0}, v{t+1}")
    a(f"s_cmp_ge_u32 s{S_T0}, {val}")
    a(f"s_cbranch_scc1 {name}_OK")
    a(f"s_cmp_lt_u32 s{S_CNT}, 20000000")
    a(f"s_cbranch_scc1 {name}")
    a.lab(name + "_OK")

def hook_point(a, tag):
    a(f"s_add_u32 s{S_U}, s{S_U}, 1")
    a(f"s_cmp_lg_u32 s{S_U}, s{S_HOOK}")
    a(f"s_cbranch_scc1 {tag}")
    a(f"s_call_b64 s[{S_RET2}:{S_RET2+1}], L_HOOK")
    a.lab(tag)

def run_code(a, name, QM, QR, O, exp):
    cnt = [0]
    def qk1(creg):
        c = "0" if creg is None else f"v[{creg}:{creg+15}]"
        a(f"v_mfma_f32_32x32x16_bf16 v[{VS}:{VS+15}], v[{VKF}:{VKF+3}], v[{QM}:{QM+3}], {c}")
    def qk2():
        a(f"v_mfma_f32_32x32x16_bf16 v[{VS}:{VS+15}], v[{VKR}:{VKR+3}], v[{QR}:{QR+3}], v[{VS}:{VS+15}]")
    def pv(V, P):
        a(f"v_mfma_f32_32x32x16_bf16 v[{O}:{O+15}], v[{V}:{V+3}], v[{P}:{P+3}], v[{O}:{O+15}]")
    def kread():
        a(f"ds_read_b128 v[{VKF}:{VKF+3}], v{A_K}")
        a(f"ds_read_b64 v[{VKR}:{VKR+1}], v{A_KR}")
    def kstep():
        a(f"v_add_u32 v{A_K}, v{ST_K}, v{A_K}")
        a(f"v_add_u32 v{A_KR}, v{ST_K}, v{A_KR}")
    def vread(V, off):
        a(f"ds_read_b64_tr_b16 v[{V}:{V+1}], v{A_V} offset:{off}")
        a(f"ds_read_b64_tr_b16 v[{V+2}:{V+3}], v{A_V} offset:{off+576}")
    def cvt(j): a(f"v_cvt_pk_bf16_f32 v{VP+j}, v{VE+2*j}, v{VE+2*j+1}")
    def ex(r): a(f"v_exp_f32 v{VE+r}, v{VS+r}")
    def unit(D):
        if 'pf' in exp: a("s_setprio 1" if 'pfi' not in exp else "s_setprio 0")
        for r in range(8): ex(r)
        for j in range(4): cvt(j)
        ex(8); ex(9)
        a("s_waitcnt lgkmcnt(0)")
        pv(VVA, VP)
        for r in range(10, 16): ex(r)
        if 'pf' in exp: a("s_setprio 0" if 'pfi' not in exp else "s_setprio 1")
        if D:
            qk1(V_MASK if D == "mask" else None)
            for j in range(4, 8): cvt(j)
            vread(VVA, 0)
            qk2()
            kstep()
            kread()
            pv(VVB, VP+4)
            vread(VVB, 1152)
            a(f"v_add_u32 v{A_V}, v{ST_V}, v{A_V}")
        else:
            a("s_nop 0")
            for j in range(4, 8): cvt(j)
            a("s_nop 1")
            pv(VVB, VP+4)
    a.lab(name)
    kread()
    a(f"s_cmp_eq_u32 s{S_N}, 1")
    a(f"s_cbranch_scc1 {name}_M1")
    kstep()
    a("s_waitcnt lgkmcnt(0)")
    qk1(None); qk2()
    vread(VVA, 0); kread(); vread(VVB, 1152)
    a(f"v_add_u32 v{A_V}, v{ST_V}, v{A_V}")
    a(f"s_sub_u32 s{S_N}, s{S_N}, 2")
    a.lab(name + "_BT")
    a(f"s_cmp_eq_u32 s{S_N}, 0")
    a(f"s_cbranch_scc1 {name}_MK0")
    a(f"s_sub_u32 s{S_E}, s{S_HOOK}, s{S_U}")
    a(f"s_min_u32 s{S_E}, s{S_E}, s{S_N}")
    a(f"s_sub_u32 s{S_N}, s{S_N}, s{S_E}")
    a(f"s_add_u32 s{S_U}, s{S_U}, s{S_E}")
    a(f"s_sub_u32 s{S_E}, s{S_E}, 1")
    a.lab(name + "_LP")
    unit("plain")
    a(f"s_sub_u32 s{S_E}, s{S_E}, 1")
    a("s_nop 1")
    a(f"s_cbranch_scc0 {name}_LP")
    a(f"s_cmp_lg_u32 s{S_U}, s{S_HOOK}")
    a(f"s_cbranch_scc1 {name}_BT")
    a(f"s_call_b64 s[{S_RET2}:{S_RET2+1}], L_HOOK")
    a(f"s_branch {name}_BT")
    a.lab(name + "_MK0")
    a("s_nop 3")
    a.lab(name + "_MK")
    unit("mask")
    hook_point(a, f"{name}_H1")
    a("s_nop 1")
    a.lab(name + "_FN")
    unit(None)
    hook_point(a, f"{name}_H2")
    a(f"s_setpc_b64 s[{S_RET}:{S_RET+1}]")
    a.lab(name + "_M1")
    a("s_waitcnt lgkmcnt(0)")
    qk1(V_MASK); qk2()
    vread(VVA, 0); vread(VVB, 1152)
    a("s_nop 7")
    a(f"s_branch {name}_FN")

def set_run(a, region, tile_sreg, n_lines, step):
    a(f"s_mul_i32 s{S_T0}, s{tile_sreg}, {TILE}" if tile_sreg is not None else f"s_mov_b32 s{S_T0}, 0")
    a(f"s_add_u32 s{S_T0}, s{S_T0}, {region}")
    a(f"v_add_u32 v{A_K}, s{S_T0}, v{B_K}")
    a(f"v_add_u32 v{A_KR}, s{S_T0}, v{B_KR}")
    a(f"v_and_b32 v{A_V}, s{S_T0}, v{MK_V}")
    a(f"v_add_u32 v{A_V}, v{B_V}, v{A_V}")
    a(f"v_mov_b32 v{ST_K}, {step & 0xffffffff:#x}")
    a(f"v_and_b32 v{ST_V}, v{ST_K}, v{MK_V}")
    for l in n_lines: a(l)

F_MD, F_MF, F_M = 190, 206, 222
S_FQ, S_FT, S_FK, S_FP, S_FI2 = 32+12, 45, 46, 47, 48

def safety_check(a, O, isB, qb_sreg, tag):
    t = T
    a(f"v_max3_f32 v{t}, |v{O}|, |v{O+1}|, |v{O+2}|")
    for k in range(3, 11, 2): a(f"v_max3_f32 v{t}, v{t}, |v{O+k}|, |v{O+k+1}|")
    a(f"v_max_f32 v{t}, v{t}, |v{O+11}|".replace("v_max_f32", "v_max_f32_e64"))
    a(f"v_mov_b32 v{t+1}, 0x21800000")
    a(f"v_mov_b32 v{t+2}, 0x5d800000")
    a(f"v_mov_b32 v{t+3}, 0x7f000000")
    a(f"v_cmp_nge_f32 vcc, v{O+12}, v{t+1}")
    a(f"v_cmp_nle_f32 s[{S_BAD}:{S_BAD+1}], v{O+12}, v{t+2}")
    a(f"s_or_b64 vcc, vcc, s[{S_BAD}:{S_BAD+1}]")
    a(f"v_cmp_nlt_f32 s[{S_BAD}:{S_BAD+1}], v{t}, v{t+3}")
    a(f"s_or_b64 vcc, vcc, s[{S_BAD}:{S_BAD+1}]")
    a("s_cmp_eq_u64 vcc, 0")
    a(f"s_cbranch_scc1 L_SAFE{tag}")
    a(f"s_mov_b32 s{S_FQ}, s{qb_sreg}")
    if isB:
        for r in range(8): a(f"v_swap_b32 v{QA_M+r}, v{QB_M+r}")
        for r in range(16): a(f"v_swap_b32 v{OA+r}, v{OB+r}")
    a(f"s_call_b64 s[{S_RET}:{S_RET+1}], L_FB")
    if isB:
        for r in range(8): a(f"v_swap_b32 v{QA_M+r}, v{QB_M+r}")
        for r in range(16): a(f"v_swap_b32 v{OA+r}, v{OB+r}")
    a.lab(f"L_SAFE{tag}")

def fallback_code(a):
    t = T; L = V_LANE
    a.lab("L_FB")
    a(f"v_and_b32 v{t}, 31, v{L}")
    a(f"v_lshrrev_b32 v{t+1}, 5, v{L}")
    a(f"v_lshlrev_b32 v{t+1}, 2, v{t+1}")
    a(f"v_sub_u32 v{t}, v{t}, v{t+1}")
    a(f"v_mov_b32 v{t+1}, {NEG:#x}")
    for r in range(16):
        jj = (r & 3) + 8*(r >> 2)
        a(f"v_cmp_le_i32 vcc, {jj}, v{t}")
        a("s_nop 1")
        a(f"v_cndmask_b32_e64 v{F_MD+r}, v{t+1}, 0, vcc")
        a(f"v_sub_f32 v{F_MF+r}, v{t+1}, v{F_MD+r}")
    a(f"v_mov_b32 v{F_M}, 0xff800000")
    a(f"s_mov_b32 s{S_FP}, 0")
    a.lab("L_FB_PASS")
    a(f"s_mov_b32 s{S_FI2}, 0")
    a.lab("L_FB_OWN")
    a(f"s_mul_i32 s{S_FT}, s{S_FI2}, {TILE}")
    a(f"s_add_u32 s{S_FT}, s{S_FT}, {KV_OWN}")
    a(f"s_cmp_eq_u32 s{S_FI2}, s{S_FQ}")
    a(f"s_cselect_b32 s{S_FK}, 1, 0")
    a(f"s_call_b64 s[{S_RET2}:{S_RET2+1}], L_FB_TILE")
    a(f"s_add_u32 s{S_FI2}, s{S_FI2}, 1")
    a(f"s_cmp_le_u32 s{S_FI2}, s{S_FQ}")
    a("s_cbranch_scc1 L_FB_OWN")
    a(f"s_cmp_eq_u32 s{S_S}, 0")
    a("s_cbranch_scc1 L_FB_PEND")
    a(f"s_mov_b32 s{S_FI2}, s{S_FQ}")
    a.lab("L_FB_HALO")
    a(f"s_mul_i32 s{S_FT}, s{S_FI2}, {TILE}")
    a(f"s_add_u32 s{S_FT}, s{S_FT}, {KV_HALO}")
    a(f"s_cmp_eq_u32 s{S_FI2}, s{S_FQ}")
    a(f"s_cselect_b32 s{S_FK}, 2, 0")
    a(f"s_call_b64 s[{S_RET2}:{S_RET2+1}], L_FB_TILE")
    a(f"s_add_u32 s{S_FI2}, s{S_FI2}, 1")
    a(f"s_cmp_le_u32 s{S_FI2}, 7")
    a("s_cbranch_scc1 L_FB_HALO")
    a.lab("L_FB_PEND")
    a(f"s_cmp_eq_u32 s{S_FP}, 1")
    a("s_cbranch_scc1 L_FB_DONE")
    a(f"v_mov_b32 v{t}, v{F_M}")
    a("s_nop 1")
    a(f"v_permlane32_swap_b32 v{F_M}, v{t}")
    a("s_nop 1")
    a(f"v_max_f32 v{F_M}, v{F_M}, v{t}")
    for r in range(16): a(f"v_mov_b32 v{OA+r}, 0")
    a(f"s_mov_b32 s{S_FP}, 1")
    a("s_branch L_FB_PASS")
    a.lab("L_FB_DONE")
    a("s_nop 15")
    a(f"s_setpc_b64 s[{S_RET}:{S_RET+1}]")
    a.lab("L_FB_TILE")
    a(f"v_add_u32 v{A_K}, s{S_FT}, v{B_K}")
    a(f"v_add_u32 v{A_KR}, s{S_FT}, v{B_KR}")
    a(f"v_and_b32 v{A_V}, s{S_FT}, v{MK_V}")
    a(f"v_add_u32 v{A_V}, v{B_V}, v{A_V}")
    a(f"ds_read_b128 v[{VKF}:{VKF+3}], v{A_K}")
    a(f"ds_read_b64 v[{VKR}:{VKR+1}], v{A_KR}")
    a(f"ds_read_b64_tr_b16 v[{VVA}:{VVA+1}], v{A_V}")
    a(f"ds_read_b64_tr_b16 v[{VVA+2}:{VVA+3}], v{A_V} offset:576")
    a(f"ds_read_b64_tr_b16 v[{VVB}:{VVB+1}], v{A_V} offset:1152")
    a(f"ds_read_b64_tr_b16 v[{VVB+2}:{VVB+3}], v{A_V} offset:1728")
    a("s_waitcnt lgkmcnt(0)")
    a(f"v_mfma_f32_32x32x16_bf16 v[{VS}:{VS+15}], v[{VKF}:{VKF+3}], v[{QA_M}:{QA_M+3}], 0")
    a(f"v_mfma_f32_32x32x16_bf16 v[{VS}:{VS+15}], v[{VKR}:{VKR+3}], v[{QA_R}:{QA_R+3}], v[{VS}:{VS+15}]")
    a("s_nop 15")
    a(f"s_cmp_eq_u32 s{S_FK}, 0")
    a("s_cbranch_scc1 L_FB_NM")
    a(f"s_cmp_eq_u32 s{S_FK}, 1")
    a("s_cbranch_scc0 L_FB_FM")
    for r in range(16): a(f"v_add_f32 v{VS+r}, v{VS+r}, v{F_MD+r}")
    a("s_branch L_FB_NM")
    a.lab("L_FB_FM")
    for r in range(16): a(f"v_add_f32 v{VS+r}, v{VS+r}, v{F_MF+r}")
    a.lab("L_FB_NM")
    a(f"s_cmp_eq_u32 s{S_FP}, 0")
    a("s_cbranch_scc0 L_FB_P1")
    for r in range(0, 16, 2): a(f"v_max3_f32 v{F_M}, v{F_M}, v{VS+r}, v{VS+r+1}")
    a(f"s_setpc_b64 s[{S_RET2}:{S_RET2+1}]")
    a.lab("L_FB_P1")
    for r in range(16): a(f"v_sub_f32 v{VS+r}, v{VS+r}, v{F_M}")
    for r in range(16): a(f"v_exp_f32 v{VE+r}, v{VS+r}")
    a("s_nop 0")
    for j in range(8): a(f"v_cvt_pk_bf16_f32 v{VP+j}, v{VE+2*j}, v{VE+2*j+1}")
    a("s_nop 1")
    a(f"v_mfma_f32_32x32x16_bf16 v[{OA}:{OA+15}], v[{VVA}:{VVA+3}], v[{VP}:{VP+3}], v[{OA}:{OA+15}]")
    a(f"v_mfma_f32_32x32x16_bf16 v[{OA}:{OA+15}], v[{VVB}:{VVB+3}], v[{VP+4}:{VP+7}], v[{OA}:{OA+15}]")
    a("s_nop 7")
    a(f"s_setpc_b64 s[{S_RET2}:{S_RET2+1}]")

def finalize(a, O, qb_sreg, save_exec, rest_exec):
    t = T; R = VS
    a(f"v_rcp_f32 v{t+2}, v{O+12}")
    a(f"s_lshl_b32 s{S_T0}, s{qb_sreg}, 15")
    a(f"s_add_u32 s{S_T1}, s{S_T0}, s{S_OM}")
    a(f"s_lshl_b32 s{S_T0}, s{qb_sreg}, 7")
    a(f"s_add_u32 s{S_T2}, s{S_T0}, s{S_OR}")
    for r in range(12): a(f"v_mul_f32 v{O+r}, v{O+r}, v{t+2}")
    a(f"v_cvt_pk_bf16_f32 v{R}, v{O}, v{O+1}")
    a(f"v_cvt_pk_bf16_f32 v{R+1}, v{O+2}, v{O+3}")
    a(f"v_cvt_pk_bf16_f32 v{R+2}, v{O+4}, v{O+5}")
    a(f"v_cvt_pk_bf16_f32 v{R+3}, v{O+6}, v{O+7}")
    a(f"v_cvt_pk_bf16_f32 v{R+4}, v{O+8}, v{O+9}")
    a(f"v_cvt_pk_bf16_f32 v{R+5}, v{O+10}, v{O+11}")
    a(f"s_cmp_eq_u32 s{S_HEAD}, 0")
    a(f"s_cselect_b64 s[{S_SAVE}:{S_SAVE+1}], -1, 0")
    a(f"v_permlane32_swap_b32 v{R}, v{R+2}")
    a(f"v_permlane32_swap_b32 v{R+1}, v{R+3}")
    a(f"v_cndmask_b32_e64 v{R+4}, v{R+5}, v{R+4}, s[{S_SAVE}:{S_SAVE+1}]")
    a(f"buffer_store_dwordx4 v[{R}:{R+3}], v{V_OA1}, {WS}, s{S_T1} offen sc1")
    a(f"s_mov_b64 s[{S_SAVE}:{S_SAVE+1}], exec")
    a(f"s_mov_b32 exec_hi, 0")
    a(f"buffer_store_dword v{R+4}, v{V_OA2}, {WS}, s{S_T2} offen sc1")
    rest_exec()

def oflag(a, name, cnt_addr, flag_off, save_exec, rest_exec, after_store=None, last=7):
    t = T
    lds_inc(a, cnt_addr, save_exec, rest_exec, rtn=t+2)
    a("s_waitcnt lgkmcnt(0)")
    a(f"v_readfirstlane_b32 s{S_T0}, v{t+2}")
    a(f"s_cmp_lg_u32 s{S_T0}, {last}")
    a(f"s_cbranch_scc1 {name}")
    a(f"s_lshl_b32 s{S_T0}, s{S_HP}, 2")
    a(f"s_add_u32 s{S_T0}, s{S_T0}, s{S_OFS}")
    a(f"v_lshlrev_b32 v{t}, 7, v{V_LANE}")
    a(f"v_mov_b32 v{t+1}, s{S_TAGO}")
    save_exec("0xffff")
    a(f"buffer_store_dword v{t+1}, v{t}, {WS}, s{S_T0} offen offset:{flag_off} sc1")
    rest_exec()
    if after_store: after_store()
    a.lab(name)

def phase2(a, debug_stage, ts, exp, save_exec, rest_exec):
    t = T; L = V_LANE
    UH = (4, 6, 8)
    if 'hkA' in exp: UH = (3, 5, 7)
    if 'hkB' in exp: UH = (4, 6, 7)
    if 'hkC' in exp: UH = (5, 7, 8)
    UP = 15
    a.c("======== phase 2 ========")
    a(f"v_readfirstlane_b32 s{S_TAGOUT}, v{V_TG}")
    a(f"v_readfirstlane_b32 s{S_TAGIN}, v{V_TG+1}")
    a(f"v_readfirstlane_b32 s{S_TAGO}, v{V_TG+2}")
    a(f"v_bfe_u32 v{V_OA1}, v{L}, 4, 1")
    a(f"v_lshlrev_b32 v{V_OA1}, 14, v{V_OA1}")
    a(f"v_and_b32 v{t+4}, 15, v{L}")
    a(f"v_lshl_add_u32 v{V_OA1}, v{t+4}, 4, v{V_OA1}")
    a(f"v_lshrrev_b32 v{t+4}, 5, v{L}")
    a(f"v_lshl_add_u32 v{V_OA1}, v{t+4}, 8, v{V_OA1}")
    a(f"v_lshlrev_b32 v{V_OA2}, 2, v{L}")
    for (QM, QR, sreg) in ((QA_M, QA_R, S_M), (QB_M, QB_R, S_MB)):
        a(f"s_mul_i32 s{S_T0}, s{sreg}, {QTILE}")
        a(f"s_add_u32 s{S_T0}, s{S_T0}, {Q_BASE}")
        a(f"v_add_u32 v{t+2}, s{S_T0}, v{B_K}")
        a(f"v_add_u32 v{t+3}, s{S_T0}, v{B_KR}")
        a(f"ds_read_b128 v[{QM}:{QM+3}], v{t+2}")
        a(f"ds_read_b64 v[{QR}:{QR+1}], v{t+3}")
    a(f"s_cmp_eq_u32 s{S_HEAD}, 0")
    a(f"s_cselect_b32 s{S_T0}, -1, 0")
    a(f"s_cselect_b32 s{S_T1}, 0, -1")
    a(f"v_cmp_gt_u32 vcc, 32, v{L}")
    a(f"v_mov_b32 v{t}, s{S_T0}")
    a(f"v_mov_b32 v{t+1}, s{S_T1}")
    a(f"v_cndmask_b32_e64 v{t}, 0, v{t}, vcc")
    a(f"v_cndmask_b32_e64 v{t+1}, 0, v{t+1}, vcc")
    a(f"v_mov_b32 v{VKR+2}, 0")
    a(f"v_mov_b32 v{VKR+3}, 0")
    for QR in (QA_R, QB_R):
        a(f"v_mov_b32 v{QR+2}, 0")
        a(f"v_mov_b32 v{QR+3}, 0")
    a("s_waitcnt lgkmcnt(0)")
    for QR in (QA_R, QB_R):
        a(f"v_and_b32 v{QR}, v{QR}, v{t}")
        a(f"v_and_b32 v{QR+1}, v{QR+1}, v{t+1}")
    lds_inc(a, CNTQ, save_exec, rest_exec)
    a(f"s_mov_b32 s{S_U}, 0")
    a(f"s_mov_b32 s{S_HST}, 0")
    a(f"s_mov_b32 s{S_HOOK}, 2")
    a(f"s_mov_b32 s{S_HST}, 5")
    a(f"s_cmp_lt_u32 s{S_WID}, 4")
    a(f"s_cbranch_scc1 L_HS2")
    a(f"s_mov_b32 s{S_HST}, 0")
    a(f"s_mov_b32 s{S_HOOK}, {UH[0]}")
    a(f"s_cmp_eq_u32 s{S_S}, 7")
    a(f"s_cbranch_scc1 L_HS1")
    a(f"s_mul_i32 s{S_T1}, s{S_IDX}, 36864")
    for c, i in enumerate([3, 2, 1, 0]):
        a(f"s_add_u32 s{S_T2}, s{S_T1}, {i*4096}")
        a(f"buffer_store_dwordx4 v[{VH+20+4*c}:{VH+20+4*c+3}], v{V_PA}, {WS}, s{S_T2} offen sc1")
    a.lab("L_HS1")
    if 'noprio' not in exp and 'pf' not in exp: a("s_setprio 1")
    a.lab("L_HS2")
    ts(4)
    set_run(a, KV_OWN, None, [f"s_add_u32 s{S_N}, s{S_M}, 1"], TILE)
    a(f"s_call_b64 s[{S_RET}:{S_RET+1}], L_RUNA")
    set_run(a, KV_OWN, None, [f"s_sub_u32 s{S_N}, 8, s{S_M}"], TILE)
    a(f"s_call_b64 s[{S_RET}:{S_RET+1}], L_RUNB")
    ts(5)
    a(f"s_cmp_eq_u32 s{S_S}, 0")
    a("s_cbranch_scc1 L_FINAL0")
    a(f"v_mov_b32 v{t+2}, {NEG:#x}")
    for r in range(16): a(f"v_sub_f32 v{V_MASK+r}, v{t+2}, v{V_MASK+r}")
    a(f"s_cmp_lt_u32 s{S_WID}, 4")
    a("s_cbranch_scc1 L_H5DONE")
    lds_wait(a, "L_WQ", CNTQ, 8)
    a(f"v_add_u32 v{V_PA+1}, {KV_HALO}, v{V_PA}")
    for c, i in enumerate([8, 7, 6, 5, 4, 3, 2, 1, 0]):
        a(f"s_waitcnt vmcnt({8-c})")
        a(f"ds_write_b128 v{V_PA+1}, v[{VH+4*c}:{VH+4*c+3}] offset:{i*4096}")
    a(f"s_cmp_lg_u32 s{S_WID}, 4")
    a("s_cbranch_scc1 L_H5DONE")
    a(f"s_sub_u32 s{S_T0}, s{S_IDX}, 1")
    a(f"s_lshl_b32 s{S_T0}, s{S_T0}, 8")
    a(f"s_add_u32 s{S_T0}, s{S_T0}, {WS_FLAG}")
    a(f"v_mov_b32 v{t}, 0")
    a(f"v_mov_b32 v{t+1}, s{S_TAGIN}")
    save_exec(1)
    a(f"buffer_store_dword v{t+1}, v{t}, {WS}, s{S_T0} offen sc1")
    rest_exec()
    a.lab("L_H5DONE")
    a("s_waitcnt lgkmcnt(0)")
    if 'noph' in exp: a("s_setprio 0")
    a("s_barrier")
    if "tsh" not in exp: ts(7)
    a(f"s_mov_b32 s{S_T4}, 7")
    set_run(a, KV_HALO, S_T4, [f"s_add_u32 s{S_N}, s{S_M}, 1"], -TILE)
    a(f"s_call_b64 s[{S_RET}:{S_RET+1}], L_RUNB")
    a("s_nop 7")
    a("s_nop 3")
    safety_check(a, OB, True, S_MB, "B1")
    finalize(a, OB, S_MB, save_exec, rest_exec)
    if 'noph' not in exp: a("s_setprio 0")
    a(f"s_mov_b32 s{S_T4}, 7")
    set_run(a, KV_HALO, S_T4, [f"s_sub_u32 s{S_N}, 8, s{S_M}"], -TILE)
    a(f"s_call_b64 s[{S_RET}:{S_RET+1}], L_RUNA")
    a("s_branch L_FINALA")
    a.lab("L_FINAL0")
    a("s_waitcnt vmcnt(0)")
    a("s_setprio 0")
    a("s_barrier")
    a("s_nop 7")
    a("s_nop 3")
    safety_check(a, OB, True, S_MB, "B0")
    finalize(a, OB, S_MB, save_exec, rest_exec)
    a.lab("L_FINALA")
    a("s_setprio 0")
    if "tsh" not in exp: ts(8)
    a("s_nop 7")
    a("s_nop 3")
    safety_check(a, OA, False, S_M, "A")
    finalize(a, OA, S_M, save_exec, rest_exec)
    a("s_branch L_P3")
    fallback_code(a)

    a.lab("L_HOOK")
    a(f"s_cmp_eq_u32 s{S_HST}, 1")
    a("s_cbranch_scc1 L_HK1")
    a(f"s_cmp_eq_u32 s{S_HST}, 2")
    a("s_cbranch_scc1 L_HK2")
    a(f"s_cmp_eq_u32 s{S_HST}, 3")
    a("s_cbranch_scc1 L_HK3")
    a(f"s_cmp_eq_u32 s{S_HST}, 5")
    a("s_cbranch_scc0 L_HK0")
    a(f"s_mov_b32 s{S_HST}, 3")
    a(f"s_mov_b32 s{S_HOOK}, {UP}")
    a("s_waitcnt vmcnt(0)")
    oflag(a, "L_CLR", CNTOB, 128, save_exec, rest_exec, last=3)
    a("s_branch L_HRET")
    a.lab("L_HK0")
    a(f"s_mov_b32 s{S_HST}, 1")
    a(f"s_mov_b32 s{S_HOOK}, {UH[1]}")
    a(f"s_cmp_eq_u32 s{S_S}, 7")
    a("s_cbranch_scc1 L_HRET")
    a("s_waitcnt vmcnt(0)")
    a(f"s_lshl_b32 s{S_T0}, s{S_IDX}, 8")
    a(f"s_lshl_b32 s{S_T1}, s{S_L}, 2")
    a(f"s_add_u32 s{S_T0}, s{S_T0}, s{S_T1}")
    a(f"s_add_u32 s{S_T0}, s{S_T0}, {WS_FLAG+128}")
    a(f"v_mov_b32 v{t}, 0")
    a(f"v_mov_b32 v{t+1}, s{S_TAGOUT}")
    save_exec(1)
    a(f"buffer_store_dword v{t+1}, v{t}, {WS}, s{S_T0} offen sc1")
    rest_exec()
    a("s_branch L_HRET")
    a.lab("L_HK3")
    a(f"s_mov_b32 s{S_HST}, 4")
    a(f"s_mov_b32 s{S_HOOK}, 1000")
    a(f"s_lshl_b32 s{S_T0}, s{S_HP}, 7")
    a(f"s_add_u32 s{S_T0}, s{S_T0}, s{S_OFS}")
    save_exec("0xffff")
    a(f"v_lshlrev_b32 v{t}, 2, v{L}")
    a(f"buffer_load_dword v{V_TG+1}, v{t}, {WS}, s{S_T0} offen offset:128 sc1")
    rest_exec()
    a("s_branch L_HRET")
    a.lab("L_HK1")
    a(f"s_mov_b32 s{S_HST}, 2")
    a(f"s_mov_b32 s{S_HOOK}, {UH[2]}")
    a(f"s_cmp_eq_u32 s{S_S}, 0")
    a("s_cbranch_scc0 L_HK1A")
    a(f"s_mov_b32 s{S_HOOK}, 1000")
    a("s_branch L_HRET")
    a.lab("L_HK1A")
    a(f"s_sub_u32 s{S_H1}, s{S_IDX}, 1")
    a(f"s_lshl_b32 s{S_H1}, s{S_H1}, 8")
    a(f"s_lshl_b32 s{S_T0}, s{S_L}, 2")
    a(f"s_add_u32 s{S_H1}, s{S_H1}, s{S_T0}")
    a(f"s_add_u32 s{S_H1}, s{S_H1}, {WS_FLAG+128}")
    a(f"v_mov_b32 v{t}, 0")
    a(f"buffer_load_dword v{V_TG}, v{t}, {WS}, s{S_H1} offen sc1")
    a("s_branch L_HRET")
    a.lab("L_HK2")
    a(f"s_mov_b32 s{S_HST}, 3")
    a(f"s_mov_b32 s{S_HOOK}, {UP}")
    a("s_waitcnt vmcnt(0)")
    a(f"v_readfirstlane_b32 s{S_T0}, v{V_TG}")
    a(f"s_cmp_eq_u32 s{S_T0}, s{S_TAGIN}")
    a("s_cbranch_scc1 L_POLL1_OK")
    a(f"v_mov_b32 v{t}, 0")
    spin_poll(a, "L_POLL1",
              [f"v_readfirstlane_b32 s{S_T0}, v{V_TG}", f"s_cmp_eq_u32 s{S_T0}, s{S_TAGIN}"],
              f"buffer_load_dword v{V_TG}, v{t}, {WS}, s{S_H1} offen sc1")
    a(f"s_sub_u32 s{S_T0}, s{S_IDX}, 1")
    a(f"s_mul_i32 s{S_T0}, s{S_T0}, 36864")
    for c, i in enumerate([8, 7, 6, 5, 4, 3, 2, 1, 0]):
        a(f"s_add_u32 s{S_T1}, s{S_T0}, {i*4096}")
        a(f"buffer_load_dwordx4 v[{VH+4*c}:{VH+4*c+3}], v{V_PA}, {WS}, s{S_T1} offen sc1")
    a.lab("L_HRET")
    a(f"s_setpc_b64 s[{S_RET2}:{S_RET2+1}]")
    run_code(a, "L_RUNA", QA_M, QA_R, OA, exp)
    run_code(a, "L_RUNB", QB_M, QB_R, OB, exp)

def pub_stores(a, stage_off, base):
    a(f"s_add_u32 s{S_T2}, s{S_T1}, {stage_off}")
    a(f"buffer_store_dwordx4 v[{base}:{base+3}], v{V_PA}, {WS}, s{S_T2} offen sc1")
    for i in range(1, 4):
        a(f"s_add_u32 s{S_T3}, s{S_T2}, {i*4096}")
        a(f"buffer_store_dwordx4 v[{base+4*i}:{base+4*i+3}], v{V_PA}, {WS}, s{S_T3} offen sc1")
    a(f"buffer_store_dwordx4 v[{base+16}:{base+19}], v{V_PA+2}, {WS}, s{S_T2} offen sc1")

def halo_loads(a, stage_off, base):
    a(f"s_sub_u32 s{S_T0}, s{S_IDX}, 1")
    a(f"s_mul_i32 s{S_T0}, s{S_T0}, 36864")
    a(f"s_add_u32 s{S_T0}, s{S_T0}, s{S_SO}")
    for i in range(4):
        a(f"s_add_u32 s{S_T1}, s{S_T0}, {i*4096}")
        a(f"buffer_load_dwordx4 v[{base+4*i}:{base+4*i+3}], v{V_PA}, {WS}, s{S_T1} offen sc1")
    a(f"buffer_load_dwordx4 v[{base+16}:{base+19}], v{V_PA+2}, {WS}, s{S_T0} offen sc1")

def phase3(a, debug_stage, ts, exp, save_exec, rest_exec):
    t = T; L = V_LANE
    OF, AC, WF0, WF1 = 20, 92, 132, 152
    AW, AW2, PF, VO, VOUT, VR = 10, 11, 13, 14, 15, 16
    PA, PB = 12, 9
    S_PL, S_PR, S_PM = 4, 68, 40
    SCR = KV_OWN
    ORD = {0: [0, 2, 4, 6, 1, 3, 5, 7, 8], 1: [9, 11, 13, 15, 10, 12, 14, 16, 17]}
    GM = {0: 0x0055, 1: 0xAA00}; RM = {0: 0x01AA, 1: 0xFFFF}
    a.lab("L_P3")
    a.c("======== phase 3 ========")
    a(f"s_lshl_b32 s{S_PL}, s{S_HP}, 7")
    a(f"s_add_u32 s{S_PL}, s{S_PL}, s{S_OFS}")
    def poll_issue():
        save_exec("0xffff")
        a(f"v_lshlrev_b32 v{t+2}, 2, v{L}")
        a(f"buffer_load_dword v{PF}, v{t+2}, {WS}, s{S_PL} offen offset:128 sc1")
        rest_exec()
    def poll_check(name, mask):
        save_exec(f"{mask:#x}")
        a(f"v_cmp_ne_u32 vcc, s{S_TAGO}, v{PF}")
        a("s_nop 1")
        a("s_cmp_eq_u64 vcc, 0")
        a(f"s_cbranch_scc1 {name}_OK")
        a(f"v_lshlrev_b32 v{t+2}, 2, v{L}")
        spin_poll(a, name,
                  [f"v_cmp_ne_u32 vcc, s{S_TAGO}, v{PF}", "s_nop 1", "s_cmp_eq_u64 vcc, 0"],
                  f"buffer_load_dword v{PF}, v{t+2}, {WS}, s{S_PL} offen offset:128 sc1")
        rest_exec()
    a(f"s_lshr_b32 s{S_T1}, s{S_HP}, 3")
    a(f"s_lshl_b32 s{S_T1}, s{S_T1}, 3")
    a(f"s_lshl_b32 s{S_T2}, s{S_M}, 1")
    a(f"s_add_u32 s{S_T1}, s{S_T1}, s{S_T2}")
    a(f"s_lshl_b32 s{S_T0}, s{S_GRP}, 18")
    a(f"s_add_u32 s{S_T0}, s{S_T0}, {WS_O}")
    a(f"s_lshl_b32 s{S_T2}, s{S_T1}, 14")
    a(f"s_add_u32 s{S_PM}, s{S_T0}, s{S_T2}")
    a(f"s_lshl_b32 s{S_T0}, s{S_GRP}, 15")
    a(f"s_add_u32 s{S_T0}, s{S_T0}, {WS_OR}")
    a(f"s_lshl_b32 s{S_T2}, s{S_T1}, 6")
    a(f"s_add_u32 s{S_PR}, s{S_T0}, s{S_T2}")
    a(f"v_lshrrev_b32 v{VR}, 4, v{L}")
    a(f"v_lshlrev_b32 v{VR}, 12, v{VR}")
    a(f"v_and_b32 v{t+4}, 15, v{L}")
    a(f"v_lshl_add_u32 v{VR}, v{t+4}, 2, v{VR}")
    a(f"v_add_u32 v{VR+1}, 64, v{VR}")
    a(f"v_lshrrev_b32 v{t+1}, 4, v{L}")
    a(f"v_bfe_u32 v{t+2}, v{L}, 2, 2")
    a(f"v_and_b32 v{t+3}, 3, v{L}")
    a(f"v_lshrrev_b32 v{t+4}, 1, v{t+1}")
    a(f"v_lshlrev_b32 v{t+4}, 2, v{t+4}")
    a(f"v_lshl_add_u32 v{t+4}, v{t+1}, 3, v{t+4}")
    a(f"v_add_u32 v{t+4}, v{t+4}, v{t+2}")
    a(f"v_mul_u32_u24 v{t+4}, 144, v{t+4}")
    a(f"v_lshl_add_u32 v{AW}, v{t+3}, 3, v{t+4}")
    a(f"s_mul_i32 s{S_T0}, s{S_HEAD}, {9*5184}")
    a(f"v_add_u32 v{AW}, s{S_T0}, v{AW}")
    a(f"v_mul_u32_u24 v{t+4}, 72, v{t+1}")
    a(f"v_add3_u32 v{t+4}, v{t+4}, v{t+2}, 16")
    a(f"v_mul_u32_u24 v{t+4}, 144, v{t+4}")
    a(f"v_lshl_add_u32 v{AW2}, v{t+3}, 3, v{t+4}")
    a(f"v_lshlrev_b32 v{VO}, 4, v{L}")
    a(f"s_lshl_b32 s{S_T1}, s{S_T1}, 4")
    a(f"s_lshl_b32 s{S_T2}, s{S_S}, 8")
    a(f"s_add_u32 s{S_T1}, s{S_T1}, s{S_T2}")
    a(f"s_lshl_b32 s{S_T2}, s{S_HEAD}, 4")
    a(f"s_add_u32 s{S_T1}, s{S_T1}, s{S_T2}")
    a(f"s_mul_i32 s{S_T1}, s{S_T1}, 2304")
    a(f"s_mul_i32 s{S_T2}, s{S_B}, 1152")
    a(f"s_add_u32 s{S_T1}, s{S_T1}, s{S_T2}")
    a(f"s_and_b32 s{S_T2}, s{S_HP}, 7")
    a(f"s_mul_i32 s{S_T2}, s{S_T2}, 144")
    a(f"s_add_u32 s{S_T5}, s{S_T1}, s{S_T2}")
    a(f"v_and_b32 v{VOUT}, 15, v{L}")
    a(f"v_mul_u32_u24 v{VOUT}, 2304, v{VOUT}")
    a(f"v_lshrrev_b32 v{t+4}, 4, v{L}")
    a(f"v_lshl_add_u32 v{VOUT}, v{t+4}, 3, v{VOUT}")
    a(f"s_mul_i32 s{S_T0}, s{S_WID}, 5120")
    a(f"s_add_u32 s{S_T0}, s{S_T0}, {SCR}")
    a(f"v_add_u32 v18, s{S_T0}, v{VO}")
    a(f"s_xor_b32 s{S_T1}, s{S_WID}, 4")
    a(f"s_mul_i32 s{S_T1}, s{S_T1}, 5120")
    a(f"s_add_u32 s{S_T1}, s{S_T1}, {SCR}")
    a(f"v_add_u32 v19, s{S_T1}, v{VO}")
    OUT = f"s[{S_OUT}:{S_OUT+3}]"
    def wreads(kap, kh, WF):
        l = []
        for Tn in range(5):
            b = WF + 4*Tn
            if kap >= 16:
                o0 = (kap-16)*8*36*144 + Tn*32
                l.append(f"ds_read_b64_tr_b16 v[{b}:{b+1}], v{AW2} offset:{o0}")
                l.append(f"ds_read_b64_tr_b16 v[{b+2}:{b+3}], v{AW2} offset:{o0+36*144}")
            else:
                o0 = (kap - 9*kh)*5184 + Tn*32
                l.append(f"ds_read_b64_tr_b16 v[{b}:{b+1}], v{AW} offset:{o0}")
                l.append(f"ds_read_b64_tr_b16 v[{b+2}:{b+3}], v{AW} offset:{o0+576}")
        return l
    def loads(kh, slots):
        nl = []
        for jx in slots:
            kap = ORD[kh][jx]
            if kap >= 16:
                a(f"s_add_u32 s{S_T0}, s{S_PR}, {(kap-16)*16*1024}")
                for mt in range(2):
                    for i in range(4):
                        a(f"buffer_load_dword v{OF+36*mt+4*jx+i}, v{VR+mt}, {WS}, s{S_T0} offen offset:{i*1024} sc1")
                nl.append(8)
            else:
                a(f"s_add_u32 s{S_T0}, s{S_PM}, {kap*1024}")
                a(f"s_add_u32 s{S_T1}, s{S_PM}, {kap*1024+16384}")
                a(f"buffer_load_dwordx4 v[{OF+4*jx}:{OF+4*jx+3}], v{VO}, {WS}, s{S_T0} offen sc1")
                a(f"buffer_load_dwordx4 v[{OF+36+4*jx}:{OF+36+4*jx+3}], v{VO}, {WS}, s{S_T1} offen sc1")
                nl.append(2)
        return nl
    def mfm(kh, slots, nl, extra, last_next, novm=False):
        for c, jx in enumerate(slots):
            cur = WF0 if jx % 2 == 0 else WF1
            nxt = WF1 if jx % 2 == 0 else WF0
            a("s_waitcnt lgkmcnt(0)" if novm else f"s_waitcnt vmcnt({sum(nl[c+1:])+extra}) lgkmcnt(0)")
            rs = wreads(ORD[kh][jx+1], kh, nxt) if jx < 8 else []
            ri = 0
            for Tn in range(5):
                for mt in range(2):
                    d = AC + (mt*5+Tn)*4; o = OF + 36*mt + 4*jx
                    cc = "0" if jx == 0 else f"v[{d}:{d+3}]"
                    a(f"v_mfma_f32_16x16x32_bf16 v[{d}:{d+3}], v[{cur+4*Tn}:{cur+4*Tn+3}], v[{o}:{o+3}], {cc}")
                    if ri < len(rs): a(rs[ri]); ri += 1
    def add_out(q, base, Tn, pk):
        for r in range(4): a(f"v_add_f32 v{q+r}, v{q+r}, v{base+4*Tn+r}")
        a(f"v_cvt_pk_bf16_f32 v{pk}, v{q}, v{q+1}")
        a(f"v_cvt_pk_bf16_f32 v{pk+1}, v{q+2}, v{q+3}")
        if Tn == 4:
            a(f"s_mov_b64 s[{S_SAVE}:{S_SAVE+1}], exec")
            a(f"s_mov_b32 exec_hi, 0")
        omod = " nt" if 'ont' in exp else " sc1" if 'osc1' in exp else " sc0 sc1" if 'osc01' in exp else ""
        a(f"buffer_store_dwordx2 v[{pk}:{pk+1}], v{VOUT}, {OUT}, s{S_T5} offen offset:{Tn*32}{omod}")
        if Tn == 4: rest_exec()
    def nloads(kh, slots):
        return [8 if ORD[kh][jx] >= 16 else 2 for jx in slots]
    def validate(kh, slots, younger):
        nl = nloads(kh, slots); first = True
        for c, jx in enumerate(slots):
            a(f"s_waitcnt vmcnt({sum(nl[c+1:])+younger})")
            rr = [OF+4*jx+i for i in range(4)] + [OF+36+4*jx+i for i in range(4)]
            if first:
                a(f"v_max3_u32 v{t+3}, v{rr[0]}, v{rr[1]}, v{rr[2]}"); rr = rr[3:]; first = False
                a(f"v_max_u32 v{t+3}, v{t+3}, v{rr[0]}"); rr = rr[1:]
            for k in range(0, len(rr), 2):
                a(f"v_max3_u32 v{t+3}, v{t+3}, v{rr[k]}, v{rr[k+1]}")
        a(f"v_cmp_eq_u32 vcc, -1, v{t+3}")
        a("s_nop 1")
        a("s_cmp_eq_u64 vcc, 0")
    def probe_addr(kh, slots):
        mains = [jx for jx in slots if ORD[kh][jx] < 16]
        a(f"v_mov_b32 v{t+3}, {ORD[kh][mains[0]]*1024 + 16384 + 1020}")
        a(f"v_lshlrev_b32 v{PA}, 11, v{L}")
        a(f"v_add_u32 v{PA}, v{t+3}, v{PA}")
        return (1 << min(len(mains), 4)) - 1
    def probe_issue(mask):
        save_exec(f"{mask:#x}")
        a(f"buffer_load_dword v{PB}, v{PA}, {WS}, s{S_PM} offen sc1")
        rest_exec()
    def probe_loop(mask, name, first_issued):
        save_exec(f"{mask:#x}")
        a(f"s_mov_b32 s{S_CNT}, 0")
        if first_issued: a(f"s_branch {name}_PW")
        a.lab(name + "_P")
        a(f"buffer_load_dword v{PB}, v{PA}, {WS}, s{S_PM} offen sc1")
        a.lab(name + "_PW")
        a(f"s_add_u32 s{S_CNT}, s{S_CNT}, 1")
        a("s_waitcnt vmcnt(0)")
        a(f"v_cmp_eq_u32 vcc, -1, v{PB}")
        a("s_nop 1")
        a("s_cmp_eq_u64 vcc, 0")
        a(f"s_cbranch_scc1 {name}_PO")
        a(f"s_cmp_lt_u32 s{S_CNT}, 2000000")
        a(f"s_cbranch_scc1 {name}_P")
        a.lab(name + "_PO")
        rest_exec()
    def load_validate_loop(kh, slots, name):
        a(f"s_mov_b32 s{S_N}, 0")
        a.lab(name + "_L")
        loads(kh, slots)
        validate(kh, slots, 0)
        a(f"s_cbranch_scc1 {name}_OK")
        a(f"s_add_u32 s{S_N}, s{S_N}, 1")
        a(f"s_cmp_lt_u32 s{S_N}, 100000")
        a(f"s_cbranch_scc1 {name}_L")
        a.lab(name + "_OK")
    def path(kh):
        K = f"K{kh}"
        G, R = list(range(4)), list(range(4, 9))
        for rd in wreads(ORD[kh][0], kh, WF0): a(rd)
        ts(10)
        a(f"s_lshr_b32 s{S_T0}, 0x55AA, s{S_HP}")
        a(f"s_bitcmp1_b32 s{S_T0}, 0")
        a(f"s_cbranch_scc1 L_SG{K}_GO")
        mk = probe_addr(kh, G)
        probe_loop(mk, f"L_SG{K}", False)
        a.lab(f"L_SG{K}_GO")
        load_validate_loop(kh, G, f"L_SGV{K}")
        mk = probe_addr(kh, R)
        a(f"s_lshr_b32 s{S_T0}, 0x55AA, s{S_HP}")
        a(f"s_bitcmp1_b32 s{S_T0}, 0")
        a(f"s_cbranch_scc0 L_SR{K}_EARLY")
        loads(kh, R)
        mfm(kh, G, [0]*4, 0, None, novm=True)
        ts(9)
        lds_wait(a, f"L_WOB{K}", CNTOA, 8)
        validate(kh, R, 0)
        a(f"s_cbranch_scc1 L_SRV{K}_OK")
        probe_loop(mk, f"L_SS{K}", False)
        a(f"s_branch L_SR{K}_LV")
        a.lab(f"L_SR{K}_EARLY")
        probe_issue(mk)
        mfm(kh, G, [0]*4, 0, None, novm=True)
        ts(9)
        lds_wait(a, f"L_WOA{K}", CNTOA, 8)
        probe_loop(mk, f"L_SR{K}", True)
        a.lab(f"L_SR{K}_LV")
        load_validate_loop(kh, R, f"L_SRV{K}")
        mfm(kh, R, [0]*5, 0, None, novm=True)
        ts(11)
        send = AC + 20 if kh == 0 else AC
        keep = AC if kh == 0 else AC + 20
        a("s_nop 7")
        for Tn in range(5): a(f"ds_write_b128 v18, v[{send+4*Tn}:{send+4*Tn+3}] offset:{Tn*1024}")
        a("s_waitcnt lgkmcnt(0)")
        a("s_barrier")
        for Tn in range(5): a(f"ds_read_b128 v[{OF+4*Tn}:{OF+4*Tn+3}], v19 offset:{Tn*1024}")
        for Tn in range(5):
            a(f"s_waitcnt lgkmcnt({4-Tn})")
            add_out(OF+4*Tn, keep, Tn, OF+20+2*Tn)
    lds_inc(a, CNTOA, save_exec, rest_exec)
    a(f"s_cmp_eq_u32 s{S_HST}, 4")
    a("s_cbranch_scc0 L_P3C0")
    a("s_waitcnt vmcnt(2)")
    a(f"v_mov_b32 v{PF}, v{V_TG+1}")
    a("s_branch L_P3C1")
    a.lab("L_P3C0")
    poll_issue()
    a("s_waitcnt vmcnt(0)")
    a.lab("L_P3C1")
    poll_check("L_POLLC", 0xFFFF)
    if debug_stage == 2:
        a("s_waitcnt vmcnt(0)")
        a("s_branch L_FIN")
        return
    a(f"s_cmp_eq_u32 s{S_HEAD}, 0")
    a("s_cbranch_scc0 L_P3K1")
    path(0)
    a("s_branch L_FIN")
    a.lab("L_P3K1")
    path(1)
    a(f"s_cmp_lg_u32 s{S_HP}, 0")
    a("s_cbranch_scc1 L_FIN")
    a(f"s_cmp_lg_u32 s{S_WID}, 4")
    a("s_cbranch_scc1 L_FIN")
    a(f"v_mov_b32 v{t}, 0")
    a(f"v_mov_b32 v{t+1}, s{S_TAGO}")
    a(f"s_mov_b64 exec, 1")
    a(f"buffer_store_dword v{t+1}, v{t}, {WS}, s{S_OFS} offen sc1")

if __name__ == "__main__":
    import argparse
    p = argparse.ArgumentParser(); p.add_argument("--debug", type=int, default=0)
    p.add_argument("--timing", action="store_true"); p.add_argument("--exp", default=""); p.add_argument("-o", default="/dev/stdout")
    args = p.parse_args()
    open(args.o, "w").write(gen(args.debug, args.timing, args.exp))
```

```python
import sys, math, struct

NAME = "concat_heads__sliding_block__sliding_block__prompt"

STAGE   = 49152
WO_BASE = 0
KV_OWN  = 82944
KV_HALO = 119808
Q_BASE  = 119808
MISC    = 156672
TAGS_LDS = MISC + 2048
CNT2, CNT1, CNTQ, CNTOB, CNTOA = TAGS_LDS+12, TAGS_LDS+16, TAGS_LDS+20, TAGS_LDS+24, TAGS_LDS+28
LDS_TOTAL = 163840
TILE    = 4608
QTILE   = 2304
WS_KV   = 0
WS_O    = 256*36864
WS_OR   = WS_O + 16*262144
WS_FLAG = WS_OR + 16*32768
WS_OF   = WS_FLAG + 65536
TIMING_OFF = 24<<20
TAG_INC = 0x9E3779B1
NEG     = 0xFF61B1E6
QSCALE  = (18.0 ** -0.5) * math.log2(math.e)
def f32bits(x): return struct.unpack("<I", struct.pack("<f", x))[0]

class Asm:
    def __init__(self): self.l = []
    def __call__(self, s=""):
        for line in s.split("\n"):
            self.l.append("  " + line.strip())
    def lab(self, n): self.l.append(n + ":")
    def c(self, s): self.l.append("  ; " + s)
    def text(self): return "\n".join(self.l) + "\n"

S_X, S_W, S_WO, S_WS, S_OUT = 8, 12, 16, 20, 24
S_B, S_S, S_HP, S_WID = 28, 29, 30, 31
S_T0, S_T1, S_T2, S_T3, S_T4, S_T5 = 32, 33, 34, 35, 36, 37
S_I = 38
S_L = 39
S_TAGIN, S_TAGOUT, S_TAGO = 40, 41, 42
S_K, S_C, S_SB, S_XB, S_WB = 43, 44, 45, 46, 47
S_LX, S_LW = 48, 49
S_N = 50
S_U = 51
S_RET = 52
S_IDX, S_GRP, S_HEAD, S_M = 54, 55, 56, 57
S_SAVE = 58
S_CNT = 60
S_HOOK = 61
S_BAD = 62
S_RET2 = 64
S_MB = 66
S_HST = 67
S_H0, S_H1 = 68, 69
S_E = 98
S_SO, S_FI = 99, 100
S_OM, S_OR, S_OFS = 6, 7, 5

V_LANE = 1
T = 2
V_AX = 10
V_AW = 12
V_MASK = 20
V_SET0, V_SET1, V_ACC = 36, 80, 124
V_LDX, V_LDW = 36, 44
V_TG = 236
B_K, B_KR, B_V, MK_V = 240, 241, 242, 243
vEK, vEQ, vEV, vE6, vDr, vDt, vF, vC = 244, 245, 246, 247, 248, 249, 250, 252
V_TL = 254
QA_M, QA_R, QB_M, QB_R = 36, 40, 44, 48
OA, OB = 52, 68
VS, VE, VP = 84, 100, 116
VKF, VKR, VVA, VVB = 124, 128, 132, 136
A_K, A_KR, A_V, ST_V, ST_K = 10, 11, 12, 13, 14
VH = 140
V_WOV = 180
V_OA1, V_OA2 = 188, 189
V_PA = 184

def emit_masks_(a):
    t = T; L = V_LANE
    a(f"v_and_b32 v{t}, 31, v{L}")
    a(f"v_lshrrev_b32 v{t+1}, 5, v{L}")
    a(f"v_lshlrev_b32 v{t+1}, 2, v{t+1}")
    a(f"v_sub_u32 v{t}, v{t}, v{t+1}")
    a(f"v_mov_b32 v{t+1}, {NEG:#x}")
    for r in range(16):
        jj = (r & 3) + 8*(r >> 2)
        a(f"v_cmp_le_i32 vcc, {jj}, v{t}")
        a("s_nop 1")
        a(f"v_cndmask_b32_e64 v{V_MASK+r}, v{t+1}, 0, vcc")
def emit_p2_patterns_(a):
    t = T; L = V_LANE
    a(f"v_and_b32 v{t}, 31, v{L}")
    a(f"v_lshrrev_b32 v{t+1}, 5, v{L}")
    a(f"v_lshrrev_b32 v{t+2}, 2, v{t}")
    a(f"v_lshrrev_b32 v{t+3}, 3, v{t}")
    a(f"v_xor_b32 v{t+2}, v{t+2}, v{t+3}")
    a(f"v_xor_b32 v{t+2}, v{t+2}, v{t+1}")
    a(f"v_and_b32 v{t+2}, 1, v{t+2}")
    a(f"v_lshlrev_b32 v{t+2}, 4, v{t+2}")
    a(f"v_lshl_add_u32 v{t+2}, v{t}, 5, v{t+2}")
    a(f"s_lshl_b32 s{S_T0}, s{S_HEAD}, 10")
    a(f"v_add_u32 v{B_K}, s{S_T0}, v{t+2}")
    a(f"v_lshlrev_b32 v{B_KR}, 3, v{t}")
    a(f"v_add_u32 v{B_KR}, 2048, v{B_KR}")
    a(f"v_bfe_u32 v{t+2}, v{L}, 2, 2")
    a(f"v_lshl_add_u32 v{t+2}, v{t+1}, 2, v{t+2}")
    a(f"v_mul_u32_u24 v{t+2}, 72, v{t+2}")
    a(f"v_add_u32 v{t+2}, 2304, v{t+2}")
    a(f"v_and_b32 v{t+3}, 3, v{L}")
    a(f"v_lshlrev_b32 v{t+4}, 3, v{t+3}")
    a(f"s_mul_i32 s{S_T0}, s{S_HEAD}, 40")
    a(f"v_add3_u32 v{t+4}, v{t+4}, v{t+2}, s{S_T0}")
    a(f"v_add_u32 v{t+5}, 32, v{t+2}")
    a(f"v_bfe_u32 v{t+6}, v{L}, 4, 1")
    a(f"v_cmp_eq_u32 vcc, 1, v{t+6}")
    a(f"v_lshrrev_b32 v{t+7}, 1, v{t+3}")
    a(f"v_and_b32 v{t+7}, v{t+7}, v{t+6}")
    a(f"v_cndmask_b32 v{B_V}, v{t+4}, v{t+5}, vcc")
    a(f"v_cmp_eq_u32 vcc, 1, v{t+7}")
    a(f"v_mov_b32 v{t+5}, {MISC}")
    a(f"v_mov_b32 v{t+6}, -1")
    a(f"v_cndmask_b32 v{B_V}, v{B_V}, v{t+5}, vcc")
    a(f"v_cndmask_b32_e64 v{MK_V}, v{t+6}, 0, vcc")


def gen(debug_stage=0, timing=False, exp=''):
    a = Asm()
    t = T; L = V_LANE
    def ts(i, force=False):
        if timing and ('tsk' not in exp or force or i in (0, 8, 9, 10, 11)): a(f"{'s_memrealtime' if ('abs' in exp or 'hdbg' in exp) else 's_memtime'} s[{70+2*i}:{71+2*i}]")
    WS = f"s[{S_WS}:{S_WS+3}]"
    def save_exec(val):
        a(f"s_mov_b64 s[{S_SAVE}:{S_SAVE+1}], exec")
        a(f"s_mov_b64 exec, {val}")
    def rest_exec():
        a(f"s_mov_b64 exec, s[{S_SAVE}:{S_SAVE+1}]")

    a.l += [f"; Kernarg layout (72 bytes): A_x, A_wqkv, A_wo, B_x, B_wqkv, B_wo, out, debug, ws",
            f"; @launch grid=(256,1,1) block=(512,1,1) lds={LDS_TOTAL}"]
    a(f""".amdgcn_target "amdgcn-amd-amdhsa--gfx950"
.text
.globl {NAME}_kernel
.p2align 8
.type {NAME}_kernel,@function""")
    a.lab(f"{NAME}_kernel")
    a("s_cmp_ge_u32 s2, 256")
    a("s_cbranch_scc1 L_END")
    a(f"s_and_b32 s3, s2, 7")
    if 'xmap' in exp:
        a(f"s_bfe_u32 s{S_B}, s3, 0x10001")
    else:
        a(f"s_lshr_b32 s{S_B}, s3, 2")
    a(f"s_mul_i32 s{S_T0}, s{S_B}, 24")
    a(f"s_add_u32 s4, s0, s{S_T0}")
    a(f"s_addc_u32 s5, s1, 0")
    a(f"s_load_dwordx2 s[{S_X}:{S_X+1}], s[4:5], 0")
    a(f"s_load_dwordx2 s[{S_W}:{S_W+1}], s[4:5], 8")
    a(f"s_load_dwordx2 s[{S_WO}:{S_WO+1}], s[4:5], 16")
    a(f"s_load_dwordx2 s[{S_OUT}:{S_OUT+1}], s[0:1], 48")
    a(f"s_load_dwordx2 s[{S_WS}:{S_WS+1}], s[0:1], 64")
    if timing:
        for i in range(13): a(f"s_mov_b32 s{70+2*i}, 0")
    ts(0)
    a(f"s_lshr_b32 s{S_I}, s2, 3")
    if 'xmap' in exp:
        a(f"s_and_b32 s{S_T2}, s3, 1")
        a(f"s_lshl_b32 s{S_T2}, s{S_T2}, 2")
        a(f"s_and_b32 s{S_T3}, s{S_I}, 3")
        a(f"s_add_u32 s{S_S}, s{S_T2}, s{S_T3}")
        a(f"s_lshr_b32 s{S_T4}, s{S_I}, 2")
        a(f"s_cmp_lt_u32 s3, 4")
        a(f"s_mov_b32 s{S_T2}, 0xFDB96420")
        a(f"s_cselect_b32 s{S_T2}, 0xECA87531, s{S_T2}")
        a(f"s_lshl_b32 s{S_T0}, s{S_T4}, 2")
        a(f"s_lshr_b32 s{S_T2}, s{S_T2}, s{S_T0}")
        a(f"s_and_b32 s{S_HP}, s{S_T2}, 15")
    else:
        a(f"s_lshr_b32 s{S_T2}, s3, 1")
        a(f"s_and_b32 s{S_T2}, s{S_T2}, 1")
        a(f"s_lshl_b32 s{S_T2}, s{S_T2}, 2")
        a(f"s_and_b32 s{S_T3}, s{S_I}, 3")
        a(f"s_add_u32 s{S_S}, s{S_T2}, s{S_T3}")
        a(f"s_and_b32 s{S_T2}, s3, 1")
        a(f"s_lshl_b32 s{S_T2}, s{S_T2}, 3")
        a(f"s_lshr_b32 s{S_T4}, s{S_I}, 2")
        a(f"s_add_u32 s{S_HP}, s{S_T2}, s{S_T4}")
    a(f"s_lshl_b32 s{S_T3}, s{S_T3}, 1")
    a(f"s_add_u32 s{S_C}, s{S_T4}, s{S_T3}")
    a(f"s_cmp_ge_u32 s{S_C}, 9")
    a(f"s_cselect_b32 s{S_T3}, 9, 0")
    a(f"s_sub_u32 s{S_C}, s{S_C}, s{S_T3}")
    if 'norot' in exp: a(f"s_mov_b32 s{S_C}, 0")
    for key, mul in (('rot2', 2), ('rot3', 3)):
        if key in exp or (key == 'rot2' and 'rot' not in exp):
            a(f"s_lshr_b32 s{S_C}, s{S_T4}, 1")
            a(f"s_and_b32 s{S_T3}, s{S_I}, 3")
            a(f"s_add_u32 s{S_C}, s{S_C}, s{S_T3}")
            a(f"s_mul_i32 s{S_C}, s{S_C}, {mul}")
            for _ in range(2):
                a(f"s_cmp_ge_u32 s{S_C}, 9")
                a(f"s_cselect_b32 s{S_T3}, 9, 0")
                a(f"s_sub_u32 s{S_C}, s{S_C}, s{S_T3}")
    if 'rot4' in exp:
        a(f"s_lshr_b32 s{S_C}, s{S_T4}, 2")
        a(f"s_and_b32 s{S_T3}, s{S_I}, 3")
        a(f"s_lshr_b32 s{S_T3}, s{S_T3}, 1")
        a(f"s_add_u32 s{S_C}, s{S_C}, s{S_T3}")
        a(f"s_mul_i32 s{S_C}, s{S_C}, 3")
    a(f"s_lshl_b32 s{S_T0}, s{S_B}, 4")
    a(f"s_add_u32 s{S_T0}, s{S_T0}, s{S_HP}")
    a(f"s_lshl_b32 s{S_T0}, s{S_T0}, 3")
    a(f"s_add_u32 s{S_IDX}, s{S_T0}, s{S_S}")
    a(f"s_lshl_b32 s{S_T0}, s{S_B}, 3")
    a(f"s_add_u32 s{S_GRP}, s{S_T0}, s{S_S}")
    a(f"v_lshrrev_b32 v{t}, 6, v0")
    a(f"v_and_b32 v{L}, 63, v0")
    a(f"v_readfirstlane_b32 s{S_WID}, v{t}")
    for (r, n) in ((S_X, 2359296), (S_W, 1990656), (S_WO, 663552), (S_WS, 268435456), (S_OUT, 4718592)):
        a(f"s_mov_b32 s{r+2}, {n}")
        a(f"s_mov_b32 s{r+3}, 0x00020000")
    a(f"s_and_b32 s{S_M}, s{S_WID}, 3")
    a(f"s_lshr_b32 s{S_HEAD}, s{S_WID}, 2")
    a(f"s_sub_u32 s{S_MB}, 7, s{S_M}")
    a(f"s_lshl_b32 s{S_T0}, s{S_GRP}, 18")
    a(f"s_add_u32 s{S_T0}, s{S_T0}, {WS_O}")
    a(f"s_lshl_b32 s{S_T1}, s{S_HP}, 10")
    a(f"s_lshl_b32 s{S_T2}, s{S_HEAD}, 9")
    a(f"s_add_u32 s{S_T1}, s{S_T1}, s{S_T2}")
    a(f"s_add_u32 s{S_OM}, s{S_T1}, s{S_T0}")
    a(f"s_lshl_b32 s{S_T0}, s{S_GRP}, 15")
    a(f"s_add_u32 s{S_T0}, s{S_T0}, {WS_OR}")
    a(f"s_lshl_b32 s{S_T1}, s{S_HP}, 1")
    a(f"s_add_u32 s{S_T1}, s{S_T1}, s{S_HEAD}")
    a(f"s_lshl_b32 s{S_T1}, s{S_T1}, 10")
    a(f"s_add_u32 s{S_OR}, s{S_T1}, s{S_T0}")
    a(f"s_lshl_b32 s{S_OFS}, s{S_GRP}, 12")
    a(f"s_add_u32 s{S_OFS}, s{S_OFS}, {WS_OF}")
    a(f"s_cmp_lt_u32 s{S_WID}, 4")
    a("s_cbranch_scc1 L_COMPUTE")

    emit_masks = lambda: emit_masks_(a)
    emit_p2_patterns = lambda: emit_p2_patterns_(a)

    a(f"s_sub_u32 s{S_L}, s{S_WID}, 4")
    a(f"v_lshrrev_b32 v{t}, 3, v{L}")
    a(f"v_mul_u32_u24 v{t}, 1152, v{t}")
    a(f"v_lshrrev_b32 v{t+1}, 4, v{L}")
    a(f"v_and_b32 v{t+2}, 7, v{L}")
    a(f"v_xor_b32 v{t+3}, v{t+2}, v{t+1}")
    a(f"v_lshl_add_u32 v{V_AX}, v{t+3}, 4, v{t}")
    a(f"v_xor_b32 v{t+3}, 4, v{t+3}")
    a(f"v_lshl_add_u32 v{V_AX+1}, v{t+3}, 4, v{t}")
    a(f"s_mul_i32 s{S_T0}, s{S_HP}, 72")
    a(f"s_and_b32 s{S_T0}, s{S_T0}, 0xfffffff0")
    a(f"v_and_b32 v{t+2}, 15, v{L}")
    a(f"v_mul_u32_u24 v{t+4}, 3456, v{t+1}")
    a(f"v_add_u32 v{t+4}, s{S_T0}, v{t+4}")
    for var in range(2):
        a(f"v_lshlrev_b32 v{t+3}, 1, v{t+1}")
        a(f"v_sub_u32 v{t+3}, v{t+2}, v{t+3}")
        if var: a(f"v_subrev_u32 v{t+3}, 8, v{t+3}")
        a(f"v_and_b32 v{t+3}, 15, v{t+3}")
        a(f"v_min_u32 v{t+3}, 14, v{t+3}")
        a(f"v_mul_u32_u24 v{t+5}, 13, v{t+3}")
        a(f"v_lshrrev_b32 v{t+5}, 6, v{t+5}")
        a(f"v_mul_u32_u24 v{t+6}, 5, v{t+5}")
        a(f"v_sub_u32 v{t+6}, v{t+3}, v{t+6}")
        a(f"v_mul_u32_u24 v{t+5}, 1152, v{t+5}")
        a(f"v_lshl_add_u32 v{t+6}, v{t+6}, 4, v{t+5}")
        a(f"v_add_u32 v{V_AX+2+var}, v{t+4}, v{t+6}")
    for i in range(8):
        a(f"v_add_u32 v{V_LDX+i}, {i*9216-(i&3)*1024}, v{V_AX+(i&1)}")
    for i in range(4):
        a(f"v_add_u32 v{V_LDW+i}, {i*4*3456-i*1024}, v{V_AX+2+(i>>1)}")
    a(f"s_lshl_b32 s{S_T0}, s{S_S}, 8")
    a(f"s_lshl_b32 s{S_T1}, s{S_L}, 6")
    a(f"s_add_u32 s{S_T0}, s{S_T0}, s{S_T1}")
    a(f"s_mul_i32 s{S_XB}, s{S_T0}, 1152")
    a(f"s_mul_i32 s{S_WB}, s{S_L}, {16*3456}")
    a(f"s_lshl_b32 s{S_LX}, s{S_L}, 13")
    a(f"s_lshl_b32 s{S_LW}, s{S_L}, 12")
    a(f"s_add_u32 s{S_LW}, s{S_LW}, 32768")
    a(f"s_mov_b32 s{S_SB}, 0")
    def chunk_pre():
        a(f"s_lshl_b32 s{S_T0}, s{S_C}, 7")
        a(f"s_add_u32 s{S_T0}, s{S_T0}, s{S_XB}")
        a(f"s_mul_i32 s{S_T1}, s{S_C}, {64*3456}")
        a(f"s_add_u32 s{S_T1}, s{S_T1}, s{S_WB}")
        a(f"s_add_u32 s{S_T2}, s{S_SB}, s{S_LW}")
        a(f"s_add_u32 s{S_T3}, s{S_SB}, s{S_LX}")
        a(f"s_add_u32 s{S_C}, s{S_C}, 1")
        a(f"s_cmp_eq_u32 s{S_C}, 9")
        a(f"s_cselect_b32 s{S_C}, 0, s{S_C}")
        a(f"s_add_u32 s{S_SB}, s{S_SB}, {STAGE}")
        a(f"s_cmp_eq_u32 s{S_SB}, {3*STAGE}")
        a(f"s_cselect_b32 s{S_SB}, 0, s{S_SB}")
    def chunk_w():
        a(f"s_mov_b32 m0, s{S_T2}")
        a("s_nop 0")
        for i in range(4):
            a(f"buffer_load_dwordx4 v{V_LDW+i}, s[{S_W}:{S_W+3}], s{S_T1} offen offset:{i*1024} lds")
    def chunk_x(lo, hi):
        for i in range(lo, hi):
            if i == lo or i == 4:
                a(f"s_add_u32 m0, s{S_T3}, {(i&~3)*1024}")
                a("s_nop 0")
            a(f"buffer_load_dwordx4 v{V_LDX+i}, s[{S_X}:{S_X+3}], s{S_T0} offen offset:{(i&3)*1024} lds")
    chunk_pre()
    a("s_waitcnt lgkmcnt(0)")
    if 'xfirst' in exp:
        chunk_x(0, 8); chunk_w()
    else:
        chunk_w(); chunk_x(0, 8)
    chunk_pre()
    if 'c1p0' in exp:
        a("s_waitcnt vmcnt(0)")
        a("s_barrier")
        chunk_w(); chunk_x(0, 8)
    elif 'c1p4' in exp:
        chunk_w()
        a("s_waitcnt vmcnt(4)")
        a("s_barrier")
        chunk_x(0, 8)
    elif 'c1p8' in exp:
        chunk_w(); chunk_x(0, 4)
        a("s_waitcnt vmcnt(8)")
        a("s_barrier")
        chunk_x(4, 8)
    else:
        chunk_w(); chunk_x(0, 2)
        a("s_waitcnt vmcnt(6)")
        a("s_barrier")
        chunk_x(2, 8)
    chunk_pre()
    a(f"s_mov_b32 s{S_K}, 2")
    a.lab("L_LD")
    chunk_w(); chunk_x(0, 8)
    chunk_pre()
    a(f"s_add_u32 s{S_K}, s{S_K}, 1")
    a(f"s_cmp_lt_u32 s{S_K}, 9")
    a("s_waitcnt vmcnt(12)")
    a("s_barrier")
    a("s_cbranch_scc1 L_LD")
    a(f"s_lshl_b32 s{S_T0}, s{S_L}, 6")
    a(f"v_add_u32 v{t}, s{S_T0}, v{L}")
    a(f"v_mul_u32_u24 v{t+1}, 7282, v{t}")
    a(f"v_lshrrev_b32 v{t+1}, 16, v{t+1}")
    a(f"v_mul_u32_u24 v{t+2}, 9, v{t+1}")
    a(f"v_sub_u32 v{t+2}, v{t}, v{t+2}")
    a(f"v_mul_u32_u24 v{t+1}, 1152, v{t+1}")
    a(f"v_lshl_add_u32 v{t+1}, v{t+2}, 7, v{t+1}")
    a(f"s_mul_i32 s{S_T0}, s{S_I}, {18*1152}")
    a(f"v_cmp_gt_u32 vcc, 162, v{t}")
    a(f"v_cndmask_b32_e64 v{t+1}, 0, v{t+1}, vcc")
    a(f"buffer_load_dword v255, v{t+1}, s[{S_WO}:{S_WO+3}], s{S_T0} offen")
    emit_masks()
    emit_p2_patterns()
    a(f"v_mul_u32_u24 v{t+1}, 7282, v{L}")
    a(f"v_lshrrev_b32 v{t+1}, 16, v{t+1}")
    a(f"v_mul_u32_u24 v{t+2}, 9, v{t+1}")
    a(f"v_sub_u32 v{t+2}, v{L}, v{t+2}")
    a(f"v_mul_u32_u24 v{t+1}, 1152, v{t+1}")
    a(f"v_lshl_add_u32 v{t+1}, v{t+2}, 4, v{t+1}")
    a(f"s_and_b32 s{S_T0}, s{S_HP}, 7")
    a(f"s_mul_i32 s{S_T0}, s{S_T0}, 144")
    a(f"v_add_u32 v{V_WOV}, s{S_T0}, v{t+1}")
    for j in range(1, 4): a(f"v_add_u32 v{V_WOV+j}, {j*(8064-1008)}, v{V_WOV}")
    a(f"s_mul_i32 s{S_T0}, s{S_L}, {21*1008}")
    a(f"s_mul_i32 s{S_T1}, s{S_L}, {21*8064}")
    a("s_waitcnt vmcnt(1)")
    a("s_barrier")
    WO = f"s[{S_WO}:{S_WO+3}]"
    NW1 = 8 if 'wo8' not in exp else 4
    a(f"s_bitset0_b64 exec, 63")
    for j in range(21):
        if j == NW1:
            a(f"s_mov_b64 exec, -1")
            a("s_barrier")
            a(f"s_bitset0_b64 exec, 63")
        if j == 19:
            a(f"s_cmp_eq_u32 s{S_L}, 3")
            a("s_cbranch_scc0 L_WO_N")
            a(f"s_mov_b64 exec, 0x3ffff")
            a(f"buffer_load_dwordx4 v{V_WOV+(j&3)}, {WO}, s{S_T2} offen offset:{(j&3)*1008} lds")
            a("s_branch L_WO_DONE")
            a.lab("L_WO_N")
        if j % 4 == 0:
            a(f"s_add_u32 m0, s{S_T0}, {j*1008}")
            a(f"s_add_u32 s{S_T2}, s{S_T1}, {j*8064}")
        a(f"buffer_load_dwordx4 v{V_WOV+(j&3)}, {WO}, s{S_T2} offen offset:{(j&3)*1008} lds")
    a.lab("L_WO_DONE")
    a(f"s_mov_b64 exec, -1")
    for r in range(16):
        a(f"v_mov_b32 v{OA+r}, 0")
        a(f"v_mov_b32 v{OB+r}, 0")
    a(f"v_lshlrev_b32 v{V_PA}, 4, v{L}")
    a(f"s_lshl_b32 s{S_T0}, s{S_L}, 10")
    a(f"v_add_u32 v{V_PA}, s{S_T0}, v{V_PA}")
    a(f"v_add_u32 v{V_PA+1}, {KV_OWN}, v{V_PA}")
    a(f"s_mul_i32 s{S_T1}, s{S_IDX}, 36864")
    a("s_barrier")
    a(f"s_cmp_eq_u32 s{S_S}, 7")
    a("s_cbranch_scc1 L_NOPUB")
    order = [8, 7, 6, 5, 4, 3, 2, 1, 0]
    for c, i in enumerate(order):
        a(f"ds_read_b128 v[{VH+4*c}:{VH+4*c+3}], v{V_PA+1} offset:{i*4096}")
    for c, i in enumerate(order[:5]):
        a(f"s_waitcnt lgkmcnt({8-c})")
        a(f"s_add_u32 s{S_T2}, s{S_T1}, {i*4096}")
        a(f"buffer_store_dwordx4 v[{VH+4*c}:{VH+4*c+3}], v{V_PA}, {WS}, s{S_T2} offen sc1")
    a.lab("L_NOPUB")
    a("s_branch L_P2")

    a.lab("L_COMPUTE")
    if 'dry' in exp and 'nodry' not in exp:
        emit_p2_patterns()
        a(f"s_mov_b32 s{S_U}, 0")
        a(f"s_mov_b32 s{S_HOOK}, 100000")
        set_run(a, KV_OWN, None, [f"s_mov_b32 s{S_N}, 3"], TILE)
        a(f"s_bitcmp1_b32 s{S_WID}, 0")
        a("s_cbranch_scc1 L_DRYB")
        a(f"s_call_b64 s[{S_RET}:{S_RET+1}], L_RUNA")
        a("s_branch L_DRYE")
        a.lab("L_DRYB")
        a(f"s_call_b64 s[{S_RET}:{S_RET+1}], L_RUNB")
        a.lab("L_DRYE")
        a("s_waitcnt lgkmcnt(0)")
    a(f"v_and_b32 v{t}, 15, v{L}")
    a(f"v_lshrrev_b32 v{t+1}, 4, v{L}")
    a(f"v_lshrrev_b32 v{t+2}, 1, v{t}")
    a(f"s_lshl_b32 s{S_T0}, s{S_WID}, 6")
    a(f"v_add_u32 v{t+3}, s{S_T0}, v{t}")
    a(f"v_lshlrev_b32 v{t+3}, 7, v{t+3}")
    a(f"v_xor_b32 v{t+4}, v{t+1}, v{t+2}")
    a(f"v_lshlrev_b32 v{t+5}, 4, v{t+4}")
    a(f"v_add_u32 v{V_AX}, v{t+3}, v{t+5}")
    a(f"v_xor_b32 v{t+4}, 4, v{t+4}")
    a(f"v_lshlrev_b32 v{t+5}, 4, v{t+4}")
    a(f"v_add_u32 v{V_AX+1}, v{t+3}, v{t+5}")
    a(f"v_bfe_u32 v{t}, v{L}, 2, 2")
    a(f"v_and_b32 v{t+2}, 3, v{L}")
    a(f"v_and_b32 v{t+3}, 1, v{t+1}")
    a(f"v_lshl_add_u32 v{t+3}, v{t+3}, 2, v{t}")
    a(f"v_lshlrev_b32 v{t+3}, 5, v{t+3}")
    a(f"v_lshl_add_u32 v{t+4}, v{t+1}, 3, v{t}")
    a(f"v_lshlrev_b32 v{t+4}, 8, v{t+4}")
    a(f"v_add_u32 v{t+4}, 32768, v{t+4}")
    a(f"v_lshlrev_b32 v{t+5}, 3, v{t+2}")
    a(f"s_and_b32 s{S_T1}, s{S_HP}, 1")
    a(f"s_lshl_b32 s{S_T1}, s{S_T1}, 3")
    a(f"v_add3_u32 v{t+5}, v{t+5}, v{t+3}, s{S_T1}")
    for Tn in range(6):
        off = 80*(Tn >> 1) + (40 if Tn & 1 else 0)
        a(f"v_add_u32 v{t+6}, {off}, v{t+5}")
        a(f"v_and_b32 v{t+6}, 255, v{t+6}")
        a(f"v_add_u32 v{V_AW+Tn}, v{t+4}, v{t+6}")
    a(f"v_min_u32 v{t+6}, 2, v{t+2}")
    a(f"v_mul_u32_u24 v{t+6}, 80, v{t+6}")
    a(f"v_add3_u32 v{t+6}, v{t+6}, v{t+3}, s{S_T1}")
    a(f"v_add_u32 v{t+6}, 32, v{t+6}")
    a(f"v_and_b32 v{t+6}, 255, v{t+6}")
    a(f"v_add_u32 v{V_AW+6}, v{t+4}, v{t+6}")
    a(f"v_and_b32 v{t}, 15, v{L}")
    a(f"v_lshrrev_b32 v{t+1}, 4, v{L}")
    a(f"v_and_b32 v{t+2}, 1, v{t+1}")
    a(f"v_lshl_add_u32 v{t+2}, v{t+2}, 4, v{t}")
    a(f"v_lshrrev_b32 v{t+3}, 2, v{t}")
    a(f"v_lshrrev_b32 v{t+4}, 3, v{t}")
    a(f"v_xor_b32 v{t+3}, v{t+3}, v{t+4}")
    a(f"v_lshrrev_b32 v{t+4}, 1, v{t+1}")
    a(f"v_xor_b32 v{t+3}, v{t+3}, v{t+4}")
    a(f"v_and_b32 v{t+3}, 1, v{t+3}")
    a(f"v_lshlrev_b32 v{t+3}, 4, v{t+3}")
    a(f"v_lshl_add_u32 v{t+3}, v{t+2}, 5, v{t+3}")
    a(f"s_mul_i32 s{S_T0}, s{S_WID}, {2*TILE}")
    a(f"s_add_u32 s{S_T0}, s{S_T0}, {KV_OWN}")
    a(f"s_mul_i32 s{S_T1}, s{S_WID}, {2*QTILE}")
    a(f"s_add_u32 s{S_T1}, s{S_T1}, {Q_BASE}")
    a(f"v_add_u32 v{vEK}, s{S_T0}, v{t+3}")
    a(f"v_add_u32 v{vEQ}, s{S_T1}, v{t+3}")
    a(f"v_mul_u32_u24 v{t+4}, 72, v{t}")
    a(f"v_lshl_add_u32 v{t+5}, v{t+1}, 3, v{t+4}")
    a(f"v_add_u32 v{t+5}, 2304, v{t+5}")
    a(f"v_add_u32 v{vEV}, s{S_T0}, v{t+5}")
    a(f"v_lshlrev_b32 v{t+5}, 3, v{t}")
    a(f"v_add_u32 v{t+5}, 2048, v{t+5}")
    a(f"v_add_u32 v{t+6}, s{S_T1}, v{t+5}")
    a(f"v_add_u32 v{t+7}, s{S_T0}, v{t+5}")
    a(f"v_add_u32 v{t+4}, {2304+32}, v{t+4}")
    a(f"v_add_u32 v{t+4}, s{S_T0}, v{t+4}")
    a(f"v_mov_b32 v{vDr}, 128")
    a(f"v_mov_b32 v{vDt}, {TILE}")
    a(f"v_mov_b32 v{vF}, 1.0")
    a(f"v_mov_b32 v{vE6}, v{t+7}")
    a(f"v_cmp_eq_u32 vcc, 0, v{t+1}")
    a(f"v_mov_b32 v{t+5}, {QTILE}")
    a(f"v_mov_b32 v{vC}, {f32bits(QSCALE):#x}")
    a(f"v_cndmask_b32 v{vE6}, v{vE6}, v{t+6}, vcc")
    a(f"v_cndmask_b32 v{vDt}, v{vDt}, v{t+5}, vcc")
    a(f"v_cndmask_b32 v{vF}, v{vF}, v{vC}, vcc")
    a(f"v_cmp_eq_u32 vcc, 2, v{t+1}")
    a(f"v_mov_b32 v{t+5}, 1152")
    a(f"v_mov_b32 v{vC+1}, v{vC}")
    a(f"v_cndmask_b32 v{vE6}, v{vE6}, v{t+4}, vcc")
    a(f"v_cndmask_b32 v{vDr}, v{vDr}, v{t+5}, vcc")
    a(f"v_mov_b32 v{vF+1}, v{vF}")
    a("s_waitcnt lgkmcnt(0)")
    if 'nocp' not in exp:
        a(f"s_cmp_lg_u32 s{S_WID}, 3")
        a("s_cbranch_scc1 L_NOCP")
        a(f"s_getpc_b64 s[{S_RET}:{S_RET+1}]")
        a.lab("L_PCREF")
        a(f"s_sub_u32 s{S_RET}, s{S_RET}, L_PCREF-{NAME}_kernel")
        a(f"s_subb_u32 s{S_RET+1}, s{S_RET+1}, 0")
        a(f"s_mul_i32 s{S_T0}, s{S_I}, {5*128}")
        a(f"v_lshlrev_b32 v{t}, 7, v{L}")
        a(f"v_add_u32 v{t}, s{S_T0}, v{t}")
        a(f"s_mov_b32 s{S_T1}, L_END-{NAME}_kernel")
        a(f"v_cmp_gt_u32 vcc, s{S_T1}, v{t}")
        a(f"s_and_b64 vcc, vcc, 31")
        a(f"s_and_saveexec_b64 s[{S_SAVE}:{S_SAVE+1}], vcc")
        a("s_cbranch_execz L_NOCP2")
        a(f"global_load_dword v{V_TL}, v{t}, s[{S_RET}:{S_RET+1}]")
        a.lab("L_NOCP2")
        rest_exec()
        a.lab("L_NOCP")
    a(f"s_cmp_lg_u32 s{S_WID}, 0")
    a("s_cbranch_scc1 L_NOG0")
    a(f"s_lshl_b32 s{S_T0}, s{S_IDX}, 8")
    a(f"s_add_u32 s{S_T0}, s{S_T0}, {WS_FLAG}")
    a(f"s_lshl_b32 s{S_T1}, s{S_GRP}, 12")
    a(f"s_add_u32 s{S_T1}, s{S_T1}, {WS_OF}")
    a(f"v_mov_b32 v{t}, 0")
    a(f"buffer_load_dword v{V_TG}, v{t}, {WS}, s{S_T0} offen sc1")
    a(f"s_sub_u32 s{S_T0}, s{S_T0}, 256")
    a(f"s_max_u32 s{S_T0}, s{S_T0}, {WS_FLAG}")
    a(f"buffer_load_dword v{V_TG+1}, v{t}, {WS}, s{S_T0} offen sc1")
    a(f"buffer_load_dword v{V_TG+2}, v{t}, {WS}, s{S_T1} offen sc1")
    a.lab("L_NOG0")
    for i in range(112):
        a(f"v_mov_b32 v{V_ACC+i}, 0")
    emit_masks()
    emit_p2_patterns()
    a(f"v_mov_b32 v{t+2}, 0x3f803f80")
    a(f"v_mov_b32 v{t+3}, 0x3f803f80")
    a(f"v_mul_u32_u24 v{t+4}, 576, v{L}")
    a(f"v_add_u32 v{t+4}, {MISC}, v{t+4}")
    save_exec(15)
    a(f"ds_write_b64 v{t+4}, v[{t+2}:{t+3}]")
    rest_exec()
    a(f"s_cmp_lg_u32 s{S_WID}, 0")
    a("s_cbranch_scc1 L_NOG1")
    a("s_waitcnt vmcnt(0)")
    for i in range(3): a(f"v_add_u32 v{V_TG+i}, {TAG_INC:#x}, v{V_TG+i}")
    a(f"v_mov_b32 v{V_TG+3}, 0")
    a(f"v_mov_b32 v{t+4}, {TAGS_LDS}")
    save_exec(1)
    a(f"ds_write_b128 v{t+4}, v[{V_TG}:{V_TG+3}]")
    for i in range(4): a(f"v_mov_b32 v{V_TG+i}, 0")
    a(f"ds_write_b128 v{t+4}, v[{V_TG}:{V_TG+3}] offset:16")
    rest_exec()
    a.lab("L_NOG1")
    a("s_waitcnt lgkmcnt(0)")
    a("s_barrier")
    if "tsh" not in exp and "tsj" not in exp: ts(1)
    def reads(setb, ks):
        xs = [f"ds_read_b128 v[{setb+4*mt}:{setb+4*mt+3}], v{V_AX+ks} offset:{mt*2048}" for mt in range(4)]
        ws = []
        for Tn in range(7):
            b = setb + 16 + 4*Tn
            ws.append(f"ds_read_b64_tr_b16 v[{b}:{b+1}], v{V_AW+Tn} offset:{ks*8192}")
            ws.append(f"ds_read_b64_tr_b16 v[{b+2}:{b+3}], v{V_AW+Tn} offset:{ks*8192+1024}")
        return [xs[0], ws[0], ws[1], xs[1], ws[2], ws[3], xs[2], ws[4], ws[5], xs[3]] + ws[6:]
    def mfmas(setb):
        m = []
        for Tn in range(7):
            for mt in range(4):
                d = V_ACC + (mt*7+Tn)*4
                m.append(f"v_mfma_f32_16x16x32_bf16 v[{d}:{d+3}], v[{setb+16+4*Tn}:{setb+16+4*Tn+3}], v[{setb+4*mt}:{setb+4*mt+3}], v[{d}:{d+3}]")
        return m
    def interleave(ms, extra, per=1):
        ri = 0
        for i, m in enumerate(ms):
            a(m)
            for _ in range(per):
                if ri < len(extra): a(extra[ri]); ri += 1
        while ri < len(extra):
            a(extra[ri]); ri += 1
    for i in range(4): a(f"v_mov_b32 v{V_TG+i}, -1")
    a(f"v_lshlrev_b32 v{V_TL+1}, 4, v{L}")
    a(f"s_lshl_b32 s{S_XB}, s{S_GRP}, 18")
    a(f"s_add_u32 s{S_XB}, s{S_XB}, {WS_O}")
    a(f"s_lshl_b32 s{S_T0}, s{S_WID}, 16")
    a(f"s_add_u32 s{S_XB}, s{S_XB}, s{S_T0}")
    a(f"s_lshl_b32 s{S_T0}, s{S_HP}, 10")
    a(f"s_add_u32 s{S_XB}, s{S_XB}, s{S_T0}")
    a(f"s_lshl_b32 s{S_WB}, s{S_GRP}, 15")
    a(f"s_add_u32 s{S_WB}, s{S_WB}, {WS_OR}")
    a(f"s_lshl_b32 s{S_T0}, s{S_HP}, 1")
    a(f"s_and_b32 s{S_T1}, s{S_WID}, 1")
    a(f"s_add_u32 s{S_T0}, s{S_T0}, s{S_T1}")
    a(f"s_lshl_b32 s{S_T0}, s{S_T0}, 10")
    a(f"s_add_u32 s{S_WB}, s{S_WB}, s{S_T0}")
    for rd in reads(V_SET0, 0): a(rd)
    a(f"s_mov_b32 s{S_K}, 0")
    a(f"s_mov_b32 s{S_SB}, 0")
    if 'tb' in exp: a(f"v_mov_b32 v{V_TL}, 0")
    a.lab("L_GEMM")
    a(f"s_cmp_lt_u32 s{S_K}, 7")
    a("s_cbranch_scc1 L_GEMM_NC")
    a(f"buffer_store_dwordx4 v[{V_TG}:{V_TG+3}], v{V_TL+1}, {WS}, s{S_XB} offen sc1")
    a(f"s_add_u32 s{S_XB}, s{S_XB}, 16384")
    a(f"buffer_store_dwordx4 v[{V_TG}:{V_TG+3}], v{V_TL+1}, {WS}, s{S_XB} offen sc1")
    a(f"s_add_u32 s{S_XB}, s{S_XB}, 16384")
    a(f"s_cmp_eq_u32 s{S_K}, 8")
    a("s_cbranch_scc1 L_GEMM_NC")
    a(f"buffer_store_dwordx4 v[{V_TG}:{V_TG+3}], v{V_TL+1}, {WS}, s{S_WB} offen sc1")
    a.lab("L_GEMM_NC")
    a("s_waitcnt lgkmcnt(0)")
    if 'tb' in exp:
        a(f"s_sub_u32 s92, s92, s70")
        a(f"s_mov_b32 m0, s{S_K}")
        a("s_nop 4")
        a(f"v_writelane_b32 v{V_TL}, s92, m0")
    sal = [f"s_add_u32 s{S_SB}, s{S_SB}, 1", f"s_cmp_eq_u32 s{S_SB}, 3", f"s_mov_b32 s{S_T0}, {STAGE}",
           f"s_cselect_b32 s{S_T0}, {(-2*STAGE) & 0xffffffff}, s{S_T0}", f"s_cselect_b32 s{S_SB}, 0, s{S_SB}"]
    interleave(mfmas(V_SET0), reads(V_SET1, 1) + sal)
    a("s_waitcnt lgkmcnt(0)")
    a("s_barrier")
    if 'tb' in exp: a("s_memtime s[92:93]")
    rd = reads(V_SET0, 0)
    adds = [f"v_add_u32 v{V_AX+i}, s{S_T0}, v{V_AX+i}" for i in range(9)]
    ex = [adds[0], adds[2], rd[0], rd[1], rd[2], adds[3], rd[3], rd[4], rd[5], adds[4], rd[6], rd[7], rd[8], rd[9],
          adds[5], rd[10], rd[11], adds[6], rd[12], rd[13], adds[7], rd[14], rd[15], adds[8], rd[16], rd[17], adds[1],
          f"s_add_u32 s{S_K}, s{S_K}, 1", f"s_cmp_lt_u32 s{S_K}, 9"]
    ms = mfmas(V_SET1)
    ri = 0
    for i, m in enumerate(ms):
        a(m)
        n = 2 if i < 6 else 1
        for _ in range(n):
            if ri < len(ex): a(ex[ri]); ri += 1
    assert ri == len(ex)
    a("s_cbranch_scc1 L_GEMM")
    if "tsh" not in exp and "tsj" not in exp: ts(2)
    a.c("phase-1 epilogue")
    a("s_waitcnt lgkmcnt(0)")
    acc = lambda mt, Tn: V_ACC + (mt*7+Tn)*4
    e = [V_SET0]
    def qk_tile(Tn, base_reg, pstride, hoff):
        for p in range(2):
            R = e[0]; e[0] += 4
            da, db = acc(2*p, Tn), acc(2*p+1, Tn)
            a(f"v_cvt_pk_bf16_f32 v{R}, v{da}, v{da+1}")
            a(f"v_cvt_pk_bf16_f32 v{R+2}, v{db}, v{db+1}")
            a(f"v_cvt_pk_bf16_f32 v{R+1}, v{da+2}, v{da+3}")
            a(f"v_cvt_pk_bf16_f32 v{R+3}, v{db+2}, v{db+3}")
            a("s_nop 0")
            a(f"v_permlane16_swap_b32 v{R}, v{R+2}")
            a(f"v_permlane16_swap_b32 v{R+1}, v{R+3}")
            a(f"ds_write_b128 v{base_reg}, v[{R}:{R+3}] offset:{p*pstride+hoff}")
    a("s_nop 3")
    qk_tile(2, vEK, TILE, 0)
    qk_tile(3, vEK, TILE, 1024)
    for Tn in (4, 5):
        for mt in range(4):
            R = e[0]; e[0] += 2
            d = acc(mt, Tn)
            a(f"v_cvt_pk_bf16_f32 v{R}, v{d}, v{d+1}")
            a(f"v_cvt_pk_bf16_f32 v{R+1}, v{d+2}, v{d+3}")
            a(f"ds_write_b64 v{vEV}, v[{R}:{R+1}] offset:{(mt>>1)*TILE + (mt&1)*1152 + (40 if Tn==5 else 0)}")
    R6 = e[0]; e[0] += 8
    for mt in range(4):
        d = acc(mt, 6)
        a(f"v_pk_mul_f32 v[{d}:{d+1}], v[{d}:{d+1}], v[{vF}:{vF+1}]")
        a(f"v_pk_mul_f32 v[{d+2}:{d+3}], v[{d+2}:{d+3}], v[{vF}:{vF+1}]")
    for mt in range(4):
        d = acc(mt, 6)
        a(f"v_cvt_pk_bf16_f32 v{R6+2*mt}, v{d}, v{d+1}")
        a(f"v_cvt_pk_bf16_f32 v{R6+2*mt+1}, v{d+2}, v{d+3}")
    a(f"v_add_u32 v{t}, v{vE6}, v{vDr}")
    a(f"v_add_u32 v{t+1}, v{vE6}, v{vDt}")
    a(f"v_add_u32 v{t+2}, v{t+1}, v{vDr}")
    a(f"s_mov_b64 s[{S_SAVE}:{S_SAVE+1}], exec")
    a(f"s_mov_b32 exec_hi, 0x0000ffff")
    a(f"ds_write_b64 v{vE6}, v[{R6}:{R6+1}]")
    a(f"ds_write_b64 v{t}, v[{R6+2}:{R6+3}]")
    a(f"ds_write_b64 v{t+1}, v[{R6+4}:{R6+5}]")
    a(f"ds_write_b64 v{t+2}, v[{R6+6}:{R6+7}]")
    rest_exec()
    a("s_waitcnt lgkmcnt(0)")
    a("s_barrier")
    for mt in range(4):
        for Tn in (0, 1):
            d = acc(mt, Tn)
            a(f"v_pk_mul_f32 v[{d}:{d+1}], v[{d}:{d+1}], v[{vC}:{vC+1}]")
            a(f"v_pk_mul_f32 v[{d+2}:{d+3}], v[{d+2}:{d+3}], v[{vC}:{vC+1}]")
    e[0] = 84
    qk_tile(0, vEQ, QTILE, 0)
    qk_tile(1, vEQ, QTILE, 1024)
    for r in range(16):
        a(f"v_mov_b32 v{OA+r}, 0")
        a(f"v_mov_b32 v{OB+r}, 0")

    a.lab("L_P2")
    a(f"v_mov_b32 v{t}, {TAGS_LDS}")
    a(f"ds_read_b128 v[{V_TG}:{V_TG+3}], v{t}")
    a("s_waitcnt lgkmcnt(0)")
    a("s_barrier")
    ts(3)
    if debug_stage == 1:
        a(f"s_lshl_b32 s{S_T0}, s{S_IDX}, 16")
        a(f"v_lshlrev_b32 v{t}, 4, v0")
        for i in range(7):
            a(f"v_add_u32 v{t+1}, {KV_OWN + i*8192}, v{t}")
            a(f"ds_read_b128 v[40:43], v{t+1}")
            a("s_waitcnt lgkmcnt(0)")
            a(f"v_add_u32 v{t+2}, {i*8192}, v{t}")
            a(f"buffer_store_dwordx4 v[40:43], v{t+2}, {WS}, s{S_T0} offen")
            a("s_waitcnt vmcnt(0)")
        a("s_branch L_FIN")
    if debug_stage == 9:
        a("s_branch L_FIN")
    if debug_stage not in (1, 9):
        phase2(a, debug_stage, ts, exp, save_exec, rest_exec)
        phase3(a, debug_stage, ts, exp, save_exec, rest_exec)
    a.lab("L_FIN")
    if 'hdbg' in exp:
        a("s_waitcnt vmcnt(0) lgkmcnt(0)")
        a("s_memrealtime s[94:95]")
        a(f"s_load_dwordx2 s[{S_X}:{S_X+1}], s[0:1], 56")
        a("s_waitcnt lgkmcnt(0)")
        a(f"s_cmp_lg_u32 s{S_WID}, 4")
        a("s_cbranch_scc1 L_END")
        a(f"s_mov_b32 s{S_X+2}, 256")
        a(f"s_mov_b32 s{S_X+3}, 0x00020000")
        a("s_mov_b64 exec, 1")
        a("v_mov_b32 v2, 0")
        a("s_not_b32 s33, s70")
        a("v_mov_b32 v3, s33")
        a(f"buffer_atomic_umax v3, v2, s[{S_X}:{S_X+3}], 0 offen offset:0")
        a("v_mov_b32 v3, s70")
        a(f"buffer_atomic_umax v3, v2, s[{S_X}:{S_X+3}], 0 offen offset:4")
        for k, i in enumerate((3, 4, 5, 7, 8, 10, 9, 11, 12)):
            a(f"v_mov_b32 v{4+k}, s{70+2*i}")
            a(f"buffer_atomic_umax v{4+k}, v2, s[{S_X}:{S_X+3}], 0 offen offset:{8+4*k}")
        a("s_waitcnt vmcnt(0)")
        a("s_branch L_END")
    if timing:
        a("s_waitcnt vmcnt(0) lgkmcnt(0)")
        a(f"{'s_memrealtime' if ('abs' in exp or 'hdbg' in exp) else 's_memtime'} s[94:95]")
        a("s_waitcnt lgkmcnt(0)")
        a(f"s_lshl_b32 s{S_T0}, s2, 3")
        a(f"s_add_u32 s{S_T0}, s{S_T0}, s{S_WID}")
        a(f"s_lshl_b32 s{S_T0}, s{S_T0}, 6")
        a(f"s_add_u32 s{S_T0}, s{S_T0}, {TIMING_OFF}")
        for i in range(13):
            a(f"s_sub_u32 s{S_T1}, s{70+2*i}, s70" if (i and 'abs' not in exp) else f"s_mov_b32 s{S_T1}, s{70+2*i}")
            a(f"s_cmp_eq_u32 s{70+2*i}, 0")
            a(f"s_cselect_b32 s{S_T1}, 0, s{S_T1}")
            a(f"v_mov_b32 v{40+i}, s{S_T1}")
        if 'tb' in exp:
            a(f"v_lshlrev_b32 v2, 2, v{V_LANE}")
            a(f"s_add_u32 s{S_T1}, s{S_T0}, {1<<20}")
            a(f"s_mov_b64 exec, 0xffff")
            a(f"buffer_store_dword v{V_TL}, v2, {WS}, s{S_T1} offen")
        a(f"v_mov_b32 v2, 0")
        a(f"s_mov_b64 exec, 1")
        for i in range(3):
            a(f"buffer_store_dwordx4 v[{40+4*i}:{43+4*i}], v2, {WS}, s{S_T0} offen offset:{16*i}")
        a(f"buffer_store_dword v52, v2, {WS}, s{S_T0} offen offset:48")
        a("s_waitcnt vmcnt(0)")
    a.lab("L_END")
    a("s_endpgm")
    a(f""".section .rodata,"a"
.p2align 6
.amdhsa_kernel {NAME}_kernel
  .amdhsa_next_free_vgpr 256
  .amdhsa_next_free_sgpr 102
  .amdhsa_accum_offset 256
  .amdhsa_group_segment_fixed_size 0
  .amdhsa_kernarg_size 72
  .amdhsa_user_sgpr_count 2
  .amdhsa_user_sgpr_kernarg_segment_ptr 1
  .amdhsa_system_sgpr_workgroup_id_x 1
.end_amdhsa_kernel""")
    return a.text()

WS = f"s[{S_WS}:{S_WS+3}]"

def spin_poll(a, name, check_lines, load_line, limit=2000000, first_done=False):
    a(f"s_mov_b32 s{S_CNT}, 0")
    if first_done: a(f"s_branch {name}_W")
    a.lab(name)
    a(load_line)
    a.lab(name + "_W")
    a(f"s_add_u32 s{S_CNT}, s{S_CNT}, 1")
    a("s_waitcnt vmcnt(0)")
    for l in check_lines: a(l)
    a(f"s_cbranch_scc1 {name}_OK")
    a(f"s_cmp_lt_u32 s{S_CNT}, {limit}")
    a(f"s_cbranch_scc1 {name}")
    a.lab(name + "_OK")

def lds_inc(a, addr, save_exec, rest_exec, rtn=None):
    t = T
    a(f"v_mov_b32 v{t}, {addr}")
    a(f"v_mov_b32 v{t+1}, 1")
    save_exec(1)
    if rtn is None: a(f"ds_add_u32 v{t}, v{t+1}")
    else: a(f"ds_add_rtn_u32 v{rtn}, v{t}, v{t+1}")
    rest_exec()

def lds_wait(a, name, addr, val):
    t = T
    a(f"v_mov_b32 v{t}, {addr}")
    a(f"s_mov_b32 s{S_CNT}, 0")
    a.lab(name)
    a(f"ds_read_b32 v{t+1}, v{t}")
    a(f"s_add_u32 s{S_CNT}, s{S_CNT}, 1")
    a("s_waitcnt lgkmcnt(0)")
    a(f"v_readfirstlane_b32 s{S_T0}, v{t+1}")
    a(f"s_cmp_ge_u32 s{S_T0}, {val}")
    a(f"s_cbranch_scc1 {name}_OK")
    a(f"s_cmp_lt_u32 s{S_CNT}, 20000000")
    a(f"s_cbranch_scc1 {name}")
    a.lab(name + "_OK")

def hook_point(a, tag):
    a(f"s_add_u32 s{S_U}, s{S_U}, 1")
    a(f"s_cmp_lg_u32 s{S_U}, s{S_HOOK}")
    a(f"s_cbranch_scc1 {tag}")
    a(f"s_call_b64 s[{S_RET2}:{S_RET2+1}], L_HOOK")
    a.lab(tag)

def run_code(a, name, QM, QR, O, exp):
    cnt = [0]
    def qk1(creg):
        c = "0" if creg is None else f"v[{creg}:{creg+15}]"
        a(f"v_mfma_f32_32x32x16_bf16 v[{VS}:{VS+15}], v[{VKF}:{VKF+3}], v[{QM}:{QM+3}], {c}")
    def qk2():
        a(f"v_mfma_f32_32x32x16_bf16 v[{VS}:{VS+15}], v[{VKR}:{VKR+3}], v[{QR}:{QR+3}], v[{VS}:{VS+15}]")
    def pv(V, P):
        a(f"v_mfma_f32_32x32x16_bf16 v[{O}:{O+15}], v[{V}:{V+3}], v[{P}:{P+3}], v[{O}:{O+15}]")
    def kread():
        a(f"ds_read_b128 v[{VKF}:{VKF+3}], v{A_K}")
        a(f"ds_read_b64 v[{VKR}:{VKR+1}], v{A_KR}")
    def kstep():
        a(f"v_add_u32 v{A_K}, v{ST_K}, v{A_K}")
        a(f"v_add_u32 v{A_KR}, v{ST_K}, v{A_KR}")
    def vread(V, off):
        a(f"ds_read_b64_tr_b16 v[{V}:{V+1}], v{A_V} offset:{off}")
        a(f"ds_read_b64_tr_b16 v[{V+2}:{V+3}], v{A_V} offset:{off+576}")
    def cvt(j): a(f"v_cvt_pk_bf16_f32 v{VP+j}, v{VE+2*j}, v{VE+2*j+1}")
    def ex(r): a(f"v_exp_f32 v{VE+r}, v{VS+r}")
    def unit(D):
        if 'pf' in exp: a("s_setprio 1" if 'pfi' not in exp else "s_setprio 0")
        for r in range(8): ex(r)
        for j in range(4): cvt(j)
        ex(8); ex(9)
        a("s_waitcnt lgkmcnt(0)")
        pv(VVA, VP)
        for r in range(10, 16): ex(r)
        if 'pf' in exp: a("s_setprio 0" if 'pfi' not in exp else "s_setprio 1")
        if D:
            qk1(V_MASK if D == "mask" else None)
            for j in range(4, 8): cvt(j)
            vread(VVA, 0)
            qk2()
            kstep()
            kread()
            pv(VVB, VP+4)
            vread(VVB, 1152)
            a(f"v_add_u32 v{A_V}, v{ST_V}, v{A_V}")
        else:
            a("s_nop 0")
            for j in range(4, 8): cvt(j)
            a("s_nop 1")
            pv(VVB, VP+4)
    a.lab(name)
    kread()
    a(f"s_cmp_eq_u32 s{S_N}, 1")
    a(f"s_cbranch_scc1 {name}_M1")
    kstep()
    a("s_waitcnt lgkmcnt(0)")
    qk1(None); qk2()
    vread(VVA, 0); kread(); vread(VVB, 1152)
    a(f"v_add_u32 v{A_V}, v{ST_V}, v{A_V}")
    a(f"s_sub_u32 s{S_N}, s{S_N}, 2")
    a.lab(name + "_BT")
    a(f"s_cmp_eq_u32 s{S_N}, 0")
    a(f"s_cbranch_scc1 {name}_MK0")
    a(f"s_sub_u32 s{S_E}, s{S_HOOK}, s{S_U}")
    a(f"s_min_u32 s{S_E}, s{S_E}, s{S_N}")
    a(f"s_sub_u32 s{S_N}, s{S_N}, s{S_E}")
    a(f"s_add_u32 s{S_U}, s{S_U}, s{S_E}")
    a(f"s_sub_u32 s{S_E}, s{S_E}, 1")
    a.lab(name + "_LP")
    unit("plain")
    a(f"s_sub_u32 s{S_E}, s{S_E}, 1")
    a("s_nop 1")
    a(f"s_cbranch_scc0 {name}_LP")
    a(f"s_cmp_lg_u32 s{S_U}, s{S_HOOK}")
    a(f"s_cbranch_scc1 {name}_BT")
    a(f"s_call_b64 s[{S_RET2}:{S_RET2+1}], L_HOOK")
    a(f"s_branch {name}_BT")
    a.lab(name + "_MK0")
    a("s_nop 3")
    a.lab(name + "_MK")
    unit("mask")
    hook_point(a, f"{name}_H1")
    a("s_nop 1")
    a.lab(name + "_FN")
    unit(None)
    hook_point(a, f"{name}_H2")
    a(f"s_setpc_b64 s[{S_RET}:{S_RET+1}]")
    a.lab(name + "_M1")
    a("s_waitcnt lgkmcnt(0)")
    qk1(V_MASK); qk2()
    vread(VVA, 0); vread(VVB, 1152)
    a("s_nop 7")
    a(f"s_branch {name}_FN")

def set_run(a, region, tile_sreg, n_lines, step):
    a(f"s_mul_i32 s{S_T0}, s{tile_sreg}, {TILE}" if tile_sreg is not None else f"s_mov_b32 s{S_T0}, 0")
    a(f"s_add_u32 s{S_T0}, s{S_T0}, {region}")
    a(f"v_add_u32 v{A_K}, s{S_T0}, v{B_K}")
    a(f"v_add_u32 v{A_KR}, s{S_T0}, v{B_KR}")
    a(f"v_and_b32 v{A_V}, s{S_T0}, v{MK_V}")
    a(f"v_add_u32 v{A_V}, v{B_V}, v{A_V}")
    a(f"v_mov_b32 v{ST_K}, {step & 0xffffffff:#x}")
    a(f"v_and_b32 v{ST_V}, v{ST_K}, v{MK_V}")
    for l in n_lines: a(l)

F_MD, F_MF, F_M = 190, 206, 222
S_FQ, S_FT, S_FK, S_FP, S_FI2 = 32+12, 45, 46, 47, 48

def safety_check(a, O, isB, qb_sreg, tag):
    t = T
    a(f"v_max3_f32 v{t}, |v{O}|, |v{O+1}|, |v{O+2}|")
    for k in range(3, 11, 2): a(f"v_max3_f32 v{t}, v{t}, |v{O+k}|, |v{O+k+1}|")
    a(f"v_max_f32 v{t}, v{t}, |v{O+11}|".replace("v_max_f32", "v_max_f32_e64"))
    a(f"v_mov_b32 v{t+1}, 0x21800000")
    a(f"v_mov_b32 v{t+2}, 0x5d800000")
    a(f"v_mov_b32 v{t+3}, 0x7f000000")
    a(f"v_cmp_nge_f32 vcc, v{O+12}, v{t+1}")
    a(f"v_cmp_nle_f32 s[{S_BAD}:{S_BAD+1}], v{O+12}, v{t+2}")
    a(f"s_or_b64 vcc, vcc, s[{S_BAD}:{S_BAD+1}]")
    a(f"v_cmp_nlt_f32 s[{S_BAD}:{S_BAD+1}], v{t}, v{t+3}")
    a(f"s_or_b64 vcc, vcc, s[{S_BAD}:{S_BAD+1}]")
    a("s_cmp_eq_u64 vcc, 0")
    a(f"s_cbranch_scc1 L_SAFE{tag}")
    a(f"s_mov_b32 s{S_FQ}, s{qb_sreg}")
    if isB:
        for r in range(8): a(f"v_swap_b32 v{QA_M+r}, v{QB_M+r}")
        for r in range(16): a(f"v_swap_b32 v{OA+r}, v{OB+r}")
    a(f"s_call_b64 s[{S_RET}:{S_RET+1}], L_FB")
    if isB:
        for r in range(8): a(f"v_swap_b32 v{QA_M+r}, v{QB_M+r}")
        for r in range(16): a(f"v_swap_b32 v{OA+r}, v{OB+r}")
    a.lab(f"L_SAFE{tag}")

def fallback_code(a):
    t = T; L = V_LANE
    a.lab("L_FB")
    a(f"v_and_b32 v{t}, 31, v{L}")
    a(f"v_lshrrev_b32 v{t+1}, 5, v{L}")
    a(f"v_lshlrev_b32 v{t+1}, 2, v{t+1}")
    a(f"v_sub_u32 v{t}, v{t}, v{t+1}")
    a(f"v_mov_b32 v{t+1}, {NEG:#x}")
    for r in range(16):
        jj = (r & 3) + 8*(r >> 2)
        a(f"v_cmp_le_i32 vcc, {jj}, v{t}")
        a("s_nop 1")
        a(f"v_cndmask_b32_e64 v{F_MD+r}, v{t+1}, 0, vcc")
        a(f"v_sub_f32 v{F_MF+r}, v{t+1}, v{F_MD+r}")
    a(f"v_mov_b32 v{F_M}, 0xff800000")
    a(f"s_mov_b32 s{S_FP}, 0")
    a.lab("L_FB_PASS")
    a(f"s_mov_b32 s{S_FI2}, 0")
    a.lab("L_FB_OWN")
    a(f"s_mul_i32 s{S_FT}, s{S_FI2}, {TILE}")
    a(f"s_add_u32 s{S_FT}, s{S_FT}, {KV_OWN}")
    a(f"s_cmp_eq_u32 s{S_FI2}, s{S_FQ}")
    a(f"s_cselect_b32 s{S_FK}, 1, 0")
    a(f"s_call_b64 s[{S_RET2}:{S_RET2+1}], L_FB_TILE")
    a(f"s_add_u32 s{S_FI2}, s{S_FI2}, 1")
    a(f"s_cmp_le_u32 s{S_FI2}, s{S_FQ}")
    a("s_cbranch_scc1 L_FB_OWN")
    a(f"s_cmp_eq_u32 s{S_S}, 0")
    a("s_cbranch_scc1 L_FB_PEND")
    a(f"s_mov_b32 s{S_FI2}, s{S_FQ}")
    a.lab("L_FB_HALO")
    a(f"s_mul_i32 s{S_FT}, s{S_FI2}, {TILE}")
    a(f"s_add_u32 s{S_FT}, s{S_FT}, {KV_HALO}")
    a(f"s_cmp_eq_u32 s{S_FI2}, s{S_FQ}")
    a(f"s_cselect_b32 s{S_FK}, 2, 0")
    a(f"s_call_b64 s[{S_RET2}:{S_RET2+1}], L_FB_TILE")
    a(f"s_add_u32 s{S_FI2}, s{S_FI2}, 1")
    a(f"s_cmp_le_u32 s{S_FI2}, 7")
    a("s_cbranch_scc1 L_FB_HALO")
    a.lab("L_FB_PEND")
    a(f"s_cmp_eq_u32 s{S_FP}, 1")
    a("s_cbranch_scc1 L_FB_DONE")
    a(f"v_mov_b32 v{t}, v{F_M}")
    a("s_nop 1")
    a(f"v_permlane32_swap_b32 v{F_M}, v{t}")
    a("s_nop 1")
    a(f"v_max_f32 v{F_M}, v{F_M}, v{t}")
    for r in range(16): a(f"v_mov_b32 v{OA+r}, 0")
    a(f"s_mov_b32 s{S_FP}, 1")
    a("s_branch L_FB_PASS")
    a.lab("L_FB_DONE")
    a("s_nop 15")
    a(f"s_setpc_b64 s[{S_RET}:{S_RET+1}]")
    a.lab("L_FB_TILE")
    a(f"v_add_u32 v{A_K}, s{S_FT}, v{B_K}")
    a(f"v_add_u32 v{A_KR}, s{S_FT}, v{B_KR}")
    a(f"v_and_b32 v{A_V}, s{S_FT}, v{MK_V}")
    a(f"v_add_u32 v{A_V}, v{B_V}, v{A_V}")
    a(f"ds_read_b128 v[{VKF}:{VKF+3}], v{A_K}")
    a(f"ds_read_b64 v[{VKR}:{VKR+1}], v{A_KR}")
    a(f"ds_read_b64_tr_b16 v[{VVA}:{VVA+1}], v{A_V}")
    a(f"ds_read_b64_tr_b16 v[{VVA+2}:{VVA+3}], v{A_V} offset:576")
    a(f"ds_read_b64_tr_b16 v[{VVB}:{VVB+1}], v{A_V} offset:1152")
    a(f"ds_read_b64_tr_b16 v[{VVB+2}:{VVB+3}], v{A_V} offset:1728")
    a("s_waitcnt lgkmcnt(0)")
    a(f"v_mfma_f32_32x32x16_bf16 v[{VS}:{VS+15}], v[{VKF}:{VKF+3}], v[{QA_M}:{QA_M+3}], 0")
    a(f"v_mfma_f32_32x32x16_bf16 v[{VS}:{VS+15}], v[{VKR}:{VKR+3}], v[{QA_R}:{QA_R+3}], v[{VS}:{VS+15}]")
    a("s_nop 15")
    a(f"s_cmp_eq_u32 s{S_FK}, 0")
    a("s_cbranch_scc1 L_FB_NM")
    a(f"s_cmp_eq_u32 s{S_FK}, 1")
    a("s_cbranch_scc0 L_FB_FM")
    for r in range(16): a(f"v_add_f32 v{VS+r}, v{VS+r}, v{F_MD+r}")
    a("s_branch L_FB_NM")
    a.lab("L_FB_FM")
    for r in range(16): a(f"v_add_f32 v{VS+r}, v{VS+r}, v{F_MF+r}")
    a.lab("L_FB_NM")
    a(f"s_cmp_eq_u32 s{S_FP}, 0")
    a("s_cbranch_scc0 L_FB_P1")
    for r in range(0, 16, 2): a(f"v_max3_f32 v{F_M}, v{F_M}, v{VS+r}, v{VS+r+1}")
    a(f"s_setpc_b64 s[{S_RET2}:{S_RET2+1}]")
    a.lab("L_FB_P1")
    for r in range(16): a(f"v_sub_f32 v{VS+r}, v{VS+r}, v{F_M}")
    for r in range(16): a(f"v_exp_f32 v{VE+r}, v{VS+r}")
    a("s_nop 0")
    for j in range(8): a(f"v_cvt_pk_bf16_f32 v{VP+j}, v{VE+2*j}, v{VE+2*j+1}")
    a("s_nop 1")
    a(f"v_mfma_f32_32x32x16_bf16 v[{OA}:{OA+15}], v[{VVA}:{VVA+3}], v[{VP}:{VP+3}], v[{OA}:{OA+15}]")
    a(f"v_mfma_f32_32x32x16_bf16 v[{OA}:{OA+15}], v[{VVB}:{VVB+3}], v[{VP+4}:{VP+7}], v[{OA}:{OA+15}]")
    a("s_nop 7")
    a(f"s_setpc_b64 s[{S_RET2}:{S_RET2+1}]")

def finalize(a, O, qb_sreg, save_exec, rest_exec):
    t = T; R = VS
    a(f"v_rcp_f32 v{t+2}, v{O+12}")
    a(f"s_lshl_b32 s{S_T0}, s{qb_sreg}, 15")
    a(f"s_add_u32 s{S_T1}, s{S_T0}, s{S_OM}")
    a(f"s_lshl_b32 s{S_T0}, s{qb_sreg}, 7")
    a(f"s_add_u32 s{S_T2}, s{S_T0}, s{S_OR}")
    for r in range(12): a(f"v_mul_f32 v{O+r}, v{O+r}, v{t+2}")
    a(f"v_cvt_pk_bf16_f32 v{R}, v{O}, v{O+1}")
    a(f"v_cvt_pk_bf16_f32 v{R+1}, v{O+2}, v{O+3}")
    a(f"v_cvt_pk_bf16_f32 v{R+2}, v{O+4}, v{O+5}")
    a(f"v_cvt_pk_bf16_f32 v{R+3}, v{O+6}, v{O+7}")
    a(f"v_cvt_pk_bf16_f32 v{R+4}, v{O+8}, v{O+9}")
    a(f"v_cvt_pk_bf16_f32 v{R+5}, v{O+10}, v{O+11}")
    a(f"s_cmp_eq_u32 s{S_HEAD}, 0")
    a(f"s_cselect_b64 s[{S_SAVE}:{S_SAVE+1}], -1, 0")
    a(f"v_permlane32_swap_b32 v{R}, v{R+2}")
    a(f"v_permlane32_swap_b32 v{R+1}, v{R+3}")
    a(f"v_cndmask_b32_e64 v{R+4}, v{R+5}, v{R+4}, s[{S_SAVE}:{S_SAVE+1}]")
    a(f"buffer_store_dwordx4 v[{R}:{R+3}], v{V_OA1}, {WS}, s{S_T1} offen sc1")
    a(f"s_mov_b64 s[{S_SAVE}:{S_SAVE+1}], exec")
    a(f"s_mov_b32 exec_hi, 0")
    a(f"buffer_store_dword v{R+4}, v{V_OA2}, {WS}, s{S_T2} offen sc1")
    rest_exec()

def oflag(a, name, cnt_addr, flag_off, save_exec, rest_exec, after_store=None, last=7):
    t = T
    lds_inc(a, cnt_addr, save_exec, rest_exec, rtn=t+2)
    a("s_waitcnt lgkmcnt(0)")
    a(f"v_readfirstlane_b32 s{S_T0}, v{t+2}")
    a(f"s_cmp_lg_u32 s{S_T0}, {last}")
    a(f"s_cbranch_scc1 {name}")
    a(f"s_lshl_b32 s{S_T0}, s{S_HP}, 2")
    a(f"s_add_u32 s{S_T0}, s{S_T0}, s{S_OFS}")
    a(f"v_lshlrev_b32 v{t}, 7, v{V_LANE}")
    a(f"v_mov_b32 v{t+1}, s{S_TAGO}")
    save_exec("0xffff")
    a(f"buffer_store_dword v{t+1}, v{t}, {WS}, s{S_T0} offen offset:{flag_off} sc1")
    rest_exec()
    if after_store: after_store()
    a.lab(name)

def phase2(a, debug_stage, ts, exp, save_exec, rest_exec):
    t = T; L = V_LANE
    UH = (4, 6, 8)
    if 'hkA' in exp: UH = (3, 5, 7)
    if 'hkB' in exp: UH = (4, 6, 7)
    if 'hkC' in exp: UH = (5, 7, 8)
    UP = 15
    a.c("======== phase 2 ========")
    a(f"v_readfirstlane_b32 s{S_TAGOUT}, v{V_TG}")
    a(f"v_readfirstlane_b32 s{S_TAGIN}, v{V_TG+1}")
    a(f"v_readfirstlane_b32 s{S_TAGO}, v{V_TG+2}")
    a(f"v_bfe_u32 v{V_OA1}, v{L}, 4, 1")
    a(f"v_lshlrev_b32 v{V_OA1}, 14, v{V_OA1}")
    a(f"v_and_b32 v{t+4}, 15, v{L}")
    a(f"v_lshl_add_u32 v{V_OA1}, v{t+4}, 4, v{V_OA1}")
    a(f"v_lshrrev_b32 v{t+4}, 5, v{L}")
    a(f"v_lshl_add_u32 v{V_OA1}, v{t+4}, 8, v{V_OA1}")
    a(f"v_lshlrev_b32 v{V_OA2}, 2, v{L}")
    for (QM, QR, sreg) in ((QA_M, QA_R, S_M), (QB_M, QB_R, S_MB)):
        a(f"s_mul_i32 s{S_T0}, s{sreg}, {QTILE}")
        a(f"s_add_u32 s{S_T0}, s{S_T0}, {Q_BASE}")
        a(f"v_add_u32 v{t+2}, s{S_T0}, v{B_K}")
        a(f"v_add_u32 v{t+3}, s{S_T0}, v{B_KR}")
        a(f"ds_read_b128 v[{QM}:{QM+3}], v{t+2}")
        a(f"ds_read_b64 v[{QR}:{QR+1}], v{t+3}")
    a(f"s_cmp_eq_u32 s{S_HEAD}, 0")
    a(f"s_cselect_b32 s{S_T0}, -1, 0")
    a(f"s_cselect_b32 s{S_T1}, 0, -1")
    a(f"v_cmp_gt_u32 vcc, 32, v{L}")
    a(f"v_mov_b32 v{t}, s{S_T0}")
    a(f"v_mov_b32 v{t+1}, s{S_T1}")
    a(f"v_cndmask_b32_e64 v{t}, 0, v{t}, vcc")
    a(f"v_cndmask_b32_e64 v{t+1}, 0, v{t+1}, vcc")
    a(f"v_mov_b32 v{VKR+2}, 0")
    a(f"v_mov_b32 v{VKR+3}, 0")
    for QR in (QA_R, QB_R):
        a(f"v_mov_b32 v{QR+2}, 0")
        a(f"v_mov_b32 v{QR+3}, 0")
    a("s_waitcnt lgkmcnt(0)")
    for QR in (QA_R, QB_R):
        a(f"v_and_b32 v{QR}, v{QR}, v{t}")
        a(f"v_and_b32 v{QR+1}, v{QR+1}, v{t+1}")
    lds_inc(a, CNTQ, save_exec, rest_exec)
    a(f"s_mov_b32 s{S_U}, 0")
    a(f"s_mov_b32 s{S_HST}, 0")
    a(f"s_mov_b32 s{S_HOOK}, 2")
    a(f"s_mov_b32 s{S_HST}, 5")
    a(f"s_cmp_lt_u32 s{S_WID}, 4")
    a(f"s_cbranch_scc1 L_HS2")
    a(f"s_mov_b32 s{S_HST}, 0")
    a(f"s_mov_b32 s{S_HOOK}, {UH[0]}")
    a(f"s_cmp_eq_u32 s{S_S}, 7")
    a(f"s_cbranch_scc1 L_HS1")
    a(f"s_mul_i32 s{S_T1}, s{S_IDX}, 36864")
    for c, i in enumerate([3, 2, 1, 0]):
        a(f"s_add_u32 s{S_T2}, s{S_T1}, {i*4096}")
        a(f"buffer_store_dwordx4 v[{VH+20+4*c}:{VH+20+4*c+3}], v{V_PA}, {WS}, s{S_T2} offen sc1")
    a.lab("L_HS1")
    if 'noprio' not in exp and 'pf' not in exp: a("s_setprio 1")
    a.lab("L_HS2")
    ts(4)
    set_run(a, KV_OWN, None, [f"s_add_u32 s{S_N}, s{S_M}, 1"], TILE)
    a(f"s_call_b64 s[{S_RET}:{S_RET+1}], L_RUNA")
    set_run(a, KV_OWN, None, [f"s_sub_u32 s{S_N}, 8, s{S_M}"], TILE)
    a(f"s_call_b64 s[{S_RET}:{S_RET+1}], L_RUNB")
    ts(5)
    a(f"s_cmp_eq_u32 s{S_S}, 0")
    a("s_cbranch_scc1 L_FINAL0")
    a(f"v_mov_b32 v{t+2}, {NEG:#x}")
    for r in range(16): a(f"v_sub_f32 v{V_MASK+r}, v{t+2}, v{V_MASK+r}")
    a(f"s_cmp_lt_u32 s{S_WID}, 4")
    a("s_cbranch_scc1 L_H5DONE")
    lds_wait(a, "L_WQ", CNTQ, 8)
    a(f"v_add_u32 v{V_PA+1}, {KV_HALO}, v{V_PA}")
    for c, i in enumerate([8, 7, 6, 5, 4, 3, 2, 1, 0]):
        a(f"s_waitcnt vmcnt({8-c})")
        a(f"ds_write_b128 v{V_PA+1}, v[{VH+4*c}:{VH+4*c+3}] offset:{i*4096}")
    if 'midbar' not in exp:
        a("s_waitcnt lgkmcnt(0)")
        lds_inc(a, CNT1, save_exec, rest_exec)
    a(f"s_cmp_lg_u32 s{S_WID}, 4")
    a("s_cbranch_scc1 L_H5DONE")
    a(f"s_sub_u32 s{S_T0}, s{S_IDX}, 1")
    a(f"s_lshl_b32 s{S_T0}, s{S_T0}, 8")
    a(f"s_add_u32 s{S_T0}, s{S_T0}, {WS_FLAG}")
    a(f"v_mov_b32 v{t}, 0")
    a(f"v_mov_b32 v{t+1}, s{S_TAGIN}")
    save_exec(1)
    a(f"buffer_store_dword v{t+1}, v{t}, {WS}, s{S_T0} offen sc1")
    rest_exec()
    a.lab("L_H5DONE")
    if 'midbar' in exp:
        a("s_waitcnt lgkmcnt(0)")
        if 'noph' in exp: a("s_setprio 0")
        a("s_barrier")
    else:
        lds_wait(a, "L_W1", CNT1, 4)
    if "tsh" not in exp: ts(7)
    a(f"s_mov_b32 s{S_T4}, 7")
    set_run(a, KV_HALO, S_T4, [f"s_add_u32 s{S_N}, s{S_M}, 1"], -TILE)
    a(f"s_call_b64 s[{S_RET}:{S_RET+1}], L_RUNB")
    a("s_nop 7")
    a("s_nop 3")
    safety_check(a, OB, True, S_MB, "B1")
    finalize(a, OB, S_MB, save_exec, rest_exec)
    if 'noph' not in exp: a("s_setprio 0")
    a(f"s_mov_b32 s{S_T4}, 7")
    set_run(a, KV_HALO, S_T4, [f"s_sub_u32 s{S_N}, 8, s{S_M}"], -TILE)
    a(f"s_call_b64 s[{S_RET}:{S_RET+1}], L_RUNA")
    a("s_branch L_FINALA")
    a.lab("L_FINAL0")
    a("s_waitcnt vmcnt(0)")
    a("s_setprio 0")
    a("s_barrier")
    a("s_nop 7")
    a("s_nop 3")
    safety_check(a, OB, True, S_MB, "B0")
    finalize(a, OB, S_MB, save_exec, rest_exec)
    a.lab("L_FINALA")
    a("s_setprio 0")
    if "tsh" not in exp: ts(8)
    a("s_nop 7")
    a("s_nop 3")
    safety_check(a, OA, False, S_M, "A")
    finalize(a, OA, S_M, save_exec, rest_exec)
    a("s_branch L_P3")
    fallback_code(a)

    a.lab("L_HOOK")
    a(f"s_cmp_eq_u32 s{S_HST}, 1")
    a("s_cbranch_scc1 L_HK1")
    a(f"s_cmp_eq_u32 s{S_HST}, 2")
    a("s_cbranch_scc1 L_HK2")
    a(f"s_cmp_eq_u32 s{S_HST}, 3")
    a("s_cbranch_scc1 L_HK3")
    a(f"s_cmp_eq_u32 s{S_HST}, 5")
    a("s_cbranch_scc0 L_HK0")
    a(f"s_mov_b32 s{S_HST}, 3")
    a(f"s_mov_b32 s{S_HOOK}, {UP}")
    a("s_waitcnt vmcnt(0)")
    oflag(a, "L_CLR", CNTOB, 128, save_exec, rest_exec, last=3)
    a("s_branch L_HRET")
    a.lab("L_HK0")
    a(f"s_mov_b32 s{S_HST}, 1")
    a(f"s_mov_b32 s{S_HOOK}, {UH[1]}")
    a(f"s_cmp_eq_u32 s{S_S}, 7")
    a("s_cbranch_scc1 L_HRET")
    a("s_waitcnt vmcnt(0)")
    a(f"s_lshl_b32 s{S_T0}, s{S_IDX}, 8")
    a(f"s_lshl_b32 s{S_T1}, s{S_L}, 2")
    a(f"s_add_u32 s{S_T0}, s{S_T0}, s{S_T1}")
    a(f"s_add_u32 s{S_T0}, s{S_T0}, {WS_FLAG+128}")
    a(f"v_mov_b32 v{t}, 0")
    a(f"v_mov_b32 v{t+1}, s{S_TAGOUT}")
    save_exec(1)
    a(f"buffer_store_dword v{t+1}, v{t}, {WS}, s{S_T0} offen sc1")
    rest_exec()
    a("s_branch L_HRET")
    a.lab("L_HK3")
    a(f"s_mov_b32 s{S_HST}, 4")
    a(f"s_mov_b32 s{S_HOOK}, 1000")
    a(f"s_lshl_b32 s{S_T0}, s{S_HP}, 7")
    a(f"s_add_u32 s{S_T0}, s{S_T0}, s{S_OFS}")
    save_exec("0xffff")
    a(f"v_lshlrev_b32 v{t}, 2, v{L}")
    a(f"buffer_load_dword v{V_TG+1}, v{t}, {WS}, s{S_T0} offen offset:128 sc1")
    rest_exec()
    a("s_branch L_HRET")
    a.lab("L_HK1")
    a(f"s_mov_b32 s{S_HST}, 2")
    a(f"s_mov_b32 s{S_HOOK}, {UH[2]}")
    a(f"s_cmp_eq_u32 s{S_S}, 0")
    a("s_cbranch_scc0 L_HK1A")
    a(f"s_mov_b32 s{S_HOOK}, 1000")
    a("s_branch L_HRET")
    a.lab("L_HK1A")
    a(f"s_sub_u32 s{S_H1}, s{S_IDX}, 1")
    a(f"s_lshl_b32 s{S_H1}, s{S_H1}, 8")
    a(f"s_lshl_b32 s{S_T0}, s{S_L}, 2")
    a(f"s_add_u32 s{S_H1}, s{S_H1}, s{S_T0}")
    a(f"s_add_u32 s{S_H1}, s{S_H1}, {WS_FLAG+128}")
    a(f"v_mov_b32 v{t}, 0")
    a(f"buffer_load_dword v{V_TG}, v{t}, {WS}, s{S_H1} offen sc1")
    a("s_branch L_HRET")
    a.lab("L_HK2")
    a(f"s_mov_b32 s{S_HST}, 3")
    a(f"s_mov_b32 s{S_HOOK}, {UP}")
    a("s_waitcnt vmcnt(0)")
    a(f"v_readfirstlane_b32 s{S_T0}, v{V_TG}")
    a(f"s_cmp_eq_u32 s{S_T0}, s{S_TAGIN}")
    a("s_cbranch_scc1 L_POLL1_OK")
    a(f"v_mov_b32 v{t}, 0")
    spin_poll(a, "L_POLL1",
              [f"v_readfirstlane_b32 s{S_T0}, v{V_TG}", f"s_cmp_eq_u32 s{S_T0}, s{S_TAGIN}"],
              f"buffer_load_dword v{V_TG}, v{t}, {WS}, s{S_H1} offen sc1")
    a(f"s_sub_u32 s{S_T0}, s{S_IDX}, 1")
    a(f"s_mul_i32 s{S_T0}, s{S_T0}, 36864")
    for c, i in enumerate([8, 7, 6, 5, 4, 3, 2, 1, 0]):
        a(f"s_add_u32 s{S_T1}, s{S_T0}, {i*4096}")
        a(f"buffer_load_dwordx4 v[{VH+4*c}:{VH+4*c+3}], v{V_PA}, {WS}, s{S_T1} offen sc1")
    a.lab("L_HRET")
    a(f"s_setpc_b64 s[{S_RET2}:{S_RET2+1}]")
    run_code(a, "L_RUNA", QA_M, QA_R, OA, exp)
    run_code(a, "L_RUNB", QB_M, QB_R, OB, exp)

def pub_stores(a, stage_off, base):
    a(f"s_add_u32 s{S_T2}, s{S_T1}, {stage_off}")
    a(f"buffer_store_dwordx4 v[{base}:{base+3}], v{V_PA}, {WS}, s{S_T2} offen sc1")
    for i in range(1, 4):
        a(f"s_add_u32 s{S_T3}, s{S_T2}, {i*4096}")
        a(f"buffer_store_dwordx4 v[{base+4*i}:{base+4*i+3}], v{V_PA}, {WS}, s{S_T3} offen sc1")
    a(f"buffer_store_dwordx4 v[{base+16}:{base+19}], v{V_PA+2}, {WS}, s{S_T2} offen sc1")

def halo_loads(a, stage_off, base):
    a(f"s_sub_u32 s{S_T0}, s{S_IDX}, 1")
    a(f"s_mul_i32 s{S_T0}, s{S_T0}, 36864")
    a(f"s_add_u32 s{S_T0}, s{S_T0}, s{S_SO}")
    for i in range(4):
        a(f"s_add_u32 s{S_T1}, s{S_T0}, {i*4096}")
        a(f"buffer_load_dwordx4 v[{base+4*i}:{base+4*i+3}], v{V_PA}, {WS}, s{S_T1} offen sc1")
    a(f"buffer_load_dwordx4 v[{base+16}:{base+19}], v{V_PA+2}, {WS}, s{S_T0} offen sc1")

def phase3(a, debug_stage, ts, exp, save_exec, rest_exec):
    t = T; L = V_LANE
    OF, AC, WF0, WF1 = 20, 92, 132, 152
    AW, AW2, PF, VO, VOUT, VR = 10, 11, 13, 14, 15, 16
    PA, PB = 12, 9
    S_PL, S_PR, S_PM = 4, 68, 40
    SCR = KV_OWN
    ORD = {0: [0, 2, 4, 6, 1, 3, 5, 7, 8], 1: [9, 11, 13, 15, 10, 12, 14, 16, 17]}
    GM = {0: 0x0055, 1: 0xAA00}; RM = {0: 0x01AA, 1: 0xFFFF}
    a.lab("L_P3")
    a.c("======== phase 3 ========")
    a(f"s_lshl_b32 s{S_PL}, s{S_HP}, 7")
    a(f"s_add_u32 s{S_PL}, s{S_PL}, s{S_OFS}")
    def poll_issue():
        save_exec("0xffff")
        a(f"v_lshlrev_b32 v{t+2}, 2, v{L}")
        a(f"buffer_load_dword v{PF}, v{t+2}, {WS}, s{S_PL} offen offset:128 sc1")
        rest_exec()
    def poll_check(name, mask):
        save_exec(f"{mask:#x}")
        a(f"v_cmp_ne_u32 vcc, s{S_TAGO}, v{PF}")
        a("s_nop 1")
        a("s_cmp_eq_u64 vcc, 0")
        a(f"s_cbranch_scc1 {name}_OK")
        a(f"v_lshlrev_b32 v{t+2}, 2, v{L}")
        spin_poll(a, name,
                  [f"v_cmp_ne_u32 vcc, s{S_TAGO}, v{PF}", "s_nop 1", "s_cmp_eq_u64 vcc, 0"],
                  f"buffer_load_dword v{PF}, v{t+2}, {WS}, s{S_PL} offen offset:128 sc1")
        rest_exec()
    a(f"s_lshr_b32 s{S_T1}, s{S_HP}, 3")
    a(f"s_lshl_b32 s{S_T1}, s{S_T1}, 3")
    a(f"s_lshl_b32 s{S_T2}, s{S_M}, 1")
    a(f"s_add_u32 s{S_T1}, s{S_T1}, s{S_T2}")
    a(f"s_lshl_b32 s{S_T0}, s{S_GRP}, 18")
    a(f"s_add_u32 s{S_T0}, s{S_T0}, {WS_O}")
    a(f"s_lshl_b32 s{S_T2}, s{S_T1}, 14")
    a(f"s_add_u32 s{S_PM}, s{S_T0}, s{S_T2}")
    a(f"s_lshl_b32 s{S_T0}, s{S_GRP}, 15")
    a(f"s_add_u32 s{S_T0}, s{S_T0}, {WS_OR}")
    a(f"s_lshl_b32 s{S_T2}, s{S_T1}, 6")
    a(f"s_add_u32 s{S_PR}, s{S_T0}, s{S_T2}")
    a(f"v_lshrrev_b32 v{VR}, 4, v{L}")
    a(f"v_lshlrev_b32 v{VR}, 12, v{VR}")
    a(f"v_and_b32 v{t+4}, 15, v{L}")
    a(f"v_lshl_add_u32 v{VR}, v{t+4}, 2, v{VR}")
    a(f"v_add_u32 v{VR+1}, 64, v{VR}")
    a(f"v_lshrrev_b32 v{t+1}, 4, v{L}")
    a(f"v_bfe_u32 v{t+2}, v{L}, 2, 2")
    a(f"v_and_b32 v{t+3}, 3, v{L}")
    a(f"v_lshrrev_b32 v{t+4}, 1, v{t+1}")
    a(f"v_lshlrev_b32 v{t+4}, 2, v{t+4}")
    a(f"v_lshl_add_u32 v{t+4}, v{t+1}, 3, v{t+4}")
    a(f"v_add_u32 v{t+4}, v{t+4}, v{t+2}")
    a(f"v_mul_u32_u24 v{t+4}, 144, v{t+4}")
    a(f"v_lshl_add_u32 v{AW}, v{t+3}, 3, v{t+4}")
    a(f"s_mul_i32 s{S_T0}, s{S_HEAD}, {9*5184}")
    a(f"v_add_u32 v{AW}, s{S_T0}, v{AW}")
    a(f"v_mul_u32_u24 v{t+4}, 72, v{t+1}")
    a(f"v_add3_u32 v{t+4}, v{t+4}, v{t+2}, 16")
    a(f"v_mul_u32_u24 v{t+4}, 144, v{t+4}")
    a(f"v_lshl_add_u32 v{AW2}, v{t+3}, 3, v{t+4}")
    a(f"v_lshlrev_b32 v{VO}, 4, v{L}")
    a(f"s_lshl_b32 s{S_T1}, s{S_T1}, 4")
    a(f"s_lshl_b32 s{S_T2}, s{S_S}, 8")
    a(f"s_add_u32 s{S_T1}, s{S_T1}, s{S_T2}")
    a(f"s_lshl_b32 s{S_T2}, s{S_HEAD}, 4")
    a(f"s_add_u32 s{S_T1}, s{S_T1}, s{S_T2}")
    a(f"s_mul_i32 s{S_T1}, s{S_T1}, 2304")
    a(f"s_mul_i32 s{S_T2}, s{S_B}, 1152")
    a(f"s_add_u32 s{S_T1}, s{S_T1}, s{S_T2}")
    a(f"s_and_b32 s{S_T2}, s{S_HP}, 7")
    a(f"s_mul_i32 s{S_T2}, s{S_T2}, 144")
    a(f"s_add_u32 s{S_T5}, s{S_T1}, s{S_T2}")
    a(f"v_and_b32 v{VOUT}, 15, v{L}")
    a(f"v_mul_u32_u24 v{VOUT}, 2304, v{VOUT}")
    a(f"v_lshrrev_b32 v{t+4}, 4, v{L}")
    a(f"v_lshl_add_u32 v{VOUT}, v{t+4}, 3, v{VOUT}")
    a(f"s_mul_i32 s{S_T0}, s{S_WID}, 5120")
    a(f"s_add_u32 s{S_T0}, s{S_T0}, {SCR}")
    a(f"v_add_u32 v18, s{S_T0}, v{VO}")
    a(f"s_xor_b32 s{S_T1}, s{S_WID}, 4")
    a(f"s_mul_i32 s{S_T1}, s{S_T1}, 5120")
    a(f"s_add_u32 s{S_T1}, s{S_T1}, {SCR}")
    a(f"v_add_u32 v19, s{S_T1}, v{VO}")
    OUT = f"s[{S_OUT}:{S_OUT+3}]"
    def wreads(kap, kh, WF):
        l = []
        for Tn in range(5):
            b = WF + 4*Tn
            if kap >= 16:
                o0 = (kap-16)*8*36*144 + Tn*32
                l.append(f"ds_read_b64_tr_b16 v[{b}:{b+1}], v{AW2} offset:{o0}")
                l.append(f"ds_read_b64_tr_b16 v[{b+2}:{b+3}], v{AW2} offset:{o0+36*144}")
            else:
                o0 = (kap - 9*kh)*5184 + Tn*32
                l.append(f"ds_read_b64_tr_b16 v[{b}:{b+1}], v{AW} offset:{o0}")
                l.append(f"ds_read_b64_tr_b16 v[{b+2}:{b+3}], v{AW} offset:{o0+576}")
        return l
    def loads(kh, slots):
        nl = []
        for jx in slots:
            kap = ORD[kh][jx]
            if kap >= 16:
                a(f"s_add_u32 s{S_T0}, s{S_PR}, {(kap-16)*16*1024}")
                for mt in range(2):
                    for i in range(4):
                        a(f"buffer_load_dword v{OF+36*mt+4*jx+i}, v{VR+mt}, {WS}, s{S_T0} offen offset:{i*1024} sc1")
                nl.append(8)
            else:
                a(f"s_add_u32 s{S_T0}, s{S_PM}, {kap*1024}")
                a(f"s_add_u32 s{S_T1}, s{S_PM}, {kap*1024+16384}")
                a(f"buffer_load_dwordx4 v[{OF+4*jx}:{OF+4*jx+3}], v{VO}, {WS}, s{S_T0} offen sc1")
                a(f"buffer_load_dwordx4 v[{OF+36+4*jx}:{OF+36+4*jx+3}], v{VO}, {WS}, s{S_T1} offen sc1")
                nl.append(2)
        return nl
    def mfm(kh, slots, nl, extra, last_next, novm=False):
        for c, jx in enumerate(slots):
            cur = WF0 if jx % 2 == 0 else WF1
            nxt = WF1 if jx % 2 == 0 else WF0
            a("s_waitcnt lgkmcnt(0)" if novm else f"s_waitcnt vmcnt({sum(nl[c+1:])+extra}) lgkmcnt(0)")
            rs = wreads(ORD[kh][jx+1], kh, nxt) if jx < 8 else []
            ri = 0
            for Tn in range(5):
                for mt in range(2):
                    d = AC + (mt*5+Tn)*4; o = OF + 36*mt + 4*jx
                    cc = "0" if jx == 0 else f"v[{d}:{d+3}]"
                    a(f"v_mfma_f32_16x16x32_bf16 v[{d}:{d+3}], v[{cur+4*Tn}:{cur+4*Tn+3}], v[{o}:{o+3}], {cc}")
                    if ri < len(rs): a(rs[ri]); ri += 1
    def add_out(q, base, Tn, pk):
        for r in range(4): a(f"v_add_f32 v{q+r}, v{q+r}, v{base+4*Tn+r}")
        a(f"v_cvt_pk_bf16_f32 v{pk}, v{q}, v{q+1}")
        a(f"v_cvt_pk_bf16_f32 v{pk+1}, v{q+2}, v{q+3}")
        if Tn == 4:
            a(f"s_mov_b64 s[{S_SAVE}:{S_SAVE+1}], exec")
            a(f"s_mov_b32 exec_hi, 0")
        omod = " nt" if 'ont' in exp else " sc1" if 'osc1' in exp else " sc0 sc1" if 'osc01' in exp else ""
        a(f"buffer_store_dwordx2 v[{pk}:{pk+1}], v{VOUT}, {OUT}, s{S_T5} offen offset:{Tn*32}{omod}")
        if Tn == 4: rest_exec()
    def nloads(kh, slots):
        return [8 if ORD[kh][jx] >= 16 else 2 for jx in slots]
    def validate(kh, slots, younger):
        nl = nloads(kh, slots); first = True
        for c, jx in enumerate(slots):
            a(f"s_waitcnt vmcnt({sum(nl[c+1:])+younger})")
            rr = [OF+4*jx+i for i in range(4)] + [OF+36+4*jx+i for i in range(4)]
            if first:
                a(f"v_max3_u32 v{t+3}, v{rr[0]}, v{rr[1]}, v{rr[2]}"); rr = rr[3:]; first = False
                a(f"v_max_u32 v{t+3}, v{t+3}, v{rr[0]}"); rr = rr[1:]
            for k in range(0, len(rr), 2):
                a(f"v_max3_u32 v{t+3}, v{t+3}, v{rr[k]}, v{rr[k+1]}")
        a(f"v_cmp_eq_u32 vcc, -1, v{t+3}")
        a("s_nop 1")
        a("s_cmp_eq_u64 vcc, 0")
    def probe_addr(kh, slots):
        mains = [jx for jx in slots if ORD[kh][jx] < 16]
        a(f"v_mov_b32 v{t+3}, {ORD[kh][mains[0]]*1024 + 16384 + 1020}")
        a(f"v_lshlrev_b32 v{PA}, 11, v{L}")
        a(f"v_add_u32 v{PA}, v{t+3}, v{PA}")
        return (1 << min(len(mains), 4)) - 1
    def probe_issue(mask):
        save_exec(f"{mask:#x}")
        a(f"buffer_load_dword v{PB}, v{PA}, {WS}, s{S_PM} offen sc1")
        rest_exec()
    def probe_loop(mask, name, first_issued):
        save_exec(f"{mask:#x}")
        a(f"s_mov_b32 s{S_CNT}, 0")
        if first_issued: a(f"s_branch {name}_PW")
        a.lab(name + "_P")
        a(f"buffer_load_dword v{PB}, v{PA}, {WS}, s{S_PM} offen sc1")
        a.lab(name + "_PW")
        a(f"s_add_u32 s{S_CNT}, s{S_CNT}, 1")
        a("s_waitcnt vmcnt(0)")
        a(f"v_cmp_eq_u32 vcc, -1, v{PB}")
        a("s_nop 1")
        a("s_cmp_eq_u64 vcc, 0")
        a(f"s_cbranch_scc1 {name}_PO")
        a(f"s_cmp_lt_u32 s{S_CNT}, 2000000")
        a(f"s_cbranch_scc1 {name}_P")
        a.lab(name + "_PO")
        rest_exec()
    def load_validate_loop(kh, slots, name):
        a(f"s_mov_b32 s{S_N}, 0")
        a.lab(name + "_L")
        loads(kh, slots)
        validate(kh, slots, 0)
        a(f"s_cbranch_scc1 {name}_OK")
        a(f"s_add_u32 s{S_N}, s{S_N}, 1")
        a(f"s_cmp_lt_u32 s{S_N}, 100000")
        a(f"s_cbranch_scc1 {name}_L")
        a.lab(name + "_OK")
    def path(kh):
        K = f"K{kh}"
        G, R = list(range(4)), list(range(4, 9))
        for rd in wreads(ORD[kh][0], kh, WF0): a(rd)
        ts(10)
        a(f"s_lshr_b32 s{S_T0}, 0x55AA, s{S_HP}")
        a(f"s_bitcmp1_b32 s{S_T0}, 0")
        a(f"s_cbranch_scc1 L_SG{K}_GO")
        mk = probe_addr(kh, G)
        probe_loop(mk, f"L_SG{K}", False)
        a.lab(f"L_SG{K}_GO")
        load_validate_loop(kh, G, f"L_SGV{K}")
        mk = probe_addr(kh, R)
        a(f"s_lshr_b32 s{S_T0}, 0x55AA, s{S_HP}")
        a(f"s_bitcmp1_b32 s{S_T0}, 0")
        a(f"s_cbranch_scc0 L_SR{K}_EARLY")
        loads(kh, R)
        mfm(kh, G, [0]*4, 0, None, novm=True)
        ts(9)
        lds_wait(a, f"L_WOB{K}", CNTOA, 8)
        validate(kh, R, 0)
        a(f"s_cbranch_scc1 L_SRV{K}_OK")
        probe_loop(mk, f"L_SS{K}", False)
        a(f"s_branch L_SR{K}_LV")
        a.lab(f"L_SR{K}_EARLY")
        probe_issue(mk)
        mfm(kh, G, [0]*4, 0, None, novm=True)
        ts(9)
        lds_wait(a, f"L_WOA{K}", CNTOA, 8)
        probe_loop(mk, f"L_SR{K}", True)
        a.lab(f"L_SR{K}_LV")
        load_validate_loop(kh, R, f"L_SRV{K}")
        mfm(kh, R, [0]*5, 0, None, novm=True)
        ts(11)
        send = AC + 20 if kh == 0 else AC
        keep = AC if kh == 0 else AC + 20
        a("s_nop 7")
        for Tn in range(5): a(f"ds_write_b128 v18, v[{send+4*Tn}:{send+4*Tn+3}] offset:{Tn*1024}")
        a("s_waitcnt lgkmcnt(0)")
        a("s_barrier")
        for Tn in range(5): a(f"ds_read_b128 v[{OF+4*Tn}:{OF+4*Tn+3}], v19 offset:{Tn*1024}")
        for Tn in range(5):
            a(f"s_waitcnt lgkmcnt({4-Tn})")
            add_out(OF+4*Tn, keep, Tn, OF+20+2*Tn)
    lds_inc(a, CNTOA, save_exec, rest_exec)
    a(f"s_cmp_eq_u32 s{S_HST}, 4")
    a("s_cbranch_scc0 L_P3C0")
    a("s_waitcnt vmcnt(2)")
    a(f"v_mov_b32 v{PF}, v{V_TG+1}")
    a("s_branch L_P3C1")
    a.lab("L_P3C0")
    poll_issue()
    a("s_waitcnt vmcnt(0)")
    a.lab("L_P3C1")
    poll_check("L_POLLC", 0xFFFF)
    if debug_stage == 2:
        a("s_waitcnt vmcnt(0)")
        a("s_branch L_FIN")
        return
    a(f"s_cmp_eq_u32 s{S_HEAD}, 0")
    a("s_cbranch_scc0 L_P3K1")
    path(0)
    a("s_branch L_FIN")
    a.lab("L_P3K1")
    path(1)
    a(f"s_cmp_lg_u32 s{S_HP}, 0")
    a("s_cbranch_scc1 L_FIN")
    a(f"s_cmp_lg_u32 s{S_WID}, 4")
    a("s_cbranch_scc1 L_FIN")
    a(f"v_mov_b32 v{t}, 0")
    a(f"v_mov_b32 v{t+1}, s{S_TAGO}")
    a(f"s_mov_b64 exec, 1")
    a(f"buffer_store_dword v{t+1}, v{t}, {WS}, s{S_OFS} offen sc1")

if __name__ == "__main__":
    import argparse
    p = argparse.ArgumentParser(); p.add_argument("--debug", type=int, default=0)
    p.add_argument("--timing", action="store_true"); p.add_argument("--exp", default=""); p.add_argument("-o", default="/dev/stdout")
    args = p.parse_args()
    open(args.o, "w").write(gen(args.debug, args.timing, args.exp))
```

```python
import sys, math, struct

NAME = "concat_heads__sliding_block__sliding_block__prompt"

STAGE   = 49152
WO_BASE = 0
KV_OWN  = 82944
KV_HALO = 119808
Q_BASE  = 119808
MISC    = 156672
TAGS_LDS = MISC + 2048
CNT2, CNT1, CNTQ, CNTOB, CNTOA = TAGS_LDS+12, TAGS_LDS+16, TAGS_LDS+20, TAGS_LDS+24, TAGS_LDS+28
LDS_TOTAL = 163840
TILE    = 4608
QTILE   = 2304
WS_KV   = 0
WS_O    = 256*36864
WS_OR   = WS_O + 16*262144
WS_FLAG = WS_OR + 16*32768
WS_OF   = WS_FLAG + 65536
TIMING_OFF = 24<<20
TAG_INC = 0x9E3779B1
NEG     = 0xFF61B1E6
QSCALE  = (18.0 ** -0.5) * math.log2(math.e)
def f32bits(x): return struct.unpack("<I", struct.pack("<f", x))[0]

class Asm:
    def __init__(self): self.l = []
    def __call__(self, s=""):
        for line in s.split("\n"):
            self.l.append("  " + line.strip())
    def lab(self, n): self.l.append(n + ":")
    def c(self, s): self.l.append("  ; " + s)
    def text(self): return "\n".join(self.l) + "\n"

S_X, S_W, S_WO, S_WS, S_OUT = 8, 12, 16, 20, 24
S_B, S_S, S_HP, S_WID = 28, 29, 30, 31
S_T0, S_T1, S_T2, S_T3, S_T4, S_T5 = 32, 33, 34, 35, 36, 37
S_I = 38
S_L = 39
S_TAGIN, S_TAGOUT, S_TAGO = 40, 41, 42
S_K, S_C, S_SB, S_XB, S_WB = 43, 44, 45, 46, 47
S_LX, S_LW = 48, 49
S_N = 50
S_U = 51
S_RET = 52
S_IDX, S_GRP, S_HEAD, S_M = 54, 55, 56, 57
S_SAVE = 58
S_CNT = 60
S_HOOK = 61
S_BAD = 62
S_RET2 = 64
S_MB = 66
S_HST = 67
S_H0, S_H1 = 68, 69
S_E = 98
S_SO, S_FI = 99, 100
S_OM, S_OR, S_OFS = 6, 7, 5

V_LANE = 1
T = 2
V_AX = 10
V_AW = 12
V_MASK = 20
V_SET0, V_SET1, V_ACC = 36, 80, 124
V_LDX, V_LDW = 36, 44
V_TG = 236
B_K, B_KR, B_V, MK_V = 240, 241, 242, 243
vEK, vEQ, vEV, vE6, vDr, vDt, vF, vC = 244, 245, 246, 247, 248, 249, 250, 252
V_TL = 254
QA_M, QA_R, QB_M, QB_R = 36, 40, 44, 48
OA, OB = 52, 68
VS, VE, VP = 84, 100, 116
VKF, VKR, VVA, VVB = 124, 128, 132, 136
A_K, A_KR, A_V, ST_V, ST_K = 10, 11, 12, 13, 14
VH = 140
V_WOV = 180
V_OA1, V_OA2 = 188, 189
V_PA = 184

def emit_masks_(a):
    t = T; L = V_LANE
    a(f"v_and_b32 v{t}, 31, v{L}")
    a(f"v_lshrrev_b32 v{t+1}, 5, v{L}")
    a(f"v_lshlrev_b32 v{t+1}, 2, v{t+1}")
    a(f"v_sub_u32 v{t}, v{t}, v{t+1}")
    a(f"v_mov_b32 v{t+1}, {NEG:#x}")
    for r in range(16):
        jj = (r & 3) + 8*(r >> 2)
        a(f"v_cmp_le_i32 vcc, {jj}, v{t}")
        a("s_nop 1")
        a(f"v_cndmask_b32_e64 v{V_MASK+r}, v{t+1}, 0, vcc")
def emit_p2_patterns_(a):
    t = T; L = V_LANE
    a(f"v_and_b32 v{t}, 31, v{L}")
    a(f"v_lshrrev_b32 v{t+1}, 5, v{L}")
    a(f"v_lshrrev_b32 v{t+2}, 2, v{t}")
    a(f"v_lshrrev_b32 v{t+3}, 3, v{t}")
    a(f"v_xor_b32 v{t+2}, v{t+2}, v{t+3}")
    a(f"v_xor_b32 v{t+2}, v{t+2}, v{t+1}")
    a(f"v_and_b32 v{t+2}, 1, v{t+2}")
    a(f"v_lshlrev_b32 v{t+2}, 4, v{t+2}")
    a(f"v_lshl_add_u32 v{t+2}, v{t}, 5, v{t+2}")
    a(f"s_lshl_b32 s{S_T0}, s{S_HEAD}, 10")
    a(f"v_add_u32 v{B_K}, s{S_T0}, v{t+2}")
    a(f"v_lshlrev_b32 v{B_KR}, 3, v{t}")
    a(f"v_add_u32 v{B_KR}, 2048, v{B_KR}")
    a(f"v_bfe_u32 v{t+2}, v{L}, 2, 2")
    a(f"v_lshl_add_u32 v{t+2}, v{t+1}, 2, v{t+2}")
    a(f"v_mul_u32_u24 v{t+2}, 72, v{t+2}")
    a(f"v_add_u32 v{t+2}, 2304, v{t+2}")
    a(f"v_and_b32 v{t+3}, 3, v{L}")
    a(f"v_lshlrev_b32 v{t+4}, 3, v{t+3}")
    a(f"s_mul_i32 s{S_T0}, s{S_HEAD}, 40")
    a(f"v_add3_u32 v{t+4}, v{t+4}, v{t+2}, s{S_T0}")
    a(f"v_add_u32 v{t+5}, 32, v{t+2}")
    a(f"v_bfe_u32 v{t+6}, v{L}, 4, 1")
    a(f"v_cmp_eq_u32 vcc, 1, v{t+6}")
    a(f"v_lshrrev_b32 v{t+7}, 1, v{t+3}")
    a(f"v_and_b32 v{t+7}, v{t+7}, v{t+6}")
    a(f"v_cndmask_b32 v{B_V}, v{t+4}, v{t+5}, vcc")
    a(f"v_cmp_eq_u32 vcc, 1, v{t+7}")
    a(f"v_mov_b32 v{t+5}, {MISC}")
    a(f"v_mov_b32 v{t+6}, -1")
    a(f"v_cndmask_b32 v{B_V}, v{B_V}, v{t+5}, vcc")
    a(f"v_cndmask_b32_e64 v{MK_V}, v{t+6}, 0, vcc")


def gen(debug_stage=0, timing=False, exp=''):
    a = Asm()
    t = T; L = V_LANE
    def ts(i, force=False):
        if timing and (('tsk' not in exp and 'tse' not in exp) or force or i in (0, 2, 3, 4) or ('tsk' in exp and i in (8, 9, 10, 11))): a(f"{'s_memrealtime' if ('abs' in exp or 'hdbg' in exp) else 's_memtime'} s[{70+2*i}:{71+2*i}]")
    WS = f"s[{S_WS}:{S_WS+3}]"
    def save_exec(val):
        a(f"s_mov_b64 s[{S_SAVE}:{S_SAVE+1}], exec")
        a(f"s_mov_b64 exec, {val}")
    def rest_exec():
        a(f"s_mov_b64 exec, s[{S_SAVE}:{S_SAVE+1}]")

    hdr = """; concat_heads(A,B): fused QKV projection + sliding-window attention (W=256, 32 heads x 18) + output projection, bf16, gfx950.
;   phase 3  output projection; the attention outputs of all heads are exchanged through d_ws (sentinel-validated hand-off)"""
    a.l += hdr.split("\n") + [f"; @launch grid=(256,1,1) block=(512,1,1) lds={LDS_TOTAL}"]
    a(f""".amdgcn_target "amdgcn-amd-amdhsa--gfx950"
.text
.globl {NAME}_kernel
.p2align 8
.type {NAME}_kernel,@function""")
    a.lab(f"{NAME}_kernel")
    a("s_cmp_ge_u32 s2, 256")
    a("s_cbranch_scc1 L_END")
    a(f"s_and_b32 s3, s2, 7")
    if 'xmap' in exp:
        a(f"s_bfe_u32 s{S_B}, s3, 0x10001")
    else:
        a(f"s_lshr_b32 s{S_B}, s3, 2")
    a(f"s_mul_i32 s{S_T0}, s{S_B}, 24")
    a(f"s_add_u32 s4, s0, s{S_T0}")
    a(f"s_addc_u32 s5, s1, 0")
    a(f"s_load_dwordx2 s[{S_X}:{S_X+1}], s[4:5], 0")
    a(f"s_load_dwordx2 s[{S_W}:{S_W+1}], s[4:5], 8")
    a(f"s_load_dwordx2 s[{S_WO}:{S_WO+1}], s[4:5], 16")
    a(f"s_load_dwordx2 s[{S_OUT}:{S_OUT+1}], s[0:1], 48")
    a(f"s_load_dwordx2 s[{S_WS}:{S_WS+1}], s[0:1], 64")
    if timing:
        for i in range(13): a(f"s_mov_b32 s{70+2*i}, 0")
    ts(0)
    a(f"s_lshr_b32 s{S_I}, s2, 3")
    if 'xmap' in exp:
        a(f"s_and_b32 s{S_T2}, s3, 1")
        a(f"s_lshl_b32 s{S_T2}, s{S_T2}, 2")
        a(f"s_and_b32 s{S_T3}, s{S_I}, 3")
        a(f"s_add_u32 s{S_S}, s{S_T2}, s{S_T3}")
        a(f"s_lshr_b32 s{S_T4}, s{S_I}, 2")
        a(f"s_cmp_lt_u32 s3, 4")
        a(f"s_mov_b32 s{S_T2}, 0xFDB96420")
        a(f"s_cselect_b32 s{S_T2}, 0xECA87531, s{S_T2}")
        a(f"s_lshl_b32 s{S_T0}, s{S_T4}, 2")
        a(f"s_lshr_b32 s{S_T2}, s{S_T2}, s{S_T0}")
        a(f"s_and_b32 s{S_HP}, s{S_T2}, 15")
    else:
        a(f"s_lshr_b32 s{S_T2}, s3, 1")
        a(f"s_and_b32 s{S_T2}, s{S_T2}, 1")
        a(f"s_lshl_b32 s{S_T2}, s{S_T2}, 2")
        a(f"s_and_b32 s{S_T3}, s{S_I}, 3")
        a(f"s_add_u32 s{S_S}, s{S_T2}, s{S_T3}")
        a(f"s_and_b32 s{S_T2}, s3, 1")
        a(f"s_lshl_b32 s{S_T2}, s{S_T2}, 3")
        a(f"s_lshr_b32 s{S_T4}, s{S_I}, 2")
        a(f"s_add_u32 s{S_HP}, s{S_T2}, s{S_T4}")
    a(f"s_lshl_b32 s{S_T3}, s{S_T3}, 1")
    a(f"s_add_u32 s{S_C}, s{S_T4}, s{S_T3}")
    a(f"s_cmp_ge_u32 s{S_C}, 9")
    a(f"s_cselect_b32 s{S_T3}, 9, 0")
    a(f"s_sub_u32 s{S_C}, s{S_C}, s{S_T3}")
    if 'norot' in exp: a(f"s_mov_b32 s{S_C}, 0")
    for key, mul in (('rot2', 2), ('rot3', 3)):
        if key in exp or (key == 'rot2' and 'rot' not in exp):
            a(f"s_lshr_b32 s{S_C}, s{S_T4}, 1")
            a(f"s_and_b32 s{S_T3}, s{S_I}, 3")
            a(f"s_add_u32 s{S_C}, s{S_C}, s{S_T3}")
            a(f"s_mul_i32 s{S_C}, s{S_C}, {mul}")
            for _ in range(2):
                a(f"s_cmp_ge_u32 s{S_C}, 9")
                a(f"s_cselect_b32 s{S_T3}, 9, 0")
                a(f"s_sub_u32 s{S_C}, s{S_C}, s{S_T3}")
    if 'rot4' in exp:
        a(f"s_lshr_b32 s{S_C}, s{S_T4}, 2")
        a(f"s_and_b32 s{S_T3}, s{S_I}, 3")
        a(f"s_lshr_b32 s{S_T3}, s{S_T3}, 1")
        a(f"s_add_u32 s{S_C}, s{S_C}, s{S_T3}")
        a(f"s_mul_i32 s{S_C}, s{S_C}, 3")
    a(f"s_lshl_b32 s{S_T0}, s{S_B}, 4")
    a(f"s_add_u32 s{S_T0}, s{S_T0}, s{S_HP}")
    a(f"s_lshl_b32 s{S_T0}, s{S_T0}, 3")
    a(f"s_add_u32 s{S_IDX}, s{S_T0}, s{S_S}")
    a(f"s_lshl_b32 s{S_T0}, s{S_B}, 3")
    a(f"s_add_u32 s{S_GRP}, s{S_T0}, s{S_S}")
    a(f"v_lshrrev_b32 v{t}, 6, v0")
    a(f"v_and_b32 v{L}, 63, v0")
    a(f"v_readfirstlane_b32 s{S_WID}, v{t}")
    for (r, n) in ((S_X, 2359296), (S_W, 1990656), (S_WO, 663552), (S_WS, 268435456), (S_OUT, 4718592)):
        a(f"s_mov_b32 s{r+2}, {n}")
        a(f"s_mov_b32 s{r+3}, 0x00020000")
    a(f"s_and_b32 s{S_M}, s{S_WID}, 3")
    a(f"s_lshr_b32 s{S_HEAD}, s{S_WID}, 2")
    a(f"s_sub_u32 s{S_MB}, 7, s{S_M}")
    a(f"s_lshl_b32 s{S_T0}, s{S_GRP}, 18")
    a(f"s_add_u32 s{S_T0}, s{S_T0}, {WS_O}")
    a(f"s_lshl_b32 s{S_T1}, s{S_HP}, 10")
    a(f"s_lshl_b32 s{S_T2}, s{S_HEAD}, 9")
    a(f"s_add_u32 s{S_T1}, s{S_T1}, s{S_T2}")
    a(f"s_add_u32 s{S_OM}, s{S_T1}, s{S_T0}")
    a(f"s_lshl_b32 s{S_T0}, s{S_GRP}, 15")
    a(f"s_add_u32 s{S_T0}, s{S_T0}, {WS_OR}")
    a(f"s_lshl_b32 s{S_T1}, s{S_HP}, 1")
    a(f"s_add_u32 s{S_T1}, s{S_T1}, s{S_HEAD}")
    a(f"s_lshl_b32 s{S_T1}, s{S_T1}, 10")
    a(f"s_add_u32 s{S_OR}, s{S_T1}, s{S_T0}")
    a(f"s_lshl_b32 s{S_OFS}, s{S_GRP}, 12")
    a(f"s_add_u32 s{S_OFS}, s{S_OFS}, {WS_OF}")
    a(f"s_cmp_lt_u32 s{S_WID}, 4")
    a("s_cbranch_scc1 L_COMPUTE")

    emit_masks = lambda: emit_masks_(a)
    emit_p2_patterns = lambda: emit_p2_patterns_(a)

    a(f"s_sub_u32 s{S_L}, s{S_WID}, 4")
    a(f"v_lshrrev_b32 v{t}, 3, v{L}")
    a(f"v_mul_u32_u24 v{t}, 1152, v{t}")
    a(f"v_lshrrev_b32 v{t+1}, 4, v{L}")
    a(f"v_and_b32 v{t+2}, 7, v{L}")
    a(f"v_xor_b32 v{t+3}, v{t+2}, v{t+1}")
    a(f"v_lshl_add_u32 v{V_AX}, v{t+3}, 4, v{t}")
    a(f"v_xor_b32 v{t+3}, 4, v{t+3}")
    a(f"v_lshl_add_u32 v{V_AX+1}, v{t+3}, 4, v{t}")
    a(f"s_mul_i32 s{S_T0}, s{S_HP}, 72")
    a(f"s_and_b32 s{S_T0}, s{S_T0}, 0xfffffff0")
    a(f"v_and_b32 v{t+2}, 15, v{L}")
    a(f"v_mul_u32_u24 v{t+4}, 3456, v{t+1}")
    a(f"v_add_u32 v{t+4}, s{S_T0}, v{t+4}")
    for var in range(2):
        a(f"v_lshlrev_b32 v{t+3}, 1, v{t+1}")
        a(f"v_sub_u32 v{t+3}, v{t+2}, v{t+3}")
        if var: a(f"v_subrev_u32 v{t+3}, 8, v{t+3}")
        a(f"v_and_b32 v{t+3}, 15, v{t+3}")
        a(f"v_min_u32 v{t+3}, 14, v{t+3}")
        a(f"v_mul_u32_u24 v{t+5}, 13, v{t+3}")
        a(f"v_lshrrev_b32 v{t+5}, 6, v{t+5}")
        a(f"v_mul_u32_u24 v{t+6}, 5, v{t+5}")
        a(f"v_sub_u32 v{t+6}, v{t+3}, v{t+6}")
        a(f"v_mul_u32_u24 v{t+5}, 1152, v{t+5}")
        a(f"v_lshl_add_u32 v{t+6}, v{t+6}, 4, v{t+5}")
        a(f"v_add_u32 v{V_AX+2+var}, v{t+4}, v{t+6}")
    for i in range(8):
        a(f"v_add_u32 v{V_LDX+i}, {i*9216-(i&3)*1024}, v{V_AX+(i&1)}")
    for i in range(4):
        a(f"v_add_u32 v{V_LDW+i}, {i*4*3456-i*1024}, v{V_AX+2+(i>>1)}")
    a(f"s_lshl_b32 s{S_T0}, s{S_S}, 8")
    a(f"s_lshl_b32 s{S_T1}, s{S_L}, 6")
    a(f"s_add_u32 s{S_T0}, s{S_T0}, s{S_T1}")
    a(f"s_mul_i32 s{S_XB}, s{S_T0}, 1152")
    a(f"s_mul_i32 s{S_WB}, s{S_L}, {16*3456}")
    a(f"s_lshl_b32 s{S_LX}, s{S_L}, 13")
    a(f"s_lshl_b32 s{S_LW}, s{S_L}, 12")
    a(f"s_add_u32 s{S_LW}, s{S_LW}, 32768")
    a(f"s_mov_b32 s{S_SB}, 0")
    def chunk_pre():
        a(f"s_lshl_b32 s{S_T0}, s{S_C}, 7")
        a(f"s_add_u32 s{S_T0}, s{S_T0}, s{S_XB}")
        a(f"s_mul_i32 s{S_T1}, s{S_C}, {64*3456}")
        a(f"s_add_u32 s{S_T1}, s{S_T1}, s{S_WB}")
        a(f"s_add_u32 s{S_T2}, s{S_SB}, s{S_LW}")
        a(f"s_add_u32 s{S_T3}, s{S_SB}, s{S_LX}")
        a(f"s_add_u32 s{S_C}, s{S_C}, 1")
        a(f"s_cmp_eq_u32 s{S_C}, 9")
        a(f"s_cselect_b32 s{S_C}, 0, s{S_C}")
        a(f"s_add_u32 s{S_SB}, s{S_SB}, {STAGE}")
        a(f"s_cmp_eq_u32 s{S_SB}, {3*STAGE}")
        a(f"s_cselect_b32 s{S_SB}, 0, s{S_SB}")
    def chunk_w():
        a(f"s_mov_b32 m0, s{S_T2}")
        a("s_nop 0")
        for i in range(4):
            a(f"buffer_load_dwordx4 v{V_LDW+i}, s[{S_W}:{S_W+3}], s{S_T1} offen offset:{i*1024} lds")
    def chunk_x(lo, hi):
        for i in range(lo, hi):
            if i == lo or i == 4:
                a(f"s_add_u32 m0, s{S_T3}, {(i&~3)*1024}")
                a("s_nop 0")
            a(f"buffer_load_dwordx4 v{V_LDX+i}, s[{S_X}:{S_X+3}], s{S_T0} offen offset:{(i&3)*1024} lds")
    chunk_pre()
    a("s_waitcnt lgkmcnt(0)")
    if 'xfirst' in exp:
        chunk_x(0, 8); chunk_w()
    else:
        chunk_w(); chunk_x(0, 8)
    chunk_pre()
    if 'c1p0' in exp:
        a("s_waitcnt vmcnt(0)")
        a("s_barrier")
        chunk_w(); chunk_x(0, 8)
    elif 'c1p4' in exp:
        chunk_w()
        a("s_waitcnt vmcnt(4)")
        a("s_barrier")
        chunk_x(0, 8)
    elif 'c1p8' in exp:
        chunk_w(); chunk_x(0, 4)
        a("s_waitcnt vmcnt(8)")
        a("s_barrier")
        chunk_x(4, 8)
    else:
        chunk_w(); chunk_x(0, 2)
        a("s_waitcnt vmcnt(6)")
        a("s_barrier")
        chunk_x(2, 8)
    chunk_pre()
    a(f"s_mov_b32 s{S_K}, 2")
    a.lab("L_LD")
    chunk_w(); chunk_x(0, 8)
    chunk_pre()
    a(f"s_add_u32 s{S_K}, s{S_K}, 1")
    a(f"s_cmp_lt_u32 s{S_K}, 9")
    a("s_waitcnt vmcnt(12)")
    a("s_barrier")
    a("s_cbranch_scc1 L_LD")
    a(f"s_lshl_b32 s{S_T0}, s{S_L}, 6")
    a(f"v_add_u32 v{t}, s{S_T0}, v{L}")
    a(f"v_mul_u32_u24 v{t+1}, 7282, v{t}")
    a(f"v_lshrrev_b32 v{t+1}, 16, v{t+1}")
    a(f"v_mul_u32_u24 v{t+2}, 9, v{t+1}")
    a(f"v_sub_u32 v{t+2}, v{t}, v{t+2}")
    a(f"v_mul_u32_u24 v{t+1}, 1152, v{t+1}")
    a(f"v_lshl_add_u32 v{t+1}, v{t+2}, 7, v{t+1}")
    a(f"s_mul_i32 s{S_T0}, s{S_I}, {18*1152}")
    a(f"v_cmp_gt_u32 vcc, 162, v{t}")
    a(f"v_cndmask_b32_e64 v{t+1}, 0, v{t+1}, vcc")
    a(f"buffer_load_dword v255, v{t+1}, s[{S_WO}:{S_WO+3}], s{S_T0} offen")
    emit_masks()
    emit_p2_patterns()
    a(f"v_mul_u32_u24 v{t+1}, 7282, v{L}")
    a(f"v_lshrrev_b32 v{t+1}, 16, v{t+1}")
    a(f"v_mul_u32_u24 v{t+2}, 9, v{t+1}")
    a(f"v_sub_u32 v{t+2}, v{L}, v{t+2}")
    a(f"v_mul_u32_u24 v{t+1}, 1152, v{t+1}")
    a(f"v_lshl_add_u32 v{t+1}, v{t+2}, 4, v{t+1}")
    a(f"s_and_b32 s{S_T0}, s{S_HP}, 7")
    a(f"s_mul_i32 s{S_T0}, s{S_T0}, 144")
    a(f"v_add_u32 v{V_WOV}, s{S_T0}, v{t+1}")
    for j in range(1, 4): a(f"v_add_u32 v{V_WOV+j}, {j*(8064-1008)}, v{V_WOV}")
    a(f"s_mul_i32 s{S_T0}, s{S_L}, {21*1008}")
    a(f"s_mul_i32 s{S_T1}, s{S_L}, {21*8064}")
    a("s_waitcnt vmcnt(1)")
    a("s_barrier")
    WO = f"s[{S_WO}:{S_WO+3}]"
    NW1 = 8 if 'wo8' not in exp else 4
    a(f"s_bitset0_b64 exec, 63")
    for j in range(21):
        if j == NW1:
            a(f"s_mov_b64 exec, -1")
            a("s_barrier")
            a(f"s_bitset0_b64 exec, 63")
        if j == 19:
            a(f"s_cmp_eq_u32 s{S_L}, 3")
            a("s_cbranch_scc0 L_WO_N")
            a(f"s_mov_b64 exec, 0x3ffff")
            a(f"buffer_load_dwordx4 v{V_WOV+(j&3)}, {WO}, s{S_T2} offen offset:{(j&3)*1008} lds")
            a("s_branch L_WO_DONE")
            a.lab("L_WO_N")
        if j % 4 == 0:
            a(f"s_add_u32 m0, s{S_T0}, {j*1008}")
            a(f"s_add_u32 s{S_T2}, s{S_T1}, {j*8064}")
        a(f"buffer_load_dwordx4 v{V_WOV+(j&3)}, {WO}, s{S_T2} offen offset:{(j&3)*1008} lds")
    a.lab("L_WO_DONE")
    a(f"s_mov_b64 exec, -1")
    for r in range(16):
        a(f"v_mov_b32 v{OA+r}, 0")
        a(f"v_mov_b32 v{OB+r}, 0")
    a(f"v_lshlrev_b32 v{V_PA}, 4, v{L}")
    a(f"s_lshl_b32 s{S_T0}, s{S_L}, 10")
    a(f"v_add_u32 v{V_PA}, s{S_T0}, v{V_PA}")
    a(f"v_add_u32 v{V_PA+1}, {KV_OWN}, v{V_PA}")
    a(f"s_mul_i32 s{S_T1}, s{S_IDX}, 36864")
    a("s_barrier")
    if 'tse' in exp: ts(7, True)
    a(f"s_cmp_eq_u32 s{S_S}, 7")
    a("s_cbranch_scc1 L_NOPUB")
    order = [8, 7, 6, 5, 4, 3, 2, 1, 0]
    for c, i in enumerate(order):
        a(f"ds_read_b128 v[{VH+4*c}:{VH+4*c+3}], v{V_PA+1} offset:{i*4096}")
    for c, i in enumerate(order[:5]):
        a(f"s_waitcnt lgkmcnt({8-c})")
        a(f"s_add_u32 s{S_T2}, s{S_T1}, {i*4096}")
        a(f"buffer_store_dwordx4 v[{VH+4*c}:{VH+4*c+3}], v{V_PA}, {WS}, s{S_T2} offen sc1")
    a.lab("L_NOPUB")
    a("s_branch L_P2")

    a.lab("L_COMPUTE")
    if 'dry' in exp and 'nodry' not in exp:
        emit_p2_patterns()
        a(f"s_mov_b32 s{S_U}, 0")
        a(f"s_mov_b32 s{S_HOOK}, 100000")
        set_run(a, KV_OWN, None, [f"s_mov_b32 s{S_N}, 3"], TILE)
        a(f"s_bitcmp1_b32 s{S_WID}, 0")
        a("s_cbranch_scc1 L_DRYB")
        a(f"s_call_b64 s[{S_RET}:{S_RET+1}], L_RUNA")
        a("s_branch L_DRYE")
        a.lab("L_DRYB")
        a(f"s_call_b64 s[{S_RET}:{S_RET+1}], L_RUNB")
        a.lab("L_DRYE")
        a("s_waitcnt lgkmcnt(0)")
    a(f"v_and_b32 v{t}, 15, v{L}")
    a(f"v_lshrrev_b32 v{t+1}, 4, v{L}")
    a(f"v_lshrrev_b32 v{t+2}, 1, v{t}")
    a(f"s_lshl_b32 s{S_T0}, s{S_WID}, 6")
    a(f"v_add_u32 v{t+3}, s{S_T0}, v{t}")
    a(f"v_lshlrev_b32 v{t+3}, 7, v{t+3}")
    a(f"v_xor_b32 v{t+4}, v{t+1}, v{t+2}")
    a(f"v_lshlrev_b32 v{t+5}, 4, v{t+4}")
    a(f"v_add_u32 v{V_AX}, v{t+3}, v{t+5}")
    a(f"v_xor_b32 v{t+4}, 4, v{t+4}")
    a(f"v_lshlrev_b32 v{t+5}, 4, v{t+4}")
    a(f"v_add_u32 v{V_AX+1}, v{t+3}, v{t+5}")
    a(f"v_bfe_u32 v{t}, v{L}, 2, 2")
    a(f"v_and_b32 v{t+2}, 3, v{L}")
    a(f"v_and_b32 v{t+3}, 1, v{t+1}")
    a(f"v_lshl_add_u32 v{t+3}, v{t+3}, 2, v{t}")
    a(f"v_lshlrev_b32 v{t+3}, 5, v{t+3}")
    a(f"v_lshl_add_u32 v{t+4}, v{t+1}, 3, v{t}")
    a(f"v_lshlrev_b32 v{t+4}, 8, v{t+4}")
    a(f"v_add_u32 v{t+4}, 32768, v{t+4}")
    a(f"v_lshlrev_b32 v{t+5}, 3, v{t+2}")
    a(f"s_and_b32 s{S_T1}, s{S_HP}, 1")
    a(f"s_lshl_b32 s{S_T1}, s{S_T1}, 3")
    a(f"v_add3_u32 v{t+5}, v{t+5}, v{t+3}, s{S_T1}")
    for Tn in range(6):
        off = 80*(Tn >> 1) + (40 if Tn & 1 else 0)
        a(f"v_add_u32 v{t+6}, {off}, v{t+5}")
        a(f"v_and_b32 v{t+6}, 255, v{t+6}")
        a(f"v_add_u32 v{V_AW+Tn}, v{t+4}, v{t+6}")
    a(f"v_min_u32 v{t+6}, 2, v{t+2}")
    a(f"v_mul_u32_u24 v{t+6}, 80, v{t+6}")
    a(f"v_add3_u32 v{t+6}, v{t+6}, v{t+3}, s{S_T1}")
    a(f"v_add_u32 v{t+6}, 32, v{t+6}")
    a(f"v_and_b32 v{t+6}, 255, v{t+6}")
    a(f"v_add_u32 v{V_AW+6}, v{t+4}, v{t+6}")
    a(f"v_and_b32 v{t}, 15, v{L}")
    a(f"v_lshrrev_b32 v{t+1}, 4, v{L}")
    a(f"v_and_b32 v{t+2}, 1, v{t+1}")
    a(f"v_lshl_add_u32 v{t+2}, v{t+2}, 4, v{t}")
    a(f"v_lshrrev_b32 v{t+3}, 2, v{t}")
    a(f"v_lshrrev_b32 v{t+4}, 3, v{t}")
    a(f"v_xor_b32 v{t+3}, v{t+3}, v{t+4}")
    a(f"v_lshrrev_b32 v{t+4}, 1, v{t+1}")
    a(f"v_xor_b32 v{t+3}, v{t+3}, v{t+4}")
    a(f"v_and_b32 v{t+3}, 1, v{t+3}")
    a(f"v_lshlrev_b32 v{t+3}, 4, v{t+3}")
    a(f"v_lshl_add_u32 v{t+3}, v{t+2}, 5, v{t+3}")
    a(f"s_mul_i32 s{S_T0}, s{S_WID}, {2*TILE}")
    a(f"s_add_u32 s{S_T0}, s{S_T0}, {KV_OWN}")
    a(f"s_mul_i32 s{S_T1}, s{S_WID}, {2*QTILE}")
    a(f"s_add_u32 s{S_T1}, s{S_T1}, {Q_BASE}")
    a(f"v_add_u32 v{vEK}, s{S_T0}, v{t+3}")
    a(f"v_add_u32 v{vEQ}, s{S_T1}, v{t+3}")
    a(f"v_mul_u32_u24 v{t+4}, 72, v{t}")
    a(f"v_lshl_add_u32 v{t+5}, v{t+1}, 3, v{t+4}")
    a(f"v_add_u32 v{t+5}, 2304, v{t+5}")
    a(f"v_add_u32 v{vEV}, s{S_T0}, v{t+5}")
    a(f"v_lshlrev_b32 v{t+5}, 3, v{t}")
    a(f"v_add_u32 v{t+5}, 2048, v{t+5}")
    a(f"v_add_u32 v{t+6}, s{S_T1}, v{t+5}")
    a(f"v_add_u32 v{t+7}, s{S_T0}, v{t+5}")
    a(f"v_add_u32 v{t+4}, {2304+32}, v{t+4}")
    a(f"v_add_u32 v{t+4}, s{S_T0}, v{t+4}")
    a(f"v_mov_b32 v{vDr}, 128")
    a(f"v_mov_b32 v{vDt}, {TILE}")
    a(f"v_mov_b32 v{vF}, 1.0")
    a(f"v_mov_b32 v{vE6}, v{t+7}")
    a(f"v_cmp_eq_u32 vcc, 0, v{t+1}")
    a(f"v_mov_b32 v{t+5}, {QTILE}")
    a(f"v_mov_b32 v{vC}, {f32bits(QSCALE):#x}")
    a(f"v_cndmask_b32 v{vE6}, v{vE6}, v{t+6}, vcc")
    a(f"v_cndmask_b32 v{vDt}, v{vDt}, v{t+5}, vcc")
    a(f"v_cndmask_b32 v{vF}, v{vF}, v{vC}, vcc")
    a(f"v_cmp_eq_u32 vcc, 2, v{t+1}")
    a(f"v_mov_b32 v{t+5}, 1152")
    a(f"v_mov_b32 v{vC+1}, v{vC}")
    a(f"v_cndmask_b32 v{vE6}, v{vE6}, v{t+4}, vcc")
    a(f"v_cndmask_b32 v{vDr}, v{vDr}, v{t+5}, vcc")
    a(f"v_mov_b32 v{vF+1}, v{vF}")
    a("s_waitcnt lgkmcnt(0)")
    if 'nocp' not in exp:
        a(f"s_cmp_lg_u32 s{S_WID}, 3")
        a("s_cbranch_scc1 L_NOCP")
        a(f"s_getpc_b64 s[{S_RET}:{S_RET+1}]")
        a.lab("L_PCREF")
        a(f"s_sub_u32 s{S_RET}, s{S_RET}, L_PCREF-{NAME}_kernel")
        a(f"s_subb_u32 s{S_RET+1}, s{S_RET+1}, 0")
        a(f"s_mul_i32 s{S_T0}, s{S_I}, {5*128}")
        a(f"v_lshlrev_b32 v{t}, 7, v{L}")
        a(f"v_add_u32 v{t}, s{S_T0}, v{t}")
        a(f"s_mov_b32 s{S_T1}, L_END-{NAME}_kernel")
        a(f"v_cmp_gt_u32 vcc, s{S_T1}, v{t}")
        a(f"s_and_b64 vcc, vcc, 31")
        a(f"s_and_saveexec_b64 s[{S_SAVE}:{S_SAVE+1}], vcc")
        a("s_cbranch_execz L_NOCP2")
        a(f"global_load_dword v{V_TL}, v{t}, s[{S_RET}:{S_RET+1}]")
        a.lab("L_NOCP2")
        rest_exec()
        a.lab("L_NOCP")
    a(f"s_cmp_lg_u32 s{S_WID}, 0")
    a("s_cbranch_scc1 L_NOG0")
    a(f"s_lshl_b32 s{S_T0}, s{S_IDX}, 8")
    a(f"s_add_u32 s{S_T0}, s{S_T0}, {WS_FLAG}")
    a(f"s_lshl_b32 s{S_T1}, s{S_GRP}, 12")
    a(f"s_add_u32 s{S_T1}, s{S_T1}, {WS_OF}")
    a(f"v_mov_b32 v{t}, 0")
    a(f"buffer_load_dword v{V_TG}, v{t}, {WS}, s{S_T0} offen sc1")
    a(f"s_sub_u32 s{S_T0}, s{S_T0}, 256")
    a(f"s_max_u32 s{S_T0}, s{S_T0}, {WS_FLAG}")
    a(f"buffer_load_dword v{V_TG+1}, v{t}, {WS}, s{S_T0} offen sc1")
    a(f"buffer_load_dword v{V_TG+2}, v{t}, {WS}, s{S_T1} offen sc1")
    a.lab("L_NOG0")
    for i in range(112):
        a(f"v_mov_b32 v{V_ACC+i}, 0")
    emit_masks()
    emit_p2_patterns()
    a(f"v_mov_b32 v{t+2}, 0x3f803f80")
    a(f"v_mov_b32 v{t+3}, 0x3f803f80")
    a(f"v_mul_u32_u24 v{t+4}, 576, v{L}")
    a(f"v_add_u32 v{t+4}, {MISC}, v{t+4}")
    save_exec(15)
    a(f"ds_write_b64 v{t+4}, v[{t+2}:{t+3}]")
    rest_exec()
    a(f"s_cmp_lg_u32 s{S_WID}, 0")
    a("s_cbranch_scc1 L_NOG1")
    a("s_waitcnt vmcnt(0)")
    for i in range(3): a(f"v_add_u32 v{V_TG+i}, {TAG_INC:#x}, v{V_TG+i}")
    a(f"v_mov_b32 v{V_TG+3}, 0")
    a(f"v_mov_b32 v{t+4}, {TAGS_LDS}")
    save_exec(1)
    a(f"ds_write_b128 v{t+4}, v[{V_TG}:{V_TG+3}]")
    for i in range(4): a(f"v_mov_b32 v{V_TG+i}, 0")
    a(f"ds_write_b128 v{t+4}, v[{V_TG}:{V_TG+3}] offset:16")
    rest_exec()
    a.lab("L_NOG1")
    a("s_waitcnt lgkmcnt(0)")
    a("s_barrier")
    if "tsh" not in exp and "tsj" not in exp: ts(1)
    def reads(setb, ks):
        xs = [f"ds_read_b128 v[{setb+4*mt}:{setb+4*mt+3}], v{V_AX+ks} offset:{mt*2048}" for mt in range(4)]
        ws = []
        for Tn in range(7):
            b = setb + 16 + 4*Tn
            ws.append(f"ds_read_b64_tr_b16 v[{b}:{b+1}], v{V_AW+Tn} offset:{ks*8192}")
            ws.append(f"ds_read_b64_tr_b16 v[{b+2}:{b+3}], v{V_AW+Tn} offset:{ks*8192+1024}")
        return [xs[0], ws[0], ws[1], xs[1], ws[2], ws[3], xs[2], ws[4], ws[5], xs[3]] + ws[6:]
    def mfmas(setb):
        m = []
        for Tn in range(7):
            for mt in range(4):
                d = V_ACC + (mt*7+Tn)*4
                m.append(f"v_mfma_f32_16x16x32_bf16 v[{d}:{d+3}], v[{setb+16+4*Tn}:{setb+16+4*Tn+3}], v[{setb+4*mt}:{setb+4*mt+3}], v[{d}:{d+3}]")
        return m
    def interleave(ms, extra, per=1):
        ri = 0
        for i, m in enumerate(ms):
            a(m)
            for _ in range(per):
                if ri < len(extra): a(extra[ri]); ri += 1
        while ri < len(extra):
            a(extra[ri]); ri += 1
    for i in range(4): a(f"v_mov_b32 v{V_TG+i}, -1")
    a(f"v_lshlrev_b32 v{V_TL+1}, 4, v{L}")
    a(f"s_lshl_b32 s{S_XB}, s{S_GRP}, 18")
    a(f"s_add_u32 s{S_XB}, s{S_XB}, {WS_O}")
    a(f"s_lshl_b32 s{S_T0}, s{S_WID}, 16")
    a(f"s_add_u32 s{S_XB}, s{S_XB}, s{S_T0}")
    a(f"s_lshl_b32 s{S_T0}, s{S_HP}, 10")
    a(f"s_add_u32 s{S_XB}, s{S_XB}, s{S_T0}")
    a(f"s_lshl_b32 s{S_WB}, s{S_GRP}, 15")
    a(f"s_add_u32 s{S_WB}, s{S_WB}, {WS_OR}")
    a(f"s_lshl_b32 s{S_T0}, s{S_HP}, 1")
    a(f"s_and_b32 s{S_T1}, s{S_WID}, 1")
    a(f"s_add_u32 s{S_T0}, s{S_T0}, s{S_T1}")
    a(f"s_lshl_b32 s{S_T0}, s{S_T0}, 10")
    a(f"s_add_u32 s{S_WB}, s{S_WB}, s{S_T0}")
    for rd in reads(V_SET0, 0): a(rd)
    a(f"s_mov_b32 s{S_K}, 0")
    a(f"s_mov_b32 s{S_SB}, 0")
    if 'tb' in exp: a(f"v_mov_b32 v{V_TL}, 0")
    a.lab("L_GEMM")
    a(f"s_cmp_lt_u32 s{S_K}, 7")
    a("s_cbranch_scc1 L_GEMM_NC")
    a(f"buffer_store_dwordx4 v[{V_TG}:{V_TG+3}], v{V_TL+1}, {WS}, s{S_XB} offen sc1")
    a(f"s_add_u32 s{S_XB}, s{S_XB}, 16384")
    a(f"buffer_store_dwordx4 v[{V_TG}:{V_TG+3}], v{V_TL+1}, {WS}, s{S_XB} offen sc1")
    a(f"s_add_u32 s{S_XB}, s{S_XB}, 16384")
    a(f"s_cmp_eq_u32 s{S_K}, 8")
    a("s_cbranch_scc1 L_GEMM_NC")
    a(f"buffer_store_dwordx4 v[{V_TG}:{V_TG+3}], v{V_TL+1}, {WS}, s{S_WB} offen sc1")
    a.lab("L_GEMM_NC")
    a("s_waitcnt lgkmcnt(0)")
    if 'tb' in exp:
        a(f"s_sub_u32 s92, s92, s70")
        a(f"s_mov_b32 m0, s{S_K}")
        a("s_nop 4")
        a(f"v_writelane_b32 v{V_TL}, s92, m0")
    sal = [f"s_add_u32 s{S_SB}, s{S_SB}, 1", f"s_cmp_eq_u32 s{S_SB}, 3", f"s_mov_b32 s{S_T0}, {STAGE}",
           f"s_cselect_b32 s{S_T0}, {(-2*STAGE) & 0xffffffff}, s{S_T0}", f"s_cselect_b32 s{S_SB}, 0, s{S_SB}"]
    interleave(mfmas(V_SET0), reads(V_SET1, 1) + sal)
    a("s_waitcnt lgkmcnt(0)")
    a("s_barrier")
    if 'tb' in exp: a("s_memtime s[92:93]")
    rd = reads(V_SET0, 0)
    adds = [f"v_add_u32 v{V_AX+i}, s{S_T0}, v{V_AX+i}" for i in range(9)]
    ex = [adds[0], adds[2], rd[0], rd[1], rd[2], adds[3], rd[3], rd[4], rd[5], adds[4], rd[6], rd[7], rd[8], rd[9],
          adds[5], rd[10], rd[11], adds[6], rd[12], rd[13], adds[7], rd[14], rd[15], adds[8], rd[16], rd[17], adds[1],
          f"s_add_u32 s{S_K}, s{S_K}, 1", f"s_cmp_lt_u32 s{S_K}, 9"]
    ms = mfmas(V_SET1)
    ri = 0
    for i, m in enumerate(ms):
        a(m)
        n = 2 if i < 6 else 1
        for _ in range(n):
            if ri < len(ex): a(ex[ri]); ri += 1
    assert ri == len(ex)
    a("s_cbranch_scc1 L_GEMM")
    if "tsh" not in exp and "tsj" not in exp: ts(2)
    a.c("phase-1 epilogue")
    acc = lambda mt, Tn: V_ACC + (mt*7+Tn)*4
    SC = 84
    def qk_cvt(Tn, R0):
        for p in range(2):
            R = R0 + 4*p
            da, db = acc(2*p, Tn), acc(2*p+1, Tn)
            a(f"v_cvt_pk_bf16_f32 v{R}, v{da}, v{da+1}")
            a(f"v_cvt_pk_bf16_f32 v{R+2}, v{db}, v{db+1}")
            a(f"v_cvt_pk_bf16_f32 v{R+1}, v{da+2}, v{da+3}")
            a(f"v_cvt_pk_bf16_f32 v{R+3}, v{db+2}, v{db+3}")
    def qk_swap(R):
        a(f"v_permlane16_swap_b32 v{R}, v{R+2}")
        a(f"v_permlane16_swap_b32 v{R+1}, v{R+3}")
    a("s_nop 3")
    qk_cvt(2, SC); qk_cvt(3, SC+8)
    vw = []
    for Tn in (4, 5):
        for mt in range(4):
            R = SC + 16 + ((Tn-4)*4+mt)*2
            d = acc(mt, Tn)
            a(f"v_cvt_pk_bf16_f32 v{R}, v{d}, v{d+1}")
            a(f"v_cvt_pk_bf16_f32 v{R+1}, v{d+2}, v{d+3}")
            vw.append(f"ds_write_b64 v{vEV}, v[{R}:{R+1}] offset:{(mt>>1)*TILE + (mt&1)*1152 + (40 if Tn==5 else 0)}")
    kw = [(SC+4*q, (q & 1)*TILE + (q >> 1)*1024) for q in range(4)]
    for q, (R, off) in enumerate(kw):
        qk_swap(R)
        a(vw[2*q]); a(vw[2*q+1])
    for mt in range(4):
        d = acc(mt, 6)
        a(f"v_pk_mul_f32 v[{d}:{d+1}], v[{d}:{d+1}], v[{vF}:{vF+1}]")
        a(f"v_pk_mul_f32 v[{d+2}:{d+3}], v[{d+2}:{d+3}], v[{vF}:{vF+1}]")
        R, off = kw[mt]
        a(f"ds_write_b128 v{vEK}, v[{R}:{R+3}] offset:{off}")
    R6 = SC + 32
    a(f"v_add_u32 v{t}, v{vE6}, v{vDr}")
    a(f"v_add_u32 v{t+1}, v{vE6}, v{vDt}")
    for mt in range(4):
        d = acc(mt, 6)
        a(f"v_cvt_pk_bf16_f32 v{R6+2*mt}, v{d}, v{d+1}")
        a(f"v_cvt_pk_bf16_f32 v{R6+2*mt+1}, v{d+2}, v{d+3}")
    a(f"v_add_u32 v{t+2}, v{t+1}, v{vDr}")
    a(f"s_mov_b64 s[{S_SAVE}:{S_SAVE+1}], exec")
    a(f"s_mov_b32 exec_hi, 0x0000ffff")
    a(f"ds_write_b64 v{vE6}, v[{R6}:{R6+1}]")
    a(f"ds_write_b64 v{t}, v[{R6+2}:{R6+3}]")
    a(f"ds_write_b64 v{t+1}, v[{R6+4}:{R6+5}]")
    a(f"ds_write_b64 v{t+2}, v[{R6+6}:{R6+7}]")
    rest_exec()
    for mt in range(4):
        for Tn in (0, 1):
            d = acc(mt, Tn)
            a(f"v_pk_mul_f32 v[{d}:{d+1}], v[{d}:{d+1}], v[{vC}:{vC+1}]")
            a(f"v_pk_mul_f32 v[{d+2}:{d+3}], v[{d+2}:{d+3}], v[{vC}:{vC+1}]")
    if 'tse' in exp: ts(5, True)
    a("s_waitcnt lgkmcnt(0)")
    if 'tse' in exp: ts(6, True)
    a("s_barrier")
    if 'tse' in exp: ts(7, True)
    qk_cvt(0, SC); qk_cvt(1, SC+8)
    for r in range(8): a(f"v_mov_b32 v{OA+r}, 0")
    for q in range(4):
        R = SC + 4*q
        qk_swap(R)
        for r in range(4): a(f"v_mov_b32 v{OA+8+4*q+r}, 0") if q < 2 else a(f"v_mov_b32 v{OB+4*(q-2)+r}, 0")
        a(f"ds_write_b128 v{vEQ}, v[{R}:{R+3}] offset:{(q & 1)*QTILE + (q >> 1)*1024}")
    for r in range(8, 16): a(f"v_mov_b32 v{OB+r}, 0")

    a.lab("L_P2")
    if 'tse' in exp: ts(8, True)
    a(f"v_mov_b32 v{t}, {TAGS_LDS}")
    a(f"ds_read_b128 v[{V_TG}:{V_TG+3}], v{t}")
    a("s_waitcnt lgkmcnt(0)")
    a("s_barrier")
    ts(3)
    if debug_stage == 1:
        a(f"s_lshl_b32 s{S_T0}, s{S_IDX}, 16")
        a(f"v_lshlrev_b32 v{t}, 4, v0")
        for i in range(7):
            a(f"v_add_u32 v{t+1}, {KV_OWN + i*8192}, v{t}")
            a(f"ds_read_b128 v[40:43], v{t+1}")
            a("s_waitcnt lgkmcnt(0)")
            a(f"v_add_u32 v{t+2}, {i*8192}, v{t}")
            a(f"buffer_store_dwordx4 v[40:43], v{t+2}, {WS}, s{S_T0} offen")
            a("s_waitcnt vmcnt(0)")
        a("s_branch L_FIN")
    if debug_stage == 9:
        a("s_branch L_FIN")
    if debug_stage not in (1, 9):
        phase2(a, debug_stage, ts, exp, save_exec, rest_exec)
        phase3(a, debug_stage, ts, exp, save_exec, rest_exec)
    a.lab("L_FIN")
    if 'hdbg' in exp:
        a("s_waitcnt vmcnt(0) lgkmcnt(0)")
        a("s_memrealtime s[94:95]")
        a(f"s_load_dwordx2 s[{S_X}:{S_X+1}], s[0:1], 56")
        a("s_waitcnt lgkmcnt(0)")
        a(f"s_cmp_lg_u32 s{S_WID}, 4")
        a("s_cbranch_scc1 L_END")
        a(f"s_mov_b32 s{S_X+2}, 256")
        a(f"s_mov_b32 s{S_X+3}, 0x00020000")
        a("s_mov_b64 exec, 1")
        a("v_mov_b32 v2, 0")
        a("s_not_b32 s33, s70")
        a("v_mov_b32 v3, s33")
        a(f"buffer_atomic_umax v3, v2, s[{S_X}:{S_X+3}], 0 offen offset:0")
        a("v_mov_b32 v3, s70")
        a(f"buffer_atomic_umax v3, v2, s[{S_X}:{S_X+3}], 0 offen offset:4")
        for k, i in enumerate((3, 4, 5, 7, 8, 10, 9, 11, 12)):
            a(f"v_mov_b32 v{4+k}, s{70+2*i}")
            a(f"buffer_atomic_umax v{4+k}, v2, s[{S_X}:{S_X+3}], 0 offen offset:{8+4*k}")
        a("s_waitcnt vmcnt(0)")
        a("s_branch L_END")
    if timing:
        a("s_waitcnt vmcnt(0) lgkmcnt(0)")
        a(f"{'s_memrealtime' if ('abs' in exp or 'hdbg' in exp) else 's_memtime'} s[94:95]")
        a("s_waitcnt lgkmcnt(0)")
        a(f"s_lshl_b32 s{S_T0}, s2, 3")
        a(f"s_add_u32 s{S_T0}, s{S_T0}, s{S_WID}")
        a(f"s_lshl_b32 s{S_T0}, s{S_T0}, 6")
        a(f"s_add_u32 s{S_T0}, s{S_T0}, {TIMING_OFF}")
        for i in range(13):
            a(f"s_sub_u32 s{S_T1}, s{70+2*i}, s70" if (i and 'abs' not in exp) else f"s_mov_b32 s{S_T1}, s{70+2*i}")
            a(f"s_cmp_eq_u32 s{70+2*i}, 0")
            a(f"s_cselect_b32 s{S_T1}, 0, s{S_T1}")
            a(f"v_mov_b32 v{40+i}, s{S_T1}")
        if 'tb' in exp:
            a(f"v_lshlrev_b32 v2, 2, v{V_LANE}")
            a(f"s_add_u32 s{S_T1}, s{S_T0}, {1<<20}")
            a(f"s_mov_b64 exec, 0xffff")
            a(f"buffer_store_dword v{V_TL}, v2, {WS}, s{S_T1} offen")
        a(f"v_mov_b32 v2, 0")
        a(f"s_mov_b64 exec, 1")
        for i in range(3):
            a(f"buffer_store_dwordx4 v[{40+4*i}:{43+4*i}], v2, {WS}, s{S_T0} offen offset:{16*i}")
        a(f"buffer_store_dword v52, v2, {WS}, s{S_T0} offen offset:48")
        a("s_waitcnt vmcnt(0)")
    a.lab("L_END")
    a("s_endpgm")
    a(f""".section .rodata,"a"
.p2align 6
.amdhsa_kernel {NAME}_kernel
  .amdhsa_next_free_vgpr 256
  .amdhsa_next_free_sgpr 102
  .amdhsa_accum_offset 256
  .amdhsa_group_segment_fixed_size 0
  .amdhsa_kernarg_size 72
  .amdhsa_user_sgpr_count 2
  .amdhsa_user_sgpr_kernarg_segment_ptr 1
  .amdhsa_system_sgpr_workgroup_id_x 1
.end_amdhsa_kernel""")
    return a.text()

WS = f"s[{S_WS}:{S_WS+3}]"

def spin_poll(a, name, check_lines, load_line, limit=2000000, first_done=False):
    a(f"s_mov_b32 s{S_CNT}, 0")
    if first_done: a(f"s_branch {name}_W")
    a.lab(name)
    a(load_line)
    a.lab(name + "_W")
    a(f"s_add_u32 s{S_CNT}, s{S_CNT}, 1")
    a("s_waitcnt vmcnt(0)")
    for l in check_lines: a(l)
    a(f"s_cbranch_scc1 {name}_OK")
    a(f"s_cmp_lt_u32 s{S_CNT}, {limit}")
    a(f"s_cbranch_scc1 {name}")
    a.lab(name + "_OK")

def lds_inc(a, addr, save_exec, rest_exec, rtn=None):
    t = T
    a(f"v_mov_b32 v{t}, {addr}")
    a(f"v_mov_b32 v{t+1}, 1")
    save_exec(1)
    if rtn is None: a(f"ds_add_u32 v{t}, v{t+1}")
    else: a(f"ds_add_rtn_u32 v{rtn}, v{t}, v{t+1}")
    rest_exec()

def lds_wait(a, name, addr, val):
    t = T
    a(f"v_mov_b32 v{t}, {addr}")
    a(f"s_mov_b32 s{S_CNT}, 0")
    a.lab(name)
    a(f"ds_read_b32 v{t+1}, v{t}")
    a(f"s_add_u32 s{S_CNT}, s{S_CNT}, 1")
    a("s_waitcnt lgkmcnt(0)")
    a(f"v_readfirstlane_b32 s{S_T0}, v{t+1}")
    a(f"s_cmp_ge_u32 s{S_T0}, {val}")
    a(f"s_cbranch_scc1 {name}_OK")
    a(f"s_cmp_lt_u32 s{S_CNT}, 20000000")
    a(f"s_cbranch_scc1 {name}")
    a.lab(name + "_OK")

def hook_point(a, tag):
    a(f"s_add_u32 s{S_U}, s{S_U}, 1")
    a(f"s_cmp_lg_u32 s{S_U}, s{S_HOOK}")
    a(f"s_cbranch_scc1 {tag}")
    a(f"s_call_b64 s[{S_RET2}:{S_RET2+1}], L_HOOK")
    a.lab(tag)

def run_code(a, name, QM, QR, O, exp):
    cnt = [0]
    def qk1(creg):
        c = "0" if creg is None else f"v[{creg}:{creg+15}]"
        a(f"v_mfma_f32_32x32x16_bf16 v[{VS}:{VS+15}], v[{VKF}:{VKF+3}], v[{QM}:{QM+3}], {c}")
    def qk2():
        a(f"v_mfma_f32_32x32x16_bf16 v[{VS}:{VS+15}], v[{VKR}:{VKR+3}], v[{QR}:{QR+3}], v[{VS}:{VS+15}]")
    def pv(V, P):
        a(f"v_mfma_f32_32x32x16_bf16 v[{O}:{O+15}], v[{V}:{V+3}], v[{P}:{P+3}], v[{O}:{O+15}]")
    def kread():
        a(f"ds_read_b128 v[{VKF}:{VKF+3}], v{A_K}")
        a(f"ds_read_b64 v[{VKR}:{VKR+1}], v{A_KR}")
    def kstep():
        a(f"v_add_u32 v{A_K}, v{ST_K}, v{A_K}")
        a(f"v_add_u32 v{A_KR}, v{ST_K}, v{A_KR}")
    def vread(V, off):
        a(f"ds_read_b64_tr_b16 v[{V}:{V+1}], v{A_V} offset:{off}")
        a(f"ds_read_b64_tr_b16 v[{V+2}:{V+3}], v{A_V} offset:{off+576}")
    def cvt(j): a(f"v_cvt_pk_bf16_f32 v{VP+j}, v{VE+2*j}, v{VE+2*j+1}")
    def ex(r): a(f"v_exp_f32 v{VE+r}, v{VS+r}")
    def unit(D):
        if 'pf' in exp: a("s_setprio 1" if 'pfi' not in exp else "s_setprio 0")
        for r in range(8): ex(r)
        for j in range(4): cvt(j)
        ex(8); ex(9)
        a("s_waitcnt lgkmcnt(0)")
        pv(VVA, VP)
        for r in range(10, 16): ex(r)
        if 'pf' in exp: a("s_setprio 0" if 'pfi' not in exp else "s_setprio 1")
        if D:
            qk1(V_MASK if D == "mask" else None)
            for j in range(4, 8): cvt(j)
            vread(VVA, 0)
            qk2()
            kstep()
            kread()
            pv(VVB, VP+4)
            vread(VVB, 1152)
            a(f"v_add_u32 v{A_V}, v{ST_V}, v{A_V}")
        else:
            a("s_nop 0")
            for j in range(4, 8): cvt(j)
            a("s_nop 1")
            pv(VVB, VP+4)
    a.lab(name)
    kread()
    a(f"s_cmp_eq_u32 s{S_N}, 1")
    a(f"s_cbranch_scc1 {name}_M1")
    kstep()
    a("s_waitcnt lgkmcnt(0)")
    qk1(None); qk2()
    vread(VVA, 0); kread(); vread(VVB, 1152)
    a(f"v_add_u32 v{A_V}, v{ST_V}, v{A_V}")
    a(f"s_sub_u32 s{S_N}, s{S_N}, 2")
    a.lab(name + "_BT")
    a(f"s_cmp_eq_u32 s{S_N}, 0")
    a(f"s_cbranch_scc1 {name}_MK0")
    a(f"s_sub_u32 s{S_E}, s{S_HOOK}, s{S_U}")
    a(f"s_min_u32 s{S_E}, s{S_E}, s{S_N}")
    a(f"s_sub_u32 s{S_N}, s{S_N}, s{S_E}")
    a(f"s_add_u32 s{S_U}, s{S_U}, s{S_E}")
    a(f"s_sub_u32 s{S_E}, s{S_E}, 1")
    a.lab(name + "_LP")
    unit("plain")
    a(f"s_sub_u32 s{S_E}, s{S_E}, 1")
    a("s_nop 1")
    a(f"s_cbranch_scc0 {name}_LP")
    a(f"s_cmp_lg_u32 s{S_U}, s{S_HOOK}")
    a(f"s_cbranch_scc1 {name}_BT")
    a(f"s_call_b64 s[{S_RET2}:{S_RET2+1}], L_HOOK")
    a(f"s_branch {name}_BT")
    a.lab(name + "_MK0")
    a("s_nop 3")
    a.lab(name + "_MK")
    unit("mask")
    hook_point(a, f"{name}_H1")
    a("s_nop 1")
    a.lab(name + "_FN")
    unit(None)
    hook_point(a, f"{name}_H2")
    a(f"s_setpc_b64 s[{S_RET}:{S_RET+1}]")
    a.lab(name + "_M1")
    a("s_waitcnt lgkmcnt(0)")
    qk1(V_MASK); qk2()
    vread(VVA, 0); vread(VVB, 1152)
    a("s_nop 7")
    a(f"s_branch {name}_FN")

def set_run(a, region, tile_sreg, n_lines, step):
    a(f"s_mul_i32 s{S_T0}, s{tile_sreg}, {TILE}" if tile_sreg is not None else f"s_mov_b32 s{S_T0}, 0")
    a(f"s_add_u32 s{S_T0}, s{S_T0}, {region}")
    a(f"v_add_u32 v{A_K}, s{S_T0}, v{B_K}")
    a(f"v_add_u32 v{A_KR}, s{S_T0}, v{B_KR}")
    a(f"v_and_b32 v{A_V}, s{S_T0}, v{MK_V}")
    a(f"v_add_u32 v{A_V}, v{B_V}, v{A_V}")
    a(f"v_mov_b32 v{ST_K}, {step & 0xffffffff:#x}")
    a(f"v_and_b32 v{ST_V}, v{ST_K}, v{MK_V}")
    for l in n_lines: a(l)

F_MD, F_MF, F_M = 190, 206, 222
S_FQ, S_FT, S_FK, S_FP, S_FI2 = 32+12, 45, 46, 47, 48

def safety_check(a, O, isB, qb_sreg, tag):
    t = T
    a(f"v_max3_f32 v{t}, |v{O}|, |v{O+1}|, |v{O+2}|")
    for k in range(3, 11, 2): a(f"v_max3_f32 v{t}, v{t}, |v{O+k}|, |v{O+k+1}|")
    a(f"v_max_f32 v{t}, v{t}, |v{O+11}|".replace("v_max_f32", "v_max_f32_e64"))
    a(f"v_mov_b32 v{t+1}, 0x21800000")
    a(f"v_mov_b32 v{t+2}, 0x5d800000")
    a(f"v_mov_b32 v{t+3}, 0x7f000000")
    a(f"v_cmp_nge_f32 vcc, v{O+12}, v{t+1}")
    a(f"v_cmp_nle_f32 s[{S_BAD}:{S_BAD+1}], v{O+12}, v{t+2}")
    a(f"s_or_b64 vcc, vcc, s[{S_BAD}:{S_BAD+1}]")
    a(f"v_cmp_nlt_f32 s[{S_BAD}:{S_BAD+1}], v{t}, v{t+3}")
    a(f"s_or_b64 vcc, vcc, s[{S_BAD}:{S_BAD+1}]")
    a("s_cmp_eq_u64 vcc, 0")
    a(f"s_cbranch_scc1 L_SAFE{tag}")
    a(f"s_mov_b32 s{S_FQ}, s{qb_sreg}")
    if isB:
        for r in range(8): a(f"v_swap_b32 v{QA_M+r}, v{QB_M+r}")
        for r in range(16): a(f"v_swap_b32 v{OA+r}, v{OB+r}")
    a(f"s_call_b64 s[{S_RET}:{S_RET+1}], L_FB")
    if isB:
        for r in range(8): a(f"v_swap_b32 v{QA_M+r}, v{QB_M+r}")
        for r in range(16): a(f"v_swap_b32 v{OA+r}, v{OB+r}")
    a.lab(f"L_SAFE{tag}")

def fallback_code(a):
    t = T; L = V_LANE
    a.lab("L_FB")
    a(f"v_and_b32 v{t}, 31, v{L}")
    a(f"v_lshrrev_b32 v{t+1}, 5, v{L}")
    a(f"v_lshlrev_b32 v{t+1}, 2, v{t+1}")
    a(f"v_sub_u32 v{t}, v{t}, v{t+1}")
    a(f"v_mov_b32 v{t+1}, {NEG:#x}")
    for r in range(16):
        jj = (r & 3) + 8*(r >> 2)
        a(f"v_cmp_le_i32 vcc, {jj}, v{t}")
        a("s_nop 1")
        a(f"v_cndmask_b32_e64 v{F_MD+r}, v{t+1}, 0, vcc")
        a(f"v_sub_f32 v{F_MF+r}, v{t+1}, v{F_MD+r}")
    a(f"v_mov_b32 v{F_M}, 0xff800000")
    a(f"s_mov_b32 s{S_FP}, 0")
    a.lab("L_FB_PASS")
    a(f"s_mov_b32 s{S_FI2}, 0")
    a.lab("L_FB_OWN")
    a(f"s_mul_i32 s{S_FT}, s{S_FI2}, {TILE}")
    a(f"s_add_u32 s{S_FT}, s{S_FT}, {KV_OWN}")
    a(f"s_cmp_eq_u32 s{S_FI2}, s{S_FQ}")
    a(f"s_cselect_b32 s{S_FK}, 1, 0")
    a(f"s_call_b64 s[{S_RET2}:{S_RET2+1}], L_FB_TILE")
    a(f"s_add_u32 s{S_FI2}, s{S_FI2}, 1")
    a(f"s_cmp_le_u32 s{S_FI2}, s{S_FQ}")
    a("s_cbranch_scc1 L_FB_OWN")
    a(f"s_cmp_eq_u32 s{S_S}, 0")
    a("s_cbranch_scc1 L_FB_PEND")
    a(f"s_mov_b32 s{S_FI2}, s{S_FQ}")
    a.lab("L_FB_HALO")
    a(f"s_mul_i32 s{S_FT}, s{S_FI2}, {TILE}")
    a(f"s_add_u32 s{S_FT}, s{S_FT}, {KV_HALO}")
    a(f"s_cmp_eq_u32 s{S_FI2}, s{S_FQ}")
    a(f"s_cselect_b32 s{S_FK}, 2, 0")
    a(f"s_call_b64 s[{S_RET2}:{S_RET2+1}], L_FB_TILE")
    a(f"s_add_u32 s{S_FI2}, s{S_FI2}, 1")
    a(f"s_cmp_le_u32 s{S_FI2}, 7")
    a("s_cbranch_scc1 L_FB_HALO")
    a.lab("L_FB_PEND")
    a(f"s_cmp_eq_u32 s{S_FP}, 1")
    a("s_cbranch_scc1 L_FB_DONE")
    a(f"v_mov_b32 v{t}, v{F_M}")
    a("s_nop 1")
    a(f"v_permlane32_swap_b32 v{F_M}, v{t}")
    a("s_nop 1")
    a(f"v_max_f32 v{F_M}, v{F_M}, v{t}")
    for r in range(16): a(f"v_mov_b32 v{OA+r}, 0")
    a(f"s_mov_b32 s{S_FP}, 1")
    a("s_branch L_FB_PASS")
    a.lab("L_FB_DONE")
    a("s_nop 15")
    a(f"s_setpc_b64 s[{S_RET}:{S_RET+1}]")
    a.lab("L_FB_TILE")
    a(f"v_add_u32 v{A_K}, s{S_FT}, v{B_K}")
    a(f"v_add_u32 v{A_KR}, s{S_FT}, v{B_KR}")
    a(f"v_and_b32 v{A_V}, s{S_FT}, v{MK_V}")
    a(f"v_add_u32 v{A_V}, v{B_V}, v{A_V}")
    a(f"ds_read_b128 v[{VKF}:{VKF+3}], v{A_K}")
    a(f"ds_read_b64 v[{VKR}:{VKR+1}], v{A_KR}")
    a(f"ds_read_b64_tr_b16 v[{VVA}:{VVA+1}], v{A_V}")
    a(f"ds_read_b64_tr_b16 v[{VVA+2}:{VVA+3}], v{A_V} offset:576")
    a(f"ds_read_b64_tr_b16 v[{VVB}:{VVB+1}], v{A_V} offset:1152")
    a(f"ds_read_b64_tr_b16 v[{VVB+2}:{VVB+3}], v{A_V} offset:1728")
    a("s_waitcnt lgkmcnt(0)")
    a(f"v_mfma_f32_32x32x16_bf16 v[{VS}:{VS+15}], v[{VKF}:{VKF+3}], v[{QA_M}:{QA_M+3}], 0")
    a(f"v_mfma_f32_32x32x16_bf16 v[{VS}:{VS+15}], v[{VKR}:{VKR+3}], v[{QA_R}:{QA_R+3}], v[{VS}:{VS+15}]")
    a("s_nop 15")
    a(f"s_cmp_eq_u32 s{S_FK}, 0")
    a("s_cbranch_scc1 L_FB_NM")
    a(f"s_cmp_eq_u32 s{S_FK}, 1")
    a("s_cbranch_scc0 L_FB_FM")
    for r in range(16): a(f"v_add_f32 v{VS+r}, v{VS+r}, v{F_MD+r}")
    a("s_branch L_FB_NM")
    a.lab("L_FB_FM")
    for r in range(16): a(f"v_add_f32 v{VS+r}, v{VS+r}, v{F_MF+r}")
    a.lab("L_FB_NM")
    a(f"s_cmp_eq_u32 s{S_FP}, 0")
    a("s_cbranch_scc0 L_FB_P1")
    for r in range(0, 16, 2): a(f"v_max3_f32 v{F_M}, v{F_M}, v{VS+r}, v{VS+r+1}")
    a(f"s_setpc_b64 s[{S_RET2}:{S_RET2+1}]")
    a.lab("L_FB_P1")
    for r in range(16): a(f"v_sub_f32 v{VS+r}, v{VS+r}, v{F_M}")
    for r in range(16): a(f"v_exp_f32 v{VE+r}, v{VS+r}")
    a("s_nop 0")
    for j in range(8): a(f"v_cvt_pk_bf16_f32 v{VP+j}, v{VE+2*j}, v{VE+2*j+1}")
    a("s_nop 1")
    a(f"v_mfma_f32_32x32x16_bf16 v[{OA}:{OA+15}], v[{VVA}:{VVA+3}], v[{VP}:{VP+3}], v[{OA}:{OA+15}]")
    a(f"v_mfma_f32_32x32x16_bf16 v[{OA}:{OA+15}], v[{VVB}:{VVB+3}], v[{VP+4}:{VP+7}], v[{OA}:{OA+15}]")
    a("s_nop 7")
    a(f"s_setpc_b64 s[{S_RET2}:{S_RET2+1}]")

def finalize(a, O, qb_sreg, save_exec, rest_exec):
    t = T; R = VS
    a(f"v_rcp_f32 v{t+2}, v{O+12}")
    a(f"s_lshl_b32 s{S_T0}, s{qb_sreg}, 15")
    a(f"s_add_u32 s{S_T1}, s{S_T0}, s{S_OM}")
    a(f"s_lshl_b32 s{S_T0}, s{qb_sreg}, 7")
    a(f"s_add_u32 s{S_T2}, s{S_T0}, s{S_OR}")
    for r in range(12): a(f"v_mul_f32 v{O+r}, v{O+r}, v{t+2}")
    a(f"v_cvt_pk_bf16_f32 v{R}, v{O}, v{O+1}")
    a(f"v_cvt_pk_bf16_f32 v{R+1}, v{O+2}, v{O+3}")
    a(f"v_cvt_pk_bf16_f32 v{R+2}, v{O+4}, v{O+5}")
    a(f"v_cvt_pk_bf16_f32 v{R+3}, v{O+6}, v{O+7}")
    a(f"v_cvt_pk_bf16_f32 v{R+4}, v{O+8}, v{O+9}")
    a(f"v_cvt_pk_bf16_f32 v{R+5}, v{O+10}, v{O+11}")
    a(f"s_cmp_eq_u32 s{S_HEAD}, 0")
    a(f"s_cselect_b64 s[{S_SAVE}:{S_SAVE+1}], -1, 0")
    a(f"v_permlane32_swap_b32 v{R}, v{R+2}")
    a(f"v_permlane32_swap_b32 v{R+1}, v{R+3}")
    a(f"v_cndmask_b32_e64 v{R+4}, v{R+5}, v{R+4}, s[{S_SAVE}:{S_SAVE+1}]")
    a(f"buffer_store_dwordx4 v[{R}:{R+3}], v{V_OA1}, {WS}, s{S_T1} offen sc1")
    a(f"s_mov_b64 s[{S_SAVE}:{S_SAVE+1}], exec")
    a(f"s_mov_b32 exec_hi, 0")
    a(f"buffer_store_dword v{R+4}, v{V_OA2}, {WS}, s{S_T2} offen sc1")
    rest_exec()

def oflag(a, name, cnt_addr, flag_off, save_exec, rest_exec, after_store=None, last=7):
    t = T
    lds_inc(a, cnt_addr, save_exec, rest_exec, rtn=t+2)
    a("s_waitcnt lgkmcnt(0)")
    a(f"v_readfirstlane_b32 s{S_T0}, v{t+2}")
    a(f"s_cmp_lg_u32 s{S_T0}, {last}")
    a(f"s_cbranch_scc1 {name}")
    a(f"s_lshl_b32 s{S_T0}, s{S_HP}, 2")
    a(f"s_add_u32 s{S_T0}, s{S_T0}, s{S_OFS}")
    a(f"v_lshlrev_b32 v{t}, 7, v{V_LANE}")
    a(f"v_mov_b32 v{t+1}, s{S_TAGO}")
    save_exec("0xffff")
    a(f"buffer_store_dword v{t+1}, v{t}, {WS}, s{S_T0} offen offset:{flag_off} sc1")
    rest_exec()
    if after_store: after_store()
    a.lab(name)

def phase2(a, debug_stage, ts, exp, save_exec, rest_exec):
    t = T; L = V_LANE
    UH = (4, 6, 8)
    if 'hkA' in exp: UH = (3, 5, 7)
    if 'hkB' in exp: UH = (4, 6, 7)
    if 'hkC' in exp: UH = (5, 7, 8)
    UP = 15
    a.c("======== phase 2 ========")
    a(f"v_readfirstlane_b32 s{S_TAGOUT}, v{V_TG}")
    a(f"v_readfirstlane_b32 s{S_TAGIN}, v{V_TG+1}")
    a(f"v_readfirstlane_b32 s{S_TAGO}, v{V_TG+2}")
    a(f"v_bfe_u32 v{V_OA1}, v{L}, 4, 1")
    a(f"v_lshlrev_b32 v{V_OA1}, 14, v{V_OA1}")
    a(f"v_and_b32 v{t+4}, 15, v{L}")
    a(f"v_lshl_add_u32 v{V_OA1}, v{t+4}, 4, v{V_OA1}")
    a(f"v_lshrrev_b32 v{t+4}, 5, v{L}")
    a(f"v_lshl_add_u32 v{V_OA1}, v{t+4}, 8, v{V_OA1}")
    a(f"v_lshlrev_b32 v{V_OA2}, 2, v{L}")
    for (QM, QR, sreg) in ((QA_M, QA_R, S_M), (QB_M, QB_R, S_MB)):
        a(f"s_mul_i32 s{S_T0}, s{sreg}, {QTILE}")
        a(f"s_add_u32 s{S_T0}, s{S_T0}, {Q_BASE}")
        a(f"v_add_u32 v{t+2}, s{S_T0}, v{B_K}")
        a(f"v_add_u32 v{t+3}, s{S_T0}, v{B_KR}")
        a(f"ds_read_b128 v[{QM}:{QM+3}], v{t+2}")
        a(f"ds_read_b64 v[{QR}:{QR+1}], v{t+3}")
    a(f"s_cmp_eq_u32 s{S_HEAD}, 0")
    a(f"s_cselect_b32 s{S_T0}, -1, 0")
    a(f"s_cselect_b32 s{S_T1}, 0, -1")
    a(f"v_cmp_gt_u32 vcc, 32, v{L}")
    a(f"v_mov_b32 v{t}, s{S_T0}")
    a(f"v_mov_b32 v{t+1}, s{S_T1}")
    a(f"v_cndmask_b32_e64 v{t}, 0, v{t}, vcc")
    a(f"v_cndmask_b32_e64 v{t+1}, 0, v{t+1}, vcc")
    a(f"v_mov_b32 v{VKR+2}, 0")
    a(f"v_mov_b32 v{VKR+3}, 0")
    for QR in (QA_R, QB_R):
        a(f"v_mov_b32 v{QR+2}, 0")
        a(f"v_mov_b32 v{QR+3}, 0")
    a("s_waitcnt lgkmcnt(0)")
    for QR in (QA_R, QB_R):
        a(f"v_and_b32 v{QR}, v{QR}, v{t}")
        a(f"v_and_b32 v{QR+1}, v{QR+1}, v{t+1}")
    lds_inc(a, CNTQ, save_exec, rest_exec)
    a(f"s_mov_b32 s{S_U}, 0")
    a(f"s_mov_b32 s{S_HST}, 0")
    a(f"s_mov_b32 s{S_HOOK}, 2")
    a(f"s_mov_b32 s{S_HST}, 5")
    a(f"s_cmp_lt_u32 s{S_WID}, 4")
    a(f"s_cbranch_scc1 L_HS2")
    a(f"s_mov_b32 s{S_HST}, 0")
    a(f"s_mov_b32 s{S_HOOK}, {UH[0]}")
    a(f"s_cmp_eq_u32 s{S_S}, 7")
    a(f"s_cbranch_scc1 L_HS1")
    a(f"s_mul_i32 s{S_T1}, s{S_IDX}, 36864")
    for c, i in enumerate([3, 2, 1, 0]):
        a(f"s_add_u32 s{S_T2}, s{S_T1}, {i*4096}")
        a(f"buffer_store_dwordx4 v[{VH+20+4*c}:{VH+20+4*c+3}], v{V_PA}, {WS}, s{S_T2} offen sc1")
    a.lab("L_HS1")
    if 'noprio' not in exp and 'pf' not in exp: a("s_setprio 1")
    a.lab("L_HS2")
    ts(4)
    set_run(a, KV_OWN, None, [f"s_add_u32 s{S_N}, s{S_M}, 1"], TILE)
    a(f"s_call_b64 s[{S_RET}:{S_RET+1}], L_RUNA")
    set_run(a, KV_OWN, None, [f"s_sub_u32 s{S_N}, 8, s{S_M}"], TILE)
    a(f"s_call_b64 s[{S_RET}:{S_RET+1}], L_RUNB")
    ts(5)
    a(f"s_cmp_eq_u32 s{S_S}, 0")
    a("s_cbranch_scc1 L_FINAL0")
    a(f"v_mov_b32 v{t+2}, {NEG:#x}")
    for r in range(16): a(f"v_sub_f32 v{V_MASK+r}, v{t+2}, v{V_MASK+r}")
    a(f"s_cmp_lt_u32 s{S_WID}, 4")
    a("s_cbranch_scc1 L_H5DONE")
    lds_wait(a, "L_WQ", CNTQ, 8)
    a(f"v_add_u32 v{V_PA+1}, {KV_HALO}, v{V_PA}")
    for c, i in enumerate([8, 7, 6, 5, 4, 3, 2, 1, 0]):
        a(f"s_waitcnt vmcnt({8-c})")
        a(f"ds_write_b128 v{V_PA+1}, v[{VH+4*c}:{VH+4*c+3}] offset:{i*4096}")
    if 'midbar' not in exp:
        a("s_waitcnt lgkmcnt(0)")
        lds_inc(a, CNT1, save_exec, rest_exec)
    a(f"s_cmp_lg_u32 s{S_WID}, 4")
    a("s_cbranch_scc1 L_H5DONE")
    a(f"s_sub_u32 s{S_T0}, s{S_IDX}, 1")
    a(f"s_lshl_b32 s{S_T0}, s{S_T0}, 8")
    a(f"s_add_u32 s{S_T0}, s{S_T0}, {WS_FLAG}")
    a(f"v_mov_b32 v{t}, 0")
    a(f"v_mov_b32 v{t+1}, s{S_TAGIN}")
    save_exec(1)
    a(f"buffer_store_dword v{t+1}, v{t}, {WS}, s{S_T0} offen sc1")
    rest_exec()
    a.lab("L_H5DONE")
    if 'midbar' in exp:
        a("s_waitcnt lgkmcnt(0)")
        if 'noph' in exp: a("s_setprio 0")
        a("s_barrier")
    else:
        lds_wait(a, "L_W1", CNT1, 4)
    if "tsh" not in exp: ts(7)
    a(f"s_mov_b32 s{S_T4}, 7")
    set_run(a, KV_HALO, S_T4, [f"s_add_u32 s{S_N}, s{S_M}, 1"], -TILE)
    a(f"s_call_b64 s[{S_RET}:{S_RET+1}], L_RUNB")
    a("s_nop 7")
    a("s_nop 3")
    safety_check(a, OB, True, S_MB, "B1")
    finalize(a, OB, S_MB, save_exec, rest_exec)
    if 'noph' not in exp: a("s_setprio 0")
    a(f"s_mov_b32 s{S_T4}, 7")
    set_run(a, KV_HALO, S_T4, [f"s_sub_u32 s{S_N}, 8, s{S_M}"], -TILE)
    a(f"s_call_b64 s[{S_RET}:{S_RET+1}], L_RUNA")
    a("s_branch L_FINALA")
    a.lab("L_FINAL0")
    a("s_waitcnt vmcnt(0)")
    a("s_setprio 0")
    a("s_barrier")
    a("s_nop 7")
    a("s_nop 3")
    safety_check(a, OB, True, S_MB, "B0")
    finalize(a, OB, S_MB, save_exec, rest_exec)
    a.lab("L_FINALA")
    a("s_setprio 0")
    if "tsh" not in exp: ts(8)
    a("s_nop 7")
    a("s_nop 3")
    safety_check(a, OA, False, S_M, "A")
    finalize(a, OA, S_M, save_exec, rest_exec)
    a("s_branch L_P3")
    fallback_code(a)

    a.lab("L_HOOK")
    a(f"s_cmp_eq_u32 s{S_HST}, 1")
    a("s_cbranch_scc1 L_HK1")
    a(f"s_cmp_eq_u32 s{S_HST}, 2")
    a("s_cbranch_scc1 L_HK2")
    a(f"s_cmp_eq_u32 s{S_HST}, 3")
    a("s_cbranch_scc1 L_HK3")
    a(f"s_cmp_eq_u32 s{S_HST}, 5")
    a("s_cbranch_scc0 L_HK0")
    a(f"s_mov_b32 s{S_HST}, 3")
    a(f"s_mov_b32 s{S_HOOK}, {UP}")
    a("s_waitcnt vmcnt(0)")
    oflag(a, "L_CLR", CNTOB, 128, save_exec, rest_exec, last=3)
    a("s_branch L_HRET")
    a.lab("L_HK0")
    a(f"s_mov_b32 s{S_HST}, 1")
    a(f"s_mov_b32 s{S_HOOK}, {UH[1]}")
    a(f"s_cmp_eq_u32 s{S_S}, 7")
    a("s_cbranch_scc1 L_HRET")
    a("s_waitcnt vmcnt(0)")
    a(f"s_lshl_b32 s{S_T0}, s{S_IDX}, 8")
    a(f"s_lshl_b32 s{S_T1}, s{S_L}, 2")
    a(f"s_add_u32 s{S_T0}, s{S_T0}, s{S_T1}")
    a(f"s_add_u32 s{S_T0}, s{S_T0}, {WS_FLAG+128}")
    a(f"v_mov_b32 v{t}, 0")
    a(f"v_mov_b32 v{t+1}, s{S_TAGOUT}")
    save_exec(1)
    a(f"buffer_store_dword v{t+1}, v{t}, {WS}, s{S_T0} offen sc1")
    rest_exec()
    a("s_branch L_HRET")
    a.lab("L_HK3")
    a(f"s_mov_b32 s{S_HST}, 4")
    a(f"s_mov_b32 s{S_HOOK}, 1000")
    a(f"s_lshl_b32 s{S_T0}, s{S_HP}, 7")
    a(f"s_add_u32 s{S_T0}, s{S_T0}, s{S_OFS}")
    save_exec("0xffff")
    a(f"v_lshlrev_b32 v{t}, 2, v{L}")
    a(f"buffer_load_dword v{V_TG+1}, v{t}, {WS}, s{S_T0} offen offset:128 sc1")
    rest_exec()
    a("s_branch L_HRET")
    a.lab("L_HK1")
    a(f"s_mov_b32 s{S_HST}, 2")
    a(f"s_mov_b32 s{S_HOOK}, {UH[2]}")
    a(f"s_cmp_eq_u32 s{S_S}, 0")
    a("s_cbranch_scc0 L_HK1A")
    a(f"s_mov_b32 s{S_HOOK}, 1000")
    a("s_branch L_HRET")
    a.lab("L_HK1A")
    a(f"s_sub_u32 s{S_H1}, s{S_IDX}, 1")
    a(f"s_lshl_b32 s{S_H1}, s{S_H1}, 8")
    a(f"s_lshl_b32 s{S_T0}, s{S_L}, 2")
    a(f"s_add_u32 s{S_H1}, s{S_H1}, s{S_T0}")
    a(f"s_add_u32 s{S_H1}, s{S_H1}, {WS_FLAG+128}")
    a(f"v_mov_b32 v{t}, 0")
    a(f"buffer_load_dword v{V_TG}, v{t}, {WS}, s{S_H1} offen sc1")
    a("s_branch L_HRET")
    a.lab("L_HK2")
    a(f"s_mov_b32 s{S_HST}, 3")
    a(f"s_mov_b32 s{S_HOOK}, {UP}")
    a("s_waitcnt vmcnt(0)")
    a(f"v_readfirstlane_b32 s{S_T0}, v{V_TG}")
    a(f"s_cmp_eq_u32 s{S_T0}, s{S_TAGIN}")
    a("s_cbranch_scc1 L_POLL1_OK")
    a(f"v_mov_b32 v{t}, 0")
    spin_poll(a, "L_POLL1",
              [f"v_readfirstlane_b32 s{S_T0}, v{V_TG}", f"s_cmp_eq_u32 s{S_T0}, s{S_TAGIN}"],
              f"buffer_load_dword v{V_TG}, v{t}, {WS}, s{S_H1} offen sc1")
    a(f"s_sub_u32 s{S_T0}, s{S_IDX}, 1")
    a(f"s_mul_i32 s{S_T0}, s{S_T0}, 36864")
    for c, i in enumerate([8, 7, 6, 5, 4, 3, 2, 1, 0]):
        a(f"s_add_u32 s{S_T1}, s{S_T0}, {i*4096}")
        a(f"buffer_load_dwordx4 v[{VH+4*c}:{VH+4*c+3}], v{V_PA}, {WS}, s{S_T1} offen sc1")
    a.lab("L_HRET")
    a(f"s_setpc_b64 s[{S_RET2}:{S_RET2+1}]")
    run_code(a, "L_RUNA", QA_M, QA_R, OA, exp)
    run_code(a, "L_RUNB", QB_M, QB_R, OB, exp)

def pub_stores(a, stage_off, base):
    a(f"s_add_u32 s{S_T2}, s{S_T1}, {stage_off}")
    a(f"buffer_store_dwordx4 v[{base}:{base+3}], v{V_PA}, {WS}, s{S_T2} offen sc1")
    for i in range(1, 4):
        a(f"s_add_u32 s{S_T3}, s{S_T2}, {i*4096}")
        a(f"buffer_store_dwordx4 v[{base+4*i}:{base+4*i+3}], v{V_PA}, {WS}, s{S_T3} offen sc1")
    a(f"buffer_store_dwordx4 v[{base+16}:{base+19}], v{V_PA+2}, {WS}, s{S_T2} offen sc1")

def halo_loads(a, stage_off, base):
    a(f"s_sub_u32 s{S_T0}, s{S_IDX}, 1")
    a(f"s_mul_i32 s{S_T0}, s{S_T0}, 36864")
    a(f"s_add_u32 s{S_T0}, s{S_T0}, s{S_SO}")
    for i in range(4):
        a(f"s_add_u32 s{S_T1}, s{S_T0}, {i*4096}")
        a(f"buffer_load_dwordx4 v[{base+4*i}:{base+4*i+3}], v{V_PA}, {WS}, s{S_T1} offen sc1")
    a(f"buffer_load_dwordx4 v[{base+16}:{base+19}], v{V_PA+2}, {WS}, s{S_T0} offen sc1")

def phase3(a, debug_stage, ts, exp, save_exec, rest_exec):
    t = T; L = V_LANE
    OF, AC, WF0, WF1 = 20, 92, 132, 152
    AW, AW2, PF, VO, VOUT, VR = 10, 11, 13, 14, 15, 16
    PA, PB = 12, 9
    S_PL, S_PR, S_PM = 4, 68, 40
    SCR = KV_OWN
    ORD = {0: [0, 2, 4, 6, 1, 3, 5, 7, 8], 1: [9, 11, 13, 15, 10, 12, 14, 16, 17]}
    GM = {0: 0x0055, 1: 0xAA00}; RM = {0: 0x01AA, 1: 0xFFFF}
    a.lab("L_P3")
    a.c("======== phase 3 ========")
    a(f"s_lshl_b32 s{S_PL}, s{S_HP}, 7")
    a(f"s_add_u32 s{S_PL}, s{S_PL}, s{S_OFS}")
    def poll_issue():
        save_exec("0xffff")
        a(f"v_lshlrev_b32 v{t+2}, 2, v{L}")
        a(f"buffer_load_dword v{PF}, v{t+2}, {WS}, s{S_PL} offen offset:128 sc1")
        rest_exec()
    def poll_check(name, mask):
        save_exec(f"{mask:#x}")
        a(f"v_cmp_ne_u32 vcc, s{S_TAGO}, v{PF}")
        a("s_nop 1")
        a("s_cmp_eq_u64 vcc, 0")
        a(f"s_cbranch_scc1 {name}_OK")
        a(f"v_lshlrev_b32 v{t+2}, 2, v{L}")
        spin_poll(a, name,
                  [f"v_cmp_ne_u32 vcc, s{S_TAGO}, v{PF}", "s_nop 1", "s_cmp_eq_u64 vcc, 0"],
                  f"buffer_load_dword v{PF}, v{t+2}, {WS}, s{S_PL} offen offset:128 sc1")
        rest_exec()
    a(f"s_lshr_b32 s{S_T1}, s{S_HP}, 3")
    a(f"s_lshl_b32 s{S_T1}, s{S_T1}, 3")
    a(f"s_lshl_b32 s{S_T2}, s{S_M}, 1")
    a(f"s_add_u32 s{S_T1}, s{S_T1}, s{S_T2}")
    a(f"s_lshl_b32 s{S_T0}, s{S_GRP}, 18")
    a(f"s_add_u32 s{S_T0}, s{S_T0}, {WS_O}")
    a(f"s_lshl_b32 s{S_T2}, s{S_T1}, 14")
    a(f"s_add_u32 s{S_PM}, s{S_T0}, s{S_T2}")
    a(f"s_lshl_b32 s{S_T0}, s{S_GRP}, 15")
    a(f"s_add_u32 s{S_T0}, s{S_T0}, {WS_OR}")
    a(f"s_lshl_b32 s{S_T2}, s{S_T1}, 6")
    a(f"s_add_u32 s{S_PR}, s{S_T0}, s{S_T2}")
    a(f"v_lshrrev_b32 v{VR}, 4, v{L}")
    a(f"v_lshlrev_b32 v{VR}, 12, v{VR}")
    a(f"v_and_b32 v{t+4}, 15, v{L}")
    a(f"v_lshl_add_u32 v{VR}, v{t+4}, 2, v{VR}")
    a(f"v_add_u32 v{VR+1}, 64, v{VR}")
    a(f"v_lshrrev_b32 v{t+1}, 4, v{L}")
    a(f"v_bfe_u32 v{t+2}, v{L}, 2, 2")
    a(f"v_and_b32 v{t+3}, 3, v{L}")
    a(f"v_lshrrev_b32 v{t+4}, 1, v{t+1}")
    a(f"v_lshlrev_b32 v{t+4}, 2, v{t+4}")
    a(f"v_lshl_add_u32 v{t+4}, v{t+1}, 3, v{t+4}")
    a(f"v_add_u32 v{t+4}, v{t+4}, v{t+2}")
    a(f"v_mul_u32_u24 v{t+4}, 144, v{t+4}")
    a(f"v_lshl_add_u32 v{AW}, v{t+3}, 3, v{t+4}")
    a(f"s_mul_i32 s{S_T0}, s{S_HEAD}, {9*5184}")
    a(f"v_add_u32 v{AW}, s{S_T0}, v{AW}")
    a(f"v_mul_u32_u24 v{t+4}, 72, v{t+1}")
    a(f"v_add3_u32 v{t+4}, v{t+4}, v{t+2}, 16")
    a(f"v_mul_u32_u24 v{t+4}, 144, v{t+4}")
    a(f"v_lshl_add_u32 v{AW2}, v{t+3}, 3, v{t+4}")
    a(f"v_lshlrev_b32 v{VO}, 4, v{L}")
    a(f"s_lshl_b32 s{S_T1}, s{S_T1}, 4")
    a(f"s_lshl_b32 s{S_T2}, s{S_S}, 8")
    a(f"s_add_u32 s{S_T1}, s{S_T1}, s{S_T2}")
    a(f"s_lshl_b32 s{S_T2}, s{S_HEAD}, 4")
    a(f"s_add_u32 s{S_T1}, s{S_T1}, s{S_T2}")
    a(f"s_mul_i32 s{S_T1}, s{S_T1}, 2304")
    a(f"s_mul_i32 s{S_T2}, s{S_B}, 1152")
    a(f"s_add_u32 s{S_T1}, s{S_T1}, s{S_T2}")
    a(f"s_and_b32 s{S_T2}, s{S_HP}, 7")
    a(f"s_mul_i32 s{S_T2}, s{S_T2}, 144")
    a(f"s_add_u32 s{S_T5}, s{S_T1}, s{S_T2}")
    a(f"v_and_b32 v{VOUT}, 15, v{L}")
    a(f"v_mul_u32_u24 v{VOUT}, 2304, v{VOUT}")
    a(f"v_lshrrev_b32 v{t+4}, 4, v{L}")
    a(f"v_lshl_add_u32 v{VOUT}, v{t+4}, 3, v{VOUT}")
    a(f"s_mul_i32 s{S_T0}, s{S_WID}, 5120")
    a(f"s_add_u32 s{S_T0}, s{S_T0}, {SCR}")
    a(f"v_add_u32 v18, s{S_T0}, v{VO}")
    a(f"s_xor_b32 s{S_T1}, s{S_WID}, 4")
    a(f"s_mul_i32 s{S_T1}, s{S_T1}, 5120")
    a(f"s_add_u32 s{S_T1}, s{S_T1}, {SCR}")
    a(f"v_add_u32 v19, s{S_T1}, v{VO}")
    OUT = f"s[{S_OUT}:{S_OUT+3}]"
    def wreads(kap, kh, WF):
        l = []
        for Tn in range(5):
            b = WF + 4*Tn
            if kap >= 16:
                o0 = (kap-16)*8*36*144 + Tn*32
                l.append(f"ds_read_b64_tr_b16 v[{b}:{b+1}], v{AW2} offset:{o0}")
                l.append(f"ds_read_b64_tr_b16 v[{b+2}:{b+3}], v{AW2} offset:{o0+36*144}")
            else:
                o0 = (kap - 9*kh)*5184 + Tn*32
                l.append(f"ds_read_b64_tr_b16 v[{b}:{b+1}], v{AW} offset:{o0}")
                l.append(f"ds_read_b64_tr_b16 v[{b+2}:{b+3}], v{AW} offset:{o0+576}")
        return l
    def loads(kh, slots):
        nl = []
        for jx in slots:
            kap = ORD[kh][jx]
            if kap >= 16:
                a(f"s_add_u32 s{S_T0}, s{S_PR}, {(kap-16)*16*1024}")
                for mt in range(2):
                    for i in range(4):
                        a(f"buffer_load_dword v{OF+36*mt+4*jx+i}, v{VR+mt}, {WS}, s{S_T0} offen offset:{i*1024} sc1")
                nl.append(8)
            else:
                a(f"s_add_u32 s{S_T0}, s{S_PM}, {kap*1024}")
                a(f"s_add_u32 s{S_T1}, s{S_PM}, {kap*1024+16384}")
                a(f"buffer_load_dwordx4 v[{OF+4*jx}:{OF+4*jx+3}], v{VO}, {WS}, s{S_T0} offen sc1")
                a(f"buffer_load_dwordx4 v[{OF+36+4*jx}:{OF+36+4*jx+3}], v{VO}, {WS}, s{S_T1} offen sc1")
                nl.append(2)
        return nl
    def mfm(kh, slots, nl, extra, last_next, novm=False):
        for c, jx in enumerate(slots):
            cur = WF0 if jx % 2 == 0 else WF1
            nxt = WF1 if jx % 2 == 0 else WF0
            a("s_waitcnt lgkmcnt(0)" if novm else f"s_waitcnt vmcnt({sum(nl[c+1:])+extra}) lgkmcnt(0)")
            rs = wreads(ORD[kh][jx+1], kh, nxt) if jx < 8 else []
            ri = 0
            for Tn in range(5):
                for mt in range(2):
                    d = AC + (mt*5+Tn)*4; o = OF + 36*mt + 4*jx
                    cc = "0" if jx == 0 else f"v[{d}:{d+3}]"
                    a(f"v_mfma_f32_16x16x32_bf16 v[{d}:{d+3}], v[{cur+4*Tn}:{cur+4*Tn+3}], v[{o}:{o+3}], {cc}")
                    if ri < len(rs): a(rs[ri]); ri += 1
    def add_out(q, base, Tn, pk):
        for r in range(4): a(f"v_add_f32 v{q+r}, v{q+r}, v{base+4*Tn+r}")
        a(f"v_cvt_pk_bf16_f32 v{pk}, v{q}, v{q+1}")
        a(f"v_cvt_pk_bf16_f32 v{pk+1}, v{q+2}, v{q+3}")
        if Tn == 4:
            a(f"s_mov_b64 s[{S_SAVE}:{S_SAVE+1}], exec")
            a(f"s_mov_b32 exec_hi, 0")
        omod = " nt" if 'ont' in exp else " sc1" if 'osc1' in exp else " sc0 sc1" if 'osc01' in exp else ""
        a(f"buffer_store_dwordx2 v[{pk}:{pk+1}], v{VOUT}, {OUT}, s{S_T5} offen offset:{Tn*32}{omod}")
        if Tn == 4: rest_exec()
    def nloads(kh, slots):
        return [8 if ORD[kh][jx] >= 16 else 2 for jx in slots]
    def validate(kh, slots, younger):
        nl = nloads(kh, slots); first = True
        for c, jx in enumerate(slots):
            a(f"s_waitcnt vmcnt({sum(nl[c+1:])+younger})")
            rr = [OF+4*jx+i for i in range(4)] + [OF+36+4*jx+i for i in range(4)]
            if first:
                a(f"v_max3_u32 v{t+3}, v{rr[0]}, v{rr[1]}, v{rr[2]}"); rr = rr[3:]; first = False
                a(f"v_max_u32 v{t+3}, v{t+3}, v{rr[0]}"); rr = rr[1:]
            for k in range(0, len(rr), 2):
                a(f"v_max3_u32 v{t+3}, v{t+3}, v{rr[k]}, v{rr[k+1]}")
        a(f"v_cmp_eq_u32 vcc, -1, v{t+3}")
        a("s_nop 1")
        a("s_cmp_eq_u64 vcc, 0")
    def probe_addr(kh, slots):
        mains = [jx for jx in slots if ORD[kh][jx] < 16]
        a(f"v_mov_b32 v{t+3}, {ORD[kh][mains[0]]*1024 + 16384 + 1020}")
        a(f"v_lshlrev_b32 v{PA}, 11, v{L}")
        a(f"v_add_u32 v{PA}, v{t+3}, v{PA}")
        return (1 << min(len(mains), 4)) - 1
    def probe_issue(mask):
        save_exec(f"{mask:#x}")
        a(f"buffer_load_dword v{PB}, v{PA}, {WS}, s{S_PM} offen sc1")
        rest_exec()
    def probe_loop(mask, name, first_issued):
        save_exec(f"{mask:#x}")
        a(f"s_mov_b32 s{S_CNT}, 0")
        if first_issued: a(f"s_branch {name}_PW")
        a.lab(name + "_P")
        a(f"buffer_load_dword v{PB}, v{PA}, {WS}, s{S_PM} offen sc1")
        a.lab(name + "_PW")
        a(f"s_add_u32 s{S_CNT}, s{S_CNT}, 1")
        a("s_waitcnt vmcnt(0)")
        a(f"v_cmp_eq_u32 vcc, -1, v{PB}")
        a("s_nop 1")
        a("s_cmp_eq_u64 vcc, 0")
        a(f"s_cbranch_scc1 {name}_PO")
        a(f"s_cmp_lt_u32 s{S_CNT}, 2000000")
        a(f"s_cbranch_scc1 {name}_P")
        a.lab(name + "_PO")
        rest_exec()
    def load_validate_loop(kh, slots, name):
        a(f"s_mov_b32 s{S_N}, 0")
        a.lab(name + "_L")
        loads(kh, slots)
        validate(kh, slots, 0)
        a(f"s_cbranch_scc1 {name}_OK")
        a(f"s_add_u32 s{S_N}, s{S_N}, 1")
        a(f"s_cmp_lt_u32 s{S_N}, 100000")
        a(f"s_cbranch_scc1 {name}_L")
        a.lab(name + "_OK")
    def path(kh):
        K = f"K{kh}"
        G, R = list(range(4)), list(range(4, 9))
        for rd in wreads(ORD[kh][0], kh, WF0): a(rd)
        ts(10)
        a(f"s_lshr_b32 s{S_T0}, 0x55AA, s{S_HP}")
        a(f"s_bitcmp1_b32 s{S_T0}, 0")
        a(f"s_cbranch_scc1 L_SG{K}_GO")
        mk = probe_addr(kh, G)
        probe_loop(mk, f"L_SG{K}", False)
        a.lab(f"L_SG{K}_GO")
        load_validate_loop(kh, G, f"L_SGV{K}")
        mk = probe_addr(kh, R)
        a(f"s_lshr_b32 s{S_T0}, 0x55AA, s{S_HP}")
        a(f"s_bitcmp1_b32 s{S_T0}, 0")
        a(f"s_cbranch_scc0 L_SR{K}_EARLY")
        loads(kh, R)
        mfm(kh, G, [0]*4, 0, None, novm=True)
        ts(9)
        lds_wait(a, f"L_WOB{K}", CNTOA, 8)
        validate(kh, R, 0)
        a(f"s_cbranch_scc1 L_SRV{K}_OK")
        probe_loop(mk, f"L_SS{K}", False)
        a(f"s_branch L_SR{K}_LV")
        a.lab(f"L_SR{K}_EARLY")
        probe_issue(mk)
        mfm(kh, G, [0]*4, 0, None, novm=True)
        ts(9)
        lds_wait(a, f"L_WOA{K}", CNTOA, 8)
        probe_loop(mk, f"L_SR{K}", True)
        a.lab(f"L_SR{K}_LV")
        load_validate_loop(kh, R, f"L_SRV{K}")
        mfm(kh, R, [0]*5, 0, None, novm=True)
        ts(11)
        send = AC + 20 if kh == 0 else AC
        keep = AC if kh == 0 else AC + 20
        a("s_nop 7")
        for Tn in range(5): a(f"ds_write_b128 v18, v[{send+4*Tn}:{send+4*Tn+3}] offset:{Tn*1024}")
        a("s_waitcnt lgkmcnt(0)")
        a("s_barrier")
        for Tn in range(5): a(f"ds_read_b128 v[{OF+4*Tn}:{OF+4*Tn+3}], v19 offset:{Tn*1024}")
        for Tn in range(5):
            a(f"s_waitcnt lgkmcnt({4-Tn})")
            add_out(OF+4*Tn, keep, Tn, OF+20+2*Tn)
    lds_inc(a, CNTOA, save_exec, rest_exec)
    a(f"s_cmp_eq_u32 s{S_HST}, 4")
    a("s_cbranch_scc0 L_P3C0")
    a("s_waitcnt vmcnt(2)")
    a(f"v_mov_b32 v{PF}, v{V_TG+1}")
    a("s_branch L_P3C1")
    a.lab("L_P3C0")
    poll_issue()
    a("s_waitcnt vmcnt(0)")
    a.lab("L_P3C1")
    poll_check("L_POLLC", 0xFFFF)
    if debug_stage == 2:
        a("s_waitcnt vmcnt(0)")
        a("s_branch L_FIN")
        return
    a(f"s_cmp_eq_u32 s{S_HEAD}, 0")
    a("s_cbranch_scc0 L_P3K1")
    path(0)
    a("s_branch L_FIN")
    a.lab("L_P3K1")
    path(1)
    a(f"s_cmp_lg_u32 s{S_HP}, 0")
    a("s_cbranch_scc1 L_FIN")
    a(f"s_cmp_lg_u32 s{S_WID}, 4")
    a("s_cbranch_scc1 L_FIN")
    a(f"v_mov_b32 v{t}, 0")
    a(f"v_mov_b32 v{t+1}, s{S_TAGO}")
    a(f"s_mov_b64 exec, 1")
    a(f"buffer_store_dword v{t+1}, v{t}, {WS}, s{S_OFS} offen sc1")

if __name__ == "__main__":
    import argparse
    p = argparse.ArgumentParser(); p.add_argument("--debug", type=int, default=0)
    p.add_argument("--timing", action="store_true"); p.add_argument("--exp", default=""); p.add_argument("-o", default="/dev/stdout")
    args = p.parse_args()
    open(args.o, "w").write(gen(args.debug, args.timing, args.exp))
```

```python
import sys, math, struct

NAME = "concat_heads__sliding_block__sliding_block__prompt"

STAGE   = 49152
WO_BASE = 0
KV_OWN  = 82944
KV_HALO = 119808
Q_BASE  = 119808
MISC    = 156672
TAGS_LDS = MISC + 2048
CNT2, CNT1, CNTQ, CNTOB, CNTOA = TAGS_LDS+12, TAGS_LDS+16, TAGS_LDS+20, TAGS_LDS+24, TAGS_LDS+28
LDS_TOTAL = 163840
TILE    = 4608
QTILE   = 2304
WS_KV   = 0
WS_O    = 256*36864
WS_OR   = WS_O + 16*262144
WS_FLAG = WS_OR + 16*32768
WS_OF   = WS_FLAG + 65536
TIMING_OFF = 24<<20
TAG_INC = 0x9E3779B1
NEG     = 0xFF61B1E6
QSCALE  = (18.0 ** -0.5) * math.log2(math.e)
def f32bits(x): return struct.unpack("<I", struct.pack("<f", x))[0]

class Asm:
    def __init__(self): self.l = []
    def __call__(self, s=""):
        for line in s.split("\n"):
            self.l.append("  " + line.strip())
    def lab(self, n): self.l.append(n + ":")
    def c(self, s): self.l.append("  ; " + s)
    def text(self): return "\n".join(self.l) + "\n"

S_X, S_W, S_WO, S_WS, S_OUT = 8, 12, 16, 20, 24
S_B, S_S, S_HP, S_WID = 28, 29, 30, 31
S_T0, S_T1, S_T2, S_T3, S_T4, S_T5 = 32, 33, 34, 35, 36, 37
S_I = 38
S_L = 39
S_TAGIN, S_TAGOUT, S_TAGO = 40, 41, 42
S_K, S_C, S_SB, S_XB, S_WB = 43, 44, 45, 46, 47
S_LX, S_LW = 48, 49
S_N = 50
S_U = 51
S_RET = 52
S_IDX, S_GRP, S_HEAD, S_M = 54, 55, 56, 57
S_SAVE = 58
S_CNT = 60
S_HOOK = 61
S_BAD = 62
S_RET2 = 64
S_MB = 66
S_HST = 67
S_H0, S_H1 = 68, 69
S_E = 98
S_SO, S_FI = 99, 100
S_OM, S_OR, S_OFS = 6, 7, 5

V_LANE = 1
T = 2
V_AX = 10
V_AW = 12
V_MASK = 20
V_SET0, V_SET1, V_ACC = 36, 80, 124
V_LDX, V_LDW = 36, 44
V_TG = 236
B_K, B_KR, B_V, MK_V = 240, 241, 242, 243
vEK, vEQ, vEV, vE6, vDr, vDt, vF, vC = 244, 245, 246, 247, 248, 249, 250, 252
V_TL = 254
QA_M, QA_R, QB_M, QB_R = 36, 40, 44, 48
OA, OB = 52, 68
VS, VE, VP = 84, 100, 116
VKF, VKR, VVA, VVB = 124, 128, 132, 136
A_K, A_KR, A_V, ST_V, ST_K = 10, 11, 12, 13, 14
VH = 140
V_WOV = 180
V_OA1, V_OA2 = 188, 189
V_PA = 184

def emit_masks_(a):
    t = T; L = V_LANE
    a(f"v_and_b32 v{t}, 31, v{L}")
    a(f"v_lshrrev_b32 v{t+1}, 5, v{L}")
    a(f"v_lshlrev_b32 v{t+1}, 2, v{t+1}")
    a(f"v_sub_u32 v{t}, v{t}, v{t+1}")
    a(f"v_mov_b32 v{t+1}, {NEG:#x}")
    for r in range(16):
        jj = (r & 3) + 8*(r >> 2)
        a(f"v_cmp_le_i32 vcc, {jj}, v{t}")
        a("s_nop 1")
        a(f"v_cndmask_b32_e64 v{V_MASK+r}, v{t+1}, 0, vcc")
def emit_p2_patterns_(a):
    t = T; L = V_LANE
    a(f"v_and_b32 v{t}, 31, v{L}")
    a(f"v_lshrrev_b32 v{t+1}, 5, v{L}")
    a(f"v_lshrrev_b32 v{t+2}, 2, v{t}")
    a(f"v_lshrrev_b32 v{t+3}, 3, v{t}")
    a(f"v_xor_b32 v{t+2}, v{t+2}, v{t+3}")
    a(f"v_xor_b32 v{t+2}, v{t+2}, v{t+1}")
    a(f"v_and_b32 v{t+2}, 1, v{t+2}")
    a(f"v_lshlrev_b32 v{t+2}, 4, v{t+2}")
    a(f"v_lshl_add_u32 v{t+2}, v{t}, 5, v{t+2}")
    a(f"s_lshl_b32 s{S_T0}, s{S_HEAD}, 10")
    a(f"v_add_u32 v{B_K}, s{S_T0}, v{t+2}")
    a(f"v_lshlrev_b32 v{B_KR}, 3, v{t}")
    a(f"v_add_u32 v{B_KR}, 2048, v{B_KR}")
    a(f"v_bfe_u32 v{t+2}, v{L}, 2, 2")
    a(f"v_lshl_add_u32 v{t+2}, v{t+1}, 2, v{t+2}")
    a(f"v_mul_u32_u24 v{t+2}, 72, v{t+2}")
    a(f"v_add_u32 v{t+2}, 2304, v{t+2}")
    a(f"v_and_b32 v{t+3}, 3, v{L}")
    a(f"v_lshlrev_b32 v{t+4}, 3, v{t+3}")
    a(f"s_mul_i32 s{S_T0}, s{S_HEAD}, 40")
    a(f"v_add3_u32 v{t+4}, v{t+4}, v{t+2}, s{S_T0}")
    a(f"v_add_u32 v{t+5}, 32, v{t+2}")
    a(f"v_bfe_u32 v{t+6}, v{L}, 4, 1")
    a(f"v_cmp_eq_u32 vcc, 1, v{t+6}")
    a(f"v_lshrrev_b32 v{t+7}, 1, v{t+3}")
    a(f"v_and_b32 v{t+7}, v{t+7}, v{t+6}")
    a(f"v_cndmask_b32 v{B_V}, v{t+4}, v{t+5}, vcc")
    a(f"v_cmp_eq_u32 vcc, 1, v{t+7}")
    a(f"v_mov_b32 v{t+5}, {MISC}")
    a(f"v_mov_b32 v{t+6}, -1")
    a(f"v_cndmask_b32 v{B_V}, v{B_V}, v{t+5}, vcc")
    a(f"v_cndmask_b32_e64 v{MK_V}, v{t+6}, 0, vcc")


def gen(debug_stage=0, timing=False, exp=''):
    a = Asm()
    t = T; L = V_LANE
    def ts(i, force=False):
        if timing and (('tsk' not in exp and 'tse' not in exp) or force or i in (0, 2, 3, 4) or ('tsk' in exp and i in (8, 9, 10, 11))): a(f"{'s_memrealtime' if ('abs' in exp or 'hdbg' in exp) else 's_memtime'} s[{70+2*i}:{71+2*i}]")
    WS = f"s[{S_WS}:{S_WS+3}]"
    def save_exec(val):
        a(f"s_mov_b64 s[{S_SAVE}:{S_SAVE+1}], exec")
        a(f"s_mov_b64 exec, {val}")
    def rest_exec():
        a(f"s_mov_b64 exec, s[{S_SAVE}:{S_SAVE+1}]")

    hdr = """; concat_heads(A,B): fused QKV projection + sliding-window attention (W=256, 32 heads x 18) + output projection, bf16, gfx950.
;   phase 3  output projection; the attention outputs of all heads are exchanged through d_ws (sentinel-validated hand-off)"""
    a.l += hdr.split("\n") + [f"; @launch grid=(256,1,1) block=(512,1,1) lds={LDS_TOTAL}"]
    a(f""".amdgcn_target "amdgcn-amd-amdhsa--gfx950"
.text
.globl {NAME}_kernel
.p2align 8
.type {NAME}_kernel,@function""")
    a.lab(f"{NAME}_kernel")
    a("s_cmp_ge_u32 s2, 256")
    a("s_cbranch_scc1 L_END")
    a(f"s_and_b32 s3, s2, 7")
    if 'xmap' in exp:
        a(f"s_bfe_u32 s{S_B}, s3, 0x10001")
    else:
        a(f"s_lshr_b32 s{S_B}, s3, 2")
    a(f"s_mul_i32 s{S_T0}, s{S_B}, 24")
    a(f"s_add_u32 s4, s0, s{S_T0}")
    a(f"s_addc_u32 s5, s1, 0")
    a(f"s_load_dwordx2 s[{S_X}:{S_X+1}], s[4:5], 0")
    a(f"s_load_dwordx2 s[{S_W}:{S_W+1}], s[4:5], 8")
    a(f"s_load_dwordx2 s[{S_WO}:{S_WO+1}], s[4:5], 16")
    a(f"s_load_dwordx2 s[{S_OUT}:{S_OUT+1}], s[0:1], 48")
    a(f"s_load_dwordx2 s[{S_WS}:{S_WS+1}], s[0:1], 64")
    if timing:
        for i in range(13): a(f"s_mov_b32 s{70+2*i}, 0")
    ts(0)
    a(f"s_lshr_b32 s{S_I}, s2, 3")
    if 'xmap' in exp:
        a(f"s_and_b32 s{S_T2}, s3, 1")
        a(f"s_lshl_b32 s{S_T2}, s{S_T2}, 2")
        a(f"s_and_b32 s{S_T3}, s{S_I}, 3")
        a(f"s_add_u32 s{S_S}, s{S_T2}, s{S_T3}")
        a(f"s_lshr_b32 s{S_T4}, s{S_I}, 2")
        a(f"s_cmp_lt_u32 s3, 4")
        a(f"s_mov_b32 s{S_T2}, 0xFDB96420")
        a(f"s_cselect_b32 s{S_T2}, 0xECA87531, s{S_T2}")
        a(f"s_lshl_b32 s{S_T0}, s{S_T4}, 2")
        a(f"s_lshr_b32 s{S_T2}, s{S_T2}, s{S_T0}")
        a(f"s_and_b32 s{S_HP}, s{S_T2}, 15")
    else:
        a(f"s_lshr_b32 s{S_T2}, s3, 1")
        a(f"s_and_b32 s{S_T2}, s{S_T2}, 1")
        a(f"s_lshl_b32 s{S_T2}, s{S_T2}, 2")
        a(f"s_and_b32 s{S_T3}, s{S_I}, 3")
        a(f"s_add_u32 s{S_S}, s{S_T2}, s{S_T3}")
        a(f"s_and_b32 s{S_T2}, s3, 1")
        a(f"s_lshl_b32 s{S_T2}, s{S_T2}, 3")
        a(f"s_lshr_b32 s{S_T4}, s{S_I}, 2")
        a(f"s_add_u32 s{S_HP}, s{S_T2}, s{S_T4}")
    a(f"s_lshl_b32 s{S_T3}, s{S_T3}, 1")
    a(f"s_add_u32 s{S_C}, s{S_T4}, s{S_T3}")
    a(f"s_cmp_ge_u32 s{S_C}, 9")
    a(f"s_cselect_b32 s{S_T3}, 9, 0")
    a(f"s_sub_u32 s{S_C}, s{S_C}, s{S_T3}")
    if 'norot' in exp: a(f"s_mov_b32 s{S_C}, 0")
    for key, mul in (('rot2', 2), ('rot3', 3)):
        if key in exp or (key == 'rot2' and 'rot' not in exp):
            a(f"s_lshr_b32 s{S_C}, s{S_T4}, 1")
            a(f"s_and_b32 s{S_T3}, s{S_I}, 3")
            a(f"s_add_u32 s{S_C}, s{S_C}, s{S_T3}")
            a(f"s_mul_i32 s{S_C}, s{S_C}, {mul}")
            for _ in range(2):
                a(f"s_cmp_ge_u32 s{S_C}, 9")
                a(f"s_cselect_b32 s{S_T3}, 9, 0")
                a(f"s_sub_u32 s{S_C}, s{S_C}, s{S_T3}")
    if 'rot4' in exp:
        a(f"s_lshr_b32 s{S_C}, s{S_T4}, 2")
        a(f"s_and_b32 s{S_T3}, s{S_I}, 3")
        a(f"s_lshr_b32 s{S_T3}, s{S_T3}, 1")
        a(f"s_add_u32 s{S_C}, s{S_C}, s{S_T3}")
        a(f"s_mul_i32 s{S_C}, s{S_C}, 3")
    a(f"s_lshl_b32 s{S_T0}, s{S_B}, 4")
    a(f"s_add_u32 s{S_T0}, s{S_T0}, s{S_HP}")
    a(f"s_lshl_b32 s{S_T0}, s{S_T0}, 3")
    a(f"s_add_u32 s{S_IDX}, s{S_T0}, s{S_S}")
    a(f"s_lshl_b32 s{S_T0}, s{S_B}, 3")
    a(f"s_add_u32 s{S_GRP}, s{S_T0}, s{S_S}")
    a(f"v_lshrrev_b32 v{t}, 6, v0")
    a(f"v_and_b32 v{L}, 63, v0")
    a(f"v_readfirstlane_b32 s{S_WID}, v{t}")
    for (r, n) in ((S_X, 2359296), (S_W, 1990656), (S_WO, 663552), (S_WS, 268435456), (S_OUT, 4718592)):
        a(f"s_mov_b32 s{r+2}, {n}")
        a(f"s_mov_b32 s{r+3}, 0x00020000")
    a(f"s_and_b32 s{S_M}, s{S_WID}, 3")
    a(f"s_lshr_b32 s{S_HEAD}, s{S_WID}, 2")
    a(f"s_sub_u32 s{S_MB}, 7, s{S_M}")
    a(f"s_lshl_b32 s{S_T0}, s{S_GRP}, 18")
    a(f"s_add_u32 s{S_T0}, s{S_T0}, {WS_O}")
    a(f"s_lshl_b32 s{S_T1}, s{S_HP}, 10")
    a(f"s_lshl_b32 s{S_T2}, s{S_HEAD}, 9")
    a(f"s_add_u32 s{S_T1}, s{S_T1}, s{S_T2}")
    a(f"s_add_u32 s{S_OM}, s{S_T1}, s{S_T0}")
    a(f"s_lshl_b32 s{S_T0}, s{S_GRP}, 15")
    a(f"s_add_u32 s{S_T0}, s{S_T0}, {WS_OR}")
    a(f"s_lshl_b32 s{S_T1}, s{S_HP}, 1")
    a(f"s_add_u32 s{S_T1}, s{S_T1}, s{S_HEAD}")
    a(f"s_lshl_b32 s{S_T1}, s{S_T1}, 10")
    a(f"s_add_u32 s{S_OR}, s{S_T1}, s{S_T0}")
    a(f"s_lshl_b32 s{S_OFS}, s{S_GRP}, 12")
    a(f"s_add_u32 s{S_OFS}, s{S_OFS}, {WS_OF}")
    a(f"s_cmp_lt_u32 s{S_WID}, 4")
    a("s_cbranch_scc1 L_COMPUTE")

    emit_masks = lambda: emit_masks_(a)
    emit_p2_patterns = lambda: emit_p2_patterns_(a)

    a(f"s_sub_u32 s{S_L}, s{S_WID}, 4")
    a(f"v_lshrrev_b32 v{t}, 3, v{L}")
    a(f"v_mul_u32_u24 v{t}, 1152, v{t}")
    a(f"v_lshrrev_b32 v{t+1}, 4, v{L}")
    a(f"v_and_b32 v{t+2}, 7, v{L}")
    a(f"v_xor_b32 v{t+3}, v{t+2}, v{t+1}")
    a(f"v_lshl_add_u32 v{V_AX}, v{t+3}, 4, v{t}")
    a(f"v_xor_b32 v{t+3}, 4, v{t+3}")
    a(f"v_lshl_add_u32 v{V_AX+1}, v{t+3}, 4, v{t}")
    a(f"s_mul_i32 s{S_T0}, s{S_HP}, 72")
    a(f"s_and_b32 s{S_T0}, s{S_T0}, 0xfffffff0")
    a(f"v_and_b32 v{t+2}, 15, v{L}")
    a(f"v_mul_u32_u24 v{t+4}, 3456, v{t+1}")
    a(f"v_add_u32 v{t+4}, s{S_T0}, v{t+4}")
    for var in range(2):
        a(f"v_lshlrev_b32 v{t+3}, 1, v{t+1}")
        a(f"v_sub_u32 v{t+3}, v{t+2}, v{t+3}")
        if var: a(f"v_subrev_u32 v{t+3}, 8, v{t+3}")
        a(f"v_and_b32 v{t+3}, 15, v{t+3}")
        a(f"v_min_u32 v{t+3}, 14, v{t+3}")
        a(f"v_mul_u32_u24 v{t+5}, 13, v{t+3}")
        a(f"v_lshrrev_b32 v{t+5}, 6, v{t+5}")
        a(f"v_mul_u32_u24 v{t+6}, 5, v{t+5}")
        a(f"v_sub_u32 v{t+6}, v{t+3}, v{t+6}")
        a(f"v_mul_u32_u24 v{t+5}, 1152, v{t+5}")
        a(f"v_lshl_add_u32 v{t+6}, v{t+6}, 4, v{t+5}")
        a(f"v_add_u32 v{V_AX+2+var}, v{t+4}, v{t+6}")
    for i in range(8):
        a(f"v_add_u32 v{V_LDX+i}, {i*9216-(i&3)*1024}, v{V_AX+(i&1)}")
    for i in range(4):
        a(f"v_add_u32 v{V_LDW+i}, {i*4*3456-i*1024}, v{V_AX+2+(i>>1)}")
    a(f"s_lshl_b32 s{S_T0}, s{S_S}, 8")
    a(f"s_lshl_b32 s{S_T1}, s{S_L}, 6")
    a(f"s_add_u32 s{S_T0}, s{S_T0}, s{S_T1}")
    a(f"s_mul_i32 s{S_XB}, s{S_T0}, 1152")
    a(f"s_mul_i32 s{S_WB}, s{S_L}, {16*3456}")
    a(f"s_lshl_b32 s{S_LX}, s{S_L}, 13")
    a(f"s_lshl_b32 s{S_LW}, s{S_L}, 12")
    a(f"s_add_u32 s{S_LW}, s{S_LW}, 32768")
    a(f"s_mov_b32 s{S_SB}, 0")
    def chunk_pre():
        a(f"s_lshl_b32 s{S_T0}, s{S_C}, 7")
        a(f"s_add_u32 s{S_T0}, s{S_T0}, s{S_XB}")
        a(f"s_mul_i32 s{S_T1}, s{S_C}, {64*3456}")
        a(f"s_add_u32 s{S_T1}, s{S_T1}, s{S_WB}")
        a(f"s_add_u32 s{S_T2}, s{S_SB}, s{S_LW}")
        a(f"s_add_u32 s{S_T3}, s{S_SB}, s{S_LX}")
        a(f"s_add_u32 s{S_C}, s{S_C}, 1")
        a(f"s_cmp_eq_u32 s{S_C}, 9")
        a(f"s_cselect_b32 s{S_C}, 0, s{S_C}")
        a(f"s_add_u32 s{S_SB}, s{S_SB}, {STAGE}")
        a(f"s_cmp_eq_u32 s{S_SB}, {3*STAGE}")
        a(f"s_cselect_b32 s{S_SB}, 0, s{S_SB}")
    def chunk_w():
        a(f"s_mov_b32 m0, s{S_T2}")
        a("s_nop 0")
        for i in range(4):
            a(f"buffer_load_dwordx4 v{V_LDW+i}, s[{S_W}:{S_W+3}], s{S_T1} offen offset:{i*1024} lds")
    def chunk_x(lo, hi):
        for i in range(lo, hi):
            if i == lo or i == 4:
                a(f"s_add_u32 m0, s{S_T3}, {(i&~3)*1024}")
                a("s_nop 0")
            a(f"buffer_load_dwordx4 v{V_LDX+i}, s[{S_X}:{S_X+3}], s{S_T0} offen offset:{(i&3)*1024} lds")
    chunk_pre()
    a("s_waitcnt lgkmcnt(0)")
    if 'xfirst' in exp:
        chunk_x(0, 8); chunk_w()
    else:
        chunk_w(); chunk_x(0, 8)
    chunk_pre()
    if 'c1p0' in exp:
        a("s_waitcnt vmcnt(0)")
        a("s_barrier")
        chunk_w(); chunk_x(0, 8)
    elif 'c1p4' in exp:
        chunk_w()
        a("s_waitcnt vmcnt(4)")
        a("s_barrier")
        chunk_x(0, 8)
    elif 'c1p8' in exp:
        chunk_w(); chunk_x(0, 4)
        a("s_waitcnt vmcnt(8)")
        a("s_barrier")
        chunk_x(4, 8)
    else:
        chunk_w(); chunk_x(0, 2)
        a("s_waitcnt vmcnt(6)")
        a("s_barrier")
        chunk_x(2, 8)
    chunk_pre()
    a(f"s_mov_b32 s{S_K}, 2")
    if 'g2' in exp:
        a(f"s_lshr_b32 s{S_T4}, 0x55AA, s{S_HP}")
        a(f"s_bitcmp1_b32 s{S_T4}, 0")
        a("s_cbranch_scc1 L_LD")
        a.lab("L_LDG")
        a("s_waitcnt vmcnt(0)")
        a("s_barrier")
        chunk_w(); chunk_x(0, 8)
        chunk_pre()
        a(f"s_add_u32 s{S_K}, s{S_K}, 1")
        a(f"s_cmp_lt_u32 s{S_K}, 9")
        a("s_cbranch_scc1 L_LDG")
        a("s_branch L_LDE")
    a.lab("L_LD")
    chunk_w(); chunk_x(0, 8)
    chunk_pre()
    a(f"s_add_u32 s{S_K}, s{S_K}, 1")
    a(f"s_cmp_lt_u32 s{S_K}, 9")
    a("s_waitcnt vmcnt(12)")
    a("s_barrier")
    a("s_cbranch_scc1 L_LD")
    a.lab("L_LDE")
    a(f"s_lshl_b32 s{S_T0}, s{S_L}, 6")
    a(f"v_add_u32 v{t}, s{S_T0}, v{L}")
    a(f"v_mul_u32_u24 v{t+1}, 7282, v{t}")
    a(f"v_lshrrev_b32 v{t+1}, 16, v{t+1}")
    a(f"v_mul_u32_u24 v{t+2}, 9, v{t+1}")
    a(f"v_sub_u32 v{t+2}, v{t}, v{t+2}")
    a(f"v_mul_u32_u24 v{t+1}, 1152, v{t+1}")
    a(f"v_lshl_add_u32 v{t+1}, v{t+2}, 7, v{t+1}")
    a(f"s_mul_i32 s{S_T0}, s{S_I}, {18*1152}")
    a(f"v_cmp_gt_u32 vcc, 162, v{t}")
    a(f"v_cndmask_b32_e64 v{t+1}, 0, v{t+1}, vcc")
    a(f"buffer_load_dword v255, v{t+1}, s[{S_WO}:{S_WO+3}], s{S_T0} offen")
    emit_masks()
    emit_p2_patterns()
    a(f"v_mul_u32_u24 v{t+1}, 7282, v{L}")
    a(f"v_lshrrev_b32 v{t+1}, 16, v{t+1}")
    a(f"v_mul_u32_u24 v{t+2}, 9, v{t+1}")
    a(f"v_sub_u32 v{t+2}, v{L}, v{t+2}")
    a(f"v_mul_u32_u24 v{t+1}, 1152, v{t+1}")
    a(f"v_lshl_add_u32 v{t+1}, v{t+2}, 4, v{t+1}")
    a(f"s_and_b32 s{S_T0}, s{S_HP}, 7")
    a(f"s_mul_i32 s{S_T0}, s{S_T0}, 144")
    a(f"v_add_u32 v{V_WOV}, s{S_T0}, v{t+1}")
    for j in range(1, 4): a(f"v_add_u32 v{V_WOV+j}, {j*(8064-1008)}, v{V_WOV}")
    a(f"s_mul_i32 s{S_T0}, s{S_L}, {21*1008}")
    a(f"s_mul_i32 s{S_T1}, s{S_L}, {21*8064}")
    a("s_waitcnt vmcnt(1)")
    a("s_barrier")
    WO = f"s[{S_WO}:{S_WO+3}]"
    NW1 = 8 if 'wo8' not in exp else 4
    a(f"s_bitset0_b64 exec, 63")
    for j in range(21):
        if j == NW1:
            a(f"s_mov_b64 exec, -1")
            a("s_barrier")
            a(f"s_bitset0_b64 exec, 63")
        if j == 19:
            a(f"s_cmp_eq_u32 s{S_L}, 3")
            a("s_cbranch_scc0 L_WO_N")
            a(f"s_mov_b64 exec, 0x3ffff")
            a(f"buffer_load_dwordx4 v{V_WOV+(j&3)}, {WO}, s{S_T2} offen offset:{(j&3)*1008} lds")
            a("s_branch L_WO_DONE")
            a.lab("L_WO_N")
        if j % 4 == 0:
            a(f"s_add_u32 m0, s{S_T0}, {j*1008}")
            a(f"s_add_u32 s{S_T2}, s{S_T1}, {j*8064}")
        a(f"buffer_load_dwordx4 v{V_WOV+(j&3)}, {WO}, s{S_T2} offen offset:{(j&3)*1008} lds")
    a.lab("L_WO_DONE")
    a(f"s_mov_b64 exec, -1")
    for r in range(16):
        a(f"v_mov_b32 v{OA+r}, 0")
        a(f"v_mov_b32 v{OB+r}, 0")
    a(f"v_lshlrev_b32 v{V_PA}, 4, v{L}")
    a(f"s_lshl_b32 s{S_T0}, s{S_L}, 10")
    a(f"v_add_u32 v{V_PA}, s{S_T0}, v{V_PA}")
    a(f"v_add_u32 v{V_PA+1}, {KV_OWN}, v{V_PA}")
    a(f"s_mul_i32 s{S_T1}, s{S_IDX}, 36864")
    a("s_barrier")
    if 'tse' in exp: ts(7, True)
    a(f"s_cmp_eq_u32 s{S_S}, 7")
    a("s_cbranch_scc1 L_NOPUB")
    order = [8, 7, 6, 5, 4, 3, 2, 1, 0]
    for c, i in enumerate(order):
        a(f"ds_read_b128 v[{VH+4*c}:{VH+4*c+3}], v{V_PA+1} offset:{i*4096}")
    for c, i in enumerate(order[:5]):
        a(f"s_waitcnt lgkmcnt({8-c})")
        a(f"s_add_u32 s{S_T2}, s{S_T1}, {i*4096}")
        a(f"buffer_store_dwordx4 v[{VH+4*c}:{VH+4*c+3}], v{V_PA}, {WS}, s{S_T2} offen sc1")
    a.lab("L_NOPUB")
    a("s_branch L_P2")

    a.lab("L_COMPUTE")
    if 'dry' in exp and 'nodry' not in exp:
        emit_p2_patterns()
        a(f"s_mov_b32 s{S_U}, 0")
        a(f"s_mov_b32 s{S_HOOK}, 100000")
        set_run(a, KV_OWN, None, [f"s_mov_b32 s{S_N}, 3"], TILE)
        a(f"s_bitcmp1_b32 s{S_WID}, 0")
        a("s_cbranch_scc1 L_DRYB")
        a(f"s_call_b64 s[{S_RET}:{S_RET+1}], L_RUNA")
        a("s_branch L_DRYE")
        a.lab("L_DRYB")
        a(f"s_call_b64 s[{S_RET}:{S_RET+1}], L_RUNB")
        a.lab("L_DRYE")
        a("s_waitcnt lgkmcnt(0)")
    a(f"v_and_b32 v{t}, 15, v{L}")
    a(f"v_lshrrev_b32 v{t+1}, 4, v{L}")
    a(f"v_lshrrev_b32 v{t+2}, 1, v{t}")
    a(f"s_lshl_b32 s{S_T0}, s{S_WID}, 6")
    a(f"v_add_u32 v{t+3}, s{S_T0}, v{t}")
    a(f"v_lshlrev_b32 v{t+3}, 7, v{t+3}")
    a(f"v_xor_b32 v{t+4}, v{t+1}, v{t+2}")
    a(f"v_lshlrev_b32 v{t+5}, 4, v{t+4}")
    a(f"v_add_u32 v{V_AX}, v{t+3}, v{t+5}")
    a(f"v_xor_b32 v{t+4}, 4, v{t+4}")
    a(f"v_lshlrev_b32 v{t+5}, 4, v{t+4}")
    a(f"v_add_u32 v{V_AX+1}, v{t+3}, v{t+5}")
    a(f"v_bfe_u32 v{t}, v{L}, 2, 2")
    a(f"v_and_b32 v{t+2}, 3, v{L}")
    a(f"v_and_b32 v{t+3}, 1, v{t+1}")
    a(f"v_lshl_add_u32 v{t+3}, v{t+3}, 2, v{t}")
    a(f"v_lshlrev_b32 v{t+3}, 5, v{t+3}")
    a(f"v_lshl_add_u32 v{t+4}, v{t+1}, 3, v{t}")
    a(f"v_lshlrev_b32 v{t+4}, 8, v{t+4}")
    a(f"v_add_u32 v{t+4}, 32768, v{t+4}")
    a(f"v_lshlrev_b32 v{t+5}, 3, v{t+2}")
    a(f"s_and_b32 s{S_T1}, s{S_HP}, 1")
    a(f"s_lshl_b32 s{S_T1}, s{S_T1}, 3")
    a(f"v_add3_u32 v{t+5}, v{t+5}, v{t+3}, s{S_T1}")
    for Tn in range(6):
        off = 80*(Tn >> 1) + (40 if Tn & 1 else 0)
        a(f"v_add_u32 v{t+6}, {off}, v{t+5}")
        a(f"v_and_b32 v{t+6}, 255, v{t+6}")
        a(f"v_add_u32 v{V_AW+Tn}, v{t+4}, v{t+6}")
    a(f"v_min_u32 v{t+6}, 2, v{t+2}")
    a(f"v_mul_u32_u24 v{t+6}, 80, v{t+6}")
    a(f"v_add3_u32 v{t+6}, v{t+6}, v{t+3}, s{S_T1}")
    a(f"v_add_u32 v{t+6}, 32, v{t+6}")
    a(f"v_and_b32 v{t+6}, 255, v{t+6}")
    a(f"v_add_u32 v{V_AW+6}, v{t+4}, v{t+6}")
    a(f"v_and_b32 v{t}, 15, v{L}")
    a(f"v_lshrrev_b32 v{t+1}, 4, v{L}")
    a(f"v_and_b32 v{t+2}, 1, v{t+1}")
    a(f"v_lshl_add_u32 v{t+2}, v{t+2}, 4, v{t}")
    a(f"v_lshrrev_b32 v{t+3}, 2, v{t}")
    a(f"v_lshrrev_b32 v{t+4}, 3, v{t}")
    a(f"v_xor_b32 v{t+3}, v{t+3}, v{t+4}")
    a(f"v_lshrrev_b32 v{t+4}, 1, v{t+1}")
    a(f"v_xor_b32 v{t+3}, v{t+3}, v{t+4}")
    a(f"v_and_b32 v{t+3}, 1, v{t+3}")
    a(f"v_lshlrev_b32 v{t+3}, 4, v{t+3}")
    a(f"v_lshl_add_u32 v{t+3}, v{t+2}, 5, v{t+3}")
    a(f"s_mul_i32 s{S_T0}, s{S_WID}, {2*TILE}")
    a(f"s_add_u32 s{S_T0}, s{S_T0}, {KV_OWN}")
    a(f"s_mul_i32 s{S_T1}, s{S_WID}, {2*QTILE}")
    a(f"s_add_u32 s{S_T1}, s{S_T1}, {Q_BASE}")
    a(f"v_add_u32 v{vEK}, s{S_T0}, v{t+3}")
    a(f"v_add_u32 v{vEQ}, s{S_T1}, v{t+3}")
    a(f"v_mul_u32_u24 v{t+4}, 72, v{t}")
    a(f"v_lshl_add_u32 v{t+5}, v{t+1}, 3, v{t+4}")
    a(f"v_add_u32 v{t+5}, 2304, v{t+5}")
    a(f"v_add_u32 v{vEV}, s{S_T0}, v{t+5}")
    a(f"v_lshlrev_b32 v{t+5}, 3, v{t}")
    a(f"v_add_u32 v{t+5}, 2048, v{t+5}")
    a(f"v_add_u32 v{t+6}, s{S_T1}, v{t+5}")
    a(f"v_add_u32 v{t+7}, s{S_T0}, v{t+5}")
    a(f"v_add_u32 v{t+4}, {2304+32}, v{t+4}")
    a(f"v_add_u32 v{t+4}, s{S_T0}, v{t+4}")
    a(f"v_mov_b32 v{vDr}, 128")
    a(f"v_mov_b32 v{vDt}, {TILE}")
    a(f"v_mov_b32 v{vF}, 1.0")
    a(f"v_mov_b32 v{vE6}, v{t+7}")
    a(f"v_cmp_eq_u32 vcc, 0, v{t+1}")
    a(f"v_mov_b32 v{t+5}, {QTILE}")
    a(f"v_mov_b32 v{vC}, {f32bits(QSCALE):#x}")
    a(f"v_cndmask_b32 v{vE6}, v{vE6}, v{t+6}, vcc")
    a(f"v_cndmask_b32 v{vDt}, v{vDt}, v{t+5}, vcc")
    a(f"v_cndmask_b32 v{vF}, v{vF}, v{vC}, vcc")
    a(f"v_cmp_eq_u32 vcc, 2, v{t+1}")
    a(f"v_mov_b32 v{t+5}, 1152")
    a(f"v_mov_b32 v{vC+1}, v{vC}")
    a(f"v_cndmask_b32 v{vE6}, v{vE6}, v{t+4}, vcc")
    a(f"v_cndmask_b32 v{vDr}, v{vDr}, v{t+5}, vcc")
    a(f"v_mov_b32 v{vF+1}, v{vF}")
    a("s_waitcnt lgkmcnt(0)")
    if 'nocp' not in exp:
        a(f"s_cmp_lg_u32 s{S_WID}, 3")
        a("s_cbranch_scc1 L_NOCP")
        a(f"s_getpc_b64 s[{S_RET}:{S_RET+1}]")
        a.lab("L_PCREF")
        a(f"s_sub_u32 s{S_RET}, s{S_RET}, L_PCREF-{NAME}_kernel")
        a(f"s_subb_u32 s{S_RET+1}, s{S_RET+1}, 0")
        a(f"s_mul_i32 s{S_T0}, s{S_I}, {5*128}")
        a(f"v_lshlrev_b32 v{t}, 7, v{L}")
        a(f"v_add_u32 v{t}, s{S_T0}, v{t}")
        a(f"s_mov_b32 s{S_T1}, L_END-{NAME}_kernel")
        a(f"v_cmp_gt_u32 vcc, s{S_T1}, v{t}")
        a(f"s_and_b64 vcc, vcc, 31")
        a(f"s_and_saveexec_b64 s[{S_SAVE}:{S_SAVE+1}], vcc")
        a("s_cbranch_execz L_NOCP2")
        a(f"global_load_dword v{V_TL}, v{t}, s[{S_RET}:{S_RET+1}]")
        a.lab("L_NOCP2")
        rest_exec()
        a.lab("L_NOCP")
    a(f"s_cmp_lg_u32 s{S_WID}, 0")
    a("s_cbranch_scc1 L_NOG0")
    a(f"s_lshl_b32 s{S_T0}, s{S_IDX}, 8")
    a(f"s_add_u32 s{S_T0}, s{S_T0}, {WS_FLAG}")
    a(f"s_lshl_b32 s{S_T1}, s{S_GRP}, 12")
    a(f"s_add_u32 s{S_T1}, s{S_T1}, {WS_OF}")
    a(f"v_mov_b32 v{t}, 0")
    a(f"buffer_load_dword v{V_TG}, v{t}, {WS}, s{S_T0} offen sc1")
    a(f"s_sub_u32 s{S_T0}, s{S_T0}, 256")
    a(f"s_max_u32 s{S_T0}, s{S_T0}, {WS_FLAG}")
    a(f"buffer_load_dword v{V_TG+1}, v{t}, {WS}, s{S_T0} offen sc1")
    a(f"buffer_load_dword v{V_TG+2}, v{t}, {WS}, s{S_T1} offen sc1")
    a.lab("L_NOG0")
    for i in range(112):
        a(f"v_mov_b32 v{V_ACC+i}, 0")
    emit_masks()
    emit_p2_patterns()
    a(f"v_mov_b32 v{t+2}, 0x3f803f80")
    a(f"v_mov_b32 v{t+3}, 0x3f803f80")
    a(f"v_mul_u32_u24 v{t+4}, 576, v{L}")
    a(f"v_add_u32 v{t+4}, {MISC}, v{t+4}")
    save_exec(15)
    a(f"ds_write_b64 v{t+4}, v[{t+2}:{t+3}]")
    rest_exec()
    a(f"s_cmp_lg_u32 s{S_WID}, 0")
    a("s_cbranch_scc1 L_NOG1")
    a("s_waitcnt vmcnt(0)")
    for i in range(3): a(f"v_add_u32 v{V_TG+i}, {TAG_INC:#x}, v{V_TG+i}")
    a(f"v_mov_b32 v{V_TG+3}, 0")
    a(f"v_mov_b32 v{t+4}, {TAGS_LDS}")
    save_exec(1)
    a(f"ds_write_b128 v{t+4}, v[{V_TG}:{V_TG+3}]")
    for i in range(4): a(f"v_mov_b32 v{V_TG+i}, 0")
    a(f"ds_write_b128 v{t+4}, v[{V_TG}:{V_TG+3}] offset:16")
    rest_exec()
    a.lab("L_NOG1")
    a("s_waitcnt lgkmcnt(0)")
    a("s_barrier")
    if "tsh" not in exp and "tsj" not in exp: ts(1)
    def reads(setb, ks):
        xs = [f"ds_read_b128 v[{setb+4*mt}:{setb+4*mt+3}], v{V_AX+ks} offset:{mt*2048}" for mt in range(4)]
        ws = []
        for Tn in range(7):
            b = setb + 16 + 4*Tn
            ws.append(f"ds_read_b64_tr_b16 v[{b}:{b+1}], v{V_AW+Tn} offset:{ks*8192}")
            ws.append(f"ds_read_b64_tr_b16 v[{b+2}:{b+3}], v{V_AW+Tn} offset:{ks*8192+1024}")
        return [xs[0], ws[0], ws[1], xs[1], ws[2], ws[3], xs[2], ws[4], ws[5], xs[3]] + ws[6:]
    def mfmas(setb):
        m = []
        for Tn in range(7):
            for mt in range(4):
                d = V_ACC + (mt*7+Tn)*4
                m.append(f"v_mfma_f32_16x16x32_bf16 v[{d}:{d+3}], v[{setb+16+4*Tn}:{setb+16+4*Tn+3}], v[{setb+4*mt}:{setb+4*mt+3}], v[{d}:{d+3}]")
        return m
    def interleave(ms, extra, per=1):
        ri = 0
        for i, m in enumerate(ms):
            a(m)
            for _ in range(per):
                if ri < len(extra): a(extra[ri]); ri += 1
        while ri < len(extra):
            a(extra[ri]); ri += 1
    for i in range(4): a(f"v_mov_b32 v{V_TG+i}, -1")
    a(f"v_lshlrev_b32 v{V_TL+1}, 4, v{L}")
    a(f"s_lshl_b32 s{S_XB}, s{S_GRP}, 18")
    a(f"s_add_u32 s{S_XB}, s{S_XB}, {WS_O}")
    a(f"s_lshl_b32 s{S_T0}, s{S_WID}, 16")
    a(f"s_add_u32 s{S_XB}, s{S_XB}, s{S_T0}")
    a(f"s_lshl_b32 s{S_T0}, s{S_HP}, 10")
    a(f"s_add_u32 s{S_XB}, s{S_XB}, s{S_T0}")
    a(f"s_lshl_b32 s{S_WB}, s{S_GRP}, 15")
    a(f"s_add_u32 s{S_WB}, s{S_WB}, {WS_OR}")
    a(f"s_lshl_b32 s{S_T0}, s{S_HP}, 1")
    a(f"s_and_b32 s{S_T1}, s{S_WID}, 1")
    a(f"s_add_u32 s{S_T0}, s{S_T0}, s{S_T1}")
    a(f"s_lshl_b32 s{S_T0}, s{S_T0}, 10")
    a(f"s_add_u32 s{S_WB}, s{S_WB}, s{S_T0}")
    for rd in reads(V_SET0, 0): a(rd)
    a(f"s_mov_b32 s{S_K}, 0")
    a(f"s_mov_b32 s{S_SB}, 0")
    if 'tb' in exp: a(f"v_mov_b32 v{V_TL}, 0")
    a.lab("L_GEMM")
    a(f"s_cmp_lt_u32 s{S_K}, 7")
    a("s_cbranch_scc1 L_GEMM_NC")
    a(f"buffer_store_dwordx4 v[{V_TG}:{V_TG+3}], v{V_TL+1}, {WS}, s{S_XB} offen sc1")
    a(f"s_add_u32 s{S_XB}, s{S_XB}, 16384")
    a(f"buffer_store_dwordx4 v[{V_TG}:{V_TG+3}], v{V_TL+1}, {WS}, s{S_XB} offen sc1")
    a(f"s_add_u32 s{S_XB}, s{S_XB}, 16384")
    a(f"s_cmp_eq_u32 s{S_K}, 8")
    a("s_cbranch_scc1 L_GEMM_NC")
    a(f"buffer_store_dwordx4 v[{V_TG}:{V_TG+3}], v{V_TL+1}, {WS}, s{S_WB} offen sc1")
    a.lab("L_GEMM_NC")
    a("s_waitcnt lgkmcnt(0)")
    if 'tb' in exp:
        a(f"s_sub_u32 s92, s92, s70")
        a(f"s_mov_b32 m0, s{S_K}")
        a("s_nop 4")
        a(f"v_writelane_b32 v{V_TL}, s92, m0")
    sal = [f"s_add_u32 s{S_SB}, s{S_SB}, 1", f"s_cmp_eq_u32 s{S_SB}, 3", f"s_mov_b32 s{S_T0}, {STAGE}",
           f"s_cselect_b32 s{S_T0}, {(-2*STAGE) & 0xffffffff}, s{S_T0}", f"s_cselect_b32 s{S_SB}, 0, s{S_SB}"]
    interleave(mfmas(V_SET0), reads(V_SET1, 1) + sal)
    a("s_waitcnt lgkmcnt(0)")
    a("s_barrier")
    if 'tb' in exp: a("s_memtime s[92:93]")
    rd = reads(V_SET0, 0)
    adds = [f"v_add_u32 v{V_AX+i}, s{S_T0}, v{V_AX+i}" for i in range(9)]
    ex = [adds[0], adds[2], rd[0], rd[1], rd[2], adds[3], rd[3], rd[4], rd[5], adds[4], rd[6], rd[7], rd[8], rd[9],
          adds[5], rd[10], rd[11], adds[6], rd[12], rd[13], adds[7], rd[14], rd[15], adds[8], rd[16], rd[17], adds[1],
          f"s_add_u32 s{S_K}, s{S_K}, 1", f"s_cmp_lt_u32 s{S_K}, 9"]
    ms = mfmas(V_SET1)
    ri = 0
    for i, m in enumerate(ms):
        a(m)
        n = 2 if i < 6 else 1
        for _ in range(n):
            if ri < len(ex): a(ex[ri]); ri += 1
    assert ri == len(ex)
    a("s_cbranch_scc1 L_GEMM")
    if "tsh" not in exp and "tsj" not in exp: ts(2)
    a.c("phase-1 epilogue")
    acc = lambda mt, Tn: V_ACC + (mt*7+Tn)*4
    SC = 84
    def qk_cvt(Tn, R0):
        for p in range(2):
            R = R0 + 4*p
            da, db = acc(2*p, Tn), acc(2*p+1, Tn)
            a(f"v_cvt_pk_bf16_f32 v{R}, v{da}, v{da+1}")
            a(f"v_cvt_pk_bf16_f32 v{R+2}, v{db}, v{db+1}")
            a(f"v_cvt_pk_bf16_f32 v{R+1}, v{da+2}, v{da+3}")
            a(f"v_cvt_pk_bf16_f32 v{R+3}, v{db+2}, v{db+3}")
    def qk_swap(R):
        a(f"v_permlane16_swap_b32 v{R}, v{R+2}")
        a(f"v_permlane16_swap_b32 v{R+1}, v{R+3}")
    a("s_nop 3")
    qk_cvt(2, SC); qk_cvt(3, SC+8)
    vw = []
    for Tn in (4, 5):
        for mt in range(4):
            R = SC + 16 + ((Tn-4)*4+mt)*2
            d = acc(mt, Tn)
            a(f"v_cvt_pk_bf16_f32 v{R}, v{d}, v{d+1}")
            a(f"v_cvt_pk_bf16_f32 v{R+1}, v{d+2}, v{d+3}")
            vw.append(f"ds_write_b64 v{vEV}, v[{R}:{R+1}] offset:{(mt>>1)*TILE + (mt&1)*1152 + (40 if Tn==5 else 0)}")
    kw = [(SC+4*q, (q & 1)*TILE + (q >> 1)*1024) for q in range(4)]
    for q, (R, off) in enumerate(kw):
        qk_swap(R)
        a(vw[2*q]); a(vw[2*q+1])
    for mt in range(4):
        d = acc(mt, 6)
        a(f"v_pk_mul_f32 v[{d}:{d+1}], v[{d}:{d+1}], v[{vF}:{vF+1}]")
        a(f"v_pk_mul_f32 v[{d+2}:{d+3}], v[{d+2}:{d+3}], v[{vF}:{vF+1}]")
        R, off = kw[mt]
        a(f"ds_write_b128 v{vEK}, v[{R}:{R+3}] offset:{off}")
    R6 = SC + 32
    a(f"v_add_u32 v{t}, v{vE6}, v{vDr}")
    a(f"v_add_u32 v{t+1}, v{vE6}, v{vDt}")
    for mt in range(4):
        d = acc(mt, 6)
        a(f"v_cvt_pk_bf16_f32 v{R6+2*mt}, v{d}, v{d+1}")
        a(f"v_cvt_pk_bf16_f32 v{R6+2*mt+1}, v{d+2}, v{d+3}")
    a(f"v_add_u32 v{t+2}, v{t+1}, v{vDr}")
    a(f"s_mov_b64 s[{S_SAVE}:{S_SAVE+1}], exec")
    a(f"s_mov_b32 exec_hi, 0x0000ffff")
    a(f"ds_write_b64 v{vE6}, v[{R6}:{R6+1}]")
    a(f"ds_write_b64 v{t}, v[{R6+2}:{R6+3}]")
    a(f"ds_write_b64 v{t+1}, v[{R6+4}:{R6+5}]")
    a(f"ds_write_b64 v{t+2}, v[{R6+6}:{R6+7}]")
    rest_exec()
    for mt in range(4):
        for Tn in (0, 1):
            d = acc(mt, Tn)
            a(f"v_pk_mul_f32 v[{d}:{d+1}], v[{d}:{d+1}], v[{vC}:{vC+1}]")
            a(f"v_pk_mul_f32 v[{d+2}:{d+3}], v[{d+2}:{d+3}], v[{vC}:{vC+1}]")
    if 'tse' in exp: ts(5, True)
    a("s_waitcnt lgkmcnt(0)")
    if 'tse' in exp: ts(6, True)
    a("s_barrier")
    if 'tse' in exp: ts(7, True)
    qk_cvt(0, SC); qk_cvt(1, SC+8)
    for r in range(8): a(f"v_mov_b32 v{OA+r}, 0")
    for q in range(4):
        R = SC + 4*q
        qk_swap(R)
        for r in range(4): a(f"v_mov_b32 v{OA+8+4*q+r}, 0") if q < 2 else a(f"v_mov_b32 v{OB+4*(q-2)+r}, 0")
        a(f"ds_write_b128 v{vEQ}, v[{R}:{R+3}] offset:{(q & 1)*QTILE + (q >> 1)*1024}")
    for r in range(8, 16): a(f"v_mov_b32 v{OB+r}, 0")

    a.lab("L_P2")
    if 'tse' in exp: ts(8, True)
    a(f"v_mov_b32 v{t}, {TAGS_LDS}")
    a(f"ds_read_b128 v[{V_TG}:{V_TG+3}], v{t}")
    a("s_waitcnt lgkmcnt(0)")
    a("s_barrier")
    ts(3)
    if debug_stage == 1:
        a(f"s_lshl_b32 s{S_T0}, s{S_IDX}, 16")
        a(f"v_lshlrev_b32 v{t}, 4, v0")
        for i in range(7):
            a(f"v_add_u32 v{t+1}, {KV_OWN + i*8192}, v{t}")
            a(f"ds_read_b128 v[40:43], v{t+1}")
            a("s_waitcnt lgkmcnt(0)")
            a(f"v_add_u32 v{t+2}, {i*8192}, v{t}")
            a(f"buffer_store_dwordx4 v[40:43], v{t+2}, {WS}, s{S_T0} offen")
            a("s_waitcnt vmcnt(0)")
        a("s_branch L_FIN")
    if debug_stage == 9:
        a("s_branch L_FIN")
    if debug_stage not in (1, 9):
        phase2(a, debug_stage, ts, exp, save_exec, rest_exec)
        phase3(a, debug_stage, ts, exp, save_exec, rest_exec)
    a.lab("L_FIN")
    if 'hdbg' in exp:
        a("s_waitcnt vmcnt(0) lgkmcnt(0)")
        a("s_memrealtime s[94:95]")
        a(f"s_load_dwordx2 s[{S_X}:{S_X+1}], s[0:1], 56")
        a("s_waitcnt lgkmcnt(0)")
        a(f"s_cmp_lg_u32 s{S_WID}, 4")
        a("s_cbranch_scc1 L_END")
        a(f"s_mov_b32 s{S_X+2}, 256")
        a(f"s_mov_b32 s{S_X+3}, 0x00020000")
        a("s_mov_b64 exec, 1")
        a("v_mov_b32 v2, 0")
        a("s_not_b32 s33, s70")
        a("v_mov_b32 v3, s33")
        a(f"buffer_atomic_umax v3, v2, s[{S_X}:{S_X+3}], 0 offen offset:0")
        a("v_mov_b32 v3, s70")
        a(f"buffer_atomic_umax v3, v2, s[{S_X}:{S_X+3}], 0 offen offset:4")
        for k, i in enumerate((3, 4, 5, 7, 8, 10, 9, 11, 12)):
            a(f"v_mov_b32 v{4+k}, s{70+2*i}")
            a(f"buffer_atomic_umax v{4+k}, v2, s[{S_X}:{S_X+3}], 0 offen offset:{8+4*k}")
        a("s_waitcnt vmcnt(0)")
        a("s_branch L_END")
    if timing:
        a("s_waitcnt vmcnt(0) lgkmcnt(0)")
        a(f"{'s_memrealtime' if ('abs' in exp or 'hdbg' in exp) else 's_memtime'} s[94:95]")
        a("s_waitcnt lgkmcnt(0)")
        a(f"s_lshl_b32 s{S_T0}, s2, 3")
        a(f"s_add_u32 s{S_T0}, s{S_T0}, s{S_WID}")
        a(f"s_lshl_b32 s{S_T0}, s{S_T0}, 6")
        a(f"s_add_u32 s{S_T0}, s{S_T0}, {TIMING_OFF}")
        for i in range(13):
            a(f"s_sub_u32 s{S_T1}, s{70+2*i}, s70" if (i and 'abs' not in exp) else f"s_mov_b32 s{S_T1}, s{70+2*i}")
            a(f"s_cmp_eq_u32 s{70+2*i}, 0")
            a(f"s_cselect_b32 s{S_T1}, 0, s{S_T1}")
            a(f"v_mov_b32 v{40+i}, s{S_T1}")
        if 'tb' in exp:
            a(f"v_lshlrev_b32 v2, 2, v{V_LANE}")
            a(f"s_add_u32 s{S_T1}, s{S_T0}, {1<<20}")
            a(f"s_mov_b64 exec, 0xffff")
            a(f"buffer_store_dword v{V_TL}, v2, {WS}, s{S_T1} offen")
        a(f"v_mov_b32 v2, 0")
        a(f"s_mov_b64 exec, 1")
        for i in range(3):
            a(f"buffer_store_dwordx4 v[{40+4*i}:{43+4*i}], v2, {WS}, s{S_T0} offen offset:{16*i}")
        a(f"buffer_store_dword v52, v2, {WS}, s{S_T0} offen offset:48")
        a("s_waitcnt vmcnt(0)")
    a.lab("L_END")
    a("s_endpgm")
    a(f""".section .rodata,"a"
.p2align 6
.amdhsa_kernel {NAME}_kernel
  .amdhsa_next_free_vgpr 256
  .amdhsa_next_free_sgpr 102
  .amdhsa_accum_offset 256
  .amdhsa_group_segment_fixed_size 0
  .amdhsa_kernarg_size 72
  .amdhsa_user_sgpr_count 2
  .amdhsa_user_sgpr_kernarg_segment_ptr 1
  .amdhsa_system_sgpr_workgroup_id_x 1
.end_amdhsa_kernel""")
    return a.text()

WS = f"s[{S_WS}:{S_WS+3}]"

def spin_poll(a, name, check_lines, load_line, limit=2000000, first_done=False):
    a(f"s_mov_b32 s{S_CNT}, 0")
    if first_done: a(f"s_branch {name}_W")
    a.lab(name)
    a(load_line)
    a.lab(name + "_W")
    a(f"s_add_u32 s{S_CNT}, s{S_CNT}, 1")
    a("s_waitcnt vmcnt(0)")
    for l in check_lines: a(l)
    a(f"s_cbranch_scc1 {name}_OK")
    a(f"s_cmp_lt_u32 s{S_CNT}, {limit}")
    a(f"s_cbranch_scc1 {name}")
    a.lab(name + "_OK")

def lds_inc(a, addr, save_exec, rest_exec, rtn=None):
    t = T
    a(f"v_mov_b32 v{t}, {addr}")
    a(f"v_mov_b32 v{t+1}, 1")
    save_exec(1)
    if rtn is None: a(f"ds_add_u32 v{t}, v{t+1}")
    else: a(f"ds_add_rtn_u32 v{rtn}, v{t}, v{t+1}")
    rest_exec()

def lds_wait(a, name, addr, val):
    t = T
    a(f"v_mov_b32 v{t}, {addr}")
    a(f"s_mov_b32 s{S_CNT}, 0")
    a.lab(name)
    a(f"ds_read_b32 v{t+1}, v{t}")
    a(f"s_add_u32 s{S_CNT}, s{S_CNT}, 1")
    a("s_waitcnt lgkmcnt(0)")
    a(f"v_readfirstlane_b32 s{S_T0}, v{t+1}")
    a(f"s_cmp_ge_u32 s{S_T0}, {val}")
    a(f"s_cbranch_scc1 {name}_OK")
    a(f"s_cmp_lt_u32 s{S_CNT}, 20000000")
    a(f"s_cbranch_scc1 {name}")
    a.lab(name + "_OK")

def hook_point(a, tag):
    a(f"s_add_u32 s{S_U}, s{S_U}, 1")
    a(f"s_cmp_lg_u32 s{S_U}, s{S_HOOK}")
    a(f"s_cbranch_scc1 {tag}")
    a(f"s_call_b64 s[{S_RET2}:{S_RET2+1}], L_HOOK")
    a.lab(tag)

def run_code(a, name, QM, QR, O, exp):
    cnt = [0]
    def qk1(creg):
        c = "0" if creg is None else f"v[{creg}:{creg+15}]"
        a(f"v_mfma_f32_32x32x16_bf16 v[{VS}:{VS+15}], v[{VKF}:{VKF+3}], v[{QM}:{QM+3}], {c}")
    def qk2():
        a(f"v_mfma_f32_32x32x16_bf16 v[{VS}:{VS+15}], v[{VKR}:{VKR+3}], v[{QR}:{QR+3}], v[{VS}:{VS+15}]")
    def pv(V, P):
        a(f"v_mfma_f32_32x32x16_bf16 v[{O}:{O+15}], v[{V}:{V+3}], v[{P}:{P+3}], v[{O}:{O+15}]")
    def kread():
        a(f"ds_read_b128 v[{VKF}:{VKF+3}], v{A_K}")
        a(f"ds_read_b64 v[{VKR}:{VKR+1}], v{A_KR}")
    def kstep():
        a(f"v_add_u32 v{A_K}, v{ST_K}, v{A_K}")
        a(f"v_add_u32 v{A_KR}, v{ST_K}, v{A_KR}")
    def vread(V, off):
        a(f"ds_read_b64_tr_b16 v[{V}:{V+1}], v{A_V} offset:{off}")
        a(f"ds_read_b64_tr_b16 v[{V+2}:{V+3}], v{A_V} offset:{off+576}")
    def cvt(j): a(f"v_cvt_pk_bf16_f32 v{VP+j}, v{VE+2*j}, v{VE+2*j+1}")
    def ex(r): a(f"v_exp_f32 v{VE+r}, v{VS+r}")
    def unit(D):
        if 'pf' in exp: a("s_setprio 1" if 'pfi' not in exp else "s_setprio 0")
        for r in range(8): ex(r)
        for j in range(4): cvt(j)
        ex(8); ex(9)
        a("s_waitcnt lgkmcnt(0)")
        pv(VVA, VP)
        for r in range(10, 16): ex(r)
        if 'pf' in exp: a("s_setprio 0" if 'pfi' not in exp else "s_setprio 1")
        if D:
            qk1(V_MASK if D == "mask" else None)
            for j in range(4, 8): cvt(j)
            vread(VVA, 0)
            qk2()
            kstep()
            kread()
            pv(VVB, VP+4)
            vread(VVB, 1152)
            a(f"v_add_u32 v{A_V}, v{ST_V}, v{A_V}")
        else:
            a("s_nop 0")
            for j in range(4, 8): cvt(j)
            a("s_nop 1")
            pv(VVB, VP+4)
    a.lab(name)
    kread()
    a(f"s_cmp_eq_u32 s{S_N}, 1")
    a(f"s_cbranch_scc1 {name}_M1")
    kstep()
    a("s_waitcnt lgkmcnt(0)")
    qk1(None); qk2()
    vread(VVA, 0); kread(); vread(VVB, 1152)
    a(f"v_add_u32 v{A_V}, v{ST_V}, v{A_V}")
    a(f"s_sub_u32 s{S_N}, s{S_N}, 2")
    a.lab(name + "_BT")
    a(f"s_cmp_eq_u32 s{S_N}, 0")
    a(f"s_cbranch_scc1 {name}_MK0")
    a(f"s_sub_u32 s{S_E}, s{S_HOOK}, s{S_U}")
    a(f"s_min_u32 s{S_E}, s{S_E}, s{S_N}")
    a(f"s_sub_u32 s{S_N}, s{S_N}, s{S_E}")
    a(f"s_add_u32 s{S_U}, s{S_U}, s{S_E}")
    a(f"s_sub_u32 s{S_E}, s{S_E}, 1")
    a.lab(name + "_LP")
    unit("plain")
    a(f"s_sub_u32 s{S_E}, s{S_E}, 1")
    a("s_nop 1")
    a(f"s_cbranch_scc0 {name}_LP")
    a(f"s_cmp_lg_u32 s{S_U}, s{S_HOOK}")
    a(f"s_cbranch_scc1 {name}_BT")
    a(f"s_call_b64 s[{S_RET2}:{S_RET2+1}], L_HOOK")
    a(f"s_branch {name}_BT")
    a.lab(name + "_MK0")
    a("s_nop 3")
    a.lab(name + "_MK")
    unit("mask")
    hook_point(a, f"{name}_H1")
    a("s_nop 1")
    a.lab(name + "_FN")
    unit(None)
    hook_point(a, f"{name}_H2")
    a(f"s_setpc_b64 s[{S_RET}:{S_RET+1}]")
    a.lab(name + "_M1")
    a("s_waitcnt lgkmcnt(0)")
    qk1(V_MASK); qk2()
    vread(VVA, 0); vread(VVB, 1152)
    a("s_nop 7")
    a(f"s_branch {name}_FN")

def set_run(a, region, tile_sreg, n_lines, step):
    a(f"s_mul_i32 s{S_T0}, s{tile_sreg}, {TILE}" if tile_sreg is not None else f"s_mov_b32 s{S_T0}, 0")
    a(f"s_add_u32 s{S_T0}, s{S_T0}, {region}")
    a(f"v_add_u32 v{A_K}, s{S_T0}, v{B_K}")
    a(f"v_add_u32 v{A_KR}, s{S_T0}, v{B_KR}")
    a(f"v_and_b32 v{A_V}, s{S_T0}, v{MK_V}")
    a(f"v_add_u32 v{A_V}, v{B_V}, v{A_V}")
    a(f"v_mov_b32 v{ST_K}, {step & 0xffffffff:#x}")
    a(f"v_and_b32 v{ST_V}, v{ST_K}, v{MK_V}")
    for l in n_lines: a(l)

F_MD, F_MF, F_M = 190, 206, 222
S_FQ, S_FT, S_FK, S_FP, S_FI2 = 32+12, 45, 46, 47, 48

def safety_check(a, O, isB, qb_sreg, tag):
    t = T
    a(f"v_max3_f32 v{t}, |v{O}|, |v{O+1}|, |v{O+2}|")
    for k in range(3, 11, 2): a(f"v_max3_f32 v{t}, v{t}, |v{O+k}|, |v{O+k+1}|")
    a(f"v_max_f32 v{t}, v{t}, |v{O+11}|".replace("v_max_f32", "v_max_f32_e64"))
    a(f"v_mov_b32 v{t+1}, 0x21800000")
    a(f"v_mov_b32 v{t+2}, 0x5d800000")
    a(f"v_mov_b32 v{t+3}, 0x7f000000")
    a(f"v_cmp_nge_f32 vcc, v{O+12}, v{t+1}")
    a(f"v_cmp_nle_f32 s[{S_BAD}:{S_BAD+1}], v{O+12}, v{t+2}")
    a(f"s_or_b64 vcc, vcc, s[{S_BAD}:{S_BAD+1}]")
    a(f"v_cmp_nlt_f32 s[{S_BAD}:{S_BAD+1}], v{t}, v{t+3}")
    a(f"s_or_b64 vcc, vcc, s[{S_BAD}:{S_BAD+1}]")
    a("s_cmp_eq_u64 vcc, 0")
    a(f"s_cbranch_scc1 L_SAFE{tag}")
    a(f"s_mov_b32 s{S_FQ}, s{qb_sreg}")
    if isB:
        for r in range(8): a(f"v_swap_b32 v{QA_M+r}, v{QB_M+r}")
        for r in range(16): a(f"v_swap_b32 v{OA+r}, v{OB+r}")
    a(f"s_call_b64 s[{S_RET}:{S_RET+1}], L_FB")
    if isB:
        for r in range(8): a(f"v_swap_b32 v{QA_M+r}, v{QB_M+r}")
        for r in range(16): a(f"v_swap_b32 v{OA+r}, v{OB+r}")
    a.lab(f"L_SAFE{tag}")

def fallback_code(a):
    t = T; L = V_LANE
    a.lab("L_FB")
    a(f"v_and_b32 v{t}, 31, v{L}")
    a(f"v_lshrrev_b32 v{t+1}, 5, v{L}")
    a(f"v_lshlrev_b32 v{t+1}, 2, v{t+1}")
    a(f"v_sub_u32 v{t}, v{t}, v{t+1}")
    a(f"v_mov_b32 v{t+1}, {NEG:#x}")
    for r in range(16):
        jj = (r & 3) + 8*(r >> 2)
        a(f"v_cmp_le_i32 vcc, {jj}, v{t}")
        a("s_nop 1")
        a(f"v_cndmask_b32_e64 v{F_MD+r}, v{t+1}, 0, vcc")
        a(f"v_sub_f32 v{F_MF+r}, v{t+1}, v{F_MD+r}")
    a(f"v_mov_b32 v{F_M}, 0xff800000")
    a(f"s_mov_b32 s{S_FP}, 0")
    a.lab("L_FB_PASS")
    a(f"s_mov_b32 s{S_FI2}, 0")
    a.lab("L_FB_OWN")
    a(f"s_mul_i32 s{S_FT}, s{S_FI2}, {TILE}")
    a(f"s_add_u32 s{S_FT}, s{S_FT}, {KV_OWN}")
    a(f"s_cmp_eq_u32 s{S_FI2}, s{S_FQ}")
    a(f"s_cselect_b32 s{S_FK}, 1, 0")
    a(f"s_call_b64 s[{S_RET2}:{S_RET2+1}], L_FB_TILE")
    a(f"s_add_u32 s{S_FI2}, s{S_FI2}, 1")
    a(f"s_cmp_le_u32 s{S_FI2}, s{S_FQ}")
    a("s_cbranch_scc1 L_FB_OWN")
    a(f"s_cmp_eq_u32 s{S_S}, 0")
    a("s_cbranch_scc1 L_FB_PEND")
    a(f"s_mov_b32 s{S_FI2}, s{S_FQ}")
    a.lab("L_FB_HALO")
    a(f"s_mul_i32 s{S_FT}, s{S_FI2}, {TILE}")
    a(f"s_add_u32 s{S_FT}, s{S_FT}, {KV_HALO}")
    a(f"s_cmp_eq_u32 s{S_FI2}, s{S_FQ}")
    a(f"s_cselect_b32 s{S_FK}, 2, 0")
    a(f"s_call_b64 s[{S_RET2}:{S_RET2+1}], L_FB_TILE")
    a(f"s_add_u32 s{S_FI2}, s{S_FI2}, 1")
    a(f"s_cmp_le_u32 s{S_FI2}, 7")
    a("s_cbranch_scc1 L_FB_HALO")
    a.lab("L_FB_PEND")
    a(f"s_cmp_eq_u32 s{S_FP}, 1")
    a("s_cbranch_scc1 L_FB_DONE")
    a(f"v_mov_b32 v{t}, v{F_M}")
    a("s_nop 1")
    a(f"v_permlane32_swap_b32 v{F_M}, v{t}")
    a("s_nop 1")
    a(f"v_max_f32 v{F_M}, v{F_M}, v{t}")
    for r in range(16): a(f"v_mov_b32 v{OA+r}, 0")
    a(f"s_mov_b32 s{S_FP}, 1")
    a("s_branch L_FB_PASS")
    a.lab("L_FB_DONE")
    a("s_nop 15")
    a(f"s_setpc_b64 s[{S_RET}:{S_RET+1}]")
    a.lab("L_FB_TILE")
    a(f"v_add_u32 v{A_K}, s{S_FT}, v{B_K}")
    a(f"v_add_u32 v{A_KR}, s{S_FT}, v{B_KR}")
    a(f"v_and_b32 v{A_V}, s{S_FT}, v{MK_V}")
    a(f"v_add_u32 v{A_V}, v{B_V}, v{A_V}")
    a(f"ds_read_b128 v[{VKF}:{VKF+3}], v{A_K}")
    a(f"ds_read_b64 v[{VKR}:{VKR+1}], v{A_KR}")
    a(f"ds_read_b64_tr_b16 v[{VVA}:{VVA+1}], v{A_V}")
    a(f"ds_read_b64_tr_b16 v[{VVA+2}:{VVA+3}], v{A_V} offset:576")
    a(f"ds_read_b64_tr_b16 v[{VVB}:{VVB+1}], v{A_V} offset:1152")
    a(f"ds_read_b64_tr_b16 v[{VVB+2}:{VVB+3}], v{A_V} offset:1728")
    a("s_waitcnt lgkmcnt(0)")
    a(f"v_mfma_f32_32x32x16_bf16 v[{VS}:{VS+15}], v[{VKF}:{VKF+3}], v[{QA_M}:{QA_M+3}], 0")
    a(f"v_mfma_f32_32x32x16_bf16 v[{VS}:{VS+15}], v[{VKR}:{VKR+3}], v[{QA_R}:{QA_R+3}], v[{VS}:{VS+15}]")
    a("s_nop 15")
    a(f"s_cmp_eq_u32 s{S_FK}, 0")
    a("s_cbranch_scc1 L_FB_NM")
    a(f"s_cmp_eq_u32 s{S_FK}, 1")
    a("s_cbranch_scc0 L_FB_FM")
    for r in range(16): a(f"v_add_f32 v{VS+r}, v{VS+r}, v{F_MD+r}")
    a("s_branch L_FB_NM")
    a.lab("L_FB_FM")
    for r in range(16): a(f"v_add_f32 v{VS+r}, v{VS+r}, v{F_MF+r}")
    a.lab("L_FB_NM")
    a(f"s_cmp_eq_u32 s{S_FP}, 0")
    a("s_cbranch_scc0 L_FB_P1")
    for r in range(0, 16, 2): a(f"v_max3_f32 v{F_M}, v{F_M}, v{VS+r}, v{VS+r+1}")
    a(f"s_setpc_b64 s[{S_RET2}:{S_RET2+1}]")
    a.lab("L_FB_P1")
    for r in range(16): a(f"v_sub_f32 v{VS+r}, v{VS+r}, v{F_M}")
    for r in range(16): a(f"v_exp_f32 v{VE+r}, v{VS+r}")
    a("s_nop 0")
    for j in range(8): a(f"v_cvt_pk_bf16_f32 v{VP+j}, v{VE+2*j}, v{VE+2*j+1}")
    a("s_nop 1")
    a(f"v_mfma_f32_32x32x16_bf16 v[{OA}:{OA+15}], v[{VVA}:{VVA+3}], v[{VP}:{VP+3}], v[{OA}:{OA+15}]")
    a(f"v_mfma_f32_32x32x16_bf16 v[{OA}:{OA+15}], v[{VVB}:{VVB+3}], v[{VP+4}:{VP+7}], v[{OA}:{OA+15}]")
    a("s_nop 7")
    a(f"s_setpc_b64 s[{S_RET2}:{S_RET2+1}]")

def finalize(a, O, qb_sreg, save_exec, rest_exec):
    t = T; R = VS
    a(f"v_rcp_f32 v{t+2}, v{O+12}")
    a(f"s_lshl_b32 s{S_T0}, s{qb_sreg}, 15")
    a(f"s_add_u32 s{S_T1}, s{S_T0}, s{S_OM}")
    a(f"s_lshl_b32 s{S_T0}, s{qb_sreg}, 7")
    a(f"s_add_u32 s{S_T2}, s{S_T0}, s{S_OR}")
    for r in range(12): a(f"v_mul_f32 v{O+r}, v{O+r}, v{t+2}")
    a(f"v_cvt_pk_bf16_f32 v{R}, v{O}, v{O+1}")
    a(f"v_cvt_pk_bf16_f32 v{R+1}, v{O+2}, v{O+3}")
    a(f"v_cvt_pk_bf16_f32 v{R+2}, v{O+4}, v{O+5}")
    a(f"v_cvt_pk_bf16_f32 v{R+3}, v{O+6}, v{O+7}")
    a(f"v_cvt_pk_bf16_f32 v{R+4}, v{O+8}, v{O+9}")
    a(f"v_cvt_pk_bf16_f32 v{R+5}, v{O+10}, v{O+11}")
    a(f"s_cmp_eq_u32 s{S_HEAD}, 0")
    a(f"s_cselect_b64 s[{S_SAVE}:{S_SAVE+1}], -1, 0")
    a(f"v_permlane32_swap_b32 v{R}, v{R+2}")
    a(f"v_permlane32_swap_b32 v{R+1}, v{R+3}")
    a(f"v_cndmask_b32_e64 v{R+4}, v{R+5}, v{R+4}, s[{S_SAVE}:{S_SAVE+1}]")
    a(f"buffer_store_dwordx4 v[{R}:{R+3}], v{V_OA1}, {WS}, s{S_T1} offen sc1")
    a(f"s_mov_b64 s[{S_SAVE}:{S_SAVE+1}], exec")
    a(f"s_mov_b32 exec_hi, 0")
    a(f"buffer_store_dword v{R+4}, v{V_OA2}, {WS}, s{S_T2} offen sc1")
    rest_exec()

def oflag(a, name, cnt_addr, flag_off, save_exec, rest_exec, after_store=None, last=7):
    t = T
    lds_inc(a, cnt_addr, save_exec, rest_exec, rtn=t+2)
    a("s_waitcnt lgkmcnt(0)")
    a(f"v_readfirstlane_b32 s{S_T0}, v{t+2}")
    a(f"s_cmp_lg_u32 s{S_T0}, {last}")
    a(f"s_cbranch_scc1 {name}")
    a(f"s_lshl_b32 s{S_T0}, s{S_HP}, 2")
    a(f"s_add_u32 s{S_T0}, s{S_T0}, s{S_OFS}")
    a(f"v_lshlrev_b32 v{t}, 7, v{V_LANE}")
    a(f"v_mov_b32 v{t+1}, s{S_TAGO}")
    save_exec("0xffff")
    a(f"buffer_store_dword v{t+1}, v{t}, {WS}, s{S_T0} offen offset:{flag_off} sc1")
    rest_exec()
    if after_store: after_store()
    a.lab(name)

def phase2(a, debug_stage, ts, exp, save_exec, rest_exec):
    t = T; L = V_LANE
    UH = (4, 6, 8)
    if 'hkA' in exp: UH = (3, 5, 7)
    if 'hkB' in exp: UH = (4, 6, 7)
    if 'hkC' in exp: UH = (5, 7, 8)
    UP = 15
    a.c("======== phase 2 ========")
    a(f"v_readfirstlane_b32 s{S_TAGOUT}, v{V_TG}")
    a(f"v_readfirstlane_b32 s{S_TAGIN}, v{V_TG+1}")
    a(f"v_readfirstlane_b32 s{S_TAGO}, v{V_TG+2}")
    a(f"v_bfe_u32 v{V_OA1}, v{L}, 4, 1")
    a(f"v_lshlrev_b32 v{V_OA1}, 14, v{V_OA1}")
    a(f"v_and_b32 v{t+4}, 15, v{L}")
    a(f"v_lshl_add_u32 v{V_OA1}, v{t+4}, 4, v{V_OA1}")
    a(f"v_lshrrev_b32 v{t+4}, 5, v{L}")
    a(f"v_lshl_add_u32 v{V_OA1}, v{t+4}, 8, v{V_OA1}")
    a(f"v_lshlrev_b32 v{V_OA2}, 2, v{L}")
    for (QM, QR, sreg) in ((QA_M, QA_R, S_M), (QB_M, QB_R, S_MB)):
        a(f"s_mul_i32 s{S_T0}, s{sreg}, {QTILE}")
        a(f"s_add_u32 s{S_T0}, s{S_T0}, {Q_BASE}")
        a(f"v_add_u32 v{t+2}, s{S_T0}, v{B_K}")
        a(f"v_add_u32 v{t+3}, s{S_T0}, v{B_KR}")
        a(f"ds_read_b128 v[{QM}:{QM+3}], v{t+2}")
        a(f"ds_read_b64 v[{QR}:{QR+1}], v{t+3}")
    a(f"s_cmp_eq_u32 s{S_HEAD}, 0")
    a(f"s_cselect_b32 s{S_T0}, -1, 0")
    a(f"s_cselect_b32 s{S_T1}, 0, -1")
    a(f"v_cmp_gt_u32 vcc, 32, v{L}")
    a(f"v_mov_b32 v{t}, s{S_T0}")
    a(f"v_mov_b32 v{t+1}, s{S_T1}")
    a(f"v_cndmask_b32_e64 v{t}, 0, v{t}, vcc")
    a(f"v_cndmask_b32_e64 v{t+1}, 0, v{t+1}, vcc")
    a(f"v_mov_b32 v{VKR+2}, 0")
    a(f"v_mov_b32 v{VKR+3}, 0")
    for QR in (QA_R, QB_R):
        a(f"v_mov_b32 v{QR+2}, 0")
        a(f"v_mov_b32 v{QR+3}, 0")
    a("s_waitcnt lgkmcnt(0)")
    for QR in (QA_R, QB_R):
        a(f"v_and_b32 v{QR}, v{QR}, v{t}")
        a(f"v_and_b32 v{QR+1}, v{QR+1}, v{t+1}")
    lds_inc(a, CNTQ, save_exec, rest_exec)
    a(f"s_mov_b32 s{S_U}, 0")
    a(f"s_mov_b32 s{S_HST}, 0")
    a(f"s_mov_b32 s{S_HOOK}, 2")
    a(f"s_mov_b32 s{S_HST}, 5")
    a(f"s_cmp_lt_u32 s{S_WID}, 4")
    a(f"s_cbranch_scc1 L_HS2")
    a(f"s_mov_b32 s{S_HST}, 0")
    a(f"s_mov_b32 s{S_HOOK}, {UH[0]}")
    a(f"s_cmp_eq_u32 s{S_S}, 7")
    a(f"s_cbranch_scc1 L_HS1")
    a(f"s_mul_i32 s{S_T1}, s{S_IDX}, 36864")
    for c, i in enumerate([3, 2, 1, 0]):
        a(f"s_add_u32 s{S_T2}, s{S_T1}, {i*4096}")
        a(f"buffer_store_dwordx4 v[{VH+20+4*c}:{VH+20+4*c+3}], v{V_PA}, {WS}, s{S_T2} offen sc1")
    a.lab("L_HS1")
    if 'noprio' not in exp and 'pf' not in exp: a("s_setprio 1")
    a.lab("L_HS2")
    ts(4)
    set_run(a, KV_OWN, None, [f"s_add_u32 s{S_N}, s{S_M}, 1"], TILE)
    a(f"s_call_b64 s[{S_RET}:{S_RET+1}], L_RUNA")
    set_run(a, KV_OWN, None, [f"s_sub_u32 s{S_N}, 8, s{S_M}"], TILE)
    a(f"s_call_b64 s[{S_RET}:{S_RET+1}], L_RUNB")
    ts(5)
    a(f"s_cmp_eq_u32 s{S_S}, 0")
    a("s_cbranch_scc1 L_FINAL0")
    a(f"v_mov_b32 v{t+2}, {NEG:#x}")
    for r in range(16): a(f"v_sub_f32 v{V_MASK+r}, v{t+2}, v{V_MASK+r}")
    a(f"s_cmp_lt_u32 s{S_WID}, 4")
    a("s_cbranch_scc1 L_H5DONE")
    lds_wait(a, "L_WQ", CNTQ, 8)
    a(f"v_add_u32 v{V_PA+1}, {KV_HALO}, v{V_PA}")
    for c, i in enumerate([8, 7, 6, 5, 4, 3, 2, 1, 0]):
        a(f"s_waitcnt vmcnt({8-c})")
        a(f"ds_write_b128 v{V_PA+1}, v[{VH+4*c}:{VH+4*c+3}] offset:{i*4096}")
    if 'midbar' not in exp:
        a("s_waitcnt lgkmcnt(0)")
        lds_inc(a, CNT1, save_exec, rest_exec)
    a(f"s_cmp_lg_u32 s{S_WID}, 4")
    a("s_cbranch_scc1 L_H5DONE")
    a(f"s_sub_u32 s{S_T0}, s{S_IDX}, 1")
    a(f"s_lshl_b32 s{S_T0}, s{S_T0}, 8")
    a(f"s_add_u32 s{S_T0}, s{S_T0}, {WS_FLAG}")
    a(f"v_mov_b32 v{t}, 0")
    a(f"v_mov_b32 v{t+1}, s{S_TAGIN}")
    save_exec(1)
    a(f"buffer_store_dword v{t+1}, v{t}, {WS}, s{S_T0} offen sc1")
    rest_exec()
    a.lab("L_H5DONE")
    if 'midbar' in exp:
        a("s_waitcnt lgkmcnt(0)")
        if 'noph' in exp: a("s_setprio 0")
        a("s_barrier")
    else:
        lds_wait(a, "L_W1", CNT1, 4)
    if "tsh" not in exp: ts(7)
    a(f"s_mov_b32 s{S_T4}, 7")
    set_run(a, KV_HALO, S_T4, [f"s_add_u32 s{S_N}, s{S_M}, 1"], -TILE)
    a(f"s_call_b64 s[{S_RET}:{S_RET+1}], L_RUNB")
    a("s_nop 7")
    a("s_nop 3")
    safety_check(a, OB, True, S_MB, "B1")
    finalize(a, OB, S_MB, save_exec, rest_exec)
    if 'noph' not in exp: a("s_setprio 0")
    a(f"s_mov_b32 s{S_T4}, 7")
    set_run(a, KV_HALO, S_T4, [f"s_sub_u32 s{S_N}, 8, s{S_M}"], -TILE)
    a(f"s_call_b64 s[{S_RET}:{S_RET+1}], L_RUNA")
    a("s_branch L_FINALA")
    a.lab("L_FINAL0")
    a("s_waitcnt vmcnt(0)")
    a("s_setprio 0")
    a("s_barrier")
    a("s_nop 7")
    a("s_nop 3")
    safety_check(a, OB, True, S_MB, "B0")
    finalize(a, OB, S_MB, save_exec, rest_exec)
    a.lab("L_FINALA")
    a("s_setprio 0")
    if "tsh" not in exp: ts(8)
    a("s_nop 7")
    a("s_nop 3")
    safety_check(a, OA, False, S_M, "A")
    finalize(a, OA, S_M, save_exec, rest_exec)
    a("s_branch L_P3")
    fallback_code(a)

    a.lab("L_HOOK")
    a(f"s_cmp_eq_u32 s{S_HST}, 1")
    a("s_cbranch_scc1 L_HK1")
    a(f"s_cmp_eq_u32 s{S_HST}, 2")
    a("s_cbranch_scc1 L_HK2")
    a(f"s_cmp_eq_u32 s{S_HST}, 3")
    a("s_cbranch_scc1 L_HK3")
    a(f"s_cmp_eq_u32 s{S_HST}, 5")
    a("s_cbranch_scc0 L_HK0")
    a(f"s_mov_b32 s{S_HST}, 3")
    a(f"s_mov_b32 s{S_HOOK}, {UP}")
    a("s_waitcnt vmcnt(0)")
    oflag(a, "L_CLR", CNTOB, 128, save_exec, rest_exec, last=3)
    a("s_branch L_HRET")
    a.lab("L_HK0")
    a(f"s_mov_b32 s{S_HST}, 1")
    a(f"s_mov_b32 s{S_HOOK}, {UH[1]}")
    a(f"s_cmp_eq_u32 s{S_S}, 7")
    a("s_cbranch_scc1 L_HRET")
    a("s_waitcnt vmcnt(0)")
    a(f"s_lshl_b32 s{S_T0}, s{S_IDX}, 8")
    a(f"s_lshl_b32 s{S_T1}, s{S_L}, 2")
    a(f"s_add_u32 s{S_T0}, s{S_T0}, s{S_T1}")
    a(f"s_add_u32 s{S_T0}, s{S_T0}, {WS_FLAG+128}")
    a(f"v_mov_b32 v{t}, 0")
    a(f"v_mov_b32 v{t+1}, s{S_TAGOUT}")
    save_exec(1)
    a(f"buffer_store_dword v{t+1}, v{t}, {WS}, s{S_T0} offen sc1")
    rest_exec()
    a("s_branch L_HRET")
    a.lab("L_HK3")
    a(f"s_mov_b32 s{S_HST}, 4")
    a(f"s_mov_b32 s{S_HOOK}, 1000")
    a(f"s_lshl_b32 s{S_T0}, s{S_HP}, 7")
    a(f"s_add_u32 s{S_T0}, s{S_T0}, s{S_OFS}")
    save_exec("0xffff")
    a(f"v_lshlrev_b32 v{t}, 2, v{L}")
    a(f"buffer_load_dword v{V_TG+1}, v{t}, {WS}, s{S_T0} offen offset:128 sc1")
    rest_exec()
    a("s_branch L_HRET")
    a.lab("L_HK1")
    a(f"s_mov_b32 s{S_HST}, 2")
    a(f"s_mov_b32 s{S_HOOK}, {UH[2]}")
    a(f"s_cmp_eq_u32 s{S_S}, 0")
    a("s_cbranch_scc0 L_HK1A")
    a(f"s_mov_b32 s{S_HOOK}, 1000")
    a("s_branch L_HRET")
    a.lab("L_HK1A")
    a(f"s_sub_u32 s{S_H1}, s{S_IDX}, 1")
    a(f"s_lshl_b32 s{S_H1}, s{S_H1}, 8")
    a(f"s_lshl_b32 s{S_T0}, s{S_L}, 2")
    a(f"s_add_u32 s{S_H1}, s{S_H1}, s{S_T0}")
    a(f"s_add_u32 s{S_H1}, s{S_H1}, {WS_FLAG+128}")
    a(f"v_mov_b32 v{t}, 0")
    a(f"buffer_load_dword v{V_TG}, v{t}, {WS}, s{S_H1} offen sc1")
    a("s_branch L_HRET")
    a.lab("L_HK2")
    a(f"s_mov_b32 s{S_HST}, 3")
    a(f"s_mov_b32 s{S_HOOK}, {UP}")
    a("s_waitcnt vmcnt(0)")
    a(f"v_readfirstlane_b32 s{S_T0}, v{V_TG}")
    a(f"s_cmp_eq_u32 s{S_T0}, s{S_TAGIN}")
    a("s_cbranch_scc1 L_POLL1_OK")
    a(f"v_mov_b32 v{t}, 0")
    spin_poll(a, "L_POLL1",
              [f"v_readfirstlane_b32 s{S_T0}, v{V_TG}", f"s_cmp_eq_u32 s{S_T0}, s{S_TAGIN}"],
              f"buffer_load_dword v{V_TG}, v{t}, {WS}, s{S_H1} offen sc1")
    a(f"s_sub_u32 s{S_T0}, s{S_IDX}, 1")
    a(f"s_mul_i32 s{S_T0}, s{S_T0}, 36864")
    for c, i in enumerate([8, 7, 6, 5, 4, 3, 2, 1, 0]):
        a(f"s_add_u32 s{S_T1}, s{S_T0}, {i*4096}")
        a(f"buffer_load_dwordx4 v[{VH+4*c}:{VH+4*c+3}], v{V_PA}, {WS}, s{S_T1} offen sc1")
    a.lab("L_HRET")
    a(f"s_setpc_b64 s[{S_RET2}:{S_RET2+1}]")
    run_code(a, "L_RUNA", QA_M, QA_R, OA, exp)
    run_code(a, "L_RUNB", QB_M, QB_R, OB, exp)

def pub_stores(a, stage_off, base):
    a(f"s_add_u32 s{S_T2}, s{S_T1}, {stage_off}")
    a(f"buffer_store_dwordx4 v[{base}:{base+3}], v{V_PA}, {WS}, s{S_T2} offen sc1")
    for i in range(1, 4):
        a(f"s_add_u32 s{S_T3}, s{S_T2}, {i*4096}")
        a(f"buffer_store_dwordx4 v[{base+4*i}:{base+4*i+3}], v{V_PA}, {WS}, s{S_T3} offen sc1")
    a(f"buffer_store_dwordx4 v[{base+16}:{base+19}], v{V_PA+2}, {WS}, s{S_T2} offen sc1")

def halo_loads(a, stage_off, base):
    a(f"s_sub_u32 s{S_T0}, s{S_IDX}, 1")
    a(f"s_mul_i32 s{S_T0}, s{S_T0}, 36864")
    a(f"s_add_u32 s{S_T0}, s{S_T0}, s{S_SO}")
    for i in range(4):
        a(f"s_add_u32 s{S_T1}, s{S_T0}, {i*4096}")
        a(f"buffer_load_dwordx4 v[{base+4*i}:{base+4*i+3}], v{V_PA}, {WS}, s{S_T1} offen sc1")
    a(f"buffer_load_dwordx4 v[{base+16}:{base+19}], v{V_PA+2}, {WS}, s{S_T0} offen sc1")

def phase3(a, debug_stage, ts, exp, save_exec, rest_exec):
    t = T; L = V_LANE
    OF, AC, WF0, WF1 = 20, 92, 132, 152
    AW, AW2, PF, VO, VOUT, VR = 10, 11, 13, 14, 15, 16
    PA, PB = 12, 9
    S_PL, S_PR, S_PM = 4, 68, 40
    SCR = KV_OWN
    ORD = {0: [0, 2, 4, 6, 1, 3, 5, 7, 8], 1: [9, 11, 13, 15, 10, 12, 14, 16, 17]}
    GM = {0: 0x0055, 1: 0xAA00}; RM = {0: 0x01AA, 1: 0xFFFF}
    a.lab("L_P3")
    a.c("======== phase 3 ========")
    a(f"s_lshl_b32 s{S_PL}, s{S_HP}, 7")
    a(f"s_add_u32 s{S_PL}, s{S_PL}, s{S_OFS}")
    def poll_issue():
        save_exec("0xffff")
        a(f"v_lshlrev_b32 v{t+2}, 2, v{L}")
        a(f"buffer_load_dword v{PF}, v{t+2}, {WS}, s{S_PL} offen offset:128 sc1")
        rest_exec()
    def poll_check(name, mask):
        save_exec(f"{mask:#x}")
        a(f"v_cmp_ne_u32 vcc, s{S_TAGO}, v{PF}")
        a("s_nop 1")
        a("s_cmp_eq_u64 vcc, 0")
        a(f"s_cbranch_scc1 {name}_OK")
        a(f"v_lshlrev_b32 v{t+2}, 2, v{L}")
        spin_poll(a, name,
                  [f"v_cmp_ne_u32 vcc, s{S_TAGO}, v{PF}", "s_nop 1", "s_cmp_eq_u64 vcc, 0"],
                  f"buffer_load_dword v{PF}, v{t+2}, {WS}, s{S_PL} offen offset:128 sc1")
        rest_exec()
    a(f"s_lshr_b32 s{S_T1}, s{S_HP}, 3")
    a(f"s_lshl_b32 s{S_T1}, s{S_T1}, 3")
    a(f"s_lshl_b32 s{S_T2}, s{S_M}, 1")
    a(f"s_add_u32 s{S_T1}, s{S_T1}, s{S_T2}")
    a(f"s_lshl_b32 s{S_T0}, s{S_GRP}, 18")
    a(f"s_add_u32 s{S_T0}, s{S_T0}, {WS_O}")
    a(f"s_lshl_b32 s{S_T2}, s{S_T1}, 14")
    a(f"s_add_u32 s{S_PM}, s{S_T0}, s{S_T2}")
    a(f"s_lshl_b32 s{S_T0}, s{S_GRP}, 15")
    a(f"s_add_u32 s{S_T0}, s{S_T0}, {WS_OR}")
    a(f"s_lshl_b32 s{S_T2}, s{S_T1}, 6")
    a(f"s_add_u32 s{S_PR}, s{S_T0}, s{S_T2}")
    a(f"v_lshrrev_b32 v{VR}, 4, v{L}")
    a(f"v_lshlrev_b32 v{VR}, 12, v{VR}")
    a(f"v_and_b32 v{t+4}, 15, v{L}")
    a(f"v_lshl_add_u32 v{VR}, v{t+4}, 2, v{VR}")
    a(f"v_add_u32 v{VR+1}, 64, v{VR}")
    a(f"v_lshrrev_b32 v{t+1}, 4, v{L}")
    a(f"v_bfe_u32 v{t+2}, v{L}, 2, 2")
    a(f"v_and_b32 v{t+3}, 3, v{L}")
    a(f"v_lshrrev_b32 v{t+4}, 1, v{t+1}")
    a(f"v_lshlrev_b32 v{t+4}, 2, v{t+4}")
    a(f"v_lshl_add_u32 v{t+4}, v{t+1}, 3, v{t+4}")
    a(f"v_add_u32 v{t+4}, v{t+4}, v{t+2}")
    a(f"v_mul_u32_u24 v{t+4}, 144, v{t+4}")
    a(f"v_lshl_add_u32 v{AW}, v{t+3}, 3, v{t+4}")
    a(f"s_mul_i32 s{S_T0}, s{S_HEAD}, {9*5184}")
    a(f"v_add_u32 v{AW}, s{S_T0}, v{AW}")
    a(f"v_mul_u32_u24 v{t+4}, 72, v{t+1}")
    a(f"v_add3_u32 v{t+4}, v{t+4}, v{t+2}, 16")
    a(f"v_mul_u32_u24 v{t+4}, 144, v{t+4}")
    a(f"v_lshl_add_u32 v{AW2}, v{t+3}, 3, v{t+4}")
    a(f"v_lshlrev_b32 v{VO}, 4, v{L}")
    a(f"s_lshl_b32 s{S_T1}, s{S_T1}, 4")
    a(f"s_lshl_b32 s{S_T2}, s{S_S}, 8")
    a(f"s_add_u32 s{S_T1}, s{S_T1}, s{S_T2}")
    a(f"s_lshl_b32 s{S_T2}, s{S_HEAD}, 4")
    a(f"s_add_u32 s{S_T1}, s{S_T1}, s{S_T2}")
    a(f"s_mul_i32 s{S_T1}, s{S_T1}, 2304")
    a(f"s_mul_i32 s{S_T2}, s{S_B}, 1152")
    a(f"s_add_u32 s{S_T1}, s{S_T1}, s{S_T2}")
    a(f"s_and_b32 s{S_T2}, s{S_HP}, 7")
    a(f"s_mul_i32 s{S_T2}, s{S_T2}, 144")
    a(f"s_add_u32 s{S_T5}, s{S_T1}, s{S_T2}")
    a(f"v_and_b32 v{VOUT}, 15, v{L}")
    a(f"v_mul_u32_u24 v{VOUT}, 2304, v{VOUT}")
    a(f"v_lshrrev_b32 v{t+4}, 4, v{L}")
    a(f"v_lshl_add_u32 v{VOUT}, v{t+4}, 3, v{VOUT}")
    a(f"s_mul_i32 s{S_T0}, s{S_WID}, 5120")
    a(f"s_add_u32 s{S_T0}, s{S_T0}, {SCR}")
    a(f"v_add_u32 v18, s{S_T0}, v{VO}")
    a(f"s_xor_b32 s{S_T1}, s{S_WID}, 4")
    a(f"s_mul_i32 s{S_T1}, s{S_T1}, 5120")
    a(f"s_add_u32 s{S_T1}, s{S_T1}, {SCR}")
    a(f"v_add_u32 v19, s{S_T1}, v{VO}")
    OUT = f"s[{S_OUT}:{S_OUT+3}]"
    def wreads(kap, kh, WF):
        l = []
        for Tn in range(5):
            b = WF + 4*Tn
            if kap >= 16:
                o0 = (kap-16)*8*36*144 + Tn*32
                l.append(f"ds_read_b64_tr_b16 v[{b}:{b+1}], v{AW2} offset:{o0}")
                l.append(f"ds_read_b64_tr_b16 v[{b+2}:{b+3}], v{AW2} offset:{o0+36*144}")
            else:
                o0 = (kap - 9*kh)*5184 + Tn*32
                l.append(f"ds_read_b64_tr_b16 v[{b}:{b+1}], v{AW} offset:{o0}")
                l.append(f"ds_read_b64_tr_b16 v[{b+2}:{b+3}], v{AW} offset:{o0+576}")
        return l
    def loads(kh, slots):
        nl = []
        for jx in slots:
            kap = ORD[kh][jx]
            if kap >= 16:
                a(f"s_add_u32 s{S_T0}, s{S_PR}, {(kap-16)*16*1024}")
                for mt in range(2):
                    for i in range(4):
                        a(f"buffer_load_dword v{OF+36*mt+4*jx+i}, v{VR+mt}, {WS}, s{S_T0} offen offset:{i*1024} sc1")
                nl.append(8)
            else:
                a(f"s_add_u32 s{S_T0}, s{S_PM}, {kap*1024}")
                a(f"s_add_u32 s{S_T1}, s{S_PM}, {kap*1024+16384}")
                a(f"buffer_load_dwordx4 v[{OF+4*jx}:{OF+4*jx+3}], v{VO}, {WS}, s{S_T0} offen sc1")
                a(f"buffer_load_dwordx4 v[{OF+36+4*jx}:{OF+36+4*jx+3}], v{VO}, {WS}, s{S_T1} offen sc1")
                nl.append(2)
        return nl
    def mfm(kh, slots, nl, extra, last_next, novm=False):
        for c, jx in enumerate(slots):
            cur = WF0 if jx % 2 == 0 else WF1
            nxt = WF1 if jx % 2 == 0 else WF0
            a("s_waitcnt lgkmcnt(0)" if novm else f"s_waitcnt vmcnt({sum(nl[c+1:])+extra}) lgkmcnt(0)")
            rs = wreads(ORD[kh][jx+1], kh, nxt) if jx < 8 else []
            ri = 0
            for Tn in range(5):
                for mt in range(2):
                    d = AC + (mt*5+Tn)*4; o = OF + 36*mt + 4*jx
                    cc = "0" if jx == 0 else f"v[{d}:{d+3}]"
                    a(f"v_mfma_f32_16x16x32_bf16 v[{d}:{d+3}], v[{cur+4*Tn}:{cur+4*Tn+3}], v[{o}:{o+3}], {cc}")
                    if ri < len(rs): a(rs[ri]); ri += 1
    def add_out(q, base, Tn, pk):
        for r in range(4): a(f"v_add_f32 v{q+r}, v{q+r}, v{base+4*Tn+r}")
        a(f"v_cvt_pk_bf16_f32 v{pk}, v{q}, v{q+1}")
        a(f"v_cvt_pk_bf16_f32 v{pk+1}, v{q+2}, v{q+3}")
        if Tn == 4:
            a(f"s_mov_b64 s[{S_SAVE}:{S_SAVE+1}], exec")
            a(f"s_mov_b32 exec_hi, 0")
        omod = " nt" if 'ont' in exp else " sc1" if 'osc1' in exp else " sc0 sc1" if 'osc01' in exp else ""
        a(f"buffer_store_dwordx2 v[{pk}:{pk+1}], v{VOUT}, {OUT}, s{S_T5} offen offset:{Tn*32}{omod}")
        if Tn == 4: rest_exec()
    def nloads(kh, slots):
        return [8 if ORD[kh][jx] >= 16 else 2 for jx in slots]
    def validate(kh, slots, younger):
        nl = nloads(kh, slots); first = True
        for c, jx in enumerate(slots):
            a(f"s_waitcnt vmcnt({sum(nl[c+1:])+younger})")
            rr = [OF+4*jx+i for i in range(4)] + [OF+36+4*jx+i for i in range(4)]
            if first:
                a(f"v_max3_u32 v{t+3}, v{rr[0]}, v{rr[1]}, v{rr[2]}"); rr = rr[3:]; first = False
                a(f"v_max_u32 v{t+3}, v{t+3}, v{rr[0]}"); rr = rr[1:]
            for k in range(0, len(rr), 2):
                a(f"v_max3_u32 v{t+3}, v{t+3}, v{rr[k]}, v{rr[k+1]}")
        a(f"v_cmp_eq_u32 vcc, -1, v{t+3}")
        a("s_nop 1")
        a("s_cmp_eq_u64 vcc, 0")
    def probe_addr(kh, slots):
        mains = [jx for jx in slots if ORD[kh][jx] < 16]
        a(f"v_mov_b32 v{t+3}, {ORD[kh][mains[0]]*1024 + 16384 + 1020}")
        a(f"v_lshlrev_b32 v{PA}, 11, v{L}")
        a(f"v_add_u32 v{PA}, v{t+3}, v{PA}")
        return (1 << min(len(mains), 4)) - 1
    def probe_issue(mask):
        save_exec(f"{mask:#x}")
        a(f"buffer_load_dword v{PB}, v{PA}, {WS}, s{S_PM} offen sc1")
        rest_exec()
    def probe_loop(mask, name, first_issued):
        save_exec(f"{mask:#x}")
        a(f"s_mov_b32 s{S_CNT}, 0")
        if first_issued: a(f"s_branch {name}_PW")
        a.lab(name + "_P")
        a(f"buffer_load_dword v{PB}, v{PA}, {WS}, s{S_PM} offen sc1")
        a.lab(name + "_PW")
        a(f"s_add_u32 s{S_CNT}, s{S_CNT}, 1")
        a("s_waitcnt vmcnt(0)")
        a(f"v_cmp_eq_u32 vcc, -1, v{PB}")
        a("s_nop 1")
        a("s_cmp_eq_u64 vcc, 0")
        a(f"s_cbranch_scc1 {name}_PO")
        a(f"s_cmp_lt_u32 s{S_CNT}, 2000000")
        a(f"s_cbranch_scc1 {name}_P")
        a.lab(name + "_PO")
        rest_exec()
    def load_validate_loop(kh, slots, name):
        a(f"s_mov_b32 s{S_N}, 0")
        a.lab(name + "_L")
        loads(kh, slots)
        validate(kh, slots, 0)
        a(f"s_cbranch_scc1 {name}_OK")
        a(f"s_add_u32 s{S_N}, s{S_N}, 1")
        a(f"s_cmp_lt_u32 s{S_N}, 100000")
        a(f"s_cbranch_scc1 {name}_L")
        a.lab(name + "_OK")
    def path(kh):
        K = f"K{kh}"
        G, R = list(range(4)), list(range(4, 9))
        for rd in wreads(ORD[kh][0], kh, WF0): a(rd)
        ts(10)
        a(f"s_lshr_b32 s{S_T0}, 0x55AA, s{S_HP}")
        a(f"s_bitcmp1_b32 s{S_T0}, 0")
        a(f"s_cbranch_scc1 L_SG{K}_GO")
        mk = probe_addr(kh, G)
        probe_loop(mk, f"L_SG{K}", False)
        a.lab(f"L_SG{K}_GO")
        load_validate_loop(kh, G, f"L_SGV{K}")
        mk = probe_addr(kh, R)
        a(f"s_lshr_b32 s{S_T0}, 0x55AA, s{S_HP}")
        a(f"s_bitcmp1_b32 s{S_T0}, 0")
        a(f"s_cbranch_scc0 L_SR{K}_EARLY")
        loads(kh, R)
        mfm(kh, G, [0]*4, 0, None, novm=True)
        ts(9)
        lds_wait(a, f"L_WOB{K}", CNTOA, 8)
        validate(kh, R, 0)
        a(f"s_cbranch_scc1 L_SRV{K}_OK")
        probe_loop(mk, f"L_SS{K}", False)
        a(f"s_branch L_SR{K}_LV")
        a.lab(f"L_SR{K}_EARLY")
        probe_issue(mk)
        mfm(kh, G, [0]*4, 0, None, novm=True)
        ts(9)
        lds_wait(a, f"L_WOA{K}", CNTOA, 8)
        probe_loop(mk, f"L_SR{K}", True)
        a.lab(f"L_SR{K}_LV")
        load_validate_loop(kh, R, f"L_SRV{K}")
        mfm(kh, R, [0]*5, 0, None, novm=True)
        ts(11)
        send = AC + 20 if kh == 0 else AC
        keep = AC if kh == 0 else AC + 20
        a("s_nop 7")
        for Tn in range(5): a(f"ds_write_b128 v18, v[{send+4*Tn}:{send+4*Tn+3}] offset:{Tn*1024}")
        a("s_waitcnt lgkmcnt(0)")
        a("s_barrier")
        for Tn in range(5): a(f"ds_read_b128 v[{OF+4*Tn}:{OF+4*Tn+3}], v19 offset:{Tn*1024}")
        for Tn in range(5):
            a(f"s_waitcnt lgkmcnt({4-Tn})")
            add_out(OF+4*Tn, keep, Tn, OF+20+2*Tn)
    lds_inc(a, CNTOA, save_exec, rest_exec)
    a(f"s_cmp_eq_u32 s{S_HST}, 4")
    a("s_cbranch_scc0 L_P3C0")
    a("s_waitcnt vmcnt(2)")
    a(f"v_mov_b32 v{PF}, v{V_TG+1}")
    a("s_branch L_P3C1")
    a.lab("L_P3C0")
    poll_issue()
    a("s_waitcnt vmcnt(0)")
    a.lab("L_P3C1")
    poll_check("L_POLLC", 0xFFFF)
    if debug_stage == 2:
        a("s_waitcnt vmcnt(0)")
        a("s_branch L_FIN")
        return
    a(f"s_cmp_eq_u32 s{S_HEAD}, 0")
    a("s_cbranch_scc0 L_P3K1")
    path(0)
    a("s_branch L_FIN")
    a.lab("L_P3K1")
    path(1)
    a(f"s_cmp_lg_u32 s{S_HP}, 0")
    a("s_cbranch_scc1 L_FIN")
    a(f"s_cmp_lg_u32 s{S_WID}, 4")
    a("s_cbranch_scc1 L_FIN")
    a(f"v_mov_b32 v{t}, 0")
    a(f"v_mov_b32 v{t+1}, s{S_TAGO}")
    a(f"s_mov_b64 exec, 1")
    a(f"buffer_store_dword v{t+1}, v{t}, {WS}, s{S_OFS} offen sc1")

if __name__ == "__main__":
    import argparse
    p = argparse.ArgumentParser(); p.add_argument("--debug", type=int, default=0)
    p.add_argument("--timing", action="store_true"); p.add_argument("--exp", default=""); p.add_argument("-o", default="/dev/stdout")
    args = p.parse_args()
    open(args.o, "w").write(gen(args.debug, args.timing, args.exp))
```

```python
import sys, math, struct

NAME = "concat_heads__sliding_block__sliding_block__prompt"

STAGE   = 49152
WO_BASE = 0
KV_OWN  = 82944
KV_HALO = 119808
Q_BASE  = 119808
MISC    = 156672
TAGS_LDS = MISC + 2048
CNT2, CNT1, CNTQ, CNTOB, CNTOA = TAGS_LDS+12, TAGS_LDS+16, TAGS_LDS+20, TAGS_LDS+24, TAGS_LDS+28
LDS_TOTAL = 163840
TILE    = 4608
QTILE   = 2304
WS_KV   = 0
WS_O    = 256*36864
WS_OR   = WS_O + 16*262144
WS_FLAG = WS_OR + 16*32768
WS_OF   = WS_FLAG + 65536
TIMING_OFF = 24<<20
TAG_INC = 0x9E3779B1
NEG     = 0xFF61B1E6
QSCALE  = (18.0 ** -0.5) * math.log2(math.e)
def f32bits(x): return struct.unpack("<I", struct.pack("<f", x))[0]

class Asm:
    def __init__(self): self.l = []
    def __call__(self, s=""):
        for line in s.split("\n"):
            self.l.append("  " + line.strip())
    def lab(self, n): self.l.append(n + ":")
    def c(self, s): self.l.append("  ; " + s)
    def text(self): return "\n".join(self.l) + "\n"

S_X, S_W, S_WO, S_WS, S_OUT = 8, 12, 16, 20, 24
S_B, S_S, S_HP, S_WID = 28, 29, 30, 31
S_T0, S_T1, S_T2, S_T3, S_T4, S_T5 = 32, 33, 34, 35, 36, 37
S_I = 38
S_L = 39
S_TAGIN, S_TAGOUT, S_TAGO = 40, 41, 42
S_K, S_C, S_SB, S_XB, S_WB = 43, 44, 45, 46, 47
S_LX, S_LW = 48, 49
S_N = 50
S_U = 51
S_RET = 52
S_IDX, S_GRP, S_HEAD, S_M = 54, 55, 56, 57
S_SAVE = 58
S_CNT = 60
S_HOOK = 61
S_BAD = 62
S_RET2 = 64
S_MB = 66
S_HST = 67
S_H0, S_H1 = 68, 69
S_E = 98
S_SO, S_FI = 99, 100
S_OM, S_OR, S_OFS = 6, 7, 5

V_LANE = 1
T = 2
V_AX = 10
V_AW = 12
V_MASK = 20
V_SET0, V_SET1, V_ACC = 36, 80, 124
V_LDX, V_LDW = 36, 44
V_TG = 236
B_K, B_KR, B_V, MK_V = 240, 241, 242, 243
vEK, vEQ, vEV, vE6, vDr, vDt, vF, vC = 244, 245, 246, 247, 248, 249, 250, 252
V_TL = 254
QA_M, QA_R, QB_M, QB_R = 36, 40, 44, 48
OA, OB = 52, 68
VS, VE, VP = 84, 100, 116
VKF, VKR, VVA, VVB = 124, 128, 132, 136
A_K, A_KR, A_V, ST_V, ST_K = 10, 11, 12, 13, 14
VH = 140
V_WOV = 180
V_OA1, V_OA2 = 188, 189
V_PA = 184

def emit_masks_(a):
    t = T; L = V_LANE
    a(f"v_and_b32 v{t}, 31, v{L}")
    a(f"v_lshrrev_b32 v{t+1}, 5, v{L}")
    a(f"v_lshlrev_b32 v{t+1}, 2, v{t+1}")
    a(f"v_sub_u32 v{t}, v{t}, v{t+1}")
    a(f"v_mov_b32 v{t+1}, {NEG:#x}")
    for r in range(16):
        jj = (r & 3) + 8*(r >> 2)
        a(f"v_cmp_le_i32 vcc, {jj}, v{t}")
        a("s_nop 1")
        a(f"v_cndmask_b32_e64 v{V_MASK+r}, v{t+1}, 0, vcc")
def emit_p2_patterns_(a):
    t = T; L = V_LANE
    a(f"v_and_b32 v{t}, 31, v{L}")
    a(f"v_lshrrev_b32 v{t+1}, 5, v{L}")
    a(f"v_lshrrev_b32 v{t+2}, 2, v{t}")
    a(f"v_lshrrev_b32 v{t+3}, 3, v{t}")
    a(f"v_xor_b32 v{t+2}, v{t+2}, v{t+3}")
    a(f"v_xor_b32 v{t+2}, v{t+2}, v{t+1}")
    a(f"v_and_b32 v{t+2}, 1, v{t+2}")
    a(f"v_lshlrev_b32 v{t+2}, 4, v{t+2}")
    a(f"v_lshl_add_u32 v{t+2}, v{t}, 5, v{t+2}")
    a(f"s_lshl_b32 s{S_T0}, s{S_HEAD}, 10")
    a(f"v_add_u32 v{B_K}, s{S_T0}, v{t+2}")
    a(f"v_lshlrev_b32 v{B_KR}, 3, v{t}")
    a(f"v_add_u32 v{B_KR}, 2048, v{B_KR}")
    a(f"v_bfe_u32 v{t+2}, v{L}, 2, 2")
    a(f"v_lshl_add_u32 v{t+2}, v{t+1}, 2, v{t+2}")
    a(f"v_mul_u32_u24 v{t+2}, 72, v{t+2}")
    a(f"v_add_u32 v{t+2}, 2304, v{t+2}")
    a(f"v_and_b32 v{t+3}, 3, v{L}")
    a(f"v_lshlrev_b32 v{t+4}, 3, v{t+3}")
    a(f"s_mul_i32 s{S_T0}, s{S_HEAD}, 40")
    a(f"v_add3_u32 v{t+4}, v{t+4}, v{t+2}, s{S_T0}")
    a(f"v_add_u32 v{t+5}, 32, v{t+2}")
    a(f"v_bfe_u32 v{t+6}, v{L}, 4, 1")
    a(f"v_cmp_eq_u32 vcc, 1, v{t+6}")
    a(f"v_lshrrev_b32 v{t+7}, 1, v{t+3}")
    a(f"v_and_b32 v{t+7}, v{t+7}, v{t+6}")
    a(f"v_cndmask_b32 v{B_V}, v{t+4}, v{t+5}, vcc")
    a(f"v_cmp_eq_u32 vcc, 1, v{t+7}")
    a(f"v_mov_b32 v{t+5}, {MISC}")
    a(f"v_mov_b32 v{t+6}, -1")
    a(f"v_cndmask_b32 v{B_V}, v{B_V}, v{t+5}, vcc")
    a(f"v_cndmask_b32_e64 v{MK_V}, v{t+6}, 0, vcc")


def gen(debug_stage=0, timing=False, exp=''):
    a = Asm()
    t = T; L = V_LANE
    def ts(i, force=False):
        if timing and (('tsk' not in exp and 'tse' not in exp) or force or i in (0, 2, 3, 4) or ('tsk' in exp and i in (8, 9, 10, 11))): a(f"{'s_memrealtime' if ('abs' in exp or 'hdbg' in exp) else 's_memtime'} s[{70+2*i}:{71+2*i}]")
    WS = f"s[{S_WS}:{S_WS+3}]"
    def save_exec(val):
        a(f"s_mov_b64 s[{S_SAVE}:{S_SAVE+1}], exec")
        a(f"s_mov_b64 exec, {val}")
    def rest_exec():
        a(f"s_mov_b64 exec, s[{S_SAVE}:{S_SAVE+1}]")

    hdr = """; concat_heads(A,B): fused QKV projection + sliding-window attention (W=256, 32 heads x 18) + output projection, bf16, gfx950.
;   phase 3  output projection; the attention outputs of all heads are exchanged through d_ws (sentinel-validated hand-off)"""
    a.l += hdr.split("\n") + [f"; @launch grid=(256,1,1) block=(512,1,1) lds={LDS_TOTAL}"]
    a(f""".amdgcn_target "amdgcn-amd-amdhsa--gfx950"
.text
.globl {NAME}_kernel
.p2align 8
.type {NAME}_kernel,@function""")
    a.lab(f"{NAME}_kernel")
    a("s_cmp_ge_u32 s2, 256")
    a("s_cbranch_scc1 L_END")
    a(f"s_and_b32 s3, s2, 7")
    if 'xmap' in exp:
        a(f"s_bfe_u32 s{S_B}, s3, 0x10001")
    else:
        a(f"s_lshr_b32 s{S_B}, s3, 2")
    a(f"s_mul_i32 s{S_T0}, s{S_B}, 24")
    a(f"s_add_u32 s4, s0, s{S_T0}")
    a(f"s_addc_u32 s5, s1, 0")
    a(f"s_load_dwordx2 s[{S_X}:{S_X+1}], s[4:5], 0")
    a(f"s_load_dwordx2 s[{S_W}:{S_W+1}], s[4:5], 8")
    a(f"s_load_dwordx2 s[{S_WO}:{S_WO+1}], s[4:5], 16")
    a(f"s_load_dwordx2 s[{S_OUT}:{S_OUT+1}], s[0:1], 48")
    a(f"s_load_dwordx2 s[{S_WS}:{S_WS+1}], s[0:1], 64")
    if timing:
        for i in range(13): a(f"s_mov_b32 s{70+2*i}, 0")
    ts(0)
    a(f"s_lshr_b32 s{S_I}, s2, 3")
    if 'xmap' in exp:
        a(f"s_and_b32 s{S_T2}, s3, 1")
        a(f"s_lshl_b32 s{S_T2}, s{S_T2}, 2")
        a(f"s_and_b32 s{S_T3}, s{S_I}, 3")
        a(f"s_add_u32 s{S_S}, s{S_T2}, s{S_T3}")
        a(f"s_lshr_b32 s{S_T4}, s{S_I}, 2")
        a(f"s_cmp_lt_u32 s3, 4")
        a(f"s_mov_b32 s{S_T2}, 0xFDB96420")
        a(f"s_cselect_b32 s{S_T2}, 0xECA87531, s{S_T2}")
        a(f"s_lshl_b32 s{S_T0}, s{S_T4}, 2")
        a(f"s_lshr_b32 s{S_T2}, s{S_T2}, s{S_T0}")
        a(f"s_and_b32 s{S_HP}, s{S_T2}, 15")
    else:
        a(f"s_lshr_b32 s{S_T2}, s3, 1")
        a(f"s_and_b32 s{S_T2}, s{S_T2}, 1")
        a(f"s_lshl_b32 s{S_T2}, s{S_T2}, 2")
        a(f"s_and_b32 s{S_T3}, s{S_I}, 3")
        a(f"s_add_u32 s{S_S}, s{S_T2}, s{S_T3}")
        a(f"s_and_b32 s{S_T2}, s3, 1")
        a(f"s_lshl_b32 s{S_T2}, s{S_T2}, 3")
        a(f"s_lshr_b32 s{S_T4}, s{S_I}, 2")
        a(f"s_add_u32 s{S_HP}, s{S_T2}, s{S_T4}")
    a(f"s_lshl_b32 s{S_T3}, s{S_T3}, 1")
    a(f"s_add_u32 s{S_C}, s{S_T4}, s{S_T3}")
    a(f"s_cmp_ge_u32 s{S_C}, 9")
    a(f"s_cselect_b32 s{S_T3}, 9, 0")
    a(f"s_sub_u32 s{S_C}, s{S_C}, s{S_T3}")
    if 'norot' in exp: a(f"s_mov_b32 s{S_C}, 0")
    for key, mul in (('rot2', 2), ('rot3', 3)):
        if key in exp or (key == 'rot2' and 'rot' not in exp):
            a(f"s_lshr_b32 s{S_C}, s{S_T4}, 1")
            a(f"s_and_b32 s{S_T3}, s{S_I}, 3")
            a(f"s_add_u32 s{S_C}, s{S_C}, s{S_T3}")
            a(f"s_mul_i32 s{S_C}, s{S_C}, {mul}")
            for _ in range(2):
                a(f"s_cmp_ge_u32 s{S_C}, 9")
                a(f"s_cselect_b32 s{S_T3}, 9, 0")
                a(f"s_sub_u32 s{S_C}, s{S_C}, s{S_T3}")
    if 'rot4' in exp:
        a(f"s_lshr_b32 s{S_C}, s{S_T4}, 2")
        a(f"s_and_b32 s{S_T3}, s{S_I}, 3")
        a(f"s_lshr_b32 s{S_T3}, s{S_T3}, 1")
        a(f"s_add_u32 s{S_C}, s{S_C}, s{S_T3}")
        a(f"s_mul_i32 s{S_C}, s{S_C}, 3")
    a(f"s_lshl_b32 s{S_T0}, s{S_B}, 4")
    a(f"s_add_u32 s{S_T0}, s{S_T0}, s{S_HP}")
    a(f"s_lshl_b32 s{S_T0}, s{S_T0}, 3")
    a(f"s_add_u32 s{S_IDX}, s{S_T0}, s{S_S}")
    a(f"s_lshl_b32 s{S_T0}, s{S_B}, 3")
    a(f"s_add_u32 s{S_GRP}, s{S_T0}, s{S_S}")
    a(f"v_lshrrev_b32 v{t}, 6, v0")
    a(f"v_and_b32 v{L}, 63, v0")
    a(f"v_readfirstlane_b32 s{S_WID}, v{t}")
    for (r, n) in ((S_X, 2359296), (S_W, 1990656), (S_WO, 663552), (S_WS, 268435456), (S_OUT, 4718592)):
        a(f"s_mov_b32 s{r+2}, {n}")
        a(f"s_mov_b32 s{r+3}, 0x00020000")
    a(f"s_and_b32 s{S_M}, s{S_WID}, 3")
    a(f"s_lshr_b32 s{S_HEAD}, s{S_WID}, 2")
    a(f"s_sub_u32 s{S_MB}, 7, s{S_M}")
    a(f"s_lshl_b32 s{S_T0}, s{S_GRP}, 18")
    a(f"s_add_u32 s{S_T0}, s{S_T0}, {WS_O}")
    a(f"s_lshl_b32 s{S_T1}, s{S_HP}, 10")
    a(f"s_lshl_b32 s{S_T2}, s{S_HEAD}, 9")
    a(f"s_add_u32 s{S_T1}, s{S_T1}, s{S_T2}")
    a(f"s_add_u32 s{S_OM}, s{S_T1}, s{S_T0}")
    a(f"s_lshl_b32 s{S_T0}, s{S_GRP}, 15")
    a(f"s_add_u32 s{S_T0}, s{S_T0}, {WS_OR}")
    a(f"s_lshl_b32 s{S_T1}, s{S_HP}, 1")
    a(f"s_add_u32 s{S_T1}, s{S_T1}, s{S_HEAD}")
    a(f"s_lshl_b32 s{S_T1}, s{S_T1}, 10")
    a(f"s_add_u32 s{S_OR}, s{S_T1}, s{S_T0}")
    a(f"s_lshl_b32 s{S_OFS}, s{S_GRP}, 12")
    a(f"s_add_u32 s{S_OFS}, s{S_OFS}, {WS_OF}")
    a(f"s_cmp_lt_u32 s{S_WID}, 4")
    a("s_cbranch_scc1 L_COMPUTE")

    emit_masks = lambda: emit_masks_(a)
    emit_p2_patterns = lambda: emit_p2_patterns_(a)

    a(f"s_sub_u32 s{S_L}, s{S_WID}, 4")
    a(f"v_lshrrev_b32 v{t}, 3, v{L}")
    a(f"v_mul_u32_u24 v{t}, 1152, v{t}")
    a(f"v_lshrrev_b32 v{t+1}, 4, v{L}")
    a(f"v_and_b32 v{t+2}, 7, v{L}")
    a(f"v_xor_b32 v{t+3}, v{t+2}, v{t+1}")
    a(f"v_lshl_add_u32 v{V_AX}, v{t+3}, 4, v{t}")
    a(f"v_xor_b32 v{t+3}, 4, v{t+3}")
    a(f"v_lshl_add_u32 v{V_AX+1}, v{t+3}, 4, v{t}")
    a(f"s_mul_i32 s{S_T0}, s{S_HP}, 72")
    a(f"s_and_b32 s{S_T0}, s{S_T0}, 0xfffffff0")
    a(f"v_and_b32 v{t+2}, 15, v{L}")
    a(f"v_mul_u32_u24 v{t+4}, 3456, v{t+1}")
    a(f"v_add_u32 v{t+4}, s{S_T0}, v{t+4}")
    for var in range(2):
        a(f"v_lshlrev_b32 v{t+3}, 1, v{t+1}")
        a(f"v_sub_u32 v{t+3}, v{t+2}, v{t+3}")
        if var: a(f"v_subrev_u32 v{t+3}, 8, v{t+3}")
        a(f"v_and_b32 v{t+3}, 15, v{t+3}")
        a(f"v_min_u32 v{t+3}, 14, v{t+3}")
        a(f"v_mul_u32_u24 v{t+5}, 13, v{t+3}")
        a(f"v_lshrrev_b32 v{t+5}, 6, v{t+5}")
        a(f"v_mul_u32_u24 v{t+6}, 5, v{t+5}")
        a(f"v_sub_u32 v{t+6}, v{t+3}, v{t+6}")
        a(f"v_mul_u32_u24 v{t+5}, 1152, v{t+5}")
        a(f"v_lshl_add_u32 v{t+6}, v{t+6}, 4, v{t+5}")
        a(f"v_add_u32 v{V_AX+2+var}, v{t+4}, v{t+6}")
    for i in range(8):
        a(f"v_add_u32 v{V_LDX+i}, {i*9216-(i&3)*1024}, v{V_AX+(i&1)}")
    for i in range(4):
        a(f"v_add_u32 v{V_LDW+i}, {i*4*3456-i*1024}, v{V_AX+2+(i>>1)}")
    a(f"s_lshl_b32 s{S_T0}, s{S_S}, 8")
    a(f"s_lshl_b32 s{S_T1}, s{S_L}, 6")
    a(f"s_add_u32 s{S_T0}, s{S_T0}, s{S_T1}")
    a(f"s_mul_i32 s{S_XB}, s{S_T0}, 1152")
    a(f"s_mul_i32 s{S_WB}, s{S_L}, {16*3456}")
    a(f"s_lshl_b32 s{S_LX}, s{S_L}, 13")
    a(f"s_lshl_b32 s{S_LW}, s{S_L}, 12")
    a(f"s_add_u32 s{S_LW}, s{S_LW}, 32768")
    a(f"s_mov_b32 s{S_SB}, 0")
    def chunk_pre():
        a(f"s_lshl_b32 s{S_T0}, s{S_C}, 7")
        a(f"s_add_u32 s{S_T0}, s{S_T0}, s{S_XB}")
        a(f"s_mul_i32 s{S_T1}, s{S_C}, {64*3456}")
        a(f"s_add_u32 s{S_T1}, s{S_T1}, s{S_WB}")
        a(f"s_add_u32 s{S_T2}, s{S_SB}, s{S_LW}")
        a(f"s_add_u32 s{S_T3}, s{S_SB}, s{S_LX}")
        a(f"s_add_u32 s{S_C}, s{S_C}, 1")
        a(f"s_cmp_eq_u32 s{S_C}, 9")
        a(f"s_cselect_b32 s{S_C}, 0, s{S_C}")
        a(f"s_add_u32 s{S_SB}, s{S_SB}, {STAGE}")
        a(f"s_cmp_eq_u32 s{S_SB}, {3*STAGE}")
        a(f"s_cselect_b32 s{S_SB}, 0, s{S_SB}")
    def chunk_w():
        a(f"s_mov_b32 m0, s{S_T2}")
        a("s_nop 0")
        for i in range(4):
            a(f"buffer_load_dwordx4 v{V_LDW+i}, s[{S_W}:{S_W+3}], s{S_T1} offen offset:{i*1024} lds")
    def chunk_x(lo, hi):
        for i in range(lo, hi):
            if i == lo or i == 4:
                a(f"s_add_u32 m0, s{S_T3}, {(i&~3)*1024}")
                a("s_nop 0")
            a(f"buffer_load_dwordx4 v{V_LDX+i}, s[{S_X}:{S_X+3}], s{S_T0} offen offset:{(i&3)*1024} lds")
    chunk_pre()
    a("s_waitcnt lgkmcnt(0)")
    if 'xfirst' in exp:
        chunk_x(0, 8); chunk_w()
    else:
        chunk_w(); chunk_x(0, 8)
    chunk_pre()
    if 'c1p0' in exp:
        a("s_waitcnt vmcnt(0)")
        a("s_barrier")
        chunk_w(); chunk_x(0, 8)
    elif 'c1p4' in exp:
        chunk_w()
        a("s_waitcnt vmcnt(4)")
        a("s_barrier")
        chunk_x(0, 8)
    elif 'c1p8' in exp:
        chunk_w(); chunk_x(0, 4)
        a("s_waitcnt vmcnt(8)")
        a("s_barrier")
        chunk_x(4, 8)
    else:
        chunk_w(); chunk_x(0, 2)
        a("s_waitcnt vmcnt(6)")
        a("s_barrier")
        chunk_x(2, 8)
    chunk_pre()
    a(f"s_mov_b32 s{S_K}, 2")
    if 'g2' in exp:
        a(f"s_lshr_b32 s{S_T4}, 0x55AA, s{S_HP}")
        a(f"s_bitcmp1_b32 s{S_T4}, 0")
        a("s_cbranch_scc1 L_LD")
        a.lab("L_LDG")
        a("s_waitcnt vmcnt(0)")
        a("s_barrier")
        chunk_w(); chunk_x(0, 8)
        chunk_pre()
        a(f"s_add_u32 s{S_K}, s{S_K}, 1")
        a(f"s_cmp_lt_u32 s{S_K}, 9")
        a("s_cbranch_scc1 L_LDG")
        a("s_branch L_LDE")
    a.lab("L_LD")
    chunk_w(); chunk_x(0, 8)
    chunk_pre()
    a(f"s_add_u32 s{S_K}, s{S_K}, 1")
    a(f"s_cmp_lt_u32 s{S_K}, 9")
    a("s_waitcnt vmcnt(12)")
    a("s_barrier")
    a("s_cbranch_scc1 L_LD")
    a.lab("L_LDE")
    a(f"s_lshl_b32 s{S_T0}, s{S_L}, 6")
    a(f"v_add_u32 v{t}, s{S_T0}, v{L}")
    a(f"v_mul_u32_u24 v{t+1}, 7282, v{t}")
    a(f"v_lshrrev_b32 v{t+1}, 16, v{t+1}")
    a(f"v_mul_u32_u24 v{t+2}, 9, v{t+1}")
    a(f"v_sub_u32 v{t+2}, v{t}, v{t+2}")
    a(f"v_mul_u32_u24 v{t+1}, 1152, v{t+1}")
    a(f"v_lshl_add_u32 v{t+1}, v{t+2}, 7, v{t+1}")
    a(f"s_mul_i32 s{S_T0}, s{S_I}, {18*1152}")
    a(f"v_cmp_gt_u32 vcc, 162, v{t}")
    a(f"v_cndmask_b32_e64 v{t+1}, 0, v{t+1}, vcc")
    a(f"buffer_load_dword v255, v{t+1}, s[{S_WO}:{S_WO+3}], s{S_T0} offen")
    emit_masks()
    emit_p2_patterns()
    a(f"v_mul_u32_u24 v{t+1}, 7282, v{L}")
    a(f"v_lshrrev_b32 v{t+1}, 16, v{t+1}")
    a(f"v_mul_u32_u24 v{t+2}, 9, v{t+1}")
    a(f"v_sub_u32 v{t+2}, v{L}, v{t+2}")
    a(f"v_mul_u32_u24 v{t+1}, 1152, v{t+1}")
    a(f"v_lshl_add_u32 v{t+1}, v{t+2}, 4, v{t+1}")
    a(f"s_and_b32 s{S_T0}, s{S_HP}, 7")
    a(f"s_mul_i32 s{S_T0}, s{S_T0}, 144")
    a(f"v_add_u32 v{V_WOV}, s{S_T0}, v{t+1}")
    for j in range(1, 4): a(f"v_add_u32 v{V_WOV+j}, {j*(8064-1008)}, v{V_WOV}")
    a(f"s_mul_i32 s{S_T0}, s{S_L}, {21*1008}")
    a(f"s_mul_i32 s{S_T1}, s{S_L}, {21*8064}")
    a("s_waitcnt vmcnt(1)")
    a("s_barrier")
    WO = f"s[{S_WO}:{S_WO+3}]"
    NW1 = 8 if 'wo8' not in exp else 4
    a(f"s_bitset0_b64 exec, 63")
    for j in range(21):
        if j == NW1:
            a(f"s_mov_b64 exec, -1")
            a("s_barrier")
            a(f"s_bitset0_b64 exec, 63")
        if j == 19:
            a(f"s_cmp_eq_u32 s{S_L}, 3")
            a("s_cbranch_scc0 L_WO_N")
            a(f"s_mov_b64 exec, 0x3ffff")
            a(f"buffer_load_dwordx4 v{V_WOV+(j&3)}, {WO}, s{S_T2} offen offset:{(j&3)*1008} lds")
            a("s_branch L_WO_DONE")
            a.lab("L_WO_N")
        if j % 4 == 0:
            a(f"s_add_u32 m0, s{S_T0}, {j*1008}")
            a(f"s_add_u32 s{S_T2}, s{S_T1}, {j*8064}")
        a(f"buffer_load_dwordx4 v{V_WOV+(j&3)}, {WO}, s{S_T2} offen offset:{(j&3)*1008} lds")
    a.lab("L_WO_DONE")
    a(f"s_mov_b64 exec, -1")
    for r in range(16):
        a(f"v_mov_b32 v{OA+r}, 0")
        a(f"v_mov_b32 v{OB+r}, 0")
    a(f"v_lshlrev_b32 v{V_PA}, 4, v{L}")
    a(f"s_lshl_b32 s{S_T0}, s{S_L}, 10")
    a(f"v_add_u32 v{V_PA}, s{S_T0}, v{V_PA}")
    a(f"v_add_u32 v{V_PA+1}, {KV_OWN}, v{V_PA}")
    a(f"s_mul_i32 s{S_T1}, s{S_IDX}, 36864")
    a("s_barrier")
    if 'tse' in exp: ts(7, True)
    a(f"s_cmp_eq_u32 s{S_S}, 7")
    a("s_cbranch_scc1 L_NOPUB")
    order = [8, 7, 6, 5, 4, 3, 2, 1, 0]
    for c, i in enumerate(order):
        a(f"ds_read_b128 v[{VH+4*c}:{VH+4*c+3}], v{V_PA+1} offset:{i*4096}")
    for c, i in enumerate(order[:5]):
        a(f"s_waitcnt lgkmcnt({8-c})")
        a(f"s_add_u32 s{S_T2}, s{S_T1}, {i*4096}")
        a(f"buffer_store_dwordx4 v[{VH+4*c}:{VH+4*c+3}], v{V_PA}, {WS}, s{S_T2} offen sc1")
    a.lab("L_NOPUB")
    a("s_branch L_P2")

    a.lab("L_COMPUTE")
    if 'dry' in exp and 'nodry' not in exp:
        emit_p2_patterns()
        a(f"s_mov_b32 s{S_U}, 0")
        a(f"s_mov_b32 s{S_HOOK}, 100000")
        set_run(a, KV_OWN, None, [f"s_mov_b32 s{S_N}, 3"], TILE)
        a(f"s_bitcmp1_b32 s{S_WID}, 0")
        a("s_cbranch_scc1 L_DRYB")
        a(f"s_call_b64 s[{S_RET}:{S_RET+1}], L_RUNA")
        a("s_branch L_DRYE")
        a.lab("L_DRYB")
        a(f"s_call_b64 s[{S_RET}:{S_RET+1}], L_RUNB")
        a.lab("L_DRYE")
        a("s_waitcnt lgkmcnt(0)")
    a(f"v_and_b32 v{t}, 15, v{L}")
    a(f"v_lshrrev_b32 v{t+1}, 4, v{L}")
    a(f"v_lshrrev_b32 v{t+2}, 1, v{t}")
    a(f"s_lshl_b32 s{S_T0}, s{S_WID}, 6")
    a(f"v_add_u32 v{t+3}, s{S_T0}, v{t}")
    a(f"v_lshlrev_b32 v{t+3}, 7, v{t+3}")
    a(f"v_xor_b32 v{t+4}, v{t+1}, v{t+2}")
    a(f"v_lshlrev_b32 v{t+5}, 4, v{t+4}")
    a(f"v_add_u32 v{V_AX}, v{t+3}, v{t+5}")
    a(f"v_xor_b32 v{t+4}, 4, v{t+4}")
    a(f"v_lshlrev_b32 v{t+5}, 4, v{t+4}")
    a(f"v_add_u32 v{V_AX+1}, v{t+3}, v{t+5}")
    a(f"v_bfe_u32 v{t}, v{L}, 2, 2")
    a(f"v_and_b32 v{t+2}, 3, v{L}")
    a(f"v_and_b32 v{t+3}, 1, v{t+1}")
    a(f"v_lshl_add_u32 v{t+3}, v{t+3}, 2, v{t}")
    a(f"v_lshlrev_b32 v{t+3}, 5, v{t+3}")
    a(f"v_lshl_add_u32 v{t+4}, v{t+1}, 3, v{t}")
    a(f"v_lshlrev_b32 v{t+4}, 8, v{t+4}")
    a(f"v_add_u32 v{t+4}, 32768, v{t+4}")
    a(f"v_lshlrev_b32 v{t+5}, 3, v{t+2}")
    a(f"s_and_b32 s{S_T1}, s{S_HP}, 1")
    a(f"s_lshl_b32 s{S_T1}, s{S_T1}, 3")
    a(f"v_add3_u32 v{t+5}, v{t+5}, v{t+3}, s{S_T1}")
    for Tn in range(6):
        off = 80*(Tn >> 1) + (40 if Tn & 1 else 0)
        a(f"v_add_u32 v{t+6}, {off}, v{t+5}")
        a(f"v_and_b32 v{t+6}, 255, v{t+6}")
        a(f"v_add_u32 v{V_AW+Tn}, v{t+4}, v{t+6}")
    a(f"v_min_u32 v{t+6}, 2, v{t+2}")
    a(f"v_mul_u32_u24 v{t+6}, 80, v{t+6}")
    a(f"v_add3_u32 v{t+6}, v{t+6}, v{t+3}, s{S_T1}")
    a(f"v_add_u32 v{t+6}, 32, v{t+6}")
    a(f"v_and_b32 v{t+6}, 255, v{t+6}")
    a(f"v_add_u32 v{V_AW+6}, v{t+4}, v{t+6}")
    a(f"v_and_b32 v{t}, 15, v{L}")
    a(f"v_lshrrev_b32 v{t+1}, 4, v{L}")
    a(f"v_and_b32 v{t+2}, 1, v{t+1}")
    a(f"v_lshl_add_u32 v{t+2}, v{t+2}, 4, v{t}")
    a(f"v_lshrrev_b32 v{t+3}, 2, v{t}")
    a(f"v_lshrrev_b32 v{t+4}, 3, v{t}")
    a(f"v_xor_b32 v{t+3}, v{t+3}, v{t+4}")
    a(f"v_lshrrev_b32 v{t+4}, 1, v{t+1}")
    a(f"v_xor_b32 v{t+3}, v{t+3}, v{t+4}")
    a(f"v_and_b32 v{t+3}, 1, v{t+3}")
    a(f"v_lshlrev_b32 v{t+3}, 4, v{t+3}")
    a(f"v_lshl_add_u32 v{t+3}, v{t+2}, 5, v{t+3}")
    a(f"s_mul_i32 s{S_T0}, s{S_WID}, {2*TILE}")
    a(f"s_add_u32 s{S_T0}, s{S_T0}, {KV_OWN}")
    a(f"s_mul_i32 s{S_T1}, s{S_WID}, {2*QTILE}")
    a(f"s_add_u32 s{S_T1}, s{S_T1}, {Q_BASE}")
    a(f"v_add_u32 v{vEK}, s{S_T0}, v{t+3}")
    a(f"v_add_u32 v{vEQ}, s{S_T1}, v{t+3}")
    a(f"v_mul_u32_u24 v{t+4}, 72, v{t}")
    a(f"v_lshl_add_u32 v{t+5}, v{t+1}, 3, v{t+4}")
    a(f"v_add_u32 v{t+5}, 2304, v{t+5}")
    a(f"v_add_u32 v{vEV}, s{S_T0}, v{t+5}")
    a(f"v_lshlrev_b32 v{t+5}, 3, v{t}")
    a(f"v_add_u32 v{t+5}, 2048, v{t+5}")
    a(f"v_add_u32 v{t+6}, s{S_T1}, v{t+5}")
    a(f"v_add_u32 v{t+7}, s{S_T0}, v{t+5}")
    a(f"v_add_u32 v{t+4}, {2304+32}, v{t+4}")
    a(f"v_add_u32 v{t+4}, s{S_T0}, v{t+4}")
    a(f"v_mov_b32 v{vDr}, 128")
    a(f"v_mov_b32 v{vDt}, {TILE}")
    a(f"v_mov_b32 v{vF}, 1.0")
    a(f"v_mov_b32 v{vE6}, v{t+7}")
    a(f"v_cmp_eq_u32 vcc, 0, v{t+1}")
    a(f"v_mov_b32 v{t+5}, {QTILE}")
    a(f"v_mov_b32 v{vC}, {f32bits(QSCALE):#x}")
    a(f"v_cndmask_b32 v{vE6}, v{vE6}, v{t+6}, vcc")
    a(f"v_cndmask_b32 v{vDt}, v{vDt}, v{t+5}, vcc")
    a(f"v_cndmask_b32 v{vF}, v{vF}, v{vC}, vcc")
    a(f"v_cmp_eq_u32 vcc, 2, v{t+1}")
    a(f"v_mov_b32 v{t+5}, 1152")
    a(f"v_mov_b32 v{vC+1}, v{vC}")
    a(f"v_cndmask_b32 v{vE6}, v{vE6}, v{t+4}, vcc")
    a(f"v_cndmask_b32 v{vDr}, v{vDr}, v{t+5}, vcc")
    a(f"v_mov_b32 v{vF+1}, v{vF}")
    a("s_waitcnt lgkmcnt(0)")
    if 'nocp' not in exp:
        a(f"s_cmp_lg_u32 s{S_WID}, 3")
        a("s_cbranch_scc1 L_NOCP")
        a(f"s_getpc_b64 s[{S_RET}:{S_RET+1}]")
        a.lab("L_PCREF")
        a(f"s_sub_u32 s{S_RET}, s{S_RET}, L_PCREF-{NAME}_kernel")
        a(f"s_subb_u32 s{S_RET+1}, s{S_RET+1}, 0")
        a(f"s_mul_i32 s{S_T0}, s{S_I}, {5*128}")
        a(f"v_lshlrev_b32 v{t}, 7, v{L}")
        a(f"v_add_u32 v{t}, s{S_T0}, v{t}")
        a(f"s_mov_b32 s{S_T1}, L_END-{NAME}_kernel")
        a(f"v_cmp_gt_u32 vcc, s{S_T1}, v{t}")
        a(f"s_and_b64 vcc, vcc, 31")
        a(f"s_and_saveexec_b64 s[{S_SAVE}:{S_SAVE+1}], vcc")
        a("s_cbranch_execz L_NOCP2")
        a(f"global_load_dword v{V_TL}, v{t}, s[{S_RET}:{S_RET+1}]")
        a.lab("L_NOCP2")
        rest_exec()
        a.lab("L_NOCP")
    a(f"s_cmp_lg_u32 s{S_WID}, 0")
    a("s_cbranch_scc1 L_NOG0")
    a(f"s_lshl_b32 s{S_T0}, s{S_IDX}, 8")
    a(f"s_add_u32 s{S_T0}, s{S_T0}, {WS_FLAG}")
    a(f"s_lshl_b32 s{S_T1}, s{S_GRP}, 12")
    a(f"s_add_u32 s{S_T1}, s{S_T1}, {WS_OF}")
    a(f"v_mov_b32 v{t}, 0")
    a(f"buffer_load_dword v{V_TG}, v{t}, {WS}, s{S_T0} offen sc1")
    a(f"s_sub_u32 s{S_T0}, s{S_T0}, 256")
    a(f"s_max_u32 s{S_T0}, s{S_T0}, {WS_FLAG}")
    a(f"buffer_load_dword v{V_TG+1}, v{t}, {WS}, s{S_T0} offen sc1")
    a(f"buffer_load_dword v{V_TG+2}, v{t}, {WS}, s{S_T1} offen sc1")
    a.lab("L_NOG0")
    for i in range(112):
        a(f"v_mov_b32 v{V_ACC+i}, 0")
    emit_masks()
    emit_p2_patterns()
    a(f"v_mov_b32 v{t+2}, 0x3f803f80")
    a(f"v_mov_b32 v{t+3}, 0x3f803f80")
    a(f"v_mul_u32_u24 v{t+4}, 576, v{L}")
    a(f"v_add_u32 v{t+4}, {MISC}, v{t+4}")
    save_exec(15)
    a(f"ds_write_b64 v{t+4}, v[{t+2}:{t+3}]")
    rest_exec()
    a(f"s_cmp_lg_u32 s{S_WID}, 0")
    a("s_cbranch_scc1 L_NOG1")
    a("s_waitcnt vmcnt(0)")
    for i in range(3): a(f"v_add_u32 v{V_TG+i}, {TAG_INC:#x}, v{V_TG+i}")
    a(f"v_mov_b32 v{V_TG+3}, 0")
    a(f"v_mov_b32 v{t+4}, {TAGS_LDS}")
    save_exec(1)
    a(f"ds_write_b128 v{t+4}, v[{V_TG}:{V_TG+3}]")
    for i in range(4): a(f"v_mov_b32 v{V_TG+i}, 0")
    a(f"ds_write_b128 v{t+4}, v[{V_TG}:{V_TG+3}] offset:16")
    rest_exec()
    a.lab("L_NOG1")
    a("s_waitcnt lgkmcnt(0)")
    a("s_barrier")
    if "tsh" not in exp and "tsj" not in exp: ts(1)
    def reads(setb, ks):
        xs = [f"ds_read_b128 v[{setb+4*mt}:{setb+4*mt+3}], v{V_AX+ks} offset:{mt*2048}" for mt in range(4)]
        ws = []
        for Tn in range(7):
            b = setb + 16 + 4*Tn
            ws.append(f"ds_read_b64_tr_b16 v[{b}:{b+1}], v{V_AW+Tn} offset:{ks*8192}")
            ws.append(f"ds_read_b64_tr_b16 v[{b+2}:{b+3}], v{V_AW+Tn} offset:{ks*8192+1024}")
        return [xs[0], ws[0], ws[1], xs[1], ws[2], ws[3], xs[2], ws[4], ws[5], xs[3]] + ws[6:]
    def mfmas(setb):
        m = []
        for Tn in range(7):
            for mt in range(4):
                d = V_ACC + (mt*7+Tn)*4
                m.append(f"v_mfma_f32_16x16x32_bf16 v[{d}:{d+3}], v[{setb+16+4*Tn}:{setb+16+4*Tn+3}], v[{setb+4*mt}:{setb+4*mt+3}], v[{d}:{d+3}]")
        return m
    def interleave(ms, extra, per=1):
        ri = 0
        for i, m in enumerate(ms):
            a(m)
            for _ in range(per):
                if ri < len(extra): a(extra[ri]); ri += 1
        while ri < len(extra):
            a(extra[ri]); ri += 1
    for i in range(4): a(f"v_mov_b32 v{V_TG+i}, -1")
    a(f"v_lshlrev_b32 v{V_TL+1}, 4, v{L}")
    a(f"s_lshl_b32 s{S_XB}, s{S_GRP}, 18")
    a(f"s_add_u32 s{S_XB}, s{S_XB}, {WS_O}")
    a(f"s_lshl_b32 s{S_T0}, s{S_WID}, 16")
    a(f"s_add_u32 s{S_XB}, s{S_XB}, s{S_T0}")
    a(f"s_lshl_b32 s{S_T0}, s{S_HP}, 10")
    a(f"s_add_u32 s{S_XB}, s{S_XB}, s{S_T0}")
    a(f"s_lshl_b32 s{S_WB}, s{S_GRP}, 15")
    a(f"s_add_u32 s{S_WB}, s{S_WB}, {WS_OR}")
    a(f"s_lshl_b32 s{S_T0}, s{S_HP}, 1")
    a(f"s_and_b32 s{S_T1}, s{S_WID}, 1")
    a(f"s_add_u32 s{S_T0}, s{S_T0}, s{S_T1}")
    a(f"s_lshl_b32 s{S_T0}, s{S_T0}, 10")
    a(f"s_add_u32 s{S_WB}, s{S_WB}, s{S_T0}")
    for rd in reads(V_SET0, 0): a(rd)
    a(f"s_mov_b32 s{S_K}, 0")
    a(f"s_mov_b32 s{S_SB}, 0")
    if 'tb' in exp: a(f"v_mov_b32 v{V_TL}, 0")
    a.lab("L_GEMM")
    a(f"s_cmp_lt_u32 s{S_K}, 7")
    a("s_cbranch_scc1 L_GEMM_NC")
    a(f"buffer_store_dwordx4 v[{V_TG}:{V_TG+3}], v{V_TL+1}, {WS}, s{S_XB} offen sc1")
    a(f"s_add_u32 s{S_XB}, s{S_XB}, 16384")
    a(f"buffer_store_dwordx4 v[{V_TG}:{V_TG+3}], v{V_TL+1}, {WS}, s{S_XB} offen sc1")
    a(f"s_add_u32 s{S_XB}, s{S_XB}, 16384")
    a(f"s_cmp_eq_u32 s{S_K}, 8")
    a("s_cbranch_scc1 L_GEMM_NC")
    a(f"buffer_store_dwordx4 v[{V_TG}:{V_TG+3}], v{V_TL+1}, {WS}, s{S_WB} offen sc1")
    a.lab("L_GEMM_NC")
    a("s_waitcnt lgkmcnt(0)")
    if 'tb' in exp:
        a(f"s_sub_u32 s92, s92, s70")
        a(f"s_mov_b32 m0, s{S_K}")
        a("s_nop 4")
        a(f"v_writelane_b32 v{V_TL}, s92, m0")
    sal = [f"s_add_u32 s{S_SB}, s{S_SB}, 1", f"s_cmp_eq_u32 s{S_SB}, 3", f"s_mov_b32 s{S_T0}, {STAGE}",
           f"s_cselect_b32 s{S_T0}, {(-2*STAGE) & 0xffffffff}, s{S_T0}", f"s_cselect_b32 s{S_SB}, 0, s{S_SB}"]
    interleave(mfmas(V_SET0), reads(V_SET1, 1) + sal)
    a("s_waitcnt lgkmcnt(0)")
    a("s_barrier")
    if 'tb' in exp: a("s_memtime s[92:93]")
    rd = reads(V_SET0, 0)
    adds = [f"v_add_u32 v{V_AX+i}, s{S_T0}, v{V_AX+i}" for i in range(9)]
    ex = [adds[0], adds[2], rd[0], rd[1], rd[2], adds[3], rd[3], rd[4], rd[5], adds[4], rd[6], rd[7], rd[8], rd[9],
          adds[5], rd[10], rd[11], adds[6], rd[12], rd[13], adds[7], rd[14], rd[15], adds[8], rd[16], rd[17], adds[1],
          f"s_add_u32 s{S_K}, s{S_K}, 1", f"s_cmp_lt_u32 s{S_K}, 9"]
    ms = mfmas(V_SET1)
    ri = 0
    for i, m in enumerate(ms):
        a(m)
        n = 2 if i < 6 else 1
        for _ in range(n):
            if ri < len(ex): a(ex[ri]); ri += 1
    assert ri == len(ex)
    a("s_cbranch_scc1 L_GEMM")
    if "tsh" not in exp and "tsj" not in exp: ts(2)
    a.c("phase-1 epilogue")
    acc = lambda mt, Tn: V_ACC + (mt*7+Tn)*4
    SC = 84
    def qk_cvt(Tn, R0):
        for p in range(2):
            R = R0 + 4*p
            da, db = acc(2*p, Tn), acc(2*p+1, Tn)
            a(f"v_cvt_pk_bf16_f32 v{R}, v{da}, v{da+1}")
            a(f"v_cvt_pk_bf16_f32 v{R+2}, v{db}, v{db+1}")
            a(f"v_cvt_pk_bf16_f32 v{R+1}, v{da+2}, v{da+3}")
            a(f"v_cvt_pk_bf16_f32 v{R+3}, v{db+2}, v{db+3}")
    def qk_swap(R):
        a(f"v_permlane16_swap_b32 v{R}, v{R+2}")
        a(f"v_permlane16_swap_b32 v{R+1}, v{R+3}")
    a("s_nop 3")
    qk_cvt(2, SC); qk_cvt(3, SC+8)
    vw = []
    for Tn in (4, 5):
        for mt in range(4):
            R = SC + 16 + ((Tn-4)*4+mt)*2
            d = acc(mt, Tn)
            a(f"v_cvt_pk_bf16_f32 v{R}, v{d}, v{d+1}")
            a(f"v_cvt_pk_bf16_f32 v{R+1}, v{d+2}, v{d+3}")
            vw.append(f"ds_write_b64 v{vEV}, v[{R}:{R+1}] offset:{(mt>>1)*TILE + (mt&1)*1152 + (40 if Tn==5 else 0)}")
    kw = [(SC+4*q, (q & 1)*TILE + (q >> 1)*1024) for q in range(4)]
    for q, (R, off) in enumerate(kw):
        qk_swap(R)
        a(vw[2*q]); a(vw[2*q+1])
    for mt in range(4):
        d = acc(mt, 6)
        a(f"v_pk_mul_f32 v[{d}:{d+1}], v[{d}:{d+1}], v[{vF}:{vF+1}]")
        a(f"v_pk_mul_f32 v[{d+2}:{d+3}], v[{d+2}:{d+3}], v[{vF}:{vF+1}]")
        R, off = kw[mt]
        a(f"ds_write_b128 v{vEK}, v[{R}:{R+3}] offset:{off}")
    R6 = SC + 32
    a(f"v_add_u32 v{t}, v{vE6}, v{vDr}")
    a(f"v_add_u32 v{t+1}, v{vE6}, v{vDt}")
    for mt in range(4):
        d = acc(mt, 6)
        a(f"v_cvt_pk_bf16_f32 v{R6+2*mt}, v{d}, v{d+1}")
        a(f"v_cvt_pk_bf16_f32 v{R6+2*mt+1}, v{d+2}, v{d+3}")
    a(f"v_add_u32 v{t+2}, v{t+1}, v{vDr}")
    a(f"s_mov_b64 s[{S_SAVE}:{S_SAVE+1}], exec")
    a(f"s_mov_b32 exec_hi, 0x0000ffff")
    a(f"ds_write_b64 v{vE6}, v[{R6}:{R6+1}]")
    a(f"ds_write_b64 v{t}, v[{R6+2}:{R6+3}]")
    a(f"ds_write_b64 v{t+1}, v[{R6+4}:{R6+5}]")
    a(f"ds_write_b64 v{t+2}, v[{R6+6}:{R6+7}]")
    rest_exec()
    for mt in range(4):
        for Tn in (0, 1):
            d = acc(mt, Tn)
            a(f"v_pk_mul_f32 v[{d}:{d+1}], v[{d}:{d+1}], v[{vC}:{vC+1}]")
            a(f"v_pk_mul_f32 v[{d+2}:{d+3}], v[{d+2}:{d+3}], v[{vC}:{vC+1}]")
    if 'tse' in exp: ts(5, True)
    a("s_waitcnt lgkmcnt(0)")
    if 'tse' in exp: ts(6, True)
    a("s_barrier")
    if 'tse' in exp: ts(7, True)
    qk_cvt(0, SC); qk_cvt(1, SC+8)
    for r in range(8): a(f"v_mov_b32 v{OA+r}, 0")
    for q in range(4):
        R = SC + 4*q
        qk_swap(R)
        for r in range(4): a(f"v_mov_b32 v{OA+8+4*q+r}, 0") if q < 2 else a(f"v_mov_b32 v{OB+4*(q-2)+r}, 0")
        a(f"ds_write_b128 v{vEQ}, v[{R}:{R+3}] offset:{(q & 1)*QTILE + (q >> 1)*1024}")
    for r in range(8, 16): a(f"v_mov_b32 v{OB+r}, 0")

    a.lab("L_P2")
    if 'tse' in exp: ts(8, True)
    a(f"v_mov_b32 v{t}, {TAGS_LDS}")
    a(f"ds_read_b128 v[{V_TG}:{V_TG+3}], v{t}")
    a("s_waitcnt lgkmcnt(0)")
    a("s_barrier")
    ts(3)
    if debug_stage == 1:
        a(f"s_lshl_b32 s{S_T0}, s{S_IDX}, 16")
        a(f"v_lshlrev_b32 v{t}, 4, v0")
        for i in range(7):
            a(f"v_add_u32 v{t+1}, {KV_OWN + i*8192}, v{t}")
            a(f"ds_read_b128 v[40:43], v{t+1}")
            a("s_waitcnt lgkmcnt(0)")
            a(f"v_add_u32 v{t+2}, {i*8192}, v{t}")
            a(f"buffer_store_dwordx4 v[40:43], v{t+2}, {WS}, s{S_T0} offen")
            a("s_waitcnt vmcnt(0)")
        a("s_branch L_FIN")
    if debug_stage == 9:
        a("s_branch L_FIN")
    if debug_stage not in (1, 9):
        phase2(a, debug_stage, ts, exp, save_exec, rest_exec)
        phase3(a, debug_stage, ts, exp, save_exec, rest_exec)
    a.lab("L_FIN")
    if 'hdbg' in exp:
        a("s_waitcnt vmcnt(0) lgkmcnt(0)")
        a("s_memrealtime s[94:95]")
        a(f"s_load_dwordx2 s[{S_X}:{S_X+1}], s[0:1], 56")
        a("s_waitcnt lgkmcnt(0)")
        a(f"s_cmp_lg_u32 s{S_WID}, 4")
        a("s_cbranch_scc1 L_END")
        a(f"s_mov_b32 s{S_X+2}, 256")
        a(f"s_mov_b32 s{S_X+3}, 0x00020000")
        a("s_mov_b64 exec, 1")
        a("v_mov_b32 v2, 0")
        a("s_not_b32 s33, s70")
        a("v_mov_b32 v3, s33")
        a(f"buffer_atomic_umax v3, v2, s[{S_X}:{S_X+3}], 0 offen offset:0")
        a("v_mov_b32 v3, s70")
        a(f"buffer_atomic_umax v3, v2, s[{S_X}:{S_X+3}], 0 offen offset:4")
        for k, i in enumerate((3, 4, 5, 7, 8, 10, 9, 11, 12)):
            a(f"v_mov_b32 v{4+k}, s{70+2*i}")
            a(f"buffer_atomic_umax v{4+k}, v2, s[{S_X}:{S_X+3}], 0 offen offset:{8+4*k}")
        a("s_waitcnt vmcnt(0)")
        a("s_branch L_END")
    if timing:
        a("s_waitcnt vmcnt(0) lgkmcnt(0)")
        a(f"{'s_memrealtime' if ('abs' in exp or 'hdbg' in exp) else 's_memtime'} s[94:95]")
        a("s_waitcnt lgkmcnt(0)")
        a(f"s_lshl_b32 s{S_T0}, s2, 3")
        a(f"s_add_u32 s{S_T0}, s{S_T0}, s{S_WID}")
        a(f"s_lshl_b32 s{S_T0}, s{S_T0}, 6")
        a(f"s_add_u32 s{S_T0}, s{S_T0}, {TIMING_OFF}")
        for i in range(13):
            a(f"s_sub_u32 s{S_T1}, s{70+2*i}, s70" if (i and 'abs' not in exp) else f"s_mov_b32 s{S_T1}, s{70+2*i}")
            a(f"s_cmp_eq_u32 s{70+2*i}, 0")
            a(f"s_cselect_b32 s{S_T1}, 0, s{S_T1}")
            a(f"v_mov_b32 v{40+i}, s{S_T1}")
        if 'tb' in exp:
            a(f"v_lshlrev_b32 v2, 2, v{V_LANE}")
            a(f"s_add_u32 s{S_T1}, s{S_T0}, {1<<20}")
            a(f"s_mov_b64 exec, 0xffff")
            a(f"buffer_store_dword v{V_TL}, v2, {WS}, s{S_T1} offen")
        a(f"v_mov_b32 v2, 0")
        a(f"s_mov_b64 exec, 1")
        for i in range(3):
            a(f"buffer_store_dwordx4 v[{40+4*i}:{43+4*i}], v2, {WS}, s{S_T0} offen offset:{16*i}")
        a(f"buffer_store_dword v52, v2, {WS}, s{S_T0} offen offset:48")
        a("s_waitcnt vmcnt(0)")
    a.lab("L_END")
    a("s_endpgm")
    a(f""".section .rodata,"a"
.p2align 6
.amdhsa_kernel {NAME}_kernel
  .amdhsa_next_free_vgpr 256
  .amdhsa_next_free_sgpr 102
  .amdhsa_accum_offset 256
  .amdhsa_group_segment_fixed_size 0
  .amdhsa_kernarg_size 72
  .amdhsa_user_sgpr_count 2
  .amdhsa_user_sgpr_kernarg_segment_ptr 1
  .amdhsa_system_sgpr_workgroup_id_x 1
.end_amdhsa_kernel""")
    return a.text()

WS = f"s[{S_WS}:{S_WS+3}]"

def spin_poll(a, name, check_lines, load_line, limit=2000000, first_done=False):
    a(f"s_mov_b32 s{S_CNT}, 0")
    if first_done: a(f"s_branch {name}_W")
    a.lab(name)
    a(load_line)
    a.lab(name + "_W")
    a(f"s_add_u32 s{S_CNT}, s{S_CNT}, 1")
    a("s_waitcnt vmcnt(0)")
    for l in check_lines: a(l)
    a(f"s_cbranch_scc1 {name}_OK")
    a(f"s_cmp_lt_u32 s{S_CNT}, {limit}")
    a(f"s_cbranch_scc1 {name}")
    a.lab(name + "_OK")

def lds_inc(a, addr, save_exec, rest_exec, rtn=None):
    t = T
    a(f"v_mov_b32 v{t}, {addr}")
    a(f"v_mov_b32 v{t+1}, 1")
    save_exec(1)
    if rtn is None: a(f"ds_add_u32 v{t}, v{t+1}")
    else: a(f"ds_add_rtn_u32 v{rtn}, v{t}, v{t+1}")
    rest_exec()

def lds_wait(a, name, addr, val):
    t = T
    a(f"v_mov_b32 v{t}, {addr}")
    a(f"s_mov_b32 s{S_CNT}, 0")
    a.lab(name)
    a(f"ds_read_b32 v{t+1}, v{t}")
    a(f"s_add_u32 s{S_CNT}, s{S_CNT}, 1")
    a("s_waitcnt lgkmcnt(0)")
    a(f"v_readfirstlane_b32 s{S_T0}, v{t+1}")
    a(f"s_cmp_ge_u32 s{S_T0}, {val}")
    a(f"s_cbranch_scc1 {name}_OK")
    a(f"s_cmp_lt_u32 s{S_CNT}, 20000000")
    a(f"s_cbranch_scc1 {name}")
    a.lab(name + "_OK")

def hook_point(a, tag):
    a(f"s_add_u32 s{S_U}, s{S_U}, 1")
    a(f"s_cmp_lg_u32 s{S_U}, s{S_HOOK}")
    a(f"s_cbranch_scc1 {tag}")
    a(f"s_call_b64 s[{S_RET2}:{S_RET2+1}], L_HOOK")
    a.lab(tag)

def run_code(a, name, QM, QR, O, exp):
    cnt = [0]
    def qk1(creg):
        c = "0" if creg is None else f"v[{creg}:{creg+15}]"
        a(f"v_mfma_f32_32x32x16_bf16 v[{VS}:{VS+15}], v[{VKF}:{VKF+3}], v[{QM}:{QM+3}], {c}")
    def qk2():
        a(f"v_mfma_f32_32x32x16_bf16 v[{VS}:{VS+15}], v[{VKR}:{VKR+3}], v[{QR}:{QR+3}], v[{VS}:{VS+15}]")
    def pv(V, P):
        a(f"v_mfma_f32_32x32x16_bf16 v[{O}:{O+15}], v[{V}:{V+3}], v[{P}:{P+3}], v[{O}:{O+15}]")
    def kread():
        a(f"ds_read_b128 v[{VKF}:{VKF+3}], v{A_K}")
        a(f"ds_read_b64 v[{VKR}:{VKR+1}], v{A_KR}")
    def kstep():
        a(f"v_add_u32 v{A_K}, v{ST_K}, v{A_K}")
        a(f"v_add_u32 v{A_KR}, v{ST_K}, v{A_KR}")
    def vread(V, off):
        a(f"ds_read_b64_tr_b16 v[{V}:{V+1}], v{A_V} offset:{off}")
        a(f"ds_read_b64_tr_b16 v[{V+2}:{V+3}], v{A_V} offset:{off+576}")
    def cvt(j): a(f"v_cvt_pk_bf16_f32 v{VP+j}, v{VE+2*j}, v{VE+2*j+1}")
    def ex(r): a(f"v_exp_f32 v{VE+r}, v{VS+r}")
    def unit(D):
        if 'pf' in exp: a("s_setprio 1" if 'pfi' not in exp else "s_setprio 0")
        for r in range(8): ex(r)
        for j in range(4): cvt(j)
        ex(8); ex(9)
        a("s_waitcnt lgkmcnt(0)")
        pv(VVA, VP)
        for r in range(10, 16): ex(r)
        if 'pf' in exp: a("s_setprio 0" if 'pfi' not in exp else "s_setprio 1")
        if D:
            qk1(V_MASK if D == "mask" else None)
            for j in range(4, 8): cvt(j)
            vread(VVA, 0)
            qk2()
            kstep()
            kread()
            pv(VVB, VP+4)
            vread(VVB, 1152)
            a(f"v_add_u32 v{A_V}, v{ST_V}, v{A_V}")
        else:
            a("s_nop 0")
            for j in range(4, 8): cvt(j)
            a("s_nop 1")
            pv(VVB, VP+4)
    a.lab(name)
    kread()
    a(f"s_cmp_eq_u32 s{S_N}, 1")
    a(f"s_cbranch_scc1 {name}_M1")
    kstep()
    a("s_waitcnt lgkmcnt(0)")
    qk1(None); qk2()
    vread(VVA, 0); kread(); vread(VVB, 1152)
    a(f"v_add_u32 v{A_V}, v{ST_V}, v{A_V}")
    a(f"s_sub_u32 s{S_N}, s{S_N}, 2")
    a.lab(name + "_BT")
    a(f"s_cmp_eq_u32 s{S_N}, 0")
    a(f"s_cbranch_scc1 {name}_MK0")
    a(f"s_sub_u32 s{S_E}, s{S_HOOK}, s{S_U}")
    a(f"s_min_u32 s{S_E}, s{S_E}, s{S_N}")
    a(f"s_sub_u32 s{S_N}, s{S_N}, s{S_E}")
    a(f"s_add_u32 s{S_U}, s{S_U}, s{S_E}")
    a(f"s_sub_u32 s{S_E}, s{S_E}, 1")
    a.lab(name + "_LP")
    unit("plain")
    a(f"s_sub_u32 s{S_E}, s{S_E}, 1")
    a("s_nop 1")
    a(f"s_cbranch_scc0 {name}_LP")
    a(f"s_cmp_lg_u32 s{S_U}, s{S_HOOK}")
    a(f"s_cbranch_scc1 {name}_BT")
    a(f"s_call_b64 s[{S_RET2}:{S_RET2+1}], L_HOOK")
    a(f"s_branch {name}_BT")
    a.lab(name + "_MK0")
    a("s_nop 3")
    a.lab(name + "_MK")
    unit("mask")
    hook_point(a, f"{name}_H1")
    a("s_nop 1")
    a.lab(name + "_FN")
    unit(None)
    hook_point(a, f"{name}_H2")
    a(f"s_setpc_b64 s[{S_RET}:{S_RET+1}]")
    a.lab(name + "_M1")
    a("s_waitcnt lgkmcnt(0)")
    qk1(V_MASK); qk2()
    vread(VVA, 0); vread(VVB, 1152)
    a("s_nop 7")
    a(f"s_branch {name}_FN")

def set_run(a, region, tile_sreg, n_lines, step):
    a(f"s_mul_i32 s{S_T0}, s{tile_sreg}, {TILE}" if tile_sreg is not None else f"s_mov_b32 s{S_T0}, 0")
    a(f"s_add_u32 s{S_T0}, s{S_T0}, {region}")
    a(f"v_add_u32 v{A_K}, s{S_T0}, v{B_K}")
    a(f"v_add_u32 v{A_KR}, s{S_T0}, v{B_KR}")
    a(f"v_and_b32 v{A_V}, s{S_T0}, v{MK_V}")
    a(f"v_add_u32 v{A_V}, v{B_V}, v{A_V}")
    a(f"v_mov_b32 v{ST_K}, {step & 0xffffffff:#x}")
    a(f"v_and_b32 v{ST_V}, v{ST_K}, v{MK_V}")
    for l in n_lines: a(l)

F_MD, F_MF, F_M = 190, 206, 222
S_FQ, S_FT, S_FK, S_FP, S_FI2 = 32+12, 45, 46, 47, 48

def safety_check(a, O, isB, qb_sreg, tag):
    t = T
    a(f"v_max3_f32 v{t}, |v{O}|, |v{O+1}|, |v{O+2}|")
    for k in range(3, 11, 2): a(f"v_max3_f32 v{t}, v{t}, |v{O+k}|, |v{O+k+1}|")
    a(f"v_max_f32 v{t}, v{t}, |v{O+11}|".replace("v_max_f32", "v_max_f32_e64"))
    a(f"v_mov_b32 v{t+1}, 0x21800000")
    a(f"v_mov_b32 v{t+2}, 0x5d800000")
    a(f"v_mov_b32 v{t+3}, 0x7f000000")
    a(f"v_cmp_nge_f32 vcc, v{O+12}, v{t+1}")
    a(f"v_cmp_nle_f32 s[{S_BAD}:{S_BAD+1}], v{O+12}, v{t+2}")
    a(f"s_or_b64 vcc, vcc, s[{S_BAD}:{S_BAD+1}]")
    a(f"v_cmp_nlt_f32 s[{S_BAD}:{S_BAD+1}], v{t}, v{t+3}")
    a(f"s_or_b64 vcc, vcc, s[{S_BAD}:{S_BAD+1}]")
    a("s_cmp_eq_u64 vcc, 0")
    a(f"s_cbranch_scc1 L_SAFE{tag}")
    a(f"s_mov_b32 s{S_FQ}, s{qb_sreg}")
    if isB:
        for r in range(8): a(f"v_swap_b32 v{QA_M+r}, v{QB_M+r}")
        for r in range(16): a(f"v_swap_b32 v{OA+r}, v{OB+r}")
    a(f"s_call_b64 s[{S_RET}:{S_RET+1}], L_FB")
    if isB:
        for r in range(8): a(f"v_swap_b32 v{QA_M+r}, v{QB_M+r}")
        for r in range(16): a(f"v_swap_b32 v{OA+r}, v{OB+r}")
    a.lab(f"L_SAFE{tag}")

def fallback_code(a):
    t = T; L = V_LANE
    a.lab("L_FB")
    a(f"v_and_b32 v{t}, 31, v{L}")
    a(f"v_lshrrev_b32 v{t+1}, 5, v{L}")
    a(f"v_lshlrev_b32 v{t+1}, 2, v{t+1}")
    a(f"v_sub_u32 v{t}, v{t}, v{t+1}")
    a(f"v_mov_b32 v{t+1}, {NEG:#x}")
    for r in range(16):
        jj = (r & 3) + 8*(r >> 2)
        a(f"v_cmp_le_i32 vcc, {jj}, v{t}")
        a("s_nop 1")
        a(f"v_cndmask_b32_e64 v{F_MD+r}, v{t+1}, 0, vcc")
        a(f"v_sub_f32 v{F_MF+r}, v{t+1}, v{F_MD+r}")
    a(f"v_mov_b32 v{F_M}, 0xff800000")
    a(f"s_mov_b32 s{S_FP}, 0")
    a.lab("L_FB_PASS")
    a(f"s_mov_b32 s{S_FI2}, 0")
    a.lab("L_FB_OWN")
    a(f"s_mul_i32 s{S_FT}, s{S_FI2}, {TILE}")
    a(f"s_add_u32 s{S_FT}, s{S_FT}, {KV_OWN}")
    a(f"s_cmp_eq_u32 s{S_FI2}, s{S_FQ}")
    a(f"s_cselect_b32 s{S_FK}, 1, 0")
    a(f"s_call_b64 s[{S_RET2}:{S_RET2+1}], L_FB_TILE")
    a(f"s_add_u32 s{S_FI2}, s{S_FI2}, 1")
    a(f"s_cmp_le_u32 s{S_FI2}, s{S_FQ}")
    a("s_cbranch_scc1 L_FB_OWN")
    a(f"s_cmp_eq_u32 s{S_S}, 0")
    a("s_cbranch_scc1 L_FB_PEND")
    a(f"s_mov_b32 s{S_FI2}, s{S_FQ}")
    a.lab("L_FB_HALO")
    a(f"s_mul_i32 s{S_FT}, s{S_FI2}, {TILE}")
    a(f"s_add_u32 s{S_FT}, s{S_FT}, {KV_HALO}")
    a(f"s_cmp_eq_u32 s{S_FI2}, s{S_FQ}")
    a(f"s_cselect_b32 s{S_FK}, 2, 0")
    a(f"s_call_b64 s[{S_RET2}:{S_RET2+1}], L_FB_TILE")
    a(f"s_add_u32 s{S_FI2}, s{S_FI2}, 1")
    a(f"s_cmp_le_u32 s{S_FI2}, 7")
    a("s_cbranch_scc1 L_FB_HALO")
    a.lab("L_FB_PEND")
    a(f"s_cmp_eq_u32 s{S_FP}, 1")
    a("s_cbranch_scc1 L_FB_DONE")
    a(f"v_mov_b32 v{t}, v{F_M}")
    a("s_nop 1")
    a(f"v_permlane32_swap_b32 v{F_M}, v{t}")
    a("s_nop 1")
    a(f"v_max_f32 v{F_M}, v{F_M}, v{t}")
    for r in range(16): a(f"v_mov_b32 v{OA+r}, 0")
    a(f"s_mov_b32 s{S_FP}, 1")
    a("s_branch L_FB_PASS")
    a.lab("L_FB_DONE")
    a("s_nop 15")
    a(f"s_setpc_b64 s[{S_RET}:{S_RET+1}]")
    a.lab("L_FB_TILE")
    a(f"v_add_u32 v{A_K}, s{S_FT}, v{B_K}")
    a(f"v_add_u32 v{A_KR}, s{S_FT}, v{B_KR}")
    a(f"v_and_b32 v{A_V}, s{S_FT}, v{MK_V}")
    a(f"v_add_u32 v{A_V}, v{B_V}, v{A_V}")
    a(f"ds_read_b128 v[{VKF}:{VKF+3}], v{A_K}")
    a(f"ds_read_b64 v[{VKR}:{VKR+1}], v{A_KR}")
    a(f"ds_read_b64_tr_b16 v[{VVA}:{VVA+1}], v{A_V}")
    a(f"ds_read_b64_tr_b16 v[{VVA+2}:{VVA+3}], v{A_V} offset:576")
    a(f"ds_read_b64_tr_b16 v[{VVB}:{VVB+1}], v{A_V} offset:1152")
    a(f"ds_read_b64_tr_b16 v[{VVB+2}:{VVB+3}], v{A_V} offset:1728")
    a("s_waitcnt lgkmcnt(0)")
    a(f"v_mfma_f32_32x32x16_bf16 v[{VS}:{VS+15}], v[{VKF}:{VKF+3}], v[{QA_M}:{QA_M+3}], 0")
    a(f"v_mfma_f32_32x32x16_bf16 v[{VS}:{VS+15}], v[{VKR}:{VKR+3}], v[{QA_R}:{QA_R+3}], v[{VS}:{VS+15}]")
    a("s_nop 15")
    a(f"s_cmp_eq_u32 s{S_FK}, 0")
    a("s_cbranch_scc1 L_FB_NM")
    a(f"s_cmp_eq_u32 s{S_FK}, 1")
    a("s_cbranch_scc0 L_FB_FM")
    for r in range(16): a(f"v_add_f32 v{VS+r}, v{VS+r}, v{F_MD+r}")
    a("s_branch L_FB_NM")
    a.lab("L_FB_FM")
    for r in range(16): a(f"v_add_f32 v{VS+r}, v{VS+r}, v{F_MF+r}")
    a.lab("L_FB_NM")
    a(f"s_cmp_eq_u32 s{S_FP}, 0")
    a("s_cbranch_scc0 L_FB_P1")
    for r in range(0, 16, 2): a(f"v_max3_f32 v{F_M}, v{F_M}, v{VS+r}, v{VS+r+1}")
    a(f"s_setpc_b64 s[{S_RET2}:{S_RET2+1}]")
    a.lab("L_FB_P1")
    for r in range(16): a(f"v_sub_f32 v{VS+r}, v{VS+r}, v{F_M}")
    for r in range(16): a(f"v_exp_f32 v{VE+r}, v{VS+r}")
    a("s_nop 0")
    for j in range(8): a(f"v_cvt_pk_bf16_f32 v{VP+j}, v{VE+2*j}, v{VE+2*j+1}")
    a("s_nop 1")
    a(f"v_mfma_f32_32x32x16_bf16 v[{OA}:{OA+15}], v[{VVA}:{VVA+3}], v[{VP}:{VP+3}], v[{OA}:{OA+15}]")
    a(f"v_mfma_f32_32x32x16_bf16 v[{OA}:{OA+15}], v[{VVB}:{VVB+3}], v[{VP+4}:{VP+7}], v[{OA}:{OA+15}]")
    a("s_nop 7")
    a(f"s_setpc_b64 s[{S_RET2}:{S_RET2+1}]")

def finalize(a, O, qb_sreg, save_exec, rest_exec):
    t = T; R = VS
    a(f"v_rcp_f32 v{t+2}, v{O+12}")
    a(f"s_lshl_b32 s{S_T0}, s{qb_sreg}, 15")
    a(f"s_add_u32 s{S_T1}, s{S_T0}, s{S_OM}")
    a(f"s_lshl_b32 s{S_T0}, s{qb_sreg}, 7")
    a(f"s_add_u32 s{S_T2}, s{S_T0}, s{S_OR}")
    for r in range(12): a(f"v_mul_f32 v{O+r}, v{O+r}, v{t+2}")
    a(f"v_cvt_pk_bf16_f32 v{R}, v{O}, v{O+1}")
    a(f"v_cvt_pk_bf16_f32 v{R+1}, v{O+2}, v{O+3}")
    a(f"v_cvt_pk_bf16_f32 v{R+2}, v{O+4}, v{O+5}")
    a(f"v_cvt_pk_bf16_f32 v{R+3}, v{O+6}, v{O+7}")
    a(f"v_cvt_pk_bf16_f32 v{R+4}, v{O+8}, v{O+9}")
    a(f"v_cvt_pk_bf16_f32 v{R+5}, v{O+10}, v{O+11}")
    a(f"s_cmp_eq_u32 s{S_HEAD}, 0")
    a(f"s_cselect_b64 s[{S_SAVE}:{S_SAVE+1}], -1, 0")
    a(f"v_permlane32_swap_b32 v{R}, v{R+2}")
    a(f"v_permlane32_swap_b32 v{R+1}, v{R+3}")
    a(f"v_cndmask_b32_e64 v{R+4}, v{R+5}, v{R+4}, s[{S_SAVE}:{S_SAVE+1}]")
    a(f"buffer_store_dwordx4 v[{R}:{R+3}], v{V_OA1}, {WS}, s{S_T1} offen sc1")
    a(f"s_mov_b64 s[{S_SAVE}:{S_SAVE+1}], exec")
    a(f"s_mov_b32 exec_hi, 0")
    a(f"buffer_store_dword v{R+4}, v{V_OA2}, {WS}, s{S_T2} offen sc1")
    rest_exec()

def oflag(a, name, cnt_addr, flag_off, save_exec, rest_exec, after_store=None, last=7):
    t = T
    lds_inc(a, cnt_addr, save_exec, rest_exec, rtn=t+2)
    a("s_waitcnt lgkmcnt(0)")
    a(f"v_readfirstlane_b32 s{S_T0}, v{t+2}")
    a(f"s_cmp_lg_u32 s{S_T0}, {last}")
    a(f"s_cbranch_scc1 {name}")
    a(f"s_lshl_b32 s{S_T0}, s{S_HP}, 2")
    a(f"s_add_u32 s{S_T0}, s{S_T0}, s{S_OFS}")
    a(f"v_lshlrev_b32 v{t}, 7, v{V_LANE}")
    a(f"v_mov_b32 v{t+1}, s{S_TAGO}")
    save_exec("0xffff")
    a(f"buffer_store_dword v{t+1}, v{t}, {WS}, s{S_T0} offen offset:{flag_off} sc1")
    rest_exec()
    if after_store: after_store()
    a.lab(name)

def phase2(a, debug_stage, ts, exp, save_exec, rest_exec):
    t = T; L = V_LANE
    UH = (4, 6, 8)
    if 'hkA' in exp: UH = (3, 5, 7)
    if 'hkB' in exp: UH = (4, 6, 7)
    if 'hkC' in exp: UH = (5, 7, 8)
    UP = 15
    a.c("======== phase 2 ========")
    a(f"v_readfirstlane_b32 s{S_TAGOUT}, v{V_TG}")
    a(f"v_readfirstlane_b32 s{S_TAGIN}, v{V_TG+1}")
    a(f"v_readfirstlane_b32 s{S_TAGO}, v{V_TG+2}")
    a(f"v_bfe_u32 v{V_OA1}, v{L}, 4, 1")
    a(f"v_lshlrev_b32 v{V_OA1}, 14, v{V_OA1}")
    a(f"v_and_b32 v{t+4}, 15, v{L}")
    a(f"v_lshl_add_u32 v{V_OA1}, v{t+4}, 4, v{V_OA1}")
    a(f"v_lshrrev_b32 v{t+4}, 5, v{L}")
    a(f"v_lshl_add_u32 v{V_OA1}, v{t+4}, 8, v{V_OA1}")
    a(f"v_lshlrev_b32 v{V_OA2}, 2, v{L}")
    for (QM, QR, sreg) in ((QA_M, QA_R, S_M), (QB_M, QB_R, S_MB)):
        a(f"s_mul_i32 s{S_T0}, s{sreg}, {QTILE}")
        a(f"s_add_u32 s{S_T0}, s{S_T0}, {Q_BASE}")
        a(f"v_add_u32 v{t+2}, s{S_T0}, v{B_K}")
        a(f"v_add_u32 v{t+3}, s{S_T0}, v{B_KR}")
        a(f"ds_read_b128 v[{QM}:{QM+3}], v{t+2}")
        a(f"ds_read_b64 v[{QR}:{QR+1}], v{t+3}")
    a(f"s_cmp_eq_u32 s{S_HEAD}, 0")
    a(f"s_cselect_b32 s{S_T0}, -1, 0")
    a(f"s_cselect_b32 s{S_T1}, 0, -1")
    a(f"v_cmp_gt_u32 vcc, 32, v{L}")
    a(f"v_mov_b32 v{t}, s{S_T0}")
    a(f"v_mov_b32 v{t+1}, s{S_T1}")
    a(f"v_cndmask_b32_e64 v{t}, 0, v{t}, vcc")
    a(f"v_cndmask_b32_e64 v{t+1}, 0, v{t+1}, vcc")
    a(f"v_mov_b32 v{VKR+2}, 0")
    a(f"v_mov_b32 v{VKR+3}, 0")
    for QR in (QA_R, QB_R):
        a(f"v_mov_b32 v{QR+2}, 0")
        a(f"v_mov_b32 v{QR+3}, 0")
    a("s_waitcnt lgkmcnt(0)")
    for QR in (QA_R, QB_R):
        a(f"v_and_b32 v{QR}, v{QR}, v{t}")
        a(f"v_and_b32 v{QR+1}, v{QR+1}, v{t+1}")
    lds_inc(a, CNTQ, save_exec, rest_exec)
    a(f"s_mov_b32 s{S_U}, 0")
    a(f"s_mov_b32 s{S_HST}, 0")
    a(f"s_mov_b32 s{S_HOOK}, 2")
    a(f"s_mov_b32 s{S_HST}, 5")
    a(f"s_cmp_lt_u32 s{S_WID}, 4")
    a(f"s_cbranch_scc1 L_HS2")
    a(f"s_mov_b32 s{S_HST}, 0")
    a(f"s_mov_b32 s{S_HOOK}, {UH[0]}")
    a(f"s_cmp_eq_u32 s{S_S}, 7")
    a(f"s_cbranch_scc1 L_HS1")
    a(f"s_mul_i32 s{S_T1}, s{S_IDX}, 36864")
    for c, i in enumerate([3, 2, 1, 0]):
        a(f"s_add_u32 s{S_T2}, s{S_T1}, {i*4096}")
        a(f"buffer_store_dwordx4 v[{VH+20+4*c}:{VH+20+4*c+3}], v{V_PA}, {WS}, s{S_T2} offen sc1")
    a.lab("L_HS1")
    if 'noprio' not in exp and 'pf' not in exp: a("s_setprio 1")
    a.lab("L_HS2")
    ts(4)
    set_run(a, KV_OWN, None, [f"s_add_u32 s{S_N}, s{S_M}, 1"], TILE)
    a(f"s_call_b64 s[{S_RET}:{S_RET+1}], L_RUNA")
    set_run(a, KV_OWN, None, [f"s_sub_u32 s{S_N}, 8, s{S_M}"], TILE)
    a(f"s_call_b64 s[{S_RET}:{S_RET+1}], L_RUNB")
    ts(5)
    a(f"s_cmp_eq_u32 s{S_S}, 0")
    a("s_cbranch_scc1 L_FINAL0")
    a(f"v_mov_b32 v{t+2}, {NEG:#x}")
    for r in range(16): a(f"v_sub_f32 v{V_MASK+r}, v{t+2}, v{V_MASK+r}")
    a(f"s_cmp_lt_u32 s{S_WID}, 4")
    a("s_cbranch_scc1 L_H5DONE")
    lds_wait(a, "L_WQ", CNTQ, 8)
    a(f"v_add_u32 v{V_PA+1}, {KV_HALO}, v{V_PA}")
    for c, i in enumerate([8, 7, 6, 5, 4, 3, 2, 1, 0]):
        a(f"s_waitcnt vmcnt({8-c})")
        a(f"ds_write_b128 v{V_PA+1}, v[{VH+4*c}:{VH+4*c+3}] offset:{i*4096}")
    if 'midbar' not in exp:
        a("s_waitcnt lgkmcnt(0)")
        lds_inc(a, CNT1, save_exec, rest_exec)
    a(f"s_cmp_lg_u32 s{S_WID}, 4")
    a("s_cbranch_scc1 L_H5DONE")
    a(f"s_sub_u32 s{S_T0}, s{S_IDX}, 1")
    a(f"s_lshl_b32 s{S_T0}, s{S_T0}, 8")
    a(f"s_add_u32 s{S_T0}, s{S_T0}, {WS_FLAG}")
    a(f"v_mov_b32 v{t}, 0")
    a(f"v_mov_b32 v{t+1}, s{S_TAGIN}")
    save_exec(1)
    a(f"buffer_store_dword v{t+1}, v{t}, {WS}, s{S_T0} offen sc1")
    rest_exec()
    a.lab("L_H5DONE")
    if 'midbar' in exp:
        a("s_waitcnt lgkmcnt(0)")
        if 'noph' in exp: a("s_setprio 0")
        a("s_barrier")
    else:
        lds_wait(a, "L_W1", CNT1, 4)
    if "tsh" not in exp: ts(7)
    a(f"s_mov_b32 s{S_T4}, 7")
    set_run(a, KV_HALO, S_T4, [f"s_add_u32 s{S_N}, s{S_M}, 1"], -TILE)
    a(f"s_call_b64 s[{S_RET}:{S_RET+1}], L_RUNB")
    a("s_nop 7")
    a("s_nop 3")
    safety_check(a, OB, True, S_MB, "B1")
    finalize(a, OB, S_MB, save_exec, rest_exec)
    if 'noph' not in exp: a("s_setprio 0")
    a(f"s_mov_b32 s{S_T4}, 7")
    set_run(a, KV_HALO, S_T4, [f"s_sub_u32 s{S_N}, 8, s{S_M}"], -TILE)
    a(f"s_call_b64 s[{S_RET}:{S_RET+1}], L_RUNA")
    a("s_branch L_FINALA")
    a.lab("L_FINAL0")
    a("s_waitcnt vmcnt(0)")
    a("s_setprio 0")
    a("s_barrier")
    a("s_nop 7")
    a("s_nop 3")
    safety_check(a, OB, True, S_MB, "B0")
    finalize(a, OB, S_MB, save_exec, rest_exec)
    a.lab("L_FINALA")
    a("s_setprio 0")
    if "tsh" not in exp: ts(8)
    a("s_nop 7")
    a("s_nop 3")
    safety_check(a, OA, False, S_M, "A")
    finalize(a, OA, S_M, save_exec, rest_exec)
    a("s_branch L_P3")
    fallback_code(a)

    a.lab("L_HOOK")
    a(f"s_cmp_eq_u32 s{S_HST}, 1")
    a("s_cbranch_scc1 L_HK1")
    a(f"s_cmp_eq_u32 s{S_HST}, 2")
    a("s_cbranch_scc1 L_HK2")
    a(f"s_cmp_eq_u32 s{S_HST}, 3")
    a("s_cbranch_scc1 L_HK3")
    a(f"s_cmp_eq_u32 s{S_HST}, 5")
    a("s_cbranch_scc0 L_HK0")
    a(f"s_mov_b32 s{S_HST}, 3")
    a(f"s_mov_b32 s{S_HOOK}, {UP}")
    a("s_waitcnt vmcnt(0)")
    oflag(a, "L_CLR", CNTOB, 128, save_exec, rest_exec, last=3)
    a("s_branch L_HRET")
    a.lab("L_HK0")
    a(f"s_mov_b32 s{S_HST}, 1")
    a(f"s_mov_b32 s{S_HOOK}, {UH[1]}")
    a(f"s_cmp_eq_u32 s{S_S}, 7")
    a("s_cbranch_scc1 L_HRET")
    a("s_waitcnt vmcnt(0)")
    a(f"s_lshl_b32 s{S_T0}, s{S_IDX}, 8")
    a(f"s_lshl_b32 s{S_T1}, s{S_L}, 2")
    a(f"s_add_u32 s{S_T0}, s{S_T0}, s{S_T1}")
    a(f"s_add_u32 s{S_T0}, s{S_T0}, {WS_FLAG+128}")
    a(f"v_mov_b32 v{t}, 0")
    a(f"v_mov_b32 v{t+1}, s{S_TAGOUT}")
    save_exec(1)
    a(f"buffer_store_dword v{t+1}, v{t}, {WS}, s{S_T0} offen sc1")
    rest_exec()
    a("s_branch L_HRET")
    a.lab("L_HK3")
    a(f"s_mov_b32 s{S_HST}, 4")
    a(f"s_mov_b32 s{S_HOOK}, 1000")
    if 'tlb' in exp:
        a(f"s_lshr_b32 s{S_T0}, s{S_HP}, 3")
        a(f"s_lshl_b32 s{S_T0}, s{S_T0}, 7")
        a(f"s_lshl_b32 s{S_T1}, s{S_S}, 8")
        a(f"s_add_u32 s{S_T0}, s{S_T0}, s{S_T1}")
        a(f"s_lshl_b32 s{S_T1}, s{S_WID}, 4")
        a(f"s_add_u32 s{S_T0}, s{S_T0}, s{S_T1}")
        a(f"s_mul_i32 s{S_T0}, s{S_T0}, 2304")
        a(f"v_mul_u32_u24 v{t}, 2304, v{L}")
        save_exec("0xffff")
        a(f"buffer_load_dword v{V_TG+2}, v{t}, s[{S_OUT}:{S_OUT+3}], s{S_T0} offen")
        rest_exec()
        a(f"s_lshl_b32 s{S_T0}, s{S_GRP}, 18")
        a(f"s_add_u32 s{S_T0}, s{S_T0}, {WS_O}")
        a(f"v_lshlrev_b32 v{t}, 12, v{L}")
        a(f"buffer_load_dword v{V_TG+3}, v{t}, {WS}, s{S_T0} offen sc1")
    a(f"s_lshl_b32 s{S_T0}, s{S_HP}, 7")
    a(f"s_add_u32 s{S_T0}, s{S_T0}, s{S_OFS}")
    save_exec("0xffff")
    a(f"v_lshlrev_b32 v{t}, 2, v{L}")
    a(f"buffer_load_dword v{V_TG+1}, v{t}, {WS}, s{S_T0} offen offset:128 sc1")
    rest_exec()
    a("s_branch L_HRET")
    a.lab("L_HK1")
    a(f"s_mov_b32 s{S_HST}, 2")
    a(f"s_mov_b32 s{S_HOOK}, {UH[2]}")
    a(f"s_cmp_eq_u32 s{S_S}, 0")
    a("s_cbranch_scc0 L_HK1A")
    a(f"s_mov_b32 s{S_HOOK}, 1000")
    a("s_branch L_HRET")
    a.lab("L_HK1A")
    a(f"s_sub_u32 s{S_H1}, s{S_IDX}, 1")
    a(f"s_lshl_b32 s{S_H1}, s{S_H1}, 8")
    a(f"s_lshl_b32 s{S_T0}, s{S_L}, 2")
    a(f"s_add_u32 s{S_H1}, s{S_H1}, s{S_T0}")
    a(f"s_add_u32 s{S_H1}, s{S_H1}, {WS_FLAG+128}")
    a(f"v_mov_b32 v{t}, 0")
    a(f"buffer_load_dword v{V_TG}, v{t}, {WS}, s{S_H1} offen sc1")
    a("s_branch L_HRET")
    a.lab("L_HK2")
    a(f"s_mov_b32 s{S_HST}, 3")
    a(f"s_mov_b32 s{S_HOOK}, {UP}")
    a("s_waitcnt vmcnt(0)")
    a(f"v_readfirstlane_b32 s{S_T0}, v{V_TG}")
    a(f"s_cmp_eq_u32 s{S_T0}, s{S_TAGIN}")
    a("s_cbranch_scc1 L_POLL1_OK")
    a(f"v_mov_b32 v{t}, 0")
    spin_poll(a, "L_POLL1",
              [f"v_readfirstlane_b32 s{S_T0}, v{V_TG}", f"s_cmp_eq_u32 s{S_T0}, s{S_TAGIN}"],
              f"buffer_load_dword v{V_TG}, v{t}, {WS}, s{S_H1} offen sc1")
    a(f"s_sub_u32 s{S_T0}, s{S_IDX}, 1")
    a(f"s_mul_i32 s{S_T0}, s{S_T0}, 36864")
    for c, i in enumerate([8, 7, 6, 5, 4, 3, 2, 1, 0]):
        a(f"s_add_u32 s{S_T1}, s{S_T0}, {i*4096}")
        a(f"buffer_load_dwordx4 v[{VH+4*c}:{VH+4*c+3}], v{V_PA}, {WS}, s{S_T1} offen sc1")
    a.lab("L_HRET")
    a(f"s_setpc_b64 s[{S_RET2}:{S_RET2+1}]")
    run_code(a, "L_RUNA", QA_M, QA_R, OA, exp)
    run_code(a, "L_RUNB", QB_M, QB_R, OB, exp)

def pub_stores(a, stage_off, base):
    a(f"s_add_u32 s{S_T2}, s{S_T1}, {stage_off}")
    a(f"buffer_store_dwordx4 v[{base}:{base+3}], v{V_PA}, {WS}, s{S_T2} offen sc1")
    for i in range(1, 4):
        a(f"s_add_u32 s{S_T3}, s{S_T2}, {i*4096}")
        a(f"buffer_store_dwordx4 v[{base+4*i}:{base+4*i+3}], v{V_PA}, {WS}, s{S_T3} offen sc1")
    a(f"buffer_store_dwordx4 v[{base+16}:{base+19}], v{V_PA+2}, {WS}, s{S_T2} offen sc1")

def halo_loads(a, stage_off, base):
    a(f"s_sub_u32 s{S_T0}, s{S_IDX}, 1")
    a(f"s_mul_i32 s{S_T0}, s{S_T0}, 36864")
    a(f"s_add_u32 s{S_T0}, s{S_T0}, s{S_SO}")
    for i in range(4):
        a(f"s_add_u32 s{S_T1}, s{S_T0}, {i*4096}")
        a(f"buffer_load_dwordx4 v[{base+4*i}:{base+4*i+3}], v{V_PA}, {WS}, s{S_T1} offen sc1")
    a(f"buffer_load_dwordx4 v[{base+16}:{base+19}], v{V_PA+2}, {WS}, s{S_T0} offen sc1")

def phase3(a, debug_stage, ts, exp, save_exec, rest_exec):
    t = T; L = V_LANE
    OF, AC, WF0, WF1 = 20, 92, 132, 152
    AW, AW2, PF, VO, VOUT, VR = 10, 11, 13, 14, 15, 16
    PA, PB = 12, 9
    S_PL, S_PR, S_PM = 4, 68, 40
    SCR = KV_OWN
    ORD = {0: [0, 2, 4, 6, 1, 3, 5, 7, 8], 1: [9, 11, 13, 15, 10, 12, 14, 16, 17]}
    GM = {0: 0x0055, 1: 0xAA00}; RM = {0: 0x01AA, 1: 0xFFFF}
    a.lab("L_P3")
    a.c("======== phase 3 ========")
    a(f"s_lshl_b32 s{S_PL}, s{S_HP}, 7")
    a(f"s_add_u32 s{S_PL}, s{S_PL}, s{S_OFS}")
    def poll_issue():
        save_exec("0xffff")
        a(f"v_lshlrev_b32 v{t+2}, 2, v{L}")
        a(f"buffer_load_dword v{PF}, v{t+2}, {WS}, s{S_PL} offen offset:128 sc1")
        rest_exec()
    def poll_check(name, mask):
        save_exec(f"{mask:#x}")
        a(f"v_cmp_ne_u32 vcc, s{S_TAGO}, v{PF}")
        a("s_nop 1")
        a("s_cmp_eq_u64 vcc, 0")
        a(f"s_cbranch_scc1 {name}_OK")
        a(f"v_lshlrev_b32 v{t+2}, 2, v{L}")
        spin_poll(a, name,
                  [f"v_cmp_ne_u32 vcc, s{S_TAGO}, v{PF}", "s_nop 1", "s_cmp_eq_u64 vcc, 0"],
                  f"buffer_load_dword v{PF}, v{t+2}, {WS}, s{S_PL} offen offset:128 sc1")
        rest_exec()
    a(f"s_lshr_b32 s{S_T1}, s{S_HP}, 3")
    a(f"s_lshl_b32 s{S_T1}, s{S_T1}, 3")
    a(f"s_lshl_b32 s{S_T2}, s{S_M}, 1")
    a(f"s_add_u32 s{S_T1}, s{S_T1}, s{S_T2}")
    a(f"s_lshl_b32 s{S_T0}, s{S_GRP}, 18")
    a(f"s_add_u32 s{S_T0}, s{S_T0}, {WS_O}")
    a(f"s_lshl_b32 s{S_T2}, s{S_T1}, 14")
    a(f"s_add_u32 s{S_PM}, s{S_T0}, s{S_T2}")
    a(f"s_lshl_b32 s{S_T0}, s{S_GRP}, 15")
    a(f"s_add_u32 s{S_T0}, s{S_T0}, {WS_OR}")
    a(f"s_lshl_b32 s{S_T2}, s{S_T1}, 6")
    a(f"s_add_u32 s{S_PR}, s{S_T0}, s{S_T2}")
    a(f"v_lshrrev_b32 v{VR}, 4, v{L}")
    a(f"v_lshlrev_b32 v{VR}, 12, v{VR}")
    a(f"v_and_b32 v{t+4}, 15, v{L}")
    a(f"v_lshl_add_u32 v{VR}, v{t+4}, 2, v{VR}")
    a(f"v_add_u32 v{VR+1}, 64, v{VR}")
    a(f"v_lshrrev_b32 v{t+1}, 4, v{L}")
    a(f"v_bfe_u32 v{t+2}, v{L}, 2, 2")
    a(f"v_and_b32 v{t+3}, 3, v{L}")
    a(f"v_lshrrev_b32 v{t+4}, 1, v{t+1}")
    a(f"v_lshlrev_b32 v{t+4}, 2, v{t+4}")
    a(f"v_lshl_add_u32 v{t+4}, v{t+1}, 3, v{t+4}")
    a(f"v_add_u32 v{t+4}, v{t+4}, v{t+2}")
    a(f"v_mul_u32_u24 v{t+4}, 144, v{t+4}")
    a(f"v_lshl_add_u32 v{AW}, v{t+3}, 3, v{t+4}")
    a(f"s_mul_i32 s{S_T0}, s{S_HEAD}, {9*5184}")
    a(f"v_add_u32 v{AW}, s{S_T0}, v{AW}")
    a(f"v_mul_u32_u24 v{t+4}, 72, v{t+1}")
    a(f"v_add3_u32 v{t+4}, v{t+4}, v{t+2}, 16")
    a(f"v_mul_u32_u24 v{t+4}, 144, v{t+4}")
    a(f"v_lshl_add_u32 v{AW2}, v{t+3}, 3, v{t+4}")
    a(f"v_lshlrev_b32 v{VO}, 4, v{L}")
    a(f"s_lshl_b32 s{S_T1}, s{S_T1}, 4")
    a(f"s_lshl_b32 s{S_T2}, s{S_S}, 8")
    a(f"s_add_u32 s{S_T1}, s{S_T1}, s{S_T2}")
    a(f"s_lshl_b32 s{S_T2}, s{S_HEAD}, 4")
    a(f"s_add_u32 s{S_T1}, s{S_T1}, s{S_T2}")
    a(f"s_mul_i32 s{S_T1}, s{S_T1}, 2304")
    a(f"s_mul_i32 s{S_T2}, s{S_B}, 1152")
    a(f"s_add_u32 s{S_T1}, s{S_T1}, s{S_T2}")
    a(f"s_and_b32 s{S_T2}, s{S_HP}, 7")
    a(f"s_mul_i32 s{S_T2}, s{S_T2}, 144")
    a(f"s_add_u32 s{S_T5}, s{S_T1}, s{S_T2}")
    a(f"v_and_b32 v{VOUT}, 15, v{L}")
    a(f"v_mul_u32_u24 v{VOUT}, 2304, v{VOUT}")
    a(f"v_lshrrev_b32 v{t+4}, 4, v{L}")
    a(f"v_lshl_add_u32 v{VOUT}, v{t+4}, 3, v{VOUT}")
    a(f"s_mul_i32 s{S_T0}, s{S_WID}, 5120")
    a(f"s_add_u32 s{S_T0}, s{S_T0}, {SCR}")
    a(f"v_add_u32 v18, s{S_T0}, v{VO}")
    a(f"s_xor_b32 s{S_T1}, s{S_WID}, 4")
    a(f"s_mul_i32 s{S_T1}, s{S_T1}, 5120")
    a(f"s_add_u32 s{S_T1}, s{S_T1}, {SCR}")
    a(f"v_add_u32 v19, s{S_T1}, v{VO}")
    OUT = f"s[{S_OUT}:{S_OUT+3}]"
    def wreads(kap, kh, WF):
        l = []
        for Tn in range(5):
            b = WF + 4*Tn
            if kap >= 16:
                o0 = (kap-16)*8*36*144 + Tn*32
                l.append(f"ds_read_b64_tr_b16 v[{b}:{b+1}], v{AW2} offset:{o0}")
                l.append(f"ds_read_b64_tr_b16 v[{b+2}:{b+3}], v{AW2} offset:{o0+36*144}")
            else:
                o0 = (kap - 9*kh)*5184 + Tn*32
                l.append(f"ds_read_b64_tr_b16 v[{b}:{b+1}], v{AW} offset:{o0}")
                l.append(f"ds_read_b64_tr_b16 v[{b+2}:{b+3}], v{AW} offset:{o0+576}")
        return l
    def loads(kh, slots):
        nl = []
        for jx in slots:
            kap = ORD[kh][jx]
            if kap >= 16:
                a(f"s_add_u32 s{S_T0}, s{S_PR}, {(kap-16)*16*1024}")
                for mt in range(2):
                    for i in range(4):
                        a(f"buffer_load_dword v{OF+36*mt+4*jx+i}, v{VR+mt}, {WS}, s{S_T0} offen offset:{i*1024} sc1")
                nl.append(8)
            else:
                a(f"s_add_u32 s{S_T0}, s{S_PM}, {kap*1024}")
                a(f"s_add_u32 s{S_T1}, s{S_PM}, {kap*1024+16384}")
                a(f"buffer_load_dwordx4 v[{OF+4*jx}:{OF+4*jx+3}], v{VO}, {WS}, s{S_T0} offen sc1")
                a(f"buffer_load_dwordx4 v[{OF+36+4*jx}:{OF+36+4*jx+3}], v{VO}, {WS}, s{S_T1} offen sc1")
                nl.append(2)
        return nl
    def mfm(kh, slots, nl, extra, last_next, novm=False):
        for c, jx in enumerate(slots):
            cur = WF0 if jx % 2 == 0 else WF1
            nxt = WF1 if jx % 2 == 0 else WF0
            a("s_waitcnt lgkmcnt(0)" if novm else f"s_waitcnt vmcnt({sum(nl[c+1:])+extra}) lgkmcnt(0)")
            rs = wreads(ORD[kh][jx+1], kh, nxt) if jx < 8 else []
            ri = 0
            for Tn in range(5):
                for mt in range(2):
                    d = AC + (mt*5+Tn)*4; o = OF + 36*mt + 4*jx
                    cc = "0" if jx == 0 else f"v[{d}:{d+3}]"
                    a(f"v_mfma_f32_16x16x32_bf16 v[{d}:{d+3}], v[{cur+4*Tn}:{cur+4*Tn+3}], v[{o}:{o+3}], {cc}")
                    if ri < len(rs): a(rs[ri]); ri += 1
    def add_out(q, base, Tn, pk):
        for r in range(4): a(f"v_add_f32 v{q+r}, v{q+r}, v{base+4*Tn+r}")
        a(f"v_cvt_pk_bf16_f32 v{pk}, v{q}, v{q+1}")
        a(f"v_cvt_pk_bf16_f32 v{pk+1}, v{q+2}, v{q+3}")
        if Tn == 4:
            a(f"s_mov_b64 s[{S_SAVE}:{S_SAVE+1}], exec")
            a(f"s_mov_b32 exec_hi, 0")
        omod = " nt" if 'ont' in exp else " sc1" if 'osc1' in exp else " sc0 sc1" if 'osc01' in exp else ""
        a(f"buffer_store_dwordx2 v[{pk}:{pk+1}], v{VOUT}, {OUT}, s{S_T5} offen offset:{Tn*32}{omod}")
        if Tn == 4: rest_exec()
    def nloads(kh, slots):
        return [8 if ORD[kh][jx] >= 16 else 2 for jx in slots]
    def validate(kh, slots, younger):
        nl = nloads(kh, slots); first = True
        for c, jx in enumerate(slots):
            a(f"s_waitcnt vmcnt({sum(nl[c+1:])+younger})")
            rr = [OF+4*jx+i for i in range(4)] + [OF+36+4*jx+i for i in range(4)]
            if first:
                a(f"v_max3_u32 v{t+3}, v{rr[0]}, v{rr[1]}, v{rr[2]}"); rr = rr[3:]; first = False
                a(f"v_max_u32 v{t+3}, v{t+3}, v{rr[0]}"); rr = rr[1:]
            for k in range(0, len(rr), 2):
                a(f"v_max3_u32 v{t+3}, v{t+3}, v{rr[k]}, v{rr[k+1]}")
        a(f"v_cmp_eq_u32 vcc, -1, v{t+3}")
        a("s_nop 1")
        a("s_cmp_eq_u64 vcc, 0")
    def probe_addr(kh, slots):
        mains = [jx for jx in slots if ORD[kh][jx] < 16]
        a(f"v_mov_b32 v{t+3}, {ORD[kh][mains[0]]*1024 + 16384 + 1020}")
        a(f"v_lshlrev_b32 v{PA}, 11, v{L}")
        a(f"v_add_u32 v{PA}, v{t+3}, v{PA}")
        return (1 << min(len(mains), 4)) - 1
    def probe_issue(mask):
        save_exec(f"{mask:#x}")
        a(f"buffer_load_dword v{PB}, v{PA}, {WS}, s{S_PM} offen sc1")
        rest_exec()
    def probe_loop(mask, name, first_issued):
        save_exec(f"{mask:#x}")
        a(f"s_mov_b32 s{S_CNT}, 0")
        if first_issued: a(f"s_branch {name}_PW")
        a.lab(name + "_P")
        a(f"buffer_load_dword v{PB}, v{PA}, {WS}, s{S_PM} offen sc1")
        a.lab(name + "_PW")
        a(f"s_add_u32 s{S_CNT}, s{S_CNT}, 1")
        a("s_waitcnt vmcnt(0)")
        a(f"v_cmp_eq_u32 vcc, -1, v{PB}")
        a("s_nop 1")
        a("s_cmp_eq_u64 vcc, 0")
        a(f"s_cbranch_scc1 {name}_PO")
        a(f"s_cmp_lt_u32 s{S_CNT}, 2000000")
        a(f"s_cbranch_scc1 {name}_P")
        a.lab(name + "_PO")
        rest_exec()
    def load_validate_loop(kh, slots, name):
        a(f"s_mov_b32 s{S_N}, 0")
        a.lab(name + "_L")
        loads(kh, slots)
        validate(kh, slots, 0)
        a(f"s_cbranch_scc1 {name}_OK")
        a(f"s_add_u32 s{S_N}, s{S_N}, 1")
        a(f"s_cmp_lt_u32 s{S_N}, 100000")
        a(f"s_cbranch_scc1 {name}_L")
        a.lab(name + "_OK")
    def path(kh):
        K = f"K{kh}"
        G, R = list(range(4)), list(range(4, 9))
        for rd in wreads(ORD[kh][0], kh, WF0): a(rd)
        ts(10)
        a(f"s_lshr_b32 s{S_T0}, 0x55AA, s{S_HP}")
        a(f"s_bitcmp1_b32 s{S_T0}, 0")
        a(f"s_cbranch_scc1 L_SG{K}_GO")
        mk = probe_addr(kh, G)
        probe_loop(mk, f"L_SG{K}", False)
        a.lab(f"L_SG{K}_GO")
        load_validate_loop(kh, G, f"L_SGV{K}")
        mk = probe_addr(kh, R)
        a(f"s_lshr_b32 s{S_T0}, 0x55AA, s{S_HP}")
        a(f"s_bitcmp1_b32 s{S_T0}, 0")
        a(f"s_cbranch_scc0 L_SR{K}_EARLY")
        loads(kh, R)
        mfm(kh, G, [0]*4, 0, None, novm=True)
        ts(9)
        lds_wait(a, f"L_WOB{K}", CNTOA, 8)
        validate(kh, R, 0)
        a(f"s_cbranch_scc1 L_SRV{K}_OK")
        probe_loop(mk, f"L_SS{K}", False)
        a(f"s_branch L_SR{K}_LV")
        a.lab(f"L_SR{K}_EARLY")
        probe_issue(mk)
        mfm(kh, G, [0]*4, 0, None, novm=True)
        ts(9)
        lds_wait(a, f"L_WOA{K}", CNTOA, 8)
        probe_loop(mk, f"L_SR{K}", True)
        a.lab(f"L_SR{K}_LV")
        load_validate_loop(kh, R, f"L_SRV{K}")
        mfm(kh, R, [0]*5, 0, None, novm=True)
        ts(11)
        send = AC + 20 if kh == 0 else AC
        keep = AC if kh == 0 else AC + 20
        a("s_nop 7")
        for Tn in range(5): a(f"ds_write_b128 v18, v[{send+4*Tn}:{send+4*Tn+3}] offset:{Tn*1024}")
        a("s_waitcnt lgkmcnt(0)")
        a("s_barrier")
        for Tn in range(5): a(f"ds_read_b128 v[{OF+4*Tn}:{OF+4*Tn+3}], v19 offset:{Tn*1024}")
        for Tn in range(5):
            a(f"s_waitcnt lgkmcnt({4-Tn})")
            add_out(OF+4*Tn, keep, Tn, OF+20+2*Tn)
    lds_inc(a, CNTOA, save_exec, rest_exec)
    a(f"s_cmp_eq_u32 s{S_HST}, 4")
    a("s_cbranch_scc0 L_P3C0")
    a("s_waitcnt vmcnt(2)")
    a(f"v_mov_b32 v{PF}, v{V_TG+1}")
    a("s_branch L_P3C1")
    a.lab("L_P3C0")
    poll_issue()
    a("s_waitcnt vmcnt(0)")
    a.lab("L_P3C1")
    poll_check("L_POLLC", 0xFFFF)
    if debug_stage == 2:
        a("s_waitcnt vmcnt(0)")
        a("s_branch L_FIN")
        return
    a(f"s_cmp_eq_u32 s{S_HEAD}, 0")
    a("s_cbranch_scc0 L_P3K1")
    path(0)
    a("s_branch L_FIN")
    a.lab("L_P3K1")
    path(1)
    a(f"s_cmp_lg_u32 s{S_HP}, 0")
    a("s_cbranch_scc1 L_FIN")
    a(f"s_cmp_lg_u32 s{S_WID}, 4")
    a("s_cbranch_scc1 L_FIN")
    a(f"v_mov_b32 v{t}, 0")
    a(f"v_mov_b32 v{t+1}, s{S_TAGO}")
    a(f"s_mov_b64 exec, 1")
    a(f"buffer_store_dword v{t+1}, v{t}, {WS}, s{S_OFS} offen sc1")

if __name__ == "__main__":
    import argparse
    p = argparse.ArgumentParser(); p.add_argument("--debug", type=int, default=0)
    p.add_argument("--timing", action="store_true"); p.add_argument("--exp", default=""); p.add_argument("-o", default="/dev/stdout")
    args = p.parse_args()
    open(args.o, "w").write(gen(args.debug, args.timing, args.exp))
```

```python
import sys, math, struct

NAME = "concat_heads__sliding_block__sliding_block__prompt"

STAGE   = 49152
WO_BASE = 0
KV_OWN  = 82944
KV_HALO = 119808
Q_BASE  = 119808
MISC    = 156672
TAGS_LDS = MISC + 2048
CNT2, CNT1, CNTQ, CNTOB, CNTOA = TAGS_LDS+12, TAGS_LDS+16, TAGS_LDS+20, TAGS_LDS+24, TAGS_LDS+28
LDS_TOTAL = 163840
TILE    = 4608
QTILE   = 2304
WS_KV   = 0
WS_O    = 256*36864
WS_OR   = WS_O + 16*262144
WS_FLAG = WS_OR + 16*32768
WS_OF   = WS_FLAG + 65536
TIMING_OFF = 24<<20
TAG_INC = 0x9E3779B1
NEG     = 0xFF61B1E6
QSCALE  = (18.0 ** -0.5) * math.log2(math.e)
def f32bits(x): return struct.unpack("<I", struct.pack("<f", x))[0]

class Asm:
    def __init__(self): self.l = []
    def __call__(self, s=""):
        for line in s.split("\n"):
            self.l.append("  " + line.strip())
    def lab(self, n): self.l.append(n + ":")
    def c(self, s): self.l.append("  ; " + s)
    def text(self): return "\n".join(self.l) + "\n"

S_X, S_W, S_WO, S_WS, S_OUT = 8, 12, 16, 20, 24
S_B, S_S, S_HP, S_WID = 28, 29, 30, 31
S_T0, S_T1, S_T2, S_T3, S_T4, S_T5 = 32, 33, 34, 35, 36, 37
S_I = 38
S_L = 39
S_TAGIN, S_TAGOUT, S_TAGO = 40, 41, 42
S_K, S_C, S_SB, S_XB, S_WB = 43, 44, 45, 46, 47
S_LX, S_LW = 48, 49
S_N = 50
S_U = 51
S_RET = 52
S_IDX, S_GRP, S_HEAD, S_M = 54, 55, 56, 57
S_SAVE = 58
S_CNT = 60
S_HOOK = 61
S_BAD = 62
S_RET2 = 64
S_MB = 66
S_HST = 67
S_H0, S_H1 = 68, 69
S_E = 98
S_SO, S_FI = 99, 100
S_OM, S_OR, S_OFS = 6, 7, 5

V_LANE = 1
T = 2
V_AX = 10
V_AW = 12
V_MASK = 20
V_SET0, V_SET1, V_ACC = 36, 80, 124
V_LDX, V_LDW = 36, 44
V_TG = 236
B_K, B_KR, B_V, MK_V = 240, 241, 242, 243
vEK, vEQ, vEV, vE6, vDr, vDt, vF, vC = 244, 245, 246, 247, 248, 249, 250, 252
V_TL = 254
QA_M, QA_R, QB_M, QB_R = 36, 40, 44, 48
OA, OB = 52, 68
VS, VE, VP = 84, 100, 116
VKF, VKR, VVA, VVB = 124, 128, 132, 136
A_K, A_KR, A_V, ST_V, ST_K = 10, 11, 12, 13, 14
VH = 140
V_WOV = 180
V_OA1, V_OA2 = 188, 189
V_PA = 184

def emit_masks_(a):
    t = T; L = V_LANE
    a(f"v_and_b32 v{t}, 31, v{L}")
    a(f"v_lshrrev_b32 v{t+1}, 5, v{L}")
    a(f"v_lshlrev_b32 v{t+1}, 2, v{t+1}")
    a(f"v_sub_u32 v{t}, v{t}, v{t+1}")
    a(f"v_mov_b32 v{t+1}, {NEG:#x}")
    for r in range(16):
        jj = (r & 3) + 8*(r >> 2)
        a(f"v_cmp_le_i32 vcc, {jj}, v{t}")
        a("s_nop 1")
        a(f"v_cndmask_b32_e64 v{V_MASK+r}, v{t+1}, 0, vcc")
def emit_p2_patterns_(a):
    t = T; L = V_LANE
    a(f"v_and_b32 v{t}, 31, v{L}")
    a(f"v_lshrrev_b32 v{t+1}, 5, v{L}")
    a(f"v_lshrrev_b32 v{t+2}, 2, v{t}")
    a(f"v_lshrrev_b32 v{t+3}, 3, v{t}")
    a(f"v_xor_b32 v{t+2}, v{t+2}, v{t+3}")
    a(f"v_xor_b32 v{t+2}, v{t+2}, v{t+1}")
    a(f"v_and_b32 v{t+2}, 1, v{t+2}")
    a(f"v_lshlrev_b32 v{t+2}, 4, v{t+2}")
    a(f"v_lshl_add_u32 v{t+2}, v{t}, 5, v{t+2}")
    a(f"s_lshl_b32 s{S_T0}, s{S_HEAD}, 10")
    a(f"v_add_u32 v{B_K}, s{S_T0}, v{t+2}")
    a(f"v_lshlrev_b32 v{B_KR}, 3, v{t}")
    a(f"v_add_u32 v{B_KR}, 2048, v{B_KR}")
    a(f"v_bfe_u32 v{t+2}, v{L}, 2, 2")
    a(f"v_lshl_add_u32 v{t+2}, v{t+1}, 2, v{t+2}")
    a(f"v_mul_u32_u24 v{t+2}, 72, v{t+2}")
    a(f"v_add_u32 v{t+2}, 2304, v{t+2}")
    a(f"v_and_b32 v{t+3}, 3, v{L}")
    a(f"v_lshlrev_b32 v{t+4}, 3, v{t+3}")
    a(f"s_mul_i32 s{S_T0}, s{S_HEAD}, 40")
    a(f"v_add3_u32 v{t+4}, v{t+4}, v{t+2}, s{S_T0}")
    a(f"v_add_u32 v{t+5}, 32, v{t+2}")
    a(f"v_bfe_u32 v{t+6}, v{L}, 4, 1")
    a(f"v_cmp_eq_u32 vcc, 1, v{t+6}")
    a(f"v_lshrrev_b32 v{t+7}, 1, v{t+3}")
    a(f"v_and_b32 v{t+7}, v{t+7}, v{t+6}")
    a(f"v_cndmask_b32 v{B_V}, v{t+4}, v{t+5}, vcc")
    a(f"v_cmp_eq_u32 vcc, 1, v{t+7}")
    a(f"v_mov_b32 v{t+5}, {MISC}")
    a(f"v_mov_b32 v{t+6}, -1")
    a(f"v_cndmask_b32 v{B_V}, v{B_V}, v{t+5}, vcc")
    a(f"v_cndmask_b32_e64 v{MK_V}, v{t+6}, 0, vcc")


def gen(debug_stage=0, timing=False, exp=''):
    a = Asm()
    t = T; L = V_LANE
    def ts(i, force=False):
        if timing and (('tsk' not in exp and 'tse' not in exp) or force or i in (0, 2, 3, 4) or ('tsk' in exp and i in (8, 9, 10, 11))): a(f"{'s_memrealtime' if ('abs' in exp or 'hdbg' in exp) else 's_memtime'} s[{70+2*i}:{71+2*i}]")
    WS = f"s[{S_WS}:{S_WS+3}]"
    def save_exec(val):
        a(f"s_mov_b64 s[{S_SAVE}:{S_SAVE+1}], exec")
        a(f"s_mov_b64 exec, {val}")
    def rest_exec():
        a(f"s_mov_b64 exec, s[{S_SAVE}:{S_SAVE+1}]")

    hdr = """; concat_heads(A,B): fused QKV projection + sliding-window attention (W=256, 32 heads x 18) + output projection, bf16, gfx950.
;   phase 3  output projection; the attention outputs of all heads are exchanged through d_ws (sentinel-validated hand-off)"""
    a.l += hdr.split("\n") + [f"; @launch grid=(256,1,1) block=(512,1,1) lds={LDS_TOTAL}"]
    a(f""".amdgcn_target "amdgcn-amd-amdhsa--gfx950"
.text
.globl {NAME}_kernel
.p2align 8
.type {NAME}_kernel,@function""")
    a.lab(f"{NAME}_kernel")
    a("s_cmp_ge_u32 s2, 256")
    a("s_cbranch_scc1 L_END")
    a(f"s_and_b32 s3, s2, 7")
    if 'xmap' in exp or 'xm2' in exp:
        a(f"s_bfe_u32 s{S_B}, s3, 0x10001")
    else:
        a(f"s_lshr_b32 s{S_B}, s3, 2")
    a(f"s_mul_i32 s{S_T0}, s{S_B}, 24")
    a(f"s_add_u32 s4, s0, s{S_T0}")
    a(f"s_addc_u32 s5, s1, 0")
    a(f"s_load_dwordx2 s[{S_X}:{S_X+1}], s[4:5], 0")
    a(f"s_load_dwordx2 s[{S_W}:{S_W+1}], s[4:5], 8")
    a(f"s_load_dwordx2 s[{S_WO}:{S_WO+1}], s[4:5], 16")
    a(f"s_load_dwordx2 s[{S_OUT}:{S_OUT+1}], s[0:1], 48")
    a(f"s_load_dwordx2 s[{S_WS}:{S_WS+1}], s[0:1], 64")
    if timing:
        for i in range(13): a(f"s_mov_b32 s{70+2*i}, 0")
    ts(0)
    a(f"s_lshr_b32 s{S_I}, s2, 3")
    if 'xm2' in exp:
        a(f"s_and_b32 s{S_T2}, s3, 1")
        a(f"s_lshl_b32 s{S_T2}, s{S_T2}, 2")
        a(f"s_and_b32 s{S_T3}, s{S_I}, 3")
        a(f"s_add_u32 s{S_S}, s{S_T2}, s{S_T3}")
        a(f"s_lshr_b32 s{S_T4}, s{S_I}, 2")
        a(f"s_cmp_lt_u32 s3, 4")
        a(f"s_cselect_b32 s{S_T2}, 1, 9")
        a(f"s_add_u32 s{S_T2}, s{S_T2}, s{S_T4}")
        a(f"s_and_b32 s{S_HP}, s{S_T2}, 15")
    elif 'xmap' in exp:
        a(f"s_and_b32 s{S_T2}, s3, 1")
        a(f"s_lshl_b32 s{S_T2}, s{S_T2}, 2")
        a(f"s_and_b32 s{S_T3}, s{S_I}, 3")
        a(f"s_add_u32 s{S_S}, s{S_T2}, s{S_T3}")
        a(f"s_lshr_b32 s{S_T4}, s{S_I}, 2")
        a(f"s_cmp_lt_u32 s3, 4")
        a(f"s_mov_b32 s{S_T2}, 0xFDB96420")
        a(f"s_cselect_b32 s{S_T2}, 0xECA87531, s{S_T2}")
        a(f"s_lshl_b32 s{S_T0}, s{S_T4}, 2")
        a(f"s_lshr_b32 s{S_T2}, s{S_T2}, s{S_T0}")
        a(f"s_and_b32 s{S_HP}, s{S_T2}, 15")
    else:
        a(f"s_lshr_b32 s{S_T2}, s3, 1")
        a(f"s_and_b32 s{S_T2}, s{S_T2}, 1")
        a(f"s_lshl_b32 s{S_T2}, s{S_T2}, 2")
        a(f"s_and_b32 s{S_T3}, s{S_I}, 3")
        a(f"s_add_u32 s{S_S}, s{S_T2}, s{S_T3}")
        a(f"s_and_b32 s{S_T2}, s3, 1")
        a(f"s_lshl_b32 s{S_T2}, s{S_T2}, 3")
        a(f"s_lshr_b32 s{S_T4}, s{S_I}, 2")
        a(f"s_add_u32 s{S_HP}, s{S_T2}, s{S_T4}")
    a(f"s_lshl_b32 s{S_T3}, s{S_T3}, 1")
    a(f"s_add_u32 s{S_C}, s{S_T4}, s{S_T3}")
    a(f"s_cmp_ge_u32 s{S_C}, 9")
    a(f"s_cselect_b32 s{S_T3}, 9, 0")
    a(f"s_sub_u32 s{S_C}, s{S_C}, s{S_T3}")
    if 'norot' in exp: a(f"s_mov_b32 s{S_C}, 0")
    for key, mul in (('rot2', 2), ('rot3', 3)):
        if key in exp or (key == 'rot2' and 'rot' not in exp):
            a(f"s_lshr_b32 s{S_C}, s{S_T4}, 1")
            a(f"s_and_b32 s{S_T3}, s{S_I}, 3")
            a(f"s_add_u32 s{S_C}, s{S_C}, s{S_T3}")
            a(f"s_mul_i32 s{S_C}, s{S_C}, {mul}")
            for _ in range(2):
                a(f"s_cmp_ge_u32 s{S_C}, 9")
                a(f"s_cselect_b32 s{S_T3}, 9, 0")
                a(f"s_sub_u32 s{S_C}, s{S_C}, s{S_T3}")
    if 'rot4' in exp:
        a(f"s_lshr_b32 s{S_C}, s{S_T4}, 2")
        a(f"s_and_b32 s{S_T3}, s{S_I}, 3")
        a(f"s_lshr_b32 s{S_T3}, s{S_T3}, 1")
        a(f"s_add_u32 s{S_C}, s{S_C}, s{S_T3}")
        a(f"s_mul_i32 s{S_C}, s{S_C}, 3")
    a(f"s_lshl_b32 s{S_T0}, s{S_B}, 4")
    a(f"s_add_u32 s{S_T0}, s{S_T0}, s{S_HP}")
    a(f"s_lshl_b32 s{S_T0}, s{S_T0}, 3")
    a(f"s_add_u32 s{S_IDX}, s{S_T0}, s{S_S}")
    a(f"s_lshl_b32 s{S_T0}, s{S_B}, 3")
    a(f"s_add_u32 s{S_GRP}, s{S_T0}, s{S_S}")
    a(f"v_lshrrev_b32 v{t}, 6, v0")
    a(f"v_and_b32 v{L}, 63, v0")
    a(f"v_readfirstlane_b32 s{S_WID}, v{t}")
    for (r, n) in ((S_X, 2359296), (S_W, 1990656), (S_WO, 663552), (S_WS, 268435456), (S_OUT, 4718592)):
        a(f"s_mov_b32 s{r+2}, {n}")
        a(f"s_mov_b32 s{r+3}, 0x00020000")
    a(f"s_and_b32 s{S_M}, s{S_WID}, 3")
    a(f"s_lshr_b32 s{S_HEAD}, s{S_WID}, 2")
    a(f"s_sub_u32 s{S_MB}, 7, s{S_M}")
    a(f"s_lshl_b32 s{S_T0}, s{S_GRP}, 18")
    a(f"s_add_u32 s{S_T0}, s{S_T0}, {WS_O}")
    a(f"s_lshl_b32 s{S_T1}, s{S_HP}, 10")
    a(f"s_lshl_b32 s{S_T2}, s{S_HEAD}, 9")
    a(f"s_add_u32 s{S_T1}, s{S_T1}, s{S_T2}")
    a(f"s_add_u32 s{S_OM}, s{S_T1}, s{S_T0}")
    a(f"s_lshl_b32 s{S_T0}, s{S_GRP}, 15")
    a(f"s_add_u32 s{S_T0}, s{S_T0}, {WS_OR}")
    a(f"s_lshl_b32 s{S_T1}, s{S_HP}, 1")
    a(f"s_add_u32 s{S_T1}, s{S_T1}, s{S_HEAD}")
    a(f"s_lshl_b32 s{S_T1}, s{S_T1}, 10")
    a(f"s_add_u32 s{S_OR}, s{S_T1}, s{S_T0}")
    a(f"s_lshl_b32 s{S_OFS}, s{S_GRP}, 12")
    a(f"s_add_u32 s{S_OFS}, s{S_OFS}, {WS_OF}")
    a(f"s_cmp_lt_u32 s{S_WID}, 4")
    a("s_cbranch_scc1 L_COMPUTE")

    emit_masks = lambda: emit_masks_(a)
    emit_p2_patterns = lambda: emit_p2_patterns_(a)

    a(f"s_sub_u32 s{S_L}, s{S_WID}, 4")
    a(f"v_lshrrev_b32 v{t}, 3, v{L}")
    a(f"v_mul_u32_u24 v{t}, 1152, v{t}")
    a(f"v_lshrrev_b32 v{t+1}, 4, v{L}")
    a(f"v_and_b32 v{t+2}, 7, v{L}")
    a(f"v_xor_b32 v{t+3}, v{t+2}, v{t+1}")
    a(f"v_lshl_add_u32 v{V_AX}, v{t+3}, 4, v{t}")
    a(f"v_xor_b32 v{t+3}, 4, v{t+3}")
    a(f"v_lshl_add_u32 v{V_AX+1}, v{t+3}, 4, v{t}")
    a(f"s_mul_i32 s{S_T0}, s{S_HP}, 72")
    a(f"s_and_b32 s{S_T0}, s{S_T0}, 0xfffffff0")
    a(f"v_and_b32 v{t+2}, 15, v{L}")
    a(f"v_mul_u32_u24 v{t+4}, 3456, v{t+1}")
    a(f"v_add_u32 v{t+4}, s{S_T0}, v{t+4}")
    for var in range(2):
        a(f"v_lshlrev_b32 v{t+3}, 1, v{t+1}")
        a(f"v_sub_u32 v{t+3}, v{t+2}, v{t+3}")
        if var: a(f"v_subrev_u32 v{t+3}, 8, v{t+3}")
        a(f"v_and_b32 v{t+3}, 15, v{t+3}")
        a(f"v_min_u32 v{t+3}, 14, v{t+3}")
        a(f"v_mul_u32_u24 v{t+5}, 13, v{t+3}")
        a(f"v_lshrrev_b32 v{t+5}, 6, v{t+5}")
        a(f"v_mul_u32_u24 v{t+6}, 5, v{t+5}")
        a(f"v_sub_u32 v{t+6}, v{t+3}, v{t+6}")
        a(f"v_mul_u32_u24 v{t+5}, 1152, v{t+5}")
        a(f"v_lshl_add_u32 v{t+6}, v{t+6}, 4, v{t+5}")
        a(f"v_add_u32 v{V_AX+2+var}, v{t+4}, v{t+6}")
    for i in range(8):
        a(f"v_add_u32 v{V_LDX+i}, {i*9216-(i&3)*1024}, v{V_AX+(i&1)}")
    for i in range(4):
        a(f"v_add_u32 v{V_LDW+i}, {i*4*3456-i*1024}, v{V_AX+2+(i>>1)}")
    a(f"s_lshl_b32 s{S_T0}, s{S_S}, 8")
    a(f"s_lshl_b32 s{S_T1}, s{S_L}, 6")
    a(f"s_add_u32 s{S_T0}, s{S_T0}, s{S_T1}")
    a(f"s_mul_i32 s{S_XB}, s{S_T0}, 1152")
    a(f"s_mul_i32 s{S_WB}, s{S_L}, {16*3456}")
    a(f"s_lshl_b32 s{S_LX}, s{S_L}, 13")
    a(f"s_lshl_b32 s{S_LW}, s{S_L}, 12")
    a(f"s_add_u32 s{S_LW}, s{S_LW}, 32768")
    a(f"s_mov_b32 s{S_SB}, 0")
    def chunk_pre():
        a(f"s_lshl_b32 s{S_T0}, s{S_C}, 7")
        a(f"s_add_u32 s{S_T0}, s{S_T0}, s{S_XB}")
        a(f"s_mul_i32 s{S_T1}, s{S_C}, {64*3456}")
        a(f"s_add_u32 s{S_T1}, s{S_T1}, s{S_WB}")
        a(f"s_add_u32 s{S_T2}, s{S_SB}, s{S_LW}")
        a(f"s_add_u32 s{S_T3}, s{S_SB}, s{S_LX}")
        a(f"s_add_u32 s{S_C}, s{S_C}, 1")
        a(f"s_cmp_eq_u32 s{S_C}, 9")
        a(f"s_cselect_b32 s{S_C}, 0, s{S_C}")
        a(f"s_add_u32 s{S_SB}, s{S_SB}, {STAGE}")
        a(f"s_cmp_eq_u32 s{S_SB}, {3*STAGE}")
        a(f"s_cselect_b32 s{S_SB}, 0, s{S_SB}")
    def chunk_w():
        a(f"s_mov_b32 m0, s{S_T2}")
        a("s_nop 0")
        for i in range(4):
            a(f"buffer_load_dwordx4 v{V_LDW+i}, s[{S_W}:{S_W+3}], s{S_T1} offen offset:{i*1024} lds")
    def chunk_x(lo, hi):
        for i in range(lo, hi):
            if i == lo or i == 4:
                a(f"s_add_u32 m0, s{S_T3}, {(i&~3)*1024}")
                a("s_nop 0")
            a(f"buffer_load_dwordx4 v{V_LDX+i}, s[{S_X}:{S_X+3}], s{S_T0} offen offset:{(i&3)*1024} lds")
    chunk_pre()
    a("s_waitcnt lgkmcnt(0)")
    if 'xfirst' in exp:
        chunk_x(0, 8); chunk_w()
    else:
        chunk_w(); chunk_x(0, 8)
    chunk_pre()
    if 'c1p0' in exp:
        a("s_waitcnt vmcnt(0)")
        a("s_barrier")
        chunk_w(); chunk_x(0, 8)
    elif 'c1p4' in exp:
        chunk_w()
        a("s_waitcnt vmcnt(4)")
        a("s_barrier")
        chunk_x(0, 8)
    elif 'c1p8' in exp:
        chunk_w(); chunk_x(0, 4)
        a("s_waitcnt vmcnt(8)")
        a("s_barrier")
        chunk_x(4, 8)
    else:
        chunk_w(); chunk_x(0, 2)
        a("s_waitcnt vmcnt(6)")
        a("s_barrier")
        chunk_x(2, 8)
    chunk_pre()
    a(f"s_mov_b32 s{S_K}, 2")
    if 'g2' in exp:
        a(f"s_lshr_b32 s{S_T4}, 0x55AA, s{S_HP}")
        a(f"s_bitcmp1_b32 s{S_T4}, 0")
        a("s_cbranch_scc1 L_LD")
        a.lab("L_LDG")
        a("s_waitcnt vmcnt(0)")
        a("s_barrier")
        chunk_w(); chunk_x(0, 8)
        chunk_pre()
        a(f"s_add_u32 s{S_K}, s{S_K}, 1")
        a(f"s_cmp_lt_u32 s{S_K}, 9")
        a("s_cbranch_scc1 L_LDG")
        a("s_branch L_LDE")
    a.lab("L_LD")
    chunk_w(); chunk_x(0, 8)
    chunk_pre()
    a(f"s_add_u32 s{S_K}, s{S_K}, 1")
    a(f"s_cmp_lt_u32 s{S_K}, 9")
    a("s_waitcnt vmcnt(12)")
    a("s_barrier")
    a("s_cbranch_scc1 L_LD")
    a.lab("L_LDE")
    a(f"s_lshl_b32 s{S_T0}, s{S_L}, 6")
    a(f"v_add_u32 v{t}, s{S_T0}, v{L}")
    a(f"v_mul_u32_u24 v{t+1}, 7282, v{t}")
    a(f"v_lshrrev_b32 v{t+1}, 16, v{t+1}")
    a(f"v_mul_u32_u24 v{t+2}, 9, v{t+1}")
    a(f"v_sub_u32 v{t+2}, v{t}, v{t+2}")
    a(f"v_mul_u32_u24 v{t+1}, 1152, v{t+1}")
    a(f"v_lshl_add_u32 v{t+1}, v{t+2}, 7, v{t+1}")
    a(f"s_mul_i32 s{S_T0}, s{S_I}, {18*1152}")
    a(f"v_cmp_gt_u32 vcc, 162, v{t}")
    a(f"v_cndmask_b32_e64 v{t+1}, 0, v{t+1}, vcc")
    a(f"buffer_load_dword v255, v{t+1}, s[{S_WO}:{S_WO+3}], s{S_T0} offen")
    emit_masks()
    emit_p2_patterns()
    a(f"v_mul_u32_u24 v{t+1}, 7282, v{L}")
    a(f"v_lshrrev_b32 v{t+1}, 16, v{t+1}")
    a(f"v_mul_u32_u24 v{t+2}, 9, v{t+1}")
    a(f"v_sub_u32 v{t+2}, v{L}, v{t+2}")
    a(f"v_mul_u32_u24 v{t+1}, 1152, v{t+1}")
    a(f"v_lshl_add_u32 v{t+1}, v{t+2}, 4, v{t+1}")
    a(f"s_and_b32 s{S_T0}, s{S_HP}, 7")
    a(f"s_mul_i32 s{S_T0}, s{S_T0}, 144")
    a(f"v_add_u32 v{V_WOV}, s{S_T0}, v{t+1}")
    for j in range(1, 4): a(f"v_add_u32 v{V_WOV+j}, {j*(8064-1008)}, v{V_WOV}")
    a(f"s_mul_i32 s{S_T0}, s{S_L}, {21*1008}")
    a(f"s_mul_i32 s{S_T1}, s{S_L}, {21*8064}")
    a("s_waitcnt vmcnt(1)")
    a("s_barrier")
    WO = f"s[{S_WO}:{S_WO+3}]"
    NW1 = 8 if 'wo8' not in exp else 4
    a(f"s_bitset0_b64 exec, 63")
    for j in range(21):
        if j == NW1:
            a(f"s_mov_b64 exec, -1")
            a("s_barrier")
            a(f"s_bitset0_b64 exec, 63")
        if j == 19:
            a(f"s_cmp_eq_u32 s{S_L}, 3")
            a("s_cbranch_scc0 L_WO_N")
            a(f"s_mov_b64 exec, 0x3ffff")
            a(f"buffer_load_dwordx4 v{V_WOV+(j&3)}, {WO}, s{S_T2} offen offset:{(j&3)*1008} lds")
            a("s_branch L_WO_DONE")
            a.lab("L_WO_N")
        if j % 4 == 0:
            a(f"s_add_u32 m0, s{S_T0}, {j*1008}")
            a(f"s_add_u32 s{S_T2}, s{S_T1}, {j*8064}")
        a(f"buffer_load_dwordx4 v{V_WOV+(j&3)}, {WO}, s{S_T2} offen offset:{(j&3)*1008} lds")
    a.lab("L_WO_DONE")
    a(f"s_mov_b64 exec, -1")
    for r in range(16):
        a(f"v_mov_b32 v{OA+r}, 0")
        a(f"v_mov_b32 v{OB+r}, 0")
    a(f"v_lshlrev_b32 v{V_PA}, 4, v{L}")
    a(f"s_lshl_b32 s{S_T0}, s{S_L}, 10")
    a(f"v_add_u32 v{V_PA}, s{S_T0}, v{V_PA}")
    a(f"v_add_u32 v{V_PA+1}, {KV_OWN}, v{V_PA}")
    a(f"s_mul_i32 s{S_T1}, s{S_IDX}, 36864")
    a("s_barrier")
    if 'tse' in exp: ts(7, True)
    a(f"s_cmp_eq_u32 s{S_S}, 7")
    a("s_cbranch_scc1 L_NOPUB")
    order = [8, 7, 6, 5, 4, 3, 2, 1, 0]
    for c, i in enumerate(order):
        a(f"ds_read_b128 v[{VH+4*c}:{VH+4*c+3}], v{V_PA+1} offset:{i*4096}")
    for c, i in enumerate(order[:5]):
        a(f"s_waitcnt lgkmcnt({8-c})")
        a(f"s_add_u32 s{S_T2}, s{S_T1}, {i*4096}")
        a(f"buffer_store_dwordx4 v[{VH+4*c}:{VH+4*c+3}], v{V_PA}, {WS}, s{S_T2} offen sc1")
    a.lab("L_NOPUB")
    a("s_branch L_P2")

    a.lab("L_COMPUTE")
    if 'dry' in exp and 'nodry' not in exp:
        emit_p2_patterns()
        a(f"s_mov_b32 s{S_U}, 0")
        a(f"s_mov_b32 s{S_HOOK}, 100000")
        set_run(a, KV_OWN, None, [f"s_mov_b32 s{S_N}, 3"], TILE)
        a(f"s_bitcmp1_b32 s{S_WID}, 0")
        a("s_cbranch_scc1 L_DRYB")
        a(f"s_call_b64 s[{S_RET}:{S_RET+1}], L_RUNA")
        a("s_branch L_DRYE")
        a.lab("L_DRYB")
        a(f"s_call_b64 s[{S_RET}:{S_RET+1}], L_RUNB")
        a.lab("L_DRYE")
        a("s_waitcnt lgkmcnt(0)")
    a(f"v_and_b32 v{t}, 15, v{L}")
    a(f"v_lshrrev_b32 v{t+1}, 4, v{L}")
    a(f"v_lshrrev_b32 v{t+2}, 1, v{t}")
    a(f"s_lshl_b32 s{S_T0}, s{S_WID}, 6")
    a(f"v_add_u32 v{t+3}, s{S_T0}, v{t}")
    a(f"v_lshlrev_b32 v{t+3}, 7, v{t+3}")
    a(f"v_xor_b32 v{t+4}, v{t+1}, v{t+2}")
    a(f"v_lshlrev_b32 v{t+5}, 4, v{t+4}")
    a(f"v_add_u32 v{V_AX}, v{t+3}, v{t+5}")
    a(f"v_xor_b32 v{t+4}, 4, v{t+4}")
    a(f"v_lshlrev_b32 v{t+5}, 4, v{t+4}")
    a(f"v_add_u32 v{V_AX+1}, v{t+3}, v{t+5}")
    a(f"v_bfe_u32 v{t}, v{L}, 2, 2")
    a(f"v_and_b32 v{t+2}, 3, v{L}")
    a(f"v_and_b32 v{t+3}, 1, v{t+1}")
    a(f"v_lshl_add_u32 v{t+3}, v{t+3}, 2, v{t}")
    a(f"v_lshlrev_b32 v{t+3}, 5, v{t+3}")
    a(f"v_lshl_add_u32 v{t+4}, v{t+1}, 3, v{t}")
    a(f"v_lshlrev_b32 v{t+4}, 8, v{t+4}")
    a(f"v_add_u32 v{t+4}, 32768, v{t+4}")
    a(f"v_lshlrev_b32 v{t+5}, 3, v{t+2}")
    a(f"s_and_b32 s{S_T1}, s{S_HP}, 1")
    a(f"s_lshl_b32 s{S_T1}, s{S_T1}, 3")
    a(f"v_add3_u32 v{t+5}, v{t+5}, v{t+3}, s{S_T1}")
    for Tn in range(6):
        off = 80*(Tn >> 1) + (40 if Tn & 1 else 0)
        a(f"v_add_u32 v{t+6}, {off}, v{t+5}")
        a(f"v_and_b32 v{t+6}, 255, v{t+6}")
        a(f"v_add_u32 v{V_AW+Tn}, v{t+4}, v{t+6}")
    a(f"v_min_u32 v{t+6}, 2, v{t+2}")
    a(f"v_mul_u32_u24 v{t+6}, 80, v{t+6}")
    a(f"v_add3_u32 v{t+6}, v{t+6}, v{t+3}, s{S_T1}")
    a(f"v_add_u32 v{t+6}, 32, v{t+6}")
    a(f"v_and_b32 v{t+6}, 255, v{t+6}")
    a(f"v_add_u32 v{V_AW+6}, v{t+4}, v{t+6}")
    a(f"v_and_b32 v{t}, 15, v{L}")
    a(f"v_lshrrev_b32 v{t+1}, 4, v{L}")
    a(f"v_and_b32 v{t+2}, 1, v{t+1}")
    a(f"v_lshl_add_u32 v{t+2}, v{t+2}, 4, v{t}")
    a(f"v_lshrrev_b32 v{t+3}, 2, v{t}")
    a(f"v_lshrrev_b32 v{t+4}, 3, v{t}")
    a(f"v_xor_b32 v{t+3}, v{t+3}, v{t+4}")
    a(f"v_lshrrev_b32 v{t+4}, 1, v{t+1}")
    a(f"v_xor_b32 v{t+3}, v{t+3}, v{t+4}")
    a(f"v_and_b32 v{t+3}, 1, v{t+3}")
    a(f"v_lshlrev_b32 v{t+3}, 4, v{t+3}")
    a(f"v_lshl_add_u32 v{t+3}, v{t+2}, 5, v{t+3}")
    a(f"s_mul_i32 s{S_T0}, s{S_WID}, {2*TILE}")
    a(f"s_add_u32 s{S_T0}, s{S_T0}, {KV_OWN}")
    a(f"s_mul_i32 s{S_T1}, s{S_WID}, {2*QTILE}")
    a(f"s_add_u32 s{S_T1}, s{S_T1}, {Q_BASE}")
    a(f"v_add_u32 v{vEK}, s{S_T0}, v{t+3}")
    a(f"v_add_u32 v{vEQ}, s{S_T1}, v{t+3}")
    a(f"v_mul_u32_u24 v{t+4}, 72, v{t}")
    a(f"v_lshl_add_u32 v{t+5}, v{t+1}, 3, v{t+4}")
    a(f"v_add_u32 v{t+5}, 2304, v{t+5}")
    a(f"v_add_u32 v{vEV}, s{S_T0}, v{t+5}")
    a(f"v_lshlrev_b32 v{t+5}, 3, v{t}")
    a(f"v_add_u32 v{t+5}, 2048, v{t+5}")
    a(f"v_add_u32 v{t+6}, s{S_T1}, v{t+5}")
    a(f"v_add_u32 v{t+7}, s{S_T0}, v{t+5}")
    a(f"v_add_u32 v{t+4}, {2304+32}, v{t+4}")
    a(f"v_add_u32 v{t+4}, s{S_T0}, v{t+4}")
    a(f"v_mov_b32 v{vDr}, 128")
    a(f"v_mov_b32 v{vDt}, {TILE}")
    a(f"v_mov_b32 v{vF}, 1.0")
    a(f"v_mov_b32 v{vE6}, v{t+7}")
    a(f"v_cmp_eq_u32 vcc, 0, v{t+1}")
    a(f"v_mov_b32 v{t+5}, {QTILE}")
    a(f"v_mov_b32 v{vC}, {f32bits(QSCALE):#x}")
    a(f"v_cndmask_b32 v{vE6}, v{vE6}, v{t+6}, vcc")
    a(f"v_cndmask_b32 v{vDt}, v{vDt}, v{t+5}, vcc")
    a(f"v_cndmask_b32 v{vF}, v{vF}, v{vC}, vcc")
    a(f"v_cmp_eq_u32 vcc, 2, v{t+1}")
    a(f"v_mov_b32 v{t+5}, 1152")
    a(f"v_mov_b32 v{vC+1}, v{vC}")
    a(f"v_cndmask_b32 v{vE6}, v{vE6}, v{t+4}, vcc")
    a(f"v_cndmask_b32 v{vDr}, v{vDr}, v{t+5}, vcc")
    a(f"v_mov_b32 v{vF+1}, v{vF}")
    a("s_waitcnt lgkmcnt(0)")
    if 'nocp' not in exp:
        a(f"s_cmp_lg_u32 s{S_WID}, 3")
        a("s_cbranch_scc1 L_NOCP")
        a(f"s_getpc_b64 s[{S_RET}:{S_RET+1}]")
        a.lab("L_PCREF")
        a(f"s_sub_u32 s{S_RET}, s{S_RET}, L_PCREF-{NAME}_kernel")
        a(f"s_subb_u32 s{S_RET+1}, s{S_RET+1}, 0")
        a(f"s_mul_i32 s{S_T0}, s{S_I}, {5*128}")
        a(f"v_lshlrev_b32 v{t}, 7, v{L}")
        a(f"v_add_u32 v{t}, s{S_T0}, v{t}")
        a(f"s_mov_b32 s{S_T1}, L_END-{NAME}_kernel")
        a(f"v_cmp_gt_u32 vcc, s{S_T1}, v{t}")
        a(f"s_and_b64 vcc, vcc, 31")
        a(f"s_and_saveexec_b64 s[{S_SAVE}:{S_SAVE+1}], vcc")
        a("s_cbranch_execz L_NOCP2")
        a(f"global_load_dword v{V_TL}, v{t}, s[{S_RET}:{S_RET+1}]")
        a.lab("L_NOCP2")
        rest_exec()
        a.lab("L_NOCP")
    a(f"s_cmp_lg_u32 s{S_WID}, 0")
    a("s_cbranch_scc1 L_NOG0")
    a(f"s_lshl_b32 s{S_T0}, s{S_IDX}, 8")
    a(f"s_add_u32 s{S_T0}, s{S_T0}, {WS_FLAG}")
    a(f"s_lshl_b32 s{S_T1}, s{S_GRP}, 12")
    a(f"s_add_u32 s{S_T1}, s{S_T1}, {WS_OF}")
    a(f"v_mov_b32 v{t}, 0")
    a(f"buffer_load_dword v{V_TG}, v{t}, {WS}, s{S_T0} offen sc1")
    a(f"s_sub_u32 s{S_T0}, s{S_T0}, 256")
    a(f"s_max_u32 s{S_T0}, s{S_T0}, {WS_FLAG}")
    a(f"buffer_load_dword v{V_TG+1}, v{t}, {WS}, s{S_T0} offen sc1")
    a(f"buffer_load_dword v{V_TG+2}, v{t}, {WS}, s{S_T1} offen sc1")
    a.lab("L_NOG0")
    for i in range(112):
        a(f"v_mov_b32 v{V_ACC+i}, 0")
    emit_masks()
    emit_p2_patterns()
    a(f"v_mov_b32 v{t+2}, 0x3f803f80")
    a(f"v_mov_b32 v{t+3}, 0x3f803f80")
    a(f"v_mul_u32_u24 v{t+4}, 576, v{L}")
    a(f"v_add_u32 v{t+4}, {MISC}, v{t+4}")
    save_exec(15)
    a(f"ds_write_b64 v{t+4}, v[{t+2}:{t+3}]")
    rest_exec()
    a(f"s_cmp_lg_u32 s{S_WID}, 0")
    a("s_cbranch_scc1 L_NOG1")
    a("s_waitcnt vmcnt(0)")
    for i in range(3): a(f"v_add_u32 v{V_TG+i}, {TAG_INC:#x}, v{V_TG+i}")
    a(f"v_mov_b32 v{V_TG+3}, 0")
    a(f"v_mov_b32 v{t+4}, {TAGS_LDS}")
    save_exec(1)
    a(f"ds_write_b128 v{t+4}, v[{V_TG}:{V_TG+3}]")
    for i in range(4): a(f"v_mov_b32 v{V_TG+i}, 0")
    a(f"ds_write_b128 v{t+4}, v[{V_TG}:{V_TG+3}] offset:16")
    rest_exec()
    a.lab("L_NOG1")
    a("s_waitcnt lgkmcnt(0)")
    a("s_barrier")
    if "tsh" not in exp and "tsj" not in exp: ts(1)
    def reads(setb, ks):
        xs = [f"ds_read_b128 v[{setb+4*mt}:{setb+4*mt+3}], v{V_AX+ks} offset:{mt*2048}" for mt in range(4)]
        ws = []
        for Tn in range(7):
            b = setb + 16 + 4*Tn
            ws.append(f"ds_read_b64_tr_b16 v[{b}:{b+1}], v{V_AW+Tn} offset:{ks*8192}")
            ws.append(f"ds_read_b64_tr_b16 v[{b+2}:{b+3}], v{V_AW+Tn} offset:{ks*8192+1024}")
        return [xs[0], ws[0], ws[1], xs[1], ws[2], ws[3], xs[2], ws[4], ws[5], xs[3]] + ws[6:]
    def mfmas(setb):
        m = []
        for Tn in range(7):
            for mt in range(4):
                d = V_ACC + (mt*7+Tn)*4
                m.append(f"v_mfma_f32_16x16x32_bf16 v[{d}:{d+3}], v[{setb+16+4*Tn}:{setb+16+4*Tn+3}], v[{setb+4*mt}:{setb+4*mt+3}], v[{d}:{d+3}]")
        return m
    def interleave(ms, extra, per=1):
        ri = 0
        for i, m in enumerate(ms):
            a(m)
            for _ in range(per):
                if ri < len(extra): a(extra[ri]); ri += 1
        while ri < len(extra):
            a(extra[ri]); ri += 1
    for i in range(4): a(f"v_mov_b32 v{V_TG+i}, -1")
    a(f"v_lshlrev_b32 v{V_TL+1}, 4, v{L}")
    a(f"s_lshl_b32 s{S_XB}, s{S_GRP}, 18")
    a(f"s_add_u32 s{S_XB}, s{S_XB}, {WS_O}")
    a(f"s_lshl_b32 s{S_T0}, s{S_WID}, 16")
    a(f"s_add_u32 s{S_XB}, s{S_XB}, s{S_T0}")
    a(f"s_lshl_b32 s{S_T0}, s{S_HP}, 10")
    a(f"s_add_u32 s{S_XB}, s{S_XB}, s{S_T0}")
    a(f"s_lshl_b32 s{S_WB}, s{S_GRP}, 15")
    a(f"s_add_u32 s{S_WB}, s{S_WB}, {WS_OR}")
    a(f"s_lshl_b32 s{S_T0}, s{S_HP}, 1")
    a(f"s_and_b32 s{S_T1}, s{S_WID}, 1")
    a(f"s_add_u32 s{S_T0}, s{S_T0}, s{S_T1}")
    a(f"s_lshl_b32 s{S_T0}, s{S_T0}, 10")
    a(f"s_add_u32 s{S_WB}, s{S_WB}, s{S_T0}")
    for rd in reads(V_SET0, 0): a(rd)
    a(f"s_mov_b32 s{S_K}, 0")
    a(f"s_mov_b32 s{S_SB}, 0")
    if 'tb' in exp: a(f"v_mov_b32 v{V_TL}, 0")
    a.lab("L_GEMM")
    a(f"s_cmp_lt_u32 s{S_K}, 7")
    a("s_cbranch_scc1 L_GEMM_NC")
    a(f"buffer_store_dwordx4 v[{V_TG}:{V_TG+3}], v{V_TL+1}, {WS}, s{S_XB} offen sc1")
    a(f"s_add_u32 s{S_XB}, s{S_XB}, 16384")
    a(f"buffer_store_dwordx4 v[{V_TG}:{V_TG+3}], v{V_TL+1}, {WS}, s{S_XB} offen sc1")
    a(f"s_add_u32 s{S_XB}, s{S_XB}, 16384")
    a(f"s_cmp_eq_u32 s{S_K}, 8")
    a("s_cbranch_scc1 L_GEMM_NC")
    a(f"buffer_store_dwordx4 v[{V_TG}:{V_TG+3}], v{V_TL+1}, {WS}, s{S_WB} offen sc1")
    a.lab("L_GEMM_NC")
    a("s_waitcnt lgkmcnt(0)")
    if 'tb' in exp:
        a(f"s_sub_u32 s92, s92, s70")
        a(f"s_mov_b32 m0, s{S_K}")
        a("s_nop 4")
        a(f"v_writelane_b32 v{V_TL}, s92, m0")
    sal = [f"s_add_u32 s{S_SB}, s{S_SB}, 1", f"s_cmp_eq_u32 s{S_SB}, 3", f"s_mov_b32 s{S_T0}, {STAGE}",
           f"s_cselect_b32 s{S_T0}, {(-2*STAGE) & 0xffffffff}, s{S_T0}", f"s_cselect_b32 s{S_SB}, 0, s{S_SB}"]
    interleave(mfmas(V_SET0), reads(V_SET1, 1) + sal)
    a("s_waitcnt lgkmcnt(0)")
    a("s_barrier")
    if 'tb' in exp: a("s_memtime s[92:93]")
    rd = reads(V_SET0, 0)
    adds = [f"v_add_u32 v{V_AX+i}, s{S_T0}, v{V_AX+i}" for i in range(9)]
    ex = [adds[0], adds[2], rd[0], rd[1], rd[2], adds[3], rd[3], rd[4], rd[5], adds[4], rd[6], rd[7], rd[8], rd[9],
          adds[5], rd[10], rd[11], adds[6], rd[12], rd[13], adds[7], rd[14], rd[15], adds[8], rd[16], rd[17], adds[1],
          f"s_add_u32 s{S_K}, s{S_K}, 1", f"s_cmp_lt_u32 s{S_K}, 9"]
    ms = mfmas(V_SET1)
    ri = 0
    for i, m in enumerate(ms):
        a(m)
        n = 2 if i < 6 else 1
        for _ in range(n):
            if ri < len(ex): a(ex[ri]); ri += 1
    assert ri == len(ex)
    a("s_cbranch_scc1 L_GEMM")
    if "tsh" not in exp and "tsj" not in exp: ts(2)
    a.c("phase-1 epilogue")
    acc = lambda mt, Tn: V_ACC + (mt*7+Tn)*4
    SC = 84
    def qk_cvt(Tn, R0):
        for p in range(2):
            R = R0 + 4*p
            da, db = acc(2*p, Tn), acc(2*p+1, Tn)
            a(f"v_cvt_pk_bf16_f32 v{R}, v{da}, v{da+1}")
            a(f"v_cvt_pk_bf16_f32 v{R+2}, v{db}, v{db+1}")
            a(f"v_cvt_pk_bf16_f32 v{R+1}, v{da+2}, v{da+3}")
            a(f"v_cvt_pk_bf16_f32 v{R+3}, v{db+2}, v{db+3}")
    def qk_swap(R):
        a(f"v_permlane16_swap_b32 v{R}, v{R+2}")
        a(f"v_permlane16_swap_b32 v{R+1}, v{R+3}")
    a("s_nop 3")
    qk_cvt(2, SC); qk_cvt(3, SC+8)
    vw = []
    for Tn in (4, 5):
        for mt in range(4):
            R = SC + 16 + ((Tn-4)*4+mt)*2
            d = acc(mt, Tn)
            a(f"v_cvt_pk_bf16_f32 v{R}, v{d}, v{d+1}")
            a(f"v_cvt_pk_bf16_f32 v{R+1}, v{d+2}, v{d+3}")
            vw.append(f"ds_write_b64 v{vEV}, v[{R}:{R+1}] offset:{(mt>>1)*TILE + (mt&1)*1152 + (40 if Tn==5 else 0)}")
    kw = [(SC+4*q, (q & 1)*TILE + (q >> 1)*1024) for q in range(4)]
    for q, (R, off) in enumerate(kw):
        qk_swap(R)
        a(vw[2*q]); a(vw[2*q+1])
    for mt in range(4):
        d = acc(mt, 6)
        a(f"v_pk_mul_f32 v[{d}:{d+1}], v[{d}:{d+1}], v[{vF}:{vF+1}]")
        a(f"v_pk_mul_f32 v[{d+2}:{d+3}], v[{d+2}:{d+3}], v[{vF}:{vF+1}]")
        R, off = kw[mt]
        a(f"ds_write_b128 v{vEK}, v[{R}:{R+3}] offset:{off}")
    R6 = SC + 32
    a(f"v_add_u32 v{t}, v{vE6}, v{vDr}")
    a(f"v_add_u32 v{t+1}, v{vE6}, v{vDt}")
    for mt in range(4):
        d = acc(mt, 6)
        a(f"v_cvt_pk_bf16_f32 v{R6+2*mt}, v{d}, v{d+1}")
        a(f"v_cvt_pk_bf16_f32 v{R6+2*mt+1}, v{d+2}, v{d+3}")
    a(f"v_add_u32 v{t+2}, v{t+1}, v{vDr}")
    a(f"s_mov_b64 s[{S_SAVE}:{S_SAVE+1}], exec")
    a(f"s_mov_b32 exec_hi, 0x0000ffff")
    a(f"ds_write_b64 v{vE6}, v[{R6}:{R6+1}]")
    a(f"ds_write_b64 v{t}, v[{R6+2}:{R6+3}]")
    a(f"ds_write_b64 v{t+1}, v[{R6+4}:{R6+5}]")
    a(f"ds_write_b64 v{t+2}, v[{R6+6}:{R6+7}]")
    rest_exec()
    for mt in range(4):
        for Tn in (0, 1):
            d = acc(mt, Tn)
            a(f"v_pk_mul_f32 v[{d}:{d+1}], v[{d}:{d+1}], v[{vC}:{vC+1}]")
            a(f"v_pk_mul_f32 v[{d+2}:{d+3}], v[{d+2}:{d+3}], v[{vC}:{vC+1}]")
    if 'tse' in exp: ts(5, True)
    a("s_waitcnt lgkmcnt(0)")
    if 'tse' in exp: ts(6, True)
    a("s_barrier")
    if 'tse' in exp: ts(7, True)
    qk_cvt(0, SC); qk_cvt(1, SC+8)
    for r in range(8): a(f"v_mov_b32 v{OA+r}, 0")
    for q in range(4):
        R = SC + 4*q
        qk_swap(R)
        for r in range(4): a(f"v_mov_b32 v{OA+8+4*q+r}, 0") if q < 2 else a(f"v_mov_b32 v{OB+4*(q-2)+r}, 0")
        a(f"ds_write_b128 v{vEQ}, v[{R}:{R+3}] offset:{(q & 1)*QTILE + (q >> 1)*1024}")
    for r in range(8, 16): a(f"v_mov_b32 v{OB+r}, 0")

    a.lab("L_P2")
    if 'tse' in exp: ts(8, True)
    a(f"v_mov_b32 v{t}, {TAGS_LDS}")
    a(f"ds_read_b128 v[{V_TG}:{V_TG+3}], v{t}")
    a("s_waitcnt lgkmcnt(0)")
    a("s_barrier")
    ts(3)
    if debug_stage == 1:
        a(f"s_lshl_b32 s{S_T0}, s{S_IDX}, 16")
        a(f"v_lshlrev_b32 v{t}, 4, v0")
        for i in range(7):
            a(f"v_add_u32 v{t+1}, {KV_OWN + i*8192}, v{t}")
            a(f"ds_read_b128 v[40:43], v{t+1}")
            a("s_waitcnt lgkmcnt(0)")
            a(f"v_add_u32 v{t+2}, {i*8192}, v{t}")
            a(f"buffer_store_dwordx4 v[40:43], v{t+2}, {WS}, s{S_T0} offen")
            a("s_waitcnt vmcnt(0)")
        a("s_branch L_FIN")
    if debug_stage == 9:
        a("s_branch L_FIN")
    if debug_stage not in (1, 9):
        phase2(a, debug_stage, ts, exp, save_exec, rest_exec)
        phase3(a, debug_stage, ts, exp, save_exec, rest_exec)
    a.lab("L_FIN")
    if 'hdbg' in exp:
        a("s_waitcnt vmcnt(0) lgkmcnt(0)")
        a("s_memrealtime s[94:95]")
        a(f"s_load_dwordx2 s[{S_X}:{S_X+1}], s[0:1], 56")
        a("s_waitcnt lgkmcnt(0)")
        a(f"s_cmp_lg_u32 s{S_WID}, 4")
        a("s_cbranch_scc1 L_END")
        a(f"s_mov_b32 s{S_X+2}, 256")
        a(f"s_mov_b32 s{S_X+3}, 0x00020000")
        a("s_mov_b64 exec, 1")
        a("v_mov_b32 v2, 0")
        a("s_not_b32 s33, s70")
        a("v_mov_b32 v3, s33")
        a(f"buffer_atomic_umax v3, v2, s[{S_X}:{S_X+3}], 0 offen offset:0")
        a("v_mov_b32 v3, s70")
        a(f"buffer_atomic_umax v3, v2, s[{S_X}:{S_X+3}], 0 offen offset:4")
        for k, i in enumerate((3, 4, 5, 7, 8, 10, 9, 11, 12)):
            a(f"v_mov_b32 v{4+k}, s{70+2*i}")
            a(f"buffer_atomic_umax v{4+k}, v2, s[{S_X}:{S_X+3}], 0 offen offset:{8+4*k}")
        a("s_waitcnt vmcnt(0)")
        a("s_branch L_END")
    if timing:
        a("s_waitcnt vmcnt(0) lgkmcnt(0)")
        a(f"{'s_memrealtime' if ('abs' in exp or 'hdbg' in exp) else 's_memtime'} s[94:95]")
        a("s_waitcnt lgkmcnt(0)")
        a(f"s_lshl_b32 s{S_T0}, s2, 3")
        a(f"s_add_u32 s{S_T0}, s{S_T0}, s{S_WID}")
        a(f"s_lshl_b32 s{S_T0}, s{S_T0}, 6")
        a(f"s_add_u32 s{S_T0}, s{S_T0}, {TIMING_OFF}")
        for i in range(13):
            a(f"s_sub_u32 s{S_T1}, s{70+2*i}, s70" if (i and 'abs' not in exp) else f"s_mov_b32 s{S_T1}, s{70+2*i}")
            a(f"s_cmp_eq_u32 s{70+2*i}, 0")
            a(f"s_cselect_b32 s{S_T1}, 0, s{S_T1}")
            a(f"v_mov_b32 v{40+i}, s{S_T1}")
        if 'tb' in exp:
            a(f"v_lshlrev_b32 v2, 2, v{V_LANE}")
            a(f"s_add_u32 s{S_T1}, s{S_T0}, {1<<20}")
            a(f"s_mov_b64 exec, 0xffff")
            a(f"buffer_store_dword v{V_TL}, v2, {WS}, s{S_T1} offen")
        a(f"v_mov_b32 v2, 0")
        a(f"s_mov_b64 exec, 1")
        for i in range(3):
            a(f"buffer_store_dwordx4 v[{40+4*i}:{43+4*i}], v2, {WS}, s{S_T0} offen offset:{16*i}")
        a(f"buffer_store_dword v52, v2, {WS}, s{S_T0} offen offset:48")
        a("s_waitcnt vmcnt(0)")
    a.lab("L_END")
    a("s_endpgm")
    a(f""".section .rodata,"a"
.p2align 6
.amdhsa_kernel {NAME}_kernel
  .amdhsa_next_free_vgpr 256
  .amdhsa_next_free_sgpr 102
  .amdhsa_accum_offset 256
  .amdhsa_group_segment_fixed_size 0
  .amdhsa_kernarg_size 72
  .amdhsa_user_sgpr_count 2
  .amdhsa_user_sgpr_kernarg_segment_ptr 1
  .amdhsa_system_sgpr_workgroup_id_x 1
.end_amdhsa_kernel""")
    return a.text()

WS = f"s[{S_WS}:{S_WS+3}]"

def spin_poll(a, name, check_lines, load_line, limit=2000000, first_done=False):
    a(f"s_mov_b32 s{S_CNT}, 0")
    if first_done: a(f"s_branch {name}_W")
    a.lab(name)
    a(load_line)
    a.lab(name + "_W")
    a(f"s_add_u32 s{S_CNT}, s{S_CNT}, 1")
    a("s_waitcnt vmcnt(0)")
    for l in check_lines: a(l)
    a(f"s_cbranch_scc1 {name}_OK")
    a(f"s_cmp_lt_u32 s{S_CNT}, {limit}")
    a(f"s_cbranch_scc1 {name}")
    a.lab(name + "_OK")

def lds_inc(a, addr, save_exec, rest_exec, rtn=None):
    t = T
    a(f"v_mov_b32 v{t}, {addr}")
    a(f"v_mov_b32 v{t+1}, 1")
    save_exec(1)
    if rtn is None: a(f"ds_add_u32 v{t}, v{t+1}")
    else: a(f"ds_add_rtn_u32 v{rtn}, v{t}, v{t+1}")
    rest_exec()

def lds_wait(a, name, addr, val):
    t = T
    a(f"v_mov_b32 v{t}, {addr}")
    a(f"s_mov_b32 s{S_CNT}, 0")
    a.lab(name)
    a(f"ds_read_b32 v{t+1}, v{t}")
    a(f"s_add_u32 s{S_CNT}, s{S_CNT}, 1")
    a("s_waitcnt lgkmcnt(0)")
    a(f"v_readfirstlane_b32 s{S_T0}, v{t+1}")
    a(f"s_cmp_ge_u32 s{S_T0}, {val}")
    a(f"s_cbranch_scc1 {name}_OK")
    a(f"s_cmp_lt_u32 s{S_CNT}, 20000000")
    a(f"s_cbranch_scc1 {name}")
    a.lab(name + "_OK")

def hook_point(a, tag):
    a(f"s_add_u32 s{S_U}, s{S_U}, 1")
    a(f"s_cmp_lg_u32 s{S_U}, s{S_HOOK}")
    a(f"s_cbranch_scc1 {tag}")
    a(f"s_call_b64 s[{S_RET2}:{S_RET2+1}], L_HOOK")
    a.lab(tag)

def run_code(a, name, QM, QR, O, exp):
    cnt = [0]
    def qk1(creg):
        c = "0" if creg is None else f"v[{creg}:{creg+15}]"
        a(f"v_mfma_f32_32x32x16_bf16 v[{VS}:{VS+15}], v[{VKF}:{VKF+3}], v[{QM}:{QM+3}], {c}")
    def qk2():
        a(f"v_mfma_f32_32x32x16_bf16 v[{VS}:{VS+15}], v[{VKR}:{VKR+3}], v[{QR}:{QR+3}], v[{VS}:{VS+15}]")
    def pv(V, P):
        a(f"v_mfma_f32_32x32x16_bf16 v[{O}:{O+15}], v[{V}:{V+3}], v[{P}:{P+3}], v[{O}:{O+15}]")
    def kread():
        a(f"ds_read_b128 v[{VKF}:{VKF+3}], v{A_K}")
        a(f"ds_read_b64 v[{VKR}:{VKR+1}], v{A_KR}")
    def kstep():
        a(f"v_add_u32 v{A_K}, v{ST_K}, v{A_K}")
        a(f"v_add_u32 v{A_KR}, v{ST_K}, v{A_KR}")
    def vread(V, off):
        a(f"ds_read_b64_tr_b16 v[{V}:{V+1}], v{A_V} offset:{off}")
        a(f"ds_read_b64_tr_b16 v[{V+2}:{V+3}], v{A_V} offset:{off+576}")
    def cvt(j): a(f"v_cvt_pk_bf16_f32 v{VP+j}, v{VE+2*j}, v{VE+2*j+1}")
    def ex(r): a(f"v_exp_f32 v{VE+r}, v{VS+r}")
    def unit(D):
        if 'pf' in exp: a("s_setprio 1" if 'pfi' not in exp else "s_setprio 0")
        for r in range(8): ex(r)
        for j in range(4): cvt(j)
        ex(8); ex(9)
        a("s_waitcnt lgkmcnt(0)")
        pv(VVA, VP)
        for r in range(10, 16): ex(r)
        if 'pf' in exp: a("s_setprio 0" if 'pfi' not in exp else "s_setprio 1")
        if D:
            qk1(V_MASK if D == "mask" else None)
            for j in range(4, 8): cvt(j)
            vread(VVA, 0)
            qk2()
            kstep()
            kread()
            pv(VVB, VP+4)
            vread(VVB, 1152)
            a(f"v_add_u32 v{A_V}, v{ST_V}, v{A_V}")
        else:
            a("s_nop 0")
            for j in range(4, 8): cvt(j)
            a("s_nop 1")
            pv(VVB, VP+4)
    a.lab(name)
    kread()
    a(f"s_cmp_eq_u32 s{S_N}, 1")
    a(f"s_cbranch_scc1 {name}_M1")
    kstep()
    a("s_waitcnt lgkmcnt(0)")
    qk1(None); qk2()
    vread(VVA, 0); kread(); vread(VVB, 1152)
    a(f"v_add_u32 v{A_V}, v{ST_V}, v{A_V}")
    a(f"s_sub_u32 s{S_N}, s{S_N}, 2")
    a.lab(name + "_BT")
    a(f"s_cmp_eq_u32 s{S_N}, 0")
    a(f"s_cbranch_scc1 {name}_MK0")
    a(f"s_sub_u32 s{S_E}, s{S_HOOK}, s{S_U}")
    a(f"s_min_u32 s{S_E}, s{S_E}, s{S_N}")
    a(f"s_sub_u32 s{S_N}, s{S_N}, s{S_E}")
    a(f"s_add_u32 s{S_U}, s{S_U}, s{S_E}")
    a(f"s_sub_u32 s{S_E}, s{S_E}, 1")
    a.lab(name + "_LP")
    unit("plain")
    a(f"s_sub_u32 s{S_E}, s{S_E}, 1")
    a("s_nop 1")
    a(f"s_cbranch_scc0 {name}_LP")
    a(f"s_cmp_lg_u32 s{S_U}, s{S_HOOK}")
    a(f"s_cbranch_scc1 {name}_BT")
    a(f"s_call_b64 s[{S_RET2}:{S_RET2+1}], L_HOOK")
    a(f"s_branch {name}_BT")
    a.lab(name + "_MK0")
    a("s_nop 3")
    a.lab(name + "_MK")
    unit("mask")
    hook_point(a, f"{name}_H1")
    a("s_nop 1")
    a.lab(name + "_FN")
    unit(None)
    hook_point(a, f"{name}_H2")
    a(f"s_setpc_b64 s[{S_RET}:{S_RET+1}]")
    a.lab(name + "_M1")
    a("s_waitcnt lgkmcnt(0)")
    qk1(V_MASK); qk2()
    vread(VVA, 0); vread(VVB, 1152)
    a("s_nop 7")
    a(f"s_branch {name}_FN")

def set_run(a, region, tile_sreg, n_lines, step):
    a(f"s_mul_i32 s{S_T0}, s{tile_sreg}, {TILE}" if tile_sreg is not None else f"s_mov_b32 s{S_T0}, 0")
    a(f"s_add_u32 s{S_T0}, s{S_T0}, {region}")
    a(f"v_add_u32 v{A_K}, s{S_T0}, v{B_K}")
    a(f"v_add_u32 v{A_KR}, s{S_T0}, v{B_KR}")
    a(f"v_and_b32 v{A_V}, s{S_T0}, v{MK_V}")
    a(f"v_add_u32 v{A_V}, v{B_V}, v{A_V}")
    a(f"v_mov_b32 v{ST_K}, {step & 0xffffffff:#x}")
    a(f"v_and_b32 v{ST_V}, v{ST_K}, v{MK_V}")
    for l in n_lines: a(l)

F_MD, F_MF, F_M = 190, 206, 222
S_FQ, S_FT, S_FK, S_FP, S_FI2 = 32+12, 45, 46, 47, 48

def safety_check(a, O, isB, qb_sreg, tag):
    t = T
    a(f"v_max3_f32 v{t}, |v{O}|, |v{O+1}|, |v{O+2}|")
    for k in range(3, 11, 2): a(f"v_max3_f32 v{t}, v{t}, |v{O+k}|, |v{O+k+1}|")
    a(f"v_max_f32 v{t}, v{t}, |v{O+11}|".replace("v_max_f32", "v_max_f32_e64"))
    a(f"v_mov_b32 v{t+1}, 0x21800000")
    a(f"v_mov_b32 v{t+2}, 0x5d800000")
    a(f"v_mov_b32 v{t+3}, 0x7f000000")
    a(f"v_cmp_nge_f32 vcc, v{O+12}, v{t+1}")
    a(f"v_cmp_nle_f32 s[{S_BAD}:{S_BAD+1}], v{O+12}, v{t+2}")
    a(f"s_or_b64 vcc, vcc, s[{S_BAD}:{S_BAD+1}]")
    a(f"v_cmp_nlt_f32 s[{S_BAD}:{S_BAD+1}], v{t}, v{t+3}")
    a(f"s_or_b64 vcc, vcc, s[{S_BAD}:{S_BAD+1}]")
    a("s_cmp_eq_u64 vcc, 0")
    a(f"s_cbranch_scc1 L_SAFE{tag}")
    a(f"s_mov_b32 s{S_FQ}, s{qb_sreg}")
    if isB:
        for r in range(8): a(f"v_swap_b32 v{QA_M+r}, v{QB_M+r}")
        for r in range(16): a(f"v_swap_b32 v{OA+r}, v{OB+r}")
    a(f"s_call_b64 s[{S_RET}:{S_RET+1}], L_FB")
    if isB:
        for r in range(8): a(f"v_swap_b32 v{QA_M+r}, v{QB_M+r}")
        for r in range(16): a(f"v_swap_b32 v{OA+r}, v{OB+r}")
    a.lab(f"L_SAFE{tag}")

def fallback_code(a):
    t = T; L = V_LANE
    a.lab("L_FB")
    a(f"v_and_b32 v{t}, 31, v{L}")
    a(f"v_lshrrev_b32 v{t+1}, 5, v{L}")
    a(f"v_lshlrev_b32 v{t+1}, 2, v{t+1}")
    a(f"v_sub_u32 v{t}, v{t}, v{t+1}")
    a(f"v_mov_b32 v{t+1}, {NEG:#x}")
    for r in range(16):
        jj = (r & 3) + 8*(r >> 2)
        a(f"v_cmp_le_i32 vcc, {jj}, v{t}")
        a("s_nop 1")
        a(f"v_cndmask_b32_e64 v{F_MD+r}, v{t+1}, 0, vcc")
        a(f"v_sub_f32 v{F_MF+r}, v{t+1}, v{F_MD+r}")
    a(f"v_mov_b32 v{F_M}, 0xff800000")
    a(f"s_mov_b32 s{S_FP}, 0")
    a.lab("L_FB_PASS")
    a(f"s_mov_b32 s{S_FI2}, 0")
    a.lab("L_FB_OWN")
    a(f"s_mul_i32 s{S_FT}, s{S_FI2}, {TILE}")
    a(f"s_add_u32 s{S_FT}, s{S_FT}, {KV_OWN}")
    a(f"s_cmp_eq_u32 s{S_FI2}, s{S_FQ}")
    a(f"s_cselect_b32 s{S_FK}, 1, 0")
    a(f"s_call_b64 s[{S_RET2}:{S_RET2+1}], L_FB_TILE")
    a(f"s_add_u32 s{S_FI2}, s{S_FI2}, 1")
    a(f"s_cmp_le_u32 s{S_FI2}, s{S_FQ}")
    a("s_cbranch_scc1 L_FB_OWN")
    a(f"s_cmp_eq_u32 s{S_S}, 0")
    a("s_cbranch_scc1 L_FB_PEND")
    a(f"s_mov_b32 s{S_FI2}, s{S_FQ}")
    a.lab("L_FB_HALO")
    a(f"s_mul_i32 s{S_FT}, s{S_FI2}, {TILE}")
    a(f"s_add_u32 s{S_FT}, s{S_FT}, {KV_HALO}")
    a(f"s_cmp_eq_u32 s{S_FI2}, s{S_FQ}")
    a(f"s_cselect_b32 s{S_FK}, 2, 0")
    a(f"s_call_b64 s[{S_RET2}:{S_RET2+1}], L_FB_TILE")
    a(f"s_add_u32 s{S_FI2}, s{S_FI2}, 1")
    a(f"s_cmp_le_u32 s{S_FI2}, 7")
    a("s_cbranch_scc1 L_FB_HALO")
    a.lab("L_FB_PEND")
    a(f"s_cmp_eq_u32 s{S_FP}, 1")
    a("s_cbranch_scc1 L_FB_DONE")
    a(f"v_mov_b32 v{t}, v{F_M}")
    a("s_nop 1")
    a(f"v_permlane32_swap_b32 v{F_M}, v{t}")
    a("s_nop 1")
    a(f"v_max_f32 v{F_M}, v{F_M}, v{t}")
    for r in range(16): a(f"v_mov_b32 v{OA+r}, 0")
    a(f"s_mov_b32 s{S_FP}, 1")
    a("s_branch L_FB_PASS")
    a.lab("L_FB_DONE")
    a("s_nop 15")
    a(f"s_setpc_b64 s[{S_RET}:{S_RET+1}]")
    a.lab("L_FB_TILE")
    a(f"v_add_u32 v{A_K}, s{S_FT}, v{B_K}")
    a(f"v_add_u32 v{A_KR}, s{S_FT}, v{B_KR}")
    a(f"v_and_b32 v{A_V}, s{S_FT}, v{MK_V}")
    a(f"v_add_u32 v{A_V}, v{B_V}, v{A_V}")
    a(f"ds_read_b128 v[{VKF}:{VKF+3}], v{A_K}")
    a(f"ds_read_b64 v[{VKR}:{VKR+1}], v{A_KR}")
    a(f"ds_read_b64_tr_b16 v[{VVA}:{VVA+1}], v{A_V}")
    a(f"ds_read_b64_tr_b16 v[{VVA+2}:{VVA+3}], v{A_V} offset:576")
    a(f"ds_read_b64_tr_b16 v[{VVB}:{VVB+1}], v{A_V} offset:1152")
    a(f"ds_read_b64_tr_b16 v[{VVB+2}:{VVB+3}], v{A_V} offset:1728")
    a("s_waitcnt lgkmcnt(0)")
    a(f"v_mfma_f32_32x32x16_bf16 v[{VS}:{VS+15}], v[{VKF}:{VKF+3}], v[{QA_M}:{QA_M+3}], 0")
    a(f"v_mfma_f32_32x32x16_bf16 v[{VS}:{VS+15}], v[{VKR}:{VKR+3}], v[{QA_R}:{QA_R+3}], v[{VS}:{VS+15}]")
    a("s_nop 15")
    a(f"s_cmp_eq_u32 s{S_FK}, 0")
    a("s_cbranch_scc1 L_FB_NM")
    a(f"s_cmp_eq_u32 s{S_FK}, 1")
    a("s_cbranch_scc0 L_FB_FM")
    for r in range(16): a(f"v_add_f32 v{VS+r}, v{VS+r}, v{F_MD+r}")
    a("s_branch L_FB_NM")
    a.lab("L_FB_FM")
    for r in range(16): a(f"v_add_f32 v{VS+r}, v{VS+r}, v{F_MF+r}")
    a.lab("L_FB_NM")
    a(f"s_cmp_eq_u32 s{S_FP}, 0")
    a("s_cbranch_scc0 L_FB_P1")
    for r in range(0, 16, 2): a(f"v_max3_f32 v{F_M}, v{F_M}, v{VS+r}, v{VS+r+1}")
    a(f"s_setpc_b64 s[{S_RET2}:{S_RET2+1}]")
    a.lab("L_FB_P1")
    for r in range(16): a(f"v_sub_f32 v{VS+r}, v{VS+r}, v{F_M}")
    for r in range(16): a(f"v_exp_f32 v{VE+r}, v{VS+r}")
    a("s_nop 0")
    for j in range(8): a(f"v_cvt_pk_bf16_f32 v{VP+j}, v{VE+2*j}, v{VE+2*j+1}")
    a("s_nop 1")
    a(f"v_mfma_f32_32x32x16_bf16 v[{OA}:{OA+15}], v[{VVA}:{VVA+3}], v[{VP}:{VP+3}], v[{OA}:{OA+15}]")
    a(f"v_mfma_f32_32x32x16_bf16 v[{OA}:{OA+15}], v[{VVB}:{VVB+3}], v[{VP+4}:{VP+7}], v[{OA}:{OA+15}]")
    a("s_nop 7")
    a(f"s_setpc_b64 s[{S_RET2}:{S_RET2+1}]")

def finalize(a, O, qb_sreg, save_exec, rest_exec):
    t = T; R = VS
    a(f"v_rcp_f32 v{t+2}, v{O+12}")
    a(f"s_lshl_b32 s{S_T0}, s{qb_sreg}, 15")
    a(f"s_add_u32 s{S_T1}, s{S_T0}, s{S_OM}")
    a(f"s_lshl_b32 s{S_T0}, s{qb_sreg}, 7")
    a(f"s_add_u32 s{S_T2}, s{S_T0}, s{S_OR}")
    for r in range(12): a(f"v_mul_f32 v{O+r}, v{O+r}, v{t+2}")
    a(f"v_cvt_pk_bf16_f32 v{R}, v{O}, v{O+1}")
    a(f"v_cvt_pk_bf16_f32 v{R+1}, v{O+2}, v{O+3}")
    a(f"v_cvt_pk_bf16_f32 v{R+2}, v{O+4}, v{O+5}")
    a(f"v_cvt_pk_bf16_f32 v{R+3}, v{O+6}, v{O+7}")
    a(f"v_cvt_pk_bf16_f32 v{R+4}, v{O+8}, v{O+9}")
    a(f"v_cvt_pk_bf16_f32 v{R+5}, v{O+10}, v{O+11}")
    a(f"s_cmp_eq_u32 s{S_HEAD}, 0")
    a(f"s_cselect_b64 s[{S_SAVE}:{S_SAVE+1}], -1, 0")
    a(f"v_permlane32_swap_b32 v{R}, v{R+2}")
    a(f"v_permlane32_swap_b32 v{R+1}, v{R+3}")
    a(f"v_cndmask_b32_e64 v{R+4}, v{R+5}, v{R+4}, s[{S_SAVE}:{S_SAVE+1}]")
    a(f"buffer_store_dwordx4 v[{R}:{R+3}], v{V_OA1}, {WS}, s{S_T1} offen sc1")
    a(f"s_mov_b64 s[{S_SAVE}:{S_SAVE+1}], exec")
    a(f"s_mov_b32 exec_hi, 0")
    a(f"buffer_store_dword v{R+4}, v{V_OA2}, {WS}, s{S_T2} offen sc1")
    rest_exec()

def oflag(a, name, cnt_addr, flag_off, save_exec, rest_exec, after_store=None, last=7):
    t = T
    lds_inc(a, cnt_addr, save_exec, rest_exec, rtn=t+2)
    a("s_waitcnt lgkmcnt(0)")
    a(f"v_readfirstlane_b32 s{S_T0}, v{t+2}")
    a(f"s_cmp_lg_u32 s{S_T0}, {last}")
    a(f"s_cbranch_scc1 {name}")
    a(f"s_lshl_b32 s{S_T0}, s{S_HP}, 2")
    a(f"s_add_u32 s{S_T0}, s{S_T0}, s{S_OFS}")
    a(f"v_lshlrev_b32 v{t}, 7, v{V_LANE}")
    a(f"v_mov_b32 v{t+1}, s{S_TAGO}")
    save_exec("0xffff")
    a(f"buffer_store_dword v{t+1}, v{t}, {WS}, s{S_T0} offen offset:{flag_off} sc1")
    rest_exec()
    if after_store: after_store()
    a.lab(name)

def phase2(a, debug_stage, ts, exp, save_exec, rest_exec):
    t = T; L = V_LANE
    UH = (4, 6, 8)
    if 'hkA' in exp: UH = (3, 5, 7)
    if 'hkB' in exp: UH = (4, 6, 7)
    if 'hkC' in exp: UH = (5, 7, 8)
    UP = 15
    a.c("======== phase 2 ========")
    a(f"v_readfirstlane_b32 s{S_TAGOUT}, v{V_TG}")
    a(f"v_readfirstlane_b32 s{S_TAGIN}, v{V_TG+1}")
    a(f"v_readfirstlane_b32 s{S_TAGO}, v{V_TG+2}")
    a(f"v_bfe_u32 v{V_OA1}, v{L}, 4, 1")
    a(f"v_lshlrev_b32 v{V_OA1}, 14, v{V_OA1}")
    a(f"v_and_b32 v{t+4}, 15, v{L}")
    a(f"v_lshl_add_u32 v{V_OA1}, v{t+4}, 4, v{V_OA1}")
    a(f"v_lshrrev_b32 v{t+4}, 5, v{L}")
    a(f"v_lshl_add_u32 v{V_OA1}, v{t+4}, 8, v{V_OA1}")
    a(f"v_lshlrev_b32 v{V_OA2}, 2, v{L}")
    for (QM, QR, sreg) in ((QA_M, QA_R, S_M), (QB_M, QB_R, S_MB)):
        a(f"s_mul_i32 s{S_T0}, s{sreg}, {QTILE}")
        a(f"s_add_u32 s{S_T0}, s{S_T0}, {Q_BASE}")
        a(f"v_add_u32 v{t+2}, s{S_T0}, v{B_K}")
        a(f"v_add_u32 v{t+3}, s{S_T0}, v{B_KR}")
        a(f"ds_read_b128 v[{QM}:{QM+3}], v{t+2}")
        a(f"ds_read_b64 v[{QR}:{QR+1}], v{t+3}")
    a(f"s_cmp_eq_u32 s{S_HEAD}, 0")
    a(f"s_cselect_b32 s{S_T0}, -1, 0")
    a(f"s_cselect_b32 s{S_T1}, 0, -1")
    a(f"v_cmp_gt_u32 vcc, 32, v{L}")
    a(f"v_mov_b32 v{t}, s{S_T0}")
    a(f"v_mov_b32 v{t+1}, s{S_T1}")
    a(f"v_cndmask_b32_e64 v{t}, 0, v{t}, vcc")
    a(f"v_cndmask_b32_e64 v{t+1}, 0, v{t+1}, vcc")
    a(f"v_mov_b32 v{VKR+2}, 0")
    a(f"v_mov_b32 v{VKR+3}, 0")
    for QR in (QA_R, QB_R):
        a(f"v_mov_b32 v{QR+2}, 0")
        a(f"v_mov_b32 v{QR+3}, 0")
    a("s_waitcnt lgkmcnt(0)")
    for QR in (QA_R, QB_R):
        a(f"v_and_b32 v{QR}, v{QR}, v{t}")
        a(f"v_and_b32 v{QR+1}, v{QR+1}, v{t+1}")
    lds_inc(a, CNTQ, save_exec, rest_exec)
    a(f"s_mov_b32 s{S_U}, 0")
    a(f"s_mov_b32 s{S_HST}, 0")
    a(f"s_mov_b32 s{S_HOOK}, 2")
    a(f"s_mov_b32 s{S_HST}, 5")
    a(f"s_cmp_lt_u32 s{S_WID}, 4")
    a(f"s_cbranch_scc1 L_HS2")
    a(f"s_mov_b32 s{S_HST}, 0")
    a(f"s_mov_b32 s{S_HOOK}, {UH[0]}")
    a(f"s_cmp_eq_u32 s{S_S}, 7")
    a(f"s_cbranch_scc1 L_HS1")
    a(f"s_mul_i32 s{S_T1}, s{S_IDX}, 36864")
    for c, i in enumerate([3, 2, 1, 0]):
        a(f"s_add_u32 s{S_T2}, s{S_T1}, {i*4096}")
        a(f"buffer_store_dwordx4 v[{VH+20+4*c}:{VH+20+4*c+3}], v{V_PA}, {WS}, s{S_T2} offen sc1")
    a.lab("L_HS1")
    if 'noprio' not in exp and 'pf' not in exp: a("s_setprio 1")
    a.lab("L_HS2")
    ts(4)
    set_run(a, KV_OWN, None, [f"s_add_u32 s{S_N}, s{S_M}, 1"], TILE)
    a(f"s_call_b64 s[{S_RET}:{S_RET+1}], L_RUNA")
    set_run(a, KV_OWN, None, [f"s_sub_u32 s{S_N}, 8, s{S_M}"], TILE)
    a(f"s_call_b64 s[{S_RET}:{S_RET+1}], L_RUNB")
    ts(5)
    a(f"s_cmp_eq_u32 s{S_S}, 0")
    a("s_cbranch_scc1 L_FINAL0")
    a(f"v_mov_b32 v{t+2}, {NEG:#x}")
    for r in range(16): a(f"v_sub_f32 v{V_MASK+r}, v{t+2}, v{V_MASK+r}")
    a(f"s_cmp_lt_u32 s{S_WID}, 4")
    a("s_cbranch_scc1 L_H5DONE")
    lds_wait(a, "L_WQ", CNTQ, 8)
    a(f"v_add_u32 v{V_PA+1}, {KV_HALO}, v{V_PA}")
    for c, i in enumerate([8, 7, 6, 5, 4, 3, 2, 1, 0]):
        a(f"s_waitcnt vmcnt({8-c})")
        a(f"ds_write_b128 v{V_PA+1}, v[{VH+4*c}:{VH+4*c+3}] offset:{i*4096}")
    if 'midbar' not in exp:
        a("s_waitcnt lgkmcnt(0)")
        lds_inc(a, CNT1, save_exec, rest_exec)
    a(f"s_cmp_lg_u32 s{S_WID}, 4")
    a("s_cbranch_scc1 L_H5DONE")
    a(f"s_sub_u32 s{S_T0}, s{S_IDX}, 1")
    a(f"s_lshl_b32 s{S_T0}, s{S_T0}, 8")
    a(f"s_add_u32 s{S_T0}, s{S_T0}, {WS_FLAG}")
    a(f"v_mov_b32 v{t}, 0")
    a(f"v_mov_b32 v{t+1}, s{S_TAGIN}")
    save_exec(1)
    a(f"buffer_store_dword v{t+1}, v{t}, {WS}, s{S_T0} offen sc1")
    rest_exec()
    a.lab("L_H5DONE")
    if 'midbar' in exp:
        a("s_waitcnt lgkmcnt(0)")
        if 'noph' in exp: a("s_setprio 0")
        a("s_barrier")
    else:
        lds_wait(a, "L_W1", CNT1, 4)
    if "tsh" not in exp: ts(7)
    a(f"s_mov_b32 s{S_T4}, 7")
    set_run(a, KV_HALO, S_T4, [f"s_add_u32 s{S_N}, s{S_M}, 1"], -TILE)
    a(f"s_call_b64 s[{S_RET}:{S_RET+1}], L_RUNB")
    a("s_nop 7")
    a("s_nop 3")
    safety_check(a, OB, True, S_MB, "B1")
    finalize(a, OB, S_MB, save_exec, rest_exec)
    if 'noph' not in exp: a("s_setprio 0")
    a(f"s_mov_b32 s{S_T4}, 7")
    set_run(a, KV_HALO, S_T4, [f"s_sub_u32 s{S_N}, 8, s{S_M}"], -TILE)
    a(f"s_call_b64 s[{S_RET}:{S_RET+1}], L_RUNA")
    a("s_branch L_FINALA")
    a.lab("L_FINAL0")
    a("s_waitcnt vmcnt(0)")
    a("s_setprio 0")
    a("s_barrier")
    a("s_nop 7")
    a("s_nop 3")
    safety_check(a, OB, True, S_MB, "B0")
    finalize(a, OB, S_MB, save_exec, rest_exec)
    a.lab("L_FINALA")
    a("s_setprio 0")
    if "tsh" not in exp: ts(8)
    a("s_nop 7")
    a("s_nop 3")
    safety_check(a, OA, False, S_M, "A")
    finalize(a, OA, S_M, save_exec, rest_exec)
    a("s_branch L_P3")
    fallback_code(a)

    a.lab("L_HOOK")
    a(f"s_cmp_eq_u32 s{S_HST}, 1")
    a("s_cbranch_scc1 L_HK1")
    a(f"s_cmp_eq_u32 s{S_HST}, 2")
    a("s_cbranch_scc1 L_HK2")
    a(f"s_cmp_eq_u32 s{S_HST}, 3")
    a("s_cbranch_scc1 L_HK3")
    a(f"s_cmp_eq_u32 s{S_HST}, 5")
    a("s_cbranch_scc0 L_HK0")
    a(f"s_mov_b32 s{S_HST}, 3")
    a(f"s_mov_b32 s{S_HOOK}, {UP}")
    a("s_waitcnt vmcnt(0)")
    oflag(a, "L_CLR", CNTOB, 128, save_exec, rest_exec, last=3)
    a("s_branch L_HRET")
    a.lab("L_HK0")
    a(f"s_mov_b32 s{S_HST}, 1")
    a(f"s_mov_b32 s{S_HOOK}, {UH[1]}")
    a(f"s_cmp_eq_u32 s{S_S}, 7")
    a("s_cbranch_scc1 L_HRET")
    a("s_waitcnt vmcnt(0)")
    a(f"s_lshl_b32 s{S_T0}, s{S_IDX}, 8")
    a(f"s_lshl_b32 s{S_T1}, s{S_L}, 2")
    a(f"s_add_u32 s{S_T0}, s{S_T0}, s{S_T1}")
    a(f"s_add_u32 s{S_T0}, s{S_T0}, {WS_FLAG+128}")
    a(f"v_mov_b32 v{t}, 0")
    a(f"v_mov_b32 v{t+1}, s{S_TAGOUT}")
    save_exec(1)
    a(f"buffer_store_dword v{t+1}, v{t}, {WS}, s{S_T0} offen sc1")
    rest_exec()
    a("s_branch L_HRET")
    a.lab("L_HK3")
    a(f"s_mov_b32 s{S_HST}, 4")
    a(f"s_mov_b32 s{S_HOOK}, 1000")
    if 'tlb' in exp:
        a(f"s_lshr_b32 s{S_T0}, s{S_HP}, 3")
        a(f"s_lshl_b32 s{S_T0}, s{S_T0}, 7")
        a(f"s_lshl_b32 s{S_T1}, s{S_S}, 8")
        a(f"s_add_u32 s{S_T0}, s{S_T0}, s{S_T1}")
        a(f"s_lshl_b32 s{S_T1}, s{S_WID}, 4")
        a(f"s_add_u32 s{S_T0}, s{S_T0}, s{S_T1}")
        a(f"s_mul_i32 s{S_T0}, s{S_T0}, 2304")
        a(f"v_mul_u32_u24 v{t}, 2304, v{L}")
        save_exec("0xffff")
        a(f"buffer_load_dword v{V_TG+2}, v{t}, s[{S_OUT}:{S_OUT+3}], s{S_T0} offen")
        rest_exec()
        a(f"s_lshl_b32 s{S_T0}, s{S_GRP}, 18")
        a(f"s_add_u32 s{S_T0}, s{S_T0}, {WS_O}")
        a(f"v_lshlrev_b32 v{t}, 12, v{L}")
        a(f"buffer_load_dword v{V_TG+3}, v{t}, {WS}, s{S_T0} offen sc1")
    a(f"s_lshl_b32 s{S_T0}, s{S_HP}, 7")
    a(f"s_add_u32 s{S_T0}, s{S_T0}, s{S_OFS}")
    save_exec("0xffff")
    a(f"v_lshlrev_b32 v{t}, 2, v{L}")
    a(f"buffer_load_dword v{V_TG+1}, v{t}, {WS}, s{S_T0} offen offset:128 sc1")
    rest_exec()
    a("s_branch L_HRET")
    a.lab("L_HK1")
    a(f"s_mov_b32 s{S_HST}, 2")
    a(f"s_mov_b32 s{S_HOOK}, {UH[2]}")
    a(f"s_cmp_eq_u32 s{S_S}, 0")
    a("s_cbranch_scc0 L_HK1A")
    a(f"s_mov_b32 s{S_HOOK}, 1000")
    a("s_branch L_HRET")
    a.lab("L_HK1A")
    a(f"s_sub_u32 s{S_H1}, s{S_IDX}, 1")
    a(f"s_lshl_b32 s{S_H1}, s{S_H1}, 8")
    a(f"s_lshl_b32 s{S_T0}, s{S_L}, 2")
    a(f"s_add_u32 s{S_H1}, s{S_H1}, s{S_T0}")
    a(f"s_add_u32 s{S_H1}, s{S_H1}, {WS_FLAG+128}")
    a(f"v_mov_b32 v{t}, 0")
    a(f"buffer_load_dword v{V_TG}, v{t}, {WS}, s{S_H1} offen sc1")
    a("s_branch L_HRET")
    a.lab("L_HK2")
    a(f"s_mov_b32 s{S_HST}, 3")
    a(f"s_mov_b32 s{S_HOOK}, {UP}")
    a("s_waitcnt vmcnt(0)")
    a(f"v_readfirstlane_b32 s{S_T0}, v{V_TG}")
    a(f"s_cmp_eq_u32 s{S_T0}, s{S_TAGIN}")
    a("s_cbranch_scc1 L_POLL1_OK")
    a(f"v_mov_b32 v{t}, 0")
    spin_poll(a, "L_POLL1",
              [f"v_readfirstlane_b32 s{S_T0}, v{V_TG}", f"s_cmp_eq_u32 s{S_T0}, s{S_TAGIN}"],
              f"buffer_load_dword v{V_TG}, v{t}, {WS}, s{S_H1} offen sc1")
    a(f"s_sub_u32 s{S_T0}, s{S_IDX}, 1")
    a(f"s_mul_i32 s{S_T0}, s{S_T0}, 36864")
    for c, i in enumerate([8, 7, 6, 5, 4, 3, 2, 1, 0]):
        a(f"s_add_u32 s{S_T1}, s{S_T0}, {i*4096}")
        a(f"buffer_load_dwordx4 v[{VH+4*c}:{VH+4*c+3}], v{V_PA}, {WS}, s{S_T1} offen sc1")
    a.lab("L_HRET")
    a(f"s_setpc_b64 s[{S_RET2}:{S_RET2+1}]")
    run_code(a, "L_RUNA", QA_M, QA_R, OA, exp)
    run_code(a, "L_RUNB", QB_M, QB_R, OB, exp)

def pub_stores(a, stage_off, base):
    a(f"s_add_u32 s{S_T2}, s{S_T1}, {stage_off}")
    a(f"buffer_store_dwordx4 v[{base}:{base+3}], v{V_PA}, {WS}, s{S_T2} offen sc1")
    for i in range(1, 4):
        a(f"s_add_u32 s{S_T3}, s{S_T2}, {i*4096}")
        a(f"buffer_store_dwordx4 v[{base+4*i}:{base+4*i+3}], v{V_PA}, {WS}, s{S_T3} offen sc1")
    a(f"buffer_store_dwordx4 v[{base+16}:{base+19}], v{V_PA+2}, {WS}, s{S_T2} offen sc1")

def halo_loads(a, stage_off, base):
    a(f"s_sub_u32 s{S_T0}, s{S_IDX}, 1")
    a(f"s_mul_i32 s{S_T0}, s{S_T0}, 36864")
    a(f"s_add_u32 s{S_T0}, s{S_T0}, s{S_SO}")
    for i in range(4):
        a(f"s_add_u32 s{S_T1}, s{S_T0}, {i*4096}")
        a(f"buffer_load_dwordx4 v[{base+4*i}:{base+4*i+3}], v{V_PA}, {WS}, s{S_T1} offen sc1")
    a(f"buffer_load_dwordx4 v[{base+16}:{base+19}], v{V_PA+2}, {WS}, s{S_T0} offen sc1")

def phase3(a, debug_stage, ts, exp, save_exec, rest_exec):
    t = T; L = V_LANE
    OF, AC, WF0, WF1 = 20, 92, 132, 152
    AW, AW2, PF, VO, VOUT, VR = 10, 11, 13, 14, 15, 16
    PA, PB = 12, 9
    S_PL, S_PR, S_PM = 4, 68, 40
    SCR = KV_OWN
    ORD = {0: [0, 2, 4, 6, 1, 3, 5, 7, 8], 1: [9, 11, 13, 15, 10, 12, 14, 16, 17]}
    GM = {0: 0x0055, 1: 0xAA00}; RM = {0: 0x01AA, 1: 0xFFFF}
    a.lab("L_P3")
    a.c("======== phase 3 ========")
    a(f"s_lshl_b32 s{S_PL}, s{S_HP}, 7")
    a(f"s_add_u32 s{S_PL}, s{S_PL}, s{S_OFS}")
    def poll_issue():
        save_exec("0xffff")
        a(f"v_lshlrev_b32 v{t+2}, 2, v{L}")
        a(f"buffer_load_dword v{PF}, v{t+2}, {WS}, s{S_PL} offen offset:128 sc1")
        rest_exec()
    def poll_check(name, mask):
        save_exec(f"{mask:#x}")
        a(f"v_cmp_ne_u32 vcc, s{S_TAGO}, v{PF}")
        a("s_nop 1")
        a("s_cmp_eq_u64 vcc, 0")
        a(f"s_cbranch_scc1 {name}_OK")
        a(f"v_lshlrev_b32 v{t+2}, 2, v{L}")
        spin_poll(a, name,
                  [f"v_cmp_ne_u32 vcc, s{S_TAGO}, v{PF}", "s_nop 1", "s_cmp_eq_u64 vcc, 0"],
                  f"buffer_load_dword v{PF}, v{t+2}, {WS}, s{S_PL} offen offset:128 sc1")
        rest_exec()
    a(f"s_lshr_b32 s{S_T1}, s{S_HP}, 3")
    a(f"s_lshl_b32 s{S_T1}, s{S_T1}, 3")
    a(f"s_lshl_b32 s{S_T2}, s{S_M}, 1")
    a(f"s_add_u32 s{S_T1}, s{S_T1}, s{S_T2}")
    a(f"s_lshl_b32 s{S_T0}, s{S_GRP}, 18")
    a(f"s_add_u32 s{S_T0}, s{S_T0}, {WS_O}")
    a(f"s_lshl_b32 s{S_T2}, s{S_T1}, 14")
    a(f"s_add_u32 s{S_PM}, s{S_T0}, s{S_T2}")
    a(f"s_lshl_b32 s{S_T0}, s{S_GRP}, 15")
    a(f"s_add_u32 s{S_T0}, s{S_T0}, {WS_OR}")
    a(f"s_lshl_b32 s{S_T2}, s{S_T1}, 6")
    a(f"s_add_u32 s{S_PR}, s{S_T0}, s{S_T2}")
    a(f"v_lshrrev_b32 v{VR}, 4, v{L}")
    a(f"v_lshlrev_b32 v{VR}, 12, v{VR}")
    a(f"v_and_b32 v{t+4}, 15, v{L}")
    a(f"v_lshl_add_u32 v{VR}, v{t+4}, 2, v{VR}")
    a(f"v_add_u32 v{VR+1}, 64, v{VR}")
    a(f"v_lshrrev_b32 v{t+1}, 4, v{L}")
    a(f"v_bfe_u32 v{t+2}, v{L}, 2, 2")
    a(f"v_and_b32 v{t+3}, 3, v{L}")
    a(f"v_lshrrev_b32 v{t+4}, 1, v{t+1}")
    a(f"v_lshlrev_b32 v{t+4}, 2, v{t+4}")
    a(f"v_lshl_add_u32 v{t+4}, v{t+1}, 3, v{t+4}")
    a(f"v_add_u32 v{t+4}, v{t+4}, v{t+2}")
    a(f"v_mul_u32_u24 v{t+4}, 144, v{t+4}")
    a(f"v_lshl_add_u32 v{AW}, v{t+3}, 3, v{t+4}")
    a(f"s_mul_i32 s{S_T0}, s{S_HEAD}, {9*5184}")
    a(f"v_add_u32 v{AW}, s{S_T0}, v{AW}")
    a(f"v_mul_u32_u24 v{t+4}, 72, v{t+1}")
    a(f"v_add3_u32 v{t+4}, v{t+4}, v{t+2}, 16")
    a(f"v_mul_u32_u24 v{t+4}, 144, v{t+4}")
    a(f"v_lshl_add_u32 v{AW2}, v{t+3}, 3, v{t+4}")
    a(f"v_lshlrev_b32 v{VO}, 4, v{L}")
    a(f"s_lshl_b32 s{S_T1}, s{S_T1}, 4")
    a(f"s_lshl_b32 s{S_T2}, s{S_S}, 8")
    a(f"s_add_u32 s{S_T1}, s{S_T1}, s{S_T2}")
    a(f"s_lshl_b32 s{S_T2}, s{S_HEAD}, 4")
    a(f"s_add_u32 s{S_T1}, s{S_T1}, s{S_T2}")
    a(f"s_mul_i32 s{S_T1}, s{S_T1}, 2304")
    a(f"s_mul_i32 s{S_T2}, s{S_B}, 1152")
    a(f"s_add_u32 s{S_T1}, s{S_T1}, s{S_T2}")
    a(f"s_and_b32 s{S_T2}, s{S_HP}, 7")
    a(f"s_mul_i32 s{S_T2}, s{S_T2}, 144")
    a(f"s_add_u32 s{S_T5}, s{S_T1}, s{S_T2}")
    a(f"v_and_b32 v{VOUT}, 15, v{L}")
    a(f"v_mul_u32_u24 v{VOUT}, 2304, v{VOUT}")
    a(f"v_lshrrev_b32 v{t+4}, 4, v{L}")
    a(f"v_lshl_add_u32 v{VOUT}, v{t+4}, 3, v{VOUT}")
    a(f"s_mul_i32 s{S_T0}, s{S_WID}, 5120")
    a(f"s_add_u32 s{S_T0}, s{S_T0}, {SCR}")
    a(f"v_add_u32 v18, s{S_T0}, v{VO}")
    a(f"s_xor_b32 s{S_T1}, s{S_WID}, 4")
    a(f"s_mul_i32 s{S_T1}, s{S_T1}, 5120")
    a(f"s_add_u32 s{S_T1}, s{S_T1}, {SCR}")
    a(f"v_add_u32 v19, s{S_T1}, v{VO}")
    OUT = f"s[{S_OUT}:{S_OUT+3}]"
    def wreads(kap, kh, WF):
        l = []
        for Tn in range(5):
            b = WF + 4*Tn
            if kap >= 16:
                o0 = (kap-16)*8*36*144 + Tn*32
                l.append(f"ds_read_b64_tr_b16 v[{b}:{b+1}], v{AW2} offset:{o0}")
                l.append(f"ds_read_b64_tr_b16 v[{b+2}:{b+3}], v{AW2} offset:{o0+36*144}")
            else:
                o0 = (kap - 9*kh)*5184 + Tn*32
                l.append(f"ds_read_b64_tr_b16 v[{b}:{b+1}], v{AW} offset:{o0}")
                l.append(f"ds_read_b64_tr_b16 v[{b+2}:{b+3}], v{AW} offset:{o0+576}")
        return l
    def loads(kh, slots):
        nl = []
        for jx in slots:
            kap = ORD[kh][jx]
            if kap >= 16:
                a(f"s_add_u32 s{S_T0}, s{S_PR}, {(kap-16)*16*1024}")
                for mt in range(2):
                    for i in range(4):
                        a(f"buffer_load_dword v{OF+36*mt+4*jx+i}, v{VR+mt}, {WS}, s{S_T0} offen offset:{i*1024} sc1")
                nl.append(8)
            else:
                a(f"s_add_u32 s{S_T0}, s{S_PM}, {kap*1024}")
                a(f"s_add_u32 s{S_T1}, s{S_PM}, {kap*1024+16384}")
                a(f"buffer_load_dwordx4 v[{OF+4*jx}:{OF+4*jx+3}], v{VO}, {WS}, s{S_T0} offen sc1")
                a(f"buffer_load_dwordx4 v[{OF+36+4*jx}:{OF+36+4*jx+3}], v{VO}, {WS}, s{S_T1} offen sc1")
                nl.append(2)
        return nl
    def mfm(kh, slots, nl, extra, last_next, novm=False):
        for c, jx in enumerate(slots):
            cur = WF0 if jx % 2 == 0 else WF1
            nxt = WF1 if jx % 2 == 0 else WF0
            a("s_waitcnt lgkmcnt(0)" if novm else f"s_waitcnt vmcnt({sum(nl[c+1:])+extra}) lgkmcnt(0)")
            rs = wreads(ORD[kh][jx+1], kh, nxt) if jx < 8 else []
            ri = 0
            for Tn in range(5):
                for mt in range(2):
                    d = AC + (mt*5+Tn)*4; o = OF + 36*mt + 4*jx
                    cc = "0" if jx == 0 else f"v[{d}:{d+3}]"
                    a(f"v_mfma_f32_16x16x32_bf16 v[{d}:{d+3}], v[{cur+4*Tn}:{cur+4*Tn+3}], v[{o}:{o+3}], {cc}")
                    if ri < len(rs): a(rs[ri]); ri += 1
    def add_out(q, base, Tn, pk):
        for r in range(4): a(f"v_add_f32 v{q+r}, v{q+r}, v{base+4*Tn+r}")
        a(f"v_cvt_pk_bf16_f32 v{pk}, v{q}, v{q+1}")
        a(f"v_cvt_pk_bf16_f32 v{pk+1}, v{q+2}, v{q+3}")
        if Tn == 4:
            a(f"s_mov_b64 s[{S_SAVE}:{S_SAVE+1}], exec")
            a(f"s_mov_b32 exec_hi, 0")
        omod = " nt" if 'ont' in exp else " sc1" if 'osc1' in exp else " sc0 sc1" if 'osc01' in exp else ""
        a(f"buffer_store_dwordx2 v[{pk}:{pk+1}], v{VOUT}, {OUT}, s{S_T5} offen offset:{Tn*32}{omod}")
        if Tn == 4: rest_exec()
    def nloads(kh, slots):
        return [8 if ORD[kh][jx] >= 16 else 2 for jx in slots]
    def validate(kh, slots, younger):
        nl = nloads(kh, slots); first = True
        for c, jx in enumerate(slots):
            a(f"s_waitcnt vmcnt({sum(nl[c+1:])+younger})")
            rr = [OF+4*jx+i for i in range(4)] + [OF+36+4*jx+i for i in range(4)]
            if first:
                a(f"v_max3_u32 v{t+3}, v{rr[0]}, v{rr[1]}, v{rr[2]}"); rr = rr[3:]; first = False
                a(f"v_max_u32 v{t+3}, v{t+3}, v{rr[0]}"); rr = rr[1:]
            for k in range(0, len(rr), 2):
                a(f"v_max3_u32 v{t+3}, v{t+3}, v{rr[k]}, v{rr[k+1]}")
        a(f"v_cmp_eq_u32 vcc, -1, v{t+3}")
        a("s_nop 1")
        a("s_cmp_eq_u64 vcc, 0")
    def probe_addr(kh, slots):
        mains = [jx for jx in slots if ORD[kh][jx] < 16]
        a(f"v_mov_b32 v{t+3}, {ORD[kh][mains[0]]*1024 + 16384 + 1020}")
        a(f"v_lshlrev_b32 v{PA}, 11, v{L}")
        a(f"v_add_u32 v{PA}, v{t+3}, v{PA}")
        return (1 << min(len(mains), 4)) - 1
    def probe_issue(mask):
        save_exec(f"{mask:#x}")
        a(f"buffer_load_dword v{PB}, v{PA}, {WS}, s{S_PM} offen sc1")
        rest_exec()
    def probe_loop(mask, name, first_issued):
        save_exec(f"{mask:#x}")
        a(f"s_mov_b32 s{S_CNT}, 0")
        if first_issued: a(f"s_branch {name}_PW")
        a.lab(name + "_P")
        a(f"buffer_load_dword v{PB}, v{PA}, {WS}, s{S_PM} offen sc1")
        a.lab(name + "_PW")
        a(f"s_add_u32 s{S_CNT}, s{S_CNT}, 1")
        a("s_waitcnt vmcnt(0)")
        a(f"v_cmp_eq_u32 vcc, -1, v{PB}")
        a("s_nop 1")
        a("s_cmp_eq_u64 vcc, 0")
        a(f"s_cbranch_scc1 {name}_PO")
        a(f"s_cmp_lt_u32 s{S_CNT}, 2000000")
        a(f"s_cbranch_scc1 {name}_P")
        a.lab(name + "_PO")
        rest_exec()
    def load_validate_loop(kh, slots, name):
        a(f"s_mov_b32 s{S_N}, 0")
        a.lab(name + "_L")
        loads(kh, slots)
        validate(kh, slots, 0)
        a(f"s_cbranch_scc1 {name}_OK")
        a(f"s_add_u32 s{S_N}, s{S_N}, 1")
        a(f"s_cmp_lt_u32 s{S_N}, 100000")
        a(f"s_cbranch_scc1 {name}_L")
        a.lab(name + "_OK")
    def path(kh):
        K = f"K{kh}"
        G, R = list(range(4)), list(range(4, 9))
        for rd in wreads(ORD[kh][0], kh, WF0): a(rd)
        ts(10)
        a(f"s_lshr_b32 s{S_T0}, 0x55AA, s{S_HP}")
        a(f"s_bitcmp1_b32 s{S_T0}, 0")
        a(f"s_cbranch_scc1 L_SG{K}_GO")
        mk = probe_addr(kh, G)
        probe_loop(mk, f"L_SG{K}", False)
        a.lab(f"L_SG{K}_GO")
        load_validate_loop(kh, G, f"L_SGV{K}")
        mk = probe_addr(kh, R)
        a(f"s_lshr_b32 s{S_T0}, 0x55AA, s{S_HP}")
        a(f"s_bitcmp1_b32 s{S_T0}, 0")
        a(f"s_cbranch_scc0 L_SR{K}_EARLY")
        loads(kh, R)
        mfm(kh, G, [0]*4, 0, None, novm=True)
        ts(9)
        lds_wait(a, f"L_WOB{K}", CNTOA, 8)
        validate(kh, R, 0)
        a(f"s_cbranch_scc1 L_SRV{K}_OK")
        probe_loop(mk, f"L_SS{K}", False)
        a(f"s_branch L_SR{K}_LV")
        a.lab(f"L_SR{K}_EARLY")
        probe_issue(mk)
        mfm(kh, G, [0]*4, 0, None, novm=True)
        ts(9)
        lds_wait(a, f"L_WOA{K}", CNTOA, 8)
        probe_loop(mk, f"L_SR{K}", True)
        a.lab(f"L_SR{K}_LV")
        load_validate_loop(kh, R, f"L_SRV{K}")
        mfm(kh, R, [0]*5, 0, None, novm=True)
        ts(11)
        send = AC + 20 if kh == 0 else AC
        keep = AC if kh == 0 else AC + 20
        a("s_nop 7")
        for Tn in range(5): a(f"ds_write_b128 v18, v[{send+4*Tn}:{send+4*Tn+3}] offset:{Tn*1024}")
        a("s_waitcnt lgkmcnt(0)")
        a("s_barrier")
        for Tn in range(5): a(f"ds_read_b128 v[{OF+4*Tn}:{OF+4*Tn+3}], v19 offset:{Tn*1024}")
        for Tn in range(5):
            a(f"s_waitcnt lgkmcnt({4-Tn})")
            add_out(OF+4*Tn, keep, Tn, OF+20+2*Tn)
    lds_inc(a, CNTOA, save_exec, rest_exec)
    a(f"s_cmp_eq_u32 s{S_HST}, 4")
    a("s_cbranch_scc0 L_P3C0")
    a("s_waitcnt vmcnt(2)")
    a(f"v_mov_b32 v{PF}, v{V_TG+1}")
    a("s_branch L_P3C1")
    a.lab("L_P3C0")
    poll_issue()
    a("s_waitcnt vmcnt(0)")
    a.lab("L_P3C1")
    poll_check("L_POLLC", 0xFFFF)
    if debug_stage == 2:
        a("s_waitcnt vmcnt(0)")
        a("s_branch L_FIN")
        return
    a(f"s_cmp_eq_u32 s{S_HEAD}, 0")
    a("s_cbranch_scc0 L_P3K1")
    path(0)
    a("s_branch L_FIN")
    a.lab("L_P3K1")
    path(1)
    a(f"s_cmp_lg_u32 s{S_HP}, 0")
    a("s_cbranch_scc1 L_FIN")
    a(f"s_cmp_lg_u32 s{S_WID}, 4")
    a("s_cbranch_scc1 L_FIN")
    a(f"v_mov_b32 v{t}, 0")
    a(f"v_mov_b32 v{t+1}, s{S_TAGO}")
    a(f"s_mov_b64 exec, 1")
    a(f"buffer_store_dword v{t+1}, v{t}, {WS}, s{S_OFS} offen sc1")

if __name__ == "__main__":
    import argparse
    p = argparse.ArgumentParser(); p.add_argument("--debug", type=int, default=0)
    p.add_argument("--timing", action="store_true"); p.add_argument("--exp", default=""); p.add_argument("-o", default="/dev/stdout")
    args = p.parse_args()
    open(args.o, "w").write(gen(args.debug, args.timing, args.exp))
```

```python
import sys, math, struct

NAME = "concat_heads__sliding_block__sliding_block__prompt"

STAGE   = 49152
WO_BASE = 0
KV_OWN  = 82944
KV_HALO = 119808
Q_BASE  = 119808
MISC    = 156672
TAGS_LDS = MISC + 2048
CNT2, CNT1, CNTQ, CNTOB, CNTOA = TAGS_LDS+12, TAGS_LDS+16, TAGS_LDS+20, TAGS_LDS+24, TAGS_LDS+28
LDS_TOTAL = 163840
TILE    = 4608
QTILE   = 2304
WS_KV   = 0
WS_O    = 256*36864
WS_OR   = WS_O + 16*262144
WS_FLAG = WS_OR + 16*32768
WS_OF   = WS_FLAG + 65536
TIMING_OFF = 24<<20
TAG_INC = 0x9E3779B1
NEG     = 0xFF61B1E6
QSCALE  = (18.0 ** -0.5) * math.log2(math.e)
def f32bits(x): return struct.unpack("<I", struct.pack("<f", x))[0]

class Asm:
    def __init__(self): self.l = []
    def __call__(self, s=""):
        for line in s.split("\n"):
            self.l.append("  " + line.strip())
    def lab(self, n): self.l.append(n + ":")
    def c(self, s): self.l.append("  ; " + s)
    def text(self): return "\n".join(self.l) + "\n"

S_X, S_W, S_WO, S_WS, S_OUT = 8, 12, 16, 20, 24
S_B, S_S, S_HP, S_WID = 28, 29, 30, 31
S_T0, S_T1, S_T2, S_T3, S_T4, S_T5 = 32, 33, 34, 35, 36, 37
S_I = 38
S_L = 39
S_TAGIN, S_TAGOUT, S_TAGO = 40, 41, 42
S_K, S_C, S_SB, S_XB, S_WB = 43, 44, 45, 46, 47
S_LX, S_LW = 48, 49
S_N = 50
S_U = 51
S_RET = 52
S_IDX, S_GRP, S_HEAD, S_M = 54, 55, 56, 57
S_SAVE = 58
S_CNT = 60
S_HOOK = 61
S_BAD = 62
S_RET2 = 64
S_MB = 66
S_HST = 67
S_H0, S_H1 = 68, 69
S_E = 98
S_SO, S_FI = 99, 100
S_OM, S_OR, S_OFS = 6, 7, 5

V_LANE = 1
T = 2
V_AX = 10
V_AW = 12
V_MASK = 20
V_SET0, V_SET1, V_ACC = 36, 80, 124
V_LDX, V_LDW = 36, 44
V_TG = 236
B_K, B_KR, B_V, MK_V = 240, 241, 242, 243
vEK, vEQ, vEV, vE6, vDr, vDt, vF, vC = 244, 245, 246, 247, 248, 249, 250, 252
V_TL = 254
QA_M, QA_R, QB_M, QB_R = 36, 40, 44, 48
OA, OB = 52, 68
VS, VE, VP = 84, 100, 116
VKF, VKR, VVA, VVB = 124, 128, 132, 136
A_K, A_KR, A_V, ST_V, ST_K = 10, 11, 12, 13, 14
VH = 140
V_WOV = 180
V_OA1, V_OA2 = 188, 189
V_PA = 184

def emit_masks_(a):
    t = T; L = V_LANE
    a(f"v_and_b32 v{t}, 31, v{L}")
    a(f"v_lshrrev_b32 v{t+1}, 5, v{L}")
    a(f"v_lshlrev_b32 v{t+1}, 2, v{t+1}")
    a(f"v_sub_u32 v{t}, v{t}, v{t+1}")
    a(f"v_mov_b32 v{t+1}, {NEG:#x}")
    for r in range(16):
        jj = (r & 3) + 8*(r >> 2)
        a(f"v_cmp_le_i32 vcc, {jj}, v{t}")
        a("s_nop 1")
        a(f"v_cndmask_b32_e64 v{V_MASK+r}, v{t+1}, 0, vcc")
def emit_p2_patterns_(a):
    t = T; L = V_LANE
    a(f"v_and_b32 v{t}, 31, v{L}")
    a(f"v_lshrrev_b32 v{t+1}, 5, v{L}")
    a(f"v_lshrrev_b32 v{t+2}, 2, v{t}")
    a(f"v_lshrrev_b32 v{t+3}, 3, v{t}")
    a(f"v_xor_b32 v{t+2}, v{t+2}, v{t+3}")
    a(f"v_xor_b32 v{t+2}, v{t+2}, v{t+1}")
    a(f"v_and_b32 v{t+2}, 1, v{t+2}")
    a(f"v_lshlrev_b32 v{t+2}, 4, v{t+2}")
    a(f"v_lshl_add_u32 v{t+2}, v{t}, 5, v{t+2}")
    a(f"s_lshl_b32 s{S_T0}, s{S_HEAD}, 10")
    a(f"v_add_u32 v{B_K}, s{S_T0}, v{t+2}")
    a(f"v_lshlrev_b32 v{B_KR}, 3, v{t}")
    a(f"v_add_u32 v{B_KR}, 2048, v{B_KR}")
    a(f"v_bfe_u32 v{t+2}, v{L}, 2, 2")
    a(f"v_lshl_add_u32 v{t+2}, v{t+1}, 2, v{t+2}")
    a(f"v_mul_u32_u24 v{t+2}, 72, v{t+2}")
    a(f"v_add_u32 v{t+2}, 2304, v{t+2}")
    a(f"v_and_b32 v{t+3}, 3, v{L}")
    a(f"v_lshlrev_b32 v{t+4}, 3, v{t+3}")
    a(f"s_mul_i32 s{S_T0}, s{S_HEAD}, 40")
    a(f"v_add3_u32 v{t+4}, v{t+4}, v{t+2}, s{S_T0}")
    a(f"v_add_u32 v{t+5}, 32, v{t+2}")
    a(f"v_bfe_u32 v{t+6}, v{L}, 4, 1")
    a(f"v_cmp_eq_u32 vcc, 1, v{t+6}")
    a(f"v_lshrrev_b32 v{t+7}, 1, v{t+3}")
    a(f"v_and_b32 v{t+7}, v{t+7}, v{t+6}")
    a(f"v_cndmask_b32 v{B_V}, v{t+4}, v{t+5}, vcc")
    a(f"v_cmp_eq_u32 vcc, 1, v{t+7}")
    a(f"v_mov_b32 v{t+5}, {MISC}")
    a(f"v_mov_b32 v{t+6}, -1")
    a(f"v_cndmask_b32 v{B_V}, v{B_V}, v{t+5}, vcc")
    a(f"v_cndmask_b32_e64 v{MK_V}, v{t+6}, 0, vcc")


def gen(debug_stage=0, timing=False, exp=''):
    a = Asm()
    t = T; L = V_LANE
    def ts(i, force=False):
        if timing and (('tsk' not in exp and 'tse' not in exp) or force or i in (0, 2, 3, 4) or ('tsk' in exp and i in (8, 9, 10, 11))): a(f"{'s_memrealtime' if ('abs' in exp or 'hdbg' in exp) else 's_memtime'} s[{70+2*i}:{71+2*i}]")
    WS = f"s[{S_WS}:{S_WS+3}]"
    def save_exec(val):
        a(f"s_mov_b64 s[{S_SAVE}:{S_SAVE+1}], exec")
        a(f"s_mov_b64 exec, {val}")
    def rest_exec():
        a(f"s_mov_b64 exec, s[{S_SAVE}:{S_SAVE+1}]")

    hdr = """; concat_heads(A,B): fused QKV projection + sliding-window attention (W=256, 32 heads x 18) + output projection, bf16, gfx950.
;   phase 3  output projection; the attention outputs of all heads are exchanged through d_ws (sentinel-validated hand-off)"""
    a.l += hdr.split("\n") + [f"; @launch grid=(256,1,1) block=(512,1,1) lds={LDS_TOTAL}"]
    a(f""".amdgcn_target "amdgcn-amd-amdhsa--gfx950"
.text
.globl {NAME}_kernel
.p2align 8
.type {NAME}_kernel,@function""")
    a.lab(f"{NAME}_kernel")
    a("s_cmp_ge_u32 s2, 256")
    a("s_cbranch_scc1 L_END")
    a(f"s_and_b32 s3, s2, 7")
    if 'xmap' in exp or 'xm2' in exp:
        a(f"s_bfe_u32 s{S_B}, s3, 0x10001")
    else:
        a(f"s_lshr_b32 s{S_B}, s3, 2")
    a(f"s_mul_i32 s{S_T0}, s{S_B}, 24")
    a(f"s_add_u32 s4, s0, s{S_T0}")
    a(f"s_addc_u32 s5, s1, 0")
    a(f"s_load_dwordx2 s[{S_X}:{S_X+1}], s[4:5], 0")
    a(f"s_load_dwordx2 s[{S_W}:{S_W+1}], s[4:5], 8")
    a(f"s_load_dwordx2 s[{S_WO}:{S_WO+1}], s[4:5], 16")
    a(f"s_load_dwordx2 s[{S_OUT}:{S_OUT+1}], s[0:1], 48")
    a(f"s_load_dwordx2 s[{S_WS}:{S_WS+1}], s[0:1], 64")
    if timing:
        for i in range(13): a(f"s_mov_b32 s{70+2*i}, 0")
    ts(0)
    a(f"s_lshr_b32 s{S_I}, s2, 3")
    if 'xm2' in exp:
        a(f"s_and_b32 s{S_T2}, s3, 1")
        a(f"s_lshl_b32 s{S_T2}, s{S_T2}, 2")
        a(f"s_and_b32 s{S_T3}, s{S_I}, 3")
        a(f"s_add_u32 s{S_S}, s{S_T2}, s{S_T3}")
        a(f"s_lshr_b32 s{S_T4}, s{S_I}, 2")
        a(f"s_cmp_lt_u32 s3, 4")
        a(f"s_cselect_b32 s{S_T2}, 1, 9")
        a(f"s_add_u32 s{S_T2}, s{S_T2}, s{S_T4}")
        a(f"s_and_b32 s{S_HP}, s{S_T2}, 15")
    elif 'xmap' in exp:
        a(f"s_and_b32 s{S_T2}, s3, 1")
        a(f"s_lshl_b32 s{S_T2}, s{S_T2}, 2")
        a(f"s_and_b32 s{S_T3}, s{S_I}, 3")
        a(f"s_add_u32 s{S_S}, s{S_T2}, s{S_T3}")
        a(f"s_lshr_b32 s{S_T4}, s{S_I}, 2")
        a(f"s_cmp_lt_u32 s3, 4")
        a(f"s_mov_b32 s{S_T2}, 0xFDB96420")
        a(f"s_cselect_b32 s{S_T2}, 0xECA87531, s{S_T2}")
        a(f"s_lshl_b32 s{S_T0}, s{S_T4}, 2")
        a(f"s_lshr_b32 s{S_T2}, s{S_T2}, s{S_T0}")
        a(f"s_and_b32 s{S_HP}, s{S_T2}, 15")
    else:
        a(f"s_lshr_b32 s{S_T2}, s3, 1")
        a(f"s_and_b32 s{S_T2}, s{S_T2}, 1")
        a(f"s_lshl_b32 s{S_T2}, s{S_T2}, 2")
        a(f"s_and_b32 s{S_T3}, s{S_I}, 3")
        a(f"s_add_u32 s{S_S}, s{S_T2}, s{S_T3}")
        a(f"s_and_b32 s{S_T2}, s3, 1")
        a(f"s_lshl_b32 s{S_T2}, s{S_T2}, 3")
        a(f"s_lshr_b32 s{S_T4}, s{S_I}, 2")
        a(f"s_add_u32 s{S_HP}, s{S_T2}, s{S_T4}")
    a(f"s_lshl_b32 s{S_T3}, s{S_T3}, 1")
    a(f"s_add_u32 s{S_C}, s{S_T4}, s{S_T3}")
    a(f"s_cmp_ge_u32 s{S_C}, 9")
    a(f"s_cselect_b32 s{S_T3}, 9, 0")
    a(f"s_sub_u32 s{S_C}, s{S_C}, s{S_T3}")
    if 'norot' in exp: a(f"s_mov_b32 s{S_C}, 0")
    for key, mul in (('rot2', 2), ('rot3', 3)):
        if key in exp or (key == 'rot2' and 'rot' not in exp):
            a(f"s_lshr_b32 s{S_C}, s{S_T4}, 1")
            a(f"s_and_b32 s{S_T3}, s{S_I}, 3")
            a(f"s_add_u32 s{S_C}, s{S_C}, s{S_T3}")
            a(f"s_mul_i32 s{S_C}, s{S_C}, {mul}")
            for _ in range(2):
                a(f"s_cmp_ge_u32 s{S_C}, 9")
                a(f"s_cselect_b32 s{S_T3}, 9, 0")
                a(f"s_sub_u32 s{S_C}, s{S_C}, s{S_T3}")
    for key, sh in (('ro1', 0), ('ro2', 1)):
        if key in exp:
            a(f"s_lshr_b32 s{S_T3}, s3, {sh}")
            a(f"s_and_b32 s{S_T3}, s{S_T3}, 1")
            a(f"s_add_u32 s{S_C}, s{S_C}, s{S_T3}")
            a(f"s_cmp_ge_u32 s{S_C}, 9")
            a(f"s_cselect_b32 s{S_T3}, 9, 0")
            a(f"s_sub_u32 s{S_C}, s{S_C}, s{S_T3}")
    if 'rot4' in exp:
        a(f"s_lshr_b32 s{S_C}, s{S_T4}, 2")
        a(f"s_and_b32 s{S_T3}, s{S_I}, 3")
        a(f"s_lshr_b32 s{S_T3}, s{S_T3}, 1")
        a(f"s_add_u32 s{S_C}, s{S_C}, s{S_T3}")
        a(f"s_mul_i32 s{S_C}, s{S_C}, 3")
    a(f"s_lshl_b32 s{S_T0}, s{S_B}, 4")
    a(f"s_add_u32 s{S_T0}, s{S_T0}, s{S_HP}")
    a(f"s_lshl_b32 s{S_T0}, s{S_T0}, 3")
    a(f"s_add_u32 s{S_IDX}, s{S_T0}, s{S_S}")
    a(f"s_lshl_b32 s{S_T0}, s{S_B}, 3")
    a(f"s_add_u32 s{S_GRP}, s{S_T0}, s{S_S}")
    a(f"v_lshrrev_b32 v{t}, 6, v0")
    a(f"v_and_b32 v{L}, 63, v0")
    a(f"v_readfirstlane_b32 s{S_WID}, v{t}")
    for (r, n) in ((S_X, 2359296), (S_W, 1990656), (S_WO, 663552), (S_WS, 268435456), (S_OUT, 4718592)):
        a(f"s_mov_b32 s{r+2}, {n}")
        a(f"s_mov_b32 s{r+3}, 0x00020000")
    a(f"s_and_b32 s{S_M}, s{S_WID}, 3")
    a(f"s_lshr_b32 s{S_HEAD}, s{S_WID}, 2")
    a(f"s_sub_u32 s{S_MB}, 7, s{S_M}")
    a(f"s_lshl_b32 s{S_T0}, s{S_GRP}, 18")
    a(f"s_add_u32 s{S_T0}, s{S_T0}, {WS_O}")
    a(f"s_lshl_b32 s{S_T1}, s{S_HP}, 10")
    a(f"s_lshl_b32 s{S_T2}, s{S_HEAD}, 9")
    a(f"s_add_u32 s{S_T1}, s{S_T1}, s{S_T2}")
    a(f"s_add_u32 s{S_OM}, s{S_T1}, s{S_T0}")
    a(f"s_lshl_b32 s{S_T0}, s{S_GRP}, 15")
    a(f"s_add_u32 s{S_T0}, s{S_T0}, {WS_OR}")
    a(f"s_lshl_b32 s{S_T1}, s{S_HP}, 1")
    a(f"s_add_u32 s{S_T1}, s{S_T1}, s{S_HEAD}")
    a(f"s_lshl_b32 s{S_T1}, s{S_T1}, 10")
    a(f"s_add_u32 s{S_OR}, s{S_T1}, s{S_T0}")
    a(f"s_lshl_b32 s{S_OFS}, s{S_GRP}, 12")
    a(f"s_add_u32 s{S_OFS}, s{S_OFS}, {WS_OF}")
    a(f"s_cmp_lt_u32 s{S_WID}, 4")
    a("s_cbranch_scc1 L_COMPUTE")

    emit_masks = lambda: emit_masks_(a)
    emit_p2_patterns = lambda: emit_p2_patterns_(a)

    a(f"s_sub_u32 s{S_L}, s{S_WID}, 4")
    a(f"v_lshrrev_b32 v{t}, 3, v{L}")
    a(f"v_mul_u32_u24 v{t}, 1152, v{t}")
    a(f"v_lshrrev_b32 v{t+1}, 4, v{L}")
    a(f"v_and_b32 v{t+2}, 7, v{L}")
    a(f"v_xor_b32 v{t+3}, v{t+2}, v{t+1}")
    a(f"v_lshl_add_u32 v{V_AX}, v{t+3}, 4, v{t}")
    a(f"v_xor_b32 v{t+3}, 4, v{t+3}")
    a(f"v_lshl_add_u32 v{V_AX+1}, v{t+3}, 4, v{t}")
    a(f"s_mul_i32 s{S_T0}, s{S_HP}, 72")
    a(f"s_and_b32 s{S_T0}, s{S_T0}, 0xfffffff0")
    a(f"v_and_b32 v{t+2}, 15, v{L}")
    a(f"v_mul_u32_u24 v{t+4}, 3456, v{t+1}")
    a(f"v_add_u32 v{t+4}, s{S_T0}, v{t+4}")
    for var in range(2):
        a(f"v_lshlrev_b32 v{t+3}, 1, v{t+1}")
        a(f"v_sub_u32 v{t+3}, v{t+2}, v{t+3}")
        if var: a(f"v_subrev_u32 v{t+3}, 8, v{t+3}")
        a(f"v_and_b32 v{t+3}, 15, v{t+3}")
        a(f"v_min_u32 v{t+3}, 14, v{t+3}")
        a(f"v_mul_u32_u24 v{t+5}, 13, v{t+3}")
        a(f"v_lshrrev_b32 v{t+5}, 6, v{t+5}")
        a(f"v_mul_u32_u24 v{t+6}, 5, v{t+5}")
        a(f"v_sub_u32 v{t+6}, v{t+3}, v{t+6}")
        a(f"v_mul_u32_u24 v{t+5}, 1152, v{t+5}")
        a(f"v_lshl_add_u32 v{t+6}, v{t+6}, 4, v{t+5}")
        a(f"v_add_u32 v{V_AX+2+var}, v{t+4}, v{t+6}")
    for i in range(8):
        a(f"v_add_u32 v{V_LDX+i}, {i*9216-(i&3)*1024}, v{V_AX+(i&1)}")
    for i in range(4):
        a(f"v_add_u32 v{V_LDW+i}, {i*4*3456-i*1024}, v{V_AX+2+(i>>1)}")
    a(f"s_lshl_b32 s{S_T0}, s{S_S}, 8")
    a(f"s_lshl_b32 s{S_T1}, s{S_L}, 6")
    a(f"s_add_u32 s{S_T0}, s{S_T0}, s{S_T1}")
    a(f"s_mul_i32 s{S_XB}, s{S_T0}, 1152")
    a(f"s_mul_i32 s{S_WB}, s{S_L}, {16*3456}")
    a(f"s_lshl_b32 s{S_LX}, s{S_L}, 13")
    a(f"s_lshl_b32 s{S_LW}, s{S_L}, 12")
    a(f"s_add_u32 s{S_LW}, s{S_LW}, 32768")
    a(f"s_mov_b32 s{S_SB}, 0")
    def chunk_pre():
        a(f"s_lshl_b32 s{S_T0}, s{S_C}, 7")
        a(f"s_add_u32 s{S_T0}, s{S_T0}, s{S_XB}")
        a(f"s_mul_i32 s{S_T1}, s{S_C}, {64*3456}")
        a(f"s_add_u32 s{S_T1}, s{S_T1}, s{S_WB}")
        a(f"s_add_u32 s{S_T2}, s{S_SB}, s{S_LW}")
        a(f"s_add_u32 s{S_T3}, s{S_SB}, s{S_LX}")
        a(f"s_add_u32 s{S_C}, s{S_C}, 1")
        a(f"s_cmp_eq_u32 s{S_C}, 9")
        a(f"s_cselect_b32 s{S_C}, 0, s{S_C}")
        a(f"s_add_u32 s{S_SB}, s{S_SB}, {STAGE}")
        a(f"s_cmp_eq_u32 s{S_SB}, {3*STAGE}")
        a(f"s_cselect_b32 s{S_SB}, 0, s{S_SB}")
    def chunk_w():
        a(f"s_mov_b32 m0, s{S_T2}")
        a("s_nop 0")
        for i in range(4):
            a(f"buffer_load_dwordx4 v{V_LDW+i}, s[{S_W}:{S_W+3}], s{S_T1} offen offset:{i*1024} lds")
    def chunk_x(lo, hi):
        for i in range(lo, hi):
            if i == lo or i == 4:
                a(f"s_add_u32 m0, s{S_T3}, {(i&~3)*1024}")
                a("s_nop 0")
            a(f"buffer_load_dwordx4 v{V_LDX+i}, s[{S_X}:{S_X+3}], s{S_T0} offen offset:{(i&3)*1024} lds")
    chunk_pre()
    a("s_waitcnt lgkmcnt(0)")
    if 'xfirst' in exp:
        chunk_x(0, 8); chunk_w()
    else:
        chunk_w(); chunk_x(0, 8)
    chunk_pre()
    if 'c1p0' in exp:
        a("s_waitcnt vmcnt(0)")
        a("s_barrier")
        chunk_w(); chunk_x(0, 8)
    elif 'c1p4' in exp:
        chunk_w()
        a("s_waitcnt vmcnt(4)")
        a("s_barrier")
        chunk_x(0, 8)
    elif 'c1p8' in exp:
        chunk_w(); chunk_x(0, 4)
        a("s_waitcnt vmcnt(8)")
        a("s_barrier")
        chunk_x(4, 8)
    else:
        chunk_w(); chunk_x(0, 2)
        a("s_waitcnt vmcnt(6)")
        a("s_barrier")
        chunk_x(2, 8)
    chunk_pre()
    a(f"s_mov_b32 s{S_K}, 2")
    if 'g2' in exp:
        a(f"s_lshr_b32 s{S_T4}, 0x55AA, s{S_HP}")
        a(f"s_bitcmp1_b32 s{S_T4}, 0")
        a("s_cbranch_scc1 L_LD")
        a.lab("L_LDG")
        a("s_waitcnt vmcnt(0)")
        a("s_barrier")
        chunk_w(); chunk_x(0, 8)
        chunk_pre()
        a(f"s_add_u32 s{S_K}, s{S_K}, 1")
        a(f"s_cmp_lt_u32 s{S_K}, 9")
        a("s_cbranch_scc1 L_LDG")
        a("s_branch L_LDE")
    a.lab("L_LD")
    chunk_w(); chunk_x(0, 8)
    chunk_pre()
    a(f"s_add_u32 s{S_K}, s{S_K}, 1")
    a(f"s_cmp_lt_u32 s{S_K}, 9")
    a("s_waitcnt vmcnt(12)")
    a("s_barrier")
    a("s_cbranch_scc1 L_LD")
    a.lab("L_LDE")
    a(f"s_lshl_b32 s{S_T0}, s{S_L}, 6")
    a(f"v_add_u32 v{t}, s{S_T0}, v{L}")
    a(f"v_mul_u32_u24 v{t+1}, 7282, v{t}")
    a(f"v_lshrrev_b32 v{t+1}, 16, v{t+1}")
    a(f"v_mul_u32_u24 v{t+2}, 9, v{t+1}")
    a(f"v_sub_u32 v{t+2}, v{t}, v{t+2}")
    a(f"v_mul_u32_u24 v{t+1}, 1152, v{t+1}")
    a(f"v_lshl_add_u32 v{t+1}, v{t+2}, 7, v{t+1}")
    a(f"s_mul_i32 s{S_T0}, s{S_I}, {18*1152}")
    a(f"v_cmp_gt_u32 vcc, 162, v{t}")
    a(f"v_cndmask_b32_e64 v{t+1}, 0, v{t+1}, vcc")
    a(f"buffer_load_dword v255, v{t+1}, s[{S_WO}:{S_WO+3}], s{S_T0} offen")
    emit_masks()
    emit_p2_patterns()
    a(f"v_mul_u32_u24 v{t+1}, 7282, v{L}")
    a(f"v_lshrrev_b32 v{t+1}, 16, v{t+1}")
    a(f"v_mul_u32_u24 v{t+2}, 9, v{t+1}")
    a(f"v_sub_u32 v{t+2}, v{L}, v{t+2}")
    a(f"v_mul_u32_u24 v{t+1}, 1152, v{t+1}")
    a(f"v_lshl_add_u32 v{t+1}, v{t+2}, 4, v{t+1}")
    a(f"s_and_b32 s{S_T0}, s{S_HP}, 7")
    a(f"s_mul_i32 s{S_T0}, s{S_T0}, 144")
    a(f"v_add_u32 v{V_WOV}, s{S_T0}, v{t+1}")
    for j in range(1, 4): a(f"v_add_u32 v{V_WOV+j}, {j*(8064-1008)}, v{V_WOV}")
    a(f"s_mul_i32 s{S_T0}, s{S_L}, {21*1008}")
    a(f"s_mul_i32 s{S_T1}, s{S_L}, {21*8064}")
    a("s_waitcnt vmcnt(1)")
    a("s_barrier")
    WO = f"s[{S_WO}:{S_WO+3}]"
    NW1 = 8 if 'wo8' not in exp else 4
    a(f"s_bitset0_b64 exec, 63")
    for j in range(21):
        if j == NW1:
            a(f"s_mov_b64 exec, -1")
            a("s_barrier")
            a(f"s_bitset0_b64 exec, 63")
        if j == 19:
            a(f"s_cmp_eq_u32 s{S_L}, 3")
            a("s_cbranch_scc0 L_WO_N")
            a(f"s_mov_b64 exec, 0x3ffff")
            a(f"buffer_load_dwordx4 v{V_WOV+(j&3)}, {WO}, s{S_T2} offen offset:{(j&3)*1008} lds")
            a("s_branch L_WO_DONE")
            a.lab("L_WO_N")
        if j % 4 == 0:
            a(f"s_add_u32 m0, s{S_T0}, {j*1008}")
            a(f"s_add_u32 s{S_T2}, s{S_T1}, {j*8064}")
        a(f"buffer_load_dwordx4 v{V_WOV+(j&3)}, {WO}, s{S_T2} offen offset:{(j&3)*1008} lds")
    a.lab("L_WO_DONE")
    a(f"s_mov_b64 exec, -1")
    for r in range(16):
        a(f"v_mov_b32 v{OA+r}, 0")
        a(f"v_mov_b32 v{OB+r}, 0")
    a(f"v_lshlrev_b32 v{V_PA}, 4, v{L}")
    a(f"s_lshl_b32 s{S_T0}, s{S_L}, 10")
    a(f"v_add_u32 v{V_PA}, s{S_T0}, v{V_PA}")
    a(f"v_add_u32 v{V_PA+1}, {KV_OWN}, v{V_PA}")
    a(f"s_mul_i32 s{S_T1}, s{S_IDX}, 36864")
    a("s_barrier")
    if 'tse' in exp: ts(7, True)
    a(f"s_cmp_eq_u32 s{S_S}, 7")
    a("s_cbranch_scc1 L_NOPUB")
    order = [8, 7, 6, 5, 4, 3, 2, 1, 0]
    for c, i in enumerate(order):
        a(f"ds_read_b128 v[{VH+4*c}:{VH+4*c+3}], v{V_PA+1} offset:{i*4096}")
    for c, i in enumerate(order[:5]):
        a(f"s_waitcnt lgkmcnt({8-c})")
        a(f"s_add_u32 s{S_T2}, s{S_T1}, {i*4096}")
        a(f"buffer_store_dwordx4 v[{VH+4*c}:{VH+4*c+3}], v{V_PA}, {WS}, s{S_T2} offen sc1")
    a.lab("L_NOPUB")
    a("s_branch L_P2")

    a.lab("L_COMPUTE")
    if 'dry' in exp and 'nodry' not in exp:
        emit_p2_patterns()
        a(f"s_mov_b32 s{S_U}, 0")
        a(f"s_mov_b32 s{S_HOOK}, 100000")
        set_run(a, KV_OWN, None, [f"s_mov_b32 s{S_N}, 3"], TILE)
        a(f"s_bitcmp1_b32 s{S_WID}, 0")
        a("s_cbranch_scc1 L_DRYB")
        a(f"s_call_b64 s[{S_RET}:{S_RET+1}], L_RUNA")
        a("s_branch L_DRYE")
        a.lab("L_DRYB")
        a(f"s_call_b64 s[{S_RET}:{S_RET+1}], L_RUNB")
        a.lab("L_DRYE")
        a("s_waitcnt lgkmcnt(0)")
    a(f"v_and_b32 v{t}, 15, v{L}")
    a(f"v_lshrrev_b32 v{t+1}, 4, v{L}")
    a(f"v_lshrrev_b32 v{t+2}, 1, v{t}")
    a(f"s_lshl_b32 s{S_T0}, s{S_WID}, 6")
    a(f"v_add_u32 v{t+3}, s{S_T0}, v{t}")
    a(f"v_lshlrev_b32 v{t+3}, 7, v{t+3}")
    a(f"v_xor_b32 v{t+4}, v{t+1}, v{t+2}")
    a(f"v_lshlrev_b32 v{t+5}, 4, v{t+4}")
    a(f"v_add_u32 v{V_AX}, v{t+3}, v{t+5}")
    a(f"v_xor_b32 v{t+4}, 4, v{t+4}")
    a(f"v_lshlrev_b32 v{t+5}, 4, v{t+4}")
    a(f"v_add_u32 v{V_AX+1}, v{t+3}, v{t+5}")
    a(f"v_bfe_u32 v{t}, v{L}, 2, 2")
    a(f"v_and_b32 v{t+2}, 3, v{L}")
    a(f"v_and_b32 v{t+3}, 1, v{t+1}")
    a(f"v_lshl_add_u32 v{t+3}, v{t+3}, 2, v{t}")
    a(f"v_lshlrev_b32 v{t+3}, 5, v{t+3}")
    a(f"v_lshl_add_u32 v{t+4}, v{t+1}, 3, v{t}")
    a(f"v_lshlrev_b32 v{t+4}, 8, v{t+4}")
    a(f"v_add_u32 v{t+4}, 32768, v{t+4}")
    a(f"v_lshlrev_b32 v{t+5}, 3, v{t+2}")
    a(f"s_and_b32 s{S_T1}, s{S_HP}, 1")
    a(f"s_lshl_b32 s{S_T1}, s{S_T1}, 3")
    a(f"v_add3_u32 v{t+5}, v{t+5}, v{t+3}, s{S_T1}")
    for Tn in range(6):
        off = 80*(Tn >> 1) + (40 if Tn & 1 else 0)
        a(f"v_add_u32 v{t+6}, {off}, v{t+5}")
        a(f"v_and_b32 v{t+6}, 255, v{t+6}")
        a(f"v_add_u32 v{V_AW+Tn}, v{t+4}, v{t+6}")
    a(f"v_min_u32 v{t+6}, 2, v{t+2}")
    a(f"v_mul_u32_u24 v{t+6}, 80, v{t+6}")
    a(f"v_add3_u32 v{t+6}, v{t+6}, v{t+3}, s{S_T1}")
    a(f"v_add_u32 v{t+6}, 32, v{t+6}")
    a(f"v_and_b32 v{t+6}, 255, v{t+6}")
    a(f"v_add_u32 v{V_AW+6}, v{t+4}, v{t+6}")
    a(f"v_and_b32 v{t}, 15, v{L}")
    a(f"v_lshrrev_b32 v{t+1}, 4, v{L}")
    a(f"v_and_b32 v{t+2}, 1, v{t+1}")
    a(f"v_lshl_add_u32 v{t+2}, v{t+2}, 4, v{t}")
    a(f"v_lshrrev_b32 v{t+3}, 2, v{t}")
    a(f"v_lshrrev_b32 v{t+4}, 3, v{t}")
    a(f"v_xor_b32 v{t+3}, v{t+3}, v{t+4}")
    a(f"v_lshrrev_b32 v{t+4}, 1, v{t+1}")
    a(f"v_xor_b32 v{t+3}, v{t+3}, v{t+4}")
    a(f"v_and_b32 v{t+3}, 1, v{t+3}")
    a(f"v_lshlrev_b32 v{t+3}, 4, v{t+3}")
    a(f"v_lshl_add_u32 v{t+3}, v{t+2}, 5, v{t+3}")
    a(f"s_mul_i32 s{S_T0}, s{S_WID}, {2*TILE}")
    a(f"s_add_u32 s{S_T0}, s{S_T0}, {KV_OWN}")
    a(f"s_mul_i32 s{S_T1}, s{S_WID}, {2*QTILE}")
    a(f"s_add_u32 s{S_T1}, s{S_T1}, {Q_BASE}")
    a(f"v_add_u32 v{vEK}, s{S_T0}, v{t+3}")
    a(f"v_add_u32 v{vEQ}, s{S_T1}, v{t+3}")
    a(f"v_mul_u32_u24 v{t+4}, 72, v{t}")
    a(f"v_lshl_add_u32 v{t+5}, v{t+1}, 3, v{t+4}")
    a(f"v_add_u32 v{t+5}, 2304, v{t+5}")
    a(f"v_add_u32 v{vEV}, s{S_T0}, v{t+5}")
    a(f"v_lshlrev_b32 v{t+5}, 3, v{t}")
    a(f"v_add_u32 v{t+5}, 2048, v{t+5}")
    a(f"v_add_u32 v{t+6}, s{S_T1}, v{t+5}")
    a(f"v_add_u32 v{t+7}, s{S_T0}, v{t+5}")
    a(f"v_add_u32 v{t+4}, {2304+32}, v{t+4}")
    a(f"v_add_u32 v{t+4}, s{S_T0}, v{t+4}")
    a(f"v_mov_b32 v{vDr}, 128")
    a(f"v_mov_b32 v{vDt}, {TILE}")
    a(f"v_mov_b32 v{vF}, 1.0")
    a(f"v_mov_b32 v{vE6}, v{t+7}")
    a(f"v_cmp_eq_u32 vcc, 0, v{t+1}")
    a(f"v_mov_b32 v{t+5}, {QTILE}")
    a(f"v_mov_b32 v{vC}, {f32bits(QSCALE):#x}")
    a(f"v_cndmask_b32 v{vE6}, v{vE6}, v{t+6}, vcc")
    a(f"v_cndmask_b32 v{vDt}, v{vDt}, v{t+5}, vcc")
    a(f"v_cndmask_b32 v{vF}, v{vF}, v{vC}, vcc")
    a(f"v_cmp_eq_u32 vcc, 2, v{t+1}")
    a(f"v_mov_b32 v{t+5}, 1152")
    a(f"v_mov_b32 v{vC+1}, v{vC}")
    a(f"v_cndmask_b32 v{vE6}, v{vE6}, v{t+4}, vcc")
    a(f"v_cndmask_b32 v{vDr}, v{vDr}, v{t+5}, vcc")
    a(f"v_mov_b32 v{vF+1}, v{vF}")
    a("s_waitcnt lgkmcnt(0)")
    if 'nocp' not in exp:
        a(f"s_cmp_lg_u32 s{S_WID}, 3")
        a("s_cbranch_scc1 L_NOCP")
        a(f"s_getpc_b64 s[{S_RET}:{S_RET+1}]")
        a.lab("L_PCREF")
        a(f"s_sub_u32 s{S_RET}, s{S_RET}, L_PCREF-{NAME}_kernel")
        a(f"s_subb_u32 s{S_RET+1}, s{S_RET+1}, 0")
        a(f"s_mul_i32 s{S_T0}, s{S_I}, {5*128}")
        a(f"v_lshlrev_b32 v{t}, 7, v{L}")
        a(f"v_add_u32 v{t}, s{S_T0}, v{t}")
        a(f"s_mov_b32 s{S_T1}, L_END-{NAME}_kernel")
        a(f"v_cmp_gt_u32 vcc, s{S_T1}, v{t}")
        a(f"s_and_b64 vcc, vcc, 31")
        a(f"s_and_saveexec_b64 s[{S_SAVE}:{S_SAVE+1}], vcc")
        a("s_cbranch_execz L_NOCP2")
        a(f"global_load_dword v{V_TL}, v{t}, s[{S_RET}:{S_RET+1}]")
        a.lab("L_NOCP2")
        rest_exec()
        a.lab("L_NOCP")
    a(f"s_cmp_lg_u32 s{S_WID}, 0")
    a("s_cbranch_scc1 L_NOG0")
    a(f"s_lshl_b32 s{S_T0}, s{S_IDX}, 8")
    a(f"s_add_u32 s{S_T0}, s{S_T0}, {WS_FLAG}")
    a(f"s_lshl_b32 s{S_T1}, s{S_GRP}, 12")
    a(f"s_add_u32 s{S_T1}, s{S_T1}, {WS_OF}")
    a(f"v_mov_b32 v{t}, 0")
    a(f"buffer_load_dword v{V_TG}, v{t}, {WS}, s{S_T0} offen sc1")
    a(f"s_sub_u32 s{S_T0}, s{S_T0}, 256")
    a(f"s_max_u32 s{S_T0}, s{S_T0}, {WS_FLAG}")
    a(f"buffer_load_dword v{V_TG+1}, v{t}, {WS}, s{S_T0} offen sc1")
    a(f"buffer_load_dword v{V_TG+2}, v{t}, {WS}, s{S_T1} offen sc1")
    a.lab("L_NOG0")
    for i in range(112):
        a(f"v_mov_b32 v{V_ACC+i}, 0")
    emit_masks()
    emit_p2_patterns()
    a(f"v_mov_b32 v{t+2}, 0x3f803f80")
    a(f"v_mov_b32 v{t+3}, 0x3f803f80")
    a(f"v_mul_u32_u24 v{t+4}, 576, v{L}")
    a(f"v_add_u32 v{t+4}, {MISC}, v{t+4}")
    save_exec(15)
    a(f"ds_write_b64 v{t+4}, v[{t+2}:{t+3}]")
    rest_exec()
    a(f"s_cmp_lg_u32 s{S_WID}, 0")
    a("s_cbranch_scc1 L_NOG1")
    a("s_waitcnt vmcnt(0)")
    for i in range(3): a(f"v_add_u32 v{V_TG+i}, {TAG_INC:#x}, v{V_TG+i}")
    a(f"v_mov_b32 v{V_TG+3}, 0")
    a(f"v_mov_b32 v{t+4}, {TAGS_LDS}")
    save_exec(1)
    a(f"ds_write_b128 v{t+4}, v[{V_TG}:{V_TG+3}]")
    for i in range(4): a(f"v_mov_b32 v{V_TG+i}, 0")
    a(f"ds_write_b128 v{t+4}, v[{V_TG}:{V_TG+3}] offset:16")
    rest_exec()
    a.lab("L_NOG1")
    a("s_waitcnt lgkmcnt(0)")
    a("s_barrier")
    if "tsh" not in exp and "tsj" not in exp: ts(1)
    def reads(setb, ks):
        xs = [f"ds_read_b128 v[{setb+4*mt}:{setb+4*mt+3}], v{V_AX+ks} offset:{mt*2048}" for mt in range(4)]
        ws = []
        for Tn in range(7):
            b = setb + 16 + 4*Tn
            ws.append(f"ds_read_b64_tr_b16 v[{b}:{b+1}], v{V_AW+Tn} offset:{ks*8192}")
            ws.append(f"ds_read_b64_tr_b16 v[{b+2}:{b+3}], v{V_AW+Tn} offset:{ks*8192+1024}")
        return [xs[0], ws[0], ws[1], xs[1], ws[2], ws[3], xs[2], ws[4], ws[5], xs[3]] + ws[6:]
    def mfmas(setb):
        m = []
        for Tn in range(7):
            for mt in range(4):
                d = V_ACC + (mt*7+Tn)*4
                m.append(f"v_mfma_f32_16x16x32_bf16 v[{d}:{d+3}], v[{setb+16+4*Tn}:{setb+16+4*Tn+3}], v[{setb+4*mt}:{setb+4*mt+3}], v[{d}:{d+3}]")
        return m
    def interleave(ms, extra, per=1):
        ri = 0
        for i, m in enumerate(ms):
            a(m)
            for _ in range(per):
                if ri < len(extra): a(extra[ri]); ri += 1
        while ri < len(extra):
            a(extra[ri]); ri += 1
    for i in range(4): a(f"v_mov_b32 v{V_TG+i}, -1")
    a(f"v_lshlrev_b32 v{V_TL+1}, 4, v{L}")
    a(f"s_lshl_b32 s{S_XB}, s{S_GRP}, 18")
    a(f"s_add_u32 s{S_XB}, s{S_XB}, {WS_O}")
    a(f"s_lshl_b32 s{S_T0}, s{S_WID}, 16")
    a(f"s_add_u32 s{S_XB}, s{S_XB}, s{S_T0}")
    a(f"s_lshl_b32 s{S_T0}, s{S_HP}, 10")
    a(f"s_add_u32 s{S_XB}, s{S_XB}, s{S_T0}")
    a(f"s_lshl_b32 s{S_WB}, s{S_GRP}, 15")
    a(f"s_add_u32 s{S_WB}, s{S_WB}, {WS_OR}")
    a(f"s_lshl_b32 s{S_T0}, s{S_HP}, 1")
    a(f"s_and_b32 s{S_T1}, s{S_WID}, 1")
    a(f"s_add_u32 s{S_T0}, s{S_T0}, s{S_T1}")
    a(f"s_lshl_b32 s{S_T0}, s{S_T0}, 10")
    a(f"s_add_u32 s{S_WB}, s{S_WB}, s{S_T0}")
    for rd in reads(V_SET0, 0): a(rd)
    a(f"s_mov_b32 s{S_K}, 0")
    a(f"s_mov_b32 s{S_SB}, 0")
    if 'tb' in exp: a(f"v_mov_b32 v{V_TL}, 0")
    a.lab("L_GEMM")
    a(f"s_cmp_lt_u32 s{S_K}, 7")
    a("s_cbranch_scc1 L_GEMM_NC")
    a(f"buffer_store_dwordx4 v[{V_TG}:{V_TG+3}], v{V_TL+1}, {WS}, s{S_XB} offen sc1")
    a(f"s_add_u32 s{S_XB}, s{S_XB}, 16384")
    a(f"buffer_store_dwordx4 v[{V_TG}:{V_TG+3}], v{V_TL+1}, {WS}, s{S_XB} offen sc1")
    a(f"s_add_u32 s{S_XB}, s{S_XB}, 16384")
    a(f"s_cmp_eq_u32 s{S_K}, 8")
    a("s_cbranch_scc1 L_GEMM_NC")
    a(f"buffer_store_dwordx4 v[{V_TG}:{V_TG+3}], v{V_TL+1}, {WS}, s{S_WB} offen sc1")
    a.lab("L_GEMM_NC")
    a("s_waitcnt lgkmcnt(0)")
    if 'tb' in exp:
        a(f"s_sub_u32 s92, s92, s70")
        a(f"s_mov_b32 m0, s{S_K}")
        a("s_nop 4")
        a(f"v_writelane_b32 v{V_TL}, s92, m0")
    sal = [f"s_add_u32 s{S_SB}, s{S_SB}, 1", f"s_cmp_eq_u32 s{S_SB}, 3", f"s_mov_b32 s{S_T0}, {STAGE}",
           f"s_cselect_b32 s{S_T0}, {(-2*STAGE) & 0xffffffff}, s{S_T0}", f"s_cselect_b32 s{S_SB}, 0, s{S_SB}"]
    interleave(mfmas(V_SET0), reads(V_SET1, 1) + sal)
    a("s_waitcnt lgkmcnt(0)")
    a("s_barrier")
    if 'tb' in exp: a("s_memtime s[92:93]")
    rd = reads(V_SET0, 0)
    adds = [f"v_add_u32 v{V_AX+i}, s{S_T0}, v{V_AX+i}" for i in range(9)]
    ex = [adds[0], adds[2], rd[0], rd[1], rd[2], adds[3], rd[3], rd[4], rd[5], adds[4], rd[6], rd[7], rd[8], rd[9],
          adds[5], rd[10], rd[11], adds[6], rd[12], rd[13], adds[7], rd[14], rd[15], adds[8], rd[16], rd[17], adds[1],
          f"s_add_u32 s{S_K}, s{S_K}, 1", f"s_cmp_lt_u32 s{S_K}, 9"]
    ms = mfmas(V_SET1)
    ri = 0
    for i, m in enumerate(ms):
        a(m)
        n = 2 if i < 6 else 1
        for _ in range(n):
            if ri < len(ex): a(ex[ri]); ri += 1
    assert ri == len(ex)
    a("s_cbranch_scc1 L_GEMM")
    if "tsh" not in exp and "tsj" not in exp: ts(2)
    a.c("phase-1 epilogue")
    acc = lambda mt, Tn: V_ACC + (mt*7+Tn)*4
    SC = 84
    def qk_cvt(Tn, R0):
        for p in range(2):
            R = R0 + 4*p
            da, db = acc(2*p, Tn), acc(2*p+1, Tn)
            a(f"v_cvt_pk_bf16_f32 v{R}, v{da}, v{da+1}")
            a(f"v_cvt_pk_bf16_f32 v{R+2}, v{db}, v{db+1}")
            a(f"v_cvt_pk_bf16_f32 v{R+1}, v{da+2}, v{da+3}")
            a(f"v_cvt_pk_bf16_f32 v{R+3}, v{db+2}, v{db+3}")
    def qk_swap(R):
        a(f"v_permlane16_swap_b32 v{R}, v{R+2}")
        a(f"v_permlane16_swap_b32 v{R+1}, v{R+3}")
    a("s_nop 3")
    qk_cvt(2, SC); qk_cvt(3, SC+8)
    vw = []
    for Tn in (4, 5):
        for mt in range(4):
            R = SC + 16 + ((Tn-4)*4+mt)*2
            d = acc(mt, Tn)
            a(f"v_cvt_pk_bf16_f32 v{R}, v{d}, v{d+1}")
            a(f"v_cvt_pk_bf16_f32 v{R+1}, v{d+2}, v{d+3}")
            vw.append(f"ds_write_b64 v{vEV}, v[{R}:{R+1}] offset:{(mt>>1)*TILE + (mt&1)*1152 + (40 if Tn==5 else 0)}")
    kw = [(SC+4*q, (q & 1)*TILE + (q >> 1)*1024) for q in range(4)]
    for q, (R, off) in enumerate(kw):
        qk_swap(R)
        a(vw[2*q]); a(vw[2*q+1])
    for mt in range(4):
        d = acc(mt, 6)
        a(f"v_pk_mul_f32 v[{d}:{d+1}], v[{d}:{d+1}], v[{vF}:{vF+1}]")
        a(f"v_pk_mul_f32 v[{d+2}:{d+3}], v[{d+2}:{d+3}], v[{vF}:{vF+1}]")
        R, off = kw[mt]
        a(f"ds_write_b128 v{vEK}, v[{R}:{R+3}] offset:{off}")
    R6 = SC + 32
    a(f"v_add_u32 v{t}, v{vE6}, v{vDr}")
    a(f"v_add_u32 v{t+1}, v{vE6}, v{vDt}")
    for mt in range(4):
        d = acc(mt, 6)
        a(f"v_cvt_pk_bf16_f32 v{R6+2*mt}, v{d}, v{d+1}")
        a(f"v_cvt_pk_bf16_f32 v{R6+2*mt+1}, v{d+2}, v{d+3}")
    a(f"v_add_u32 v{t+2}, v{t+1}, v{vDr}")
    a(f"s_mov_b64 s[{S_SAVE}:{S_SAVE+1}], exec")
    a(f"s_mov_b32 exec_hi, 0x0000ffff")
    a(f"ds_write_b64 v{vE6}, v[{R6}:{R6+1}]")
    a(f"ds_write_b64 v{t}, v[{R6+2}:{R6+3}]")
    a(f"ds_write_b64 v{t+1}, v[{R6+4}:{R6+5}]")
    a(f"ds_write_b64 v{t+2}, v[{R6+6}:{R6+7}]")
    rest_exec()
    for mt in range(4):
        for Tn in (0, 1):
            d = acc(mt, Tn)
            a(f"v_pk_mul_f32 v[{d}:{d+1}], v[{d}:{d+1}], v[{vC}:{vC+1}]")
            a(f"v_pk_mul_f32 v[{d+2}:{d+3}], v[{d+2}:{d+3}], v[{vC}:{vC+1}]")
    if 'tse' in exp: ts(5, True)
    a("s_waitcnt lgkmcnt(0)")
    if 'tse' in exp: ts(6, True)
    a("s_barrier")
    if 'tse' in exp: ts(7, True)
    qk_cvt(0, SC); qk_cvt(1, SC+8)
    for r in range(8): a(f"v_mov_b32 v{OA+r}, 0")
    for q in range(4):
        R = SC + 4*q
        qk_swap(R)
        for r in range(4): a(f"v_mov_b32 v{OA+8+4*q+r}, 0") if q < 2 else a(f"v_mov_b32 v{OB+4*(q-2)+r}, 0")
        a(f"ds_write_b128 v{vEQ}, v[{R}:{R+3}] offset:{(q & 1)*QTILE + (q >> 1)*1024}")
    for r in range(8, 16): a(f"v_mov_b32 v{OB+r}, 0")

    a.lab("L_P2")
    if 'tse' in exp: ts(8, True)
    a(f"v_mov_b32 v{t}, {TAGS_LDS}")
    a(f"ds_read_b128 v[{V_TG}:{V_TG+3}], v{t}")
    a("s_waitcnt lgkmcnt(0)")
    a("s_barrier")
    ts(3)
    if debug_stage == 1:
        a(f"s_lshl_b32 s{S_T0}, s{S_IDX}, 16")
        a(f"v_lshlrev_b32 v{t}, 4, v0")
        for i in range(7):
            a(f"v_add_u32 v{t+1}, {KV_OWN + i*8192}, v{t}")
            a(f"ds_read_b128 v[40:43], v{t+1}")
            a("s_waitcnt lgkmcnt(0)")
            a(f"v_add_u32 v{t+2}, {i*8192}, v{t}")
            a(f"buffer_store_dwordx4 v[40:43], v{t+2}, {WS}, s{S_T0} offen")
            a("s_waitcnt vmcnt(0)")
        a("s_branch L_FIN")
    if debug_stage == 9:
        a("s_branch L_FIN")
    if debug_stage not in (1, 9):
        phase2(a, debug_stage, ts, exp, save_exec, rest_exec)
        phase3(a, debug_stage, ts, exp, save_exec, rest_exec)
    a.lab("L_FIN")
    if 'hdbg' in exp:
        a("s_waitcnt vmcnt(0) lgkmcnt(0)")
        a("s_memrealtime s[94:95]")
        a(f"s_load_dwordx2 s[{S_X}:{S_X+1}], s[0:1], 56")
        a("s_waitcnt lgkmcnt(0)")
        a(f"s_cmp_lg_u32 s{S_WID}, 4")
        a("s_cbranch_scc1 L_END")
        a(f"s_mov_b32 s{S_X+2}, 256")
        a(f"s_mov_b32 s{S_X+3}, 0x00020000")
        a("s_mov_b64 exec, 1")
        a("v_mov_b32 v2, 0")
        a("s_not_b32 s33, s70")
        a("v_mov_b32 v3, s33")
        a(f"buffer_atomic_umax v3, v2, s[{S_X}:{S_X+3}], 0 offen offset:0")
        a("v_mov_b32 v3, s70")
        a(f"buffer_atomic_umax v3, v2, s[{S_X}:{S_X+3}], 0 offen offset:4")
        for k, i in enumerate((3, 4, 5, 7, 8, 10, 9, 11, 12)):
            a(f"v_mov_b32 v{4+k}, s{70+2*i}")
            a(f"buffer_atomic_umax v{4+k}, v2, s[{S_X}:{S_X+3}], 0 offen offset:{8+4*k}")
        a("s_waitcnt vmcnt(0)")
        a("s_branch L_END")
    if timing:
        a("s_waitcnt vmcnt(0) lgkmcnt(0)")
        a(f"{'s_memrealtime' if ('abs' in exp or 'hdbg' in exp) else 's_memtime'} s[94:95]")
        a("s_waitcnt lgkmcnt(0)")
        a(f"s_lshl_b32 s{S_T0}, s2, 3")
        a(f"s_add_u32 s{S_T0}, s{S_T0}, s{S_WID}")
        a(f"s_lshl_b32 s{S_T0}, s{S_T0}, 6")
        a(f"s_add_u32 s{S_T0}, s{S_T0}, {TIMING_OFF}")
        for i in range(13):
            a(f"s_sub_u32 s{S_T1}, s{70+2*i}, s70" if (i and 'abs' not in exp) else f"s_mov_b32 s{S_T1}, s{70+2*i}")
            a(f"s_cmp_eq_u32 s{70+2*i}, 0")
            a(f"s_cselect_b32 s{S_T1}, 0, s{S_T1}")
            a(f"v_mov_b32 v{40+i}, s{S_T1}")
        if 'tb' in exp:
            a(f"v_lshlrev_b32 v2, 2, v{V_LANE}")
            a(f"s_add_u32 s{S_T1}, s{S_T0}, {1<<20}")
            a(f"s_mov_b64 exec, 0xffff")
            a(f"buffer_store_dword v{V_TL}, v2, {WS}, s{S_T1} offen")
        a(f"v_mov_b32 v2, 0")
        a(f"s_mov_b64 exec, 1")
        for i in range(3):
            a(f"buffer_store_dwordx4 v[{40+4*i}:{43+4*i}], v2, {WS}, s{S_T0} offen offset:{16*i}")
        a(f"buffer_store_dword v52, v2, {WS}, s{S_T0} offen offset:48")
        a("s_waitcnt vmcnt(0)")
    a.lab("L_END")
    a("s_endpgm")
    a(f""".section .rodata,"a"
.p2align 6
.amdhsa_kernel {NAME}_kernel
  .amdhsa_next_free_vgpr 256
  .amdhsa_next_free_sgpr 102
  .amdhsa_accum_offset 256
  .amdhsa_group_segment_fixed_size 0
  .amdhsa_kernarg_size 72
  .amdhsa_user_sgpr_count 2
  .amdhsa_user_sgpr_kernarg_segment_ptr 1
  .amdhsa_system_sgpr_workgroup_id_x 1
.end_amdhsa_kernel""")
    return a.text()

WS = f"s[{S_WS}:{S_WS+3}]"

def spin_poll(a, name, check_lines, load_line, limit=2000000, first_done=False):
    a(f"s_mov_b32 s{S_CNT}, 0")
    if first_done: a(f"s_branch {name}_W")
    a.lab(name)
    a(load_line)
    a.lab(name + "_W")
    a(f"s_add_u32 s{S_CNT}, s{S_CNT}, 1")
    a("s_waitcnt vmcnt(0)")
    for l in check_lines: a(l)
    a(f"s_cbranch_scc1 {name}_OK")
    a(f"s_cmp_lt_u32 s{S_CNT}, {limit}")
    a(f"s_cbranch_scc1 {name}")
    a.lab(name + "_OK")

def lds_inc(a, addr, save_exec, rest_exec, rtn=None):
    t = T
    a(f"v_mov_b32 v{t}, {addr}")
    a(f"v_mov_b32 v{t+1}, 1")
    save_exec(1)
    if rtn is None: a(f"ds_add_u32 v{t}, v{t+1}")
    else: a(f"ds_add_rtn_u32 v{rtn}, v{t}, v{t+1}")
    rest_exec()

def lds_wait(a, name, addr, val):
    t = T
    a(f"v_mov_b32 v{t}, {addr}")
    a(f"s_mov_b32 s{S_CNT}, 0")
    a.lab(name)
    a(f"ds_read_b32 v{t+1}, v{t}")
    a(f"s_add_u32 s{S_CNT}, s{S_CNT}, 1")
    a("s_waitcnt lgkmcnt(0)")
    a(f"v_readfirstlane_b32 s{S_T0}, v{t+1}")
    a(f"s_cmp_ge_u32 s{S_T0}, {val}")
    a(f"s_cbranch_scc1 {name}_OK")
    a(f"s_cmp_lt_u32 s{S_CNT}, 20000000")
    a(f"s_cbranch_scc1 {name}")
    a.lab(name + "_OK")

def hook_point(a, tag):
    a(f"s_add_u32 s{S_U}, s{S_U}, 1")
    a(f"s_cmp_lg_u32 s{S_U}, s{S_HOOK}")
    a(f"s_cbranch_scc1 {tag}")
    a(f"s_call_b64 s[{S_RET2}:{S_RET2+1}], L_HOOK")
    a.lab(tag)

def run_code(a, name, QM, QR, O, exp):
    cnt = [0]
    def qk1(creg):
        c = "0" if creg is None else f"v[{creg}:{creg+15}]"
        a(f"v_mfma_f32_32x32x16_bf16 v[{VS}:{VS+15}], v[{VKF}:{VKF+3}], v[{QM}:{QM+3}], {c}")
    def qk2():
        a(f"v_mfma_f32_32x32x16_bf16 v[{VS}:{VS+15}], v[{VKR}:{VKR+3}], v[{QR}:{QR+3}], v[{VS}:{VS+15}]")
    def pv(V, P):
        a(f"v_mfma_f32_32x32x16_bf16 v[{O}:{O+15}], v[{V}:{V+3}], v[{P}:{P+3}], v[{O}:{O+15}]")
    def kread():
        a(f"ds_read_b128 v[{VKF}:{VKF+3}], v{A_K}")
        a(f"ds_read_b64 v[{VKR}:{VKR+1}], v{A_KR}")
    def kstep():
        a(f"v_add_u32 v{A_K}, v{ST_K}, v{A_K}")
        a(f"v_add_u32 v{A_KR}, v{ST_K}, v{A_KR}")
    def vread(V, off):
        a(f"ds_read_b64_tr_b16 v[{V}:{V+1}], v{A_V} offset:{off}")
        a(f"ds_read_b64_tr_b16 v[{V+2}:{V+3}], v{A_V} offset:{off+576}")
    def cvt(j): a(f"v_cvt_pk_bf16_f32 v{VP+j}, v{VE+2*j}, v{VE+2*j+1}")
    def ex(r): a(f"v_exp_f32 v{VE+r}, v{VS+r}")
    def unit(D):
        if 'pf' in exp: a("s_setprio 1" if 'pfi' not in exp else "s_setprio 0")
        for r in range(8): ex(r)
        for j in range(4): cvt(j)
        ex(8); ex(9)
        a("s_waitcnt lgkmcnt(0)")
        pv(VVA, VP)
        for r in range(10, 16): ex(r)
        if 'pf' in exp: a("s_setprio 0" if 'pfi' not in exp else "s_setprio 1")
        if D:
            qk1(V_MASK if D == "mask" else None)
            for j in range(4, 8): cvt(j)
            vread(VVA, 0)
            qk2()
            kstep()
            kread()
            pv(VVB, VP+4)
            vread(VVB, 1152)
            a(f"v_add_u32 v{A_V}, v{ST_V}, v{A_V}")
        else:
            a("s_nop 0")
            for j in range(4, 8): cvt(j)
            a("s_nop 1")
            pv(VVB, VP+4)
    a.lab(name)
    kread()
    a(f"s_cmp_eq_u32 s{S_N}, 1")
    a(f"s_cbranch_scc1 {name}_M1")
    kstep()
    a("s_waitcnt lgkmcnt(0)")
    qk1(None); qk2()
    vread(VVA, 0); kread(); vread(VVB, 1152)
    a(f"v_add_u32 v{A_V}, v{ST_V}, v{A_V}")
    a(f"s_sub_u32 s{S_N}, s{S_N}, 2")
    a.lab(name + "_BT")
    a(f"s_cmp_eq_u32 s{S_N}, 0")
    a(f"s_cbranch_scc1 {name}_MK0")
    a(f"s_sub_u32 s{S_E}, s{S_HOOK}, s{S_U}")
    a(f"s_min_u32 s{S_E}, s{S_E}, s{S_N}")
    a(f"s_sub_u32 s{S_N}, s{S_N}, s{S_E}")
    a(f"s_add_u32 s{S_U}, s{S_U}, s{S_E}")
    a(f"s_sub_u32 s{S_E}, s{S_E}, 1")
    a.lab(name + "_LP")
    unit("plain")
    a(f"s_sub_u32 s{S_E}, s{S_E}, 1")
    a("s_nop 1")
    a(f"s_cbranch_scc0 {name}_LP")
    a(f"s_cmp_lg_u32 s{S_U}, s{S_HOOK}")
    a(f"s_cbranch_scc1 {name}_BT")
    a(f"s_call_b64 s[{S_RET2}:{S_RET2+1}], L_HOOK")
    a(f"s_branch {name}_BT")
    a.lab(name + "_MK0")
    a("s_nop 3")
    a.lab(name + "_MK")
    unit("mask")
    hook_point(a, f"{name}_H1")
    a("s_nop 1")
    a.lab(name + "_FN")
    unit(None)
    hook_point(a, f"{name}_H2")
    a(f"s_setpc_b64 s[{S_RET}:{S_RET+1}]")
    a.lab(name + "_M1")
    a("s_waitcnt lgkmcnt(0)")
    qk1(V_MASK); qk2()
    vread(VVA, 0); vread(VVB, 1152)
    a("s_nop 7")
    a(f"s_branch {name}_FN")

def set_run(a, region, tile_sreg, n_lines, step):
    a(f"s_mul_i32 s{S_T0}, s{tile_sreg}, {TILE}" if tile_sreg is not None else f"s_mov_b32 s{S_T0}, 0")
    a(f"s_add_u32 s{S_T0}, s{S_T0}, {region}")
    a(f"v_add_u32 v{A_K}, s{S_T0}, v{B_K}")
    a(f"v_add_u32 v{A_KR}, s{S_T0}, v{B_KR}")
    a(f"v_and_b32 v{A_V}, s{S_T0}, v{MK_V}")
    a(f"v_add_u32 v{A_V}, v{B_V}, v{A_V}")
    a(f"v_mov_b32 v{ST_K}, {step & 0xffffffff:#x}")
    a(f"v_and_b32 v{ST_V}, v{ST_K}, v{MK_V}")
    for l in n_lines: a(l)

F_MD, F_MF, F_M = 190, 206, 222
S_FQ, S_FT, S_FK, S_FP, S_FI2 = 32+12, 45, 46, 47, 48

def safety_check(a, O, isB, qb_sreg, tag):
    t = T
    a(f"v_max3_f32 v{t}, |v{O}|, |v{O+1}|, |v{O+2}|")
    for k in range(3, 11, 2): a(f"v_max3_f32 v{t}, v{t}, |v{O+k}|, |v{O+k+1}|")
    a(f"v_max_f32 v{t}, v{t}, |v{O+11}|".replace("v_max_f32", "v_max_f32_e64"))
    a(f"v_mov_b32 v{t+1}, 0x21800000")
    a(f"v_mov_b32 v{t+2}, 0x5d800000")
    a(f"v_mov_b32 v{t+3}, 0x7f000000")
    a(f"v_cmp_nge_f32 vcc, v{O+12}, v{t+1}")
    a(f"v_cmp_nle_f32 s[{S_BAD}:{S_BAD+1}], v{O+12}, v{t+2}")
    a(f"s_or_b64 vcc, vcc, s[{S_BAD}:{S_BAD+1}]")
    a(f"v_cmp_nlt_f32 s[{S_BAD}:{S_BAD+1}], v{t}, v{t+3}")
    a(f"s_or_b64 vcc, vcc, s[{S_BAD}:{S_BAD+1}]")
    a("s_cmp_eq_u64 vcc, 0")
    a(f"s_cbranch_scc1 L_SAFE{tag}")
    a(f"s_mov_b32 s{S_FQ}, s{qb_sreg}")
    if isB:
        for r in range(8): a(f"v_swap_b32 v{QA_M+r}, v{QB_M+r}")
        for r in range(16): a(f"v_swap_b32 v{OA+r}, v{OB+r}")
    a(f"s_call_b64 s[{S_RET}:{S_RET+1}], L_FB")
    if isB:
        for r in range(8): a(f"v_swap_b32 v{QA_M+r}, v{QB_M+r}")
        for r in range(16): a(f"v_swap_b32 v{OA+r}, v{OB+r}")
    a.lab(f"L_SAFE{tag}")

def fallback_code(a):
    t = T; L = V_LANE
    a.lab("L_FB")
    a(f"v_and_b32 v{t}, 31, v{L}")
    a(f"v_lshrrev_b32 v{t+1}, 5, v{L}")
    a(f"v_lshlrev_b32 v{t+1}, 2, v{t+1}")
    a(f"v_sub_u32 v{t}, v{t}, v{t+1}")
    a(f"v_mov_b32 v{t+1}, {NEG:#x}")
    for r in range(16):
        jj = (r & 3) + 8*(r >> 2)
        a(f"v_cmp_le_i32 vcc, {jj}, v{t}")
        a("s_nop 1")
        a(f"v_cndmask_b32_e64 v{F_MD+r}, v{t+1}, 0, vcc")
        a(f"v_sub_f32 v{F_MF+r}, v{t+1}, v{F_MD+r}")
    a(f"v_mov_b32 v{F_M}, 0xff800000")
    a(f"s_mov_b32 s{S_FP}, 0")
    a.lab("L_FB_PASS")
    a(f"s_mov_b32 s{S_FI2}, 0")
    a.lab("L_FB_OWN")
    a(f"s_mul_i32 s{S_FT}, s{S_FI2}, {TILE}")
    a(f"s_add_u32 s{S_FT}, s{S_FT}, {KV_OWN}")
    a(f"s_cmp_eq_u32 s{S_FI2}, s{S_FQ}")
    a(f"s_cselect_b32 s{S_FK}, 1, 0")
    a(f"s_call_b64 s[{S_RET2}:{S_RET2+1}], L_FB_TILE")
    a(f"s_add_u32 s{S_FI2}, s{S_FI2}, 1")
    a(f"s_cmp_le_u32 s{S_FI2}, s{S_FQ}")
    a("s_cbranch_scc1 L_FB_OWN")
    a(f"s_cmp_eq_u32 s{S_S}, 0")
    a("s_cbranch_scc1 L_FB_PEND")
    a(f"s_mov_b32 s{S_FI2}, s{S_FQ}")
    a.lab("L_FB_HALO")
    a(f"s_mul_i32 s{S_FT}, s{S_FI2}, {TILE}")
    a(f"s_add_u32 s{S_FT}, s{S_FT}, {KV_HALO}")
    a(f"s_cmp_eq_u32 s{S_FI2}, s{S_FQ}")
    a(f"s_cselect_b32 s{S_FK}, 2, 0")
    a(f"s_call_b64 s[{S_RET2}:{S_RET2+1}], L_FB_TILE")
    a(f"s_add_u32 s{S_FI2}, s{S_FI2}, 1")
    a(f"s_cmp_le_u32 s{S_FI2}, 7")
    a("s_cbranch_scc1 L_FB_HALO")
    a.lab("L_FB_PEND")
    a(f"s_cmp_eq_u32 s{S_FP}, 1")
    a("s_cbranch_scc1 L_FB_DONE")
    a(f"v_mov_b32 v{t}, v{F_M}")
    a("s_nop 1")
    a(f"v_permlane32_swap_b32 v{F_M}, v{t}")
    a("s_nop 1")
    a(f"v_max_f32 v{F_M}, v{F_M}, v{t}")
    for r in range(16): a(f"v_mov_b32 v{OA+r}, 0")
    a(f"s_mov_b32 s{S_FP}, 1")
    a("s_branch L_FB_PASS")
    a.lab("L_FB_DONE")
    a("s_nop 15")
    a(f"s_setpc_b64 s[{S_RET}:{S_RET+1}]")
    a.lab("L_FB_TILE")
    a(f"v_add_u32 v{A_K}, s{S_FT}, v{B_K}")
    a(f"v_add_u32 v{A_KR}, s{S_FT}, v{B_KR}")
    a(f"v_and_b32 v{A_V}, s{S_FT}, v{MK_V}")
    a(f"v_add_u32 v{A_V}, v{B_V}, v{A_V}")
    a(f"ds_read_b128 v[{VKF}:{VKF+3}], v{A_K}")
    a(f"ds_read_b64 v[{VKR}:{VKR+1}], v{A_KR}")
    a(f"ds_read_b64_tr_b16 v[{VVA}:{VVA+1}], v{A_V}")
    a(f"ds_read_b64_tr_b16 v[{VVA+2}:{VVA+3}], v{A_V} offset:576")
    a(f"ds_read_b64_tr_b16 v[{VVB}:{VVB+1}], v{A_V} offset:1152")
    a(f"ds_read_b64_tr_b16 v[{VVB+2}:{VVB+3}], v{A_V} offset:1728")
    a("s_waitcnt lgkmcnt(0)")
    a(f"v_mfma_f32_32x32x16_bf16 v[{VS}:{VS+15}], v[{VKF}:{VKF+3}], v[{QA_M}:{QA_M+3}], 0")
    a(f"v_mfma_f32_32x32x16_bf16 v[{VS}:{VS+15}], v[{VKR}:{VKR+3}], v[{QA_R}:{QA_R+3}], v[{VS}:{VS+15}]")
    a("s_nop 15")
    a(f"s_cmp_eq_u32 s{S_FK}, 0")
    a("s_cbranch_scc1 L_FB_NM")
    a(f"s_cmp_eq_u32 s{S_FK}, 1")
    a("s_cbranch_scc0 L_FB_FM")
    for r in range(16): a(f"v_add_f32 v{VS+r}, v{VS+r}, v{F_MD+r}")
    a("s_branch L_FB_NM")
    a.lab("L_FB_FM")
    for r in range(16): a(f"v_add_f32 v{VS+r}, v{VS+r}, v{F_MF+r}")
    a.lab("L_FB_NM")
    a(f"s_cmp_eq_u32 s{S_FP}, 0")
    a("s_cbranch_scc0 L_FB_P1")
    for r in range(0, 16, 2): a(f"v_max3_f32 v{F_M}, v{F_M}, v{VS+r}, v{VS+r+1}")
    a(f"s_setpc_b64 s[{S_RET2}:{S_RET2+1}]")
    a.lab("L_FB_P1")
    for r in range(16): a(f"v_sub_f32 v{VS+r}, v{VS+r}, v{F_M}")
    for r in range(16): a(f"v_exp_f32 v{VE+r}, v{VS+r}")
    a("s_nop 0")
    for j in range(8): a(f"v_cvt_pk_bf16_f32 v{VP+j}, v{VE+2*j}, v{VE+2*j+1}")
    a("s_nop 1")
    a(f"v_mfma_f32_32x32x16_bf16 v[{OA}:{OA+15}], v[{VVA}:{VVA+3}], v[{VP}:{VP+3}], v[{OA}:{OA+15}]")
    a(f"v_mfma_f32_32x32x16_bf16 v[{OA}:{OA+15}], v[{VVB}:{VVB+3}], v[{VP+4}:{VP+7}], v[{OA}:{OA+15}]")
    a("s_nop 7")
    a(f"s_setpc_b64 s[{S_RET2}:{S_RET2+1}]")

def finalize(a, O, qb_sreg, save_exec, rest_exec):
    t = T; R = VS
    a(f"v_rcp_f32 v{t+2}, v{O+12}")
    a(f"s_lshl_b32 s{S_T0}, s{qb_sreg}, 15")
    a(f"s_add_u32 s{S_T1}, s{S_T0}, s{S_OM}")
    a(f"s_lshl_b32 s{S_T0}, s{qb_sreg}, 7")
    a(f"s_add_u32 s{S_T2}, s{S_T0}, s{S_OR}")
    for r in range(12): a(f"v_mul_f32 v{O+r}, v{O+r}, v{t+2}")
    a(f"v_cvt_pk_bf16_f32 v{R}, v{O}, v{O+1}")
    a(f"v_cvt_pk_bf16_f32 v{R+1}, v{O+2}, v{O+3}")
    a(f"v_cvt_pk_bf16_f32 v{R+2}, v{O+4}, v{O+5}")
    a(f"v_cvt_pk_bf16_f32 v{R+3}, v{O+6}, v{O+7}")
    a(f"v_cvt_pk_bf16_f32 v{R+4}, v{O+8}, v{O+9}")
    a(f"v_cvt_pk_bf16_f32 v{R+5}, v{O+10}, v{O+11}")
    a(f"s_cmp_eq_u32 s{S_HEAD}, 0")
    a(f"s_cselect_b64 s[{S_SAVE}:{S_SAVE+1}], -1, 0")
    a(f"v_permlane32_swap_b32 v{R}, v{R+2}")
    a(f"v_permlane32_swap_b32 v{R+1}, v{R+3}")
    a(f"v_cndmask_b32_e64 v{R+4}, v{R+5}, v{R+4}, s[{S_SAVE}:{S_SAVE+1}]")
    a(f"buffer_store_dwordx4 v[{R}:{R+3}], v{V_OA1}, {WS}, s{S_T1} offen sc1")
    a(f"s_mov_b64 s[{S_SAVE}:{S_SAVE+1}], exec")
    a(f"s_mov_b32 exec_hi, 0")
    a(f"buffer_store_dword v{R+4}, v{V_OA2}, {WS}, s{S_T2} offen sc1")
    rest_exec()

def oflag(a, name, cnt_addr, flag_off, save_exec, rest_exec, after_store=None, last=7):
    t = T
    lds_inc(a, cnt_addr, save_exec, rest_exec, rtn=t+2)
    a("s_waitcnt lgkmcnt(0)")
    a(f"v_readfirstlane_b32 s{S_T0}, v{t+2}")
    a(f"s_cmp_lg_u32 s{S_T0}, {last}")
    a(f"s_cbranch_scc1 {name}")
    a(f"s_lshl_b32 s{S_T0}, s{S_HP}, 2")
    a(f"s_add_u32 s{S_T0}, s{S_T0}, s{S_OFS}")
    a(f"v_lshlrev_b32 v{t}, 7, v{V_LANE}")
    a(f"v_mov_b32 v{t+1}, s{S_TAGO}")
    save_exec("0xffff")
    a(f"buffer_store_dword v{t+1}, v{t}, {WS}, s{S_T0} offen offset:{flag_off} sc1")
    rest_exec()
    if after_store: after_store()
    a.lab(name)

def phase2(a, debug_stage, ts, exp, save_exec, rest_exec):
    t = T; L = V_LANE
    UH = (4, 6, 8)
    if 'hkA' in exp: UH = (3, 5, 7)
    if 'hkB' in exp: UH = (4, 6, 7)
    if 'hkC' in exp: UH = (5, 7, 8)
    UP = 15
    a.c("======== phase 2 ========")
    a(f"v_readfirstlane_b32 s{S_TAGOUT}, v{V_TG}")
    a(f"v_readfirstlane_b32 s{S_TAGIN}, v{V_TG+1}")
    a(f"v_readfirstlane_b32 s{S_TAGO}, v{V_TG+2}")
    a(f"v_bfe_u32 v{V_OA1}, v{L}, 4, 1")
    a(f"v_lshlrev_b32 v{V_OA1}, 14, v{V_OA1}")
    a(f"v_and_b32 v{t+4}, 15, v{L}")
    a(f"v_lshl_add_u32 v{V_OA1}, v{t+4}, 4, v{V_OA1}")
    a(f"v_lshrrev_b32 v{t+4}, 5, v{L}")
    a(f"v_lshl_add_u32 v{V_OA1}, v{t+4}, 8, v{V_OA1}")
    a(f"v_lshlrev_b32 v{V_OA2}, 2, v{L}")
    for (QM, QR, sreg) in ((QA_M, QA_R, S_M), (QB_M, QB_R, S_MB)):
        a(f"s_mul_i32 s{S_T0}, s{sreg}, {QTILE}")
        a(f"s_add_u32 s{S_T0}, s{S_T0}, {Q_BASE}")
        a(f"v_add_u32 v{t+2}, s{S_T0}, v{B_K}")
        a(f"v_add_u32 v{t+3}, s{S_T0}, v{B_KR}")
        a(f"ds_read_b128 v[{QM}:{QM+3}], v{t+2}")
        a(f"ds_read_b64 v[{QR}:{QR+1}], v{t+3}")
    a(f"s_cmp_eq_u32 s{S_HEAD}, 0")
    a(f"s_cselect_b32 s{S_T0}, -1, 0")
    a(f"s_cselect_b32 s{S_T1}, 0, -1")
    a(f"v_cmp_gt_u32 vcc, 32, v{L}")
    a(f"v_mov_b32 v{t}, s{S_T0}")
    a(f"v_mov_b32 v{t+1}, s{S_T1}")
    a(f"v_cndmask_b32_e64 v{t}, 0, v{t}, vcc")
    a(f"v_cndmask_b32_e64 v{t+1}, 0, v{t+1}, vcc")
    a(f"v_mov_b32 v{VKR+2}, 0")
    a(f"v_mov_b32 v{VKR+3}, 0")
    for QR in (QA_R, QB_R):
        a(f"v_mov_b32 v{QR+2}, 0")
        a(f"v_mov_b32 v{QR+3}, 0")
    a("s_waitcnt lgkmcnt(0)")
    for QR in (QA_R, QB_R):
        a(f"v_and_b32 v{QR}, v{QR}, v{t}")
        a(f"v_and_b32 v{QR+1}, v{QR+1}, v{t+1}")
    lds_inc(a, CNTQ, save_exec, rest_exec)
    a(f"s_mov_b32 s{S_U}, 0")
    a(f"s_mov_b32 s{S_HST}, 0")
    a(f"s_mov_b32 s{S_HOOK}, 2")
    a(f"s_mov_b32 s{S_HST}, 5")
    a(f"s_cmp_lt_u32 s{S_WID}, 4")
    a(f"s_cbranch_scc1 L_HS2")
    a(f"s_mov_b32 s{S_HST}, 0")
    a(f"s_mov_b32 s{S_HOOK}, {UH[0]}")
    a(f"s_cmp_eq_u32 s{S_S}, 7")
    a(f"s_cbranch_scc1 L_HS1")
    a(f"s_mul_i32 s{S_T1}, s{S_IDX}, 36864")
    for c, i in enumerate([3, 2, 1, 0]):
        a(f"s_add_u32 s{S_T2}, s{S_T1}, {i*4096}")
        a(f"buffer_store_dwordx4 v[{VH+20+4*c}:{VH+20+4*c+3}], v{V_PA}, {WS}, s{S_T2} offen sc1")
    a.lab("L_HS1")
    if 'noprio' not in exp and 'pf' not in exp: a("s_setprio 1")
    a.lab("L_HS2")
    ts(4)
    set_run(a, KV_OWN, None, [f"s_add_u32 s{S_N}, s{S_M}, 1"], TILE)
    a(f"s_call_b64 s[{S_RET}:{S_RET+1}], L_RUNA")
    set_run(a, KV_OWN, None, [f"s_sub_u32 s{S_N}, 8, s{S_M}"], TILE)
    a(f"s_call_b64 s[{S_RET}:{S_RET+1}], L_RUNB")
    ts(5)
    a(f"s_cmp_eq_u32 s{S_S}, 0")
    a("s_cbranch_scc1 L_FINAL0")
    a(f"v_mov_b32 v{t+2}, {NEG:#x}")
    for r in range(16): a(f"v_sub_f32 v{V_MASK+r}, v{t+2}, v{V_MASK+r}")
    a(f"s_cmp_lt_u32 s{S_WID}, 4")
    a("s_cbranch_scc1 L_H5DONE")
    lds_wait(a, "L_WQ", CNTQ, 8)
    a(f"v_add_u32 v{V_PA+1}, {KV_HALO}, v{V_PA}")
    for c, i in enumerate([8, 7, 6, 5, 4, 3, 2, 1, 0]):
        a(f"s_waitcnt vmcnt({8-c})")
        a(f"ds_write_b128 v{V_PA+1}, v[{VH+4*c}:{VH+4*c+3}] offset:{i*4096}")
    if 'midbar' not in exp:
        a("s_waitcnt lgkmcnt(0)")
        lds_inc(a, CNT1, save_exec, rest_exec)
    a(f"s_cmp_lg_u32 s{S_WID}, 4")
    a("s_cbranch_scc1 L_H5DONE")
    a(f"s_sub_u32 s{S_T0}, s{S_IDX}, 1")
    a(f"s_lshl_b32 s{S_T0}, s{S_T0}, 8")
    a(f"s_add_u32 s{S_T0}, s{S_T0}, {WS_FLAG}")
    a(f"v_mov_b32 v{t}, 0")
    a(f"v_mov_b32 v{t+1}, s{S_TAGIN}")
    save_exec(1)
    a(f"buffer_store_dword v{t+1}, v{t}, {WS}, s{S_T0} offen sc1")
    rest_exec()
    a.lab("L_H5DONE")
    if 'midbar' in exp:
        a("s_waitcnt lgkmcnt(0)")
        if 'noph' in exp: a("s_setprio 0")
        a("s_barrier")
    else:
        lds_wait(a, "L_W1", CNT1, 4)
    if "tsh" not in exp: ts(7)
    a(f"s_mov_b32 s{S_T4}, 7")
    set_run(a, KV_HALO, S_T4, [f"s_add_u32 s{S_N}, s{S_M}, 1"], -TILE)
    a(f"s_call_b64 s[{S_RET}:{S_RET+1}], L_RUNB")
    a("s_nop 7")
    a("s_nop 3")
    safety_check(a, OB, True, S_MB, "B1")
    finalize(a, OB, S_MB, save_exec, rest_exec)
    if 'noph' not in exp: a("s_setprio 0")
    a(f"s_mov_b32 s{S_T4}, 7")
    set_run(a, KV_HALO, S_T4, [f"s_sub_u32 s{S_N}, 8, s{S_M}"], -TILE)
    a(f"s_call_b64 s[{S_RET}:{S_RET+1}], L_RUNA")
    a("s_branch L_FINALA")
    a.lab("L_FINAL0")
    a("s_waitcnt vmcnt(0)")
    a("s_setprio 0")
    a("s_barrier")
    a("s_nop 7")
    a("s_nop 3")
    safety_check(a, OB, True, S_MB, "B0")
    finalize(a, OB, S_MB, save_exec, rest_exec)
    a.lab("L_FINALA")
    a("s_setprio 0")
    if "tsh" not in exp: ts(8)
    a("s_nop 7")
    a("s_nop 3")
    safety_check(a, OA, False, S_M, "A")
    finalize(a, OA, S_M, save_exec, rest_exec)
    a("s_branch L_P3")
    fallback_code(a)

    a.lab("L_HOOK")
    a(f"s_cmp_eq_u32 s{S_HST}, 1")
    a("s_cbranch_scc1 L_HK1")
    a(f"s_cmp_eq_u32 s{S_HST}, 2")
    a("s_cbranch_scc1 L_HK2")
    a(f"s_cmp_eq_u32 s{S_HST}, 3")
    a("s_cbranch_scc1 L_HK3")
    a(f"s_cmp_eq_u32 s{S_HST}, 5")
    a("s_cbranch_scc0 L_HK0")
    a(f"s_mov_b32 s{S_HST}, 3")
    a(f"s_mov_b32 s{S_HOOK}, {UP}")
    a("s_waitcnt vmcnt(0)")
    oflag(a, "L_CLR", CNTOB, 128, save_exec, rest_exec, last=3)
    a("s_branch L_HRET")
    a.lab("L_HK0")
    a(f"s_mov_b32 s{S_HST}, 1")
    a(f"s_mov_b32 s{S_HOOK}, {UH[1]}")
    a(f"s_cmp_eq_u32 s{S_S}, 7")
    a("s_cbranch_scc1 L_HRET")
    a("s_waitcnt vmcnt(0)")
    a(f"s_lshl_b32 s{S_T0}, s{S_IDX}, 8")
    a(f"s_lshl_b32 s{S_T1}, s{S_L}, 2")
    a(f"s_add_u32 s{S_T0}, s{S_T0}, s{S_T1}")
    a(f"s_add_u32 s{S_T0}, s{S_T0}, {WS_FLAG+128}")
    a(f"v_mov_b32 v{t}, 0")
    a(f"v_mov_b32 v{t+1}, s{S_TAGOUT}")
    save_exec(1)
    a(f"buffer_store_dword v{t+1}, v{t}, {WS}, s{S_T0} offen sc1")
    rest_exec()
    a("s_branch L_HRET")
    a.lab("L_HK3")
    a(f"s_mov_b32 s{S_HST}, 4")
    a(f"s_mov_b32 s{S_HOOK}, 1000")
    if 'tlb' in exp:
        a(f"s_lshr_b32 s{S_T0}, s{S_HP}, 3")
        a(f"s_lshl_b32 s{S_T0}, s{S_T0}, 7")
        a(f"s_lshl_b32 s{S_T1}, s{S_S}, 8")
        a(f"s_add_u32 s{S_T0}, s{S_T0}, s{S_T1}")
        a(f"s_lshl_b32 s{S_T1}, s{S_WID}, 4")
        a(f"s_add_u32 s{S_T0}, s{S_T0}, s{S_T1}")
        a(f"s_mul_i32 s{S_T0}, s{S_T0}, 2304")
        a(f"v_mul_u32_u24 v{t}, 2304, v{L}")
        save_exec("0xffff")
        a(f"buffer_load_dword v{V_TG+2}, v{t}, s[{S_OUT}:{S_OUT+3}], s{S_T0} offen")
        rest_exec()
        a(f"s_lshl_b32 s{S_T0}, s{S_GRP}, 18")
        a(f"s_add_u32 s{S_T0}, s{S_T0}, {WS_O}")
        a(f"v_lshlrev_b32 v{t}, 12, v{L}")
        a(f"buffer_load_dword v{V_TG+3}, v{t}, {WS}, s{S_T0} offen sc1")
    a(f"s_lshl_b32 s{S_T0}, s{S_HP}, 7")
    a(f"s_add_u32 s{S_T0}, s{S_T0}, s{S_OFS}")
    save_exec("0xffff")
    a(f"v_lshlrev_b32 v{t}, 2, v{L}")
    a(f"buffer_load_dword v{V_TG+1}, v{t}, {WS}, s{S_T0} offen offset:128 sc1")
    rest_exec()
    a("s_branch L_HRET")
    a.lab("L_HK1")
    a(f"s_mov_b32 s{S_HST}, 2")
    a(f"s_mov_b32 s{S_HOOK}, {UH[2]}")
    a(f"s_cmp_eq_u32 s{S_S}, 0")
    a("s_cbranch_scc0 L_HK1A")
    a(f"s_mov_b32 s{S_HOOK}, 1000")
    a("s_branch L_HRET")
    a.lab("L_HK1A")
    a(f"s_sub_u32 s{S_H1}, s{S_IDX}, 1")
    a(f"s_lshl_b32 s{S_H1}, s{S_H1}, 8")
    a(f"s_lshl_b32 s{S_T0}, s{S_L}, 2")
    a(f"s_add_u32 s{S_H1}, s{S_H1}, s{S_T0}")
    a(f"s_add_u32 s{S_H1}, s{S_H1}, {WS_FLAG+128}")
    a(f"v_mov_b32 v{t}, 0")
    a(f"buffer_load_dword v{V_TG}, v{t}, {WS}, s{S_H1} offen sc1")
    a("s_branch L_HRET")
    a.lab("L_HK2")
    a(f"s_mov_b32 s{S_HST}, 3")
    a(f"s_mov_b32 s{S_HOOK}, {UP}")
    a("s_waitcnt vmcnt(0)")
    a(f"v_readfirstlane_b32 s{S_T0}, v{V_TG}")
    a(f"s_cmp_eq_u32 s{S_T0}, s{S_TAGIN}")
    a("s_cbranch_scc1 L_POLL1_OK")
    a(f"v_mov_b32 v{t}, 0")
    spin_poll(a, "L_POLL1",
              [f"v_readfirstlane_b32 s{S_T0}, v{V_TG}", f"s_cmp_eq_u32 s{S_T0}, s{S_TAGIN}"],
              f"buffer_load_dword v{V_TG}, v{t}, {WS}, s{S_H1} offen sc1")
    a(f"s_sub_u32 s{S_T0}, s{S_IDX}, 1")
    a(f"s_mul_i32 s{S_T0}, s{S_T0}, 36864")
    for c, i in enumerate([8, 7, 6, 5, 4, 3, 2, 1, 0]):
        a(f"s_add_u32 s{S_T1}, s{S_T0}, {i*4096}")
        a(f"buffer_load_dwordx4 v[{VH+4*c}:{VH+4*c+3}], v{V_PA}, {WS}, s{S_T1} offen sc1")
    a.lab("L_HRET")
    a(f"s_setpc_b64 s[{S_RET2}:{S_RET2+1}]")
    run_code(a, "L_RUNA", QA_M, QA_R, OA, exp)
    run_code(a, "L_RUNB", QB_M, QB_R, OB, exp)

def pub_stores(a, stage_off, base):
    a(f"s_add_u32 s{S_T2}, s{S_T1}, {stage_off}")
    a(f"buffer_store_dwordx4 v[{base}:{base+3}], v{V_PA}, {WS}, s{S_T2} offen sc1")
    for i in range(1, 4):
        a(f"s_add_u32 s{S_T3}, s{S_T2}, {i*4096}")
        a(f"buffer_store_dwordx4 v[{base+4*i}:{base+4*i+3}], v{V_PA}, {WS}, s{S_T3} offen sc1")
    a(f"buffer_store_dwordx4 v[{base+16}:{base+19}], v{V_PA+2}, {WS}, s{S_T2} offen sc1")

def halo_loads(a, stage_off, base):
    a(f"s_sub_u32 s{S_T0}, s{S_IDX}, 1")
    a(f"s_mul_i32 s{S_T0}, s{S_T0}, 36864")
    a(f"s_add_u32 s{S_T0}, s{S_T0}, s{S_SO}")
    for i in range(4):
        a(f"s_add_u32 s{S_T1}, s{S_T0}, {i*4096}")
        a(f"buffer_load_dwordx4 v[{base+4*i}:{base+4*i+3}], v{V_PA}, {WS}, s{S_T1} offen sc1")
    a(f"buffer_load_dwordx4 v[{base+16}:{base+19}], v{V_PA+2}, {WS}, s{S_T0} offen sc1")

def phase3(a, debug_stage, ts, exp, save_exec, rest_exec):
    t = T; L = V_LANE
    OF, AC, WF0, WF1 = 20, 92, 132, 152
    AW, AW2, PF, VO, VOUT, VR = 10, 11, 13, 14, 15, 16
    PA, PB = 12, 9
    S_PL, S_PR, S_PM = 4, 68, 40
    SCR = KV_OWN
    ORD = {0: [0, 2, 4, 6, 1, 3, 5, 7, 8], 1: [9, 11, 13, 15, 10, 12, 14, 16, 17]}
    GM = {0: 0x0055, 1: 0xAA00}; RM = {0: 0x01AA, 1: 0xFFFF}
    a.lab("L_P3")
    a.c("======== phase 3 ========")
    a(f"s_lshl_b32 s{S_PL}, s{S_HP}, 7")
    a(f"s_add_u32 s{S_PL}, s{S_PL}, s{S_OFS}")
    def poll_issue():
        save_exec("0xffff")
        a(f"v_lshlrev_b32 v{t+2}, 2, v{L}")
        a(f"buffer_load_dword v{PF}, v{t+2}, {WS}, s{S_PL} offen offset:128 sc1")
        rest_exec()
    def poll_check(name, mask):
        save_exec(f"{mask:#x}")
        a(f"v_cmp_ne_u32 vcc, s{S_TAGO}, v{PF}")
        a("s_nop 1")
        a("s_cmp_eq_u64 vcc, 0")
        a(f"s_cbranch_scc1 {name}_OK")
        a(f"v_lshlrev_b32 v{t+2}, 2, v{L}")
        spin_poll(a, name,
                  [f"v_cmp_ne_u32 vcc, s{S_TAGO}, v{PF}", "s_nop 1", "s_cmp_eq_u64 vcc, 0"],
                  f"buffer_load_dword v{PF}, v{t+2}, {WS}, s{S_PL} offen offset:128 sc1")
        rest_exec()
    a(f"s_lshr_b32 s{S_T1}, s{S_HP}, 3")
    a(f"s_lshl_b32 s{S_T1}, s{S_T1}, 3")
    a(f"s_lshl_b32 s{S_T2}, s{S_M}, 1")
    a(f"s_add_u32 s{S_T1}, s{S_T1}, s{S_T2}")
    a(f"s_lshl_b32 s{S_T0}, s{S_GRP}, 18")
    a(f"s_add_u32 s{S_T0}, s{S_T0}, {WS_O}")
    a(f"s_lshl_b32 s{S_T2}, s{S_T1}, 14")
    a(f"s_add_u32 s{S_PM}, s{S_T0}, s{S_T2}")
    a(f"s_lshl_b32 s{S_T0}, s{S_GRP}, 15")
    a(f"s_add_u32 s{S_T0}, s{S_T0}, {WS_OR}")
    a(f"s_lshl_b32 s{S_T2}, s{S_T1}, 6")
    a(f"s_add_u32 s{S_PR}, s{S_T0}, s{S_T2}")
    a(f"v_lshrrev_b32 v{VR}, 4, v{L}")
    a(f"v_lshlrev_b32 v{VR}, 12, v{VR}")
    a(f"v_and_b32 v{t+4}, 15, v{L}")
    a(f"v_lshl_add_u32 v{VR}, v{t+4}, 2, v{VR}")
    a(f"v_add_u32 v{VR+1}, 64, v{VR}")
    a(f"v_lshrrev_b32 v{t+1}, 4, v{L}")
    a(f"v_bfe_u32 v{t+2}, v{L}, 2, 2")
    a(f"v_and_b32 v{t+3}, 3, v{L}")
    a(f"v_lshrrev_b32 v{t+4}, 1, v{t+1}")
    a(f"v_lshlrev_b32 v{t+4}, 2, v{t+4}")
    a(f"v_lshl_add_u32 v{t+4}, v{t+1}, 3, v{t+4}")
    a(f"v_add_u32 v{t+4}, v{t+4}, v{t+2}")
    a(f"v_mul_u32_u24 v{t+4}, 144, v{t+4}")
    a(f"v_lshl_add_u32 v{AW}, v{t+3}, 3, v{t+4}")
    a(f"s_mul_i32 s{S_T0}, s{S_HEAD}, {9*5184}")
    a(f"v_add_u32 v{AW}, s{S_T0}, v{AW}")
    a(f"v_mul_u32_u24 v{t+4}, 72, v{t+1}")
    a(f"v_add3_u32 v{t+4}, v{t+4}, v{t+2}, 16")
    a(f"v_mul_u32_u24 v{t+4}, 144, v{t+4}")
    a(f"v_lshl_add_u32 v{AW2}, v{t+3}, 3, v{t+4}")
    a(f"v_lshlrev_b32 v{VO}, 4, v{L}")
    a(f"s_lshl_b32 s{S_T1}, s{S_T1}, 4")
    a(f"s_lshl_b32 s{S_T2}, s{S_S}, 8")
    a(f"s_add_u32 s{S_T1}, s{S_T1}, s{S_T2}")
    a(f"s_lshl_b32 s{S_T2}, s{S_HEAD}, 4")
    a(f"s_add_u32 s{S_T1}, s{S_T1}, s{S_T2}")
    a(f"s_mul_i32 s{S_T1}, s{S_T1}, 2304")
    a(f"s_mul_i32 s{S_T2}, s{S_B}, 1152")
    a(f"s_add_u32 s{S_T1}, s{S_T1}, s{S_T2}")
    a(f"s_and_b32 s{S_T2}, s{S_HP}, 7")
    a(f"s_mul_i32 s{S_T2}, s{S_T2}, 144")
    a(f"s_add_u32 s{S_T5}, s{S_T1}, s{S_T2}")
    a(f"v_and_b32 v{VOUT}, 15, v{L}")
    a(f"v_mul_u32_u24 v{VOUT}, 2304, v{VOUT}")
    a(f"v_lshrrev_b32 v{t+4}, 4, v{L}")
    a(f"v_lshl_add_u32 v{VOUT}, v{t+4}, 3, v{VOUT}")
    a(f"s_mul_i32 s{S_T0}, s{S_WID}, 5120")
    a(f"s_add_u32 s{S_T0}, s{S_T0}, {SCR}")
    a(f"v_add_u32 v18, s{S_T0}, v{VO}")
    a(f"s_xor_b32 s{S_T1}, s{S_WID}, 4")
    a(f"s_mul_i32 s{S_T1}, s{S_T1}, 5120")
    a(f"s_add_u32 s{S_T1}, s{S_T1}, {SCR}")
    a(f"v_add_u32 v19, s{S_T1}, v{VO}")
    OUT = f"s[{S_OUT}:{S_OUT+3}]"
    def wreads(kap, kh, WF):
        l = []
        for Tn in range(5):
            b = WF + 4*Tn
            if kap >= 16:
                o0 = (kap-16)*8*36*144 + Tn*32
                l.append(f"ds_read_b64_tr_b16 v[{b}:{b+1}], v{AW2} offset:{o0}")
                l.append(f"ds_read_b64_tr_b16 v[{b+2}:{b+3}], v{AW2} offset:{o0+36*144}")
            else:
                o0 = (kap - 9*kh)*5184 + Tn*32
                l.append(f"ds_read_b64_tr_b16 v[{b}:{b+1}], v{AW} offset:{o0}")
                l.append(f"ds_read_b64_tr_b16 v[{b+2}:{b+3}], v{AW} offset:{o0+576}")
        return l
    def loads(kh, slots):
        nl = []
        for jx in slots:
            kap = ORD[kh][jx]
            if kap >= 16:
                a(f"s_add_u32 s{S_T0}, s{S_PR}, {(kap-16)*16*1024}")
                for mt in range(2):
                    for i in range(4):
                        a(f"buffer_load_dword v{OF+36*mt+4*jx+i}, v{VR+mt}, {WS}, s{S_T0} offen offset:{i*1024} sc1")
                nl.append(8)
            else:
                a(f"s_add_u32 s{S_T0}, s{S_PM}, {kap*1024}")
                a(f"s_add_u32 s{S_T1}, s{S_PM}, {kap*1024+16384}")
                a(f"buffer_load_dwordx4 v[{OF+4*jx}:{OF+4*jx+3}], v{VO}, {WS}, s{S_T0} offen sc1")
                a(f"buffer_load_dwordx4 v[{OF+36+4*jx}:{OF+36+4*jx+3}], v{VO}, {WS}, s{S_T1} offen sc1")
                nl.append(2)
        return nl
    def mfm(kh, slots, nl, extra, last_next, novm=False):
        for c, jx in enumerate(slots):
            cur = WF0 if jx % 2 == 0 else WF1
            nxt = WF1 if jx % 2 == 0 else WF0
            a("s_waitcnt lgkmcnt(0)" if novm else f"s_waitcnt vmcnt({sum(nl[c+1:])+extra}) lgkmcnt(0)")
            rs = wreads(ORD[kh][jx+1], kh, nxt) if jx < 8 else []
            ri = 0
            for Tn in range(5):
                for mt in range(2):
                    d = AC + (mt*5+Tn)*4; o = OF + 36*mt + 4*jx
                    cc = "0" if jx == 0 else f"v[{d}:{d+3}]"
                    a(f"v_mfma_f32_16x16x32_bf16 v[{d}:{d+3}], v[{cur+4*Tn}:{cur+4*Tn+3}], v[{o}:{o+3}], {cc}")
                    if ri < len(rs): a(rs[ri]); ri += 1
    def add_out(q, base, Tn, pk):
        for r in range(4): a(f"v_add_f32 v{q+r}, v{q+r}, v{base+4*Tn+r}")
        a(f"v_cvt_pk_bf16_f32 v{pk}, v{q}, v{q+1}")
        a(f"v_cvt_pk_bf16_f32 v{pk+1}, v{q+2}, v{q+3}")
        if Tn == 4:
            a(f"s_mov_b64 s[{S_SAVE}:{S_SAVE+1}], exec")
            a(f"s_mov_b32 exec_hi, 0")
        omod = " nt" if 'ont' in exp else " sc1" if 'osc1' in exp else " sc0 sc1" if 'osc01' in exp else ""
        a(f"buffer_store_dwordx2 v[{pk}:{pk+1}], v{VOUT}, {OUT}, s{S_T5} offen offset:{Tn*32}{omod}")
        if Tn == 4: rest_exec()
    def nloads(kh, slots):
        return [8 if ORD[kh][jx] >= 16 else 2 for jx in slots]
    def validate(kh, slots, younger):
        nl = nloads(kh, slots); first = True
        for c, jx in enumerate(slots):
            a(f"s_waitcnt vmcnt({sum(nl[c+1:])+younger})")
            rr = [OF+4*jx+i for i in range(4)] + [OF+36+4*jx+i for i in range(4)]
            if first:
                a(f"v_max3_u32 v{t+3}, v{rr[0]}, v{rr[1]}, v{rr[2]}"); rr = rr[3:]; first = False
                a(f"v_max_u32 v{t+3}, v{t+3}, v{rr[0]}"); rr = rr[1:]
            for k in range(0, len(rr), 2):
                a(f"v_max3_u32 v{t+3}, v{t+3}, v{rr[k]}, v{rr[k+1]}")
        a(f"v_cmp_eq_u32 vcc, -1, v{t+3}")
        a("s_nop 1")
        a("s_cmp_eq_u64 vcc, 0")
    def probe_addr(kh, slots):
        mains = [jx for jx in slots if ORD[kh][jx] < 16]
        a(f"v_mov_b32 v{t+3}, {ORD[kh][mains[0]]*1024 + 16384 + 1020}")
        a(f"v_lshlrev_b32 v{PA}, 11, v{L}")
        a(f"v_add_u32 v{PA}, v{t+3}, v{PA}")
        return (1 << min(len(mains), 4)) - 1
    def probe_issue(mask):
        save_exec(f"{mask:#x}")
        a(f"buffer_load_dword v{PB}, v{PA}, {WS}, s{S_PM} offen sc1")
        rest_exec()
    def probe_loop(mask, name, first_issued):
        save_exec(f"{mask:#x}")
        a(f"s_mov_b32 s{S_CNT}, 0")
        if first_issued: a(f"s_branch {name}_PW")
        a.lab(name + "_P")
        a(f"buffer_load_dword v{PB}, v{PA}, {WS}, s{S_PM} offen sc1")
        a.lab(name + "_PW")
        a(f"s_add_u32 s{S_CNT}, s{S_CNT}, 1")
        a("s_waitcnt vmcnt(0)")
        a(f"v_cmp_eq_u32 vcc, -1, v{PB}")
        a("s_nop 1")
        a("s_cmp_eq_u64 vcc, 0")
        a(f"s_cbranch_scc1 {name}_PO")
        a(f"s_cmp_lt_u32 s{S_CNT}, 2000000")
        a(f"s_cbranch_scc1 {name}_P")
        a.lab(name + "_PO")
        rest_exec()
    def load_validate_loop(kh, slots, name):
        a(f"s_mov_b32 s{S_N}, 0")
        a.lab(name + "_L")
        loads(kh, slots)
        validate(kh, slots, 0)
        a(f"s_cbranch_scc1 {name}_OK")
        a(f"s_add_u32 s{S_N}, s{S_N}, 1")
        a(f"s_cmp_lt_u32 s{S_N}, 100000")
        a(f"s_cbranch_scc1 {name}_L")
        a.lab(name + "_OK")
    def path(kh):
        K = f"K{kh}"
        G, R = list(range(4)), list(range(4, 9))
        for rd in wreads(ORD[kh][0], kh, WF0): a(rd)
        ts(10)
        a(f"s_lshr_b32 s{S_T0}, 0x55AA, s{S_HP}")
        a(f"s_bitcmp1_b32 s{S_T0}, 0")
        a(f"s_cbranch_scc1 L_SG{K}_GO")
        mk = probe_addr(kh, G)
        probe_loop(mk, f"L_SG{K}", False)
        a.lab(f"L_SG{K}_GO")
        load_validate_loop(kh, G, f"L_SGV{K}")
        mk = probe_addr(kh, R)
        a(f"s_lshr_b32 s{S_T0}, 0x55AA, s{S_HP}")
        a(f"s_bitcmp1_b32 s{S_T0}, 0")
        a(f"s_cbranch_scc0 L_SR{K}_EARLY")
        loads(kh, R)
        mfm(kh, G, [0]*4, 0, None, novm=True)
        ts(9)
        lds_wait(a, f"L_WOB{K}", CNTOA, 8)
        validate(kh, R, 0)
        a(f"s_cbranch_scc1 L_SRV{K}_OK")
        probe_loop(mk, f"L_SS{K}", False)
        a(f"s_branch L_SR{K}_LV")
        a.lab(f"L_SR{K}_EARLY")
        probe_issue(mk)
        mfm(kh, G, [0]*4, 0, None, novm=True)
        ts(9)
        lds_wait(a, f"L_WOA{K}", CNTOA, 8)
        probe_loop(mk, f"L_SR{K}", True)
        a.lab(f"L_SR{K}_LV")
        load_validate_loop(kh, R, f"L_SRV{K}")
        mfm(kh, R, [0]*5, 0, None, novm=True)
        ts(11)
        send = AC + 20 if kh == 0 else AC
        keep = AC if kh == 0 else AC + 20
        a("s_nop 7")
        for Tn in range(5): a(f"ds_write_b128 v18, v[{send+4*Tn}:{send+4*Tn+3}] offset:{Tn*1024}")
        a("s_waitcnt lgkmcnt(0)")
        a("s_barrier")
        for Tn in range(5): a(f"ds_read_b128 v[{OF+4*Tn}:{OF+4*Tn+3}], v19 offset:{Tn*1024}")
        for Tn in range(5):
            a(f"s_waitcnt lgkmcnt({4-Tn})")
            add_out(OF+4*Tn, keep, Tn, OF+20+2*Tn)
    lds_inc(a, CNTOA, save_exec, rest_exec)
    a(f"s_cmp_eq_u32 s{S_HST}, 4")
    a("s_cbranch_scc0 L_P3C0")
    a("s_waitcnt vmcnt(2)")
    a(f"v_mov_b32 v{PF}, v{V_TG+1}")
    a("s_branch L_P3C1")
    a.lab("L_P3C0")
    poll_issue()
    a("s_waitcnt vmcnt(0)")
    a.lab("L_P3C1")
    poll_check("L_POLLC", 0xFFFF)
    if debug_stage == 2:
        a("s_waitcnt vmcnt(0)")
        a("s_branch L_FIN")
        return
    a(f"s_cmp_eq_u32 s{S_HEAD}, 0")
    a("s_cbranch_scc0 L_P3K1")
    path(0)
    a("s_branch L_FIN")
    a.lab("L_P3K1")
    path(1)
    a(f"s_cmp_lg_u32 s{S_HP}, 0")
    a("s_cbranch_scc1 L_FIN")
    a(f"s_cmp_lg_u32 s{S_WID}, 4")
    a("s_cbranch_scc1 L_FIN")
    a(f"v_mov_b32 v{t}, 0")
    a(f"v_mov_b32 v{t+1}, s{S_TAGO}")
    a(f"s_mov_b64 exec, 1")
    a(f"buffer_store_dword v{t+1}, v{t}, {WS}, s{S_OFS} offen sc1")

if __name__ == "__main__":
    import argparse
    p = argparse.ArgumentParser(); p.add_argument("--debug", type=int, default=0)
    p.add_argument("--timing", action="store_true"); p.add_argument("--exp", default=""); p.add_argument("-o", default="/dev/stdout")
    args = p.parse_args()
    open(args.o, "w").write(gen(args.debug, args.timing, args.exp))
```
